```python
import torch

def _softmax(x, axis=-1):
    return torch.softmax(x, dim=axis)
def _gelu(x):
    return torch.nn.functional.gelu(x, approximate="tanh")
def _silu(x):
    return torch.nn.functional.silu(x)
def _sigmoid(x):
    return torch.sigmoid(x)
def _layernorm(x, axis=-1, eps=1e-5):
    m = x.mean(dim=axis, keepdim=True)
    v = x.var(dim=axis, keepdim=True, unbiased=False)
    return (x - m) / torch.sqrt(v + eps)
def _scatter_add(tgt, idx, src, axis=0):
    return tgt.clone().index_add_(axis, idx, src)
def _segment_sum(src, seg, n):
    out = torch.zeros((n,) + src.shape[1:], dtype=src.dtype)
    return out.index_add_(0, seg, src)
def _pad(x, pw):
    flat = tuple(v for pair in reversed(pw) for v in pair)
    return torch.nn.functional.pad(x, flat)

kernel_name = 'gated_mix__sliding_block__sliding_local_dilated__prompt'

def setup_inputs():

    _w = (lambda a: (lambda t: t.to(torch.bfloat16) if t.is_floating_point() else t)(torch.as_tensor(a)))
    def _A_setup():
        B, S, D = 1, 2048, 512
        return {
            "x": _w((lambda *s: torch.randn(*s, dtype=torch.bfloat16) * 0.05)(B, S, D)),
            "wqkv": _w((lambda *s: torch.randn(*s, dtype=torch.bfloat16) * 1.6)(D, 3 * D)),
            "wo": _w((lambda *s: torch.randn(*s, dtype=torch.bfloat16) * 0.05)(D, D)),
        }
    _A_in = _A_setup()

    def _B_setup():
        B, S, D = 1, 2048, 512
        return {
            "x": _w((lambda *s: torch.randn(*s, dtype=torch.bfloat16) * 0.05)(B, S, D)),
            "wqkv": _w((lambda *s: torch.randn(*s, dtype=torch.bfloat16) * 1.6)(D, 3 * D)),
            "wo": _w((lambda *s: torch.randn(*s, dtype=torch.bfloat16) * 0.05)(D, D)),
        }
    _B_in = _B_setup()

    return {
        "A_x": _A_in["x"],
        "A_wqkv": _A_in["wqkv"],
        "A_wo": _A_in["wo"],
        "B_x": _B_in["x"],
        "B_wqkv": _B_in["wqkv"],
        "B_wo": _B_in["wo"],
        "gate_w": _w((lambda *s: torch.randn(*s, dtype=torch.bfloat16) * 0.05)(512) * 16.0),
    }

def reference(A_x, A_wqkv, A_wo, B_x, B_wqkv, B_wo, gate_w):
    def _A_ref(x, wqkv, wo):
        B, S, D = x.shape
        H = 32; Dh = D // H; W = 256
        qkv = (lambda x, *d: x.permute(*d))((x @ wqkv).reshape(B, S, 3, H, Dh), 2, 0, 3, 1, 4)
        q, k, v = qkv[0], qkv[1], qkv[2]
        scores = torch.einsum("bhqd,bhkd->bhqk", q, k) * (Dh ** -0.5)
        idx = torch.arange(S)
        mask = (idx[:, None] - idx[None, :] >= 0) & (idx[:, None] - idx[None, :] < W)
        scores = torch.where(mask[None, None], scores, -1e9)
        p = _softmax(scores, axis=-1)
        o = torch.einsum("bhqk,bhkd->bhqd", p, v)
        return (lambda x, *d: x.permute(*d))(o, 0, 2, 1, 3).reshape(B, S, D) @ wo

    def _B_ref(x, wqkv, wo):
        B, S, D = x.shape
        H = 32; Dh = D // H
        W, dil = 8, 2
        qkv = (lambda x, *d: x.permute(*d))((x @ wqkv).reshape(B, S, 3, H, Dh), 2, 0, 3, 1, 4)
        q, k, v = qkv[0], qkv[1], qkv[2]
        scale = Dh ** -0.5
        pos = torch.arange(S)
        off = torch.arange(W) * dil
        idx = pos[:, None] - off[None, :]
        mask = idx >= 0
        idx_c = torch.where(mask, idx, 0).reshape(-1)
        kg = k[:, :, idx_c, :].reshape(B, H, S, W, Dh)
        vg = v[:, :, idx_c, :].reshape(B, H, S, W, Dh)
        logits = torch.einsum("bhsd,bhswd->bhsw", q, kg) * scale
        logits = torch.where(mask[None, None, :, :], logits, -1e9)
        attn = _softmax(logits, axis=-1)
        o = torch.einsum("bhsw,bhswd->bhsd", attn, vg)
        return (lambda x, *d: x.permute(*d))(o, 0, 2, 1, 3).reshape(B, S, D) @ wo

    x = A_x
    g = _sigmoid((x * gate_w).sum(-1, keepdims=True))
    a = _A_ref(x, A_wqkv, A_wo)
    b = _B_ref(x, B_wqkv, B_wo)
    return g * a + (1 - g) * b
```

```python
import re

REG_RE = re.compile(r"(?<![\w.])([vas])(?:\[(\d+):(\d+)\]|(\d+))(?![\w\[])")
TRANS = ("v_exp_f32", "v_log_f32", "v_rcp_f32", "v_rsq_f32", "v_sqrt_f32", "v_sin_f32", "v_cos_f32")


def regs_of(txt):
    out = []
    for m in REG_RE.finditer(txt):
        k = m.group(1)
        if m.group(2) is not None:
            out += [(k, i) for i in range(int(m.group(2)), int(m.group(3)) + 1)]
        else:
            out.append((k, int(m.group(4))))
    for name in ("vcc", "exec", "m0"):
        if re.search(r"(?<![\w])" + name + r"(?![\w])", txt):
            out.append((name, 0))
    return out


def split_ops(s):
    ops, depth, cur = [], 0, ""
    for ch in s:
        if ch == "[":
            depth += 1
        if ch == "]":
            depth -= 1
        if ch == "," and depth == 0:
            ops.append(cur.strip()); cur = ""
        else:
            cur += ch
    if cur.strip():
        ops.append(cur.strip())
    return ops


class Ins:
    def __init__(self, text, tag=None):
        self.text = text.strip()
        self.tag = tag
        t = self.text.split(";")[0].strip()
        self.op = t.split()[0] if t else ""
        rest = t[len(self.op):].strip()
        self.ops = split_ops(rest)
        self.kind = self._kind()
        self.reads, self.writes, self.srcc = set(), set(), set()
        self._deps()

    def _kind(self):
        o = self.op
        if o.endswith(":"):
            return "label"
        if o.startswith("v_mfma"):
            return "mfma"
        if o.startswith(TRANS):
            return "trans"
        if o.startswith("v_"):
            return "valu"
        if o.startswith("ds_read"):
            return "dsr"
        if o.startswith("ds_write"):
            return "dsw"
        if o.startswith(("buffer_load", "global_load")):
            return "dma" if re.search(r"\blds\b", self.text) else "vld"
        if o.startswith(("buffer_store", "global_store", "buffer_atomic", "global_atomic")):
            return "vst"
        if o.startswith(("s_load", "s_memtime", "s_memrealtime")):
            return "smem"
        if o in ("s_waitcnt", "s_nop", "s_barrier", "s_endpgm", "s_sleep", "s_setprio"):
            return o
        if o.startswith(("s_cbranch", "s_branch")):
            return "branch"
        if o.startswith("s_"):
            return "salu"
        if o.startswith("."):
            return "directive"
        raise ValueError("unknown op " + self.text)

    def _deps(self):
        k, ops = self.kind, self.ops
        R = lambda xs: set(r for x in xs for r in regs_of(x))
        if k == "mfma":
            self.writes = R(ops[:1]); self.reads = R(ops[1:4]); self.srcc = R(ops[3:4])
            self.srcab = R(ops[1:3])
        elif k in ("valu", "trans"):
            o = self.op
            if o.startswith("v_permlane32_swap") or o.startswith("v_permlane16_swap"):
                self.writes = R(ops[:2]); self.reads = R(ops[:2])
            elif o.startswith(("v_add_co", "v_sub_co", "v_addc_co", "v_subb_co")):
                self.writes = R(ops[:2]); self.reads = R(ops[2:])
            else:
                self.writes = R(ops[:1]); self.reads = R(ops[1:])
                if o.startswith(("v_fmac", "v_dot2c", "v_writelane")):
                    self.reads |= self.writes
            self.reads.add(("exec", 0))
        elif k == "dsr":
            self.writes = R(ops[:1]); self.reads = R(ops[1:])
        elif k == "dsw":
            self.reads = R(ops)
        elif k == "vld":
            self.writes = R(ops[:1]); self.reads = R(ops[1:])
        elif k == "dma":
            self.reads = R(ops) | {("m0", 0)}
        elif k == "vst":
            self.reads = R(ops)
            if self.op.startswith("buffer_"):
                self.data = R(ops[:1])
            else:
                self.data = R(ops[1:2])
        elif k == "smem":
            self.writes = R(ops[:1]); self.reads = R(ops[1:])
        elif k == "salu":
            if self.op.startswith(("s_cmp", "s_bitcmp")):
                self.reads = R(ops)
            elif "saveexec" in self.op:
                self.writes = R(ops[:1]) | {("exec", 0)}; self.reads = R(ops[1:]) | {("exec", 0)}
            else:
                self.writes = R(ops[:1]); self.reads = R(ops[1:])


class WaitTag:
    kind = "waittag"
    def __init__(self, *tags): self.tags = set(tags)


class WaitLds:
    kind = "waitlds"


class Raw:
    kind = "raw"
    def __init__(self, text): self.text = text


class Prog:
    def __init__(self):
        self.items = []

    def __call__(self, text, tag=None):
        for line in text.strip().split("\n"):
            line = line.strip()
            if line and not line.startswith(";"):
                self.items.append(Ins(line, tag))
        return self

    def add(self, x):
        if isinstance(x, str):
            self(x)
        elif isinstance(x, (list, tuple)):
            for y in x:
                self.add(y)
        else:
            self.items.append(x)
        return self


def slots(ins):
    if ins.kind == "s_nop":
        return int(ins.ops[0], 0) + 1
    if ins.kind in ("label", "directive"):
        return 0
    return 1


def required_gap(p, c):
    need = 0
    vw = {r for r in p.writes if r[0] in "va"}
    sw = {r for r in p.writes if r[0] in ("s", "vcc")}
    cvalu = c.kind in ("valu", "trans")
    if p.kind in ("valu", "trans"):
        if c.kind == "mfma" and vw & c.reads:
            need = max(need, 2)
        if p.kind == "trans" and c.kind != "trans" and (cvalu or c.kind == "mfma") and vw & c.reads:
            need = max(need, 1)
        if cvalu and vw & c.reads:
            if c.op.startswith("v_permlane") or "dpp" in c.text or "row_" in c.text or "quad_perm" in c.text:
                need = max(need, 2)
            if c.op.startswith(("v_readlane", "v_readfirstlane")):
                need = max(need, 1)
        if sw & c.reads:
            if cvalu:
                need = max(need, 4 if c.op.startswith(("v_readlane", "v_writelane")) else 2)
            if c.kind in ("vld", "vst", "dma"):
                need = max(need, 5)
            if c.kind in ("salu", "branch", "smem"):
                need = max(need, 2)
        if ("vcc", 0) in p.writes and c.op.startswith("s_cbranch_vcc"):
            need = max(need, 2)
    if p.kind == "mfma":
        n8 = "32x32" in p.op
        if c.kind == "mfma":
            if p.writes & c.srcab:
                need = max(need, 12 if n8 else 8)
            if p.writes & c.srcc and not (p.writes == c.srcc and p.op == c.op):
                need = max(need, 10 if n8 else 6)
            if p.writes & c.writes and not (p.writes == c.srcc):
                need = max(need, 10 if n8 else 6)
        elif c.kind in ("valu", "trans", "vld", "vst", "dsr", "dsw", "dma"):
            if p.writes & (c.reads | c.writes):
                need = max(need, 12 if n8 else 8)
            if (cvalu or c.kind in ("vld", "dsr")) and p.srcc & c.writes:
                need = max(need, 7 if n8 else 3)
    if p.kind == "salu" and ("m0", 0) in p.writes and c.kind == "dma":
        need = max(need, 1)
    if p.kind == "vst" and re.search(r"x[34]\b", p.op) and p.data & c.writes:
        need = max(need, 2)
    return need


def finalize(prog, verbose=False):
    out, hist = [], []
    vq, lq = [], []
    stats = {"nops": 0, "waits": 0, "maxvm": 0}

    def emit(ins):
        if ins.kind not in ("label", "directive", "s_waitcnt", "s_nop"):
            dist, need = 0, 0
            for p in reversed(hist):
                g = required_gap(p, ins)
                if g > dist:
                    need = max(need, g - dist)
                dist += slots(p)
                if dist >= 20:
                    break
            if need:
                nop = Ins(f"s_nop {need - 1}")
                out.append(nop); hist.append(nop); stats["nops"] += need
        out.append(ins); hist.append(ins)

    def wait(vm=None, lg=None):
        parts = []
        if vm is not None and vm < len(vq):
            del vq[:len(vq) - vm]; parts.append(f"vmcnt({vm})")
        if lg is not None and lg < len(lq):
            lg2 = min(lg, 15)
            del lq[:len(lq) - lg2]; parts.append(f"lgkmcnt({lg2})")
        if parts:
            emit(Ins("s_waitcnt " + " ".join(parts))); stats["waits"] += 1

    for it in prog.items:
        if it.kind == "raw":
            out.append(it); hist.append(Ins("s_nop 0")); continue
        if it.kind == "waitlds":
            wait(lg=0); continue
        if it.kind == "waittag":
            idx = [i for i, o in enumerate(vq) if o.tag in it.tags]
            if idx:
                wait(vm=len(vq) - 1 - idx[-1])
            continue
        touched = it.reads | it.writes if it.kind not in ("label", "directive") else set()
        vm = lg = None
        idx = [i for i, o in enumerate(vq) if o.kind == "vld" and o.writes & touched]
        if idx:
            vm = len(vq) - 1 - idx[-1]
        idx = [i for i, o in enumerate(lq) if o.writes & touched]
        if idx:
            lg = 0 if any(o.kind == "smem" for o in lq) else len(lq) - 1 - idx[-1]
        wait(vm, lg)
        if it.kind == "s_waitcnt":
            m = re.search(r"vmcnt\((\d+)\)", it.text)
            if m and int(m.group(1)) < len(vq):
                del vq[:len(vq) - int(m.group(1))]
            m = re.search(r"lgkmcnt\((\d+)\)", it.text)
            if m and int(m.group(1)) < len(lq):
                del lq[:len(lq) - int(m.group(1))]
        if it.kind in ("vld", "vst", "dma") and len(vq) >= 62:
            wait(vm=60)
        emit(it)
        if it.kind in ("vld", "vst", "dma"):
            vq.append(it); stats["maxvm"] = max(stats["maxvm"], len(vq))
        if it.kind in ("dsr", "dsw", "smem"):
            lq.append(it)
    if verbose:
        print(stats)
    lines = []
    for o in out:
        if o.kind == "raw":
            lines.append(o.text.rstrip("\n"))
        elif o.kind == "label":
            lines.append(o.text)
        else:
            lines.append("    " + o.text)
    return "\n".join(lines) + "\n"


def weave(main, fill, slots_after):
    out, fill = [], list(fill)
    for i, m in enumerate(main):
        out.append(m)
        for _ in range(slots_after[i]):
            if fill:
                out.append(fill.pop(0))
    return out, fill
```

```python
import sys, math
from asmdsl import Prog, Ins, WaitTag, WaitLds, Raw, finalize

NAME = "gated_mix__sliding_block__sliding_local_dilated__prompt"
OPT = dict(stamps=0, standin=0, kv_flag_step=48, kv_poll_step=58, dump=0)
for a in sys.argv[2:]:
    k, v = a.split("="); OPT[k] = int(v)

WS_KV, WS_HB, WS_O = 0, 4 << 20, 5 << 20
WS_FKV, WS_FO, WS_STAMP, WS_DUMP, WS_SIZE = 9 << 20, (9 << 20) + 65536, 10 << 20, 12 << 20, 64 << 20
OOB = 0x80000000
NSLOT, SLOT = 5, 16384
L_X, L_G, L_GP, L_EX, LDS_BYTES = 81920, 147456, 148480, 131072, 149504
QK_SCALE = 0.25 * math.log2(math.e)
NEG_BIG = 0xf149f2ca
ONES = 0x3f803f80

def fhex(x):
    import struct
    return "0x%08x" % struct.unpack("<I", struct.pack("<f", x))[0]
def v(a, n=1): return f"v{a}" if n == 1 else f"v[{a}:{a+n-1}]"
def a_(a, n=1): return f"a{a}" if n == 1 else f"a[{a}:{a+n-1}]"
def s(a, n=1): return f"s{a}" if n == 1 else f"s[{a}:{a+n-1}]"

V_LANE, V_X0, V_X1, V_W1, V_W2 = 1, 2, 3, 4, 5
V_AX = 6
V_AXW, V_AG = 10, 11
V_T1L, V_T1H, V_T3L, V_T3H, V_T2L, V_T2H = 12, 13, 14, 15, 16, 17
V_L16, V_LO, V_HI = 18, 19, 20
V_STAMP = 21
V_PM = 22
V_G0 = 30
T1, T3, T2 = 32, 64, 96
VA, VB = 32, 48
SB = 64
OB_ACC, NEGM = 96, 96
CM, MG = 128, 128
XB, WB = 160, 176
PB, PF, TMP = 160, 176, 184
XW, GF, VPK = 192, 200, 204
OA_ACC = 192
KA, KB, QA, QB = 224, 232, 240, 248
A_K, A_V, A_KBH, A_VBH, A_G, A_OB, A_OA = 0, 32, 96, 100, 104, 136, 0
A_EP = 200
V_EP = 220
V_GPW, V_GPR = 222, 223
S_X, S_W, S_WS, S_WO, S_OUT, S_DBG, S_G = 24, 28, 32, 36, 40, 44, 48
S_WAVE, S_HG, S_RB, S_ROT, S_HEAD, S_RB3, S_CB = 52, 53, 54, 55, 56, 57, 58
S_K, S_T0, S_MW, S_MX, S_T1 = 59, 60, 61, 62, 63
S_MASK = 64
S_T2, S_T3 = 96, 97
S_LO16 = 98
S_TM = 100
S_C = 10
S_SPIN = 3

P = Prog()
nstamp = [0]
def stamp():
    if OPT["stamps"]:
        P.add(WaitLds())
        P(f"s_memtime {s(S_TM,2)}\ns_waitcnt lgkmcnt(0)\nv_writelane_b32 {v(V_STAMP)}, {s(S_TM)}, {nstamp[0]}")
        nstamp[0] += 1

def mfma(d, a, b, c):
    return f"v_mfma_f32_32x32x16_bf16 {d}, {a}, {b}, {c}"

def srd(base, ptr, nbytes):
    return [f"s_mov_b32 {s(base)}, {s(ptr)}", f"s_mov_b32 {s(base+1)}, {s(ptr+1)}",
            f"s_mov_b32 {s(base+2)}, {nbytes}", f"s_mov_b32 {s(base+3)}, 0x20000"]

labels = [0]
def poll_check(reg, cmp_txt, reload_txt):
    n = labels[0]; labels[0] += 1
    P(f"s_mov_b32 {s(S_SPIN)}, 0x40000")
    P(cmp_txt)
    P(f"s_cmp_eq_u64 vcc, -1\ns_cbranch_scc1 L_pok{n}")
    P.add(Raw(f"""L_pspin{n}:
    {reload_txt}
    s_sub_u32 {s(S_SPIN)}, {s(S_SPIN)}, 1
    s_cbranch_scc1 L_pok{n}
    s_waitcnt vmcnt(0)
    {cmp_txt}
    s_nop 2
    s_cmp_eq_u64 vcc, -1
    s_cbranch_scc0 L_pspin{n}
L_pok{n}:"""))

P(f"""
s_cmp_ge_u32 s2, 256
s_cbranch_scc1 L_end
s_load_dwordx16 s[4:19], s[0:1], 0
s_load_dwordx4 s[20:23], s[0:1], 64
s_getpc_b64 {s(S_T2,2)}
v_and_b32 {v(V_LANE)}, 63, v0
v_lshrrev_b32 v2, 6, v0
s_lshr_b32 {s(S_T0)}, s2, 3
s_and_b32 {s(S_T1)}, {s(S_T0)}, 3
s_lshl_b32 {s(S_T1)}, {s(S_T1)}, 13
v_lshlrev_b32 v3, 7, {v(V_LANE)}
v_add_u32 v3, {s(S_T1)}, v3
v_readfirstlane_b32 {s(S_WAVE)}, v2
global_load_dword v31, v3, {s(S_T2,2)}
""", tag="codepf")
if OPT["stamps"]:
    P(f"v_mov_b32 {v(V_STAMP)}, 0")
P(f"""
s_and_b32 {s(S_T1)}, s2, 1
s_lshl_b32 {s(S_HG)}, {s(S_T1)}, 2
s_and_b32 {s(S_K)}, {s(S_T0)}, 3
s_add_u32 {s(S_HG)}, {s(S_HG)}, {s(S_K)}
s_bfe_u32 {s(S_K)}, s2, 0x20001
s_lshl_b32 {s(S_K)}, {s(S_K)}, 3
s_lshr_b32 {s(S_ROT)}, {s(S_T0)}, 2
s_add_u32 {s(S_RB)}, {s(S_K)}, {s(S_ROT)}
s_lshl_b32 {s(S_T1)}, {s(S_T1)}, 2
s_add_u32 {s(S_RB3)}, {s(S_K)}, {s(S_T1)}
s_lshr_b32 {s(S_T1)}, {s(S_T0)}, 3
s_add_u32 {s(S_RB3)}, {s(S_RB3)}, {s(S_T1)}
s_and_b32 {s(S_CB)}, {s(S_T0)}, 7
s_lshl_b32 {s(S_HEAD)}, {s(S_HG)}, 2
s_add_u32 {s(S_HEAD)}, {s(S_HEAD)}, {s(S_WAVE)}
""")
i3, i4, p7, t0, t1, t2 = 22, 23, 24, 25, 26, 27
P(f"""
v_lshrrev_b32 {v(i3)}, 3, {v(V_LANE)}
v_lshrrev_b32 {v(i4)}, 4, {v(V_LANE)}
v_and_b32 {v(p7)}, 7, {v(V_LANE)}
s_lshl_b32 {s(S_T0)}, {s(S_WAVE)}, 4
v_add_u32 {v(t0)}, {s(S_T0)}, {v(i3)}
v_lshlrev_b32 {v(t0)}, 10, {v(t0)}
v_xor_b32 {v(t1)}, {v(p7)}, {v(i4)}
v_lshl_add_u32 {v(V_X0)}, {v(t1)}, 4, {v(t0)}
v_xor_b32 {v(V_X1)}, 64, {v(V_X0)}
v_add_u32 {v(V_X1)}, 0x2000, {v(V_X1)}
s_lshr_b32 {s(S_T0)}, {s(S_WAVE)}, 1
s_and_b32 {s(S_T1)}, {s(S_WAVE)}, 1
s_lshl_b32 {s(S_K)}, {s(S_T0)}, 4
v_add_u32 {v(t0)}, {s(S_K)}, {v(i4)}
v_mul_u32_u24 {v(t0)}, 0xc00, {v(t0)}
v_lshlrev_b32 {v(t1)}, 1, {v(i4)}
v_xor_b32 {v(t1)}, {v(t1)}, {v(p7)}
v_lshl_add_u32 {v(t0)}, {v(t1)}, 4, {v(t0)}
v_and_b32 {v(t1)}, 1, {v(i3)}
v_xor_b32 {v(t1)}, {s(S_T1)}, {v(t1)}
v_lshlrev_b32 {v(t1)}, 10, {v(t1)}
s_lshl_b32 {s(S_T2)}, {s(S_HG)}, 7
s_add_u32 {s(S_K)}, {s(S_T2)}, 1024
v_add3_u32 {v(V_W1)}, {v(t0)}, {v(t1)}, {s(S_K)}
s_lshl_b32 {s(S_K)}, {s(S_T0)}, 5
v_add_u32 {v(t0)}, {s(S_K)}, {v(i3)}
v_mul_u32_u24 {v(t0)}, 0xc00, {v(t0)}
v_and_b32 {v(t1)}, 1, {v(i4)}
s_lshl_b32 {s(S_K)}, {s(S_T1)}, 1
v_add_u32 {v(t1)}, {s(S_K)}, {v(t1)}
v_lshlrev_b32 {v(t1)}, 1, {v(t1)}
v_xor_b32 {v(t1)}, {v(t1)}, {v(p7)}
v_lshl_add_u32 {v(t0)}, {v(t1)}, 4, {v(t0)}
v_add_u32 {v(V_W2)}, {s(S_T2)}, {v(t0)}
s_lshl_b32 {s(S_MW)}, {s(S_T1)}, 13
s_lshl_b32 {s(S_K)}, {s(S_T0)}, 12
s_add_u32 {s(S_MW)}, {s(S_MW)}, {s(S_K)}
s_lshl_b32 {s(S_MX)}, {s(S_WAVE)}, 11
s_add_u32 {s(S_MX)}, {s(S_MX)}, {L_X}
s_lshl_b32 {s(S_K)}, {s(S_ROT)}, 3
v_add_u32 {v(t2)}, {s(S_K)}, {v(V_LANE)}
v_and_b32 {v(t2)}, 63, {v(t2)}
v_lshlrev_b32 {v(t2)}, 4, {v(t2)}
s_waitcnt lgkmcnt(0)
""")
stamp()
P.add(srd(S_X, 4, 2097152))
P(f"""
s_cmp_eq_u32 {s(S_T1)}, 0
s_cselect_b32 {s(S_W)}, s6, s12
s_cselect_b32 {s(S_W+1)}, s7, s13
s_cselect_b32 {s(S_WO)}, s8, s14
s_cselect_b32 {s(S_WO+1)}, s9, s15
s_mov_b32 {s(S_W+2)}, 1572864
s_mov_b32 {s(S_W+3)}, 0x20000
""")

def x_dma(j):
    return [[f"s_add_u32 {s(S_K)}, {s(S_ROT)}, {j}", f"s_and_b32 {s(S_K)}, {s(S_K)}, 7",
             f"s_lshl_b32 {s(S_K)}, {s(S_K)}, 7", f"s_lshl_b32 {s(S_T0)}, {s(S_RB)}, 16",
             f"s_add_u32 {s(S_K)}, {s(S_K)}, {s(S_T0)}",
             f"s_add_u32 m0, {s(S_MX)}, {j*8192}",
             Ins(f"buffer_load_dwordx4 {v(V_X0)}, {s(S_X,4)}, {s(S_K)} offen lds", f"x{j}")],
            [f"s_add_u32 m0, {s(S_MX)}, {j*8192+1024}",
             Ins(f"buffer_load_dwordx4 {v(V_X1)}, {s(S_X,4)}, {s(S_K)} offen lds", f"x{j}")]]

def w_dma(S):
    out = []
    base = (S % NSLOT) * SLOT
    for t in range(4):
        g = []
        if t == 0:
            if S < 16:
                g += [f"s_lshl_b32 {s(S_T3)}, {s(S_ROT)}, 1", f"s_add_u32 {s(S_T3)}, {s(S_T3)}, {S}",
                      f"s_and_b32 {s(S_T3)}, {s(S_T3)}, 15", f"s_mul_i32 {s(S_T3)}, {s(S_T3)}, {32*3072}"]
            else:
                g += [f"s_add_u32 {s(S_T3)}, {s(S_ROT)}, {S-16}", f"s_and_b32 {s(S_T3)}, {s(S_T3)}, 7",
                      f"s_mul_i32 {s(S_T3)}, {s(S_T3)}, {64*3072}"]
        else:
            g += [f"s_add_u32 {s(S_T3)}, {s(S_T3)}, {(4 if S < 16 else 8)*3072}"]
        g += [f"s_add_u32 m0, {s(S_MW)}, {base + t*1024}",
              Ins(f"buffer_load_dwordx4 {v(V_W1 if S < 16 else V_W2)}, {s(S_W,4)}, {s(S_T3)} offen lds", f"w{S}")]
        out.append(g)
    return out

setup = []
def su(txt):
    for l in txt.strip().split("\n"):
        if l.strip(): setup.append(l.strip())
r5, hh, rr, cc, nh, u0, u1, cm = 160, 161, 162, 163, 164, 165, 166, 167
su(f"""
v_and_b32 {v(r5)}, 31, {v(V_LANE)}
v_lshrrev_b32 {v(hh)}, 5, {v(V_LANE)}
v_bfe_u32 {v(u0)}, {v(r5)}, 1, 3
v_xor_b32 {v(u0)}, {v(u0)}, {v(hh)}
v_lshlrev_b32 {v(u0)}, 4, {v(u0)}
v_lshl_add_u32 {v(u0)}, {v(r5)}, 7, {v(u0)}
v_add_u32 {v(V_AX)}, {L_X}, {v(u0)}
v_xor_b32 {v(V_AX+1)}, 32, {v(V_AX)}
v_xor_b32 {v(V_AX+2)}, 64, {v(V_AX)}
v_xor_b32 {v(V_AX+3)}, 0x60, {v(V_AX)}
s_lshl_b32 {s(S_T2)}, {s(S_WAVE)}, 5
v_xor_b32 {v(V_AXW)}, {s(S_T2)}, {v(V_AX)}
v_lshlrev_b32 {v(u0)}, 4, {v(hh)}
s_add_u32 {s(S_T2)}, {s(S_T2)}, {L_G}
v_add_u32 {v(V_AG)}, {s(S_T2)}, {v(u0)}
v_bfe_u32 {v(rr)}, {v(V_LANE)}, 2, 2
v_and_b32 {v(cc)}, 3, {v(V_LANE)}
v_bfe_u32 {v(nh)}, {v(V_LANE)}, 4, 1
v_lshl_add_u32 {v(u0)}, {v(hh)}, 3, {v(rr)}
v_xor_b32 {v(u1)}, {s(S_WAVE)}, {v(rr)}
v_lshlrev_b32 {v(u1)}, 5, {v(u1)}
v_lshl_add_u32 {v(u1)}, {v(cc)}, 3, {v(u1)}
v_lshl_add_u32 {v(u1)}, {v(u0)}, 8, {v(u1)}
v_mul_u32_u24 {v(V_T1L)}, 0x2080, {v(nh)}
v_add_u32 {v(V_T1L)}, {v(V_T1L)}, {v(u1)}
v_add_u32 {v(V_T1H)}, 0x10000, {v(V_T1L)}
v_xor_b32 {v(V_T3L)}, 0x80, {v(V_T1L)}
v_xor_b32 {v(V_T3H)}, 0x80, {v(V_T1H)}
v_lshrrev_b32 {v(u1)}, 1, {v(rr)}
v_lshl_add_u32 {v(u1)}, {v(nh)}, 1, {v(u1)}
v_xor_b32 {v(u1)}, {s(S_WAVE)}, {v(u1)}
v_lshlrev_b32 {v(u1)}, 5, {v(u1)}
v_lshl_add_u32 {v(u1)}, {v(cc)}, 3, {v(u1)}
v_lshl_add_u32 {v(u1)}, {v(u0)}, 7, {v(u1)}
v_lshl_add_u32 {v(V_T2L)}, {v(nh)}, 13, {v(u1)}
v_add_u32 {v(V_T2H)}, 0x10000, {v(V_T2L)}
v_lshlrev_b32 {v(V_L16)}, 4, {v(V_LANE)}
v_and_b32 {v(u0)}, 15, {v(V_LANE)}
v_lshlrev_b32 {v(u0)}, 4, {v(u0)}
v_lshl_add_u32 {v(u0)}, {v(hh)}, 8, {v(u0)}
v_lshl_add_u32 {v(V_LO)}, {v(nh)}, 31, {v(u0)}
v_xor_b32 {v(V_HI)}, {OOB}, {v(V_LO)}
v_lshlrev_b32 {v(V_GPR)}, 4, {v(r5)}
v_add_u32 {v(V_GPR)}, {L_GP}, {v(V_GPR)}
s_lshl_b32 {s(S_T2)}, {s(S_WAVE)}, 2
v_add_u32 {v(V_GPW)}, {s(S_T2)}, {v(V_GPR)}
s_mov_b32 {s(S_LO16)}, 0xffff
s_mov_b32 {s(S_LO16+1)}, 0xffff
s_mov_b32 {s(S_C)}, {fhex(QK_SCALE)}
s_mov_b32 {s(S_C+1)}, {fhex(QK_SCALE)}
v_lshlrev_b32 {v(u0)}, 2, {v(hh)}
v_sub_u32 {v(cm)}, {v(r5)}, {v(u0)}
v_mov_b32 {v(u1)}, 0xffff
""")
for q in range(16):
    su(f"v_cmp_le_i32 {s(S_MASK+2*q,2)}, {8*(q>>2)+(q&3)}, {v(cm)}")
for q in range(16):
    K = 8*(q>>2)+(q&3)
    su(f"""v_subrev_u32 {v(CM+16+q)}, {K}, {v(cm)}
v_and_b32 {v(CM+16+q)}, 17, {v(CM+16+q)}
v_cvt_f32_u32 {v(CM+16+q)}, {v(CM+16+q)}
v_mul_f32 {v(CM+16+q)}, {hex(NEG_BIG)}, {v(CM+16+q)}""")
su(f"""s_cmp_eq_u32 {s(S_RB)}, 0
s_cselect_b64 {s(S_TM,2)}, {s(S_LO16,2)}, 0
v_mov_b32 {v(u0)}, {hex(NEG_BIG)}""")
for q in range(16):
    if q < 8: su(f"v_mov_b32 {v(CM+q)}, {v(CM+16+q)}")
    else: su(f"v_cndmask_b32 {v(CM+q)}, {v(CM+16+q)}, {v(u0)}, {s(S_TM,2)}")
pm_setup = []
for pq in range(8):
    pm_setup += [f"v_cndmask_b32 {v(V_PM+pq)}, 0, {v(u1)}, {s(S_MASK+4*pq,2)}",
                 f"v_cndmask_b32 {v(V_PM+pq)}, {v(V_PM+pq)}, -1, {s(S_MASK+4*pq+2,2)}"]
for p in range(8):
    su(f"""s_cmp_ge_u32 {s(S_RB)}, {(8-p+1)//2}
s_cselect_b32 {s(S_T2)}, {hex(ONES)}, 0""")
    for i in range(8):
        su(f"v_accvgpr_write_b32 {a_(A_V+8*p+i)}, {s(S_T2)}")
su(f"s_mov_b32 {s(S_T2)}, {hex(ONES)}")
for i in range(4):
    su(f"v_accvgpr_write_b32 {a_(A_VBH+i)}, {s(S_T2)}")

groups = x_dma(0) + w_dma(0)
groups += [srd(S_G, 16, 1024) + [f"s_mov_b32 m0, {L_G}", Ins(f"buffer_load_dwordx4 {v(t2)}, {s(S_G,4)}, 0 offen lds", "x0")]]
groups += w_dma(1) + x_dma(1) + w_dma(2) + w_dma(3) + x_dma(2) + w_dma(4)
for j in range(3, 8):
    groups += x_dma(j)
late = (srd(S_WS, 22, WS_SIZE) + srd(S_DBG, 20, 256) + srd(S_OUT, 18, 2097152) +
        [f"s_mov_b32 {s(S_WO+2)}, 524288", f"s_mov_b32 {s(S_WO+3)}, 0x20000"])
epoch_pub = [f"s_memrealtime {s(S_TM,2)}",
             f"s_cmp_eq_u32 s2, 0", f"s_cselect_b32 {s(S_T2)}, 0, {OOB}",
             f"v_lshlrev_b32 v28, 8, v0", f"v_or_b32 v28, {s(S_T2)}, v28", "s_waitcnt lgkmcnt(0)",
             f"v_mov_b32 {v(V_EP)}, {s(S_TM)}", f"v_mov_b32 {v(V_EP+1)}, {s(S_TM+1)}",
             Ins(f"buffer_store_dwordx2 {v(V_EP,2)}, v28, {s(S_DBG,4)}, 0 offen sc1", "ep")]
def glue(lst):
    o = []
    for x in lst:
        if o and isinstance(o[-1], str) and o[-1].startswith("s_cmp"):
            o[-1] = [o[-1], x]
        else:
            o.append(x)
    return o
fill = glue(late + epoch_pub + setup + pm_setup)
per = -(-len(fill) // (len(groups) - 7))
for gi, g in enumerate(groups):
    P.add(g)
    if gi >= 6:
        P.add(fill[:per]); fill = fill[per:]
P.add(fill)
stamp()

def stage_of(n): return n >> 1 if n < 32 else 16 + ((n - 32) >> 2)
def first_of_stage(n): return n < 64 and (n == 0 or stage_of(n) != stage_of(n - 1))

def frag_reads(n):
    b = n & 1
    m = n & 31
    j, ux = m >> 2, m & 3
    S = stage_of(n); base = (S % NSLOT) * SLOT
    hi = base >= 65536; off = base - (65536 if hi else 0)
    out = [f"ds_read_b128 {v(XB+8*b+4*tt,4)}, {v(V_AX+ux)} offset:{j*8192+tt*4096}" for tt in range(2)]
    if n < 32:
        u = n & 1
        w = [f"ds_read_b64_tr_b16 {v(WB+8*b+4*t+2*qd,2)}, {v(((V_T1L,V_T1H),(V_T3L,V_T3H))[t][hi])} offset:{off+u*4096+qd*1024}"
             for t in range(2) for qd in range(2)]
        return [w[0], w[1], out[0], w[2], w[3], out[1]]
    w = [f"ds_read_b64_tr_b16 {v(WB+8*b+2*qd,2)}, {v((V_T2L,V_T2H)[hi])} offset:{off+ux*2048+qd*512}" for qd in range(2)]
    return [w[0], w[1], out[0], out[1]]

def step_mfmas(n):
    b = n & 1
    x = lambda tt: v(XB+8*b+4*tt, 4)
    if n < 32:
        c = lambda r: "0" if n == 0 else v(r, 16)
        return [mfma(v(T1,16), v(WB+8*b,4), x(0), c(T1)), mfma(v(T3,16), x(0), v(WB+8*b+4,4), c(T3)),
                mfma(v(T1+16,16), v(WB+8*b,4), x(1), c(T1+16)), mfma(v(T3+16,16), x(1), v(WB+8*b+4,4), c(T3+16))]
    c = lambda r: "0" if n == 32 else v(r, 16)
    return [mfma(v(T2,16), v(WB+8*b,4), x(0), c(T2)), mfma(v(T2+16,16), v(WB+8*b,4), x(1), c(T2+16))]

def stage_sync(n):
    S = stage_of(n) if n < 64 else 24
    tags = [f"w{S}"]
    if n < 32: tags.append(f"x{n >> 2}")
    P.add(WaitLds()); P.add(WaitTag(*tags)); P("s_barrier")

ws_ld = lambda dst, voff, soff, imm=0, tag=None: Ins(
    f"buffer_load_dwordx4 {dst}, {v(voff)}, {s(S_WS,4)}, {soff} offen{' offset:%d' % imm if imm else ''} sc1", tag)
ws_st = lambda src, voff, soff, imm=0, tag=None: Ins(
    f"buffer_store_dwordx4 {src}, {v(voff)}, {s(S_WS,4)}, {soff} offen{' offset:%d' % imm if imm else ''} sc1", tag)

def kv_publish():
    o = []
    o += [f"s_lshl_b32 {s(S_T0)}, {s(S_HEAD)}, 17", f"s_lshl_b32 {s(S_T1)}, {s(S_RB)}, 12",
          f"s_add_u32 {s(S_T0)}, {s(S_T0)}, {s(S_T1)}"]
    for tt in range(2):
        o += [f"v_pk_mul_f32 {v(T1+16*tt+2*i,2)}, {v(T1+16*tt+2*i,2)}, {s(S_C,2)}" for i in range(4)]
        o += [f"v_cvt_pk_bf16_f32 {v(KA+4*tt+i)}, {v(T1+16*tt+2*i)}, {v(T1+16*tt+2*i+1)}" for i in range(4)]
        o += [ws_st(v(KA+4*tt,4), V_L16, s(S_T0), tt*2048, "kv")]
    for tt in range(2):
        for m in range(2):
            o += [f"v_cvt_pk_bf16_f32 {v(VPK+8*tt+4*m+i)}, {v(T3+16*tt+8*m+2*i)}, {v(T3+16*tt+8*m+2*i+1)}" for i in range(4)]
            o += [ws_st(v(VPK+8*tt+4*m,4), V_LO, s(S_T0), tt*2048+1024+m*512, "kv")]
    o += [f"s_lshl_b32 {s(S_T0)}, {s(S_HEAD)}, 15", f"s_lshl_b32 {s(S_T1)}, {s(S_RB)}, 10",
          f"s_add_u32 {s(S_T0)}, {s(S_T0)}, {s(S_T1)}", f"s_add_u32 {s(S_T0)}, {s(S_T0)}, {WS_HB}"]
    for tt in (1, 0):
        o += [f"v_pk_mul_f32 {v(T1+16*tt+8+2*i,2)}, {v(T1+16*tt+8+2*i,2)}, {s(S_C,2)}" for i in range(4)]
        o += [f"v_cvt_pk_bf16_f32 {v(KB+4*tt+i)}, {v(T1+16*tt+8+2*i)}, {v(T1+16*tt+8+2*i+1)}" for i in range(4)]
        if tt == 1:
            o += [ws_st(v(KB+4,4), V_HI, s(S_T0), 0, "kv"), ws_st(v(VPK+12,4), V_HI, s(S_T0), 512, "kv")]
    return o

def gate_partial():
    return [f"v_accvgpr_read_b32 {v(XW)}, {a_(A_G)}", f"v_accvgpr_read_b32 {v(XW+1)}, {a_(A_G+16)}",
            f"ds_write_b32 {v(V_GPW)}, {v(XW)}", f"ds_write_b32 {v(V_GPW)}, {v(XW+1)} offset:512"]

def gate_finish():
    o = [f"ds_read_b128 {v(XW,4)}, {v(V_GPR)}", f"ds_read_b128 {v(XW+4,4)}, {v(V_GPR)} offset:512"]
    for t in range(2):
        b = XW + 4*t
        o += [f"v_add_f32 {v(b)}, {v(b)}, {v(b+1)}", f"v_add_f32 {v(b+2)}, {v(b+2)}, {v(b+3)}"]
    for t in range(2):
        b = XW + 4*t
        o += [f"v_add_f32 {v(b)}, {v(b)}, {v(b+2)}"]
    for t in range(2):
        o += [f"v_mul_f32 {v(XW+4*t)}, {fhex(-math.log2(math.e))}, {v(XW+4*t)}"]
    for t in range(2):
        o += [f"v_exp_f32 {v(XW+4*t)}, {v(XW+4*t)}"]
    for t in range(2):
        o += [f"v_add_f32 {v(XW+4*t)}, 1.0, {v(XW+4*t)}"]
    for t in range(2):
        o += [f"v_rcp_f32 {v(V_G0+t)}, {v(XW+4*t)}"]
    return o

def v_split():
    o = [f"v_mov_b32 {v(GF)}, {hex(ONES)}"]
    for tt in range(2):
        for i in range(8):
            o += [f"v_cndmask_b32 {v(VA+8*tt+i)}, {v(GF)}, {v(VPK+8*tt+i)}, {s(S_LO16,2)}",
                  f"v_cndmask_b32 {v(VB+8*tt+i)}, {v(VPK+8*tt+i)}, {v(GF)}, {s(S_LO16,2)}"]
    return o

V_FO, V_FL = 28 + 0, 0
FLG = GF + 2
ep_load = f"buffer_load_dwordx2 {v(V_EP,2)}, off, {s(S_DBG,4)}, 0 sc1"
def flag_store(soff_setup, tag):
    return soff_setup + [f"v_lshlrev_b32 v0, 26, {v(V_LANE)}",
                         Ins(f"buffer_store_dwordx2 {v(V_EP,2)}, v0, {s(S_WS,4)}, {s(S_T0)} offen sc1", tag)]

stage_sync(0)
stamp()
P.add(frag_reads(0))
queue = []
for n in range(64):
    mf = step_mfmas(n)
    pre = []
    if first_of_stage(n + 1) or n == 63:
        stage_sync(n + 1)
        S = stage_of(n + 1) + NSLOT - 1 if n < 63 else 99
        if S < 24:
            pre = [x for g in w_dma(S) for x in g]
    rd = frag_reads(n + 1) if n < 63 else []
    extra = []
    if n < 32 and (n & 3) == 0:
        j = n >> 2
        extra = [f"ds_read_b128 {v(GF,4)}, {v(V_AG)} offset:{j*128}",
                 f"ds_read_b128 {v(XW,4)}, {v(V_AXW)} offset:{j*8192}",
                 f"ds_read_b128 {v(XW+4,4)}, {v(V_AXW)} offset:{j*8192+4096}"]
    if n < 32 and (n & 3) == 2:
        c = (lambda r: "0") if n == 2 else (lambda r: a_(r, 16))
        mf = mf + [mfma(a_(A_G,16), v(GF,4), v(XW,4), c(A_G)), mfma(a_(A_G+16,16), v(GF,4), v(XW+4,4), c(A_G+16))]
    if n == 16:
        queue += [Ins(ep_load, "epl")]
    if n == 33:
        queue += kv_publish() + gate_partial()
    if n == 38:
        queue += v_split()
    if n == 44:
        queue += gate_finish()
    body = rd + extra + pre
    burst = 100 if n == 33 else 6
    body += queue[:burst]; queue = queue[burst:]
    k = len(mf)
    share = [len(body) // k + (1 if i < len(body) % k else 0) for i in range(k)]
    for i, m in enumerate(mf):
        P(m); P.add(body[:share[i]]); body = body[share[i]:]
    if n == 31:
        stamp()
    if n == OPT["kv_flag_step"]:
        poll_check(V_EP, f"v_cmp_ne_u64 vcc, 0, {v(V_EP,2)}", ep_load)
        P.add(WaitTag("kv"))
        P.add(flag_store([f"s_lshl_b32 {s(S_T0)}, {s(S_HEAD)}, 5", f"s_add_u32 {s(S_T0)}, {s(S_T0)}, {s(S_RB)}",
                          f"s_lshl_b32 {s(S_T0)}, {s(S_T0)}, 3", f"s_add_u32 {s(S_T0)}, {s(S_T0)}, {WS_FKV}"], "fkv"))
        P(f"v_accvgpr_write_b32 {a_(A_EP)}, {v(V_EP)}\nv_accvgpr_write_b32 {a_(A_EP+1)}, {v(V_EP+1)}")
        stamp()
    if n == OPT["kv_poll_step"]:
        P(f"""v_and_b32 v0, 3, {v(V_LANE)}
s_sub_u32 {s(S_T1)}, {s(S_RB)}, 4
v_add_u32 v0, {s(S_T1)}, v0
v_max_i32 v0, 0, v0
v_lshlrev_b32 v0, 3, v0
s_lshl_b32 {s(S_K)}, {s(S_HEAD)}, 8
s_add_u32 {s(S_K)}, {s(S_K)}, {WS_FKV}""")
        kvflag_load = f"buffer_load_dwordx2 {v(FLG,2)}, v0, {s(S_WS,4)}, {s(S_K)} offen sc1"
        P(kvflag_load)
assert not queue
stamp()

poll_check(FLG, f"v_cmp_eq_u64 vcc, {v(FLG,2)}, {v(V_EP,2)}", kvflag_load)
stamp()
def gather(special):
    o = []
    o += [f"s_lshl_b32 {s(S_T0)}, {s(S_HEAD)}, 15", f"s_lshl_b32 {s(S_T1)}, {s(S_RB)}, 10",
          f"s_add_u32 {s(S_T0)}, {s(S_T0)}, {s(S_T1)}", f"s_add_u32 {s(S_T0)}, {s(S_T0)}, {WS_HB - 1024}"]
    if special:
        o += [f"s_cmp_eq_u32 {s(S_RB)}, 0", f"s_cselect_b32 {s(S_T0)}, {WS_SIZE}, {s(S_T0)}"]
    o += [ws_ld(a_(A_KBH,4), V_HI, s(S_T0), 0, "hb"), f"s_not_b64 exec, {s(S_LO16,2)}",
          ws_ld(a_(A_VBH,4), V_HI, s(S_T0), 512, "hb"), "s_mov_b64 exec, -1"]
    o += [f"s_lshl_b32 {s(S_K)}, {s(S_HEAD)}, 17", f"s_lshl_b32 {s(S_T1)}, {s(S_RB)}, 12",
          f"s_add_u32 {s(S_T0)}, {s(S_K)}, {s(S_T1)}", f"s_sub_u32 {s(S_T0)}, {s(S_T0)}, {8*2048}"]
    if special:
        o += [f"v_and_b32 v0, 32, {v(V_LANE)}", "v_lshlrev_b32 v0, 4, v0"]
    for p in range(8):
        if p and p % 2 == 0:
            o += [f"s_add_u32 {s(S_T0)}, {s(S_T0)}, 4096"]
        if special:
            o += [f"s_cmp_ge_u32 {s(S_RB)}, {(8-p+1)//2}", f"s_cbranch_scc1 L_gk{p}",
                  ws_ld(a_(A_K+4*p,4), 0, s(S_K)), f"s_branch L_gk{p}e", f"L_gk{p}:",
                  ws_ld(a_(A_K+4*p,4), V_L16, s(S_T0), (p & 1)*2048), f"L_gk{p}e:"]
        else:
            o += [ws_ld(a_(A_K+4*p,4), V_L16, s(S_T0), (p & 1)*2048, f"k{p}")]
    o += [f"s_sub_u32 {s(S_T0)}, {s(S_T0)}, {3*4096}", f"s_mov_b64 exec, {s(S_LO16,2)}"]
    for p in range(8):
        if p and p % 2 == 0:
            o += [f"s_add_u32 {s(S_T0)}, {s(S_T0)}, 4096"]
        so = S_T0
        if special:
            o += [f"s_cmp_ge_u32 {s(S_RB)}, {(8-p+1)//2}", f"s_cselect_b32 {s(S_T1)}, {s(S_T0)}, {WS_SIZE}"]
            so = S_T1
        o += [ws_ld(a_(A_V+8*p+4*m,4), V_LO, s(so), (p & 1)*2048+1024+m*512, f"v{p}") for m in range(2)]
    o += ["s_mov_b64 exec, -1"]
    return o
P(f"s_cmp_lt_u32 {s(S_RB)}, 4\ns_cbranch_scc1 L_gspecial")
P.add(gather(False))
P("L_gdone:")
special_txt = "L_gspecial:\n" + "\n".join(
    (x.text if isinstance(x, Ins) else x) if (isinstance(x, str) and x.endswith(":")) else "    " + (x.text if isinstance(x, Ins) else x)
    for x in gather(True)) + "\n    s_branch L_gdone\n"

for tt in range(2):
    P.add([f"v_cvt_pk_bf16_f32 {v(QB+4*tt+i)}, {v(T2+16*tt+8+2*i)}, {v(T2+16*tt+8+2*i+1)}" for i in range(4)])
for tt in range(2):
    P.add([f"v_cvt_pk_bf16_f32 {v(QA+4*tt+i)}, {v(T2+16*tt+2*i)}, {v(T2+16*tt+2*i+1)}" for i in range(4)])

def max_tree(dst, regs, init=None):
    regs = list(regs); o = []
    if init is None:
        o.append(f"v_max3_f32 {v(dst)}, {v(regs[0])}, {v(regs[1])}, {v(regs[2])}"); regs = regs[3:]
    while len(regs) >= 2:
        o.append(f"v_max3_f32 {v(dst)}, {v(dst)}, {v(regs[0])}, {v(regs[1])}"); regs = regs[2:]
    if regs:
        o.append(f"v_max_f32 {v(dst)}, {v(dst)}, {v(regs[0])}")
    return o

def cross_max(m, t):
    return [f"v_mov_b32 {v(t)}, {v(m)}", f"v_permlane32_swap_b32 {v(m)}, {v(t)}", f"v_max_f32 {v(m)}, {v(m)}, {v(t)}"]

def interleave(*ls):
    o, ls = [], [list(l) for l in ls]
    while any(ls):
        for l in ls:
            if l: o.append(l.pop(0))
    return o

def o_publish(br, acc, lreg, fac_setup):
    o0 = 8 if br else 0
    seq = []
    for tt in range(2):
        f = TMP + tt
        t = [f"v_rcp_f32 {v(f)}, {v(acc+16*tt+lreg)}"] + fac_setup(tt, f)
        t += [f"v_mul_f32 {v(acc+16*tt+o0+i)}, {v(f)}, {v(acc+16*tt+o0+i)}" for i in range(8)]
        t += [f"v_cvt_pk_bf16_f32 {v(PF+4*tt+i)}, {v(acc+16*tt+o0+2*i)}, {v(acc+16*tt+o0+2*i+1)}" for i in range(4)]
        seq.append(t)
    o = interleave(*seq)
    o += [f"s_lshl_b32 {s(S_T0)}, {s(S_RB)}, 16", f"s_lshl_b32 {s(S_T1)}, {s(S_HEAD)}, 10",
          f"s_add_u32 {s(S_T0)}, {s(S_T0)}, {s(S_T1)}", f"s_add_u32 {s(S_T0)}, {s(S_T0)}, {WS_O + br*(2<<20)}",
          ws_st(v(PF,4), V_L16, s(S_T0), 0, f"o{br}"), f"s_add_u32 {s(S_T0)}, {s(S_T0)}, 32768",
          ws_st(v(PF+4,4), V_L16, s(S_T0), 0, f"o{br}")]
    return o

def b_scores(t):
    kprev = v(KB, 4) if t == 1 else a_(A_KBH, 4)
    spare = OA_ACC + 16 * t
    return [mfma(v(SB+16*t,16), v(KB+4*t,4), v(QB+4*t,4), v(CM+16*t,16)),
            mfma(v(spare,16), kprev, v(QB+4*t,4), v(CM+16*t,16))]
def b_softmax(t):
    S, spare, m = SB + 16*t, OA_ACC + 16*t, TMP + 2 + 2*t
    o = [f"v_cndmask_b32 {v(S+q)}, {v(S+q)}, {v(spare+q)}, {s(S_LO16,2)}" for q in range(8, 16)]
    o += max_tree(m, range(S, S+16)) + cross_max(m, m+1)
    o += [f"v_sub_f32 {v(S+q)}, {v(S+q)}, {v(m)}" for q in range(16)]
    o += [f"v_exp_f32 {v(S+q)}, {v(S+q)}" for q in range(16)]
    o += [f"v_cvt_pk_bf16_f32 {v(PB+8*t+i)}, {v(S+2*i)}, {v(S+2*i+1)}" for i in range(8)]
    o += [f"v_cndmask_b32 {v(PF+4*t+i)}, 0, {v(PB+8*t+4+i)}, {s(S_LO16,2)}" for i in range(4)]
    o += [f"v_cndmask_b32 {v(PB+8*t+4+i)}, {v(PB+8*t+4+i)}, 0, {s(S_LO16,2)}" for i in range(4)]
    return o
def b_pv(t):
    vprev = v(VB+4, 4) if t == 1 else a_(A_VBH, 4)
    acc = v(OB_ACC+16*t, 16)
    return [mfma(acc, v(VB+8*t,4), v(PB+8*t,4), "0"), mfma(acc, v(VB+8*t+4,4), v(PB+8*t+4,4), acc),
            mfma(acc, vprev, v(PF+4*t,4), acc)]

P.add(b_scores(1))
sm1 = b_softmax(1)
P.add(sm1[:40]); P.add(b_scores(0)); P.add(sm1[40:])
sm0 = b_softmax(0)
pv1 = b_pv(1)
P.add(sm0[:2]); P(pv1[0]); P.add(sm0[2:10]); P(pv1[1]); P.add(sm0[10:18]); P(pv1[2]); P.add(sm0[18:])
P.add(b_pv(0))
stamp()

def kfrag(p): return a_(A_K+4*p, 4) if p < 8 else v(KA+4*(p-8), 4)
def vfrag(p, m): return a_(A_V+8*p+4*m, 4) if p < 8 else v(VA+8*(p-8)+4*m, 4)
full_tiles = lambda t: list(range(t + 1, t + 8))

def wo_dma():
    o = [[f"v_lshrrev_b32 v0, 3, {v(V_LANE)}", f"v_bfe_u32 {v(V_X0)}, {v(V_LANE)}, 4, 1",
          f"v_lshlrev_b32 {v(V_X0)}, 2, {v(V_X0)}", f"v_and_b32 {v(V_X1)}, 7, {v(V_LANE)}",
          f"v_xor_b32 {v(V_X0)}, {v(V_X0)}, {v(V_X1)}", f"v_lshlrev_b32 {v(V_X0)}, 4, {v(V_X0)}",
          f"v_lshl_add_u32 {v(V_X0)}, v0, 10, {v(V_X0)}",
          f"s_lshr_b32 {s(S_T2)}, {s(S_WAVE)}, 1", f"s_and_b32 {s(S_MW)}, {s(S_WAVE)}, 1",
          f"s_lshl_b32 {s(S_MW)}, {s(S_MW)}, 16", f"s_lshl_b32 {s(S_T3)}, {s(S_T2)}, 15",
          f"s_add_u32 {s(S_MW)}, {s(S_MW)}, {s(S_T3)}", f"s_lshl_b32 {s(S_T3)}, {s(S_T2)}, 18",
          f"s_lshl_b32 {s(S_T2)}, {s(S_CB)}, 7", f"s_add_u32 {s(S_T3)}, {s(S_T3)}, {s(S_T2)}"]]
    for t in range(32):
        g = [f"s_add_u32 {s(S_T3)}, {s(S_T3)}, 8192"] if t else []
        g += [f"s_add_u32 m0, {s(S_MW)}, {t*1024}",
              Ins(f"buffer_load_dwordx4 {v(V_X0)}, {s(S_WO,4)}, {s(S_T3)} offen lds", "wo")]
        o.append(g)
    return o

EPV = TMP + 6
def ep_restore(): return [f"v_accvgpr_read_b32 {v(EPV)}, {a_(A_EP)}", f"v_accvgpr_read_b32 {v(EPV+1)}, {a_(A_EP+1)}"]
def o_flag(br):
    return [WaitTag(f"o{br}"), f"s_lshl_b32 {s(S_T0)}, {s(S_RB)}, 5", f"s_add_u32 {s(S_T0)}, {s(S_T0)}, {s(S_HEAD)}",
            f"s_lshl_b32 {s(S_T0)}, {s(S_T0)}, 3", f"s_add_u32 {s(S_T0)}, {s(S_T0)}, {WS_FO + br*8192}",
            f"v_lshlrev_b32 v0, 26, {v(V_LANE)}",
            Ins(f"buffer_store_dwordx2 {v(EPV,2)}, v0, {s(S_WS,4)}, {s(S_T0)} offen sc1", "fo")]
OFL = V_W1
def o_poll_load(br):
    return f"buffer_load_dwordx2 {v(OFL,2)}, {v(V_X1)}, {s(S_WS,4)}, {s(S_K)} offen sc1"
def o_poll_setup(br):
    return [f"v_and_b32 {v(V_X1)}, 15, {v(V_LANE)}", f"v_lshlrev_b32 {v(V_X1)}, 3, {v(V_X1)}",
            f"s_lshl_b32 {s(S_K)}, {s(S_RB3)}, 8", f"s_lshr_b32 {s(S_T1)}, {s(S_WAVE)}, 1",
            f"s_lshl_b32 {s(S_T1)}, {s(S_T1)}, 7", f"s_add_u32 {s(S_K)}, {s(S_K)}, {s(S_T1)}",
            f"s_add_u32 {s(S_K)}, {s(S_K)}, {WS_FO + br*8192}", o_poll_load(br)]
def o_gather(br):
    dst = A_OB if br else A_OA
    o = [f"s_lshl_b32 {s(S_T0)}, {s(S_RB3)}, 16", f"s_and_b32 {s(S_T1)}, {s(S_WAVE)}, 1",
         f"s_lshl_b32 {s(S_T1)}, {s(S_T1)}, 15", f"s_add_u32 {s(S_T0)}, {s(S_T0)}, {s(S_T1)}",
         f"s_lshr_b32 {s(S_T1)}, {s(S_WAVE)}, 1", f"s_lshl_b32 {s(S_T1)}, {s(S_T1)}, 14",
         f"s_add_u32 {s(S_T0)}, {s(S_T0)}, {s(S_T1)}", f"s_add_u32 {s(S_T0)}, {s(S_T0)}, {WS_O + br*(2<<20)}"]
    for hs in range(16):
        if hs and hs % 4 == 0:
            o += [f"s_add_u32 {s(S_T0)}, {s(S_T0)}, 4096"]
        o += [ws_ld(a_(dst+4*hs,4), V_L16, s(S_T0), (hs & 3)*1024, f"og{br}")]
    return o

ob = o_publish(1, OB_ACC, 0, lambda tt, f: [f"v_sub_f32 {v(TMP+4+tt)}, 1.0, {v(V_G0+tt)}",
                                             f"v_mul_f32 {v(f)}, {v(f)}, {v(TMP+4+tt)}"])
P(mfma(v(MG,16), kfrag(8), v(QA,4), "0"))
P(mfma(v(MG+16,16), kfrag(9), v(QA+4,4), "0"))
P.add(ob[:10]); P(mfma(v(SB,16), kfrag(0), v(QA,4), "0"))
P.add(ob[10:20]); P(mfma(v(SB+16,16), kfrag(1), v(QA+4,4), "0"))
P.add(ob[20:])
P.add(ep_restore())
M0, M1 = TMP + 2, TMP + 4
side = wo_dma()
def take_side(n):
    o = []
    for _ in range(n):
        if side: o += side.pop(0)
    return o
for t in range(2):
    P.add([f"v_cndmask_b32 {v(MG+16*t+q)}, {v(SB+16*t+q)}, {v(MG+16*t+q)}, {s(S_MASK+2*q,2)}" for q in range(16)])
    if not OPT["standin"]:
        P(mfma(v(SB+16*t,16), kfrag(full_tiles(t)[0]), v(QA+4*t,4), "0"))
    P.add(take_side(1))
for t in range(2):
    P.add(max_tree((M0, M1)[t], range(MG+16*t, MG+16*t+16)))
if not OPT["standin"]:
    SP = (SB, SB+16, NEGM, NEGM+16)
    for i in range(7):
        for t in range(2):
            cur = SP[t + 2*(i & 1)]; nxt = SP[t + 2*((i+1) & 1)]
            if i < 6:
                P(mfma(v(nxt,16), kfrag(full_tiles(t)[i+1]), v(QA+4*t,4), "0"))
            P.add(max_tree((M0, M1)[t], range(cur, cur+16), init=True))
        P.add(take_side(1))
P.add(interleave(cross_max(M0, M0+1), cross_max(M1, M1+1)))
stamp()
P("L_expo:")
for t in range(2):
    P.add([f"v_sub_f32 {v(NEGM+16*t+q)}, 0, {v((M0,M1)[t])}" for q in range(16)])
    P(mfma(v(SB+16*t,16), kfrag(full_tiles(t)[0]), v(QA+4*t,4), v(NEGM+16*t,16)))
pend = []
for t in range(2):
    g = MG + 16*t
    seq = [f"v_pk_add_f32 {v(g+2*i,2)}, {v(g+2*i,2)}, {v(NEGM+16*t,2)}" for i in range(8)]
    seq += [f"v_exp_f32 {v(g+q)}, {v(g+q)}" for q in range(16)]
    seq += [f"v_cvt_pk_bf16_f32 {v(PF+i)}, {v(g+2*i)}, {v(g+2*i+1)}" for i in range(8)]
    seq += [f"v_and_b32 {v(PB+8*t+i)}, {v(V_PM+i)}, {v(PF+i)}" for i in range(8)]
    acc = v(OA_ACC+16*t, 16)
    for i, x in enumerate(seq):
        P(x)
        if pend and i % 6 == 5: P(pend.pop(0))
    P.add(pend)
    P.add([f"v_xor_b32 {v(g+i)}, {v(PF+i)}, {v(PB+8*t+i)}" for i in range(8)])
    pend = [mfma(acc, vfrag(8+t,0), v(PB+8*t,4), "0"), mfma(acc, vfrag(8+t,1), v(PB+8*t+4,4), acc),
            mfma(acc, vfrag(t,0), v(g,4), acc), mfma(acc, vfrag(t,1), v(g+4,4), acc)]
    P.add(take_side(1))
events = {2: lambda: P.add(o_flag(1)), 6: lambda: P.add(o_poll_setup(1)),
          10: lambda: (poll_check(OFL, f"v_cmp_eq_u64 vcc, {v(OFL,2)}, {v(EPV,2)}", o_poll_load(1)), P.add(o_gather(1)))}
hs_i = 0
for i in range(7):
    for t in range(2):
        S, Pp, acc = SB + 16*t, PB + 8*t, v(OA_ACC+16*t, 16)
        e = [f"v_exp_f32 {v(S+q)}, {v(S+q)}" for q in range(16)]
        c = [f"v_cvt_pk_bf16_f32 {v(Pp+k)}, {v(S+2*k)}, {v(S+2*k+1)}" for k in range(4)], \
            [f"v_cvt_pk_bf16_f32 {v(Pp+k)}, {v(S+2*k)}, {v(S+2*k+1)}" for k in range(4, 8)]
        o = 1 - t
        nxt_i = i + (1 if t == 1 else 0)
        snext = None
        if t == 0 and i > 0:
            snext = mfma(v(SB+16,16), kfrag(full_tiles(1)[i]), v(QA+4,4), v(NEGM+16,16))
        if t == 1 and i < 6:
            snext = mfma(v(SB,16), kfrag(full_tiles(0)[i+1]), v(QA,4), v(NEGM,16))
        P.add(e[0:2])
        while len(pend) > 1:
            P(pend.pop(0)); P.add(take_side(1))
        if pend: P(pend.pop(0))
        P.add(e[2:6])
        if snext: P(snext)
        P.add(e[6:8]); P.add(c[0]); P.add(e[8:10])
        P(mfma(acc, vfrag(full_tiles(t)[i],0), v(Pp,4), acc))
        P.add(e[10:16]); P.add(take_side(2)); P.add(c[1])
        pend = [mfma(acc, vfrag(full_tiles(t)[i],1), v(Pp+4,4), acc)]
        if hs_i in events: events[hs_i]()
        hs_i += 1
P.add(take_side(99))
P.add(pend)
stamp()

WOF, ACC3 = PB, SB
B0, B1 = V_AX, V_AX + 1
p3_setup = [l for l in f"""v_lshrrev_b32 v8, 5, {v(V_LANE)}
v_bfe_u32 v9, {v(V_LANE)}, 2, 2
v_lshl_add_u32 v8, v8, 2, v9
v_and_b32 v9, 2, v9
v_bfe_u32 v10, {v(V_LANE)}, 4, 1
v_xor_b32 v9, v9, v10
s_and_b32 {s(S_T1)}, {s(S_WAVE)}, 2
v_xor_b32 v9, {s(S_T1)}, v9
v_lshlrev_b32 v9, 5, v9
v_lshl_add_u32 v8, v8, 7, v9
v_and_b32 v9, 3, {v(V_LANE)}
v_lshl_add_u32 v8, v9, 3, v8
s_lshl_b32 {s(S_T1)}, {s(S_T1)}, 14
s_add_u32 {s(S_T1)}, {s(S_T1)}, 0x10000
v_add_u32 {v(B0)}, {s(S_T1)}, v8
v_xor_b32 {v(B1)}, 64, {v(B0)}""".split("\n")]
P.add(p3_setup)
P.add(o_publish(0, OA_ACC, 8, lambda tt, f: [f"v_mul_f32 {v(f)}, {v(f)}, {v(V_G0+tt)}"]))
stamp()
P.add(WaitTag("wo")); P("s_barrier")
def wo_reads(n):
    b, hs = n & 1, n & 15
    return [f"ds_read_b64_tr_b16 {v(WOF+8*b+4*ct+2*j,2)}, {v((B0,B1)[ct])} offset:{hs*2048+j*1024}"
            for ct in range(2) for j in range(2)]
P.add(wo_reads(0))
for n in range(32):
    b = n & 1
    if n == 15:
        P(f"v_xor_b32 {v(B0)}, 0x10000, {v(B0)}\nv_xor_b32 {v(B1)}, 0x10000, {v(B1)}")
    rd = wo_reads(n + 1) if n < 31 else []
    of = a_((A_OB if n < 16 else A_OA) + 4*(n & 15), 4)
    if n == 16:
        stamp()
        poll_check(OFL, f"v_cmp_eq_u64 vcc, {v(OFL,2)}, {v(EPV,2)}", o_poll_load(0))
        stamp()
        P.add(o_gather(0))
    for ct in range(2):
        P(mfma(v(ACC3+16*ct,16), v(WOF+8*b+4*ct,4), of, "0" if n == 0 else v(ACC3+16*ct,16)))
        P.add(rd[2*ct:2*ct+2])
    if n == 10:
        P.add(o_flag(0)); P.add(o_poll_setup(0))
stamp()
EXA, RES = V_AX, NEGM
P(f"""s_lshl_b32 {s(S_T0)}, {s(S_WAVE)}, 12
s_add_u32 {s(S_T0)}, {s(S_T0)}, {L_EX}
v_add_u32 {v(EXA)}, {s(S_T0)}, {v(V_L16)}
v_xor_b32 {v(EXA+1)}, 0x2000, {v(EXA)}
v_and_b32 v8, 31, {v(V_LANE)}
v_lshlrev_b32 v8, 10, v8
v_lshrrev_b32 v9, 5, {v(V_LANE)}
v_lshl_add_u32 v8, v9, 4, v8
s_lshl_b32 {s(S_T0)}, {s(S_RB3)}, 16
s_and_b32 {s(S_T1)}, {s(S_WAVE)}, 1
s_lshl_b32 {s(S_T1)}, {s(S_T1)}, 15
s_add_u32 {s(S_T0)}, {s(S_T0)}, {s(S_T1)}
s_lshl_b32 {s(S_T1)}, {s(S_CB)}, 7
s_add_u32 {s(S_T0)}, {s(S_T0)}, {s(S_T1)}
s_and_b32 {s(S_T1)}, {s(S_WAVE)}, 2
s_lshl_b32 {s(S_T1)}, {s(S_T1)}, 5
s_add_u32 {s(S_T0)}, {s(S_T0)}, {s(S_T1)}""")
P.add([f"ds_write_b128 {v(EXA)}, {v(ACC3+16+4*q,4)} offset:{q*1024}" for q in range(4)])
P.add(WaitLds()); P("s_barrier")
P.add([f"ds_read_b128 {v(RES+4*q,4)}, {v(EXA+1)} offset:{q*1024}" for q in range(4)])
for hf in range(2):
    P.add([f"v_pk_add_f32 {v(RES+8*hf+2*i,2)}, {v(RES+8*hf+2*i,2)}, {v(ACC3+8*hf+2*i,2)}" for i in range(4)])
    P.add([f"v_cvt_pk_bf16_f32 {v(PF+4*hf+i)}, {v(RES+8*hf+2*i)}, {v(RES+8*hf+2*i+1)}" for i in range(4)])
for hf in range(2):
    P(f"v_permlane32_swap_b32 {v(PF+4*hf)}, {v(PF+4*hf+2)}\nv_permlane32_swap_b32 {v(PF+4*hf+1)}, {v(PF+4*hf+3)}")
    P(f"buffer_store_dwordx4 {v(PF+4*hf,4)}, v8, {s(S_OUT,4)}, {s(S_T0)} offen{' offset:32' if hf else ''}")
stamp()
if OPT["stamps"]:
    P(f"""s_lshl_b32 {s(S_T0)}, s2, 2
s_add_u32 {s(S_T0)}, {s(S_T0)}, {s(S_WAVE)}
s_lshl_b32 {s(S_T0)}, {s(S_T0)}, 8
s_add_u32 {s(S_T0)}, {s(S_T0)}, {WS_STAMP}
v_lshlrev_b32 v8, 2, {v(V_LANE)}
buffer_store_dword {v(V_STAMP)}, v8, {s(S_WS,4)}, {s(S_T0)} offen""")
P("L_end:\ns_endpgm")
P.add(Raw(special_txt))

body = finalize(P, verbose=True)
hdr = open("cdna_kernels/%s.s.ref" % NAME).read().split("; Override launch")[0]
txt = hdr + f"""; One launch: 256 workgroups (4 heads x 64 rows each), 4 waves, hand-offs through d_ws tagged with a per-launch epoch.
; @launch grid=(256,1,1) block=(256,1,1) lds={LDS_BYTES}
.amdgcn_target "amdgcn-amd-amdhsa--gfx950"
.text
.globl {NAME}_kernel
.p2align 8
.type {NAME}_kernel,@function
{NAME}_kernel:
{body}    .fill 8448, 4, 0xbf800000
.section .rodata,"a"
.p2align 6
.amdhsa_kernel {NAME}_kernel
  .amdhsa_next_free_vgpr 512
  .amdhsa_next_free_sgpr 102
  .amdhsa_accum_offset 256
  .amdhsa_group_segment_fixed_size 0
  .amdhsa_kernarg_size 80
  .amdhsa_user_sgpr_count 2
  .amdhsa_user_sgpr_kernarg_segment_ptr 1
  .amdhsa_system_sgpr_workgroup_id_x 1
.end_amdhsa_kernel
"""
open(sys.argv[1], "w").write(txt)
```

```python
import sys, math
from asmdsl import Prog, Ins, WaitTag, WaitLds, Raw, finalize

NAME = "gated_mix__sliding_block__sliding_local_dilated__prompt"
OPT = dict(stamps=0, standin=0, kv_flag_step=48, kv_poll_step=58, dump=0)
for a in sys.argv[2:]:
    k, v = a.split("="); OPT[k] = int(v)

WS_KV, WS_HB, WS_O = 0, 4 << 20, 5 << 20
WS_FKV, WS_FO, WS_STAMP, WS_DUMP, WS_SIZE = 9 << 20, (9 << 20) + 65536, 10 << 20, 12 << 20, 64 << 20
OOB = 0x80000000
NSLOT, SLOT = 5, 16384
L_X, L_G, L_GP, L_EX, LDS_BYTES = 81920, 147456, 148480, 131072, 149504
QK_SCALE = 0.25 * math.log2(math.e)
NEG_BIG = 0xf149f2ca
ONES = 0x3f803f80

def fhex(x):
    import struct
    return "0x%08x" % struct.unpack("<I", struct.pack("<f", x))[0]
def v(a, n=1): return f"v{a}" if n == 1 else f"v[{a}:{a+n-1}]"
def a_(a, n=1): return f"a{a}" if n == 1 else f"a[{a}:{a+n-1}]"
def s(a, n=1): return f"s{a}" if n == 1 else f"s[{a}:{a+n-1}]"

V_LANE, V_X0, V_X1, V_W1, V_W2 = 1, 2, 3, 4, 5
V_AX = 6
V_AXW, V_AG = 10, 11
V_T1L, V_T1H, V_T3L, V_T3H, V_T2L, V_T2H = 12, 13, 14, 15, 16, 17
V_L16, V_LO, V_HI = 18, 19, 20
V_STAMP = 21
V_PM = 22
V_G0 = 30
T1, T3, T2 = 32, 64, 96
VA, VB = 32, 48
SB = 64
OB_ACC, NEGM = 96, 96
CM, MG = 128, 128
XB, WB = 160, 176
PB, PF, TMP = 160, 176, 184
XW, GF, VPK = 192, 200, 204
OA_ACC = 192
KA, KB, QA, QB = 224, 232, 240, 248
A_K, A_V, A_KBH, A_VBH, A_G, A_OB, A_OA = 0, 32, 96, 100, 104, 136, 0
A_EP = 200
V_EP = 220
V_GPW, V_GPR = 222, 223
S_X, S_W, S_WS, S_WO, S_OUT, S_DBG, S_G = 24, 28, 32, 36, 40, 44, 48
S_WAVE, S_HG, S_RB, S_ROT, S_HEAD, S_RB3, S_CB = 52, 53, 54, 55, 56, 57, 58
S_K, S_T0, S_MW, S_MX, S_T1 = 59, 60, 61, 62, 63
S_MASK = 64
S_T2, S_T3 = 96, 97
S_LO16 = 98
S_TM = 100
S_C = 10
S_SPIN = 3

P = Prog()
nstamp = [0]
def stamp():
    if OPT["stamps"]:
        P.add(WaitLds())
        P(f"s_memtime {s(S_TM,2)}\ns_waitcnt lgkmcnt(0)\nv_writelane_b32 {v(V_STAMP)}, {s(S_TM)}, {nstamp[0]}")
        nstamp[0] += 1

def mfma(d, a, b, c):
    return f"v_mfma_f32_32x32x16_bf16 {d}, {a}, {b}, {c}"

def srd(base, ptr, nbytes):
    return [f"s_mov_b32 {s(base)}, {s(ptr)}", f"s_mov_b32 {s(base+1)}, {s(ptr+1)}",
            f"s_mov_b32 {s(base+2)}, {nbytes}", f"s_mov_b32 {s(base+3)}, 0x20000"]

labels = [0]
def poll_check(reg, cmp_txt, reload_txt):
    n = labels[0]; labels[0] += 1
    P(f"s_mov_b32 {s(S_SPIN)}, 0x40000")
    P(cmp_txt)
    P(f"s_cmp_eq_u64 vcc, -1\ns_cbranch_scc1 L_pok{n}")
    P.add(Raw(f"""L_pspin{n}:
    {reload_txt}
    s_sub_u32 {s(S_SPIN)}, {s(S_SPIN)}, 1
    s_cbranch_scc1 L_pok{n}
    s_waitcnt vmcnt(0)
    {cmp_txt}
    s_nop 2
    s_cmp_eq_u64 vcc, -1
    s_cbranch_scc0 L_pspin{n}
L_pok{n}:"""))

P(f"""
s_cmp_ge_u32 s2, 256
s_cbranch_scc1 L_end
s_load_dwordx16 s[4:19], s[0:1], 0
s_load_dwordx4 s[20:23], s[0:1], 64
s_getpc_b64 {s(S_T2,2)}
v_and_b32 {v(V_LANE)}, 63, v0
v_lshrrev_b32 v2, 6, v0
s_lshr_b32 {s(S_T0)}, s2, 3
s_and_b32 {s(S_T1)}, {s(S_T0)}, 3
s_lshl_b32 {s(S_T1)}, {s(S_T1)}, 13
v_lshlrev_b32 v3, 7, {v(V_LANE)}
v_add_u32 v3, {s(S_T1)}, v3
v_readfirstlane_b32 {s(S_WAVE)}, v2
global_load_dword v31, v3, {s(S_T2,2)}
""", tag="codepf")
if OPT["stamps"]:
    P(f"v_mov_b32 {v(V_STAMP)}, 0")
    P(f"s_memrealtime {s(S_TM,2)}\ns_waitcnt lgkmcnt(0)\nv_writelane_b32 {v(V_STAMP)}, {s(S_TM)}, 62")
P(f"""
s_and_b32 {s(S_T1)}, s2, 1
s_lshl_b32 {s(S_HG)}, {s(S_T1)}, 2
s_and_b32 {s(S_K)}, {s(S_T0)}, 3
s_add_u32 {s(S_HG)}, {s(S_HG)}, {s(S_K)}
s_bfe_u32 {s(S_K)}, s2, 0x20001
s_lshl_b32 {s(S_K)}, {s(S_K)}, 3
s_lshr_b32 {s(S_ROT)}, {s(S_T0)}, 2
s_add_u32 {s(S_RB)}, {s(S_K)}, {s(S_ROT)}
s_lshl_b32 {s(S_T1)}, {s(S_T1)}, 2
s_add_u32 {s(S_RB3)}, {s(S_K)}, {s(S_T1)}
s_lshr_b32 {s(S_T1)}, {s(S_T0)}, 3
s_add_u32 {s(S_RB3)}, {s(S_RB3)}, {s(S_T1)}
s_and_b32 {s(S_CB)}, {s(S_T0)}, 7
s_lshl_b32 {s(S_HEAD)}, {s(S_HG)}, 2
s_add_u32 {s(S_HEAD)}, {s(S_HEAD)}, {s(S_WAVE)}
""")
i3, i4, p7, t0, t1, t2 = 22, 23, 24, 25, 26, 27
P(f"""
v_lshrrev_b32 {v(i3)}, 3, {v(V_LANE)}
v_lshrrev_b32 {v(i4)}, 4, {v(V_LANE)}
v_and_b32 {v(p7)}, 7, {v(V_LANE)}
s_lshl_b32 {s(S_T0)}, {s(S_WAVE)}, 4
v_add_u32 {v(t0)}, {s(S_T0)}, {v(i3)}
v_lshlrev_b32 {v(t0)}, 10, {v(t0)}
v_xor_b32 {v(t1)}, {v(p7)}, {v(i4)}
v_lshl_add_u32 {v(V_X0)}, {v(t1)}, 4, {v(t0)}
v_xor_b32 {v(V_X1)}, 64, {v(V_X0)}
v_add_u32 {v(V_X1)}, 0x2000, {v(V_X1)}
s_lshr_b32 {s(S_T0)}, {s(S_WAVE)}, 1
s_and_b32 {s(S_T1)}, {s(S_WAVE)}, 1
s_lshl_b32 {s(S_K)}, {s(S_T0)}, 4
v_add_u32 {v(t0)}, {s(S_K)}, {v(i4)}
v_mul_u32_u24 {v(t0)}, 0xc00, {v(t0)}
v_lshlrev_b32 {v(t1)}, 1, {v(i4)}
v_xor_b32 {v(t1)}, {v(t1)}, {v(p7)}
v_lshl_add_u32 {v(t0)}, {v(t1)}, 4, {v(t0)}
v_and_b32 {v(t1)}, 1, {v(i3)}
v_xor_b32 {v(t1)}, {s(S_T1)}, {v(t1)}
v_lshlrev_b32 {v(t1)}, 10, {v(t1)}
s_lshl_b32 {s(S_T2)}, {s(S_HG)}, 7
s_add_u32 {s(S_K)}, {s(S_T2)}, 1024
v_add3_u32 {v(V_W1)}, {v(t0)}, {v(t1)}, {s(S_K)}
s_lshl_b32 {s(S_K)}, {s(S_T0)}, 5
v_add_u32 {v(t0)}, {s(S_K)}, {v(i3)}
v_mul_u32_u24 {v(t0)}, 0xc00, {v(t0)}
v_and_b32 {v(t1)}, 1, {v(i4)}
s_lshl_b32 {s(S_K)}, {s(S_T1)}, 1
v_add_u32 {v(t1)}, {s(S_K)}, {v(t1)}
v_lshlrev_b32 {v(t1)}, 1, {v(t1)}
v_xor_b32 {v(t1)}, {v(t1)}, {v(p7)}
v_lshl_add_u32 {v(t0)}, {v(t1)}, 4, {v(t0)}
v_add_u32 {v(V_W2)}, {s(S_T2)}, {v(t0)}
s_lshl_b32 {s(S_MW)}, {s(S_T1)}, 13
s_lshl_b32 {s(S_K)}, {s(S_T0)}, 12
s_add_u32 {s(S_MW)}, {s(S_MW)}, {s(S_K)}
s_lshl_b32 {s(S_MX)}, {s(S_WAVE)}, 11
s_add_u32 {s(S_MX)}, {s(S_MX)}, {L_X}
s_lshl_b32 {s(S_K)}, {s(S_ROT)}, 3
v_add_u32 {v(t2)}, {s(S_K)}, {v(V_LANE)}
v_and_b32 {v(t2)}, 63, {v(t2)}
v_lshlrev_b32 {v(t2)}, 4, {v(t2)}
s_waitcnt lgkmcnt(0)
""")
stamp()
P.add(srd(S_X, 4, 2097152))
P(f"""
s_cmp_eq_u32 {s(S_T1)}, 0
s_cselect_b32 {s(S_W)}, s6, s12
s_cselect_b32 {s(S_W+1)}, s7, s13
s_cselect_b32 {s(S_WO)}, s8, s14
s_cselect_b32 {s(S_WO+1)}, s9, s15
s_mov_b32 {s(S_W+2)}, 1572864
s_mov_b32 {s(S_W+3)}, 0x20000
""")

def x_dma(j):
    return [[f"s_add_u32 {s(S_K)}, {s(S_ROT)}, {j}", f"s_and_b32 {s(S_K)}, {s(S_K)}, 7",
             f"s_lshl_b32 {s(S_K)}, {s(S_K)}, 7", f"s_lshl_b32 {s(S_T0)}, {s(S_RB)}, 16",
             f"s_add_u32 {s(S_K)}, {s(S_K)}, {s(S_T0)}",
             f"s_add_u32 m0, {s(S_MX)}, {j*8192}",
             Ins(f"buffer_load_dwordx4 {v(V_X0)}, {s(S_X,4)}, {s(S_K)} offen lds", f"x{j}")],
            [f"s_add_u32 m0, {s(S_MX)}, {j*8192+1024}",
             Ins(f"buffer_load_dwordx4 {v(V_X1)}, {s(S_X,4)}, {s(S_K)} offen lds", f"x{j}")]]

def w_dma(S):
    out = []
    base = (S % NSLOT) * SLOT
    for t in range(4):
        g = []
        if t == 0:
            if S < 16:
                g += [f"s_lshl_b32 {s(S_T3)}, {s(S_ROT)}, 1", f"s_add_u32 {s(S_T3)}, {s(S_T3)}, {S}",
                      f"s_and_b32 {s(S_T3)}, {s(S_T3)}, 15", f"s_mul_i32 {s(S_T3)}, {s(S_T3)}, {32*3072}"]
            else:
                g += [f"s_add_u32 {s(S_T3)}, {s(S_ROT)}, {S-16}", f"s_and_b32 {s(S_T3)}, {s(S_T3)}, 7",
                      f"s_mul_i32 {s(S_T3)}, {s(S_T3)}, {64*3072}"]
        else:
            g += [f"s_add_u32 {s(S_T3)}, {s(S_T3)}, {(4 if S < 16 else 8)*3072}"]
        g += [f"s_add_u32 m0, {s(S_MW)}, {base + t*1024}",
              Ins(f"buffer_load_dwordx4 {v(V_W1 if S < 16 else V_W2)}, {s(S_W,4)}, {s(S_T3)} offen lds", f"w{S}")]
        out.append(g)
    return out

setup = []
def su(txt):
    for l in txt.strip().split("\n"):
        if l.strip(): setup.append(l.strip())
r5, hh, rr, cc, nh, u0, u1, cm = 160, 161, 162, 163, 164, 165, 166, 167
su(f"""
v_and_b32 {v(r5)}, 31, {v(V_LANE)}
v_lshrrev_b32 {v(hh)}, 5, {v(V_LANE)}
v_bfe_u32 {v(u0)}, {v(r5)}, 1, 3
v_xor_b32 {v(u0)}, {v(u0)}, {v(hh)}
v_lshlrev_b32 {v(u0)}, 4, {v(u0)}
v_lshl_add_u32 {v(u0)}, {v(r5)}, 7, {v(u0)}
v_add_u32 {v(V_AX)}, {L_X}, {v(u0)}
v_xor_b32 {v(V_AX+1)}, 32, {v(V_AX)}
v_xor_b32 {v(V_AX+2)}, 64, {v(V_AX)}
v_xor_b32 {v(V_AX+3)}, 0x60, {v(V_AX)}
s_lshl_b32 {s(S_T2)}, {s(S_WAVE)}, 5
v_xor_b32 {v(V_AXW)}, {s(S_T2)}, {v(V_AX)}
v_lshlrev_b32 {v(u0)}, 4, {v(hh)}
s_add_u32 {s(S_T2)}, {s(S_T2)}, {L_G}
v_add_u32 {v(V_AG)}, {s(S_T2)}, {v(u0)}
v_bfe_u32 {v(rr)}, {v(V_LANE)}, 2, 2
v_and_b32 {v(cc)}, 3, {v(V_LANE)}
v_bfe_u32 {v(nh)}, {v(V_LANE)}, 4, 1
v_lshl_add_u32 {v(u0)}, {v(hh)}, 3, {v(rr)}
v_xor_b32 {v(u1)}, {s(S_WAVE)}, {v(rr)}
v_lshlrev_b32 {v(u1)}, 5, {v(u1)}
v_lshl_add_u32 {v(u1)}, {v(cc)}, 3, {v(u1)}
v_lshl_add_u32 {v(u1)}, {v(u0)}, 8, {v(u1)}
v_mul_u32_u24 {v(V_T1L)}, 0x2080, {v(nh)}
v_add_u32 {v(V_T1L)}, {v(V_T1L)}, {v(u1)}
v_add_u32 {v(V_T1H)}, 0x10000, {v(V_T1L)}
v_xor_b32 {v(V_T3L)}, 0x80, {v(V_T1L)}
v_xor_b32 {v(V_T3H)}, 0x80, {v(V_T1H)}
v_lshrrev_b32 {v(u1)}, 1, {v(rr)}
v_lshl_add_u32 {v(u1)}, {v(nh)}, 1, {v(u1)}
v_xor_b32 {v(u1)}, {s(S_WAVE)}, {v(u1)}
v_lshlrev_b32 {v(u1)}, 5, {v(u1)}
v_lshl_add_u32 {v(u1)}, {v(cc)}, 3, {v(u1)}
v_lshl_add_u32 {v(u1)}, {v(u0)}, 7, {v(u1)}
v_lshl_add_u32 {v(V_T2L)}, {v(nh)}, 13, {v(u1)}
v_add_u32 {v(V_T2H)}, 0x10000, {v(V_T2L)}
v_lshlrev_b32 {v(V_L16)}, 4, {v(V_LANE)}
v_and_b32 {v(u0)}, 15, {v(V_LANE)}
v_lshlrev_b32 {v(u0)}, 4, {v(u0)}
v_lshl_add_u32 {v(u0)}, {v(hh)}, 8, {v(u0)}
v_lshl_add_u32 {v(V_LO)}, {v(nh)}, 31, {v(u0)}
v_xor_b32 {v(V_HI)}, {OOB}, {v(V_LO)}
v_lshlrev_b32 {v(V_GPR)}, 4, {v(r5)}
v_add_u32 {v(V_GPR)}, {L_GP}, {v(V_GPR)}
s_lshl_b32 {s(S_T2)}, {s(S_WAVE)}, 2
v_add_u32 {v(V_GPW)}, {s(S_T2)}, {v(V_GPR)}
s_mov_b32 {s(S_LO16)}, 0xffff
s_mov_b32 {s(S_LO16+1)}, 0xffff
s_mov_b32 {s(S_C)}, {fhex(QK_SCALE)}
s_mov_b32 {s(S_C+1)}, {fhex(QK_SCALE)}
v_lshlrev_b32 {v(u0)}, 2, {v(hh)}
v_sub_u32 {v(cm)}, {v(r5)}, {v(u0)}
v_mov_b32 {v(u1)}, 0xffff
""")
for q in range(16):
    su(f"v_cmp_le_i32 {s(S_MASK+2*q,2)}, {8*(q>>2)+(q&3)}, {v(cm)}")
for q in range(16):
    K = 8*(q>>2)+(q&3)
    su(f"""v_subrev_u32 {v(CM+16+q)}, {K}, {v(cm)}
v_and_b32 {v(CM+16+q)}, 17, {v(CM+16+q)}
v_cvt_f32_u32 {v(CM+16+q)}, {v(CM+16+q)}
v_mul_f32 {v(CM+16+q)}, {hex(NEG_BIG)}, {v(CM+16+q)}""")
su(f"""s_cmp_eq_u32 {s(S_RB)}, 0
s_cselect_b64 {s(S_TM,2)}, {s(S_LO16,2)}, 0
v_mov_b32 {v(u0)}, {hex(NEG_BIG)}""")
for q in range(16):
    if q < 8: su(f"v_mov_b32 {v(CM+q)}, {v(CM+16+q)}")
    else: su(f"v_cndmask_b32 {v(CM+q)}, {v(CM+16+q)}, {v(u0)}, {s(S_TM,2)}")
pm_setup = []
for pq in range(8):
    pm_setup += [f"v_cndmask_b32 {v(V_PM+pq)}, 0, {v(u1)}, {s(S_MASK+4*pq,2)}",
                 f"v_cndmask_b32 {v(V_PM+pq)}, {v(V_PM+pq)}, -1, {s(S_MASK+4*pq+2,2)}"]
for p in range(8):
    su(f"""s_cmp_ge_u32 {s(S_RB)}, {(8-p+1)//2}
s_cselect_b32 {s(S_T2)}, {hex(ONES)}, 0""")
    for i in range(8):
        su(f"v_accvgpr_write_b32 {a_(A_V+8*p+i)}, {s(S_T2)}")
su(f"s_mov_b32 {s(S_T2)}, {hex(ONES)}")
for i in range(4):
    su(f"v_accvgpr_write_b32 {a_(A_VBH+i)}, {s(S_T2)}")

groups = x_dma(0) + w_dma(0)
groups += [srd(S_G, 16, 1024) + [f"s_mov_b32 m0, {L_G}", Ins(f"buffer_load_dwordx4 {v(t2)}, {s(S_G,4)}, 0 offen lds", "x0")]]
groups += w_dma(1) + x_dma(1) + w_dma(2) + w_dma(3) + x_dma(2) + w_dma(4)
for j in range(3, 8):
    groups += x_dma(j)
late = (srd(S_WS, 22, WS_SIZE) + srd(S_DBG, 20, 256) + srd(S_OUT, 18, 2097152) +
        [f"s_mov_b32 {s(S_WO+2)}, 524288", f"s_mov_b32 {s(S_WO+3)}, 0x20000"])
epoch_pub = [f"s_memrealtime {s(S_TM,2)}",
             f"s_cmp_eq_u32 s2, 0", f"s_cselect_b32 {s(S_T2)}, 0, {OOB}",
             f"v_lshlrev_b32 v28, 8, v0", f"v_or_b32 v28, {s(S_T2)}, v28", "s_waitcnt lgkmcnt(0)",
             f"v_mov_b32 {v(V_EP)}, {s(S_TM)}", f"v_mov_b32 {v(V_EP+1)}, {s(S_TM+1)}",
             Ins(f"buffer_store_dwordx2 {v(V_EP,2)}, v28, {s(S_DBG,4)}, 0 offen sc1", "ep")]
def glue(lst):
    o = []
    for x in lst:
        if o and isinstance(o[-1], str) and o[-1].startswith("s_cmp"):
            o[-1] = [o[-1], x]
        else:
            o.append(x)
    return o
fill = glue(late + epoch_pub + setup + pm_setup)
per = -(-len(fill) // (len(groups) - 7))
for gi, g in enumerate(groups):
    P.add(g)
    if gi >= 6:
        P.add(fill[:per]); fill = fill[per:]
P.add(fill)
stamp()

def stage_of(n): return n >> 1 if n < 32 else 16 + ((n - 32) >> 2)
def first_of_stage(n): return n < 64 and (n == 0 or stage_of(n) != stage_of(n - 1))

def frag_reads(n):
    b = n & 1
    m = n & 31
    j, ux = m >> 2, m & 3
    S = stage_of(n); base = (S % NSLOT) * SLOT
    hi = base >= 65536; off = base - (65536 if hi else 0)
    out = [f"ds_read_b128 {v(XB+8*b+4*tt,4)}, {v(V_AX+ux)} offset:{j*8192+tt*4096}" for tt in range(2)]
    if n < 32:
        u = n & 1
        w = [f"ds_read_b64_tr_b16 {v(WB+8*b+4*t+2*qd,2)}, {v(((V_T1L,V_T1H),(V_T3L,V_T3H))[t][hi])} offset:{off+u*4096+qd*1024}"
             for t in range(2) for qd in range(2)]
        return [w[0], w[1], out[0], w[2], w[3], out[1]]
    w = [f"ds_read_b64_tr_b16 {v(WB+8*b+2*qd,2)}, {v((V_T2L,V_T2H)[hi])} offset:{off+ux*2048+qd*512}" for qd in range(2)]
    return [w[0], w[1], out[0], out[1]]

def step_mfmas(n):
    b = n & 1
    x = lambda tt: v(XB+8*b+4*tt, 4)
    if n < 32:
        c = lambda r: "0" if n == 0 else v(r, 16)
        return [mfma(v(T1,16), v(WB+8*b,4), x(0), c(T1)), mfma(v(T3,16), x(0), v(WB+8*b+4,4), c(T3)),
                mfma(v(T1+16,16), v(WB+8*b,4), x(1), c(T1+16)), mfma(v(T3+16,16), x(1), v(WB+8*b+4,4), c(T3+16))]
    c = lambda r: "0" if n == 32 else v(r, 16)
    return [mfma(v(T2,16), v(WB+8*b,4), x(0), c(T2)), mfma(v(T2+16,16), v(WB+8*b,4), x(1), c(T2+16))]

def stage_sync(n):
    S = stage_of(n) if n < 64 else 24
    tags = [f"w{S}"]
    if n < 32: tags.append(f"x{n >> 2}")
    P.add(WaitLds()); P.add(WaitTag(*tags)); P("s_barrier")

ws_ld = lambda dst, voff, soff, imm=0, tag=None: Ins(
    f"buffer_load_dwordx4 {dst}, {v(voff)}, {s(S_WS,4)}, {soff} offen{' offset:%d' % imm if imm else ''} sc1", tag)
ws_st = lambda src, voff, soff, imm=0, tag=None: Ins(
    f"buffer_store_dwordx4 {src}, {v(voff)}, {s(S_WS,4)}, {soff} offen{' offset:%d' % imm if imm else ''} sc1", tag)

def kv_publish():
    o = []
    o += [f"s_lshl_b32 {s(S_T0)}, {s(S_HEAD)}, 17", f"s_lshl_b32 {s(S_T1)}, {s(S_RB)}, 12",
          f"s_add_u32 {s(S_T0)}, {s(S_T0)}, {s(S_T1)}"]
    for tt in range(2):
        o += [f"v_pk_mul_f32 {v(T1+16*tt+2*i,2)}, {v(T1+16*tt+2*i,2)}, {s(S_C,2)}" for i in range(4)]
        o += [f"v_cvt_pk_bf16_f32 {v(KA+4*tt+i)}, {v(T1+16*tt+2*i)}, {v(T1+16*tt+2*i+1)}" for i in range(4)]
        o += [ws_st(v(KA+4*tt,4), V_L16, s(S_T0), tt*2048, "kv")]
    for tt in range(2):
        for m in range(2):
            o += [f"v_cvt_pk_bf16_f32 {v(VPK+8*tt+4*m+i)}, {v(T3+16*tt+8*m+2*i)}, {v(T3+16*tt+8*m+2*i+1)}" for i in range(4)]
            o += [ws_st(v(VPK+8*tt+4*m,4), V_LO, s(S_T0), tt*2048+1024+m*512, "kv")]
    o += [f"s_lshl_b32 {s(S_T0)}, {s(S_HEAD)}, 15", f"s_lshl_b32 {s(S_T1)}, {s(S_RB)}, 10",
          f"s_add_u32 {s(S_T0)}, {s(S_T0)}, {s(S_T1)}", f"s_add_u32 {s(S_T0)}, {s(S_T0)}, {WS_HB}"]
    for tt in (1, 0):
        o += [f"v_pk_mul_f32 {v(T1+16*tt+8+2*i,2)}, {v(T1+16*tt+8+2*i,2)}, {s(S_C,2)}" for i in range(4)]
        o += [f"v_cvt_pk_bf16_f32 {v(KB+4*tt+i)}, {v(T1+16*tt+8+2*i)}, {v(T1+16*tt+8+2*i+1)}" for i in range(4)]
        if tt == 1:
            o += [ws_st(v(KB+4,4), V_HI, s(S_T0), 0, "kv"), ws_st(v(VPK+12,4), V_HI, s(S_T0), 512, "kv")]
    return o

def gate_partial():
    return [f"v_accvgpr_read_b32 {v(XW)}, {a_(A_G)}", f"v_accvgpr_read_b32 {v(XW+1)}, {a_(A_G+16)}",
            f"ds_write_b32 {v(V_GPW)}, {v(XW)}", f"ds_write_b32 {v(V_GPW)}, {v(XW+1)} offset:512"]

def gate_finish():
    o = [f"ds_read_b128 {v(XW,4)}, {v(V_GPR)}", f"ds_read_b128 {v(XW+4,4)}, {v(V_GPR)} offset:512"]
    for t in range(2):
        b = XW + 4*t
        o += [f"v_add_f32 {v(b)}, {v(b)}, {v(b+1)}", f"v_add_f32 {v(b+2)}, {v(b+2)}, {v(b+3)}"]
    for t in range(2):
        b = XW + 4*t
        o += [f"v_add_f32 {v(b)}, {v(b)}, {v(b+2)}"]
    for t in range(2):
        o += [f"v_mul_f32 {v(XW+4*t)}, {fhex(-math.log2(math.e))}, {v(XW+4*t)}"]
    for t in range(2):
        o += [f"v_exp_f32 {v(XW+4*t)}, {v(XW+4*t)}"]
    for t in range(2):
        o += [f"v_add_f32 {v(XW+4*t)}, 1.0, {v(XW+4*t)}"]
    for t in range(2):
        o += [f"v_rcp_f32 {v(V_G0+t)}, {v(XW+4*t)}"]
    return o

def v_split():
    o = [f"v_mov_b32 {v(GF)}, {hex(ONES)}"]
    for tt in range(2):
        for i in range(8):
            o += [f"v_cndmask_b32 {v(VA+8*tt+i)}, {v(GF)}, {v(VPK+8*tt+i)}, {s(S_LO16,2)}",
                  f"v_cndmask_b32 {v(VB+8*tt+i)}, {v(VPK+8*tt+i)}, {v(GF)}, {s(S_LO16,2)}"]
    return o

V_FO, V_FL = 28 + 0, 0
FLG = GF + 2
ep_load = f"buffer_load_dwordx2 {v(V_EP,2)}, off, {s(S_DBG,4)}, 0 sc1"
def flag_store(soff_setup, tag):
    return soff_setup + [f"v_lshlrev_b32 v0, 26, {v(V_LANE)}",
                         Ins(f"buffer_store_dwordx2 {v(V_EP,2)}, v0, {s(S_WS,4)}, {s(S_T0)} offen sc1", tag)]

stage_sync(0)
stamp()
P.add(frag_reads(0))
queue = []
for n in range(64):
    mf = step_mfmas(n)
    pre = []
    if first_of_stage(n + 1) or n == 63:
        stage_sync(n + 1)
        S = stage_of(n + 1) + NSLOT - 1 if n < 63 else 99
        if S < 24:
            pre = [x for g in w_dma(S) for x in g]
    rd = frag_reads(n + 1) if n < 63 else []
    extra = []
    if n < 32 and (n & 3) == 0:
        j = n >> 2
        extra = [f"ds_read_b128 {v(GF,4)}, {v(V_AG)} offset:{j*128}",
                 f"ds_read_b128 {v(XW,4)}, {v(V_AXW)} offset:{j*8192}",
                 f"ds_read_b128 {v(XW+4,4)}, {v(V_AXW)} offset:{j*8192+4096}"]
    if n < 32 and (n & 3) == 2:
        c = (lambda r: "0") if n == 2 else (lambda r: a_(r, 16))
        mf = mf + [mfma(a_(A_G,16), v(GF,4), v(XW,4), c(A_G)), mfma(a_(A_G+16,16), v(GF,4), v(XW+4,4), c(A_G+16))]
    if n == 16:
        queue += [Ins(ep_load, "epl")]
    if n == 33:
        queue += kv_publish() + gate_partial()
    if n == 38:
        queue += v_split()
    if n == 44:
        queue += gate_finish()
    body = rd + extra + pre
    burst = 100 if n == 33 else 6
    body += queue[:burst]; queue = queue[burst:]
    k = len(mf)
    share = [len(body) // k + (1 if i < len(body) % k else 0) for i in range(k)]
    for i, m in enumerate(mf):
        P(m); P.add(body[:share[i]]); body = body[share[i]:]
    if n == 31:
        stamp()
    if n == OPT["kv_flag_step"]:
        poll_check(V_EP, f"v_cmp_ne_u64 vcc, 0, {v(V_EP,2)}", ep_load)
        P.add(WaitTag("kv"))
        P.add(flag_store([f"s_lshl_b32 {s(S_T0)}, {s(S_HEAD)}, 5", f"s_add_u32 {s(S_T0)}, {s(S_T0)}, {s(S_RB)}",
                          f"s_lshl_b32 {s(S_T0)}, {s(S_T0)}, 3", f"s_add_u32 {s(S_T0)}, {s(S_T0)}, {WS_FKV}"], "fkv"))
        P(f"v_accvgpr_write_b32 {a_(A_EP)}, {v(V_EP)}\nv_accvgpr_write_b32 {a_(A_EP+1)}, {v(V_EP+1)}")
        stamp()
    if n == OPT["kv_poll_step"]:
        P(f"""v_and_b32 v0, 3, {v(V_LANE)}
s_sub_u32 {s(S_T1)}, {s(S_RB)}, 4
v_add_u32 v0, {s(S_T1)}, v0
v_max_i32 v0, 0, v0
v_lshlrev_b32 v0, 3, v0
s_lshl_b32 {s(S_K)}, {s(S_HEAD)}, 8
s_add_u32 {s(S_K)}, {s(S_K)}, {WS_FKV}""")
        kvflag_load = f"buffer_load_dwordx2 {v(FLG,2)}, v0, {s(S_WS,4)}, {s(S_K)} offen sc1"
        P(kvflag_load)
assert not queue
stamp()

poll_check(FLG, f"v_cmp_eq_u64 vcc, {v(FLG,2)}, {v(V_EP,2)}", kvflag_load)
stamp()
def gather(special):
    o = []
    o += [f"s_lshl_b32 {s(S_T0)}, {s(S_HEAD)}, 15", f"s_lshl_b32 {s(S_T1)}, {s(S_RB)}, 10",
          f"s_add_u32 {s(S_T0)}, {s(S_T0)}, {s(S_T1)}", f"s_add_u32 {s(S_T0)}, {s(S_T0)}, {WS_HB - 1024}"]
    if special:
        o += [f"s_cmp_eq_u32 {s(S_RB)}, 0", f"s_cselect_b32 {s(S_T0)}, {WS_SIZE}, {s(S_T0)}"]
    o += [ws_ld(a_(A_KBH,4), V_HI, s(S_T0), 0, "hb"), f"s_not_b64 exec, {s(S_LO16,2)}",
          ws_ld(a_(A_VBH,4), V_HI, s(S_T0), 512, "hb"), "s_mov_b64 exec, -1"]
    o += [f"s_lshl_b32 {s(S_K)}, {s(S_HEAD)}, 17", f"s_lshl_b32 {s(S_T1)}, {s(S_RB)}, 12",
          f"s_add_u32 {s(S_T0)}, {s(S_K)}, {s(S_T1)}", f"s_sub_u32 {s(S_T0)}, {s(S_T0)}, {8*2048}"]
    if special:
        o += [f"v_and_b32 v0, 32, {v(V_LANE)}", "v_lshlrev_b32 v0, 4, v0"]
    for p in range(8):
        if p and p % 2 == 0:
            o += [f"s_add_u32 {s(S_T0)}, {s(S_T0)}, 4096"]
        if special:
            o += [f"s_cmp_ge_u32 {s(S_RB)}, {(8-p+1)//2}", f"s_cbranch_scc1 L_gk{p}",
                  ws_ld(a_(A_K+4*p,4), 0, s(S_K)), f"s_branch L_gk{p}e", f"L_gk{p}:",
                  ws_ld(a_(A_K+4*p,4), V_L16, s(S_T0), (p & 1)*2048), f"L_gk{p}e:"]
        else:
            o += [ws_ld(a_(A_K+4*p,4), V_L16, s(S_T0), (p & 1)*2048, f"k{p}")]
    o += [f"s_sub_u32 {s(S_T0)}, {s(S_T0)}, {3*4096}", f"s_mov_b64 exec, {s(S_LO16,2)}"]
    for p in range(8):
        if p and p % 2 == 0:
            o += [f"s_add_u32 {s(S_T0)}, {s(S_T0)}, 4096"]
        so = S_T0
        if special:
            o += [f"s_cmp_ge_u32 {s(S_RB)}, {(8-p+1)//2}", f"s_cselect_b32 {s(S_T1)}, {s(S_T0)}, {WS_SIZE}"]
            so = S_T1
        o += [ws_ld(a_(A_V+8*p+4*m,4), V_LO, s(so), (p & 1)*2048+1024+m*512, f"v{p}") for m in range(2)]
    o += ["s_mov_b64 exec, -1"]
    return o
P(f"s_cmp_lt_u32 {s(S_RB)}, 4\ns_cbranch_scc1 L_gspecial")
P.add(gather(False))
P("L_gdone:")
special_txt = "L_gspecial:\n" + "\n".join(
    (x.text if isinstance(x, Ins) else x) if (isinstance(x, str) and x.endswith(":")) else "    " + (x.text if isinstance(x, Ins) else x)
    for x in gather(True)) + "\n    s_branch L_gdone\n"

for tt in range(2):
    P.add([f"v_cvt_pk_bf16_f32 {v(QB+4*tt+i)}, {v(T2+16*tt+8+2*i)}, {v(T2+16*tt+8+2*i+1)}" for i in range(4)])
for tt in range(2):
    P.add([f"v_cvt_pk_bf16_f32 {v(QA+4*tt+i)}, {v(T2+16*tt+2*i)}, {v(T2+16*tt+2*i+1)}" for i in range(4)])

def max_tree(dst, regs, init=None):
    regs = list(regs); o = []
    if init is None:
        o.append(f"v_max3_f32 {v(dst)}, {v(regs[0])}, {v(regs[1])}, {v(regs[2])}"); regs = regs[3:]
    while len(regs) >= 2:
        o.append(f"v_max3_f32 {v(dst)}, {v(dst)}, {v(regs[0])}, {v(regs[1])}"); regs = regs[2:]
    if regs:
        o.append(f"v_max_f32 {v(dst)}, {v(dst)}, {v(regs[0])}")
    return o

def cross_max(m, t):
    return [f"v_mov_b32 {v(t)}, {v(m)}", f"v_permlane32_swap_b32 {v(m)}, {v(t)}", f"v_max_f32 {v(m)}, {v(m)}, {v(t)}"]

def interleave(*ls):
    o, ls = [], [list(l) for l in ls]
    while any(ls):
        for l in ls:
            if l: o.append(l.pop(0))
    return o

def o_publish(br, acc, lreg, fac_setup):
    o0 = 8 if br else 0
    seq = []
    for tt in range(2):
        f = TMP + tt
        t = [f"v_rcp_f32 {v(f)}, {v(acc+16*tt+lreg)}"] + fac_setup(tt, f)
        t += [f"v_mul_f32 {v(acc+16*tt+o0+i)}, {v(f)}, {v(acc+16*tt+o0+i)}" for i in range(8)]
        t += [f"v_cvt_pk_bf16_f32 {v(PF+4*tt+i)}, {v(acc+16*tt+o0+2*i)}, {v(acc+16*tt+o0+2*i+1)}" for i in range(4)]
        seq.append(t)
    o = interleave(*seq)
    o += [f"s_lshl_b32 {s(S_T0)}, {s(S_RB)}, 16", f"s_lshl_b32 {s(S_T1)}, {s(S_HEAD)}, 10",
          f"s_add_u32 {s(S_T0)}, {s(S_T0)}, {s(S_T1)}", f"s_add_u32 {s(S_T0)}, {s(S_T0)}, {WS_O + br*(2<<20)}",
          ws_st(v(PF,4), V_L16, s(S_T0), 0, f"o{br}"), f"s_add_u32 {s(S_T0)}, {s(S_T0)}, 32768",
          ws_st(v(PF+4,4), V_L16, s(S_T0), 0, f"o{br}")]
    return o

def b_scores(t):
    kprev = v(KB, 4) if t == 1 else a_(A_KBH, 4)
    spare = OA_ACC + 16 * t
    return [mfma(v(SB+16*t,16), v(KB+4*t,4), v(QB+4*t,4), v(CM+16*t,16)),
            mfma(v(spare,16), kprev, v(QB+4*t,4), v(CM+16*t,16))]
def b_softmax(t):
    S, spare, m = SB + 16*t, OA_ACC + 16*t, TMP + 2 + 2*t
    o = [f"v_cndmask_b32 {v(S+q)}, {v(S+q)}, {v(spare+q)}, {s(S_LO16,2)}" for q in range(8, 16)]
    o += max_tree(m, range(S, S+16)) + cross_max(m, m+1)
    o += [f"v_sub_f32 {v(S+q)}, {v(S+q)}, {v(m)}" for q in range(16)]
    o += [f"v_exp_f32 {v(S+q)}, {v(S+q)}" for q in range(16)]
    o += [f"v_cvt_pk_bf16_f32 {v(PB+8*t+i)}, {v(S+2*i)}, {v(S+2*i+1)}" for i in range(8)]
    o += [f"v_cndmask_b32 {v(PF+4*t+i)}, 0, {v(PB+8*t+4+i)}, {s(S_LO16,2)}" for i in range(4)]
    o += [f"v_cndmask_b32 {v(PB+8*t+4+i)}, {v(PB+8*t+4+i)}, 0, {s(S_LO16,2)}" for i in range(4)]
    return o
def b_pv(t):
    vprev = v(VB+4, 4) if t == 1 else a_(A_VBH, 4)
    acc = v(OB_ACC+16*t, 16)
    return [mfma(acc, v(VB+8*t,4), v(PB+8*t,4), "0"), mfma(acc, v(VB+8*t+4,4), v(PB+8*t+4,4), acc),
            mfma(acc, vprev, v(PF+4*t,4), acc)]

P.add(b_scores(1))
sm1 = b_softmax(1)
P.add(sm1[:40]); P.add(b_scores(0)); P.add(sm1[40:])
sm0 = b_softmax(0)
pv1 = b_pv(1)
P.add(sm0[:2]); P(pv1[0]); P.add(sm0[2:10]); P(pv1[1]); P.add(sm0[10:18]); P(pv1[2]); P.add(sm0[18:])
P.add(b_pv(0))
stamp()

def kfrag(p): return a_(A_K+4*p, 4) if p < 8 else v(KA+4*(p-8), 4)
def vfrag(p, m): return a_(A_V+8*p+4*m, 4) if p < 8 else v(VA+8*(p-8)+4*m, 4)
full_tiles = lambda t: list(range(t + 1, t + 8))

def wo_dma():
    o = [[f"v_lshrrev_b32 v0, 3, {v(V_LANE)}", f"v_bfe_u32 {v(V_X0)}, {v(V_LANE)}, 4, 1",
          f"v_lshlrev_b32 {v(V_X0)}, 2, {v(V_X0)}", f"v_and_b32 {v(V_X1)}, 7, {v(V_LANE)}",
          f"v_xor_b32 {v(V_X0)}, {v(V_X0)}, {v(V_X1)}", f"v_lshlrev_b32 {v(V_X0)}, 4, {v(V_X0)}",
          f"v_lshl_add_u32 {v(V_X0)}, v0, 10, {v(V_X0)}",
          f"s_lshr_b32 {s(S_T2)}, {s(S_WAVE)}, 1", f"s_and_b32 {s(S_MW)}, {s(S_WAVE)}, 1",
          f"s_lshl_b32 {s(S_MW)}, {s(S_MW)}, 16", f"s_lshl_b32 {s(S_T3)}, {s(S_T2)}, 15",
          f"s_add_u32 {s(S_MW)}, {s(S_MW)}, {s(S_T3)}", f"s_lshl_b32 {s(S_T3)}, {s(S_T2)}, 18",
          f"s_lshl_b32 {s(S_T2)}, {s(S_CB)}, 7", f"s_add_u32 {s(S_T3)}, {s(S_T3)}, {s(S_T2)}"]]
    for t in range(32):
        g = [f"s_add_u32 {s(S_T3)}, {s(S_T3)}, 8192"] if t else []
        g += [f"s_add_u32 m0, {s(S_MW)}, {t*1024}",
              Ins(f"buffer_load_dwordx4 {v(V_X0)}, {s(S_WO,4)}, {s(S_T3)} offen lds", "wo")]
        o.append(g)
    return o

EPV = TMP + 6
def ep_restore(): return [f"v_accvgpr_read_b32 {v(EPV)}, {a_(A_EP)}", f"v_accvgpr_read_b32 {v(EPV+1)}, {a_(A_EP+1)}"]
def o_flag(br):
    return [WaitTag(f"o{br}"), f"s_lshl_b32 {s(S_T0)}, {s(S_RB)}, 5", f"s_add_u32 {s(S_T0)}, {s(S_T0)}, {s(S_HEAD)}",
            f"s_lshl_b32 {s(S_T0)}, {s(S_T0)}, 3", f"s_add_u32 {s(S_T0)}, {s(S_T0)}, {WS_FO + br*8192}",
            f"v_lshlrev_b32 v0, 26, {v(V_LANE)}",
            Ins(f"buffer_store_dwordx2 {v(EPV,2)}, v0, {s(S_WS,4)}, {s(S_T0)} offen sc1", "fo")]
OFL = V_W1
def o_poll_load(br):
    return f"buffer_load_dwordx2 {v(OFL,2)}, {v(V_X1)}, {s(S_WS,4)}, {s(S_K)} offen sc1"
def o_poll_setup(br):
    return [f"v_and_b32 {v(V_X1)}, 15, {v(V_LANE)}", f"v_lshlrev_b32 {v(V_X1)}, 3, {v(V_X1)}",
            f"s_lshl_b32 {s(S_K)}, {s(S_RB3)}, 8", f"s_lshr_b32 {s(S_T1)}, {s(S_WAVE)}, 1",
            f"s_lshl_b32 {s(S_T1)}, {s(S_T1)}, 7", f"s_add_u32 {s(S_K)}, {s(S_K)}, {s(S_T1)}",
            f"s_add_u32 {s(S_K)}, {s(S_K)}, {WS_FO + br*8192}", o_poll_load(br)]
def o_gather(br):
    dst = A_OB if br else A_OA
    o = [f"s_lshl_b32 {s(S_T0)}, {s(S_RB3)}, 16", f"s_and_b32 {s(S_T1)}, {s(S_WAVE)}, 1",
         f"s_lshl_b32 {s(S_T1)}, {s(S_T1)}, 15", f"s_add_u32 {s(S_T0)}, {s(S_T0)}, {s(S_T1)}",
         f"s_lshr_b32 {s(S_T1)}, {s(S_WAVE)}, 1", f"s_lshl_b32 {s(S_T1)}, {s(S_T1)}, 14",
         f"s_add_u32 {s(S_T0)}, {s(S_T0)}, {s(S_T1)}", f"s_add_u32 {s(S_T0)}, {s(S_T0)}, {WS_O + br*(2<<20)}"]
    for hs in range(16):
        if hs and hs % 4 == 0:
            o += [f"s_add_u32 {s(S_T0)}, {s(S_T0)}, 4096"]
        o += [ws_ld(a_(dst+4*hs,4), V_L16, s(S_T0), (hs & 3)*1024, f"og{br}")]
    return o

ob = o_publish(1, OB_ACC, 0, lambda tt, f: [f"v_sub_f32 {v(TMP+4+tt)}, 1.0, {v(V_G0+tt)}",
                                             f"v_mul_f32 {v(f)}, {v(f)}, {v(TMP+4+tt)}"])
P(mfma(v(MG,16), kfrag(8), v(QA,4), "0"))
P(mfma(v(MG+16,16), kfrag(9), v(QA+4,4), "0"))
P.add(ob[:10]); P(mfma(v(SB,16), kfrag(0), v(QA,4), "0"))
P.add(ob[10:20]); P(mfma(v(SB+16,16), kfrag(1), v(QA+4,4), "0"))
P.add(ob[20:])
P.add(ep_restore())
M0, M1 = TMP + 2, TMP + 4
side = wo_dma()
def take_side(n):
    o = []
    for _ in range(n):
        if side: o += side.pop(0)
    return o
for t in range(2):
    P.add([f"v_cndmask_b32 {v(MG+16*t+q)}, {v(SB+16*t+q)}, {v(MG+16*t+q)}, {s(S_MASK+2*q,2)}" for q in range(16)])
    if not OPT["standin"]:
        P(mfma(v(SB+16*t,16), kfrag(full_tiles(t)[0]), v(QA+4*t,4), "0"))
    P.add(take_side(1))
for t in range(2):
    P.add(max_tree((M0, M1)[t], range(MG+16*t, MG+16*t+16)))
if not OPT["standin"]:
    SP = (SB, SB+16, NEGM, NEGM+16)
    for i in range(7):
        for t in range(2):
            cur = SP[t + 2*(i & 1)]; nxt = SP[t + 2*((i+1) & 1)]
            if i < 6:
                P(mfma(v(nxt,16), kfrag(full_tiles(t)[i+1]), v(QA+4*t,4), "0"))
            P.add(max_tree((M0, M1)[t], range(cur, cur+16), init=True))
        P.add(take_side(1))
P.add(interleave(cross_max(M0, M0+1), cross_max(M1, M1+1)))
stamp()
P("L_expo:")
for t in range(2):
    P.add([f"v_sub_f32 {v(NEGM+16*t+q)}, 0, {v((M0,M1)[t])}" for q in range(16)])
    P(mfma(v(SB+16*t,16), kfrag(full_tiles(t)[0]), v(QA+4*t,4), v(NEGM+16*t,16)))
pend = []
for t in range(2):
    g = MG + 16*t
    seq = [f"v_pk_add_f32 {v(g+2*i,2)}, {v(g+2*i,2)}, {v(NEGM+16*t,2)}" for i in range(8)]
    seq += [f"v_exp_f32 {v(g+q)}, {v(g+q)}" for q in range(16)]
    seq += [f"v_cvt_pk_bf16_f32 {v(PF+i)}, {v(g+2*i)}, {v(g+2*i+1)}" for i in range(8)]
    seq += [f"v_and_b32 {v(PB+8*t+i)}, {v(V_PM+i)}, {v(PF+i)}" for i in range(8)]
    acc = v(OA_ACC+16*t, 16)
    for i, x in enumerate(seq):
        P(x)
        if pend and i % 6 == 5: P(pend.pop(0))
    P.add(pend)
    P.add([f"v_xor_b32 {v(g+i)}, {v(PF+i)}, {v(PB+8*t+i)}" for i in range(8)])
    pend = [mfma(acc, vfrag(8+t,0), v(PB+8*t,4), "0"), mfma(acc, vfrag(8+t,1), v(PB+8*t+4,4), acc),
            mfma(acc, vfrag(t,0), v(g,4), acc), mfma(acc, vfrag(t,1), v(g+4,4), acc)]
    P.add(take_side(1))
events = {2: lambda: P.add(o_flag(1)), 6: lambda: P.add(o_poll_setup(1)),
          10: lambda: (poll_check(OFL, f"v_cmp_eq_u64 vcc, {v(OFL,2)}, {v(EPV,2)}", o_poll_load(1)), P.add(o_gather(1)))}
hs_i = 0
for i in range(7):
    for t in range(2):
        S, Pp, acc = SB + 16*t, PB + 8*t, v(OA_ACC+16*t, 16)
        e = [f"v_exp_f32 {v(S+q)}, {v(S+q)}" for q in range(16)]
        c = [f"v_cvt_pk_bf16_f32 {v(Pp+k)}, {v(S+2*k)}, {v(S+2*k+1)}" for k in range(4)], \
            [f"v_cvt_pk_bf16_f32 {v(Pp+k)}, {v(S+2*k)}, {v(S+2*k+1)}" for k in range(4, 8)]
        o = 1 - t
        nxt_i = i + (1 if t == 1 else 0)
        snext = None
        if t == 0 and i > 0:
            snext = mfma(v(SB+16,16), kfrag(full_tiles(1)[i]), v(QA+4,4), v(NEGM+16,16))
        if t == 1 and i < 6:
            snext = mfma(v(SB,16), kfrag(full_tiles(0)[i+1]), v(QA,4), v(NEGM,16))
        P.add(e[0:2])
        while len(pend) > 1:
            P(pend.pop(0)); P.add(take_side(1))
        if pend: P(pend.pop(0))
        P.add(e[2:6])
        if snext: P(snext)
        P.add(e[6:8]); P.add(c[0]); P.add(e[8:10])
        P(mfma(acc, vfrag(full_tiles(t)[i],0), v(Pp,4), acc))
        P.add(e[10:16]); P.add(take_side(2)); P.add(c[1])
        pend = [mfma(acc, vfrag(full_tiles(t)[i],1), v(Pp+4,4), acc)]
        if hs_i in events: events[hs_i]()
        hs_i += 1
P.add(take_side(99))
P.add(pend)
stamp()

WOF, ACC3 = PB, SB
B0, B1 = V_AX, V_AX + 1
p3_setup = [l for l in f"""v_lshrrev_b32 v8, 5, {v(V_LANE)}
v_bfe_u32 v9, {v(V_LANE)}, 2, 2
v_lshl_add_u32 v8, v8, 2, v9
v_and_b32 v9, 2, v9
v_bfe_u32 v10, {v(V_LANE)}, 4, 1
v_xor_b32 v9, v9, v10
s_and_b32 {s(S_T1)}, {s(S_WAVE)}, 2
v_xor_b32 v9, {s(S_T1)}, v9
v_lshlrev_b32 v9, 5, v9
v_lshl_add_u32 v8, v8, 7, v9
v_and_b32 v9, 3, {v(V_LANE)}
v_lshl_add_u32 v8, v9, 3, v8
s_lshl_b32 {s(S_T1)}, {s(S_T1)}, 14
s_add_u32 {s(S_T1)}, {s(S_T1)}, 0x10000
v_add_u32 {v(B0)}, {s(S_T1)}, v8
v_xor_b32 {v(B1)}, 64, {v(B0)}""".split("\n")]
P.add(p3_setup)
P.add(o_publish(0, OA_ACC, 8, lambda tt, f: [f"v_mul_f32 {v(f)}, {v(f)}, {v(V_G0+tt)}"]))
stamp()
P.add(WaitTag("wo")); P("s_barrier")
def wo_reads(n):
    b, hs = n & 1, n & 15
    return [f"ds_read_b64_tr_b16 {v(WOF+8*b+4*ct+2*j,2)}, {v((B0,B1)[ct])} offset:{hs*2048+j*1024}"
            for ct in range(2) for j in range(2)]
P.add(wo_reads(0))
for n in range(32):
    b = n & 1
    if n == 15:
        P(f"v_xor_b32 {v(B0)}, 0x10000, {v(B0)}\nv_xor_b32 {v(B1)}, 0x10000, {v(B1)}")
    rd = wo_reads(n + 1) if n < 31 else []
    of = a_((A_OB if n < 16 else A_OA) + 4*(n & 15), 4)
    if n == 16:
        stamp()
        poll_check(OFL, f"v_cmp_eq_u64 vcc, {v(OFL,2)}, {v(EPV,2)}", o_poll_load(0))
        stamp()
        P.add(o_gather(0))
    for ct in range(2):
        P(mfma(v(ACC3+16*ct,16), v(WOF+8*b+4*ct,4), of, "0" if n == 0 else v(ACC3+16*ct,16)))
        P.add(rd[2*ct:2*ct+2])
    if n == 10:
        P.add(o_flag(0)); P.add(o_poll_setup(0))
stamp()
EXA, RES = V_AX, NEGM
P(f"""s_lshl_b32 {s(S_T0)}, {s(S_WAVE)}, 12
s_add_u32 {s(S_T0)}, {s(S_T0)}, {L_EX}
v_add_u32 {v(EXA)}, {s(S_T0)}, {v(V_L16)}
v_xor_b32 {v(EXA+1)}, 0x2000, {v(EXA)}
v_and_b32 v8, 31, {v(V_LANE)}
v_lshlrev_b32 v8, 10, v8
v_lshrrev_b32 v9, 5, {v(V_LANE)}
v_lshl_add_u32 v8, v9, 4, v8
s_lshl_b32 {s(S_T0)}, {s(S_RB3)}, 16
s_and_b32 {s(S_T1)}, {s(S_WAVE)}, 1
s_lshl_b32 {s(S_T1)}, {s(S_T1)}, 15
s_add_u32 {s(S_T0)}, {s(S_T0)}, {s(S_T1)}
s_lshl_b32 {s(S_T1)}, {s(S_CB)}, 7
s_add_u32 {s(S_T0)}, {s(S_T0)}, {s(S_T1)}
s_and_b32 {s(S_T1)}, {s(S_WAVE)}, 2
s_lshl_b32 {s(S_T1)}, {s(S_T1)}, 5
s_add_u32 {s(S_T0)}, {s(S_T0)}, {s(S_T1)}""")
P.add([f"ds_write_b128 {v(EXA)}, {v(ACC3+16+4*q,4)} offset:{q*1024}" for q in range(4)])
P.add(WaitLds()); P("s_barrier")
P.add([f"ds_read_b128 {v(RES+4*q,4)}, {v(EXA+1)} offset:{q*1024}" for q in range(4)])
for hf in range(2):
    P.add([f"v_pk_add_f32 {v(RES+8*hf+2*i,2)}, {v(RES+8*hf+2*i,2)}, {v(ACC3+8*hf+2*i,2)}" for i in range(4)])
    P.add([f"v_cvt_pk_bf16_f32 {v(PF+4*hf+i)}, {v(RES+8*hf+2*i)}, {v(RES+8*hf+2*i+1)}" for i in range(4)])
for hf in range(2):
    P(f"v_permlane32_swap_b32 {v(PF+4*hf)}, {v(PF+4*hf+2)}\nv_permlane32_swap_b32 {v(PF+4*hf+1)}, {v(PF+4*hf+3)}")
    P(f"buffer_store_dwordx4 {v(PF+4*hf,4)}, v8, {s(S_OUT,4)}, {s(S_T0)} offen{' offset:32' if hf else ''}")
stamp()
if OPT["stamps"]:
    P(f"s_memrealtime {s(S_TM,2)}\ns_waitcnt lgkmcnt(0) vmcnt(0)\nv_writelane_b32 {v(V_STAMP)}, {s(S_TM)}, 63")
    P(f"""v_readlane_b32 {s(S_T0)}, {v(V_STAMP)}, 0
v_readlane_b32 {s(S_T1)}, {v(V_STAMP)}, {nstamp[0]-1}
v_readlane_b32 {s(S_T2)}, {v(V_STAMP)}, 62
v_readlane_b32 {s(S_K)}, {v(V_STAMP)}, 2
s_sub_u32 {s(S_T1)}, {s(S_T1)}, {s(S_T0)}
s_sub_u32 {s(S_K)}, {s(S_K)}, {s(S_T0)}
s_sub_u32 {s(S_T2)}, {s(S_TM)}, {s(S_T2)}
v_mov_b32 v8, {s(S_T1)}
v_mov_b32 v9, {s(S_T2)}
v_mov_b32 v10, {s(S_K)}
v_mov_b32 v11, {s(S_TM)}
s_lshr_b32 {s(S_T0)}, s2, 7
s_lshl_b32 {s(S_T0)}, {s(S_T0)}, 4
s_add_u32 {s(S_T0)}, {s(S_T0)}, 16
s_and_b32 {s(S_T1)}, s2, 127
s_lshl_b32 {s(S_T1)}, {s(S_T1)}, 2
s_add_u32 {s(S_T1)}, {s(S_T1)}, {s(S_WAVE)}
s_cmp_eq_u32 {s(S_T1)}, 76
s_cselect_b32 {s(S_T0)}, {s(S_T0)}, 4096
v_lshlrev_b32 v12, 8, {v(V_LANE)}
buffer_store_dwordx4 v[8:11], v12, {s(S_DBG,4)}, {s(S_T0)} offen""")
    P(f"""s_lshl_b32 {s(S_T0)}, s2, 2
s_add_u32 {s(S_T0)}, {s(S_T0)}, {s(S_WAVE)}
s_lshl_b32 {s(S_T0)}, {s(S_T0)}, 8
s_add_u32 {s(S_T0)}, {s(S_T0)}, {WS_STAMP}
v_lshlrev_b32 v8, 2, {v(V_LANE)}
buffer_store_dword {v(V_STAMP)}, v8, {s(S_WS,4)}, {s(S_T0)} offen""")
P("L_end:\ns_endpgm")
P.add(Raw(special_txt))

body = finalize(P, verbose=True)
hdr = open("cdna_kernels/%s.s.ref" % NAME).read().split("; Override launch")[0]
txt = hdr + f"""; One launch: 256 workgroups (4 heads x 64 rows each), 4 waves, hand-offs through d_ws tagged with a per-launch epoch.
; @launch grid=(256,1,1) block=(256,1,1) lds={LDS_BYTES}
.amdgcn_target "amdgcn-amd-amdhsa--gfx950"
.text
.globl {NAME}_kernel
.p2align 8
.type {NAME}_kernel,@function
{NAME}_kernel:
{body}    .fill 8448, 4, 0xbf800000
.section .rodata,"a"
.p2align 6
.amdhsa_kernel {NAME}_kernel
  .amdhsa_next_free_vgpr 512
  .amdhsa_next_free_sgpr 102
  .amdhsa_accum_offset 256
  .amdhsa_group_segment_fixed_size 0
  .amdhsa_kernarg_size 80
  .amdhsa_user_sgpr_count 2
  .amdhsa_user_sgpr_kernarg_segment_ptr 1
  .amdhsa_system_sgpr_workgroup_id_x 1
.end_amdhsa_kernel
"""
open(sys.argv[1], "w").write(txt)
```

```python
import sys, math
from asmdsl import Prog, Ins, WaitTag, WaitLds, Raw, finalize

NAME = "gated_mix__sliding_block__sliding_local_dilated__prompt"
OPT = dict(amp=-1, ampk=8, stamps=0, standin=0, kv_flag_step=48, kv_poll_step=58, dump=0)
for a in sys.argv[2:]:
    k, v = a.split("="); OPT[k] = int(v)

WS_KV, WS_HB, WS_O = 0, 4 << 20, 5 << 20
WS_FKV, WS_FO, WS_STAMP, WS_DUMP, WS_SIZE = 9 << 20, (9 << 20) + 65536, 10 << 20, 12 << 20, 64 << 20
OOB = 0x80000000
NSLOT, SLOT = 5, 16384
L_X, L_G, L_GP, L_EX, LDS_BYTES = 81920, 147456, 148480, 131072, 149504
QK_SCALE = 0.25 * math.log2(math.e)
NEG_BIG = 0xf149f2ca
ONES = 0x3f803f80

def fhex(x):
    import struct
    return "0x%08x" % struct.unpack("<I", struct.pack("<f", x))[0]
def v(a, n=1): return f"v{a}" if n == 1 else f"v[{a}:{a+n-1}]"
def a_(a, n=1): return f"a{a}" if n == 1 else f"a[{a}:{a+n-1}]"
def s(a, n=1): return f"s{a}" if n == 1 else f"s[{a}:{a+n-1}]"

V_LANE, V_X0, V_X1, V_W1, V_W2 = 1, 2, 3, 4, 5
V_AX = 6
V_AXW, V_AG = 10, 11
V_T1L, V_T1H, V_T3L, V_T3H, V_T2L, V_T2H = 12, 13, 14, 15, 16, 17
V_L16, V_LO, V_HI = 18, 19, 20
V_STAMP = 21
V_PM = 22
V_G0 = 30
T1, T3, T2 = 32, 64, 96
VA, VB = 32, 48
SB = 64
OB_ACC, NEGM = 96, 96
CM, MG = 128, 128
XB, WB = 160, 176
PB, PF, TMP = 160, 176, 184
XW, GF, VPK = 192, 200, 204
OA_ACC = 192
KA, KB, QA, QB = 224, 232, 240, 248
A_K, A_V, A_KBH, A_VBH, A_G, A_OB, A_OA = 0, 32, 96, 100, 104, 136, 0
A_EP = 200
V_EP = 220
V_GPW, V_GPR = 222, 223
S_X, S_W, S_WS, S_WO, S_OUT, S_DBG, S_G = 24, 28, 32, 36, 40, 44, 48
S_WAVE, S_HG, S_RB, S_ROT, S_HEAD, S_RB3, S_CB = 52, 53, 54, 55, 56, 57, 58
S_K, S_T0, S_MW, S_MX, S_T1 = 59, 60, 61, 62, 63
S_MASK = 64
S_T2, S_T3 = 96, 97
S_LO16 = 98
S_TM = 100
S_C = 10
S_SPIN = 3

P = Prog()
nstamp = [0]
def stamp():
    if OPT["amp"] >= 0:
        if OPT["amp"] == nstamp[0]:
            P.add(WaitLds())
            P(f"s_memrealtime {s(S_TM,2)}\ns_waitcnt lgkmcnt(0)\nv_writelane_b32 {v(V_STAMP)}, {s(S_TM)}, 1")
        nstamp[0] += 1
    if OPT["stamps"]:
        P.add(WaitLds())
        P(f"s_memtime {s(S_TM,2)}\ns_waitcnt lgkmcnt(0)\nv_writelane_b32 {v(V_STAMP)}, {s(S_TM)}, {nstamp[0]}")
        nstamp[0] += 1

def mfma(d, a, b, c):
    return f"v_mfma_f32_32x32x16_bf16 {d}, {a}, {b}, {c}"

def srd(base, ptr, nbytes):
    return [f"s_mov_b32 {s(base)}, {s(ptr)}", f"s_mov_b32 {s(base+1)}, {s(ptr+1)}",
            f"s_mov_b32 {s(base+2)}, {nbytes}", f"s_mov_b32 {s(base+3)}, 0x20000"]

labels = [0]
def poll_check(reg, cmp_txt, reload_txt):
    n = labels[0]; labels[0] += 1
    P(f"s_mov_b32 {s(S_SPIN)}, 0x40000")
    P(cmp_txt)
    P(f"s_cmp_eq_u64 vcc, -1\ns_cbranch_scc1 L_pok{n}")
    P.add(Raw(f"""L_pspin{n}:
    {reload_txt}
    s_sub_u32 {s(S_SPIN)}, {s(S_SPIN)}, 1
    s_cbranch_scc1 L_pok{n}
    s_waitcnt vmcnt(0)
    {cmp_txt}
    s_nop 2
    s_cmp_eq_u64 vcc, -1
    s_cbranch_scc0 L_pspin{n}
L_pok{n}:"""))

P(f"""
s_cmp_ge_u32 s2, 256
s_cbranch_scc1 L_end
s_load_dwordx16 s[4:19], s[0:1], 0
s_load_dwordx4 s[20:23], s[0:1], 64
s_getpc_b64 {s(S_T2,2)}
v_and_b32 {v(V_LANE)}, 63, v0
v_lshrrev_b32 v2, 6, v0
s_lshr_b32 {s(S_T0)}, s2, 3
s_and_b32 {s(S_T1)}, {s(S_T0)}, 3
s_lshl_b32 {s(S_T1)}, {s(S_T1)}, 13
v_lshlrev_b32 v3, 7, {v(V_LANE)}
v_add_u32 v3, {s(S_T1)}, v3
v_readfirstlane_b32 {s(S_WAVE)}, v2
global_load_dword v31, v3, {s(S_T2,2)}
""", tag="codepf")
if OPT["amp"] >= 0:
    P(f"s_memrealtime {s(S_TM,2)}\ns_waitcnt lgkmcnt(0)\nv_writelane_b32 {v(V_STAMP)}, {s(S_TM)}, 0")
if OPT["stamps"]:
    P(f"v_mov_b32 {v(V_STAMP)}, 0")
    P(f"s_memrealtime {s(S_TM,2)}\ns_waitcnt lgkmcnt(0)\nv_writelane_b32 {v(V_STAMP)}, {s(S_TM)}, 62")
P(f"""
s_and_b32 {s(S_T1)}, s2, 1
s_lshl_b32 {s(S_HG)}, {s(S_T1)}, 2
s_and_b32 {s(S_K)}, {s(S_T0)}, 3
s_add_u32 {s(S_HG)}, {s(S_HG)}, {s(S_K)}
s_bfe_u32 {s(S_K)}, s2, 0x20001
s_lshl_b32 {s(S_K)}, {s(S_K)}, 3
s_lshr_b32 {s(S_ROT)}, {s(S_T0)}, 2
s_add_u32 {s(S_RB)}, {s(S_K)}, {s(S_ROT)}
s_lshl_b32 {s(S_T1)}, {s(S_T1)}, 2
s_add_u32 {s(S_RB3)}, {s(S_K)}, {s(S_T1)}
s_lshr_b32 {s(S_T1)}, {s(S_T0)}, 3
s_add_u32 {s(S_RB3)}, {s(S_RB3)}, {s(S_T1)}
s_and_b32 {s(S_CB)}, {s(S_T0)}, 7
s_lshl_b32 {s(S_HEAD)}, {s(S_HG)}, 2
s_add_u32 {s(S_HEAD)}, {s(S_HEAD)}, {s(S_WAVE)}
""")
i3, i4, p7, t0, t1, t2 = 22, 23, 24, 25, 26, 27
P(f"""
v_lshrrev_b32 {v(i3)}, 3, {v(V_LANE)}
v_lshrrev_b32 {v(i4)}, 4, {v(V_LANE)}
v_and_b32 {v(p7)}, 7, {v(V_LANE)}
s_lshl_b32 {s(S_T0)}, {s(S_WAVE)}, 4
v_add_u32 {v(t0)}, {s(S_T0)}, {v(i3)}
v_lshlrev_b32 {v(t0)}, 10, {v(t0)}
v_xor_b32 {v(t1)}, {v(p7)}, {v(i4)}
v_lshl_add_u32 {v(V_X0)}, {v(t1)}, 4, {v(t0)}
v_xor_b32 {v(V_X1)}, 64, {v(V_X0)}
v_add_u32 {v(V_X1)}, 0x2000, {v(V_X1)}
s_lshr_b32 {s(S_T0)}, {s(S_WAVE)}, 1
s_and_b32 {s(S_T1)}, {s(S_WAVE)}, 1
s_lshl_b32 {s(S_K)}, {s(S_T0)}, 4
v_add_u32 {v(t0)}, {s(S_K)}, {v(i4)}
v_mul_u32_u24 {v(t0)}, 0xc00, {v(t0)}
v_lshlrev_b32 {v(t1)}, 1, {v(i4)}
v_xor_b32 {v(t1)}, {v(t1)}, {v(p7)}
v_lshl_add_u32 {v(t0)}, {v(t1)}, 4, {v(t0)}
v_and_b32 {v(t1)}, 1, {v(i3)}
v_xor_b32 {v(t1)}, {s(S_T1)}, {v(t1)}
v_lshlrev_b32 {v(t1)}, 10, {v(t1)}
s_lshl_b32 {s(S_T2)}, {s(S_HG)}, 7
s_add_u32 {s(S_K)}, {s(S_T2)}, 1024
v_add3_u32 {v(V_W1)}, {v(t0)}, {v(t1)}, {s(S_K)}
s_lshl_b32 {s(S_K)}, {s(S_T0)}, 5
v_add_u32 {v(t0)}, {s(S_K)}, {v(i3)}
v_mul_u32_u24 {v(t0)}, 0xc00, {v(t0)}
v_and_b32 {v(t1)}, 1, {v(i4)}
s_lshl_b32 {s(S_K)}, {s(S_T1)}, 1
v_add_u32 {v(t1)}, {s(S_K)}, {v(t1)}
v_lshlrev_b32 {v(t1)}, 1, {v(t1)}
v_xor_b32 {v(t1)}, {v(t1)}, {v(p7)}
v_lshl_add_u32 {v(t0)}, {v(t1)}, 4, {v(t0)}
v_add_u32 {v(V_W2)}, {s(S_T2)}, {v(t0)}
s_lshl_b32 {s(S_MW)}, {s(S_T1)}, 13
s_lshl_b32 {s(S_K)}, {s(S_T0)}, 12
s_add_u32 {s(S_MW)}, {s(S_MW)}, {s(S_K)}
s_lshl_b32 {s(S_MX)}, {s(S_WAVE)}, 11
s_add_u32 {s(S_MX)}, {s(S_MX)}, {L_X}
s_lshl_b32 {s(S_K)}, {s(S_ROT)}, 3
v_add_u32 {v(t2)}, {s(S_K)}, {v(V_LANE)}
v_and_b32 {v(t2)}, 63, {v(t2)}
v_lshlrev_b32 {v(t2)}, 4, {v(t2)}
s_waitcnt lgkmcnt(0)
""")
stamp()
P.add(srd(S_X, 4, 2097152))
P(f"""
s_cmp_eq_u32 {s(S_T1)}, 0
s_cselect_b32 {s(S_W)}, s6, s12
s_cselect_b32 {s(S_W+1)}, s7, s13
s_cselect_b32 {s(S_WO)}, s8, s14
s_cselect_b32 {s(S_WO+1)}, s9, s15
s_mov_b32 {s(S_W+2)}, 1572864
s_mov_b32 {s(S_W+3)}, 0x20000
""")

def x_dma(j):
    return [[f"s_add_u32 {s(S_K)}, {s(S_ROT)}, {j}", f"s_and_b32 {s(S_K)}, {s(S_K)}, 7",
             f"s_lshl_b32 {s(S_K)}, {s(S_K)}, 7", f"s_lshl_b32 {s(S_T0)}, {s(S_RB)}, 16",
             f"s_add_u32 {s(S_K)}, {s(S_K)}, {s(S_T0)}",
             f"s_add_u32 m0, {s(S_MX)}, {j*8192}",
             Ins(f"buffer_load_dwordx4 {v(V_X0)}, {s(S_X,4)}, {s(S_K)} offen lds", f"x{j}")],
            [f"s_add_u32 m0, {s(S_MX)}, {j*8192+1024}",
             Ins(f"buffer_load_dwordx4 {v(V_X1)}, {s(S_X,4)}, {s(S_K)} offen lds", f"x{j}")]]

def w_dma(S):
    out = []
    base = (S % NSLOT) * SLOT
    for t in range(4):
        g = []
        if t == 0:
            if S < 16:
                g += [f"s_lshl_b32 {s(S_T3)}, {s(S_ROT)}, 1", f"s_add_u32 {s(S_T3)}, {s(S_T3)}, {S}",
                      f"s_and_b32 {s(S_T3)}, {s(S_T3)}, 15", f"s_mul_i32 {s(S_T3)}, {s(S_T3)}, {32*3072}"]
            else:
                g += [f"s_add_u32 {s(S_T3)}, {s(S_ROT)}, {S-16}", f"s_and_b32 {s(S_T3)}, {s(S_T3)}, 7",
                      f"s_mul_i32 {s(S_T3)}, {s(S_T3)}, {64*3072}"]
        else:
            g += [f"s_add_u32 {s(S_T3)}, {s(S_T3)}, {(4 if S < 16 else 8)*3072}"]
        g += [f"s_add_u32 m0, {s(S_MW)}, {base + t*1024}",
              Ins(f"buffer_load_dwordx4 {v(V_W1 if S < 16 else V_W2)}, {s(S_W,4)}, {s(S_T3)} offen lds", f"w{S}")]
        out.append(g)
    return out

setup = []
def su(txt):
    for l in txt.strip().split("\n"):
        if l.strip(): setup.append(l.strip())
r5, hh, rr, cc, nh, u0, u1, cm = 160, 161, 162, 163, 164, 165, 166, 167
su(f"""
v_and_b32 {v(r5)}, 31, {v(V_LANE)}
v_lshrrev_b32 {v(hh)}, 5, {v(V_LANE)}
v_bfe_u32 {v(u0)}, {v(r5)}, 1, 3
v_xor_b32 {v(u0)}, {v(u0)}, {v(hh)}
v_lshlrev_b32 {v(u0)}, 4, {v(u0)}
v_lshl_add_u32 {v(u0)}, {v(r5)}, 7, {v(u0)}
v_add_u32 {v(V_AX)}, {L_X}, {v(u0)}
v_xor_b32 {v(V_AX+1)}, 32, {v(V_AX)}
v_xor_b32 {v(V_AX+2)}, 64, {v(V_AX)}
v_xor_b32 {v(V_AX+3)}, 0x60, {v(V_AX)}
s_lshl_b32 {s(S_T2)}, {s(S_WAVE)}, 5
v_xor_b32 {v(V_AXW)}, {s(S_T2)}, {v(V_AX)}
v_lshlrev_b32 {v(u0)}, 4, {v(hh)}
s_add_u32 {s(S_T2)}, {s(S_T2)}, {L_G}
v_add_u32 {v(V_AG)}, {s(S_T2)}, {v(u0)}
v_bfe_u32 {v(rr)}, {v(V_LANE)}, 2, 2
v_and_b32 {v(cc)}, 3, {v(V_LANE)}
v_bfe_u32 {v(nh)}, {v(V_LANE)}, 4, 1
v_lshl_add_u32 {v(u0)}, {v(hh)}, 3, {v(rr)}
v_xor_b32 {v(u1)}, {s(S_WAVE)}, {v(rr)}
v_lshlrev_b32 {v(u1)}, 5, {v(u1)}
v_lshl_add_u32 {v(u1)}, {v(cc)}, 3, {v(u1)}
v_lshl_add_u32 {v(u1)}, {v(u0)}, 8, {v(u1)}
v_mul_u32_u24 {v(V_T1L)}, 0x2080, {v(nh)}
v_add_u32 {v(V_T1L)}, {v(V_T1L)}, {v(u1)}
v_add_u32 {v(V_T1H)}, 0x10000, {v(V_T1L)}
v_xor_b32 {v(V_T3L)}, 0x80, {v(V_T1L)}
v_xor_b32 {v(V_T3H)}, 0x80, {v(V_T1H)}
v_lshrrev_b32 {v(u1)}, 1, {v(rr)}
v_lshl_add_u32 {v(u1)}, {v(nh)}, 1, {v(u1)}
v_xor_b32 {v(u1)}, {s(S_WAVE)}, {v(u1)}
v_lshlrev_b32 {v(u1)}, 5, {v(u1)}
v_lshl_add_u32 {v(u1)}, {v(cc)}, 3, {v(u1)}
v_lshl_add_u32 {v(u1)}, {v(u0)}, 7, {v(u1)}
v_lshl_add_u32 {v(V_T2L)}, {v(nh)}, 13, {v(u1)}
v_add_u32 {v(V_T2H)}, 0x10000, {v(V_T2L)}
v_lshlrev_b32 {v(V_L16)}, 4, {v(V_LANE)}
v_and_b32 {v(u0)}, 15, {v(V_LANE)}
v_lshlrev_b32 {v(u0)}, 4, {v(u0)}
v_lshl_add_u32 {v(u0)}, {v(hh)}, 8, {v(u0)}
v_lshl_add_u32 {v(V_LO)}, {v(nh)}, 31, {v(u0)}
v_xor_b32 {v(V_HI)}, {OOB}, {v(V_LO)}
v_lshlrev_b32 {v(V_GPR)}, 4, {v(r5)}
v_add_u32 {v(V_GPR)}, {L_GP}, {v(V_GPR)}
s_lshl_b32 {s(S_T2)}, {s(S_WAVE)}, 2
v_add_u32 {v(V_GPW)}, {s(S_T2)}, {v(V_GPR)}
s_mov_b32 {s(S_LO16)}, 0xffff
s_mov_b32 {s(S_LO16+1)}, 0xffff
s_mov_b32 {s(S_C)}, {fhex(QK_SCALE)}
s_mov_b32 {s(S_C+1)}, {fhex(QK_SCALE)}
v_lshlrev_b32 {v(u0)}, 2, {v(hh)}
v_sub_u32 {v(cm)}, {v(r5)}, {v(u0)}
v_mov_b32 {v(u1)}, 0xffff
""")
for q in range(16):
    su(f"v_cmp_le_i32 {s(S_MASK+2*q,2)}, {8*(q>>2)+(q&3)}, {v(cm)}")
for q in range(16):
    K = 8*(q>>2)+(q&3)
    su(f"""v_subrev_u32 {v(CM+16+q)}, {K}, {v(cm)}
v_and_b32 {v(CM+16+q)}, 17, {v(CM+16+q)}
v_cvt_f32_u32 {v(CM+16+q)}, {v(CM+16+q)}
v_mul_f32 {v(CM+16+q)}, {hex(NEG_BIG)}, {v(CM+16+q)}""")
su(f"""s_cmp_eq_u32 {s(S_RB)}, 0
s_cselect_b64 {s(S_TM,2)}, {s(S_LO16,2)}, 0
v_mov_b32 {v(u0)}, {hex(NEG_BIG)}""")
for q in range(16):
    if q < 8: su(f"v_mov_b32 {v(CM+q)}, {v(CM+16+q)}")
    else: su(f"v_cndmask_b32 {v(CM+q)}, {v(CM+16+q)}, {v(u0)}, {s(S_TM,2)}")
pm_setup = []
for pq in range(8):
    pm_setup += [f"v_cndmask_b32 {v(V_PM+pq)}, 0, {v(u1)}, {s(S_MASK+4*pq,2)}",
                 f"v_cndmask_b32 {v(V_PM+pq)}, {v(V_PM+pq)}, -1, {s(S_MASK+4*pq+2,2)}"]
for p in range(8):
    su(f"""s_cmp_ge_u32 {s(S_RB)}, {(8-p+1)//2}
s_cselect_b32 {s(S_T2)}, {hex(ONES)}, 0""")
    for i in range(8):
        su(f"v_accvgpr_write_b32 {a_(A_V+8*p+i)}, {s(S_T2)}")
su(f"s_mov_b32 {s(S_T2)}, {hex(ONES)}")
for i in range(4):
    su(f"v_accvgpr_write_b32 {a_(A_VBH+i)}, {s(S_T2)}")

groups = x_dma(0) + w_dma(0)
groups += [srd(S_G, 16, 1024) + [f"s_mov_b32 m0, {L_G}", Ins(f"buffer_load_dwordx4 {v(t2)}, {s(S_G,4)}, 0 offen lds", "x0")]]
groups += w_dma(1) + x_dma(1) + w_dma(2) + w_dma(3) + x_dma(2) + w_dma(4)
for j in range(3, 8):
    groups += x_dma(j)
late = (srd(S_WS, 22, WS_SIZE) + srd(S_DBG, 20, 256) + srd(S_OUT, 18, 2097152) +
        [f"s_mov_b32 {s(S_WO+2)}, 524288", f"s_mov_b32 {s(S_WO+3)}, 0x20000"])
epoch_pub = [f"s_memrealtime {s(S_TM,2)}",
             f"s_cmp_eq_u32 s2, 0", f"s_cselect_b32 {s(S_T2)}, 0, {OOB}",
             f"v_lshlrev_b32 v28, 8, v0", f"v_or_b32 v28, {s(S_T2)}, v28", "s_waitcnt lgkmcnt(0)",
             f"v_mov_b32 {v(V_EP)}, {s(S_TM)}", f"v_mov_b32 {v(V_EP+1)}, {s(S_TM+1)}",
             Ins(f"buffer_store_dwordx2 {v(V_EP,2)}, v28, {s(S_DBG,4)}, 0 offen sc1", "ep")]
def glue(lst):
    o = []
    for x in lst:
        if o and isinstance(o[-1], str) and o[-1].startswith("s_cmp"):
            o[-1] = [o[-1], x]
        else:
            o.append(x)
    return o
fill = glue(late + epoch_pub + setup + pm_setup)
per = -(-len(fill) // (len(groups) - 7))
for gi, g in enumerate(groups):
    P.add(g)
    if gi >= 6:
        P.add(fill[:per]); fill = fill[per:]
P.add(fill)
stamp()

def stage_of(n): return n >> 1 if n < 32 else 16 + ((n - 32) >> 2)
def first_of_stage(n): return n < 64 and (n == 0 or stage_of(n) != stage_of(n - 1))

def frag_reads(n):
    b = n & 1
    m = n & 31
    j, ux = m >> 2, m & 3
    S = stage_of(n); base = (S % NSLOT) * SLOT
    hi = base >= 65536; off = base - (65536 if hi else 0)
    out = [f"ds_read_b128 {v(XB+8*b+4*tt,4)}, {v(V_AX+ux)} offset:{j*8192+tt*4096}" for tt in range(2)]
    if n < 32:
        u = n & 1
        w = [f"ds_read_b64_tr_b16 {v(WB+8*b+4*t+2*qd,2)}, {v(((V_T1L,V_T1H),(V_T3L,V_T3H))[t][hi])} offset:{off+u*4096+qd*1024}"
             for t in range(2) for qd in range(2)]
        return [w[0], w[1], out[0], w[2], w[3], out[1]]
    w = [f"ds_read_b64_tr_b16 {v(WB+8*b+2*qd,2)}, {v((V_T2L,V_T2H)[hi])} offset:{off+ux*2048+qd*512}" for qd in range(2)]
    return [w[0], w[1], out[0], out[1]]

def step_mfmas(n):
    b = n & 1
    x = lambda tt: v(XB+8*b+4*tt, 4)
    if n < 32:
        c = lambda r: "0" if n == 0 else v(r, 16)
        return [mfma(v(T1,16), v(WB+8*b,4), x(0), c(T1)), mfma(v(T3,16), x(0), v(WB+8*b+4,4), c(T3)),
                mfma(v(T1+16,16), v(WB+8*b,4), x(1), c(T1+16)), mfma(v(T3+16,16), x(1), v(WB+8*b+4,4), c(T3+16))]
    c = lambda r: "0" if n == 32 else v(r, 16)
    return [mfma(v(T2,16), v(WB+8*b,4), x(0), c(T2)), mfma(v(T2+16,16), v(WB+8*b,4), x(1), c(T2+16))]

def stage_sync(n):
    S = stage_of(n) if n < 64 else 24
    tags = [f"w{S}"]
    if n < 32: tags.append(f"x{n >> 2}")
    P.add(WaitLds()); P.add(WaitTag(*tags)); P("s_barrier")

ws_ld = lambda dst, voff, soff, imm=0, tag=None: Ins(
    f"buffer_load_dwordx4 {dst}, {v(voff)}, {s(S_WS,4)}, {soff} offen{' offset:%d' % imm if imm else ''} sc1", tag)
ws_st = lambda src, voff, soff, imm=0, tag=None: Ins(
    f"buffer_store_dwordx4 {src}, {v(voff)}, {s(S_WS,4)}, {soff} offen{' offset:%d' % imm if imm else ''} sc1", tag)

def kv_publish():
    o = []
    o += [f"s_lshl_b32 {s(S_T0)}, {s(S_HEAD)}, 17", f"s_lshl_b32 {s(S_T1)}, {s(S_RB)}, 12",
          f"s_add_u32 {s(S_T0)}, {s(S_T0)}, {s(S_T1)}"]
    for tt in range(2):
        o += [f"v_pk_mul_f32 {v(T1+16*tt+2*i,2)}, {v(T1+16*tt+2*i,2)}, {s(S_C,2)}" for i in range(4)]
        o += [f"v_cvt_pk_bf16_f32 {v(KA+4*tt+i)}, {v(T1+16*tt+2*i)}, {v(T1+16*tt+2*i+1)}" for i in range(4)]
        o += [ws_st(v(KA+4*tt,4), V_L16, s(S_T0), tt*2048, "kv")]
    for tt in range(2):
        for m in range(2):
            o += [f"v_cvt_pk_bf16_f32 {v(VPK+8*tt+4*m+i)}, {v(T3+16*tt+8*m+2*i)}, {v(T3+16*tt+8*m+2*i+1)}" for i in range(4)]
            o += [ws_st(v(VPK+8*tt+4*m,4), V_LO, s(S_T0), tt*2048+1024+m*512, "kv")]
    o += [f"s_lshl_b32 {s(S_T0)}, {s(S_HEAD)}, 15", f"s_lshl_b32 {s(S_T1)}, {s(S_RB)}, 10",
          f"s_add_u32 {s(S_T0)}, {s(S_T0)}, {s(S_T1)}", f"s_add_u32 {s(S_T0)}, {s(S_T0)}, {WS_HB}"]
    for tt in (1, 0):
        o += [f"v_pk_mul_f32 {v(T1+16*tt+8+2*i,2)}, {v(T1+16*tt+8+2*i,2)}, {s(S_C,2)}" for i in range(4)]
        o += [f"v_cvt_pk_bf16_f32 {v(KB+4*tt+i)}, {v(T1+16*tt+8+2*i)}, {v(T1+16*tt+8+2*i+1)}" for i in range(4)]
        if tt == 1:
            o += [ws_st(v(KB+4,4), V_HI, s(S_T0), 0, "kv"), ws_st(v(VPK+12,4), V_HI, s(S_T0), 512, "kv")]
    return o

def gate_partial():
    return [f"v_accvgpr_read_b32 {v(XW)}, {a_(A_G)}", f"v_accvgpr_read_b32 {v(XW+1)}, {a_(A_G+16)}",
            f"ds_write_b32 {v(V_GPW)}, {v(XW)}", f"ds_write_b32 {v(V_GPW)}, {v(XW+1)} offset:512"]

def gate_finish():
    o = [f"ds_read_b128 {v(XW,4)}, {v(V_GPR)}", f"ds_read_b128 {v(XW+4,4)}, {v(V_GPR)} offset:512"]
    for t in range(2):
        b = XW + 4*t
        o += [f"v_add_f32 {v(b)}, {v(b)}, {v(b+1)}", f"v_add_f32 {v(b+2)}, {v(b+2)}, {v(b+3)}"]
    for t in range(2):
        b = XW + 4*t
        o += [f"v_add_f32 {v(b)}, {v(b)}, {v(b+2)}"]
    for t in range(2):
        o += [f"v_mul_f32 {v(XW+4*t)}, {fhex(-math.log2(math.e))}, {v(XW+4*t)}"]
    for t in range(2):
        o += [f"v_exp_f32 {v(XW+4*t)}, {v(XW+4*t)}"]
    for t in range(2):
        o += [f"v_add_f32 {v(XW+4*t)}, 1.0, {v(XW+4*t)}"]
    for t in range(2):
        o += [f"v_rcp_f32 {v(V_G0+t)}, {v(XW+4*t)}"]
    return o

def v_split():
    o = [f"v_mov_b32 {v(GF)}, {hex(ONES)}"]
    for tt in range(2):
        for i in range(8):
            o += [f"v_cndmask_b32 {v(VA+8*tt+i)}, {v(GF)}, {v(VPK+8*tt+i)}, {s(S_LO16,2)}",
                  f"v_cndmask_b32 {v(VB+8*tt+i)}, {v(VPK+8*tt+i)}, {v(GF)}, {s(S_LO16,2)}"]
    return o

V_FO, V_FL = 28 + 0, 0
FLG = GF + 2
ep_load = f"buffer_load_dwordx2 {v(V_EP,2)}, off, {s(S_DBG,4)}, 0 sc1"
def flag_store(soff_setup, tag):
    return soff_setup + [f"v_lshlrev_b32 v0, 26, {v(V_LANE)}",
                         Ins(f"buffer_store_dwordx2 {v(V_EP,2)}, v0, {s(S_WS,4)}, {s(S_T0)} offen sc1", tag)]

stage_sync(0)
stamp()
P.add(frag_reads(0))
queue = []
for n in range(64):
    mf = step_mfmas(n)
    pre = []
    if first_of_stage(n + 1) or n == 63:
        stage_sync(n + 1)
        S = stage_of(n + 1) + NSLOT - 1 if n < 63 else 99
        if S < 24:
            pre = [x for g in w_dma(S) for x in g]
    rd = frag_reads(n + 1) if n < 63 else []
    extra = []
    if n < 32 and (n & 3) == 0:
        j = n >> 2
        extra = [f"ds_read_b128 {v(GF,4)}, {v(V_AG)} offset:{j*128}",
                 f"ds_read_b128 {v(XW,4)}, {v(V_AXW)} offset:{j*8192}",
                 f"ds_read_b128 {v(XW+4,4)}, {v(V_AXW)} offset:{j*8192+4096}"]
    if n < 32 and (n & 3) == 2:
        c = (lambda r: "0") if n == 2 else (lambda r: a_(r, 16))
        mf = mf + [mfma(a_(A_G,16), v(GF,4), v(XW,4), c(A_G)), mfma(a_(A_G+16,16), v(GF,4), v(XW+4,4), c(A_G+16))]
    if n == 16:
        queue += [Ins(ep_load, "epl")]
    if n == 33:
        queue += kv_publish() + gate_partial()
    if n == 38:
        queue += v_split()
    if n == 44:
        queue += gate_finish()
    body = rd + extra + pre
    burst = 100 if n == 33 else 6
    body += queue[:burst]; queue = queue[burst:]
    k = len(mf)
    share = [len(body) // k + (1 if i < len(body) % k else 0) for i in range(k)]
    for i, m in enumerate(mf):
        P(m); P.add(body[:share[i]]); body = body[share[i]:]
    if n == 31:
        stamp()
    if n == OPT["kv_flag_step"]:
        poll_check(V_EP, f"v_cmp_ne_u64 vcc, 0, {v(V_EP,2)}", ep_load)
        P.add(WaitTag("kv"))
        P.add(flag_store([f"s_lshl_b32 {s(S_T0)}, {s(S_HEAD)}, 5", f"s_add_u32 {s(S_T0)}, {s(S_T0)}, {s(S_RB)}",
                          f"s_lshl_b32 {s(S_T0)}, {s(S_T0)}, 3", f"s_add_u32 {s(S_T0)}, {s(S_T0)}, {WS_FKV}"], "fkv"))
        P(f"v_accvgpr_write_b32 {a_(A_EP)}, {v(V_EP)}\nv_accvgpr_write_b32 {a_(A_EP+1)}, {v(V_EP+1)}")
        stamp()
    if n == OPT["kv_poll_step"]:
        P(f"""v_and_b32 v0, 3, {v(V_LANE)}
s_sub_u32 {s(S_T1)}, {s(S_RB)}, 4
v_add_u32 v0, {s(S_T1)}, v0
v_max_i32 v0, 0, v0
v_lshlrev_b32 v0, 3, v0
s_lshl_b32 {s(S_K)}, {s(S_HEAD)}, 8
s_add_u32 {s(S_K)}, {s(S_K)}, {WS_FKV}""")
        kvflag_load = f"buffer_load_dwordx2 {v(FLG,2)}, v0, {s(S_WS,4)}, {s(S_K)} offen sc1"
        P(kvflag_load)
assert not queue
stamp()

poll_check(FLG, f"v_cmp_eq_u64 vcc, {v(FLG,2)}, {v(V_EP,2)}", kvflag_load)
stamp()
def gather(special):
    o = []
    o += [f"s_lshl_b32 {s(S_T0)}, {s(S_HEAD)}, 15", f"s_lshl_b32 {s(S_T1)}, {s(S_RB)}, 10",
          f"s_add_u32 {s(S_T0)}, {s(S_T0)}, {s(S_T1)}", f"s_add_u32 {s(S_T0)}, {s(S_T0)}, {WS_HB - 1024}"]
    if special:
        o += [f"s_cmp_eq_u32 {s(S_RB)}, 0", f"s_cselect_b32 {s(S_T0)}, {WS_SIZE}, {s(S_T0)}"]
    o += [ws_ld(a_(A_KBH,4), V_HI, s(S_T0), 0, "hb"), f"s_not_b64 exec, {s(S_LO16,2)}",
          ws_ld(a_(A_VBH,4), V_HI, s(S_T0), 512, "hb"), "s_mov_b64 exec, -1"]
    o += [f"s_lshl_b32 {s(S_K)}, {s(S_HEAD)}, 17", f"s_lshl_b32 {s(S_T1)}, {s(S_RB)}, 12",
          f"s_add_u32 {s(S_T0)}, {s(S_K)}, {s(S_T1)}", f"s_sub_u32 {s(S_T0)}, {s(S_T0)}, {8*2048}"]
    if special:
        o += [f"v_and_b32 v0, 32, {v(V_LANE)}", "v_lshlrev_b32 v0, 4, v0"]
    for p in range(8):
        if p and p % 2 == 0:
            o += [f"s_add_u32 {s(S_T0)}, {s(S_T0)}, 4096"]
        if special:
            o += [f"s_cmp_ge_u32 {s(S_RB)}, {(8-p+1)//2}", f"s_cbranch_scc1 L_gk{p}",
                  ws_ld(a_(A_K+4*p,4), 0, s(S_K)), f"s_branch L_gk{p}e", f"L_gk{p}:",
                  ws_ld(a_(A_K+4*p,4), V_L16, s(S_T0), (p & 1)*2048), f"L_gk{p}e:"]
        else:
            o += [ws_ld(a_(A_K+4*p,4), V_L16, s(S_T0), (p & 1)*2048, f"k{p}")]
    o += [f"s_sub_u32 {s(S_T0)}, {s(S_T0)}, {3*4096}", f"s_mov_b64 exec, {s(S_LO16,2)}"]
    for p in range(8):
        if p and p % 2 == 0:
            o += [f"s_add_u32 {s(S_T0)}, {s(S_T0)}, 4096"]
        so = S_T0
        if special:
            o += [f"s_cmp_ge_u32 {s(S_RB)}, {(8-p+1)//2}", f"s_cselect_b32 {s(S_T1)}, {s(S_T0)}, {WS_SIZE}"]
            so = S_T1
        o += [ws_ld(a_(A_V+8*p+4*m,4), V_LO, s(so), (p & 1)*2048+1024+m*512, f"v{p}") for m in range(2)]
    o += ["s_mov_b64 exec, -1"]
    return o
P(f"s_cmp_lt_u32 {s(S_RB)}, 4\ns_cbranch_scc1 L_gspecial")
P.add(gather(False))
P("L_gdone:")
special_txt = "L_gspecial:\n" + "\n".join(
    (x.text if isinstance(x, Ins) else x) if (isinstance(x, str) and x.endswith(":")) else "    " + (x.text if isinstance(x, Ins) else x)
    for x in gather(True)) + "\n    s_branch L_gdone\n"

for tt in range(2):
    P.add([f"v_cvt_pk_bf16_f32 {v(QB+4*tt+i)}, {v(T2+16*tt+8+2*i)}, {v(T2+16*tt+8+2*i+1)}" for i in range(4)])
for tt in range(2):
    P.add([f"v_cvt_pk_bf16_f32 {v(QA+4*tt+i)}, {v(T2+16*tt+2*i)}, {v(T2+16*tt+2*i+1)}" for i in range(4)])

def max_tree(dst, regs, init=None):
    regs = list(regs); o = []
    if init is None:
        o.append(f"v_max3_f32 {v(dst)}, {v(regs[0])}, {v(regs[1])}, {v(regs[2])}"); regs = regs[3:]
    while len(regs) >= 2:
        o.append(f"v_max3_f32 {v(dst)}, {v(dst)}, {v(regs[0])}, {v(regs[1])}"); regs = regs[2:]
    if regs:
        o.append(f"v_max_f32 {v(dst)}, {v(dst)}, {v(regs[0])}")
    return o

def cross_max(m, t):
    return [f"v_mov_b32 {v(t)}, {v(m)}", f"v_permlane32_swap_b32 {v(m)}, {v(t)}", f"v_max_f32 {v(m)}, {v(m)}, {v(t)}"]

def interleave(*ls):
    o, ls = [], [list(l) for l in ls]
    while any(ls):
        for l in ls:
            if l: o.append(l.pop(0))
    return o

def o_publish(br, acc, lreg, fac_setup):
    o0 = 8 if br else 0
    seq = []
    for tt in range(2):
        f = TMP + tt
        t = [f"v_rcp_f32 {v(f)}, {v(acc+16*tt+lreg)}"] + fac_setup(tt, f)
        t += [f"v_mul_f32 {v(acc+16*tt+o0+i)}, {v(f)}, {v(acc+16*tt+o0+i)}" for i in range(8)]
        t += [f"v_cvt_pk_bf16_f32 {v(PF+4*tt+i)}, {v(acc+16*tt+o0+2*i)}, {v(acc+16*tt+o0+2*i+1)}" for i in range(4)]
        seq.append(t)
    o = interleave(*seq)
    o += [f"s_lshl_b32 {s(S_T0)}, {s(S_RB)}, 16", f"s_lshl_b32 {s(S_T1)}, {s(S_HEAD)}, 10",
          f"s_add_u32 {s(S_T0)}, {s(S_T0)}, {s(S_T1)}", f"s_add_u32 {s(S_T0)}, {s(S_T0)}, {WS_O + br*(2<<20)}",
          ws_st(v(PF,4), V_L16, s(S_T0), 0, f"o{br}"), f"s_add_u32 {s(S_T0)}, {s(S_T0)}, 32768",
          ws_st(v(PF+4,4), V_L16, s(S_T0), 0, f"o{br}")]
    return o

def b_scores(t):
    kprev = v(KB, 4) if t == 1 else a_(A_KBH, 4)
    spare = OA_ACC + 16 * t
    return [mfma(v(SB+16*t,16), v(KB+4*t,4), v(QB+4*t,4), v(CM+16*t,16)),
            mfma(v(spare,16), kprev, v(QB+4*t,4), v(CM+16*t,16))]
def b_softmax(t):
    S, spare, m = SB + 16*t, OA_ACC + 16*t, TMP + 2 + 2*t
    o = [f"v_cndmask_b32 {v(S+q)}, {v(S+q)}, {v(spare+q)}, {s(S_LO16,2)}" for q in range(8, 16)]
    o += max_tree(m, range(S, S+16)) + cross_max(m, m+1)
    o += [f"v_sub_f32 {v(S+q)}, {v(S+q)}, {v(m)}" for q in range(16)]
    o += [f"v_exp_f32 {v(S+q)}, {v(S+q)}" for q in range(16)]
    o += [f"v_cvt_pk_bf16_f32 {v(PB+8*t+i)}, {v(S+2*i)}, {v(S+2*i+1)}" for i in range(8)]
    o += [f"v_cndmask_b32 {v(PF+4*t+i)}, 0, {v(PB+8*t+4+i)}, {s(S_LO16,2)}" for i in range(4)]
    o += [f"v_cndmask_b32 {v(PB+8*t+4+i)}, {v(PB+8*t+4+i)}, 0, {s(S_LO16,2)}" for i in range(4)]
    return o
def b_pv(t):
    vprev = v(VB+4, 4) if t == 1 else a_(A_VBH, 4)
    acc = v(OB_ACC+16*t, 16)
    return [mfma(acc, v(VB+8*t,4), v(PB+8*t,4), "0"), mfma(acc, v(VB+8*t+4,4), v(PB+8*t+4,4), acc),
            mfma(acc, vprev, v(PF+4*t,4), acc)]

P.add(b_scores(1))
sm1 = b_softmax(1)
P.add(sm1[:40]); P.add(b_scores(0)); P.add(sm1[40:])
sm0 = b_softmax(0)
pv1 = b_pv(1)
P.add(sm0[:2]); P(pv1[0]); P.add(sm0[2:10]); P(pv1[1]); P.add(sm0[10:18]); P(pv1[2]); P.add(sm0[18:])
P.add(b_pv(0))
stamp()

def kfrag(p): return a_(A_K+4*p, 4) if p < 8 else v(KA+4*(p-8), 4)
def vfrag(p, m): return a_(A_V+8*p+4*m, 4) if p < 8 else v(VA+8*(p-8)+4*m, 4)
full_tiles = lambda t: list(range(t + 1, t + 8))

def wo_dma():
    o = [[f"v_lshrrev_b32 v0, 3, {v(V_LANE)}", f"v_bfe_u32 {v(V_X0)}, {v(V_LANE)}, 4, 1",
          f"v_lshlrev_b32 {v(V_X0)}, 2, {v(V_X0)}", f"v_and_b32 {v(V_X1)}, 7, {v(V_LANE)}",
          f"v_xor_b32 {v(V_X0)}, {v(V_X0)}, {v(V_X1)}", f"v_lshlrev_b32 {v(V_X0)}, 4, {v(V_X0)}",
          f"v_lshl_add_u32 {v(V_X0)}, v0, 10, {v(V_X0)}",
          f"s_lshr_b32 {s(S_T2)}, {s(S_WAVE)}, 1", f"s_and_b32 {s(S_MW)}, {s(S_WAVE)}, 1",
          f"s_lshl_b32 {s(S_MW)}, {s(S_MW)}, 16", f"s_lshl_b32 {s(S_T3)}, {s(S_T2)}, 15",
          f"s_add_u32 {s(S_MW)}, {s(S_MW)}, {s(S_T3)}", f"s_lshl_b32 {s(S_T3)}, {s(S_T2)}, 18",
          f"s_lshl_b32 {s(S_T2)}, {s(S_CB)}, 7", f"s_add_u32 {s(S_T3)}, {s(S_T3)}, {s(S_T2)}"]]
    for t in range(32):
        g = [f"s_add_u32 {s(S_T3)}, {s(S_T3)}, 8192"] if t else []
        g += [f"s_add_u32 m0, {s(S_MW)}, {t*1024}",
              Ins(f"buffer_load_dwordx4 {v(V_X0)}, {s(S_WO,4)}, {s(S_T3)} offen lds", "wo")]
        o.append(g)
    return o

EPV = TMP + 6
def ep_restore(): return [f"v_accvgpr_read_b32 {v(EPV)}, {a_(A_EP)}", f"v_accvgpr_read_b32 {v(EPV+1)}, {a_(A_EP+1)}"]
def o_flag(br):
    return [WaitTag(f"o{br}"), f"s_lshl_b32 {s(S_T0)}, {s(S_RB)}, 5", f"s_add_u32 {s(S_T0)}, {s(S_T0)}, {s(S_HEAD)}",
            f"s_lshl_b32 {s(S_T0)}, {s(S_T0)}, 3", f"s_add_u32 {s(S_T0)}, {s(S_T0)}, {WS_FO + br*8192}",
            f"v_lshlrev_b32 v0, 26, {v(V_LANE)}",
            Ins(f"buffer_store_dwordx2 {v(EPV,2)}, v0, {s(S_WS,4)}, {s(S_T0)} offen sc1", "fo")]
OFL = V_W1
def o_poll_load(br):
    return f"buffer_load_dwordx2 {v(OFL,2)}, {v(V_X1)}, {s(S_WS,4)}, {s(S_K)} offen sc1"
def o_poll_setup(br):
    return [f"v_and_b32 {v(V_X1)}, 15, {v(V_LANE)}", f"v_lshlrev_b32 {v(V_X1)}, 3, {v(V_X1)}",
            f"s_lshl_b32 {s(S_K)}, {s(S_RB3)}, 8", f"s_lshr_b32 {s(S_T1)}, {s(S_WAVE)}, 1",
            f"s_lshl_b32 {s(S_T1)}, {s(S_T1)}, 7", f"s_add_u32 {s(S_K)}, {s(S_K)}, {s(S_T1)}",
            f"s_add_u32 {s(S_K)}, {s(S_K)}, {WS_FO + br*8192}", o_poll_load(br)]
def o_gather(br):
    dst = A_OB if br else A_OA
    o = [f"s_lshl_b32 {s(S_T0)}, {s(S_RB3)}, 16", f"s_and_b32 {s(S_T1)}, {s(S_WAVE)}, 1",
         f"s_lshl_b32 {s(S_T1)}, {s(S_T1)}, 15", f"s_add_u32 {s(S_T0)}, {s(S_T0)}, {s(S_T1)}",
         f"s_lshr_b32 {s(S_T1)}, {s(S_WAVE)}, 1", f"s_lshl_b32 {s(S_T1)}, {s(S_T1)}, 14",
         f"s_add_u32 {s(S_T0)}, {s(S_T0)}, {s(S_T1)}", f"s_add_u32 {s(S_T0)}, {s(S_T0)}, {WS_O + br*(2<<20)}"]
    for hs in range(16):
        if hs and hs % 4 == 0:
            o += [f"s_add_u32 {s(S_T0)}, {s(S_T0)}, 4096"]
        o += [ws_ld(a_(dst+4*hs,4), V_L16, s(S_T0), (hs & 3)*1024, f"og{br}")]
    return o

ob = o_publish(1, OB_ACC, 0, lambda tt, f: [f"v_sub_f32 {v(TMP+4+tt)}, 1.0, {v(V_G0+tt)}",
                                             f"v_mul_f32 {v(f)}, {v(f)}, {v(TMP+4+tt)}"])
P(mfma(v(MG,16), kfrag(8), v(QA,4), "0"))
P(mfma(v(MG+16,16), kfrag(9), v(QA+4,4), "0"))
P.add(ob[:10]); P(mfma(v(SB,16), kfrag(0), v(QA,4), "0"))
P.add(ob[10:20]); P(mfma(v(SB+16,16), kfrag(1), v(QA+4,4), "0"))
P.add(ob[20:])
P.add(ep_restore())
M0, M1 = TMP + 2, TMP + 4
side = wo_dma()
def take_side(n):
    o = []
    for _ in range(n):
        if side: o += side.pop(0)
    return o
for t in range(2):
    P.add([f"v_cndmask_b32 {v(MG+16*t+q)}, {v(SB+16*t+q)}, {v(MG+16*t+q)}, {s(S_MASK+2*q,2)}" for q in range(16)])
    if not OPT["standin"]:
        P(mfma(v(SB+16*t,16), kfrag(full_tiles(t)[0]), v(QA+4*t,4), "0"))
    P.add(take_side(1))
for t in range(2):
    P.add(max_tree((M0, M1)[t], range(MG+16*t, MG+16*t+16)))
if not OPT["standin"]:
    SP = (SB, SB+16, NEGM, NEGM+16)
    for i in range(7):
        for t in range(2):
            cur = SP[t + 2*(i & 1)]; nxt = SP[t + 2*((i+1) & 1)]
            if i < 6:
                P(mfma(v(nxt,16), kfrag(full_tiles(t)[i+1]), v(QA+4*t,4), "0"))
            P.add(max_tree((M0, M1)[t], range(cur, cur+16), init=True))
        P.add(take_side(1))
P.add(interleave(cross_max(M0, M0+1), cross_max(M1, M1+1)))
stamp()
P("L_expo:")
for t in range(2):
    P.add([f"v_sub_f32 {v(NEGM+16*t+q)}, 0, {v((M0,M1)[t])}" for q in range(16)])
    P(mfma(v(SB+16*t,16), kfrag(full_tiles(t)[0]), v(QA+4*t,4), v(NEGM+16*t,16)))
pend = []
for t in range(2):
    g = MG + 16*t
    seq = [f"v_pk_add_f32 {v(g+2*i,2)}, {v(g+2*i,2)}, {v(NEGM+16*t,2)}" for i in range(8)]
    seq += [f"v_exp_f32 {v(g+q)}, {v(g+q)}" for q in range(16)]
    seq += [f"v_cvt_pk_bf16_f32 {v(PF+i)}, {v(g+2*i)}, {v(g+2*i+1)}" for i in range(8)]
    seq += [f"v_and_b32 {v(PB+8*t+i)}, {v(V_PM+i)}, {v(PF+i)}" for i in range(8)]
    acc = v(OA_ACC+16*t, 16)
    for i, x in enumerate(seq):
        P(x)
        if pend and i % 6 == 5: P(pend.pop(0))
    P.add(pend)
    P.add([f"v_xor_b32 {v(g+i)}, {v(PF+i)}, {v(PB+8*t+i)}" for i in range(8)])
    pend = [mfma(acc, vfrag(8+t,0), v(PB+8*t,4), "0"), mfma(acc, vfrag(8+t,1), v(PB+8*t+4,4), acc),
            mfma(acc, vfrag(t,0), v(g,4), acc), mfma(acc, vfrag(t,1), v(g+4,4), acc)]
    P.add(take_side(1))
events = {2: lambda: P.add(o_flag(1)), 6: lambda: P.add(o_poll_setup(1)),
          10: lambda: (poll_check(OFL, f"v_cmp_eq_u64 vcc, {v(OFL,2)}, {v(EPV,2)}", o_poll_load(1)), P.add(o_gather(1)))}
hs_i = 0
for i in range(7):
    for t in range(2):
        S, Pp, acc = SB + 16*t, PB + 8*t, v(OA_ACC+16*t, 16)
        e = [f"v_exp_f32 {v(S+q)}, {v(S+q)}" for q in range(16)]
        c = [f"v_cvt_pk_bf16_f32 {v(Pp+k)}, {v(S+2*k)}, {v(S+2*k+1)}" for k in range(4)], \
            [f"v_cvt_pk_bf16_f32 {v(Pp+k)}, {v(S+2*k)}, {v(S+2*k+1)}" for k in range(4, 8)]
        o = 1 - t
        nxt_i = i + (1 if t == 1 else 0)
        snext = None
        if t == 0 and i > 0:
            snext = mfma(v(SB+16,16), kfrag(full_tiles(1)[i]), v(QA+4,4), v(NEGM+16,16))
        if t == 1 and i < 6:
            snext = mfma(v(SB,16), kfrag(full_tiles(0)[i+1]), v(QA,4), v(NEGM,16))
        P.add(e[0:2])
        while len(pend) > 1:
            P(pend.pop(0)); P.add(take_side(1))
        if pend: P(pend.pop(0))
        P.add(e[2:6])
        if snext: P(snext)
        P.add(e[6:8]); P.add(c[0]); P.add(e[8:10])
        P(mfma(acc, vfrag(full_tiles(t)[i],0), v(Pp,4), acc))
        P.add(e[10:16]); P.add(take_side(2)); P.add(c[1])
        pend = [mfma(acc, vfrag(full_tiles(t)[i],1), v(Pp+4,4), acc)]
        if hs_i in events: events[hs_i]()
        hs_i += 1
P.add(take_side(99))
P.add(pend)
stamp()

WOF, ACC3 = PB, SB
B0, B1 = V_AX, V_AX + 1
p3_setup = [l for l in f"""v_lshrrev_b32 v8, 5, {v(V_LANE)}
v_bfe_u32 v9, {v(V_LANE)}, 2, 2
v_lshl_add_u32 v8, v8, 2, v9
v_and_b32 v9, 2, v9
v_bfe_u32 v10, {v(V_LANE)}, 4, 1
v_xor_b32 v9, v9, v10
s_and_b32 {s(S_T1)}, {s(S_WAVE)}, 2
v_xor_b32 v9, {s(S_T1)}, v9
v_lshlrev_b32 v9, 5, v9
v_lshl_add_u32 v8, v8, 7, v9
v_and_b32 v9, 3, {v(V_LANE)}
v_lshl_add_u32 v8, v9, 3, v8
s_lshl_b32 {s(S_T1)}, {s(S_T1)}, 14
s_add_u32 {s(S_T1)}, {s(S_T1)}, 0x10000
v_add_u32 {v(B0)}, {s(S_T1)}, v8
v_xor_b32 {v(B1)}, 64, {v(B0)}""".split("\n")]
P.add(p3_setup)
P.add(o_publish(0, OA_ACC, 8, lambda tt, f: [f"v_mul_f32 {v(f)}, {v(f)}, {v(V_G0+tt)}"]))
stamp()
P.add(WaitTag("wo")); P("s_barrier")
def wo_reads(n):
    b, hs = n & 1, n & 15
    return [f"ds_read_b64_tr_b16 {v(WOF+8*b+4*ct+2*j,2)}, {v((B0,B1)[ct])} offset:{hs*2048+j*1024}"
            for ct in range(2) for j in range(2)]
P.add(wo_reads(0))
for n in range(32):
    b = n & 1
    if n == 15:
        P(f"v_xor_b32 {v(B0)}, 0x10000, {v(B0)}\nv_xor_b32 {v(B1)}, 0x10000, {v(B1)}")
    rd = wo_reads(n + 1) if n < 31 else []
    of = a_((A_OB if n < 16 else A_OA) + 4*(n & 15), 4)
    if n == 16:
        stamp()
        poll_check(OFL, f"v_cmp_eq_u64 vcc, {v(OFL,2)}, {v(EPV,2)}", o_poll_load(0))
        stamp()
        P.add(o_gather(0))
    for ct in range(2):
        P(mfma(v(ACC3+16*ct,16), v(WOF+8*b+4*ct,4), of, "0" if n == 0 else v(ACC3+16*ct,16)))
        P.add(rd[2*ct:2*ct+2])
    if n == 10:
        P.add(o_flag(0)); P.add(o_poll_setup(0))
stamp()
EXA, RES = V_AX, NEGM
P(f"""s_lshl_b32 {s(S_T0)}, {s(S_WAVE)}, 12
s_add_u32 {s(S_T0)}, {s(S_T0)}, {L_EX}
v_add_u32 {v(EXA)}, {s(S_T0)}, {v(V_L16)}
v_xor_b32 {v(EXA+1)}, 0x2000, {v(EXA)}
v_and_b32 v8, 31, {v(V_LANE)}
v_lshlrev_b32 v8, 10, v8
v_lshrrev_b32 v9, 5, {v(V_LANE)}
v_lshl_add_u32 v8, v9, 4, v8
s_lshl_b32 {s(S_T0)}, {s(S_RB3)}, 16
s_and_b32 {s(S_T1)}, {s(S_WAVE)}, 1
s_lshl_b32 {s(S_T1)}, {s(S_T1)}, 15
s_add_u32 {s(S_T0)}, {s(S_T0)}, {s(S_T1)}
s_lshl_b32 {s(S_T1)}, {s(S_CB)}, 7
s_add_u32 {s(S_T0)}, {s(S_T0)}, {s(S_T1)}
s_and_b32 {s(S_T1)}, {s(S_WAVE)}, 2
s_lshl_b32 {s(S_T1)}, {s(S_T1)}, 5
s_add_u32 {s(S_T0)}, {s(S_T0)}, {s(S_T1)}""")
P.add([f"ds_write_b128 {v(EXA)}, {v(ACC3+16+4*q,4)} offset:{q*1024}" for q in range(4)])
P.add(WaitLds()); P("s_barrier")
P.add([f"ds_read_b128 {v(RES+4*q,4)}, {v(EXA+1)} offset:{q*1024}" for q in range(4)])
for hf in range(2):
    P.add([f"v_pk_add_f32 {v(RES+8*hf+2*i,2)}, {v(RES+8*hf+2*i,2)}, {v(ACC3+8*hf+2*i,2)}" for i in range(4)])
    P.add([f"v_cvt_pk_bf16_f32 {v(PF+4*hf+i)}, {v(RES+8*hf+2*i)}, {v(RES+8*hf+2*i+1)}" for i in range(4)])
for hf in range(2):
    P(f"v_permlane32_swap_b32 {v(PF+4*hf)}, {v(PF+4*hf+2)}\nv_permlane32_swap_b32 {v(PF+4*hf+1)}, {v(PF+4*hf+3)}")
    P(f"buffer_store_dwordx4 {v(PF+4*hf,4)}, v8, {s(S_OUT,4)}, {s(S_T0)} offen{' offset:32' if hf else ''}")
stamp()
if OPT["stamps"]:
    P(f"s_memrealtime {s(S_TM,2)}\ns_waitcnt lgkmcnt(0) vmcnt(0)\nv_writelane_b32 {v(V_STAMP)}, {s(S_TM)}, 63")
    P(f"""v_readlane_b32 {s(S_T0)}, {v(V_STAMP)}, 0
v_readlane_b32 {s(S_T1)}, {v(V_STAMP)}, {nstamp[0]-1}
v_readlane_b32 {s(S_T2)}, {v(V_STAMP)}, 62
v_readlane_b32 {s(S_K)}, {v(V_STAMP)}, 2
s_sub_u32 {s(S_T1)}, {s(S_T1)}, {s(S_T0)}
s_sub_u32 {s(S_K)}, {s(S_K)}, {s(S_T0)}
s_sub_u32 {s(S_T2)}, {s(S_TM)}, {s(S_T2)}
v_mov_b32 v8, {s(S_T1)}
v_mov_b32 v9, {s(S_T2)}
v_mov_b32 v10, {s(S_K)}
v_mov_b32 v11, {s(S_TM)}
s_lshr_b32 {s(S_T0)}, s2, 7
s_lshl_b32 {s(S_T0)}, {s(S_T0)}, 4
s_add_u32 {s(S_T0)}, {s(S_T0)}, 16
s_and_b32 {s(S_T1)}, s2, 127
s_lshl_b32 {s(S_T1)}, {s(S_T1)}, 2
s_add_u32 {s(S_T1)}, {s(S_T1)}, {s(S_WAVE)}
s_cmp_eq_u32 {s(S_T1)}, 76
s_cselect_b32 {s(S_T0)}, {s(S_T0)}, 4096
v_lshlrev_b32 v12, 8, {v(V_LANE)}
buffer_store_dwordx4 v[8:11], v12, {s(S_DBG,4)}, {s(S_T0)} offen""")
    P(f"""s_lshl_b32 {s(S_T0)}, s2, 2
s_add_u32 {s(S_T0)}, {s(S_T0)}, {s(S_WAVE)}
s_lshl_b32 {s(S_T0)}, {s(S_T0)}, 8
s_add_u32 {s(S_T0)}, {s(S_T0)}, {WS_STAMP}
v_lshlrev_b32 v8, 2, {v(V_LANE)}
buffer_store_dword {v(V_STAMP)}, v8, {s(S_WS,4)}, {s(S_T0)} offen""")
if OPT["amp"] >= 0:
    P(f"""s_cmp_lg_u32 s2, 100
s_cbranch_scc1 L_end
v_readlane_b32 {s(S_T0)}, {v(V_STAMP)}, 0
v_readlane_b32 {s(S_T1)}, {v(V_STAMP)}, 1
s_memrealtime {s(S_TM,2)}
s_sub_u32 {s(S_T1)}, {s(S_T1)}, {s(S_T0)}
s_mul_i32 {s(S_T1)}, {s(S_T1)}, {OPT["ampk"]}
s_min_u32 {s(S_T1)}, {s(S_T1)}, 100000
s_waitcnt lgkmcnt(0)
s_mov_b32 {s(S_T0)}, {s(S_TM)}""")
    P.add(Raw(f"""L_amp:
    s_memrealtime {s(S_TM,2)}
    s_waitcnt lgkmcnt(0)
    s_sub_u32 {s(S_K)}, {s(S_TM)}, {s(S_T0)}
    s_cmp_lt_u32 {s(S_K)}, {s(S_T1)}
    s_cbranch_scc1 L_amp"""))
P("L_end:\ns_endpgm")
P.add(Raw(special_txt))

body = finalize(P, verbose=True)
hdr = open("cdna_kernels/%s.s.ref" % NAME).read().split("; Override launch")[0]
txt = hdr + f"""; One launch: 256 workgroups (4 heads x 64 rows each), 4 waves, hand-offs through d_ws tagged with a per-launch epoch.
; @launch grid=(256,1,1) block=(256,1,1) lds={LDS_BYTES}
.amdgcn_target "amdgcn-amd-amdhsa--gfx950"
.text
.globl {NAME}_kernel
.p2align 8
.type {NAME}_kernel,@function
{NAME}_kernel:
{body}    .fill 8448, 4, 0xbf800000
.section .rodata,"a"
.p2align 6
.amdhsa_kernel {NAME}_kernel
  .amdhsa_next_free_vgpr 512
  .amdhsa_next_free_sgpr 102
  .amdhsa_accum_offset 256
  .amdhsa_group_segment_fixed_size 0
  .amdhsa_kernarg_size 80
  .amdhsa_user_sgpr_count 2
  .amdhsa_user_sgpr_kernarg_segment_ptr 1
  .amdhsa_system_sgpr_workgroup_id_x 1
.end_amdhsa_kernel
"""
open(sys.argv[1], "w").write(txt)
```

```python
import sys, math
from asmdsl import Prog, Ins, WaitTag, WaitLds, Raw, finalize

NAME = "gated_mix__sliding_block__sliding_local_dilated__prompt"
OPT = dict(ampall=0, amp=-1, ampk=8, stamps=0, standin=0, kv_flag_step=48, kv_poll_step=58, dump=0)
for a in sys.argv[2:]:
    k, v = a.split("="); OPT[k] = int(v)

WS_KV, WS_HB, WS_O = 0, 4 << 20, 5 << 20
WS_FKV, WS_FO, WS_STAMP, WS_DUMP, WS_SIZE = 9 << 20, (9 << 20) + 65536, 10 << 20, 12 << 20, 64 << 20
OOB = 0x80000000
NSLOT, SLOT = 5, 16384
L_X, L_G, L_GP, L_EX, LDS_BYTES = 81920, 147456, 148480, 131072, 149504
QK_SCALE = 0.25 * math.log2(math.e)
NEG_BIG = 0xf149f2ca
ONES = 0x3f803f80

def fhex(x):
    import struct
    return "0x%08x" % struct.unpack("<I", struct.pack("<f", x))[0]
def v(a, n=1): return f"v{a}" if n == 1 else f"v[{a}:{a+n-1}]"
def a_(a, n=1): return f"a{a}" if n == 1 else f"a[{a}:{a+n-1}]"
def s(a, n=1): return f"s{a}" if n == 1 else f"s[{a}:{a+n-1}]"

V_LANE, V_X0, V_X1, V_W1, V_W2 = 1, 2, 3, 4, 5
V_AX = 6
V_AXW, V_AG = 10, 11
V_T1L, V_T1H, V_T3L, V_T3H, V_T2L, V_T2H = 12, 13, 14, 15, 16, 17
V_L16, V_LO, V_HI = 18, 19, 20
V_STAMP = 21
V_PM = 22
V_G0 = 30
T1, T3, T2 = 32, 64, 96
VA, VB = 32, 48
SB = 64
OB_ACC, NEGM = 96, 96
CM, MG = 128, 128
XB, WB = 160, 176
PB, PF, TMP = 160, 176, 184
XW, GF, VPK = 192, 200, 204
OA_ACC = 192
KA, KB, QA, QB = 224, 232, 240, 248
A_K, A_V, A_KBH, A_VBH, A_G, A_OB, A_OA = 0, 32, 96, 100, 104, 136, 0
A_EP = 200
V_EP = 220
V_GPW, V_GPR = 222, 223
S_X, S_W, S_WS, S_WO, S_OUT, S_DBG, S_G = 24, 28, 32, 36, 40, 44, 48
S_WAVE, S_HG, S_RB, S_ROT, S_HEAD, S_RB3, S_CB = 52, 53, 54, 55, 56, 57, 58
S_K, S_T0, S_MW, S_MX, S_T1 = 59, 60, 61, 62, 63
S_MASK = 64
S_T2, S_T3 = 96, 97
S_LO16 = 98
S_TM = 100
S_C = 10
S_SPIN = 3

P = Prog()
nstamp = [0]
def stamp():
    if OPT["amp"] >= 0:
        if OPT["amp"] == nstamp[0]:
            P.add(WaitLds())
            P(f"s_memrealtime {s(S_TM,2)}\ns_waitcnt lgkmcnt(0)\nv_writelane_b32 {v(V_STAMP)}, {s(S_TM)}, 1")
        nstamp[0] += 1
    if OPT["stamps"]:
        P.add(WaitLds())
        P(f"s_memtime {s(S_TM,2)}\ns_waitcnt lgkmcnt(0)\nv_writelane_b32 {v(V_STAMP)}, {s(S_TM)}, {nstamp[0]}")
        nstamp[0] += 1

def mfma(d, a, b, c):
    return f"v_mfma_f32_32x32x16_bf16 {d}, {a}, {b}, {c}"

def srd(base, ptr, nbytes):
    return [f"s_mov_b32 {s(base)}, {s(ptr)}", f"s_mov_b32 {s(base+1)}, {s(ptr+1)}",
            f"s_mov_b32 {s(base+2)}, {nbytes}", f"s_mov_b32 {s(base+3)}, 0x20000"]

labels = [0]
def poll_check(reg, cmp_txt, reload_txt):
    n = labels[0]; labels[0] += 1
    P(f"s_mov_b32 {s(S_SPIN)}, 0x40000")
    P(cmp_txt)
    P(f"s_cmp_eq_u64 vcc, -1\ns_cbranch_scc1 L_pok{n}")
    P.add(Raw(f"""L_pspin{n}:
    {reload_txt}
    s_sub_u32 {s(S_SPIN)}, {s(S_SPIN)}, 1
    s_cbranch_scc1 L_pok{n}
    s_waitcnt vmcnt(0)
    {cmp_txt}
    s_nop 2
    s_cmp_eq_u64 vcc, -1
    s_cbranch_scc0 L_pspin{n}
L_pok{n}:"""))

P(f"""
s_cmp_ge_u32 s2, 256
s_cbranch_scc1 L_end
s_load_dwordx16 s[4:19], s[0:1], 0
s_load_dwordx4 s[20:23], s[0:1], 64
s_getpc_b64 {s(S_T2,2)}
v_and_b32 {v(V_LANE)}, 63, v0
v_lshrrev_b32 v2, 6, v0
s_lshr_b32 {s(S_T0)}, s2, 3
s_and_b32 {s(S_T1)}, {s(S_T0)}, 3
s_lshl_b32 {s(S_T1)}, {s(S_T1)}, 13
v_lshlrev_b32 v3, 7, {v(V_LANE)}
v_add_u32 v3, {s(S_T1)}, v3
v_readfirstlane_b32 {s(S_WAVE)}, v2
global_load_dword v31, v3, {s(S_T2,2)}
""", tag="codepf")
if OPT["amp"] >= 0:
    P(f"s_memrealtime {s(S_TM,2)}\ns_waitcnt lgkmcnt(0)\nv_writelane_b32 {v(V_STAMP)}, {s(S_TM)}, 0")
if OPT["stamps"]:
    P(f"v_mov_b32 {v(V_STAMP)}, 0")
    P(f"s_memrealtime {s(S_TM,2)}\ns_waitcnt lgkmcnt(0)\nv_writelane_b32 {v(V_STAMP)}, {s(S_TM)}, 62")
P(f"""
s_and_b32 {s(S_T1)}, s2, 1
s_lshl_b32 {s(S_HG)}, {s(S_T1)}, 2
s_and_b32 {s(S_K)}, {s(S_T0)}, 3
s_add_u32 {s(S_HG)}, {s(S_HG)}, {s(S_K)}
s_bfe_u32 {s(S_K)}, s2, 0x20001
s_lshl_b32 {s(S_K)}, {s(S_K)}, 3
s_lshr_b32 {s(S_ROT)}, {s(S_T0)}, 2
s_add_u32 {s(S_RB)}, {s(S_K)}, {s(S_ROT)}
s_lshl_b32 {s(S_T1)}, {s(S_T1)}, 2
s_add_u32 {s(S_RB3)}, {s(S_K)}, {s(S_T1)}
s_lshr_b32 {s(S_T1)}, {s(S_T0)}, 3
s_add_u32 {s(S_RB3)}, {s(S_RB3)}, {s(S_T1)}
s_and_b32 {s(S_CB)}, {s(S_T0)}, 7
s_lshl_b32 {s(S_HEAD)}, {s(S_HG)}, 2
s_add_u32 {s(S_HEAD)}, {s(S_HEAD)}, {s(S_WAVE)}
""")
i3, i4, p7, t0, t1, t2 = 22, 23, 24, 25, 26, 27
P(f"""
v_lshrrev_b32 {v(i3)}, 3, {v(V_LANE)}
v_lshrrev_b32 {v(i4)}, 4, {v(V_LANE)}
v_and_b32 {v(p7)}, 7, {v(V_LANE)}
s_lshl_b32 {s(S_T0)}, {s(S_WAVE)}, 4
v_add_u32 {v(t0)}, {s(S_T0)}, {v(i3)}
v_lshlrev_b32 {v(t0)}, 10, {v(t0)}
v_xor_b32 {v(t1)}, {v(p7)}, {v(i4)}
v_lshl_add_u32 {v(V_X0)}, {v(t1)}, 4, {v(t0)}
v_xor_b32 {v(V_X1)}, 64, {v(V_X0)}
v_add_u32 {v(V_X1)}, 0x2000, {v(V_X1)}
s_lshr_b32 {s(S_T0)}, {s(S_WAVE)}, 1
s_and_b32 {s(S_T1)}, {s(S_WAVE)}, 1
s_lshl_b32 {s(S_K)}, {s(S_T0)}, 4
v_add_u32 {v(t0)}, {s(S_K)}, {v(i4)}
v_mul_u32_u24 {v(t0)}, 0xc00, {v(t0)}
v_lshlrev_b32 {v(t1)}, 1, {v(i4)}
v_xor_b32 {v(t1)}, {v(t1)}, {v(p7)}
v_lshl_add_u32 {v(t0)}, {v(t1)}, 4, {v(t0)}
v_and_b32 {v(t1)}, 1, {v(i3)}
v_xor_b32 {v(t1)}, {s(S_T1)}, {v(t1)}
v_lshlrev_b32 {v(t1)}, 10, {v(t1)}
s_lshl_b32 {s(S_T2)}, {s(S_HG)}, 7
s_add_u32 {s(S_K)}, {s(S_T2)}, 1024
v_add3_u32 {v(V_W1)}, {v(t0)}, {v(t1)}, {s(S_K)}
s_lshl_b32 {s(S_K)}, {s(S_T0)}, 5
v_add_u32 {v(t0)}, {s(S_K)}, {v(i3)}
v_mul_u32_u24 {v(t0)}, 0xc00, {v(t0)}
v_and_b32 {v(t1)}, 1, {v(i4)}
s_lshl_b32 {s(S_K)}, {s(S_T1)}, 1
v_add_u32 {v(t1)}, {s(S_K)}, {v(t1)}
v_lshlrev_b32 {v(t1)}, 1, {v(t1)}
v_xor_b32 {v(t1)}, {v(t1)}, {v(p7)}
v_lshl_add_u32 {v(t0)}, {v(t1)}, 4, {v(t0)}
v_add_u32 {v(V_W2)}, {s(S_T2)}, {v(t0)}
s_lshl_b32 {s(S_MW)}, {s(S_T1)}, 13
s_lshl_b32 {s(S_K)}, {s(S_T0)}, 12
s_add_u32 {s(S_MW)}, {s(S_MW)}, {s(S_K)}
s_lshl_b32 {s(S_MX)}, {s(S_WAVE)}, 11
s_add_u32 {s(S_MX)}, {s(S_MX)}, {L_X}
s_lshl_b32 {s(S_K)}, {s(S_ROT)}, 3
v_add_u32 {v(t2)}, {s(S_K)}, {v(V_LANE)}
v_and_b32 {v(t2)}, 63, {v(t2)}
v_lshlrev_b32 {v(t2)}, 4, {v(t2)}
s_waitcnt lgkmcnt(0)
""")
stamp()
P.add(srd(S_X, 4, 2097152))
P(f"""
s_cmp_eq_u32 {s(S_T1)}, 0
s_cselect_b32 {s(S_W)}, s6, s12
s_cselect_b32 {s(S_W+1)}, s7, s13
s_cselect_b32 {s(S_WO)}, s8, s14
s_cselect_b32 {s(S_WO+1)}, s9, s15
s_mov_b32 {s(S_W+2)}, 1572864
s_mov_b32 {s(S_W+3)}, 0x20000
""")

def x_dma(j):
    return [[f"s_add_u32 {s(S_K)}, {s(S_ROT)}, {j}", f"s_and_b32 {s(S_K)}, {s(S_K)}, 7",
             f"s_lshl_b32 {s(S_K)}, {s(S_K)}, 7", f"s_lshl_b32 {s(S_T0)}, {s(S_RB)}, 16",
             f"s_add_u32 {s(S_K)}, {s(S_K)}, {s(S_T0)}",
             f"s_add_u32 m0, {s(S_MX)}, {j*8192}",
             Ins(f"buffer_load_dwordx4 {v(V_X0)}, {s(S_X,4)}, {s(S_K)} offen lds", f"x{j}")],
            [f"s_add_u32 m0, {s(S_MX)}, {j*8192+1024}",
             Ins(f"buffer_load_dwordx4 {v(V_X1)}, {s(S_X,4)}, {s(S_K)} offen lds", f"x{j}")]]

def w_dma(S):
    out = []
    base = (S % NSLOT) * SLOT
    for t in range(4):
        g = []
        if t == 0:
            if S < 16:
                g += [f"s_lshl_b32 {s(S_T3)}, {s(S_ROT)}, 1", f"s_add_u32 {s(S_T3)}, {s(S_T3)}, {S}",
                      f"s_and_b32 {s(S_T3)}, {s(S_T3)}, 15", f"s_mul_i32 {s(S_T3)}, {s(S_T3)}, {32*3072}"]
            else:
                g += [f"s_add_u32 {s(S_T3)}, {s(S_ROT)}, {S-16}", f"s_and_b32 {s(S_T3)}, {s(S_T3)}, 7",
                      f"s_mul_i32 {s(S_T3)}, {s(S_T3)}, {64*3072}"]
        else:
            g += [f"s_add_u32 {s(S_T3)}, {s(S_T3)}, {(4 if S < 16 else 8)*3072}"]
        g += [f"s_add_u32 m0, {s(S_MW)}, {base + t*1024}",
              Ins(f"buffer_load_dwordx4 {v(V_W1 if S < 16 else V_W2)}, {s(S_W,4)}, {s(S_T3)} offen lds", f"w{S}")]
        out.append(g)
    return out

setup = []
def su(txt):
    for l in txt.strip().split("\n"):
        if l.strip(): setup.append(l.strip())
r5, hh, rr, cc, nh, u0, u1, cm = 160, 161, 162, 163, 164, 165, 166, 167
su(f"""
v_and_b32 {v(r5)}, 31, {v(V_LANE)}
v_lshrrev_b32 {v(hh)}, 5, {v(V_LANE)}
v_bfe_u32 {v(u0)}, {v(r5)}, 1, 3
v_xor_b32 {v(u0)}, {v(u0)}, {v(hh)}
v_lshlrev_b32 {v(u0)}, 4, {v(u0)}
v_lshl_add_u32 {v(u0)}, {v(r5)}, 7, {v(u0)}
v_add_u32 {v(V_AX)}, {L_X}, {v(u0)}
v_xor_b32 {v(V_AX+1)}, 32, {v(V_AX)}
v_xor_b32 {v(V_AX+2)}, 64, {v(V_AX)}
v_xor_b32 {v(V_AX+3)}, 0x60, {v(V_AX)}
s_lshl_b32 {s(S_T2)}, {s(S_WAVE)}, 5
v_xor_b32 {v(V_AXW)}, {s(S_T2)}, {v(V_AX)}
v_lshlrev_b32 {v(u0)}, 4, {v(hh)}
s_add_u32 {s(S_T2)}, {s(S_T2)}, {L_G}
v_add_u32 {v(V_AG)}, {s(S_T2)}, {v(u0)}
v_bfe_u32 {v(rr)}, {v(V_LANE)}, 2, 2
v_and_b32 {v(cc)}, 3, {v(V_LANE)}
v_bfe_u32 {v(nh)}, {v(V_LANE)}, 4, 1
v_lshl_add_u32 {v(u0)}, {v(hh)}, 3, {v(rr)}
v_xor_b32 {v(u1)}, {s(S_WAVE)}, {v(rr)}
v_lshlrev_b32 {v(u1)}, 5, {v(u1)}
v_lshl_add_u32 {v(u1)}, {v(cc)}, 3, {v(u1)}
v_lshl_add_u32 {v(u1)}, {v(u0)}, 8, {v(u1)}
v_mul_u32_u24 {v(V_T1L)}, 0x2080, {v(nh)}
v_add_u32 {v(V_T1L)}, {v(V_T1L)}, {v(u1)}
v_add_u32 {v(V_T1H)}, 0x10000, {v(V_T1L)}
v_xor_b32 {v(V_T3L)}, 0x80, {v(V_T1L)}
v_xor_b32 {v(V_T3H)}, 0x80, {v(V_T1H)}
v_lshrrev_b32 {v(u1)}, 1, {v(rr)}
v_lshl_add_u32 {v(u1)}, {v(nh)}, 1, {v(u1)}
v_xor_b32 {v(u1)}, {s(S_WAVE)}, {v(u1)}
v_lshlrev_b32 {v(u1)}, 5, {v(u1)}
v_lshl_add_u32 {v(u1)}, {v(cc)}, 3, {v(u1)}
v_lshl_add_u32 {v(u1)}, {v(u0)}, 7, {v(u1)}
v_lshl_add_u32 {v(V_T2L)}, {v(nh)}, 13, {v(u1)}
v_add_u32 {v(V_T2H)}, 0x10000, {v(V_T2L)}
v_lshlrev_b32 {v(V_L16)}, 4, {v(V_LANE)}
v_and_b32 {v(u0)}, 15, {v(V_LANE)}
v_lshlrev_b32 {v(u0)}, 4, {v(u0)}
v_lshl_add_u32 {v(u0)}, {v(hh)}, 8, {v(u0)}
v_lshl_add_u32 {v(V_LO)}, {v(nh)}, 31, {v(u0)}
v_xor_b32 {v(V_HI)}, {OOB}, {v(V_LO)}
v_lshlrev_b32 {v(V_GPR)}, 4, {v(r5)}
v_add_u32 {v(V_GPR)}, {L_GP}, {v(V_GPR)}
s_lshl_b32 {s(S_T2)}, {s(S_WAVE)}, 2
v_add_u32 {v(V_GPW)}, {s(S_T2)}, {v(V_GPR)}
s_mov_b32 {s(S_LO16)}, 0xffff
s_mov_b32 {s(S_LO16+1)}, 0xffff
s_mov_b32 {s(S_C)}, {fhex(QK_SCALE)}
s_mov_b32 {s(S_C+1)}, {fhex(QK_SCALE)}
v_lshlrev_b32 {v(u0)}, 2, {v(hh)}
v_sub_u32 {v(cm)}, {v(r5)}, {v(u0)}
v_mov_b32 {v(u1)}, 0xffff
""")
for q in range(16):
    su(f"v_cmp_le_i32 {s(S_MASK+2*q,2)}, {8*(q>>2)+(q&3)}, {v(cm)}")
for q in range(16):
    K = 8*(q>>2)+(q&3)
    su(f"""v_subrev_u32 {v(CM+16+q)}, {K}, {v(cm)}
v_and_b32 {v(CM+16+q)}, 17, {v(CM+16+q)}
v_cvt_f32_u32 {v(CM+16+q)}, {v(CM+16+q)}
v_mul_f32 {v(CM+16+q)}, {hex(NEG_BIG)}, {v(CM+16+q)}""")
su(f"""s_cmp_eq_u32 {s(S_RB)}, 0
s_cselect_b64 {s(S_TM,2)}, {s(S_LO16,2)}, 0
v_mov_b32 {v(u0)}, {hex(NEG_BIG)}""")
for q in range(16):
    if q < 8: su(f"v_mov_b32 {v(CM+q)}, {v(CM+16+q)}")
    else: su(f"v_cndmask_b32 {v(CM+q)}, {v(CM+16+q)}, {v(u0)}, {s(S_TM,2)}")
pm_setup = []
for pq in range(8):
    pm_setup += [f"v_cndmask_b32 {v(V_PM+pq)}, 0, {v(u1)}, {s(S_MASK+4*pq,2)}",
                 f"v_cndmask_b32 {v(V_PM+pq)}, {v(V_PM+pq)}, -1, {s(S_MASK+4*pq+2,2)}"]
for p in range(8):
    su(f"""s_cmp_ge_u32 {s(S_RB)}, {(8-p+1)//2}
s_cselect_b32 {s(S_T2)}, {hex(ONES)}, 0""")
    for i in range(8):
        su(f"v_accvgpr_write_b32 {a_(A_V+8*p+i)}, {s(S_T2)}")
su(f"s_mov_b32 {s(S_T2)}, {hex(ONES)}")
for i in range(4):
    su(f"v_accvgpr_write_b32 {a_(A_VBH+i)}, {s(S_T2)}")

groups = x_dma(0) + w_dma(0)
groups += [srd(S_G, 16, 1024) + [f"s_mov_b32 m0, {L_G}", Ins(f"buffer_load_dwordx4 {v(t2)}, {s(S_G,4)}, 0 offen lds", "x0")]]
groups += w_dma(1) + x_dma(1) + w_dma(2) + w_dma(3) + x_dma(2) + w_dma(4)
for j in range(3, 8):
    groups += x_dma(j)
late = (srd(S_WS, 22, WS_SIZE) + srd(S_DBG, 20, 256) + srd(S_OUT, 18, 2097152) +
        [f"s_mov_b32 {s(S_WO+2)}, 524288", f"s_mov_b32 {s(S_WO+3)}, 0x20000"])
epoch_pub = [f"s_memrealtime {s(S_TM,2)}",
             f"s_cmp_eq_u32 s2, 0", f"s_cselect_b32 {s(S_T2)}, 0, {OOB}",
             f"v_lshlrev_b32 v28, 8, v0", f"v_or_b32 v28, {s(S_T2)}, v28", "s_waitcnt lgkmcnt(0)",
             f"v_mov_b32 {v(V_EP)}, {s(S_TM)}", f"v_mov_b32 {v(V_EP+1)}, {s(S_TM+1)}",
             Ins(f"buffer_store_dwordx2 {v(V_EP,2)}, v28, {s(S_DBG,4)}, 0 offen sc1", "ep")]
def glue(lst):
    o = []
    for x in lst:
        if o and isinstance(o[-1], str) and o[-1].startswith("s_cmp"):
            o[-1] = [o[-1], x]
        else:
            o.append(x)
    return o
fill = glue(late + epoch_pub + setup + pm_setup)
per = -(-len(fill) // (len(groups) - 7))
for gi, g in enumerate(groups):
    P.add(g)
    if gi >= 6:
        P.add(fill[:per]); fill = fill[per:]
P.add(fill)
stamp()

def stage_of(n): return n >> 1 if n < 32 else 16 + ((n - 32) >> 2)
def first_of_stage(n): return n < 64 and (n == 0 or stage_of(n) != stage_of(n - 1))

def frag_reads(n):
    b = n & 1
    m = n & 31
    j, ux = m >> 2, m & 3
    S = stage_of(n); base = (S % NSLOT) * SLOT
    hi = base >= 65536; off = base - (65536 if hi else 0)
    out = [f"ds_read_b128 {v(XB+8*b+4*tt,4)}, {v(V_AX+ux)} offset:{j*8192+tt*4096}" for tt in range(2)]
    if n < 32:
        u = n & 1
        w = [f"ds_read_b64_tr_b16 {v(WB+8*b+4*t+2*qd,2)}, {v(((V_T1L,V_T1H),(V_T3L,V_T3H))[t][hi])} offset:{off+u*4096+qd*1024}"
             for t in range(2) for qd in range(2)]
        return [w[0], w[1], out[0], w[2], w[3], out[1]]
    w = [f"ds_read_b64_tr_b16 {v(WB+8*b+2*qd,2)}, {v((V_T2L,V_T2H)[hi])} offset:{off+ux*2048+qd*512}" for qd in range(2)]
    return [w[0], w[1], out[0], out[1]]

def step_mfmas(n):
    b = n & 1
    x = lambda tt: v(XB+8*b+4*tt, 4)
    if n < 32:
        c = lambda r: "0" if n == 0 else v(r, 16)
        return [mfma(v(T1,16), v(WB+8*b,4), x(0), c(T1)), mfma(v(T3,16), x(0), v(WB+8*b+4,4), c(T3)),
                mfma(v(T1+16,16), v(WB+8*b,4), x(1), c(T1+16)), mfma(v(T3+16,16), x(1), v(WB+8*b+4,4), c(T3+16))]
    c = lambda r: "0" if n == 32 else v(r, 16)
    return [mfma(v(T2,16), v(WB+8*b,4), x(0), c(T2)), mfma(v(T2+16,16), v(WB+8*b,4), x(1), c(T2+16))]

def stage_sync(n):
    S = stage_of(n) if n < 64 else 24
    tags = [f"w{S}"]
    if n < 32: tags.append(f"x{n >> 2}")
    P.add(WaitLds()); P.add(WaitTag(*tags)); P("s_barrier")

ws_ld = lambda dst, voff, soff, imm=0, tag=None: Ins(
    f"buffer_load_dwordx4 {dst}, {v(voff)}, {s(S_WS,4)}, {soff} offen{' offset:%d' % imm if imm else ''} sc1", tag)
ws_st = lambda src, voff, soff, imm=0, tag=None: Ins(
    f"buffer_store_dwordx4 {src}, {v(voff)}, {s(S_WS,4)}, {soff} offen{' offset:%d' % imm if imm else ''} sc1", tag)

def kv_publish():
    o = []
    o += [f"s_lshl_b32 {s(S_T0)}, {s(S_HEAD)}, 17", f"s_lshl_b32 {s(S_T1)}, {s(S_RB)}, 12",
          f"s_add_u32 {s(S_T0)}, {s(S_T0)}, {s(S_T1)}"]
    for tt in range(2):
        o += [f"v_pk_mul_f32 {v(T1+16*tt+2*i,2)}, {v(T1+16*tt+2*i,2)}, {s(S_C,2)}" for i in range(4)]
        o += [f"v_cvt_pk_bf16_f32 {v(KA+4*tt+i)}, {v(T1+16*tt+2*i)}, {v(T1+16*tt+2*i+1)}" for i in range(4)]
        o += [ws_st(v(KA+4*tt,4), V_L16, s(S_T0), tt*2048, "kv")]
    for tt in range(2):
        for m in range(2):
            o += [f"v_cvt_pk_bf16_f32 {v(VPK+8*tt+4*m+i)}, {v(T3+16*tt+8*m+2*i)}, {v(T3+16*tt+8*m+2*i+1)}" for i in range(4)]
            o += [ws_st(v(VPK+8*tt+4*m,4), V_LO, s(S_T0), tt*2048+1024+m*512, "kv")]
    o += [f"s_lshl_b32 {s(S_T0)}, {s(S_HEAD)}, 15", f"s_lshl_b32 {s(S_T1)}, {s(S_RB)}, 10",
          f"s_add_u32 {s(S_T0)}, {s(S_T0)}, {s(S_T1)}", f"s_add_u32 {s(S_T0)}, {s(S_T0)}, {WS_HB}"]
    for tt in (1, 0):
        o += [f"v_pk_mul_f32 {v(T1+16*tt+8+2*i,2)}, {v(T1+16*tt+8+2*i,2)}, {s(S_C,2)}" for i in range(4)]
        o += [f"v_cvt_pk_bf16_f32 {v(KB+4*tt+i)}, {v(T1+16*tt+8+2*i)}, {v(T1+16*tt+8+2*i+1)}" for i in range(4)]
        if tt == 1:
            o += [ws_st(v(KB+4,4), V_HI, s(S_T0), 0, "kv"), ws_st(v(VPK+12,4), V_HI, s(S_T0), 512, "kv")]
    return o

def gate_partial():
    return [f"v_accvgpr_read_b32 {v(XW)}, {a_(A_G)}", f"v_accvgpr_read_b32 {v(XW+1)}, {a_(A_G+16)}",
            f"ds_write_b32 {v(V_GPW)}, {v(XW)}", f"ds_write_b32 {v(V_GPW)}, {v(XW+1)} offset:512"]

def gate_finish():
    o = [f"ds_read_b128 {v(XW,4)}, {v(V_GPR)}", f"ds_read_b128 {v(XW+4,4)}, {v(V_GPR)} offset:512"]
    for t in range(2):
        b = XW + 4*t
        o += [f"v_add_f32 {v(b)}, {v(b)}, {v(b+1)}", f"v_add_f32 {v(b+2)}, {v(b+2)}, {v(b+3)}"]
    for t in range(2):
        b = XW + 4*t
        o += [f"v_add_f32 {v(b)}, {v(b)}, {v(b+2)}"]
    for t in range(2):
        o += [f"v_mul_f32 {v(XW+4*t)}, {fhex(-math.log2(math.e))}, {v(XW+4*t)}"]
    for t in range(2):
        o += [f"v_exp_f32 {v(XW+4*t)}, {v(XW+4*t)}"]
    for t in range(2):
        o += [f"v_add_f32 {v(XW+4*t)}, 1.0, {v(XW+4*t)}"]
    for t in range(2):
        o += [f"v_rcp_f32 {v(V_G0+t)}, {v(XW+4*t)}"]
    return o

def v_split():
    o = [f"v_mov_b32 {v(GF)}, {hex(ONES)}"]
    for tt in range(2):
        for i in range(8):
            o += [f"v_cndmask_b32 {v(VA+8*tt+i)}, {v(GF)}, {v(VPK+8*tt+i)}, {s(S_LO16,2)}",
                  f"v_cndmask_b32 {v(VB+8*tt+i)}, {v(VPK+8*tt+i)}, {v(GF)}, {s(S_LO16,2)}"]
    return o

V_FO, V_FL = 28 + 0, 0
FLG = GF + 2
ep_load = f"buffer_load_dwordx2 {v(V_EP,2)}, off, {s(S_DBG,4)}, 0 sc1"
def flag_store(soff_setup, tag):
    return soff_setup + [f"v_lshlrev_b32 v0, 26, {v(V_LANE)}",
                         Ins(f"buffer_store_dwordx2 {v(V_EP,2)}, v0, {s(S_WS,4)}, {s(S_T0)} offen sc1", tag)]

stage_sync(0)
stamp()
P.add(frag_reads(0))
queue = []
for n in range(64):
    mf = step_mfmas(n)
    pre = []
    if first_of_stage(n + 1) or n == 63:
        stage_sync(n + 1)
        S = stage_of(n + 1) + NSLOT - 1 if n < 63 else 99
        if S < 24:
            pre = [x for g in w_dma(S) for x in g]
    rd = frag_reads(n + 1) if n < 63 else []
    extra = []
    if n < 32 and (n & 3) == 0:
        j = n >> 2
        extra = [f"ds_read_b128 {v(GF,4)}, {v(V_AG)} offset:{j*128}",
                 f"ds_read_b128 {v(XW,4)}, {v(V_AXW)} offset:{j*8192}",
                 f"ds_read_b128 {v(XW+4,4)}, {v(V_AXW)} offset:{j*8192+4096}"]
    if n < 32 and (n & 3) == 2:
        c = (lambda r: "0") if n == 2 else (lambda r: a_(r, 16))
        mf = mf + [mfma(a_(A_G,16), v(GF,4), v(XW,4), c(A_G)), mfma(a_(A_G+16,16), v(GF,4), v(XW+4,4), c(A_G+16))]
    if n == 16:
        queue += [Ins(ep_load, "epl")]
    if n == 33:
        queue += kv_publish() + gate_partial()
    if n == 38:
        queue += v_split()
    if n == 44:
        queue += gate_finish()
    body = rd + extra + pre
    burst = 100 if n == 33 else 6
    body += queue[:burst]; queue = queue[burst:]
    k = len(mf)
    share = [len(body) // k + (1 if i < len(body) % k else 0) for i in range(k)]
    for i, m in enumerate(mf):
        P(m); P.add(body[:share[i]]); body = body[share[i]:]
    if n == 31:
        stamp()
    if n == OPT["kv_flag_step"]:
        poll_check(V_EP, f"v_cmp_ne_u64 vcc, 0, {v(V_EP,2)}", ep_load)
        P.add(WaitTag("kv"))
        P.add(flag_store([f"s_lshl_b32 {s(S_T0)}, {s(S_HEAD)}, 5", f"s_add_u32 {s(S_T0)}, {s(S_T0)}, {s(S_RB)}",
                          f"s_lshl_b32 {s(S_T0)}, {s(S_T0)}, 3", f"s_add_u32 {s(S_T0)}, {s(S_T0)}, {WS_FKV}"], "fkv"))
        P(f"v_accvgpr_write_b32 {a_(A_EP)}, {v(V_EP)}\nv_accvgpr_write_b32 {a_(A_EP+1)}, {v(V_EP+1)}")
        stamp()
    if n == OPT["kv_poll_step"]:
        P(f"""v_and_b32 v0, 3, {v(V_LANE)}
s_sub_u32 {s(S_T1)}, {s(S_RB)}, 4
v_add_u32 v0, {s(S_T1)}, v0
v_max_i32 v0, 0, v0
v_lshlrev_b32 v0, 3, v0
s_lshl_b32 {s(S_K)}, {s(S_HEAD)}, 8
s_add_u32 {s(S_K)}, {s(S_K)}, {WS_FKV}""")
        kvflag_load = f"buffer_load_dwordx2 {v(FLG,2)}, v0, {s(S_WS,4)}, {s(S_K)} offen sc1"
        P(kvflag_load)
assert not queue
stamp()

poll_check(FLG, f"v_cmp_eq_u64 vcc, {v(FLG,2)}, {v(V_EP,2)}", kvflag_load)
stamp()
def gather(special):
    o = []
    o += [f"s_lshl_b32 {s(S_T0)}, {s(S_HEAD)}, 15", f"s_lshl_b32 {s(S_T1)}, {s(S_RB)}, 10",
          f"s_add_u32 {s(S_T0)}, {s(S_T0)}, {s(S_T1)}", f"s_add_u32 {s(S_T0)}, {s(S_T0)}, {WS_HB - 1024}"]
    if special:
        o += [f"s_cmp_eq_u32 {s(S_RB)}, 0", f"s_cselect_b32 {s(S_T0)}, {WS_SIZE}, {s(S_T0)}"]
    o += [ws_ld(a_(A_KBH,4), V_HI, s(S_T0), 0, "hb"), f"s_not_b64 exec, {s(S_LO16,2)}",
          ws_ld(a_(A_VBH,4), V_HI, s(S_T0), 512, "hb"), "s_mov_b64 exec, -1"]
    o += [f"s_lshl_b32 {s(S_K)}, {s(S_HEAD)}, 17", f"s_lshl_b32 {s(S_T1)}, {s(S_RB)}, 12",
          f"s_add_u32 {s(S_T0)}, {s(S_K)}, {s(S_T1)}", f"s_sub_u32 {s(S_T0)}, {s(S_T0)}, {8*2048}"]
    if special:
        o += [f"v_and_b32 v0, 32, {v(V_LANE)}", "v_lshlrev_b32 v0, 4, v0"]
    for p in range(8):
        if p and p % 2 == 0:
            o += [f"s_add_u32 {s(S_T0)}, {s(S_T0)}, 4096"]
        if special:
            o += [f"s_cmp_ge_u32 {s(S_RB)}, {(8-p+1)//2}", f"s_cbranch_scc1 L_gk{p}",
                  ws_ld(a_(A_K+4*p,4), 0, s(S_K)), f"s_branch L_gk{p}e", f"L_gk{p}:",
                  ws_ld(a_(A_K+4*p,4), V_L16, s(S_T0), (p & 1)*2048), f"L_gk{p}e:"]
        else:
            o += [ws_ld(a_(A_K+4*p,4), V_L16, s(S_T0), (p & 1)*2048, f"k{p}")]
    o += [f"s_sub_u32 {s(S_T0)}, {s(S_T0)}, {3*4096}", f"s_mov_b64 exec, {s(S_LO16,2)}"]
    for p in range(8):
        if p and p % 2 == 0:
            o += [f"s_add_u32 {s(S_T0)}, {s(S_T0)}, 4096"]
        so = S_T0
        if special:
            o += [f"s_cmp_ge_u32 {s(S_RB)}, {(8-p+1)//2}", f"s_cselect_b32 {s(S_T1)}, {s(S_T0)}, {WS_SIZE}"]
            so = S_T1
        o += [ws_ld(a_(A_V+8*p+4*m,4), V_LO, s(so), (p & 1)*2048+1024+m*512, f"v{p}") for m in range(2)]
    o += ["s_mov_b64 exec, -1"]
    return o
P(f"s_cmp_lt_u32 {s(S_RB)}, 4\ns_cbranch_scc1 L_gspecial")
P.add(gather(False))
P("L_gdone:")
special_txt = "L_gspecial:\n" + "\n".join(
    (x.text if isinstance(x, Ins) else x) if (isinstance(x, str) and x.endswith(":")) else "    " + (x.text if isinstance(x, Ins) else x)
    for x in gather(True)) + "\n    s_branch L_gdone\n"

for tt in range(2):
    P.add([f"v_cvt_pk_bf16_f32 {v(QB+4*tt+i)}, {v(T2+16*tt+8+2*i)}, {v(T2+16*tt+8+2*i+1)}" for i in range(4)])
for tt in range(2):
    P.add([f"v_cvt_pk_bf16_f32 {v(QA+4*tt+i)}, {v(T2+16*tt+2*i)}, {v(T2+16*tt+2*i+1)}" for i in range(4)])

def max_tree(dst, regs, init=None):
    regs = list(regs); o = []
    if init is None:
        o.append(f"v_max3_f32 {v(dst)}, {v(regs[0])}, {v(regs[1])}, {v(regs[2])}"); regs = regs[3:]
    while len(regs) >= 2:
        o.append(f"v_max3_f32 {v(dst)}, {v(dst)}, {v(regs[0])}, {v(regs[1])}"); regs = regs[2:]
    if regs:
        o.append(f"v_max_f32 {v(dst)}, {v(dst)}, {v(regs[0])}")
    return o

def cross_max(m, t):
    return [f"v_mov_b32 {v(t)}, {v(m)}", f"v_permlane32_swap_b32 {v(m)}, {v(t)}", f"v_max_f32 {v(m)}, {v(m)}, {v(t)}"]

def interleave(*ls):
    o, ls = [], [list(l) for l in ls]
    while any(ls):
        for l in ls:
            if l: o.append(l.pop(0))
    return o

def o_publish(br, acc, lreg, fac_setup):
    o0 = 8 if br else 0
    seq = []
    for tt in range(2):
        f = TMP + tt
        t = [f"v_rcp_f32 {v(f)}, {v(acc+16*tt+lreg)}"] + fac_setup(tt, f)
        t += [f"v_mul_f32 {v(acc+16*tt+o0+i)}, {v(f)}, {v(acc+16*tt+o0+i)}" for i in range(8)]
        t += [f"v_cvt_pk_bf16_f32 {v(PF+4*tt+i)}, {v(acc+16*tt+o0+2*i)}, {v(acc+16*tt+o0+2*i+1)}" for i in range(4)]
        seq.append(t)
    o = interleave(*seq)
    o += [f"s_lshl_b32 {s(S_T0)}, {s(S_RB)}, 16", f"s_lshl_b32 {s(S_T1)}, {s(S_HEAD)}, 10",
          f"s_add_u32 {s(S_T0)}, {s(S_T0)}, {s(S_T1)}", f"s_add_u32 {s(S_T0)}, {s(S_T0)}, {WS_O + br*(2<<20)}",
          ws_st(v(PF,4), V_L16, s(S_T0), 0, f"o{br}"), f"s_add_u32 {s(S_T0)}, {s(S_T0)}, 32768",
          ws_st(v(PF+4,4), V_L16, s(S_T0), 0, f"o{br}")]
    return o

def b_scores(t):
    kprev = v(KB, 4) if t == 1 else a_(A_KBH, 4)
    spare = OA_ACC + 16 * t
    return [mfma(v(SB+16*t,16), v(KB+4*t,4), v(QB+4*t,4), v(CM+16*t,16)),
            mfma(v(spare,16), kprev, v(QB+4*t,4), v(CM+16*t,16))]
def b_softmax(t):
    S, spare, m = SB + 16*t, OA_ACC + 16*t, TMP + 2 + 2*t
    o = [f"v_cndmask_b32 {v(S+q)}, {v(S+q)}, {v(spare+q)}, {s(S_LO16,2)}" for q in range(8, 16)]
    o += max_tree(m, range(S, S+16)) + cross_max(m, m+1)
    o += [f"v_sub_f32 {v(S+q)}, {v(S+q)}, {v(m)}" for q in range(16)]
    o += [f"v_exp_f32 {v(S+q)}, {v(S+q)}" for q in range(16)]
    o += [f"v_cvt_pk_bf16_f32 {v(PB+8*t+i)}, {v(S+2*i)}, {v(S+2*i+1)}" for i in range(8)]
    o += [f"v_cndmask_b32 {v(PF+4*t+i)}, 0, {v(PB+8*t+4+i)}, {s(S_LO16,2)}" for i in range(4)]
    o += [f"v_cndmask_b32 {v(PB+8*t+4+i)}, {v(PB+8*t+4+i)}, 0, {s(S_LO16,2)}" for i in range(4)]
    return o
def b_pv(t):
    vprev = v(VB+4, 4) if t == 1 else a_(A_VBH, 4)
    acc = v(OB_ACC+16*t, 16)
    return [mfma(acc, v(VB+8*t,4), v(PB+8*t,4), "0"), mfma(acc, v(VB+8*t+4,4), v(PB+8*t+4,4), acc),
            mfma(acc, vprev, v(PF+4*t,4), acc)]

P.add(b_scores(1))
sm1 = b_softmax(1)
P.add(sm1[:40]); P.add(b_scores(0)); P.add(sm1[40:])
sm0 = b_softmax(0)
pv1 = b_pv(1)
P.add(sm0[:2]); P(pv1[0]); P.add(sm0[2:10]); P(pv1[1]); P.add(sm0[10:18]); P(pv1[2]); P.add(sm0[18:])
P.add(b_pv(0))
stamp()

def kfrag(p): return a_(A_K+4*p, 4) if p < 8 else v(KA+4*(p-8), 4)
def vfrag(p, m): return a_(A_V+8*p+4*m, 4) if p < 8 else v(VA+8*(p-8)+4*m, 4)
full_tiles = lambda t: list(range(t + 1, t + 8))

def wo_dma():
    o = [[f"v_lshrrev_b32 v0, 3, {v(V_LANE)}", f"v_bfe_u32 {v(V_X0)}, {v(V_LANE)}, 4, 1",
          f"v_lshlrev_b32 {v(V_X0)}, 2, {v(V_X0)}", f"v_and_b32 {v(V_X1)}, 7, {v(V_LANE)}",
          f"v_xor_b32 {v(V_X0)}, {v(V_X0)}, {v(V_X1)}", f"v_lshlrev_b32 {v(V_X0)}, 4, {v(V_X0)}",
          f"v_lshl_add_u32 {v(V_X0)}, v0, 10, {v(V_X0)}",
          f"s_lshr_b32 {s(S_T2)}, {s(S_WAVE)}, 1", f"s_and_b32 {s(S_MW)}, {s(S_WAVE)}, 1",
          f"s_lshl_b32 {s(S_MW)}, {s(S_MW)}, 16", f"s_lshl_b32 {s(S_T3)}, {s(S_T2)}, 15",
          f"s_add_u32 {s(S_MW)}, {s(S_MW)}, {s(S_T3)}", f"s_lshl_b32 {s(S_T3)}, {s(S_T2)}, 18",
          f"s_lshl_b32 {s(S_T2)}, {s(S_CB)}, 7", f"s_add_u32 {s(S_T3)}, {s(S_T3)}, {s(S_T2)}"]]
    for t in range(32):
        g = [f"s_add_u32 {s(S_T3)}, {s(S_T3)}, 8192"] if t else []
        g += [f"s_add_u32 m0, {s(S_MW)}, {t*1024}",
              Ins(f"buffer_load_dwordx4 {v(V_X0)}, {s(S_WO,4)}, {s(S_T3)} offen lds", "wo")]
        o.append(g)
    return o

EPV = TMP + 6
def ep_restore(): return [f"v_accvgpr_read_b32 {v(EPV)}, {a_(A_EP)}", f"v_accvgpr_read_b32 {v(EPV+1)}, {a_(A_EP+1)}"]
def o_flag(br):
    return [WaitTag(f"o{br}"), f"s_lshl_b32 {s(S_T0)}, {s(S_RB)}, 5", f"s_add_u32 {s(S_T0)}, {s(S_T0)}, {s(S_HEAD)}",
            f"s_lshl_b32 {s(S_T0)}, {s(S_T0)}, 3", f"s_add_u32 {s(S_T0)}, {s(S_T0)}, {WS_FO + br*8192}",
            f"v_lshlrev_b32 v0, 26, {v(V_LANE)}",
            Ins(f"buffer_store_dwordx2 {v(EPV,2)}, v0, {s(S_WS,4)}, {s(S_T0)} offen sc1", "fo")]
OFL = V_W1
def o_poll_load(br):
    return f"buffer_load_dwordx2 {v(OFL,2)}, {v(V_X1)}, {s(S_WS,4)}, {s(S_K)} offen sc1"
def o_poll_setup(br):
    return [f"v_and_b32 {v(V_X1)}, 15, {v(V_LANE)}", f"v_lshlrev_b32 {v(V_X1)}, 3, {v(V_X1)}",
            f"s_lshl_b32 {s(S_K)}, {s(S_RB3)}, 8", f"s_lshr_b32 {s(S_T1)}, {s(S_WAVE)}, 1",
            f"s_lshl_b32 {s(S_T1)}, {s(S_T1)}, 7", f"s_add_u32 {s(S_K)}, {s(S_K)}, {s(S_T1)}",
            f"s_add_u32 {s(S_K)}, {s(S_K)}, {WS_FO + br*8192}", o_poll_load(br)]
def o_gather(br):
    dst = A_OB if br else A_OA
    o = [f"s_lshl_b32 {s(S_T0)}, {s(S_RB3)}, 16", f"s_and_b32 {s(S_T1)}, {s(S_WAVE)}, 1",
         f"s_lshl_b32 {s(S_T1)}, {s(S_T1)}, 15", f"s_add_u32 {s(S_T0)}, {s(S_T0)}, {s(S_T1)}",
         f"s_lshr_b32 {s(S_T1)}, {s(S_WAVE)}, 1", f"s_lshl_b32 {s(S_T1)}, {s(S_T1)}, 14",
         f"s_add_u32 {s(S_T0)}, {s(S_T0)}, {s(S_T1)}", f"s_add_u32 {s(S_T0)}, {s(S_T0)}, {WS_O + br*(2<<20)}"]
    for hs in range(16):
        if hs and hs % 4 == 0:
            o += [f"s_add_u32 {s(S_T0)}, {s(S_T0)}, 4096"]
        o += [ws_ld(a_(dst+4*hs,4), V_L16, s(S_T0), (hs & 3)*1024, f"og{br}")]
    return o

ob = o_publish(1, OB_ACC, 0, lambda tt, f: [f"v_sub_f32 {v(TMP+4+tt)}, 1.0, {v(V_G0+tt)}",
                                             f"v_mul_f32 {v(f)}, {v(f)}, {v(TMP+4+tt)}"])
P(mfma(v(MG,16), kfrag(8), v(QA,4), "0"))
P(mfma(v(MG+16,16), kfrag(9), v(QA+4,4), "0"))
P.add(ob[:10]); P(mfma(v(SB,16), kfrag(0), v(QA,4), "0"))
P.add(ob[10:20]); P(mfma(v(SB+16,16), kfrag(1), v(QA+4,4), "0"))
P.add(ob[20:])
P.add(ep_restore())
M0, M1 = TMP + 2, TMP + 4
side = wo_dma()
def take_side(n):
    o = []
    for _ in range(n):
        if side: o += side.pop(0)
    return o
for t in range(2):
    P.add([f"v_cndmask_b32 {v(MG+16*t+q)}, {v(SB+16*t+q)}, {v(MG+16*t+q)}, {s(S_MASK+2*q,2)}" for q in range(16)])
    if not OPT["standin"]:
        P(mfma(v(SB+16*t,16), kfrag(full_tiles(t)[0]), v(QA+4*t,4), "0"))
    P.add(take_side(1))
for t in range(2):
    P.add(max_tree((M0, M1)[t], range(MG+16*t, MG+16*t+16)))
if not OPT["standin"]:
    SP = (SB, SB+16, NEGM, NEGM+16)
    for i in range(7):
        for t in range(2):
            cur = SP[t + 2*(i & 1)]; nxt = SP[t + 2*((i+1) & 1)]
            if i < 6:
                P(mfma(v(nxt,16), kfrag(full_tiles(t)[i+1]), v(QA+4*t,4), "0"))
            P.add(max_tree((M0, M1)[t], range(cur, cur+16), init=True))
        P.add(take_side(1))
P.add(interleave(cross_max(M0, M0+1), cross_max(M1, M1+1)))
stamp()
P("L_expo:")
for t in range(2):
    P.add([f"v_sub_f32 {v(NEGM+16*t+q)}, 0, {v((M0,M1)[t])}" for q in range(16)])
    P(mfma(v(SB+16*t,16), kfrag(full_tiles(t)[0]), v(QA+4*t,4), v(NEGM+16*t,16)))
pend = []
for t in range(2):
    g = MG + 16*t
    seq = [f"v_pk_add_f32 {v(g+2*i,2)}, {v(g+2*i,2)}, {v(NEGM+16*t,2)}" for i in range(8)]
    seq += [f"v_exp_f32 {v(g+q)}, {v(g+q)}" for q in range(16)]
    seq += [f"v_cvt_pk_bf16_f32 {v(PF+i)}, {v(g+2*i)}, {v(g+2*i+1)}" for i in range(8)]
    seq += [f"v_and_b32 {v(PB+8*t+i)}, {v(V_PM+i)}, {v(PF+i)}" for i in range(8)]
    acc = v(OA_ACC+16*t, 16)
    for i, x in enumerate(seq):
        P(x)
        if pend and i % 6 == 5: P(pend.pop(0))
    P.add(pend)
    P.add([f"v_xor_b32 {v(g+i)}, {v(PF+i)}, {v(PB+8*t+i)}" for i in range(8)])
    pend = [mfma(acc, vfrag(8+t,0), v(PB+8*t,4), "0"), mfma(acc, vfrag(8+t,1), v(PB+8*t+4,4), acc),
            mfma(acc, vfrag(t,0), v(g,4), acc), mfma(acc, vfrag(t,1), v(g+4,4), acc)]
    P.add(take_side(1))
events = {2: lambda: P.add(o_flag(1)), 6: lambda: P.add(o_poll_setup(1)),
          10: lambda: (poll_check(OFL, f"v_cmp_eq_u64 vcc, {v(OFL,2)}, {v(EPV,2)}", o_poll_load(1)), P.add(o_gather(1)))}
hs_i = 0
for i in range(7):
    for t in range(2):
        S, Pp, acc = SB + 16*t, PB + 8*t, v(OA_ACC+16*t, 16)
        e = [f"v_exp_f32 {v(S+q)}, {v(S+q)}" for q in range(16)]
        c = [f"v_cvt_pk_bf16_f32 {v(Pp+k)}, {v(S+2*k)}, {v(S+2*k+1)}" for k in range(4)], \
            [f"v_cvt_pk_bf16_f32 {v(Pp+k)}, {v(S+2*k)}, {v(S+2*k+1)}" for k in range(4, 8)]
        o = 1 - t
        nxt_i = i + (1 if t == 1 else 0)
        snext = None
        if t == 0 and i > 0:
            snext = mfma(v(SB+16,16), kfrag(full_tiles(1)[i]), v(QA+4,4), v(NEGM+16,16))
        if t == 1 and i < 6:
            snext = mfma(v(SB,16), kfrag(full_tiles(0)[i+1]), v(QA,4), v(NEGM,16))
        P.add(e[0:2])
        while len(pend) > 1:
            P(pend.pop(0)); P.add(take_side(1))
        if pend: P(pend.pop(0))
        P.add(e[2:6])
        if snext: P(snext)
        P.add(e[6:8]); P.add(c[0]); P.add(e[8:10])
        P(mfma(acc, vfrag(full_tiles(t)[i],0), v(Pp,4), acc))
        P.add(e[10:16]); P.add(take_side(2)); P.add(c[1])
        pend = [mfma(acc, vfrag(full_tiles(t)[i],1), v(Pp+4,4), acc)]
        if hs_i in events: events[hs_i]()
        hs_i += 1
P.add(take_side(99))
P.add(pend)
stamp()

WOF, ACC3 = PB, SB
B0, B1 = V_AX, V_AX + 1
p3_setup = [l for l in f"""v_lshrrev_b32 v8, 5, {v(V_LANE)}
v_bfe_u32 v9, {v(V_LANE)}, 2, 2
v_lshl_add_u32 v8, v8, 2, v9
v_and_b32 v9, 2, v9
v_bfe_u32 v10, {v(V_LANE)}, 4, 1
v_xor_b32 v9, v9, v10
s_and_b32 {s(S_T1)}, {s(S_WAVE)}, 2
v_xor_b32 v9, {s(S_T1)}, v9
v_lshlrev_b32 v9, 5, v9
v_lshl_add_u32 v8, v8, 7, v9
v_and_b32 v9, 3, {v(V_LANE)}
v_lshl_add_u32 v8, v9, 3, v8
s_lshl_b32 {s(S_T1)}, {s(S_T1)}, 14
s_add_u32 {s(S_T1)}, {s(S_T1)}, 0x10000
v_add_u32 {v(B0)}, {s(S_T1)}, v8
v_xor_b32 {v(B1)}, 64, {v(B0)}""".split("\n")]
P.add(p3_setup)
P.add(o_publish(0, OA_ACC, 8, lambda tt, f: [f"v_mul_f32 {v(f)}, {v(f)}, {v(V_G0+tt)}"]))
stamp()
P.add(WaitTag("wo")); P("s_barrier")
def wo_reads(n):
    b, hs = n & 1, n & 15
    return [f"ds_read_b64_tr_b16 {v(WOF+8*b+4*ct+2*j,2)}, {v((B0,B1)[ct])} offset:{hs*2048+j*1024}"
            for ct in range(2) for j in range(2)]
P.add(wo_reads(0))
for n in range(32):
    b = n & 1
    if n == 15:
        P(f"v_xor_b32 {v(B0)}, 0x10000, {v(B0)}\nv_xor_b32 {v(B1)}, 0x10000, {v(B1)}")
    rd = wo_reads(n + 1) if n < 31 else []
    of = a_((A_OB if n < 16 else A_OA) + 4*(n & 15), 4)
    if n == 16:
        stamp()
        poll_check(OFL, f"v_cmp_eq_u64 vcc, {v(OFL,2)}, {v(EPV,2)}", o_poll_load(0))
        stamp()
        P.add(o_gather(0))
    for ct in range(2):
        P(mfma(v(ACC3+16*ct,16), v(WOF+8*b+4*ct,4), of, "0" if n == 0 else v(ACC3+16*ct,16)))
        P.add(rd[2*ct:2*ct+2])
    if n == 10:
        P.add(o_flag(0)); P.add(o_poll_setup(0))
stamp()
EXA, RES = V_AX, NEGM
P(f"""s_lshl_b32 {s(S_T0)}, {s(S_WAVE)}, 12
s_add_u32 {s(S_T0)}, {s(S_T0)}, {L_EX}
v_add_u32 {v(EXA)}, {s(S_T0)}, {v(V_L16)}
v_xor_b32 {v(EXA+1)}, 0x2000, {v(EXA)}
v_and_b32 v8, 31, {v(V_LANE)}
v_lshlrev_b32 v8, 10, v8
v_lshrrev_b32 v9, 5, {v(V_LANE)}
v_lshl_add_u32 v8, v9, 4, v8
s_lshl_b32 {s(S_T0)}, {s(S_RB3)}, 16
s_and_b32 {s(S_T1)}, {s(S_WAVE)}, 1
s_lshl_b32 {s(S_T1)}, {s(S_T1)}, 15
s_add_u32 {s(S_T0)}, {s(S_T0)}, {s(S_T1)}
s_lshl_b32 {s(S_T1)}, {s(S_CB)}, 7
s_add_u32 {s(S_T0)}, {s(S_T0)}, {s(S_T1)}
s_and_b32 {s(S_T1)}, {s(S_WAVE)}, 2
s_lshl_b32 {s(S_T1)}, {s(S_T1)}, 5
s_add_u32 {s(S_T0)}, {s(S_T0)}, {s(S_T1)}""")
P.add([f"ds_write_b128 {v(EXA)}, {v(ACC3+16+4*q,4)} offset:{q*1024}" for q in range(4)])
P.add(WaitLds()); P("s_barrier")
P.add([f"ds_read_b128 {v(RES+4*q,4)}, {v(EXA+1)} offset:{q*1024}" for q in range(4)])
for hf in range(2):
    P.add([f"v_pk_add_f32 {v(RES+8*hf+2*i,2)}, {v(RES+8*hf+2*i,2)}, {v(ACC3+8*hf+2*i,2)}" for i in range(4)])
    P.add([f"v_cvt_pk_bf16_f32 {v(PF+4*hf+i)}, {v(RES+8*hf+2*i)}, {v(RES+8*hf+2*i+1)}" for i in range(4)])
for hf in range(2):
    P(f"v_permlane32_swap_b32 {v(PF+4*hf)}, {v(PF+4*hf+2)}\nv_permlane32_swap_b32 {v(PF+4*hf+1)}, {v(PF+4*hf+3)}")
    P(f"buffer_store_dwordx4 {v(PF+4*hf,4)}, v8, {s(S_OUT,4)}, {s(S_T0)} offen{' offset:32' if hf else ''}")
stamp()
if OPT["stamps"]:
    P(f"s_memrealtime {s(S_TM,2)}\ns_waitcnt lgkmcnt(0) vmcnt(0)\nv_writelane_b32 {v(V_STAMP)}, {s(S_TM)}, 63")
    P(f"""v_readlane_b32 {s(S_T0)}, {v(V_STAMP)}, 0
v_readlane_b32 {s(S_T1)}, {v(V_STAMP)}, {nstamp[0]-1}
v_readlane_b32 {s(S_T2)}, {v(V_STAMP)}, 62
v_readlane_b32 {s(S_K)}, {v(V_STAMP)}, 2
s_sub_u32 {s(S_T1)}, {s(S_T1)}, {s(S_T0)}
s_sub_u32 {s(S_K)}, {s(S_K)}, {s(S_T0)}
s_sub_u32 {s(S_T2)}, {s(S_TM)}, {s(S_T2)}
v_mov_b32 v8, {s(S_T1)}
v_mov_b32 v9, {s(S_T2)}
v_mov_b32 v10, {s(S_K)}
v_mov_b32 v11, {s(S_TM)}
s_lshr_b32 {s(S_T0)}, s2, 7
s_lshl_b32 {s(S_T0)}, {s(S_T0)}, 4
s_add_u32 {s(S_T0)}, {s(S_T0)}, 16
s_and_b32 {s(S_T1)}, s2, 127
s_lshl_b32 {s(S_T1)}, {s(S_T1)}, 2
s_add_u32 {s(S_T1)}, {s(S_T1)}, {s(S_WAVE)}
s_cmp_eq_u32 {s(S_T1)}, 76
s_cselect_b32 {s(S_T0)}, {s(S_T0)}, 4096
v_lshlrev_b32 v12, 8, {v(V_LANE)}
buffer_store_dwordx4 v[8:11], v12, {s(S_DBG,4)}, {s(S_T0)} offen""")
    P(f"""s_lshl_b32 {s(S_T0)}, s2, 2
s_add_u32 {s(S_T0)}, {s(S_T0)}, {s(S_WAVE)}
s_lshl_b32 {s(S_T0)}, {s(S_T0)}, 8
s_add_u32 {s(S_T0)}, {s(S_T0)}, {WS_STAMP}
v_lshlrev_b32 v8, 2, {v(V_LANE)}
buffer_store_dword {v(V_STAMP)}, v8, {s(S_WS,4)}, {s(S_T0)} offen""")
if OPT["amp"] >= 0:
    if OPT["ampall"]:
        P(f"v_readfirstlane_b32 {s(S_T0)}, {v(EPV)}\ns_nop 4\ns_sub_u32 {s(S_T0)}, {s(S_T0)}, 200\nv_writelane_b32 {v(V_STAMP)}, {s(S_T0)}, 0")
    else:
        P("s_cmp_lg_u32 s2, 100\ns_cbranch_scc1 L_end")
    P(f"""v_readlane_b32 {s(S_T0)}, {v(V_STAMP)}, 0
v_readlane_b32 {s(S_T1)}, {v(V_STAMP)}, 1
s_memrealtime {s(S_TM,2)}
s_sub_u32 {s(S_T1)}, {s(S_T1)}, {s(S_T0)}
s_mul_i32 {s(S_T1)}, {s(S_T1)}, {OPT["ampk"]}
s_min_u32 {s(S_T1)}, {s(S_T1)}, 100000
s_waitcnt lgkmcnt(0)
s_mov_b32 {s(S_T0)}, {s(S_TM)}""")
    P.add(Raw(f"""L_amp:
    s_memrealtime {s(S_TM,2)}
    s_waitcnt lgkmcnt(0)
    s_sub_u32 {s(S_K)}, {s(S_TM)}, {s(S_T0)}
    s_cmp_lt_u32 {s(S_K)}, {s(S_T1)}
    s_cbranch_scc1 L_amp"""))
P("L_end:\ns_endpgm")
P.add(Raw(special_txt))

body = finalize(P, verbose=True)
hdr = open("cdna_kernels/%s.s.ref" % NAME).read().split("; Override launch")[0]
txt = hdr + f"""; One launch: 256 workgroups (4 heads x 64 rows each), 4 waves, hand-offs through d_ws tagged with a per-launch epoch.
; @launch grid=(256,1,1) block=(256,1,1) lds={LDS_BYTES}
.amdgcn_target "amdgcn-amd-amdhsa--gfx950"
.text
.globl {NAME}_kernel
.p2align 8
.type {NAME}_kernel,@function
{NAME}_kernel:
{body}    .fill 8448, 4, 0xbf800000
.section .rodata,"a"
.p2align 6
.amdhsa_kernel {NAME}_kernel
  .amdhsa_next_free_vgpr 512
  .amdhsa_next_free_sgpr 102
  .amdhsa_accum_offset 256
  .amdhsa_group_segment_fixed_size 0
  .amdhsa_kernarg_size 80
  .amdhsa_user_sgpr_count 2
  .amdhsa_user_sgpr_kernarg_segment_ptr 1
  .amdhsa_system_sgpr_workgroup_id_x 1
.end_amdhsa_kernel
"""
open(sys.argv[1], "w").write(txt)
```

```python
import re

REG_RE = re.compile(r"(?<![\w.])([vas])(?:\[(\d+):(\d+)\]|(\d+))(?![\w\[])")
TRANS = ("v_exp_f32", "v_log_f32", "v_rcp_f32", "v_rsq_f32", "v_sqrt_f32", "v_sin_f32", "v_cos_f32")


def regs_of(txt):
    out = []
    for m in REG_RE.finditer(txt):
        k = m.group(1)
        if m.group(2) is not None:
            out += [(k, i) for i in range(int(m.group(2)), int(m.group(3)) + 1)]
        else:
            out.append((k, int(m.group(4))))
    for name in ("vcc", "exec", "m0"):
        if re.search(r"(?<![\w])" + name + r"(?![\w])", txt):
            out.append((name, 0))
    return out


def split_ops(s):
    ops, depth, cur = [], 0, ""
    for ch in s:
        if ch == "[":
            depth += 1
        if ch == "]":
            depth -= 1
        if ch == "," and depth == 0:
            ops.append(cur.strip()); cur = ""
        else:
            cur += ch
    if cur.strip():
        ops.append(cur.strip())
    return ops


class Ins:
    def __init__(self, text, tag=None):
        self.text = text.strip()
        self.tag = tag
        t = self.text.split(";")[0].strip()
        self.op = t.split()[0] if t else ""
        rest = t[len(self.op):].strip()
        self.ops = split_ops(rest)
        self.kind = self._kind()
        self.reads, self.writes, self.srcc = set(), set(), set()
        self._deps()

    def _kind(self):
        o = self.op
        if o.endswith(":"):
            return "label"
        if o.startswith("v_mfma"):
            return "mfma"
        if o.startswith(TRANS):
            return "trans"
        if o.startswith("v_"):
            return "valu"
        if o.startswith("ds_read"):
            return "dsr"
        if o.startswith("ds_write"):
            return "dsw"
        if o.startswith(("buffer_load", "global_load")):
            return "dma" if re.search(r"\blds\b", self.text) else "vld"
        if o.startswith(("buffer_store", "global_store", "buffer_atomic", "global_atomic")):
            return "vst"
        if o.startswith(("s_load", "s_memtime", "s_memrealtime")):
            return "smem"
        if o in ("s_waitcnt", "s_nop", "s_barrier", "s_endpgm", "s_sleep", "s_setprio"):
            return o
        if o.startswith(("s_cbranch", "s_branch")):
            return "branch"
        if o.startswith("s_"):
            return "salu"
        if o.startswith("."):
            return "directive"
        raise ValueError("unknown op " + self.text)

    def _deps(self):
        k, ops = self.kind, self.ops
        R = lambda xs: set(r for x in xs for r in regs_of(x))
        if k == "mfma":
            self.writes = R(ops[:1]); self.reads = R(ops[1:4]); self.srcc = R(ops[3:4])
            self.srcab = R(ops[1:3])
        elif k in ("valu", "trans"):
            o = self.op
            if o.startswith("v_permlane32_swap") or o.startswith("v_permlane16_swap"):
                self.writes = R(ops[:2]); self.reads = R(ops[:2])
            elif o.startswith(("v_add_co", "v_sub_co", "v_addc_co", "v_subb_co")):
                self.writes = R(ops[:2]); self.reads = R(ops[2:])
            else:
                self.writes = R(ops[:1]); self.reads = R(ops[1:])
                if o.startswith(("v_fmac", "v_dot2c", "v_writelane")):
                    self.reads |= self.writes
            self.reads.add(("exec", 0))
        elif k == "dsr":
            self.writes = R(ops[:1]); self.reads = R(ops[1:])
        elif k == "dsw":
            self.reads = R(ops)
        elif k == "vld":
            self.writes = R(ops[:1]); self.reads = R(ops[1:])
        elif k == "dma":
            self.reads = R(ops) | {("m0", 0)}
        elif k == "vst":
            self.reads = R(ops)
            if self.op.startswith("buffer_"):
                self.data = R(ops[:1])
            else:
                self.data = R(ops[1:2])
        elif k == "smem":
            self.writes = R(ops[:1]); self.reads = R(ops[1:])
        elif k == "salu":
            if self.op.startswith(("s_cmp", "s_bitcmp")):
                self.reads = R(ops)
            elif "saveexec" in self.op:
                self.writes = R(ops[:1]) | {("exec", 0)}; self.reads = R(ops[1:]) | {("exec", 0)}
            else:
                self.writes = R(ops[:1]); self.reads = R(ops[1:])


class WaitTag:
    kind = "waittag"
    def __init__(self, *tags): self.tags = set(tags)


class WaitLds:
    kind = "waitlds"


class Raw:
    kind = "raw"
    def __init__(self, text): self.text = text


class Prog:
    def __init__(self):
        self.items = []

    def __call__(self, text, tag=None):
        for line in text.strip().split("\n"):
            line = line.strip()
            if line and not line.startswith(";"):
                self.items.append(Ins(line, tag))
        return self

    def add(self, x):
        if isinstance(x, str):
            self(x)
        elif isinstance(x, (list, tuple)):
            for y in x:
                self.add(y)
        else:
            self.items.append(x)
        return self


def slots(ins):
    if ins.kind == "s_nop":
        return int(ins.ops[0], 0) + 1
    if ins.kind in ("label", "directive"):
        return 0
    return 1


def required_gap(p, c):
    need = 0
    vw = {r for r in p.writes if r[0] in "va"}
    sw = {r for r in p.writes if r[0] in ("s", "vcc")}
    cvalu = c.kind in ("valu", "trans")
    if p.kind in ("valu", "trans"):
        if c.kind == "mfma" and vw & c.reads:
            need = max(need, 2)
        if p.kind == "trans" and c.kind != "trans" and (cvalu or c.kind == "mfma") and vw & c.reads:
            need = max(need, 1)
        if cvalu and vw & c.reads:
            if c.op.startswith("v_permlane") or "dpp" in c.text or "row_" in c.text or "quad_perm" in c.text:
                need = max(need, 2)
            if c.op.startswith(("v_readlane", "v_readfirstlane")):
                need = max(need, 1)
        if sw & c.reads:
            if cvalu:
                need = max(need, 4 if c.op.startswith(("v_readlane", "v_writelane")) else 2)
            if c.kind in ("vld", "vst", "dma"):
                need = max(need, 5)
            if c.kind in ("salu", "branch", "smem"):
                need = max(need, 2)
        if p.op.startswith("v_dot") and vw & (c.reads | c.writes) and not (c.op == p.op and not vw & set(regs_of(c.ops[1]) + regs_of(c.ops[2]))):
            need = max(need, 3)
        if ("vcc", 0) in p.writes and c.op.startswith("s_cbranch_vcc"):
            need = max(need, 2)
    if p.kind == "mfma":
        n8 = "32x32" in p.op
        if c.kind == "mfma":
            if p.writes & c.srcab:
                need = max(need, 12 if n8 else 8)
            if p.writes & c.srcc and not (p.writes == c.srcc and p.op == c.op):
                need = max(need, 10 if n8 else 6)
            if p.writes & c.writes and not (p.writes == c.srcc):
                need = max(need, 10 if n8 else 6)
        elif c.kind in ("valu", "trans", "vld", "vst", "dsr", "dsw", "dma"):
            if p.writes & (c.reads | c.writes):
                need = max(need, 12 if n8 else 8)
            if (cvalu or c.kind in ("vld", "dsr")) and p.srcc & c.writes:
                need = max(need, 7 if n8 else 3)
    if p.kind == "salu" and ("m0", 0) in p.writes and c.kind == "dma":
        need = max(need, 1)
    if p.kind == "vst" and re.search(r"x[34]\b", p.op) and p.data & c.writes:
        need = max(need, 2)
    return need


def finalize(prog, verbose=False):
    out, hist = [], []
    vq, lq = [], []
    stats = {"nops": 0, "waits": 0, "maxvm": 0}

    def emit(ins):
        if ins.kind not in ("label", "directive", "s_waitcnt", "s_nop"):
            dist, need = 0, 0
            for p in reversed(hist):
                g = required_gap(p, ins)
                if g > dist:
                    need = max(need, g - dist)
                dist += slots(p)
                if dist >= 20:
                    break
            if need:
                nop = Ins(f"s_nop {need - 1}")
                out.append(nop); hist.append(nop); stats["nops"] += need
        out.append(ins); hist.append(ins)

    def wait(vm=None, lg=None):
        parts = []
        if vm is not None and vm < len(vq):
            del vq[:len(vq) - vm]; parts.append(f"vmcnt({vm})")
        if lg is not None and lg < len(lq):
            lg2 = min(lg, 15)
            del lq[:len(lq) - lg2]; parts.append(f"lgkmcnt({lg2})")
        if parts:
            emit(Ins("s_waitcnt " + " ".join(parts))); stats["waits"] += 1

    for it in prog.items:
        if it.kind == "raw":
            out.append(it); hist.append(Ins("s_nop 0")); continue
        if it.kind == "waitlds":
            wait(lg=0); continue
        if it.kind == "waittag":
            idx = [i for i, o in enumerate(vq) if o.tag in it.tags]
            if idx:
                wait(vm=len(vq) - 1 - idx[-1])
            continue
        touched = it.reads | it.writes if it.kind not in ("label", "directive") else set()
        vm = lg = None
        idx = [i for i, o in enumerate(vq) if o.kind == "vld" and o.writes & touched]
        if idx:
            vm = len(vq) - 1 - idx[-1]
        idx = [i for i, o in enumerate(lq) if o.writes & touched]
        if idx:
            lg = 0 if any(o.kind == "smem" for o in lq) else len(lq) - 1 - idx[-1]
        wait(vm, lg)
        if it.kind == "s_waitcnt":
            m = re.search(r"vmcnt\((\d+)\)", it.text)
            if m and int(m.group(1)) < len(vq):
                del vq[:len(vq) - int(m.group(1))]
            m = re.search(r"lgkmcnt\((\d+)\)", it.text)
            if m and int(m.group(1)) < len(lq):
                del lq[:len(lq) - int(m.group(1))]
        if it.kind in ("dsr", "dsw") and len(lq) >= 15:
            wait(lg=14)
        if it.kind in ("vld", "vst", "dma") and len(vq) >= 62:
            wait(vm=60)
        emit(it)
        if it.kind in ("vld", "vst", "dma"):
            vq.append(it); stats["maxvm"] = max(stats["maxvm"], len(vq))
        if it.kind in ("dsr", "dsw", "smem"):
            lq.append(it)
    if verbose:
        print(stats)
    lines = []
    for o in out:
        if o.kind == "raw":
            lines.append(o.text.rstrip("\n"))
        elif o.kind == "label":
            lines.append(o.text)
        else:
            lines.append("    " + o.text)
    return "\n".join(lines) + "\n"


def weave(main, fill, slots_after):
    out, fill = [], list(fill)
    for i, m in enumerate(main):
        out.append(m)
        for _ in range(slots_after[i]):
            if fill:
                out.append(fill.pop(0))
    return out, fill
```

```python
import sys, math, struct
from asmdsl import Prog, Ins, WaitTag, WaitLds, Raw, finalize

NAME = "gated_mix__sliding_block__sliding_local_dilated__prompt"
OPT = dict(stamps=0, standin=0, amp=-1, ampk=8, amprole=1, rotmask=7, kvflag=52, fine=0, outsc=0, prio=0, touch=0)
for a in sys.argv[2:]:
    k, v_ = a.split("="); assert k in OPT, k; OPT[k] = int(v_)

WS_KV, WS_HB, WS_O = 0, 4 << 20, 5 << 20
WS_FKV, WS_FOB, WS_FOA = 9 << 20, (9 << 20) + 65536, (9 << 20) + 131072
WS_STAMP, WS_SIZE = 10 << 20, 64 << 20
OOB = 0x80000000
NSLOT, SLOT = 5, 16384
L_X, L_G, L_GP, L_Q, LDS_BYTES = 81920, 148480, 149504, 150528, 154624
KVS, KVH, L_WO = 2064, 20640, 82944
QK_SCALE = 0.25 * math.log2(math.e)
NEG_BIG, ONES = 0xf149f2ca, 0x3f803f80

def fhex(x): return "0x%08x" % struct.unpack("<I", struct.pack("<f", x))[0]
def v(a, n=1): return f"v{a}" if n == 1 else f"v[{a}:{a+n-1}]"
def s(a, n=1): return f"s{a}" if n == 1 else f"s[{a}:{a+n-1}]"
def lines(t): return [l.strip() for l in t.strip().split("\n") if l.strip()]
def mfma(d, a, b, c): return f"v_mfma_f32_32x32x16_bf16 {d}, {a}, {b}, {c}"
def srd(base, ptr, nbytes):
    return [f"s_mov_b32 {s(base)}, {s(ptr)}", f"s_mov_b32 {s(base+1)}, {s(ptr+1)}",
            f"s_mov_b32 {s(base+2)}, {nbytes}", f"s_mov_b32 {s(base+3)}, 0x20000"]
def interleave(*ls):
    o, ls = [], [list(l) for l in ls]
    while any(ls):
        for l in ls:
            if l: o.append(l.pop(0))
    return o

S_X, S_W, S_WS, S_WOA, S_WOB, S_OUT, S_DBG, S_G = 24, 28, 32, 36, 40, 44, 48, 36
S_W4, S_HG, S_RB, S_ROT, S_HEAD, S_RB3, S_CB = 52, 53, 54, 55, 56, 57, 58
S_K, S_T0, S_MW, S_MX, S_T1 = 59, 60, 61, 62, 63
S_MASK, S_T2, S_T3, S_LO16, S_TM, S_C, S_SPIN = 64, 96, 97, 98, 100, 10, 3
V_LANE, V_L16, V_STAMP, V_FOFF = 1, 2, 3, 4
EP, FLG = 6, 8
V_AK, V_AV0, V_AV1 = 10, 11, 12
G0 = 14
PM, QA = 16, 24
TMP = 28
SB, NEGM, MG = 32, 64, 80
PB, PF, OACC, KF, VF = 96, 112, 120, 136, 144

class Role:
    def __init__(self, name):
        self.P, self.name, self.ns, self.nl = Prog(), name, 0, 0
    def stamp(self):
        P = self.P
        if OPT["amp"] == self.ns and OPT["amprole"] == (self.name == "H"):
            P.add(WaitLds())
            P(f"s_memrealtime {s(S_TM,2)}\ns_waitcnt lgkmcnt(0)\nv_writelane_b32 {v(V_STAMP)}, {s(S_TM)}, 1")
        if OPT["stamps"]:
            P.add(WaitLds())
            P(f"s_memtime {s(S_TM,2)}\ns_waitcnt lgkmcnt(0)\nv_writelane_b32 {v(V_STAMP)}, {s(S_TM)}, {self.ns + 1}")
        self.ns += 1
    def poll(self, cmp_txt, reload_txt):
        P, n = self.P, f"{self.name}{self.nl}"; self.nl += 1
        P(f"s_mov_b32 {s(S_SPIN)}, 0x40000"); P(cmp_txt)
        P(f"s_cmp_eq_u64 vcc, -1\ns_cbranch_scc1 L_pok{n}")
        P.add(Raw(f"""L_pspin{n}:
    {reload_txt}
    s_sub_u32 {s(S_SPIN)}, {s(S_SPIN)}, 1
    s_cbranch_scc1 L_pok{n}
    s_waitcnt vmcnt(0)
    {cmp_txt}
    s_nop 2
    s_cmp_eq_u64 vcc, -1
    s_cbranch_scc0 L_pspin{n}
L_pok{n}:"""))
    def finish(self):
        P = self.P
        if OPT["stamps"]:
            P(f"s_memrealtime {s(S_TM,2)}\ns_waitcnt lgkmcnt(0) vmcnt(0)\nv_writelane_b32 {v(V_STAMP)}, {s(S_TM)}, 63")
            P(f"""s_lshl_b32 {s(S_T0)}, s2, 3
s_add_u32 {s(S_T0)}, {s(S_T0)}, {s(S_W4)}
s_add_u32 {s(S_T0)}, {s(S_T0)}, {4 if self.name == "H" else 0}
s_lshl_b32 {s(S_T0)}, {s(S_T0)}, 8
s_add_u32 {s(S_T0)}, {s(S_T0)}, {WS_STAMP}
v_lshlrev_b32 v0, 2, {v(V_LANE)}
buffer_store_dword {v(V_STAMP)}, v0, {s(S_WS,4)}, {s(S_T0)} offen""")
        if OPT["amp"] >= 0 and OPT["amprole"] == (self.name == "H"):
            P(f"""s_cmp_lg_u32 s2, 100
s_cbranch_scc1 L_end
v_readlane_b32 {s(S_T0)}, {v(V_STAMP)}, 0
v_readlane_b32 {s(S_T1)}, {v(V_STAMP)}, 1
s_memrealtime {s(S_TM,2)}
s_sub_u32 {s(S_T1)}, {s(S_T1)}, {s(S_T0)}
s_mul_i32 {s(S_T1)}, {s(S_T1)}, {OPT["ampk"]}
s_min_u32 {s(S_T1)}, {s(S_T1)}, 100000
s_waitcnt lgkmcnt(0)
s_mov_b32 {s(S_T0)}, {s(S_TM)}""")
            P.add(Raw(f"""L_amp{self.name}:
    s_memrealtime {s(S_TM,2)}
    s_waitcnt lgkmcnt(0)
    s_sub_u32 {s(S_K)}, {s(S_TM)}, {s(S_T0)}
    s_cmp_lt_u32 {s(S_K)}, {s(S_T1)}
    s_cbranch_scc1 L_amp{self.name}"""))
        P("s_endpgm")

ws_ld = lambda dst, voff, soff, imm=0, tag=None: Ins(
    f"buffer_load_dwordx4 {dst}, {v(voff)}, {s(S_WS,4)}, {soff} offen{' offset:%d' % imm if imm else ''} sc1", tag)
ws_st = lambda src, voff, soff, imm=0, tag=None: Ins(
    f"buffer_store_dwordx4 {src}, {v(voff)}, {s(S_WS,4)}, {soff} offen{' offset:%d' % imm if imm else ''} sc1", tag)
ep_load = f"buffer_load_dwordx2 {v(EP,2)}, off, {s(S_DBG,4)}, 0 sc1"
flag_load = f"buffer_load_dwordx2 {v(FLG,2)}, {v(V_FOFF)}, {s(S_WS,4)}, {s(S_K)} offen sc1"
flag_cmp = f"v_cmp_eq_u64 vcc, {v(FLG,2)}, {v(EP,2)}"
def flag_store(data_tag, base, hi_reg, hi_shift, lo_reg):
    return [WaitTag(data_tag), f"s_lshl_b32 {s(S_T0)}, {s(hi_reg)}, {hi_shift}", f"s_add_u32 {s(S_T0)}, {s(S_T0)}, {s(lo_reg)}",
            f"s_lshl_b32 {s(S_T0)}, {s(S_T0)}, 3", f"s_add_u32 {s(S_T0)}, {s(S_T0)}, {base}",
            f"v_lshlrev_b32 v0, 26, {v(V_LANE)}",
            Ins(f"buffer_store_dwordx2 {v(EP,2)}, v0, {s(S_WS,4)}, {s(S_T0)} offen sc1", "flag")]

def max_tree(dst, regs, init=False):
    regs, o = list(regs), []
    if not init:
        o.append(f"v_max3_f32 {v(dst)}, {v(regs[0])}, {v(regs[1])}, {v(regs[2])}"); regs = regs[3:]
    while len(regs) >= 2:
        o.append(f"v_max3_f32 {v(dst)}, {v(dst)}, {v(regs[0])}, {v(regs[1])}"); regs = regs[2:]
    if regs: o.append(f"v_max_f32 {v(dst)}, {v(dst)}, {v(regs[0])}")
    return o
def cross_max(m, t):
    return [f"v_mov_b32 {v(t)}, {v(m)}", f"v_permlane32_swap_b32 {v(m)}, {v(t)}", f"v_max_f32 {v(m)}, {v(m)}, {v(t)}"]

def attn_setup(t, tmp):
    r5, hh, cm, u = tmp, tmp + 1, tmp + 2, tmp + 3
    o = lines(f"""v_and_b32 {v(r5)}, 31, {v(V_LANE)}
v_lshrrev_b32 {v(hh)}, 5, {v(V_LANE)}
v_lshlrev_b32 {v(u)}, 2, {v(hh)}
v_sub_u32 {v(cm)}, {v(r5)}, {v(u)}
s_mul_i32 {s(S_T2)}, {s(S_W4)}, {KVH}
s_add_u32 {s(S_T2)}, {s(S_T2)}, {t*KVS}
v_add_u32 {v(V_AK)}, {s(S_T2)}, {v(V_L16)}
v_and_b32 {v(u)}, 15, {v(V_LANE)}
v_lshlrev_b32 {v(u)}, 4, {v(u)}
v_lshl_add_u32 {v(u)}, {v(hh)}, 8, {v(u)}
v_mov_b32 {v(hh)}, 0x400
v_cndmask_b32 {v(V_AV0)}, {v(hh)}, {v(u)}, {s(S_LO16,2)}
v_mov_b32 {v(hh)}, 0x200
v_cndmask_b32 {v(V_AV1)}, {v(hh)}, {v(u)}, {s(S_LO16,2)}
v_add_u32 {v(V_AV0)}, {s(S_T2)}, {v(V_AV0)}
v_add_u32 {v(V_AV1)}, {s(S_T2)}, {v(V_AV1)}
v_mov_b32 {v(u)}, 0xffff""")
    o += [f"v_cmp_le_i32 {s(S_MASK+2*q,2)}, {8*(q>>2)+(q&3)}, {v(cm)}" for q in range(16)]
    o += [f"v_cndmask_b32 {v(PM+pq)}, 0, {v(u)}, {s(S_MASK+4*pq,2)}" for pq in range(8)]
    o += [f"v_cndmask_b32 {v(PM+pq)}, {v(PM+pq)}, -1, {s(S_MASK+4*pq+2,2)}" for pq in range(8)]
    return o

def gate_finish(tiles, addr, tmp):
    o = [f"ds_read_b128 {v(tmp+4*t,4)}, {v(addr)} offset:{512*t}" for t in tiles]
    seq = []
    for t in tiles:
        b = tmp + 4*t
        seq.append([f"v_add_f32 {v(b)}, {v(b)}, {v(b+1)}", f"v_add_f32 {v(b+2)}, {v(b+2)}, {v(b+3)}",
                    f"v_add_f32 {v(b)}, {v(b)}, {v(b+2)}", f"v_mul_f32 {v(b)}, {fhex(-math.log2(math.e))}, {v(b)}",
                    f"v_exp_f32 {v(b)}, {v(b)}", f"v_add_f32 {v(b)}, 1.0, {v(b)}", f"v_rcp_f32 {v(G0+t)}, {v(b)}"])
    return o + interleave(*seq)

def o_pack(acc, o0, lreg, fac, dst, f):
    return ([f"v_rcp_f32 {v(f)}, {v(acc+lreg)}"] + fac +
            [f"v_mul_f32 {v(acc+o0+i)}, {v(f)}, {v(acc+o0+i)}" for i in range(8)] +
            [f"v_cvt_pk_bf16_f32 {v(dst+i)}, {v(acc+o0+2*i)}, {v(acc+o0+2*i+1)}" for i in range(4)])
def o_store(br, tt, src, tag):
    return [f"s_lshl_b32 {s(S_T0)}, {s(S_RB)}, 16", f"s_lshl_b32 {s(S_T1)}, {s(S_HEAD)}, 10",
            f"s_add_u32 {s(S_T0)}, {s(S_T0)}, {s(S_T1)}", f"s_add_u32 {s(S_T0)}, {s(S_T0)}, {WS_O + br*(2<<20) + tt*32768}",
            ws_st(v(src,4), V_L16, s(S_T0), 0, tag)]

def window_attention(R, t, events):
    P = R.P
    kread = lambda u, b: f"ds_read_b128 {v(KF+4*b,4)}, {v(V_AK)} offset:{u*KVS}"
    vread = lambda u, b: [f"ds_read_b128 {v(VF+8*b,4)}, {v(V_AV0)} offset:{u*KVS+1024}",
                          f"ds_read_b128 {v(VF+8*b+4,4)}, {v(V_AV1)} offset:{u*KVS+1536}"]
    q, M = v(QA, 4), TMP
    ev = lambda key: events.pop(key)() if key in events else None
    P(kread(8, 0)); P(kread(0, 1))
    P(mfma(v(MG,16), v(KF,4), q, "0")); P(kread(1, 0))
    P(mfma(v(SB+16,16), v(KF+4,4), q, "0"))
    P.add(vread(8, 0)); P.add(vread(0, 1))
    ev("m0")
    if not OPT["standin"]:
        P(mfma(v(SB,16), v(KF,4), q, "0")); P(kread(2, 1))
    P.add([f"v_cndmask_b32 {v(MG+i)}, {v(SB+16+i)}, {v(MG+i)}, {s(S_MASK+2*i,2)}" for i in range(16)])
    P.add(max_tree(M, range(MG, MG+16)))
    if not OPT["standin"]:
        for u in range(1, 8):
            cur = SB + 16*((u+1) & 1); nxt = SB + 16*(u & 1)
            if u < 7:
                P(mfma(v(nxt,16), v(KF+4*(u & 1),4), q, "0"))
            nk = u + 2 if u < 6 else (1 if u == 7 else None)
            if u < 6: P(kread(u + 2, (u+1) & 1))
            if u == 6: P(kread(1, 1 - (u & 1)))
            P.add(max_tree(M, range(cur, cur+16), init=True))
        kb = 1
    else:
        kb = 0
    P.add(cross_max(M, M+1))
    R.stamp()
    P.add([f"v_sub_f32 {v(NEGM+i)}, 0, {v(M)}" for i in range(16)])
    P(mfma(v(SB,16), v(KF+4*kb,4), q, v(NEGM,16))); P(kread(2, 1-kb))
    acc = v(OACC, 16)
    P.add([f"v_pk_add_f32 {v(MG+2*i,2)}, {v(MG+2*i,2)}, {v(NEGM,2)}" for i in range(8)])
    P.add([f"v_exp_f32 {v(MG+i)}, {v(MG+i)}" for i in range(16)])
    P.add([f"v_cvt_pk_bf16_f32 {v(PF+i)}, {v(MG+2*i)}, {v(MG+2*i+1)}" for i in range(8)])
    P.add([f"v_and_b32 {v(PB+8+i)}, {v(PM+i)}, {v(PF+i)}" for i in range(4)])
    P.add([f"v_xor_b32 {v(PF+i)}, {v(PF+i)}, {v(PB+8+i)}" for i in range(4)])
    P(mfma(acc, v(VF,4), v(PB+8,4), "0"))
    P.add([f"v_and_b32 {v(PB+12+i)}, {v(PM+4+i)}, {v(PF+4+i)}" for i in range(4)])
    P.add([f"v_xor_b32 {v(PF+4+i)}, {v(PF+4+i)}, {v(PB+12+i)}" for i in range(4)])
    P(mfma(acc, v(VF+8,4), v(PF,4), acc))
    pend = [mfma(acc, v(VF+4,4), v(PB+12,4), acc), mfma(acc, v(VF+12,4), v(PF+4,4), acc)]
    pend_rd = vread(1, 0)
    for u in range(1, 8):
        S = SB + 16*((u+1) & 1); Sn = SB + 16*(u & 1); Pp = PB + 8*((u+1) & 1); vb = (u+1) & 1
        kcur = (kb + u) & 1
        e = [f"v_exp_f32 {v(S+i)}, {v(S+i)}" for i in range(16)]
        c = [f"v_cvt_pk_bf16_f32 {v(Pp+k)}, {v(S+2*k)}, {v(S+2*k+1)}" for k in range(8)]
        P.add(e[0:2])
        if len(pend) > 1:
            P(pend.pop(0)); P.add(e[2:5]); P(pend.pop(0)); P.add(pend_rd); P.add(e[5:6]); pend_rd = []
        else:
            P(pend.pop(0)); P.add(e[2:6])
        if u < 7:
            P.add(vread(u + 1, 1 - vb))
            P(mfma(v(Sn,16), v(KF+4*kcur,4), q, v(NEGM,16)))
            if u < 6: P(kread(u + 2, 1 - kcur))
        P.add(e[6:8]); P.add(c[0:4]); P.add(e[8:10])
        P(mfma(acc, v(VF+8*vb,4), v(Pp,4), acc))
        P.add(e[10:16]); P.add(c[4:8])
        pend = [mfma(acc, v(VF+8*vb+4,4), v(Pp+4,4), acc)]
        ev(u)
    P.add(pend)
    assert not events, events
    R.stamp()

E = Prog()
E(f"""
s_cmp_ge_u32 s2, 256
s_cbranch_scc1 L_end
s_load_dwordx16 s[4:19], s[0:1], 0
s_load_dwordx4 s[20:23], s[0:1], 64
s_getpc_b64 {s(S_T2,2)}
v_and_b32 {v(V_LANE)}, 63, v0
v_lshrrev_b32 v4, 6, v0
s_lshr_b32 {s(S_T0)}, s2, 3
s_and_b32 {s(S_T1)}, {s(S_T0)}, 3
s_lshl_b32 {s(S_T1)}, {s(S_T1)}, 13
v_lshlrev_b32 v5, 7, {v(V_LANE)}
v_add_u32 v5, {s(S_T1)}, v5
v_readfirstlane_b32 {s(S_MX)}, v4
global_load_dword v13, v5, {s(S_T2,2)}
v_lshlrev_b32 {v(V_L16)}, 4, {v(V_LANE)}
""")
if OPT["stamps"] or OPT["amp"] >= 0:
    E(f"v_mov_b32 {v(V_STAMP)}, 0")
    E(f"s_memrealtime {s(S_TM,2)}\ns_waitcnt lgkmcnt(0)\nv_writelane_b32 {v(V_STAMP)}, {s(S_TM)}, {62 if OPT['stamps'] else 0}")
if OPT["stamps"]:
    E(f"s_memtime {s(S_TM,2)}\ns_waitcnt lgkmcnt(0)\nv_writelane_b32 {v(V_STAMP)}, {s(S_TM)}, 0")
E(f"""
s_and_b32 {s(S_W4)}, {s(S_MX)}, 3
s_and_b32 {s(S_T1)}, s2, 1
s_lshl_b32 {s(S_HG)}, {s(S_T1)}, 2
s_and_b32 {s(S_K)}, {s(S_T0)}, 3
s_add_u32 {s(S_HG)}, {s(S_HG)}, {s(S_K)}
s_bfe_u32 {s(S_K)}, s2, 0x20001
s_lshl_b32 {s(S_K)}, {s(S_K)}, 3
s_lshr_b32 {s(S_ROT)}, {s(S_T0)}, 2
s_add_u32 {s(S_RB)}, {s(S_K)}, {s(S_ROT)}
s_and_b32 {s(S_ROT)}, {s(S_ROT)}, {OPT["rotmask"]}
s_lshl_b32 {s(S_T1)}, {s(S_T1)}, 2
s_add_u32 {s(S_RB3)}, {s(S_K)}, {s(S_T1)}
s_lshr_b32 {s(S_T1)}, {s(S_T0)}, 3
s_add_u32 {s(S_RB3)}, {s(S_RB3)}, {s(S_T1)}
s_and_b32 {s(S_CB)}, {s(S_T0)}, 7
s_lshl_b32 {s(S_HEAD)}, {s(S_HG)}, 2
s_add_u32 {s(S_HEAD)}, {s(S_HEAD)}, {s(S_W4)}
s_mov_b32 {s(S_LO16)}, 0xffff
s_mov_b32 {s(S_LO16+1)}, 0xffff
s_cmp_lt_u32 {s(S_MX)}, 4
s_cbranch_scc1 L_crole
""")

def stage_of(n): return n >> 1 if n < 32 else 16 + ((n - 32) >> 2)
def first_of_stage(n): return n < 64 and (n == 0 or stage_of(n) != stage_of(n - 1))

H = Role("H"); P = H.P
VX, VW1, VW2 = 160, 162, 166
V_AXW, V_AG, V_GPW, GACC, XW, GF = 170, 171, 172, 174, 176, 184
WOA = 192
i3, i4, p7, t0, t1, t2 = 32, 33, 34, 35, 36, 37
P(f"""
v_lshrrev_b32 {v(i3)}, 3, {v(V_LANE)}
v_lshrrev_b32 {v(i4)}, 4, {v(V_LANE)}
v_and_b32 {v(p7)}, 7, {v(V_LANE)}
s_lshl_b32 {s(S_T0)}, {s(S_W4)}, 4
v_add_u32 {v(t0)}, {s(S_T0)}, {v(i3)}
v_lshlrev_b32 {v(t0)}, 10, {v(t0)}
v_xor_b32 {v(t1)}, {v(p7)}, {v(i4)}
v_lshl_add_u32 {v(VX)}, {v(t1)}, 4, {v(t0)}
v_xor_b32 {v(VX+1)}, 64, {v(VX)}
v_add_u32 {v(VX+1)}, {0x2000 - 1024}, {v(VX+1)}
s_lshr_b32 {s(S_T0)}, {s(S_W4)}, 1
s_and_b32 {s(S_T1)}, {s(S_W4)}, 1
s_lshl_b32 {s(S_K)}, {s(S_T0)}, 4
v_add_u32 {v(t0)}, {s(S_K)}, {v(i4)}
v_mul_u32_u24 {v(t0)}, 0xc00, {v(t0)}
v_lshlrev_b32 {v(t1)}, 1, {v(i4)}
v_xor_b32 {v(t1)}, {v(t1)}, {v(p7)}
v_lshl_add_u32 {v(t0)}, {v(t1)}, 4, {v(t0)}
v_and_b32 {v(t1)}, 1, {v(i3)}
v_xor_b32 {v(t1)}, {s(S_T1)}, {v(t1)}
v_lshlrev_b32 {v(t1)}, 10, {v(t1)}
s_lshl_b32 {s(S_T2)}, {s(S_HG)}, 7
s_add_u32 {s(S_K)}, {s(S_T2)}, 1024
v_add3_u32 {v(VW1)}, {v(t0)}, {v(t1)}, {s(S_K)}
v_add_u32 {v(VW1+1)}, {12288 - 1024}, {v(VW1)}
v_add_u32 {v(VW1+2)}, {2*(12288 - 1024)}, {v(VW1)}
v_add_u32 {v(VW1+3)}, {3*(12288 - 1024)}, {v(VW1)}
s_lshl_b32 {s(S_MW)}, {s(S_T1)}, 13
s_lshl_b32 {s(S_K)}, {s(S_T0)}, 12
s_add_u32 {s(S_MW)}, {s(S_MW)}, {s(S_K)}
s_lshl_b32 {s(S_MX)}, {s(S_W4)}, 11
s_add_u32 {s(S_MX)}, {s(S_MX)}, {L_X}
s_lshl_b32 {s(S_K)}, {s(S_ROT)}, 3
v_add_u32 {v(t2)}, {s(S_K)}, {v(V_LANE)}
v_and_b32 {v(t2)}, 63, {v(t2)}
v_lshlrev_b32 {v(t2)}, 4, {v(t2)}
s_waitcnt lgkmcnt(0)
""")
P.add(srd(S_X, 4, 2097152))
P(f"""s_cmp_eq_u32 {s(S_T1)}, 0
s_cselect_b32 {s(S_W)}, s6, s12
s_cselect_b32 {s(S_W+1)}, s7, s13
s_mov_b32 {s(S_W+2)}, 1572864
s_mov_b32 {s(S_W+3)}, 0x20000""")
H.stamp()
def dma(voff, rsrc, soff, imm, tag, flags=""):
    return Ins(f"buffer_load_dwordx4 {v(voff)}, {s(rsrc,4)}, {soff} offen{' offset:%d' % imm if imm else ''}{flags} lds", tag)
def x_dma(j):
    return [f"s_add_u32 {s(S_K)}, {s(S_ROT)}, {j}", f"s_and_b32 {s(S_K)}, {s(S_K)}, 7", f"s_lshl_b32 {s(S_K)}, {s(S_K)}, 7",
            f"s_lshl_b32 {s(S_T2)}, {s(S_RB)}, 16", f"s_add_u32 m0, {s(S_MX)}, {j*8192}", f"s_add_u32 {s(S_K)}, {s(S_K)}, {s(S_T2)}",
            dma(VX, S_X, s(S_K), 0, f"x{j}"), dma(VX+1, S_X, s(S_K), 1024, f"x{j}")]
def w_dma(S):
    if S < 16:
        o = [f"s_lshl_b32 {s(S_T3)}, {s(S_ROT)}, 1", f"s_add_u32 {s(S_T3)}, {s(S_T3)}, {S}", f"s_and_b32 {s(S_T3)}, {s(S_T3)}, 15"]
    else:
        o = [f"s_add_u32 {s(S_T3)}, {s(S_ROT)}, {S-16}", f"s_and_b32 {s(S_T3)}, {s(S_T3)}, 7"]
    o += [f"s_add_u32 m0, {s(S_MW)}, {(S % NSLOT)*SLOT}", f"s_mul_i32 {s(S_T3)}, {s(S_T3)}, {(32 if S < 16 else 64)*3072}"]
    return o + [dma((VW1 if S < 16 else VW2) + t, S_W, s(S_T3), t*1024, f"w{S}") for t in range(4)]
P.add(x_dma(0)); P.add(w_dma(0))
P.add(srd(S_G, 16, 1024)); P(f"s_mov_b32 m0, {L_G}"); P.add(dma(t2, S_G, "0", 0, "x0"))
P.add(w_dma(1))
h_misc = lines(f"""
s_lshr_b32 {s(S_T0)}, {s(S_W4)}, 1
s_and_b32 {s(S_T1)}, {s(S_W4)}, 1
s_lshl_b32 {s(S_T0)}, {s(S_T0)}, 5
v_add_u32 {v(t0)}, {s(S_T0)}, {v(i3)}
v_mul_u32_u24 {v(t0)}, 0xc00, {v(t0)}
v_and_b32 {v(t1)}, 1, {v(i4)}
s_lshl_b32 {s(S_T1)}, {s(S_T1)}, 1
v_add_u32 {v(t1)}, {s(S_T1)}, {v(t1)}
v_lshlrev_b32 {v(t1)}, 1, {v(t1)}
v_xor_b32 {v(t1)}, {v(t1)}, {v(p7)}
v_lshl_add_u32 {v(t0)}, {v(t1)}, 4, {v(t0)}
s_lshl_b32 {s(S_T0)}, {s(S_HG)}, 7
v_add_u32 {v(VW2)}, {s(S_T0)}, {v(t0)}
v_add_u32 {v(VW2+1)}, {24576 - 1024}, {v(VW2)}
v_add_u32 {v(VW2+2)}, {2*(24576 - 1024)}, {v(VW2)}
v_add_u32 {v(VW2+3)}, {3*(24576 - 1024)}, {v(VW2)}
v_and_b32 {v(t0)}, 31, {v(V_LANE)}
v_lshrrev_b32 {v(t1)}, 5, {v(V_LANE)}
s_lshl_b32 {s(S_T0)}, {s(S_W4)}, 1
v_add_u32 {v(t1)}, {s(S_T0)}, {v(t1)}
v_lshlrev_b32 {v(V_AG)}, 4, {v(t1)}
v_add_u32 {v(V_AG)}, {L_G}, {v(V_AG)}
v_bfe_u32 {v(t2)}, {v(t0)}, 1, 3
v_xor_b32 {v(t1)}, {v(t1)}, {v(t2)}
v_lshlrev_b32 {v(t1)}, 4, {v(t1)}
v_lshl_add_u32 {v(t1)}, {v(t0)}, 7, {v(t1)}
v_add_u32 {v(V_AXW)}, {L_X}, {v(t1)}
v_lshlrev_b32 {v(t0)}, 4, {v(t0)}
s_lshl_b32 {s(S_T0)}, {s(S_W4)}, 2
s_add_u32 {s(S_T0)}, {s(S_T0)}, {L_GP}
v_add_u32 {v(V_GPW)}, {s(S_T0)}, {v(t0)}
v_mov_b32 {v(GACC)}, 0
v_mov_b32 {v(GACC+1)}, 0
""") + srd(S_WS, 22, WS_SIZE) + srd(S_DBG, 20, 256)
P.add(h_misc)
def gate_chunk(j):
    o = [f"ds_read_b128 {v(GF,4)}, {v(V_AG)} offset:{j*128}",
         f"ds_read_b128 {v(XW,4)}, {v(V_AXW)} offset:{j*8192}", f"ds_read_b128 {v(XW+4,4)}, {v(V_AXW)} offset:{j*8192+4096}"]
    for i in range(4):
        for tt in range(2):
            o.append(f"v_dot2_f32_bf16 {v(GACC+tt)}, {v(XW+4*tt+i)}, {v(GF+i)}, {v(GACC+tt)}")
    return o
issued_w, issued_x = 2, 1
for S in range(25):
    if S < 24:
        P.add(WaitTag(f"w{S}", f"x{S >> 1}" if S < 16 else "none"))
    P.add(WaitLds()); P("s_barrier")
    if OPT["fine"] or S in (0, 16, 24): H.stamp()
    top = {0: 3}.get(S, S + 4)
    while issued_w <= min(top, 23):
        if issued_w < 16 and issued_w % 2 == 0 and issued_x <= issued_w // 2:
            P.add(x_dma(issued_x)); issued_x += 1
        P.add(w_dma(issued_w)); issued_w += 1
    if S < 16 and S % 2 == 1:
        P.add(gate_chunk(S >> 1))
    if S == 15:
        for tt in range(2):
            P(f"v_mov_b32 {v(XW+tt)}, {v(GACC+tt)}")
        for tt in range(2):
            P(f"v_permlane32_swap_b32 {v(GACC+tt)}, {v(XW+tt)}")
        for tt in range(2):
            P(f"v_add_f32 {v(GACC+tt)}, {v(GACC+tt)}, {v(XW+tt)}\nds_write_b32 {v(V_GPW)}, {v(GACC+tt)} offset:{512*tt}")
    if S == 8:
        P(ep_load)
    if S == 19:
        P.add(attn_setup(1, 32))
        P.add(srd(S_WOA, 8, 524288) + srd(S_WOB, 14, 524288) + srd(S_OUT, 18, 2097152))
    if S == 20:
        P(f"v_and_b32 {v(32)}, 31, {v(V_LANE)}\nv_lshlrev_b32 {v(32)}, 4, {v(32)}\nv_add_u32 {v(32)}, {L_GP}, {v(32)}")
        P.add(gate_finish([1], 32, 36))
        H.poll(f"v_cmp_ne_u64 vcc, 0, {v(EP,2)}", ep_load)
        VWO, VKF, V1A, V1D = 160, 161, 162, 164
        P(f"""v_lshrrev_b32 v32, 3, {v(V_LANE)}
v_bfe_u32 v33, {v(V_LANE)}, 4, 1
v_lshlrev_b32 v33, 2, v33
v_and_b32 v34, 7, {v(V_LANE)}
v_xor_b32 v33, v33, v34
v_lshlrev_b32 v33, 4, v33
v_lshl_add_u32 {v(VWO)}, v32, 10, v33
v_and_b32 {v(VKF)}, 32, {v(V_LANE)}
v_lshlrev_b32 {v(VKF)}, 4, {v(VKF)}
v_min_u32 v32, 9, {v(V_LANE)}
v_mul_u32_u24 {v(V1A)}, {KVS}, v32
s_mul_i32 {s(S_MW)}, {s(S_W4)}, {KVH}
s_add_u32 {s(S_T0)}, {s(S_MW)}, 2048
v_add_u32 {v(V1A)}, {s(S_T0)}, {v(V1A)}
s_lshl_b32 {s(S_T0)}, {s(S_RB)}, 1
v_add_u32 v32, {s(S_T0)}, v32
v_cmp_le_u32 vcc, 8, v32
v_mov_b32 v33, {hex(ONES)}
v_cndmask_b32 {v(V1D)}, 0, v33, vcc
v_and_b32 {v(V_FOFF)}, 7, {v(V_LANE)}
v_min_u32 {v(V_FOFF)}, 4, {v(V_FOFF)}
s_sub_u32 {s(S_T1)}, {s(S_RB)}, 4
v_add_u32 {v(V_FOFF)}, {s(S_T1)}, {v(V_FOFF)}
v_max_i32 {v(V_FOFF)}, 0, {v(V_FOFF)}
v_lshlrev_b32 {v(V_FOFF)}, 3, {v(V_FOFF)}
v_mov_b32 {v(V1D+1)}, {v(V1D)}
v_mov_b32 {v(V1D+2)}, {v(V1D)}
v_mov_b32 {v(V1D+3)}, {v(V1D)}
s_lshl_b32 {s(S_K)}, {s(S_HEAD)}, 8
s_add_u32 {s(S_K)}, {s(S_K)}, {WS_FKV}""")
    if S == 23:
        P(flag_load)
P(f"ds_write_b128 {v(V1A)}, {v(V1D,4)}")
H.poll(flag_cmp, flag_load)
H.stamp()
def gather(special):
    o = [f"s_lshl_b32 {s(S_K)}, {s(S_HEAD)}, 17", f"s_lshl_b32 {s(S_T1)}, {s(S_RB)}, 12",
         f"s_add_u32 {s(S_T2)}, {s(S_K)}, {s(S_T1)}", f"s_sub_u32 {s(S_T2)}, {s(S_T2)}, {8*2048}"]
    for u in (9, 1, 8, 0, 2, 3, 4, 5, 6, 7):
        o += [f"s_add_u32 {s(S_T0)}, {s(S_T2)}, {u*2048}", f"s_add_u32 m0, {s(S_MW)}, {u*KVS}"]
        if special and u < 8:
            o += [f"s_cmp_ge_u32 {s(S_RB)}, {(8-u+1)//2}", f"s_cbranch_scc1 L_gk{u}",
                  dma(VKF, S_WS, s(S_K), 0, None, " sc1"), f"s_mov_b32 {s(S_T0)}, {WS_SIZE}", f"s_branch L_gk{u}e", f"L_gk{u}:",
                  dma(V_L16, S_WS, s(S_T0), 0, None, " sc1"), f"L_gk{u}e:"]
        else:
            o += ["s_nop 0"] if special else []
            o += [dma(V_L16, S_WS, s(S_T0), 0, "kv", " sc1")]
        o += [dma(V_L16, S_WS, s(S_T0), 1024, "kv", " sc1")]
    return o
P(f"s_cmp_lt_u32 {s(S_RB)}, 4\ns_cbranch_scc1 L_gspecial")
P.add(gather(False))
P("L_gdone:")
txt_of = lambda x: x.text if isinstance(x, Ins) else x
special_txt = "L_gspecial:\n" + "\n".join(("" if txt_of(x).endswith(":") else "    ") + txt_of(x) for x in gather(True)) + "\n    s_branch L_gdone\n"
def wo_dma(rsrc, tag):
    o = [f"s_lshl_b32 {s(S_T3)}, {s(S_W4)}, 17", f"s_lshl_b32 {s(S_T2)}, {s(S_CB)}, 7", f"s_add_u32 {s(S_T3)}, {s(S_T3)}, {s(S_T2)}",
         f"s_lshl_b32 {s(S_MX)}, {s(S_W4)}, 14", f"s_add_u32 {s(S_MX)}, {s(S_MX)}, {L_WO}"]
    for t in range(16):
        o += [f"s_add_u32 m0, {s(S_MX)}, {t*1024}"] + ([f"s_add_u32 {s(S_T3)}, {s(S_T3)}, 8192"] if t else [])
        o += [dma(VWO, rsrc, s(S_T3), 0, tag)]
    return o
P.add(wo_dma(S_WOA, "woa"))
B0, B1 = 168, 169
P(f"""v_lshrrev_b32 v32, 5, {v(V_LANE)}
v_bfe_u32 v33, {v(V_LANE)}, 2, 2
v_lshl_add_u32 v32, v32, 2, v33
v_and_b32 v33, 2, v33
v_bfe_u32 v34, {v(V_LANE)}, 4, 1
v_xor_b32 v33, v33, v34
s_and_b32 {s(S_T1)}, {s(S_W4)}, 1
s_lshl_b32 {s(S_T1)}, {s(S_T1)}, 1
v_xor_b32 v33, {s(S_T1)}, v33
v_lshlrev_b32 v33, 5, v33
v_lshl_add_u32 v32, v32, 7, v33
v_and_b32 v33, 3, {v(V_LANE)}
v_lshl_add_u32 v32, v33, 3, v32
v_add_u32 {v(B0)}, {s(S_MX)}, v32
v_xor_b32 {v(B1)}, 64, {v(B0)}
s_lshl_b32 {s(S_T0)}, {s(S_W4)}, 10
s_add_u32 {s(S_T0)}, {s(S_T0)}, {L_Q}
v_add_u32 v32, {s(S_T0)}, {v(V_L16)}""")
P.add(WaitTag("kv")); P.add(WaitLds()); P("s_barrier")
H.stamp()
P(f"ds_read_b128 {v(QA,4)}, v32")
wo_read = lambda dst, hs: [f"ds_read_b64_tr_b16 {v(dst+4*ct+2*j,2)}, {v((B0,B1)[ct])} offset:{hs*2048+j*1024}" for ct in range(2) for j in range(2)]
def h_woa(lo, hi):
    def f():
        P.add(WaitTag("woa"))
        for hs in range(lo, hi): P.add(wo_read(WOA + 8*hs, hs))
    return f
def o_poll_setup(br):
    if br:
        o = [f"v_and_b32 {v(V_FOFF)}, 7, {v(V_LANE)}", f"v_lshlrev_b32 {v(V_FOFF)}, 3, {v(V_FOFF)}", f"s_lshl_b32 {s(S_K)}, {s(S_RB3)}, 8"]
    else:
        o = [f"v_and_b32 {v(V_FOFF)}, 7, {v(V_LANE)}", f"v_bfe_u32 v0, {v(V_LANE)}, 3, 1", f"v_lshl_add_u32 {v(V_FOFF)}, v0, 5, {v(V_FOFF)}",
             f"v_lshlrev_b32 {v(V_FOFF)}, 3, {v(V_FOFF)}", f"s_lshl_b32 {s(S_K)}, {s(S_RB3)}, 9"]
    return o + [f"s_lshl_b32 {s(S_T1)}, {s(S_W4)}, 6", f"s_add_u32 {s(S_K)}, {s(S_K)}, {s(S_T1)}",
                f"s_add_u32 {s(S_K)}, {s(S_K)}, {WS_FOB if br else WS_FOA}", flag_load]
window_attention(H, 1, {1: h_woa(0, 3), 2: h_woa(3, 6), 3: h_woa(6, 8),
                        4: lambda: (P.add(WaitLds()), P.add(wo_dma(S_WOB, "wob"))),
                        6: lambda: P.add(o_poll_setup(1))})
OF, ACC3, WBF = 96, 32, 176
OPK = 164
P.add(o_pack(OACC, 0, 8, [f"v_mul_f32 {v(TMP)}, {v(TMP)}, {v(G0+1)}"], OPK, TMP))
P.add(o_store(0, 1, OPK, "oa"))
def o_gather(br):
    o = [f"s_lshl_b32 {s(S_T0)}, {s(S_RB3)}, 16", f"s_lshl_b32 {s(S_T1)}, {s(S_W4)}, 13", f"s_add_u32 {s(S_T0)}, {s(S_T0)}, {s(S_T1)}",
         f"s_lshr_b32 {s(S_T1)}, {s(S_W4)}, 1", f"s_lshl_b32 {s(S_T1)}, {s(S_T1)}, 15", f"s_add_u32 {s(S_T0)}, {s(S_T0)}, {s(S_T1)}",
         f"s_add_u32 {s(S_T0)}, {s(S_T0)}, {WS_O + br*(2<<20)}", f"s_xor_b32 {s(S_T1)}, {s(S_T0)}, 32768"]
    for hs in range(8):
        if hs == 4:
            o += [f"s_add_u32 {s(S_T0)}, {s(S_T0)}, 4096", f"s_add_u32 {s(S_T1)}, {s(S_T1)}, 4096"]
        o += [ws_ld(v(OF+8*hs+4*tt,4), V_L16, s((S_T0, S_T1)[tt]), (hs & 3)*1024, f"og{br}") for tt in range(2)]
    return o
H.poll(flag_cmp, flag_load)
H.stamp()
P.add(o_gather(1))
P(f"s_lshl_b32 {s(S_T2)}, {s(S_RB)}, 1\ns_add_u32 {s(S_T2)}, {s(S_T2)}, 1")
P.add(WaitTag("wob"))
P.add(wo_read(WBF, 0))
for hs in range(8):
    b = hs & 1
    rd = wo_read(WBF + 8*(1-b), hs + 1) if hs < 7 else []
    for i in range(4):
        P(mfma(v(ACC3+16*i,16), v(WBF+8*b+4*(i & 1),4), v(OF+8*hs+4*(i >> 1),4), "0" if hs == 0 else v(ACC3+16*i,16)))
        P.add(rd[i:i+1])
    if hs == 0:
        P.add(flag_store("oa", WS_FOA, S_T2, 5, S_HEAD))
        P.add(o_poll_setup(0))
H.stamp()
H.poll(flag_cmp, flag_load)
H.stamp()
P.add(o_gather(0))
EXW, EXR, VOUT = 160, 163, 164
P(f"""s_mul_i32 {s(S_T0)}, {s(S_W4)}, 12288
v_add_u32 {v(EXR)}, {s(S_T0)}, {v(V_L16)}""")
for i in range(1, 4):
    P(f"s_xor_b32 {s(S_T0)}, {s(S_W4)}, {i}\ns_mul_i32 {s(S_T0)}, {s(S_T0)}, 12288\nv_add_u32 {v(EXW+i-1)}, {s(S_T0)}, {v(V_L16)}")
P(f"""v_and_b32 {v(VOUT)}, 31, {v(V_LANE)}
v_lshlrev_b32 {v(VOUT)}, 10, {v(VOUT)}
v_lshrrev_b32 v0, 5, {v(V_LANE)}
v_lshl_add_u32 {v(VOUT)}, v0, 4, {v(VOUT)}
s_lshl_b32 {s(S_T0)}, {s(S_RB3)}, 16
s_lshr_b32 {s(S_T1)}, {s(S_W4)}, 1
s_lshl_b32 {s(S_T1)}, {s(S_T1)}, 15
s_add_u32 {s(S_T0)}, {s(S_T0)}, {s(S_T1)}
s_lshl_b32 {s(S_T1)}, {s(S_CB)}, 7
s_add_u32 {s(S_T0)}, {s(S_T0)}, {s(S_T1)}
s_and_b32 {s(S_T1)}, {s(S_W4)}, 1
s_lshl_b32 {s(S_T1)}, {s(S_T1)}, 6
s_add_u32 {s(S_T0)}, {s(S_T0)}, {s(S_T1)}
s_barrier""")
order = [(hs, i) for hs in range(7) for i in range(4)] + [(7, i) for i in (1, 2, 3, 0)]
for hs, i in order:
    P(mfma(v(ACC3+16*i,16), v(WOA+8*hs+4*(i & 1),4), v(OF+8*hs+4*(i >> 1),4), v(ACC3+16*i,16)))
H.stamp()
for i in range(1, 4):
    P.add([f"ds_write_b128 {v(EXW+i-1)}, {v(ACC3+16*i+4*q,4)} offset:{(i-1)*4096+q*1024}" for q in range(4)])
P.add(WaitLds()); P("s_barrier")
for q in range(4):
    P.add([f"ds_read_b128 {v(OF+16*i+4*q,4)}, {v(EXR)} offset:{i*4096+q*1024}" for i in range(3)])
for q in range(4):
    for i in range(3):
        P.add([f"v_pk_add_f32 {v(ACC3+4*q+2*k,2)}, {v(ACC3+4*q+2*k,2)}, {v(OF+16*i+4*q+2*k,2)}" for k in range(2)])
    P.add([f"v_cvt_pk_bf16_f32 {v(WBF+2*q+k)}, {v(ACC3+4*q+2*k)}, {v(ACC3+4*q+2*k+1)}" for k in range(2)])
    if q & 1:
        hf = q >> 1
        P(f"v_permlane32_swap_b32 {v(WBF+4*hf)}, {v(WBF+4*hf+2)}\nv_permlane32_swap_b32 {v(WBF+4*hf+1)}, {v(WBF+4*hf+3)}")
        P(f"buffer_store_dwordx4 {v(WBF+4*hf,4)}, {v(VOUT)}, {s(S_OUT,4)}, {s(S_T0)} offen{' offset:32' if hf else ''}{('', ' sc1', ' nt', ' sc0 sc1')[OPT['outsc']]}")
H.stamp()
H.finish()

C = Role("C"); P = C.P
T1, T3, T2 = 32, 64, 96
XB, WB = 128, 152
V_AX, V_T1L, V_T1H, V_T3L, V_T3H, V_T2L, V_T2H = 176, 180, 181, 182, 183, 184, 185
V_LO, V_HI, V_GPR, V_QW = 186, 187, 188, 189
CM, KA, KB, VPK, VB, QB, KBH, VBH = 192, 208, 216, 224, 32, 240, 248, 252
r5, hh, rr, cc, nh, u0, u1, cm = 128, 129, 130, 131, 132, 133, 134, 135
P("L_crole:")
if OPT["prio"]: P("s_setprio 1")
P(f"""
v_and_b32 {v(r5)}, 31, {v(V_LANE)}
v_lshrrev_b32 {v(hh)}, 5, {v(V_LANE)}
v_bfe_u32 {v(u0)}, {v(r5)}, 1, 3
v_xor_b32 {v(u0)}, {v(u0)}, {v(hh)}
v_lshlrev_b32 {v(u0)}, 4, {v(u0)}
v_lshl_add_u32 {v(u0)}, {v(r5)}, 7, {v(u0)}
v_add_u32 {v(V_AX)}, {L_X}, {v(u0)}
v_xor_b32 {v(V_AX+1)}, 32, {v(V_AX)}
v_xor_b32 {v(V_AX+2)}, 64, {v(V_AX)}
v_xor_b32 {v(V_AX+3)}, 0x60, {v(V_AX)}
v_bfe_u32 {v(rr)}, {v(V_LANE)}, 2, 2
v_and_b32 {v(cc)}, 3, {v(V_LANE)}
v_bfe_u32 {v(nh)}, {v(V_LANE)}, 4, 1
v_lshl_add_u32 {v(u0)}, {v(hh)}, 3, {v(rr)}
v_xor_b32 {v(u1)}, {s(S_W4)}, {v(rr)}
v_lshlrev_b32 {v(u1)}, 5, {v(u1)}
v_lshl_add_u32 {v(u1)}, {v(cc)}, 3, {v(u1)}
v_lshl_add_u32 {v(u1)}, {v(u0)}, 8, {v(u1)}
v_mul_u32_u24 {v(V_T1L)}, 0x2080, {v(nh)}
v_add_u32 {v(V_T1L)}, {v(V_T1L)}, {v(u1)}
v_add_u32 {v(V_T1H)}, 0x10000, {v(V_T1L)}
v_xor_b32 {v(V_T3L)}, 0x80, {v(V_T1L)}
v_xor_b32 {v(V_T3H)}, 0x80, {v(V_T1H)}
v_lshrrev_b32 {v(u1)}, 1, {v(rr)}
v_lshl_add_u32 {v(u1)}, {v(nh)}, 1, {v(u1)}
v_xor_b32 {v(u1)}, {s(S_W4)}, {v(u1)}
v_lshlrev_b32 {v(u1)}, 5, {v(u1)}
v_lshl_add_u32 {v(u1)}, {v(cc)}, 3, {v(u1)}
v_lshl_add_u32 {v(u1)}, {v(u0)}, 7, {v(u1)}
v_lshl_add_u32 {v(V_T2L)}, {v(nh)}, 13, {v(u1)}
v_add_u32 {v(V_T2H)}, 0x10000, {v(V_T2L)}
v_and_b32 {v(u0)}, 15, {v(V_LANE)}
v_lshlrev_b32 {v(u0)}, 4, {v(u0)}
v_lshl_add_u32 {v(u0)}, {v(hh)}, 8, {v(u0)}
v_lshl_add_u32 {v(V_LO)}, {v(nh)}, 31, {v(u0)}
v_xor_b32 {v(V_HI)}, {OOB}, {v(V_LO)}
v_lshlrev_b32 {v(V_GPR)}, 4, {v(r5)}
v_add_u32 {v(V_GPR)}, {L_GP}, {v(V_GPR)}
s_lshl_b32 {s(S_T2)}, {s(S_W4)}, 10
s_add_u32 {s(S_T2)}, {s(S_T2)}, {L_Q}
v_add_u32 {v(V_QW)}, {s(S_T2)}, {v(V_L16)}
v_lshlrev_b32 {v(u0)}, 2, {v(hh)}
v_sub_u32 {v(cm)}, {v(r5)}, {v(u0)}
s_waitcnt lgkmcnt(0)
s_memrealtime {s(S_TM,2)}
s_mov_b32 {s(S_C)}, {fhex(QK_SCALE)}
s_mov_b32 {s(S_C+1)}, {fhex(QK_SCALE)}
""")
P.add(srd(S_WS, 22, WS_SIZE) + srd(S_DBG, 20, 256))
P(f"""s_cmp_eq_u32 s2, 0
s_cselect_b32 {s(S_T2)}, 0, {OOB}
v_lshlrev_b32 v5, 8, v0
v_or_b32 v5, {s(S_T2)}, v5
s_waitcnt lgkmcnt(0)
v_mov_b32 {v(EP)}, {s(S_TM)}
v_mov_b32 {v(EP+1)}, {s(S_TM+1)}
buffer_store_dwordx2 {v(EP,2)}, v5, {s(S_DBG,4)}, 0 offen sc1""")
for q in range(16):
    P(f"""v_subrev_u32 {v(CM+q)}, {8*(q>>2)+(q&3)}, {v(cm)}
v_and_b32 {v(CM+q)}, 17, {v(CM+q)}
v_cvt_f32_u32 {v(CM+q)}, {v(CM+q)}
v_mul_f32 {v(CM+q)}, {hex(NEG_BIG)}, {v(CM+q)}""")
P.add(attn_setup(0, 136))
P.add([f"v_mov_b32 {v(VBH+i)}, {hex(ONES)}" for i in range(4)])
C.stamp()

def frag_reads(n):
    b, m = n % 3, n & 31
    j, ux = m >> 2, m & 3
    base = (stage_of(n) % NSLOT) * SLOT
    hi = base >= 65536; off = base - (65536 if hi else 0)
    x = [f"ds_read_b128 {v(XB+8*b+4*tt,4)}, {v(V_AX+ux)} offset:{j*8192+tt*4096}" for tt in range(2)]
    if n < 32:
        w = [f"ds_read_b64_tr_b16 {v(WB+8*b+4*t+2*qd,2)}, {v(((V_T1L,V_T1H),(V_T3L,V_T3H))[t][hi])} offset:{off+(n&1)*4096+qd*1024}"
             for t in range(2) for qd in range(2)]
        return [w[0], x[0], w[1], w[2], x[1], w[3]]
    w = [f"ds_read_b64_tr_b16 {v(WB+8*b+2*qd,2)}, {v((V_T2L,V_T2H)[hi])} offset:{off+ux*2048+qd*512}" for qd in range(2)]
    return [w[0], x[0], w[1], x[1]]
def step_mfmas(n):
    b = n % 3
    x = lambda tt: v(XB+8*b+4*tt, 4)
    c = lambda r: "0" if n in (0, 32) else v(r, 16)
    if n < 32:
        return [mfma(v(T1,16), v(WB+8*b,4), x(0), c(T1)), mfma(v(T3,16), x(0), v(WB+8*b+4,4), c(T3)),
                mfma(v(T1+16,16), v(WB+8*b,4), x(1), c(T1+16)), mfma(v(T3+16,16), x(1), v(WB+8*b+4,4), c(T3+16))]
    return [mfma(v(T2,16), v(WB+8*b,4), x(0), c(T2)), mfma(v(T2+16,16), v(WB+8*b,4), x(1), c(T2+16))]
def kv_publish():
    o = [f"s_lshl_b32 {s(S_T0)}, {s(S_HEAD)}, 17", f"s_lshl_b32 {s(S_T1)}, {s(S_RB)}, 12", f"s_add_u32 {s(S_T0)}, {s(S_T0)}, {s(S_T1)}"]
    for tt in range(2):
        o += [f"v_pk_mul_f32 {v(T1+16*tt+2*i,2)}, {v(T1+16*tt+2*i,2)}, {s(S_C,2)}" for i in range(4)]
        o += [f"v_cvt_pk_bf16_f32 {v(KA+4*tt+i)}, {v(T1+16*tt+2*i)}, {v(T1+16*tt+2*i+1)}" for i in range(4)]
        o += [ws_st(v(KA+4*tt,4), V_L16, s(S_T0), tt*2048, "kv")]
    for tt in range(2):
        for m in range(2):
            o += [f"v_cvt_pk_bf16_f32 {v(VPK+8*tt+4*m+i)}, {v(T3+16*tt+8*m+2*i)}, {v(T3+16*tt+8*m+2*i+1)}" for i in range(4)]
            o += [ws_st(v(VPK+8*tt+4*m,4), V_LO, s(S_T0), tt*2048+1024+m*512, "kv")]
    o += [f"s_lshl_b32 {s(S_T0)}, {s(S_HEAD)}, 15", f"s_lshl_b32 {s(S_T1)}, {s(S_RB)}, 10",
          f"s_add_u32 {s(S_T0)}, {s(S_T0)}, {s(S_T1)}", f"s_add_u32 {s(S_T0)}, {s(S_T0)}, {WS_HB}",
          ws_st(v(VPK+12,4), V_HI, s(S_T0), 512, "kv")]
    for tt in (1, 0):
        o += [f"v_pk_mul_f32 {v(T1+16*tt+8+2*i,2)}, {v(T1+16*tt+8+2*i,2)}, {s(S_C,2)}" for i in range(4)]
        o += [f"v_cvt_pk_bf16_f32 {v(KB+4*tt+i)}, {v(T1+16*tt+8+2*i)}, {v(T1+16*tt+8+2*i+1)}" for i in range(4)]
        if tt == 1: o += [ws_st(v(KB+4,4), V_HI, s(S_T0), 0, "kv")]
    o += [f"v_mov_b32 {v(TMP)}, {hex(ONES)}"]
    o += [f"v_cndmask_b32 {v(VB+i)}, {v(VPK+i)}, {v(TMP)}, {s(S_LO16,2)}" for i in range(16)]
    return o

P("s_barrier")
C.stamp()
P.add(frag_reads(0)); P.add(frag_reads(1))
queue = []
for n in range(64):
    mf = step_mfmas(n)
    sync = first_of_stage(n + 2) or n == 62
    rd = frag_reads(n + 2) if n < 62 else []
    if n == 20: queue += [ep_load]
    if n == 32: queue += kv_publish()
    if n == 46: queue += gate_finish([0, 1], V_GPR, T3)
    take = 5 if n >= 32 else 1
    side = queue[:take]; queue = queue[take:]
    P(mf[0])
    if sync:
        P.add(WaitLds()); P("s_barrier")
        if OPT["fine"]: C.stamp()
    if n < 32:
        P.add(rd[0:2]); P(mf[1]); P.add(rd[2:4]); P(mf[2]); P.add(rd[4:6]); P(mf[3]); P.add(side)
    else:
        P.add(rd[0:2]); P.add(side[:2]); P(mf[1]); P.add(rd[2:4]); P.add(side[2:])
    if n == 31: C.stamp()
    if n == OPT["kvflag"]:
        C.poll(f"v_cmp_ne_u64 vcc, 0, {v(EP,2)}", ep_load)
        P.add(flag_store("kv", WS_FKV, S_HEAD, 5, S_RB))
        C.stamp()
    if n == 60:
        P(f"""s_sub_u32 {s(S_T1)}, {s(S_RB)}, 1
s_max_i32 {s(S_T1)}, {s(S_T1)}, 0
s_lshl_b32 {s(S_K)}, {s(S_HEAD)}, 5
s_add_u32 {s(S_K)}, {s(S_K)}, {s(S_T1)}
s_lshl_b32 {s(S_K)}, {s(S_K)}, 3
s_add_u32 {s(S_K)}, {s(S_K)}, {WS_FKV}
v_mov_b32 {v(V_FOFF)}, 0""")
        P(flag_load)
assert not queue
C.stamp()
C.poll(flag_cmp, flag_load)
P(f"""s_lshl_b32 {s(S_T0)}, {s(S_HEAD)}, 15
s_lshl_b32 {s(S_T1)}, {s(S_RB)}, 10
s_add_u32 {s(S_T0)}, {s(S_T0)}, {s(S_T1)}
s_add_u32 {s(S_T0)}, {s(S_T0)}, {WS_HB - 1024}
s_cmp_eq_u32 {s(S_RB)}, 0
s_cselect_b32 {s(S_T0)}, {WS_SIZE}, {s(S_T0)}
s_cselect_b64 {s(S_X,2)}, {s(S_LO16,2)}, 0""")
P.add([ws_ld(v(KBH,4), V_HI, s(S_T0)), f"s_not_b64 exec, {s(S_LO16,2)}", ws_ld(v(VBH,4), V_HI, s(S_T0), 512), "s_mov_b64 exec, -1"])
QA1 = 208
P.add([f"v_cvt_pk_bf16_f32 {v(QB+4+i)}, {v(T2+16+8+2*i)}, {v(T2+16+8+2*i+1)}" for i in range(4)])
BS, BSP, BO, BP, BPL = 48, 64, 128, 160, 168
def b_scores(t):
    kprev = v(KB, 4) if t == 1 else v(KBH, 4)
    return [mfma(v(BS+32*(1-t),16), v(KB+4*t,4), v(QB+4*t,4), v(CM,16)),
            mfma(v(BSP+80*(1-t),16), kprev, v(QB+4*t,4), v(CM,16))]
def b_softmax(t):
    S, sp, m = BS + 32*(1-t), BSP + 80*(1-t), TMP
    o = [f"v_cndmask_b32 {v(S+q)}, {v(S+q)}, {v(sp+q)}, {s(S_LO16,2)}" for q in range(8, 16)]
    if t == 0:
        o += [f"v_mov_b32 {v(m)}, {hex(NEG_BIG)}"]
        o += [f"v_cndmask_b32 {v(S+q)}, {v(S+q)}, {v(m)}, {s(S_X,2)}" for q in range(8, 16)]
    o += max_tree(m, range(S, S+16)) + cross_max(m, m+1)
    o += [f"v_sub_f32 {v(S+q)}, {v(S+q)}, {v(m)}" for q in range(16)]
    o += [f"v_exp_f32 {v(S+q)}, {v(S+q)}" for q in range(16)]
    o += [f"v_cvt_pk_bf16_f32 {v(BP+i)}, {v(S+2*i)}, {v(S+2*i+1)}" for i in range(8)]
    o += [f"v_cndmask_b32 {v(BPL+i)}, 0, {v(BP+4+i)}, {s(S_LO16,2)}" for i in range(4)]
    o += [f"v_cndmask_b32 {v(BP+4+i)}, {v(BP+4+i)}, 0, {s(S_LO16,2)}" for i in range(4)]
    return o
def b_pv(t):
    vprev = v(VB+4, 4) if t == 1 else v(VBH, 4)
    acc = v(BO - 32*(1-t), 16)
    return [mfma(acc, v(VB+8*t,4), v(BP,4), "0"), mfma(acc, v(VB+8*t+4,4), v(BP+4,4), acc), mfma(acc, vprev, v(BPL,4), acc)]
def b_pack(t):
    f = TMP + 2
    return o_pack(BO - 32*(1-t), 8, 0, [f"v_sub_f32 {v(f+1)}, 1.0, {v(G0+t)}", f"v_mul_f32 {v(f)}, {v(f)}, {v(f+1)}"], KA + 4*t, f) + o_store(1, t, KA + 4*t, "ob")
P.add(b_scores(1))
P.add([f"v_cvt_pk_bf16_f32 {v(QA1+i)}, {v(T2+16+2*i)}, {v(T2+16+2*i+1)}" for i in range(4)])
P(f"ds_write_b128 {v(V_QW)}, {v(QA1,4)}")
P.add([f"v_cvt_pk_bf16_f32 {v(QB+i)}, {v(T2+8+2*i)}, {v(T2+8+2*i+1)}" for i in range(4)])
P.add([f"v_cvt_pk_bf16_f32 {v(QA+i)}, {v(T2+2*i)}, {v(T2+2*i+1)}" for i in range(4)])
sm1 = b_softmax(1)
P.add(sm1[:44]); P.add(b_scores(0)); P.add(sm1[44:])
sm0, pv1, pk1 = b_softmax(0), b_pv(1), b_pack(1)
P.add(sm0[:2]); P(pv1[0]); P.add(sm0[2:10]); P(pv1[1]); P.add(sm0[10:18]); P(pv1[2]); P.add(sm0[18:44])
P.add(pk1); P.add(sm0[44:])
P.add(b_pv(0))
C.stamp()
P.add(WaitLds()); P("s_barrier")
C.stamp()
pk0 = b_pack(0)
window_attention(C, 0, {"m0": lambda: P.add(pk0),
                        3: lambda: P.add(flag_store("ob", WS_FOB, S_RB, 5, S_HEAD))})
P.add(o_pack(OACC, 0, 8, [f"v_mul_f32 {v(TMP)}, {v(TMP)}, {v(G0)}"], PF, TMP))
P.add(o_store(0, 0, PF, "oa"))
P(f"s_lshl_b32 {s(S_T2)}, {s(S_RB)}, 1")
P.add(flag_store("oa", WS_FOA, S_T2, 5, S_HEAD))
C.stamp()
C.finish()

full = Prog(); full.items = E.items + H.P.items
bodyH = finalize(full, verbose=True)
full = Prog(); full.items = [Ins("s_load_dwordx16 s[4:19], s[0:1], 0"), Ins("global_load_dword v13, v5, s[96:97]")] + C.P.items
bodyC = "\n".join(finalize(full, verbose=True).split("\n")[2:])
print("stamps H", H.ns, "C", C.ns)
hdr = open("cdna_kernels/%s.s.ref" % NAME).read().split("; Override launch")[0]
txt = hdr + f"""; One launch: 256 workgroups (4 heads x 64 rows each), 8 waves, hand-offs through d_ws tagged with a per-launch epoch.
; @launch grid=(256,1,1) block=(512,1,1) lds={LDS_BYTES}
.amdgcn_target "amdgcn-amd-amdhsa--gfx950"
.text
.globl {NAME}_kernel
.p2align 8
.type {NAME}_kernel,@function
{NAME}_kernel:
{bodyH}{special_txt}{bodyC}L_end:
    s_endpgm
    .fill 3072, 4, 0xbf800000
.section .rodata,"a"
.p2align 6
.amdhsa_kernel {NAME}_kernel
  .amdhsa_next_free_vgpr 256
  .amdhsa_next_free_sgpr 102
  .amdhsa_accum_offset 256
  .amdhsa_group_segment_fixed_size 0
  .amdhsa_kernarg_size 80
  .amdhsa_user_sgpr_count 2
  .amdhsa_user_sgpr_kernarg_segment_ptr 1
  .amdhsa_system_sgpr_workgroup_id_x 1
.end_amdhsa_kernel
"""
open(sys.argv[1], "w").write(txt)
```

```python
import sys, math, struct
from asmdsl import Prog, Ins, WaitTag, WaitLds, Raw, finalize

NAME = "gated_mix__sliding_block__sliding_local_dilated__prompt"
OPT = dict(pf=0, stamps=0, standin=0, amp=-1, ampk=8, amprole=1, rotmask=7, kvflag=52, fine=0, outsc=0, prio=0, touch=0)
for a in sys.argv[2:]:
    k, v_ = a.split("="); assert k in OPT, k; OPT[k] = int(v_)

WS_KV, WS_HB, WS_O = 0, 4 << 20, 5 << 20
WS_FKV, WS_FOB, WS_FOA = 9 << 20, (9 << 20) + 65536, (9 << 20) + 131072
WS_STAMP, WS_SIZE = 10 << 20, 64 << 20
OOB = 0x80000000
NSLOT, SLOT = 5, 16384
L_X, L_G, L_GP, L_Q, LDS_BYTES = 81920, 148480, 149504, 150528, 154624
KVS, KVH, L_WO = 2064, 20640, 82944
QK_SCALE = 0.25 * math.log2(math.e)
NEG_BIG, ONES = 0xf149f2ca, 0x3f803f80

def fhex(x): return "0x%08x" % struct.unpack("<I", struct.pack("<f", x))[0]
def v(a, n=1): return f"v{a}" if n == 1 else f"v[{a}:{a+n-1}]"
def s(a, n=1): return f"s{a}" if n == 1 else f"s[{a}:{a+n-1}]"
def lines(t): return [l.strip() for l in t.strip().split("\n") if l.strip()]
def mfma(d, a, b, c): return f"v_mfma_f32_32x32x16_bf16 {d}, {a}, {b}, {c}"
def srd(base, ptr, nbytes):
    return [f"s_mov_b32 {s(base)}, {s(ptr)}", f"s_mov_b32 {s(base+1)}, {s(ptr+1)}",
            f"s_mov_b32 {s(base+2)}, {nbytes}", f"s_mov_b32 {s(base+3)}, 0x20000"]
def interleave(*ls):
    o, ls = [], [list(l) for l in ls]
    while any(ls):
        for l in ls:
            if l: o.append(l.pop(0))
    return o

S_X, S_W, S_WS, S_WOA, S_WOB, S_OUT, S_DBG, S_G = 24, 28, 32, 36, 40, 44, 48, 36
S_W4, S_HG, S_RB, S_ROT, S_HEAD, S_RB3, S_CB = 52, 53, 54, 55, 56, 57, 58
S_K, S_T0, S_MW, S_MX, S_T1 = 59, 60, 61, 62, 63
S_MASK, S_T2, S_T3, S_LO16, S_TM, S_C, S_SPIN = 64, 96, 97, 98, 100, 10, 3
V_LANE, V_L16, V_STAMP, V_FOFF = 1, 2, 3, 4
EP, FLG = 6, 8
V_AK, V_AV0, V_AV1 = 10, 11, 12
G0 = 14
PM, QA = 16, 24
TMP = 28
SB, NEGM, MG = 32, 64, 80
PB, PF, OACC, KF, VF = 96, 112, 120, 136, 144

class Role:
    def __init__(self, name):
        self.P, self.name, self.ns, self.nl = Prog(), name, 0, 0
    def stamp(self):
        P = self.P
        if OPT["amp"] == self.ns and OPT["amprole"] == (self.name == "H"):
            P.add(WaitLds())
            P(f"s_memrealtime {s(S_TM,2)}\ns_waitcnt lgkmcnt(0)\nv_writelane_b32 {v(V_STAMP)}, {s(S_TM)}, 1")
        if OPT["stamps"]:
            P.add(WaitLds())
            P(f"s_memtime {s(S_TM,2)}\ns_waitcnt lgkmcnt(0)\nv_writelane_b32 {v(V_STAMP)}, {s(S_TM)}, {self.ns + 1}")
        self.ns += 1
    def poll(self, cmp_txt, reload_txt):
        P, n = self.P, f"{self.name}{self.nl}"; self.nl += 1
        P(f"s_mov_b32 {s(S_SPIN)}, 0x40000"); P(cmp_txt)
        P(f"s_cmp_eq_u64 vcc, -1\ns_cbranch_scc1 L_pok{n}")
        P.add(Raw(f"""L_pspin{n}:
    {reload_txt}
    s_sub_u32 {s(S_SPIN)}, {s(S_SPIN)}, 1
    s_cbranch_scc1 L_pok{n}
    s_waitcnt vmcnt(0)
    {cmp_txt}
    s_nop 2
    s_cmp_eq_u64 vcc, -1
    s_cbranch_scc0 L_pspin{n}
L_pok{n}:"""))
    def finish(self):
        P = self.P
        if OPT["stamps"]:
            P(f"s_memrealtime {s(S_TM,2)}\ns_waitcnt lgkmcnt(0) vmcnt(0)\nv_writelane_b32 {v(V_STAMP)}, {s(S_TM)}, 63")
            P(f"""s_lshl_b32 {s(S_T0)}, s2, 3
s_add_u32 {s(S_T0)}, {s(S_T0)}, {s(S_W4)}
s_add_u32 {s(S_T0)}, {s(S_T0)}, {4 if self.name == "H" else 0}
s_lshl_b32 {s(S_T0)}, {s(S_T0)}, 8
s_add_u32 {s(S_T0)}, {s(S_T0)}, {WS_STAMP}
v_lshlrev_b32 v0, 2, {v(V_LANE)}
buffer_store_dword {v(V_STAMP)}, v0, {s(S_WS,4)}, {s(S_T0)} offen""")
        if OPT["amp"] >= 0 and OPT["amprole"] == (self.name == "H"):
            P(f"""s_cmp_lg_u32 s2, 100
s_cbranch_scc1 L_end
v_readlane_b32 {s(S_T0)}, {v(V_STAMP)}, 0
v_readlane_b32 {s(S_T1)}, {v(V_STAMP)}, 1
s_memrealtime {s(S_TM,2)}
s_sub_u32 {s(S_T1)}, {s(S_T1)}, {s(S_T0)}
s_mul_i32 {s(S_T1)}, {s(S_T1)}, {OPT["ampk"]}
s_min_u32 {s(S_T1)}, {s(S_T1)}, 100000
s_waitcnt lgkmcnt(0)
s_mov_b32 {s(S_T0)}, {s(S_TM)}""")
            P.add(Raw(f"""L_amp{self.name}:
    s_memrealtime {s(S_TM,2)}
    s_waitcnt lgkmcnt(0)
    s_sub_u32 {s(S_K)}, {s(S_TM)}, {s(S_T0)}
    s_cmp_lt_u32 {s(S_K)}, {s(S_T1)}
    s_cbranch_scc1 L_amp{self.name}"""))
        P("s_endpgm")

ws_ld = lambda dst, voff, soff, imm=0, tag=None: Ins(
    f"buffer_load_dwordx4 {dst}, {v(voff)}, {s(S_WS,4)}, {soff} offen{' offset:%d' % imm if imm else ''} sc1", tag)
ws_st = lambda src, voff, soff, imm=0, tag=None: Ins(
    f"buffer_store_dwordx4 {src}, {v(voff)}, {s(S_WS,4)}, {soff} offen{' offset:%d' % imm if imm else ''} sc1", tag)
ep_load = f"buffer_load_dwordx2 {v(EP,2)}, off, {s(S_DBG,4)}, 0 sc1"
flag_load = f"buffer_load_dwordx2 {v(FLG,2)}, {v(V_FOFF)}, {s(S_WS,4)}, {s(S_K)} offen sc1"
flag_cmp = f"v_cmp_eq_u64 vcc, {v(FLG,2)}, {v(EP,2)}"
def flag_store(data_tag, base, hi_reg, hi_shift, lo_reg):
    return [WaitTag(data_tag), f"s_lshl_b32 {s(S_T0)}, {s(hi_reg)}, {hi_shift}", f"s_add_u32 {s(S_T0)}, {s(S_T0)}, {s(lo_reg)}",
            f"s_lshl_b32 {s(S_T0)}, {s(S_T0)}, 3", f"s_add_u32 {s(S_T0)}, {s(S_T0)}, {base}",
            f"v_lshlrev_b32 v0, 26, {v(V_LANE)}",
            Ins(f"buffer_store_dwordx2 {v(EP,2)}, v0, {s(S_WS,4)}, {s(S_T0)} offen sc1", "flag")]

def max_tree(dst, regs, init=False):
    regs, o = list(regs), []
    if not init:
        o.append(f"v_max3_f32 {v(dst)}, {v(regs[0])}, {v(regs[1])}, {v(regs[2])}"); regs = regs[3:]
    while len(regs) >= 2:
        o.append(f"v_max3_f32 {v(dst)}, {v(dst)}, {v(regs[0])}, {v(regs[1])}"); regs = regs[2:]
    if regs: o.append(f"v_max_f32 {v(dst)}, {v(dst)}, {v(regs[0])}")
    return o
def cross_max(m, t):
    return [f"v_mov_b32 {v(t)}, {v(m)}", f"v_permlane32_swap_b32 {v(m)}, {v(t)}", f"v_max_f32 {v(m)}, {v(m)}, {v(t)}"]

def attn_setup(t, tmp):
    r5, hh, cm, u = tmp, tmp + 1, tmp + 2, tmp + 3
    o = lines(f"""v_and_b32 {v(r5)}, 31, {v(V_LANE)}
v_lshrrev_b32 {v(hh)}, 5, {v(V_LANE)}
v_lshlrev_b32 {v(u)}, 2, {v(hh)}
v_sub_u32 {v(cm)}, {v(r5)}, {v(u)}
s_mul_i32 {s(S_T2)}, {s(S_W4)}, {KVH}
s_add_u32 {s(S_T2)}, {s(S_T2)}, {t*KVS}
v_add_u32 {v(V_AK)}, {s(S_T2)}, {v(V_L16)}
v_and_b32 {v(u)}, 15, {v(V_LANE)}
v_lshlrev_b32 {v(u)}, 4, {v(u)}
v_lshl_add_u32 {v(u)}, {v(hh)}, 8, {v(u)}
v_mov_b32 {v(hh)}, 0x400
v_cndmask_b32 {v(V_AV0)}, {v(hh)}, {v(u)}, {s(S_LO16,2)}
v_mov_b32 {v(hh)}, 0x200
v_cndmask_b32 {v(V_AV1)}, {v(hh)}, {v(u)}, {s(S_LO16,2)}
v_add_u32 {v(V_AV0)}, {s(S_T2)}, {v(V_AV0)}
v_add_u32 {v(V_AV1)}, {s(S_T2)}, {v(V_AV1)}
v_mov_b32 {v(u)}, 0xffff""")
    o += [f"v_cmp_le_i32 {s(S_MASK+2*q,2)}, {8*(q>>2)+(q&3)}, {v(cm)}" for q in range(16)]
    o += [f"v_cndmask_b32 {v(PM+pq)}, 0, {v(u)}, {s(S_MASK+4*pq,2)}" for pq in range(8)]
    o += [f"v_cndmask_b32 {v(PM+pq)}, {v(PM+pq)}, -1, {s(S_MASK+4*pq+2,2)}" for pq in range(8)]
    return o

def gate_finish(tiles, addr, tmp):
    o = [f"ds_read_b128 {v(tmp+4*t,4)}, {v(addr)} offset:{512*t}" for t in tiles]
    seq = []
    for t in tiles:
        b = tmp + 4*t
        seq.append([f"v_add_f32 {v(b)}, {v(b)}, {v(b+1)}", f"v_add_f32 {v(b+2)}, {v(b+2)}, {v(b+3)}",
                    f"v_add_f32 {v(b)}, {v(b)}, {v(b+2)}", f"v_mul_f32 {v(b)}, {fhex(-math.log2(math.e))}, {v(b)}",
                    f"v_exp_f32 {v(b)}, {v(b)}", f"v_add_f32 {v(b)}, 1.0, {v(b)}", f"v_rcp_f32 {v(G0+t)}, {v(b)}"])
    return o + interleave(*seq)

def o_pack(acc, o0, lreg, fac, dst, f):
    return ([f"v_rcp_f32 {v(f)}, {v(acc+lreg)}"] + fac +
            [f"v_mul_f32 {v(acc+o0+i)}, {v(f)}, {v(acc+o0+i)}" for i in range(8)] +
            [f"v_cvt_pk_bf16_f32 {v(dst+i)}, {v(acc+o0+2*i)}, {v(acc+o0+2*i+1)}" for i in range(4)])
def o_store(br, tt, src, tag):
    return [f"s_lshl_b32 {s(S_T0)}, {s(S_RB)}, 16", f"s_lshl_b32 {s(S_T1)}, {s(S_HEAD)}, 10",
            f"s_add_u32 {s(S_T0)}, {s(S_T0)}, {s(S_T1)}", f"s_add_u32 {s(S_T0)}, {s(S_T0)}, {WS_O + br*(2<<20) + tt*32768}",
            ws_st(v(src,4), V_L16, s(S_T0), 0, tag)]

def window_attention(R, t, events):
    P = R.P
    kread = lambda u, b: f"ds_read_b128 {v(KF+4*b,4)}, {v(V_AK)} offset:{u*KVS}"
    vread = lambda u, b: [f"ds_read_b128 {v(VF+8*b,4)}, {v(V_AV0)} offset:{u*KVS+1024}",
                          f"ds_read_b128 {v(VF+8*b+4,4)}, {v(V_AV1)} offset:{u*KVS+1536}"]
    q, M = v(QA, 4), TMP
    ev = lambda key: events.pop(key)() if key in events else None
    P(kread(8, 0)); P(kread(0, 1))
    P(mfma(v(MG,16), v(KF,4), q, "0")); P(kread(1, 0))
    P(mfma(v(SB+16,16), v(KF+4,4), q, "0"))
    P.add(vread(8, 0)); P.add(vread(0, 1))
    ev("m0")
    if not OPT["standin"]:
        P(mfma(v(SB,16), v(KF,4), q, "0")); P(kread(2, 1))
    P.add([f"v_cndmask_b32 {v(MG+i)}, {v(SB+16+i)}, {v(MG+i)}, {s(S_MASK+2*i,2)}" for i in range(16)])
    P.add(max_tree(M, range(MG, MG+16)))
    if not OPT["standin"]:
        for u in range(1, 8):
            cur = SB + 16*((u+1) & 1); nxt = SB + 16*(u & 1)
            if u < 7:
                P(mfma(v(nxt,16), v(KF+4*(u & 1),4), q, "0"))
            nk = u + 2 if u < 6 else (1 if u == 7 else None)
            if u < 6: P(kread(u + 2, (u+1) & 1))
            if u == 6: P(kread(1, 1 - (u & 1)))
            P.add(max_tree(M, range(cur, cur+16), init=True))
        kb = 1
    else:
        kb = 0
    P.add(cross_max(M, M+1))
    R.stamp()
    P.add([f"v_sub_f32 {v(NEGM+i)}, 0, {v(M)}" for i in range(16)])
    P(mfma(v(SB,16), v(KF+4*kb,4), q, v(NEGM,16))); P(kread(2, 1-kb))
    acc = v(OACC, 16)
    P.add([f"v_pk_add_f32 {v(MG+2*i,2)}, {v(MG+2*i,2)}, {v(NEGM,2)}" for i in range(8)])
    P.add([f"v_exp_f32 {v(MG+i)}, {v(MG+i)}" for i in range(16)])
    P.add([f"v_cvt_pk_bf16_f32 {v(PF+i)}, {v(MG+2*i)}, {v(MG+2*i+1)}" for i in range(8)])
    P.add([f"v_and_b32 {v(PB+8+i)}, {v(PM+i)}, {v(PF+i)}" for i in range(4)])
    P.add([f"v_xor_b32 {v(PF+i)}, {v(PF+i)}, {v(PB+8+i)}" for i in range(4)])
    P(mfma(acc, v(VF,4), v(PB+8,4), "0"))
    P.add([f"v_and_b32 {v(PB+12+i)}, {v(PM+4+i)}, {v(PF+4+i)}" for i in range(4)])
    P.add([f"v_xor_b32 {v(PF+4+i)}, {v(PF+4+i)}, {v(PB+12+i)}" for i in range(4)])
    P(mfma(acc, v(VF+8,4), v(PF,4), acc))
    pend = [mfma(acc, v(VF+4,4), v(PB+12,4), acc), mfma(acc, v(VF+12,4), v(PF+4,4), acc)]
    pend_rd = vread(1, 0)
    for u in range(1, 8):
        S = SB + 16*((u+1) & 1); Sn = SB + 16*(u & 1); Pp = PB + 8*((u+1) & 1); vb = (u+1) & 1
        kcur = (kb + u) & 1
        e = [f"v_exp_f32 {v(S+i)}, {v(S+i)}" for i in range(16)]
        c = [f"v_cvt_pk_bf16_f32 {v(Pp+k)}, {v(S+2*k)}, {v(S+2*k+1)}" for k in range(8)]
        P.add(e[0:2])
        if len(pend) > 1:
            P(pend.pop(0)); P.add(e[2:5]); P(pend.pop(0)); P.add(pend_rd); P.add(e[5:6]); pend_rd = []
        else:
            P(pend.pop(0)); P.add(e[2:6])
        if u < 7:
            P.add(vread(u + 1, 1 - vb))
            P(mfma(v(Sn,16), v(KF+4*kcur,4), q, v(NEGM,16)))
            if u < 6: P(kread(u + 2, 1 - kcur))
        P.add(e[6:8]); P.add(c[0:4]); P.add(e[8:10])
        P(mfma(acc, v(VF+8*vb,4), v(Pp,4), acc))
        P.add(e[10:16]); P.add(c[4:8])
        pend = [mfma(acc, v(VF+8*vb+4,4), v(Pp+4,4), acc)]
        ev(u)
    P.add(pend)
    assert not events, events
    R.stamp()

E = Prog()
E(f"""
s_cmp_ge_u32 s2, 256
s_cbranch_scc1 L_end
s_load_dwordx16 s[4:19], s[0:1], 0
s_load_dwordx4 s[20:23], s[0:1], 64
s_getpc_b64 {s(S_T2,2)}
v_and_b32 {v(V_LANE)}, 63, v0
v_lshrrev_b32 v4, 6, v0
s_lshr_b32 {s(S_T0)}, s2, 3
s_and_b32 {s(S_T1)}, {s(S_T0)}, 3
s_lshl_b32 {s(S_T1)}, {s(S_T1)}, 13
v_lshlrev_b32 v5, 7, {v(V_LANE)}
v_add_u32 v5, {s(S_T1)}, v5
v_readfirstlane_b32 {s(S_MX)}, v4
global_load_dword v13, v5, {s(S_T2,2)}
v_lshlrev_b32 {v(V_L16)}, 4, {v(V_LANE)}
""")
if OPT["stamps"] or OPT["amp"] >= 0:
    E(f"v_mov_b32 {v(V_STAMP)}, 0")
    E(f"s_memrealtime {s(S_TM,2)}\ns_waitcnt lgkmcnt(0)\nv_writelane_b32 {v(V_STAMP)}, {s(S_TM)}, {62 if OPT['stamps'] else 0}")
if OPT["stamps"]:
    E(f"s_memtime {s(S_TM,2)}\ns_waitcnt lgkmcnt(0)\nv_writelane_b32 {v(V_STAMP)}, {s(S_TM)}, 0")
E(f"""
s_and_b32 {s(S_W4)}, {s(S_MX)}, 3
s_and_b32 {s(S_T1)}, s2, 1
s_lshl_b32 {s(S_HG)}, {s(S_T1)}, 2
s_and_b32 {s(S_K)}, {s(S_T0)}, 3
s_add_u32 {s(S_HG)}, {s(S_HG)}, {s(S_K)}
s_bfe_u32 {s(S_K)}, s2, 0x20001
s_lshl_b32 {s(S_K)}, {s(S_K)}, 3
s_lshr_b32 {s(S_ROT)}, {s(S_T0)}, 2
s_add_u32 {s(S_RB)}, {s(S_K)}, {s(S_ROT)}
s_and_b32 {s(S_ROT)}, {s(S_ROT)}, {OPT["rotmask"]}
s_lshl_b32 {s(S_T1)}, {s(S_T1)}, 2
s_add_u32 {s(S_RB3)}, {s(S_K)}, {s(S_T1)}
s_lshr_b32 {s(S_T1)}, {s(S_T0)}, 3
s_add_u32 {s(S_RB3)}, {s(S_RB3)}, {s(S_T1)}
s_and_b32 {s(S_CB)}, {s(S_T0)}, 7
s_lshl_b32 {s(S_HEAD)}, {s(S_HG)}, 2
s_add_u32 {s(S_HEAD)}, {s(S_HEAD)}, {s(S_W4)}
s_mov_b32 {s(S_LO16)}, 0xffff
s_mov_b32 {s(S_LO16+1)}, 0xffff
s_cmp_lt_u32 {s(S_MX)}, 4
s_cbranch_scc1 L_crole
""")

def stage_of(n): return n >> 1 if n < 32 else 16 + ((n - 32) >> 2)
def first_of_stage(n): return n < 64 and (n == 0 or stage_of(n) != stage_of(n - 1))

H = Role("H"); P = H.P
VX, VW1, VW2 = 160, 162, 166
V_AXW, V_AG, V_GPW, GACC, XW, GF = 170, 171, 172, 174, 176, 184
WOA = 192
i3, i4, p7, t0, t1, t2 = 32, 33, 34, 35, 36, 37
P(f"""
v_lshrrev_b32 {v(i3)}, 3, {v(V_LANE)}
v_lshrrev_b32 {v(i4)}, 4, {v(V_LANE)}
v_and_b32 {v(p7)}, 7, {v(V_LANE)}
s_lshl_b32 {s(S_T0)}, {s(S_W4)}, 4
v_add_u32 {v(t0)}, {s(S_T0)}, {v(i3)}
v_lshlrev_b32 {v(t0)}, 10, {v(t0)}
v_xor_b32 {v(t1)}, {v(p7)}, {v(i4)}
v_lshl_add_u32 {v(VX)}, {v(t1)}, 4, {v(t0)}
v_xor_b32 {v(VX+1)}, 64, {v(VX)}
v_add_u32 {v(VX+1)}, {0x2000 - 1024}, {v(VX+1)}
s_lshr_b32 {s(S_T0)}, {s(S_W4)}, 1
s_and_b32 {s(S_T1)}, {s(S_W4)}, 1
s_lshl_b32 {s(S_K)}, {s(S_T0)}, 4
v_add_u32 {v(t0)}, {s(S_K)}, {v(i4)}
v_mul_u32_u24 {v(t0)}, 0xc00, {v(t0)}
v_lshlrev_b32 {v(t1)}, 1, {v(i4)}
v_xor_b32 {v(t1)}, {v(t1)}, {v(p7)}
v_lshl_add_u32 {v(t0)}, {v(t1)}, 4, {v(t0)}
v_and_b32 {v(t1)}, 1, {v(i3)}
v_xor_b32 {v(t1)}, {s(S_T1)}, {v(t1)}
v_lshlrev_b32 {v(t1)}, 10, {v(t1)}
s_lshl_b32 {s(S_T2)}, {s(S_HG)}, 7
s_add_u32 {s(S_K)}, {s(S_T2)}, 1024
v_add3_u32 {v(VW1)}, {v(t0)}, {v(t1)}, {s(S_K)}
v_add_u32 {v(VW1+1)}, {12288 - 1024}, {v(VW1)}
v_add_u32 {v(VW1+2)}, {2*(12288 - 1024)}, {v(VW1)}
v_add_u32 {v(VW1+3)}, {3*(12288 - 1024)}, {v(VW1)}
s_lshl_b32 {s(S_MW)}, {s(S_T1)}, 13
s_lshl_b32 {s(S_K)}, {s(S_T0)}, 12
s_add_u32 {s(S_MW)}, {s(S_MW)}, {s(S_K)}
s_lshl_b32 {s(S_MX)}, {s(S_W4)}, 11
s_add_u32 {s(S_MX)}, {s(S_MX)}, {L_X}
s_lshl_b32 {s(S_K)}, {s(S_ROT)}, 3
v_add_u32 {v(t2)}, {s(S_K)}, {v(V_LANE)}
v_and_b32 {v(t2)}, 63, {v(t2)}
v_lshlrev_b32 {v(t2)}, 4, {v(t2)}
s_waitcnt lgkmcnt(0)
""")
P.add(srd(S_X, 4, 2097152))
P(f"""s_cmp_eq_u32 {s(S_T1)}, 0
s_cselect_b32 {s(S_W)}, s6, s12
s_cselect_b32 {s(S_W+1)}, s7, s13
s_mov_b32 {s(S_W+2)}, 1572864
s_mov_b32 {s(S_W+3)}, 0x20000""")
H.stamp()
def dma(voff, rsrc, soff, imm, tag, flags=""):
    return Ins(f"buffer_load_dwordx4 {v(voff)}, {s(rsrc,4)}, {soff} offen{' offset:%d' % imm if imm else ''}{flags} lds", tag)
def x_dma(j):
    return [f"s_add_u32 {s(S_K)}, {s(S_ROT)}, {j}", f"s_and_b32 {s(S_K)}, {s(S_K)}, 7", f"s_lshl_b32 {s(S_K)}, {s(S_K)}, 7",
            f"s_lshl_b32 {s(S_T2)}, {s(S_RB)}, 16", f"s_add_u32 m0, {s(S_MX)}, {j*8192}", f"s_add_u32 {s(S_K)}, {s(S_K)}, {s(S_T2)}",
            dma(VX, S_X, s(S_K), 0, f"x{j}"), dma(VX+1, S_X, s(S_K), 1024, f"x{j}")]
def w_dma(S):
    if S < 16:
        o = [f"s_lshl_b32 {s(S_T3)}, {s(S_ROT)}, 1", f"s_add_u32 {s(S_T3)}, {s(S_T3)}, {S}", f"s_and_b32 {s(S_T3)}, {s(S_T3)}, 15"]
    else:
        o = [f"s_add_u32 {s(S_T3)}, {s(S_ROT)}, {S-16}", f"s_and_b32 {s(S_T3)}, {s(S_T3)}, 7"]
    o += [f"s_add_u32 m0, {s(S_MW)}, {(S % NSLOT)*SLOT}", f"s_mul_i32 {s(S_T3)}, {s(S_T3)}, {(32 if S < 16 else 64)*3072}"]
    return o + [dma((VW1 if S < 16 else VW2) + t, S_W, s(S_T3), t*1024, f"w{S}") for t in range(4)]
P.add(x_dma(0)); P.add(w_dma(0))
P.add(srd(S_G, 16, 1024)); P(f"s_mov_b32 m0, {L_G}"); P.add(dma(t2, S_G, "0", 0, "x0"))
P.add(w_dma(1))
h_misc = lines(f"""
s_lshr_b32 {s(S_T0)}, {s(S_W4)}, 1
s_and_b32 {s(S_T1)}, {s(S_W4)}, 1
s_lshl_b32 {s(S_T0)}, {s(S_T0)}, 5
v_add_u32 {v(t0)}, {s(S_T0)}, {v(i3)}
v_mul_u32_u24 {v(t0)}, 0xc00, {v(t0)}
v_and_b32 {v(t1)}, 1, {v(i4)}
s_lshl_b32 {s(S_T1)}, {s(S_T1)}, 1
v_add_u32 {v(t1)}, {s(S_T1)}, {v(t1)}
v_lshlrev_b32 {v(t1)}, 1, {v(t1)}
v_xor_b32 {v(t1)}, {v(t1)}, {v(p7)}
v_lshl_add_u32 {v(t0)}, {v(t1)}, 4, {v(t0)}
s_lshl_b32 {s(S_T0)}, {s(S_HG)}, 7
v_add_u32 {v(VW2)}, {s(S_T0)}, {v(t0)}
v_add_u32 {v(VW2+1)}, {24576 - 1024}, {v(VW2)}
v_add_u32 {v(VW2+2)}, {2*(24576 - 1024)}, {v(VW2)}
v_add_u32 {v(VW2+3)}, {3*(24576 - 1024)}, {v(VW2)}
v_and_b32 {v(t0)}, 31, {v(V_LANE)}
v_lshrrev_b32 {v(t1)}, 5, {v(V_LANE)}
s_lshl_b32 {s(S_T0)}, {s(S_W4)}, 1
v_add_u32 {v(t1)}, {s(S_T0)}, {v(t1)}
v_lshlrev_b32 {v(V_AG)}, 4, {v(t1)}
v_add_u32 {v(V_AG)}, {L_G}, {v(V_AG)}
v_bfe_u32 {v(t2)}, {v(t0)}, 1, 3
v_xor_b32 {v(t1)}, {v(t1)}, {v(t2)}
v_lshlrev_b32 {v(t1)}, 4, {v(t1)}
v_lshl_add_u32 {v(t1)}, {v(t0)}, 7, {v(t1)}
v_add_u32 {v(V_AXW)}, {L_X}, {v(t1)}
v_lshlrev_b32 {v(t0)}, 4, {v(t0)}
s_lshl_b32 {s(S_T0)}, {s(S_W4)}, 2
s_add_u32 {s(S_T0)}, {s(S_T0)}, {L_GP}
v_add_u32 {v(V_GPW)}, {s(S_T0)}, {v(t0)}
v_mov_b32 {v(GACC)}, 0
v_mov_b32 {v(GACC+1)}, 0
""") + srd(S_WS, 22, WS_SIZE) + srd(S_DBG, 20, 256)
P.add(h_misc)
def gate_chunk(j):
    o = [f"ds_read_b128 {v(GF,4)}, {v(V_AG)} offset:{j*128}",
         f"ds_read_b128 {v(XW,4)}, {v(V_AXW)} offset:{j*8192}", f"ds_read_b128 {v(XW+4,4)}, {v(V_AXW)} offset:{j*8192+4096}"]
    for i in range(4):
        for tt in range(2):
            o.append(f"v_dot2_f32_bf16 {v(GACC+tt)}, {v(XW+4*tt+i)}, {v(GF+i)}, {v(GACC+tt)}")
    return o
issued_w, issued_x = 2, 1
for S in range(25):
    if S < 24:
        P.add(WaitTag(f"w{S}", f"x{S >> 1}" if S < 16 else "none"))
    P.add(WaitLds()); P("s_barrier")
    if OPT["fine"] or S in (0, 16, 24): H.stamp()
    top = {0: 3}.get(S, S + 4)
    while issued_w <= min(top, 23):
        if issued_w < 16 and issued_w % 2 == 0 and issued_x <= issued_w // 2:
            P.add(x_dma(issued_x)); issued_x += 1
        P.add(w_dma(issued_w)); issued_w += 1
    if S < 16 and S % 2 == 1:
        P.add(gate_chunk(S >> 1))
    if S == 15:
        for tt in range(2):
            P(f"v_mov_b32 {v(XW+tt)}, {v(GACC+tt)}")
        for tt in range(2):
            P(f"v_permlane32_swap_b32 {v(GACC+tt)}, {v(XW+tt)}")
        for tt in range(2):
            P(f"v_add_f32 {v(GACC+tt)}, {v(GACC+tt)}, {v(XW+tt)}\nds_write_b32 {v(V_GPW)}, {v(GACC+tt)} offset:{512*tt}")
    if S == 8:
        P(ep_load)
    if S == 19:
        P.add(attn_setup(1, 32))
        P.add(srd(S_WOA, 8, 524288) + srd(S_WOB, 14, 524288) + srd(S_OUT, 18, 2097152))
    if S == 20:
        P(f"v_and_b32 {v(32)}, 31, {v(V_LANE)}\nv_lshlrev_b32 {v(32)}, 4, {v(32)}\nv_add_u32 {v(32)}, {L_GP}, {v(32)}")
        P.add(gate_finish([1], 32, 36))
        H.poll(f"v_cmp_ne_u64 vcc, 0, {v(EP,2)}", ep_load)
        VWO, VKF, V1A, V1D = 160, 161, 162, 164
        P(f"""v_lshrrev_b32 v32, 3, {v(V_LANE)}
v_bfe_u32 v33, {v(V_LANE)}, 4, 1
v_lshlrev_b32 v33, 2, v33
v_and_b32 v34, 7, {v(V_LANE)}
v_xor_b32 v33, v33, v34
v_lshlrev_b32 v33, 4, v33
v_lshl_add_u32 {v(VWO)}, v32, 10, v33
v_and_b32 {v(VKF)}, 32, {v(V_LANE)}
v_lshlrev_b32 {v(VKF)}, 4, {v(VKF)}
v_min_u32 v32, 9, {v(V_LANE)}
v_mul_u32_u24 {v(V1A)}, {KVS}, v32
s_mul_i32 {s(S_MW)}, {s(S_W4)}, {KVH}
s_add_u32 {s(S_T0)}, {s(S_MW)}, 2048
v_add_u32 {v(V1A)}, {s(S_T0)}, {v(V1A)}
s_lshl_b32 {s(S_T0)}, {s(S_RB)}, 1
v_add_u32 v32, {s(S_T0)}, v32
v_cmp_le_u32 vcc, 8, v32
v_mov_b32 v33, {hex(ONES)}
v_cndmask_b32 {v(V1D)}, 0, v33, vcc
v_and_b32 {v(V_FOFF)}, 7, {v(V_LANE)}
v_min_u32 {v(V_FOFF)}, 4, {v(V_FOFF)}
s_sub_u32 {s(S_T1)}, {s(S_RB)}, 4
v_add_u32 {v(V_FOFF)}, {s(S_T1)}, {v(V_FOFF)}
v_max_i32 {v(V_FOFF)}, 0, {v(V_FOFF)}
v_lshlrev_b32 {v(V_FOFF)}, 3, {v(V_FOFF)}
v_mov_b32 {v(V1D+1)}, {v(V1D)}
v_mov_b32 {v(V1D+2)}, {v(V1D)}
v_mov_b32 {v(V1D+3)}, {v(V1D)}
s_lshl_b32 {s(S_K)}, {s(S_HEAD)}, 8
s_add_u32 {s(S_K)}, {s(S_K)}, {WS_FKV}""")
    if S == 23:
        P(flag_load)
P(f"ds_write_b128 {v(V1A)}, {v(V1D,4)}")
H.poll(flag_cmp, flag_load)
H.stamp()
def gather(special):
    o = [f"s_lshl_b32 {s(S_K)}, {s(S_HEAD)}, 17", f"s_lshl_b32 {s(S_T1)}, {s(S_RB)}, 12",
         f"s_add_u32 {s(S_T2)}, {s(S_K)}, {s(S_T1)}", f"s_sub_u32 {s(S_T2)}, {s(S_T2)}, {8*2048}"]
    for u in (9, 1, 8, 0, 2, 3, 4, 5, 6, 7):
        o += [f"s_add_u32 {s(S_T0)}, {s(S_T2)}, {u*2048}", f"s_add_u32 m0, {s(S_MW)}, {u*KVS}"]
        if special and u < 8:
            o += [f"s_cmp_ge_u32 {s(S_RB)}, {(8-u+1)//2}", f"s_cbranch_scc1 L_gk{u}",
                  dma(VKF, S_WS, s(S_K), 0, None, " sc1"), f"s_mov_b32 {s(S_T0)}, {WS_SIZE}", f"s_branch L_gk{u}e", f"L_gk{u}:",
                  dma(V_L16, S_WS, s(S_T0), 0, None, " sc1"), f"L_gk{u}e:"]
        else:
            o += ["s_nop 0"] if special else []
            o += [dma(V_L16, S_WS, s(S_T0), 0, "kv", " sc1")]
        o += [dma(V_L16, S_WS, s(S_T0), 1024, "kv", " sc1")]
    return o
P(f"s_cmp_lt_u32 {s(S_RB)}, 4\ns_cbranch_scc1 L_gspecial")
P.add(gather(False))
P("L_gdone:")
txt_of = lambda x: x.text if isinstance(x, Ins) else x
special_txt = "L_gspecial:\n" + "\n".join(("" if txt_of(x).endswith(":") else "    ") + txt_of(x) for x in gather(True)) + "\n    s_branch L_gdone\n"
def wo_dma(rsrc, tag):
    o = [f"s_lshl_b32 {s(S_T3)}, {s(S_W4)}, 17", f"s_lshl_b32 {s(S_T2)}, {s(S_CB)}, 7", f"s_add_u32 {s(S_T3)}, {s(S_T3)}, {s(S_T2)}",
         f"s_lshl_b32 {s(S_MX)}, {s(S_W4)}, 14", f"s_add_u32 {s(S_MX)}, {s(S_MX)}, {L_WO}"]
    for t in range(16):
        o += [f"s_add_u32 m0, {s(S_MX)}, {t*1024}"] + ([f"s_add_u32 {s(S_T3)}, {s(S_T3)}, 8192"] if t else [])
        o += [dma(VWO, rsrc, s(S_T3), 0, tag)]
    return o
P.add(wo_dma(S_WOA, "woa"))
B0, B1 = 168, 169
P(f"""v_lshrrev_b32 v32, 5, {v(V_LANE)}
v_bfe_u32 v33, {v(V_LANE)}, 2, 2
v_lshl_add_u32 v32, v32, 2, v33
v_and_b32 v33, 2, v33
v_bfe_u32 v34, {v(V_LANE)}, 4, 1
v_xor_b32 v33, v33, v34
s_and_b32 {s(S_T1)}, {s(S_W4)}, 1
s_lshl_b32 {s(S_T1)}, {s(S_T1)}, 1
v_xor_b32 v33, {s(S_T1)}, v33
v_lshlrev_b32 v33, 5, v33
v_lshl_add_u32 v32, v32, 7, v33
v_and_b32 v33, 3, {v(V_LANE)}
v_lshl_add_u32 v32, v33, 3, v32
v_add_u32 {v(B0)}, {s(S_MX)}, v32
v_xor_b32 {v(B1)}, 64, {v(B0)}
s_lshl_b32 {s(S_T0)}, {s(S_W4)}, 10
s_add_u32 {s(S_T0)}, {s(S_T0)}, {L_Q}
v_add_u32 v32, {s(S_T0)}, {v(V_L16)}""")
P.add(WaitTag("kv")); P.add(WaitLds()); P("s_barrier")
H.stamp()
P(f"ds_read_b128 {v(QA,4)}, v32")
wo_read = lambda dst, hs: [f"ds_read_b64_tr_b16 {v(dst+4*ct+2*j,2)}, {v((B0,B1)[ct])} offset:{hs*2048+j*1024}" for ct in range(2) for j in range(2)]
def h_woa(lo, hi):
    def f():
        P.add(WaitTag("woa"))
        for hs in range(lo, hi): P.add(wo_read(WOA + 8*hs, hs))
    return f
def o_poll_setup(br):
    if br:
        o = [f"v_and_b32 {v(V_FOFF)}, 7, {v(V_LANE)}", f"v_lshlrev_b32 {v(V_FOFF)}, 3, {v(V_FOFF)}", f"s_lshl_b32 {s(S_K)}, {s(S_RB3)}, 8"]
    else:
        o = [f"v_and_b32 {v(V_FOFF)}, 7, {v(V_LANE)}", f"v_bfe_u32 v0, {v(V_LANE)}, 3, 1", f"v_lshl_add_u32 {v(V_FOFF)}, v0, 5, {v(V_FOFF)}",
             f"v_lshlrev_b32 {v(V_FOFF)}, 3, {v(V_FOFF)}", f"s_lshl_b32 {s(S_K)}, {s(S_RB3)}, 9"]
    return o + [f"s_lshl_b32 {s(S_T1)}, {s(S_W4)}, 6", f"s_add_u32 {s(S_K)}, {s(S_K)}, {s(S_T1)}",
                f"s_add_u32 {s(S_K)}, {s(S_K)}, {WS_FOB if br else WS_FOA}", flag_load]
window_attention(H, 1, {1: h_woa(0, 3), 2: h_woa(3, 6), 3: h_woa(6, 8),
                        4: lambda: (P.add(WaitLds()), P.add(wo_dma(S_WOB, "wob"))),
                        6: lambda: P.add(o_poll_setup(1))})
OF, ACC3, WBF = 96, 32, 176
OPK = 164
P.add(o_pack(OACC, 0, 8, [f"v_mul_f32 {v(TMP)}, {v(TMP)}, {v(G0+1)}"], OPK, TMP))
P.add(o_store(0, 1, OPK, "oa"))
def o_gather(br):
    o = [f"s_lshl_b32 {s(S_T0)}, {s(S_RB3)}, 16", f"s_lshl_b32 {s(S_T1)}, {s(S_W4)}, 13", f"s_add_u32 {s(S_T0)}, {s(S_T0)}, {s(S_T1)}",
         f"s_lshr_b32 {s(S_T1)}, {s(S_W4)}, 1", f"s_lshl_b32 {s(S_T1)}, {s(S_T1)}, 15", f"s_add_u32 {s(S_T0)}, {s(S_T0)}, {s(S_T1)}",
         f"s_add_u32 {s(S_T0)}, {s(S_T0)}, {WS_O + br*(2<<20)}", f"s_xor_b32 {s(S_T1)}, {s(S_T0)}, 32768"]
    for hs in range(8):
        if hs == 4:
            o += [f"s_add_u32 {s(S_T0)}, {s(S_T0)}, 4096", f"s_add_u32 {s(S_T1)}, {s(S_T1)}, 4096"]
        o += [ws_ld(v(OF+8*hs+4*tt,4), V_L16, s((S_T0, S_T1)[tt]), (hs & 3)*1024, f"og{br}") for tt in range(2)]
    return o
H.poll(flag_cmp, flag_load)
H.stamp()
P.add(o_gather(1))
P(f"s_lshl_b32 {s(S_T2)}, {s(S_RB)}, 1\ns_add_u32 {s(S_T2)}, {s(S_T2)}, 1")
P.add(WaitTag("wob"))
P.add(wo_read(WBF, 0))
for hs in range(8):
    b = hs & 1
    rd = wo_read(WBF + 8*(1-b), hs + 1) if hs < 7 else []
    for i in range(4):
        P(mfma(v(ACC3+16*i,16), v(WBF+8*b+4*(i & 1),4), v(OF+8*hs+4*(i >> 1),4), "0" if hs == 0 else v(ACC3+16*i,16)))
        P.add(rd[i:i+1])
    if hs == 0:
        P.add(flag_store("oa", WS_FOA, S_T2, 5, S_HEAD))
        P.add(o_poll_setup(0))
H.stamp()
H.poll(flag_cmp, flag_load)
H.stamp()
P.add(o_gather(0))
EXW, EXR, VOUT = 160, 163, 164
P(f"""s_mul_i32 {s(S_T0)}, {s(S_W4)}, 12288
v_add_u32 {v(EXR)}, {s(S_T0)}, {v(V_L16)}""")
for i in range(1, 4):
    P(f"s_xor_b32 {s(S_T0)}, {s(S_W4)}, {i}\ns_mul_i32 {s(S_T0)}, {s(S_T0)}, 12288\nv_add_u32 {v(EXW+i-1)}, {s(S_T0)}, {v(V_L16)}")
P(f"""v_and_b32 {v(VOUT)}, 31, {v(V_LANE)}
v_lshlrev_b32 {v(VOUT)}, 10, {v(VOUT)}
v_lshrrev_b32 v0, 5, {v(V_LANE)}
v_lshl_add_u32 {v(VOUT)}, v0, 4, {v(VOUT)}
s_lshl_b32 {s(S_T0)}, {s(S_RB3)}, 16
s_lshr_b32 {s(S_T1)}, {s(S_W4)}, 1
s_lshl_b32 {s(S_T1)}, {s(S_T1)}, 15
s_add_u32 {s(S_T0)}, {s(S_T0)}, {s(S_T1)}
s_lshl_b32 {s(S_T1)}, {s(S_CB)}, 7
s_add_u32 {s(S_T0)}, {s(S_T0)}, {s(S_T1)}
s_and_b32 {s(S_T1)}, {s(S_W4)}, 1
s_lshl_b32 {s(S_T1)}, {s(S_T1)}, 6
s_add_u32 {s(S_T0)}, {s(S_T0)}, {s(S_T1)}
s_barrier""")
order = [(hs, i) for hs in range(7) for i in range(4)] + [(7, i) for i in (1, 2, 3, 0)]
for hs, i in order:
    P(mfma(v(ACC3+16*i,16), v(WOA+8*hs+4*(i & 1),4), v(OF+8*hs+4*(i >> 1),4), v(ACC3+16*i,16)))
H.stamp()
for i in range(1, 4):
    P.add([f"ds_write_b128 {v(EXW+i-1)}, {v(ACC3+16*i+4*q,4)} offset:{(i-1)*4096+q*1024}" for q in range(4)])
P.add(WaitLds()); P("s_barrier")
for q in range(4):
    P.add([f"ds_read_b128 {v(OF+16*i+4*q,4)}, {v(EXR)} offset:{i*4096+q*1024}" for i in range(3)])
for q in range(4):
    for i in range(3):
        P.add([f"v_pk_add_f32 {v(ACC3+4*q+2*k,2)}, {v(ACC3+4*q+2*k,2)}, {v(OF+16*i+4*q+2*k,2)}" for k in range(2)])
    P.add([f"v_cvt_pk_bf16_f32 {v(WBF+2*q+k)}, {v(ACC3+4*q+2*k)}, {v(ACC3+4*q+2*k+1)}" for k in range(2)])
    if q & 1:
        hf = q >> 1
        P(f"v_permlane32_swap_b32 {v(WBF+4*hf)}, {v(WBF+4*hf+2)}\nv_permlane32_swap_b32 {v(WBF+4*hf+1)}, {v(WBF+4*hf+3)}")
        P(f"buffer_store_dwordx4 {v(WBF+4*hf,4)}, {v(VOUT)}, {s(S_OUT,4)}, {s(S_T0)} offen{' offset:32' if hf else ''}{('', ' sc1', ' nt', ' sc0 sc1')[OPT['outsc']]}")
H.stamp()
H.finish()

C = Role("C"); P = C.P
T1, T3, T2 = 32, 64, 96
XB, WB = 128, 152
V_AX, V_T1L, V_T1H, V_T3L, V_T3H, V_T2L, V_T2H = 176, 180, 181, 182, 183, 184, 185
V_LO, V_HI, V_GPR, V_QW = 186, 187, 188, 189
CM, KA, KB, VPK, VB, QB, KBH, VBH = 192, 208, 216, 224, 32, 240, 248, 252
r5, hh, rr, cc, nh, u0, u1, cm = 128, 129, 130, 131, 132, 133, 134, 135
P("L_crole:")
if OPT["prio"]: P("s_setprio 1")
P(f"""
v_and_b32 {v(r5)}, 31, {v(V_LANE)}
v_lshrrev_b32 {v(hh)}, 5, {v(V_LANE)}
v_bfe_u32 {v(u0)}, {v(r5)}, 1, 3
v_xor_b32 {v(u0)}, {v(u0)}, {v(hh)}
v_lshlrev_b32 {v(u0)}, 4, {v(u0)}
v_lshl_add_u32 {v(u0)}, {v(r5)}, 7, {v(u0)}
v_add_u32 {v(V_AX)}, {L_X}, {v(u0)}
v_xor_b32 {v(V_AX+1)}, 32, {v(V_AX)}
v_xor_b32 {v(V_AX+2)}, 64, {v(V_AX)}
v_xor_b32 {v(V_AX+3)}, 0x60, {v(V_AX)}
v_bfe_u32 {v(rr)}, {v(V_LANE)}, 2, 2
v_and_b32 {v(cc)}, 3, {v(V_LANE)}
v_bfe_u32 {v(nh)}, {v(V_LANE)}, 4, 1
v_lshl_add_u32 {v(u0)}, {v(hh)}, 3, {v(rr)}
v_xor_b32 {v(u1)}, {s(S_W4)}, {v(rr)}
v_lshlrev_b32 {v(u1)}, 5, {v(u1)}
v_lshl_add_u32 {v(u1)}, {v(cc)}, 3, {v(u1)}
v_lshl_add_u32 {v(u1)}, {v(u0)}, 8, {v(u1)}
v_mul_u32_u24 {v(V_T1L)}, 0x2080, {v(nh)}
v_add_u32 {v(V_T1L)}, {v(V_T1L)}, {v(u1)}
v_add_u32 {v(V_T1H)}, 0x10000, {v(V_T1L)}
v_xor_b32 {v(V_T3L)}, 0x80, {v(V_T1L)}
v_xor_b32 {v(V_T3H)}, 0x80, {v(V_T1H)}
v_lshrrev_b32 {v(u1)}, 1, {v(rr)}
v_lshl_add_u32 {v(u1)}, {v(nh)}, 1, {v(u1)}
v_xor_b32 {v(u1)}, {s(S_W4)}, {v(u1)}
v_lshlrev_b32 {v(u1)}, 5, {v(u1)}
v_lshl_add_u32 {v(u1)}, {v(cc)}, 3, {v(u1)}
v_lshl_add_u32 {v(u1)}, {v(u0)}, 7, {v(u1)}
v_lshl_add_u32 {v(V_T2L)}, {v(nh)}, 13, {v(u1)}
v_add_u32 {v(V_T2H)}, 0x10000, {v(V_T2L)}
v_and_b32 {v(u0)}, 15, {v(V_LANE)}
v_lshlrev_b32 {v(u0)}, 4, {v(u0)}
v_lshl_add_u32 {v(u0)}, {v(hh)}, 8, {v(u0)}
v_lshl_add_u32 {v(V_LO)}, {v(nh)}, 31, {v(u0)}
v_xor_b32 {v(V_HI)}, {OOB}, {v(V_LO)}
v_lshlrev_b32 {v(V_GPR)}, 4, {v(r5)}
v_add_u32 {v(V_GPR)}, {L_GP}, {v(V_GPR)}
s_lshl_b32 {s(S_T2)}, {s(S_W4)}, 10
s_add_u32 {s(S_T2)}, {s(S_T2)}, {L_Q}
v_add_u32 {v(V_QW)}, {s(S_T2)}, {v(V_L16)}
v_lshlrev_b32 {v(u0)}, 2, {v(hh)}
v_sub_u32 {v(cm)}, {v(r5)}, {v(u0)}
s_waitcnt lgkmcnt(0)
s_memrealtime {s(S_TM,2)}
s_mov_b32 {s(S_C)}, {fhex(QK_SCALE)}
s_mov_b32 {s(S_C+1)}, {fhex(QK_SCALE)}
""")
def l2_prefetch():
    a, b = 140, 141
    o = lines(f"""s_lshr_b32 {s(S_T0)}, s2, 3
s_and_b32 {s(S_T1)}, {s(S_HG)}, 4
s_lshl_b32 {s(S_T1)}, {s(S_T1)}, 7
v_and_b32 {v(a)}, 3, {v(V_LANE)}
v_lshlrev_b32 {v(a)}, 7, {v(a)}
s_cmp_eq_u32 {s(S_W4)}, 2
s_cbranch_scc1 L_pfx
s_cmp_eq_u32 {s(S_W4)}, 3
s_cbranch_scc1 L_pfq
s_cmp_eq_u32 {s(S_W4)}, 0
s_cselect_b32 {s(S_W)}, s6, s12
s_cselect_b32 {s(S_W+1)}, s7, s13
s_mov_b32 {s(S_W+2)}, 1572864
s_mov_b32 {s(S_W+3)}, 0x20000
v_bfe_u32 {v(b)}, {v(V_LANE)}, 2, 1
v_lshl_add_u32 {v(a)}, {v(b)}, 10, {v(a)}
v_lshrrev_b32 {v(b)}, 3, {v(V_LANE)}
v_mul_u32_u24 {v(b)}, 0xc00, {v(b)}
v_add_u32 {v(a)}, {v(a)}, {v(b)}
s_mul_i32 {s(S_T0)}, {s(S_T0)}, {8*3072}
s_add_u32 {s(S_T0)}, {s(S_T0)}, {s(S_T1)}
s_add_u32 {s(S_T0)}, {s(S_T0)}, 1024
buffer_load_dword v190, {v(a)}, {s(S_W,4)}, {s(S_T0)} offen
s_add_u32 {s(S_T0)}, {s(S_T0)}, {256*3072}
buffer_load_dword v191, {v(a)}, {s(S_W,4)}, {s(S_T0)} offen
s_branch L_pfe
L_pfx:
s_mov_b32 {s(S_W)}, s4
s_mov_b32 {s(S_W+1)}, s5
s_mov_b32 {s(S_W+2)}, 2097152
s_mov_b32 {s(S_W+3)}, 0x20000
v_lshrrev_b32 {v(b)}, 2, {v(V_LANE)}
v_lshl_add_u32 {v(a)}, {v(b)}, 10, {v(a)}
s_lshl_b32 {s(S_T0)}, {s(S_T0)}, 14
s_and_b32 {s(S_T1)}, {s(S_RB)}, 24
s_lshl_b32 {s(S_T1)}, {s(S_T1)}, 16
s_add_u32 {s(S_T0)}, {s(S_T0)}, {s(S_T1)}
buffer_load_dword v190, {v(a)}, {s(S_W,4)}, {s(S_T0)} offen
buffer_load_dword v191, {v(a)}, {s(S_W,4)}, {s(S_T0)} offen offset:512
s_branch L_pfe
L_pfq:
s_mov_b32 {s(S_W)}, s6
s_mov_b32 {s(S_W+1)}, s7
s_mov_b32 {s(S_W+2)}, 1572864
s_mov_b32 {s(S_W+3)}, 0x20000
v_lshrrev_b32 {v(b)}, 2, {v(V_LANE)}
v_mul_u32_u24 {v(b)}, 0xc00, {v(b)}
v_add_u32 {v(a)}, {v(a)}, {v(b)}
s_mul_i32 {s(S_T0)}, {s(S_T0)}, {16*3072}
s_add_u32 {s(S_T0)}, {s(S_T0)}, {s(S_T1)}
buffer_load_dword v190, {v(a)}, {s(S_W,4)}, {s(S_T0)} offen
s_mov_b32 {s(S_W)}, s12
s_mov_b32 {s(S_W+1)}, s13
buffer_load_dword v191, {v(a)}, {s(S_W,4)}, {s(S_T0)} offen
L_pfe:""")
    P.add(Raw("\n".join(("" if l.endswith(":") else "    ") + l for l in o)))
    P("s_nop 0")
if OPT["pf"] == 1: l2_prefetch()
P.add(srd(S_WS, 22, WS_SIZE) + srd(S_DBG, 20, 256))
P(f"""s_cmp_eq_u32 s2, 0
s_cselect_b32 {s(S_T2)}, 0, {OOB}
v_lshlrev_b32 v5, 8, v0
v_or_b32 v5, {s(S_T2)}, v5
s_waitcnt lgkmcnt(0)
v_mov_b32 {v(EP)}, {s(S_TM)}
v_mov_b32 {v(EP+1)}, {s(S_TM+1)}
buffer_store_dwordx2 {v(EP,2)}, v5, {s(S_DBG,4)}, 0 offen sc1""")
for q in range(16):
    P(f"""v_subrev_u32 {v(CM+q)}, {8*(q>>2)+(q&3)}, {v(cm)}
v_and_b32 {v(CM+q)}, 17, {v(CM+q)}
v_cvt_f32_u32 {v(CM+q)}, {v(CM+q)}
v_mul_f32 {v(CM+q)}, {hex(NEG_BIG)}, {v(CM+q)}""")
P.add(attn_setup(0, 136))
P.add([f"v_mov_b32 {v(VBH+i)}, {hex(ONES)}" for i in range(4)])
if OPT["pf"] == 2: l2_prefetch()
C.stamp()

def frag_reads(n):
    b, m = n % 3, n & 31
    j, ux = m >> 2, m & 3
    base = (stage_of(n) % NSLOT) * SLOT
    hi = base >= 65536; off = base - (65536 if hi else 0)
    x = [f"ds_read_b128 {v(XB+8*b+4*tt,4)}, {v(V_AX+ux)} offset:{j*8192+tt*4096}" for tt in range(2)]
    if n < 32:
        w = [f"ds_read_b64_tr_b16 {v(WB+8*b+4*t+2*qd,2)}, {v(((V_T1L,V_T1H),(V_T3L,V_T3H))[t][hi])} offset:{off+(n&1)*4096+qd*1024}"
             for t in range(2) for qd in range(2)]
        return [w[0], x[0], w[1], w[2], x[1], w[3]]
    w = [f"ds_read_b64_tr_b16 {v(WB+8*b+2*qd,2)}, {v((V_T2L,V_T2H)[hi])} offset:{off+ux*2048+qd*512}" for qd in range(2)]
    return [w[0], x[0], w[1], x[1]]
def step_mfmas(n):
    b = n % 3
    x = lambda tt: v(XB+8*b+4*tt, 4)
    c = lambda r: "0" if n in (0, 32) else v(r, 16)
    if n < 32:
        return [mfma(v(T1,16), v(WB+8*b,4), x(0), c(T1)), mfma(v(T3,16), x(0), v(WB+8*b+4,4), c(T3)),
                mfma(v(T1+16,16), v(WB+8*b,4), x(1), c(T1+16)), mfma(v(T3+16,16), x(1), v(WB+8*b+4,4), c(T3+16))]
    return [mfma(v(T2,16), v(WB+8*b,4), x(0), c(T2)), mfma(v(T2+16,16), v(WB+8*b,4), x(1), c(T2+16))]
def kv_publish():
    o = [f"s_lshl_b32 {s(S_T0)}, {s(S_HEAD)}, 17", f"s_lshl_b32 {s(S_T1)}, {s(S_RB)}, 12", f"s_add_u32 {s(S_T0)}, {s(S_T0)}, {s(S_T1)}"]
    for tt in range(2):
        o += [f"v_pk_mul_f32 {v(T1+16*tt+2*i,2)}, {v(T1+16*tt+2*i,2)}, {s(S_C,2)}" for i in range(4)]
        o += [f"v_cvt_pk_bf16_f32 {v(KA+4*tt+i)}, {v(T1+16*tt+2*i)}, {v(T1+16*tt+2*i+1)}" for i in range(4)]
        o += [ws_st(v(KA+4*tt,4), V_L16, s(S_T0), tt*2048, "kv")]
    for tt in range(2):
        for m in range(2):
            o += [f"v_cvt_pk_bf16_f32 {v(VPK+8*tt+4*m+i)}, {v(T3+16*tt+8*m+2*i)}, {v(T3+16*tt+8*m+2*i+1)}" for i in range(4)]
            o += [ws_st(v(VPK+8*tt+4*m,4), V_LO, s(S_T0), tt*2048+1024+m*512, "kv")]
    o += [f"s_lshl_b32 {s(S_T0)}, {s(S_HEAD)}, 15", f"s_lshl_b32 {s(S_T1)}, {s(S_RB)}, 10",
          f"s_add_u32 {s(S_T0)}, {s(S_T0)}, {s(S_T1)}", f"s_add_u32 {s(S_T0)}, {s(S_T0)}, {WS_HB}",
          ws_st(v(VPK+12,4), V_HI, s(S_T0), 512, "kv")]
    for tt in (1, 0):
        o += [f"v_pk_mul_f32 {v(T1+16*tt+8+2*i,2)}, {v(T1+16*tt+8+2*i,2)}, {s(S_C,2)}" for i in range(4)]
        o += [f"v_cvt_pk_bf16_f32 {v(KB+4*tt+i)}, {v(T1+16*tt+8+2*i)}, {v(T1+16*tt+8+2*i+1)}" for i in range(4)]
        if tt == 1: o += [ws_st(v(KB+4,4), V_HI, s(S_T0), 0, "kv")]
    o += [f"v_mov_b32 {v(TMP)}, {hex(ONES)}"]
    o += [f"v_cndmask_b32 {v(VB+i)}, {v(VPK+i)}, {v(TMP)}, {s(S_LO16,2)}" for i in range(16)]
    return o

P("s_barrier")
C.stamp()
P.add(frag_reads(0)); P.add(frag_reads(1))
queue = []
for n in range(64):
    mf = step_mfmas(n)
    sync = first_of_stage(n + 2) or n == 62
    rd = frag_reads(n + 2) if n < 62 else []
    if n == 20: queue += [ep_load]
    if n == 32: queue += kv_publish()
    if n == 46: queue += gate_finish([0, 1], V_GPR, T3)
    take = 5 if n >= 32 else 1
    side = queue[:take]; queue = queue[take:]
    P(mf[0])
    if sync:
        P.add(WaitLds()); P("s_barrier")
        if OPT["fine"]: C.stamp()
    if n < 32:
        P.add(rd[0:2]); P(mf[1]); P.add(rd[2:4]); P(mf[2]); P.add(rd[4:6]); P(mf[3]); P.add(side)
    else:
        P.add(rd[0:2]); P.add(side[:2]); P(mf[1]); P.add(rd[2:4]); P.add(side[2:])
    if n == 31: C.stamp()
    if n == OPT["kvflag"]:
        C.poll(f"v_cmp_ne_u64 vcc, 0, {v(EP,2)}", ep_load)
        P.add(flag_store("kv", WS_FKV, S_HEAD, 5, S_RB))
        C.stamp()
    if n == 60:
        P(f"""s_sub_u32 {s(S_T1)}, {s(S_RB)}, 1
s_max_i32 {s(S_T1)}, {s(S_T1)}, 0
s_lshl_b32 {s(S_K)}, {s(S_HEAD)}, 5
s_add_u32 {s(S_K)}, {s(S_K)}, {s(S_T1)}
s_lshl_b32 {s(S_K)}, {s(S_K)}, 3
s_add_u32 {s(S_K)}, {s(S_K)}, {WS_FKV}
v_mov_b32 {v(V_FOFF)}, 0""")
        P(flag_load)
assert not queue
C.stamp()
C.poll(flag_cmp, flag_load)
P(f"""s_lshl_b32 {s(S_T0)}, {s(S_HEAD)}, 15
s_lshl_b32 {s(S_T1)}, {s(S_RB)}, 10
s_add_u32 {s(S_T0)}, {s(S_T0)}, {s(S_T1)}
s_add_u32 {s(S_T0)}, {s(S_T0)}, {WS_HB - 1024}
s_cmp_eq_u32 {s(S_RB)}, 0
s_cselect_b32 {s(S_T0)}, {WS_SIZE}, {s(S_T0)}
s_cselect_b64 {s(S_X,2)}, {s(S_LO16,2)}, 0""")
P.add([ws_ld(v(KBH,4), V_HI, s(S_T0)), f"s_not_b64 exec, {s(S_LO16,2)}", ws_ld(v(VBH,4), V_HI, s(S_T0), 512), "s_mov_b64 exec, -1"])
QA1 = 208
P.add([f"v_cvt_pk_bf16_f32 {v(QB+4+i)}, {v(T2+16+8+2*i)}, {v(T2+16+8+2*i+1)}" for i in range(4)])
BS, BSP, BO, BP, BPL = 48, 64, 128, 160, 168
def b_scores(t):
    kprev = v(KB, 4) if t == 1 else v(KBH, 4)
    return [mfma(v(BS+32*(1-t),16), v(KB+4*t,4), v(QB+4*t,4), v(CM,16)),
            mfma(v(BSP+80*(1-t),16), kprev, v(QB+4*t,4), v(CM,16))]
def b_softmax(t):
    S, sp, m = BS + 32*(1-t), BSP + 80*(1-t), TMP
    o = [f"v_cndmask_b32 {v(S+q)}, {v(S+q)}, {v(sp+q)}, {s(S_LO16,2)}" for q in range(8, 16)]
    if t == 0:
        o += [f"v_mov_b32 {v(m)}, {hex(NEG_BIG)}"]
        o += [f"v_cndmask_b32 {v(S+q)}, {v(S+q)}, {v(m)}, {s(S_X,2)}" for q in range(8, 16)]
    o += max_tree(m, range(S, S+16)) + cross_max(m, m+1)
    o += [f"v_sub_f32 {v(S+q)}, {v(S+q)}, {v(m)}" for q in range(16)]
    o += [f"v_exp_f32 {v(S+q)}, {v(S+q)}" for q in range(16)]
    o += [f"v_cvt_pk_bf16_f32 {v(BP+i)}, {v(S+2*i)}, {v(S+2*i+1)}" for i in range(8)]
    o += [f"v_cndmask_b32 {v(BPL+i)}, 0, {v(BP+4+i)}, {s(S_LO16,2)}" for i in range(4)]
    o += [f"v_cndmask_b32 {v(BP+4+i)}, {v(BP+4+i)}, 0, {s(S_LO16,2)}" for i in range(4)]
    return o
def b_pv(t):
    vprev = v(VB+4, 4) if t == 1 else v(VBH, 4)
    acc = v(BO - 32*(1-t), 16)
    return [mfma(acc, v(VB+8*t,4), v(BP,4), "0"), mfma(acc, v(VB+8*t+4,4), v(BP+4,4), acc), mfma(acc, vprev, v(BPL,4), acc)]
def b_pack(t):
    f = TMP + 2
    return o_pack(BO - 32*(1-t), 8, 0, [f"v_sub_f32 {v(f+1)}, 1.0, {v(G0+t)}", f"v_mul_f32 {v(f)}, {v(f)}, {v(f+1)}"], KA + 4*t, f) + o_store(1, t, KA + 4*t, "ob")
P.add(b_scores(1))
P.add([f"v_cvt_pk_bf16_f32 {v(QA1+i)}, {v(T2+16+2*i)}, {v(T2+16+2*i+1)}" for i in range(4)])
P(f"ds_write_b128 {v(V_QW)}, {v(QA1,4)}")
P.add([f"v_cvt_pk_bf16_f32 {v(QB+i)}, {v(T2+8+2*i)}, {v(T2+8+2*i+1)}" for i in range(4)])
P.add([f"v_cvt_pk_bf16_f32 {v(QA+i)}, {v(T2+2*i)}, {v(T2+2*i+1)}" for i in range(4)])
sm1 = b_softmax(1)
P.add(sm1[:44]); P.add(b_scores(0)); P.add(sm1[44:])
sm0, pv1, pk1 = b_softmax(0), b_pv(1), b_pack(1)
P.add(sm0[:2]); P(pv1[0]); P.add(sm0[2:10]); P(pv1[1]); P.add(sm0[10:18]); P(pv1[2]); P.add(sm0[18:44])
P.add(pk1); P.add(sm0[44:])
P.add(b_pv(0))
C.stamp()
P.add(WaitLds()); P("s_barrier")
C.stamp()
pk0 = b_pack(0)
window_attention(C, 0, {"m0": lambda: P.add(pk0),
                        3: lambda: P.add(flag_store("ob", WS_FOB, S_RB, 5, S_HEAD))})
P.add(o_pack(OACC, 0, 8, [f"v_mul_f32 {v(TMP)}, {v(TMP)}, {v(G0)}"], PF, TMP))
P.add(o_store(0, 0, PF, "oa"))
P(f"s_lshl_b32 {s(S_T2)}, {s(S_RB)}, 1")
P.add(flag_store("oa", WS_FOA, S_T2, 5, S_HEAD))
C.stamp()
C.finish()

full = Prog(); full.items = E.items + H.P.items
bodyH = finalize(full, verbose=True)
full = Prog(); full.items = [Ins("s_load_dwordx16 s[4:19], s[0:1], 0"), Ins("global_load_dword v13, v5, s[96:97]")] + C.P.items
bodyC = "\n".join(finalize(full, verbose=True).split("\n")[2:])
print("stamps H", H.ns, "C", C.ns)
hdr = open("cdna_kernels/%s.s.ref" % NAME).read().split("; Override launch")[0]
txt = hdr + f"""; One launch: 256 workgroups (4 heads x 64 rows each), 8 waves, hand-offs through d_ws tagged with a per-launch epoch.
; @launch grid=(256,1,1) block=(512,1,1) lds={LDS_BYTES}
.amdgcn_target "amdgcn-amd-amdhsa--gfx950"
.text
.globl {NAME}_kernel
.p2align 8
.type {NAME}_kernel,@function
{NAME}_kernel:
{bodyH}{special_txt}{bodyC}L_end:
    s_endpgm
    .fill 3072, 4, 0xbf800000
.section .rodata,"a"
.p2align 6
.amdhsa_kernel {NAME}_kernel
  .amdhsa_next_free_vgpr 256
  .amdhsa_next_free_sgpr 102
  .amdhsa_accum_offset 256
  .amdhsa_group_segment_fixed_size 0
  .amdhsa_kernarg_size 80
  .amdhsa_user_sgpr_count 2
  .amdhsa_user_sgpr_kernarg_segment_ptr 1
  .amdhsa_system_sgpr_workgroup_id_x 1
.end_amdhsa_kernel
"""
open(sys.argv[1], "w").write(txt)
```

```python
import sys, math, struct
from asmdsl import Prog, Ins, WaitTag, WaitLds, Raw, finalize

NAME = "gated_mix__sliding_block__sliding_local_dilated__prompt"
OPT = dict(ampclk=0, pf=0, stamps=0, standin=0, amp=-1, ampk=8, amprole=1, rotmask=7, kvflag=52, fine=0, outsc=0, prio=0, touch=0)
for a in sys.argv[2:]:
    k, v_ = a.split("="); assert k in OPT, k; OPT[k] = int(v_)

WS_KV, WS_HB, WS_O = 0, 4 << 20, 5 << 20
WS_FKV, WS_FOB, WS_FOA = 9 << 20, (9 << 20) + 65536, (9 << 20) + 131072
WS_STAMP, WS_SIZE = 10 << 20, 64 << 20
OOB = 0x80000000
NSLOT, SLOT = 5, 16384
L_X, L_G, L_GP, L_Q, LDS_BYTES = 81920, 148480, 149504, 150528, 154624
KVS, KVH, L_WO = 2064, 20640, 82944
QK_SCALE = 0.25 * math.log2(math.e)
NEG_BIG, ONES = 0xf149f2ca, 0x3f803f80

def fhex(x): return "0x%08x" % struct.unpack("<I", struct.pack("<f", x))[0]
def v(a, n=1): return f"v{a}" if n == 1 else f"v[{a}:{a+n-1}]"
def s(a, n=1): return f"s{a}" if n == 1 else f"s[{a}:{a+n-1}]"
def lines(t): return [l.strip() for l in t.strip().split("\n") if l.strip()]
def mfma(d, a, b, c): return f"v_mfma_f32_32x32x16_bf16 {d}, {a}, {b}, {c}"
def srd(base, ptr, nbytes):
    return [f"s_mov_b32 {s(base)}, {s(ptr)}", f"s_mov_b32 {s(base+1)}, {s(ptr+1)}",
            f"s_mov_b32 {s(base+2)}, {nbytes}", f"s_mov_b32 {s(base+3)}, 0x20000"]
def interleave(*ls):
    o, ls = [], [list(l) for l in ls]
    while any(ls):
        for l in ls:
            if l: o.append(l.pop(0))
    return o

S_X, S_W, S_WS, S_WOA, S_WOB, S_OUT, S_DBG, S_G = 24, 28, 32, 36, 40, 44, 48, 36
S_W4, S_HG, S_RB, S_ROT, S_HEAD, S_RB3, S_CB = 52, 53, 54, 55, 56, 57, 58
S_K, S_T0, S_MW, S_MX, S_T1 = 59, 60, 61, 62, 63
S_MASK, S_T2, S_T3, S_LO16, S_TM, S_C, S_SPIN = 64, 96, 97, 98, 100, 10, 3
V_LANE, V_L16, V_STAMP, V_FOFF = 1, 2, 3, 4
EP, FLG = 6, 8
V_AK, V_AV0, V_AV1 = 10, 11, 12
G0 = 14
PM, QA = 16, 24
TMP = 28
SB, NEGM, MG = 32, 64, 80
PB, PF, OACC, KF, VF = 96, 112, 120, 136, 144

class Role:
    def __init__(self, name):
        self.P, self.name, self.ns, self.nl = Prog(), name, 0, 0
    def stamp(self):
        P = self.P
        if OPT["amp"] == self.ns and OPT["amprole"] == (self.name == "H"):
            P.add(WaitLds())
            P(f"{'s_memtime' if OPT['ampclk'] else 's_memrealtime'} {s(S_TM,2)}\ns_waitcnt lgkmcnt(0)\nv_writelane_b32 {v(V_STAMP)}, {s(S_TM)}, 1")
        if OPT["stamps"]:
            P.add(WaitLds())
            P(f"s_memtime {s(S_TM,2)}\ns_waitcnt lgkmcnt(0)\nv_writelane_b32 {v(V_STAMP)}, {s(S_TM)}, {self.ns + 1}")
        self.ns += 1
    def poll(self, cmp_txt, reload_txt):
        P, n = self.P, f"{self.name}{self.nl}"; self.nl += 1
        P(f"s_mov_b32 {s(S_SPIN)}, 0x40000"); P(cmp_txt)
        P(f"s_cmp_eq_u64 vcc, -1\ns_cbranch_scc1 L_pok{n}")
        P.add(Raw(f"""L_pspin{n}:
    {reload_txt}
    s_sub_u32 {s(S_SPIN)}, {s(S_SPIN)}, 1
    s_cbranch_scc1 L_pok{n}
    s_waitcnt vmcnt(0)
    {cmp_txt}
    s_nop 2
    s_cmp_eq_u64 vcc, -1
    s_cbranch_scc0 L_pspin{n}
L_pok{n}:"""))
    def finish(self):
        P = self.P
        if OPT["stamps"]:
            P(f"s_memrealtime {s(S_TM,2)}\ns_waitcnt lgkmcnt(0) vmcnt(0)\nv_writelane_b32 {v(V_STAMP)}, {s(S_TM)}, 63")
            P(f"""s_lshl_b32 {s(S_T0)}, s2, 3
s_add_u32 {s(S_T0)}, {s(S_T0)}, {s(S_W4)}
s_add_u32 {s(S_T0)}, {s(S_T0)}, {4 if self.name == "H" else 0}
s_lshl_b32 {s(S_T0)}, {s(S_T0)}, 8
s_add_u32 {s(S_T0)}, {s(S_T0)}, {WS_STAMP}
v_lshlrev_b32 v0, 2, {v(V_LANE)}
buffer_store_dword {v(V_STAMP)}, v0, {s(S_WS,4)}, {s(S_T0)} offen""")
        if OPT["amp"] >= 0 and OPT["amprole"] == (self.name == "H"):
            P(f"""s_cmp_lg_u32 s2, 100
s_cbranch_scc1 L_end
v_readlane_b32 {s(S_T0)}, {v(V_STAMP)}, 0
v_readlane_b32 {s(S_T1)}, {v(V_STAMP)}, 1
s_memrealtime {s(S_TM,2)}
s_sub_u32 {s(S_T1)}, {s(S_T1)}, {s(S_T0)}
s_mul_i32 {s(S_T1)}, {s(S_T1)}, {OPT["ampk"]}
s_lshr_b32 {s(S_T1)}, {s(S_T1)}, {4 if OPT["ampclk"] else 0}
s_min_u32 {s(S_T1)}, {s(S_T1)}, 100000
s_waitcnt lgkmcnt(0)
s_mov_b32 {s(S_T0)}, {s(S_TM)}""")
            P.add(Raw(f"""L_amp{self.name}:
    s_memrealtime {s(S_TM,2)}
    s_waitcnt lgkmcnt(0)
    s_sub_u32 {s(S_K)}, {s(S_TM)}, {s(S_T0)}
    s_cmp_lt_u32 {s(S_K)}, {s(S_T1)}
    s_cbranch_scc1 L_amp{self.name}"""))
        P("s_endpgm")

ws_ld = lambda dst, voff, soff, imm=0, tag=None: Ins(
    f"buffer_load_dwordx4 {dst}, {v(voff)}, {s(S_WS,4)}, {soff} offen{' offset:%d' % imm if imm else ''} sc1", tag)
ws_st = lambda src, voff, soff, imm=0, tag=None: Ins(
    f"buffer_store_dwordx4 {src}, {v(voff)}, {s(S_WS,4)}, {soff} offen{' offset:%d' % imm if imm else ''} sc1", tag)
ep_load = f"buffer_load_dwordx2 {v(EP,2)}, off, {s(S_DBG,4)}, 0 sc1"
flag_load = f"buffer_load_dwordx2 {v(FLG,2)}, {v(V_FOFF)}, {s(S_WS,4)}, {s(S_K)} offen sc1"
flag_cmp = f"v_cmp_eq_u64 vcc, {v(FLG,2)}, {v(EP,2)}"
def flag_store(data_tag, base, hi_reg, hi_shift, lo_reg):
    return [WaitTag(data_tag), f"s_lshl_b32 {s(S_T0)}, {s(hi_reg)}, {hi_shift}", f"s_add_u32 {s(S_T0)}, {s(S_T0)}, {s(lo_reg)}",
            f"s_lshl_b32 {s(S_T0)}, {s(S_T0)}, 3", f"s_add_u32 {s(S_T0)}, {s(S_T0)}, {base}",
            f"v_lshlrev_b32 v0, 26, {v(V_LANE)}",
            Ins(f"buffer_store_dwordx2 {v(EP,2)}, v0, {s(S_WS,4)}, {s(S_T0)} offen sc1", "flag")]

def max_tree(dst, regs, init=False):
    regs, o = list(regs), []
    if not init:
        o.append(f"v_max3_f32 {v(dst)}, {v(regs[0])}, {v(regs[1])}, {v(regs[2])}"); regs = regs[3:]
    while len(regs) >= 2:
        o.append(f"v_max3_f32 {v(dst)}, {v(dst)}, {v(regs[0])}, {v(regs[1])}"); regs = regs[2:]
    if regs: o.append(f"v_max_f32 {v(dst)}, {v(dst)}, {v(regs[0])}")
    return o
def cross_max(m, t):
    return [f"v_mov_b32 {v(t)}, {v(m)}", f"v_permlane32_swap_b32 {v(m)}, {v(t)}", f"v_max_f32 {v(m)}, {v(m)}, {v(t)}"]

def attn_setup(t, tmp):
    r5, hh, cm, u = tmp, tmp + 1, tmp + 2, tmp + 3
    o = lines(f"""v_and_b32 {v(r5)}, 31, {v(V_LANE)}
v_lshrrev_b32 {v(hh)}, 5, {v(V_LANE)}
v_lshlrev_b32 {v(u)}, 2, {v(hh)}
v_sub_u32 {v(cm)}, {v(r5)}, {v(u)}
s_mul_i32 {s(S_T2)}, {s(S_W4)}, {KVH}
s_add_u32 {s(S_T2)}, {s(S_T2)}, {t*KVS}
v_add_u32 {v(V_AK)}, {s(S_T2)}, {v(V_L16)}
v_and_b32 {v(u)}, 15, {v(V_LANE)}
v_lshlrev_b32 {v(u)}, 4, {v(u)}
v_lshl_add_u32 {v(u)}, {v(hh)}, 8, {v(u)}
v_mov_b32 {v(hh)}, 0x400
v_cndmask_b32 {v(V_AV0)}, {v(hh)}, {v(u)}, {s(S_LO16,2)}
v_mov_b32 {v(hh)}, 0x200
v_cndmask_b32 {v(V_AV1)}, {v(hh)}, {v(u)}, {s(S_LO16,2)}
v_add_u32 {v(V_AV0)}, {s(S_T2)}, {v(V_AV0)}
v_add_u32 {v(V_AV1)}, {s(S_T2)}, {v(V_AV1)}
v_mov_b32 {v(u)}, 0xffff""")
    o += [f"v_cmp_le_i32 {s(S_MASK+2*q,2)}, {8*(q>>2)+(q&3)}, {v(cm)}" for q in range(16)]
    o += [f"v_cndmask_b32 {v(PM+pq)}, 0, {v(u)}, {s(S_MASK+4*pq,2)}" for pq in range(8)]
    o += [f"v_cndmask_b32 {v(PM+pq)}, {v(PM+pq)}, -1, {s(S_MASK+4*pq+2,2)}" for pq in range(8)]
    return o

def gate_finish(tiles, addr, tmp):
    o = [f"ds_read_b128 {v(tmp+4*t,4)}, {v(addr)} offset:{512*t}" for t in tiles]
    seq = []
    for t in tiles:
        b = tmp + 4*t
        seq.append([f"v_add_f32 {v(b)}, {v(b)}, {v(b+1)}", f"v_add_f32 {v(b+2)}, {v(b+2)}, {v(b+3)}",
                    f"v_add_f32 {v(b)}, {v(b)}, {v(b+2)}", f"v_mul_f32 {v(b)}, {fhex(-math.log2(math.e))}, {v(b)}",
                    f"v_exp_f32 {v(b)}, {v(b)}", f"v_add_f32 {v(b)}, 1.0, {v(b)}", f"v_rcp_f32 {v(G0+t)}, {v(b)}"])
    return o + interleave(*seq)

def o_pack(acc, o0, lreg, fac, dst, f):
    return ([f"v_rcp_f32 {v(f)}, {v(acc+lreg)}"] + fac +
            [f"v_mul_f32 {v(acc+o0+i)}, {v(f)}, {v(acc+o0+i)}" for i in range(8)] +
            [f"v_cvt_pk_bf16_f32 {v(dst+i)}, {v(acc+o0+2*i)}, {v(acc+o0+2*i+1)}" for i in range(4)])
def o_store(br, tt, src, tag):
    return [f"s_lshl_b32 {s(S_T0)}, {s(S_RB)}, 16", f"s_lshl_b32 {s(S_T1)}, {s(S_HEAD)}, 10",
            f"s_add_u32 {s(S_T0)}, {s(S_T0)}, {s(S_T1)}", f"s_add_u32 {s(S_T0)}, {s(S_T0)}, {WS_O + br*(2<<20) + tt*32768}",
            ws_st(v(src,4), V_L16, s(S_T0), 0, tag)]

def window_attention(R, t, events):
    P = R.P
    kread = lambda u, b: f"ds_read_b128 {v(KF+4*b,4)}, {v(V_AK)} offset:{u*KVS}"
    vread = lambda u, b: [f"ds_read_b128 {v(VF+8*b,4)}, {v(V_AV0)} offset:{u*KVS+1024}",
                          f"ds_read_b128 {v(VF+8*b+4,4)}, {v(V_AV1)} offset:{u*KVS+1536}"]
    q, M = v(QA, 4), TMP
    ev = lambda key: events.pop(key)() if key in events else None
    P(kread(8, 0)); P(kread(0, 1))
    P(mfma(v(MG,16), v(KF,4), q, "0")); P(kread(1, 0))
    P(mfma(v(SB+16,16), v(KF+4,4), q, "0"))
    P.add(vread(8, 0)); P.add(vread(0, 1))
    ev("m0")
    if not OPT["standin"]:
        P(mfma(v(SB,16), v(KF,4), q, "0")); P(kread(2, 1))
    P.add([f"v_cndmask_b32 {v(MG+i)}, {v(SB+16+i)}, {v(MG+i)}, {s(S_MASK+2*i,2)}" for i in range(16)])
    P.add(max_tree(M, range(MG, MG+16)))
    if not OPT["standin"]:
        for u in range(1, 8):
            cur = SB + 16*((u+1) & 1); nxt = SB + 16*(u & 1)
            if u < 7:
                P(mfma(v(nxt,16), v(KF+4*(u & 1),4), q, "0"))
            nk = u + 2 if u < 6 else (1 if u == 7 else None)
            if u < 6: P(kread(u + 2, (u+1) & 1))
            if u == 6: P(kread(1, 1 - (u & 1)))
            P.add(max_tree(M, range(cur, cur+16), init=True))
        kb = 1
    else:
        kb = 0
    P.add(cross_max(M, M+1))
    R.stamp()
    P.add([f"v_sub_f32 {v(NEGM+i)}, 0, {v(M)}" for i in range(16)])
    P(mfma(v(SB,16), v(KF+4*kb,4), q, v(NEGM,16))); P(kread(2, 1-kb))
    acc = v(OACC, 16)
    P.add([f"v_pk_add_f32 {v(MG+2*i,2)}, {v(MG+2*i,2)}, {v(NEGM,2)}" for i in range(8)])
    P.add([f"v_exp_f32 {v(MG+i)}, {v(MG+i)}" for i in range(16)])
    P.add([f"v_cvt_pk_bf16_f32 {v(PF+i)}, {v(MG+2*i)}, {v(MG+2*i+1)}" for i in range(8)])
    P.add([f"v_and_b32 {v(PB+8+i)}, {v(PM+i)}, {v(PF+i)}" for i in range(4)])
    P.add([f"v_xor_b32 {v(PF+i)}, {v(PF+i)}, {v(PB+8+i)}" for i in range(4)])
    P(mfma(acc, v(VF,4), v(PB+8,4), "0"))
    P.add([f"v_and_b32 {v(PB+12+i)}, {v(PM+4+i)}, {v(PF+4+i)}" for i in range(4)])
    P.add([f"v_xor_b32 {v(PF+4+i)}, {v(PF+4+i)}, {v(PB+12+i)}" for i in range(4)])
    P(mfma(acc, v(VF+8,4), v(PF,4), acc))
    pend = [mfma(acc, v(VF+4,4), v(PB+12,4), acc), mfma(acc, v(VF+12,4), v(PF+4,4), acc)]
    pend_rd = vread(1, 0)
    for u in range(1, 8):
        S = SB + 16*((u+1) & 1); Sn = SB + 16*(u & 1); Pp = PB + 8*((u+1) & 1); vb = (u+1) & 1
        kcur = (kb + u) & 1
        e = [f"v_exp_f32 {v(S+i)}, {v(S+i)}" for i in range(16)]
        c = [f"v_cvt_pk_bf16_f32 {v(Pp+k)}, {v(S+2*k)}, {v(S+2*k+1)}" for k in range(8)]
        P.add(e[0:2])
        if len(pend) > 1:
            P(pend.pop(0)); P.add(e[2:5]); P(pend.pop(0)); P.add(pend_rd); P.add(e[5:6]); pend_rd = []
        else:
            P(pend.pop(0)); P.add(e[2:6])
        if u < 7:
            P.add(vread(u + 1, 1 - vb))
            P(mfma(v(Sn,16), v(KF+4*kcur,4), q, v(NEGM,16)))
            if u < 6: P(kread(u + 2, 1 - kcur))
        P.add(e[6:8]); P.add(c[0:4]); P.add(e[8:10])
        P(mfma(acc, v(VF+8*vb,4), v(Pp,4), acc))
        P.add(e[10:16]); P.add(c[4:8])
        pend = [mfma(acc, v(VF+8*vb+4,4), v(Pp+4,4), acc)]
        ev(u)
    P.add(pend)
    assert not events, events
    R.stamp()

E = Prog()
E(f"""
s_cmp_ge_u32 s2, 256
s_cbranch_scc1 L_end
s_load_dwordx16 s[4:19], s[0:1], 0
s_load_dwordx4 s[20:23], s[0:1], 64
s_getpc_b64 {s(S_T2,2)}
v_and_b32 {v(V_LANE)}, 63, v0
v_lshrrev_b32 v4, 6, v0
s_lshr_b32 {s(S_T0)}, s2, 3
s_and_b32 {s(S_T1)}, {s(S_T0)}, 3
s_lshl_b32 {s(S_T1)}, {s(S_T1)}, 13
v_lshlrev_b32 v5, 7, {v(V_LANE)}
v_add_u32 v5, {s(S_T1)}, v5
v_readfirstlane_b32 {s(S_MX)}, v4
global_load_dword v13, v5, {s(S_T2,2)}
v_lshlrev_b32 {v(V_L16)}, 4, {v(V_LANE)}
""")
if OPT["stamps"] or OPT["amp"] >= 0:
    E(f"v_mov_b32 {v(V_STAMP)}, 0")
    E(f"{'s_memtime' if OPT['ampclk'] else 's_memrealtime'} {s(S_TM,2)}\ns_waitcnt lgkmcnt(0)\nv_writelane_b32 {v(V_STAMP)}, {s(S_TM)}, {62 if OPT['stamps'] else 0}")
if OPT["stamps"]:
    E(f"s_memtime {s(S_TM,2)}\ns_waitcnt lgkmcnt(0)\nv_writelane_b32 {v(V_STAMP)}, {s(S_TM)}, 0")
E(f"""
s_and_b32 {s(S_W4)}, {s(S_MX)}, 3
s_and_b32 {s(S_T1)}, s2, 1
s_lshl_b32 {s(S_HG)}, {s(S_T1)}, 2
s_and_b32 {s(S_K)}, {s(S_T0)}, 3
s_add_u32 {s(S_HG)}, {s(S_HG)}, {s(S_K)}
s_bfe_u32 {s(S_K)}, s2, 0x20001
s_lshl_b32 {s(S_K)}, {s(S_K)}, 3
s_lshr_b32 {s(S_ROT)}, {s(S_T0)}, 2
s_add_u32 {s(S_RB)}, {s(S_K)}, {s(S_ROT)}
s_and_b32 {s(S_ROT)}, {s(S_ROT)}, {OPT["rotmask"]}
s_lshl_b32 {s(S_T1)}, {s(S_T1)}, 2
s_add_u32 {s(S_RB3)}, {s(S_K)}, {s(S_T1)}
s_lshr_b32 {s(S_T1)}, {s(S_T0)}, 3
s_add_u32 {s(S_RB3)}, {s(S_RB3)}, {s(S_T1)}
s_and_b32 {s(S_CB)}, {s(S_T0)}, 7
s_lshl_b32 {s(S_HEAD)}, {s(S_HG)}, 2
s_add_u32 {s(S_HEAD)}, {s(S_HEAD)}, {s(S_W4)}
s_mov_b32 {s(S_LO16)}, 0xffff
s_mov_b32 {s(S_LO16+1)}, 0xffff
s_cmp_lt_u32 {s(S_MX)}, 4
s_cbranch_scc1 L_crole
""")

def stage_of(n): return n >> 1 if n < 32 else 16 + ((n - 32) >> 2)
def first_of_stage(n): return n < 64 and (n == 0 or stage_of(n) != stage_of(n - 1))

H = Role("H"); P = H.P
VX, VW1, VW2 = 160, 162, 166
V_AXW, V_AG, V_GPW, GACC, XW, GF = 170, 171, 172, 174, 176, 184
WOA = 192
i3, i4, p7, t0, t1, t2 = 32, 33, 34, 35, 36, 37
P(f"""
v_lshrrev_b32 {v(i3)}, 3, {v(V_LANE)}
v_lshrrev_b32 {v(i4)}, 4, {v(V_LANE)}
v_and_b32 {v(p7)}, 7, {v(V_LANE)}
s_lshl_b32 {s(S_T0)}, {s(S_W4)}, 4
v_add_u32 {v(t0)}, {s(S_T0)}, {v(i3)}
v_lshlrev_b32 {v(t0)}, 10, {v(t0)}
v_xor_b32 {v(t1)}, {v(p7)}, {v(i4)}
v_lshl_add_u32 {v(VX)}, {v(t1)}, 4, {v(t0)}
v_xor_b32 {v(VX+1)}, 64, {v(VX)}
v_add_u32 {v(VX+1)}, {0x2000 - 1024}, {v(VX+1)}
s_lshr_b32 {s(S_T0)}, {s(S_W4)}, 1
s_and_b32 {s(S_T1)}, {s(S_W4)}, 1
s_lshl_b32 {s(S_K)}, {s(S_T0)}, 4
v_add_u32 {v(t0)}, {s(S_K)}, {v(i4)}
v_mul_u32_u24 {v(t0)}, 0xc00, {v(t0)}
v_lshlrev_b32 {v(t1)}, 1, {v(i4)}
v_xor_b32 {v(t1)}, {v(t1)}, {v(p7)}
v_lshl_add_u32 {v(t0)}, {v(t1)}, 4, {v(t0)}
v_and_b32 {v(t1)}, 1, {v(i3)}
v_xor_b32 {v(t1)}, {s(S_T1)}, {v(t1)}
v_lshlrev_b32 {v(t1)}, 10, {v(t1)}
s_lshl_b32 {s(S_T2)}, {s(S_HG)}, 7
s_add_u32 {s(S_K)}, {s(S_T2)}, 1024
v_add3_u32 {v(VW1)}, {v(t0)}, {v(t1)}, {s(S_K)}
v_add_u32 {v(VW1+1)}, {12288 - 1024}, {v(VW1)}
v_add_u32 {v(VW1+2)}, {2*(12288 - 1024)}, {v(VW1)}
v_add_u32 {v(VW1+3)}, {3*(12288 - 1024)}, {v(VW1)}
s_lshl_b32 {s(S_MW)}, {s(S_T1)}, 13
s_lshl_b32 {s(S_K)}, {s(S_T0)}, 12
s_add_u32 {s(S_MW)}, {s(S_MW)}, {s(S_K)}
s_lshl_b32 {s(S_MX)}, {s(S_W4)}, 11
s_add_u32 {s(S_MX)}, {s(S_MX)}, {L_X}
s_lshl_b32 {s(S_K)}, {s(S_ROT)}, 3
v_add_u32 {v(t2)}, {s(S_K)}, {v(V_LANE)}
v_and_b32 {v(t2)}, 63, {v(t2)}
v_lshlrev_b32 {v(t2)}, 4, {v(t2)}
s_waitcnt lgkmcnt(0)
""")
P.add(srd(S_X, 4, 2097152))
P(f"""s_cmp_eq_u32 {s(S_T1)}, 0
s_cselect_b32 {s(S_W)}, s6, s12
s_cselect_b32 {s(S_W+1)}, s7, s13
s_mov_b32 {s(S_W+2)}, 1572864
s_mov_b32 {s(S_W+3)}, 0x20000""")
H.stamp()
def dma(voff, rsrc, soff, imm, tag, flags=""):
    return Ins(f"buffer_load_dwordx4 {v(voff)}, {s(rsrc,4)}, {soff} offen{' offset:%d' % imm if imm else ''}{flags} lds", tag)
def x_dma(j):
    return [f"s_add_u32 {s(S_K)}, {s(S_ROT)}, {j}", f"s_and_b32 {s(S_K)}, {s(S_K)}, 7", f"s_lshl_b32 {s(S_K)}, {s(S_K)}, 7",
            f"s_lshl_b32 {s(S_T2)}, {s(S_RB)}, 16", f"s_add_u32 m0, {s(S_MX)}, {j*8192}", f"s_add_u32 {s(S_K)}, {s(S_K)}, {s(S_T2)}",
            dma(VX, S_X, s(S_K), 0, f"x{j}"), dma(VX+1, S_X, s(S_K), 1024, f"x{j}")]
def w_dma(S):
    if S < 16:
        o = [f"s_lshl_b32 {s(S_T3)}, {s(S_ROT)}, 1", f"s_add_u32 {s(S_T3)}, {s(S_T3)}, {S}", f"s_and_b32 {s(S_T3)}, {s(S_T3)}, 15"]
    else:
        o = [f"s_add_u32 {s(S_T3)}, {s(S_ROT)}, {S-16}", f"s_and_b32 {s(S_T3)}, {s(S_T3)}, 7"]
    o += [f"s_add_u32 m0, {s(S_MW)}, {(S % NSLOT)*SLOT}", f"s_mul_i32 {s(S_T3)}, {s(S_T3)}, {(32 if S < 16 else 64)*3072}"]
    return o + [dma((VW1 if S < 16 else VW2) + t, S_W, s(S_T3), t*1024, f"w{S}") for t in range(4)]
P.add(x_dma(0)); P.add(w_dma(0))
P.add(srd(S_G, 16, 1024)); P(f"s_mov_b32 m0, {L_G}"); P.add(dma(t2, S_G, "0", 0, "x0"))
P.add(w_dma(1))
h_misc = lines(f"""
s_lshr_b32 {s(S_T0)}, {s(S_W4)}, 1
s_and_b32 {s(S_T1)}, {s(S_W4)}, 1
s_lshl_b32 {s(S_T0)}, {s(S_T0)}, 5
v_add_u32 {v(t0)}, {s(S_T0)}, {v(i3)}
v_mul_u32_u24 {v(t0)}, 0xc00, {v(t0)}
v_and_b32 {v(t1)}, 1, {v(i4)}
s_lshl_b32 {s(S_T1)}, {s(S_T1)}, 1
v_add_u32 {v(t1)}, {s(S_T1)}, {v(t1)}
v_lshlrev_b32 {v(t1)}, 1, {v(t1)}
v_xor_b32 {v(t1)}, {v(t1)}, {v(p7)}
v_lshl_add_u32 {v(t0)}, {v(t1)}, 4, {v(t0)}
s_lshl_b32 {s(S_T0)}, {s(S_HG)}, 7
v_add_u32 {v(VW2)}, {s(S_T0)}, {v(t0)}
v_add_u32 {v(VW2+1)}, {24576 - 1024}, {v(VW2)}
v_add_u32 {v(VW2+2)}, {2*(24576 - 1024)}, {v(VW2)}
v_add_u32 {v(VW2+3)}, {3*(24576 - 1024)}, {v(VW2)}
v_and_b32 {v(t0)}, 31, {v(V_LANE)}
v_lshrrev_b32 {v(t1)}, 5, {v(V_LANE)}
s_lshl_b32 {s(S_T0)}, {s(S_W4)}, 1
v_add_u32 {v(t1)}, {s(S_T0)}, {v(t1)}
v_lshlrev_b32 {v(V_AG)}, 4, {v(t1)}
v_add_u32 {v(V_AG)}, {L_G}, {v(V_AG)}
v_bfe_u32 {v(t2)}, {v(t0)}, 1, 3
v_xor_b32 {v(t1)}, {v(t1)}, {v(t2)}
v_lshlrev_b32 {v(t1)}, 4, {v(t1)}
v_lshl_add_u32 {v(t1)}, {v(t0)}, 7, {v(t1)}
v_add_u32 {v(V_AXW)}, {L_X}, {v(t1)}
v_lshlrev_b32 {v(t0)}, 4, {v(t0)}
s_lshl_b32 {s(S_T0)}, {s(S_W4)}, 2
s_add_u32 {s(S_T0)}, {s(S_T0)}, {L_GP}
v_add_u32 {v(V_GPW)}, {s(S_T0)}, {v(t0)}
v_mov_b32 {v(GACC)}, 0
v_mov_b32 {v(GACC+1)}, 0
""") + srd(S_WS, 22, WS_SIZE) + srd(S_DBG, 20, 256)
P.add(h_misc)
def gate_chunk(j):
    o = [f"ds_read_b128 {v(GF,4)}, {v(V_AG)} offset:{j*128}",
         f"ds_read_b128 {v(XW,4)}, {v(V_AXW)} offset:{j*8192}", f"ds_read_b128 {v(XW+4,4)}, {v(V_AXW)} offset:{j*8192+4096}"]
    for i in range(4):
        for tt in range(2):
            o.append(f"v_dot2_f32_bf16 {v(GACC+tt)}, {v(XW+4*tt+i)}, {v(GF+i)}, {v(GACC+tt)}")
    return o
issued_w, issued_x = 2, 1
for S in range(25):
    if S < 24:
        P.add(WaitTag(f"w{S}", f"x{S >> 1}" if S < 16 else "none"))
    P.add(WaitLds()); P("s_barrier")
    if OPT["fine"] or S in (0, 16, 24): H.stamp()
    top = {0: 3}.get(S, S + 4)
    while issued_w <= min(top, 23):
        if issued_w < 16 and issued_w % 2 == 0 and issued_x <= issued_w // 2:
            P.add(x_dma(issued_x)); issued_x += 1
        P.add(w_dma(issued_w)); issued_w += 1
    if S < 16 and S % 2 == 1:
        P.add(gate_chunk(S >> 1))
    if S == 15:
        for tt in range(2):
            P(f"v_mov_b32 {v(XW+tt)}, {v(GACC+tt)}")
        for tt in range(2):
            P(f"v_permlane32_swap_b32 {v(GACC+tt)}, {v(XW+tt)}")
        for tt in range(2):
            P(f"v_add_f32 {v(GACC+tt)}, {v(GACC+tt)}, {v(XW+tt)}\nds_write_b32 {v(V_GPW)}, {v(GACC+tt)} offset:{512*tt}")
    if S == 8:
        P(ep_load)
    if S == 19:
        P.add(attn_setup(1, 32))
        P.add(srd(S_WOA, 8, 524288) + srd(S_WOB, 14, 524288) + srd(S_OUT, 18, 2097152))
    if S == 20:
        P(f"v_and_b32 {v(32)}, 31, {v(V_LANE)}\nv_lshlrev_b32 {v(32)}, 4, {v(32)}\nv_add_u32 {v(32)}, {L_GP}, {v(32)}")
        P.add(gate_finish([1], 32, 36))
        H.poll(f"v_cmp_ne_u64 vcc, 0, {v(EP,2)}", ep_load)
        VWO, VKF, V1A, V1D = 160, 161, 162, 164
        P(f"""v_lshrrev_b32 v32, 3, {v(V_LANE)}
v_bfe_u32 v33, {v(V_LANE)}, 4, 1
v_lshlrev_b32 v33, 2, v33
v_and_b32 v34, 7, {v(V_LANE)}
v_xor_b32 v33, v33, v34
v_lshlrev_b32 v33, 4, v33
v_lshl_add_u32 {v(VWO)}, v32, 10, v33
v_and_b32 {v(VKF)}, 32, {v(V_LANE)}
v_lshlrev_b32 {v(VKF)}, 4, {v(VKF)}
v_min_u32 v32, 9, {v(V_LANE)}
v_mul_u32_u24 {v(V1A)}, {KVS}, v32
s_mul_i32 {s(S_MW)}, {s(S_W4)}, {KVH}
s_add_u32 {s(S_T0)}, {s(S_MW)}, 2048
v_add_u32 {v(V1A)}, {s(S_T0)}, {v(V1A)}
s_lshl_b32 {s(S_T0)}, {s(S_RB)}, 1
v_add_u32 v32, {s(S_T0)}, v32
v_cmp_le_u32 vcc, 8, v32
v_mov_b32 v33, {hex(ONES)}
v_cndmask_b32 {v(V1D)}, 0, v33, vcc
v_and_b32 {v(V_FOFF)}, 7, {v(V_LANE)}
v_min_u32 {v(V_FOFF)}, 4, {v(V_FOFF)}
s_sub_u32 {s(S_T1)}, {s(S_RB)}, 4
v_add_u32 {v(V_FOFF)}, {s(S_T1)}, {v(V_FOFF)}
v_max_i32 {v(V_FOFF)}, 0, {v(V_FOFF)}
v_lshlrev_b32 {v(V_FOFF)}, 3, {v(V_FOFF)}
v_mov_b32 {v(V1D+1)}, {v(V1D)}
v_mov_b32 {v(V1D+2)}, {v(V1D)}
v_mov_b32 {v(V1D+3)}, {v(V1D)}
s_lshl_b32 {s(S_K)}, {s(S_HEAD)}, 8
s_add_u32 {s(S_K)}, {s(S_K)}, {WS_FKV}""")
    if S == 23:
        P(flag_load)
P(f"ds_write_b128 {v(V1A)}, {v(V1D,4)}")
H.poll(flag_cmp, flag_load)
H.stamp()
def gather(special):
    o = [f"s_lshl_b32 {s(S_K)}, {s(S_HEAD)}, 17", f"s_lshl_b32 {s(S_T1)}, {s(S_RB)}, 12",
         f"s_add_u32 {s(S_T2)}, {s(S_K)}, {s(S_T1)}", f"s_sub_u32 {s(S_T2)}, {s(S_T2)}, {8*2048}"]
    for u in (9, 1, 8, 0, 2, 3, 4, 5, 6, 7):
        o += [f"s_add_u32 {s(S_T0)}, {s(S_T2)}, {u*2048}", f"s_add_u32 m0, {s(S_MW)}, {u*KVS}"]
        if special and u < 8:
            o += [f"s_cmp_ge_u32 {s(S_RB)}, {(8-u+1)//2}", f"s_cbranch_scc1 L_gk{u}",
                  dma(VKF, S_WS, s(S_K), 0, None, " sc1"), f"s_mov_b32 {s(S_T0)}, {WS_SIZE}", f"s_branch L_gk{u}e", f"L_gk{u}:",
                  dma(V_L16, S_WS, s(S_T0), 0, None, " sc1"), f"L_gk{u}e:"]
        else:
            o += ["s_nop 0"] if special else []
            o += [dma(V_L16, S_WS, s(S_T0), 0, "kv", " sc1")]
        o += [dma(V_L16, S_WS, s(S_T0), 1024, "kv", " sc1")]
    return o
P(f"s_cmp_lt_u32 {s(S_RB)}, 4\ns_cbranch_scc1 L_gspecial")
P.add(gather(False))
P("L_gdone:")
txt_of = lambda x: x.text if isinstance(x, Ins) else x
special_txt = "L_gspecial:\n" + "\n".join(("" if txt_of(x).endswith(":") else "    ") + txt_of(x) for x in gather(True)) + "\n    s_branch L_gdone\n"
def wo_dma(rsrc, tag):
    o = [f"s_lshl_b32 {s(S_T3)}, {s(S_W4)}, 17", f"s_lshl_b32 {s(S_T2)}, {s(S_CB)}, 7", f"s_add_u32 {s(S_T3)}, {s(S_T3)}, {s(S_T2)}",
         f"s_lshl_b32 {s(S_MX)}, {s(S_W4)}, 14", f"s_add_u32 {s(S_MX)}, {s(S_MX)}, {L_WO}"]
    for t in range(16):
        o += [f"s_add_u32 m0, {s(S_MX)}, {t*1024}"] + ([f"s_add_u32 {s(S_T3)}, {s(S_T3)}, 8192"] if t else [])
        o += [dma(VWO, rsrc, s(S_T3), 0, tag)]
    return o
P.add(wo_dma(S_WOA, "woa"))
B0, B1 = 168, 169
P(f"""v_lshrrev_b32 v32, 5, {v(V_LANE)}
v_bfe_u32 v33, {v(V_LANE)}, 2, 2
v_lshl_add_u32 v32, v32, 2, v33
v_and_b32 v33, 2, v33
v_bfe_u32 v34, {v(V_LANE)}, 4, 1
v_xor_b32 v33, v33, v34
s_and_b32 {s(S_T1)}, {s(S_W4)}, 1
s_lshl_b32 {s(S_T1)}, {s(S_T1)}, 1
v_xor_b32 v33, {s(S_T1)}, v33
v_lshlrev_b32 v33, 5, v33
v_lshl_add_u32 v32, v32, 7, v33
v_and_b32 v33, 3, {v(V_LANE)}
v_lshl_add_u32 v32, v33, 3, v32
v_add_u32 {v(B0)}, {s(S_MX)}, v32
v_xor_b32 {v(B1)}, 64, {v(B0)}
s_lshl_b32 {s(S_T0)}, {s(S_W4)}, 10
s_add_u32 {s(S_T0)}, {s(S_T0)}, {L_Q}
v_add_u32 v32, {s(S_T0)}, {v(V_L16)}""")
P.add(WaitTag("kv")); P.add(WaitLds()); P("s_barrier")
H.stamp()
P(f"ds_read_b128 {v(QA,4)}, v32")
wo_read = lambda dst, hs: [f"ds_read_b64_tr_b16 {v(dst+4*ct+2*j,2)}, {v((B0,B1)[ct])} offset:{hs*2048+j*1024}" for ct in range(2) for j in range(2)]
def h_woa(lo, hi):
    def f():
        P.add(WaitTag("woa"))
        for hs in range(lo, hi): P.add(wo_read(WOA + 8*hs, hs))
    return f
def o_poll_setup(br):
    if br:
        o = [f"v_and_b32 {v(V_FOFF)}, 7, {v(V_LANE)}", f"v_lshlrev_b32 {v(V_FOFF)}, 3, {v(V_FOFF)}", f"s_lshl_b32 {s(S_K)}, {s(S_RB3)}, 8"]
    else:
        o = [f"v_and_b32 {v(V_FOFF)}, 7, {v(V_LANE)}", f"v_bfe_u32 v0, {v(V_LANE)}, 3, 1", f"v_lshl_add_u32 {v(V_FOFF)}, v0, 5, {v(V_FOFF)}",
             f"v_lshlrev_b32 {v(V_FOFF)}, 3, {v(V_FOFF)}", f"s_lshl_b32 {s(S_K)}, {s(S_RB3)}, 9"]
    return o + [f"s_lshl_b32 {s(S_T1)}, {s(S_W4)}, 6", f"s_add_u32 {s(S_K)}, {s(S_K)}, {s(S_T1)}",
                f"s_add_u32 {s(S_K)}, {s(S_K)}, {WS_FOB if br else WS_FOA}", flag_load]
window_attention(H, 1, {1: h_woa(0, 3), 2: h_woa(3, 6), 3: h_woa(6, 8),
                        4: lambda: (P.add(WaitLds()), P.add(wo_dma(S_WOB, "wob"))),
                        6: lambda: P.add(o_poll_setup(1))})
OF, ACC3, WBF = 96, 32, 176
OPK = 164
P.add(o_pack(OACC, 0, 8, [f"v_mul_f32 {v(TMP)}, {v(TMP)}, {v(G0+1)}"], OPK, TMP))
P.add(o_store(0, 1, OPK, "oa"))
def o_gather(br):
    o = [f"s_lshl_b32 {s(S_T0)}, {s(S_RB3)}, 16", f"s_lshl_b32 {s(S_T1)}, {s(S_W4)}, 13", f"s_add_u32 {s(S_T0)}, {s(S_T0)}, {s(S_T1)}",
         f"s_lshr_b32 {s(S_T1)}, {s(S_W4)}, 1", f"s_lshl_b32 {s(S_T1)}, {s(S_T1)}, 15", f"s_add_u32 {s(S_T0)}, {s(S_T0)}, {s(S_T1)}",
         f"s_add_u32 {s(S_T0)}, {s(S_T0)}, {WS_O + br*(2<<20)}", f"s_xor_b32 {s(S_T1)}, {s(S_T0)}, 32768"]
    for hs in range(8):
        if hs == 4:
            o += [f"s_add_u32 {s(S_T0)}, {s(S_T0)}, 4096", f"s_add_u32 {s(S_T1)}, {s(S_T1)}, 4096"]
        o += [ws_ld(v(OF+8*hs+4*tt,4), V_L16, s((S_T0, S_T1)[tt]), (hs & 3)*1024, f"og{br}") for tt in range(2)]
    return o
H.poll(flag_cmp, flag_load)
H.stamp()
P.add(o_gather(1))
P(f"s_lshl_b32 {s(S_T2)}, {s(S_RB)}, 1\ns_add_u32 {s(S_T2)}, {s(S_T2)}, 1")
P.add(WaitTag("wob"))
P.add(wo_read(WBF, 0))
for hs in range(8):
    b = hs & 1
    rd = wo_read(WBF + 8*(1-b), hs + 1) if hs < 7 else []
    for i in range(4):
        P(mfma(v(ACC3+16*i,16), v(WBF+8*b+4*(i & 1),4), v(OF+8*hs+4*(i >> 1),4), "0" if hs == 0 else v(ACC3+16*i,16)))
        P.add(rd[i:i+1])
    if hs == 0:
        P.add(flag_store("oa", WS_FOA, S_T2, 5, S_HEAD))
        P.add(o_poll_setup(0))
H.stamp()
H.poll(flag_cmp, flag_load)
H.stamp()
P.add(o_gather(0))
EXW, EXR, VOUT = 160, 163, 164
P(f"""s_mul_i32 {s(S_T0)}, {s(S_W4)}, 12288
v_add_u32 {v(EXR)}, {s(S_T0)}, {v(V_L16)}""")
for i in range(1, 4):
    P(f"s_xor_b32 {s(S_T0)}, {s(S_W4)}, {i}\ns_mul_i32 {s(S_T0)}, {s(S_T0)}, 12288\nv_add_u32 {v(EXW+i-1)}, {s(S_T0)}, {v(V_L16)}")
P(f"""v_and_b32 {v(VOUT)}, 31, {v(V_LANE)}
v_lshlrev_b32 {v(VOUT)}, 10, {v(VOUT)}
v_lshrrev_b32 v0, 5, {v(V_LANE)}
v_lshl_add_u32 {v(VOUT)}, v0, 4, {v(VOUT)}
s_lshl_b32 {s(S_T0)}, {s(S_RB3)}, 16
s_lshr_b32 {s(S_T1)}, {s(S_W4)}, 1
s_lshl_b32 {s(S_T1)}, {s(S_T1)}, 15
s_add_u32 {s(S_T0)}, {s(S_T0)}, {s(S_T1)}
s_lshl_b32 {s(S_T1)}, {s(S_CB)}, 7
s_add_u32 {s(S_T0)}, {s(S_T0)}, {s(S_T1)}
s_and_b32 {s(S_T1)}, {s(S_W4)}, 1
s_lshl_b32 {s(S_T1)}, {s(S_T1)}, 6
s_add_u32 {s(S_T0)}, {s(S_T0)}, {s(S_T1)}
s_barrier""")
order = [(hs, i) for hs in range(7) for i in range(4)] + [(7, i) for i in (1, 2, 3, 0)]
for hs, i in order:
    P(mfma(v(ACC3+16*i,16), v(WOA+8*hs+4*(i & 1),4), v(OF+8*hs+4*(i >> 1),4), v(ACC3+16*i,16)))
H.stamp()
for i in range(1, 4):
    P.add([f"ds_write_b128 {v(EXW+i-1)}, {v(ACC3+16*i+4*q,4)} offset:{(i-1)*4096+q*1024}" for q in range(4)])
P.add(WaitLds()); P("s_barrier")
for q in range(4):
    P.add([f"ds_read_b128 {v(OF+16*i+4*q,4)}, {v(EXR)} offset:{i*4096+q*1024}" for i in range(3)])
for q in range(4):
    for i in range(3):
        P.add([f"v_pk_add_f32 {v(ACC3+4*q+2*k,2)}, {v(ACC3+4*q+2*k,2)}, {v(OF+16*i+4*q+2*k,2)}" for k in range(2)])
    P.add([f"v_cvt_pk_bf16_f32 {v(WBF+2*q+k)}, {v(ACC3+4*q+2*k)}, {v(ACC3+4*q+2*k+1)}" for k in range(2)])
    if q & 1:
        hf = q >> 1
        P(f"v_permlane32_swap_b32 {v(WBF+4*hf)}, {v(WBF+4*hf+2)}\nv_permlane32_swap_b32 {v(WBF+4*hf+1)}, {v(WBF+4*hf+3)}")
        P(f"buffer_store_dwordx4 {v(WBF+4*hf,4)}, {v(VOUT)}, {s(S_OUT,4)}, {s(S_T0)} offen{' offset:32' if hf else ''}{('', ' sc1', ' nt', ' sc0 sc1')[OPT['outsc']]}")
H.stamp()
H.finish()

C = Role("C"); P = C.P
T1, T3, T2 = 32, 64, 96
XB, WB = 128, 152
V_AX, V_T1L, V_T1H, V_T3L, V_T3H, V_T2L, V_T2H = 176, 180, 181, 182, 183, 184, 185
V_LO, V_HI, V_GPR, V_QW = 186, 187, 188, 189
CM, KA, KB, VPK, VB, QB, KBH, VBH = 192, 208, 216, 224, 32, 240, 248, 252
r5, hh, rr, cc, nh, u0, u1, cm = 128, 129, 130, 131, 132, 133, 134, 135
P("L_crole:")
if OPT["prio"]: P("s_setprio 1")
P(f"""
v_and_b32 {v(r5)}, 31, {v(V_LANE)}
v_lshrrev_b32 {v(hh)}, 5, {v(V_LANE)}
v_bfe_u32 {v(u0)}, {v(r5)}, 1, 3
v_xor_b32 {v(u0)}, {v(u0)}, {v(hh)}
v_lshlrev_b32 {v(u0)}, 4, {v(u0)}
v_lshl_add_u32 {v(u0)}, {v(r5)}, 7, {v(u0)}
v_add_u32 {v(V_AX)}, {L_X}, {v(u0)}
v_xor_b32 {v(V_AX+1)}, 32, {v(V_AX)}
v_xor_b32 {v(V_AX+2)}, 64, {v(V_AX)}
v_xor_b32 {v(V_AX+3)}, 0x60, {v(V_AX)}
v_bfe_u32 {v(rr)}, {v(V_LANE)}, 2, 2
v_and_b32 {v(cc)}, 3, {v(V_LANE)}
v_bfe_u32 {v(nh)}, {v(V_LANE)}, 4, 1
v_lshl_add_u32 {v(u0)}, {v(hh)}, 3, {v(rr)}
v_xor_b32 {v(u1)}, {s(S_W4)}, {v(rr)}
v_lshlrev_b32 {v(u1)}, 5, {v(u1)}
v_lshl_add_u32 {v(u1)}, {v(cc)}, 3, {v(u1)}
v_lshl_add_u32 {v(u1)}, {v(u0)}, 8, {v(u1)}
v_mul_u32_u24 {v(V_T1L)}, 0x2080, {v(nh)}
v_add_u32 {v(V_T1L)}, {v(V_T1L)}, {v(u1)}
v_add_u32 {v(V_T1H)}, 0x10000, {v(V_T1L)}
v_xor_b32 {v(V_T3L)}, 0x80, {v(V_T1L)}
v_xor_b32 {v(V_T3H)}, 0x80, {v(V_T1H)}
v_lshrrev_b32 {v(u1)}, 1, {v(rr)}
v_lshl_add_u32 {v(u1)}, {v(nh)}, 1, {v(u1)}
v_xor_b32 {v(u1)}, {s(S_W4)}, {v(u1)}
v_lshlrev_b32 {v(u1)}, 5, {v(u1)}
v_lshl_add_u32 {v(u1)}, {v(cc)}, 3, {v(u1)}
v_lshl_add_u32 {v(u1)}, {v(u0)}, 7, {v(u1)}
v_lshl_add_u32 {v(V_T2L)}, {v(nh)}, 13, {v(u1)}
v_add_u32 {v(V_T2H)}, 0x10000, {v(V_T2L)}
v_and_b32 {v(u0)}, 15, {v(V_LANE)}
v_lshlrev_b32 {v(u0)}, 4, {v(u0)}
v_lshl_add_u32 {v(u0)}, {v(hh)}, 8, {v(u0)}
v_lshl_add_u32 {v(V_LO)}, {v(nh)}, 31, {v(u0)}
v_xor_b32 {v(V_HI)}, {OOB}, {v(V_LO)}
v_lshlrev_b32 {v(V_GPR)}, 4, {v(r5)}
v_add_u32 {v(V_GPR)}, {L_GP}, {v(V_GPR)}
s_lshl_b32 {s(S_T2)}, {s(S_W4)}, 10
s_add_u32 {s(S_T2)}, {s(S_T2)}, {L_Q}
v_add_u32 {v(V_QW)}, {s(S_T2)}, {v(V_L16)}
v_lshlrev_b32 {v(u0)}, 2, {v(hh)}
v_sub_u32 {v(cm)}, {v(r5)}, {v(u0)}
s_waitcnt lgkmcnt(0)
s_memrealtime {s(S_TM,2)}
s_mov_b32 {s(S_C)}, {fhex(QK_SCALE)}
s_mov_b32 {s(S_C+1)}, {fhex(QK_SCALE)}
""")
def l2_prefetch():
    a, b = 140, 141
    o = lines(f"""s_lshr_b32 {s(S_T0)}, s2, 3
s_and_b32 {s(S_T1)}, {s(S_HG)}, 4
s_lshl_b32 {s(S_T1)}, {s(S_T1)}, 7
v_and_b32 {v(a)}, 3, {v(V_LANE)}
v_lshlrev_b32 {v(a)}, 7, {v(a)}
s_cmp_eq_u32 {s(S_W4)}, 2
s_cbranch_scc1 L_pfx
s_cmp_eq_u32 {s(S_W4)}, 3
s_cbranch_scc1 L_pfq
s_cmp_eq_u32 {s(S_W4)}, 0
s_cselect_b32 {s(S_W)}, s6, s12
s_cselect_b32 {s(S_W+1)}, s7, s13
s_mov_b32 {s(S_W+2)}, 1572864
s_mov_b32 {s(S_W+3)}, 0x20000
v_bfe_u32 {v(b)}, {v(V_LANE)}, 2, 1
v_lshl_add_u32 {v(a)}, {v(b)}, 10, {v(a)}
v_lshrrev_b32 {v(b)}, 3, {v(V_LANE)}
v_mul_u32_u24 {v(b)}, 0xc00, {v(b)}
v_add_u32 {v(a)}, {v(a)}, {v(b)}
s_mul_i32 {s(S_T0)}, {s(S_T0)}, {8*3072}
s_add_u32 {s(S_T0)}, {s(S_T0)}, {s(S_T1)}
s_add_u32 {s(S_T0)}, {s(S_T0)}, 1024
buffer_load_dword v190, {v(a)}, {s(S_W,4)}, {s(S_T0)} offen
s_add_u32 {s(S_T0)}, {s(S_T0)}, {256*3072}
buffer_load_dword v191, {v(a)}, {s(S_W,4)}, {s(S_T0)} offen
s_branch L_pfe
L_pfx:
s_mov_b32 {s(S_W)}, s4
s_mov_b32 {s(S_W+1)}, s5
s_mov_b32 {s(S_W+2)}, 2097152
s_mov_b32 {s(S_W+3)}, 0x20000
v_lshrrev_b32 {v(b)}, 2, {v(V_LANE)}
v_lshl_add_u32 {v(a)}, {v(b)}, 10, {v(a)}
s_lshl_b32 {s(S_T0)}, {s(S_T0)}, 14
s_and_b32 {s(S_T1)}, {s(S_RB)}, 24
s_lshl_b32 {s(S_T1)}, {s(S_T1)}, 16
s_add_u32 {s(S_T0)}, {s(S_T0)}, {s(S_T1)}
buffer_load_dword v190, {v(a)}, {s(S_W,4)}, {s(S_T0)} offen
buffer_load_dword v191, {v(a)}, {s(S_W,4)}, {s(S_T0)} offen offset:512
s_branch L_pfe
L_pfq:
s_mov_b32 {s(S_W)}, s6
s_mov_b32 {s(S_W+1)}, s7
s_mov_b32 {s(S_W+2)}, 1572864
s_mov_b32 {s(S_W+3)}, 0x20000
v_lshrrev_b32 {v(b)}, 2, {v(V_LANE)}
v_mul_u32_u24 {v(b)}, 0xc00, {v(b)}
v_add_u32 {v(a)}, {v(a)}, {v(b)}
s_mul_i32 {s(S_T0)}, {s(S_T0)}, {16*3072}
s_add_u32 {s(S_T0)}, {s(S_T0)}, {s(S_T1)}
buffer_load_dword v190, {v(a)}, {s(S_W,4)}, {s(S_T0)} offen
s_mov_b32 {s(S_W)}, s12
s_mov_b32 {s(S_W+1)}, s13
buffer_load_dword v191, {v(a)}, {s(S_W,4)}, {s(S_T0)} offen
L_pfe:""")
    P.add(Raw("\n".join(("" if l.endswith(":") else "    ") + l for l in o)))
    P("s_nop 0")
if OPT["pf"] == 1: l2_prefetch()
P.add(srd(S_WS, 22, WS_SIZE) + srd(S_DBG, 20, 256))
P(f"""s_cmp_eq_u32 s2, 0
s_cselect_b32 {s(S_T2)}, 0, {OOB}
v_lshlrev_b32 v5, 8, v0
v_or_b32 v5, {s(S_T2)}, v5
s_waitcnt lgkmcnt(0)
v_mov_b32 {v(EP)}, {s(S_TM)}
v_mov_b32 {v(EP+1)}, {s(S_TM+1)}
buffer_store_dwordx2 {v(EP,2)}, v5, {s(S_DBG,4)}, 0 offen sc1""")
for q in range(16):
    P(f"""v_subrev_u32 {v(CM+q)}, {8*(q>>2)+(q&3)}, {v(cm)}
v_and_b32 {v(CM+q)}, 17, {v(CM+q)}
v_cvt_f32_u32 {v(CM+q)}, {v(CM+q)}
v_mul_f32 {v(CM+q)}, {hex(NEG_BIG)}, {v(CM+q)}""")
P.add(attn_setup(0, 136))
P.add([f"v_mov_b32 {v(VBH+i)}, {hex(ONES)}" for i in range(4)])
if OPT["pf"] == 2: l2_prefetch()
C.stamp()

def frag_reads(n):
    b, m = n % 3, n & 31
    j, ux = m >> 2, m & 3
    base = (stage_of(n) % NSLOT) * SLOT
    hi = base >= 65536; off = base - (65536 if hi else 0)
    x = [f"ds_read_b128 {v(XB+8*b+4*tt,4)}, {v(V_AX+ux)} offset:{j*8192+tt*4096}" for tt in range(2)]
    if n < 32:
        w = [f"ds_read_b64_tr_b16 {v(WB+8*b+4*t+2*qd,2)}, {v(((V_T1L,V_T1H),(V_T3L,V_T3H))[t][hi])} offset:{off+(n&1)*4096+qd*1024}"
             for t in range(2) for qd in range(2)]
        return [w[0], x[0], w[1], w[2], x[1], w[3]]
    w = [f"ds_read_b64_tr_b16 {v(WB+8*b+2*qd,2)}, {v((V_T2L,V_T2H)[hi])} offset:{off+ux*2048+qd*512}" for qd in range(2)]
    return [w[0], x[0], w[1], x[1]]
def step_mfmas(n):
    b = n % 3
    x = lambda tt: v(XB+8*b+4*tt, 4)
    c = lambda r: "0" if n in (0, 32) else v(r, 16)
    if n < 32:
        return [mfma(v(T1,16), v(WB+8*b,4), x(0), c(T1)), mfma(v(T3,16), x(0), v(WB+8*b+4,4), c(T3)),
                mfma(v(T1+16,16), v(WB+8*b,4), x(1), c(T1+16)), mfma(v(T3+16,16), x(1), v(WB+8*b+4,4), c(T3+16))]
    return [mfma(v(T2,16), v(WB+8*b,4), x(0), c(T2)), mfma(v(T2+16,16), v(WB+8*b,4), x(1), c(T2+16))]
def kv_publish():
    o = [f"s_lshl_b32 {s(S_T0)}, {s(S_HEAD)}, 17", f"s_lshl_b32 {s(S_T1)}, {s(S_RB)}, 12", f"s_add_u32 {s(S_T0)}, {s(S_T0)}, {s(S_T1)}"]
    for tt in range(2):
        o += [f"v_pk_mul_f32 {v(T1+16*tt+2*i,2)}, {v(T1+16*tt+2*i,2)}, {s(S_C,2)}" for i in range(4)]
        o += [f"v_cvt_pk_bf16_f32 {v(KA+4*tt+i)}, {v(T1+16*tt+2*i)}, {v(T1+16*tt+2*i+1)}" for i in range(4)]
        o += [ws_st(v(KA+4*tt,4), V_L16, s(S_T0), tt*2048, "kv")]
    for tt in range(2):
        for m in range(2):
            o += [f"v_cvt_pk_bf16_f32 {v(VPK+8*tt+4*m+i)}, {v(T3+16*tt+8*m+2*i)}, {v(T3+16*tt+8*m+2*i+1)}" for i in range(4)]
            o += [ws_st(v(VPK+8*tt+4*m,4), V_LO, s(S_T0), tt*2048+1024+m*512, "kv")]
    o += [f"s_lshl_b32 {s(S_T0)}, {s(S_HEAD)}, 15", f"s_lshl_b32 {s(S_T1)}, {s(S_RB)}, 10",
          f"s_add_u32 {s(S_T0)}, {s(S_T0)}, {s(S_T1)}", f"s_add_u32 {s(S_T0)}, {s(S_T0)}, {WS_HB}",
          ws_st(v(VPK+12,4), V_HI, s(S_T0), 512, "kv")]
    for tt in (1, 0):
        o += [f"v_pk_mul_f32 {v(T1+16*tt+8+2*i,2)}, {v(T1+16*tt+8+2*i,2)}, {s(S_C,2)}" for i in range(4)]
        o += [f"v_cvt_pk_bf16_f32 {v(KB+4*tt+i)}, {v(T1+16*tt+8+2*i)}, {v(T1+16*tt+8+2*i+1)}" for i in range(4)]
        if tt == 1: o += [ws_st(v(KB+4,4), V_HI, s(S_T0), 0, "kv")]
    o += [f"v_mov_b32 {v(TMP)}, {hex(ONES)}"]
    o += [f"v_cndmask_b32 {v(VB+i)}, {v(VPK+i)}, {v(TMP)}, {s(S_LO16,2)}" for i in range(16)]
    return o

P("s_barrier")
C.stamp()
P.add(frag_reads(0)); P.add(frag_reads(1))
queue = []
for n in range(64):
    mf = step_mfmas(n)
    sync = first_of_stage(n + 2) or n == 62
    rd = frag_reads(n + 2) if n < 62 else []
    if n == 20: queue += [ep_load]
    if n == 32: queue += kv_publish()
    if n == 46: queue += gate_finish([0, 1], V_GPR, T3)
    take = 5 if n >= 32 else 1
    side = queue[:take]; queue = queue[take:]
    P(mf[0])
    if sync:
        P.add(WaitLds()); P("s_barrier")
        if OPT["fine"]: C.stamp()
    if n < 32:
        P.add(rd[0:2]); P(mf[1]); P.add(rd[2:4]); P(mf[2]); P.add(rd[4:6]); P(mf[3]); P.add(side)
    else:
        P.add(rd[0:2]); P.add(side[:2]); P(mf[1]); P.add(rd[2:4]); P.add(side[2:])
    if n == 31: C.stamp()
    if n == OPT["kvflag"]:
        C.poll(f"v_cmp_ne_u64 vcc, 0, {v(EP,2)}", ep_load)
        P.add(flag_store("kv", WS_FKV, S_HEAD, 5, S_RB))
        C.stamp()
    if n == 60:
        P(f"""s_sub_u32 {s(S_T1)}, {s(S_RB)}, 1
s_max_i32 {s(S_T1)}, {s(S_T1)}, 0
s_lshl_b32 {s(S_K)}, {s(S_HEAD)}, 5
s_add_u32 {s(S_K)}, {s(S_K)}, {s(S_T1)}
s_lshl_b32 {s(S_K)}, {s(S_K)}, 3
s_add_u32 {s(S_K)}, {s(S_K)}, {WS_FKV}
v_mov_b32 {v(V_FOFF)}, 0""")
        P(flag_load)
assert not queue
C.stamp()
C.poll(flag_cmp, flag_load)
P(f"""s_lshl_b32 {s(S_T0)}, {s(S_HEAD)}, 15
s_lshl_b32 {s(S_T1)}, {s(S_RB)}, 10
s_add_u32 {s(S_T0)}, {s(S_T0)}, {s(S_T1)}
s_add_u32 {s(S_T0)}, {s(S_T0)}, {WS_HB - 1024}
s_cmp_eq_u32 {s(S_RB)}, 0
s_cselect_b32 {s(S_T0)}, {WS_SIZE}, {s(S_T0)}
s_cselect_b64 {s(S_X,2)}, {s(S_LO16,2)}, 0""")
P.add([ws_ld(v(KBH,4), V_HI, s(S_T0)), f"s_not_b64 exec, {s(S_LO16,2)}", ws_ld(v(VBH,4), V_HI, s(S_T0), 512), "s_mov_b64 exec, -1"])
QA1 = 208
P.add([f"v_cvt_pk_bf16_f32 {v(QB+4+i)}, {v(T2+16+8+2*i)}, {v(T2+16+8+2*i+1)}" for i in range(4)])
BS, BSP, BO, BP, BPL = 48, 64, 128, 160, 168
def b_scores(t):
    kprev = v(KB, 4) if t == 1 else v(KBH, 4)
    return [mfma(v(BS+32*(1-t),16), v(KB+4*t,4), v(QB+4*t,4), v(CM,16)),
            mfma(v(BSP+80*(1-t),16), kprev, v(QB+4*t,4), v(CM,16))]
def b_softmax(t):
    S, sp, m = BS + 32*(1-t), BSP + 80*(1-t), TMP
    o = [f"v_cndmask_b32 {v(S+q)}, {v(S+q)}, {v(sp+q)}, {s(S_LO16,2)}" for q in range(8, 16)]
    if t == 0:
        o += [f"v_mov_b32 {v(m)}, {hex(NEG_BIG)}"]
        o += [f"v_cndmask_b32 {v(S+q)}, {v(S+q)}, {v(m)}, {s(S_X,2)}" for q in range(8, 16)]
    o += max_tree(m, range(S, S+16)) + cross_max(m, m+1)
    o += [f"v_sub_f32 {v(S+q)}, {v(S+q)}, {v(m)}" for q in range(16)]
    o += [f"v_exp_f32 {v(S+q)}, {v(S+q)}" for q in range(16)]
    o += [f"v_cvt_pk_bf16_f32 {v(BP+i)}, {v(S+2*i)}, {v(S+2*i+1)}" for i in range(8)]
    o += [f"v_cndmask_b32 {v(BPL+i)}, 0, {v(BP+4+i)}, {s(S_LO16,2)}" for i in range(4)]
    o += [f"v_cndmask_b32 {v(BP+4+i)}, {v(BP+4+i)}, 0, {s(S_LO16,2)}" for i in range(4)]
    return o
def b_pv(t):
    vprev = v(VB+4, 4) if t == 1 else v(VBH, 4)
    acc = v(BO - 32*(1-t), 16)
    return [mfma(acc, v(VB+8*t,4), v(BP,4), "0"), mfma(acc, v(VB+8*t+4,4), v(BP+4,4), acc), mfma(acc, vprev, v(BPL,4), acc)]
def b_pack(t):
    f = TMP + 2
    return o_pack(BO - 32*(1-t), 8, 0, [f"v_sub_f32 {v(f+1)}, 1.0, {v(G0+t)}", f"v_mul_f32 {v(f)}, {v(f)}, {v(f+1)}"], KA + 4*t, f) + o_store(1, t, KA + 4*t, "ob")
P.add(b_scores(1))
P.add([f"v_cvt_pk_bf16_f32 {v(QA1+i)}, {v(T2+16+2*i)}, {v(T2+16+2*i+1)}" for i in range(4)])
P(f"ds_write_b128 {v(V_QW)}, {v(QA1,4)}")
P.add([f"v_cvt_pk_bf16_f32 {v(QB+i)}, {v(T2+8+2*i)}, {v(T2+8+2*i+1)}" for i in range(4)])
P.add([f"v_cvt_pk_bf16_f32 {v(QA+i)}, {v(T2+2*i)}, {v(T2+2*i+1)}" for i in range(4)])
sm1 = b_softmax(1)
P.add(sm1[:44]); P.add(b_scores(0)); P.add(sm1[44:])
sm0, pv1, pk1 = b_softmax(0), b_pv(1), b_pack(1)
P.add(sm0[:2]); P(pv1[0]); P.add(sm0[2:10]); P(pv1[1]); P.add(sm0[10:18]); P(pv1[2]); P.add(sm0[18:44])
P.add(pk1); P.add(sm0[44:])
P.add(b_pv(0))
C.stamp()
P.add(WaitLds()); P("s_barrier")
C.stamp()
pk0 = b_pack(0)
window_attention(C, 0, {"m0": lambda: P.add(pk0),
                        3: lambda: P.add(flag_store("ob", WS_FOB, S_RB, 5, S_HEAD))})
P.add(o_pack(OACC, 0, 8, [f"v_mul_f32 {v(TMP)}, {v(TMP)}, {v(G0)}"], PF, TMP))
P.add(o_store(0, 0, PF, "oa"))
P(f"s_lshl_b32 {s(S_T2)}, {s(S_RB)}, 1")
P.add(flag_store("oa", WS_FOA, S_T2, 5, S_HEAD))
C.stamp()
C.finish()

full = Prog(); full.items = E.items + H.P.items
bodyH = finalize(full, verbose=True)
full = Prog(); full.items = [Ins("s_load_dwordx16 s[4:19], s[0:1], 0"), Ins("global_load_dword v13, v5, s[96:97]")] + C.P.items
bodyC = "\n".join(finalize(full, verbose=True).split("\n")[2:])
print("stamps H", H.ns, "C", C.ns)
hdr = open("cdna_kernels/%s.s.ref" % NAME).read().split("; Override launch")[0]
txt = hdr + f"""; One launch: 256 workgroups (4 heads x 64 rows each), 8 waves, hand-offs through d_ws tagged with a per-launch epoch.
; @launch grid=(256,1,1) block=(512,1,1) lds={LDS_BYTES}
.amdgcn_target "amdgcn-amd-amdhsa--gfx950"
.text
.globl {NAME}_kernel
.p2align 8
.type {NAME}_kernel,@function
{NAME}_kernel:
{bodyH}{special_txt}{bodyC}L_end:
    s_endpgm
    .fill 3072, 4, 0xbf800000
.section .rodata,"a"
.p2align 6
.amdhsa_kernel {NAME}_kernel
  .amdhsa_next_free_vgpr 256
  .amdhsa_next_free_sgpr 102
  .amdhsa_accum_offset 256
  .amdhsa_group_segment_fixed_size 0
  .amdhsa_kernarg_size 80
  .amdhsa_user_sgpr_count 2
  .amdhsa_user_sgpr_kernarg_segment_ptr 1
  .amdhsa_system_sgpr_workgroup_id_x 1
.end_amdhsa_kernel
"""
open(sys.argv[1], "w").write(txt)
```

```python
import sys, math, struct
from asmdsl import Prog, Ins, WaitTag, WaitLds, Raw, finalize

NAME = "gated_mix__sliding_block__sliding_local_dilated__prompt"
OPT = dict(wopf=1, oa1at=3, sent=-1, cprio=1, obtry=6, take=8, hprio=1, tlb=1, cpf=3, xmap=3, rotmode=4, p1only=0, ampclk=0, pf=0, stamps=0, standin=1, amp=-1, ampk=8, amprole=1, rotmask=7, kvflag=47, fine=0, outsc=0, prio=0, touch=0)
for a in sys.argv[2:]:
    k, v_ = a.split("="); assert k in OPT, k; OPT[k] = int(v_)

WS_KV, WS_HB, WS_O = 0, 4 << 20, 5 << 20
WS_FKV, WS_FOB, WS_FOA = 9 << 20, (9 << 20) + 65536, (9 << 20) + 131072
WS_STAMP, WS_SIZE = 10 << 20, 64 << 20
OOB = 0x80000000
NSLOT, SLOT = 5, 16384
L_X, L_G, L_GP, L_Q, LDS_BYTES = 81920, 148480, 149504, 150528, 154624
KVS, KVH, L_WO = 2064, 20640, 82944
QK_SCALE = 0.25 * math.log2(math.e)
NEG_BIG, ONES = 0xf149f2ca, 0x3f803f80

def fhex(x): return "0x%08x" % struct.unpack("<I", struct.pack("<f", x))[0]
def v(a, n=1): return f"v{a}" if n == 1 else f"v[{a}:{a+n-1}]"
def s(a, n=1): return f"s{a}" if n == 1 else f"s[{a}:{a+n-1}]"
def lines(t): return [l.strip() for l in t.strip().split("\n") if l.strip()]
def mfma(d, a, b, c): return f"v_mfma_f32_32x32x16_bf16 {d}, {a}, {b}, {c}"
def srd(base, ptr, nbytes):
    return [f"s_mov_b32 {s(base)}, {s(ptr)}", f"s_mov_b32 {s(base+1)}, {s(ptr+1)}",
            f"s_mov_b32 {s(base+2)}, {nbytes}", f"s_mov_b32 {s(base+3)}, 0x20000"]
def interleave(*ls):
    o, ls = [], [list(l) for l in ls]
    while any(ls):
        for l in ls:
            if l: o.append(l.pop(0))
    return o

S_X, S_W, S_WS, S_WOA, S_WOB, S_OUT, S_DBG, S_G = 24, 28, 32, 36, 40, 44, 48, 36
S_W4, S_HG, S_RB, S_ROT, S_HEAD, S_RB3, S_CB = 52, 53, 54, 55, 56, 57, 58
S_K, S_T0, S_MW, S_MX, S_T1 = 59, 60, 61, 62, 63
S_MASK, S_T2, S_T3, S_LO16, S_TM, S_C, S_SPIN = 64, 96, 97, 98, 100, 10, 3
V_LANE, V_L16, V_STAMP, V_FOFF = 1, 2, 3, 4
EP, FLG = 6, 8
V_AK, V_AV0, V_AV1 = 10, 11, 12
G0 = 14
PM, QA = 16, 24
TMP = 28
SB, NEGM, MG = 32, 64, 80
PB, PF, OACC, KF, VF = 96, 112, 120, 136, 144

class Role:
    def __init__(self, name):
        self.P, self.name, self.ns, self.nl = Prog(), name, 0, 0
    def stamp(self):
        P = self.P
        if OPT["amp"] == self.ns and OPT["amprole"] == (self.name == "H"):
            P.add(WaitLds())
            P(f"{'s_memtime' if OPT['ampclk'] else 's_memrealtime'} {s(S_TM,2)}\ns_waitcnt lgkmcnt(0)\nv_writelane_b32 {v(V_STAMP)}, {s(S_TM)}, 1")
        if OPT["stamps"]:
            P.add(WaitLds())
            P(f"s_memtime {s(S_TM,2)}\ns_waitcnt lgkmcnt(0)\nv_writelane_b32 {v(V_STAMP)}, {s(S_TM)}, {self.ns + 1}")
        self.ns += 1
    def poll(self, cmp_txt, reload_txt):
        P, n = self.P, f"{self.name}{self.nl}"; self.nl += 1
        P(f"s_mov_b32 {s(S_SPIN)}, 0x40000"); P(cmp_txt)
        P(f"s_cmp_eq_u64 vcc, -1\ns_cbranch_scc1 L_pok{n}")
        P.add(Raw(f"""L_pspin{n}:
    {reload_txt}
    s_sub_u32 {s(S_SPIN)}, {s(S_SPIN)}, 1
    s_cbranch_scc1 L_pok{n}
    s_waitcnt vmcnt(0)
    {cmp_txt}
    s_nop 2
    s_cmp_eq_u64 vcc, -1
    s_cbranch_scc0 L_pspin{n}
L_pok{n}:"""))
    def finish(self):
        P = self.P
        if OPT["stamps"]:
            P(f"s_memrealtime {s(S_TM,2)}\ns_waitcnt lgkmcnt(0) vmcnt(0)\nv_writelane_b32 {v(V_STAMP)}, {s(S_TM)}, 63")
            P(f"""s_lshl_b32 {s(S_T0)}, s2, 3
s_add_u32 {s(S_T0)}, {s(S_T0)}, {s(S_W4)}
s_add_u32 {s(S_T0)}, {s(S_T0)}, {4 if self.name == "H" else 0}
s_lshl_b32 {s(S_T0)}, {s(S_T0)}, 8
s_add_u32 {s(S_T0)}, {s(S_T0)}, {WS_STAMP}
v_lshlrev_b32 v0, 2, {v(V_LANE)}
buffer_store_dword {v(V_STAMP)}, v0, {s(S_WS,4)}, {s(S_T0)} offen""")
        if OPT["amp"] >= 0 and OPT["amprole"] == (self.name == "H"):
            P(f"""s_cmp_lg_u32 s2, 100
s_cbranch_scc1 L_end
v_readlane_b32 {s(S_T0)}, {v(V_STAMP)}, 0
v_readlane_b32 {s(S_T1)}, {v(V_STAMP)}, 1
s_memrealtime {s(S_TM,2)}
s_sub_u32 {s(S_T1)}, {s(S_T1)}, {s(S_T0)}
s_mul_i32 {s(S_T1)}, {s(S_T1)}, {OPT["ampk"]}
s_lshr_b32 {s(S_T1)}, {s(S_T1)}, {4 if OPT["ampclk"] else 0}
s_min_u32 {s(S_T1)}, {s(S_T1)}, 100000
s_waitcnt lgkmcnt(0)
s_mov_b32 {s(S_T0)}, {s(S_TM)}""")
            P.add(Raw(f"""L_amp{self.name}:
    s_memrealtime {s(S_TM,2)}
    s_waitcnt lgkmcnt(0)
    s_sub_u32 {s(S_K)}, {s(S_TM)}, {s(S_T0)}
    s_cmp_lt_u32 {s(S_K)}, {s(S_T1)}
    s_cbranch_scc1 L_amp{self.name}"""))
        P("s_endpgm")

ws_ld = lambda dst, voff, soff, imm=0, tag=None: Ins(
    f"buffer_load_dwordx4 {dst}, {v(voff)}, {s(S_WS,4)}, {soff} offen{' offset:%d' % imm if imm else ''} sc1", tag)
ws_st = lambda src, voff, soff, imm=0, tag=None: Ins(
    f"buffer_store_dwordx4 {src}, {v(voff)}, {s(S_WS,4)}, {soff} offen{' offset:%d' % imm if imm else ''} sc1", tag)
ep_load = f"buffer_load_dwordx2 {v(EP,2)}, off, {s(S_DBG,4)}, 0 sc1"
flag_load = f"buffer_load_dwordx2 {v(FLG,2)}, {v(V_FOFF)}, {s(S_WS,4)}, {s(S_K)} offen sc1"
flag_cmp = f"v_cmp_eq_u64 vcc, {v(FLG,2)}, {v(EP,2)}"
def flag_store(data_tag, base, hi_reg, hi_shift, lo_reg):
    return [WaitTag(data_tag), f"s_lshl_b32 {s(S_T0)}, {s(hi_reg)}, {hi_shift}", f"s_add_u32 {s(S_T0)}, {s(S_T0)}, {s(lo_reg)}",
            f"s_lshl_b32 {s(S_T0)}, {s(S_T0)}, 3", f"s_add_u32 {s(S_T0)}, {s(S_T0)}, {base}",
            f"v_lshlrev_b32 v0, 26, {v(V_LANE)}",
            Ins(f"buffer_store_dwordx2 {v(EP,2)}, v0, {s(S_WS,4)}, {s(S_T0)} offen sc1", "flag")]

def max_tree(dst, regs, init=False):
    regs, o = list(regs), []
    if not init:
        o.append(f"v_max3_f32 {v(dst)}, {v(regs[0])}, {v(regs[1])}, {v(regs[2])}"); regs = regs[3:]
    while len(regs) >= 2:
        o.append(f"v_max3_f32 {v(dst)}, {v(dst)}, {v(regs[0])}, {v(regs[1])}"); regs = regs[2:]
    if regs: o.append(f"v_max_f32 {v(dst)}, {v(dst)}, {v(regs[0])}")
    return o
def cross_max(m, t):
    return [f"v_mov_b32 {v(t)}, {v(m)}", f"v_permlane32_swap_b32 {v(m)}, {v(t)}", f"v_max_f32 {v(m)}, {v(m)}, {v(t)}"]

def attn_setup(t, tmp):
    r5, hh, cm, u = tmp, tmp + 1, tmp + 2, tmp + 3
    o = lines(f"""v_and_b32 {v(r5)}, 31, {v(V_LANE)}
v_lshrrev_b32 {v(hh)}, 5, {v(V_LANE)}
v_lshlrev_b32 {v(u)}, 2, {v(hh)}
v_sub_u32 {v(cm)}, {v(r5)}, {v(u)}
s_mul_i32 {s(S_T2)}, {s(S_W4)}, {KVH}
s_add_u32 {s(S_T2)}, {s(S_T2)}, {t*KVS}
v_add_u32 {v(V_AK)}, {s(S_T2)}, {v(V_L16)}
v_and_b32 {v(u)}, 15, {v(V_LANE)}
v_lshlrev_b32 {v(u)}, 4, {v(u)}
v_lshl_add_u32 {v(u)}, {v(hh)}, 8, {v(u)}
v_mov_b32 {v(hh)}, 0x400
v_cndmask_b32 {v(V_AV0)}, {v(hh)}, {v(u)}, {s(S_LO16,2)}
v_mov_b32 {v(hh)}, 0x200
v_cndmask_b32 {v(V_AV1)}, {v(hh)}, {v(u)}, {s(S_LO16,2)}
v_add_u32 {v(V_AV0)}, {s(S_T2)}, {v(V_AV0)}
v_add_u32 {v(V_AV1)}, {s(S_T2)}, {v(V_AV1)}
v_mov_b32 {v(u)}, 0xffff""")
    o += [f"v_cmp_le_i32 {s(S_MASK+2*q,2)}, {8*(q>>2)+(q&3)}, {v(cm)}" for q in range(16)]
    o += [f"v_cndmask_b32 {v(PM+pq)}, 0, {v(u)}, {s(S_MASK+4*pq,2)}" for pq in range(8)]
    o += [f"v_cndmask_b32 {v(PM+pq)}, {v(PM+pq)}, -1, {s(S_MASK+4*pq+2,2)}" for pq in range(8)]
    return o

def gate_finish(tiles, addr, tmp):
    o = [f"ds_read_b128 {v(tmp+4*t,4)}, {v(addr)} offset:{512*t}" for t in tiles]
    seq = []
    for t in tiles:
        b = tmp + 4*t
        seq.append([f"v_add_f32 {v(b)}, {v(b)}, {v(b+1)}", f"v_add_f32 {v(b+2)}, {v(b+2)}, {v(b+3)}",
                    f"v_add_f32 {v(b)}, {v(b)}, {v(b+2)}", f"v_mul_f32 {v(b)}, {fhex(-math.log2(math.e))}, {v(b)}",
                    f"v_exp_f32 {v(b)}, {v(b)}", f"v_add_f32 {v(b)}, 1.0, {v(b)}", f"v_rcp_f32 {v(G0+t)}, {v(b)}"])
    return o + interleave(*seq)

def o_pack(acc, o0, lreg, fac, dst, f):
    return ([f"v_rcp_f32 {v(f)}, {v(acc+lreg)}"] + fac +
            [f"v_mul_f32 {v(acc+o0+i)}, {v(f)}, {v(acc+o0+i)}" for i in range(8)] +
            [f"v_cvt_pk_bf16_f32 {v(dst+i)}, {v(acc+o0+2*i)}, {v(acc+o0+2*i+1)}" for i in range(4)])
def o_store(br, tt, src, tag):
    return [f"s_lshl_b32 {s(S_T0)}, {s(S_RB)}, 17", f"s_lshl_b32 {s(S_T1)}, {s(S_HEAD)}, 10",
            f"s_add_u32 {s(S_T0)}, {s(S_T0)}, {s(S_T1)}", f"s_add_u32 {s(S_T0)}, {s(S_T0)}, {WS_O + br*65536 + tt*32768}",
            ws_st(v(src,4), V_L16, s(S_T0), 0, tag)]

def window_attention(R, t, events):
    P = R.P
    kread = lambda u, b: f"ds_read_b128 {v(KF+4*b,4)}, {v(V_AK)} offset:{u*KVS}"
    vread = lambda u, b: [f"ds_read_b128 {v(VF+8*b,4)}, {v(V_AV0)} offset:{u*KVS+1024}",
                          f"ds_read_b128 {v(VF+8*b+4,4)}, {v(V_AV1)} offset:{u*KVS+1536}"]
    q, M = v(QA, 4), TMP
    ev = lambda key: events.pop(key)() if key in events else None
    P(kread(8, 0)); P(kread(0, 1))
    P(mfma(v(MG,16), v(KF,4), q, "0")); P(kread(1, 0))
    P(mfma(v(SB+16,16), v(KF+4,4), q, "0"))
    P.add(vread(8, 0)); P.add(vread(0, 1))
    ev("m0")
    if not OPT["standin"]:
        P(mfma(v(SB,16), v(KF,4), q, "0")); P(kread(2, 1))
    P.add([f"v_cndmask_b32 {v(MG+i)}, {v(SB+16+i)}, {v(MG+i)}, {s(S_MASK+2*i,2)}" for i in range(16)])
    P.add(max_tree(M, range(MG, MG+16)))
    if not OPT["standin"]:
        for u in range(1, 8):
            cur = SB + 16*((u+1) & 1); nxt = SB + 16*(u & 1)
            if u < 7:
                P(mfma(v(nxt,16), v(KF+4*(u & 1),4), q, "0"))
            nk = u + 2 if u < 6 else (1 if u == 7 else None)
            if u < 6: P(kread(u + 2, (u+1) & 1))
            if u == 6: P(kread(1, 1 - (u & 1)))
            P.add(max_tree(M, range(cur, cur+16), init=True))
        kb = 1
    else:
        kb = 0
    P.add(cross_max(M, M+1))
    R.stamp()
    P.add([f"v_sub_f32 {v(NEGM+i)}, 0, {v(M)}" for i in range(16)])
    P(mfma(v(SB,16), v(KF+4*kb,4), q, v(NEGM,16))); P(kread(2, 1-kb))
    ev("e0")
    acc = v(OACC, 16)
    P.add([f"v_pk_add_f32 {v(MG+2*i,2)}, {v(MG+2*i,2)}, {v(NEGM,2)}" for i in range(8)])
    P.add([f"v_exp_f32 {v(MG+i)}, {v(MG+i)}" for i in range(16)])
    P.add([f"v_cvt_pk_bf16_f32 {v(PF+i)}, {v(MG+2*i)}, {v(MG+2*i+1)}" for i in range(8)])
    P.add([f"v_and_b32 {v(PB+8+i)}, {v(PM+i)}, {v(PF+i)}" for i in range(4)])
    P.add([f"v_xor_b32 {v(PF+i)}, {v(PF+i)}, {v(PB+8+i)}" for i in range(4)])
    P(mfma(acc, v(VF,4), v(PB+8,4), "0"))
    P.add([f"v_and_b32 {v(PB+12+i)}, {v(PM+4+i)}, {v(PF+4+i)}" for i in range(4)])
    P.add([f"v_xor_b32 {v(PF+4+i)}, {v(PF+4+i)}, {v(PB+12+i)}" for i in range(4)])
    P(mfma(acc, v(VF+8,4), v(PF,4), acc))
    pend = [mfma(acc, v(VF+4,4), v(PB+12,4), acc), mfma(acc, v(VF+12,4), v(PF+4,4), acc)]
    pend_rd = vread(1, 0)
    ev("e1")
    for u in range(1, 8):
        S = SB + 16*((u+1) & 1); Sn = SB + 16*(u & 1); Pp = PB + 8*((u+1) & 1); vb = (u+1) & 1
        kcur = (kb + u) & 1
        e = [f"v_exp_f32 {v(S+i)}, {v(S+i)}" for i in range(16)]
        c = [f"v_cvt_pk_bf16_f32 {v(Pp+k)}, {v(S+2*k)}, {v(S+2*k+1)}" for k in range(8)]
        P.add(e[0:2])
        if len(pend) > 1:
            P(pend.pop(0)); P.add(e[2:5]); P(pend.pop(0)); P.add(pend_rd); P.add(e[5:6]); pend_rd = []
        else:
            P(pend.pop(0)); P.add(e[2:6])
        if u < 7:
            P.add(vread(u + 1, 1 - vb))
            P(mfma(v(Sn,16), v(KF+4*kcur,4), q, v(NEGM,16)))
            if u < 6: P(kread(u + 2, 1 - kcur))
        P.add(e[6:8]); P.add(c[0:4]); P.add(e[8:10])
        P(mfma(acc, v(VF+8*vb,4), v(Pp,4), acc))
        P.add(e[10:16]); P.add(c[4:8])
        pend = [mfma(acc, v(VF+8*vb+4,4), v(Pp+4,4), acc)]
        ev(u)
    P.add(pend)
    assert not events, events
    if OPT["standin"]:
        P(f"s_mov_b32 {s(S_T1)}, 0x7b800000")
        P(f"v_add_f32 {v(M)}, abs({v(OACC)}), abs({v(OACC+8)})\nv_add_f32 {v(M+1)}, abs({v(OACC+1)}), abs({v(OACC+2)})")
        P.add([f"v_add_f32 {v(M+(i&1))}, {v(M+(i&1))}, abs({v(OACC+i)})" for i in range(3, 8)])
        P(f"v_add_f32 {v(M)}, {v(M)}, {v(M+1)}\nv_cmp_lt_f32 vcc, {v(M)}, {s(S_T1)}")
        P(f"s_mov_b32 {s(S_SPIN)}, {t}\ns_cmp_eq_u64 vcc, -1\ns_cbranch_scc0 L_exact\nL_back{t}:")
    R.stamp()

def exact_attention():
    F = Prog(); q, M, acc, AD = v(QA, 4), TMP, v(OACC, 16), TMP + 2
    F("L_exact:\ns_waitcnt vmcnt(0) lgkmcnt(0)\ns_nop 15")
    F(f"ds_read_b128 {v(KF,4)}, {v(V_AK)} offset:{8*KVS}\nds_read_b128 {v(KF+4,4)}, {v(V_AK)}")
    for b, u in ((0, 8), (1, 0)):
        F(f"ds_read_b128 {v(VF+8*b,4)}, {v(V_AV0)} offset:{u*KVS+1024}\nds_read_b128 {v(VF+8*b+4,4)}, {v(V_AV1)} offset:{u*KVS+1536}")
    F(mfma(v(MG,16), v(KF,4), q, "0")); F(mfma(v(SB,16), v(KF+4,4), q, "0"))
    F.add([f"v_cndmask_b32 {v(MG+i)}, {v(SB+i)}, {v(MG+i)}, {s(S_MASK+2*i,2)}" for i in range(16)])
    F.add(max_tree(M, range(MG, MG+16)))
    F(f"v_mov_b32 {v(AD)}, {v(V_AK)}\ns_mov_b32 {s(S_T0)}, 7\nL_exact_m:")
    F(f"ds_read_b128 {v(KF,4)}, {v(AD)} offset:{KVS}\nv_add_u32 {v(AD)}, {KVS}, {v(AD)}")
    F(mfma(v(SB,16), v(KF,4), q, "0"))
    F.add(max_tree(M, range(SB, SB+16), init=True))
    F(f"s_sub_u32 {s(S_T0)}, {s(S_T0)}, 1\ns_cmp_lg_u32 {s(S_T0)}, 0\ns_cbranch_scc1 L_exact_m")
    F.add(cross_max(M, M+1))
    F.add([f"v_sub_f32 {v(MG+i)}, {v(MG+i)}, {v(M)}" for i in range(16)])
    F.add([f"v_exp_f32 {v(MG+i)}, {v(MG+i)}" for i in range(16)])
    F.add([f"v_cvt_pk_bf16_f32 {v(PF+i)}, {v(MG+2*i)}, {v(MG+2*i+1)}" for i in range(8)])
    F.add([f"v_and_b32 {v(PB+i)}, {v(PM+i)}, {v(PF+i)}" for i in range(8)])
    F.add([f"v_xor_b32 {v(PF+i)}, {v(PF+i)}, {v(PB+i)}" for i in range(8)])
    F(mfma(acc, v(VF,4), v(PB,4), "0")); F(mfma(acc, v(VF+4,4), v(PB+4,4), acc))
    F(mfma(acc, v(VF+8,4), v(PF,4), acc)); F(mfma(acc, v(VF+12,4), v(PF+4,4), acc))
    F(f"v_mov_b32 {v(AD)}, 0\ns_mov_b32 {s(S_T0)}, 7\ns_nop 15\nL_exact_e:")
    F(f"v_add_u32 {v(AD)}, {KVS}, {v(AD)}\nv_add_u32 {v(AD+1)}, {v(AD)}, {v(V_AK)}\nds_read_b128 {v(KF,4)}, {v(AD+1)}")
    F(f"v_add_u32 {v(AD+1)}, {v(AD)}, {v(V_AV0)}\nds_read_b128 {v(VF,4)}, {v(AD+1)} offset:1024")
    F(f"v_add_u32 {v(AD+1)}, {v(AD)}, {v(V_AV1)}\nds_read_b128 {v(VF+4,4)}, {v(AD+1)} offset:1536")
    F(mfma(v(SB,16), v(KF,4), q, "0"))
    F.add([f"v_sub_f32 {v(SB+i)}, {v(SB+i)}, {v(M)}" for i in range(16)])
    F.add([f"v_exp_f32 {v(SB+i)}, {v(SB+i)}" for i in range(16)])
    F.add([f"v_cvt_pk_bf16_f32 {v(PB+i)}, {v(SB+2*i)}, {v(SB+2*i+1)}" for i in range(8)])
    F(mfma(acc, v(VF,4), v(PB,4), acc)); F(mfma(acc, v(VF+4,4), v(PB+4,4), acc))
    F(f"s_nop 15\ns_sub_u32 {s(S_T0)}, {s(S_T0)}, 1\ns_cmp_lg_u32 {s(S_T0)}, 0\ns_cbranch_scc1 L_exact_e")
    F(f"s_cmp_eq_u32 {s(S_SPIN)}, 0\ns_cbranch_scc1 L_back0\ns_branch L_back1")
    return finalize(F)

E = Prog()
hb = {4: 2, 3: 1, 2: 0, 1: 3}[OPT["xmap"]]
if OPT["stamps"] or OPT["amp"] >= 0:
    E("s_memtime s[64:65]\ns_memrealtime s[66:67]")
def entry_stamp():
    if OPT["stamps"]:
        return [f"v_mov_b32 {v(V_STAMP)}, 0", f"v_writelane_b32 {v(V_STAMP)}, s64, 0", f"v_writelane_b32 {v(V_STAMP)}, s66, 62"]
    if OPT["amp"] >= 0:
        return [f"v_mov_b32 {v(V_STAMP)}, 0", f"v_writelane_b32 {v(V_STAMP)}, {'s64' if OPT['ampclk'] else 's66'}, 0"]
    return []
code_pf = f"""s_getpc_b64 {s(S_T2,2)}
L_pc:
s_lshl2_add_u32 {s(S_T1)}, {s(S_T0)}, {s(S_W4)}
s_and_b32 {s(S_T1)}, {s(S_T1)}, 63
s_lshl_b32 {s(S_T1)}, {s(S_T1)}, 9
s_sub_u32 {s(S_T2)}, {s(S_T2)}, L_pc-{NAME}_kernel
s_subb_u32 {s(S_T3)}, {s(S_T3)}, 0
v_and_b32 v5, 3, {v(V_LANE)}
v_lshl_add_u32 v5, v5, 7, {s(S_T1)}
global_load_dword v13, v5, {s(S_T2,2)}"""
if OPT["cpf"] == 2:
    E(f"""s_getpc_b64 {s(S_T2,2)}
s_bfe_u32 {s(S_T1)}, s2, 0x50003
v_lshrrev_b32 v5, 6, v0
v_lshlrev_b32 v5, 7, v5
v_lshl_add_u32 v5, {s(S_T1)}, 10, v5
global_load_dword v13, v5, {s(S_T2,2)}""")
if OPT["cpf"] == 3:
    E(f"""s_getpc_b64 {s(S_T2,2)}
s_bfe_u32 {s(S_T1)}, s2, 0x30003
v_lshrrev_b32 v5, 4, v0
v_lshlrev_b32 v5, 7, v5
v_lshl_add_u32 v5, {s(S_T1)}, 12, v5
global_load_dword v13, v5, {s(S_T2,2)}""")
E(f"""
s_cmp_ge_u32 s2, 256
s_cbranch_scc1 L_end
s_load_dwordx16 s[4:19], s[0:1], 0
s_load_dwordx4 s[20:23], s[0:1], 64
v_lshrrev_b32 v4, 6, v0
v_and_b32 {v(V_LANE)}, 63, v0
s_lshr_b32 {s(S_T0)}, s2, 3
v_readfirstlane_b32 {s(S_MX)}, v4
""")
E(f"""
s_and_b32 {s(S_T1)}, s2, {(8 >> hb) - 1}
s_lshl_b32 {s(S_HG)}, {s(S_T1)}, {hb}
s_and_b32 {s(S_K)}, {s(S_T0)}, {(1 << hb) - 1}
s_add_u32 {s(S_HG)}, {s(S_HG)}, {s(S_K)}
s_bfe_u32 {s(S_K)}, s2, {hex((hb << 16) | (3 - hb))}
s_lshl_b32 {s(S_RB)}, {s(S_K)}, {5 - hb}
s_lshr_b32 {s(S_ROT)}, {s(S_T0)}, {hb}
s_add_u32 {s(S_RB)}, {s(S_RB)}, {s(S_ROT)}
s_and_b32 {s(S_W4)}, {s(S_MX)}, 3
""")
if OPT["cpf"] == 1:
    E(f"""s_cmp_lt_u32 {s(S_MX)}, 4
s_cbranch_scc0 L_hrole""")
    E(code_pf)
    E("s_branch L_crole\nL_hrole:")
elif OPT["cpf"] >= 4:
    E(f"""s_cmp_lt_u32 {s(S_MX)}, 4
s_cbranch_scc0 L_hrole
s_getpc_b64 {s(S_T2,2)}
L_pc:
s_lshl2_add_u32 {s(S_T1)}, {s(S_T0)}, {s(S_W4)}
s_lshl_b32 {s(S_T1)}, {s(S_T1)}, 8
s_sub_u32 {s(S_T2)}, {s(S_T2)}, L_pc-{NAME}_kernel
s_subb_u32 {s(S_T3)}, {s(S_T3)}, 0
s_load_dword s70, {s(S_T2,2)}, {s(S_T1)}
s_add_u32 {s(S_T1)}, {s(S_T1)}, 128
s_load_dword s71, {s(S_T2,2)}, {s(S_T1)}""")
    if OPT["cpf"] == 5:
        E("s_waitcnt lgkmcnt(0)")
        for i, ptr in enumerate((6, 12, 4, 16, 20, 8, 14, 18, 22)):
            E(f"s_load_dword s{72+i}, {s(ptr,2)}, 0")
        for i in range(1, 5):
            E(f"s_mov_b32 {s(S_T1)}, {i << 21}\ns_load_dword s{80+i}, s[22:23], {s(S_T1)}")
    E("s_branch L_crole\nL_hrole:")
else:
    E(f"s_cmp_lt_u32 {s(S_MX)}, 4\ns_cbranch_scc1 L_crole")
late_ids = lines(f"""
s_lshr_b32 {s(S_T0)}, s2, 3
s_and_b32 {s(S_RB3)}, s2, 7
s_lshl_b32 {s(S_RB3)}, {s(S_RB3)}, 2
s_lshr_b32 {s(S_T1)}, {s(S_T0)}, 3
s_add_u32 {s(S_RB3)}, {s(S_RB3)}, {s(S_T1)}
s_and_b32 {s(S_CB)}, {s(S_T0)}, 7
s_lshl_b32 {s(S_HEAD)}, {s(S_HG)}, 2
s_add_u32 {s(S_HEAD)}, {s(S_HEAD)}, {s(S_W4)}
s_mov_b32 {s(S_LO16)}, 0xffff
s_mov_b32 {s(S_LO16+1)}, 0xffff
v_lshlrev_b32 {v(V_L16)}, 4, {v(V_LANE)}
""")
rot_code = {
 0: f"s_and_b32 {s(S_ROT)}, {s(S_ROT)}, {OPT['rotmask']}",
 1: f"s_and_b32 {s(S_ROT)}, s2, 7",
 4: f"s_add_u32 {s(S_ROT)}, {s(S_ROT)}, {s(S_HG)}\ns_and_b32 {s(S_ROT)}, {s(S_ROT)}, 7",
 5: f"s_add_u32 {s(S_ROT)}, {s(S_ROT)}, {s(S_HG)}\ns_and_b32 {s(S_ROT)}, {s(S_ROT)}, 3\ns_lshl_b32 {s(S_ROT)}, {s(S_ROT)}, 1",
 6: f"s_add_u32 {s(S_ROT)}, {s(S_ROT)}, {s(S_HG)}\ns_and_b32 {s(S_ROT)}, {s(S_ROT)}, 1\ns_lshl_b32 {s(S_ROT)}, {s(S_ROT)}, 2",
}[OPT["rotmode"]]

def stage_of(n): return n >> 1 if n < 32 else 16 + ((n - 32) >> 2)
def first_of_stage(n): return n < 64 and (n == 0 or stage_of(n) != stage_of(n - 1))

H = Role("H"); P = H.P
VX, VW1, VW2 = 160, 162, 166
V_AXW, V_AG, V_GPW, GACC, XW, GF = 170, 171, 172, 174, 176, 184
i3, i4, p7, t0, t1, t2 = 32, 33, 34, 35, 36, 37
def raw(i):
    if OPT["fine"] == 3: P(f"s_memtime s[{68+2*i}:{69+2*i}]")
raw(0)
P(rot_code)
P(f"""
v_lshrrev_b32 {v(i3)}, 3, {v(V_LANE)}
v_lshrrev_b32 {v(i4)}, 4, {v(V_LANE)}
v_and_b32 {v(p7)}, 7, {v(V_LANE)}
s_lshl_b32 {s(S_T0)}, {s(S_W4)}, 4
v_add_u32 {v(t0)}, {s(S_T0)}, {v(i3)}
v_lshlrev_b32 {v(t0)}, 10, {v(t0)}
v_xor_b32 {v(t1)}, {v(p7)}, {v(i4)}
v_lshl_add_u32 {v(VX)}, {v(t1)}, 4, {v(t0)}
v_xor_b32 {v(VX+1)}, 64, {v(VX)}
v_add_u32 {v(VX+1)}, {0x2000 - 1024}, {v(VX+1)}
s_lshr_b32 {s(S_T0)}, {s(S_W4)}, 1
s_and_b32 {s(S_T1)}, {s(S_W4)}, 1
s_lshl_b32 {s(S_K)}, {s(S_T0)}, 4
v_add_u32 {v(t0)}, {s(S_K)}, {v(i4)}
v_mul_u32_u24 {v(t0)}, 0xc00, {v(t0)}
v_lshlrev_b32 {v(t1)}, 1, {v(i4)}
v_xor_b32 {v(t1)}, {v(t1)}, {v(p7)}
v_lshl_add_u32 {v(t0)}, {v(t1)}, 4, {v(t0)}
v_and_b32 {v(t1)}, 1, {v(i3)}
v_xor_b32 {v(t1)}, {s(S_T1)}, {v(t1)}
v_lshlrev_b32 {v(t1)}, 10, {v(t1)}
s_lshl_b32 {s(S_T2)}, {s(S_HG)}, 7
s_add_u32 {s(S_K)}, {s(S_T2)}, 1024
v_add3_u32 {v(VW1)}, {v(t0)}, {v(t1)}, {s(S_K)}
v_add_u32 {v(VW1+1)}, {12288 - 1024}, {v(VW1)}
v_add_u32 {v(VW1+2)}, {2*(12288 - 1024)}, {v(VW1)}
v_add_u32 {v(VW1+3)}, {3*(12288 - 1024)}, {v(VW1)}
s_lshl_b32 {s(S_MW)}, {s(S_T1)}, 13
s_lshl_b32 {s(S_K)}, {s(S_T0)}, 12
s_add_u32 {s(S_MW)}, {s(S_MW)}, {s(S_K)}
s_lshl_b32 {s(S_MX)}, {s(S_W4)}, 11
s_add_u32 {s(S_MX)}, {s(S_MX)}, {L_X}""")
raw(1)
P("s_waitcnt lgkmcnt(0)")
raw(2)
P.add(entry_stamp())
P.add(srd(S_X, 4, 2097152))
P(f"""s_cmp_eq_u32 {s(S_T1)}, 0
s_cselect_b32 {s(S_W)}, s6, s12
s_cselect_b32 {s(S_W+1)}, s7, s13
s_mov_b32 {s(S_W+2)}, 1572864
s_mov_b32 {s(S_W+3)}, 0x20000""")
if OPT["fine"] != 3: H.stamp()
def dma(voff, rsrc, soff, imm, tag, flags=""):
    return Ins(f"buffer_load_dwordx4 {v(voff)}, {s(rsrc,4)}, {soff} offen{' offset:%d' % imm if imm else ''}{flags} lds", tag)
def x_dma(j):
    return [f"s_add_u32 {s(S_K)}, {s(S_ROT)}, {j}", f"s_and_b32 {s(S_K)}, {s(S_K)}, 7", f"s_lshl_b32 {s(S_K)}, {s(S_K)}, 7",
            f"s_lshl_b32 {s(S_T2)}, {s(S_RB)}, 16", f"s_add_u32 m0, {s(S_MX)}, {j*8192}", f"s_add_u32 {s(S_K)}, {s(S_K)}, {s(S_T2)}",
            dma(VX, S_X, s(S_K), 0, f"x{j}"), dma(VX+1, S_X, s(S_K), 1024, f"x{j}")]
def w_dma(S):
    if S < 16:
        o = [f"s_lshl_b32 {s(S_T3)}, {s(S_ROT)}, 1", f"s_add_u32 {s(S_T3)}, {s(S_T3)}, {S}", f"s_and_b32 {s(S_T3)}, {s(S_T3)}, 15"]
    else:
        o = [f"s_add_u32 {s(S_T3)}, {s(S_ROT)}, {S-16}", f"s_and_b32 {s(S_T3)}, {s(S_T3)}, 7"]
    o += [f"s_add_u32 m0, {s(S_MW)}, {(S % NSLOT)*SLOT}", f"s_mul_i32 {s(S_T3)}, {s(S_T3)}, {(32 if S < 16 else 64)*3072}"]
    return o + [dma((VW1 if S < 16 else VW2) + t, S_W, s(S_T3), t*1024, f"w{S}") for t in range(4)]
P.add(x_dma(0)); raw(3)
P.add(w_dma(0)); raw(4)
P.add(w_dma(1)); raw(5)
P(f"""s_lshl_b32 {s(S_K)}, {s(S_ROT)}, 3
v_add_u32 {v(t2)}, {s(S_K)}, {v(V_LANE)}
v_and_b32 {v(t2)}, 63, {v(t2)}
v_lshlrev_b32 {v(t2)}, 4, {v(t2)}""")
P.add(srd(S_G, 16, 1024)); P(f"s_mov_b32 m0, {L_G}"); P.add(dma(t2, S_G, "0", 0, "w1"))
P.add(late_ids)
h_misc = lines(f"""
s_lshr_b32 {s(S_T0)}, {s(S_W4)}, 1
s_and_b32 {s(S_T1)}, {s(S_W4)}, 1
s_lshl_b32 {s(S_T0)}, {s(S_T0)}, 5
v_add_u32 {v(t0)}, {s(S_T0)}, {v(i3)}
v_mul_u32_u24 {v(t0)}, 0xc00, {v(t0)}
v_and_b32 {v(t1)}, 1, {v(i4)}
s_lshl_b32 {s(S_T1)}, {s(S_T1)}, 1
v_add_u32 {v(t1)}, {s(S_T1)}, {v(t1)}
v_lshlrev_b32 {v(t1)}, 1, {v(t1)}
v_xor_b32 {v(t1)}, {v(t1)}, {v(p7)}
v_lshl_add_u32 {v(t0)}, {v(t1)}, 4, {v(t0)}
s_lshl_b32 {s(S_T0)}, {s(S_HG)}, 7
v_add_u32 {v(VW2)}, {s(S_T0)}, {v(t0)}
v_add_u32 {v(VW2+1)}, {24576 - 1024}, {v(VW2)}
v_add_u32 {v(VW2+2)}, {2*(24576 - 1024)}, {v(VW2)}
v_add_u32 {v(VW2+3)}, {3*(24576 - 1024)}, {v(VW2)}
v_and_b32 {v(t0)}, 31, {v(V_LANE)}
v_lshrrev_b32 {v(t1)}, 5, {v(V_LANE)}
s_lshl_b32 {s(S_T0)}, {s(S_W4)}, 1
v_add_u32 {v(t1)}, {s(S_T0)}, {v(t1)}
v_lshlrev_b32 {v(V_AG)}, 4, {v(t1)}
v_add_u32 {v(V_AG)}, {L_G}, {v(V_AG)}
v_bfe_u32 {v(t2)}, {v(t0)}, 1, 3
v_xor_b32 {v(t1)}, {v(t1)}, {v(t2)}
v_lshlrev_b32 {v(t1)}, 4, {v(t1)}
v_lshl_add_u32 {v(t1)}, {v(t0)}, 7, {v(t1)}
v_add_u32 {v(V_AXW)}, {L_X}, {v(t1)}
v_lshlrev_b32 {v(t0)}, 4, {v(t0)}
s_lshl_b32 {s(S_T0)}, {s(S_W4)}, 2
s_add_u32 {s(S_T0)}, {s(S_T0)}, {L_GP}
v_add_u32 {v(V_GPW)}, {s(S_T0)}, {v(t0)}
v_mov_b32 {v(GACC)}, 0
v_mov_b32 {v(GACC+1)}, 0
""") + srd(S_WS, 22, WS_SIZE) + srd(S_DBG, 20, 256)
P.add(h_misc)
if OPT["fine"] == 3:
    raw(6); P("s_waitcnt vmcnt(9)"); raw(7); P("s_waitcnt vmcnt(5)"); raw(8); P("s_waitcnt lgkmcnt(0)")
    for i in range(9):
        P(f"v_writelane_b32 {v(V_STAMP)}, s{68+2*i}, {i+1}")
    H.ns = 9
def gate_chunk(j):
    o = [f"ds_read_b128 {v(GF,4)}, {v(V_AG)} offset:{j*128}",
         f"ds_read_b128 {v(XW,4)}, {v(V_AXW)} offset:{j*8192}", f"ds_read_b128 {v(XW+4,4)}, {v(V_AXW)} offset:{j*8192+4096}"]
    for i in range(4):
        for tt in range(2):
            o.append(f"v_dot2_f32_bf16 {v(GACC+tt)}, {v(XW+4*tt+i)}, {v(GF+i)}, {v(GACC+tt)}")
    return o
issued_w, issued_x = 2, 1
for S in range(25):
    if S < 24:
        P.add(WaitTag(f"w{S}", f"x{S >> 1}" if S < 16 else "none"))
    P.add(WaitLds()); P("s_barrier")
    if OPT["fine"] in (1, 2, 3) or S in (0, 16, 24): H.stamp()
    top = {0: 3}.get(S, S + 4)
    while issued_w <= min(top, 23):
        if issued_w < 16 and issued_w % 2 == 0 and issued_x <= issued_w // 2:
            P.add(x_dma(issued_x)); issued_x += 1
        P.add(w_dma(issued_w)); issued_w += 1
    if OPT["tlb"] and S in (3, 4, 5, 6):
        for i, (ptr, off) in enumerate({3: ((22, 0), (22, 1)), 4: ((22, 2), (22, 4), (20, 0)), 5: ((22, 3), (14, 0)), 6: ((8, 0), (18, 0))}[S]):
            P.add(Raw(f"    s_mov_b32 {s(S_T1)}, {off << 21}\n    s_load_dword s{70+i}, {s(ptr,2)}, {s(S_T1)}"))
    if OPT["wopf"] and S in (7, 8, 9, 10):
        P.add(Raw(f"    s_lshl2_add_u32 {s(S_T1)}, s2, {s(S_W4)}\n    s_lshl_b32 {s(S_T1)}, {s(S_T1)}, 9\n    s_add_u32 {s(S_T1)}, {s(S_T1)}, {(S-7)*128}\n"
                  f"    s_load_dword s70, s[14:15], {s(S_T1)}\n    s_load_dword s71, s[8:9], {s(S_T1)}"))
    if S == 12: P("s_waitcnt lgkmcnt(0)")
    if 12 <= S < 16:
        P.add(gate_chunk(2*(S-12))); P.add(gate_chunk(2*(S-12)+1))
    if S == 15:
        for tt in range(2):
            P(f"v_mov_b32 {v(XW+tt)}, {v(GACC+tt)}")
        for tt in range(2):
            P(f"v_permlane32_swap_b32 {v(GACC+tt)}, {v(XW+tt)}")
        for tt in range(2):
            P(f"v_add_f32 {v(GACC+tt)}, {v(GACC+tt)}, {v(XW+tt)}\nds_write_b32 {v(V_GPW)}, {v(GACC+tt)} offset:{512*tt}")
    if S == 8:
        P(ep_load)
    if S == 19:
        P.add(attn_setup(1, 32))
        P.add(srd(S_WOA, 8, 524288) + srd(S_WOB, 14, 524288) + srd(S_OUT, 18, 2097152))
    if S == 20:
        P(f"v_and_b32 {v(32)}, 31, {v(V_LANE)}\nv_lshlrev_b32 {v(32)}, 4, {v(32)}\nv_add_u32 {v(32)}, {L_GP}, {v(32)}")
        P.add(gate_finish([1], 32, 36))
        H.poll(f"v_cmp_ne_u64 vcc, 0, {v(EP,2)}", ep_load)
        VWO, VKF, V1A, V1D = 160, 161, 162, 164
        P(f"""v_lshrrev_b32 v32, 3, {v(V_LANE)}
v_bfe_u32 v33, {v(V_LANE)}, 4, 1
v_lshlrev_b32 v33, 2, v33
v_and_b32 v34, 7, {v(V_LANE)}
v_xor_b32 v33, v33, v34
v_lshlrev_b32 v33, 4, v33
v_lshl_add_u32 {v(VWO)}, v32, 10, v33
v_and_b32 {v(VKF)}, 32, {v(V_LANE)}
v_lshlrev_b32 {v(VKF)}, 4, {v(VKF)}
v_min_u32 v32, 9, {v(V_LANE)}
v_mul_u32_u24 {v(V1A)}, {KVS}, v32
s_mul_i32 {s(S_MW)}, {s(S_W4)}, {KVH}
s_add_u32 {s(S_T0)}, {s(S_MW)}, 2048
v_add_u32 {v(V1A)}, {s(S_T0)}, {v(V1A)}
s_lshl_b32 {s(S_T0)}, {s(S_RB)}, 1
v_add_u32 v32, {s(S_T0)}, v32
v_cmp_le_u32 vcc, 8, v32
v_mov_b32 v33, {hex(ONES)}
v_cndmask_b32 {v(V1D)}, 0, v33, vcc
v_and_b32 {v(V_FOFF)}, 3, {v(V_LANE)}
s_sub_u32 {s(S_T1)}, {s(S_RB)}, 4
v_add_u32 {v(V_FOFF)}, {s(S_T1)}, {v(V_FOFF)}
v_max_i32 {v(V_FOFF)}, 0, {v(V_FOFF)}
v_lshlrev_b32 {v(V_FOFF)}, 3, {v(V_FOFF)}
v_mov_b32 {v(V1D+1)}, {v(V1D)}
v_mov_b32 {v(V1D+2)}, {v(V1D)}
v_mov_b32 {v(V1D+3)}, {v(V1D)}
s_lshl_b32 {s(S_K)}, {s(S_HEAD)}, 8
s_add_u32 {s(S_K)}, {s(S_K)}, {WS_FKV}""")
    if S == 23:
        P(flag_load)
if OPT["p1only"]:
    H.finish()
P(f"ds_write_b128 {v(V1A)}, {v(V1D,4)}")
H.poll(flag_cmp, flag_load)
H.stamp()
def gather(special):
    o = [f"s_lshl_b32 {s(S_K)}, {s(S_HEAD)}, 17", f"s_lshl_b32 {s(S_T1)}, {s(S_RB)}, 12",
         f"s_add_u32 {s(S_T2)}, {s(S_K)}, {s(S_T1)}", f"s_sub_u32 {s(S_T2)}, {s(S_T2)}, {8*2048}"]
    for u in (1, 0, 2, 3, 4, 5, 6, 7):
        tag = "kva" if u < 4 else "kvb"
        if not OPT["standin"]: tag = "kva"
        o += [f"s_add_u32 {s(S_T0)}, {s(S_T2)}, {u*2048}", f"s_add_u32 m0, {s(S_MW)}, {u*KVS}"]
        if special:
            o += [f"s_cmp_ge_u32 {s(S_RB)}, {(8-u+1)//2}", f"s_cbranch_scc1 L_gk{u}",
                  dma(VKF, S_WS, s(S_K), 0, None, " sc1"), f"s_mov_b32 {s(S_T0)}, {WS_SIZE}", f"s_branch L_gk{u}e", f"L_gk{u}:",
                  dma(V_L16, S_WS, s(S_T0), 0, None, " sc1"), f"L_gk{u}e:"]
        else:
            o += [dma(V_L16, S_WS, s(S_T0), 0, tag, " sc1")]
        o += [dma(V_L16, S_WS, s(S_T0), 1024, tag, " sc1")]
    return o
P(f"s_cmp_lt_u32 {s(S_RB)}, 4\ns_cbranch_scc1 L_gspecial")
P.add(gather(False))
P("L_gdone:")
txt_of = lambda x: x.text if isinstance(x, Ins) else x
special_txt = "L_gspecial:\n" + "\n".join(("" if txt_of(x).endswith(":") else "    ") + txt_of(x) for x in gather(True)) + "\n    s_branch L_gdone\n"
def wo_dma(rsrc, tag):
    o = []
    for t in range(16):
        g = [f"s_add_u32 m0, {s(S_MX)}, {t*1024}"]
        g += [f"s_add_u32 {s(S_T3)}, {s(S_T3)}, 8192"] if t else [
            f"s_lshl_b32 {s(S_T3)}, {s(S_W4)}, 17", f"s_lshl_b32 {s(S_T1)}, {s(S_CB)}, 7", f"s_add_u32 {s(S_T3)}, {s(S_T3)}, {s(S_T1)}"]
        o.append(g + [dma(VWO, rsrc, s(S_T3), 0, tag)])
    return o
B0, B1 = 168, 169
P(f"""v_lshrrev_b32 v32, 5, {v(V_LANE)}
v_bfe_u32 v33, {v(V_LANE)}, 2, 2
v_lshl_add_u32 v32, v32, 2, v33
v_and_b32 v33, 2, v33
v_bfe_u32 v34, {v(V_LANE)}, 4, 1
v_xor_b32 v33, v33, v34
s_and_b32 {s(S_T1)}, {s(S_W4)}, 1
s_lshl_b32 {s(S_T1)}, {s(S_T1)}, 1
s_lshr_b32 {s(S_T0)}, {s(S_W4)}, 1
s_or_b32 {s(S_T1)}, {s(S_T1)}, {s(S_T0)}
v_xor_b32 v33, {s(S_T1)}, v33
v_lshlrev_b32 v33, 5, v33
v_lshl_add_u32 v32, v32, 7, v33
v_and_b32 v33, 3, {v(V_LANE)}
v_lshl_add_u32 v32, v33, 3, v32
s_lshl_b32 {s(S_MX)}, {s(S_W4)}, 14
s_add_u32 {s(S_MX)}, {s(S_MX)}, {L_WO}
v_add_u32 {v(B0)}, {s(S_MX)}, v32
v_xor_b32 {v(B1)}, 64, {v(B0)}
s_lshl_b32 {s(S_T0)}, {s(S_W4)}, 10
s_add_u32 {s(S_T0)}, {s(S_T0)}, {L_Q}
v_add_u32 v32, {s(S_T0)}, {v(V_L16)}""")
P.add(WaitTag("kva")); P.add(WaitLds()); P("s_barrier")
H.stamp()
if OPT["hprio"]: P("s_setprio 1")
P(f"ds_read_b128 {v(QA,4)}, v32")
wo_read = lambda dst, hs: [f"ds_read_b64_tr_b16 {v(dst+4*ct+2*j,2)}, {v((B0,B1)[ct])} offset:{hs*2048+j*1024}" for ct in range(2) for j in range(2)]
OFB, OFA, ACC3, WBF, OPK = 192, 96, 32, 176, 164
def o_gather(br, tt, dst):
    o = [f"s_lshl_b32 {s(S_T0)}, {s(S_RB3)}, 17", f"s_lshl_b32 {s(S_T1)}, {s(S_W4)}, 13", f"s_add_u32 {s(S_T0)}, {s(S_T0)}, {s(S_T1)}",
         f"s_add_u32 {s(S_T0)}, {s(S_T0)}, {WS_O + br*65536 + tt*32768}"]
    for hs in range(8):
        if hs == 4: o += [f"s_add_u32 {s(S_T0)}, {s(S_T0)}, 4096"]
        o += [ws_ld(v(dst+32*tt+4*hs,4), V_L16, s(S_T0), (hs & 3)*1024)]
    return o
retry_txt = []
def o_verify(br, tt, dst):
    base, n = dst + 32*tt, f"{br}{tt}"
    chk = [f"v_max3_u32 {v(TMP)}, {v(base)}, {v(base+1)}, {v(base+2)}"]
    chk += [f"v_max3_u32 {v(TMP)}, {v(TMP)}, {v(base+i)}, {v(base+i+1)}" for i in range(3, 31, 2)]
    chk += [f"v_max_u32 {v(TMP)}, {v(TMP)}, {v(base+31)}", f"v_cmp_ne_u32 vcc, -1, {v(TMP)}"]
    P.add(chk); P(f"s_cmp_eq_u64 vcc, -1\ns_cbranch_scc0 L_retry{n}\nL_ok{n}:")
    Q = Prog()
    Q(f"L_retry{n}:\ns_mov_b32 {s(S_SPIN)}, 0x20000\nL_again{n}:"); Q.add(o_gather(br, tt, dst))
    Q(f"s_sub_u32 {s(S_SPIN)}, {s(S_SPIN)}, 1\ns_waitcnt vmcnt(0)\ns_cbranch_scc1 L_ok{n}")
    Q.add(chk); Q(f"s_cmp_eq_u64 vcc, -1\ns_cbranch_scc0 L_again{n}\ns_branch L_ok{n}")
    retry_txt.append(finalize(Q))
wob = wo_dma(S_WOB, "wob")
fs = lambda: H.stamp() if OPT["fine"] == 4 else None
sent_poll = lines(f"""v_and_b32 {v(V_FOFF)}, 7, {v(V_LANE)}
v_lshlrev_b32 {v(V_FOFF)}, 8, {v(V_FOFF)}
s_lshl_b32 {s(S_K)}, {s(S_W4)}, 8
s_add_u32 {s(S_K)}, {s(S_K)}, {s(S_RB3)}
s_lshl_b32 {s(S_K)}, {s(S_K)}, 3
s_add_u32 {s(S_K)}, {s(S_K)}, {WS_FKV}""") + [flag_load]
hev = {"e1": [lambda: (fs(), P.add(WaitTag("kvb")), P("s_barrier"), fs(), P.add(sent_poll), P.add(wob[:2]))]}
for u in range(1, 8): hev[u] = []
for u, (lo, hi) in zip(range(1, 6), ((2, 5), (5, 8), (8, 11), (11, 14), (14, 16))):
    hev[u].append(lambda lo=lo, hi=hi: P.add(wob[lo:hi]))
hev[OPT["obtry"] - 1].append(lambda: (H.poll(flag_cmp, flag_load), P.add(o_gather(1, 1, OFB))))
hev[OPT["obtry"]].append(lambda: P.add(o_gather(1, 0, OFB)))
window_attention(H, 1, {k: (lambda fl=fl: [f() for f in fl]) for k, fl in hev.items()})
P.add(o_pack(OACC, 0, 8, [f"v_mul_f32 {v(TMP)}, {v(TMP)}, {v(G0+1)}"], OPK, TMP))
P.add(o_store(0, 1, OPK, "oa"))
o_verify(1, 1, OFB); o_verify(1, 0, OFB)
fs(); P.add(WaitTag("wob")); fs()
def p3_pass(of, tts, first, hook=lambda hs: None):
    P.add(wo_read(WBF, 0))
    for hs in range(8):
        b = hs & 1
        rd = wo_read(WBF + 8*(1-b), hs + 1) if hs < 7 else []
        k = len(rd) // (2 * len(tts))
        for i, (tt, ct) in enumerate([(tt, ct) for tt in tts for ct in range(2)]):
            acc = v(ACC3+32*tt+16*ct, 16)
            P(mfma(acc, v(WBF+8*b+4*ct,4), v(of+32*tt+4*hs,4), "0" if first and hs == 0 else acc))
            P.add(rd[k*i:k*i+k])
            if i == 1: hook(hs)
woa = wo_dma(S_WOA, "woa")
def p3b_hook(hs):
    P.add(woa[2*hs:2*hs+2])
    if hs == OPT["oa1at"]: P.add(o_gather(0, 1, OFA))
p3_pass(OFB, (0, 1), True, p3b_hook)
H.stamp()
EXW, EXR, VOUT = 160, 163, 164
P(f"""s_mul_i32 {s(S_T0)}, {s(S_W4)}, 6144
v_add_u32 {v(EXR)}, {s(S_T0)}, {v(V_L16)}""")
for i in range(1, 4):
    P(f"s_xor_b32 {s(S_T0)}, {s(S_W4)}, {i}\ns_mul_i32 {s(S_T0)}, {s(S_T0)}, 6144\nv_add_u32 {v(EXW+i-1)}, {s(S_T0)}, {v(V_L16)}")
P(f"""v_and_b32 {v(VOUT)}, 31, {v(V_LANE)}
v_lshlrev_b32 {v(VOUT)}, 10, {v(VOUT)}
v_lshrrev_b32 v0, 5, {v(V_LANE)}
v_lshl_add_u32 {v(VOUT)}, v0, 4, {v(VOUT)}
s_lshl_b32 {s(S_T3)}, {s(S_RB3)}, 16
s_lshr_b32 {s(S_T1)}, {s(S_W4)}, 1
s_lshl_b32 {s(S_T1)}, {s(S_T1)}, 5
s_add_u32 {s(S_T3)}, {s(S_T3)}, {s(S_T1)}
s_lshl_b32 {s(S_T1)}, {s(S_CB)}, 7
s_add_u32 {s(S_T3)}, {s(S_T3)}, {s(S_T1)}
s_and_b32 {s(S_T1)}, {s(S_W4)}, 1
s_lshl_b32 {s(S_T1)}, {s(S_T1)}, 6
s_add_u32 {s(S_T3)}, {s(S_T3)}, {s(S_T1)}
s_add_u32 {s(S_T2)}, {s(S_T3)}, 32768""")
o_verify(0, 1, OFA)
P.add(WaitTag("woa"))
H.stamp()
def reduce_store(tt, tmp):
    keep, ex = ACC3 + 32*tt, tt * 24576
    send = {1: keep + 16, 2: keep + 8, 3: keep + 24}
    for i in (2, 1, 3):
        P.add([f"ds_write_b128 {v(EXW+i-1)}, {v(send[i]+4*q,4)} offset:{ex+(i-1)*2048+q*1024}" for q in range(2)])
    P.add(WaitLds()); P("s_barrier")
    for q in range(2):
        P.add([f"ds_read_b128 {v(tmp+8*i+4*q,4)}, {v(EXR)} offset:{ex+i*2048+q*1024}" for i in range(3)])
    for q in range(2):
        for i in range(3):
            P.add([f"v_pk_add_f32 {v(keep+4*q+2*k,2)}, {v(keep+4*q+2*k,2)}, {v(tmp+8*i+4*q+2*k,2)}" for k in range(2)])
        P.add([f"v_cvt_pk_bf16_f32 {v(tmp+24+2*q+k)}, {v(keep+4*q+2*k)}, {v(keep+4*q+2*k+1)}" for k in range(2)])
    P(f"v_permlane32_swap_b32 {v(tmp+24)}, {v(tmp+26)}\nv_permlane32_swap_b32 {v(tmp+25)}, {v(tmp+27)}")
    P(f"buffer_store_dwordx4 {v(tmp+24,4)}, {v(VOUT)}, {s(S_OUT,4)}, {s((S_T3, S_T2)[tt])} offen{('', ' sc1', ' nt', ' sc0 sc1')[OPT['outsc']]}")
p3_pass(OFA, (1,), False)
fs()
P("s_barrier")
fs()
P.add(o_gather(0, 0, OFA))
reduce_store(1, OFB)
H.stamp()
o_verify(0, 0, OFA)
H.stamp()
p3_pass(OFA, (0,), False)
H.stamp()
reduce_store(0, OFB + 32)
H.stamp()
H.finish()

C = Role("C"); P = C.P
T1, T3, T2 = 32, 64, 96
XB, WB = 128, 152
V_AX, V_T1L, V_T1H, V_T3L, V_T3H, V_T2L, V_T2H = 176, 180, 181, 182, 183, 184, 185
V_LO, V_HI, V_GPR, V_QW = 186, 187, 188, 189
CM, KA, KB, VPK, VB, QB, KBH, VBH = 192, 208, 216, 224, 32, 240, 248, 252
r5, hh, rr, cc, nh, u0, u1, cm = 128, 129, 130, 131, 132, 133, 134, 135
P("L_crole:")
P.add(late_ids)
if OPT["prio"]: P("s_setprio 1")
P(f"""
v_and_b32 {v(r5)}, 31, {v(V_LANE)}
v_lshrrev_b32 {v(hh)}, 5, {v(V_LANE)}
v_bfe_u32 {v(u0)}, {v(r5)}, 1, 3
v_xor_b32 {v(u0)}, {v(u0)}, {v(hh)}
v_lshlrev_b32 {v(u0)}, 4, {v(u0)}
v_lshl_add_u32 {v(u0)}, {v(r5)}, 7, {v(u0)}
v_add_u32 {v(V_AX)}, {L_X}, {v(u0)}
v_xor_b32 {v(V_AX+1)}, 32, {v(V_AX)}
v_xor_b32 {v(V_AX+2)}, 64, {v(V_AX)}
v_xor_b32 {v(V_AX+3)}, 0x60, {v(V_AX)}
v_bfe_u32 {v(rr)}, {v(V_LANE)}, 2, 2
v_and_b32 {v(cc)}, 3, {v(V_LANE)}
v_bfe_u32 {v(nh)}, {v(V_LANE)}, 4, 1
v_lshl_add_u32 {v(u0)}, {v(hh)}, 3, {v(rr)}
v_xor_b32 {v(u1)}, {s(S_W4)}, {v(rr)}
v_lshlrev_b32 {v(u1)}, 5, {v(u1)}
v_lshl_add_u32 {v(u1)}, {v(cc)}, 3, {v(u1)}
v_lshl_add_u32 {v(u1)}, {v(u0)}, 8, {v(u1)}
v_mul_u32_u24 {v(V_T1L)}, 0x2080, {v(nh)}
v_add_u32 {v(V_T1L)}, {v(V_T1L)}, {v(u1)}
v_add_u32 {v(V_T1H)}, 0x10000, {v(V_T1L)}
v_xor_b32 {v(V_T3L)}, 0x80, {v(V_T1L)}
v_xor_b32 {v(V_T3H)}, 0x80, {v(V_T1H)}
v_lshrrev_b32 {v(u1)}, 1, {v(rr)}
v_lshl_add_u32 {v(u1)}, {v(nh)}, 1, {v(u1)}
v_xor_b32 {v(u1)}, {s(S_W4)}, {v(u1)}
v_lshlrev_b32 {v(u1)}, 5, {v(u1)}
v_lshl_add_u32 {v(u1)}, {v(cc)}, 3, {v(u1)}
v_lshl_add_u32 {v(u1)}, {v(u0)}, 7, {v(u1)}
v_lshl_add_u32 {v(V_T2L)}, {v(nh)}, 13, {v(u1)}
v_add_u32 {v(V_T2H)}, 0x10000, {v(V_T2L)}
v_and_b32 {v(u0)}, 15, {v(V_LANE)}
v_lshlrev_b32 {v(u0)}, 4, {v(u0)}
v_lshl_add_u32 {v(u0)}, {v(hh)}, 8, {v(u0)}
v_lshl_add_u32 {v(V_LO)}, {v(nh)}, 31, {v(u0)}
v_xor_b32 {v(V_HI)}, {OOB}, {v(V_LO)}
v_lshlrev_b32 {v(V_GPR)}, 4, {v(r5)}
v_add_u32 {v(V_GPR)}, {L_GP}, {v(V_GPR)}
s_lshl_b32 {s(S_T2)}, {s(S_W4)}, 10
s_add_u32 {s(S_T2)}, {s(S_T2)}, {L_Q}
v_add_u32 {v(V_QW)}, {s(S_T2)}, {v(V_L16)}
v_lshlrev_b32 {v(u0)}, 2, {v(hh)}
v_sub_u32 {v(cm)}, {v(r5)}, {v(u0)}
s_waitcnt lgkmcnt(0)""")
P.add(entry_stamp())
P(f"""s_memrealtime {s(S_TM,2)}
s_mov_b32 {s(S_C)}, {fhex(QK_SCALE)}
s_mov_b32 {s(S_C+1)}, {fhex(QK_SCALE)}
""")
def l2_prefetch():
    a, b = 140, 141
    o = lines(f"""s_lshr_b32 {s(S_T0)}, s2, 3
s_and_b32 {s(S_T1)}, {s(S_HG)}, 4
s_lshl_b32 {s(S_T1)}, {s(S_T1)}, 7
v_and_b32 {v(a)}, 3, {v(V_LANE)}
v_lshlrev_b32 {v(a)}, 7, {v(a)}
s_cmp_eq_u32 {s(S_W4)}, 2
s_cbranch_scc1 L_pfx
s_cmp_eq_u32 {s(S_W4)}, 3
s_cbranch_scc1 L_pfq
s_cmp_eq_u32 {s(S_W4)}, 0
s_cselect_b32 {s(S_W)}, s6, s12
s_cselect_b32 {s(S_W+1)}, s7, s13
s_mov_b32 {s(S_W+2)}, 1572864
s_mov_b32 {s(S_W+3)}, 0x20000
v_bfe_u32 {v(b)}, {v(V_LANE)}, 2, 1
v_lshl_add_u32 {v(a)}, {v(b)}, 10, {v(a)}
v_lshrrev_b32 {v(b)}, 3, {v(V_LANE)}
v_mul_u32_u24 {v(b)}, 0xc00, {v(b)}
v_add_u32 {v(a)}, {v(a)}, {v(b)}
s_mul_i32 {s(S_T0)}, {s(S_T0)}, {8*3072}
s_add_u32 {s(S_T0)}, {s(S_T0)}, {s(S_T1)}
s_add_u32 {s(S_T0)}, {s(S_T0)}, 1024
buffer_load_dword v190, {v(a)}, {s(S_W,4)}, {s(S_T0)} offen
s_add_u32 {s(S_T0)}, {s(S_T0)}, {256*3072}
buffer_load_dword v191, {v(a)}, {s(S_W,4)}, {s(S_T0)} offen
s_branch L_pfe
L_pfx:
s_mov_b32 {s(S_W)}, s4
s_mov_b32 {s(S_W+1)}, s5
s_mov_b32 {s(S_W+2)}, 2097152
s_mov_b32 {s(S_W+3)}, 0x20000
v_lshrrev_b32 {v(b)}, 2, {v(V_LANE)}
v_lshl_add_u32 {v(a)}, {v(b)}, 10, {v(a)}
s_lshl_b32 {s(S_T0)}, {s(S_T0)}, 14
s_and_b32 {s(S_T1)}, {s(S_RB)}, 24
s_lshl_b32 {s(S_T1)}, {s(S_T1)}, 16
s_add_u32 {s(S_T0)}, {s(S_T0)}, {s(S_T1)}
buffer_load_dword v190, {v(a)}, {s(S_W,4)}, {s(S_T0)} offen
buffer_load_dword v191, {v(a)}, {s(S_W,4)}, {s(S_T0)} offen offset:512
s_branch L_pfe
L_pfq:
s_mov_b32 {s(S_W)}, s6
s_mov_b32 {s(S_W+1)}, s7
s_mov_b32 {s(S_W+2)}, 1572864
s_mov_b32 {s(S_W+3)}, 0x20000
v_lshrrev_b32 {v(b)}, 2, {v(V_LANE)}
v_mul_u32_u24 {v(b)}, 0xc00, {v(b)}
v_add_u32 {v(a)}, {v(a)}, {v(b)}
s_mul_i32 {s(S_T0)}, {s(S_T0)}, {16*3072}
s_add_u32 {s(S_T0)}, {s(S_T0)}, {s(S_T1)}
buffer_load_dword v190, {v(a)}, {s(S_W,4)}, {s(S_T0)} offen
s_mov_b32 {s(S_W)}, s12
s_mov_b32 {s(S_W+1)}, s13
buffer_load_dword v191, {v(a)}, {s(S_W,4)}, {s(S_T0)} offen
L_pfe:""")
    P.add(Raw("\n".join(("" if l.endswith(":") else "    ") + l for l in o)))
    P("s_nop 0")
if OPT["pf"] == 1: l2_prefetch()
P.add(srd(S_WS, 22, WS_SIZE) + srd(S_DBG, 20, 256))
P(f"""s_cmp_eq_u32 s2, 0
s_cselect_b32 {s(S_T2)}, 0, {OOB}
v_lshlrev_b32 v5, 8, v0
v_or_b32 v5, {s(S_T2)}, v5
s_waitcnt lgkmcnt(0)
v_mov_b32 {v(EP)}, {s(S_TM)}
v_mov_b32 {v(EP+1)}, {s(S_TM+1)}
buffer_store_dwordx2 {v(EP,2)}, v5, {s(S_DBG,4)}, 0 offen sc1""")
for q in range(16):
    P(f"""v_subrev_u32 {v(CM+q)}, {8*(q>>2)+(q&3)}, {v(cm)}
v_and_b32 {v(CM+q)}, 17, {v(CM+q)}
v_cvt_f32_u32 {v(CM+q)}, {v(CM+q)}
v_mul_f32 {v(CM+q)}, {hex(NEG_BIG)}, {v(CM+q)}""")
P.add(attn_setup(0, 136))
P.add([f"v_mov_b32 {v(VBH+i)}, {hex(ONES)}" for i in range(4)])
if OPT["sent"] < 0:
    P.add([f"v_mov_b32 {v(KA+i)}, -1" for i in range(4)])
    for br in range(2):
        for tt in range(2):
            P.add(o_store(br, tt, KA, "kv"))
C.stamp()

def frag_reads(n):
    b, m = n % 3, n & 31
    j, ux = m >> 2, m & 3
    base = (stage_of(n) % NSLOT) * SLOT
    hi = base >= 65536; off = base - (65536 if hi else 0)
    x = [f"ds_read_b128 {v(XB+8*b+4*tt,4)}, {v(V_AX+ux)} offset:{j*8192+tt*4096}" for tt in range(2)]
    if n < 32:
        w = [f"ds_read_b64_tr_b16 {v(WB+8*b+4*t+2*qd,2)}, {v(((V_T1L,V_T1H),(V_T3L,V_T3H))[t][hi])} offset:{off+(n&1)*4096+qd*1024}"
             for t in range(2) for qd in range(2)]
        return [w[0], x[0], w[1], w[2], x[1], w[3]]
    w = [f"ds_read_b64_tr_b16 {v(WB+8*b+2*qd,2)}, {v((V_T2L,V_T2H)[hi])} offset:{off+ux*2048+qd*512}" for qd in range(2)]
    return [w[0], x[0], w[1], x[1]]
def step_mfmas(n):
    b = n % 3
    x = lambda tt: v(XB+8*b+4*tt, 4)
    c = lambda r: "0" if n in (0, 32) else v(r, 16)
    if n < 32:
        return [mfma(v(T1,16), v(WB+8*b,4), x(0), c(T1)), mfma(v(T3,16), x(0), v(WB+8*b+4,4), c(T3)),
                mfma(v(T1+16,16), v(WB+8*b,4), x(1), c(T1+16)), mfma(v(T3+16,16), x(1), v(WB+8*b+4,4), c(T3+16))]
    return [mfma(v(T2,16), v(WB+8*b,4), x(0), c(T2)), mfma(v(T2+16,16), v(WB+8*b,4), x(1), c(T2+16))]
def kv_publish():
    o = [f"s_lshl_b32 {s(S_T0)}, {s(S_HEAD)}, 17", f"s_lshl_b32 {s(S_T1)}, {s(S_RB)}, 12", f"s_add_u32 {s(S_T0)}, {s(S_T0)}, {s(S_T1)}"]
    for tt in range(2):
        o += [f"v_pk_mul_f32 {v(T1+16*tt+2*i,2)}, {v(T1+16*tt+2*i,2)}, {s(S_C,2)}" for i in range(4)]
        o += [f"v_cvt_pk_bf16_f32 {v(KA+4*tt+i)}, {v(T1+16*tt+2*i)}, {v(T1+16*tt+2*i+1)}" for i in range(4)]
        o += [ws_st(v(KA+4*tt,4), V_L16, s(S_T0), tt*2048, "kv")]
    for tt in range(2):
        for m in range(2):
            o += [f"v_cvt_pk_bf16_f32 {v(VPK+8*tt+4*m+i)}, {v(T3+16*tt+8*m+2*i)}, {v(T3+16*tt+8*m+2*i+1)}" for i in range(4)]
            o += [ws_st(v(VPK+8*tt+4*m,4), V_LO, s(S_T0), tt*2048+1024+m*512, "kv")]
    o += [f"s_lshl_b32 {s(S_T0)}, {s(S_HEAD)}, 15", f"s_lshl_b32 {s(S_T1)}, {s(S_RB)}, 10",
          f"s_add_u32 {s(S_T0)}, {s(S_T0)}, {s(S_T1)}", f"s_add_u32 {s(S_T0)}, {s(S_T0)}, {WS_HB}",
          ws_st(v(VPK+12,4), V_HI, s(S_T0), 512, "kv")]
    for tt in (1, 0):
        o += [f"v_pk_mul_f32 {v(T1+16*tt+8+2*i,2)}, {v(T1+16*tt+8+2*i,2)}, {s(S_C,2)}" for i in range(4)]
        o += [f"v_cvt_pk_bf16_f32 {v(KB+4*tt+i)}, {v(T1+16*tt+8+2*i)}, {v(T1+16*tt+8+2*i+1)}" for i in range(4)]
        if tt == 1: o += [ws_st(v(KB+4,4), V_HI, s(S_T0), 0, "kv")]
    o += [f"v_mov_b32 {v(TMP)}, {hex(ONES)}"]
    o += [f"v_cndmask_b32 {v(VB+i)}, {v(VPK+i)}, {v(TMP)}, {s(S_LO16,2)}" for i in range(16)]
    return o

if OPT["p1only"]:
    P("s_barrier\n" * 25 + "s_endpgm")
P("s_barrier")
C.stamp()
P.add(frag_reads(0)); P.add(frag_reads(1))
queue = []
for n in range(64):
    mf = step_mfmas(n)
    sync = first_of_stage(n + 2) or n == 62
    rd = frag_reads(n + 2) if n < 62 else []
    if n == 20: queue += [ep_load]
    if n == OPT["sent"]:
        P.add([f"v_mov_b32 {v(KA+i)}, -1" for i in range(4)])
        for br in range(2):
            for tt in range(2):
                queue += [o_store(br, tt, KA, "kv")]
    if n == 32: queue += kv_publish()
    if n == 46: queue += gate_finish([0, 1], V_GPR, T3)
    take = OPT["take"] if n >= 32 else 1
    side = queue[:take]; queue = queue[take:]
    P(mf[0])
    if sync:
        P.add(WaitLds()); P("s_barrier")
        if OPT["fine"] in (1, 2, 3): C.stamp()
    if n < 32:
        P.add(rd[0:2]); P(mf[1]); P.add(rd[2:4]); P(mf[2]); P.add(rd[4:6]); P(mf[3]); P.add(side)
    else:
        P.add(rd[0:2]); P.add(side[:take//2]); P(mf[1]); P.add(rd[2:4]); P.add(side[take//2:])
    if n == 31: C.stamp()
    if n == OPT["kvflag"]:
        C.poll(f"v_cmp_ne_u64 vcc, 0, {v(EP,2)}", ep_load)
        P.add(flag_store("kv", WS_FKV, S_HEAD, 5, S_RB))
        C.stamp()
    if n == 60:
        P(f"""s_sub_u32 {s(S_T1)}, {s(S_RB)}, 1
s_max_i32 {s(S_T1)}, {s(S_T1)}, 0
s_lshl_b32 {s(S_K)}, {s(S_HEAD)}, 5
s_add_u32 {s(S_K)}, {s(S_K)}, {s(S_T1)}
s_lshl_b32 {s(S_K)}, {s(S_K)}, 3
s_add_u32 {s(S_K)}, {s(S_K)}, {WS_FKV}
v_mov_b32 {v(V_FOFF)}, 0""")
        P(flag_load)
assert not queue
C.stamp()
QA1 = 172
P.add([f"v_cvt_pk_bf16_f32 {v(QB+4+i)}, {v(T2+16+8+2*i)}, {v(T2+16+8+2*i+1)}" for i in range(4)])
BS, BSP, BO, BP, BPL = 48, 64, 128, 160, 168
def b_scores(t):
    kprev = v(KB, 4) if t == 1 else v(KBH, 4)
    return [mfma(v(BS+32*(1-t),16), v(KB+4*t,4), v(QB+4*t,4), v(CM,16)),
            mfma(v(BSP+80*(1-t),16), kprev, v(QB+4*t,4), v(CM,16))]
def b_softmax(t):
    S, sp, m = BS + 32*(1-t), BSP + 80*(1-t), TMP
    o = [f"v_cndmask_b32 {v(S+q)}, {v(S+q)}, {v(sp+q)}, {s(S_LO16,2)}" for q in range(8, 16)]
    if t == 0:
        o += [f"v_mov_b32 {v(m)}, {hex(NEG_BIG)}"]
        o += [f"v_cndmask_b32 {v(S+q)}, {v(S+q)}, {v(m)}, {s(S_X,2)}" for q in range(8, 16)]
    o += max_tree(m, range(S, S+16)) + cross_max(m, m+1)
    o += [f"v_sub_f32 {v(S+q)}, {v(S+q)}, {v(m)}" for q in range(16)]
    o += [f"v_exp_f32 {v(S+q)}, {v(S+q)}" for q in range(16)]
    o += [f"v_cvt_pk_bf16_f32 {v(BP+i)}, {v(S+2*i)}, {v(S+2*i+1)}" for i in range(8)]
    o += [f"v_cndmask_b32 {v(BPL+i)}, 0, {v(BP+4+i)}, {s(S_LO16,2)}" for i in range(4)]
    o += [f"v_cndmask_b32 {v(BP+4+i)}, {v(BP+4+i)}, 0, {s(S_LO16,2)}" for i in range(4)]
    return o
def b_pv(t):
    vprev = v(VB+4, 4) if t == 1 else v(VBH, 4)
    acc = v(BO - 32*(1-t), 16)
    return [mfma(acc, v(VB+8*t,4), v(BP,4), "0"), mfma(acc, v(VB+8*t+4,4), v(BP+4,4), acc), mfma(acc, vprev, v(BPL,4), acc)]
def b_pack(t):
    f = TMP + 2
    return o_pack(BO - 32*(1-t), 8, 0, [f"v_sub_f32 {v(f+1)}, 1.0, {v(G0+t)}", f"v_mul_f32 {v(f)}, {v(f)}, {v(f+1)}"], KA + 4*t, f) + o_store(1, t, KA + 4*t, "ob")
P.add(b_scores(1))
P.add([f"ds_write_b128 {v(V_AK)}, {v(KA+4*tt,4)} offset:{(8+tt)*KVS}" for tt in range(2)])
P(f"s_mov_b64 exec, {s(S_LO16,2)}")
P.add([f"ds_write_b128 {v(V_AV0)}, {v(VPK+8*tt+4*m,4)} offset:{(8+tt)*KVS+1024+512*m}" for tt in range(2) for m in range(2)])
P("s_mov_b64 exec, -1")
P.add([f"v_cvt_pk_bf16_f32 {v(QA1+i)}, {v(T2+16+2*i)}, {v(T2+16+2*i+1)}" for i in range(4)])
P(f"ds_write_b128 {v(V_QW)}, {v(QA1,4)}")
P.add([f"v_cvt_pk_bf16_f32 {v(QB+i)}, {v(T2+8+2*i)}, {v(T2+8+2*i+1)}" for i in range(4)])
P.add([f"v_cvt_pk_bf16_f32 {v(QA+i)}, {v(T2+2*i)}, {v(T2+2*i+1)}" for i in range(4)])
sm1, sm0, pv1, pk1, pk0 = b_softmax(1), b_softmax(0), b_pv(1), b_pack(1), b_pack(0)
P.add(sm1); P.add(pv1)
C.poll(flag_cmp, flag_load)
P(f"""s_lshl_b32 {s(S_T0)}, {s(S_HEAD)}, 15
s_lshl_b32 {s(S_T1)}, {s(S_RB)}, 10
s_add_u32 {s(S_T0)}, {s(S_T0)}, {s(S_T1)}
s_add_u32 {s(S_T0)}, {s(S_T0)}, {WS_HB - 1024}
s_cmp_eq_u32 {s(S_RB)}, 0
s_cselect_b32 {s(S_T0)}, {WS_SIZE}, {s(S_T0)}
s_cselect_b64 {s(S_X,2)}, {s(S_LO16,2)}, 0""")
P.add([ws_ld(v(KBH,4), V_HI, s(S_T0)), f"s_not_b64 exec, {s(S_LO16,2)}", ws_ld(v(VBH,4), V_HI, s(S_T0), 512), "s_mov_b64 exec, -1"])
P.add(pk1)
C.stamp()
P.add(WaitLds()); P("s_barrier")
C.stamp()
if OPT["cprio"]: P("s_setprio 2")
P.add(b_scores(0)); P.add(sm0); P.add(b_pv(0)); P("s_barrier")
window_attention(C, 0, {"m0": lambda: (P.add(pk0), P("s_setprio 0"))})
P.add(o_pack(OACC, 0, 8, [f"v_mul_f32 {v(TMP)}, {v(TMP)}, {v(G0)}"], PF, TMP))
P.add(o_store(0, 0, PF, "oa"))
C.stamp()
C.finish()

full = Prog(); full.items = E.items + H.P.items
bodyH = finalize(full, verbose=True)
full = Prog(); full.items = [Ins("s_load_dwordx16 s[4:19], s[0:1], 0"), Ins("global_load_dword v13, v5, s[96:97]")] + C.P.items
bodyC = "\n".join(finalize(full, verbose=True).split("\n")[2:])
print("stamps H", H.ns, "C", C.ns)
hdr = open("cdna_kernels/%s.s.ref" % NAME).read().split("; Override launch")[0]
txt = hdr + f"""; One launch: 256 workgroups (4 heads x 64 rows each), 8 waves, hand-offs through d_ws tagged with a per-launch epoch.
; @launch grid=(256,1,1) block=(512,1,1) lds={LDS_BYTES}
.amdgcn_target "amdgcn-amd-amdhsa--gfx950"
.text
.globl {NAME}_kernel
.p2align 12
.p2align 8
.type {NAME}_kernel,@function
{NAME}_kernel:
{bodyH}{bodyC}L_end:
    s_endpgm
{''.join(retry_txt)}{special_txt}{exact_attention() if OPT["standin"] else ""}    .fill 3072, 4, 0xbf800000
.section .rodata,"a"
.p2align 6
.amdhsa_kernel {NAME}_kernel
  .amdhsa_next_free_vgpr 256
  .amdhsa_next_free_sgpr 102
  .amdhsa_accum_offset 256
  .amdhsa_group_segment_fixed_size 0
  .amdhsa_kernarg_size 80
  .amdhsa_user_sgpr_count 2
  .amdhsa_user_sgpr_kernarg_segment_ptr 1
  .amdhsa_system_sgpr_workgroup_id_x 1
.end_amdhsa_kernel
"""
open(sys.argv[1], "w").write(txt)
```

```python
import sys, math, struct
from asmdsl import Prog, Ins, WaitTag, WaitLds, Raw, finalize

NAME = "gated_mix__sliding_block__sliding_local_dilated__prompt"
OPT = dict(f2hs=4, wapre=8, gat=22, ws0=4, wsn=12, wbpre=0, pubat=32, polle=3, rot3=0, f2at=1, wol2=0, wqpf=0, sgap=6, wopf=1, oa1at=5, sent=8, cprio=1, obtry=5, take=30, hprio=0, tlb=1, cpf=0, xmap=3, rotmode=4, p1only=0, ampclk=0, pf=0, stamps=0, standin=1, amp=-1, ampk=8, amprole=1, rotmask=7, kvflag=42, fine=0, outsc=0, prio=1, touch=0)
for a in sys.argv[2:]:
    k, v_ = a.split("="); assert k in OPT, k; OPT[k] = int(v_)

WS_KV, WS_HB, WS_O = 0, 4 << 20, 5 << 20
WS_FKV, WS_FOB, WS_FOA = 9 << 20, (9 << 20) + 65536, (9 << 20) + 131072
WS_STAMP, WS_SIZE = 10 << 20, 64 << 20
OOB = 0x80000000
NSLOT, SLOT = 5, 16384
L_X, L_G, L_GP, L_Q, L_HB, LDS_BYTES = 81920, 148480, 149504, 150528, 154624, 158720
KVH, KVS, L_KV, L_WO = 2064, 4 * 2064, 65536, 0
QK_SCALE = 0.25 * math.log2(math.e)
NEG_BIG, ONES = 0xf149f2ca, 0x3f803f80

def fhex(x): return "0x%08x" % struct.unpack("<I", struct.pack("<f", x))[0]
def v(a, n=1): return f"v{a}" if n == 1 else f"v[{a}:{a+n-1}]"
def s(a, n=1): return f"s{a}" if n == 1 else f"s[{a}:{a+n-1}]"
def lines(t): return [l.strip() for l in t.strip().split("\n") if l.strip()]
def mfma(d, a, b, c): return f"v_mfma_f32_32x32x16_bf16 {d}, {a}, {b}, {c}"
def srd(base, ptr, nbytes):
    return [f"s_mov_b32 {s(base)}, {s(ptr)}", f"s_mov_b32 {s(base+1)}, {s(ptr+1)}",
            f"s_mov_b32 {s(base+2)}, {nbytes}", f"s_mov_b32 {s(base+3)}, 0x20000"]
def interleave(*ls):
    o, ls = [], [list(l) for l in ls]
    while any(ls):
        for l in ls:
            if l: o.append(l.pop(0))
    return o

S_X, S_W, S_WS, S_WOA, S_WOB, S_OUT, S_DBG, S_G = 24, 28, 32, 36, 40, 44, 48, 36
S_W4, S_HG, S_RB, S_ROT, S_HEAD, S_RB3, S_CB = 52, 53, 54, 55, 56, 57, 58
S_K, S_T0, S_MW, S_MX, S_T1 = 59, 60, 61, 62, 63
S_MASK, S_T2, S_T3, S_LO16, S_TM, S_C, S_SPIN, S_EP = 64, 96, 97, 98, 100, 10, 3, 26
V_LANE, V_L16, V_STAMP, V_FOFF = 1, 2, 3, 4
EP, FLG = 6, 8
V_AK, V_AV0, V_AV1 = 10, 11, 12
G0 = 14
PM, QA = 16, 24
TMP = 28
SB, NEGM, MG, PB, PF, KF, OACC, VF = 32, 64, 96, 128, 144, 152, 160, 192
KA, QA1, VA = 208, 216, 224

class Role:
    def __init__(self, name):
        self.P, self.name, self.ns, self.nl = Prog(), name, 0, 0
    def stamp(self):
        P = self.P
        if OPT["amp"] == self.ns and OPT["amprole"] == (self.name == "H"):
            P.add(WaitLds())
            P(f"{'s_memtime' if OPT['ampclk'] else 's_memrealtime'} {s(S_TM,2)}\ns_waitcnt lgkmcnt(0)\nv_writelane_b32 {v(V_STAMP)}, {s(S_TM)}, 1")
        if OPT["stamps"]:
            P.add(WaitLds())
            P(f"s_memtime {s(S_TM,2)}\ns_waitcnt lgkmcnt(0)\nv_writelane_b32 {v(V_STAMP)}, {s(S_TM)}, {self.ns + 1}")
        self.ns += 1
    def poll(self, cmp_txt, reload_txt):
        P, n = self.P, f"{self.name}{self.nl}"; self.nl += 1
        P(f"s_mov_b32 {s(S_SPIN)}, 0x40000"); P(cmp_txt)
        P(f"s_cmp_eq_u64 vcc, -1\ns_cbranch_scc1 L_pok{n}")
        P.add(Raw(f"""L_pspin{n}:
    {reload_txt}
    s_sub_u32 {s(S_SPIN)}, {s(S_SPIN)}, 1
    s_cbranch_scc1 L_pok{n}
    s_waitcnt vmcnt(0)
    {cmp_txt}
    s_nop 2
    s_cmp_eq_u64 vcc, -1
    s_cbranch_scc0 L_pspin{n}
L_pok{n}:"""))
    def spoll(self, n, base, off, ignore_from=None):
        P, lb = self.P, f"{self.name}{self.nl}"; self.nl += 1
        P.add(WaitLds())
        t = f"    s_mov_b32 {s(S_SPIN)}, 0x40000\nL_sp{lb}:\n"
        if n == 0:
            t += f"    s_load_dwordx2 {s(S_EP,2)}, {s(base,2)}, 0 glc\n    s_waitcnt lgkmcnt(0)\n    s_cmp_lg_u64 {s(S_EP,2)}, 0\n"
        else:
            t += f"    s_load_dwordx{2*n} {s(4,2*n)}, {s(base,2)}, {s(off)} glc\n    s_waitcnt lgkmcnt(0)\n"
            for i in range(n - 1):
                if ignore_from is not None:
                    t += f"    s_cmp_lt_u32 {s(ignore_from)}, {n - i}\n    s_cselect_b64 {s(4+2*i,2)}, {s(S_EP,2)}, {s(4+2*i,2)}\n"
            for i in range(n):
                t += f"    s_xor_b64 {s(4+2*i,2)}, {s(4+2*i,2)}, {s(S_EP,2)}\n"
                if i: t += f"    s_or_b64 s[4:5], s[4:5], {s(4+2*i,2)}\n"
            t += "    s_cmp_eq_u64 s[4:5], 0\n"
        t += (f"    s_cbranch_scc1 L_spok{lb}\n    s_sub_u32 {s(S_SPIN)}, {s(S_SPIN)}, 1\n    s_cbranch_scc0 L_sp{lb}\nL_spok{lb}:")
        P.add(Raw(t))
    def finish(self):
        P = self.P
        if OPT["stamps"]:
            P(f"s_memrealtime {s(S_TM,2)}\ns_waitcnt lgkmcnt(0) vmcnt(0)\nv_writelane_b32 {v(V_STAMP)}, {s(S_TM)}, 63")
            P(f"""s_lshl_b32 {s(S_T0)}, s2, 3
s_add_u32 {s(S_T0)}, {s(S_T0)}, {s(S_W4)}
s_add_u32 {s(S_T0)}, {s(S_T0)}, {4 if self.name == "H" else 0}
s_lshl_b32 {s(S_T0)}, {s(S_T0)}, 8
s_add_u32 {s(S_T0)}, {s(S_T0)}, {WS_STAMP}
v_lshlrev_b32 v0, 2, {v(V_LANE)}
buffer_store_dword {v(V_STAMP)}, v0, {s(S_WS,4)}, {s(S_T0)} offen""")
        if OPT["amp"] >= 0 and OPT["amprole"] == (self.name == "H"):
            P(f"""s_cmp_lg_u32 s2, 100
s_cbranch_scc1 L_end
v_readlane_b32 {s(S_T0)}, {v(V_STAMP)}, 0
v_readlane_b32 {s(S_T1)}, {v(V_STAMP)}, 1
s_memrealtime {s(S_TM,2)}
s_sub_u32 {s(S_T1)}, {s(S_T1)}, {s(S_T0)}
s_mul_i32 {s(S_T1)}, {s(S_T1)}, {OPT["ampk"]}
s_lshr_b32 {s(S_T1)}, {s(S_T1)}, {4 if OPT["ampclk"] else 0}
s_min_u32 {s(S_T1)}, {s(S_T1)}, 100000
s_waitcnt lgkmcnt(0)
s_mov_b32 {s(S_T0)}, {s(S_TM)}""")
            P.add(Raw(f"""L_amp{self.name}:
    s_memrealtime {s(S_TM,2)}
    s_waitcnt lgkmcnt(0)
    s_sub_u32 {s(S_K)}, {s(S_TM)}, {s(S_T0)}
    s_cmp_lt_u32 {s(S_K)}, {s(S_T1)}
    s_cbranch_scc1 L_amp{self.name}"""))
        P("s_endpgm")

ws_ld = lambda dst, voff, soff, imm=0, tag=None: Ins(
    f"buffer_load_dwordx4 {dst}, {v(voff)}, {s(S_WS,4)}, {soff} offen{' offset:%d' % imm if imm else ''} sc1", tag)
ws_st = lambda src, voff, soff, imm=0, tag=None: Ins(
    f"buffer_store_dwordx4 {src}, {v(voff)}, {s(S_WS,4)}, {soff} offen{' offset:%d' % imm if imm else ''} sc1", tag)
ep_load = f"buffer_load_dwordx2 {v(EP,2)}, off, {s(S_DBG,4)}, 0 sc1"
flag_load = f"buffer_load_dwordx2 {v(FLG,2)}, {v(V_FOFF)}, {s(S_WS,4)}, {s(S_K)} offen sc1"
flag_cmp = f"v_cmp_eq_u64 vcc, {v(FLG,2)}, {v(EP,2)}"
def flag_store(data_tag, kind):
    if kind == "kv":
        o = lines(f"""v_mul_u32_u24 v0, 56, {v(V_LANE)}
v_add_u32 v0, 88, v0
s_sub_u32 {s(S_T1)}, 31, {s(S_RB)}
s_min_u32 {s(S_T1)}, {s(S_T1)}, 4
v_cmp_gt_u32 vcc, {s(S_T1)}, {v(V_LANE)}
s_cmp_eq_u32 {s(S_RB)}, 0
s_cselect_b32 {s(S_T1)}, 24, {OOB}
v_mov_b32 v5, {s(S_T1)}
v_cndmask_b32 v0, v5, v0, vcc
s_lshl_b32 {s(S_T0)}, {s(S_HEAD)}, 5
s_add_u32 {s(S_T0)}, {s(S_T0)}, {s(S_RB)}
s_lshl_b32 {s(S_T0)}, {s(S_T0)}, 6
s_add_u32 {s(S_T0)}, {s(S_T0)}, {WS_FKV}""")
    else:
        o = lines(f"""v_lshlrev_b32 v0, 8, {v(V_LANE)}
v_cmp_gt_u32 vcc, 8, {v(V_LANE)}
v_mov_b32 v5, {OOB}
v_cndmask_b32 v0, v5, v0, vcc
s_lshl_b32 {s(S_T0)}, {s(S_RB)}, 8
s_add_u32 {s(S_T0)}, {s(S_T0)}, {s(S_HEAD)}
s_lshl_b32 {s(S_T0)}, {s(S_T0)}, 3
s_add_u32 {s(S_T0)}, {s(S_T0)}, {WS_FOB}""")
    return o + [WaitTag(data_tag), Ins(f"buffer_store_dwordx2 {v(EP,2)}, v0, {s(S_WS,4)}, {s(S_T0)} offen sc1", "flag")]

def max_tree(dst, regs, init=False):
    regs, o = list(regs), []
    if not init:
        o.append(f"v_max3_f32 {v(dst)}, {v(regs[0])}, {v(regs[1])}, {v(regs[2])}"); regs = regs[3:]
    while len(regs) >= 2:
        o.append(f"v_max3_f32 {v(dst)}, {v(dst)}, {v(regs[0])}, {v(regs[1])}"); regs = regs[2:]
    if regs: o.append(f"v_max_f32 {v(dst)}, {v(dst)}, {v(regs[0])}")
    return o
def cross_max(m, t):
    return [f"v_mov_b32 {v(t)}, {v(m)}", f"v_permlane32_swap_b32 {v(m)}, {v(t)}", f"v_max_f32 {v(m)}, {v(m)}, {v(t)}"]

def attn_setup(t, tmp):
    r5, hh, cm, u = tmp, tmp + 1, tmp + 2, tmp + 3
    o = lines(f"""v_and_b32 {v(r5)}, 31, {v(V_LANE)}
v_lshrrev_b32 {v(hh)}, 5, {v(V_LANE)}
v_lshlrev_b32 {v(u)}, 2, {v(hh)}
v_sub_u32 {v(cm)}, {v(r5)}, {v(u)}
s_mul_i32 {s(S_T2)}, {s(S_W4)}, {KVH}
s_add_u32 {s(S_T2)}, {s(S_T2)}, {L_KV + t*KVS}
v_add_u32 {v(V_AK)}, {s(S_T2)}, {v(V_L16)}
v_and_b32 {v(u)}, 15, {v(V_LANE)}
v_lshlrev_b32 {v(u)}, 4, {v(u)}
v_lshl_add_u32 {v(u)}, {v(hh)}, 8, {v(u)}
v_mov_b32 {v(hh)}, 0x400
v_cndmask_b32 {v(V_AV0)}, {v(hh)}, {v(u)}, {s(S_LO16,2)}
v_mov_b32 {v(hh)}, 0x200
v_cndmask_b32 {v(V_AV1)}, {v(hh)}, {v(u)}, {s(S_LO16,2)}
v_add_u32 {v(V_AV0)}, {s(S_T2)}, {v(V_AV0)}
v_add_u32 {v(V_AV1)}, {s(S_T2)}, {v(V_AV1)}
v_mov_b32 {v(u)}, 0xffff""")
    o += [f"v_cmp_le_i32 {s(S_MASK+2*q,2)}, {8*(q>>2)+(q&3)}, {v(cm)}" for q in range(16)]
    o += [f"v_cndmask_b32 {v(PM+pq)}, 0, {v(u)}, {s(S_MASK+4*pq,2)}" for pq in range(8)]
    o += [f"v_cndmask_b32 {v(PM+pq)}, {v(PM+pq)}, -1, {s(S_MASK+4*pq+2,2)}" for pq in range(8)]
    return o

def gate_finish(tiles, addr, tmp):
    o = [f"ds_read_b128 {v(tmp+4*t,4)}, {v(addr)} offset:{512*t}" for t in tiles]
    seq = []
    for t in tiles:
        b = tmp + 4*t
        seq.append([f"v_add_f32 {v(b)}, {v(b)}, {v(b+1)}", f"v_add_f32 {v(b+2)}, {v(b+2)}, {v(b+3)}",
                    f"v_add_f32 {v(b)}, {v(b)}, {v(b+2)}", f"v_mul_f32 {v(b)}, {fhex(-math.log2(math.e))}, {v(b)}",
                    f"v_exp_f32 {v(b)}, {v(b)}", f"v_add_f32 {v(b)}, 1.0, {v(b)}", f"v_rcp_f32 {v(G0+t)}, {v(b)}"])
    return o + interleave(*seq)

def o_pack(acc, o0, lreg, fac, dst, f):
    return ([f"v_rcp_f32 {v(f)}, {v(acc+lreg)}"] + fac +
            [f"v_mul_f32 {v(acc+o0+i)}, {v(f)}, {v(acc+o0+i)}" for i in range(8)] +
            [f"v_cvt_pk_bf16_f32 {v(dst+i)}, {v(acc+o0+2*i)}, {v(acc+o0+2*i+1)}" for i in range(4)])
def o_store(br, tt, src, tag):
    return [f"s_lshl_b32 {s(S_T0)}, {s(S_RB)}, 17", f"s_lshl_b32 {s(S_T1)}, {s(S_HEAD)}, 10",
            f"s_add_u32 {s(S_T0)}, {s(S_T0)}, {s(S_T1)}", f"s_add_u32 {s(S_T0)}, {s(S_T0)}, {WS_O + br*65536 + tt*32768}",
            ws_st(v(src,4), V_L16, s(S_T0), 0, tag)]

def window_attention(R, start, events):
    P = R.P
    Q = lambda t: v((QA, QA1)[t], 4)
    kfr = lambda u: v(KF+4*(u & 1), 4) if u < 8 else v(KA+4*(u-8), 4)
    vfr = lambda u, m: v(VF+8*(u & 1)+4*m, 4) if u < 8 else v(VA+8*(u-8)+4*m, 4)
    kread = lambda u: [f"ds_read_b128 {kfr(u)}, {v(V_AK)} offset:{u*KVS}"] if u < 8 else []
    vread = lambda u: [f"ds_read_b128 {vfr(u,0)}, {v(V_AV0)} offset:{u*KVS+1024}",
                       f"ds_read_b128 {vfr(u,1)}, {v(V_AV1)} offset:{u*KVS+1536}"] if u < 8 else []
    M = (TMP, TMP + 2)
    acc = lambda t: v(OACC+16*t, 16)
    ev = lambda key: events.pop(key)() if key in events else None
    h = len(start) // 3
    P.add(kread(0) + kread(1))
    P(mfma(v(MG,16), kfr(8), Q(0), "0")); P.add(start[:h])
    P(mfma(v(MG+16,16), kfr(9), Q(1), "0")); P.add(start[h:2*h])
    P(mfma(v(SB,16), kfr(0), Q(0), "0")); P.add(kread(2)); P.add(start[2*h:])
    P(mfma(v(SB+16,16), kfr(1), Q(1), "0")); P.add(vread(0) + vread(1))
    for t in range(2):
        P.add([f"v_cndmask_b32 {v(MG+16*t+i)}, {v(SB+16*t+i)}, {v(MG+16*t+i)}, {s(S_MASK+2*i,2)}" for i in range(16)])
    P.add(interleave(*[max_tree(M[t], range(MG+16*t, MG+16*t+16)) + cross_max(M[t], M[t]+1) for t in range(2)]))
    R.stamp()
    for t in range(2):
        P.add([f"v_sub_f32 {v(NEGM+16*t+i)}, 0, {v(M[t])}" for i in range(16)])
        P(mfma(v(SB+16*t,16), kfr(1+t), Q(t), v(NEGM+16*t,16)))
        if t == 0: P.add(kread(3))
    pend = []
    for t in range(2):
        g = MG + 16*t
        seq = [f"v_pk_add_f32 {v(g+2*i,2)}, {v(g+2*i,2)}, {v(NEGM+16*t,2)}" for i in range(8)]
        seq += [f"v_exp_f32 {v(g+i)}, {v(g+i)}" for i in range(16)]
        seq += [f"v_cvt_pk_bf16_f32 {v(PF+i)}, {v(g+2*i)}, {v(g+2*i+1)}" for i in range(8)]
        seq += [f"v_and_b32 {v(PB+8*t+i)}, {v(PM+i)}, {v(PF+i)}" for i in range(8)]
        seq += [f"v_xor_b32 {v(g+i)}, {v(PF+i)}, {v(PB+8*t+i)}" for i in range(8)]
        for i, x in enumerate(seq):
            P(x)
            if pend and i % 6 == 5: P.add(pend.pop(0))
        pend = [mfma(acc(t), vfr(8+t,0), v(PB+8*t,4), "0"), mfma(acc(t), vfr(8+t,1), v(PB+8*t+4,4), acc(t)),
                mfma(acc(t), vfr(t,0), v(g,4), acc(t)), [mfma(acc(t), vfr(t,1), v(g+4,4), acc(t))] + (vread(2) if t == 0 else [])]
    ev("e1")
    for hs in range(14):
        t = hs & 1; u = (hs >> 1) + 1 + t
        S, Pp = SB + 16*t, PB + 8*t
        e = [f"v_exp_f32 {v(S+i)}, {v(S+i)}" for i in range(16)]
        c = [f"v_cvt_pk_bf16_f32 {v(Pp+k)}, {v(S+2*k)}, {v(S+2*k+1)}" for k in range(8)]
        nxt = None
        if t == 0 and hs > 0: nxt = [mfma(v(SB+16,16), kfr(u+1), Q(1), v(NEGM+16,16))]
        if t == 1 and hs < 13: nxt = [mfma(v(SB,16), kfr(u), Q(0), v(NEGM,16))] + kread(u+2)
        if hs == 0:
            P.add(e[0:2]); P.add(pend[0]); P.add(e[2:5]); P.add(pend[1]); P.add(e[5:8]); P.add(pend[2])
            P.add(c[0:4]); P.add(e[8:10]); P.add(pend[3]); P.add(e[10:14])
            P(mfma(acc(t), vfr(u,0), v(Pp,4), acc(t))); P.add(e[14:16]); P.add(c[4:8])
        else:
            P.add(e[0:2]); P.add(pend); P.add(e[2:6])
            if nxt: P.add(nxt)
            P.add(e[6:8]); P.add(c[0:4]); P.add(e[8:10])
            P(mfma(acc(t), vfr(u,0), v(Pp,4), acc(t)))
            P.add(e[10:16]); P.add(c[4:8])
        pend = [mfma(acc(t), vfr(u,1), v(Pp+4,4), acc(t))] + (vread(u+2) if t == 0 else [])
        ev(hs)
    P.add(pend)
    assert not events, events
    P(f"s_mov_b32 {s(S_T1)}, 0x7b800000")
    chk = []
    for t in range(2):
        o, m = OACC + 16*t, M[t]
        chk.append([f"v_add_f32 {v(m)}, abs({v(o)}), abs({v(o+8)})", f"v_add_f32 {v(m+1)}, abs({v(o+1)}), abs({v(o+2)})"] +
                   [f"v_add_f32 {v(m+(i&1))}, {v(m+(i&1))}, abs({v(o+i)})" for i in range(3, 8)] + [f"v_add_f32 {v(m)}, {v(m)}, {v(m+1)}"])
    P.add(chk[0]); P.add(chk[1])
    P(f"v_add_f32 {v(M[0])}, {v(M[0])}, {v(M[1])}\nv_cmp_lt_f32 vcc, {v(M[0])}, {s(S_T1)}")
    P("s_cmp_eq_u64 vcc, -1\ns_cbranch_scc0 L_exact0\nL_back:")
    R.stamp()

def exact_attention(t):
    F = Prog(); q, M, acc = v((QA, QA1)[t], 4), TMP, v(OACC+16*t, 16)
    KO, VO, G = TMP + 2, TMP + 3, S_T0
    def tile(rel, kdst, vdst):
        o = [f"s_add_i32 {s(S_K)}, {s(G)}, {rel}", f"s_cmp_ge_i32 {s(S_K)}, 0", f"s_cselect_b64 vcc, -1, 0",
             f"s_cselect_b32 {s(S_TM)}, {hex(ONES)}, 0", f"s_max_i32 {s(S_K)}, {s(S_K)}, 0", f"s_lshl_b32 {s(S_K)}, {s(S_K)}, 11",
             f"s_lshl_b32 {s(S_T1)}, {s(S_HEAD)}, 17", f"s_add_u32 {s(S_K)}, {s(S_K)}, {s(S_T1)}",
             f"v_and_b32 {v(KO)}, 0x200, {v(V_L16)}", f"v_cndmask_b32 {v(KO)}, {v(KO)}, {v(V_L16)}, vcc", ws_ld(v(kdst,4), KO, s(S_K))]
        if vdst is not None:
            o += [f"v_mov_b32 {v(vdst+i)}, {s(S_TM)}" for i in range(8)]
            o += [f"s_cmp_lg_u32 {s(S_TM)}, 0", f"s_cselect_b32 {s(S_K)}, {s(S_K)}, {WS_SIZE}", f"s_mov_b64 exec, {s(S_LO16,2)}",
                  ws_ld(v(vdst,4), VO, s(S_K), 1024), ws_ld(v(vdst+4,4), VO, s(S_K), 1536), "s_mov_b64 exec, -1"]
        return o
    F(f"L_exact{t}:\ns_waitcnt vmcnt(0) lgkmcnt(0)\ns_nop 15")
    F(f"""s_lshl_b32 {s(G)}, {s(S_RB)}, 1
s_sub_u32 {s(G)}, {s(G)}, {8 - t}
v_lshrrev_b32 {v(VO)}, 1, {v(V_L16)}
v_and_b32 {v(VO)}, 0x100, {v(VO)}
v_and_b32 {v(KO)}, 0xf0, {v(V_L16)}
v_or_b32 {v(VO)}, {v(VO)}, {v(KO)}""")
    F.add(tile(8, KF, VF)); F.add(tile(0, KF+4, VF+8))
    F(mfma(v(MG,16), v(KF,4), q, "0")); F(mfma(v(SB,16), v(KF+4,4), q, "0"))
    F.add([f"v_cndmask_b32 {v(MG+i)}, {v(SB+i)}, {v(MG+i)}, {s(S_MASK+2*i,2)}" for i in range(16)])
    F.add(max_tree(M, range(MG, MG+16)))
    F(f"s_mov_b32 {s(S_TM+1)}, 7\nL_exact_m{t}:\ns_add_u32 {s(G)}, {s(G)}, 1")
    F.add(tile(0, KF, None))
    F(mfma(v(SB,16), v(KF,4), q, "0"))
    F.add(max_tree(M, range(SB, SB+16), init=True))
    F(f"s_sub_u32 {s(S_TM+1)}, {s(S_TM+1)}, 1\ns_cmp_lg_u32 {s(S_TM+1)}, 0\ns_cbranch_scc1 L_exact_m{t}")
    F.add(cross_max(M, M+1))
    F.add([f"v_sub_f32 {v(MG+i)}, {v(MG+i)}, {v(M)}" for i in range(16)])
    F.add([f"v_exp_f32 {v(MG+i)}, {v(MG+i)}" for i in range(16)])
    F.add([f"v_cvt_pk_bf16_f32 {v(PF+i)}, {v(MG+2*i)}, {v(MG+2*i+1)}" for i in range(8)])
    F.add([f"v_and_b32 {v(PB+i)}, {v(PM+i)}, {v(PF+i)}" for i in range(8)])
    F.add([f"v_xor_b32 {v(PF+i)}, {v(PF+i)}, {v(PB+i)}" for i in range(8)])
    F(mfma(acc, v(VF,4), v(PB,4), "0")); F(mfma(acc, v(VF+4,4), v(PB+4,4), acc))
    F(mfma(acc, v(VF+8,4), v(PF,4), acc)); F(mfma(acc, v(VF+12,4), v(PF+4,4), acc))
    F(f"s_sub_u32 {s(G)}, {s(G)}, 7\ns_mov_b32 {s(S_TM+1)}, 7\ns_nop 15\nL_exact_e{t}:\ns_add_u32 {s(G)}, {s(G)}, 1")
    F.add(tile(0, KF, VF))
    F(mfma(v(SB,16), v(KF,4), q, "0"))
    F.add([f"v_sub_f32 {v(SB+i)}, {v(SB+i)}, {v(M)}" for i in range(16)])
    F.add([f"v_exp_f32 {v(SB+i)}, {v(SB+i)}" for i in range(16)])
    F.add([f"v_cvt_pk_bf16_f32 {v(PB+i)}, {v(SB+2*i)}, {v(SB+2*i+1)}" for i in range(8)])
    F(mfma(acc, v(VF,4), v(PB,4), acc)); F(mfma(acc, v(VF+4,4), v(PB+4,4), acc))
    F(f"s_nop 15\ns_sub_u32 {s(S_TM+1)}, {s(S_TM+1)}, 1\ns_cmp_lg_u32 {s(S_TM+1)}, 0\ns_cbranch_scc1 L_exact_e{t}")
    if t: F("s_branch L_back")
    return finalize(F)

E = Prog()
hb = {4: 2, 3: 1, 2: 0, 1: 3}[OPT["xmap"]]
if OPT["stamps"] or OPT["amp"] >= 0:
    E("s_memtime s[64:65]\ns_memrealtime s[66:67]")
def entry_stamp():
    if OPT["stamps"]:
        return [f"v_mov_b32 {v(V_STAMP)}, 0", f"v_writelane_b32 {v(V_STAMP)}, s64, 0", f"v_writelane_b32 {v(V_STAMP)}, s66, 62"]
    if OPT["amp"] >= 0:
        return [f"v_mov_b32 {v(V_STAMP)}, 0", f"v_writelane_b32 {v(V_STAMP)}, {'s64' if OPT['ampclk'] else 's66'}, 0"]
    return []
code_pf = f"""s_getpc_b64 {s(S_T2,2)}
L_pc:
s_lshl2_add_u32 {s(S_T1)}, {s(S_T0)}, {s(S_W4)}
s_and_b32 {s(S_T1)}, {s(S_T1)}, 63
s_lshl_b32 {s(S_T1)}, {s(S_T1)}, 9
s_sub_u32 {s(S_T2)}, {s(S_T2)}, L_pc-{NAME}_kernel
s_subb_u32 {s(S_T3)}, {s(S_T3)}, 0
v_and_b32 v5, 3, {v(V_LANE)}
v_lshl_add_u32 v5, v5, 7, {s(S_T1)}
global_load_dword v13, v5, {s(S_T2,2)}"""
if OPT["cpf"] == 2:
    E(f"""s_getpc_b64 {s(S_T2,2)}
s_bfe_u32 {s(S_T1)}, s2, 0x50003
v_lshrrev_b32 v5, 6, v0
v_lshlrev_b32 v5, 7, v5
v_lshl_add_u32 v5, {s(S_T1)}, 10, v5
global_load_dword v13, v5, {s(S_T2,2)}""")
if OPT["cpf"] == 3:
    E(f"""s_getpc_b64 {s(S_T2,2)}
s_bfe_u32 {s(S_T1)}, s2, 0x30003
v_lshrrev_b32 v5, 4, v0
v_lshlrev_b32 v5, 7, v5
v_lshl_add_u32 v5, {s(S_T1)}, 12, v5
global_load_dword v13, v5, {s(S_T2,2)}""")
E(f"""
s_cmp_ge_u32 s2, 256
s_cbranch_scc1 L_end
s_load_dwordx16 s[4:19], s[0:1], 0
s_load_dwordx4 s[20:23], s[0:1], 64
v_lshrrev_b32 v4, 6, v0
v_and_b32 {v(V_LANE)}, 63, v0
s_lshr_b32 {s(S_T0)}, s2, 3
v_readfirstlane_b32 {s(S_MX)}, v4
""")
E(f"""
s_and_b32 {s(S_T1)}, s2, {(8 >> hb) - 1}
s_lshl_b32 {s(S_HG)}, {s(S_T1)}, {hb}
s_and_b32 {s(S_K)}, {s(S_T0)}, {(1 << hb) - 1}
s_add_u32 {s(S_HG)}, {s(S_HG)}, {s(S_K)}
s_bfe_u32 {s(S_K)}, s2, {hex((hb << 16) | (3 - hb))}
s_lshl_b32 {s(S_RB)}, {s(S_K)}, {5 - hb}
s_lshr_b32 {s(S_ROT)}, {s(S_T0)}, {hb}
s_add_u32 {s(S_RB)}, {s(S_RB)}, {s(S_ROT)}
s_and_b32 {s(S_W4)}, {s(S_MX)}, 3
""")
if OPT["cpf"] == 1:
    E(f"""s_cmp_lt_u32 {s(S_MX)}, 4
s_cbranch_scc0 L_hrole""")
    E(code_pf)
    E("s_branch L_crole\nL_hrole:")
elif OPT["cpf"] >= 4:
    E(f"""s_cmp_lt_u32 {s(S_MX)}, 4
s_cbranch_scc0 L_hrole
s_getpc_b64 {s(S_T2,2)}
L_pc:
s_lshl2_add_u32 {s(S_T1)}, {s(S_T0)}, {s(S_W4)}
s_lshl_b32 {s(S_T1)}, {s(S_T1)}, 8
s_sub_u32 {s(S_T2)}, {s(S_T2)}, L_pc-{NAME}_kernel
s_subb_u32 {s(S_T3)}, {s(S_T3)}, 0
s_load_dword s70, {s(S_T2,2)}, {s(S_T1)}
s_add_u32 {s(S_T1)}, {s(S_T1)}, 128
s_load_dword s71, {s(S_T2,2)}, {s(S_T1)}""")
    if OPT["cpf"] == 5:
        E("s_waitcnt lgkmcnt(0)")
        for i, ptr in enumerate((6, 12, 4, 16, 20, 8, 14, 18, 22)):
            E(f"s_load_dword s{72+i}, {s(ptr,2)}, 0")
        for i in range(1, 5):
            E(f"s_mov_b32 {s(S_T1)}, {i << 21}\ns_load_dword s{80+i}, s[22:23], {s(S_T1)}")
    E("s_branch L_crole\nL_hrole:")
else:
    E(f"s_cmp_lt_u32 {s(S_MX)}, 4\ns_cbranch_scc1 L_crole")
late_ids = lines(f"""
s_lshr_b32 {s(S_T0)}, s2, 3
s_and_b32 {s(S_RB3)}, s2, 7
s_lshl_b32 {s(S_RB3)}, {s(S_RB3)}, 2
s_lshr_b32 {s(S_T1)}, {s(S_T0)}, 3
s_add_u32 {s(S_RB3)}, {s(S_RB3)}, {s(S_T1)}
s_and_b32 {s(S_CB)}, {s(S_T0)}, 7
s_lshl_b32 {s(S_HEAD)}, {s(S_HG)}, 2
s_add_u32 {s(S_HEAD)}, {s(S_HEAD)}, {s(S_W4)}
s_mov_b32 {s(S_LO16)}, 0xffff
s_mov_b32 {s(S_LO16+1)}, 0xffff
v_lshlrev_b32 {v(V_L16)}, 4, {v(V_LANE)}
""")
rot_code = {
 0: f"s_and_b32 {s(S_ROT)}, {s(S_ROT)}, {OPT['rotmask']}",
 1: f"s_and_b32 {s(S_ROT)}, s2, 7",
 4: f"s_add_u32 {s(S_ROT)}, {s(S_ROT)}, {s(S_HG)}\ns_and_b32 {s(S_ROT)}, {s(S_ROT)}, 7",
 5: f"s_add_u32 {s(S_ROT)}, {s(S_ROT)}, {s(S_HG)}\ns_and_b32 {s(S_ROT)}, {s(S_ROT)}, 3\ns_lshl_b32 {s(S_ROT)}, {s(S_ROT)}, 1",
 6: f"s_add_u32 {s(S_ROT)}, {s(S_ROT)}, {s(S_HG)}\ns_and_b32 {s(S_ROT)}, {s(S_ROT)}, 1\ns_lshl_b32 {s(S_ROT)}, {s(S_ROT)}, 2",
}[OPT["rotmode"]]

def stage_of(n): return n >> 1 if n < 32 else 16 + ((n - 32) >> 2)
def first_of_stage(n): return n < 64 and (n == 0 or stage_of(n) != stage_of(n - 1))

H = Role("H"); P = H.P
VX, VW1, VW2 = 160, 162, 166
V_AXW, V_AG, V_GPW, GACC, XW, GF = 170, 171, 172, 174, 176, 184
i3, i4, p7, t0, t1, t2 = 32, 33, 34, 35, 36, 37
def raw(i):
    if OPT["fine"] == 3: P(f"s_memtime s[{68+2*i}:{69+2*i}]")
raw(0)
P(rot_code)
P(f"""
v_lshrrev_b32 {v(i3)}, 3, {v(V_LANE)}
v_lshrrev_b32 {v(i4)}, 4, {v(V_LANE)}
v_and_b32 {v(p7)}, 7, {v(V_LANE)}
s_lshl_b32 {s(S_T0)}, {s(S_W4)}, 4
v_add_u32 {v(t0)}, {s(S_T0)}, {v(i3)}
v_lshlrev_b32 {v(t0)}, 10, {v(t0)}
v_xor_b32 {v(t1)}, {v(p7)}, {v(i4)}
v_lshl_add_u32 {v(VX)}, {v(t1)}, 4, {v(t0)}
v_xor_b32 {v(VX+1)}, 64, {v(VX)}
v_add_u32 {v(VX+1)}, {0x2000 - 1024}, {v(VX+1)}
s_lshr_b32 {s(S_T0)}, {s(S_W4)}, 1
s_and_b32 {s(S_T1)}, {s(S_W4)}, 1
s_lshl_b32 {s(S_K)}, {s(S_T0)}, 4
v_add_u32 {v(t0)}, {s(S_K)}, {v(i4)}
v_mul_u32_u24 {v(t0)}, 0xc00, {v(t0)}
v_lshlrev_b32 {v(t1)}, 1, {v(i4)}
v_xor_b32 {v(t1)}, {v(t1)}, {v(p7)}
v_lshl_add_u32 {v(t0)}, {v(t1)}, 4, {v(t0)}
v_and_b32 {v(t1)}, 1, {v(i3)}
v_xor_b32 {v(t1)}, {s(S_T1)}, {v(t1)}
v_lshlrev_b32 {v(t1)}, 10, {v(t1)}
s_lshl_b32 {s(S_T2)}, {s(S_HG)}, 7
s_add_u32 {s(S_K)}, {s(S_T2)}, 1024
v_add3_u32 {v(VW1)}, {v(t0)}, {v(t1)}, {s(S_K)}
v_add_u32 {v(VW1+1)}, {12288 - 1024}, {v(VW1)}
v_add_u32 {v(VW1+2)}, {2*(12288 - 1024)}, {v(VW1)}
v_add_u32 {v(VW1+3)}, {3*(12288 - 1024)}, {v(VW1)}
s_lshl_b32 {s(S_MW)}, {s(S_T1)}, 13
s_lshl_b32 {s(S_K)}, {s(S_T0)}, 12
s_add_u32 {s(S_MW)}, {s(S_MW)}, {s(S_K)}
s_lshl_b32 {s(S_MX)}, {s(S_W4)}, 11
s_add_u32 {s(S_MX)}, {s(S_MX)}, {L_X}""")
raw(1)
P("s_waitcnt lgkmcnt(0)")
raw(2)
P.add(entry_stamp())
P.add(srd(S_X, 4, 2097152))
P(f"""s_cmp_eq_u32 {s(S_T1)}, 0
s_cselect_b32 {s(S_W)}, s6, s12
s_cselect_b32 {s(S_W+1)}, s7, s13
s_mov_b32 {s(S_W+2)}, 1572864
s_mov_b32 {s(S_W+3)}, 0x20000""")
if OPT["fine"] != 3: H.stamp()
def dma(voff, rsrc, soff, imm, tag, flags=""):
    return Ins(f"buffer_load_dwordx4 {v(voff)}, {s(rsrc,4)}, {soff} offen{' offset:%d' % imm if imm else ''}{flags} lds", tag)
def x_dma(j):
    return [f"s_add_u32 {s(S_K)}, {s(S_ROT)}, {j}", f"s_and_b32 {s(S_K)}, {s(S_K)}, 7", f"s_lshl_b32 {s(S_K)}, {s(S_K)}, 7",
            f"s_lshl_b32 {s(S_T2)}, {s(S_RB)}, 16", f"s_add_u32 m0, {s(S_MX)}, {j*8192}", f"s_add_u32 {s(S_K)}, {s(S_K)}, {s(S_T2)}",
            dma(VX, S_X, s(S_K), 0, f"x{j}"), dma(VX+1, S_X, s(S_K), 1024, f"x{j}")]
def w_dma(S):
    if S < 16:
        o = [f"s_lshl_b32 {s(S_T3)}, {s(S_ROT)}, 1", f"s_add_u32 {s(S_T3)}, {s(S_T3)}, {S}", f"s_and_b32 {s(S_T3)}, {s(S_T3)}, 15"]
    else:
        o = [f"s_add_u32 {s(S_T3)}, {s(S_ROT)}, {S-16}", f"s_and_b32 {s(S_T3)}, {s(S_T3)}, 7"]
    o += [f"s_add_u32 m0, {s(S_MW)}, {(S % NSLOT)*SLOT}", f"s_mul_i32 {s(S_T3)}, {s(S_T3)}, {(32 if S < 16 else 64)*3072}"]
    return o + [dma((VW1 if S < 16 else VW2) + t, S_W, s(S_T3), t*1024, f"w{S}") for t in range(4)]
P.add(x_dma(0)); raw(3)
P.add(w_dma(0)); raw(4)
P.add(w_dma(1)); raw(5)
P(f"""s_lshl_b32 {s(S_K)}, {s(S_ROT)}, 3
v_add_u32 {v(t2)}, {s(S_K)}, {v(V_LANE)}
v_and_b32 {v(t2)}, 63, {v(t2)}
v_lshlrev_b32 {v(t2)}, 4, {v(t2)}""")
P.add(srd(S_G, 16, 1024)); P(f"s_mov_b32 m0, {L_G}"); P.add(dma(t2, S_G, "0", 0, "w1"))
P.add(late_ids)
h_misc = lines(f"""
s_lshr_b32 {s(S_T0)}, {s(S_W4)}, 1
s_and_b32 {s(S_T1)}, {s(S_W4)}, 1
s_lshl_b32 {s(S_T0)}, {s(S_T0)}, 5
v_add_u32 {v(t0)}, {s(S_T0)}, {v(i3)}
v_mul_u32_u24 {v(t0)}, 0xc00, {v(t0)}
v_and_b32 {v(t1)}, 1, {v(i4)}
s_lshl_b32 {s(S_T1)}, {s(S_T1)}, 1
v_add_u32 {v(t1)}, {s(S_T1)}, {v(t1)}
v_lshlrev_b32 {v(t1)}, 1, {v(t1)}
v_xor_b32 {v(t1)}, {v(t1)}, {v(p7)}
v_lshl_add_u32 {v(t0)}, {v(t1)}, 4, {v(t0)}
s_lshl_b32 {s(S_T0)}, {s(S_HG)}, 7
v_add_u32 {v(VW2)}, {s(S_T0)}, {v(t0)}
v_add_u32 {v(VW2+1)}, {24576 - 1024}, {v(VW2)}
v_add_u32 {v(VW2+2)}, {2*(24576 - 1024)}, {v(VW2)}
v_add_u32 {v(VW2+3)}, {3*(24576 - 1024)}, {v(VW2)}
v_and_b32 {v(t0)}, 31, {v(V_LANE)}
v_lshrrev_b32 {v(t1)}, 5, {v(V_LANE)}
s_lshl_b32 {s(S_T0)}, {s(S_W4)}, 1
v_add_u32 {v(t1)}, {s(S_T0)}, {v(t1)}
v_lshlrev_b32 {v(V_AG)}, 4, {v(t1)}
v_add_u32 {v(V_AG)}, {L_G}, {v(V_AG)}
v_bfe_u32 {v(t2)}, {v(t0)}, 1, 3
v_xor_b32 {v(t1)}, {v(t1)}, {v(t2)}
v_lshlrev_b32 {v(t1)}, 4, {v(t1)}
v_lshl_add_u32 {v(t1)}, {v(t0)}, 7, {v(t1)}
v_add_u32 {v(V_AXW)}, {L_X}, {v(t1)}
v_lshlrev_b32 {v(t0)}, 4, {v(t0)}
s_lshl_b32 {s(S_T0)}, {s(S_W4)}, 2
s_add_u32 {s(S_T0)}, {s(S_T0)}, {L_GP}
v_add_u32 {v(V_GPW)}, {s(S_T0)}, {v(t0)}
v_mov_b32 {v(GACC)}, 0
v_mov_b32 {v(GACC+1)}, 0
""") + srd(S_WS, 22, WS_SIZE) + srd(S_DBG, 20, 256)
P.add(h_misc)
if OPT["fine"] == 3:
    raw(6); P("s_waitcnt vmcnt(9)"); raw(7); P("s_waitcnt vmcnt(5)"); raw(8); P("s_waitcnt lgkmcnt(0)")
    for i in range(9):
        P(f"v_writelane_b32 {v(V_STAMP)}, s{68+2*i}, {i+1}")
    H.ns = 9
def gate_chunk(j):
    o = [f"ds_read_b128 {v(GF,4)}, {v(V_AG)} offset:{j*128}",
         f"ds_read_b128 {v(XW,4)}, {v(V_AXW)} offset:{j*8192}", f"ds_read_b128 {v(XW+4,4)}, {v(V_AXW)} offset:{j*8192+4096}"]
    for i in range(4):
        for tt in range(2):
            o.append(f"v_dot2_f32_bf16 {v(GACC+tt)}, {v(XW+4*tt+i)}, {v(GF+i)}, {v(GACC+tt)}")
    return o
VWO, VKF, V1A, V1D = 160, 161, 162, 164
txt_of = lambda x: x.text if isinstance(x, Ins) else x
special_txt = []
def gather(tiles, special):
    o = []
    if 0 in tiles:
        o += [f"s_lshl_b32 {s(S_T0)}, {s(S_HEAD)}, 15", f"s_lshl_b32 {s(S_T1)}, {s(S_RB)}, 10", f"s_add_u32 {s(S_T0)}, {s(S_T0)}, {s(S_T1)}",
              f"s_lshl_b32 {s(S_T1)}, {s(S_W4)}, 10", f"s_add_u32 m0, {s(S_T1)}, {L_HB}", f"s_add_u32 {s(S_T0)}, {s(S_T0)}, {WS_HB - 1024}"]
        if special:
            o += [f"s_cmp_eq_u32 {s(S_RB)}, 0", f"s_cselect_b32 {s(S_T0)}, {WS_SIZE}, {s(S_T0)}"]
        o += [dma(V_L16, S_WS, s(S_T0), 0, "kva", " sc1")]
        o += [f"s_lshl_b32 {s(S_K)}, {s(S_HEAD)}, 17", f"s_lshl_b32 {s(S_T1)}, {s(S_RB)}, 12",
              f"s_add_u32 {s(S_T2)}, {s(S_K)}, {s(S_T1)}", f"s_sub_u32 {s(S_T2)}, {s(S_T2)}, {8*2048}"]
    for u in tiles:
        tag = "kva" if u < 4 or not OPT["standin"] else "kvb"
        o += [f"s_add_u32 {s(S_T0)}, {s(S_T2)}, {u*2048}", f"s_add_u32 m0, {s(S_MW)}, {u*KVS}"]
        if special:
            o += [f"s_cmp_ge_u32 {s(S_RB)}, {(8-u+1)//2}", f"s_cbranch_scc1 L_gk{u}",
                  dma(VKF, S_WS, s(S_K), 0, None, " sc1"), f"s_mov_b32 {s(S_T0)}, {WS_SIZE}", f"s_branch L_gk{u}e", f"L_gk{u}:",
                  dma(V_L16, S_WS, s(S_T0), 0, None, " sc1"), f"L_gk{u}e:"]
        else:
            o += [dma(V_L16, S_WS, s(S_T0), 0, tag, " sc1")]
        o += [dma(V_L16, S_WS, s(S_T0), 1024, tag, " sc1")]
    return o
def emit_gather(n, tiles):
    P(f"s_cmp_lt_u32 {s(S_RB)}, 4\ns_cbranch_scc1 L_gspecial{n}")
    P.add(gather(tiles, False)); P(f"L_gdone{n}:")
    special_txt.append(f"L_gspecial{n}:\n" + "\n".join(("" if txt_of(x).endswith(":") else "    ") + txt_of(x) for x in gather(tiles, True))
                       + f"\n    s_branch L_gdone{n}\n")
issued_w, issued_x = 2, 1
for S in range(25):
    if S < 24:
        P.add(WaitTag(f"w{S}", f"x{S >> 1}" if S < 16 else "none"))
    P.add(WaitLds()); P("s_barrier")
    if OPT["fine"] in (1, 2, 3) or S in (0, 16, 24): H.stamp()
    top = {0: 3}.get(S, S + 4)
    while issued_w <= min(top, 23):
        if issued_w < 16 and issued_w % 2 == 0 and issued_x <= issued_w // 2:
            P.add(x_dma(issued_x)); issued_x += 1
        P.add(w_dma(issued_w)); issued_w += 1
    if OPT["tlb"] and S in (3, 4, 5, 6):
        for i, (ptr, off) in enumerate({3: ((22, 0), (22, 1)), 4: ((22, 2), (22, 4)), 5: ((22, 3), (20, 0)), 6: ((18, 0),)}[S]):
            P.add(Raw(f"    s_mov_b32 {s(S_T1)}, {off << 21}\n    s_load_dword s{70+i}, {s(ptr,2)}, {s(S_T1)}"))
    if OPT["wqpf"] and S in (4, 5, 6, 7):
        ptr, half = (6, 12)[S & 1], (S - 4) >> 1
        t = (f"    s_lshl2_add_u32 {s(S_T1)}, s2, {s(S_W4)}\n    s_lshr_b32 {s(S_T0)}, {s(S_T1)}, 1\n    s_mul_i32 {s(S_T0)}, {s(S_T0)}, 3072\n"
             f"    s_and_b32 {s(S_T1)}, {s(S_T1)}, 1\n    s_lshl_b32 {s(S_T1)}, {s(S_T1)}, 9\n    s_add_u32 {s(S_T1)}, {s(S_T1)}, {s(S_T0)}\n")
        t += "".join(f"    s_load_dword s{73+i}, {s(ptr,2)}, {s(S_T1)} offset:{half*256+i*64}\n" for i in range(4))
        P.add(Raw(t))
    if OPT["wopf"] == 1 and S in (8, 9, 10, 11):
        ptr, half = (14, 8)[(S - 8) >> 1], S & 1
        t = f"    s_lshl2_add_u32 {s(S_T1)}, s2, {s(S_W4)}\n    s_lshl_b32 {s(S_T1)}, {s(S_T1)}, 9\n"
        t += "".join(f"    s_load_dword s{73+i}, {s(ptr,2)}, {s(S_T1)} offset:{half*256+i*64}\n" for i in range(4))
        P.add(Raw(t))
    if OPT["wopf"] == 2 and OPT["ws0"] <= S < OPT["ws0"] + OPT["wsn"]:
        per = -(-128 // OPT["wsn"]); k0 = (S - OPT["ws0"]) * per
        t = f"    s_lshr_b32 {s(S_T1)}, s2, 3\n    s_lshl2_add_u32 {s(S_T1)}, {s(S_T1)}, {s(S_W4)}\n    s_lshl_b32 {s(S_T1)}, {s(S_T1)}, 12\n"
        t += "".join(f"    s_load_dword s{73+k%8}, {s((8, 14)[k >> 6],2)}, {s(S_T1)} offset:{(k & 63)*64}\n" for k in range(k0, min(k0 + per, 128)))
        P.add(Raw(t))
    if S == 8: P(ep_load)
    GS = 16 if OPT["wopf"] == 2 else 14
    if S == GS: P("s_waitcnt lgkmcnt(0)")
    if S == 18:
        H.poll(f"v_cmp_ne_u64 vcc, 0, {v(EP,2)}", ep_load)
        P(f"v_readfirstlane_b32 {s(S_EP)}, {v(EP)}\nv_readfirstlane_b32 {s(S_EP+1)}, {v(EP+1)}")
    if GS == 14 and 14 <= S < 18:
        P.add(gate_chunk(2*(S-14))); P.add(gate_chunk(2*(S-14)+1))
    if GS == 16 and S in (16, 17):
        for j in range(4): P.add(gate_chunk(4*(S-16)+j))
    if S == 17:
        for tt in range(2):
            P(f"v_mov_b32 {v(XW+tt)}, {v(GACC+tt)}")
        for tt in range(2):
            P(f"v_permlane32_swap_b32 {v(GACC+tt)}, {v(XW+tt)}")
        for tt in range(2):
            P(f"v_add_f32 {v(GACC+tt)}, {v(GACC+tt)}, {v(XW+tt)}\nds_write_b32 {v(V_GPW)}, {v(GACC+tt)} offset:{512*tt}")
    if S == 19:
        P.add(srd(S_WOA, 8, 524288) + srd(S_WOB, 14, 524288) + srd(S_OUT, 18, 2097152))
    if S == 20:
        P(f"""v_lshrrev_b32 v32, 3, {v(V_LANE)}
v_bfe_u32 v33, {v(V_LANE)}, 4, 1
v_lshlrev_b32 v33, 2, v33
v_and_b32 v34, 7, {v(V_LANE)}
v_xor_b32 v33, v33, v34
v_lshlrev_b32 v33, 4, v33
v_lshl_add_u32 {v(VWO)}, v32, 10, v33
v_and_b32 {v(VKF)}, 32, {v(V_LANE)}
v_lshlrev_b32 {v(VKF)}, 4, {v(VKF)}
v_min_u32 v32, 9, {v(V_LANE)}
v_mul_u32_u24 {v(V1A)}, {KVS}, v32
s_mul_i32 {s(S_MW)}, {s(S_W4)}, {KVH}
s_add_u32 {s(S_MW)}, {s(S_MW)}, {L_KV}
s_add_u32 {s(S_T0)}, {s(S_MW)}, 2048
v_add_u32 {v(V1A)}, {s(S_T0)}, {v(V1A)}
s_lshl_b32 {s(S_T0)}, {s(S_RB)}, 1
v_add_u32 v32, {s(S_T0)}, v32
v_cmp_le_u32 vcc, 8, v32
v_mov_b32 v33, {hex(ONES)}
v_cndmask_b32 {v(V1D)}, 0, v33, vcc
v_mov_b32 {v(V1D+1)}, {v(V1D)}
v_mov_b32 {v(V1D+2)}, {v(V1D)}
v_mov_b32 {v(V1D+3)}, {v(V1D)}
s_lshl_b32 {s(S_K)}, {s(S_HEAD)}, 5
s_add_u32 {s(S_K)}, {s(S_K)}, {s(S_RB)}
s_lshl_b32 {s(S_K)}, {s(S_K)}, 6
s_add_u32 {s(S_K)}, {s(S_K)}, {WS_FKV}""")
    if S == OPT["gat"]:
        H.spoll(4, 22, S_K, ignore_from=S_RB)
        H.stamp()
        emit_gather(0, (1, 0, 2, 3, 4, 5) if S < 23 else (1, 0, 2, 3, 4, 5, 6, 7))
    if S == 23 and OPT["gat"] < 23:
        emit_gather(1, (6, 7))
if OPT["p1only"]:
    H.finish()
P(f"ds_write_b128 {v(V1A)}, {v(V1D,4)}")
S_R3, S_WB = 24, 25
def wo_dma(rsrc, tag):
    o = []
    for t in range(16):
        g = [f"s_add_u32 m0, {s(S_MX)}, {t*1024}"]
        if t & 1: g += [f"s_add_u32 {s(S_T3)}, {s(S_T3)}, 8192"]
        else: g += [f"s_add_u32 {s(S_T3)}, {s(S_R3)}, {t >> 1}", f"s_and_b32 {s(S_T3)}, {s(S_T3)}, 7",
                    f"s_lshl_b32 {s(S_T3)}, {s(S_T3)}, 14", f"s_add_u32 {s(S_T3)}, {s(S_T3)}, {s(S_WB)}"]
        o.append(g + [dma(VWO, rsrc, s(S_T3), 0, f"{tag}{t >> 1}")])
    return o
B0, B1, VOG, EXW, EXR, VOUT = 4, 5, 6, 8, 11, 7
ACC3, OF, WBF, WOA = 32, 96, 176, 192
P(f"""s_lshl_b32 {s(S_R3)}, {s(S_RB3)}, 1
s_add_u32 {s(S_R3)}, {s(S_R3)}, {s(S_CB)}
s_and_b32 {s(S_R3)}, {s(S_R3)}, {7 if OPT["rot3"] else 0}
s_lshl_b32 {s(S_WB)}, {s(S_W4)}, 17
s_lshl_b32 {s(S_T1)}, {s(S_CB)}, 7
s_add_u32 {s(S_WB)}, {s(S_WB)}, {s(S_T1)}
s_lshl_b32 {s(S_MX)}, {s(S_W4)}, 14
s_add_u32 {s(S_MX)}, {s(S_MX)}, {L_WO}""")
woa, wob = wo_dma(S_WOA, "woa"), wo_dma(S_WOB, "wob")
fs = lambda: H.stamp() if OPT["fine"] == 4 else None
P.add(WaitTag("kva")); P.add(WaitLds()); P("s_barrier")
H.stamp()
P.add(woa[:OPT["wapre"]])
P.add(WaitTag("kvb")); P("s_barrier")
fs()
P.add(woa[OPT["wapre"]:])
P(f"""v_lshrrev_b32 v32, 5, {v(V_LANE)}
v_bfe_u32 v33, {v(V_LANE)}, 2, 2
v_lshl_add_u32 v32, v32, 2, v33
v_and_b32 v33, 2, v33
v_bfe_u32 v34, {v(V_LANE)}, 4, 1
v_xor_b32 v33, v33, v34
s_and_b32 {s(S_T1)}, {s(S_W4)}, 1
s_lshl_b32 {s(S_T1)}, {s(S_T1)}, 1
s_lshr_b32 {s(S_T0)}, {s(S_W4)}, 1
s_or_b32 {s(S_T1)}, {s(S_T1)}, {s(S_T0)}
v_xor_b32 v33, {s(S_T1)}, v33
v_lshlrev_b32 v33, 5, v33
v_lshl_add_u32 v32, v32, 7, v33
v_and_b32 v33, 3, {v(V_LANE)}
v_lshl_add_u32 v32, v33, 3, v32
v_add_u32 {v(B0)}, {s(S_MX)}, v32
v_xor_b32 {v(B1)}, 64, {v(B0)}""")
wo_read = lambda dst, hs: [f"ds_read_b64_tr_b16 {v(dst+4*ct+2*j,2)}, {v((B0,B1)[ct])} offset:{hs*2048+j*1024}" for ct in range(2) for j in range(2)]
for hs in range(8):
    P.add(WaitTag(f"woa{hs}")); P.add(wo_read(WOA + 8*hs, hs))
    if hs: P.add(f"s_waitcnt lgkmcnt(4)"); P.add(wob[2*hs-2:2*hs])
P.add(WaitLds()); P.add(wob[14:])
fs()
def o_gather(br, tt):
    o = [f"s_lshl_b32 {s(S_T0)}, {s(S_RB3)}, 17", f"s_lshl_b32 {s(S_T1)}, {s(S_W4)}, 13", f"s_add_u32 {s(S_T0)}, {s(S_T0)}, {s(S_T1)}",
         f"s_add_u32 {s(S_T0)}, {s(S_T0)}, {WS_O + br*65536 + tt*32768}", f"v_add_u32 {v(VOG)}, {s(S_T0)}, {v(V_L16)}",
         f"s_lshl_b32 {s(S_T1)}, {s(S_R3)}, 10"]
    for hs in range(8):
        if hs: o += [f"s_add_u32 {s(S_T1)}, {s(S_T1)}, 1024", f"s_and_b32 {s(S_T1)}, {s(S_T1)}, 0x1c00"]
        o += [ws_ld(v(OF+32*tt+4*hs,4), VOG, s(S_T1))]
    return o
retry_txt = []
def o_verify(tt):
    base = OF + 32*tt
    chk = [f"v_max3_u32 {v(TMP)}, {v(base)}, {v(base+1)}, {v(base+2)}"]
    chk += [f"v_max3_u32 {v(TMP)}, {v(TMP)}, {v(base+i)}, {v(base+i+1)}" for i in range(3, 31, 2)]
    chk += [f"v_max_u32 {v(TMP)}, {v(TMP)}, {v(base+31)}", f"v_cmp_ne_u32 vcc, -1, {v(TMP)}"]
    P.add(chk); P(f"s_cmp_eq_u64 vcc, -1\ns_cbranch_scc0 L_retry{tt}\nL_ok{tt}:")
    Q = Prog()
    Q(f"L_retry{tt}:\ns_mov_b32 {s(S_SPIN)}, 0x20000\nL_again{tt}:"); Q.add(o_gather(0, tt))
    Q(f"s_sub_u32 {s(S_SPIN)}, {s(S_SPIN)}, 1\ns_waitcnt vmcnt(0)\ns_cbranch_scc1 L_ok{tt}")
    Q.add(chk); Q(f"s_cmp_eq_u64 vcc, -1\ns_cbranch_scc0 L_again{tt}\ns_branch L_ok{tt}")
    retry_txt.append(finalize(Q))
P(f"""s_mul_i32 {s(S_T0)}, {s(S_W4)}, 6144
v_add_u32 {v(EXR)}, {s(S_T0)}, {v(V_L16)}""")
for i in range(1, 4):
    P(f"s_xor_b32 {s(S_T0)}, {s(S_W4)}, {i}\ns_mul_i32 {s(S_T0)}, {s(S_T0)}, 6144\nv_add_u32 {v(EXW+i-1)}, {s(S_T0)}, {v(V_L16)}")
P(f"""v_and_b32 {v(VOUT)}, 31, {v(V_LANE)}
v_lshlrev_b32 {v(VOUT)}, 10, {v(VOUT)}
v_lshrrev_b32 v0, 5, {v(V_LANE)}
v_lshl_add_u32 {v(VOUT)}, v0, 4, {v(VOUT)}
s_lshl_b32 {s(S_T3)}, {s(S_RB3)}, 16
s_lshr_b32 {s(S_T1)}, {s(S_W4)}, 1
s_lshl_b32 {s(S_T1)}, {s(S_T1)}, 5
s_add_u32 {s(S_T3)}, {s(S_T3)}, {s(S_T1)}
s_lshl_b32 {s(S_T1)}, {s(S_CB)}, 7
s_add_u32 {s(S_T3)}, {s(S_T3)}, {s(S_T1)}
s_and_b32 {s(S_T1)}, {s(S_W4)}, 1
s_lshl_b32 {s(S_T1)}, {s(S_T1)}, 6
s_add_u32 {s(S_T3)}, {s(S_T3)}, {s(S_T1)}
s_add_u32 {s(S_T2)}, {s(S_T3)}, 32768
s_lshl3_add_u32 {s(S_K)}, {s(S_RB3)}, {s(S_CB)}
s_lshl2_add_u32 {s(S_K)}, {s(S_K)}, {s(S_W4)}
s_lshl_b32 {s(S_K)}, {s(S_K)}, 6
s_add_u32 {s(S_K)}, {s(S_K)}, {WS_FOB}""")
H.spoll(8, 22, S_K)
H.stamp()
P.add(o_gather(1, 0)); P.add(o_gather(1, 1))
P.add(WaitTag("wob7")); P.add(wo_read(WBF, 0))
for tt in range(2):
    for hs in range(8):
        b = hs & 1
        rd = wo_read(WBF + 8*(1-b), (hs + 1) & 7) if (tt, hs) != (1, 7) else []
        for ct in range(2):
            acc = v(ACC3+32*tt+16*ct, 16)
            P(mfma(acc, v(WBF+8*b+4*ct,4), v(OF+32*tt+4*hs,4), "0" if hs == 0 else acc))
            P.add(rd[2*ct:2*ct+2])
H.stamp()
P("s_barrier")
H.stamp()
P.add(o_gather(0, 1)); P.add(o_gather(0, 0))
def red_writes(tt):
    keep, ex = ACC3 + 32*tt, tt * 24576
    send = {1: keep + 16, 2: keep + 8, 3: keep + 24}
    return [f"ds_write_b128 {v(EXW+i-1)}, {v(send[i]+4*q,4)} offset:{ex+(i-1)*2048+q*1024}" for i in (2, 1, 3) for q in range(2)]
def red_reads(tt, tmp):
    return [f"ds_read_b128 {v(tmp+8*i+4*q,4)}, {v(EXR)} offset:{tt*24576+i*2048+q*1024}" for q in range(2) for i in range(3)]
def red_finish(tt, tmp):
    keep, o = ACC3 + 32*tt, []
    for q in range(2):
        for i in range(3):
            o += [f"v_pk_add_f32 {v(keep+4*q+2*k,2)}, {v(keep+4*q+2*k,2)}, {v(tmp+8*i+4*q+2*k,2)}" for k in range(2)]
        o += [f"v_cvt_pk_bf16_f32 {v(tmp+24+2*q+k)}, {v(keep+4*q+2*k)}, {v(keep+4*q+2*k+1)}" for k in range(2)]
    o += [f"v_permlane32_swap_b32 {v(tmp+24)}, {v(tmp+26)}", f"v_permlane32_swap_b32 {v(tmp+25)}, {v(tmp+27)}",
          f"buffer_store_dwordx4 {v(tmp+24,4)}, {v(VOUT)}, {s(S_OUT,4)}, {s((S_T3, S_T2)[tt])} offen{('', ' sc1', ' nt', ' sc0 sc1')[OPT['outsc']]}"]
    return o
w1 = red_writes(1)
for tt in (1, 0):
    o_verify(tt)
    H.stamp()
    for hs in range(8):
        for ct in range(2):
            acc = v(ACC3+32*tt+16*ct, 16)
            P(mfma(acc, v(WOA+8*hs+4*ct,4), v(OF+32*tt+4*hs,4), acc))
        if tt == 0 and hs >= 1: P.add(w1[hs-1:hs])
H.stamp()
P.add(red_writes(0)); P.add(WaitLds()); P("s_barrier")
P.add(red_reads(1, OF)); P.add(red_reads(0, OF + 32))
P.add(red_finish(1, OF)); P.add(red_finish(0, OF + 32))
H.stamp()
H.finish()

C = Role("C"); P = C.P
T1, T3, T2 = 32, 64, 96
XB, WB = 128, 152
V_AX, V_T1L, V_T1H, V_T3L, V_T3H, V_T2L, V_T2H = 176, 180, 181, 182, 183, 184, 185
V_LO, V_HI, V_GPR, V_QW = 186, 187, 188, 189
CM, KB, VPK, VB, QB, KBH, VBH = 192, 216, 224, 32, 240, 248, 252
r5, hh, rr, cc, nh, u0, u1, cm = 128, 129, 130, 131, 132, 133, 134, 135
P("L_crole:")
P.add(late_ids)
if OPT["prio"]: P("s_setprio 1")
P(f"""
v_and_b32 {v(r5)}, 31, {v(V_LANE)}
v_lshrrev_b32 {v(hh)}, 5, {v(V_LANE)}
v_bfe_u32 {v(u0)}, {v(r5)}, 1, 3
v_xor_b32 {v(u0)}, {v(u0)}, {v(hh)}
v_lshlrev_b32 {v(u0)}, 4, {v(u0)}
v_lshl_add_u32 {v(u0)}, {v(r5)}, 7, {v(u0)}
v_add_u32 {v(V_AX)}, {L_X}, {v(u0)}
v_xor_b32 {v(V_AX+1)}, 32, {v(V_AX)}
v_xor_b32 {v(V_AX+2)}, 64, {v(V_AX)}
v_xor_b32 {v(V_AX+3)}, 0x60, {v(V_AX)}
v_bfe_u32 {v(rr)}, {v(V_LANE)}, 2, 2
v_and_b32 {v(cc)}, 3, {v(V_LANE)}
v_bfe_u32 {v(nh)}, {v(V_LANE)}, 4, 1
v_lshl_add_u32 {v(u0)}, {v(hh)}, 3, {v(rr)}
v_xor_b32 {v(u1)}, {s(S_W4)}, {v(rr)}
v_lshlrev_b32 {v(u1)}, 5, {v(u1)}
v_lshl_add_u32 {v(u1)}, {v(cc)}, 3, {v(u1)}
v_lshl_add_u32 {v(u1)}, {v(u0)}, 8, {v(u1)}
v_mul_u32_u24 {v(V_T1L)}, 0x2080, {v(nh)}
v_add_u32 {v(V_T1L)}, {v(V_T1L)}, {v(u1)}
v_add_u32 {v(V_T1H)}, 0x10000, {v(V_T1L)}
v_xor_b32 {v(V_T3L)}, 0x80, {v(V_T1L)}
v_xor_b32 {v(V_T3H)}, 0x80, {v(V_T1H)}
v_lshrrev_b32 {v(u1)}, 1, {v(rr)}
v_lshl_add_u32 {v(u1)}, {v(nh)}, 1, {v(u1)}
v_xor_b32 {v(u1)}, {s(S_W4)}, {v(u1)}
v_lshlrev_b32 {v(u1)}, 5, {v(u1)}
v_lshl_add_u32 {v(u1)}, {v(cc)}, 3, {v(u1)}
v_lshl_add_u32 {v(u1)}, {v(u0)}, 7, {v(u1)}
v_lshl_add_u32 {v(V_T2L)}, {v(nh)}, 13, {v(u1)}
v_add_u32 {v(V_T2H)}, 0x10000, {v(V_T2L)}
v_and_b32 {v(u0)}, 15, {v(V_LANE)}
v_lshlrev_b32 {v(u0)}, 4, {v(u0)}
v_lshl_add_u32 {v(u0)}, {v(hh)}, 8, {v(u0)}
v_lshl_add_u32 {v(V_LO)}, {v(nh)}, 31, {v(u0)}
v_xor_b32 {v(V_HI)}, {OOB}, {v(V_LO)}
v_lshlrev_b32 {v(V_GPR)}, 4, {v(r5)}
v_add_u32 {v(V_GPR)}, {L_GP}, {v(V_GPR)}
s_lshl_b32 {s(S_T2)}, {s(S_W4)}, 10
s_add_u32 {s(S_T2)}, {s(S_T2)}, {L_Q}
v_add_u32 {v(V_QW)}, {s(S_T2)}, {v(V_L16)}
v_lshlrev_b32 {v(u0)}, 2, {v(hh)}
v_sub_u32 {v(cm)}, {v(r5)}, {v(u0)}
s_waitcnt lgkmcnt(0)""")
P.add(entry_stamp())
P(f"""s_memrealtime {s(S_TM,2)}
s_mov_b32 {s(S_C)}, {fhex(QK_SCALE)}
s_mov_b32 {s(S_C+1)}, {fhex(QK_SCALE)}
""")
def l2_prefetch():
    a, b = 140, 141
    o = lines(f"""s_lshr_b32 {s(S_T0)}, s2, 3
s_and_b32 {s(S_T1)}, {s(S_HG)}, 4
s_lshl_b32 {s(S_T1)}, {s(S_T1)}, 7
v_and_b32 {v(a)}, 3, {v(V_LANE)}
v_lshlrev_b32 {v(a)}, 7, {v(a)}
s_cmp_eq_u32 {s(S_W4)}, 2
s_cbranch_scc1 L_pfx
s_cmp_eq_u32 {s(S_W4)}, 3
s_cbranch_scc1 L_pfq
s_cmp_eq_u32 {s(S_W4)}, 0
s_cselect_b32 {s(S_W)}, s6, s12
s_cselect_b32 {s(S_W+1)}, s7, s13
s_mov_b32 {s(S_W+2)}, 1572864
s_mov_b32 {s(S_W+3)}, 0x20000
v_bfe_u32 {v(b)}, {v(V_LANE)}, 2, 1
v_lshl_add_u32 {v(a)}, {v(b)}, 10, {v(a)}
v_lshrrev_b32 {v(b)}, 3, {v(V_LANE)}
v_mul_u32_u24 {v(b)}, 0xc00, {v(b)}
v_add_u32 {v(a)}, {v(a)}, {v(b)}
s_mul_i32 {s(S_T0)}, {s(S_T0)}, {8*3072}
s_add_u32 {s(S_T0)}, {s(S_T0)}, {s(S_T1)}
s_add_u32 {s(S_T0)}, {s(S_T0)}, 1024
buffer_load_dword v190, {v(a)}, {s(S_W,4)}, {s(S_T0)} offen
s_add_u32 {s(S_T0)}, {s(S_T0)}, {256*3072}
buffer_load_dword v191, {v(a)}, {s(S_W,4)}, {s(S_T0)} offen
s_branch L_pfe
L_pfx:
s_mov_b32 {s(S_W)}, s4
s_mov_b32 {s(S_W+1)}, s5
s_mov_b32 {s(S_W+2)}, 2097152
s_mov_b32 {s(S_W+3)}, 0x20000
v_lshrrev_b32 {v(b)}, 2, {v(V_LANE)}
v_lshl_add_u32 {v(a)}, {v(b)}, 10, {v(a)}
s_lshl_b32 {s(S_T0)}, {s(S_T0)}, 14
s_and_b32 {s(S_T1)}, {s(S_RB)}, 24
s_lshl_b32 {s(S_T1)}, {s(S_T1)}, 16
s_add_u32 {s(S_T0)}, {s(S_T0)}, {s(S_T1)}
buffer_load_dword v190, {v(a)}, {s(S_W,4)}, {s(S_T0)} offen
buffer_load_dword v191, {v(a)}, {s(S_W,4)}, {s(S_T0)} offen offset:512
s_branch L_pfe
L_pfq:
s_mov_b32 {s(S_W)}, s6
s_mov_b32 {s(S_W+1)}, s7
s_mov_b32 {s(S_W+2)}, 1572864
s_mov_b32 {s(S_W+3)}, 0x20000
v_lshrrev_b32 {v(b)}, 2, {v(V_LANE)}
v_mul_u32_u24 {v(b)}, 0xc00, {v(b)}
v_add_u32 {v(a)}, {v(a)}, {v(b)}
s_mul_i32 {s(S_T0)}, {s(S_T0)}, {16*3072}
s_add_u32 {s(S_T0)}, {s(S_T0)}, {s(S_T1)}
buffer_load_dword v190, {v(a)}, {s(S_W,4)}, {s(S_T0)} offen
s_mov_b32 {s(S_W)}, s12
s_mov_b32 {s(S_W+1)}, s13
buffer_load_dword v191, {v(a)}, {s(S_W,4)}, {s(S_T0)} offen
L_pfe:""")
    P.add(Raw("\n".join(("" if l.endswith(":") else "    ") + l for l in o)))
    P("s_nop 0")
if OPT["pf"] == 1: l2_prefetch()
P.add(srd(S_WS, 22, WS_SIZE) + srd(S_DBG, 20, 256))
P(f"""s_cmp_eq_u32 s2, 0
s_cselect_b32 {s(S_T2)}, 0, {OOB}
v_lshlrev_b32 v5, 8, v0
v_or_b32 v5, {s(S_T2)}, v5
s_waitcnt lgkmcnt(0)
v_mov_b32 {v(EP)}, {s(S_TM)}
v_mov_b32 {v(EP+1)}, {s(S_TM+1)}
buffer_store_dwordx2 {v(EP,2)}, v5, {s(S_DBG,4)}, 0 offen sc1""")
for q in range(16):
    P(f"""v_subrev_u32 {v(CM+q)}, {8*(q>>2)+(q&3)}, {v(cm)}
v_and_b32 {v(CM+q)}, 17, {v(CM+q)}
v_cvt_f32_u32 {v(CM+q)}, {v(CM+q)}
v_mul_f32 {v(CM+q)}, {hex(NEG_BIG)}, {v(CM+q)}""")
P.add(attn_setup(0, 136))
C.stamp()

def frag_reads(n):
    b, m = n % 3, n & 31
    j, ux = m >> 2, m & 3
    base = (stage_of(n) % NSLOT) * SLOT
    hi = base >= 65536; off = base - (65536 if hi else 0)
    x = [f"ds_read_b128 {v(XB+8*b+4*tt,4)}, {v(V_AX+ux)} offset:{j*8192+tt*4096}" for tt in range(2)]
    if n < 32:
        w = [f"ds_read_b64_tr_b16 {v(WB+8*b+4*t+2*qd,2)}, {v(((V_T1L,V_T1H),(V_T3L,V_T3H))[t][hi])} offset:{off+(n&1)*4096+qd*1024}"
             for t in range(2) for qd in range(2)]
        return [w[0], x[0], w[1], w[2], x[1], w[3]]
    w = [f"ds_read_b64_tr_b16 {v(WB+8*b+2*qd,2)}, {v((V_T2L,V_T2H)[hi])} offset:{off+ux*2048+qd*512}" for qd in range(2)]
    return [w[0], x[0], w[1], x[1]]
def step_mfmas(n):
    b = n % 3
    x = lambda tt: v(XB+8*b+4*tt, 4)
    c = lambda r: "0" if n in (0, 32) else v(r, 16)
    if n < 32:
        return [mfma(v(T1,16), v(WB+8*b,4), x(0), c(T1)), mfma(v(T3,16), x(0), v(WB+8*b+4,4), c(T3)),
                mfma(v(T1+16,16), v(WB+8*b,4), x(1), c(T1+16)), mfma(v(T3+16,16), x(1), v(WB+8*b+4,4), c(T3+16))]
    return [mfma(v(T2,16), v(WB+8*b,4), x(0), c(T2)), mfma(v(T2+16,16), v(WB+8*b,4), x(1), c(T2+16))]
def kv_publish():
    o = [f"s_lshl_b32 {s(S_T0)}, {s(S_HEAD)}, 17", f"s_lshl_b32 {s(S_T1)}, {s(S_RB)}, 12", f"s_add_u32 {s(S_T0)}, {s(S_T0)}, {s(S_T1)}"]
    for tt in range(2):
        o += [f"v_pk_mul_f32 {v(T1+16*tt+2*i,2)}, {v(T1+16*tt+2*i,2)}, {s(S_C,2)}" for i in range(4)]
        o += [f"v_cvt_pk_bf16_f32 {v(KA+4*tt+i)}, {v(T1+16*tt+2*i)}, {v(T1+16*tt+2*i+1)}" for i in range(4)]
        o += [ws_st(v(KA+4*tt,4), V_L16, s(S_T0), tt*2048, "kv")]
    for tt in range(2):
        for m in range(2):
            o += [f"v_cvt_pk_bf16_f32 {v(VPK+8*tt+4*m+i)}, {v(T3+16*tt+8*m+2*i)}, {v(T3+16*tt+8*m+2*i+1)}" for i in range(4)]
            o += [ws_st(v(VPK+8*tt+4*m,4), V_LO, s(S_T0), tt*2048+1024+m*512, "kv")]
    o += [f"s_lshl_b32 {s(S_T0)}, {s(S_HEAD)}, 15", f"s_lshl_b32 {s(S_T1)}, {s(S_RB)}, 10",
          f"s_add_u32 {s(S_T0)}, {s(S_T0)}, {s(S_T1)}", f"s_add_u32 {s(S_T0)}, {s(S_T0)}, {WS_HB}",
          ws_st(v(VPK+12,4), V_HI, s(S_T0), 512, "kv")]
    for tt in (1, 0):
        o += [f"v_pk_mul_f32 {v(T1+16*tt+8+2*i,2)}, {v(T1+16*tt+8+2*i,2)}, {s(S_C,2)}" for i in range(4)]
        o += [f"v_cvt_pk_bf16_f32 {v(KB+4*tt+i)}, {v(T1+16*tt+8+2*i)}, {v(T1+16*tt+8+2*i+1)}" for i in range(4)]
        if tt == 1: o += [ws_st(v(KB+4,4), V_HI, s(S_T0), 0, "kv")]
    o += [f"v_mov_b32 {v(TMP)}, {hex(ONES)}"]
    o += [f"v_cndmask_b32 {v(VB+i)}, {v(VPK+i)}, {v(TMP)}, {s(S_LO16,2)}" for i in range(16)]
    o += [f"v_cndmask_b32 {v(VA+i)}, {v(TMP)}, {v(VPK+i)}, {s(S_LO16,2)}" for i in range(16)]
    return o

if OPT["p1only"]:
    P("s_barrier\n" * 25 + "s_endpgm")
P("s_barrier")
C.stamp()
P.add(frag_reads(0)); P.add(frag_reads(1))
queue = []
for n in range(64):
    mf = step_mfmas(n)
    sync = first_of_stage(n + 2) or n == 62
    rd = frag_reads(n + 2) if n < 62 else []
    if n == 20: queue += [ep_load]
    if n == 32:
        pub = kv_publish()
        isst = lambda x: (isinstance(x, Ins) and x.kind == "vst") or (isinstance(x, str) and x.startswith("s_"))
        late_st = [x for x in pub if isst(x)] if OPT["pubat"] > 32 else []
        queue += [x for x in pub if not (late_st and isst(x))]
    if n == OPT["pubat"] and n > 32: queue = late_st + queue
    if n == 46: queue += gate_finish([0, 1], V_GPR, T3)
    take = OPT["take"] if n >= 32 else 1
    side = queue[:take]; queue = queue[take:]
    P(mf[0])
    if sync:
        P.add(WaitLds()); P("s_barrier")
        if OPT["fine"] in (1, 2, 3): C.stamp()
    if n < 32:
        P.add(rd[0:2]); P(mf[1]); P.add(rd[2:4]); P(mf[2]); P.add(rd[4:6]); P(mf[3]); P.add(side)
    else:
        P.add(rd[0:2]); P.add(side[:take//2]); P(mf[1]); P.add(rd[2:4]); P.add(side[take//2:])
    if n == 31: C.stamp()
    if n == OPT["kvflag"]:
        C.poll(f"v_cmp_ne_u64 vcc, 0, {v(EP,2)}", ep_load)
        P.add(flag_store("kv", "kv"))
        C.stamp()
assert not queue
C.stamp()
P.add([f"v_cvt_pk_bf16_f32 {v(QB+4+i)}, {v(T2+16+8+2*i)}, {v(T2+16+8+2*i+1)}" for i in range(4)])
BS, BSP, BO, BP, BPL = 48, 64, 128, 160, 168
def b_scores(t):
    kprev = v(KB, 4) if t == 1 else v(KBH, 4)
    return [mfma(v(BS+32*(1-t),16), v(KB+4*t,4), v(QB+4*t,4), v(CM,16)),
            mfma(v(BSP+80*(1-t),16), kprev, v(QB+4*t,4), v(CM,16))]
def b_softmax(t):
    S, sp, m = BS + 32*(1-t), BSP + 80*(1-t), TMP
    o = [f"v_cndmask_b32 {v(S+q)}, {v(S+q)}, {v(sp+q)}, {s(S_LO16,2)}" for q in range(8, 16)]
    if t == 0:
        o += [f"v_mov_b32 {v(m)}, {hex(NEG_BIG)}"]
        o += [f"v_cndmask_b32 {v(S+q)}, {v(S+q)}, {v(m)}, {s(S_X,2)}" for q in range(8, 16)]
    o += max_tree(m, range(S, S+16)) + cross_max(m, m+1)
    o += [f"v_sub_f32 {v(S+q)}, {v(S+q)}, {v(m)}" for q in range(16)]
    o += [f"v_exp_f32 {v(S+q)}, {v(S+q)}" for q in range(16)]
    o += [f"v_cvt_pk_bf16_f32 {v(BP+i)}, {v(S+2*i)}, {v(S+2*i+1)}" for i in range(8)]
    o += [f"v_cndmask_b32 {v(BPL+i)}, 0, {v(BP+4+i)}, {s(S_LO16,2)}" for i in range(4)]
    o += [f"v_cndmask_b32 {v(BP+4+i)}, {v(BP+4+i)}, 0, {s(S_LO16,2)}" for i in range(4)]
    return o
def b_pv(t):
    vprev = v(VB+4, 4) if t == 1 else v(VBH, 4)
    acc = v((176, 128)[t], 16)
    return [mfma(acc, v(VB+8*t,4), v(BP,4), "0"), mfma(acc, v(VB+8*t+4,4), v(BP+4,4), acc), mfma(acc, vprev, v(BPL,4), acc)]
def b_pack(t):
    f = TMP + 2
    return o_pack((176, 128)[t], 8, 0, [f"v_sub_f32 {v(f+1)}, 1.0, {v(G0+t)}", f"v_mul_f32 {v(f)}, {v(f)}, {v(f+1)}"], (172, 168)[t], f) + o_store(1, t, (172, 168)[t], "ob")
P.add(b_scores(1))
P.add([f"v_cvt_pk_bf16_f32 {v(QB+i)}, {v(T2+8+2*i)}, {v(T2+8+2*i+1)}" for i in range(4)])
P.add([f"v_cvt_pk_bf16_f32 {v(QA+i)}, {v(T2+2*i)}, {v(T2+2*i+1)}" for i in range(4)])
sm1, sm0, pv1, pk1, pk0 = b_softmax(1), b_softmax(0), b_pv(1), b_pack(1), b_pack(0)
P.add(sm1); P.add(pv1)
P(f"""s_cmp_eq_u32 {s(S_RB)}, 0
s_cselect_b64 {s(S_X,2)}, {s(S_LO16,2)}, 0
s_lshl_b32 {s(S_T0)}, {s(S_W4)}, 10
s_add_u32 {s(S_T0)}, {s(S_T0)}, {L_HB}
v_and_b32 v190, 0x7fffffff, {v(V_LO)}
v_add_u32 v190, {s(S_T0)}, v190
s_mul_i32 {s(S_T0)}, {s(S_W4)}, {KVH}
s_add_u32 {s(S_T0)}, {s(S_T0)}, {L_KV + 8*KVS + 2048 - 512}
v_mov_b32 v191, {s(S_T0)}
v_cndmask_b32 v191, v190, v191, {s(S_LO16,2)}""")
SENT = 120
P.add([f"v_mov_b32 {v(SENT+i)}, -1" for i in range(4)])
P.add(pk1[:-5])
C.stamp()
P("s_barrier")
C.stamp()
P(f"ds_read_b128 {v(KBH,4)}, v190\nds_read_b128 {v(VBH,4)}, v191 offset:512")
P.add(pk1[-5:]); P.add(o_store(0, 0, SENT, "ob")); P.add(o_store(0, 1, SENT, "ob"))
P.add(b_scores(0))
P.add([f"v_cvt_pk_bf16_f32 {v(QA1+i)}, {v(T2+16+2*i)}, {v(T2+16+2*i+1)}" for i in range(4)])
P.add(sm0); P.add(b_pv(0)); P("s_barrier")
C.stamp()
cs = lambda: C.stamp() if OPT["fine"] == 4 else None
window_attention(C, pk0, {"e1": cs, OPT["f2hs"]: lambda: (cs(), P.add(flag_store("ob", "ob")), cs())})
P.add(interleave(*[o_pack(OACC+16*t, 0, 8, [f"v_mul_f32 {v(TMP+t)}, {v(TMP+t)}, {v(G0+t)}"], PF+4*t, TMP+t) for t in range(2)]))
P.add(o_store(0, 1, PF+4, "oa")); P.add(o_store(0, 0, PF, "oa"))
C.stamp()
C.finish()

full = Prog(); full.items = E.items + H.P.items
bodyH = finalize(full, verbose=True)
full = Prog(); full.items = [Ins("s_load_dwordx16 s[4:19], s[0:1], 0"), Ins("global_load_dword v13, v5, s[96:97]")] + C.P.items
bodyC = "\n".join(finalize(full, verbose=True).split("\n")[2:])
print("stamps H", H.ns, "C", C.ns)
hdr = open("cdna_kernels/%s.s.ref" % NAME).read().split("; Override launch")[0]
if OPT["stamps"]: hdr += f"; stamps {C.ns} {H.ns}\n"
txt = hdr + f"""; One launch: 256 workgroups (4 heads x 64 rows each), 8 waves, hand-offs through d_ws tagged with a per-launch epoch.
; @launch grid=(256,1,1) block=(512,1,1) lds={LDS_BYTES}
.amdgcn_target "amdgcn-amd-amdhsa--gfx950"
.text
.globl {NAME}_kernel
.p2align 12
.p2align 8
.type {NAME}_kernel,@function
{NAME}_kernel:
{bodyH}{bodyC}L_end:
    s_endpgm
{''.join(retry_txt)}{''.join(special_txt)}{exact_attention(0)}{exact_attention(1)}    .fill 3072, 4, 0xbf800000
.section .rodata,"a"
.p2align 6
.amdhsa_kernel {NAME}_kernel
  .amdhsa_next_free_vgpr 256
  .amdhsa_next_free_sgpr 102
  .amdhsa_accum_offset 256
  .amdhsa_group_segment_fixed_size 0
  .amdhsa_kernarg_size 80
  .amdhsa_user_sgpr_count 2
  .amdhsa_user_sgpr_kernarg_segment_ptr 1
  .amdhsa_system_sgpr_workgroup_id_x 1
.end_amdhsa_kernel
"""
open(sys.argv[1], "w").write(txt)
```

```python
import sys, math, struct
from asmdsl import Prog, Ins, WaitTag, WaitLds, Raw, finalize

NAME = "gated_mix__sliding_block__sliding_local_dilated__prompt"
OPT = dict(hdrop=0, wbpre2=4, wa0=16, swap=1, early=1, bprio=2, icpf=1, horder=10, f3at=0, h2=150, wapre=16, gat=23, ws0=4, wsn=12, wbpre=0, pubat=32, polle=3, rot3=1, f2at=5, wol2=0, wqpf=0, sgap=6, wopf=1, oa1at=5, sent=8, cprio=1, obtry=5, take=30, hprio=0, tlb=1, cpf=0, xmap=3, rotmode=4, p1only=0, ampclk=0, pf=0, stamps=0, standin=1, amp=-1, ampk=8, amprole=1, rotmask=7, kvflag=42, fine=0, outsc=0, prio=1, touch=0)
for a in sys.argv[2:]:
    k, v_ = a.split("="); assert k in OPT, k; OPT[k] = int(v_)

WS_KV, WS_HB, WS_O = 0, 4 << 20, 5 << 20
WS_FKV, WS_FOB, WS_FOA = 9 << 20, (9 << 20) + 65536, (9 << 20) + 131072
WS_STAMP, WS_SIZE = 10 << 20, 64 << 20
OOB = 0x80000000
NSLOT, SLOT = 5, 16384
L_X, L_G, L_GP, L_Q, L_HB, LDS_BYTES = 81920, 148480, 149504, 150528, 154624, 158720
KVH, KVS, L_KV, L_WO = 2064, 4 * 2064, 65536, 0
QK_SCALE = 0.25 * math.log2(math.e)
NEG_BIG, ONES = 0xf149f2ca, 0x3f803f80

def fhex(x): return "0x%08x" % struct.unpack("<I", struct.pack("<f", x))[0]
def v(a, n=1): return f"v{a}" if n == 1 else f"v[{a}:{a+n-1}]"
def s(a, n=1): return f"s{a}" if n == 1 else f"s[{a}:{a+n-1}]"
def lines(t): return [l.strip() for l in t.strip().split("\n") if l.strip()]
def mfma(d, a, b, c): return f"v_mfma_f32_32x32x16_bf16 {d}, {a}, {b}, {c}"
def srd(base, ptr, nbytes):
    return [f"s_mov_b32 {s(base)}, {s(ptr)}", f"s_mov_b32 {s(base+1)}, {s(ptr+1)}",
            f"s_mov_b32 {s(base+2)}, {nbytes}", f"s_mov_b32 {s(base+3)}, 0x20000"]
def interleave(*ls):
    o, ls = [], [list(l) for l in ls]
    while any(ls):
        for l in ls:
            if l: o.append(l.pop(0))
    return o

S_X, S_W, S_WS, S_WOA, S_WOB, S_OUT, S_DBG, S_G = 24, 28, 32, 36, 40, 44, 48, 36
S_W4, S_HG, S_RB, S_ROT, S_HEAD, S_RB3, S_CB = 52, 53, 54, 55, 56, 57, 58
S_K, S_T0, S_MW, S_MX, S_T1 = 59, 60, 61, 62, 63
S_MASK, S_T2, S_T3, S_LO16, S_TM, S_C, S_SPIN, S_EP = 64, 96, 97, 98, 100, 10, 3, 26
V_LANE, V_L16, V_STAMP, V_FOFF = 1, 2, 3, 4
EP, FLG = 6, 8
V_AK, V_AV0, V_AV1 = 10, 11, 12
G0 = 14
PM, QA = 16, 24
TMP = 28
SB, NEGM, MG, PB, PF, KF, OACC, VF = 32, 64, 96, 128, 144, 152, 160, 192
KA, QA1, VA = 208, 216, 224

class Role:
    def __init__(self, name):
        self.P, self.name, self.ns, self.nl = Prog(), name, 0, 0
    def stamp(self):
        P = self.P
        if OPT["amp"] == self.ns and OPT["amprole"] == (self.name == "H"):
            P.add(WaitLds())
            P(f"{'s_memtime' if OPT['ampclk'] else 's_memrealtime'} {s(S_TM,2)}\ns_waitcnt lgkmcnt(0)\nv_writelane_b32 {v(V_STAMP)}, {s(S_TM)}, 1")
        if OPT["stamps"]:
            P.add(WaitLds())
            P(f"s_memtime {s(S_TM,2)}\ns_waitcnt lgkmcnt(0)\nv_writelane_b32 {v(V_STAMP)}, {s(S_TM)}, {self.ns + 1}")
        self.ns += 1
    def poll(self, cmp_txt, reload_txt):
        P, n = self.P, f"{self.name}{self.nl}"; self.nl += 1
        P(f"s_mov_b32 {s(S_SPIN)}, 0x40000"); P(cmp_txt)
        P(f"s_cmp_eq_u64 vcc, -1\ns_cbranch_scc1 L_pok{n}")
        P.add(Raw(f"""L_pspin{n}:
    {reload_txt}
    s_sub_u32 {s(S_SPIN)}, {s(S_SPIN)}, 1
    s_cbranch_scc1 L_pok{n}
    s_waitcnt vmcnt(0)
    {cmp_txt}
    s_nop 2
    s_cmp_eq_u64 vcc, -1
    s_cbranch_scc0 L_pspin{n}
L_pok{n}:"""))
    def spoll_issue(self, n, off):
        self.P(f"s_load_dwordx{2*n} {s(4,2*n)}, s[22:23], {s(off)} glc")
    def spoll(self, n, off, ignore_from=None):
        P, lb = self.P, f"{self.name}{self.nl}"; self.nl += 1
        P.add(WaitLds())
        t = f"    s_mov_b32 {s(S_SPIN)}, 0x40000\nL_sp{lb}:\n"
        for i in range(n - 1):
            if ignore_from is not None:
                t += f"    s_cmp_lt_u32 {s(ignore_from)}, {n - i}\n    s_cselect_b64 {s(4+2*i,2)}, {s(S_EP,2)}, {s(4+2*i,2)}\n"
        for i in range(n):
            t += f"    s_xor_b64 {s(4+2*i,2)}, {s(4+2*i,2)}, {s(S_EP,2)}\n"
            if i: t += f"    s_or_b64 s[4:5], s[4:5], {s(4+2*i,2)}\n"
        t += (f"    s_cmp_eq_u64 s[4:5], 0\n    s_cbranch_scc1 L_spok{lb}\n"
              f"    s_load_dwordx{2*n} {s(4,2*n)}, s[22:23], {s(off)} glc\n"
              f"    s_sub_u32 {s(S_SPIN)}, {s(S_SPIN)}, 1\n    s_waitcnt lgkmcnt(0)\n    s_cbranch_scc0 L_sp{lb}\nL_spok{lb}:")
        P.add(Raw(t))
    def finish(self):
        P = self.P
        if OPT["stamps"]:
            P(f"s_memrealtime {s(S_TM,2)}\ns_waitcnt lgkmcnt(0) vmcnt(0)\nv_writelane_b32 {v(V_STAMP)}, {s(S_TM)}, 63")
            P(f"""s_lshl_b32 {s(S_T0)}, s2, 3
s_add_u32 {s(S_T0)}, {s(S_T0)}, {s(S_W4)}
s_add_u32 {s(S_T0)}, {s(S_T0)}, {4 if self.name == "H" else 0}
s_lshl_b32 {s(S_T0)}, {s(S_T0)}, 8
s_add_u32 {s(S_T0)}, {s(S_T0)}, {WS_STAMP}
v_lshlrev_b32 v0, 2, {v(V_LANE)}
buffer_store_dword {v(V_STAMP)}, v0, {s(S_WS,4)}, {s(S_T0)} offen""")
        if OPT["amp"] >= 0 and OPT["amprole"] == (self.name == "H"):
            P(f"""s_cmp_lg_u32 s2, 100
s_cbranch_scc1 L_end
v_readlane_b32 {s(S_T0)}, {v(V_STAMP)}, 0
v_readlane_b32 {s(S_T1)}, {v(V_STAMP)}, 1
s_memrealtime {s(S_TM,2)}
s_sub_u32 {s(S_T1)}, {s(S_T1)}, {s(S_T0)}
s_mul_i32 {s(S_T1)}, {s(S_T1)}, {OPT["ampk"]}
s_lshr_b32 {s(S_T1)}, {s(S_T1)}, {4 if OPT["ampclk"] else 0}
s_min_u32 {s(S_T1)}, {s(S_T1)}, 100000
s_waitcnt lgkmcnt(0)
s_mov_b32 {s(S_T0)}, {s(S_TM)}""")
            P.add(Raw(f"""L_amp{self.name}:
    s_memrealtime {s(S_TM,2)}
    s_waitcnt lgkmcnt(0)
    s_sub_u32 {s(S_K)}, {s(S_TM)}, {s(S_T0)}
    s_cmp_lt_u32 {s(S_K)}, {s(S_T1)}
    s_cbranch_scc1 L_amp{self.name}"""))
        P("s_endpgm")

ws_ld = lambda dst, voff, soff, imm=0, tag=None: Ins(
    f"buffer_load_dwordx4 {dst}, {v(voff)}, {s(S_WS,4)}, {soff} offen{' offset:%d' % imm if imm else ''} sc1", tag)
ws_st = lambda src, voff, soff, imm=0, tag=None: Ins(
    f"buffer_store_dwordx4 {src}, {v(voff)}, {s(S_WS,4)}, {soff} offen{' offset:%d' % imm if imm else ''} sc1", tag)
ep_load = f"buffer_load_dwordx2 {v(EP,2)}, off, {s(S_DBG,4)}, 0 sc1"
flag_load = f"buffer_load_dwordx2 {v(FLG,2)}, {v(V_FOFF)}, {s(S_WS,4)}, {s(S_K)} offen sc1"
flag_cmp = f"v_cmp_eq_u64 vcc, {v(FLG,2)}, {v(EP,2)}"
def flag_store(data_tag, kind):
    if kind == "kv":
        o = lines(f"""v_mul_u32_u24 v0, 56, {v(V_LANE)}
v_add_u32 v0, 88, v0
s_sub_u32 {s(S_T1)}, 31, {s(S_RB)}
s_min_u32 {s(S_T1)}, {s(S_T1)}, 4
v_cmp_gt_u32 vcc, {s(S_T1)}, {v(V_LANE)}
s_cmp_eq_u32 {s(S_RB)}, 0
s_cselect_b32 {s(S_T1)}, 24, {OOB}
v_mov_b32 v5, {s(S_T1)}
v_cndmask_b32 v0, v5, v0, vcc
s_lshl_b32 {s(S_T0)}, {s(S_HEAD)}, 5
s_add_u32 {s(S_T0)}, {s(S_T0)}, {s(S_RB)}
s_lshl_b32 {s(S_T0)}, {s(S_T0)}, 6
s_add_u32 {s(S_T0)}, {s(S_T0)}, {WS_FKV}""")
    else:
        o = lines(f"""v_lshlrev_b32 v0, 8, {v(V_LANE)}
v_cmp_gt_u32 vcc, 8, {v(V_LANE)}
v_mov_b32 v5, {OOB}
v_cndmask_b32 v0, v5, v0, vcc
s_lshl_b32 {s(S_T0)}, {s(S_RB)}, 8
s_add_u32 {s(S_T0)}, {s(S_T0)}, {s(S_HEAD)}
s_lshl_b32 {s(S_T0)}, {s(S_T0)}, 3
s_add_u32 {s(S_T0)}, {s(S_T0)}, {WS_FOB if kind == "ob" else WS_FOA}""")
    return o + [WaitTag(data_tag), Ins(f"buffer_store_dwordx2 {v(EP,2)}, v0, {s(S_WS,4)}, {s(S_T0)} offen sc1", "flag")]

def max_tree(dst, regs, init=False):
    regs, o = list(regs), []
    if not init:
        o.append(f"v_max3_f32 {v(dst)}, {v(regs[0])}, {v(regs[1])}, {v(regs[2])}"); regs = regs[3:]
    while len(regs) >= 2:
        o.append(f"v_max3_f32 {v(dst)}, {v(dst)}, {v(regs[0])}, {v(regs[1])}"); regs = regs[2:]
    if regs: o.append(f"v_max_f32 {v(dst)}, {v(dst)}, {v(regs[0])}")
    return o
def cross_max(m, t):
    return [f"v_mov_b32 {v(t)}, {v(m)}", f"v_permlane32_swap_b32 {v(m)}, {v(t)}", f"v_max_f32 {v(m)}, {v(m)}, {v(t)}"]

def attn_setup(t, tmp):
    r5, hh, cm, u = tmp, tmp + 1, tmp + 2, tmp + 3
    o = lines(f"""v_and_b32 {v(r5)}, 31, {v(V_LANE)}
v_lshrrev_b32 {v(hh)}, 5, {v(V_LANE)}
v_lshlrev_b32 {v(u)}, 2, {v(hh)}
v_sub_u32 {v(cm)}, {v(r5)}, {v(u)}
s_mul_i32 {s(S_T2)}, {s(S_W4)}, {KVH}
s_add_u32 {s(S_T2)}, {s(S_T2)}, {L_KV + t*KVS}
v_add_u32 {v(V_AK)}, {s(S_T2)}, {v(V_L16)}
v_and_b32 {v(u)}, 15, {v(V_LANE)}
v_lshlrev_b32 {v(u)}, 4, {v(u)}
v_lshl_add_u32 {v(u)}, {v(hh)}, 8, {v(u)}
v_mov_b32 {v(hh)}, 0x400
v_cndmask_b32 {v(V_AV0)}, {v(hh)}, {v(u)}, {s(S_LO16,2)}
v_mov_b32 {v(hh)}, 0x200
v_cndmask_b32 {v(V_AV1)}, {v(hh)}, {v(u)}, {s(S_LO16,2)}
v_add_u32 {v(V_AV0)}, {s(S_T2)}, {v(V_AV0)}
v_add_u32 {v(V_AV1)}, {s(S_T2)}, {v(V_AV1)}
v_mov_b32 {v(u)}, 0xffff""")
    o += [f"v_cmp_le_i32 {s(S_MASK+2*q,2)}, {8*(q>>2)+(q&3)}, {v(cm)}" for q in range(16)]
    o += [f"v_cndmask_b32 {v(PM+pq)}, 0, {v(u)}, {s(S_MASK+4*pq,2)}" for pq in range(8)]
    o += [f"v_cndmask_b32 {v(PM+pq)}, {v(PM+pq)}, -1, {s(S_MASK+4*pq+2,2)}" for pq in range(8)]
    return o

def gate_finish(tiles, addr, tmp):
    o = [f"ds_read_b128 {v(tmp+4*t,4)}, {v(addr)} offset:{512*t}" for t in tiles]
    seq = []
    for t in tiles:
        b = tmp + 4*t
        seq.append([f"v_add_f32 {v(b)}, {v(b)}, {v(b+1)}", f"v_add_f32 {v(b+2)}, {v(b+2)}, {v(b+3)}",
                    f"v_add_f32 {v(b)}, {v(b)}, {v(b+2)}", f"v_mul_f32 {v(b)}, {fhex(-math.log2(math.e))}, {v(b)}",
                    f"v_exp_f32 {v(b)}, {v(b)}", f"v_add_f32 {v(b)}, 1.0, {v(b)}", f"v_rcp_f32 {v(G0+t)}, {v(b)}"])
    return o + interleave(*seq)

def o_pack(acc, o0, lreg, fac, dst, f):
    return ([f"v_rcp_f32 {v(f)}, {v(acc+lreg)}"] + fac +
            [f"v_mul_f32 {v(acc+o0+i)}, {v(f)}, {v(acc+o0+i)}" for i in range(8)] +
            [f"v_cvt_pk_bf16_f32 {v(dst+i)}, {v(acc+o0+2*i)}, {v(acc+o0+2*i+1)}" for i in range(4)])
def o_store(br, tt, src, tag):
    return [f"s_lshl_b32 {s(S_T0)}, {s(S_RB)}, 17", f"s_lshl_b32 {s(S_T1)}, {s(S_HEAD)}, 10",
            f"s_add_u32 {s(S_T0)}, {s(S_T0)}, {s(S_T1)}", f"s_add_u32 {s(S_T0)}, {s(S_T0)}, {WS_O + br*65536 + tt*32768}",
            ws_st(v(src,4), V_L16, s(S_T0), 0, tag)]

def window_attention(R):
    P = R.P
    Q = lambda t: v((QA, QA1)[t], 4)
    kfr = lambda u: v(KF+4*(u & 1), 4) if u < 8 else v(KA+4*(u-8), 4)
    vfr = lambda u, m: v(VF+8*(u & 1)+4*m, 4) if u < 8 else v(VA+8*(u-8)+4*m, 4)
    kread = lambda u: [f"ds_read_b128 {kfr(u)}, {v(V_AK)} offset:{u*KVS}"] if u < 8 else []
    vread = lambda u: [f"ds_read_b128 {vfr(u,0)}, {v(V_AV0)} offset:{u*KVS+1024}",
                       f"ds_read_b128 {vfr(u,1)}, {v(V_AV1)} offset:{u*KVS+1536}"] if u < 8 else []
    M = (TMP, TMP + 2)
    acc = lambda t: v(OACC+16*t, 16)
    negm = lambda t: v(NEGM+16*t, 16)
    exps = lambda S: [f"v_exp_f32 {v(S+i)}, {v(S+i)}" for i in range(16)]
    cvts = lambda d, S: [f"v_cvt_pk_bf16_f32 {v(d+k)}, {v(S+2*k)}, {v(S+2*k+1)}" for k in range(8)]
    P.add(interleave(*[max_tree(M[t], range(MG+16*t, MG+16*t+16)) + cross_max(M[t], M[t]+1) for t in (1, 0)]))
    for t in (1, 0):
        P.add([f"v_pk_add_f32 {v(NEGM+16*t+2*i,2)}, 0, {v(M[t],2)} op_sel_hi:[0,0] neg_lo:[0,1] neg_hi:[0,1]" for i in range(8)])
        if t == 1: P(mfma(v(SB+16,16), kfr(8), Q(1), negm(1)))
    P(mfma(v(MG+16,16), kfr(9), Q(1), negm(1)))
    e, c = exps(SB+16), cvts(PB+8, SB+16)
    P.add(e[0:4]); P(mfma(v(MG,16), kfr(8), Q(0), negm(0))); P.add(e[4:8]); P.add(c[0:4]); P.add(e[8:10])
    P(mfma(acc(1), vfr(8,0), v(PB+8,4), "0")); P.add(e[10:16])
    R.stamp()
    P("s_barrier")
    R.stamp()
    P.add(kread(0) + kread(1) + vread(0) + vread(1)); P.add(c[4:8])
    P(mfma(v(SB,16), kfr(0), Q(0), negm(0))); P.add(kread(2))
    P(mfma(v(SB+16,16), kfr(1), Q(1), negm(1)))
    P(mfma(acc(1), vfr(8,1), v(PB+12,4), acc(1)))
    pend = []
    for t in range(2):
        g = MG + 16*t
        P.add([f"v_cndmask_b32 {v(g+i)}, {v(SB+16*t+i)}, {v(g+i)}, {s(S_MASK+2*i,2)}" for i in range(16)])
        P(mfma(v(SB+16*t,16), kfr(1+t), Q(t), negm(t)))
        if t == 0: P.add(kread(3))
        seq = exps(g) + cvts(PF, g)
        seq += [f"v_and_b32 {v(PB+8*t+i)}, {v(PM+i)}, {v(PF+i)}" for i in range(8)]
        seq += [f"v_xor_b32 {v(g+i)}, {v(PF+i)}, {v(PB+8*t+i)}" for i in range(8)]
        for i, x in enumerate(seq):
            P(x)
            if pend and i % 5 == 4: P.add(pend.pop(0))
        pend = [mfma(acc(t), vfr(8+t,0), v(PB+8*t,4), acc(1) if t else "0"), mfma(acc(t), vfr(8+t,1), v(PB+8*t+4,4), acc(t)),
                mfma(acc(t), vfr(t,0), v(g,4), acc(t)), [mfma(acc(t), vfr(t,1), v(g+4,4), acc(t))] + (vread(2) if t == 0 else [])]
    R.stamp()
    P("s_barrier")
    for hs in range(13):
        t = hs & 1; u = (hs >> 1) + 1 + t
        S, Pp = SB + 16*t, PB + 8*t
        e, c = exps(S), cvts(Pp, S)
        nxt = None
        if t == 0 and 0 < hs < 12: nxt = [mfma(v(SB+16,16), kfr(u+1), Q(1), negm(1))]
        if t == 1: nxt = [mfma(v(SB,16), kfr(u), Q(0), negm(0))] + kread(u+2)
        if hs == 0:
            P.add(e[0:2]); P.add(pend[0]); P.add(e[2:5]); P.add(pend[1]); P.add(e[5:8]); P.add(pend[2])
            P.add(c[0:4]); P.add(e[8:10]); P.add(pend[3]); P.add(e[10:14])
            P(mfma(acc(t), vfr(u,0), v(Pp,4), acc(t))); P.add(e[14:16]); P.add(c[4:8])
        else:
            P.add(e[0:2]); P.add(pend); P.add(e[2:6])
            if nxt: P.add(nxt)
            P.add(e[6:8]); P.add(c[0:4]); P.add(e[8:10])
            P(mfma(acc(t), vfr(u,0), v(Pp,4), acc(t)))
            P.add(e[10:16]); P.add(c[4:8])
        pend = [mfma(acc(t), vfr(u,1), v(Pp+4,4), acc(t))] + (vread(u+2) if t == 0 else [])
    P.add(pend)
    P(f"s_mov_b32 {s(S_T1)}, 0x7b800000")
    chk = []
    for t in range(2):
        o, m = OACC + 16*t, M[t]
        chk.append([f"v_add_f32 {v(m)}, abs({v(o)}), abs({v(o+8)})", f"v_add_f32 {v(m+1)}, abs({v(o+1)}), abs({v(o+2)})"] +
                   [f"v_add_f32 {v(m+(i&1))}, {v(m+(i&1))}, abs({v(o+i)})" for i in range(3, 8)] + [f"v_add_f32 {v(m)}, {v(m)}, {v(m+1)}"])
    P.add(chk[1]); P.add(chk[0])
    P(f"v_add_f32 {v(M[0])}, {v(M[0])}, {v(M[1])}\nv_cmp_lt_f32 vcc, {v(M[0])}, {s(S_T1)}")
    P("s_cmp_eq_u64 vcc, -1\ns_cbranch_scc0 L_exact0\nL_back:")
    R.stamp()

def exact_attention(t):
    F = Prog(); q, M, acc = v((QA, QA1)[t], 4), TMP, v(OACC+16*t, 16)
    KO, VO, G = TMP + 2, TMP + 3, S_T0
    def tile(rel, kdst, vdst):
        o = [f"s_add_i32 {s(S_K)}, {s(G)}, {rel}", f"s_cmp_ge_i32 {s(S_K)}, 0", f"s_cselect_b64 vcc, -1, 0",
             f"s_cselect_b32 {s(S_TM)}, {hex(ONES)}, 0", f"s_max_i32 {s(S_K)}, {s(S_K)}, 0", f"s_lshl_b32 {s(S_K)}, {s(S_K)}, 11",
             f"s_lshl_b32 {s(S_T1)}, {s(S_HEAD)}, 17", f"s_add_u32 {s(S_K)}, {s(S_K)}, {s(S_T1)}",
             f"v_and_b32 {v(KO)}, 0x200, {v(V_L16)}", f"v_cndmask_b32 {v(KO)}, {v(KO)}, {v(V_L16)}, vcc", ws_ld(v(kdst,4), KO, s(S_K))]
        if vdst is not None:
            o += [f"v_mov_b32 {v(vdst+i)}, {s(S_TM)}" for i in range(8)]
            o += [f"s_cmp_lg_u32 {s(S_TM)}, 0", f"s_cselect_b32 {s(S_K)}, {s(S_K)}, {WS_SIZE}", f"s_mov_b64 exec, {s(S_LO16,2)}",
                  ws_ld(v(vdst,4), VO, s(S_K), 1024), ws_ld(v(vdst+4,4), VO, s(S_K), 1536), "s_mov_b64 exec, -1"]
        return o
    F(f"L_exact{t}:\ns_waitcnt vmcnt(0) lgkmcnt(0)\ns_nop 15")
    F(f"""s_lshl_b32 {s(G)}, {s(S_RB)}, 1
s_sub_u32 {s(G)}, {s(G)}, {8 - t}
v_lshrrev_b32 {v(VO)}, 1, {v(V_L16)}
v_and_b32 {v(VO)}, 0x100, {v(VO)}
v_and_b32 {v(KO)}, 0xf0, {v(V_L16)}
v_or_b32 {v(VO)}, {v(VO)}, {v(KO)}""")
    F.add(tile(8, KF, VF)); F.add(tile(0, KF+4, VF+8))
    F(mfma(v(MG,16), v(KF,4), q, "0")); F(mfma(v(SB,16), v(KF+4,4), q, "0"))
    F.add([f"v_cndmask_b32 {v(MG+i)}, {v(SB+i)}, {v(MG+i)}, {s(S_MASK+2*i,2)}" for i in range(16)])
    F.add(max_tree(M, range(MG, MG+16)))
    F(f"s_mov_b32 {s(S_TM+1)}, 7\nL_exact_m{t}:\ns_add_u32 {s(G)}, {s(G)}, 1")
    F.add(tile(0, KF, None))
    F(mfma(v(SB,16), v(KF,4), q, "0"))
    F.add(max_tree(M, range(SB, SB+16), init=True))
    F(f"s_sub_u32 {s(S_TM+1)}, {s(S_TM+1)}, 1\ns_cmp_lg_u32 {s(S_TM+1)}, 0\ns_cbranch_scc1 L_exact_m{t}")
    F.add(cross_max(M, M+1))
    F.add([f"v_sub_f32 {v(MG+i)}, {v(MG+i)}, {v(M)}" for i in range(16)])
    F.add([f"v_exp_f32 {v(MG+i)}, {v(MG+i)}" for i in range(16)])
    F.add([f"v_cvt_pk_bf16_f32 {v(PF+i)}, {v(MG+2*i)}, {v(MG+2*i+1)}" for i in range(8)])
    F.add([f"v_and_b32 {v(PB+i)}, {v(PM+i)}, {v(PF+i)}" for i in range(8)])
    F.add([f"v_xor_b32 {v(PF+i)}, {v(PF+i)}, {v(PB+i)}" for i in range(8)])
    F(mfma(acc, v(VF,4), v(PB,4), "0")); F(mfma(acc, v(VF+4,4), v(PB+4,4), acc))
    F(mfma(acc, v(VF+8,4), v(PF,4), acc)); F(mfma(acc, v(VF+12,4), v(PF+4,4), acc))
    F(f"s_sub_u32 {s(G)}, {s(G)}, 7\ns_mov_b32 {s(S_TM+1)}, 7\ns_nop 15\nL_exact_e{t}:\ns_add_u32 {s(G)}, {s(G)}, 1")
    F.add(tile(0, KF, VF))
    F(mfma(v(SB,16), v(KF,4), q, "0"))
    F.add([f"v_sub_f32 {v(SB+i)}, {v(SB+i)}, {v(M)}" for i in range(16)])
    F.add([f"v_exp_f32 {v(SB+i)}, {v(SB+i)}" for i in range(16)])
    F.add([f"v_cvt_pk_bf16_f32 {v(PB+i)}, {v(SB+2*i)}, {v(SB+2*i+1)}" for i in range(8)])
    F(mfma(acc, v(VF,4), v(PB,4), acc)); F(mfma(acc, v(VF+4,4), v(PB+4,4), acc))
    F(f"s_nop 15\ns_sub_u32 {s(S_TM+1)}, {s(S_TM+1)}, 1\ns_cmp_lg_u32 {s(S_TM+1)}, 0\ns_cbranch_scc1 L_exact_e{t}")
    if t: F("s_branch L_back")
    return finalize(F)

E = Prog()
hb = {4: 2, 3: 1, 2: 0, 1: 3}[OPT["xmap"]]
if OPT["stamps"] or OPT["amp"] >= 0:
    E("s_memtime s[64:65]\ns_memrealtime s[66:67]")
def entry_stamp():
    if OPT["stamps"]:
        return [f"v_mov_b32 {v(V_STAMP)}, 0", f"v_writelane_b32 {v(V_STAMP)}, s64, 0", f"v_writelane_b32 {v(V_STAMP)}, s66, 62"]
    if OPT["amp"] >= 0:
        return [f"v_mov_b32 {v(V_STAMP)}, 0", f"v_writelane_b32 {v(V_STAMP)}, {'s64' if OPT['ampclk'] else 's66'}, 0"]
    return []
code_pf = f"""s_getpc_b64 {s(S_T2,2)}
L_pc:
s_lshl2_add_u32 {s(S_T1)}, {s(S_T0)}, {s(S_W4)}
s_and_b32 {s(S_T1)}, {s(S_T1)}, 63
s_lshl_b32 {s(S_T1)}, {s(S_T1)}, 9
s_sub_u32 {s(S_T2)}, {s(S_T2)}, L_pc-{NAME}_kernel
s_subb_u32 {s(S_T3)}, {s(S_T3)}, 0
v_and_b32 v5, 3, {v(V_LANE)}
v_lshl_add_u32 v5, v5, 7, {s(S_T1)}
global_load_dword v13, v5, {s(S_T2,2)}"""
if OPT["cpf"] == 2:
    E(f"""s_getpc_b64 {s(S_T2,2)}
s_bfe_u32 {s(S_T1)}, s2, 0x50003
v_lshrrev_b32 v5, 6, v0
v_lshlrev_b32 v5, 7, v5
v_lshl_add_u32 v5, {s(S_T1)}, 10, v5
global_load_dword v13, v5, {s(S_T2,2)}""")
if OPT["cpf"] == 3:
    E(f"""s_getpc_b64 {s(S_T2,2)}
s_bfe_u32 {s(S_T1)}, s2, 0x30003
v_lshrrev_b32 v5, 4, v0
v_lshlrev_b32 v5, 7, v5
v_lshl_add_u32 v5, {s(S_T1)}, 12, v5
global_load_dword v13, v5, {s(S_T2,2)}""")
E(f"""
s_cmp_ge_u32 s2, 256
s_cbranch_scc1 L_end
s_load_dwordx16 s[4:19], s[0:1], 0
s_load_dwordx4 s[20:23], s[0:1], 64
v_lshrrev_b32 v4, 6, v0
v_and_b32 {v(V_LANE)}, 63, v0
s_lshr_b32 {s(S_T0)}, s2, 3
v_readfirstlane_b32 {s(S_MX)}, v4
""")
E(f"""
s_and_b32 {s(S_T1)}, s2, {(8 >> hb) - 1}
s_lshl_b32 {s(S_HG)}, {s(S_T1)}, {hb}
s_and_b32 {s(S_K)}, {s(S_T0)}, {(1 << hb) - 1}
s_add_u32 {s(S_HG)}, {s(S_HG)}, {s(S_K)}
s_bfe_u32 {s(S_K)}, s2, {hex((hb << 16) | (3 - hb))}
s_lshl_b32 {s(S_RB)}, {s(S_K)}, {5 - hb}
s_lshr_b32 {s(S_ROT)}, {s(S_T0)}, {hb}
s_add_u32 {s(S_RB)}, {s(S_RB)}, {s(S_ROT)}
s_and_b32 {s(S_W4)}, {s(S_MX)}, 3
""")
if OPT["cpf"] == 1:
    E(f"""s_cmp_lt_u32 {s(S_MX)}, 4
s_cbranch_scc0 L_hrole""")
    E(code_pf)
    E("s_branch L_crole\nL_hrole:")
elif OPT["cpf"] >= 4:
    E(f"""s_cmp_lt_u32 {s(S_MX)}, 4
s_cbranch_scc0 L_hrole
s_getpc_b64 {s(S_T2,2)}
L_pc:
s_lshl2_add_u32 {s(S_T1)}, {s(S_T0)}, {s(S_W4)}
s_lshl_b32 {s(S_T1)}, {s(S_T1)}, 8
s_sub_u32 {s(S_T2)}, {s(S_T2)}, L_pc-{NAME}_kernel
s_subb_u32 {s(S_T3)}, {s(S_T3)}, 0
s_load_dword s70, {s(S_T2,2)}, {s(S_T1)}
s_add_u32 {s(S_T1)}, {s(S_T1)}, 128
s_load_dword s71, {s(S_T2,2)}, {s(S_T1)}""")
    if OPT["cpf"] == 5:
        E("s_waitcnt lgkmcnt(0)")
        for i, ptr in enumerate((6, 12, 4, 16, 20, 8, 14, 18, 22)):
            E(f"s_load_dword s{72+i}, {s(ptr,2)}, 0")
        for i in range(1, 5):
            E(f"s_mov_b32 {s(S_T1)}, {i << 21}\ns_load_dword s{80+i}, s[22:23], {s(S_T1)}")
    E("s_branch L_crole\nL_hrole:")
else:
    E(f"s_cmp_lt_u32 {s(S_MX)}, 4\ns_cbranch_scc1 L_crole")
late_ids = lines(f"""
s_lshr_b32 {s(S_T0)}, s2, 3
s_and_b32 {s(S_RB3)}, s2, 7
s_lshl_b32 {s(S_RB3)}, {s(S_RB3)}, 2
s_lshr_b32 {s(S_T1)}, {s(S_T0)}, 3
s_add_u32 {s(S_RB3)}, {s(S_RB3)}, {s(S_T1)}
s_and_b32 {s(S_CB)}, {s(S_T0)}, 7
s_lshl_b32 {s(S_HEAD)}, {s(S_HG)}, 2
s_add_u32 {s(S_HEAD)}, {s(S_HEAD)}, {s(S_W4)}
s_mov_b32 {s(S_LO16)}, 0xffff
s_mov_b32 {s(S_LO16+1)}, 0xffff
v_lshlrev_b32 {v(V_L16)}, 4, {v(V_LANE)}
""")
rot_code = {
 0: f"s_and_b32 {s(S_ROT)}, {s(S_ROT)}, {OPT['rotmask']}",
 1: f"s_and_b32 {s(S_ROT)}, s2, 7",
 4: f"s_add_u32 {s(S_ROT)}, {s(S_ROT)}, {s(S_HG)}\ns_and_b32 {s(S_ROT)}, {s(S_ROT)}, 7",
 5: f"s_add_u32 {s(S_ROT)}, {s(S_ROT)}, {s(S_HG)}\ns_and_b32 {s(S_ROT)}, {s(S_ROT)}, 3\ns_lshl_b32 {s(S_ROT)}, {s(S_ROT)}, 1",
 6: f"s_add_u32 {s(S_ROT)}, {s(S_ROT)}, {s(S_HG)}\ns_and_b32 {s(S_ROT)}, {s(S_ROT)}, 1\ns_lshl_b32 {s(S_ROT)}, {s(S_ROT)}, 2",
}[OPT["rotmode"]]

def stage_of(n): return n >> 1 if n < 32 else 16 + ((n - 32) >> 2)
def first_of_stage(n): return n < 64 and (n == 0 or stage_of(n) != stage_of(n - 1))

H = Role("H"); P = H.P
VX, VW1, VW2 = 160, 162, 166
V_AXW, V_AG, V_GPW, GACC, XW, GF = 170, 171, 172, 174, 176, 184
i3, i4, p7, t0, t1, t2 = 32, 33, 34, 35, 36, 37
def raw(i):
    if OPT["fine"] == 3: P(f"s_memtime s[{68+2*i}:{69+2*i}]")
raw(0)
P(rot_code)
P(f"""
v_lshrrev_b32 {v(i3)}, 3, {v(V_LANE)}
v_lshrrev_b32 {v(i4)}, 4, {v(V_LANE)}
v_and_b32 {v(p7)}, 7, {v(V_LANE)}
s_lshl_b32 {s(S_T0)}, {s(S_W4)}, 4
v_add_u32 {v(t0)}, {s(S_T0)}, {v(i3)}
v_lshlrev_b32 {v(t0)}, 10, {v(t0)}
v_xor_b32 {v(t1)}, {v(p7)}, {v(i4)}
v_lshl_add_u32 {v(VX)}, {v(t1)}, 4, {v(t0)}
v_xor_b32 {v(VX+1)}, 64, {v(VX)}
v_add_u32 {v(VX+1)}, {0x2000 - 1024}, {v(VX+1)}
s_lshr_b32 {s(S_T0)}, {s(S_W4)}, 1
s_and_b32 {s(S_T1)}, {s(S_W4)}, 1
s_lshl_b32 {s(S_K)}, {s(S_T0)}, 4
v_add_u32 {v(t0)}, {s(S_K)}, {v(i4)}
v_mul_u32_u24 {v(t0)}, 0xc00, {v(t0)}
v_lshlrev_b32 {v(t1)}, 1, {v(i4)}
v_xor_b32 {v(t1)}, {v(t1)}, {v(p7)}
v_lshl_add_u32 {v(t0)}, {v(t1)}, 4, {v(t0)}
v_and_b32 {v(t1)}, 1, {v(i3)}
v_xor_b32 {v(t1)}, {s(S_T1)}, {v(t1)}
v_lshlrev_b32 {v(t1)}, 10, {v(t1)}
s_lshl_b32 {s(S_T2)}, {s(S_HG)}, 7
s_add_u32 {s(S_K)}, {s(S_T2)}, 1024
v_add3_u32 {v(VW1)}, {v(t0)}, {v(t1)}, {s(S_K)}
v_add_u32 {v(VW1+1)}, {12288 - 1024}, {v(VW1)}
v_add_u32 {v(VW1+2)}, {2*(12288 - 1024)}, {v(VW1)}
v_add_u32 {v(VW1+3)}, {3*(12288 - 1024)}, {v(VW1)}
s_lshl_b32 {s(S_MW)}, {s(S_T1)}, 13
s_lshl_b32 {s(S_K)}, {s(S_T0)}, 12
s_add_u32 {s(S_MW)}, {s(S_MW)}, {s(S_K)}
s_lshl_b32 {s(S_MX)}, {s(S_W4)}, 11
s_add_u32 {s(S_MX)}, {s(S_MX)}, {L_X}""")
raw(1)
P("s_waitcnt lgkmcnt(0)")
raw(2)
P.add(entry_stamp())
P.add(srd(S_X, 4, 2097152))
P(f"""s_cmp_eq_u32 {s(S_T1)}, 0
s_cselect_b32 {s(S_W)}, s6, s12
s_cselect_b32 {s(S_W+1)}, s7, s13
s_mov_b32 {s(S_W+2)}, 1572864
s_mov_b32 {s(S_W+3)}, 0x20000""")
if OPT["fine"] != 3: H.stamp()
def dma(voff, rsrc, soff, imm, tag, flags=""):
    return Ins(f"buffer_load_dwordx4 {v(voff)}, {s(rsrc,4)}, {soff} offen{' offset:%d' % imm if imm else ''}{flags} lds", tag)
def x_dma(j):
    return [f"s_add_u32 {s(S_K)}, {s(S_ROT)}, {j}", f"s_and_b32 {s(S_K)}, {s(S_K)}, 7", f"s_lshl_b32 {s(S_K)}, {s(S_K)}, 7",
            f"s_lshl_b32 {s(S_T2)}, {s(S_RB)}, 16", f"s_add_u32 m0, {s(S_MX)}, {j*8192}", f"s_add_u32 {s(S_K)}, {s(S_K)}, {s(S_T2)}",
            dma(VX, S_X, s(S_K), 0, f"x{j}"), dma(VX+1, S_X, s(S_K), 1024, f"x{j}")]
def w_dma(S):
    if S < 16:
        o = [f"s_lshl_b32 {s(S_T3)}, {s(S_ROT)}, 1", f"s_add_u32 {s(S_T3)}, {s(S_T3)}, {S}", f"s_and_b32 {s(S_T3)}, {s(S_T3)}, 15"]
    else:
        o = [f"s_add_u32 {s(S_T3)}, {s(S_ROT)}, {S-16}", f"s_and_b32 {s(S_T3)}, {s(S_T3)}, 7"]
    o += [f"s_add_u32 m0, {s(S_MW)}, {(S % NSLOT)*SLOT}", f"s_mul_i32 {s(S_T3)}, {s(S_T3)}, {(32 if S < 16 else 64)*3072}"]
    return o + [dma((VW1 if S < 16 else VW2) + t, S_W, s(S_T3), t*1024, f"w{S}") for t in range(4)]
P.add(x_dma(0)); raw(3)
P.add(w_dma(0)); raw(4)
P.add(w_dma(1)); raw(5)
P(f"""s_lshl_b32 {s(S_K)}, {s(S_ROT)}, 3
v_add_u32 {v(t2)}, {s(S_K)}, {v(V_LANE)}
v_and_b32 {v(t2)}, 63, {v(t2)}
v_lshlrev_b32 {v(t2)}, 4, {v(t2)}""")
P.add(srd(S_G, 16, 1024)); P(f"s_mov_b32 m0, {L_G}"); P.add(dma(t2, S_G, "0", 0, "w1"))
P.add(late_ids)
h_misc = lines(f"""
s_lshr_b32 {s(S_T0)}, {s(S_W4)}, 1
s_and_b32 {s(S_T1)}, {s(S_W4)}, 1
s_lshl_b32 {s(S_T0)}, {s(S_T0)}, 5
v_add_u32 {v(t0)}, {s(S_T0)}, {v(i3)}
v_mul_u32_u24 {v(t0)}, 0xc00, {v(t0)}
v_and_b32 {v(t1)}, 1, {v(i4)}
s_lshl_b32 {s(S_T1)}, {s(S_T1)}, 1
v_add_u32 {v(t1)}, {s(S_T1)}, {v(t1)}
v_lshlrev_b32 {v(t1)}, 1, {v(t1)}
v_xor_b32 {v(t1)}, {v(t1)}, {v(p7)}
v_lshl_add_u32 {v(t0)}, {v(t1)}, 4, {v(t0)}
s_lshl_b32 {s(S_T0)}, {s(S_HG)}, 7
v_add_u32 {v(VW2)}, {s(S_T0)}, {v(t0)}
v_add_u32 {v(VW2+1)}, {24576 - 1024}, {v(VW2)}
v_add_u32 {v(VW2+2)}, {2*(24576 - 1024)}, {v(VW2)}
v_add_u32 {v(VW2+3)}, {3*(24576 - 1024)}, {v(VW2)}
v_and_b32 {v(t0)}, 31, {v(V_LANE)}
v_lshrrev_b32 {v(t1)}, 5, {v(V_LANE)}
s_lshl_b32 {s(S_T0)}, {s(S_W4)}, 1
v_add_u32 {v(t1)}, {s(S_T0)}, {v(t1)}
v_lshlrev_b32 {v(V_AG)}, 4, {v(t1)}
v_add_u32 {v(V_AG)}, {L_G}, {v(V_AG)}
v_bfe_u32 {v(t2)}, {v(t0)}, 1, 3
v_xor_b32 {v(t1)}, {v(t1)}, {v(t2)}
v_lshlrev_b32 {v(t1)}, 4, {v(t1)}
v_lshl_add_u32 {v(t1)}, {v(t0)}, 7, {v(t1)}
v_add_u32 {v(V_AXW)}, {L_X}, {v(t1)}
v_lshlrev_b32 {v(t0)}, 4, {v(t0)}
s_lshl_b32 {s(S_T0)}, {s(S_W4)}, 2
s_add_u32 {s(S_T0)}, {s(S_T0)}, {L_GP}
v_add_u32 {v(V_GPW)}, {s(S_T0)}, {v(t0)}
v_mov_b32 {v(GACC)}, 0
v_mov_b32 {v(GACC+1)}, 0
""") + srd(S_WS, 22, WS_SIZE) + srd(S_DBG, 20, 256)
P.add(h_misc)
if OPT["fine"] == 3:
    raw(6); P("s_waitcnt vmcnt(9)"); raw(7); P("s_waitcnt vmcnt(5)"); raw(8); P("s_waitcnt lgkmcnt(0)")
    for i in range(9):
        P(f"v_writelane_b32 {v(V_STAMP)}, s{68+2*i}, {i+1}")
    H.ns = 9
def gate_chunk(j):
    o = [f"ds_read_b128 {v(GF,4)}, {v(V_AG)} offset:{j*128}",
         f"ds_read_b128 {v(XW,4)}, {v(V_AXW)} offset:{j*8192}", f"ds_read_b128 {v(XW+4,4)}, {v(V_AXW)} offset:{j*8192+4096}"]
    for i in range(4):
        for tt in range(2):
            o.append(f"v_dot2_f32_bf16 {v(GACC+tt)}, {v(XW+4*tt+i)}, {v(GF+i)}, {v(GACC+tt)}")
    return o
CM, QB, KB, VB, KBH, VBH, BS, BSP, BO, BP, BPL, BPK, SENT, S_R0 = 32, 48, 56, 64, 80, 84, 96, 128, 192, 224, 240, 248, 88, 28
def b_scores(t):
    kprev = v(KB, 4) if t == 1 else v(KBH, 4)
    return [mfma(v(BS+16*t,16), v(KB+4*t,4), v(QB+4*t,4), v(CM,16)), mfma(v(BSP+16*t,16), kprev, v(QB+4*t,4), v(CM,16))]
def b_softmax(t):
    S, sp, m, p, pl = BS + 16*t, BSP + 16*t, TMP + 2*t, BP + 8*t, BPL + 4*t
    o = [f"v_cndmask_b32 {v(S+q)}, {v(S+q)}, {v(sp+q)}, {s(S_LO16,2)}" for q in range(8, 16)]
    if t == 0:
        o += [f"v_mov_b32 {v(m)}, {hex(NEG_BIG)}"]
        o += [f"v_cndmask_b32 {v(S+q)}, {v(S+q)}, {v(m)}, {s(S_R0,2)}" for q in range(8, 16)]
    o += max_tree(m, range(S, S+16)) + cross_max(m, m+1)
    o += [f"v_pk_add_f32 {v(S+2*q,2)}, {v(S+2*q,2)}, {v(m,2)} op_sel_hi:[1,0] neg_lo:[0,1] neg_hi:[0,1]" for q in range(8)]
    o += [f"v_exp_f32 {v(S+q)}, {v(S+q)}" for q in range(16)]
    o += [f"v_cvt_pk_bf16_f32 {v(p+i)}, {v(S+2*i)}, {v(S+2*i+1)}" for i in range(8)]
    o += [f"v_cndmask_b32 {v(pl+i)}, 0, {v(p+4+i)}, {s(S_LO16,2)}" for i in range(4)]
    o += [f"v_cndmask_b32 {v(p+4+i)}, {v(p+4+i)}, 0, {s(S_LO16,2)}" for i in range(4)]
    return o
def b_pv(t):
    vprev, acc, p = v(VB+4, 4) if t == 1 else v(VBH, 4), v(BO+16*t, 16), BP + 8*t
    return [mfma(acc, v(VB+8*t,4), v(p,4), "0"), mfma(acc, v(VB+8*t+4,4), v(p+4,4), acc), mfma(acc, vprev, v(BPL+4*t,4), acc)]
def b_pack(t):
    f = TMP + 2*t
    return o_pack(BO+16*t, 8, 0, [f"v_sub_f32 {v(f+1)}, 1.0, {v(G0+t)}", f"v_mul_f32 {v(f)}, {v(f)}, {v(f+1)}"], BPK+4*t, f)
VWO, VKF, V1A, V1D, V_MB, V_HB = 160, 161, 162, 164, 163, 13
txt_of = lambda x: x.text if isinstance(x, Ins) else x
special_txt = []
def gather(tiles, special):
    o = []
    if 0 in tiles:
        o += [f"s_lshl_b32 {s(S_T0)}, {s(S_HEAD)}, 15", f"s_lshl_b32 {s(S_T1)}, {s(S_RB)}, 10", f"s_add_u32 {s(S_T0)}, {s(S_T0)}, {s(S_T1)}",
              f"s_add_u32 {s(S_T0)}, {s(S_T0)}, {WS_HB - 1024}"]
        if special:
            o += [f"s_cmp_eq_u32 {s(S_RB)}, 0", f"s_cselect_b32 {s(S_T0)}, {WS_SIZE}, {s(S_T0)}"]
        o += [ws_ld(v(KBH,4), V_HB, s(S_T0)), ws_ld(v(VBH,4), V_HB, s(S_T0), 512)]
        o += [f"s_lshl_b32 {s(S_K)}, {s(S_HEAD)}, 17", f"s_lshl_b32 {s(S_T1)}, {s(S_RB)}, 12",
              f"s_add_u32 {s(S_T2)}, {s(S_K)}, {s(S_T1)}", f"s_sub_u32 {s(S_T2)}, {s(S_T2)}, {8*2048}"]
    for u in tiles:
        tag = "kva" if u < 4 else "kvb"
        o += [f"s_add_u32 {s(S_T0)}, {s(S_T2)}, {u*2048}", f"s_add_u32 m0, {s(S_MW)}, {u*KVS}"]
        if special:
            o += [f"s_cmp_ge_u32 {s(S_RB)}, {(8-u+1)//2}", f"s_cbranch_scc1 L_gk{u}",
                  dma(VKF, S_WS, s(S_K), 0, None, " sc1"), f"s_mov_b32 {s(S_T0)}, {WS_SIZE}", f"s_branch L_gk{u}e", f"L_gk{u}:",
                  dma(V_L16, S_WS, s(S_T0), 0, None, " sc1"), f"L_gk{u}e:"]
        else:
            o += [dma(V_L16, S_WS, s(S_T0), 0, tag, " sc1")]
        o += [dma(V_L16, S_WS, s(S_T0), 1024, tag, " sc1")]
    return o
def emit_gather(n, tiles):
    P(f"s_cmp_lt_u32 {s(S_RB)}, 4\ns_cbranch_scc1 L_gspecial{n}")
    P.add(gather(tiles, False)); P(f"L_gdone{n}:")
    special_txt.append(f"L_gspecial{n}:\n" + "\n".join(("" if txt_of(x).endswith(":") else "    ") + txt_of(x) for x in gather(tiles, True))
                       + f"\n    s_branch L_gdone{n}\n")
issued_w, issued_x = 2, 1
for S in range(25):
    if S < 24:
        P.add(WaitTag(f"w{S}", f"x{S >> 1}" if S < 16 else "none"))
    if S not in (18, 19, 20): P.add(WaitLds())
    P("s_barrier")
    if OPT["fine"] in (1, 2, 3) or S in (0, 16, 24): H.stamp()
    top = {0: 3}.get(S, S + 4)
    while issued_w <= min(top, 23):
        if issued_w < 16 and issued_w % 2 == 0 and issued_x <= issued_w // 2:
            P.add(x_dma(issued_x)); issued_x += 1
        P.add(w_dma(issued_w)); issued_w += 1
    if OPT["tlb"] and S in (3, 4, 5, 6):
        for i, (ptr, off) in enumerate({3: ((22, 0), (22, 1)), 4: ((22, 2), (22, 4)), 5: ((22, 3), (20, 0)), 6: ((18, 0),)}[S]):
            P.add(Raw(f"    s_mov_b32 {s(S_T1)}, {off << 21}\n    s_load_dword s{70+i}, {s(ptr,2)}, {s(S_T1)}"))
    if OPT["wqpf"] and S in (4, 5, 6, 7):
        ptr, half = (6, 12)[S & 1], (S - 4) >> 1
        t = (f"    s_lshl2_add_u32 {s(S_T1)}, s2, {s(S_W4)}\n    s_lshr_b32 {s(S_T0)}, {s(S_T1)}, 1\n    s_mul_i32 {s(S_T0)}, {s(S_T0)}, 3072\n"
             f"    s_and_b32 {s(S_T1)}, {s(S_T1)}, 1\n    s_lshl_b32 {s(S_T1)}, {s(S_T1)}, 9\n    s_add_u32 {s(S_T1)}, {s(S_T1)}, {s(S_T0)}\n")
        t += "".join(f"    s_load_dword s{73+i}, {s(ptr,2)}, {s(S_T1)} offset:{half*256+i*64}\n" for i in range(4))
        P.add(Raw(t))
    if OPT["wopf"] == 1 and S in (8, 9, 10, 11):
        ptr, half = (14, 8)[(S - 8) >> 1], S & 1
        t = f"    s_lshl2_add_u32 {s(S_T1)}, s2, {s(S_W4)}\n    s_lshl_b32 {s(S_T1)}, {s(S_T1)}, 9\n"
        t += "".join(f"    s_load_dword s{73+i}, {s(ptr,2)}, {s(S_T1)} offset:{half*256+i*64}\n" for i in range(4))
        P.add(Raw(t))
    if OPT["wopf"] == 2 and OPT["ws0"] <= S < OPT["ws0"] + OPT["wsn"]:
        per = -(-128 // OPT["wsn"]); k0 = (S - OPT["ws0"]) * per
        t = f"    s_lshr_b32 {s(S_T1)}, s2, 3\n    s_lshl2_add_u32 {s(S_T1)}, {s(S_T1)}, {s(S_W4)}\n    s_lshl_b32 {s(S_T1)}, {s(S_T1)}, 12\n"
        t += "".join(f"    s_load_dword s{73+k%8}, {s((8, 14)[k >> 6],2)}, {s(S_T1)} offset:{(k & 63)*64}\n" for k in range(k0, min(k0 + per, 128)))
        P.add(Raw(t))
    if S == 8: P(ep_load)
    GS = 16 if OPT["wopf"] == 2 else 14
    if S == GS: P("s_waitcnt lgkmcnt(0)")
    if S == 18:
        H.poll(f"v_cmp_ne_u64 vcc, 0, {v(EP,2)}", ep_load)
        P(f"v_readfirstlane_b32 {s(S_EP)}, {v(EP)}\nv_readfirstlane_b32 {s(S_EP+1)}, {v(EP+1)}")
    if GS == 14 and 14 <= S < 18:
        P.add(gate_chunk(2*(S-14))); P.add(gate_chunk(2*(S-14)+1))
    if GS == 16 and S in (16, 17):
        for j in range(4): P.add(gate_chunk(4*(S-16)+j))
    if S == 17:
        for tt in range(2):
            P(f"v_mov_b32 {v(XW+tt)}, {v(GACC+tt)}")
        for tt in range(2):
            P(f"v_permlane32_swap_b32 {v(GACC+tt)}, {v(XW+tt)}")
        for tt in range(2):
            P(f"v_add_f32 {v(GACC+tt)}, {v(GACC+tt)}, {v(XW+tt)}\nds_write_b32 {v(V_GPW)}, {v(GACC+tt)} offset:{512*tt}")
    if OPT["icpf"] and S == 1:
        t = (f"    s_getpc_b64 s[78:79]\nL_pc:\n    s_sub_u32 s78, s78, L_pc-{NAME}_kernel\n    s_subb_u32 s79, s79, 0\n    s_lshr_b32 {s(S_T1)}, s2, 3\n"
             f"    s_lshl2_add_u32 {s(S_T1)}, {s(S_T1)}, {s(S_W4)}\n    s_lshl_b32 {s(S_T1)}, {s(S_T1)}, 8\n")
        t += "".join(f"    s_load_dword s{80+i}, s[78:79], {s(S_T1)} offset:{i*64}\n" for i in range(4))
        P.add(Raw(t))
    if S in (12, 13):
        if S == 12:
            P(f"v_and_b32 v48, 31, {v(V_LANE)}\nv_lshrrev_b32 v49, 5, {v(V_LANE)}\nv_lshlrev_b32 v49, 2, v49\nv_sub_u32 v48, v48, v49")
        for q in range(8*(S-12), 8*(S-12) + 8):
            P(f"""v_subrev_u32 {v(CM+q)}, {8*(q>>2)+(q&3)}, v48
v_and_b32 {v(CM+q)}, 17, {v(CM+q)}
v_cvt_f32_u32 {v(CM+q)}, {v(CM+q)}
v_mul_f32 {v(CM+q)}, {hex(NEG_BIG)}, {v(CM+q)}""")
    if S == 19:
        P.add(srd(S_WOA, 8, 524288) + srd(S_WOB, 14, 524288) + srd(S_OUT, 18, 2097152))
        if OPT["swap"]:
            P(f"""s_bitcmp1_b32 {s(S_RB3)}, 1
s_cselect_b32 {s(S_WOA)}, s14, s8
s_cselect_b32 {s(S_WOA+1)}, s15, s9
s_cselect_b32 {s(S_WOB)}, s8, s14
s_cselect_b32 {s(S_WOB+1)}, s9, s15""")
    if S == 20:
        P(f"""v_lshrrev_b32 v48, 3, {v(V_LANE)}
v_bfe_u32 v49, {v(V_LANE)}, 4, 1
v_lshlrev_b32 v49, 2, v49
v_and_b32 v50, 7, {v(V_LANE)}
v_xor_b32 v49, v49, v50
v_lshlrev_b32 v49, 4, v49
v_lshl_add_u32 {v(VWO)}, v48, 10, v49
v_and_b32 {v(VKF)}, 32, {v(V_LANE)}
v_lshlrev_b32 {v(VKF)}, 4, {v(VKF)}
v_min_u32 v48, 9, {v(V_LANE)}
v_mul_u32_u24 {v(V1A)}, {KVS}, v48
s_mul_i32 {s(S_MW)}, {s(S_W4)}, {KVH}
s_add_u32 {s(S_MW)}, {s(S_MW)}, {L_KV}
s_add_u32 {s(S_T0)}, {s(S_MW)}, 2048
v_add_u32 {v(V1A)}, {s(S_T0)}, {v(V1A)}
s_lshl_b32 {s(S_T0)}, {s(S_RB)}, 1
v_add_u32 v48, {s(S_T0)}, v48
v_cmp_le_u32 vcc, 8, v48
v_mov_b32 v49, {hex(ONES)}
v_cndmask_b32 {v(V1D)}, 0, v49, vcc
v_mov_b32 {v(V1D+1)}, {v(V1D)}
v_mov_b32 {v(V1D+2)}, {v(V1D)}
v_mov_b32 {v(V1D+3)}, {v(V1D)}
s_lshl_b32 {s(S_MX)}, {s(S_W4)}, 14
v_add_u32 {v(V_MB)}, {s(S_MX)}, {v(V_L16)}
v_and_b32 v48, 0xf0, {v(V_L16)}
v_lshrrev_b32 v49, 1, {v(V_L16)}
v_and_b32 v49, 0x100, v49
v_add_u32 {v(V_HB)}, v48, v49
s_cmp_eq_u32 {s(S_RB)}, 0
s_cselect_b64 {s(S_R0,2)}, {s(S_LO16,2)}, 0
s_lshl_b32 {s(S_K)}, {s(S_HEAD)}, 5
s_add_u32 {s(S_K)}, {s(S_K)}, {s(S_RB)}
s_lshl_b32 {s(S_K)}, {s(S_K)}, 6
s_add_u32 {s(S_K)}, {s(S_K)}, {WS_FKV}""")
    if S == 21:
        P(f"v_and_b32 v48, 31, {v(V_LANE)}\nv_lshlrev_b32 v48, 4, v48\nv_add_u32 v48, {L_GP}, v48")
        P.add(gate_finish([0, 1], 48, 52))
    if S == 22 and OPT["early"]:
        P(f"s_mul_i32 {s(S_T0)}, {s(S_W4)}, 6144\ns_add_u32 {s(S_T0)}, {s(S_T0)}, {L_KV}\nv_add_u32 v48, {s(S_T0)}, {v(V_L16)}")
        P.add([f"ds_read_b128 {v(KB+4*i,4)}, v48 offset:{i*1024}" for i in range(6)])
        P(f"v_mov_b32 {v(SENT)}, {hex(ONES)}")
        P.add([f"v_cndmask_b32 {v(VB+i)}, {v(VB+i)}, {v(SENT)}, {s(S_LO16,2)}" for i in range(16)])
    if S == OPT["gat"]:
        H.spoll_issue(4, S_K); H.spoll(4, S_K, ignore_from=S_RB)
        H.stamp()
if OPT["p1only"]:
    H.finish()
P(f"ds_write_b128 {v(V1A)}, {v(V1D,4)}")
S_R3, S_WB = 24, 25
def wo_dma(rsrc, tag):
    o = []
    for t in range(16):
        g = [f"s_add_u32 m0, {s(S_MX)}, {t*1024}"]
        if t & 1: g += [f"s_add_u32 {s(S_T3)}, {s(S_T3)}, 8192"]
        else: g += [f"s_add_u32 {s(S_T3)}, {s(S_R3)}, {t >> 1}", f"s_and_b32 {s(S_T3)}, {s(S_T3)}, 7",
                    f"s_lshl_b32 {s(S_T3)}, {s(S_T3)}, 14", f"s_add_u32 {s(S_T3)}, {s(S_T3)}, {s(S_WB)}"]
        o.append(g + [dma(VWO, rsrc, s(S_T3), 0, f"{tag}{t >> 1}")])
    return o
B0, B1, VOG, EXW, EXR, VOUT = 16, 17, 18, 20, 23, 19
ACC3, OF, WBF, WOA = 32, 96, 176, 192
P(f"""s_lshl_b32 {s(S_R3)}, {s(S_RB3)}, 1
s_add_u32 {s(S_R3)}, {s(S_R3)}, {s(S_CB)}
s_and_b32 {s(S_R3)}, {s(S_R3)}, {7 if OPT["rot3"] else 0}
s_lshl_b32 {s(S_WB)}, {s(S_W4)}, 17
s_lshl_b32 {s(S_T1)}, {s(S_CB)}, 7
s_add_u32 {s(S_WB)}, {s(S_WB)}, {s(S_T1)}
""")
woa, wob = wo_dma(S_WOA, "woa"), wo_dma(S_WOB, "wob")
fs = lambda: H.stamp() if OPT["fine"] == 4 else None
P(f"s_setprio {OPT['bprio']}")
P("s_barrier")
fs()
P.add([f"ds_read_b128 {v(QB+4*i,4)}, {v(V_MB)} offset:{i*1024}" for i in ((1, 0) if OPT["early"] else (1, 2, 3, 0, 4, 5, 6, 7))])
P.add(WaitLds())
emit_gather(0, (1, 0, 2, 3, 4, 5, 6, 7))
P.add(b_scores(1))
if not OPT["early"]:
    P(f"v_mov_b32 {v(SENT)}, {hex(ONES)}")
    P.add([f"v_cndmask_b32 {v(VB+i)}, {v(VB+i)}, {v(SENT)}, {s(S_LO16,2)}" for i in range(16)])
P.add(b_scores(0))
P.add([f"v_cndmask_b32 {v(VBH+i)}, {v(VBH+i)}, {v(SENT)}, {s(S_LO16,2)}" for i in range(4)])
bseq = interleave(b_softmax(1), b_softmax(0)) + interleave(b_pv(1), b_pv(0))
bseq += b_pack(1) + o_store(1, 1, BPK+4, "ob") + b_pack(0) + o_store(1, 0, BPK, "ob")
P.add(bseq[:OPT["horder"]])
fs()
P.add(WaitTag("kva")); P("s_barrier")
H.stamp()
P.add(woa[:OPT["wa0"]])
P.add(bseq[OPT["horder"]:OPT["h2"]])
P.add(WaitTag("kvb")); P("s_barrier")
fs()
P.add(bseq[OPT["h2"]:])
if OPT["hdrop"]: P("s_setprio 0")
fs()
P.add(woa[OPT["wa0"]:OPT["wapre"]])
P.add(flag_store("ob", "ob"))
fs()
P.add(woa[OPT["wapre"]:])
P(f"""v_lshrrev_b32 v32, 5, {v(V_LANE)}
v_bfe_u32 v33, {v(V_LANE)}, 2, 2
v_lshl_add_u32 v32, v32, 2, v33
v_and_b32 v33, 2, v33
v_bfe_u32 v34, {v(V_LANE)}, 4, 1
v_xor_b32 v33, v33, v34
s_and_b32 {s(S_T1)}, {s(S_W4)}, 1
s_lshl_b32 {s(S_T1)}, {s(S_T1)}, 1
s_lshr_b32 {s(S_T0)}, {s(S_W4)}, 1
s_or_b32 {s(S_T1)}, {s(S_T1)}, {s(S_T0)}
v_xor_b32 v33, {s(S_T1)}, v33
v_lshlrev_b32 v33, 5, v33
v_lshl_add_u32 v32, v32, 7, v33
v_and_b32 v33, 3, {v(V_LANE)}
v_lshl_add_u32 v32, v33, 3, v32
v_add_u32 {v(B0)}, {s(S_MX)}, v32
v_xor_b32 {v(B1)}, 64, {v(B0)}""")
wo_read = lambda dst, hs: [f"ds_read_b64_tr_b16 {v(dst+4*ct+2*j,2)}, {v((B0,B1)[ct])} offset:{hs*2048+j*1024}" for ct in range(2) for j in range(2)]
P(f"""s_lshl3_add_u32 {s(S_K)}, {s(S_RB3)}, {s(S_CB)}
s_lshl2_add_u32 {s(S_K)}, {s(S_K)}, {s(S_W4)}
s_lshl_b32 {s(S_K)}, {s(S_K)}, 6
s_add_u32 {s(S_K)}, {s(S_K)}, {WS_FOB}""")
P.add(WaitTag("woa7"))
for hs in range(8): P.add(wo_read(WOA + 8*hs, hs))
P.add(WaitLds()); fs()
P.add(wob[:OPT["f2at"]]); H.spoll_issue(8, S_K); P.add(wob[OPT["f2at"]:])
fs()
def o_gather(br, tt):
    o = [f"s_lshl_b32 {s(S_T0)}, {s(S_RB3)}, 17", f"s_lshl_b32 {s(S_T1)}, {s(S_W4)}, 13", f"s_add_u32 {s(S_T0)}, {s(S_T0)}, {s(S_T1)}",
         f"s_add_u32 {s(S_T0)}, {s(S_T0)}, {WS_O + br*65536 + tt*32768}", f"v_add_u32 {v(VOG)}, {s(S_T0)}, {v(V_L16)}",
         f"s_lshl_b32 {s(S_T1)}, {s(S_R3)}, 10"]
    for hs in range(8):
        if hs: o += [f"s_add_u32 {s(S_T1)}, {s(S_T1)}, 1024", f"s_and_b32 {s(S_T1)}, {s(S_T1)}, 0x1c00"]
        o += [ws_ld(v(OF+32*tt+4*hs,4), VOG, s(S_T1))]
    return o
P(f"""s_mul_i32 {s(S_T0)}, {s(S_W4)}, 6144
s_add_u32 {s(S_T0)}, {s(S_T0)}, {L_KV}
v_add_u32 {v(EXR)}, {s(S_T0)}, {v(V_L16)}""")
for i in range(1, 4):
    P(f"s_xor_b32 {s(S_T0)}, {s(S_W4)}, {i}\ns_mul_i32 {s(S_T0)}, {s(S_T0)}, 6144\ns_add_u32 {s(S_T0)}, {s(S_T0)}, {L_KV}\nv_add_u32 {v(EXW+i-1)}, {s(S_T0)}, {v(V_L16)}")
P(f"""v_and_b32 {v(VOUT)}, 31, {v(V_LANE)}
v_lshlrev_b32 {v(VOUT)}, 10, {v(VOUT)}
v_lshrrev_b32 v0, 5, {v(V_LANE)}
v_lshl_add_u32 {v(VOUT)}, v0, 4, {v(VOUT)}
s_lshl_b32 {s(S_T3)}, {s(S_RB3)}, 16
s_lshr_b32 {s(S_T1)}, {s(S_W4)}, 1
s_lshl_b32 {s(S_T1)}, {s(S_T1)}, 5
s_add_u32 {s(S_T3)}, {s(S_T3)}, {s(S_T1)}
s_lshl_b32 {s(S_T1)}, {s(S_CB)}, 7
s_add_u32 {s(S_T3)}, {s(S_T3)}, {s(S_T1)}
s_and_b32 {s(S_T1)}, {s(S_W4)}, 1
s_lshl_b32 {s(S_T1)}, {s(S_T1)}, 6
s_add_u32 {s(S_T3)}, {s(S_T3)}, {s(S_T1)}
s_add_u32 {s(S_T2)}, {s(S_T3)}, 32768
""")
H.spoll(8, S_K)
H.stamp()
P.add(o_gather(1, 0)); P.add(o_gather(1, 1))
P(f"s_add_u32 {s(S_K)}, {s(S_K)}, {WS_FOA - WS_FOB}")
def red_writes(tt):
    keep, ex = ACC3 + 32*tt, tt * 24576
    send = {1: keep + 16, 2: keep + 8, 3: keep + 24}
    return [f"ds_write_b128 {v(EXW+i-1)}, {v(send[i]+4*q,4)} offset:{ex+(i-1)*2048+q*1024}" for i in (2, 1, 3) for q in range(2)]
def red_reads(tt, tmp):
    return [f"ds_read_b128 {v(tmp+8*i+4*q,4)}, {v(EXR)} offset:{tt*24576+i*2048+q*1024}" for q in range(2) for i in range(3)]
def red_finish(tt, tmp):
    keep, o = ACC3 + 32*tt, []
    for q in range(2):
        for i in range(3):
            o += [f"v_pk_add_f32 {v(keep+4*q+2*k,2)}, {v(keep+4*q+2*k,2)}, {v(tmp+8*i+4*q+2*k,2)}" for k in range(2)]
        o += [f"v_cvt_pk_bf16_f32 {v(tmp+24+2*q+k)}, {v(keep+4*q+2*k)}, {v(keep+4*q+2*k+1)}" for k in range(2)]
    o += [f"v_permlane32_swap_b32 {v(tmp+24)}, {v(tmp+26)}", f"v_permlane32_swap_b32 {v(tmp+25)}, {v(tmp+27)}",
          f"buffer_store_dwordx4 {v(tmp+24,4)}, {v(VOUT)}, {s(S_OUT,4)}, {s((S_T3, S_T2)[tt])} offen{('', ' sc1', ' nt', ' sc0 sc1')[OPT['outsc']]}"]
    return o
def p3(R, swapped):
    P, w0 = R.P, red_writes(0)
    for br in (1, 0):
        lds = br != swapped
        if lds: P.add(WaitTag("wob7")); P.add(wo_read(WBF, 0))
        for tt in range(2):
            for hs in range(8):
                b = hs & 1
                if (br, tt, hs) == (1, 0, OPT["f3at"]): R.spoll_issue(8, S_K)
                rd = wo_read(WBF + 8*(1-b), (hs + 1) & 7) if lds and (tt, hs) != (1, 7) else []
                for ct in range(2):
                    acc = v(ACC3+32*tt+16*ct, 16)
                    P(mfma(acc, v((WBF+8*b if lds else WOA+8*hs)+4*ct, 4), v(OF+32*tt+4*hs,4), "0" if br and hs == 0 else acc))
                    P.add(rd[2*ct:2*ct+2])
                if (br, tt) == (0, 1) and hs >= 1: P.add(w0[hs-1:hs])
            if br:
                if tt == 0: R.spoll(8, S_K)
                P.add(o_gather(0, tt))
        if br:
            R.stamp()
            P("s_barrier")
swap_txt = ""
if OPT["swap"]:
    P(f"s_bitcmp1_b32 {s(S_RB3)}, 1\ns_cbranch_scc1 L_p3swap")
    W = Role("W"); W.P.items = [x for x in P.items if getattr(x, "kind", "") in ("vld", "dma", "vst")][-40:]
    W.ns = H.ns; W.P("L_p3swap:"); p3(W, 1); W.P("s_branch L_p3done")
    swap_txt = finalize(W.P); swap_txt = swap_txt[swap_txt.index("L_p3swap:"):]
p3(H, 0)
P("L_p3done:\ns_nop 1")
H.stamp()
P.add(red_writes(1)); P.add(WaitLds()); P("s_barrier")
P.add(red_reads(0, OF)); P.add(red_reads(1, OF + 32))
P.add(red_finish(0, OF)); P.add(red_finish(1, OF + 32))
H.stamp()
H.finish()

C = Role("C"); P = C.P
T1, T3, T2 = 32, 64, 96
XB, WB = 128, 152
V_AX, V_T1L, V_T1H, V_T3L, V_T3H, V_T2L, V_T2H = 176, 180, 181, 182, 183, 184, 185
V_LO, V_HI, V_GPR, V_QW = 186, 187, 188, 189
CMA, KB, VPK, QB = 192, 240, 224, 248
r5, hh, rr, cc, nh, u0, u1, cm = 128, 129, 130, 131, 132, 133, 134, 135
P("L_crole:")
P.add(late_ids)
if OPT["prio"]: P("s_setprio 1")
P(f"""
v_and_b32 {v(r5)}, 31, {v(V_LANE)}
v_lshrrev_b32 {v(hh)}, 5, {v(V_LANE)}
v_bfe_u32 {v(u0)}, {v(r5)}, 1, 3
v_xor_b32 {v(u0)}, {v(u0)}, {v(hh)}
v_lshlrev_b32 {v(u0)}, 4, {v(u0)}
v_lshl_add_u32 {v(u0)}, {v(r5)}, 7, {v(u0)}
v_add_u32 {v(V_AX)}, {L_X}, {v(u0)}
v_xor_b32 {v(V_AX+1)}, 32, {v(V_AX)}
v_xor_b32 {v(V_AX+2)}, 64, {v(V_AX)}
v_xor_b32 {v(V_AX+3)}, 0x60, {v(V_AX)}
v_bfe_u32 {v(rr)}, {v(V_LANE)}, 2, 2
v_and_b32 {v(cc)}, 3, {v(V_LANE)}
v_bfe_u32 {v(nh)}, {v(V_LANE)}, 4, 1
v_lshl_add_u32 {v(u0)}, {v(hh)}, 3, {v(rr)}
v_xor_b32 {v(u1)}, {s(S_W4)}, {v(rr)}
v_lshlrev_b32 {v(u1)}, 5, {v(u1)}
v_lshl_add_u32 {v(u1)}, {v(cc)}, 3, {v(u1)}
v_lshl_add_u32 {v(u1)}, {v(u0)}, 8, {v(u1)}
v_mul_u32_u24 {v(V_T1L)}, 0x2080, {v(nh)}
v_add_u32 {v(V_T1L)}, {v(V_T1L)}, {v(u1)}
v_add_u32 {v(V_T1H)}, 0x10000, {v(V_T1L)}
v_xor_b32 {v(V_T3L)}, 0x80, {v(V_T1L)}
v_xor_b32 {v(V_T3H)}, 0x80, {v(V_T1H)}
v_lshrrev_b32 {v(u1)}, 1, {v(rr)}
v_lshl_add_u32 {v(u1)}, {v(nh)}, 1, {v(u1)}
v_xor_b32 {v(u1)}, {s(S_W4)}, {v(u1)}
v_lshlrev_b32 {v(u1)}, 5, {v(u1)}
v_lshl_add_u32 {v(u1)}, {v(cc)}, 3, {v(u1)}
v_lshl_add_u32 {v(u1)}, {v(u0)}, 7, {v(u1)}
v_lshl_add_u32 {v(V_T2L)}, {v(nh)}, 13, {v(u1)}
v_add_u32 {v(V_T2H)}, 0x10000, {v(V_T2L)}
v_and_b32 {v(u0)}, 15, {v(V_LANE)}
v_lshlrev_b32 {v(u0)}, 4, {v(u0)}
v_lshl_add_u32 {v(u0)}, {v(hh)}, 8, {v(u0)}
v_lshl_add_u32 {v(V_LO)}, {v(nh)}, 31, {v(u0)}
v_xor_b32 {v(V_HI)}, {OOB}, {v(V_LO)}
v_lshlrev_b32 {v(V_GPR)}, 4, {v(r5)}
v_add_u32 {v(V_GPR)}, {L_GP}, {v(V_GPR)}
s_lshl_b32 {s(S_T2)}, {s(S_W4)}, 14
v_add_u32 {v(V_QW)}, {s(S_T2)}, {v(V_L16)}
v_lshlrev_b32 {v(u0)}, 2, {v(hh)}
v_sub_u32 {v(cm)}, {v(r5)}, {v(u0)}
s_waitcnt lgkmcnt(0)""")
P.add(entry_stamp())
P(f"""s_memrealtime {s(S_TM,2)}
s_mov_b32 {s(S_C)}, {fhex(QK_SCALE)}
s_mov_b32 {s(S_C+1)}, {fhex(QK_SCALE)}
""")
def l2_prefetch():
    a, b = 140, 141
    o = lines(f"""s_lshr_b32 {s(S_T0)}, s2, 3
s_and_b32 {s(S_T1)}, {s(S_HG)}, 4
s_lshl_b32 {s(S_T1)}, {s(S_T1)}, 7
v_and_b32 {v(a)}, 3, {v(V_LANE)}
v_lshlrev_b32 {v(a)}, 7, {v(a)}
s_cmp_eq_u32 {s(S_W4)}, 2
s_cbranch_scc1 L_pfx
s_cmp_eq_u32 {s(S_W4)}, 3
s_cbranch_scc1 L_pfq
s_cmp_eq_u32 {s(S_W4)}, 0
s_cselect_b32 {s(S_W)}, s6, s12
s_cselect_b32 {s(S_W+1)}, s7, s13
s_mov_b32 {s(S_W+2)}, 1572864
s_mov_b32 {s(S_W+3)}, 0x20000
v_bfe_u32 {v(b)}, {v(V_LANE)}, 2, 1
v_lshl_add_u32 {v(a)}, {v(b)}, 10, {v(a)}
v_lshrrev_b32 {v(b)}, 3, {v(V_LANE)}
v_mul_u32_u24 {v(b)}, 0xc00, {v(b)}
v_add_u32 {v(a)}, {v(a)}, {v(b)}
s_mul_i32 {s(S_T0)}, {s(S_T0)}, {8*3072}
s_add_u32 {s(S_T0)}, {s(S_T0)}, {s(S_T1)}
s_add_u32 {s(S_T0)}, {s(S_T0)}, 1024
buffer_load_dword v190, {v(a)}, {s(S_W,4)}, {s(S_T0)} offen
s_add_u32 {s(S_T0)}, {s(S_T0)}, {256*3072}
buffer_load_dword v191, {v(a)}, {s(S_W,4)}, {s(S_T0)} offen
s_branch L_pfe
L_pfx:
s_mov_b32 {s(S_W)}, s4
s_mov_b32 {s(S_W+1)}, s5
s_mov_b32 {s(S_W+2)}, 2097152
s_mov_b32 {s(S_W+3)}, 0x20000
v_lshrrev_b32 {v(b)}, 2, {v(V_LANE)}
v_lshl_add_u32 {v(a)}, {v(b)}, 10, {v(a)}
s_lshl_b32 {s(S_T0)}, {s(S_T0)}, 14
s_and_b32 {s(S_T1)}, {s(S_RB)}, 24
s_lshl_b32 {s(S_T1)}, {s(S_T1)}, 16
s_add_u32 {s(S_T0)}, {s(S_T0)}, {s(S_T1)}
buffer_load_dword v190, {v(a)}, {s(S_W,4)}, {s(S_T0)} offen
buffer_load_dword v191, {v(a)}, {s(S_W,4)}, {s(S_T0)} offen offset:512
s_branch L_pfe
L_pfq:
s_mov_b32 {s(S_W)}, s6
s_mov_b32 {s(S_W+1)}, s7
s_mov_b32 {s(S_W+2)}, 1572864
s_mov_b32 {s(S_W+3)}, 0x20000
v_lshrrev_b32 {v(b)}, 2, {v(V_LANE)}
v_mul_u32_u24 {v(b)}, 0xc00, {v(b)}
v_add_u32 {v(a)}, {v(a)}, {v(b)}
s_mul_i32 {s(S_T0)}, {s(S_T0)}, {16*3072}
s_add_u32 {s(S_T0)}, {s(S_T0)}, {s(S_T1)}
buffer_load_dword v190, {v(a)}, {s(S_W,4)}, {s(S_T0)} offen
s_mov_b32 {s(S_W)}, s12
s_mov_b32 {s(S_W+1)}, s13
buffer_load_dword v191, {v(a)}, {s(S_W,4)}, {s(S_T0)} offen
L_pfe:""")
    P.add(Raw("\n".join(("" if l.endswith(":") else "    ") + l for l in o)))
    P("s_nop 0")
if OPT["pf"] == 1: l2_prefetch()
P.add(srd(S_WS, 22, WS_SIZE) + srd(S_DBG, 20, 256))
P(f"""s_cmp_eq_u32 s2, 0
s_cselect_b32 {s(S_T2)}, 0, {OOB}
v_lshlrev_b32 v5, 8, v0
v_or_b32 v5, {s(S_T2)}, v5
s_waitcnt lgkmcnt(0)
v_mov_b32 {v(EP)}, {s(S_TM)}
v_mov_b32 {v(EP+1)}, {s(S_TM+1)}
buffer_store_dwordx2 {v(EP,2)}, v5, {s(S_DBG,4)}, 0 offen sc1""")
P.add(attn_setup(0, 136))
P(f"v_mov_b32 {v(u0)}, {hex(NEG_BIG)}")
P.add([f"v_cndmask_b32 {v(CMA+q)}, {v(u0)}, 0, {s(S_MASK+2*q,2)}" for q in range(16)])
C.stamp()

def frag_reads(n):
    b, m = n % 3, n & 31
    j, ux = m >> 2, m & 3
    base = (stage_of(n) % NSLOT) * SLOT
    hi = base >= 65536; off = base - (65536 if hi else 0)
    x = [f"ds_read_b128 {v(XB+8*b+4*tt,4)}, {v(V_AX+ux)} offset:{j*8192+tt*4096}" for tt in range(2)]
    if n < 32:
        w = [f"ds_read_b64_tr_b16 {v(WB+8*b+4*t+2*qd,2)}, {v(((V_T1L,V_T1H),(V_T3L,V_T3H))[t][hi])} offset:{off+(n&1)*4096+qd*1024}"
             for t in range(2) for qd in range(2)]
        return [w[0], x[0], w[1], w[2], x[1], w[3]]
    w = [f"ds_read_b64_tr_b16 {v(WB+8*b+2*qd,2)}, {v((V_T2L,V_T2H)[hi])} offset:{off+ux*2048+qd*512}" for qd in range(2)]
    return [w[0], x[0], w[1], x[1]]
def step_mfmas(n):
    b = n % 3
    x = lambda tt: v(XB+8*b+4*tt, 4)
    c = lambda r: "0" if n in (0, 32) else v(r, 16)
    if n < 32:
        return [mfma(v(T1,16), v(WB+8*b,4), x(0), c(T1)), mfma(v(T3,16), x(0), v(WB+8*b+4,4), c(T3)),
                mfma(v(T1+16,16), v(WB+8*b,4), x(1), c(T1+16)), mfma(v(T3+16,16), x(1), v(WB+8*b+4,4), c(T3+16))]
    return [mfma(v(T2,16), v(WB+8*b,4), x(0), c(T2)), mfma(v(T2+16,16), v(WB+8*b,4), x(1), c(T2+16))]
def kv_publish():
    o = [f"s_lshl_b32 {s(S_T0)}, {s(S_HEAD)}, 17", f"s_lshl_b32 {s(S_T1)}, {s(S_RB)}, 12", f"s_add_u32 {s(S_T0)}, {s(S_T0)}, {s(S_T1)}"]
    for tt in range(2):
        o += [f"v_pk_mul_f32 {v(T1+16*tt+2*i,2)}, {v(T1+16*tt+2*i,2)}, {s(S_C,2)}" for i in range(4)]
        o += [f"v_cvt_pk_bf16_f32 {v(KA+4*tt+i)}, {v(T1+16*tt+2*i)}, {v(T1+16*tt+2*i+1)}" for i in range(4)]
        o += [ws_st(v(KA+4*tt,4), V_L16, s(S_T0), tt*2048, "kv")]
    for tt in range(2):
        for m in range(2):
            o += [f"v_cvt_pk_bf16_f32 {v(VPK+8*tt+4*m+i)}, {v(T3+16*tt+8*m+2*i)}, {v(T3+16*tt+8*m+2*i+1)}" for i in range(4)]
            o += [ws_st(v(VPK+8*tt+4*m,4), V_LO, s(S_T0), tt*2048+1024+m*512, "kv")]
    o += [f"s_lshl_b32 {s(S_T0)}, {s(S_HEAD)}, 15", f"s_lshl_b32 {s(S_T1)}, {s(S_RB)}, 10",
          f"s_add_u32 {s(S_T0)}, {s(S_T0)}, {s(S_T1)}", f"s_add_u32 {s(S_T0)}, {s(S_T0)}, {WS_HB}",
          ws_st(v(VPK+12,4), V_HI, s(S_T0), 512, "kv")]
    for tt in (1, 0):
        o += [f"v_pk_mul_f32 {v(T1+16*tt+8+2*i,2)}, {v(T1+16*tt+8+2*i,2)}, {s(S_C,2)}" for i in range(4)]
        o += [f"v_cvt_pk_bf16_f32 {v(KB+4*tt+i)}, {v(T1+16*tt+8+2*i)}, {v(T1+16*tt+8+2*i+1)}" for i in range(4)]
        if tt == 1: o += [ws_st(v(KB+4,4), V_HI, s(S_T0), 0, "kv")]
    return o

if OPT["p1only"]:
    P("s_barrier\n" * 25 + "s_endpgm")
P("s_barrier")
C.stamp()
P.add(frag_reads(0)); P.add(frag_reads(1))
queue = []
for n in range(64):
    mf = step_mfmas(n)
    sync = first_of_stage(n + 2) or n == 62
    rd = frag_reads(n + 2) if n < 62 else []
    if n == 20: queue += [ep_load]
    if n == 32:
        pub = kv_publish()
        isst = lambda x: (isinstance(x, Ins) and x.kind == "vst") or (isinstance(x, str) and x.startswith("s_"))
        late_st = [x for x in pub if isst(x)] if OPT["pubat"] > 32 else []
        queue += [x for x in pub if not (late_st and isst(x))]
    if n == OPT["pubat"] and n > 32: queue = late_st + queue
    if n == 54: queue += gate_finish([0, 1], V_GPR, T3)
    if OPT["early"]:
        if n == 47:
            queue += [f"s_mul_i32 {s(S_T0)}, {s(S_W4)}, 6144", f"s_add_u32 {s(S_T0)}, {s(S_T0)}, {L_KV}", f"v_add_u32 v190, {s(S_T0)}, {v(V_L16)}"]
        if 48 <= n < 54:
            queue += [f"ds_write_b128 v190, {v((KB, KB+4, VPK, VPK+4, VPK+8, VPK+12)[n-48],4)} offset:{(n-48)*1024}"]
        if n == 58:
            queue += [f"v_mov_b32 {v(TMP)}, {hex(ONES)}"]
            queue += [f"v_cndmask_b32 {v(VA+i)}, {v(TMP)}, {v(VPK+i)}, {s(S_LO16,2)}" for i in range(16)]
    else:
        if n == 62:
            queue += [f"ds_write_b128 {v(V_QW)}, {v(VPK+4*i,4)} offset:{4096+i*1024}" for i in range(4)]
        if n == 63:
            queue += [f"ds_write_b128 {v(V_QW)}, {v(KB+4*i,4)} offset:{2048+i*1024}" for i in range(2)]
    take = OPT["take"] if n >= 32 else 1
    if n >= 46: take = 6
    side = queue[:take]; queue = queue[take:]
    P(mf[0])
    if sync:
        P.add(WaitLds()); P("s_barrier")
        if OPT["fine"] in (1, 2, 3): C.stamp()
    if n < 32:
        P.add(rd[0:2]); P(mf[1]); P.add(rd[2:4]); P(mf[2]); P.add(rd[4:6]); P(mf[3]); P.add(side)
    else:
        P.add(rd[0:2]); P.add(side[:take//2]); P(mf[1]); P.add(rd[2:4]); P.add(side[take//2:])
    if n == 31: C.stamp()
    if n == OPT["kvflag"]:
        C.poll(f"v_cmp_ne_u64 vcc, 0, {v(EP,2)}", ep_load)
        P.add(flag_store("kv", "kv"))
        C.stamp()
assert not queue
C.stamp()
for tt in range(2):
    P.add([f"v_cvt_pk_bf16_f32 {v(QB+4*tt+i)}, {v(T2+16*tt+8+2*i)}, {v(T2+16*tt+8+2*i+1)}" for i in range(4)])
    P(f"ds_write_b128 {v(V_QW)}, {v(QB+4*tt,4)} offset:{tt*1024}")
P.add([f"v_cvt_pk_bf16_f32 {v(QA1+i)}, {v(T2+16+2*i)}, {v(T2+16+2*i+1)}" for i in range(4)])
P.add([f"v_cvt_pk_bf16_f32 {v(QA+i)}, {v(T2+2*i)}, {v(T2+2*i+1)}" for i in range(4)])
P(mfma(v(MG+16,16), v(KA+4,4), v(QA1,4), v(CMA,16))); P(mfma(v(MG,16), v(KA,4), v(QA,4), v(CMA,16)))
P(f"v_mov_b32 {v(TMP)}, {hex(ONES)}")
P.add(WaitLds()); P("s_barrier")
if not OPT["early"]: P.add([f"v_cndmask_b32 {v(VA+i)}, {v(TMP)}, {v(VPK+i)}, {s(S_LO16,2)}" for i in range(16)])
window_attention(C)
P.add(interleave(*[o_pack(OACC+16*t, 0, 8, [f"v_mul_f32 {v(TMP+t)}, {v(TMP+t)}, {v(G0+t)}"], PF+4*t, TMP+t) for t in range(2)]))
P.add(o_store(0, 0, PF, "oa")); P.add(o_store(0, 1, PF+4, "oa"))
P.add(flag_store("oa", "oa"))
C.stamp()
C.finish()

full = Prog(); full.items = E.items + H.P.items
bodyH = finalize(full, verbose=True)
full = Prog(); full.items = [Ins("s_load_dwordx16 s[4:19], s[0:1], 0"), Ins("global_load_dword v13, v5, s[96:97]")] + C.P.items
bodyC = "\n".join(finalize(full, verbose=True).split("\n")[2:])
print("stamps H", H.ns, "C", C.ns)
hdr = open("cdna_kernels/%s.s.ref" % NAME).read().split("; Override launch")[0]
if OPT["stamps"]: hdr += f"; stamps {C.ns} {H.ns}\n"
txt = hdr + f"""; One launch: 256 workgroups (4 heads x 64 rows each), 8 waves, hand-offs through d_ws tagged with a per-launch epoch.
; @launch grid=(256,1,1) block=(512,1,1) lds={LDS_BYTES}
.amdgcn_target "amdgcn-amd-amdhsa--gfx950"
.text
.globl {NAME}_kernel
.p2align 12
.p2align 8
.type {NAME}_kernel,@function
{NAME}_kernel:
{bodyH}{bodyC}L_end:
    s_endpgm
{swap_txt}{''.join(special_txt)}{exact_attention(0)}{exact_attention(1)}    .fill 3072, 4, 0xbf800000
.section .rodata,"a"
.p2align 6
.amdhsa_kernel {NAME}_kernel
  .amdhsa_next_free_vgpr 256
  .amdhsa_next_free_sgpr 102
  .amdhsa_accum_offset 256
  .amdhsa_group_segment_fixed_size 0
  .amdhsa_kernarg_size 80
  .amdhsa_user_sgpr_count 2
  .amdhsa_user_sgpr_kernarg_segment_ptr 1
  .amdhsa_system_sgpr_workgroup_id_x 1
.end_amdhsa_kernel
"""
open(sys.argv[1], "w").write(txt)
```

```python
import sys, math, struct
from asmdsl import Prog, Ins, WaitTag, WaitLds, Raw, finalize

NAME = "gated_mix__sliding_block__sliding_local_dilated__prompt"
OPT = dict(xat=10, p3prio=0, h1=60, t2at=40, weave=8, wbmid=3, f3step=12, wopf=1, tlb=1, icpf=1, cpf=0, take=30, kvflag=42, pubat=32, prio=1, bprio=2,
           xmap=3, rotmode=4, rotmask=7, outsc=0, stamps=0, fine=0, amp=-1, ampk=8, amprole=1, ampclk=0, p1only=0, pf=0)
for a in sys.argv[2:]:
    k, v_ = a.split("="); assert k in OPT, k; OPT[k] = int(v_)

WS_KV, WS_HB, WS_O = 0, 4 << 20, 5 << 20
WS_FKV, WS_FOB, WS_FOA = 9 << 20, (9 << 20) + 65536, (9 << 20) + 131072
WS_STAMP, WS_SIZE = 10 << 20, 64 << 20
OOB = 0x80000000
NSLOT, SLOT = 5, 16384
L_X, L_WA, L_G, L_GP, LDS_BYTES = 81920, 131584, 156160, 157184, 158208
KVH, KVS, L_KV, L_WO = 2064, 4 * 2064, 65536, 0
QK_SCALE = 0.25 * math.log2(math.e)
NEG_BIG, ONES = 0xf149f2ca, 0x3f803f80

def fhex(x): return "0x%08x" % struct.unpack("<I", struct.pack("<f", x))[0]
def v(a, n=1): return f"v{a}" if n == 1 else f"v[{a}:{a+n-1}]"
def s(a, n=1): return f"s{a}" if n == 1 else f"s[{a}:{a+n-1}]"
def lines(t): return [l.strip() for l in t.strip().split("\n") if l.strip()]
def mfma(d, a, b, c): return f"v_mfma_f32_32x32x16_bf16 {d}, {a}, {b}, {c}"
def srd(base, ptr, nbytes):
    return [f"s_mov_b32 {s(base)}, {s(ptr)}", f"s_mov_b32 {s(base+1)}, {s(ptr+1)}",
            f"s_mov_b32 {s(base+2)}, {nbytes}", f"s_mov_b32 {s(base+3)}, 0x20000"]
def interleave(*ls):
    o, ls = [], [list(l) for l in ls]
    while any(ls):
        for l in ls:
            if l: o.append(l.pop(0))
    return o

S_X, S_W, S_WS, S_WOA, S_WOB, S_OUT, S_DBG, S_G = 24, 28, 32, 36, 40, 44, 48, 36
S_W4, S_HG, S_RB, S_ROT, S_HEAD, S_RB3, S_CB = 52, 53, 54, 55, 56, 57, 58
S_K, S_T0, S_MW, S_MX, S_T1 = 59, 60, 61, 62, 63
S_MASK, S_T2, S_T3, S_LO16, S_TM, S_C, S_SPIN, S_EP = 64, 96, 97, 98, 100, 10, 3, 26
V_LANE, V_L16, V_STAMP, V_FOFF = 1, 2, 3, 4
EP, FLG = 6, 8
V_AK, V_AV0, V_AV1 = 10, 11, 12
G0 = 14
PM, QA = 16, 24
TMP = 28
SB, NEGM, MG, PB, PF, KF, OACC, VF = 32, 64, 96, 128, 144, 152, 160, 192
KA, QA1, VA = 208, 216, 224

class Role:
    def __init__(self, name):
        self.P, self.name, self.ns, self.nl = Prog(), name, 0, 0
    def stamp(self):
        P = self.P
        if OPT["amp"] == self.ns and OPT["amprole"] == (self.name == "H"):
            P.add(WaitLds())
            P(f"{'s_memtime' if OPT['ampclk'] else 's_memrealtime'} {s(S_TM,2)}\ns_waitcnt lgkmcnt(0)\nv_writelane_b32 {v(V_STAMP)}, {s(S_TM)}, 1")
        if OPT["stamps"]:
            P.add(WaitLds())
            P(f"s_memtime {s(S_TM,2)}\ns_waitcnt lgkmcnt(0)\nv_writelane_b32 {v(V_STAMP)}, {s(S_TM)}, {self.ns + 1}")
        self.ns += 1
    def poll(self, cmp_txt, reload_txt):
        P, n = self.P, f"{self.name}{self.nl}"; self.nl += 1
        P(f"s_mov_b32 {s(S_SPIN)}, 0x40000"); P(cmp_txt)
        P(f"s_cmp_eq_u64 vcc, -1\ns_cbranch_scc1 L_pok{n}")
        P.add(Raw(f"""L_pspin{n}:
    {reload_txt}
    s_sub_u32 {s(S_SPIN)}, {s(S_SPIN)}, 1
    s_cbranch_scc1 L_pok{n}
    s_waitcnt vmcnt(0)
    {cmp_txt}
    s_nop 2
    s_cmp_eq_u64 vcc, -1
    s_cbranch_scc0 L_pspin{n}
L_pok{n}:"""))
    def spoll_issue(self, n, off):
        self.P(f"s_load_dwordx{2*n} {s(4,2*n)}, s[22:23], {s(off)} glc")
    def spoll(self, n, off, ignore_from=None):
        P, lb = self.P, f"{self.name}{self.nl}"; self.nl += 1
        P.add(WaitLds())
        t = f"    s_mov_b32 {s(S_SPIN)}, 0x40000\nL_sp{lb}:\n"
        for i in range(n - 1):
            if ignore_from is not None:
                t += f"    s_cmp_lt_u32 {s(ignore_from)}, {n - i}\n    s_cselect_b64 {s(4+2*i,2)}, {s(S_EP,2)}, {s(4+2*i,2)}\n"
        for i in range(n):
            t += f"    s_xor_b64 {s(4+2*i,2)}, {s(4+2*i,2)}, {s(S_EP,2)}\n"
            if i: t += f"    s_or_b64 s[4:5], s[4:5], {s(4+2*i,2)}\n"
        t += (f"    s_cmp_eq_u64 s[4:5], 0\n    s_cbranch_scc1 L_spok{lb}\n"
              f"    s_load_dwordx{2*n} {s(4,2*n)}, s[22:23], {s(off)} glc\n"
              f"    s_sub_u32 {s(S_SPIN)}, {s(S_SPIN)}, 1\n    s_waitcnt lgkmcnt(0)\n    s_cbranch_scc0 L_sp{lb}\nL_spok{lb}:")
        P.add(Raw(t))
    def finish(self):
        P = self.P
        if OPT["stamps"]:
            P(f"s_memrealtime {s(S_TM,2)}\ns_waitcnt lgkmcnt(0) vmcnt(0)\nv_writelane_b32 {v(V_STAMP)}, {s(S_TM)}, 63")
            P(f"""s_lshl_b32 {s(S_T0)}, s2, 3
s_add_u32 {s(S_T0)}, {s(S_T0)}, {s(S_W4)}
s_add_u32 {s(S_T0)}, {s(S_T0)}, {4 if self.name == "H" else 0}
s_lshl_b32 {s(S_T0)}, {s(S_T0)}, 8
s_add_u32 {s(S_T0)}, {s(S_T0)}, {WS_STAMP}
v_lshlrev_b32 v0, 2, {v(V_LANE)}
buffer_store_dword {v(V_STAMP)}, v0, {s(S_WS,4)}, {s(S_T0)} offen""")
        if OPT["amp"] >= 0 and OPT["amprole"] == (self.name == "H"):
            P(f"""s_cmp_lg_u32 s2, 100
s_cbranch_scc1 L_end
v_readlane_b32 {s(S_T0)}, {v(V_STAMP)}, 0
v_readlane_b32 {s(S_T1)}, {v(V_STAMP)}, 1
s_memrealtime {s(S_TM,2)}
s_sub_u32 {s(S_T1)}, {s(S_T1)}, {s(S_T0)}
s_mul_i32 {s(S_T1)}, {s(S_T1)}, {OPT["ampk"]}
s_lshr_b32 {s(S_T1)}, {s(S_T1)}, {4 if OPT["ampclk"] else 0}
s_min_u32 {s(S_T1)}, {s(S_T1)}, 100000
s_waitcnt lgkmcnt(0)
s_mov_b32 {s(S_T0)}, {s(S_TM)}""")
            P.add(Raw(f"""L_amp{self.name}:
    s_memrealtime {s(S_TM,2)}
    s_waitcnt lgkmcnt(0)
    s_sub_u32 {s(S_K)}, {s(S_TM)}, {s(S_T0)}
    s_cmp_lt_u32 {s(S_K)}, {s(S_T1)}
    s_cbranch_scc1 L_amp{self.name}"""))
        P("s_endpgm")

ws_ld = lambda dst, voff, soff, imm=0, tag=None: Ins(
    f"buffer_load_dwordx4 {dst}, {v(voff)}, {s(S_WS,4)}, {soff} offen{' offset:%d' % imm if imm else ''} sc1", tag)
ws_st = lambda src, voff, soff, imm=0, tag=None: Ins(
    f"buffer_store_dwordx4 {src}, {v(voff)}, {s(S_WS,4)}, {soff} offen{' offset:%d' % imm if imm else ''} sc1", tag)
ep_load = f"buffer_load_dwordx2 {v(EP,2)}, off, {s(S_DBG,4)}, 0 sc1"
flag_load = f"buffer_load_dwordx2 {v(FLG,2)}, {v(V_FOFF)}, {s(S_WS,4)}, {s(S_K)} offen sc1"
flag_cmp = f"v_cmp_eq_u64 vcc, {v(FLG,2)}, {v(EP,2)}"
def flag_store(data_tag, kind):
    if kind == "kv":
        o = lines(f"""v_mul_u32_u24 v0, 56, {v(V_LANE)}
v_add_u32 v0, 88, v0
s_sub_u32 {s(S_T1)}, 31, {s(S_RB)}
s_min_u32 {s(S_T1)}, {s(S_T1)}, 4
v_cmp_gt_u32 vcc, {s(S_T1)}, {v(V_LANE)}
s_cmp_eq_u32 {s(S_RB)}, 0
s_cselect_b32 {s(S_T1)}, 24, {OOB}
v_mov_b32 v5, {s(S_T1)}
v_cndmask_b32 v0, v5, v0, vcc
s_lshl_b32 {s(S_T0)}, {s(S_HEAD)}, 5
s_add_u32 {s(S_T0)}, {s(S_T0)}, {s(S_RB)}
s_lshl_b32 {s(S_T0)}, {s(S_T0)}, 6
s_add_u32 {s(S_T0)}, {s(S_T0)}, {WS_FKV}""")
    else:
        o = lines(f"""v_lshlrev_b32 v0, 8, {v(V_LANE)}
v_cmp_gt_u32 vcc, 8, {v(V_LANE)}
v_mov_b32 v5, {OOB}
v_cndmask_b32 v0, v5, v0, vcc
s_lshl_b32 {s(S_T0)}, {s(S_RB)}, 8
s_add_u32 {s(S_T0)}, {s(S_T0)}, {s(S_HEAD)}
s_lshl_b32 {s(S_T0)}, {s(S_T0)}, 3
s_add_u32 {s(S_T0)}, {s(S_T0)}, { {"ob": WS_FOB, "oa0": WS_FOA, "oa1": WS_FOA + 65536}[kind] }""")
    return o + [WaitTag(data_tag), Ins(f"buffer_store_dwordx2 {v(EP,2)}, v0, {s(S_WS,4)}, {s(S_T0)} offen sc1", "flag")]

def max_tree(dst, regs, init=False):
    regs, o = list(regs), []
    if not init:
        o.append(f"v_max3_f32 {v(dst)}, {v(regs[0])}, {v(regs[1])}, {v(regs[2])}"); regs = regs[3:]
    while len(regs) >= 2:
        o.append(f"v_max3_f32 {v(dst)}, {v(dst)}, {v(regs[0])}, {v(regs[1])}"); regs = regs[2:]
    if regs: o.append(f"v_max_f32 {v(dst)}, {v(dst)}, {v(regs[0])}")
    return o
def cross_max(m, t):
    return [f"v_mov_b32 {v(t)}, {v(m)}", f"v_permlane32_swap_b32 {v(m)}, {v(t)}", f"v_max_f32 {v(m)}, {v(m)}, {v(t)}"]

def attn_setup(t, tmp):
    r5, hh, cm, u = tmp, tmp + 1, tmp + 2, tmp + 3
    o = lines(f"""v_and_b32 {v(r5)}, 31, {v(V_LANE)}
v_lshrrev_b32 {v(hh)}, 5, {v(V_LANE)}
v_lshlrev_b32 {v(u)}, 2, {v(hh)}
v_sub_u32 {v(cm)}, {v(r5)}, {v(u)}
s_mul_i32 {s(S_T2)}, {s(S_W4)}, {KVH}
s_add_u32 {s(S_T2)}, {s(S_T2)}, {L_KV + t*KVS}
v_add_u32 {v(V_AK)}, {s(S_T2)}, {v(V_L16)}
v_and_b32 {v(u)}, 15, {v(V_LANE)}
v_lshlrev_b32 {v(u)}, 4, {v(u)}
v_lshl_add_u32 {v(u)}, {v(hh)}, 8, {v(u)}
v_mov_b32 {v(hh)}, 0x400
v_cndmask_b32 {v(V_AV0)}, {v(hh)}, {v(u)}, {s(S_LO16,2)}
v_mov_b32 {v(hh)}, 0x200
v_cndmask_b32 {v(V_AV1)}, {v(hh)}, {v(u)}, {s(S_LO16,2)}
v_add_u32 {v(V_AV0)}, {s(S_T2)}, {v(V_AV0)}
v_add_u32 {v(V_AV1)}, {s(S_T2)}, {v(V_AV1)}
v_mov_b32 {v(u)}, 0xffff""")
    o += [f"v_cmp_le_i32 {s(S_MASK+2*q,2)}, {8*(q>>2)+(q&3)}, {v(cm)}" for q in range(16)]
    o += [f"v_cndmask_b32 {v(PM+pq)}, 0, {v(u)}, {s(S_MASK+4*pq,2)}" for pq in range(8)]
    o += [f"v_cndmask_b32 {v(PM+pq)}, {v(PM+pq)}, -1, {s(S_MASK+4*pq+2,2)}" for pq in range(8)]
    return o

def gate_finish(tiles, addr, tmp):
    o = [f"ds_read_b128 {v(tmp+4*t,4)}, {v(addr)} offset:{512*t}" for t in tiles]
    seq = []
    for t in tiles:
        b = tmp + 4*t
        seq.append([f"v_add_f32 {v(b)}, {v(b)}, {v(b+1)}", f"v_add_f32 {v(b+2)}, {v(b+2)}, {v(b+3)}",
                    f"v_add_f32 {v(b)}, {v(b)}, {v(b+2)}", f"v_mul_f32 {v(b)}, {fhex(-math.log2(math.e))}, {v(b)}",
                    f"v_exp_f32 {v(b)}, {v(b)}", f"v_add_f32 {v(b)}, 1.0, {v(b)}", f"v_rcp_f32 {v(G0+t)}, {v(b)}"])
    return o + interleave(*seq)

def o_pack(acc, o0, lreg, fac, dst, f):
    return ([f"v_rcp_f32 {v(f)}, {v(acc+lreg)}"] + fac +
            [f"v_mul_f32 {v(acc+o0+i)}, {v(f)}, {v(acc+o0+i)}" for i in range(8)] +
            [f"v_cvt_pk_bf16_f32 {v(dst+i)}, {v(acc+o0+2*i)}, {v(acc+o0+2*i+1)}" for i in range(4)])
def o_store(br, tt, src, tag):
    return [f"s_lshl_b32 {s(S_T0)}, {s(S_RB)}, 17", f"s_lshl_b32 {s(S_T1)}, {s(S_HEAD)}, 10",
            f"s_add_u32 {s(S_T0)}, {s(S_T0)}, {s(S_T1)}", f"s_add_u32 {s(S_T0)}, {s(S_T0)}, {WS_O + br*65536 + tt*32768}",
            ws_st(v(src,4), V_L16, s(S_T0), 0, tag)]

OPK1, CHK, S_BAD = 220, 240, 24
def o_check(t):
    o, m = OACC + 16*t, CHK
    return ([f"s_mov_b32 {s(S_T1)}, 0x7b800000", f"v_add_f32 {v(m)}, abs({v(o)}), abs({v(o+8)})", f"v_add_f32 {v(m+1)}, abs({v(o+1)}), abs({v(o+2)})"] +
            [f"v_add_f32 {v(m+(i&1))}, {v(m+(i&1))}, abs({v(o+i)})" for i in range(3, 8)] +
            [f"v_add_f32 {v(m)}, {v(m)}, {v(m+1)}", f"v_cmp_lt_f32 vcc, {v(m)}, {s(S_T1)}", "s_cmp_eq_u64 vcc, -1"])
def a_publish(t):
    dst = (PF, OPK1)[t]
    return o_pack(OACC+16*t, 0, 8, [f"v_mul_f32 {v(CHK)}, {v(CHK)}, {v(G0+t)}"], dst, CHK) + o_store(0, t, dst, f"oa{t}")

def window_attention(R, extra):
    P = R.P
    Q = lambda t: v((QA, QA1)[t], 4)
    items = [(1, u) for u in range(1, 8)] + [(0, u) for u in range(8)]
    merged = lambda j: items[j][1] == items[j][0]
    kread = lambda j: [f"ds_read_b128 {v(KF+4*(j&1),4)}, {v(V_AK)} offset:{items[j][1]*KVS}"] if j < 15 else []
    vread = lambda j: [f"ds_read_b128 {v(VF+8*(j&1),4)}, {v(V_AV0)} offset:{items[j][1]*KVS+1024}",
                       f"ds_read_b128 {v(VF+8*(j&1)+4,4)}, {v(V_AV1)} offset:{items[j][1]*KVS+1536}"] if j < 15 else []
    M = (TMP, TMP + 2)
    acc = lambda t: v(OACC+16*t, 16)
    negm = lambda t: v(NEGM+16*t, 16)
    score = lambda j: [mfma(v(SB+16*(j&1),16), v(KF+4*(j&1),4), Q(items[j][0]), negm(items[j][0]))] if j < 15 else []
    exps = lambda S: [f"v_exp_f32 {v(S+i)}, {v(S+i)}" for i in range(16)]
    cvts = lambda d, S: [f"v_cvt_pk_bf16_f32 {v(d+k)}, {v(S+2*k)}, {v(S+2*k+1)}" for k in range(8)]
    P.add(extra)
    P.add(interleave(*[max_tree(M[t], range(MG+16*t, MG+16*t+16)) + cross_max(M[t], M[t]+1) for t in (1, 0)]))
    for t in (1, 0):
        P.add([f"v_pk_add_f32 {v(NEGM+16*t+2*i,2)}, 0, {v(M[t],2)} op_sel_hi:[0,0] neg_lo:[0,1] neg_hi:[0,1]" for i in range(8)])
        if t == 1: P(mfma(v(SB+16,16), v(KA,4), Q(1), negm(1)))
    P(mfma(v(MG+16,16), v(KA+4,4), Q(1), negm(1)))
    e, c = exps(SB+16), cvts(PB+8, SB+16)
    P.add(e[0:4]); P(mfma(v(MG,16), v(KA,4), Q(0), negm(0))); P.add(e[4:8]); P.add(c[0:4]); P.add(e[8:10])
    P(mfma(acc(1), v(VA,4), v(PB+8,4), "0")); P.add(e[10:16])
    R.stamp()
    P("s_barrier")
    R.stamp()
    P.add(kread(0) + kread(1) + vread(0) + vread(1)); P.add(c[4:8])
    P.add(score(0)); P.add(kread(2))
    pend = [mfma(acc(1), v(VA+4,4), v(PB+12,4), acc(1))]
    for j, (t, u) in enumerate(items):
        S, Pp, Vf = SB + 16*(j & 1), PB + 8*(j & 1), VF + 8*(j & 1)
        nxt = score(j + 1) + (kread(j + 3) if j != 1 else [])
        if j == 2: P("s_barrier"); P.add(kread(4))
        if merged(j):
            g = MG + 16*t
            sel = [f"v_cndmask_b32 {v(g+i)}, {v(S+i)}, {v(g+i)}, {s(S_MASK+2*i,2)}" for i in range(16)]
            e, c = exps(g), cvts(PF, g)
            an = [f"v_and_b32 {v(Pp+i)}, {v(PM+i)}, {v(PF+i)}" for i in range(8)]
            xo = [f"v_xor_b32 {v(g+i)}, {v(PF+i)}, {v(Pp+i)}" for i in range(8)]
            if j == 0:
                P.add(pend); P.add(nxt); P.add(sel)
            else:
                P.add(sel[0:2]); P.add(pend); P.add(sel[2:10]); P.add(nxt); P.add(sel[10:])
            P.add(e[0:8]); P.add(c[0:4]); P.add(an[0:4]); P.add(e[8:10])
            P(mfma(acc(t), v(VA+8*t,4), v(Pp,4), acc(t) if t else "0"))
            P.add(e[10:16]); P.add(xo[0:4]); P.add(c[4:8])
            P(mfma(acc(t), v(Vf,4), v(g,4), acc(t)))
            P.add(an[4:8]); P.add(xo[4:8])
            pend = [mfma(acc(t), v(VA+8*t+4,4), v(Pp+4,4), acc(t)), [mfma(acc(t), v(Vf+4,4), v(g+4,4), acc(t))] + vread(j + 2)]
            if j == 7:
                P.add(o_check(1)); P(f"s_cselect_b32 {s(S_BAD)}, 0, 1\ns_cbranch_scc0 L_skip1")
                P.add(a_publish(1)); P("L_skip1:")
                R.stamp()
        else:
            e, c = exps(S), cvts(Pp, S)
            P.add(e[0:2]); P.add(pend[0]); P.add(e[2:5])
            if len(pend) > 1: P.add(pend[1])
            P.add(e[5:6 if len(pend) == 1 else 8]); P.add(nxt); P.add(e[6 if len(pend) == 1 else 8:8])
            P.add(c[0:4]); P.add(e[8:10 if len(pend) == 1 else 12])
            P(mfma(acc(t), v(Vf,4), v(Pp,4), acc(t)))
            P.add(e[10 if len(pend) == 1 else 12:16]); P.add(c[4:8])
            pend = [[mfma(acc(t), v(Vf+4,4), v(Pp+4,4), acc(t))] + vread(j + 2)]
        if OPT["fine"] == 5: R.stamp()
        if j == OPT["xat"]:
            P.add(WaitLds()); P("s_barrier")
        if j == OPT["f3step"]:
            P(f"s_cmp_lg_u32 {s(S_BAD)}, 0\ns_cbranch_scc1 L_skip2"); P.add(flag_store("oa1", "oa1")); P("L_skip2:")
    P.add(pend)
    P.add(o_check(0)); P(f"s_cbranch_scc0 L_slow\ns_cmp_lg_u32 {s(S_BAD)}, 0\ns_cbranch_scc1 L_slow\nL_back:")
    R.stamp()

def slow_path():
    F = Prog()
    F(f"L_slow:\ns_cmp_eq_u32 {s(S_BAD)}, 0\ns_cbranch_scc1 L_exact0")
    G = Prog(); G.add(a_publish(1)); G.add(flag_store("oa1", "oa1"))
    return finalize(F) + exact_attention(1) + finalize(G) + exact_attention(0) + "    s_branch L_back\n"

def exact_attention(t):
    F = Prog(); q, M, acc = v((QA, QA1)[t], 4), TMP, v(OACC+16*t, 16)
    KO, VO, G = TMP + 2, TMP + 3, S_T0
    def tile(rel, kdst, vdst):
        o = [f"s_add_i32 {s(S_K)}, {s(G)}, {rel}", f"s_cmp_ge_i32 {s(S_K)}, 0", f"s_cselect_b64 vcc, -1, 0",
             f"s_cselect_b32 {s(S_TM)}, {hex(ONES)}, 0", f"s_max_i32 {s(S_K)}, {s(S_K)}, 0", f"s_lshl_b32 {s(S_K)}, {s(S_K)}, 11",
             f"s_lshl_b32 {s(S_T1)}, {s(S_HEAD)}, 17", f"s_add_u32 {s(S_K)}, {s(S_K)}, {s(S_T1)}",
             f"v_and_b32 {v(KO)}, 0x200, {v(V_L16)}", f"v_cndmask_b32 {v(KO)}, {v(KO)}, {v(V_L16)}, vcc", ws_ld(v(kdst,4), KO, s(S_K))]
        if vdst is not None:
            o += [f"v_mov_b32 {v(vdst+i)}, {s(S_TM)}" for i in range(8)]
            o += [f"s_cmp_lg_u32 {s(S_TM)}, 0", f"s_cselect_b32 {s(S_K)}, {s(S_K)}, {WS_SIZE}", f"s_mov_b64 exec, {s(S_LO16,2)}",
                  ws_ld(v(vdst,4), VO, s(S_K), 1024), ws_ld(v(vdst+4,4), VO, s(S_K), 1536), "s_mov_b64 exec, -1"]
        return o
    F(f"L_exact{t}:\ns_waitcnt vmcnt(0) lgkmcnt(0)\ns_nop 15")
    F(f"""s_lshl_b32 {s(G)}, {s(S_RB)}, 1
s_sub_u32 {s(G)}, {s(G)}, {8 - t}
v_lshrrev_b32 {v(VO)}, 1, {v(V_L16)}
v_and_b32 {v(VO)}, 0x100, {v(VO)}
v_and_b32 {v(KO)}, 0xf0, {v(V_L16)}
v_or_b32 {v(VO)}, {v(VO)}, {v(KO)}""")
    F.add(tile(8, KF, VF)); F.add(tile(0, KF+4, VF+8))
    F(mfma(v(MG,16), v(KF,4), q, "0")); F(mfma(v(SB,16), v(KF+4,4), q, "0"))
    F.add([f"v_cndmask_b32 {v(MG+i)}, {v(SB+i)}, {v(MG+i)}, {s(S_MASK+2*i,2)}" for i in range(16)])
    F.add(max_tree(M, range(MG, MG+16)))
    F(f"s_mov_b32 {s(S_TM+1)}, 7\nL_exact_m{t}:\ns_add_u32 {s(G)}, {s(G)}, 1")
    F.add(tile(0, KF, None))
    F(mfma(v(SB,16), v(KF,4), q, "0"))
    F.add(max_tree(M, range(SB, SB+16), init=True))
    F(f"s_sub_u32 {s(S_TM+1)}, {s(S_TM+1)}, 1\ns_cmp_lg_u32 {s(S_TM+1)}, 0\ns_cbranch_scc1 L_exact_m{t}")
    F.add(cross_max(M, M+1))
    F.add([f"v_sub_f32 {v(MG+i)}, {v(MG+i)}, {v(M)}" for i in range(16)])
    F.add([f"v_exp_f32 {v(MG+i)}, {v(MG+i)}" for i in range(16)])
    F.add([f"v_cvt_pk_bf16_f32 {v(PF+i)}, {v(MG+2*i)}, {v(MG+2*i+1)}" for i in range(8)])
    F.add([f"v_and_b32 {v(PB+i)}, {v(PM+i)}, {v(PF+i)}" for i in range(8)])
    F.add([f"v_xor_b32 {v(PF+i)}, {v(PF+i)}, {v(PB+i)}" for i in range(8)])
    F(mfma(acc, v(VF,4), v(PB,4), "0")); F(mfma(acc, v(VF+4,4), v(PB+4,4), acc))
    F(mfma(acc, v(VF+8,4), v(PF,4), acc)); F(mfma(acc, v(VF+12,4), v(PF+4,4), acc))
    F(f"s_sub_u32 {s(G)}, {s(G)}, 7\ns_mov_b32 {s(S_TM+1)}, 7\ns_nop 15\nL_exact_e{t}:\ns_add_u32 {s(G)}, {s(G)}, 1")
    F.add(tile(0, KF, VF))
    F(mfma(v(SB,16), v(KF,4), q, "0"))
    F.add([f"v_sub_f32 {v(SB+i)}, {v(SB+i)}, {v(M)}" for i in range(16)])
    F.add([f"v_exp_f32 {v(SB+i)}, {v(SB+i)}" for i in range(16)])
    F.add([f"v_cvt_pk_bf16_f32 {v(PB+i)}, {v(SB+2*i)}, {v(SB+2*i+1)}" for i in range(8)])
    F(mfma(acc, v(VF,4), v(PB,4), acc)); F(mfma(acc, v(VF+4,4), v(PB+4,4), acc))
    F(f"s_nop 15\ns_sub_u32 {s(S_TM+1)}, {s(S_TM+1)}, 1\ns_cmp_lg_u32 {s(S_TM+1)}, 0\ns_cbranch_scc1 L_exact_e{t}")
    return finalize(F)

E = Prog()
hb = {4: 2, 3: 1, 2: 0, 1: 3}[OPT["xmap"]]
if OPT["stamps"] or OPT["amp"] >= 0:
    E("s_memtime s[64:65]\ns_memrealtime s[66:67]")
def entry_stamp():
    if OPT["stamps"]:
        return [f"v_mov_b32 {v(V_STAMP)}, 0", f"v_writelane_b32 {v(V_STAMP)}, s64, 0", f"v_writelane_b32 {v(V_STAMP)}, s66, 62"]
    if OPT["amp"] >= 0:
        return [f"v_mov_b32 {v(V_STAMP)}, 0", f"v_writelane_b32 {v(V_STAMP)}, {'s64' if OPT['ampclk'] else 's66'}, 0"]
    return []
code_pf = f"""s_getpc_b64 {s(S_T2,2)}
L_pc:
s_lshl2_add_u32 {s(S_T1)}, {s(S_T0)}, {s(S_W4)}
s_and_b32 {s(S_T1)}, {s(S_T1)}, 63
s_lshl_b32 {s(S_T1)}, {s(S_T1)}, 9
s_sub_u32 {s(S_T2)}, {s(S_T2)}, L_pc-{NAME}_kernel
s_subb_u32 {s(S_T3)}, {s(S_T3)}, 0
v_and_b32 v5, 3, {v(V_LANE)}
v_lshl_add_u32 v5, v5, 7, {s(S_T1)}
global_load_dword v13, v5, {s(S_T2,2)}"""
if OPT["cpf"] == 2:
    E(f"""s_getpc_b64 {s(S_T2,2)}
s_bfe_u32 {s(S_T1)}, s2, 0x50003
v_lshrrev_b32 v5, 6, v0
v_lshlrev_b32 v5, 7, v5
v_lshl_add_u32 v5, {s(S_T1)}, 10, v5
global_load_dword v13, v5, {s(S_T2,2)}""")
if OPT["cpf"] == 3:
    E(f"""s_getpc_b64 {s(S_T2,2)}
s_bfe_u32 {s(S_T1)}, s2, 0x30003
v_lshrrev_b32 v5, 4, v0
v_lshlrev_b32 v5, 7, v5
v_lshl_add_u32 v5, {s(S_T1)}, 12, v5
global_load_dword v13, v5, {s(S_T2,2)}""")
E(f"""
s_cmp_ge_u32 s2, 256
s_cbranch_scc1 L_end
s_load_dwordx16 s[4:19], s[0:1], 0
s_load_dwordx4 s[20:23], s[0:1], 64
v_lshrrev_b32 v4, 6, v0
v_and_b32 {v(V_LANE)}, 63, v0
s_lshr_b32 {s(S_T0)}, s2, 3
v_readfirstlane_b32 {s(S_MX)}, v4
""")
E(f"""
s_and_b32 {s(S_T1)}, s2, {(8 >> hb) - 1}
s_lshl_b32 {s(S_HG)}, {s(S_T1)}, {hb}
s_and_b32 {s(S_K)}, {s(S_T0)}, {(1 << hb) - 1}
s_add_u32 {s(S_HG)}, {s(S_HG)}, {s(S_K)}
s_bfe_u32 {s(S_K)}, s2, {hex((hb << 16) | (3 - hb))}
s_lshl_b32 {s(S_RB)}, {s(S_K)}, {5 - hb}
s_lshr_b32 {s(S_ROT)}, {s(S_T0)}, {hb}
s_add_u32 {s(S_RB)}, {s(S_RB)}, {s(S_ROT)}
s_and_b32 {s(S_W4)}, {s(S_MX)}, 3
""")
if OPT["cpf"] == 1:
    E(f"""s_cmp_lt_u32 {s(S_MX)}, 4
s_cbranch_scc0 L_hrole""")
    E(code_pf)
    E("s_branch L_crole\nL_hrole:")
elif OPT["cpf"] >= 4:
    E(f"""s_cmp_lt_u32 {s(S_MX)}, 4
s_cbranch_scc0 L_hrole
s_getpc_b64 {s(S_T2,2)}
L_pc:
s_lshl2_add_u32 {s(S_T1)}, {s(S_T0)}, {s(S_W4)}
s_lshl_b32 {s(S_T1)}, {s(S_T1)}, 8
s_sub_u32 {s(S_T2)}, {s(S_T2)}, L_pc-{NAME}_kernel
s_subb_u32 {s(S_T3)}, {s(S_T3)}, 0
s_load_dword s70, {s(S_T2,2)}, {s(S_T1)}
s_add_u32 {s(S_T1)}, {s(S_T1)}, 128
s_load_dword s71, {s(S_T2,2)}, {s(S_T1)}""")
    if OPT["cpf"] == 5:
        E("s_waitcnt lgkmcnt(0)")
        for i, ptr in enumerate((6, 12, 4, 16, 20, 8, 14, 18, 22)):
            E(f"s_load_dword s{72+i}, {s(ptr,2)}, 0")
        for i in range(1, 5):
            E(f"s_mov_b32 {s(S_T1)}, {i << 21}\ns_load_dword s{80+i}, s[22:23], {s(S_T1)}")
    E("s_branch L_crole\nL_hrole:")
else:
    E(f"s_cmp_lt_u32 {s(S_MX)}, 4\ns_cbranch_scc1 L_crole")
late_ids = lines(f"""
s_lshr_b32 {s(S_T0)}, s2, 3
s_and_b32 {s(S_RB3)}, s2, 7
s_lshl_b32 {s(S_RB3)}, {s(S_RB3)}, 2
s_lshr_b32 {s(S_T1)}, {s(S_T0)}, 3
s_add_u32 {s(S_RB3)}, {s(S_RB3)}, {s(S_T1)}
s_and_b32 {s(S_CB)}, {s(S_T0)}, 7
s_lshl_b32 {s(S_HEAD)}, {s(S_HG)}, 2
s_add_u32 {s(S_HEAD)}, {s(S_HEAD)}, {s(S_W4)}
s_mov_b32 {s(S_LO16)}, 0xffff
s_mov_b32 {s(S_LO16+1)}, 0xffff
v_lshlrev_b32 {v(V_L16)}, 4, {v(V_LANE)}
""")
rot_code = {
 0: f"s_and_b32 {s(S_ROT)}, {s(S_ROT)}, {OPT['rotmask']}",
 1: f"s_and_b32 {s(S_ROT)}, s2, 7",
 4: f"s_add_u32 {s(S_ROT)}, {s(S_ROT)}, {s(S_HG)}\ns_and_b32 {s(S_ROT)}, {s(S_ROT)}, 7",
 5: f"s_add_u32 {s(S_ROT)}, {s(S_ROT)}, {s(S_HG)}\ns_and_b32 {s(S_ROT)}, {s(S_ROT)}, 3\ns_lshl_b32 {s(S_ROT)}, {s(S_ROT)}, 1",
 6: f"s_add_u32 {s(S_ROT)}, {s(S_ROT)}, {s(S_HG)}\ns_and_b32 {s(S_ROT)}, {s(S_ROT)}, 1\ns_lshl_b32 {s(S_ROT)}, {s(S_ROT)}, 2",
}[OPT["rotmode"]]

def stage_of(n): return n >> 1 if n < 32 else 16 + ((n - 32) >> 2)
def first_of_stage(n): return n < 64 and (n == 0 or stage_of(n) != stage_of(n - 1))

H = Role("H"); P = H.P
VX, VW1, VW2 = 160, 162, 166
V_AXW, V_AG, V_GPW, GACC, XW, GF = 170, 171, 172, 174, 176, 184
i3, i4, p7, t0, t1, t2 = 32, 33, 34, 35, 36, 37
def raw(i):
    if OPT["fine"] == 3: P(f"s_memtime s[{68+2*i}:{69+2*i}]")
raw(0)
P(rot_code)
P(f"""
v_lshrrev_b32 {v(i3)}, 3, {v(V_LANE)}
v_lshrrev_b32 {v(i4)}, 4, {v(V_LANE)}
v_and_b32 {v(p7)}, 7, {v(V_LANE)}
s_lshl_b32 {s(S_T0)}, {s(S_W4)}, 4
v_add_u32 {v(t0)}, {s(S_T0)}, {v(i3)}
v_lshlrev_b32 {v(t0)}, 10, {v(t0)}
v_xor_b32 {v(t1)}, {v(p7)}, {v(i4)}
v_lshl_add_u32 {v(VX)}, {v(t1)}, 4, {v(t0)}
v_xor_b32 {v(VX+1)}, 64, {v(VX)}
v_add_u32 {v(VX+1)}, {0x2000 - 1024}, {v(VX+1)}
s_lshr_b32 {s(S_T0)}, {s(S_W4)}, 1
s_and_b32 {s(S_T1)}, {s(S_W4)}, 1
s_lshl_b32 {s(S_K)}, {s(S_T0)}, 4
v_add_u32 {v(t0)}, {s(S_K)}, {v(i4)}
v_mul_u32_u24 {v(t0)}, 0xc00, {v(t0)}
v_lshlrev_b32 {v(t1)}, 1, {v(i4)}
v_xor_b32 {v(t1)}, {v(t1)}, {v(p7)}
v_lshl_add_u32 {v(t0)}, {v(t1)}, 4, {v(t0)}
v_and_b32 {v(t1)}, 1, {v(i3)}
v_xor_b32 {v(t1)}, {s(S_T1)}, {v(t1)}
v_lshlrev_b32 {v(t1)}, 10, {v(t1)}
s_lshl_b32 {s(S_T2)}, {s(S_HG)}, 7
s_add_u32 {s(S_K)}, {s(S_T2)}, 1024
v_add3_u32 {v(VW1)}, {v(t0)}, {v(t1)}, {s(S_K)}
v_add_u32 {v(VW1+1)}, {12288 - 1024}, {v(VW1)}
v_add_u32 {v(VW1+2)}, {2*(12288 - 1024)}, {v(VW1)}
v_add_u32 {v(VW1+3)}, {3*(12288 - 1024)}, {v(VW1)}
s_lshl_b32 {s(S_MW)}, {s(S_T1)}, 13
s_lshl_b32 {s(S_K)}, {s(S_T0)}, 12
s_add_u32 {s(S_MW)}, {s(S_MW)}, {s(S_K)}
s_lshl_b32 {s(S_MX)}, {s(S_W4)}, 11
s_add_u32 {s(S_MX)}, {s(S_MX)}, {L_X}""")
raw(1)
P("s_waitcnt lgkmcnt(0)")
raw(2)
P.add(entry_stamp())
P.add(srd(S_X, 4, 2097152))
P(f"""s_cmp_eq_u32 {s(S_T1)}, 0
s_cselect_b32 {s(S_W)}, s6, s12
s_cselect_b32 {s(S_W+1)}, s7, s13
s_mov_b32 {s(S_W+2)}, 1572864
s_mov_b32 {s(S_W+3)}, 0x20000""")
if OPT["fine"] != 3: H.stamp()
def dma(voff, rsrc, soff, imm, tag, flags=""):
    return Ins(f"buffer_load_dwordx4 {v(voff)}, {s(rsrc,4)}, {soff} offen{' offset:%d' % imm if imm else ''}{flags} lds", tag)
def x_dma(j):
    return [f"s_add_u32 {s(S_K)}, {s(S_ROT)}, {j}", f"s_and_b32 {s(S_K)}, {s(S_K)}, 7", f"s_lshl_b32 {s(S_K)}, {s(S_K)}, 7",
            f"s_lshl_b32 {s(S_T2)}, {s(S_RB)}, 16", f"s_add_u32 m0, {s(S_MX)}, {j*8192}", f"s_add_u32 {s(S_K)}, {s(S_K)}, {s(S_T2)}",
            dma(VX, S_X, s(S_K), 0, f"x{j}"), dma(VX+1, S_X, s(S_K), 1024, f"x{j}")]
def w_dma(S):
    if S < 16:
        o = [f"s_lshl_b32 {s(S_T3)}, {s(S_ROT)}, 1", f"s_add_u32 {s(S_T3)}, {s(S_T3)}, {S}", f"s_and_b32 {s(S_T3)}, {s(S_T3)}, 15"]
    else:
        o = [f"s_add_u32 {s(S_T3)}, {s(S_ROT)}, {S-16}", f"s_and_b32 {s(S_T3)}, {s(S_T3)}, 7"]
    o += [f"s_add_u32 m0, {s(S_MW)}, {(S % NSLOT)*SLOT}", f"s_mul_i32 {s(S_T3)}, {s(S_T3)}, {(32 if S < 16 else 64)*3072}"]
    return o + [dma((VW1 if S < 16 else VW2) + t, S_W, s(S_T3), t*1024, f"w{S}") for t in range(4)]
P.add(x_dma(0)); raw(3)
P.add(w_dma(0)); raw(4)
P.add(w_dma(1)); raw(5)
P(f"""s_lshl_b32 {s(S_K)}, {s(S_ROT)}, 3
v_add_u32 {v(t2)}, {s(S_K)}, {v(V_LANE)}
v_and_b32 {v(t2)}, 63, {v(t2)}
v_lshlrev_b32 {v(t2)}, 4, {v(t2)}""")
P.add(srd(S_G, 16, 1024)); P(f"s_mov_b32 m0, {L_G}"); P.add(dma(t2, S_G, "0", 0, "w1"))
P.add(late_ids)
h_misc = lines(f"""
s_lshr_b32 {s(S_T0)}, {s(S_W4)}, 1
s_and_b32 {s(S_T1)}, {s(S_W4)}, 1
s_lshl_b32 {s(S_T0)}, {s(S_T0)}, 5
v_add_u32 {v(t0)}, {s(S_T0)}, {v(i3)}
v_mul_u32_u24 {v(t0)}, 0xc00, {v(t0)}
v_and_b32 {v(t1)}, 1, {v(i4)}
s_lshl_b32 {s(S_T1)}, {s(S_T1)}, 1
v_add_u32 {v(t1)}, {s(S_T1)}, {v(t1)}
v_lshlrev_b32 {v(t1)}, 1, {v(t1)}
v_xor_b32 {v(t1)}, {v(t1)}, {v(p7)}
v_lshl_add_u32 {v(t0)}, {v(t1)}, 4, {v(t0)}
s_lshl_b32 {s(S_T0)}, {s(S_HG)}, 7
v_add_u32 {v(VW2)}, {s(S_T0)}, {v(t0)}
v_add_u32 {v(VW2+1)}, {24576 - 1024}, {v(VW2)}
v_add_u32 {v(VW2+2)}, {2*(24576 - 1024)}, {v(VW2)}
v_add_u32 {v(VW2+3)}, {3*(24576 - 1024)}, {v(VW2)}
""") + srd(S_WS, 22, WS_SIZE) + srd(S_DBG, 20, 256)
P.add(h_misc)
if OPT["fine"] == 3:
    raw(6); P("s_waitcnt vmcnt(9)"); raw(7); P("s_waitcnt vmcnt(5)"); raw(8); P("s_waitcnt lgkmcnt(0)")
    for i in range(9):
        P(f"v_writelane_b32 {v(V_STAMP)}, s{68+2*i}, {i+1}")
    H.ns = 9
CM, QB, KB, VB, KBH, VBH, BS, BSP, BO, BP, BPL, BPK, SENT, S_R0 = 32, 48, 56, 64, 80, 84, 96, 128, 192, 224, 240, 248, 88, 28
def b_scores(t):
    kprev = v(KB, 4) if t == 1 else v(KBH, 4)
    return [mfma(v(BS+16*t,16), v(KB+4*t,4), v(QB+4*t,4), v(CM,16)), mfma(v(BSP+16*t,16), kprev, v(QB+4*t,4), v(CM,16))]
def b_softmax(t):
    S, sp, m, p, pl = BS + 16*t, BSP + 16*t, TMP + 2*t, BP + 8*t, BPL + 4*t
    o = [f"v_cndmask_b32 {v(S+q)}, {v(S+q)}, {v(sp+q)}, {s(S_LO16,2)}" for q in range(8, 16)]
    if t == 0:
        o += [f"v_mov_b32 {v(m)}, {hex(NEG_BIG)}"]
        o += [f"v_cndmask_b32 {v(S+q)}, {v(S+q)}, {v(m)}, {s(S_R0,2)}" for q in range(8, 16)]
    o += max_tree(m, range(S, S+16)) + cross_max(m, m+1)
    o += [f"v_pk_add_f32 {v(S+2*q,2)}, {v(S+2*q,2)}, {v(m,2)} op_sel_hi:[1,0] neg_lo:[0,1] neg_hi:[0,1]" for q in range(8)]
    o += [f"v_exp_f32 {v(S+q)}, {v(S+q)}" for q in range(16)]
    o += [f"v_cvt_pk_bf16_f32 {v(p+i)}, {v(S+2*i)}, {v(S+2*i+1)}" for i in range(8)]
    o += [f"v_cndmask_b32 {v(pl+i)}, 0, {v(p+4+i)}, {s(S_LO16,2)}" for i in range(4)]
    o += [f"v_cndmask_b32 {v(p+4+i)}, {v(p+4+i)}, 0, {s(S_LO16,2)}" for i in range(4)]
    return o
def b_pv(t):
    vprev, acc, p = v(VB+4, 4) if t == 1 else v(VBH, 4), v(BO+16*t, 16), BP + 8*t
    return [mfma(acc, v(VB+8*t,4), v(p,4), "0"), mfma(acc, v(VB+8*t+4,4), v(p+4,4), acc), mfma(acc, vprev, v(BPL+4*t,4), acc)]
def b_pack(t):
    f = TMP + 2*t
    return o_pack(BO+16*t, 8, 0, [f"v_sub_f32 {v(f+1)}, 1.0, {v(G0+t)}", f"v_mul_f32 {v(f)}, {v(f)}, {v(f+1)}"], BPK+4*t, f)
VWO, VKF, V1A, V1D, V_MB, V_HB = 160, 161, 162, 164, 12, 13
txt_of = lambda x: x.text if isinstance(x, Ins) else x
special_txt = []
def gather(tiles, special):
    o = []
    if 0 in tiles:
        o += [f"s_lshl_b32 {s(S_T0)}, {s(S_HEAD)}, 15", f"s_lshl_b32 {s(S_T1)}, {s(S_RB)}, 10", f"s_add_u32 {s(S_T0)}, {s(S_T0)}, {s(S_T1)}",
              f"s_add_u32 {s(S_T0)}, {s(S_T0)}, {WS_HB - 1024}"]
        if special:
            o += [f"s_cmp_eq_u32 {s(S_RB)}, 0", f"s_cselect_b32 {s(S_T0)}, {WS_SIZE}, {s(S_T0)}"]
        o += [ws_ld(v(KBH,4), V_HB, s(S_T0)), ws_ld(v(VBH,4), V_HB, s(S_T0), 512)]
        o += [f"s_lshl_b32 {s(S_K)}, {s(S_HEAD)}, 17", f"s_lshl_b32 {s(S_T1)}, {s(S_RB)}, 12",
              f"s_add_u32 {s(S_T2)}, {s(S_K)}, {s(S_T1)}", f"s_sub_u32 {s(S_T2)}, {s(S_T2)}, {8*2048}"]
    for u in tiles:
        tag = "kva" if 1 <= u <= 4 else "kvb"
        o += [f"s_add_u32 {s(S_T0)}, {s(S_T2)}, {u*2048}", f"s_add_u32 m0, {s(S_MW)}, {u*KVS}"]
        if special:
            o += [f"s_cmp_ge_u32 {s(S_RB)}, {(8-u+1)//2}", f"s_cbranch_scc1 L_gk{u}",
                  dma(VKF, S_WS, s(S_K), 0, None, " sc1"), f"s_mov_b32 {s(S_T0)}, {WS_SIZE}", f"s_branch L_gk{u}e", f"L_gk{u}:",
                  dma(V_L16, S_WS, s(S_T0), 0, None, " sc1"), f"L_gk{u}e:"]
        else:
            o += [dma(V_L16, S_WS, s(S_T0), 0, tag, " sc1")]
        o += [dma(V_L16, S_WS, s(S_T0), 1024, tag, " sc1")]
    return o
def emit_gather(n, tiles):
    P(f"s_cmp_lt_u32 {s(S_RB)}, 4\ns_cbranch_scc1 L_gspecial{n}")
    P.add(gather(tiles, False)); P(f"L_gdone{n}:")
    special_txt.append(f"L_gspecial{n}:\n" + "\n".join(("" if txt_of(x).endswith(":") else "    ") + txt_of(x) for x in gather(tiles, True))
                       + f"\n    s_branch L_gdone{n}\n")
S_R3, S_WB, S_MA, S_MB = 24, 25, 30, 31
B0, B1, A0, A1, A2, A3, VOG, EXW, EXR, VOUT = 16, 17, 24, 25, 26, 27, 18, 20, 23, 19
ACC3, OFB, OFA, WBF = 32, 96, 192, 176
issued_w, issued_x = 2, 1
for S in range(25):
    if S < 24:
        P.add(WaitTag(f"w{S}", f"x{S >> 1}" if S < 16 else "none"))
    if S < 24: P.add(WaitLds())
    P("s_barrier")
    if OPT["fine"] in (1, 2, 3) or S in (0, 16, 24): H.stamp()
    top = {0: 3}.get(S, S + 4)
    while issued_w <= min(top, 23):
        if issued_w < 16 and issued_w % 2 == 0 and issued_x <= issued_w // 2:
            P.add(x_dma(issued_x)); issued_x += 1
        P.add(w_dma(issued_w)); issued_w += 1
    if OPT["icpf"] and S == 1:
        t = (f"    s_getpc_b64 s[78:79]\nL_pc:\n    s_sub_u32 s78, s78, L_pc-{NAME}_kernel\n    s_subb_u32 s79, s79, 0\n    s_lshr_b32 {s(S_T1)}, s2, 3\n"
             f"    s_lshl2_add_u32 {s(S_T1)}, {s(S_T1)}, {s(S_W4)}\n    s_lshl_b32 {s(S_T1)}, {s(S_T1)}, 8\n")
        t += "".join(f"    s_load_dword s{80+i}, s[78:79], {s(S_T1)} offset:{i*64}\n" for i in range(4))
        P.add(Raw(t))
    if OPT["tlb"] and S in (3, 4, 5, 6):
        for i, (ptr, off) in enumerate({3: ((22, 0), (22, 1)), 4: ((22, 2), (22, 4)), 5: ((22, 3), (20, 0)), 6: ((18, 0),)}[S]):
            P.add(Raw(f"    s_mov_b32 {s(S_T1)}, {off << 21}\n    s_load_dword s{70+i}, {s(ptr,2)}, {s(S_T1)}"))
    if OPT["wopf"] and S in (8, 9, 10, 11):
        ptr, half = (14, 8)[(S - 8) >> 1], S & 1
        t = f"    s_lshl2_add_u32 {s(S_T1)}, s2, {s(S_W4)}\n    s_lshl_b32 {s(S_T1)}, {s(S_T1)}, 9\n"
        t += "".join(f"    s_load_dword s{73+i}, {s(ptr,2)}, {s(S_T1)} offset:{half*256+i*64}\n" for i in range(4))
        P.add(Raw(t))
    if S == 8: P(ep_load)
    if S in (12, 13):
        if S == 12:
            P(f"v_and_b32 v48, 31, {v(V_LANE)}\nv_lshrrev_b32 v49, 5, {v(V_LANE)}\nv_lshlrev_b32 v49, 2, v49\nv_sub_u32 v48, v48, v49")
        for q in range(8*(S-12), 8*(S-12) + 8):
            P(f"""v_subrev_u32 {v(CM+q)}, {8*(q>>2)+(q&3)}, v48
v_and_b32 {v(CM+q)}, 17, {v(CM+q)}
v_cvt_f32_u32 {v(CM+q)}, {v(CM+q)}
v_mul_f32 {v(CM+q)}, {hex(NEG_BIG)}, {v(CM+q)}""")
    if S == 14:
        P(f"""v_lshrrev_b32 v48, 5, {v(V_LANE)}
v_bfe_u32 v49, {v(V_LANE)}, 2, 2
v_lshl_add_u32 v48, v48, 2, v49
v_and_b32 v49, 2, v49
v_bfe_u32 v50, {v(V_LANE)}, 4, 1
v_xor_b32 v49, v49, v50
s_and_b32 {s(S_T1)}, {s(S_W4)}, 1
s_lshl_b32 {s(S_T1)}, {s(S_T1)}, 1
s_lshr_b32 {s(S_T0)}, {s(S_W4)}, 1
s_or_b32 {s(S_T1)}, {s(S_T1)}, {s(S_T0)}
v_xor_b32 v49, {s(S_T1)}, v49
v_lshlrev_b32 v49, 5, v49
v_lshl_add_u32 v48, v48, 7, v49
v_and_b32 v49, 3, {v(V_LANE)}
v_lshl_add_u32 v48, v49, 3, v48
s_lshl_b32 {s(S_MX)}, {s(S_W4)}, 14
v_add_u32 {v(B0)}, {s(S_MX)}, v48
v_xor_b32 {v(B1)}, 64, {v(B0)}
v_xor_b32 v49, 64, v48
s_mul_i32 {s(S_T0)}, {s(S_W4)}, 6144
s_add_u32 {s(S_T0)}, {s(S_T0)}, {L_WA}
v_add_u32 {v(A0)}, {s(S_T0)}, v48
v_add_u32 {v(A1)}, {s(S_T0)}, v49
s_mul_i32 {s(S_T0)}, {s(S_W4)}, 10240
s_add_u32 {s(S_T0)}, {s(S_T0)}, {L_KV}
v_add_u32 {v(A2)}, {s(S_T0)}, v48
v_add_u32 {v(A3)}, {s(S_T0)}, v49
v_add_u32 {v(V_MB)}, {s(S_MX)}, {v(V_L16)}
v_and_b32 v48, 0xf0, {v(V_L16)}
v_lshrrev_b32 v49, 1, {v(V_L16)}
v_and_b32 v49, 0x100, v49
v_add_u32 {v(V_HB)}, v48, v49""")
    if S == 15:
        P(f"s_mul_i32 {s(S_T0)}, {s(S_W4)}, 6144\nv_add_u32 {v(EXR)}, {s(S_T0)}, {v(V_L16)}")
        for i in range(1, 4):
            P(f"s_xor_b32 {s(S_T0)}, {s(S_W4)}, {i}\ns_mul_i32 {s(S_T0)}, {s(S_T0)}, 6144\nv_add_u32 {v(EXW+i-1)}, {s(S_T0)}, {v(V_L16)}")
        P(f"""v_and_b32 {v(VOUT)}, 31, {v(V_LANE)}
v_lshlrev_b32 {v(VOUT)}, 10, {v(VOUT)}
v_lshrrev_b32 v48, 5, {v(V_LANE)}
v_lshl_add_u32 {v(VOUT)}, v48, 4, {v(VOUT)}
s_lshl_b32 {s(S_T0)}, {s(S_RB3)}, 16
s_lshr_b32 {s(S_T1)}, {s(S_W4)}, 1
s_lshl_b32 {s(S_T1)}, {s(S_T1)}, 5
s_add_u32 {s(S_T0)}, {s(S_T0)}, {s(S_T1)}
s_lshl_b32 {s(S_T1)}, {s(S_CB)}, 7
s_add_u32 {s(S_T0)}, {s(S_T0)}, {s(S_T1)}
s_and_b32 {s(S_T1)}, {s(S_W4)}, 1
s_lshl_b32 {s(S_T1)}, {s(S_T1)}, 6
s_add_u32 {s(S_T0)}, {s(S_T0)}, {s(S_T1)}
v_add_u32 {v(VOUT)}, {s(S_T0)}, {v(VOUT)}
s_lshl_b32 {s(S_T0)}, {s(S_RB3)}, 17
s_lshl_b32 {s(S_T1)}, {s(S_W4)}, 13
s_add_u32 {s(S_T0)}, {s(S_T0)}, {s(S_T1)}
s_add_u32 {s(S_T0)}, {s(S_T0)}, {WS_O}
v_add_u32 {v(VOG)}, {s(S_T0)}, {v(V_L16)}
s_lshl_b32 {s(S_WB)}, {s(S_W4)}, 17
s_lshl_b32 {s(S_T1)}, {s(S_CB)}, 7
s_add_u32 {s(S_WB)}, {s(S_WB)}, {s(S_T1)}
s_lshl3_add_u32 {s(S_R3)}, {s(S_RB3)}, {s(S_CB)}
s_lshl2_add_u32 {s(S_R3)}, {s(S_R3)}, {s(S_W4)}
s_lshl_b32 {s(S_R3)}, {s(S_R3)}, 6""")
    if S == 18:
        P("s_waitcnt lgkmcnt(0)")
        H.poll(f"v_cmp_ne_u64 vcc, 0, {v(EP,2)}", ep_load)
        P(f"v_readfirstlane_b32 {s(S_EP)}, {v(EP)}\nv_readfirstlane_b32 {s(S_EP+1)}, {v(EP+1)}")
    if S == 19:
        P.add(srd(S_WOA, 8, 524288) + srd(S_WOB, 14, 524288) + srd(S_OUT, 18, 2097152))
    if S == 20:
        P(f"""v_lshrrev_b32 v48, 3, {v(V_LANE)}
v_bfe_u32 v49, {v(V_LANE)}, 4, 1
v_lshlrev_b32 v49, 2, v49
v_and_b32 v50, 7, {v(V_LANE)}
v_xor_b32 v49, v49, v50
v_lshlrev_b32 v49, 4, v49
v_lshl_add_u32 {v(VWO)}, v48, 10, v49
v_and_b32 {v(VKF)}, 32, {v(V_LANE)}
v_lshlrev_b32 {v(VKF)}, 4, {v(VKF)}
v_mul_u32_u24 {v(V1A)}, {KVS}, v50
s_mul_i32 {s(S_MW)}, {s(S_W4)}, {KVH}
s_add_u32 {s(S_MW)}, {s(S_MW)}, {L_KV}
s_add_u32 {s(S_T0)}, {s(S_MW)}, 2048
v_add_u32 {v(V1A)}, {s(S_T0)}, {v(V1A)}
s_lshl_b32 {s(S_T0)}, {s(S_RB)}, 1
v_add_u32 v48, {s(S_T0)}, v50
v_cmp_le_u32 vcc, 8, v48
v_mov_b32 {v(SENT)}, {hex(ONES)}
v_cndmask_b32 {v(V1D)}, 0, {v(SENT)}, vcc
v_mov_b32 {v(V1D+1)}, {v(V1D)}
v_mov_b32 {v(V1D+2)}, {v(V1D)}
v_mov_b32 {v(V1D+3)}, {v(V1D)}
s_cmp_eq_u32 {s(S_RB)}, 0
s_cselect_b64 {s(S_R0,2)}, {s(S_LO16,2)}, 0
s_mul_i32 {s(S_MA)}, {s(S_W4)}, 6144
s_add_u32 {s(S_MB)}, {s(S_MA)}, {L_KV}
v_add_u32 v51, {s(S_MB)}, {v(V_L16)}
s_add_u32 {s(S_MA)}, {s(S_MA)}, {L_WA}
s_mul_i32 {s(S_MB)}, {s(S_W4)}, 10240
s_add_u32 {s(S_MB)}, {s(S_MB)}, {L_KV - 6144}
s_lshl_b32 {s(S_K)}, {s(S_HEAD)}, 5
s_add_u32 {s(S_K)}, {s(S_K)}, {s(S_RB)}
s_lshl_b32 {s(S_K)}, {s(S_K)}, 6
s_add_u32 {s(S_K)}, {s(S_K)}, {WS_FKV}""")
    if S == 21:
        P(f"v_and_b32 v48, 31, {v(V_LANE)}\nv_lshlrev_b32 v48, 4, v48\nv_add_u32 v48, {L_GP}, v48")
    if S == 23:
        H.spoll_issue(4, S_K)
if OPT["p1only"]:
    H.finish()
fs = lambda: H.stamp() if OPT["fine"] == 4 else None
P.add([f"ds_read_b128 {v(KB+4*i,4)}, v51 offset:{i*1024}" for i in range(6)])
P.add(gate_finish([0, 1], 48, 176))
P.add([f"v_cndmask_b32 {v(VB+i)}, {v(VB+i)}, {v(SENT)}, {s(S_LO16,2)}" for i in range(16)])
P(f"s_setprio {OPT['bprio']}")
H.spoll(4, S_K, ignore_from=S_RB)
fs()
P("s_barrier")
fs()
P(f"ds_write_b128 {v(V1A)}, {v(V1D,4)}")
P.add([f"ds_read_b128 {v(QB+4*i,4)}, {v(V_MB)} offset:{i*1024}" for i in (1, 0)])
P.add(WaitLds())
emit_gather(0, (1, 2, 3, 4, 5, 6, 7, 0))
def wo_dma(br):
    o = []
    for t in range(16):
        base = S_MX if br else (S_MA if t < 6 else S_MB)
        g = [f"s_add_u32 m0, {s(base)}, {t*1024}", f"s_add_u32 {s(S_T3)}, {s(S_WB)}, {t*8192}"]
        o.append(g + [dma(VWO, S_WOB if br else S_WOA, s(S_T3), 0, "wob" if br else ("woa" if t < 6 else "woc"))])
    return o
woa, wob = wo_dma(0), wo_dma(1)
bseq = b_scores(1) + b_scores(0) + [f"v_cndmask_b32 {v(VBH+i)}, {v(VBH+i)}, {v(SENT)}, {s(S_LO16,2)}" for i in range(4)]
bseq += interleave(b_softmax(1), b_softmax(0)) + interleave(b_pv(1), b_pv(0)) + interleave(b_pack(1), b_pack(0))
P.add(bseq[:OPT["h1"]]); bseq = bseq[OPT["h1"]:]
fs()
P.add(WaitTag("kva")); P("s_barrier")
H.stamp()
nw = 0
assert OPT["t2at"] < len(bseq)
for i, x in enumerate(bseq):
    if i == OPT["t2at"]:
        P.add(WaitTag("kvb")); P("s_barrier"); fs()
    if i % OPT["weave"] == 0 and nw < 16:
        P.add(wob[nw]); nw += 1
    P.add(x)
P.add(o_store(1, 1, BPK+4, "ob")); P.add(o_store(1, 0, BPK, "ob"))
fs()
rest = wob[nw:] + woa[:6]
P.add(rest[:OPT["wbmid"]]); P.add(flag_store("ob", "ob"))
fs()
P(f"s_add_u32 {s(S_K)}, {s(S_R3)}, {WS_FOB}")
P.add(rest[OPT["wbmid"]:])
fs()
P("s_barrier")
fs()
P.add(woa[6:11]); H.spoll_issue(8, S_K); P.add(woa[11:])
fs()
def o_gather(br, tt):
    o = []
    for hs in range(8):
        if hs % 4 == 0: o += [f"s_mov_b32 {s(S_T1)}, {br*65536 + tt*32768 + hs*1024}"]
        o += [ws_ld(v((OFA, OFB)[br]+32*tt+4*hs,4), VOG, s(S_T1), (hs & 3)*1024)]
    return o
def wo_read(dst, hs, br):
    base, off = ((B0, B1), hs*2048) if br else (((A0, A1), hs*2048) if hs < 3 else ((A2, A3), (hs-3)*2048))
    return [f"ds_read_b64_tr_b16 {v(dst+4*ct+2*j,2)}, {v(base[ct])} offset:{off+j*1024}" for ct in range(2) for j in range(2)]
def p3(br, tt, first, last, hook=lambda hs: None):
    if first: P.add(wo_read(WBF, 0, br))
    for hs in range(8):
        b = hs & 1
        rd = wo_read(WBF + 8*(1-b), (hs + 1) & 7, br) if not (last and hs == 7) else []
        for ct in range(2):
            acc = v(ACC3+32*tt+16*ct, 16)
            P(mfma(acc, v(WBF+8*b+4*ct,4), v((OFA, OFB)[br]+32*tt+4*hs,4), "0" if br and hs == 0 else acc))
            P.add(rd[2*ct:2*ct+2])
        hook(hs)
def reduce_store(tt):
    keep, ex, tmp = ACC3 + 32*tt, tt * 24576, OFB + 32*tt
    send = {1: keep + 16, 2: keep + 8, 3: keep + 24}
    P.add([f"ds_write_b128 {v(EXW+i-1)}, {v(send[i]+4*q,4)} offset:{ex+(i-1)*2048+q*1024}" for i in (2, 1, 3) for q in range(2)])
    P.add(WaitLds()); P("s_barrier")
    P.add([f"ds_read_b128 {v(tmp+8*i+4*q,4)}, {v(EXR)} offset:{ex+i*2048+q*1024}" for q in range(2) for i in range(3)])
    for q in range(2):
        for i in range(3):
            P.add([f"v_pk_add_f32 {v(keep+4*q+2*k,2)}, {v(keep+4*q+2*k,2)}, {v(tmp+8*i+4*q+2*k,2)}" for k in range(2)])
        P.add([f"v_cvt_pk_bf16_f32 {v(tmp+24+2*q+k)}, {v(keep+4*q+2*k)}, {v(keep+4*q+2*k+1)}" for k in range(2)])
    P(f"v_permlane32_swap_b32 {v(tmp+24)}, {v(tmp+26)}\nv_permlane32_swap_b32 {v(tmp+25)}, {v(tmp+27)}\ns_mov_b32 {s(S_T1)}, {tt*32768}")
    P(f"buffer_store_dwordx4 {v(tmp+24,4)}, {v(VOUT)}, {s(S_OUT,4)}, {s(S_T1)} offen{('', ' sc1', ' nt', ' sc0 sc1')[OPT['outsc']]}")
H.spoll(8, S_K)
H.stamp()
P.add(o_gather(1, 0)); P.add(o_gather(1, 1))
P(f"s_add_u32 {s(S_K)}, {s(S_R3)}, {WS_FOA + 65536}")
P(f"s_setprio {OPT['p3prio']}")
P.add(WaitTag("wob", "woa", "woc"))
p3(1, 0, True, False)
p3(1, 1, False, True, lambda hs: H.spoll_issue(8, S_K) if hs == 5 else None)
fs()
H.spoll(8, S_K)
H.stamp()
P.add(o_gather(0, 1))
P(f"s_add_u32 {s(S_K)}, {s(S_R3)}, {WS_FOA}")
H.spoll_issue(8, S_K)
P("s_barrier")
P.add(WaitLds())
fs()
H.P.add(Raw("".join(f"    s_xor_b64 {s(4+2*i,2)}, {s(4+2*i,2)}, {s(S_EP,2)}\n" + (f"    s_or_b64 s[4:5], s[4:5], {s(4+2*i,2)}\n" if i else "") for i in range(8))
            + "    s_cmp_eq_u64 s[4:5], 0\n    s_cbranch_scc0 L_late0"))
P.add(o_gather(0, 0))
p3(0, 1, True, True)
reduce_store(1)
P("L_join0:")
late = Role("L"); PH, P = P, late.P
P("L_late0:"); P("s_waitcnt vmcnt(0)"); p3(0, 1, True, True)
late.spoll_issue(8, S_K); reduce_store(1); late.spoll(8, S_K); P.add(o_gather(0, 0))
P(f"buffer_load_dword v0, off, {s(S_WS,4)}, 0\ns_branch L_join0")
late_txt = finalize(P); P = PH
H.stamp()
p3(0, 0, True, True)
H.stamp()
reduce_store(0)
H.stamp()
H.finish()

C = Role("C"); P = C.P
T1, T3, T2 = 32, 64, 96
XB, WB = 128, 152
V_AX, V_T1L, V_T1H, V_T3L, V_T3H, V_T2L, V_T2H = 176, 180, 181, 182, 183, 184, 185
V_LO, V_HI, V_GPR, V_QW = 186, 187, 188, 189
CMA, KB, VPK, QB = 192, 240, 224, 248
r5, hh, rr, cc, nh, u0, u1, cm = 128, 129, 130, 131, 132, 133, 134, 135
P("L_crole:")
P.add(late_ids)
if OPT["prio"]: P("s_setprio 1")
P(f"""
v_and_b32 {v(r5)}, 31, {v(V_LANE)}
v_lshrrev_b32 {v(hh)}, 5, {v(V_LANE)}
v_bfe_u32 {v(u0)}, {v(r5)}, 1, 3
v_xor_b32 {v(u0)}, {v(u0)}, {v(hh)}
v_lshlrev_b32 {v(u0)}, 4, {v(u0)}
v_lshl_add_u32 {v(u0)}, {v(r5)}, 7, {v(u0)}
v_add_u32 {v(V_AX)}, {L_X}, {v(u0)}
v_xor_b32 {v(V_AX+1)}, 32, {v(V_AX)}
v_xor_b32 {v(V_AX+2)}, 64, {v(V_AX)}
v_xor_b32 {v(V_AX+3)}, 0x60, {v(V_AX)}
v_bfe_u32 {v(rr)}, {v(V_LANE)}, 2, 2
v_and_b32 {v(cc)}, 3, {v(V_LANE)}
v_bfe_u32 {v(nh)}, {v(V_LANE)}, 4, 1
v_lshl_add_u32 {v(u0)}, {v(hh)}, 3, {v(rr)}
v_xor_b32 {v(u1)}, {s(S_W4)}, {v(rr)}
v_lshlrev_b32 {v(u1)}, 5, {v(u1)}
v_lshl_add_u32 {v(u1)}, {v(cc)}, 3, {v(u1)}
v_lshl_add_u32 {v(u1)}, {v(u0)}, 8, {v(u1)}
v_mul_u32_u24 {v(V_T1L)}, 0x2080, {v(nh)}
v_add_u32 {v(V_T1L)}, {v(V_T1L)}, {v(u1)}
v_add_u32 {v(V_T1H)}, 0x10000, {v(V_T1L)}
v_xor_b32 {v(V_T3L)}, 0x80, {v(V_T1L)}
v_xor_b32 {v(V_T3H)}, 0x80, {v(V_T1H)}
v_lshrrev_b32 {v(u1)}, 1, {v(rr)}
v_lshl_add_u32 {v(u1)}, {v(nh)}, 1, {v(u1)}
v_xor_b32 {v(u1)}, {s(S_W4)}, {v(u1)}
v_lshlrev_b32 {v(u1)}, 5, {v(u1)}
v_lshl_add_u32 {v(u1)}, {v(cc)}, 3, {v(u1)}
v_lshl_add_u32 {v(u1)}, {v(u0)}, 7, {v(u1)}
v_lshl_add_u32 {v(V_T2L)}, {v(nh)}, 13, {v(u1)}
v_add_u32 {v(V_T2H)}, 0x10000, {v(V_T2L)}
v_and_b32 {v(u0)}, 15, {v(V_LANE)}
v_lshlrev_b32 {v(u0)}, 4, {v(u0)}
v_lshl_add_u32 {v(u0)}, {v(hh)}, 8, {v(u0)}
v_lshl_add_u32 {v(V_LO)}, {v(nh)}, 31, {v(u0)}
v_xor_b32 {v(V_HI)}, {OOB}, {v(V_LO)}
v_lshlrev_b32 {v(V_GPR)}, 4, {v(r5)}
v_add_u32 {v(V_GPR)}, {L_GP}, {v(V_GPR)}
s_lshl_b32 {s(S_T2)}, {s(S_W4)}, 14
v_add_u32 {v(V_QW)}, {s(S_T2)}, {v(V_L16)}
v_lshlrev_b32 {v(u0)}, 2, {v(hh)}
v_sub_u32 {v(cm)}, {v(r5)}, {v(u0)}
s_waitcnt lgkmcnt(0)""")
P.add(entry_stamp())
P(f"""s_memrealtime {s(S_TM,2)}
s_mov_b32 {s(S_C)}, {fhex(QK_SCALE)}
s_mov_b32 {s(S_C+1)}, {fhex(QK_SCALE)}
""")
def l2_prefetch():
    a, b = 140, 141
    o = lines(f"""s_lshr_b32 {s(S_T0)}, s2, 3
s_and_b32 {s(S_T1)}, {s(S_HG)}, 4
s_lshl_b32 {s(S_T1)}, {s(S_T1)}, 7
v_and_b32 {v(a)}, 3, {v(V_LANE)}
v_lshlrev_b32 {v(a)}, 7, {v(a)}
s_cmp_eq_u32 {s(S_W4)}, 2
s_cbranch_scc1 L_pfx
s_cmp_eq_u32 {s(S_W4)}, 3
s_cbranch_scc1 L_pfq
s_cmp_eq_u32 {s(S_W4)}, 0
s_cselect_b32 {s(S_W)}, s6, s12
s_cselect_b32 {s(S_W+1)}, s7, s13
s_mov_b32 {s(S_W+2)}, 1572864
s_mov_b32 {s(S_W+3)}, 0x20000
v_bfe_u32 {v(b)}, {v(V_LANE)}, 2, 1
v_lshl_add_u32 {v(a)}, {v(b)}, 10, {v(a)}
v_lshrrev_b32 {v(b)}, 3, {v(V_LANE)}
v_mul_u32_u24 {v(b)}, 0xc00, {v(b)}
v_add_u32 {v(a)}, {v(a)}, {v(b)}
s_mul_i32 {s(S_T0)}, {s(S_T0)}, {8*3072}
s_add_u32 {s(S_T0)}, {s(S_T0)}, {s(S_T1)}
s_add_u32 {s(S_T0)}, {s(S_T0)}, 1024
buffer_load_dword v190, {v(a)}, {s(S_W,4)}, {s(S_T0)} offen
s_add_u32 {s(S_T0)}, {s(S_T0)}, {256*3072}
buffer_load_dword v191, {v(a)}, {s(S_W,4)}, {s(S_T0)} offen
s_branch L_pfe
L_pfx:
s_mov_b32 {s(S_W)}, s4
s_mov_b32 {s(S_W+1)}, s5
s_mov_b32 {s(S_W+2)}, 2097152
s_mov_b32 {s(S_W+3)}, 0x20000
v_lshrrev_b32 {v(b)}, 2, {v(V_LANE)}
v_lshl_add_u32 {v(a)}, {v(b)}, 10, {v(a)}
s_lshl_b32 {s(S_T0)}, {s(S_T0)}, 14
s_and_b32 {s(S_T1)}, {s(S_RB)}, 24
s_lshl_b32 {s(S_T1)}, {s(S_T1)}, 16
s_add_u32 {s(S_T0)}, {s(S_T0)}, {s(S_T1)}
buffer_load_dword v190, {v(a)}, {s(S_W,4)}, {s(S_T0)} offen
buffer_load_dword v191, {v(a)}, {s(S_W,4)}, {s(S_T0)} offen offset:512
s_branch L_pfe
L_pfq:
s_mov_b32 {s(S_W)}, s6
s_mov_b32 {s(S_W+1)}, s7
s_mov_b32 {s(S_W+2)}, 1572864
s_mov_b32 {s(S_W+3)}, 0x20000
v_lshrrev_b32 {v(b)}, 2, {v(V_LANE)}
v_mul_u32_u24 {v(b)}, 0xc00, {v(b)}
v_add_u32 {v(a)}, {v(a)}, {v(b)}
s_mul_i32 {s(S_T0)}, {s(S_T0)}, {16*3072}
s_add_u32 {s(S_T0)}, {s(S_T0)}, {s(S_T1)}
buffer_load_dword v190, {v(a)}, {s(S_W,4)}, {s(S_T0)} offen
s_mov_b32 {s(S_W)}, s12
s_mov_b32 {s(S_W+1)}, s13
buffer_load_dword v191, {v(a)}, {s(S_W,4)}, {s(S_T0)} offen
L_pfe:""")
    P.add(Raw("\n".join(("" if l.endswith(":") else "    ") + l for l in o)))
    P("s_nop 0")
if OPT["pf"] == 1: l2_prefetch()
P.add(srd(S_WS, 22, WS_SIZE) + srd(S_DBG, 20, 256))
P(f"""s_cmp_eq_u32 s2, 0
s_cselect_b32 {s(S_T2)}, 0, {OOB}
v_lshlrev_b32 v5, 8, v0
v_or_b32 v5, {s(S_T2)}, v5
s_waitcnt lgkmcnt(0)
v_mov_b32 {v(EP)}, {s(S_TM)}
v_mov_b32 {v(EP+1)}, {s(S_TM+1)}
buffer_store_dwordx2 {v(EP,2)}, v5, {s(S_DBG,4)}, 0 offen sc1""")
V_AXW, V_AG, V_GPW, XW, GF, GACC = 4, 8, 9, 240, 248, 190
P(f"""s_lshl_b32 {s(S_T2)}, {s(S_W4)}, 5
v_xor_b32 {v(V_AXW)}, {s(S_T2)}, {v(V_AX)}
v_lshlrev_b32 {v(u0)}, 4, {v(hh)}
s_add_u32 {s(S_T2)}, {s(S_T2)}, {L_G}
v_add_u32 {v(V_AG)}, {s(S_T2)}, {v(u0)}
s_lshl_b32 {s(S_T2)}, {s(S_W4)}, 2
v_add_u32 {v(V_GPW)}, {s(S_T2)}, {v(V_GPR)}
v_mov_b32 {v(GACC)}, 0
v_mov_b32 {v(GACC+1)}, 0""")
P.add(attn_setup(0, 136))
P(f"v_mov_b32 {v(u0)}, {hex(NEG_BIG)}")
P.add([f"v_cndmask_b32 {v(CMA+q)}, {v(u0)}, 0, {s(S_MASK+2*q,2)}" for q in range(16)])
C.stamp()

def frag_reads(n):
    b, m = n % 3, n & 31
    j, ux = m >> 2, m & 3
    base = (stage_of(n) % NSLOT) * SLOT
    hi = base >= 65536; off = base - (65536 if hi else 0)
    x = [f"ds_read_b128 {v(XB+8*b+4*tt,4)}, {v(V_AX+ux)} offset:{j*8192+tt*4096}" for tt in range(2)]
    if n < 32:
        w = [f"ds_read_b64_tr_b16 {v(WB+8*b+4*t+2*qd,2)}, {v(((V_T1L,V_T1H),(V_T3L,V_T3H))[t][hi])} offset:{off+(n&1)*4096+qd*1024}"
             for t in range(2) for qd in range(2)]
        return [w[0], x[0], w[1], w[2], x[1], w[3]]
    w = [f"ds_read_b64_tr_b16 {v(WB+8*b+2*qd,2)}, {v((V_T2L,V_T2H)[hi])} offset:{off+ux*2048+qd*512}" for qd in range(2)]
    return [w[0], x[0], w[1], x[1]]
def step_mfmas(n):
    b = n % 3
    x = lambda tt: v(XB+8*b+4*tt, 4)
    c = lambda r: "0" if n in (0, 32) else v(r, 16)
    if n < 32:
        return [mfma(v(T1,16), v(WB+8*b,4), x(0), c(T1)), mfma(v(T3,16), x(0), v(WB+8*b+4,4), c(T3)),
                mfma(v(T1+16,16), v(WB+8*b,4), x(1), c(T1+16)), mfma(v(T3+16,16), x(1), v(WB+8*b+4,4), c(T3+16))]
    return [mfma(v(T2,16), v(WB+8*b,4), x(0), c(T2)), mfma(v(T2+16,16), v(WB+8*b,4), x(1), c(T2+16))]
def kv_publish():
    o = [f"s_lshl_b32 {s(S_T0)}, {s(S_HEAD)}, 17", f"s_lshl_b32 {s(S_T1)}, {s(S_RB)}, 12", f"s_add_u32 {s(S_T0)}, {s(S_T0)}, {s(S_T1)}"]
    for tt in range(2):
        o += [f"v_pk_mul_f32 {v(T1+16*tt+2*i,2)}, {v(T1+16*tt+2*i,2)}, {s(S_C,2)}" for i in range(4)]
        o += [f"v_cvt_pk_bf16_f32 {v(KA+4*tt+i)}, {v(T1+16*tt+2*i)}, {v(T1+16*tt+2*i+1)}" for i in range(4)]
        o += [ws_st(v(KA+4*tt,4), V_L16, s(S_T0), tt*2048, "kv")]
    for tt in range(2):
        for m in range(2):
            o += [f"v_cvt_pk_bf16_f32 {v(VPK+8*tt+4*m+i)}, {v(T3+16*tt+8*m+2*i)}, {v(T3+16*tt+8*m+2*i+1)}" for i in range(4)]
            o += [ws_st(v(VPK+8*tt+4*m,4), V_LO, s(S_T0), tt*2048+1024+m*512, "kv")]
    o += [f"s_lshl_b32 {s(S_T0)}, {s(S_HEAD)}, 15", f"s_lshl_b32 {s(S_T1)}, {s(S_RB)}, 10",
          f"s_add_u32 {s(S_T0)}, {s(S_T0)}, {s(S_T1)}", f"s_add_u32 {s(S_T0)}, {s(S_T0)}, {WS_HB}",
          ws_st(v(VPK+12,4), V_HI, s(S_T0), 512, "kv")]
    for tt in (1, 0):
        o += [f"v_pk_mul_f32 {v(T1+16*tt+8+2*i,2)}, {v(T1+16*tt+8+2*i,2)}, {s(S_C,2)}" for i in range(4)]
        o += [f"v_cvt_pk_bf16_f32 {v(KB+4*tt+i)}, {v(T1+16*tt+8+2*i)}, {v(T1+16*tt+8+2*i+1)}" for i in range(4)]
        if tt == 1: o += [ws_st(v(KB+4,4), V_HI, s(S_T0), 0, "kv")]
    return o

if OPT["p1only"]:
    P("s_barrier\n" * 25 + "s_endpgm")
P("s_barrier")
C.stamp()
P.add(frag_reads(0)); P.add(frag_reads(1))
queue = []
for n in range(64):
    mf = step_mfmas(n)
    sync = first_of_stage(n + 2) or n == 62
    rd = frag_reads(n + 2) if n < 62 else []
    if n == 20: queue += [ep_load]
    if n < 32 and n % 4 == 1:
        j = n >> 2
        queue += [f"ds_read_b128 {v(GF,4)}, {v(V_AG)} offset:{j*128}",
                  f"ds_read_b128 {v(XW,4)}, {v(V_AXW)} offset:{j*8192}", f"ds_read_b128 {v(XW+4,4)}, {v(V_AXW)} offset:{j*8192+4096}"]
    if n < 32 and n % 4 == 2:
        queue += [f"v_dot2_f32_bf16 {v(GACC+tt)}, {v(XW+4*tt+i)}, {v(GF+i)}, {v(GACC+tt)}" for i in range(4) for tt in range(2)]
    if n == 31:
        queue += [f"v_mov_b32 {v(XW+tt)}, {v(GACC+tt)}" for tt in range(2)]
        queue += [f"v_permlane32_swap_b32 {v(GACC+tt)}, {v(XW+tt)}" for tt in range(2)]
        queue += [f"v_add_f32 {v(GACC+tt)}, {v(GACC+tt)}, {v(XW+tt)}" for tt in range(2)]

    if n == 32:
        pub = kv_publish()
        isst = lambda x: (isinstance(x, Ins) and x.kind == "vst") or (isinstance(x, str) and x.startswith("s_"))
        late_st = [x for x in pub if isst(x)] if OPT["pubat"] > 32 else []
        queue += [x for x in pub if not (late_st and isst(x))]
    if n == OPT["pubat"] and n > 32: queue = late_st + queue
    if n == 56:
        queue += [f"s_mul_i32 {s(S_T0)}, {s(S_W4)}, 6144", f"s_add_u32 {s(S_T0)}, {s(S_T0)}, {L_KV}", f"v_add_u32 {v(V_AXW)}, {s(S_T0)}, {v(V_L16)}"]
    if n == 58:
        queue += [f"ds_write_b32 {v(V_GPW)}, {v(GACC+tt)} offset:{512*tt}" for tt in range(2)]
    if 59 <= n < 62:
        queue += [f"ds_write_b128 {v(V_AXW)}, {v((KB, KB+4, VPK, VPK+4, VPK+8, VPK+12)[i],4)} offset:{i*1024}" for i in (2*(n-59), 2*(n-59)+1)]
    take = OPT["take"] if n >= 32 else (4 if n < 31 else 10)
    if n >= 46: take = 6
    side = queue[:take]; queue = queue[take:]
    P(mf[0])
    if sync:
        P.add(WaitLds()); P("s_barrier")
        if OPT["fine"] in (1, 2, 3): C.stamp()
    if n < 32:
        P.add(rd[0:2]); P.add(side[0:1]); P(mf[1]); P.add(rd[2:4]); P.add(side[1:2]); P(mf[2]); P.add(rd[4:6]); P(mf[3]); P.add(side[2:])
    else:
        P.add(rd[0:2]); P.add(side[:take//2]); P(mf[1]); P.add(rd[2:4]); P.add(side[take//2:])
    if n == 31: C.stamp()
    if n == OPT["kvflag"]:
        C.poll(f"v_cmp_ne_u64 vcc, 0, {v(EP,2)}", ep_load)
        P.add(flag_store("kv", "kv"))
        C.stamp()
assert not queue
C.stamp()
for tt in range(2):
    P.add([f"v_cvt_pk_bf16_f32 {v(QB+4*tt+i)}, {v(T2+16*tt+8+2*i)}, {v(T2+16*tt+8+2*i+1)}" for i in range(4)])
    P(f"ds_write_b128 {v(V_QW)}, {v(QB+4*tt,4)} offset:{tt*1024}")
P.add([f"v_cvt_pk_bf16_f32 {v(QA1+i)}, {v(T2+16+2*i)}, {v(T2+16+2*i+1)}" for i in range(4)])
P.add([f"v_cvt_pk_bf16_f32 {v(QA+i)}, {v(T2+2*i)}, {v(T2+2*i+1)}" for i in range(4)])
P(mfma(v(MG+16,16), v(KA+4,4), v(QA1,4), v(CMA,16))); P(mfma(v(MG,16), v(KA,4), v(QA,4), v(CMA,16)))
P.add(WaitLds()); P("s_barrier")
window_attention(C, [f"v_mov_b32 {v(TMP)}, {hex(ONES)}"] + gate_finish([0, 1], V_GPR, PB)[:2] +
                 [f"v_cndmask_b32 {v(VA+i)}, {v(TMP)}, {v(VPK+i)}, {s(S_LO16,2)}" for i in range(16)] + gate_finish([0, 1], V_GPR, PB)[2:])
P.add(a_publish(0)); P.add(flag_store("oa0", "oa0"))
C.stamp()
C.finish()

full = Prog(); full.items = E.items + H.P.items
bodyH = finalize(full, verbose=True)
full = Prog(); full.items = [Ins("s_load_dwordx16 s[4:19], s[0:1], 0"), Ins("global_load_dword v13, v5, s[96:97]")] + C.P.items
bodyC = "\n".join(finalize(full, verbose=True).split("\n")[2:])
print("stamps H", H.ns, "C", C.ns)
hdr = open("cdna_kernels/%s.s.ref" % NAME).read().split("; Override launch")[0]
if OPT["stamps"]: hdr += f"; stamps {C.ns} {H.ns}\n"
txt = hdr + f"""; One launch: 256 workgroups (4 heads x 64 rows each), 8 waves, hand-offs through d_ws tagged with a per-launch epoch.
; @launch grid=(256,1,1) block=(512,1,1) lds={LDS_BYTES}
.amdgcn_target "amdgcn-amd-amdhsa--gfx950"
.text
.globl {NAME}_kernel
.p2align 12
.p2align 8
.type {NAME}_kernel,@function
{NAME}_kernel:
{bodyH}{bodyC}L_end:
    s_endpgm
{late_txt}{''.join(special_txt)}{slow_path()}    .fill 3072, 4, 0xbf800000
.section .rodata,"a"
.p2align 6
.amdhsa_kernel {NAME}_kernel
  .amdhsa_next_free_vgpr 256
  .amdhsa_next_free_sgpr 102
  .amdhsa_accum_offset 256
  .amdhsa_group_segment_fixed_size 0
  .amdhsa_kernarg_size 80
  .amdhsa_user_sgpr_count 2
  .amdhsa_user_sgpr_kernarg_segment_ptr 1
  .amdhsa_system_sgpr_workgroup_id_x 1
.end_amdhsa_kernel
"""
open(sys.argv[1], "w").write(txt)
```

```python
import sys, math, struct
from asmdsl import Prog, Ins, WaitTag, WaitLds, Raw, finalize

NAME = "gated_mix__sliding_block__sliding_local_dilated__prompt"
OPT = dict(a0mode=3, b24b=1, ybar=1, barpos=0, xat=10, p3prio=0, h1=60, t2at=40, weave=8, wbmid=3, f3step=12, wopf=1, tlb=1, icpf=1, cpf=0, take=30, kvflag=42, pubat=32, prio=1, bprio=2,
           xmap=3, rotmode=4, rotmask=7, outsc=0, stamps=0, fine=0, amp=-1, ampk=8, amprole=1, ampclk=0, p1only=0, pf=0)
for a in sys.argv[2:]:
    k, v_ = a.split("="); assert k in OPT, k; OPT[k] = int(v_)

WS_KV, WS_HB, WS_O = 0, 4 << 20, 5 << 20
WS_FKV, WS_FOB, WS_FOA = 9 << 20, (9 << 20) + 65536, (9 << 20) + 131072
WS_STAMP, WS_SIZE = 10 << 20, 64 << 20
OOB = 0x80000000
NSLOT, SLOT = 5, 16384
L_X, L_WA, L_G, L_GP, LDS_BYTES = 81920, 131584, 156160, 157184, 158208
KVH, KVS, L_KV, L_WO = 2064, 4 * 2064, 65536, 0
QK_SCALE = 0.25 * math.log2(math.e)
NEG_BIG, ONES = 0xf149f2ca, 0x3f803f80

def fhex(x): return "0x%08x" % struct.unpack("<I", struct.pack("<f", x))[0]
def v(a, n=1): return f"v{a}" if n == 1 else f"v[{a}:{a+n-1}]"
def s(a, n=1): return f"s{a}" if n == 1 else f"s[{a}:{a+n-1}]"
def lines(t): return [l.strip() for l in t.strip().split("\n") if l.strip()]
def mfma(d, a, b, c): return f"v_mfma_f32_32x32x16_bf16 {d}, {a}, {b}, {c}"
def srd(base, ptr, nbytes):
    return [f"s_mov_b32 {s(base)}, {s(ptr)}", f"s_mov_b32 {s(base+1)}, {s(ptr+1)}",
            f"s_mov_b32 {s(base+2)}, {nbytes}", f"s_mov_b32 {s(base+3)}, 0x20000"]
def interleave(*ls):
    o, ls = [], [list(l) for l in ls]
    while any(ls):
        for l in ls:
            if l: o.append(l.pop(0))
    return o

S_X, S_W, S_WS, S_WOA, S_WOB, S_OUT, S_DBG, S_G = 24, 28, 32, 36, 40, 44, 48, 36
S_W4, S_HG, S_RB, S_ROT, S_HEAD, S_RB3, S_CB = 52, 53, 54, 55, 56, 57, 58
S_K, S_T0, S_MW, S_MX, S_T1 = 59, 60, 61, 62, 63
S_MASK, S_T2, S_T3, S_LO16, S_TM, S_C, S_SPIN, S_EP = 64, 96, 97, 98, 100, 10, 3, 26
V_LANE, V_L16, V_STAMP, V_FOFF = 1, 2, 3, 4
EP, FLG = 6, 8
V_AK, V_AV0, V_AV1 = 10, 11, 12
G0 = 14
PM, QA = 16, 24
TMP = 28
SB, NEGM, MG, PB, PF, KF, VF = 32, 64, 96, 128, 144, 152, 192
OACC2 = (160, 224)
KA, QA1, VA = 208, 216, 176

class Role:
    def __init__(self, name):
        self.P, self.name, self.ns, self.nl = Prog(), name, 0, 0
    def stamp(self):
        P = self.P
        if OPT["amp"] == self.ns and OPT["amprole"] == (self.name == "H"):
            P.add(WaitLds())
            P(f"{'s_memtime' if OPT['ampclk'] else 's_memrealtime'} {s(S_TM,2)}\ns_waitcnt lgkmcnt(0)\nv_writelane_b32 {v(V_STAMP)}, {s(S_TM)}, 1")
        if OPT["stamps"]:
            P.add(WaitLds())
            P(f"s_memtime {s(S_TM,2)}\ns_waitcnt lgkmcnt(0)\nv_writelane_b32 {v(V_STAMP)}, {s(S_TM)}, {self.ns + 1}")
        self.ns += 1
    def poll(self, cmp_txt, reload_txt):
        P, n = self.P, f"{self.name}{self.nl}"; self.nl += 1
        P(f"s_mov_b32 {s(S_SPIN)}, 0x40000"); P(cmp_txt)
        P(f"s_cmp_eq_u64 vcc, -1\ns_cbranch_scc1 L_pok{n}")
        P.add(Raw(f"""L_pspin{n}:
    {reload_txt}
    s_sub_u32 {s(S_SPIN)}, {s(S_SPIN)}, 1
    s_cbranch_scc1 L_pok{n}
    s_waitcnt vmcnt(0)
    {cmp_txt}
    s_nop 2
    s_cmp_eq_u64 vcc, -1
    s_cbranch_scc0 L_pspin{n}
L_pok{n}:"""))
    def spoll_issue(self, n, off):
        self.P(f"s_load_dwordx{2*n} {s(4,2*n)}, s[22:23], {s(off)} glc")
    def spoll(self, n, off, ignore_from=None):
        P, lb = self.P, f"{self.name}{self.nl}"; self.nl += 1
        P.add(WaitLds())
        t = f"    s_mov_b32 {s(S_SPIN)}, 0x40000\nL_sp{lb}:\n"
        for i in range(n - 1):
            if ignore_from is not None:
                t += f"    s_cmp_lt_u32 {s(ignore_from)}, {n - i}\n    s_cselect_b64 {s(4+2*i,2)}, {s(S_EP,2)}, {s(4+2*i,2)}\n"
        for i in range(n):
            t += f"    s_xor_b64 {s(4+2*i,2)}, {s(4+2*i,2)}, {s(S_EP,2)}\n"
            if i: t += f"    s_or_b64 s[4:5], s[4:5], {s(4+2*i,2)}\n"
        t += (f"    s_cmp_eq_u64 s[4:5], 0\n    s_cbranch_scc1 L_spok{lb}\n"
              f"    s_load_dwordx{2*n} {s(4,2*n)}, s[22:23], {s(off)} glc\n"
              f"    s_sub_u32 {s(S_SPIN)}, {s(S_SPIN)}, 1\n    s_waitcnt lgkmcnt(0)\n    s_cbranch_scc0 L_sp{lb}\nL_spok{lb}:")
        P.add(Raw(t))
    def finish(self):
        P = self.P
        if OPT["stamps"]:
            P(f"s_memrealtime {s(S_TM,2)}\ns_waitcnt lgkmcnt(0) vmcnt(0)\nv_writelane_b32 {v(V_STAMP)}, {s(S_TM)}, 63")
            P(f"""s_lshl_b32 {s(S_T0)}, s2, 3
s_add_u32 {s(S_T0)}, {s(S_T0)}, {s(S_W4)}
s_add_u32 {s(S_T0)}, {s(S_T0)}, {4 if self.name == "H" else 0}
s_lshl_b32 {s(S_T0)}, {s(S_T0)}, 8
s_add_u32 {s(S_T0)}, {s(S_T0)}, {WS_STAMP}
v_lshlrev_b32 v0, 2, {v(V_LANE)}
buffer_store_dword {v(V_STAMP)}, v0, {s(S_WS,4)}, {s(S_T0)} offen""")
        if OPT["amp"] >= 0 and OPT["amprole"] == (self.name == "H"):
            P(f"""s_cmp_lg_u32 s2, 100
s_cbranch_scc1 L_end
v_readlane_b32 {s(S_T0)}, {v(V_STAMP)}, 0
v_readlane_b32 {s(S_T1)}, {v(V_STAMP)}, 1
s_memrealtime {s(S_TM,2)}
s_sub_u32 {s(S_T1)}, {s(S_T1)}, {s(S_T0)}
s_mul_i32 {s(S_T1)}, {s(S_T1)}, {OPT["ampk"]}
s_lshr_b32 {s(S_T1)}, {s(S_T1)}, {4 if OPT["ampclk"] else 0}
s_min_u32 {s(S_T1)}, {s(S_T1)}, 100000
s_waitcnt lgkmcnt(0)
s_mov_b32 {s(S_T0)}, {s(S_TM)}""")
            P.add(Raw(f"""L_amp{self.name}:
    s_memrealtime {s(S_TM,2)}
    s_waitcnt lgkmcnt(0)
    s_sub_u32 {s(S_K)}, {s(S_TM)}, {s(S_T0)}
    s_cmp_lt_u32 {s(S_K)}, {s(S_T1)}
    s_cbranch_scc1 L_amp{self.name}"""))
        P("s_endpgm")

ws_ld = lambda dst, voff, soff, imm=0, tag=None: Ins(
    f"buffer_load_dwordx4 {dst}, {v(voff)}, {s(S_WS,4)}, {soff} offen{' offset:%d' % imm if imm else ''} sc1", tag)
ws_st = lambda src, voff, soff, imm=0, tag=None: Ins(
    f"buffer_store_dwordx4 {src}, {v(voff)}, {s(S_WS,4)}, {soff} offen{' offset:%d' % imm if imm else ''} sc1", tag)
ep_load = f"buffer_load_dwordx2 {v(EP,2)}, off, {s(S_DBG,4)}, 0 sc1"
flag_load = f"buffer_load_dwordx2 {v(FLG,2)}, {v(V_FOFF)}, {s(S_WS,4)}, {s(S_K)} offen sc1"
flag_cmp = f"v_cmp_eq_u64 vcc, {v(FLG,2)}, {v(EP,2)}"
def flag_store(data_tag, kind):
    if kind == "kv":
        o = lines(f"""v_mul_u32_u24 v0, 56, {v(V_LANE)}
v_add_u32 v0, 88, v0
s_sub_u32 {s(S_T1)}, 31, {s(S_RB)}
s_min_u32 {s(S_T1)}, {s(S_T1)}, 4
v_cmp_gt_u32 vcc, {s(S_T1)}, {v(V_LANE)}
s_cmp_eq_u32 {s(S_RB)}, 0
s_cselect_b32 {s(S_T1)}, 24, {OOB}
v_mov_b32 v5, {s(S_T1)}
v_cndmask_b32 v0, v5, v0, vcc
s_lshl_b32 {s(S_T0)}, {s(S_HEAD)}, 5
s_add_u32 {s(S_T0)}, {s(S_T0)}, {s(S_RB)}
s_lshl_b32 {s(S_T0)}, {s(S_T0)}, 6
s_add_u32 {s(S_T0)}, {s(S_T0)}, {WS_FKV}""")
    else:
        o = lines(f"""v_lshlrev_b32 v0, 8, {v(V_LANE)}
v_cmp_gt_u32 vcc, 8, {v(V_LANE)}
v_mov_b32 v5, {OOB}
v_cndmask_b32 v0, v5, v0, vcc
s_lshl_b32 {s(S_T0)}, {s(S_RB)}, 8
s_add_u32 {s(S_T0)}, {s(S_T0)}, {s(S_HEAD)}
s_lshl_b32 {s(S_T0)}, {s(S_T0)}, 3
s_add_u32 {s(S_T0)}, {s(S_T0)}, { {"ob": WS_FOB, "oa0": WS_FOA, "oa1": WS_FOA + 65536}[kind] }""")
    return o + [WaitTag(data_tag), Ins(f"buffer_store_dwordx2 {v(EP,2)}, v0, {s(S_WS,4)}, {s(S_T0)} offen sc1", "flag")]

def max_tree(dst, regs, init=False):
    regs, o = list(regs), []
    if not init:
        o.append(f"v_max3_f32 {v(dst)}, {v(regs[0])}, {v(regs[1])}, {v(regs[2])}"); regs = regs[3:]
    while len(regs) >= 2:
        o.append(f"v_max3_f32 {v(dst)}, {v(dst)}, {v(regs[0])}, {v(regs[1])}"); regs = regs[2:]
    if regs: o.append(f"v_max_f32 {v(dst)}, {v(dst)}, {v(regs[0])}")
    return o
def cross_max(m, t):
    return [f"v_mov_b32 {v(t)}, {v(m)}", f"v_permlane32_swap_b32 {v(m)}, {v(t)}", f"v_max_f32 {v(m)}, {v(m)}, {v(t)}"]

def attn_setup(t, tmp):
    r5, hh, cm, u = tmp, tmp + 1, tmp + 2, tmp + 3
    o = lines(f"""v_and_b32 {v(r5)}, 31, {v(V_LANE)}
v_lshrrev_b32 {v(hh)}, 5, {v(V_LANE)}
v_lshlrev_b32 {v(u)}, 2, {v(hh)}
v_sub_u32 {v(cm)}, {v(r5)}, {v(u)}
s_mul_i32 {s(S_T2)}, {s(S_W4)}, {KVH}
s_add_u32 {s(S_T2)}, {s(S_T2)}, {L_KV + t*KVS}
v_add_u32 {v(V_AK)}, {s(S_T2)}, {v(V_L16)}
v_and_b32 {v(u)}, 15, {v(V_LANE)}
v_lshlrev_b32 {v(u)}, 4, {v(u)}
v_lshl_add_u32 {v(u)}, {v(hh)}, 8, {v(u)}
v_mov_b32 {v(hh)}, 0x400
v_cndmask_b32 {v(V_AV0)}, {v(hh)}, {v(u)}, {s(S_LO16,2)}
v_mov_b32 {v(hh)}, 0x200
v_cndmask_b32 {v(V_AV1)}, {v(hh)}, {v(u)}, {s(S_LO16,2)}
v_add_u32 {v(V_AV0)}, {s(S_T2)}, {v(V_AV0)}
v_add_u32 {v(V_AV1)}, {s(S_T2)}, {v(V_AV1)}
v_mov_b32 {v(u)}, 0xffff""")
    o += [f"v_cmp_le_i32 {s(S_MASK+2*q,2)}, {8*(q>>2)+(q&3)}, {v(cm)}" for q in range(16)]
    o += [f"v_cndmask_b32 {v(PM+pq)}, 0, {v(u)}, {s(S_MASK+4*pq,2)}" for pq in range(8)]
    o += [f"v_cndmask_b32 {v(PM+pq)}, {v(PM+pq)}, -1, {s(S_MASK+4*pq+2,2)}" for pq in range(8)]
    return o

def gate_finish(tiles, addr, tmp):
    o = [f"ds_read_b128 {v(tmp+4*t,4)}, {v(addr)} offset:{512*t}" for t in tiles]
    seq = []
    for t in tiles:
        b = tmp + 4*t
        seq.append([f"v_add_f32 {v(b)}, {v(b)}, {v(b+1)}", f"v_add_f32 {v(b+2)}, {v(b+2)}, {v(b+3)}",
                    f"v_add_f32 {v(b)}, {v(b)}, {v(b+2)}", f"v_mul_f32 {v(b)}, {fhex(-math.log2(math.e))}, {v(b)}",
                    f"v_exp_f32 {v(b)}, {v(b)}", f"v_add_f32 {v(b)}, 1.0, {v(b)}", f"v_rcp_f32 {v(G0+t)}, {v(b)}"])
    return o + interleave(*seq)

def o_pack(acc, o0, lreg, fac, dst, f):
    return ([f"v_rcp_f32 {v(f)}, {v(acc+lreg)}"] + fac +
            [f"v_mul_f32 {v(acc+o0+i)}, {v(f)}, {v(acc+o0+i)}" for i in range(8)] +
            [f"v_cvt_pk_bf16_f32 {v(dst+i)}, {v(acc+o0+2*i)}, {v(acc+o0+2*i+1)}" for i in range(4)])
def o_store(br, tt, src, tag):
    return [f"s_lshl_b32 {s(S_T0)}, {s(S_RB)}, 17", f"s_lshl_b32 {s(S_T1)}, {s(S_HEAD)}, 10",
            f"s_add_u32 {s(S_T0)}, {s(S_T0)}, {s(S_T1)}", f"s_add_u32 {s(S_T0)}, {s(S_T0)}, {WS_O + br*65536 + tt*32768}",
            ws_st(v(src,4), V_L16, s(S_T0), 0, tag)]

OPK1, CHK, S_BAD, V_GPR = 220, 240, 24, 188
def o_check(t):
    o, m = OACC2[t], CHK
    return ([f"s_mov_b32 {s(S_T1)}, 0x7b800000", f"v_add_f32 {v(m)}, abs({v(o)}), abs({v(o+8)})", f"v_add_f32 {v(m+1)}, abs({v(o+1)}), abs({v(o+2)})"] +
            [f"v_add_f32 {v(m+(i&1))}, {v(m+(i&1))}, abs({v(o+i)})" for i in range(3, 8)] +
            [f"v_add_f32 {v(m)}, {v(m)}, {v(m+1)}", f"v_cmp_lt_f32 vcc, {v(m)}, {s(S_T1)}", "s_cmp_eq_u64 vcc, -1"])
def a_publish(t):
    dst = (PF, OPK1)[t]
    return o_pack(OACC2[t], 0, 8, [f"v_mul_f32 {v(CHK)}, {v(CHK)}, {v(G0+t)}"], dst, CHK) + o_store(0, t, dst, f"oa{t}")

def window_attention(R, extra):
    P = R.P
    Q = lambda t: v((QA, QA1)[t], 4)
    items = [(1, u) for u in range(1, 8)] + [(0, u) for u in range(8)]
    merged = lambda j: items[j][1] == items[j][0]
    kread = lambda j: [f"ds_read_b128 {v(KF+4*(j&1),4)}, {v(V_AK)} offset:{items[j][1]*KVS}"] if j < 15 else []
    vread = lambda j: [f"ds_read_b128 {v(VF+8*(j&1),4)}, {v(V_AV0)} offset:{items[j][1]*KVS+1024}",
                       f"ds_read_b128 {v(VF+8*(j&1)+4,4)}, {v(V_AV1)} offset:{items[j][1]*KVS+1536}"] if j < 15 else []
    M = (TMP, TMP + 2)
    P(f"v_mov_b32 v5, {v(V_GPR)}")
    acc = lambda t: v(OACC2[t], 16)
    negm = lambda t: v(NEGM+16*t, 16)
    score = lambda j: [mfma(v(SB+16*(j&1),16), v(KF+4*(j&1),4), Q(items[j][0]), negm(items[j][0]))] if j < 15 else []
    exps = lambda S: [f"v_exp_f32 {v(S+i)}, {v(S+i)}" for i in range(16)]
    cvts = lambda d, S: [f"v_cvt_pk_bf16_f32 {v(d+k)}, {v(S+2*k)}, {v(S+2*k+1)}" for k in range(8)]
    P.add(extra)
    P.add(interleave(*[max_tree(M[t], range(MG+16*t, MG+16*t+16)) + cross_max(M[t], M[t]+1) for t in (1, 0)]))
    for t in (1, 0):
        P.add([f"v_pk_add_f32 {v(NEGM+16*t+2*i,2)}, 0, {v(M[t],2)} op_sel_hi:[0,0] neg_lo:[0,1] neg_hi:[0,1]" for i in range(8)])
        if t == 1: P(mfma(v(SB+16,16), v(KA,4), Q(1), negm(1)))
    P(mfma(v(MG+16,16), v(KA+4,4), Q(1), negm(1)))
    e, c = exps(SB+16), cvts(PB+8, SB+16)
    P.add(e[0:4]); P(mfma(v(MG,16), v(KA,4), Q(0), negm(0))); P.add(e[4:8]); P.add(c[0:4]); P.add(e[8:10])
    P(mfma(acc(1), v(VA,4), v(PB+8,4), "0")); P.add(e[10:16])
    R.stamp()
    P.add(WaitLds()); P("s_barrier")
    R.stamp()
    P.add(kread(0) + kread(1) + vread(0) + vread(1)); P.add(c[4:8])
    P.add(score(0)); P.add(kread(2))
    pend = [mfma(acc(1), v(VA+4,4), v(PB+12,4), acc(1))]
    for j, (t, u) in enumerate(items):
        S, Pp, Vf = SB + 16*(j & 1), PB + 8*(j & 1), VF + 8*(j & 1)
        nxt = score(j + 1) + (kread(j + 3) if j != 1 else [])
        if j == 2: P("s_barrier"); P.add(kread(4))
        if j == 4: P.add(gate_finish([0, 1], 5, CHK))
        if merged(j):
            g = MG + 16*t
            sel = [f"v_cndmask_b32 {v(g+i)}, {v(S+i)}, {v(g+i)}, {s(S_MASK+2*i,2)}" for i in range(16)]
            e, c = exps(g), cvts(PF, g)
            an = [f"v_and_b32 {v(Pp+i)}, {v(PM+i)}, {v(PF+i)}" for i in range(8)]
            xo = [f"v_xor_b32 {v(g+i)}, {v(PF+i)}, {v(Pp+i)}" for i in range(8)]
            if j == 0:
                P.add(pend); P.add(nxt); P.add(sel)
            else:
                P.add(sel[0:2]); P.add(pend); P.add(sel[2:10]); P.add(nxt); P.add(sel[10:])
            P.add(e[0:8]); P.add(c[0:4]); P.add(an[0:4]); P.add(e[8:10])
            P(mfma(acc(t), v(VA+8*t,4), v(Pp,4), acc(t) if t else "0"))
            P.add(e[10:16]); P.add(xo[0:4]); P.add(c[4:8])
            P(mfma(acc(t), v(Vf,4), v(g,4), acc(t)))
            P.add(an[4:8]); P.add(xo[4:8])
            pend = [mfma(acc(t), v(VA+8*t+4,4), v(Pp+4,4), acc(t)), [mfma(acc(t), v(Vf+4,4), v(g+4,4), acc(t))] + vread(j + 2)]
            if j == 7:
                P.add(o_check(1)); P(f"s_cselect_b32 {s(S_BAD)}, 0, 1\ns_cbranch_scc0 L_skip1")
                P.add(a_publish(1)); P("L_skip1:")
                R.stamp()
        else:
            e, c = exps(S), cvts(Pp, S)
            P.add(e[0:2]); P.add(pend[0]); P.add(e[2:5])
            if len(pend) > 1: P.add(pend[1])
            P.add(e[5:6 if len(pend) == 1 else 8]); P.add(nxt); P.add(e[6 if len(pend) == 1 else 8:8])
            P.add(c[0:4]); P.add(e[8:10 if len(pend) == 1 else 12])
            P(mfma(acc(t), v(Vf,4), v(Pp,4), acc(t)))
            P.add(e[10 if len(pend) == 1 else 12:16]); P.add(c[4:8])
            pend = [[mfma(acc(t), v(Vf+4,4), v(Pp+4,4), acc(t))] + vread(j + 2)]
        if OPT["fine"] == 5: R.stamp()
        if j == OPT["xat"]:
            P.add(WaitLds()); P("s_barrier")
    P.add(pend)
    P.add(o_check(0)); P(f"s_cbranch_scc0 L_slow\ns_cmp_lg_u32 {s(S_BAD)}, 0\ns_cbranch_scc1 L_slow\nL_back:")
    R.stamp()

def slow_path():
    F = Prog()
    F(f"L_slow:\ns_cmp_eq_u32 {s(S_BAD)}, 0\ns_cbranch_scc1 L_exact0")
    G = Prog(); G.add(a_publish(1))
    return finalize(F) + exact_attention(1) + finalize(G) + exact_attention(0) + "    s_branch L_back\n"

def exact_attention(t):
    F = Prog(); q, M, acc = v((QA, QA1)[t], 4), TMP, v(OACC2[t], 16)
    KO, VO, G = TMP + 2, TMP + 3, S_T0
    def tile(rel, kdst, vdst):
        o = [f"s_add_i32 {s(S_K)}, {s(G)}, {rel}", f"s_cmp_ge_i32 {s(S_K)}, 0", f"s_cselect_b64 vcc, -1, 0",
             f"s_cselect_b32 {s(S_TM)}, {hex(ONES)}, 0", f"s_max_i32 {s(S_K)}, {s(S_K)}, 0", f"s_lshl_b32 {s(S_K)}, {s(S_K)}, 11",
             f"s_lshl_b32 {s(S_T1)}, {s(S_HEAD)}, 17", f"s_add_u32 {s(S_K)}, {s(S_K)}, {s(S_T1)}",
             f"v_and_b32 {v(KO)}, 0x200, {v(V_L16)}", f"v_cndmask_b32 {v(KO)}, {v(KO)}, {v(V_L16)}, vcc", ws_ld(v(kdst,4), KO, s(S_K))]
        if vdst is not None:
            o += [f"v_mov_b32 {v(vdst+i)}, {s(S_TM)}" for i in range(8)]
            o += [f"s_cmp_lg_u32 {s(S_TM)}, 0", f"s_cselect_b32 {s(S_K)}, {s(S_K)}, {WS_SIZE}", f"s_mov_b64 exec, {s(S_LO16,2)}",
                  ws_ld(v(vdst,4), VO, s(S_K), 1024), ws_ld(v(vdst+4,4), VO, s(S_K), 1536), "s_mov_b64 exec, -1"]
        return o
    F(f"L_exact{t}:\ns_waitcnt vmcnt(0) lgkmcnt(0)\ns_nop 15")
    F(f"""s_lshl_b32 {s(G)}, {s(S_RB)}, 1
s_sub_u32 {s(G)}, {s(G)}, {8 - t}
v_lshrrev_b32 {v(VO)}, 1, {v(V_L16)}
v_and_b32 {v(VO)}, 0x100, {v(VO)}
v_and_b32 {v(KO)}, 0xf0, {v(V_L16)}
v_or_b32 {v(VO)}, {v(VO)}, {v(KO)}""")
    F.add(tile(8, KF, VF)); F.add(tile(0, KF+4, VF+8))
    F(mfma(v(MG,16), v(KF,4), q, "0")); F(mfma(v(SB,16), v(KF+4,4), q, "0"))
    F.add([f"v_cndmask_b32 {v(MG+i)}, {v(SB+i)}, {v(MG+i)}, {s(S_MASK+2*i,2)}" for i in range(16)])
    F.add(max_tree(M, range(MG, MG+16)))
    F(f"s_mov_b32 {s(S_TM+1)}, 7\nL_exact_m{t}:\ns_add_u32 {s(G)}, {s(G)}, 1")
    F.add(tile(0, KF, None))
    F(mfma(v(SB,16), v(KF,4), q, "0"))
    F.add(max_tree(M, range(SB, SB+16), init=True))
    F(f"s_sub_u32 {s(S_TM+1)}, {s(S_TM+1)}, 1\ns_cmp_lg_u32 {s(S_TM+1)}, 0\ns_cbranch_scc1 L_exact_m{t}")
    F.add(cross_max(M, M+1))
    F.add([f"v_sub_f32 {v(MG+i)}, {v(MG+i)}, {v(M)}" for i in range(16)])
    F.add([f"v_exp_f32 {v(MG+i)}, {v(MG+i)}" for i in range(16)])
    F.add([f"v_cvt_pk_bf16_f32 {v(PF+i)}, {v(MG+2*i)}, {v(MG+2*i+1)}" for i in range(8)])
    F.add([f"v_and_b32 {v(PB+i)}, {v(PM+i)}, {v(PF+i)}" for i in range(8)])
    F.add([f"v_xor_b32 {v(PF+i)}, {v(PF+i)}, {v(PB+i)}" for i in range(8)])
    F(mfma(acc, v(VF,4), v(PB,4), "0")); F(mfma(acc, v(VF+4,4), v(PB+4,4), acc))
    F(mfma(acc, v(VF+8,4), v(PF,4), acc)); F(mfma(acc, v(VF+12,4), v(PF+4,4), acc))
    F(f"s_sub_u32 {s(G)}, {s(G)}, 7\ns_mov_b32 {s(S_TM+1)}, 7\ns_nop 15\nL_exact_e{t}:\ns_add_u32 {s(G)}, {s(G)}, 1")
    F.add(tile(0, KF, VF))
    F(mfma(v(SB,16), v(KF,4), q, "0"))
    F.add([f"v_sub_f32 {v(SB+i)}, {v(SB+i)}, {v(M)}" for i in range(16)])
    F.add([f"v_exp_f32 {v(SB+i)}, {v(SB+i)}" for i in range(16)])
    F.add([f"v_cvt_pk_bf16_f32 {v(PB+i)}, {v(SB+2*i)}, {v(SB+2*i+1)}" for i in range(8)])
    F(mfma(acc, v(VF,4), v(PB,4), acc)); F(mfma(acc, v(VF+4,4), v(PB+4,4), acc))
    F(f"s_nop 15\ns_sub_u32 {s(S_TM+1)}, {s(S_TM+1)}, 1\ns_cmp_lg_u32 {s(S_TM+1)}, 0\ns_cbranch_scc1 L_exact_e{t}")
    return finalize(F)

E = Prog()
hb = {4: 2, 3: 1, 2: 0, 1: 3}[OPT["xmap"]]
if OPT["stamps"] or OPT["amp"] >= 0:
    E("s_memtime s[64:65]\ns_memrealtime s[66:67]")
def entry_stamp():
    if OPT["stamps"]:
        return [f"v_mov_b32 {v(V_STAMP)}, 0", f"v_writelane_b32 {v(V_STAMP)}, s64, 0", f"v_writelane_b32 {v(V_STAMP)}, s66, 62"]
    if OPT["amp"] >= 0:
        return [f"v_mov_b32 {v(V_STAMP)}, 0", f"v_writelane_b32 {v(V_STAMP)}, {'s64' if OPT['ampclk'] else 's66'}, 0"]
    return []
code_pf = f"""s_getpc_b64 {s(S_T2,2)}
L_pc:
s_lshl2_add_u32 {s(S_T1)}, {s(S_T0)}, {s(S_W4)}
s_and_b32 {s(S_T1)}, {s(S_T1)}, 63
s_lshl_b32 {s(S_T1)}, {s(S_T1)}, 9
s_sub_u32 {s(S_T2)}, {s(S_T2)}, L_pc-{NAME}_kernel
s_subb_u32 {s(S_T3)}, {s(S_T3)}, 0
v_and_b32 v5, 3, {v(V_LANE)}
v_lshl_add_u32 v5, v5, 7, {s(S_T1)}
global_load_dword v13, v5, {s(S_T2,2)}"""
if OPT["cpf"] == 2:
    E(f"""s_getpc_b64 {s(S_T2,2)}
s_bfe_u32 {s(S_T1)}, s2, 0x50003
v_lshrrev_b32 v5, 6, v0
v_lshlrev_b32 v5, 7, v5
v_lshl_add_u32 v5, {s(S_T1)}, 10, v5
global_load_dword v13, v5, {s(S_T2,2)}""")
if OPT["cpf"] == 3:
    E(f"""s_getpc_b64 {s(S_T2,2)}
s_bfe_u32 {s(S_T1)}, s2, 0x30003
v_lshrrev_b32 v5, 4, v0
v_lshlrev_b32 v5, 7, v5
v_lshl_add_u32 v5, {s(S_T1)}, 12, v5
global_load_dword v13, v5, {s(S_T2,2)}""")
E(f"""
s_cmp_ge_u32 s2, 256
s_cbranch_scc1 L_end
s_load_dwordx16 s[4:19], s[0:1], 0
s_load_dwordx4 s[20:23], s[0:1], 64
v_lshrrev_b32 v4, 6, v0
v_and_b32 {v(V_LANE)}, 63, v0
s_lshr_b32 {s(S_T0)}, s2, 3
v_readfirstlane_b32 {s(S_MX)}, v4
""")
E(f"""
s_and_b32 {s(S_T1)}, s2, {(8 >> hb) - 1}
s_lshl_b32 {s(S_HG)}, {s(S_T1)}, {hb}
s_and_b32 {s(S_K)}, {s(S_T0)}, {(1 << hb) - 1}
s_add_u32 {s(S_HG)}, {s(S_HG)}, {s(S_K)}
s_bfe_u32 {s(S_K)}, s2, {hex((hb << 16) | (3 - hb))}
s_lshl_b32 {s(S_RB)}, {s(S_K)}, {5 - hb}
s_lshr_b32 {s(S_ROT)}, {s(S_T0)}, {hb}
s_add_u32 {s(S_RB)}, {s(S_RB)}, {s(S_ROT)}
s_and_b32 {s(S_W4)}, {s(S_MX)}, 3
""")
if OPT["cpf"] == 1:
    E(f"""s_cmp_lt_u32 {s(S_MX)}, 4
s_cbranch_scc0 L_hrole""")
    E(code_pf)
    E("s_branch L_crole\nL_hrole:")
elif OPT["cpf"] >= 4:
    E(f"""s_cmp_lt_u32 {s(S_MX)}, 4
s_cbranch_scc0 L_hrole
s_getpc_b64 {s(S_T2,2)}
L_pc:
s_lshl2_add_u32 {s(S_T1)}, {s(S_T0)}, {s(S_W4)}
s_lshl_b32 {s(S_T1)}, {s(S_T1)}, 8
s_sub_u32 {s(S_T2)}, {s(S_T2)}, L_pc-{NAME}_kernel
s_subb_u32 {s(S_T3)}, {s(S_T3)}, 0
s_load_dword s70, {s(S_T2,2)}, {s(S_T1)}
s_add_u32 {s(S_T1)}, {s(S_T1)}, 128
s_load_dword s71, {s(S_T2,2)}, {s(S_T1)}""")
    if OPT["cpf"] == 5:
        E("s_waitcnt lgkmcnt(0)")
        for i, ptr in enumerate((6, 12, 4, 16, 20, 8, 14, 18, 22)):
            E(f"s_load_dword s{72+i}, {s(ptr,2)}, 0")
        for i in range(1, 5):
            E(f"s_mov_b32 {s(S_T1)}, {i << 21}\ns_load_dword s{80+i}, s[22:23], {s(S_T1)}")
    E("s_branch L_crole\nL_hrole:")
else:
    E(f"s_cmp_lt_u32 {s(S_MX)}, 4\ns_cbranch_scc1 L_crole")
late_ids = lines(f"""
s_lshr_b32 {s(S_T0)}, s2, 3
s_and_b32 {s(S_RB3)}, s2, 7
s_lshl_b32 {s(S_RB3)}, {s(S_RB3)}, 2
s_lshr_b32 {s(S_T1)}, {s(S_T0)}, 3
s_add_u32 {s(S_RB3)}, {s(S_RB3)}, {s(S_T1)}
s_and_b32 {s(S_CB)}, {s(S_T0)}, 7
s_lshl_b32 {s(S_HEAD)}, {s(S_HG)}, 2
s_add_u32 {s(S_HEAD)}, {s(S_HEAD)}, {s(S_W4)}
s_mov_b32 {s(S_LO16)}, 0xffff
s_mov_b32 {s(S_LO16+1)}, 0xffff
v_lshlrev_b32 {v(V_L16)}, 4, {v(V_LANE)}
""")
rot_code = {
 0: f"s_and_b32 {s(S_ROT)}, {s(S_ROT)}, {OPT['rotmask']}",
 1: f"s_and_b32 {s(S_ROT)}, s2, 7",
 4: f"s_add_u32 {s(S_ROT)}, {s(S_ROT)}, {s(S_HG)}\ns_and_b32 {s(S_ROT)}, {s(S_ROT)}, 7",
 5: f"s_add_u32 {s(S_ROT)}, {s(S_ROT)}, {s(S_HG)}\ns_and_b32 {s(S_ROT)}, {s(S_ROT)}, 3\ns_lshl_b32 {s(S_ROT)}, {s(S_ROT)}, 1",
 6: f"s_add_u32 {s(S_ROT)}, {s(S_ROT)}, {s(S_HG)}\ns_and_b32 {s(S_ROT)}, {s(S_ROT)}, 1\ns_lshl_b32 {s(S_ROT)}, {s(S_ROT)}, 2",
}[OPT["rotmode"]]

def stage_of(n): return n >> 1 if n < 32 else 16 + ((n - 32) >> 2)
def first_of_stage(n): return n < 64 and (n == 0 or stage_of(n) != stage_of(n - 1))

H = Role("H"); P = H.P
VX, VW1, VW2 = 160, 162, 166
V_AXW, V_AG, V_GPW, GACC, XW, GF = 170, 171, 172, 174, 176, 184
i3, i4, p7, t0, t1, t2 = 32, 33, 34, 35, 36, 37
def raw(i):
    if OPT["fine"] == 3: P(f"s_memtime s[{68+2*i}:{69+2*i}]")
raw(0)
P(rot_code)
P(f"""
v_lshrrev_b32 {v(i3)}, 3, {v(V_LANE)}
v_lshrrev_b32 {v(i4)}, 4, {v(V_LANE)}
v_and_b32 {v(p7)}, 7, {v(V_LANE)}
s_lshl_b32 {s(S_T0)}, {s(S_W4)}, 4
v_add_u32 {v(t0)}, {s(S_T0)}, {v(i3)}
v_lshlrev_b32 {v(t0)}, 10, {v(t0)}
v_xor_b32 {v(t1)}, {v(p7)}, {v(i4)}
v_lshl_add_u32 {v(VX)}, {v(t1)}, 4, {v(t0)}
v_xor_b32 {v(VX+1)}, 64, {v(VX)}
v_add_u32 {v(VX+1)}, {0x2000 - 1024}, {v(VX+1)}
s_lshr_b32 {s(S_T0)}, {s(S_W4)}, 1
s_and_b32 {s(S_T1)}, {s(S_W4)}, 1
s_lshl_b32 {s(S_K)}, {s(S_T0)}, 4
v_add_u32 {v(t0)}, {s(S_K)}, {v(i4)}
v_mul_u32_u24 {v(t0)}, 0xc00, {v(t0)}
v_lshlrev_b32 {v(t1)}, 1, {v(i4)}
v_xor_b32 {v(t1)}, {v(t1)}, {v(p7)}
v_lshl_add_u32 {v(t0)}, {v(t1)}, 4, {v(t0)}
v_and_b32 {v(t1)}, 1, {v(i3)}
v_xor_b32 {v(t1)}, {s(S_T1)}, {v(t1)}
v_lshlrev_b32 {v(t1)}, 10, {v(t1)}
s_lshl_b32 {s(S_T2)}, {s(S_HG)}, 7
s_add_u32 {s(S_K)}, {s(S_T2)}, 1024
v_add3_u32 {v(VW1)}, {v(t0)}, {v(t1)}, {s(S_K)}
v_add_u32 {v(VW1+1)}, {12288 - 1024}, {v(VW1)}
v_add_u32 {v(VW1+2)}, {2*(12288 - 1024)}, {v(VW1)}
v_add_u32 {v(VW1+3)}, {3*(12288 - 1024)}, {v(VW1)}
s_lshl_b32 {s(S_MW)}, {s(S_T1)}, 13
s_lshl_b32 {s(S_K)}, {s(S_T0)}, 12
s_add_u32 {s(S_MW)}, {s(S_MW)}, {s(S_K)}
s_lshl_b32 {s(S_MX)}, {s(S_W4)}, 11
s_add_u32 {s(S_MX)}, {s(S_MX)}, {L_X}""")
raw(1)
P("s_waitcnt lgkmcnt(0)")
raw(2)
P.add(entry_stamp())
P.add(srd(S_X, 4, 2097152))
P(f"""s_cmp_eq_u32 {s(S_T1)}, 0
s_cselect_b32 {s(S_W)}, s6, s12
s_cselect_b32 {s(S_W+1)}, s7, s13
s_mov_b32 {s(S_W+2)}, 1572864
s_mov_b32 {s(S_W+3)}, 0x20000""")
if OPT["fine"] != 3: H.stamp()
def dma(voff, rsrc, soff, imm, tag, flags=""):
    return Ins(f"buffer_load_dwordx4 {v(voff)}, {s(rsrc,4)}, {soff} offen{' offset:%d' % imm if imm else ''}{flags} lds", tag)
def x_dma(j):
    return [f"s_add_u32 {s(S_K)}, {s(S_ROT)}, {j}", f"s_and_b32 {s(S_K)}, {s(S_K)}, 7", f"s_lshl_b32 {s(S_K)}, {s(S_K)}, 7",
            f"s_lshl_b32 {s(S_T2)}, {s(S_RB)}, 16", f"s_add_u32 m0, {s(S_MX)}, {j*8192}", f"s_add_u32 {s(S_K)}, {s(S_K)}, {s(S_T2)}",
            dma(VX, S_X, s(S_K), 0, f"x{j}"), dma(VX+1, S_X, s(S_K), 1024, f"x{j}")]
def w_dma(S):
    if S < 16:
        o = [f"s_lshl_b32 {s(S_T3)}, {s(S_ROT)}, 1", f"s_add_u32 {s(S_T3)}, {s(S_T3)}, {S}", f"s_and_b32 {s(S_T3)}, {s(S_T3)}, 15"]
    else:
        o = [f"s_add_u32 {s(S_T3)}, {s(S_ROT)}, {S-16}", f"s_and_b32 {s(S_T3)}, {s(S_T3)}, 7"]
    o += [f"s_add_u32 m0, {s(S_MW)}, {(S % NSLOT)*SLOT}", f"s_mul_i32 {s(S_T3)}, {s(S_T3)}, {(32 if S < 16 else 64)*3072}"]
    return o + [dma((VW1 if S < 16 else VW2) + t, S_W, s(S_T3), t*1024, f"w{S}") for t in range(4)]
P.add(x_dma(0)); raw(3)
P.add(w_dma(0)); raw(4)
P.add(w_dma(1)); raw(5)
P(f"""s_lshl_b32 {s(S_K)}, {s(S_ROT)}, 3
v_add_u32 {v(t2)}, {s(S_K)}, {v(V_LANE)}
v_and_b32 {v(t2)}, 63, {v(t2)}
v_lshlrev_b32 {v(t2)}, 4, {v(t2)}""")
P.add(srd(S_G, 16, 1024)); P(f"s_mov_b32 m0, {L_G}"); P.add(dma(t2, S_G, "0", 0, "w1"))
P.add(late_ids)
h_misc = lines(f"""
s_lshr_b32 {s(S_T0)}, {s(S_W4)}, 1
s_and_b32 {s(S_T1)}, {s(S_W4)}, 1
s_lshl_b32 {s(S_T0)}, {s(S_T0)}, 5
v_add_u32 {v(t0)}, {s(S_T0)}, {v(i3)}
v_mul_u32_u24 {v(t0)}, 0xc00, {v(t0)}
v_and_b32 {v(t1)}, 1, {v(i4)}
s_lshl_b32 {s(S_T1)}, {s(S_T1)}, 1
v_add_u32 {v(t1)}, {s(S_T1)}, {v(t1)}
v_lshlrev_b32 {v(t1)}, 1, {v(t1)}
v_xor_b32 {v(t1)}, {v(t1)}, {v(p7)}
v_lshl_add_u32 {v(t0)}, {v(t1)}, 4, {v(t0)}
s_lshl_b32 {s(S_T0)}, {s(S_HG)}, 7
v_add_u32 {v(VW2)}, {s(S_T0)}, {v(t0)}
v_add_u32 {v(VW2+1)}, {24576 - 1024}, {v(VW2)}
v_add_u32 {v(VW2+2)}, {2*(24576 - 1024)}, {v(VW2)}
v_add_u32 {v(VW2+3)}, {3*(24576 - 1024)}, {v(VW2)}
""") + srd(S_WS, 22, WS_SIZE) + srd(S_DBG, 20, 256)
P.add(h_misc)
if OPT["fine"] == 3:
    raw(6); P("s_waitcnt vmcnt(9)"); raw(7); P("s_waitcnt vmcnt(5)"); raw(8); P("s_waitcnt lgkmcnt(0)")
    for i in range(9):
        P(f"v_writelane_b32 {v(V_STAMP)}, s{68+2*i}, {i+1}")
    H.ns = 9
CM, QB, KB, VB, KBH, VBH, BS, BSP, BO, BP, BPL, BPK, SENT, S_R0 = 32, 48, 56, 64, 80, 84, 96, 128, 192, 224, 240, 248, 88, 28
def b_scores(t):
    kprev = v(KB, 4) if t == 1 else v(KBH, 4)
    return [mfma(v(BS+16*t,16), v(KB+4*t,4), v(QB+4*t,4), v(CM,16)), mfma(v(BSP+16*t,16), kprev, v(QB+4*t,4), v(CM,16))]
def b_softmax(t):
    S, sp, m, p, pl = BS + 16*t, BSP + 16*t, TMP + 2*t, BP + 8*t, BPL + 4*t
    o = [f"v_cndmask_b32 {v(S+q)}, {v(S+q)}, {v(sp+q)}, {s(S_LO16,2)}" for q in range(8, 16)]
    if t == 0:
        o += [f"v_mov_b32 {v(m)}, {hex(NEG_BIG)}"]
        o += [f"v_cndmask_b32 {v(S+q)}, {v(S+q)}, {v(m)}, {s(S_R0,2)}" for q in range(8, 16)]
    o += max_tree(m, range(S, S+16)) + cross_max(m, m+1)
    o += [f"v_pk_add_f32 {v(S+2*q,2)}, {v(S+2*q,2)}, {v(m,2)} op_sel_hi:[1,0] neg_lo:[0,1] neg_hi:[0,1]" for q in range(8)]
    o += [f"v_exp_f32 {v(S+q)}, {v(S+q)}" for q in range(16)]
    o += [f"v_cvt_pk_bf16_f32 {v(p+i)}, {v(S+2*i)}, {v(S+2*i+1)}" for i in range(8)]
    o += [f"v_cndmask_b32 {v(pl+i)}, 0, {v(p+4+i)}, {s(S_LO16,2)}" for i in range(4)]
    o += [f"v_cndmask_b32 {v(p+4+i)}, {v(p+4+i)}, 0, {s(S_LO16,2)}" for i in range(4)]
    return o
def b_pv(t):
    vprev, acc, p = v(VB+4, 4) if t == 1 else v(VBH, 4), v(BO+16*t, 16), BP + 8*t
    return [mfma(acc, v(VB+8*t,4), v(p,4), "0"), mfma(acc, v(VB+8*t+4,4), v(p+4,4), acc), mfma(acc, vprev, v(BPL+4*t,4), acc)]
def b_pack(t):
    f = TMP + 2*t
    return o_pack(BO+16*t, 8, 0, [f"v_sub_f32 {v(f+1)}, 1.0, {v(G0+t)}", f"v_mul_f32 {v(f)}, {v(f)}, {v(f+1)}"], BPK+4*t, f)
VWO, VKF, V1A, V1D, V_MB, V_HB = 160, 161, 162, 164, 12, 13
txt_of = lambda x: x.text if isinstance(x, Ins) else x
special_txt = []
def gather(tiles, special):
    o = []
    if 1 in tiles:
        o += [f"s_lshl_b32 {s(S_T0)}, {s(S_HEAD)}, 15", f"s_lshl_b32 {s(S_T1)}, {s(S_RB)}, 10", f"s_add_u32 {s(S_T0)}, {s(S_T0)}, {s(S_T1)}",
              f"s_add_u32 {s(S_T0)}, {s(S_T0)}, {WS_HB - 1024}"]
        if special:
            o += [f"s_cmp_eq_u32 {s(S_RB)}, 0", f"s_cselect_b32 {s(S_T0)}, {WS_SIZE}, {s(S_T0)}"]
        o += [ws_ld(v(KBH,4), V_HB, s(S_T0)), ws_ld(v(VBH,4), V_HB, s(S_T0), 512)]
        o += [f"s_lshl_b32 {s(S_K)}, {s(S_HEAD)}, 17", f"s_lshl_b32 {s(S_T1)}, {s(S_RB)}, 12",
              f"s_add_u32 {s(S_T2)}, {s(S_K)}, {s(S_T1)}", f"s_sub_u32 {s(S_T2)}, {s(S_T2)}, {8*2048}"]
    for u in tiles:
        tag = "kva" if 1 <= u <= 4 else "kvb"
        o += [f"s_add_u32 {s(S_T0)}, {s(S_T2)}, {u*2048}", f"s_add_u32 m0, {s(S_MW)}, {u*KVS}"]
        if special:
            o += [f"s_cmp_ge_u32 {s(S_RB)}, {(8-u+1)//2}", f"s_cbranch_scc1 L_gk{u}",
                  dma(VKF, S_WS, s(S_K), 0, None, " sc1"), f"s_mov_b32 {s(S_T0)}, {WS_SIZE}", f"s_branch L_gk{u}e", f"L_gk{u}:",
                  dma(V_L16, S_WS, s(S_T0), 0, None, " sc1"), f"L_gk{u}e:"]
        else:
            o += [dma(V_L16, S_WS, s(S_T0), 0, tag, " sc1")]
        o += [dma(V_L16, S_WS, s(S_T0), 1024, tag, " sc1")]
    return o
def emit_gather(n, tiles):
    P(f"s_cmp_lt_u32 {s(S_RB)}, 4\ns_cbranch_scc1 L_gspecial{n}")
    P.add(gather(tiles, False)); P(f"L_gdone{n}:")
    special_txt.append(f"L_gspecial{n}:\n" + "\n".join(("" if txt_of(x).endswith(":") else "    ") + txt_of(x) for x in gather(tiles, True))
                       + f"\n    s_branch L_gdone{n}\n")
S_R3, S_WB, S_MA, S_MB = 24, 25, 30, 31
B0, B1, A0, A1, A2, A3, VOG, EXW, EXR, VOUT = 16, 17, 24, 25, 26, 27, 18, 20, 23, 19
ACC3, OFB, OFA, WBF = 32, 96, 192, 176
issued_w, issued_x = 2, 1
for S in range(25):
    if S < 24:
        P.add(WaitTag(f"w{S}", f"x{S >> 1}" if S < 16 else "none"))
    if S < 23: P.add(WaitLds())
    P("s_barrier")
    if OPT["fine"] in (1, 2, 3) or S in (0, 16, 24): H.stamp()
    top = {0: 3}.get(S, S + 4)
    while issued_w <= min(top, 23):
        if issued_w < 16 and issued_w % 2 == 0 and issued_x <= issued_w // 2:
            P.add(x_dma(issued_x)); issued_x += 1
        P.add(w_dma(issued_w)); issued_w += 1
    if OPT["icpf"] and S == 1:
        t = (f"    s_getpc_b64 s[78:79]\nL_pc:\n    s_sub_u32 s78, s78, L_pc-{NAME}_kernel\n    s_subb_u32 s79, s79, 0\n    s_lshr_b32 {s(S_T1)}, s2, 3\n"
             f"    s_lshl2_add_u32 {s(S_T1)}, {s(S_T1)}, {s(S_W4)}\n    s_lshl_b32 {s(S_T1)}, {s(S_T1)}, 8\n")
        t += "".join(f"    s_load_dword s{80+i}, s[78:79], {s(S_T1)} offset:{i*64}\n" for i in range(4))
        P.add(Raw(t))
    if OPT["tlb"] and S in (3, 4, 5, 6):
        for i, (ptr, off) in enumerate({3: ((22, 0), (22, 1)), 4: ((22, 2), (22, 4)), 5: ((22, 3), (20, 0)), 6: ((18, 0),)}[S]):
            P.add(Raw(f"    s_mov_b32 {s(S_T1)}, {off << 21}\n    s_load_dword s{70+i}, {s(ptr,2)}, {s(S_T1)}"))
    if OPT["wopf"] and S in (8, 9, 10, 11):
        ptr, half = (14, 8)[(S - 8) >> 1], S & 1
        t = f"    s_lshl2_add_u32 {s(S_T1)}, s2, {s(S_W4)}\n    s_lshl_b32 {s(S_T1)}, {s(S_T1)}, 9\n"
        t += "".join(f"    s_load_dword s{73+i}, {s(ptr,2)}, {s(S_T1)} offset:{half*256+i*64}\n" for i in range(4))
        P.add(Raw(t))
    if S == 8: P(ep_load)
    if S in (12, 13):
        if S == 12:
            P(f"v_and_b32 v48, 31, {v(V_LANE)}\nv_lshrrev_b32 v49, 5, {v(V_LANE)}\nv_lshlrev_b32 v49, 2, v49\nv_sub_u32 v48, v48, v49")
        for q in range(8*(S-12), 8*(S-12) + 8):
            P(f"""v_subrev_u32 {v(CM+q)}, {8*(q>>2)+(q&3)}, v48
v_and_b32 {v(CM+q)}, 17, {v(CM+q)}
v_cvt_f32_u32 {v(CM+q)}, {v(CM+q)}
v_mul_f32 {v(CM+q)}, {hex(NEG_BIG)}, {v(CM+q)}""")
    if S == 14:
        P(f"""v_lshrrev_b32 v48, 5, {v(V_LANE)}
v_bfe_u32 v49, {v(V_LANE)}, 2, 2
v_lshl_add_u32 v48, v48, 2, v49
v_and_b32 v49, 2, v49
v_bfe_u32 v50, {v(V_LANE)}, 4, 1
v_xor_b32 v49, v49, v50
s_and_b32 {s(S_T1)}, {s(S_W4)}, 1
s_lshl_b32 {s(S_T1)}, {s(S_T1)}, 1
s_lshr_b32 {s(S_T0)}, {s(S_W4)}, 1
s_or_b32 {s(S_T1)}, {s(S_T1)}, {s(S_T0)}
v_xor_b32 v49, {s(S_T1)}, v49
v_lshlrev_b32 v49, 5, v49
v_lshl_add_u32 v48, v48, 7, v49
v_and_b32 v49, 3, {v(V_LANE)}
v_lshl_add_u32 v48, v49, 3, v48
s_lshl_b32 {s(S_MX)}, {s(S_W4)}, 14
v_add_u32 {v(B0)}, {s(S_MX)}, v48
v_xor_b32 {v(B1)}, 64, {v(B0)}
v_xor_b32 v49, 64, v48
s_mul_i32 {s(S_T0)}, {s(S_W4)}, 6144
s_add_u32 {s(S_T0)}, {s(S_T0)}, {L_WA}
v_add_u32 {v(A0)}, {s(S_T0)}, v48
v_add_u32 {v(A1)}, {s(S_T0)}, v49
s_mul_i32 {s(S_T0)}, {s(S_W4)}, 10240
s_add_u32 {s(S_T0)}, {s(S_T0)}, {L_KV}
v_add_u32 {v(A2)}, {s(S_T0)}, v48
v_add_u32 {v(A3)}, {s(S_T0)}, v49
v_add_u32 {v(V_MB)}, {s(S_MX)}, {v(V_L16)}
v_and_b32 v48, 0xf0, {v(V_L16)}
v_lshrrev_b32 v49, 1, {v(V_L16)}
v_and_b32 v49, 0x100, v49
v_add_u32 {v(V_HB)}, v48, v49""")
    if S == 15:
        P(f"s_mul_i32 {s(S_T0)}, {s(S_W4)}, 6144\nv_add_u32 {v(EXR)}, {s(S_T0)}, {v(V_L16)}")
        for i in range(1, 4):
            P(f"s_xor_b32 {s(S_T0)}, {s(S_W4)}, {i}\ns_mul_i32 {s(S_T0)}, {s(S_T0)}, 6144\nv_add_u32 {v(EXW+i-1)}, {s(S_T0)}, {v(V_L16)}")
        P(f"""v_and_b32 {v(VOUT)}, 31, {v(V_LANE)}
v_lshlrev_b32 {v(VOUT)}, 10, {v(VOUT)}
v_lshrrev_b32 v48, 5, {v(V_LANE)}
v_lshl_add_u32 {v(VOUT)}, v48, 4, {v(VOUT)}
s_lshl_b32 {s(S_T0)}, {s(S_RB3)}, 16
s_lshr_b32 {s(S_T1)}, {s(S_W4)}, 1
s_lshl_b32 {s(S_T1)}, {s(S_T1)}, 5
s_add_u32 {s(S_T0)}, {s(S_T0)}, {s(S_T1)}
s_lshl_b32 {s(S_T1)}, {s(S_CB)}, 7
s_add_u32 {s(S_T0)}, {s(S_T0)}, {s(S_T1)}
s_and_b32 {s(S_T1)}, {s(S_W4)}, 1
s_lshl_b32 {s(S_T1)}, {s(S_T1)}, 6
s_add_u32 {s(S_T0)}, {s(S_T0)}, {s(S_T1)}
v_add_u32 {v(VOUT)}, {s(S_T0)}, {v(VOUT)}
s_lshl_b32 {s(S_T0)}, {s(S_RB3)}, 17
s_lshl_b32 {s(S_T1)}, {s(S_W4)}, 13
s_add_u32 {s(S_T0)}, {s(S_T0)}, {s(S_T1)}
s_add_u32 {s(S_T0)}, {s(S_T0)}, {WS_O}
v_add_u32 {v(VOG)}, {s(S_T0)}, {v(V_L16)}
s_lshl_b32 {s(S_WB)}, {s(S_W4)}, 17
s_lshl_b32 {s(S_T1)}, {s(S_CB)}, 7
s_add_u32 {s(S_WB)}, {s(S_WB)}, {s(S_T1)}
s_lshl3_add_u32 {s(S_R3)}, {s(S_RB3)}, {s(S_CB)}
s_lshl2_add_u32 {s(S_R3)}, {s(S_R3)}, {s(S_W4)}
s_lshl_b32 {s(S_R3)}, {s(S_R3)}, 6""")
    if S == 18:
        P("s_waitcnt lgkmcnt(0)")
        H.poll(f"v_cmp_ne_u64 vcc, 0, {v(EP,2)}", ep_load)
        P(f"v_readfirstlane_b32 {s(S_EP)}, {v(EP)}\nv_readfirstlane_b32 {s(S_EP+1)}, {v(EP+1)}")
    if S == 19:
        P.add(srd(S_WOA, 8, 524288) + srd(S_WOB, 14, 524288) + srd(S_OUT, 18, 2097152))
    if S == 20:
        P(f"""v_lshrrev_b32 v48, 3, {v(V_LANE)}
v_bfe_u32 v49, {v(V_LANE)}, 4, 1
v_lshlrev_b32 v49, 2, v49
v_and_b32 v50, 7, {v(V_LANE)}
v_xor_b32 v49, v49, v50
v_lshlrev_b32 v49, 4, v49
v_lshl_add_u32 {v(VWO)}, v48, 10, v49
v_and_b32 {v(VKF)}, 32, {v(V_LANE)}
v_lshlrev_b32 {v(VKF)}, 4, {v(VKF)}
v_mul_u32_u24 {v(V1A)}, {KVS}, v50
s_mul_i32 {s(S_MW)}, {s(S_W4)}, {KVH}
s_add_u32 {s(S_MW)}, {s(S_MW)}, {L_KV}
s_add_u32 {s(S_T0)}, {s(S_MW)}, 2048
v_add_u32 {v(V1A)}, {s(S_T0)}, {v(V1A)}
s_lshl_b32 {s(S_T0)}, {s(S_RB)}, 1
v_add_u32 v48, {s(S_T0)}, v50
v_cmp_le_u32 vcc, 8, v48
v_mov_b32 {v(SENT)}, {hex(ONES)}
v_cndmask_b32 {v(V1D)}, 0, {v(SENT)}, vcc
v_mov_b32 {v(V1D+1)}, {v(V1D)}
v_mov_b32 {v(V1D+2)}, {v(V1D)}
v_mov_b32 {v(V1D+3)}, {v(V1D)}
s_cmp_eq_u32 {s(S_RB)}, 0
s_cselect_b64 {s(S_R0,2)}, {s(S_LO16,2)}, 0
s_mul_i32 {s(S_MA)}, {s(S_W4)}, 6144
s_add_u32 {s(S_MB)}, {s(S_MA)}, {L_KV}
v_add_u32 v51, {s(S_MB)}, {v(V_L16)}
s_add_u32 {s(S_MA)}, {s(S_MA)}, {L_WA}
s_mul_i32 {s(S_MB)}, {s(S_W4)}, 10240
s_add_u32 {s(S_MB)}, {s(S_MB)}, {L_KV - 6144}
s_lshl_b32 {s(S_K)}, {s(S_HEAD)}, 5
s_add_u32 {s(S_K)}, {s(S_K)}, {s(S_RB)}
s_lshl_b32 {s(S_K)}, {s(S_K)}, 6
s_add_u32 {s(S_K)}, {s(S_K)}, {WS_FKV}""")
    if S == 22:
        H.spoll_issue(4, S_K)
    if S == 23:
        P(f"ds_write_b128 {v(V1A)}, {v(V1D,4)}")
        H.spoll(4, S_K, ignore_from=S_RB)
        H.stamp()
        emit_gather(0, (1, 2, 3, 4))
if OPT["p1only"]:
    H.finish()
fs = lambda: H.stamp() if OPT["fine"] == 4 else None
if OPT["b24b"]: P("s_barrier")
emit_gather(1, (5, 6, 7, 0))
P(f"s_setprio {OPT['bprio']}")
P(f"v_and_b32 v176, 31, {v(V_LANE)}\nv_lshlrev_b32 v176, 4, v176\nv_add_u32 v176, {L_GP}, v176")
P.add([f"v_mov_b32 {v(168+i)}, -1" for i in range(4)])
P.add(WaitTag("kva")); P("s_barrier")
H.stamp()
P.add(WaitTag("kvb")); P("s_barrier")
fs()
P.add([f"ds_read_b128 {v(QB+4*i,4)}, {v(V_MB)} offset:{i*1024}" for i in (1, 2, 3, 0, 4, 5, 6, 7)])
gf = gate_finish([0, 1], 176, 180)
P.add(gf[:2])
def wo_dma(br):
    o = []
    for t in range(16):
        base = S_MX if br else (S_MA if t < 6 else S_MB)
        g = [f"s_add_u32 m0, {s(base)}, {t*1024}", f"s_add_u32 {s(S_T3)}, {s(S_WB)}, {t*8192}"]
        o.append(g + [dma(VWO, S_WOB if br else S_WOA, s(S_T3), 0, "wob" if br else ("woa" if t < 6 else "woc"))])
    return o
woa, wob = wo_dma(0), wo_dma(1)
bseq = b_scores(1) + b_scores(0) + gf[2:] + [f"v_cndmask_b32 {v(VB+i)}, {v(VB+i)}, {v(SENT)}, {s(S_LO16,2)}" for i in range(16)]
bseq += [f"v_cndmask_b32 {v(VBH+i)}, {v(VBH+i)}, {v(SENT)}, {s(S_LO16,2)}" for i in range(4)]
bseq += interleave(b_softmax(1), b_softmax(0)) + interleave(b_pv(1), b_pv(0)) + interleave(b_pack(1), b_pack(0))
P.add(o_store(0, 1, 168, "ob")); P.add(o_store(0, 0, 168, "ob"))
P.add(WaitLds())
nw = 0
for i, x in enumerate(bseq):
    if i % OPT["weave"] == 0 and nw < 16:
        P.add(wob[nw]); nw += 1
    P.add(x)
P.add(o_store(1, 1, BPK+4, "ob")); P.add(o_store(1, 0, BPK, "ob"))
fs()
rest = wob[nw:] + woa[:6]
P.add(rest[:OPT["wbmid"]]); P.add(flag_store("ob", "ob"))
fs()
P(f"s_add_u32 {s(S_K)}, {s(S_R3)}, {WS_FOB}")
P.add(rest[OPT["wbmid"]:])
fs()
P("s_barrier")
fs()
P.add(woa[6:11]); H.spoll_issue(8, S_K); P.add(woa[11:])
fs()
def o_gather(br, tt):
    o = []
    for hs in range(8):
        if hs % 4 == 0: o += [f"s_mov_b32 {s(S_T1)}, {br*65536 + tt*32768 + hs*1024}"]
        o += [ws_ld(v((OFA, OFB)[br]+32*tt+4*hs,4), VOG, s(S_T1), (hs & 3)*1024)]
    return o
def wo_read(dst, hs, br):
    base, off = ((B0, B1), hs*2048) if br else (((A0, A1), hs*2048) if hs < 3 else ((A2, A3), (hs-3)*2048))
    return [f"ds_read_b64_tr_b16 {v(dst+4*ct+2*j,2)}, {v(base[ct])} offset:{off+j*1024}" for ct in range(2) for j in range(2)]
def p3(br, tt, first, last, hook=lambda hs: None):
    if first: P.add(wo_read(WBF, 0, br))
    for hs in range(8):
        b = hs & 1
        rd = wo_read(WBF + 8*(1-b), (hs + 1) & 7, br) if not (last and hs == 7) else []
        for ct in range(2):
            acc = v(ACC3+32*tt+16*ct, 16)
            P(mfma(acc, v(WBF+8*b+4*ct,4), v((OFA, OFB)[br]+32*tt+4*hs,4), "0" if br and hs == 0 else acc))
            P.add(rd[2*ct:2*ct+2])
        hook(hs)
def red_writes(tt):
    keep, ex = ACC3 + 32*tt, tt * 24576
    send = {1: keep + 16, 2: keep + 8, 3: keep + 24}
    return [f"ds_write_b128 {v(EXW+i-1)}, {v(send[i]+4*q,4)} offset:{ex+(i-1)*2048+q*1024}" for i in (2, 1, 3) for q in range(2)]
def red_reads(tt):
    return [f"ds_read_b128 {v(OFB+32*tt+8*i+4*q,4)}, {v(EXR)} offset:{tt*24576+i*2048+q*1024}" for q in range(2) for i in range(3)]
def red_finish(tt):
    keep, tmp, o = ACC3 + 32*tt, OFB + 32*tt, []
    for q in range(2):
        for i in range(3):
            o += [f"v_pk_add_f32 {v(keep+4*q+2*k,2)}, {v(keep+4*q+2*k,2)}, {v(tmp+8*i+4*q+2*k,2)}" for k in range(2)]
        o += [f"v_cvt_pk_bf16_f32 {v(tmp+24+2*q+k)}, {v(keep+4*q+2*k)}, {v(keep+4*q+2*k+1)}" for k in range(2)]
    o += [f"v_permlane32_swap_b32 {v(tmp+24)}, {v(tmp+26)}", f"v_permlane32_swap_b32 {v(tmp+25)}, {v(tmp+27)}", f"s_mov_b32 {s(S_T1)}, {tt*32768}",
          f"buffer_store_dwordx4 {v(tmp+24,4)}, {v(VOUT)}, {s(S_OUT,4)}, {s(S_T1)} offen{('', ' sc1', ' nt', ' sc0 sc1')[OPT['outsc']]}"]
    return o
retry_txt = []
def o_verify(tt):
    base = OFA + 32*tt
    chk = [f"v_max3_u32 {v(TMP)}, {v(base)}, {v(base+1)}, {v(base+2)}"]
    chk += [f"v_max3_u32 {v(TMP)}, {v(TMP)}, {v(base+i)}, {v(base+i+1)}" for i in range(3, 31, 2)]
    chk += [f"v_max_u32 {v(TMP)}, {v(TMP)}, {v(base+31)}", f"v_cmp_ne_u32 vcc, -1, {v(TMP)}"]
    P.add(chk); P(f"s_cmp_eq_u64 vcc, -1\ns_cbranch_scc0 L_retry{tt}\nL_ok{tt}:")
    Q = Prog()
    Q(f"L_retry{tt}:\ns_mov_b32 {s(S_SPIN)}, 0x20000\nL_again{tt}:"); Q.add(o_gather(0, tt))
    Q(f"s_sub_u32 {s(S_SPIN)}, {s(S_SPIN)}, 1\ns_waitcnt vmcnt(0)\ns_cbranch_scc1 L_ok{tt}")
    Q.add(chk); Q(f"s_cmp_eq_u64 vcc, -1\ns_cbranch_scc0 L_again{tt}\ns_branch L_ok{tt}")
    retry_txt.append(finalize(Q))
H.spoll(8, S_K)
H.stamp()
if OPT["ybar"] == 1: P("s_barrier"); fs()
P.add(o_gather(1, 0))
if OPT["ybar"] == 2: P("s_barrier"); fs()
P.add(o_gather(1, 1))
if OPT["ybar"] == 3: P("s_barrier"); fs()
P.add(o_gather(0, 1))
if OPT["a0mode"] == 2: P.add(o_gather(0, 0))
fs()
P(f"s_setprio {OPT['p3prio']}")
P.add(WaitTag("wob", "woa", "woc"))
p3(1, 0, True, False)
if OPT["a0mode"] == 3: P.add(o_gather(0, 0))
if OPT["a0mode"] == 1:
    P("s_barrier"); fs(); P.add(o_gather(0, 0))
p3(1, 1, False, True)
H.stamp()
if OPT["a0mode"] == 0:
    P("s_barrier"); fs(); P.add(o_gather(0, 0))
o_verify(1)
p3(0, 1, True, False)
H.stamp()
if OPT["a0mode"] >= 1: P("s_barrier")
w1 = red_writes(1)
o_verify(0)
fs()
p3(0, 0, False, True, lambda hs: P.add(w1[hs:hs+1]))
H.stamp()
P.add(red_writes(0)); P.add(WaitLds()); P("s_barrier")
P.add(red_reads(1)); P.add(red_reads(0)); P.add(red_finish(1)); P.add(red_finish(0))
H.stamp()
H.finish()

C = Role("C"); P = C.P
T1, T3, T2 = 32, 64, 96
XB, WB = 128, 152
V_AX, V_T1L, V_T1H, V_T3L, V_T3H, V_T2L, V_T2H = 176, 180, 181, 182, 183, 184, 185
V_LO, V_HI, V_QW = 186, 187, 189
CMA, KB, VPK, QB = 192, 240, 224, 248
r5, hh, rr, cc, nh, u0, u1, cm = 128, 129, 130, 131, 132, 133, 134, 135
P("L_crole:")
P.add(late_ids)
if OPT["prio"]: P("s_setprio 1")
P(f"""
v_and_b32 {v(r5)}, 31, {v(V_LANE)}
v_lshrrev_b32 {v(hh)}, 5, {v(V_LANE)}
v_bfe_u32 {v(u0)}, {v(r5)}, 1, 3
v_xor_b32 {v(u0)}, {v(u0)}, {v(hh)}
v_lshlrev_b32 {v(u0)}, 4, {v(u0)}
v_lshl_add_u32 {v(u0)}, {v(r5)}, 7, {v(u0)}
v_add_u32 {v(V_AX)}, {L_X}, {v(u0)}
v_xor_b32 {v(V_AX+1)}, 32, {v(V_AX)}
v_xor_b32 {v(V_AX+2)}, 64, {v(V_AX)}
v_xor_b32 {v(V_AX+3)}, 0x60, {v(V_AX)}
v_bfe_u32 {v(rr)}, {v(V_LANE)}, 2, 2
v_and_b32 {v(cc)}, 3, {v(V_LANE)}
v_bfe_u32 {v(nh)}, {v(V_LANE)}, 4, 1
v_lshl_add_u32 {v(u0)}, {v(hh)}, 3, {v(rr)}
v_xor_b32 {v(u1)}, {s(S_W4)}, {v(rr)}
v_lshlrev_b32 {v(u1)}, 5, {v(u1)}
v_lshl_add_u32 {v(u1)}, {v(cc)}, 3, {v(u1)}
v_lshl_add_u32 {v(u1)}, {v(u0)}, 8, {v(u1)}
v_mul_u32_u24 {v(V_T1L)}, 0x2080, {v(nh)}
v_add_u32 {v(V_T1L)}, {v(V_T1L)}, {v(u1)}
v_add_u32 {v(V_T1H)}, 0x10000, {v(V_T1L)}
v_xor_b32 {v(V_T3L)}, 0x80, {v(V_T1L)}
v_xor_b32 {v(V_T3H)}, 0x80, {v(V_T1H)}
v_lshrrev_b32 {v(u1)}, 1, {v(rr)}
v_lshl_add_u32 {v(u1)}, {v(nh)}, 1, {v(u1)}
v_xor_b32 {v(u1)}, {s(S_W4)}, {v(u1)}
v_lshlrev_b32 {v(u1)}, 5, {v(u1)}
v_lshl_add_u32 {v(u1)}, {v(cc)}, 3, {v(u1)}
v_lshl_add_u32 {v(u1)}, {v(u0)}, 7, {v(u1)}
v_lshl_add_u32 {v(V_T2L)}, {v(nh)}, 13, {v(u1)}
v_add_u32 {v(V_T2H)}, 0x10000, {v(V_T2L)}
v_and_b32 {v(u0)}, 15, {v(V_LANE)}
v_lshlrev_b32 {v(u0)}, 4, {v(u0)}
v_lshl_add_u32 {v(u0)}, {v(hh)}, 8, {v(u0)}
v_lshl_add_u32 {v(V_LO)}, {v(nh)}, 31, {v(u0)}
v_xor_b32 {v(V_HI)}, {OOB}, {v(V_LO)}
v_lshlrev_b32 {v(V_GPR)}, 4, {v(r5)}
v_add_u32 {v(V_GPR)}, {L_GP}, {v(V_GPR)}
s_lshl_b32 {s(S_T2)}, {s(S_W4)}, 14
v_add_u32 {v(V_QW)}, {s(S_T2)}, {v(V_L16)}
v_lshlrev_b32 {v(u0)}, 2, {v(hh)}
v_sub_u32 {v(cm)}, {v(r5)}, {v(u0)}
s_waitcnt lgkmcnt(0)""")
P.add(entry_stamp())
P(f"""s_memrealtime {s(S_TM,2)}
s_mov_b32 {s(S_C)}, {fhex(QK_SCALE)}
s_mov_b32 {s(S_C+1)}, {fhex(QK_SCALE)}
""")
def l2_prefetch():
    a, b = 140, 141
    o = lines(f"""s_lshr_b32 {s(S_T0)}, s2, 3
s_and_b32 {s(S_T1)}, {s(S_HG)}, 4
s_lshl_b32 {s(S_T1)}, {s(S_T1)}, 7
v_and_b32 {v(a)}, 3, {v(V_LANE)}
v_lshlrev_b32 {v(a)}, 7, {v(a)}
s_cmp_eq_u32 {s(S_W4)}, 2
s_cbranch_scc1 L_pfx
s_cmp_eq_u32 {s(S_W4)}, 3
s_cbranch_scc1 L_pfq
s_cmp_eq_u32 {s(S_W4)}, 0
s_cselect_b32 {s(S_W)}, s6, s12
s_cselect_b32 {s(S_W+1)}, s7, s13
s_mov_b32 {s(S_W+2)}, 1572864
s_mov_b32 {s(S_W+3)}, 0x20000
v_bfe_u32 {v(b)}, {v(V_LANE)}, 2, 1
v_lshl_add_u32 {v(a)}, {v(b)}, 10, {v(a)}
v_lshrrev_b32 {v(b)}, 3, {v(V_LANE)}
v_mul_u32_u24 {v(b)}, 0xc00, {v(b)}
v_add_u32 {v(a)}, {v(a)}, {v(b)}
s_mul_i32 {s(S_T0)}, {s(S_T0)}, {8*3072}
s_add_u32 {s(S_T0)}, {s(S_T0)}, {s(S_T1)}
s_add_u32 {s(S_T0)}, {s(S_T0)}, 1024
buffer_load_dword v190, {v(a)}, {s(S_W,4)}, {s(S_T0)} offen
s_add_u32 {s(S_T0)}, {s(S_T0)}, {256*3072}
buffer_load_dword v191, {v(a)}, {s(S_W,4)}, {s(S_T0)} offen
s_branch L_pfe
L_pfx:
s_mov_b32 {s(S_W)}, s4
s_mov_b32 {s(S_W+1)}, s5
s_mov_b32 {s(S_W+2)}, 2097152
s_mov_b32 {s(S_W+3)}, 0x20000
v_lshrrev_b32 {v(b)}, 2, {v(V_LANE)}
v_lshl_add_u32 {v(a)}, {v(b)}, 10, {v(a)}
s_lshl_b32 {s(S_T0)}, {s(S_T0)}, 14
s_and_b32 {s(S_T1)}, {s(S_RB)}, 24
s_lshl_b32 {s(S_T1)}, {s(S_T1)}, 16
s_add_u32 {s(S_T0)}, {s(S_T0)}, {s(S_T1)}
buffer_load_dword v190, {v(a)}, {s(S_W,4)}, {s(S_T0)} offen
buffer_load_dword v191, {v(a)}, {s(S_W,4)}, {s(S_T0)} offen offset:512
s_branch L_pfe
L_pfq:
s_mov_b32 {s(S_W)}, s6
s_mov_b32 {s(S_W+1)}, s7
s_mov_b32 {s(S_W+2)}, 1572864
s_mov_b32 {s(S_W+3)}, 0x20000
v_lshrrev_b32 {v(b)}, 2, {v(V_LANE)}
v_mul_u32_u24 {v(b)}, 0xc00, {v(b)}
v_add_u32 {v(a)}, {v(a)}, {v(b)}
s_mul_i32 {s(S_T0)}, {s(S_T0)}, {16*3072}
s_add_u32 {s(S_T0)}, {s(S_T0)}, {s(S_T1)}
buffer_load_dword v190, {v(a)}, {s(S_W,4)}, {s(S_T0)} offen
s_mov_b32 {s(S_W)}, s12
s_mov_b32 {s(S_W+1)}, s13
buffer_load_dword v191, {v(a)}, {s(S_W,4)}, {s(S_T0)} offen
L_pfe:""")
    P.add(Raw("\n".join(("" if l.endswith(":") else "    ") + l for l in o)))
    P("s_nop 0")
if OPT["pf"] == 1: l2_prefetch()
P.add(srd(S_WS, 22, WS_SIZE) + srd(S_DBG, 20, 256))
P(f"""s_cmp_eq_u32 s2, 0
s_cselect_b32 {s(S_T2)}, 0, {OOB}
v_lshlrev_b32 v5, 8, v0
v_or_b32 v5, {s(S_T2)}, v5
s_waitcnt lgkmcnt(0)
v_mov_b32 {v(EP)}, {s(S_TM)}
v_mov_b32 {v(EP+1)}, {s(S_TM+1)}
buffer_store_dwordx2 {v(EP,2)}, v5, {s(S_DBG,4)}, 0 offen sc1""")
V_AXW, V_AG, V_GPW, XW, GF, GACC = 4, 8, 9, 240, 248, 190
P(f"""s_lshl_b32 {s(S_T2)}, {s(S_W4)}, 5
v_xor_b32 {v(V_AXW)}, {s(S_T2)}, {v(V_AX)}
v_lshlrev_b32 {v(u0)}, 4, {v(hh)}
s_add_u32 {s(S_T2)}, {s(S_T2)}, {L_G}
v_add_u32 {v(V_AG)}, {s(S_T2)}, {v(u0)}
s_lshl_b32 {s(S_T2)}, {s(S_W4)}, 2
v_add_u32 {v(V_GPW)}, {s(S_T2)}, {v(V_GPR)}
v_mov_b32 {v(GACC)}, 0
v_mov_b32 {v(GACC+1)}, 0""")
P.add(attn_setup(0, 136))
P(f"v_mov_b32 {v(u0)}, {hex(NEG_BIG)}")
P.add([f"v_cndmask_b32 {v(CMA+q)}, {v(u0)}, 0, {s(S_MASK+2*q,2)}" for q in range(16)])
C.stamp()

def frag_reads(n):
    b, m = n % 3, n & 31
    j, ux = m >> 2, m & 3
    base = (stage_of(n) % NSLOT) * SLOT
    hi = base >= 65536; off = base - (65536 if hi else 0)
    x = [f"ds_read_b128 {v(XB+8*b+4*tt,4)}, {v(V_AX+ux)} offset:{j*8192+tt*4096}" for tt in range(2)]
    if n < 32:
        w = [f"ds_read_b64_tr_b16 {v(WB+8*b+4*t+2*qd,2)}, {v(((V_T1L,V_T1H),(V_T3L,V_T3H))[t][hi])} offset:{off+(n&1)*4096+qd*1024}"
             for t in range(2) for qd in range(2)]
        return [w[0], x[0], w[1], w[2], x[1], w[3]]
    w = [f"ds_read_b64_tr_b16 {v(WB+8*b+2*qd,2)}, {v((V_T2L,V_T2H)[hi])} offset:{off+ux*2048+qd*512}" for qd in range(2)]
    return [w[0], x[0], w[1], x[1]]
def step_mfmas(n):
    b = n % 3
    x = lambda tt: v(XB+8*b+4*tt, 4)
    c = lambda r: "0" if n in (0, 32) else v(r, 16)
    if n < 32:
        return [mfma(v(T1,16), v(WB+8*b,4), x(0), c(T1)), mfma(v(T3,16), x(0), v(WB+8*b+4,4), c(T3)),
                mfma(v(T1+16,16), v(WB+8*b,4), x(1), c(T1+16)), mfma(v(T3+16,16), x(1), v(WB+8*b+4,4), c(T3+16))]
    return [mfma(v(T2,16), v(WB+8*b,4), x(0), c(T2)), mfma(v(T2+16,16), v(WB+8*b,4), x(1), c(T2+16))]
def kv_publish():
    o = [f"s_lshl_b32 {s(S_T0)}, {s(S_HEAD)}, 17", f"s_lshl_b32 {s(S_T1)}, {s(S_RB)}, 12", f"s_add_u32 {s(S_T0)}, {s(S_T0)}, {s(S_T1)}"]
    for tt in range(2):
        o += [f"v_pk_mul_f32 {v(T1+16*tt+2*i,2)}, {v(T1+16*tt+2*i,2)}, {s(S_C,2)}" for i in range(4)]
        o += [f"v_cvt_pk_bf16_f32 {v(KA+4*tt+i)}, {v(T1+16*tt+2*i)}, {v(T1+16*tt+2*i+1)}" for i in range(4)]
        o += [ws_st(v(KA+4*tt,4), V_L16, s(S_T0), tt*2048, "kv")]
    for tt in range(2):
        for m in range(2):
            o += [f"v_cvt_pk_bf16_f32 {v(VPK+8*tt+4*m+i)}, {v(T3+16*tt+8*m+2*i)}, {v(T3+16*tt+8*m+2*i+1)}" for i in range(4)]
            o += [ws_st(v(VPK+8*tt+4*m,4), V_LO, s(S_T0), tt*2048+1024+m*512, "kv")]
    o += [f"s_lshl_b32 {s(S_T0)}, {s(S_HEAD)}, 15", f"s_lshl_b32 {s(S_T1)}, {s(S_RB)}, 10",
          f"s_add_u32 {s(S_T0)}, {s(S_T0)}, {s(S_T1)}", f"s_add_u32 {s(S_T0)}, {s(S_T0)}, {WS_HB}",
          ws_st(v(VPK+12,4), V_HI, s(S_T0), 512, "kv")]
    for tt in (1, 0):
        o += [f"v_pk_mul_f32 {v(T1+16*tt+8+2*i,2)}, {v(T1+16*tt+8+2*i,2)}, {s(S_C,2)}" for i in range(4)]
        o += [f"v_cvt_pk_bf16_f32 {v(KB+4*tt+i)}, {v(T1+16*tt+8+2*i)}, {v(T1+16*tt+8+2*i+1)}" for i in range(4)]
        if tt == 1: o += [ws_st(v(KB+4,4), V_HI, s(S_T0), 0, "kv")]
    return o

if OPT["p1only"]:
    P("s_barrier\n" * 25 + "s_endpgm")
P("s_barrier")
C.stamp()
P.add(frag_reads(0)); P.add(frag_reads(1))
queue = []
for n in range(64):
    mf = step_mfmas(n)
    sync = first_of_stage(n + 2) or n == 62
    rd = frag_reads(n + 2) if n < 62 else []
    if n == 20: queue += [ep_load]
    if n < 32 and n % 4 == 1:
        j = n >> 2
        queue += [f"ds_read_b128 {v(GF,4)}, {v(V_AG)} offset:{j*128}",
                  f"ds_read_b128 {v(XW,4)}, {v(V_AXW)} offset:{j*8192}", f"ds_read_b128 {v(XW+4,4)}, {v(V_AXW)} offset:{j*8192+4096}"]
    if n < 32 and n % 4 == 2:
        queue += [f"v_dot2_f32_bf16 {v(GACC+tt)}, {v(XW+4*tt+i)}, {v(GF+i)}, {v(GACC+tt)}" for i in range(4) for tt in range(2)]
    if n == 31:
        queue += [f"v_mov_b32 {v(XW+tt)}, {v(GACC+tt)}" for tt in range(2)]
        queue += [f"v_permlane32_swap_b32 {v(GACC+tt)}, {v(XW+tt)}" for tt in range(2)]
        queue += [f"v_add_f32 {v(GACC+tt)}, {v(GACC+tt)}, {v(XW+tt)}" for tt in range(2)]

    if n == 32:
        pub = kv_publish()
        isst = lambda x: (isinstance(x, Ins) and x.kind == "vst") or (isinstance(x, str) and x.startswith("s_"))
        late_st = [x for x in pub if isst(x)] if OPT["pubat"] > 32 else []
        queue += [x for x in pub if not (late_st and isst(x))]
    if n == OPT["pubat"] and n > 32: queue = late_st + queue
    if n == 62:
        queue += [f"ds_write_b32 {v(V_GPW)}, {v(GACC+tt)} offset:{512*tt}" for tt in range(2)]
        queue += [f"ds_write_b128 {v(V_QW)}, {v(KB+4*i,4)} offset:{2048+i*1024}" for i in range(2)]
    take = OPT["take"] if n >= 32 else (4 if n < 31 else 10)
    if n >= 46: take = 6
    side = queue[:take]; queue = queue[take:]
    def do_sync():
        P.add(WaitLds()); P("s_barrier")
        if OPT["fine"] in (1, 2, 3): C.stamp()
    if sync and OPT["barpos"] and n > 0:
        if n < 32:
            P(mf[0]); P.add(side[0:2]); P(mf[1]); do_sync(); P.add(rd[0:3]); P(mf[2]); P.add(rd[3:6]); P(mf[3]); P.add(side[2:])
        elif n < 58:
            P(mf[0]); P.add(side); P(mf[1]); do_sync(); P.add(rd)
        else:
            P(mf[0]); P(mf[1]); do_sync(); P.add(rd); P.add(side)
    else:
        P(mf[0])
        if sync: do_sync()
        if n < 32:
            P.add(rd[0:2]); P.add(side[0:1]); P(mf[1]); P.add(rd[2:4]); P.add(side[1:2]); P(mf[2]); P.add(rd[4:6]); P(mf[3]); P.add(side[2:])
        else:
            P.add(rd[0:2]); P.add(side[:take//2]); P(mf[1]); P.add(rd[2:4]); P.add(side[take//2:])
    if n == 31: C.stamp()
    if n == OPT["kvflag"]:
        C.poll(f"v_cmp_ne_u64 vcc, 0, {v(EP,2)}", ep_load)
        P.add(flag_store("kv", "kv"))
        C.stamp()
assert not queue
C.stamp()
P.add([f"ds_write_b128 {v(V_QW)}, {v(VPK+4*i,4)} offset:{4096+i*1024}" for i in range(4)])
for tt in range(2):
    P.add([f"v_cvt_pk_bf16_f32 {v(QB+4*tt+i)}, {v(T2+16*tt+8+2*i)}, {v(T2+16*tt+8+2*i+1)}" for i in range(4)])
    P(f"ds_write_b128 {v(V_QW)}, {v(QB+4*tt,4)} offset:{tt*1024}")
if OPT["b24b"]: P("s_barrier")
P.add([f"v_cvt_pk_bf16_f32 {v(QA1+i)}, {v(T2+16+2*i)}, {v(T2+16+2*i+1)}" for i in range(4)])
P.add([f"v_cvt_pk_bf16_f32 {v(QA+i)}, {v(T2+2*i)}, {v(T2+2*i+1)}" for i in range(4)])
P(mfma(v(MG+16,16), v(KA+4,4), v(QA1,4), v(CMA,16))); P(mfma(v(MG,16), v(KA,4), v(QA,4), v(CMA,16)))
window_attention(C, [f"v_mov_b32 {v(TMP)}, {hex(ONES)}"] +
                 [f"v_cndmask_b32 {v(VA+i)}, {v(TMP)}, {v(VPK+i)}, {s(S_LO16,2)}" for i in range(16)])
P.add(a_publish(0))
if OPT["ybar"]: P("s_barrier")
C.stamp()
C.finish()

full = Prog(); full.items = E.items + H.P.items
bodyH = finalize(full, verbose=True)
full = Prog(); full.items = [Ins("s_load_dwordx16 s[4:19], s[0:1], 0"), Ins("global_load_dword v13, v5, s[96:97]")] + C.P.items
bodyC = "\n".join(finalize(full, verbose=True).split("\n")[2:])
print("stamps H", H.ns, "C", C.ns)
hdr = open("cdna_kernels/%s.s.ref" % NAME).read().split("; Override launch")[0]
if OPT["stamps"]: hdr += f"; stamps {C.ns} {H.ns}\n"
txt = hdr + f"""; One launch: 256 workgroups (4 heads x 64 rows each), 8 waves, hand-offs through d_ws tagged with a per-launch epoch.
; @launch grid=(256,1,1) block=(512,1,1) lds={LDS_BYTES}
.amdgcn_target "amdgcn-amd-amdhsa--gfx950"
.text
.globl {NAME}_kernel
.p2align 12
.p2align 8
.type {NAME}_kernel,@function
{NAME}_kernel:
{bodyH}{bodyC}L_end:
    s_endpgm
{''.join(retry_txt)}{''.join(special_txt)}{slow_path()}    .fill 3072, 4, 0xbf800000
.section .rodata,"a"
.p2align 6
.amdhsa_kernel {NAME}_kernel
  .amdhsa_next_free_vgpr 256
  .amdhsa_next_free_sgpr 102
  .amdhsa_accum_offset 256
  .amdhsa_group_segment_fixed_size 0
  .amdhsa_kernarg_size 80
  .amdhsa_user_sgpr_count 2
  .amdhsa_user_sgpr_kernarg_segment_ptr 1
  .amdhsa_system_sgpr_workgroup_id_x 1
.end_amdhsa_kernel
"""
open(sys.argv[1], "w").write(txt)
```

```python
import sys, math, struct
from asmdsl import Prog, Ins, WaitTag, WaitLds, Raw, finalize

NAME = "gated_mix__sliding_block__sliding_local_dilated__prompt"
OPT = dict(a0mode=0, b24b=1, ybar=0, rt=0, xp=0, barpos=0, xat=10, p3prio=0, h1=60, t2at=40, weave=8, wbmid=3, f3step=12, wopf=1, tlb=1, icpf=1, cpf=0, take=30, kvflag=42, pubat=32, prio=1, bprio=2,
           xmap=3, rotmode=4, rotmask=7, outsc=0, stamps=0, fine=0, amp=-1, ampk=8, amprole=1, ampclk=0, p1only=0, pf=0)
for a in sys.argv[2:]:
    k, v_ = a.split("="); assert k in OPT, k; OPT[k] = int(v_)

WS_KV, WS_HB, WS_O = 0, 4 << 20, 5 << 20
WS_FKV, WS_FOB, WS_FOA = 9 << 20, (9 << 20) + 65536, (9 << 20) + 131072
WS_STAMP, WS_SIZE = 10 << 20, 64 << 20
OOB = 0x80000000
NSLOT, SLOT = 5, 16384
L_X, L_WA, L_G, L_GP, LDS_BYTES = 81920, 131584, 156160, 157184, 158208
KVH, KVS, L_KV, L_WO = 2064, 4 * 2064, 65536, 0
QK_SCALE = 0.25 * math.log2(math.e)
NEG_BIG, ONES = 0xf149f2ca, 0x3f803f80

def fhex(x): return "0x%08x" % struct.unpack("<I", struct.pack("<f", x))[0]
def v(a, n=1): return f"v{a}" if n == 1 else f"v[{a}:{a+n-1}]"
def s(a, n=1): return f"s{a}" if n == 1 else f"s[{a}:{a+n-1}]"
def lines(t): return [l.strip() for l in t.strip().split("\n") if l.strip()]
def mfma(d, a, b, c): return f"v_mfma_f32_32x32x16_bf16 {d}, {a}, {b}, {c}"
def srd(base, ptr, nbytes):
    return [f"s_mov_b32 {s(base)}, {s(ptr)}", f"s_mov_b32 {s(base+1)}, {s(ptr+1)}",
            f"s_mov_b32 {s(base+2)}, {nbytes}", f"s_mov_b32 {s(base+3)}, 0x20000"]
def interleave(*ls):
    o, ls = [], [list(l) for l in ls]
    while any(ls):
        for l in ls:
            if l: o.append(l.pop(0))
    return o

S_X, S_W, S_WS, S_WOA, S_WOB, S_OUT, S_DBG, S_G = 24, 28, 32, 36, 40, 44, 48, 36
S_W4, S_HG, S_RB, S_ROT, S_HEAD, S_RB3, S_CB = 52, 53, 54, 55, 56, 57, 58
S_K, S_T0, S_MW, S_MX, S_T1 = 59, 60, 61, 62, 63
S_MASK, S_T2, S_T3, S_LO16, S_TM, S_C, S_SPIN, S_EP = 64, 96, 97, 98, 100, 10, 3, 26
V_LANE, V_L16, V_STAMP, V_FOFF = 1, 2, 3, 4
EP, FLG = 6, 8
V_AK, V_AV0, V_AV1 = 10, 11, 12
G0 = 14
PM, QA = 16, 24
TMP = 28
SB, NEGM, MG, PB, PF, KF, VF = 32, 64, 96, 128, 144, 152, 192
OACC2 = (160, 224)
KA, QA1, VA = 208, 216, 176

class Role:
    def __init__(self, name):
        self.P, self.name, self.ns, self.nl = Prog(), name, 0, 0
    def stamp(self):
        P = self.P
        if OPT["amp"] == self.ns and OPT["amprole"] == (self.name == "H"):
            P.add(WaitLds())
            P(f"{'s_memtime' if OPT['ampclk'] else 's_memrealtime'} {s(S_TM,2)}\ns_waitcnt lgkmcnt(0)\nv_writelane_b32 {v(V_STAMP)}, {s(S_TM)}, 1")
        if OPT["stamps"]:
            P.add(WaitLds())
            P(f"s_memtime {s(S_TM,2)}\ns_waitcnt lgkmcnt(0)\nv_writelane_b32 {v(V_STAMP)}, {s(S_TM)}, {self.ns + 1}")
            if OPT["rt"]: P(f"s_memrealtime {s(S_TM,2)}\ns_waitcnt lgkmcnt(0)\nv_writelane_b32 {v(V_STAMP)}, {s(S_TM)}, {self.ns + 32}")
        self.ns += 1
    def poll(self, cmp_txt, reload_txt):
        P, n = self.P, f"{self.name}{self.nl}"; self.nl += 1
        P(f"s_mov_b32 {s(S_SPIN)}, 0x40000"); P(cmp_txt)
        P(f"s_cmp_eq_u64 vcc, -1\ns_cbranch_scc1 L_pok{n}")
        P.add(Raw(f"""L_pspin{n}:
    {reload_txt}
    s_sub_u32 {s(S_SPIN)}, {s(S_SPIN)}, 1
    s_cbranch_scc1 L_pok{n}
    s_waitcnt vmcnt(0)
    {cmp_txt}
    s_nop 2
    s_cmp_eq_u64 vcc, -1
    s_cbranch_scc0 L_pspin{n}
L_pok{n}:"""))
    def spoll_issue(self, n, off):
        self.P(f"s_load_dwordx{2*n} {s(4,2*n)}, s[22:23], {s(off)} glc")
    def spoll(self, n, off, ignore_from=None):
        P, lb = self.P, f"{self.name}{self.nl}"; self.nl += 1
        P.add(WaitLds())
        t = f"    s_mov_b32 {s(S_SPIN)}, 0x40000\nL_sp{lb}:\n"
        for i in range(n - 1):
            if ignore_from is not None:
                t += f"    s_cmp_lt_u32 {s(ignore_from)}, {n - i}\n    s_cselect_b64 {s(4+2*i,2)}, {s(S_EP,2)}, {s(4+2*i,2)}\n"
        for i in range(n):
            t += f"    s_xor_b64 {s(4+2*i,2)}, {s(4+2*i,2)}, {s(S_EP,2)}\n"
            if i: t += f"    s_or_b64 s[4:5], s[4:5], {s(4+2*i,2)}\n"
        t += (f"    s_cmp_eq_u64 s[4:5], 0\n    s_cbranch_scc1 L_spok{lb}\n"
              f"    s_load_dwordx{2*n} {s(4,2*n)}, s[22:23], {s(off)} glc\n"
              f"    s_sub_u32 {s(S_SPIN)}, {s(S_SPIN)}, 1\n    s_waitcnt lgkmcnt(0)\n    s_cbranch_scc0 L_sp{lb}\nL_spok{lb}:")
        P.add(Raw(t))
    def finish(self):
        P = self.P
        if OPT["stamps"]:
            P(f"s_memrealtime {s(S_TM,2)}\ns_waitcnt lgkmcnt(0) vmcnt(0)\nv_writelane_b32 {v(V_STAMP)}, {s(S_TM)}, 63")
            P(f"""s_lshl_b32 {s(S_T0)}, s2, 3
s_add_u32 {s(S_T0)}, {s(S_T0)}, {s(S_W4)}
s_add_u32 {s(S_T0)}, {s(S_T0)}, {4 if self.name == "H" else 0}
s_lshl_b32 {s(S_T0)}, {s(S_T0)}, 8
s_add_u32 {s(S_T0)}, {s(S_T0)}, {WS_STAMP}
v_lshlrev_b32 v0, 2, {v(V_LANE)}
buffer_store_dword {v(V_STAMP)}, v0, {s(S_WS,4)}, {s(S_T0)} offen""")
        if OPT["amp"] >= 0 and OPT["amprole"] == (self.name == "H"):
            P(f"""s_cmp_lg_u32 s2, 100
s_cbranch_scc1 L_end
v_readlane_b32 {s(S_T0)}, {v(V_STAMP)}, 0
v_readlane_b32 {s(S_T1)}, {v(V_STAMP)}, 1
s_memrealtime {s(S_TM,2)}
s_sub_u32 {s(S_T1)}, {s(S_T1)}, {s(S_T0)}
s_mul_i32 {s(S_T1)}, {s(S_T1)}, {OPT["ampk"]}
s_lshr_b32 {s(S_T1)}, {s(S_T1)}, {4 if OPT["ampclk"] else 0}
s_min_u32 {s(S_T1)}, {s(S_T1)}, 100000
s_waitcnt lgkmcnt(0)
s_mov_b32 {s(S_T0)}, {s(S_TM)}""")
            P.add(Raw(f"""L_amp{self.name}:
    s_memrealtime {s(S_TM,2)}
    s_waitcnt lgkmcnt(0)
    s_sub_u32 {s(S_K)}, {s(S_TM)}, {s(S_T0)}
    s_cmp_lt_u32 {s(S_K)}, {s(S_T1)}
    s_cbranch_scc1 L_amp{self.name}"""))
        P("s_endpgm")

ws_ld = lambda dst, voff, soff, imm=0, tag=None: Ins(
    f"buffer_load_dwordx4 {dst}, {v(voff)}, {s(S_WS,4)}, {soff} offen{' offset:%d' % imm if imm else ''} sc1", tag)
ws_st = lambda src, voff, soff, imm=0, tag=None: Ins(
    f"buffer_store_dwordx4 {src}, {v(voff)}, {s(S_WS,4)}, {soff} offen{' offset:%d' % imm if imm else ''} sc1", tag)
ep_load = f"buffer_load_dwordx2 {v(EP,2)}, off, {s(S_DBG,4)}, 0 sc1"
flag_load = f"buffer_load_dwordx2 {v(FLG,2)}, {v(V_FOFF)}, {s(S_WS,4)}, {s(S_K)} offen sc1"
flag_cmp = f"v_cmp_eq_u64 vcc, {v(FLG,2)}, {v(EP,2)}"
def flag_store(data_tag, kind):
    if kind == "kv":
        o = lines(f"""v_mul_u32_u24 v0, 56, {v(V_LANE)}
v_add_u32 v0, 88, v0
s_sub_u32 {s(S_T1)}, 31, {s(S_RB)}
s_min_u32 {s(S_T1)}, {s(S_T1)}, 4
v_cmp_gt_u32 vcc, {s(S_T1)}, {v(V_LANE)}
s_cmp_eq_u32 {s(S_RB)}, 0
s_cselect_b32 {s(S_T1)}, 24, {OOB}
v_mov_b32 v5, {s(S_T1)}
v_cndmask_b32 v0, v5, v0, vcc
s_lshl_b32 {s(S_T0)}, {s(S_HEAD)}, 5
s_add_u32 {s(S_T0)}, {s(S_T0)}, {s(S_RB)}
s_lshl_b32 {s(S_T0)}, {s(S_T0)}, 6
s_add_u32 {s(S_T0)}, {s(S_T0)}, {WS_FKV}""")
    else:
        o = lines(f"""v_lshlrev_b32 v0, 8, {v(V_LANE)}
v_cmp_gt_u32 vcc, 8, {v(V_LANE)}
v_mov_b32 v5, {OOB}
v_cndmask_b32 v0, v5, v0, vcc
s_lshl_b32 {s(S_T0)}, {s(S_RB)}, 8
s_add_u32 {s(S_T0)}, {s(S_T0)}, {s(S_HEAD)}
s_lshl_b32 {s(S_T0)}, {s(S_T0)}, 3
s_add_u32 {s(S_T0)}, {s(S_T0)}, { {"ob": WS_FOB, "oa0": WS_FOA, "oa1": WS_FOA + 65536}[kind] }""")
    return o + [WaitTag(data_tag), Ins(f"buffer_store_dwordx2 {v(EP,2)}, v0, {s(S_WS,4)}, {s(S_T0)} offen sc1", "flag")]

def max_tree(dst, regs, init=False):
    regs, o = list(regs), []
    if not init:
        o.append(f"v_max3_f32 {v(dst)}, {v(regs[0])}, {v(regs[1])}, {v(regs[2])}"); regs = regs[3:]
    while len(regs) >= 2:
        o.append(f"v_max3_f32 {v(dst)}, {v(dst)}, {v(regs[0])}, {v(regs[1])}"); regs = regs[2:]
    if regs: o.append(f"v_max_f32 {v(dst)}, {v(dst)}, {v(regs[0])}")
    return o
def cross_max(m, t):
    return [f"v_mov_b32 {v(t)}, {v(m)}", f"v_permlane32_swap_b32 {v(m)}, {v(t)}", f"v_max_f32 {v(m)}, {v(m)}, {v(t)}"]

def attn_setup(t, tmp):
    r5, hh, cm, u = tmp, tmp + 1, tmp + 2, tmp + 3
    o = lines(f"""v_and_b32 {v(r5)}, 31, {v(V_LANE)}
v_lshrrev_b32 {v(hh)}, 5, {v(V_LANE)}
v_lshlrev_b32 {v(u)}, 2, {v(hh)}
v_sub_u32 {v(cm)}, {v(r5)}, {v(u)}
s_mul_i32 {s(S_T2)}, {s(S_W4)}, {KVH}
s_add_u32 {s(S_T2)}, {s(S_T2)}, {L_KV + t*KVS}
v_add_u32 {v(V_AK)}, {s(S_T2)}, {v(V_L16)}
v_and_b32 {v(u)}, 15, {v(V_LANE)}
v_lshlrev_b32 {v(u)}, 4, {v(u)}
v_lshl_add_u32 {v(u)}, {v(hh)}, 8, {v(u)}
v_mov_b32 {v(hh)}, 0x400
v_cndmask_b32 {v(V_AV0)}, {v(hh)}, {v(u)}, {s(S_LO16,2)}
v_mov_b32 {v(hh)}, 0x200
v_cndmask_b32 {v(V_AV1)}, {v(hh)}, {v(u)}, {s(S_LO16,2)}
v_add_u32 {v(V_AV0)}, {s(S_T2)}, {v(V_AV0)}
v_add_u32 {v(V_AV1)}, {s(S_T2)}, {v(V_AV1)}
v_mov_b32 {v(u)}, 0xffff""")
    o += [f"v_cmp_le_i32 {s(S_MASK+2*q,2)}, {8*(q>>2)+(q&3)}, {v(cm)}" for q in range(16)]
    o += [f"v_cndmask_b32 {v(PM+pq)}, 0, {v(u)}, {s(S_MASK+4*pq,2)}" for pq in range(8)]
    o += [f"v_cndmask_b32 {v(PM+pq)}, {v(PM+pq)}, -1, {s(S_MASK+4*pq+2,2)}" for pq in range(8)]
    return o

def gate_finish(tiles, addr, tmp):
    o = [f"ds_read_b128 {v(tmp+4*t,4)}, {v(addr)} offset:{512*t}" for t in tiles]
    seq = []
    for t in tiles:
        b = tmp + 4*t
        seq.append([f"v_add_f32 {v(b)}, {v(b)}, {v(b+1)}", f"v_add_f32 {v(b+2)}, {v(b+2)}, {v(b+3)}",
                    f"v_add_f32 {v(b)}, {v(b)}, {v(b+2)}", f"v_mul_f32 {v(b)}, {fhex(-math.log2(math.e))}, {v(b)}",
                    f"v_exp_f32 {v(b)}, {v(b)}", f"v_add_f32 {v(b)}, 1.0, {v(b)}", f"v_rcp_f32 {v(G0+t)}, {v(b)}"])
    return o + interleave(*seq)

def o_pack(acc, o0, lreg, fac, dst, f):
    return ([f"v_rcp_f32 {v(f)}, {v(acc+lreg)}"] + fac +
            [f"v_mul_f32 {v(acc+o0+i)}, {v(f)}, {v(acc+o0+i)}" for i in range(8)] +
            [f"v_cvt_pk_bf16_f32 {v(dst+i)}, {v(acc+o0+2*i)}, {v(acc+o0+2*i+1)}" for i in range(4)])
def o_store(br, tt, src, tag):
    return [f"s_lshl_b32 {s(S_T0)}, {s(S_RB)}, 17", f"s_lshl_b32 {s(S_T1)}, {s(S_HEAD)}, 10",
            f"s_add_u32 {s(S_T0)}, {s(S_T0)}, {s(S_T1)}", f"s_add_u32 {s(S_T0)}, {s(S_T0)}, {WS_O + br*65536 + tt*32768}",
            ws_st(v(src,4), V_L16, s(S_T0), 0, tag)]

OPK1, CHK, S_BAD, V_GPR = 220, 240, 24, 188
def o_check(t):
    o, m = OACC2[t], CHK
    return ([f"s_mov_b32 {s(S_T1)}, 0x7b800000", f"v_add_f32 {v(m)}, abs({v(o)}), abs({v(o+8)})", f"v_add_f32 {v(m+1)}, abs({v(o+1)}), abs({v(o+2)})"] +
            [f"v_add_f32 {v(m+(i&1))}, {v(m+(i&1))}, abs({v(o+i)})" for i in range(3, 8)] +
            [f"v_add_f32 {v(m)}, {v(m)}, {v(m+1)}", f"v_cmp_lt_f32 vcc, {v(m)}, {s(S_T1)}", "s_cmp_eq_u64 vcc, -1"])
def a_publish(t):
    dst = (PF, OPK1)[t]
    return o_pack(OACC2[t], 0, 8, [f"v_mul_f32 {v(CHK)}, {v(CHK)}, {v(G0+t)}"], dst, CHK) + o_store(0, t, dst, f"oa{t}")

def window_attention(R, extra):
    P = R.P
    Q = lambda t: v((QA, QA1)[t], 4)
    items = [(1, u) for u in range(1, 8)] + [(0, u) for u in range(8)]
    merged = lambda j: items[j][1] == items[j][0]
    kread = lambda j: [f"ds_read_b128 {v(KF+4*(j&1),4)}, {v(V_AK)} offset:{items[j][1]*KVS}"] if j < 15 else []
    vread = lambda j: [f"ds_read_b128 {v(VF+8*(j&1),4)}, {v(V_AV0)} offset:{items[j][1]*KVS+1024}",
                       f"ds_read_b128 {v(VF+8*(j&1)+4,4)}, {v(V_AV1)} offset:{items[j][1]*KVS+1536}"] if j < 15 else []
    M = (TMP, TMP + 2)
    P(f"v_mov_b32 v5, {v(V_GPR)}")
    acc = lambda t: v(OACC2[t], 16)
    negm = lambda t: v(NEGM+16*t, 16)
    score = lambda j: [mfma(v(SB+16*(j&1),16), v(KF+4*(j&1),4), Q(items[j][0]), negm(items[j][0]))] if j < 15 else []
    exps = lambda S: [f"v_exp_f32 {v(S+i)}, {v(S+i)}" for i in range(16)]
    cvts = lambda d, S: [f"v_cvt_pk_bf16_f32 {v(d+k)}, {v(S+2*k)}, {v(S+2*k+1)}" for k in range(8)]
    P.add(extra)
    P.add(interleave(*[max_tree(M[t], range(MG+16*t, MG+16*t+16)) + cross_max(M[t], M[t]+1) for t in (1, 0)]))
    for t in (1, 0):
        P.add([f"v_pk_add_f32 {v(NEGM+16*t+2*i,2)}, 0, {v(M[t],2)} op_sel_hi:[0,0] neg_lo:[0,1] neg_hi:[0,1]" for i in range(8)])
        if t == 1: P(mfma(v(SB+16,16), v(KA,4), Q(1), negm(1)))
    P(mfma(v(MG+16,16), v(KA+4,4), Q(1), negm(1)))
    e, c = exps(SB+16), cvts(PB+8, SB+16)
    P.add(e[0:4]); P(mfma(v(MG,16), v(KA,4), Q(0), negm(0))); P.add(e[4:8]); P.add(c[0:4]); P.add(e[8:10])
    P(mfma(acc(1), v(VA,4), v(PB+8,4), "0")); P.add(e[10:16])
    R.stamp()
    P.add(WaitLds()); P("s_barrier")
    R.stamp()
    P.add(kread(0) + kread(1) + vread(0) + vread(1)); P.add(c[4:8])
    P.add(score(0)); P.add(kread(2))
    pend = [mfma(acc(1), v(VA+4,4), v(PB+12,4), acc(1))]
    for j, (t, u) in enumerate(items):
        S, Pp, Vf = SB + 16*(j & 1), PB + 8*(j & 1), VF + 8*(j & 1)
        nxt = score(j + 1) + (kread(j + 3) if j != 1 else [])
        if j == 2: P("s_barrier"); P.add(kread(4))
        if j == 4: P.add(gate_finish([0, 1], 5, CHK))
        if merged(j):
            g = MG + 16*t
            sel = [f"v_cndmask_b32 {v(g+i)}, {v(S+i)}, {v(g+i)}, {s(S_MASK+2*i,2)}" for i in range(16)]
            e, c = exps(g), cvts(PF, g)
            an = [f"v_and_b32 {v(Pp+i)}, {v(PM+i)}, {v(PF+i)}" for i in range(8)]
            xo = [f"v_xor_b32 {v(g+i)}, {v(PF+i)}, {v(Pp+i)}" for i in range(8)]
            if j == 0:
                P.add(pend); P.add(nxt); P.add(sel)
            else:
                P.add(sel[0:2]); P.add(pend); P.add(sel[2:10]); P.add(nxt); P.add(sel[10:])
            P.add(e[0:8]); P.add(c[0:4]); P.add(an[0:4]); P.add(e[8:10])
            P(mfma(acc(t), v(VA+8*t,4), v(Pp,4), acc(t) if t else "0"))
            P.add(e[10:16]); P.add(xo[0:4]); P.add(c[4:8])
            P(mfma(acc(t), v(Vf,4), v(g,4), acc(t)))
            P.add(an[4:8]); P.add(xo[4:8])
            pend = [mfma(acc(t), v(VA+8*t+4,4), v(Pp+4,4), acc(t)), [mfma(acc(t), v(Vf+4,4), v(g+4,4), acc(t))] + vread(j + 2)]
            if j == 7:
                P.add(o_check(1)); P(f"s_cselect_b32 {s(S_BAD)}, 0, 1\ns_cbranch_scc0 L_skip1")
                P.add(a_publish(1)); P("L_skip1:")
                R.stamp()
        else:
            e, c = exps(S), cvts(Pp, S)
            P.add(e[0:2]); P.add(pend[0]); P.add(e[2:5])
            if len(pend) > 1: P.add(pend[1])
            P.add(e[5:6 if len(pend) == 1 else 8]); P.add(nxt); P.add(e[6 if len(pend) == 1 else 8:8])
            P.add(c[0:4]); P.add(e[8:10 if len(pend) == 1 else 12])
            P(mfma(acc(t), v(Vf,4), v(Pp,4), acc(t)))
            P.add(e[10 if len(pend) == 1 else 12:16]); P.add(c[4:8])
            pend = [[mfma(acc(t), v(Vf+4,4), v(Pp+4,4), acc(t))] + vread(j + 2)]
        if OPT["fine"] == 5: R.stamp()
        if j == OPT["xat"]:
            P.add(WaitLds()); P("s_barrier")
    P.add(pend)
    P.add(o_check(0)); P(f"s_cbranch_scc0 L_slow\ns_cmp_lg_u32 {s(S_BAD)}, 0\ns_cbranch_scc1 L_slow\nL_back:")
    R.stamp()

def slow_path():
    F = Prog()
    F(f"L_slow:\ns_cmp_eq_u32 {s(S_BAD)}, 0\ns_cbranch_scc1 L_exact0")
    G = Prog(); G.add(a_publish(1))
    return finalize(F) + exact_attention(1) + finalize(G) + exact_attention(0) + "    s_branch L_back\n"

def exact_attention(t):
    F = Prog(); q, M, acc = v((QA, QA1)[t], 4), TMP, v(OACC2[t], 16)
    KO, VO, G = TMP + 2, TMP + 3, S_T0
    def tile(rel, kdst, vdst):
        o = [f"s_add_i32 {s(S_K)}, {s(G)}, {rel}", f"s_cmp_ge_i32 {s(S_K)}, 0", f"s_cselect_b64 vcc, -1, 0",
             f"s_cselect_b32 {s(S_TM)}, {hex(ONES)}, 0", f"s_max_i32 {s(S_K)}, {s(S_K)}, 0", f"s_lshl_b32 {s(S_K)}, {s(S_K)}, 11",
             f"s_lshl_b32 {s(S_T1)}, {s(S_HEAD)}, 17", f"s_add_u32 {s(S_K)}, {s(S_K)}, {s(S_T1)}",
             f"v_and_b32 {v(KO)}, 0x200, {v(V_L16)}", f"v_cndmask_b32 {v(KO)}, {v(KO)}, {v(V_L16)}, vcc", ws_ld(v(kdst,4), KO, s(S_K))]
        if vdst is not None:
            o += [f"v_mov_b32 {v(vdst+i)}, {s(S_TM)}" for i in range(8)]
            o += [f"s_cmp_lg_u32 {s(S_TM)}, 0", f"s_cselect_b32 {s(S_K)}, {s(S_K)}, {WS_SIZE}", f"s_mov_b64 exec, {s(S_LO16,2)}",
                  ws_ld(v(vdst,4), VO, s(S_K), 1024), ws_ld(v(vdst+4,4), VO, s(S_K), 1536), "s_mov_b64 exec, -1"]
        return o
    F(f"L_exact{t}:\ns_waitcnt vmcnt(0) lgkmcnt(0)\ns_nop 15")
    F(f"""s_lshl_b32 {s(G)}, {s(S_RB)}, 1
s_sub_u32 {s(G)}, {s(G)}, {8 - t}
v_lshrrev_b32 {v(VO)}, 1, {v(V_L16)}
v_and_b32 {v(VO)}, 0x100, {v(VO)}
v_and_b32 {v(KO)}, 0xf0, {v(V_L16)}
v_or_b32 {v(VO)}, {v(VO)}, {v(KO)}""")
    F.add(tile(8, KF, VF)); F.add(tile(0, KF+4, VF+8))
    F(mfma(v(MG,16), v(KF,4), q, "0")); F(mfma(v(SB,16), v(KF+4,4), q, "0"))
    F.add([f"v_cndmask_b32 {v(MG+i)}, {v(SB+i)}, {v(MG+i)}, {s(S_MASK+2*i,2)}" for i in range(16)])
    F.add(max_tree(M, range(MG, MG+16)))
    F(f"s_mov_b32 {s(S_TM+1)}, 7\nL_exact_m{t}:\ns_add_u32 {s(G)}, {s(G)}, 1")
    F.add(tile(0, KF, None))
    F(mfma(v(SB,16), v(KF,4), q, "0"))
    F.add(max_tree(M, range(SB, SB+16), init=True))
    F(f"s_sub_u32 {s(S_TM+1)}, {s(S_TM+1)}, 1\ns_cmp_lg_u32 {s(S_TM+1)}, 0\ns_cbranch_scc1 L_exact_m{t}")
    F.add(cross_max(M, M+1))
    F.add([f"v_sub_f32 {v(MG+i)}, {v(MG+i)}, {v(M)}" for i in range(16)])
    F.add([f"v_exp_f32 {v(MG+i)}, {v(MG+i)}" for i in range(16)])
    F.add([f"v_cvt_pk_bf16_f32 {v(PF+i)}, {v(MG+2*i)}, {v(MG+2*i+1)}" for i in range(8)])
    F.add([f"v_and_b32 {v(PB+i)}, {v(PM+i)}, {v(PF+i)}" for i in range(8)])
    F.add([f"v_xor_b32 {v(PF+i)}, {v(PF+i)}, {v(PB+i)}" for i in range(8)])
    F(mfma(acc, v(VF,4), v(PB,4), "0")); F(mfma(acc, v(VF+4,4), v(PB+4,4), acc))
    F(mfma(acc, v(VF+8,4), v(PF,4), acc)); F(mfma(acc, v(VF+12,4), v(PF+4,4), acc))
    F(f"s_sub_u32 {s(G)}, {s(G)}, 7\ns_mov_b32 {s(S_TM+1)}, 7\ns_nop 15\nL_exact_e{t}:\ns_add_u32 {s(G)}, {s(G)}, 1")
    F.add(tile(0, KF, VF))
    F(mfma(v(SB,16), v(KF,4), q, "0"))
    F.add([f"v_sub_f32 {v(SB+i)}, {v(SB+i)}, {v(M)}" for i in range(16)])
    F.add([f"v_exp_f32 {v(SB+i)}, {v(SB+i)}" for i in range(16)])
    F.add([f"v_cvt_pk_bf16_f32 {v(PB+i)}, {v(SB+2*i)}, {v(SB+2*i+1)}" for i in range(8)])
    F(mfma(acc, v(VF,4), v(PB,4), acc)); F(mfma(acc, v(VF+4,4), v(PB+4,4), acc))
    F(f"s_nop 15\ns_sub_u32 {s(S_TM+1)}, {s(S_TM+1)}, 1\ns_cmp_lg_u32 {s(S_TM+1)}, 0\ns_cbranch_scc1 L_exact_e{t}")
    return finalize(F)

E = Prog()
hb = {4: 2, 3: 1, 2: 0, 1: 3}[OPT["xmap"]]
if OPT["stamps"] or OPT["amp"] >= 0:
    E("s_memtime s[64:65]\ns_memrealtime s[66:67]")
def entry_stamp():
    if OPT["stamps"]:
        return [f"v_mov_b32 {v(V_STAMP)}, 0", f"v_writelane_b32 {v(V_STAMP)}, s64, 0", f"v_writelane_b32 {v(V_STAMP)}, s66, 62"]
    if OPT["amp"] >= 0:
        return [f"v_mov_b32 {v(V_STAMP)}, 0", f"v_writelane_b32 {v(V_STAMP)}, {'s64' if OPT['ampclk'] else 's66'}, 0"]
    return []
code_pf = f"""s_getpc_b64 {s(S_T2,2)}
L_pc:
s_lshl2_add_u32 {s(S_T1)}, {s(S_T0)}, {s(S_W4)}
s_and_b32 {s(S_T1)}, {s(S_T1)}, 63
s_lshl_b32 {s(S_T1)}, {s(S_T1)}, 9
s_sub_u32 {s(S_T2)}, {s(S_T2)}, L_pc-{NAME}_kernel
s_subb_u32 {s(S_T3)}, {s(S_T3)}, 0
v_and_b32 v5, 3, {v(V_LANE)}
v_lshl_add_u32 v5, v5, 7, {s(S_T1)}
global_load_dword v13, v5, {s(S_T2,2)}"""
if OPT["cpf"] == 2:
    E(f"""s_getpc_b64 {s(S_T2,2)}
s_bfe_u32 {s(S_T1)}, s2, 0x50003
v_lshrrev_b32 v5, 6, v0
v_lshlrev_b32 v5, 7, v5
v_lshl_add_u32 v5, {s(S_T1)}, 10, v5
global_load_dword v13, v5, {s(S_T2,2)}""")
if OPT["cpf"] == 3:
    E(f"""s_getpc_b64 {s(S_T2,2)}
s_bfe_u32 {s(S_T1)}, s2, 0x30003
v_lshrrev_b32 v5, 4, v0
v_lshlrev_b32 v5, 7, v5
v_lshl_add_u32 v5, {s(S_T1)}, 12, v5
global_load_dword v13, v5, {s(S_T2,2)}""")
E(f"""
s_cmp_ge_u32 s2, 256
s_cbranch_scc1 L_end
s_load_dwordx16 s[4:19], s[0:1], 0
s_load_dwordx4 s[20:23], s[0:1], 64
v_lshrrev_b32 v4, 6, v0
v_and_b32 {v(V_LANE)}, 63, v0
s_lshr_b32 {s(S_T0)}, s2, 3
v_readfirstlane_b32 {s(S_MX)}, v4
""")
E(f"""
s_and_b32 {s(S_T1)}, s2, {(8 >> hb) - 1}
s_lshl_b32 {s(S_HG)}, {s(S_T1)}, {hb}
s_and_b32 {s(S_K)}, {s(S_T0)}, {(1 << hb) - 1}
s_add_u32 {s(S_HG)}, {s(S_HG)}, {s(S_K)}
s_bfe_u32 {s(S_K)}, s2, {hex((hb << 16) | (3 - hb))}
s_lshl_b32 {s(S_RB)}, {s(S_K)}, {5 - hb}
s_lshr_b32 {s(S_ROT)}, {s(S_T0)}, {hb}
s_add_u32 {s(S_RB)}, {s(S_RB)}, {s(S_ROT)}
s_and_b32 {s(S_W4)}, {s(S_MX)}, 3
""")
if OPT["cpf"] == 1:
    E(f"""s_cmp_lt_u32 {s(S_MX)}, 4
s_cbranch_scc0 L_hrole""")
    E(code_pf)
    E("s_branch L_crole\nL_hrole:")
elif OPT["cpf"] >= 4:
    E(f"""s_cmp_lt_u32 {s(S_MX)}, 4
s_cbranch_scc0 L_hrole
s_getpc_b64 {s(S_T2,2)}
L_pc:
s_lshl2_add_u32 {s(S_T1)}, {s(S_T0)}, {s(S_W4)}
s_lshl_b32 {s(S_T1)}, {s(S_T1)}, 8
s_sub_u32 {s(S_T2)}, {s(S_T2)}, L_pc-{NAME}_kernel
s_subb_u32 {s(S_T3)}, {s(S_T3)}, 0
s_load_dword s70, {s(S_T2,2)}, {s(S_T1)}
s_add_u32 {s(S_T1)}, {s(S_T1)}, 128
s_load_dword s71, {s(S_T2,2)}, {s(S_T1)}""")
    if OPT["cpf"] == 5:
        E("s_waitcnt lgkmcnt(0)")
        for i, ptr in enumerate((6, 12, 4, 16, 20, 8, 14, 18, 22)):
            E(f"s_load_dword s{72+i}, {s(ptr,2)}, 0")
        for i in range(1, 5):
            E(f"s_mov_b32 {s(S_T1)}, {i << 21}\ns_load_dword s{80+i}, s[22:23], {s(S_T1)}")
    E("s_branch L_crole\nL_hrole:")
else:
    E(f"s_cmp_lt_u32 {s(S_MX)}, 4\ns_cbranch_scc1 L_crole")
late_ids = lines(f"""
s_lshr_b32 {s(S_T0)}, s2, 3
s_and_b32 {s(S_RB3)}, s2, 7
s_lshl_b32 {s(S_RB3)}, {s(S_RB3)}, 2
s_lshr_b32 {s(S_T1)}, {s(S_T0)}, 3
s_add_u32 {s(S_RB3)}, {s(S_RB3)}, {s(S_T1)}
s_and_b32 {s(S_CB)}, {s(S_T0)}, 7
s_lshl_b32 {s(S_HEAD)}, {s(S_HG)}, 2
s_add_u32 {s(S_HEAD)}, {s(S_HEAD)}, {s(S_W4)}
s_mov_b32 {s(S_LO16)}, 0xffff
s_mov_b32 {s(S_LO16+1)}, 0xffff
v_lshlrev_b32 {v(V_L16)}, 4, {v(V_LANE)}
""")
rot_code = {
 0: f"s_and_b32 {s(S_ROT)}, {s(S_ROT)}, {OPT['rotmask']}",
 1: f"s_and_b32 {s(S_ROT)}, s2, 7",
 4: f"s_add_u32 {s(S_ROT)}, {s(S_ROT)}, {s(S_HG)}\ns_and_b32 {s(S_ROT)}, {s(S_ROT)}, 7",
 5: f"s_add_u32 {s(S_ROT)}, {s(S_ROT)}, {s(S_HG)}\ns_and_b32 {s(S_ROT)}, {s(S_ROT)}, 3\ns_lshl_b32 {s(S_ROT)}, {s(S_ROT)}, 1",
 6: f"s_add_u32 {s(S_ROT)}, {s(S_ROT)}, {s(S_HG)}\ns_and_b32 {s(S_ROT)}, {s(S_ROT)}, 1\ns_lshl_b32 {s(S_ROT)}, {s(S_ROT)}, 2",
}[OPT["rotmode"]]

def stage_of(n): return n >> 1 if n < 32 else 16 + ((n - 32) >> 2)
def first_of_stage(n): return n < 64 and (n == 0 or stage_of(n) != stage_of(n - 1))

H = Role("H"); P = H.P
VX, VW1, VW2 = 160, 162, 166
V_AXW, V_AG, V_GPW, GACC, XW, GF = 170, 171, 172, 174, 176, 184
i3, i4, p7, t0, t1, t2 = 32, 33, 34, 35, 36, 37
def raw(i):
    if OPT["fine"] == 3: P(f"s_memtime s[{68+2*i}:{69+2*i}]")
raw(0)
P(rot_code)
P(f"""
v_lshrrev_b32 {v(i3)}, 3, {v(V_LANE)}
v_lshrrev_b32 {v(i4)}, 4, {v(V_LANE)}
v_and_b32 {v(p7)}, 7, {v(V_LANE)}
s_lshl_b32 {s(S_T0)}, {s(S_W4)}, 4
v_add_u32 {v(t0)}, {s(S_T0)}, {v(i3)}
v_lshlrev_b32 {v(t0)}, 10, {v(t0)}
v_xor_b32 {v(t1)}, {v(p7)}, {v(i4)}
v_lshl_add_u32 {v(VX)}, {v(t1)}, 4, {v(t0)}
v_xor_b32 {v(VX+1)}, 64, {v(VX)}
v_add_u32 {v(VX+1)}, {0x2000 - 1024}, {v(VX+1)}
s_lshr_b32 {s(S_T0)}, {s(S_W4)}, 1
s_and_b32 {s(S_T1)}, {s(S_W4)}, 1
s_lshl_b32 {s(S_K)}, {s(S_T0)}, 4
v_add_u32 {v(t0)}, {s(S_K)}, {v(i4)}
v_mul_u32_u24 {v(t0)}, 0xc00, {v(t0)}
v_lshlrev_b32 {v(t1)}, 1, {v(i4)}
v_xor_b32 {v(t1)}, {v(t1)}, {v(p7)}
v_lshl_add_u32 {v(t0)}, {v(t1)}, 4, {v(t0)}
v_and_b32 {v(t1)}, 1, {v(i3)}
v_xor_b32 {v(t1)}, {s(S_T1)}, {v(t1)}
v_lshlrev_b32 {v(t1)}, 10, {v(t1)}
s_lshl_b32 {s(S_T2)}, {s(S_HG)}, 7
s_add_u32 {s(S_K)}, {s(S_T2)}, 1024
v_add3_u32 {v(VW1)}, {v(t0)}, {v(t1)}, {s(S_K)}
v_add_u32 {v(VW1+1)}, {12288 - 1024}, {v(VW1)}
v_add_u32 {v(VW1+2)}, {2*(12288 - 1024)}, {v(VW1)}
v_add_u32 {v(VW1+3)}, {3*(12288 - 1024)}, {v(VW1)}
s_lshl_b32 {s(S_MW)}, {s(S_T1)}, 13
s_lshl_b32 {s(S_K)}, {s(S_T0)}, 12
s_add_u32 {s(S_MW)}, {s(S_MW)}, {s(S_K)}
s_lshl_b32 {s(S_MX)}, {s(S_W4)}, 11
s_add_u32 {s(S_MX)}, {s(S_MX)}, {L_X}""")
raw(1)
P("s_waitcnt lgkmcnt(0)")
raw(2)
P.add(entry_stamp())
P.add(srd(S_X, 4, 2097152))
P(f"""s_cmp_eq_u32 {s(S_T1)}, 0
s_cselect_b32 {s(S_W)}, s6, s12
s_cselect_b32 {s(S_W+1)}, s7, s13
s_mov_b32 {s(S_W+2)}, 1572864
s_mov_b32 {s(S_W+3)}, 0x20000""")
if OPT["fine"] != 3: H.stamp()
def dma(voff, rsrc, soff, imm, tag, flags=""):
    return Ins(f"buffer_load_dwordx4 {v(voff)}, {s(rsrc,4)}, {soff} offen{' offset:%d' % imm if imm else ''}{flags} lds", tag)
def x_dma(j):
    return [f"s_add_u32 {s(S_K)}, {s(S_ROT)}, {j}", f"s_and_b32 {s(S_K)}, {s(S_K)}, 7", f"s_lshl_b32 {s(S_K)}, {s(S_K)}, 7",
            f"s_lshl_b32 {s(S_T2)}, {s(S_RB)}, 16", f"s_add_u32 m0, {s(S_MX)}, {j*8192}", f"s_add_u32 {s(S_K)}, {s(S_K)}, {s(S_T2)}",
            dma(VX, S_X, s(S_K), 0, f"x{j}"), dma(VX+1, S_X, s(S_K), 1024, f"x{j}")]
def w_dma(S):
    if S < 16:
        o = [f"s_lshl_b32 {s(S_T3)}, {s(S_ROT)}, 1", f"s_add_u32 {s(S_T3)}, {s(S_T3)}, {S}", f"s_and_b32 {s(S_T3)}, {s(S_T3)}, 15"]
    else:
        o = [f"s_add_u32 {s(S_T3)}, {s(S_ROT)}, {S-16}", f"s_and_b32 {s(S_T3)}, {s(S_T3)}, 7"]
    o += [f"s_add_u32 m0, {s(S_MW)}, {(S % NSLOT)*SLOT}", f"s_mul_i32 {s(S_T3)}, {s(S_T3)}, {(32 if S < 16 else 64)*3072}"]
    return o + [dma((VW1 if S < 16 else VW2) + t, S_W, s(S_T3), t*1024, f"w{S}") for t in range(4)]
P.add(x_dma(0)); raw(3)
P.add(w_dma(0)); raw(4)
P.add(w_dma(1)); raw(5)
P(f"""s_lshl_b32 {s(S_K)}, {s(S_ROT)}, 3
v_add_u32 {v(t2)}, {s(S_K)}, {v(V_LANE)}
v_and_b32 {v(t2)}, 63, {v(t2)}
v_lshlrev_b32 {v(t2)}, 4, {v(t2)}""")
P.add(srd(S_G, 16, 1024)); P(f"s_mov_b32 m0, {L_G}"); P.add(dma(t2, S_G, "0", 0, "w1"))
P.add(late_ids)
h_misc = lines(f"""
s_lshr_b32 {s(S_T0)}, {s(S_W4)}, 1
s_and_b32 {s(S_T1)}, {s(S_W4)}, 1
s_lshl_b32 {s(S_T0)}, {s(S_T0)}, 5
v_add_u32 {v(t0)}, {s(S_T0)}, {v(i3)}
v_mul_u32_u24 {v(t0)}, 0xc00, {v(t0)}
v_and_b32 {v(t1)}, 1, {v(i4)}
s_lshl_b32 {s(S_T1)}, {s(S_T1)}, 1
v_add_u32 {v(t1)}, {s(S_T1)}, {v(t1)}
v_lshlrev_b32 {v(t1)}, 1, {v(t1)}
v_xor_b32 {v(t1)}, {v(t1)}, {v(p7)}
v_lshl_add_u32 {v(t0)}, {v(t1)}, 4, {v(t0)}
s_lshl_b32 {s(S_T0)}, {s(S_HG)}, 7
v_add_u32 {v(VW2)}, {s(S_T0)}, {v(t0)}
v_add_u32 {v(VW2+1)}, {24576 - 1024}, {v(VW2)}
v_add_u32 {v(VW2+2)}, {2*(24576 - 1024)}, {v(VW2)}
v_add_u32 {v(VW2+3)}, {3*(24576 - 1024)}, {v(VW2)}
""") + srd(S_WS, 22, WS_SIZE) + srd(S_DBG, 20, 256)
P.add(h_misc)
if OPT["fine"] == 3:
    raw(6); P("s_waitcnt vmcnt(9)"); raw(7); P("s_waitcnt vmcnt(5)"); raw(8); P("s_waitcnt lgkmcnt(0)")
    for i in range(9):
        P(f"v_writelane_b32 {v(V_STAMP)}, s{68+2*i}, {i+1}")
    H.ns = 9
CM, QB, KB, VB, KBH, VBH, BS, BSP, BO, BP, BPL, BPK, SENT, S_R0 = 32, 48, 56, 64, 80, 84, 96, 128, 192, 224, 240, 248, 88, 28
def b_scores(t):
    kprev = v(KB, 4) if t == 1 else v(KBH, 4)
    return [mfma(v(BS+16*t,16), v(KB+4*t,4), v(QB+4*t,4), v(CM,16)), mfma(v(BSP+16*t,16), kprev, v(QB+4*t,4), v(CM,16))]
def b_softmax(t):
    S, sp, m, p, pl = BS + 16*t, BSP + 16*t, TMP + 2*t, BP + 8*t, BPL + 4*t
    o = [f"v_cndmask_b32 {v(S+q)}, {v(S+q)}, {v(sp+q)}, {s(S_LO16,2)}" for q in range(8, 16)]
    if t == 0:
        o += [f"v_mov_b32 {v(m)}, {hex(NEG_BIG)}"]
        o += [f"v_cndmask_b32 {v(S+q)}, {v(S+q)}, {v(m)}, {s(S_R0,2)}" for q in range(8, 16)]
    o += max_tree(m, range(S, S+16)) + cross_max(m, m+1)
    o += [f"v_pk_add_f32 {v(S+2*q,2)}, {v(S+2*q,2)}, {v(m,2)} op_sel_hi:[1,0] neg_lo:[0,1] neg_hi:[0,1]" for q in range(8)]
    o += [f"v_exp_f32 {v(S+q)}, {v(S+q)}" for q in range(16)]
    o += [f"v_cvt_pk_bf16_f32 {v(p+i)}, {v(S+2*i)}, {v(S+2*i+1)}" for i in range(8)]
    o += [f"v_cndmask_b32 {v(pl+i)}, 0, {v(p+4+i)}, {s(S_LO16,2)}" for i in range(4)]
    o += [f"v_cndmask_b32 {v(p+4+i)}, {v(p+4+i)}, 0, {s(S_LO16,2)}" for i in range(4)]
    return o
def b_pv(t):
    vprev, acc, p = v(VB+4, 4) if t == 1 else v(VBH, 4), v(BO+16*t, 16), BP + 8*t
    return [mfma(acc, v(VB+8*t,4), v(p,4), "0"), mfma(acc, v(VB+8*t+4,4), v(p+4,4), acc), mfma(acc, vprev, v(BPL+4*t,4), acc)]
def b_pack(t):
    f = TMP + 2*t
    return o_pack(BO+16*t, 8, 0, [f"v_sub_f32 {v(f+1)}, 1.0, {v(G0+t)}", f"v_mul_f32 {v(f)}, {v(f)}, {v(f+1)}"], BPK+4*t, f)
VWO, VKF, V1A, V1D, V_MB, V_HB = 160, 161, 162, 164, 12, 13
txt_of = lambda x: x.text if isinstance(x, Ins) else x
special_txt = []
def gather(tiles, special):
    o = []
    if 1 in tiles:
        o += [f"s_lshl_b32 {s(S_T0)}, {s(S_HEAD)}, 15", f"s_lshl_b32 {s(S_T1)}, {s(S_RB)}, 10", f"s_add_u32 {s(S_T0)}, {s(S_T0)}, {s(S_T1)}",
              f"s_add_u32 {s(S_T0)}, {s(S_T0)}, {WS_HB - 1024}"]
        if special:
            o += [f"s_cmp_eq_u32 {s(S_RB)}, 0", f"s_cselect_b32 {s(S_T0)}, {WS_SIZE}, {s(S_T0)}"]
        o += [ws_ld(v(KBH,4), V_HB, s(S_T0)), ws_ld(v(VBH,4), V_HB, s(S_T0), 512)]
        o += [f"s_lshl_b32 {s(S_K)}, {s(S_HEAD)}, 17", f"s_lshl_b32 {s(S_T1)}, {s(S_RB)}, 12",
              f"s_add_u32 {s(S_T2)}, {s(S_K)}, {s(S_T1)}", f"s_sub_u32 {s(S_T2)}, {s(S_T2)}, {8*2048}"]
    for u in tiles:
        tag = "kva" if 1 <= u <= 4 else "kvb"
        o += [f"s_add_u32 {s(S_T0)}, {s(S_T2)}, {u*2048}", f"s_add_u32 m0, {s(S_MW)}, {u*KVS}"]
        if special:
            o += [f"s_cmp_ge_u32 {s(S_RB)}, {(8-u+1)//2}", f"s_cbranch_scc1 L_gk{u}",
                  dma(VKF, S_WS, s(S_K), 0, None, " sc1"), f"s_mov_b32 {s(S_T0)}, {WS_SIZE}", f"s_branch L_gk{u}e", f"L_gk{u}:",
                  dma(V_L16, S_WS, s(S_T0), 0, None, " sc1"), f"L_gk{u}e:"]
        else:
            o += [dma(V_L16, S_WS, s(S_T0), 0, tag, " sc1")]
        o += [dma(V_L16, S_WS, s(S_T0), 1024, tag, " sc1")]
    return o
def emit_gather(n, tiles):
    P(f"s_cmp_lt_u32 {s(S_RB)}, 4\ns_cbranch_scc1 L_gspecial{n}")
    P.add(gather(tiles, False)); P(f"L_gdone{n}:")
    special_txt.append(f"L_gspecial{n}:\n" + "\n".join(("" if txt_of(x).endswith(":") else "    ") + txt_of(x) for x in gather(tiles, True))
                       + f"\n    s_branch L_gdone{n}\n")
S_R3, S_WB, S_MA, S_MB = 24, 25, 30, 31
B0, B1, A0, A1, A2, A3, VOG, EXW, EXR, VOUT = 16, 17, 24, 25, 26, 27, 18, 20, 23, 19
ACC3, OFB, OFA, WBF = 32, 96, 192, 176
issued_w, issued_x = 2, 1
for S in range(25):
    if S < 24:
        P.add(WaitTag(f"w{S}", f"x{S >> 1}" if S < 16 else "none"))
    if S < 23: P.add(WaitLds())
    P("s_barrier")
    if OPT["fine"] in (1, 2, 3) or S in (0, 16, 24): H.stamp()
    top = {0: 3}.get(S, S + 4)
    while issued_w <= min(top, 23):
        if issued_w < 16 and issued_w % 2 == 0 and issued_x <= issued_w // 2:
            P.add(x_dma(issued_x)); issued_x += 1
        P.add(w_dma(issued_w)); issued_w += 1
    if OPT["icpf"] and S == 1:
        t = (f"    s_getpc_b64 s[78:79]\nL_pc:\n    s_sub_u32 s78, s78, L_pc-{NAME}_kernel\n    s_subb_u32 s79, s79, 0\n    s_lshr_b32 {s(S_T1)}, s2, 3\n"
             f"    s_lshl2_add_u32 {s(S_T1)}, {s(S_T1)}, {s(S_W4)}\n    s_lshl_b32 {s(S_T1)}, {s(S_T1)}, 8\n")
        t += "".join(f"    s_load_dword s{80+i}, s[78:79], {s(S_T1)} offset:{i*64}\n" for i in range(4))
        P.add(Raw(t))
    if OPT["tlb"] and S in (3, 4, 5, 6):
        for i, (ptr, off) in enumerate({3: ((22, 0), (22, 1)), 4: ((22, 2), (22, 4)), 5: ((22, 3), (20, 0)), 6: ((18, 0),)}[S]):
            P.add(Raw(f"    s_mov_b32 {s(S_T1)}, {off << 21}\n    s_load_dword s{70+i}, {s(ptr,2)}, {s(S_T1)}"))
    if OPT["wopf"] and S in (8, 9, 10, 11):
        ptr, half = (14, 8)[(S - 8) >> 1], S & 1
        t = f"    s_lshl2_add_u32 {s(S_T1)}, s2, {s(S_W4)}\n    s_lshl_b32 {s(S_T1)}, {s(S_T1)}, 9\n"
        t += "".join(f"    s_load_dword s{73+i}, {s(ptr,2)}, {s(S_T1)} offset:{half*256+i*64}\n" for i in range(4))
        P.add(Raw(t))
    if S == 8: P(ep_load)
    if S in (12, 13):
        if S == 12:
            P(f"v_and_b32 v48, 31, {v(V_LANE)}\nv_lshrrev_b32 v49, 5, {v(V_LANE)}\nv_lshlrev_b32 v49, 2, v49\nv_sub_u32 v48, v48, v49")
        for q in range(8*(S-12), 8*(S-12) + 8):
            P(f"""v_subrev_u32 {v(CM+q)}, {8*(q>>2)+(q&3)}, v48
v_and_b32 {v(CM+q)}, 17, {v(CM+q)}
v_cvt_f32_u32 {v(CM+q)}, {v(CM+q)}
v_mul_f32 {v(CM+q)}, {hex(NEG_BIG)}, {v(CM+q)}""")
    if S == 14:
        P(f"""v_lshrrev_b32 v48, 5, {v(V_LANE)}
v_bfe_u32 v49, {v(V_LANE)}, 2, 2
v_lshl_add_u32 v48, v48, 2, v49
v_and_b32 v49, 2, v49
v_bfe_u32 v50, {v(V_LANE)}, 4, 1
v_xor_b32 v49, v49, v50
s_and_b32 {s(S_T1)}, {s(S_W4)}, 1
s_lshl_b32 {s(S_T1)}, {s(S_T1)}, 1
s_lshr_b32 {s(S_T0)}, {s(S_W4)}, 1
s_or_b32 {s(S_T1)}, {s(S_T1)}, {s(S_T0)}
v_xor_b32 v49, {s(S_T1)}, v49
v_lshlrev_b32 v49, 5, v49
v_lshl_add_u32 v48, v48, 7, v49
v_and_b32 v49, 3, {v(V_LANE)}
v_lshl_add_u32 v48, v49, 3, v48
s_lshl_b32 {s(S_MX)}, {s(S_W4)}, 14
v_add_u32 {v(B0)}, {s(S_MX)}, v48
v_xor_b32 {v(B1)}, 64, {v(B0)}
v_xor_b32 v49, 64, v48
s_mul_i32 {s(S_T0)}, {s(S_W4)}, 6144
s_add_u32 {s(S_T0)}, {s(S_T0)}, {L_WA}
v_add_u32 {v(A0)}, {s(S_T0)}, v48
v_add_u32 {v(A1)}, {s(S_T0)}, v49
s_mul_i32 {s(S_T0)}, {s(S_W4)}, 10240
s_add_u32 {s(S_T0)}, {s(S_T0)}, {L_KV}
v_add_u32 {v(A2)}, {s(S_T0)}, v48
v_add_u32 {v(A3)}, {s(S_T0)}, v49
v_add_u32 {v(V_MB)}, {s(S_MX)}, {v(V_L16)}
v_and_b32 v48, 0xf0, {v(V_L16)}
v_lshrrev_b32 v49, 1, {v(V_L16)}
v_and_b32 v49, 0x100, v49
v_add_u32 {v(V_HB)}, v48, v49""")
    if S == 15:
        P(f"s_mul_i32 {s(S_T0)}, {s(S_W4)}, 6144\nv_add_u32 {v(EXR)}, {s(S_T0)}, {v(V_L16)}")
        for i in range(1, 4):
            P(f"s_xor_b32 {s(S_T0)}, {s(S_W4)}, {i}\ns_mul_i32 {s(S_T0)}, {s(S_T0)}, 6144\nv_add_u32 {v(EXW+i-1)}, {s(S_T0)}, {v(V_L16)}")
        P(f"""v_and_b32 {v(VOUT)}, 31, {v(V_LANE)}
v_lshlrev_b32 {v(VOUT)}, 10, {v(VOUT)}
v_lshrrev_b32 v48, 5, {v(V_LANE)}
v_lshl_add_u32 {v(VOUT)}, v48, 4, {v(VOUT)}
s_lshl_b32 {s(S_T0)}, {s(S_RB3)}, 16
s_lshr_b32 {s(S_T1)}, {s(S_W4)}, 1
s_lshl_b32 {s(S_T1)}, {s(S_T1)}, 5
s_add_u32 {s(S_T0)}, {s(S_T0)}, {s(S_T1)}
s_lshl_b32 {s(S_T1)}, {s(S_CB)}, 7
s_add_u32 {s(S_T0)}, {s(S_T0)}, {s(S_T1)}
s_and_b32 {s(S_T1)}, {s(S_W4)}, 1
s_lshl_b32 {s(S_T1)}, {s(S_T1)}, 6
s_add_u32 {s(S_T0)}, {s(S_T0)}, {s(S_T1)}
v_add_u32 {v(VOUT)}, {s(S_T0)}, {v(VOUT)}
s_lshl_b32 {s(S_T0)}, {s(S_RB3)}, 17
s_lshl_b32 {s(S_T1)}, {s(S_W4)}, 13
s_add_u32 {s(S_T0)}, {s(S_T0)}, {s(S_T1)}
s_add_u32 {s(S_T0)}, {s(S_T0)}, {WS_O}
v_add_u32 {v(VOG)}, {s(S_T0)}, {v(V_L16)}
s_lshl_b32 {s(S_WB)}, {s(S_W4)}, 17
s_lshl_b32 {s(S_T1)}, {s(S_CB)}, 7
s_add_u32 {s(S_WB)}, {s(S_WB)}, {s(S_T1)}
s_lshl3_add_u32 {s(S_R3)}, {s(S_RB3)}, {s(S_CB)}
s_lshl2_add_u32 {s(S_R3)}, {s(S_R3)}, {s(S_W4)}
s_lshl_b32 {s(S_R3)}, {s(S_R3)}, 6""")
    if S == 18:
        P("s_waitcnt lgkmcnt(0)")
        H.poll(f"v_cmp_ne_u64 vcc, 0, {v(EP,2)}", ep_load)
        P(f"v_readfirstlane_b32 {s(S_EP)}, {v(EP)}\nv_readfirstlane_b32 {s(S_EP+1)}, {v(EP+1)}")
    if S == 19:
        P.add(srd(S_WOA, 8, 524288) + srd(S_WOB, 14, 524288) + srd(S_OUT, 18, 2097152))
    if S == 20:
        P(f"""v_lshrrev_b32 v48, 3, {v(V_LANE)}
v_bfe_u32 v49, {v(V_LANE)}, 4, 1
v_lshlrev_b32 v49, 2, v49
v_and_b32 v50, 7, {v(V_LANE)}
v_xor_b32 v49, v49, v50
v_lshlrev_b32 v49, 4, v49
v_lshl_add_u32 {v(VWO)}, v48, 10, v49
v_and_b32 {v(VKF)}, 32, {v(V_LANE)}
v_lshlrev_b32 {v(VKF)}, 4, {v(VKF)}
v_mul_u32_u24 {v(V1A)}, {KVS}, v50
s_mul_i32 {s(S_MW)}, {s(S_W4)}, {KVH}
s_add_u32 {s(S_MW)}, {s(S_MW)}, {L_KV}
s_add_u32 {s(S_T0)}, {s(S_MW)}, 2048
v_add_u32 {v(V1A)}, {s(S_T0)}, {v(V1A)}
s_lshl_b32 {s(S_T0)}, {s(S_RB)}, 1
v_add_u32 v48, {s(S_T0)}, v50
v_cmp_le_u32 vcc, 8, v48
v_mov_b32 {v(SENT)}, {hex(ONES)}
v_cndmask_b32 {v(V1D)}, 0, {v(SENT)}, vcc
v_mov_b32 {v(V1D+1)}, {v(V1D)}
v_mov_b32 {v(V1D+2)}, {v(V1D)}
v_mov_b32 {v(V1D+3)}, {v(V1D)}
s_cmp_eq_u32 {s(S_RB)}, 0
s_cselect_b64 {s(S_R0,2)}, {s(S_LO16,2)}, 0
s_mul_i32 {s(S_MA)}, {s(S_W4)}, 6144
s_add_u32 {s(S_MB)}, {s(S_MA)}, {L_KV}
v_add_u32 v51, {s(S_MB)}, {v(V_L16)}
s_add_u32 {s(S_MA)}, {s(S_MA)}, {L_WA}
s_mul_i32 {s(S_MB)}, {s(S_W4)}, 10240
s_add_u32 {s(S_MB)}, {s(S_MB)}, {L_KV - 6144}
s_lshl_b32 {s(S_K)}, {s(S_HEAD)}, 5
s_add_u32 {s(S_K)}, {s(S_K)}, {s(S_RB)}
s_lshl_b32 {s(S_K)}, {s(S_K)}, 6
s_add_u32 {s(S_K)}, {s(S_K)}, {WS_FKV}""")
    if S == 22:
        H.spoll_issue(4, S_K)
    if S == 23:
        P(f"ds_write_b128 {v(V1A)}, {v(V1D,4)}")
        H.spoll(4, S_K, ignore_from=S_RB)
        H.stamp()
        emit_gather(0, (1, 2, 3, 4))
if OPT["p1only"]:
    H.finish()
fs = lambda: H.stamp() if OPT["fine"] == 4 else None
if OPT["b24b"]: P("s_barrier")
emit_gather(1, (5, 6, 7, 0))
P(f"s_setprio {OPT['bprio']}")
P(f"v_and_b32 v176, 31, {v(V_LANE)}\nv_lshlrev_b32 v176, 4, v176\nv_add_u32 v176, {L_GP}, v176")
P.add([f"v_mov_b32 {v(168+i)}, -1" for i in range(4)])
P.add(WaitTag("kva")); P("s_barrier")
H.stamp()
P.add(WaitTag("kvb")); P("s_barrier")
fs()
P.add([f"ds_read_b128 {v(QB+4*i,4)}, {v(V_MB)} offset:{i*1024}" for i in (1, 2, 3, 0, 4, 5, 6, 7)])
gf = gate_finish([0, 1], 176, 180)
P.add(gf[:2])
def wo_dma(br):
    o = []
    for t in range(16):
        base = S_MX if br else (S_MA if t < 6 else S_MB)
        g = [f"s_add_u32 m0, {s(base)}, {t*1024}", f"s_add_u32 {s(S_T3)}, {s(S_WB)}, {t*8192}"]
        o.append(g + [dma(VWO, S_WOB if br else S_WOA, s(S_T3), 0, "wob" if br else ("woa" if t < 6 else "woc"))])
    return o
woa, wob = wo_dma(0), wo_dma(1)
bseq = b_scores(1) + b_scores(0) + gf[2:] + [f"v_cndmask_b32 {v(VB+i)}, {v(VB+i)}, {v(SENT)}, {s(S_LO16,2)}" for i in range(16)]
bseq += [f"v_cndmask_b32 {v(VBH+i)}, {v(VBH+i)}, {v(SENT)}, {s(S_LO16,2)}" for i in range(4)]
bseq += interleave(b_softmax(1), b_softmax(0)) + interleave(b_pv(1), b_pv(0)) + interleave(b_pack(1), b_pack(0))
P.add(o_store(0, 1, 168, "ob")); P.add(o_store(0, 0, 168, "ob"))
P.add(WaitLds())
nw = 0
for i, x in enumerate(bseq):
    if i % OPT["weave"] == 0 and nw < 16:
        P.add(wob[nw]); nw += 1
    P.add(x)
P.add(o_store(1, 1, BPK+4, "ob")); P.add(o_store(1, 0, BPK, "ob"))
fs()
rest = wob[nw:] + woa[:6]
P.add(rest[:OPT["wbmid"]]); P.add(flag_store("ob", "ob"))
fs()
P(f"s_add_u32 {s(S_K)}, {s(S_R3)}, {WS_FOB}")
P.add(rest[OPT["wbmid"]:])
fs()
P("s_barrier")
fs()
P.add(woa[6:11]); H.spoll_issue(8, S_K); P.add(woa[11:])
fs()
def o_gather(br, tt):
    o = []
    for hs in range(8):
        if hs % 4 == 0: o += [f"s_mov_b32 {s(S_T1)}, {br*65536 + tt*32768 + hs*1024}"]
        o += [ws_ld(v((OFA, OFB)[br]+32*tt+4*hs,4), VOG, s(S_T1), (hs & 3)*1024)]
    return o
def wo_read(dst, hs, br):
    base, off = ((B0, B1), hs*2048) if br else (((A0, A1), hs*2048) if hs < 3 else ((A2, A3), (hs-3)*2048))
    return [f"ds_read_b64_tr_b16 {v(dst+4*ct+2*j,2)}, {v(base[ct])} offset:{off+j*1024}" for ct in range(2) for j in range(2)]
def p3(br, tt, first, last, hook=lambda hs: None):
    if first: P.add(wo_read(WBF, 0, br))
    for hs in range(8):
        b = hs & 1
        rd = wo_read(WBF + 8*(1-b), (hs + 1) & 7, br) if not (last and hs == 7) else []
        for ct in range(2):
            acc = v(ACC3+32*tt+16*ct, 16)
            P(mfma(acc, v(WBF+8*b+4*ct,4), v((OFA, OFB)[br]+32*tt+4*hs,4), "0" if br and hs == 0 else acc))
            P.add(rd[2*ct:2*ct+2])
        hook(hs)
def red_writes(tt):
    keep, ex = ACC3 + 32*tt, tt * 24576
    send = {1: keep + 16, 2: keep + 8, 3: keep + 24}
    return [f"ds_write_b128 {v(EXW+i-1)}, {v(send[i]+4*q,4)} offset:{ex+(i-1)*2048+q*1024}" for i in (2, 1, 3) for q in range(2)]
def red_reads(tt):
    return [f"ds_read_b128 {v(OFB+32*tt+8*i+4*q,4)}, {v(EXR)} offset:{tt*24576+i*2048+q*1024}" for q in range(2) for i in range(3)]
def red_finish(tt):
    keep, tmp, o = ACC3 + 32*tt, OFB + 32*tt, []
    for q in range(2):
        for i in range(3):
            o += [f"v_pk_add_f32 {v(keep+4*q+2*k,2)}, {v(keep+4*q+2*k,2)}, {v(tmp+8*i+4*q+2*k,2)}" for k in range(2)]
        o += [f"v_cvt_pk_bf16_f32 {v(tmp+24+2*q+k)}, {v(keep+4*q+2*k)}, {v(keep+4*q+2*k+1)}" for k in range(2)]
    o += [f"v_permlane32_swap_b32 {v(tmp+24)}, {v(tmp+26)}", f"v_permlane32_swap_b32 {v(tmp+25)}, {v(tmp+27)}", f"s_mov_b32 {s(S_T1)}, {tt*32768}",
          f"buffer_store_dwordx4 {v(tmp+24,4)}, {v(VOUT)}, {s(S_OUT,4)}, {s(S_T1)} offen{('', ' sc1', ' nt', ' sc0 sc1')[OPT['outsc']]}"]
    return o
retry_txt = []
def o_verify(tt):
    base = OFA + 32*tt
    chk = [f"v_max3_u32 {v(TMP)}, {v(base)}, {v(base+1)}, {v(base+2)}"]
    chk += [f"v_max3_u32 {v(TMP)}, {v(TMP)}, {v(base+i)}, {v(base+i+1)}" for i in range(3, 31, 2)]
    chk += [f"v_max_u32 {v(TMP)}, {v(TMP)}, {v(base+31)}", f"v_cmp_ne_u32 vcc, -1, {v(TMP)}"]
    P.add(chk); P(f"s_cmp_eq_u64 vcc, -1\ns_cbranch_scc0 L_retry{tt}\nL_ok{tt}:")
    Q = Prog()
    Q(f"L_retry{tt}:\ns_mov_b32 {s(S_SPIN)}, 0x20000\nL_again{tt}:"); Q.add(o_gather(0, tt))
    Q(f"s_sub_u32 {s(S_SPIN)}, {s(S_SPIN)}, 1\ns_waitcnt vmcnt(0)\ns_cbranch_scc1 L_ok{tt}")
    Q.add(chk); Q(f"s_cmp_eq_u64 vcc, -1\ns_cbranch_scc0 L_again{tt}\ns_branch L_ok{tt}")
    retry_txt.append(finalize(Q))
H.spoll(8, S_K)
H.stamp()
if OPT["ybar"] == 1: P("s_barrier"); fs()
P.add(o_gather(1, 0))
if OPT["ybar"] == 2: P("s_barrier"); fs()
P.add(o_gather(1, 1))
if OPT["ybar"] == 3: P("s_barrier"); fs()
P.add(o_gather(0, 1))
if OPT["a0mode"] == 2: P.add(o_gather(0, 0))
fs()
P(f"s_setprio {OPT['p3prio']}")
P.add(WaitTag("wob", "woa", "woc"))
p3(1, 0, True, False)
if OPT["a0mode"] == 3: P.add(o_gather(0, 0))
if OPT["a0mode"] == 1:
    P("s_barrier"); fs(); P.add(o_gather(0, 0))
p3(1, 1, False, True)
H.stamp()
if OPT["a0mode"] == 0:
    P("s_barrier"); fs(); P.add(o_gather(0, 0))
o_verify(1)
p3(0, 1, True, False)
H.stamp()
if OPT["a0mode"] >= 1: P("s_barrier")
w1 = red_writes(1)
o_verify(0)
fs()
p3(0, 0, False, True, lambda hs: P.add(w1[hs:hs+1]))
H.stamp()
P.add(red_writes(0)); P.add(WaitLds()); P("s_barrier")
P.add(red_reads(1)); P.add(red_reads(0)); P.add(red_finish(1)); P.add(red_finish(0))
H.stamp()
H.finish()

C = Role("C"); P = C.P
T1, T3, T2 = 32, 64, 96
XB, WB = 128, 152
V_AX, V_T1L, V_T1H, V_T3L, V_T3H, V_T2L, V_T2H = 176, 180, 181, 182, 183, 184, 185
V_LO, V_HI, V_QW = 186, 187, 189
CMA, KB, VPK, QB = 192, 240, 224, 248
r5, hh, rr, cc, nh, u0, u1, cm = 128, 129, 130, 131, 132, 133, 134, 135
P("L_crole:")
P.add(late_ids)
if OPT["prio"]: P("s_setprio 1")
P(f"""
v_and_b32 {v(r5)}, 31, {v(V_LANE)}
v_lshrrev_b32 {v(hh)}, 5, {v(V_LANE)}
v_bfe_u32 {v(u0)}, {v(r5)}, 1, 3
v_xor_b32 {v(u0)}, {v(u0)}, {v(hh)}
v_lshlrev_b32 {v(u0)}, 4, {v(u0)}
v_lshl_add_u32 {v(u0)}, {v(r5)}, 7, {v(u0)}
v_add_u32 {v(V_AX)}, {L_X}, {v(u0)}
v_xor_b32 {v(V_AX+1)}, 32, {v(V_AX)}
v_xor_b32 {v(V_AX+2)}, 64, {v(V_AX)}
v_xor_b32 {v(V_AX+3)}, 0x60, {v(V_AX)}
v_bfe_u32 {v(rr)}, {v(V_LANE)}, 2, 2
v_and_b32 {v(cc)}, 3, {v(V_LANE)}
v_bfe_u32 {v(nh)}, {v(V_LANE)}, 4, 1
v_lshl_add_u32 {v(u0)}, {v(hh)}, 3, {v(rr)}
v_xor_b32 {v(u1)}, {s(S_W4)}, {v(rr)}
v_lshlrev_b32 {v(u1)}, 5, {v(u1)}
v_lshl_add_u32 {v(u1)}, {v(cc)}, 3, {v(u1)}
v_lshl_add_u32 {v(u1)}, {v(u0)}, 8, {v(u1)}
v_mul_u32_u24 {v(V_T1L)}, 0x2080, {v(nh)}
v_add_u32 {v(V_T1L)}, {v(V_T1L)}, {v(u1)}
v_add_u32 {v(V_T1H)}, 0x10000, {v(V_T1L)}
v_xor_b32 {v(V_T3L)}, 0x80, {v(V_T1L)}
v_xor_b32 {v(V_T3H)}, 0x80, {v(V_T1H)}
v_lshrrev_b32 {v(u1)}, 1, {v(rr)}
v_lshl_add_u32 {v(u1)}, {v(nh)}, 1, {v(u1)}
v_xor_b32 {v(u1)}, {s(S_W4)}, {v(u1)}
v_lshlrev_b32 {v(u1)}, 5, {v(u1)}
v_lshl_add_u32 {v(u1)}, {v(cc)}, 3, {v(u1)}
v_lshl_add_u32 {v(u1)}, {v(u0)}, 7, {v(u1)}
v_lshl_add_u32 {v(V_T2L)}, {v(nh)}, 13, {v(u1)}
v_add_u32 {v(V_T2H)}, 0x10000, {v(V_T2L)}
v_and_b32 {v(u0)}, 15, {v(V_LANE)}
v_lshlrev_b32 {v(u0)}, 4, {v(u0)}
v_lshl_add_u32 {v(u0)}, {v(hh)}, 8, {v(u0)}
v_lshl_add_u32 {v(V_LO)}, {v(nh)}, 31, {v(u0)}
v_xor_b32 {v(V_HI)}, {OOB}, {v(V_LO)}
v_lshlrev_b32 {v(V_GPR)}, 4, {v(r5)}
v_add_u32 {v(V_GPR)}, {L_GP}, {v(V_GPR)}
s_lshl_b32 {s(S_T2)}, {s(S_W4)}, 14
v_add_u32 {v(V_QW)}, {s(S_T2)}, {v(V_L16)}
v_lshlrev_b32 {v(u0)}, 2, {v(hh)}
v_sub_u32 {v(cm)}, {v(r5)}, {v(u0)}
s_waitcnt lgkmcnt(0)""")
P.add(entry_stamp())
P(f"""s_memrealtime {s(S_TM,2)}
s_mov_b32 {s(S_C)}, {fhex(QK_SCALE)}
s_mov_b32 {s(S_C+1)}, {fhex(QK_SCALE)}
""")
def l2_prefetch():
    a, b = 140, 141
    o = lines(f"""s_lshr_b32 {s(S_T0)}, s2, 3
s_and_b32 {s(S_T1)}, {s(S_HG)}, 4
s_lshl_b32 {s(S_T1)}, {s(S_T1)}, 7
v_and_b32 {v(a)}, 3, {v(V_LANE)}
v_lshlrev_b32 {v(a)}, 7, {v(a)}
s_cmp_eq_u32 {s(S_W4)}, 2
s_cbranch_scc1 L_pfx
s_cmp_eq_u32 {s(S_W4)}, 3
s_cbranch_scc1 L_pfq
s_cmp_eq_u32 {s(S_W4)}, 0
s_cselect_b32 {s(S_W)}, s6, s12
s_cselect_b32 {s(S_W+1)}, s7, s13
s_mov_b32 {s(S_W+2)}, 1572864
s_mov_b32 {s(S_W+3)}, 0x20000
v_bfe_u32 {v(b)}, {v(V_LANE)}, 2, 1
v_lshl_add_u32 {v(a)}, {v(b)}, 10, {v(a)}
v_lshrrev_b32 {v(b)}, 3, {v(V_LANE)}
v_mul_u32_u24 {v(b)}, 0xc00, {v(b)}
v_add_u32 {v(a)}, {v(a)}, {v(b)}
s_mul_i32 {s(S_T0)}, {s(S_T0)}, {8*3072}
s_add_u32 {s(S_T0)}, {s(S_T0)}, {s(S_T1)}
s_add_u32 {s(S_T0)}, {s(S_T0)}, 1024
buffer_load_dword v190, {v(a)}, {s(S_W,4)}, {s(S_T0)} offen
s_add_u32 {s(S_T0)}, {s(S_T0)}, {256*3072}
buffer_load_dword v191, {v(a)}, {s(S_W,4)}, {s(S_T0)} offen
s_branch L_pfe
L_pfx:
s_mov_b32 {s(S_W)}, s4
s_mov_b32 {s(S_W+1)}, s5
s_mov_b32 {s(S_W+2)}, 2097152
s_mov_b32 {s(S_W+3)}, 0x20000
v_lshrrev_b32 {v(b)}, 2, {v(V_LANE)}
v_lshl_add_u32 {v(a)}, {v(b)}, 10, {v(a)}
s_lshl_b32 {s(S_T0)}, {s(S_T0)}, 14
s_and_b32 {s(S_T1)}, {s(S_RB)}, 24
s_lshl_b32 {s(S_T1)}, {s(S_T1)}, 16
s_add_u32 {s(S_T0)}, {s(S_T0)}, {s(S_T1)}
buffer_load_dword v190, {v(a)}, {s(S_W,4)}, {s(S_T0)} offen
buffer_load_dword v191, {v(a)}, {s(S_W,4)}, {s(S_T0)} offen offset:512
s_branch L_pfe
L_pfq:
s_mov_b32 {s(S_W)}, s6
s_mov_b32 {s(S_W+1)}, s7
s_mov_b32 {s(S_W+2)}, 1572864
s_mov_b32 {s(S_W+3)}, 0x20000
v_lshrrev_b32 {v(b)}, 2, {v(V_LANE)}
v_mul_u32_u24 {v(b)}, 0xc00, {v(b)}
v_add_u32 {v(a)}, {v(a)}, {v(b)}
s_mul_i32 {s(S_T0)}, {s(S_T0)}, {16*3072}
s_add_u32 {s(S_T0)}, {s(S_T0)}, {s(S_T1)}
buffer_load_dword v190, {v(a)}, {s(S_W,4)}, {s(S_T0)} offen
s_mov_b32 {s(S_W)}, s12
s_mov_b32 {s(S_W+1)}, s13
buffer_load_dword v191, {v(a)}, {s(S_W,4)}, {s(S_T0)} offen
L_pfe:""")
    P.add(Raw("\n".join(("" if l.endswith(":") else "    ") + l for l in o)))
    P("s_nop 0")
if OPT["pf"] == 1: l2_prefetch()
P.add(srd(S_WS, 22, WS_SIZE) + srd(S_DBG, 20, 256))
P(f"""s_cmp_eq_u32 s2, 0
s_cselect_b32 {s(S_T2)}, 0, {OOB}
v_lshlrev_b32 v5, 8, v0
v_or_b32 v5, {s(S_T2)}, v5
s_waitcnt lgkmcnt(0)
v_mov_b32 {v(EP)}, {s(S_TM)}
v_mov_b32 {v(EP+1)}, {s(S_TM+1)}
buffer_store_dwordx2 {v(EP,2)}, v5, {s(S_DBG,4)}, 0 offen sc1""")
V_AXW, V_AG, V_GPW, XW, GF, GACC = 4, 8, 9, 240, 248, 190
P(f"""s_lshl_b32 {s(S_T2)}, {s(S_W4)}, 5
v_xor_b32 {v(V_AXW)}, {s(S_T2)}, {v(V_AX)}
v_lshlrev_b32 {v(u0)}, 4, {v(hh)}
s_add_u32 {s(S_T2)}, {s(S_T2)}, {L_G}
v_add_u32 {v(V_AG)}, {s(S_T2)}, {v(u0)}
s_lshl_b32 {s(S_T2)}, {s(S_W4)}, 2
v_add_u32 {v(V_GPW)}, {s(S_T2)}, {v(V_GPR)}
v_mov_b32 {v(GACC)}, 0
v_mov_b32 {v(GACC+1)}, 0""")
P.add(attn_setup(0, 136))
P(f"v_mov_b32 {v(u0)}, {hex(NEG_BIG)}")
P.add([f"v_cndmask_b32 {v(CMA+q)}, {v(u0)}, 0, {s(S_MASK+2*q,2)}" for q in range(16)])
C.stamp()

def frag_reads(n):
    b, m = n % 3, n & 31
    j, ux = m >> 2, m & 3
    base = (stage_of(n) % NSLOT) * SLOT
    hi = base >= 65536; off = base - (65536 if hi else 0)
    x = [f"ds_read_b128 {v(XB+8*b+4*tt,4)}, {v(V_AX+ux)} offset:{j*8192+tt*4096}" for tt in range(2)]
    if n < 32:
        w = [f"ds_read_b64_tr_b16 {v(WB+8*b+4*t+2*qd,2)}, {v(((V_T1L,V_T1H),(V_T3L,V_T3H))[t][hi])} offset:{off+(n&1)*4096+qd*1024}"
             for t in range(2) for qd in range(2)]
        return [w[0], x[0], w[1], w[2], x[1], w[3]]
    w = [f"ds_read_b64_tr_b16 {v(WB+8*b+2*qd,2)}, {v((V_T2L,V_T2H)[hi])} offset:{off+ux*2048+qd*512}" for qd in range(2)]
    return [w[0], x[0], w[1], x[1]]
def step_mfmas(n):
    b = n % 3
    x = lambda tt: v(XB+8*b+4*tt, 4)
    c = lambda r: "0" if n in (0, 32) else v(r, 16)
    if n < 32:
        return [mfma(v(T1,16), v(WB+8*b,4), x(0), c(T1)), mfma(v(T3,16), x(0), v(WB+8*b+4,4), c(T3)),
                mfma(v(T1+16,16), v(WB+8*b,4), x(1), c(T1+16)), mfma(v(T3+16,16), x(1), v(WB+8*b+4,4), c(T3+16))]
    return [mfma(v(T2,16), v(WB+8*b,4), x(0), c(T2)), mfma(v(T2+16,16), v(WB+8*b,4), x(1), c(T2+16))]
def kv_publish():
    o = [f"s_lshl_b32 {s(S_T0)}, {s(S_HEAD)}, 17", f"s_lshl_b32 {s(S_T1)}, {s(S_RB)}, 12", f"s_add_u32 {s(S_T0)}, {s(S_T0)}, {s(S_T1)}"]
    for tt in range(2):
        o += [f"v_pk_mul_f32 {v(T1+16*tt+2*i,2)}, {v(T1+16*tt+2*i,2)}, {s(S_C,2)}" for i in range(4)]
        o += [f"v_cvt_pk_bf16_f32 {v(KA+4*tt+i)}, {v(T1+16*tt+2*i)}, {v(T1+16*tt+2*i+1)}" for i in range(4)]
        o += [ws_st(v(KA+4*tt,4), V_L16, s(S_T0), tt*2048, "kv")]
    for tt in range(2):
        for m in range(2):
            o += [f"v_cvt_pk_bf16_f32 {v(VPK+8*tt+4*m+i)}, {v(T3+16*tt+8*m+2*i)}, {v(T3+16*tt+8*m+2*i+1)}" for i in range(4)]
            o += [ws_st(v(VPK+8*tt+4*m,4), V_LO, s(S_T0), tt*2048+1024+m*512, "kv")]
    o += [f"s_lshl_b32 {s(S_T0)}, {s(S_HEAD)}, 15", f"s_lshl_b32 {s(S_T1)}, {s(S_RB)}, 10",
          f"s_add_u32 {s(S_T0)}, {s(S_T0)}, {s(S_T1)}", f"s_add_u32 {s(S_T0)}, {s(S_T0)}, {WS_HB}",
          ws_st(v(VPK+12,4), V_HI, s(S_T0), 512, "kv")]
    for tt in (1, 0):
        o += [f"v_pk_mul_f32 {v(T1+16*tt+8+2*i,2)}, {v(T1+16*tt+8+2*i,2)}, {s(S_C,2)}" for i in range(4)]
        o += [f"v_cvt_pk_bf16_f32 {v(KB+4*tt+i)}, {v(T1+16*tt+8+2*i)}, {v(T1+16*tt+8+2*i+1)}" for i in range(4)]
        if tt == 1: o += [ws_st(v(KB+4,4), V_HI, s(S_T0), 0, "kv")]
    return o

if OPT["p1only"]:
    P("s_barrier\n" * 25 + "s_endpgm")
P("s_barrier")
C.stamp()
P.add(frag_reads(0)); P.add(frag_reads(1))
queue = []
for n in range(64):
    mf = step_mfmas(n)
    if OPT["xp"] == 6 and n < 32: mf = [mf[0], mf[2], mf[1], mf[3]]
    if OPT["xp"] == 7 and n < 32: mf = [mf[0], mf[2], mf[3], mf[1]]
    if OPT["xp"] in (1, 3) and n not in (0, 32): mf = ["s_nop 7"] * len(mf)
    if OPT["xp"] == 4 and n not in (0, 32):
        def split(m):
            d, a, b, c = [x.strip() for x in m.split(None, 1)[1].split(", ")]
            lo = int(d[2:].split(":")[0])
            return "\n".join(f"v_mfma_f32_16x16x32_bf16 {v(lo+4*i,4)}, {a}, {b}, {v(lo+4*i,4)}" for i in range(2))
        mf = [split(m) for m in mf]
    sync = first_of_stage(n + 2) or n == 62
    rd = frag_reads(n + 2) if n < 62 else []
    if OPT["xp"] in (2, 3): rd = []
    if OPT["xp"] == 5: rd = [x for x in rd if "tr_b16" in x] + ["s_nop 0"] * 2
    if n == 20: queue += [ep_load]
    if n < 32 and n % 4 == 1:
        j = n >> 2
        queue += [f"ds_read_b128 {v(GF,4)}, {v(V_AG)} offset:{j*128}",
                  f"ds_read_b128 {v(XW,4)}, {v(V_AXW)} offset:{j*8192}", f"ds_read_b128 {v(XW+4,4)}, {v(V_AXW)} offset:{j*8192+4096}"]
    if n < 32 and n % 4 == 2:
        queue += [f"v_dot2_f32_bf16 {v(GACC+tt)}, {v(XW+4*tt+i)}, {v(GF+i)}, {v(GACC+tt)}" for i in range(4) for tt in range(2)]
    if n == 31:
        queue += [f"v_mov_b32 {v(XW+tt)}, {v(GACC+tt)}" for tt in range(2)]
        queue += [f"v_permlane32_swap_b32 {v(GACC+tt)}, {v(XW+tt)}" for tt in range(2)]
        queue += [f"v_add_f32 {v(GACC+tt)}, {v(GACC+tt)}, {v(XW+tt)}" for tt in range(2)]

    if n == 32:
        pub = kv_publish()
        isst = lambda x: (isinstance(x, Ins) and x.kind == "vst") or (isinstance(x, str) and x.startswith("s_"))
        late_st = [x for x in pub if isst(x)] if OPT["pubat"] > 32 else []
        queue += [x for x in pub if not (late_st and isst(x))]
    if n == OPT["pubat"] and n > 32: queue = late_st + queue
    if n == 62:
        queue += [f"ds_write_b32 {v(V_GPW)}, {v(GACC+tt)} offset:{512*tt}" for tt in range(2)]
        queue += [f"ds_write_b128 {v(V_QW)}, {v(KB+4*i,4)} offset:{2048+i*1024}" for i in range(2)]
    take = OPT["take"] if n >= 32 else (4 if n < 31 else 10)
    if n >= 46: take = 6
    side = queue[:take]; queue = queue[take:]
    def do_sync():
        P.add(WaitLds()); P("s_barrier")
        if OPT["fine"] in (1, 2, 3): C.stamp()
    if sync and OPT["barpos"] and n > 0:
        if n < 32:
            P(mf[0]); P.add(side[0:2]); P(mf[1]); do_sync(); P.add(rd[0:3]); P(mf[2]); P.add(rd[3:6]); P(mf[3]); P.add(side[2:])
        elif n < 58:
            P(mf[0]); P.add(side); P(mf[1]); do_sync(); P.add(rd)
        else:
            P(mf[0]); P(mf[1]); do_sync(); P.add(rd); P.add(side)
    else:
        P(mf[0])
        if sync: do_sync()
        if n < 32:
            P.add(rd[0:2]); P.add(side[0:1]); P(mf[1]); P.add(rd[2:4]); P.add(side[1:2]); P(mf[2]); P.add(rd[4:6]); P(mf[3]); P.add(side[2:])
        else:
            P.add(rd[0:2]); P.add(side[:take//2]); P(mf[1]); P.add(rd[2:4]); P.add(side[take//2:])
    if n == 31: C.stamp()
    if n == OPT["kvflag"]:
        C.poll(f"v_cmp_ne_u64 vcc, 0, {v(EP,2)}", ep_load)
        P.add(flag_store("kv", "kv"))
        C.stamp()
assert not queue
C.stamp()
P.add([f"ds_write_b128 {v(V_QW)}, {v(VPK+4*i,4)} offset:{4096+i*1024}" for i in range(4)])
for tt in range(2):
    P.add([f"v_cvt_pk_bf16_f32 {v(QB+4*tt+i)}, {v(T2+16*tt+8+2*i)}, {v(T2+16*tt+8+2*i+1)}" for i in range(4)])
    P(f"ds_write_b128 {v(V_QW)}, {v(QB+4*tt,4)} offset:{tt*1024}")
if OPT["b24b"]: P("s_barrier")
P.add([f"v_cvt_pk_bf16_f32 {v(QA1+i)}, {v(T2+16+2*i)}, {v(T2+16+2*i+1)}" for i in range(4)])
P.add([f"v_cvt_pk_bf16_f32 {v(QA+i)}, {v(T2+2*i)}, {v(T2+2*i+1)}" for i in range(4)])
P(mfma(v(MG+16,16), v(KA+4,4), v(QA1,4), v(CMA,16))); P(mfma(v(MG,16), v(KA,4), v(QA,4), v(CMA,16)))
window_attention(C, [f"v_mov_b32 {v(TMP)}, {hex(ONES)}"] +
                 [f"v_cndmask_b32 {v(VA+i)}, {v(TMP)}, {v(VPK+i)}, {s(S_LO16,2)}" for i in range(16)])
P.add(a_publish(0))
if OPT["ybar"]: P("s_barrier")
C.stamp()
C.finish()

full = Prog(); full.items = E.items + H.P.items
bodyH = finalize(full, verbose=True)
full = Prog(); full.items = [Ins("s_load_dwordx16 s[4:19], s[0:1], 0"), Ins("global_load_dword v13, v5, s[96:97]")] + C.P.items
bodyC = "\n".join(finalize(full, verbose=True).split("\n")[2:])
print("stamps H", H.ns, "C", C.ns)
hdr = open("cdna_kernels/%s.s.ref" % NAME).read().split("; Override launch")[0]
if OPT["stamps"]: hdr += f"; stamps {C.ns} {H.ns}\n"
txt = hdr + f"""; One launch: 256 workgroups (4 heads x 64 rows each), 8 waves, hand-offs through d_ws tagged with a per-launch epoch.
; @launch grid=(256,1,1) block=(512,1,1) lds={LDS_BYTES}
.amdgcn_target "amdgcn-amd-amdhsa--gfx950"
.text
.globl {NAME}_kernel
.p2align 12
.p2align 8
.type {NAME}_kernel,@function
{NAME}_kernel:
{bodyH}{bodyC}L_end:
    s_endpgm
{''.join(retry_txt)}{''.join(special_txt)}{slow_path()}    .fill 3072, 4, 0xbf800000
.section .rodata,"a"
.p2align 6
.amdhsa_kernel {NAME}_kernel
  .amdhsa_next_free_vgpr 256
  .amdhsa_next_free_sgpr 102
  .amdhsa_accum_offset 256
  .amdhsa_group_segment_fixed_size 0
  .amdhsa_kernarg_size 80
  .amdhsa_user_sgpr_count 2
  .amdhsa_user_sgpr_kernarg_segment_ptr 1
  .amdhsa_system_sgpr_workgroup_id_x 1
.end_amdhsa_kernel
"""
open(sys.argv[1], "w").write(txt)
```

```python
import sys, math, struct
from asmdsl import Prog, Ins, WaitTag, WaitLds, Raw, finalize

NAME = "gated_mix__sliding_block__sliding_local_dilated__prompt"
OPT = dict(wsoff=0, a0mode=0, b24b=1, ybar=0, rt=0, xp=0, barpos=0, xat=10, p3prio=0, h1=60, t2at=40, weave=8, wbmid=3, f3step=12, wopf=1, tlb=1, icpf=1, cpf=0, take=30, kvflag=42, pubat=32, prio=1, bprio=2,
           xmap=3, rotmode=4, rotmask=7, outsc=0, stamps=0, fine=0, amp=-1, ampk=8, amprole=1, ampclk=0, p1only=0, pf=0)
for a in sys.argv[2:]:
    k, v_ = a.split("="); assert k in OPT, k; OPT[k] = int(v_)

WS_KV, WS_HB, WS_O = 0, 4 << 20, 5 << 20
WS_FKV, WS_FOB, WS_FOA = 9 << 20, (9 << 20) + 65536, (9 << 20) + 131072
WS_STAMP, WS_SIZE = 10 << 20, 16 << 20
OOB = 0x80000000
NSLOT, SLOT = 5, 16384
L_X, L_WA, L_G, L_GP, LDS_BYTES = 81920, 131584, 156160, 157184, 158208
KVH, KVS, L_KV, L_WO = 2064, 4 * 2064, 65536, 0
QK_SCALE = 0.25 * math.log2(math.e)
NEG_BIG, ONES = 0xf149f2ca, 0x3f803f80

def fhex(x): return "0x%08x" % struct.unpack("<I", struct.pack("<f", x))[0]
def v(a, n=1): return f"v{a}" if n == 1 else f"v[{a}:{a+n-1}]"
def s(a, n=1): return f"s{a}" if n == 1 else f"s[{a}:{a+n-1}]"
def lines(t): return [l.strip() for l in t.strip().split("\n") if l.strip()]
def mfma(d, a, b, c): return f"v_mfma_f32_32x32x16_bf16 {d}, {a}, {b}, {c}"
def srd(base, ptr, nbytes):
    return [f"s_mov_b32 {s(base)}, {s(ptr)}", f"s_mov_b32 {s(base+1)}, {s(ptr+1)}",
            f"s_mov_b32 {s(base+2)}, {nbytes}", f"s_mov_b32 {s(base+3)}, 0x20000"]
def interleave(*ls):
    o, ls = [], [list(l) for l in ls]
    while any(ls):
        for l in ls:
            if l: o.append(l.pop(0))
    return o

S_X, S_W, S_WS, S_WOA, S_WOB, S_OUT, S_DBG, S_G = 24, 28, 32, 36, 40, 44, 48, 36
S_W4, S_HG, S_RB, S_ROT, S_HEAD, S_RB3, S_CB = 52, 53, 54, 55, 56, 57, 58
S_K, S_T0, S_MW, S_MX, S_T1 = 59, 60, 61, 62, 63
S_MASK, S_T2, S_T3, S_LO16, S_TM, S_C, S_SPIN, S_EP = 64, 96, 97, 98, 100, 10, 3, 26
V_LANE, V_L16, V_STAMP, V_FOFF = 1, 2, 3, 4
EP, FLG = 6, 8
V_AK, V_AV0, V_AV1 = 10, 11, 12
G0 = 14
PM, QA = 16, 24
TMP = 28
SB, NEGM, MG, PB, PF, KF, VF = 32, 64, 96, 128, 144, 152, 192
OACC2 = (160, 224)
KA, QA1, VA = 208, 216, 176

class Role:
    def __init__(self, name):
        self.P, self.name, self.ns, self.nl = Prog(), name, 0, 0
    def stamp(self):
        P = self.P
        if OPT["amp"] == self.ns and OPT["amprole"] == (self.name == "H"):
            P.add(WaitLds())
            P(f"{'s_memtime' if OPT['ampclk'] else 's_memrealtime'} {s(S_TM,2)}\ns_waitcnt lgkmcnt(0)\nv_writelane_b32 {v(V_STAMP)}, {s(S_TM)}, 1")
        if OPT["stamps"]:
            P.add(WaitLds())
            P(f"s_memtime {s(S_TM,2)}\ns_waitcnt lgkmcnt(0)\nv_writelane_b32 {v(V_STAMP)}, {s(S_TM)}, {self.ns + 1}")
            if OPT["rt"]: P(f"s_memrealtime {s(S_TM,2)}\ns_waitcnt lgkmcnt(0)\nv_writelane_b32 {v(V_STAMP)}, {s(S_TM)}, {self.ns + 32}")
        self.ns += 1
    def poll(self, cmp_txt, reload_txt):
        P, n = self.P, f"{self.name}{self.nl}"; self.nl += 1
        P(f"s_mov_b32 {s(S_SPIN)}, 0x40000"); P(cmp_txt)
        P(f"s_cmp_eq_u64 vcc, -1\ns_cbranch_scc1 L_pok{n}")
        P.add(Raw(f"""L_pspin{n}:
    {reload_txt}
    s_sub_u32 {s(S_SPIN)}, {s(S_SPIN)}, 1
    s_cbranch_scc1 L_pok{n}
    s_waitcnt vmcnt(0)
    {cmp_txt}
    s_nop 2
    s_cmp_eq_u64 vcc, -1
    s_cbranch_scc0 L_pspin{n}
L_pok{n}:"""))
    def spoll_issue(self, n, off):
        self.P(f"s_load_dwordx{2*n} {s(4,2*n)}, s[22:23], {s(off)} glc")
    def spoll(self, n, off, ignore_from=None):
        P, lb = self.P, f"{self.name}{self.nl}"; self.nl += 1
        P.add(WaitLds())
        t = f"    s_mov_b32 {s(S_SPIN)}, 0x40000\nL_sp{lb}:\n"
        for i in range(n - 1):
            if ignore_from is not None:
                t += f"    s_cmp_lt_u32 {s(ignore_from)}, {n - i}\n    s_cselect_b64 {s(4+2*i,2)}, {s(S_EP,2)}, {s(4+2*i,2)}\n"
        for i in range(n):
            t += f"    s_xor_b64 {s(4+2*i,2)}, {s(4+2*i,2)}, {s(S_EP,2)}\n"
            if i: t += f"    s_or_b64 s[4:5], s[4:5], {s(4+2*i,2)}\n"
        t += (f"    s_cmp_eq_u64 s[4:5], 0\n    s_cbranch_scc1 L_spok{lb}\n"
              f"    s_load_dwordx{2*n} {s(4,2*n)}, s[22:23], {s(off)} glc\n"
              f"    s_sub_u32 {s(S_SPIN)}, {s(S_SPIN)}, 1\n    s_waitcnt lgkmcnt(0)\n    s_cbranch_scc0 L_sp{lb}\nL_spok{lb}:")
        P.add(Raw(t))
    def finish(self):
        P = self.P
        if OPT["stamps"]:
            P(f"s_memrealtime {s(S_TM,2)}\ns_waitcnt lgkmcnt(0) vmcnt(0)\nv_writelane_b32 {v(V_STAMP)}, {s(S_TM)}, 63")
            P(f"""s_lshl_b32 {s(S_T0)}, s2, 3
s_add_u32 {s(S_T0)}, {s(S_T0)}, {s(S_W4)}
s_add_u32 {s(S_T0)}, {s(S_T0)}, {4 if self.name == "H" else 0}
s_lshl_b32 {s(S_T0)}, {s(S_T0)}, 8
s_add_u32 {s(S_T0)}, {s(S_T0)}, {WS_STAMP}
v_lshlrev_b32 v0, 2, {v(V_LANE)}
buffer_store_dword {v(V_STAMP)}, v0, {s(S_WS,4)}, {s(S_T0)} offen""")
        if OPT["amp"] >= 0 and OPT["amprole"] == (self.name == "H"):
            P(f"""s_cmp_lg_u32 s2, 100
s_cbranch_scc1 L_end
v_readlane_b32 {s(S_T0)}, {v(V_STAMP)}, 0
v_readlane_b32 {s(S_T1)}, {v(V_STAMP)}, 1
s_memrealtime {s(S_TM,2)}
s_sub_u32 {s(S_T1)}, {s(S_T1)}, {s(S_T0)}
s_mul_i32 {s(S_T1)}, {s(S_T1)}, {OPT["ampk"]}
s_lshr_b32 {s(S_T1)}, {s(S_T1)}, {4 if OPT["ampclk"] else 0}
s_min_u32 {s(S_T1)}, {s(S_T1)}, 100000
s_waitcnt lgkmcnt(0)
s_mov_b32 {s(S_T0)}, {s(S_TM)}""")
            P.add(Raw(f"""L_amp{self.name}:
    s_memrealtime {s(S_TM,2)}
    s_waitcnt lgkmcnt(0)
    s_sub_u32 {s(S_K)}, {s(S_TM)}, {s(S_T0)}
    s_cmp_lt_u32 {s(S_K)}, {s(S_T1)}
    s_cbranch_scc1 L_amp{self.name}"""))
        P("s_endpgm")

ws_ld = lambda dst, voff, soff, imm=0, tag=None: Ins(
    f"buffer_load_dwordx4 {dst}, {v(voff)}, {s(S_WS,4)}, {soff} offen{' offset:%d' % imm if imm else ''} sc1", tag)
ws_st = lambda src, voff, soff, imm=0, tag=None: Ins(
    f"buffer_store_dwordx4 {src}, {v(voff)}, {s(S_WS,4)}, {soff} offen{' offset:%d' % imm if imm else ''} sc1", tag)
ep_load = f"buffer_load_dwordx2 {v(EP,2)}, off, {s(S_DBG,4)}, 0 sc1"
flag_load = f"buffer_load_dwordx2 {v(FLG,2)}, {v(V_FOFF)}, {s(S_WS,4)}, {s(S_K)} offen sc1"
flag_cmp = f"v_cmp_eq_u64 vcc, {v(FLG,2)}, {v(EP,2)}"
def flag_store(data_tag, kind):
    if kind == "kv":
        o = lines(f"""v_mul_u32_u24 v0, 56, {v(V_LANE)}
v_add_u32 v0, 88, v0
s_sub_u32 {s(S_T1)}, 31, {s(S_RB)}
s_min_u32 {s(S_T1)}, {s(S_T1)}, 4
v_cmp_gt_u32 vcc, {s(S_T1)}, {v(V_LANE)}
s_cmp_eq_u32 {s(S_RB)}, 0
s_cselect_b32 {s(S_T1)}, 24, {OOB}
v_mov_b32 v5, {s(S_T1)}
v_cndmask_b32 v0, v5, v0, vcc
s_lshl_b32 {s(S_T0)}, {s(S_HEAD)}, 5
s_add_u32 {s(S_T0)}, {s(S_T0)}, {s(S_RB)}
s_lshl_b32 {s(S_T0)}, {s(S_T0)}, 6
s_add_u32 {s(S_T0)}, {s(S_T0)}, {WS_FKV}""")
    else:
        o = lines(f"""v_lshlrev_b32 v0, 8, {v(V_LANE)}
v_cmp_gt_u32 vcc, 8, {v(V_LANE)}
v_mov_b32 v5, {OOB}
v_cndmask_b32 v0, v5, v0, vcc
s_lshl_b32 {s(S_T0)}, {s(S_RB)}, 8
s_add_u32 {s(S_T0)}, {s(S_T0)}, {s(S_HEAD)}
s_lshl_b32 {s(S_T0)}, {s(S_T0)}, 3
s_add_u32 {s(S_T0)}, {s(S_T0)}, { {"ob": WS_FOB, "oa0": WS_FOA, "oa1": WS_FOA + 65536}[kind] }""")
    return o + [WaitTag(data_tag), Ins(f"buffer_store_dwordx2 {v(EP,2)}, v0, {s(S_WS,4)}, {s(S_T0)} offen sc1", "flag")]

def max_tree(dst, regs, init=False):
    regs, o = list(regs), []
    if not init:
        o.append(f"v_max3_f32 {v(dst)}, {v(regs[0])}, {v(regs[1])}, {v(regs[2])}"); regs = regs[3:]
    while len(regs) >= 2:
        o.append(f"v_max3_f32 {v(dst)}, {v(dst)}, {v(regs[0])}, {v(regs[1])}"); regs = regs[2:]
    if regs: o.append(f"v_max_f32 {v(dst)}, {v(dst)}, {v(regs[0])}")
    return o
def cross_max(m, t):
    return [f"v_mov_b32 {v(t)}, {v(m)}", f"v_permlane32_swap_b32 {v(m)}, {v(t)}", f"v_max_f32 {v(m)}, {v(m)}, {v(t)}"]

def attn_setup(t, tmp):
    r5, hh, cm, u = tmp, tmp + 1, tmp + 2, tmp + 3
    o = lines(f"""v_and_b32 {v(r5)}, 31, {v(V_LANE)}
v_lshrrev_b32 {v(hh)}, 5, {v(V_LANE)}
v_lshlrev_b32 {v(u)}, 2, {v(hh)}
v_sub_u32 {v(cm)}, {v(r5)}, {v(u)}
s_mul_i32 {s(S_T2)}, {s(S_W4)}, {KVH}
s_add_u32 {s(S_T2)}, {s(S_T2)}, {L_KV + t*KVS}
v_add_u32 {v(V_AK)}, {s(S_T2)}, {v(V_L16)}
v_and_b32 {v(u)}, 15, {v(V_LANE)}
v_lshlrev_b32 {v(u)}, 4, {v(u)}
v_lshl_add_u32 {v(u)}, {v(hh)}, 8, {v(u)}
v_mov_b32 {v(hh)}, 0x400
v_cndmask_b32 {v(V_AV0)}, {v(hh)}, {v(u)}, {s(S_LO16,2)}
v_mov_b32 {v(hh)}, 0x200
v_cndmask_b32 {v(V_AV1)}, {v(hh)}, {v(u)}, {s(S_LO16,2)}
v_add_u32 {v(V_AV0)}, {s(S_T2)}, {v(V_AV0)}
v_add_u32 {v(V_AV1)}, {s(S_T2)}, {v(V_AV1)}
v_mov_b32 {v(u)}, 0xffff""")
    o += [f"v_cmp_le_i32 {s(S_MASK+2*q,2)}, {8*(q>>2)+(q&3)}, {v(cm)}" for q in range(16)]
    o += [f"v_cndmask_b32 {v(PM+pq)}, 0, {v(u)}, {s(S_MASK+4*pq,2)}" for pq in range(8)]
    o += [f"v_cndmask_b32 {v(PM+pq)}, {v(PM+pq)}, -1, {s(S_MASK+4*pq+2,2)}" for pq in range(8)]
    return o

def gate_finish(tiles, addr, tmp):
    o = [f"ds_read_b128 {v(tmp+4*t,4)}, {v(addr)} offset:{512*t}" for t in tiles]
    seq = []
    for t in tiles:
        b = tmp + 4*t
        seq.append([f"v_add_f32 {v(b)}, {v(b)}, {v(b+1)}", f"v_add_f32 {v(b+2)}, {v(b+2)}, {v(b+3)}",
                    f"v_add_f32 {v(b)}, {v(b)}, {v(b+2)}", f"v_mul_f32 {v(b)}, {fhex(-math.log2(math.e))}, {v(b)}",
                    f"v_exp_f32 {v(b)}, {v(b)}", f"v_add_f32 {v(b)}, 1.0, {v(b)}", f"v_rcp_f32 {v(G0+t)}, {v(b)}"])
    return o + interleave(*seq)

def o_pack(acc, o0, lreg, fac, dst, f):
    return ([f"v_rcp_f32 {v(f)}, {v(acc+lreg)}"] + fac +
            [f"v_mul_f32 {v(acc+o0+i)}, {v(f)}, {v(acc+o0+i)}" for i in range(8)] +
            [f"v_cvt_pk_bf16_f32 {v(dst+i)}, {v(acc+o0+2*i)}, {v(acc+o0+2*i+1)}" for i in range(4)])
def o_store(br, tt, src, tag):
    return [f"s_lshl_b32 {s(S_T0)}, {s(S_RB)}, 17", f"s_lshl_b32 {s(S_T1)}, {s(S_HEAD)}, 10",
            f"s_add_u32 {s(S_T0)}, {s(S_T0)}, {s(S_T1)}", f"s_add_u32 {s(S_T0)}, {s(S_T0)}, {WS_O + br*65536 + tt*32768}",
            ws_st(v(src,4), V_L16, s(S_T0), 0, tag)]

OPK1, CHK, S_BAD, V_GPR = 220, 240, 24, 188
def o_check(t):
    o, m = OACC2[t], CHK
    return ([f"s_mov_b32 {s(S_T1)}, 0x7b800000", f"v_add_f32 {v(m)}, abs({v(o)}), abs({v(o+8)})", f"v_add_f32 {v(m+1)}, abs({v(o+1)}), abs({v(o+2)})"] +
            [f"v_add_f32 {v(m+(i&1))}, {v(m+(i&1))}, abs({v(o+i)})" for i in range(3, 8)] +
            [f"v_add_f32 {v(m)}, {v(m)}, {v(m+1)}", f"v_cmp_lt_f32 vcc, {v(m)}, {s(S_T1)}", "s_cmp_eq_u64 vcc, -1"])
def a_publish(t):
    dst = (PF, OPK1)[t]
    return o_pack(OACC2[t], 0, 8, [f"v_mul_f32 {v(CHK)}, {v(CHK)}, {v(G0+t)}"], dst, CHK) + o_store(0, t, dst, f"oa{t}")

def window_attention(R, extra):
    P = R.P
    Q = lambda t: v((QA, QA1)[t], 4)
    items = [(1, u) for u in range(1, 8)] + [(0, u) for u in range(8)]
    merged = lambda j: items[j][1] == items[j][0]
    kread = lambda j: [f"ds_read_b128 {v(KF+4*(j&1),4)}, {v(V_AK)} offset:{items[j][1]*KVS}"] if j < 15 else []
    vread = lambda j: [f"ds_read_b128 {v(VF+8*(j&1),4)}, {v(V_AV0)} offset:{items[j][1]*KVS+1024}",
                       f"ds_read_b128 {v(VF+8*(j&1)+4,4)}, {v(V_AV1)} offset:{items[j][1]*KVS+1536}"] if j < 15 else []
    M = (TMP, TMP + 2)
    P(f"v_mov_b32 v5, {v(V_GPR)}")
    acc = lambda t: v(OACC2[t], 16)
    negm = lambda t: v(NEGM+16*t, 16)
    score = lambda j: [mfma(v(SB+16*(j&1),16), v(KF+4*(j&1),4), Q(items[j][0]), negm(items[j][0]))] if j < 15 else []
    exps = lambda S: [f"v_exp_f32 {v(S+i)}, {v(S+i)}" for i in range(16)]
    cvts = lambda d, S: [f"v_cvt_pk_bf16_f32 {v(d+k)}, {v(S+2*k)}, {v(S+2*k+1)}" for k in range(8)]
    P.add(extra)
    P.add(interleave(*[max_tree(M[t], range(MG+16*t, MG+16*t+16)) + cross_max(M[t], M[t]+1) for t in (1, 0)]))
    for t in (1, 0):
        P.add([f"v_pk_add_f32 {v(NEGM+16*t+2*i,2)}, 0, {v(M[t],2)} op_sel_hi:[0,0] neg_lo:[0,1] neg_hi:[0,1]" for i in range(8)])
        if t == 1: P(mfma(v(SB+16,16), v(KA,4), Q(1), negm(1)))
    P(mfma(v(MG+16,16), v(KA+4,4), Q(1), negm(1)))
    e, c = exps(SB+16), cvts(PB+8, SB+16)
    P.add(e[0:4]); P(mfma(v(MG,16), v(KA,4), Q(0), negm(0))); P.add(e[4:8]); P.add(c[0:4]); P.add(e[8:10])
    P(mfma(acc(1), v(VA,4), v(PB+8,4), "0")); P.add(e[10:16])
    R.stamp()
    P.add([f"ds_write_b128 v4, {v(248+4*tt,4)} offset:{6144+tt*1024}" for tt in range(2)])
    P.add(WaitLds()); P("s_barrier")
    R.stamp()
    P.add(kread(0) + kread(1) + vread(0) + vread(1)); P.add(c[4:8])
    P.add(score(0)); P.add(kread(2))
    pend = [mfma(acc(1), v(VA+4,4), v(PB+12,4), acc(1))]
    for j, (t, u) in enumerate(items):
        S, Pp, Vf = SB + 16*(j & 1), PB + 8*(j & 1), VF + 8*(j & 1)
        nxt = score(j + 1) + (kread(j + 3) if j != 1 else [])
        if j == 2: P("s_barrier"); P.add(kread(4))
        if j == 4: P.add(gate_finish([0, 1], 5, CHK))
        if merged(j):
            g = MG + 16*t
            sel = [f"v_cndmask_b32 {v(g+i)}, {v(S+i)}, {v(g+i)}, {s(S_MASK+2*i,2)}" for i in range(16)]
            e, c = exps(g), cvts(PF, g)
            an = [f"v_and_b32 {v(Pp+i)}, {v(PM+i)}, {v(PF+i)}" for i in range(8)]
            xo = [f"v_xor_b32 {v(g+i)}, {v(PF+i)}, {v(Pp+i)}" for i in range(8)]
            if j == 0:
                P.add(pend); P.add(nxt); P.add(sel)
            else:
                P.add(sel[0:2]); P.add(pend); P.add(sel[2:10]); P.add(nxt); P.add(sel[10:])
            P.add(e[0:8]); P.add(c[0:4]); P.add(an[0:4]); P.add(e[8:10])
            P(mfma(acc(t), v(VA+8*t,4), v(Pp,4), acc(t) if t else "0"))
            P.add(e[10:16]); P.add(xo[0:4]); P.add(c[4:8])
            P(mfma(acc(t), v(Vf,4), v(g,4), acc(t)))
            P.add(an[4:8]); P.add(xo[4:8])
            pend = [mfma(acc(t), v(VA+8*t+4,4), v(Pp+4,4), acc(t)), [mfma(acc(t), v(Vf+4,4), v(g+4,4), acc(t))] + vread(j + 2)]
            if j == 7:
                P.add(o_check(1)); P(f"s_cselect_b32 {s(S_BAD)}, 0, 1\ns_cbranch_scc0 L_skip1")
                P.add(a_publish(1)); P("L_skip1:")
                R.stamp()
        else:
            e, c = exps(S), cvts(Pp, S)
            P.add(e[0:2]); P.add(pend[0]); P.add(e[2:5])
            if len(pend) > 1: P.add(pend[1])
            P.add(e[5:6 if len(pend) == 1 else 8]); P.add(nxt); P.add(e[6 if len(pend) == 1 else 8:8])
            P.add(c[0:4]); P.add(e[8:10 if len(pend) == 1 else 12])
            P(mfma(acc(t), v(Vf,4), v(Pp,4), acc(t)))
            P.add(e[10 if len(pend) == 1 else 12:16]); P.add(c[4:8])
            pend = [[mfma(acc(t), v(Vf+4,4), v(Pp+4,4), acc(t))] + vread(j + 2)]
        if OPT["fine"] == 5: R.stamp()
        if j == OPT["xat"]:
            P.add(WaitLds()); P("s_barrier")
    P.add(pend)
    P.add(o_check(0)); P(f"s_cbranch_scc0 L_slow\ns_cmp_lg_u32 {s(S_BAD)}, 0\ns_cbranch_scc1 L_slow\nL_back:")
    R.stamp()

def slow_path():
    F = Prog()
    F(f"L_slow:\ns_cmp_eq_u32 {s(S_BAD)}, 0\ns_cbranch_scc1 L_exact0")
    G = Prog(); G.add(a_publish(1))
    return finalize(F) + exact_attention(1) + finalize(G) + exact_attention(0) + "    s_branch L_back\n"

def exact_attention(t):
    F = Prog(); q, M, acc = v((QA, QA1)[t], 4), TMP, v(OACC2[t], 16)
    KO, VO, G = TMP + 2, TMP + 3, S_T0
    def tile(rel, kdst, vdst):
        o = [f"s_add_i32 {s(S_K)}, {s(G)}, {rel}", f"s_cmp_ge_i32 {s(S_K)}, 0", f"s_cselect_b64 vcc, -1, 0",
             f"s_cselect_b32 {s(S_TM)}, {hex(ONES)}, 0", f"s_max_i32 {s(S_K)}, {s(S_K)}, 0", f"s_lshl_b32 {s(S_K)}, {s(S_K)}, 11",
             f"s_lshl_b32 {s(S_T1)}, {s(S_HEAD)}, 17", f"s_add_u32 {s(S_K)}, {s(S_K)}, {s(S_T1)}",
             f"v_and_b32 {v(KO)}, 0x200, {v(V_L16)}", f"v_cndmask_b32 {v(KO)}, {v(KO)}, {v(V_L16)}, vcc", ws_ld(v(kdst,4), KO, s(S_K))]
        if vdst is not None:
            o += [f"v_mov_b32 {v(vdst+i)}, {s(S_TM)}" for i in range(8)]
            o += [f"s_cmp_lg_u32 {s(S_TM)}, 0", f"s_cselect_b32 {s(S_K)}, {s(S_K)}, {WS_SIZE}", f"s_mov_b64 exec, {s(S_LO16,2)}",
                  ws_ld(v(vdst,4), VO, s(S_K), 1024), ws_ld(v(vdst+4,4), VO, s(S_K), 1536), "s_mov_b64 exec, -1"]
        return o
    F(f"L_exact{t}:\ns_waitcnt vmcnt(0) lgkmcnt(0)\ns_nop 15")
    F(f"""s_lshl_b32 {s(G)}, {s(S_RB)}, 1
s_sub_u32 {s(G)}, {s(G)}, {8 - t}
v_lshrrev_b32 {v(VO)}, 1, {v(V_L16)}
v_and_b32 {v(VO)}, 0x100, {v(VO)}
v_and_b32 {v(KO)}, 0xf0, {v(V_L16)}
v_or_b32 {v(VO)}, {v(VO)}, {v(KO)}""")
    F.add(tile(8, KF, VF)); F.add(tile(0, KF+4, VF+8))
    F(mfma(v(MG,16), v(KF,4), q, "0")); F(mfma(v(SB,16), v(KF+4,4), q, "0"))
    F.add([f"v_cndmask_b32 {v(MG+i)}, {v(SB+i)}, {v(MG+i)}, {s(S_MASK+2*i,2)}" for i in range(16)])
    F.add(max_tree(M, range(MG, MG+16)))
    F(f"s_mov_b32 {s(S_TM+1)}, 7\nL_exact_m{t}:\ns_add_u32 {s(G)}, {s(G)}, 1")
    F.add(tile(0, KF, None))
    F(mfma(v(SB,16), v(KF,4), q, "0"))
    F.add(max_tree(M, range(SB, SB+16), init=True))
    F(f"s_sub_u32 {s(S_TM+1)}, {s(S_TM+1)}, 1\ns_cmp_lg_u32 {s(S_TM+1)}, 0\ns_cbranch_scc1 L_exact_m{t}")
    F.add(cross_max(M, M+1))
    F.add([f"v_sub_f32 {v(MG+i)}, {v(MG+i)}, {v(M)}" for i in range(16)])
    F.add([f"v_exp_f32 {v(MG+i)}, {v(MG+i)}" for i in range(16)])
    F.add([f"v_cvt_pk_bf16_f32 {v(PF+i)}, {v(MG+2*i)}, {v(MG+2*i+1)}" for i in range(8)])
    F.add([f"v_and_b32 {v(PB+i)}, {v(PM+i)}, {v(PF+i)}" for i in range(8)])
    F.add([f"v_xor_b32 {v(PF+i)}, {v(PF+i)}, {v(PB+i)}" for i in range(8)])
    F(mfma(acc, v(VF,4), v(PB,4), "0")); F(mfma(acc, v(VF+4,4), v(PB+4,4), acc))
    F(mfma(acc, v(VF+8,4), v(PF,4), acc)); F(mfma(acc, v(VF+12,4), v(PF+4,4), acc))
    F(f"s_sub_u32 {s(G)}, {s(G)}, 7\ns_mov_b32 {s(S_TM+1)}, 7\ns_nop 15\nL_exact_e{t}:\ns_add_u32 {s(G)}, {s(G)}, 1")
    F.add(tile(0, KF, VF))
    F(mfma(v(SB,16), v(KF,4), q, "0"))
    F.add([f"v_sub_f32 {v(SB+i)}, {v(SB+i)}, {v(M)}" for i in range(16)])
    F.add([f"v_exp_f32 {v(SB+i)}, {v(SB+i)}" for i in range(16)])
    F.add([f"v_cvt_pk_bf16_f32 {v(PB+i)}, {v(SB+2*i)}, {v(SB+2*i+1)}" for i in range(8)])
    F(mfma(acc, v(VF,4), v(PB,4), acc)); F(mfma(acc, v(VF+4,4), v(PB+4,4), acc))
    F(f"s_nop 15\ns_sub_u32 {s(S_TM+1)}, {s(S_TM+1)}, 1\ns_cmp_lg_u32 {s(S_TM+1)}, 0\ns_cbranch_scc1 L_exact_e{t}")
    return finalize(F)

E = Prog()
hb = {4: 2, 3: 1, 2: 0, 1: 3}[OPT["xmap"]]
if OPT["stamps"] or OPT["amp"] >= 0:
    E("s_memtime s[64:65]\ns_memrealtime s[66:67]")
def entry_stamp():
    if OPT["stamps"]:
        return [f"v_mov_b32 {v(V_STAMP)}, 0", f"v_writelane_b32 {v(V_STAMP)}, s64, 0", f"v_writelane_b32 {v(V_STAMP)}, s66, 62"]
    if OPT["amp"] >= 0:
        return [f"v_mov_b32 {v(V_STAMP)}, 0", f"v_writelane_b32 {v(V_STAMP)}, {'s64' if OPT['ampclk'] else 's66'}, 0"]
    return []
code_pf = f"""s_getpc_b64 {s(S_T2,2)}
L_pc:
s_lshl2_add_u32 {s(S_T1)}, {s(S_T0)}, {s(S_W4)}
s_and_b32 {s(S_T1)}, {s(S_T1)}, 63
s_lshl_b32 {s(S_T1)}, {s(S_T1)}, 9
s_sub_u32 {s(S_T2)}, {s(S_T2)}, L_pc-{NAME}_kernel
s_subb_u32 {s(S_T3)}, {s(S_T3)}, 0
v_and_b32 v5, 3, {v(V_LANE)}
v_lshl_add_u32 v5, v5, 7, {s(S_T1)}
global_load_dword v13, v5, {s(S_T2,2)}"""
if OPT["cpf"] == 2:
    E(f"""s_getpc_b64 {s(S_T2,2)}
s_bfe_u32 {s(S_T1)}, s2, 0x50003
v_lshrrev_b32 v5, 6, v0
v_lshlrev_b32 v5, 7, v5
v_lshl_add_u32 v5, {s(S_T1)}, 10, v5
global_load_dword v13, v5, {s(S_T2,2)}""")
if OPT["cpf"] == 3:
    E(f"""s_getpc_b64 {s(S_T2,2)}
s_bfe_u32 {s(S_T1)}, s2, 0x30003
v_lshrrev_b32 v5, 4, v0
v_lshlrev_b32 v5, 7, v5
v_lshl_add_u32 v5, {s(S_T1)}, 12, v5
global_load_dword v13, v5, {s(S_T2,2)}""")
E(f"""
s_cmp_ge_u32 s2, 256
s_cbranch_scc1 L_end
s_load_dwordx16 s[4:19], s[0:1], 0
s_load_dwordx4 s[20:23], s[0:1], 64
v_lshrrev_b32 v4, 6, v0
v_and_b32 {v(V_LANE)}, 63, v0
s_lshr_b32 {s(S_T0)}, s2, 3
v_readfirstlane_b32 {s(S_MX)}, v4
""")
E(f"""
s_and_b32 {s(S_T1)}, s2, {(8 >> hb) - 1}
s_lshl_b32 {s(S_HG)}, {s(S_T1)}, {hb}
s_and_b32 {s(S_K)}, {s(S_T0)}, {(1 << hb) - 1}
s_add_u32 {s(S_HG)}, {s(S_HG)}, {s(S_K)}
s_bfe_u32 {s(S_K)}, s2, {hex((hb << 16) | (3 - hb))}
s_lshl_b32 {s(S_RB)}, {s(S_K)}, {5 - hb}
s_lshr_b32 {s(S_ROT)}, {s(S_T0)}, {hb}
s_add_u32 {s(S_RB)}, {s(S_RB)}, {s(S_ROT)}
s_and_b32 {s(S_W4)}, {s(S_MX)}, 3
""")
if OPT["cpf"] == 1:
    E(f"""s_cmp_lt_u32 {s(S_MX)}, 4
s_cbranch_scc0 L_hrole""")
    E(code_pf)
    E("s_branch L_crole\nL_hrole:")
elif OPT["cpf"] >= 4:
    E(f"""s_cmp_lt_u32 {s(S_MX)}, 4
s_cbranch_scc0 L_hrole
s_getpc_b64 {s(S_T2,2)}
L_pc:
s_lshl2_add_u32 {s(S_T1)}, {s(S_T0)}, {s(S_W4)}
s_lshl_b32 {s(S_T1)}, {s(S_T1)}, 8
s_sub_u32 {s(S_T2)}, {s(S_T2)}, L_pc-{NAME}_kernel
s_subb_u32 {s(S_T3)}, {s(S_T3)}, 0
s_load_dword s70, {s(S_T2,2)}, {s(S_T1)}
s_add_u32 {s(S_T1)}, {s(S_T1)}, 128
s_load_dword s71, {s(S_T2,2)}, {s(S_T1)}""")
    if OPT["cpf"] == 5:
        E("s_waitcnt lgkmcnt(0)")
        for i, ptr in enumerate((6, 12, 4, 16, 20, 8, 14, 18, 22)):
            E(f"s_load_dword s{72+i}, {s(ptr,2)}, 0")
        for i in range(1, 5):
            E(f"s_mov_b32 {s(S_T1)}, {i << 21}\ns_load_dword s{80+i}, s[22:23], {s(S_T1)}")
    E("s_branch L_crole\nL_hrole:")
else:
    E(f"s_cmp_lt_u32 {s(S_MX)}, 4\ns_cbranch_scc1 L_crole")
late_ids = lines(f"""
s_lshr_b32 {s(S_T0)}, s2, 3
s_and_b32 {s(S_RB3)}, s2, 7
s_lshl_b32 {s(S_RB3)}, {s(S_RB3)}, 2
s_lshr_b32 {s(S_T1)}, {s(S_T0)}, 3
s_add_u32 {s(S_RB3)}, {s(S_RB3)}, {s(S_T1)}
s_and_b32 {s(S_CB)}, {s(S_T0)}, 7
s_lshl_b32 {s(S_HEAD)}, {s(S_HG)}, 2
s_add_u32 {s(S_HEAD)}, {s(S_HEAD)}, {s(S_W4)}
s_mov_b32 {s(S_LO16)}, 0xffff
s_mov_b32 {s(S_LO16+1)}, 0xffff
v_lshlrev_b32 {v(V_L16)}, 4, {v(V_LANE)}
""")
rot_code = {
 0: f"s_and_b32 {s(S_ROT)}, {s(S_ROT)}, {OPT['rotmask']}",
 1: f"s_and_b32 {s(S_ROT)}, s2, 7",
 4: f"s_add_u32 {s(S_ROT)}, {s(S_ROT)}, {s(S_HG)}\ns_and_b32 {s(S_ROT)}, {s(S_ROT)}, 7",
 5: f"s_add_u32 {s(S_ROT)}, {s(S_ROT)}, {s(S_HG)}\ns_and_b32 {s(S_ROT)}, {s(S_ROT)}, 3\ns_lshl_b32 {s(S_ROT)}, {s(S_ROT)}, 1",
 6: f"s_add_u32 {s(S_ROT)}, {s(S_ROT)}, {s(S_HG)}\ns_and_b32 {s(S_ROT)}, {s(S_ROT)}, 1\ns_lshl_b32 {s(S_ROT)}, {s(S_ROT)}, 2",
}[OPT["rotmode"]]

def stage_of(n): return n >> 1 if n < 32 else 16 + ((n - 32) >> 2)
def first_of_stage(n): return n < 64 and (n == 0 or stage_of(n) != stage_of(n - 1))

H = Role("H"); P = H.P
VX, VW1, VW2 = 160, 162, 166
V_AXW, V_AG, V_GPW, GACC, XW, GF = 170, 171, 172, 174, 176, 184
i3, i4, p7, t0, t1, t2 = 32, 33, 34, 35, 36, 37
def raw(i):
    if OPT["fine"] == 3: P(f"s_memtime s[{68+2*i}:{69+2*i}]")
raw(0)
P(rot_code)
P(f"""
v_lshrrev_b32 {v(i3)}, 3, {v(V_LANE)}
v_lshrrev_b32 {v(i4)}, 4, {v(V_LANE)}
v_and_b32 {v(p7)}, 7, {v(V_LANE)}
s_lshl_b32 {s(S_T0)}, {s(S_W4)}, 4
v_add_u32 {v(t0)}, {s(S_T0)}, {v(i3)}
v_lshlrev_b32 {v(t0)}, 10, {v(t0)}
v_xor_b32 {v(t1)}, {v(p7)}, {v(i4)}
v_lshl_add_u32 {v(VX)}, {v(t1)}, 4, {v(t0)}
v_xor_b32 {v(VX+1)}, 64, {v(VX)}
v_add_u32 {v(VX+1)}, {0x2000 - 1024}, {v(VX+1)}
s_lshr_b32 {s(S_T0)}, {s(S_W4)}, 1
s_and_b32 {s(S_T1)}, {s(S_W4)}, 1
s_lshl_b32 {s(S_K)}, {s(S_T0)}, 4
v_add_u32 {v(t0)}, {s(S_K)}, {v(i4)}
v_mul_u32_u24 {v(t0)}, 0xc00, {v(t0)}
v_lshlrev_b32 {v(t1)}, 1, {v(i4)}
v_xor_b32 {v(t1)}, {v(t1)}, {v(p7)}
v_lshl_add_u32 {v(t0)}, {v(t1)}, 4, {v(t0)}
v_and_b32 {v(t1)}, 1, {v(i3)}
v_xor_b32 {v(t1)}, {s(S_T1)}, {v(t1)}
v_lshlrev_b32 {v(t1)}, 10, {v(t1)}
s_lshl_b32 {s(S_T2)}, {s(S_HG)}, 7
s_add_u32 {s(S_K)}, {s(S_T2)}, 1024
v_add3_u32 {v(VW1)}, {v(t0)}, {v(t1)}, {s(S_K)}
v_add_u32 {v(VW1+1)}, {12288 - 1024}, {v(VW1)}
v_add_u32 {v(VW1+2)}, {2*(12288 - 1024)}, {v(VW1)}
v_add_u32 {v(VW1+3)}, {3*(12288 - 1024)}, {v(VW1)}
s_lshl_b32 {s(S_MW)}, {s(S_T1)}, 13
s_lshl_b32 {s(S_K)}, {s(S_T0)}, 12
s_add_u32 {s(S_MW)}, {s(S_MW)}, {s(S_K)}
s_lshl_b32 {s(S_MX)}, {s(S_W4)}, 11
s_add_u32 {s(S_MX)}, {s(S_MX)}, {L_X}""")
raw(1)
P("s_waitcnt lgkmcnt(0)")
if OPT["wsoff"]: P(f"s_add_u32 s22, s22, {OPT['wsoff'] << 20}\ns_addc_u32 s23, s23, 0")
raw(2)
P.add(entry_stamp())
P.add(srd(S_X, 4, 2097152))
P(f"""s_cmp_eq_u32 {s(S_T1)}, 0
s_cselect_b32 {s(S_W)}, s6, s12
s_cselect_b32 {s(S_W+1)}, s7, s13
s_mov_b32 {s(S_W+2)}, 1572864
s_mov_b32 {s(S_W+3)}, 0x20000""")
if OPT["fine"] != 3: H.stamp()
def dma(voff, rsrc, soff, imm, tag, flags=""):
    return Ins(f"buffer_load_dwordx4 {v(voff)}, {s(rsrc,4)}, {soff} offen{' offset:%d' % imm if imm else ''}{flags} lds", tag)
def x_dma(j):
    return [f"s_add_u32 {s(S_K)}, {s(S_ROT)}, {j}", f"s_and_b32 {s(S_K)}, {s(S_K)}, 7", f"s_lshl_b32 {s(S_K)}, {s(S_K)}, 7",
            f"s_lshl_b32 {s(S_T2)}, {s(S_RB)}, 16", f"s_add_u32 m0, {s(S_MX)}, {j*8192}", f"s_add_u32 {s(S_K)}, {s(S_K)}, {s(S_T2)}",
            dma(VX, S_X, s(S_K), 0, f"x{j}"), dma(VX+1, S_X, s(S_K), 1024, f"x{j}")]
def w_dma(S):
    if S < 16:
        o = [f"s_lshl_b32 {s(S_T3)}, {s(S_ROT)}, 1", f"s_add_u32 {s(S_T3)}, {s(S_T3)}, {S}", f"s_and_b32 {s(S_T3)}, {s(S_T3)}, 15"]
    else:
        o = [f"s_add_u32 {s(S_T3)}, {s(S_ROT)}, {S-16}", f"s_and_b32 {s(S_T3)}, {s(S_T3)}, 7"]
    o += [f"s_add_u32 m0, {s(S_MW)}, {(S % NSLOT)*SLOT}", f"s_mul_i32 {s(S_T3)}, {s(S_T3)}, {(32 if S < 16 else 64)*3072}"]
    return o + [dma((VW1 if S < 16 else VW2) + t, S_W, s(S_T3), t*1024, f"w{S}") for t in range(4)]
P.add(x_dma(0)); raw(3)
P.add(w_dma(0)); raw(4)
P.add(w_dma(1)); raw(5)
P(f"""s_lshl_b32 {s(S_K)}, {s(S_ROT)}, 3
v_add_u32 {v(t2)}, {s(S_K)}, {v(V_LANE)}
v_and_b32 {v(t2)}, 63, {v(t2)}
v_lshlrev_b32 {v(t2)}, 4, {v(t2)}""")
P.add(srd(S_G, 16, 1024)); P(f"s_mov_b32 m0, {L_G}"); P.add(dma(t2, S_G, "0", 0, "w1"))
P.add(late_ids)
h_misc = lines(f"""
s_lshr_b32 {s(S_T0)}, {s(S_W4)}, 1
s_and_b32 {s(S_T1)}, {s(S_W4)}, 1
s_lshl_b32 {s(S_T0)}, {s(S_T0)}, 5
v_add_u32 {v(t0)}, {s(S_T0)}, {v(i3)}
v_mul_u32_u24 {v(t0)}, 0xc00, {v(t0)}
v_and_b32 {v(t1)}, 1, {v(i4)}
s_lshl_b32 {s(S_T1)}, {s(S_T1)}, 1
v_add_u32 {v(t1)}, {s(S_T1)}, {v(t1)}
v_lshlrev_b32 {v(t1)}, 1, {v(t1)}
v_xor_b32 {v(t1)}, {v(t1)}, {v(p7)}
v_lshl_add_u32 {v(t0)}, {v(t1)}, 4, {v(t0)}
s_lshl_b32 {s(S_T0)}, {s(S_HG)}, 7
v_add_u32 {v(VW2)}, {s(S_T0)}, {v(t0)}
v_add_u32 {v(VW2+1)}, {24576 - 1024}, {v(VW2)}
v_add_u32 {v(VW2+2)}, {2*(24576 - 1024)}, {v(VW2)}
v_add_u32 {v(VW2+3)}, {3*(24576 - 1024)}, {v(VW2)}
""") + srd(S_WS, 22, WS_SIZE) + srd(S_DBG, 20, 256)
P.add(h_misc)
if OPT["fine"] == 3:
    raw(6); P("s_waitcnt vmcnt(9)"); raw(7); P("s_waitcnt vmcnt(5)"); raw(8); P("s_waitcnt lgkmcnt(0)")
    for i in range(9):
        P(f"v_writelane_b32 {v(V_STAMP)}, s{68+2*i}, {i+1}")
    H.ns = 9
CM, QB, KB, VB, KBH, VBH, BS, BSP, BO, BP, BPL, BPK, SENT, S_R0 = 32, 48, 56, 64, 80, 84, 96, 128, 192, 224, 240, 248, 88, 28
def b_scores(t):
    kprev = v(KB, 4) if t == 1 else v(KBH, 4)
    return [mfma(v(BS+16*t,16), v(KB+4*t,4), v(QB+4*t,4), v(CM,16)), mfma(v(BSP+16*t,16), kprev, v(QB+4*t,4), v(CM,16))]
def b_softmax(t):
    S, sp, m, p, pl = BS + 16*t, BSP + 16*t, TMP + 2*t, BP + 8*t, BPL + 4*t
    o = [f"v_cndmask_b32 {v(S+q)}, {v(S+q)}, {v(sp+q)}, {s(S_LO16,2)}" for q in range(8, 16)]
    if t == 0:
        o += [f"v_mov_b32 {v(m)}, {hex(NEG_BIG)}"]
        o += [f"v_cndmask_b32 {v(S+q)}, {v(S+q)}, {v(m)}, {s(S_R0,2)}" for q in range(8, 16)]
    o += max_tree(m, range(S, S+16)) + cross_max(m, m+1)
    o += [f"v_pk_add_f32 {v(S+2*q,2)}, {v(S+2*q,2)}, {v(m,2)} op_sel_hi:[1,0] neg_lo:[0,1] neg_hi:[0,1]" for q in range(8)]
    o += [f"v_exp_f32 {v(S+q)}, {v(S+q)}" for q in range(16)]
    o += [f"v_cvt_pk_bf16_f32 {v(p+i)}, {v(S+2*i)}, {v(S+2*i+1)}" for i in range(8)]
    o += [f"v_cndmask_b32 {v(pl+i)}, 0, {v(p+4+i)}, {s(S_LO16,2)}" for i in range(4)]
    o += [f"v_cndmask_b32 {v(p+4+i)}, {v(p+4+i)}, 0, {s(S_LO16,2)}" for i in range(4)]
    return o
def b_pv(t):
    vprev, acc, p = v(VB+4, 4) if t == 1 else v(VBH, 4), v(BO+16*t, 16), BP + 8*t
    return [mfma(acc, v(VB+8*t,4), v(p,4), "0"), mfma(acc, v(VB+8*t+4,4), v(p+4,4), acc), mfma(acc, vprev, v(BPL+4*t,4), acc)]
def b_pack(t):
    f = TMP + 2*t
    return o_pack(BO+16*t, 8, 0, [f"v_sub_f32 {v(f+1)}, 1.0, {v(G0+t)}", f"v_mul_f32 {v(f)}, {v(f)}, {v(f+1)}"], BPK+4*t, f)
VWO, VKF, V1A, V1D, V_MB, V_HB = 160, 161, 162, 164, 12, 13
txt_of = lambda x: x.text if isinstance(x, Ins) else x
special_txt = []
def gather(tiles, special):
    o = []
    if 1 in tiles:
        o += [f"s_lshl_b32 {s(S_T0)}, {s(S_HEAD)}, 15", f"s_lshl_b32 {s(S_T1)}, {s(S_RB)}, 10", f"s_add_u32 {s(S_T0)}, {s(S_T0)}, {s(S_T1)}",
              f"s_add_u32 {s(S_T0)}, {s(S_T0)}, {WS_HB - 1024}"]
        if special:
            o += [f"s_cmp_eq_u32 {s(S_RB)}, 0", f"s_cselect_b32 {s(S_T0)}, {WS_SIZE}, {s(S_T0)}"]
        o += [ws_ld(v(KBH,4), V_HB, s(S_T0)), ws_ld(v(VBH,4), V_HB, s(S_T0), 512)]
        o += [f"s_lshl_b32 {s(S_K)}, {s(S_HEAD)}, 17", f"s_lshl_b32 {s(S_T1)}, {s(S_RB)}, 12",
              f"s_add_u32 {s(S_T2)}, {s(S_K)}, {s(S_T1)}", f"s_sub_u32 {s(S_T2)}, {s(S_T2)}, {8*2048}"]
    for u in tiles:
        tag = "kva" if 1 <= u <= 4 else "kvb"
        o += [f"s_add_u32 {s(S_T0)}, {s(S_T2)}, {u*2048}", f"s_add_u32 m0, {s(S_MW)}, {u*KVS}"]
        if special:
            o += [f"s_cmp_ge_u32 {s(S_RB)}, {(8-u+1)//2}", f"s_cbranch_scc1 L_gk{u}",
                  dma(VKF, S_WS, s(S_K), 0, None, " sc1"), f"s_mov_b32 {s(S_T0)}, {WS_SIZE}", f"s_branch L_gk{u}e", f"L_gk{u}:",
                  dma(V_L16, S_WS, s(S_T0), 0, None, " sc1"), f"L_gk{u}e:"]
        else:
            o += [dma(V_L16, S_WS, s(S_T0), 0, tag, " sc1")]
        o += [dma(V_L16, S_WS, s(S_T0), 1024, tag, " sc1")]
    return o
def emit_gather(n, tiles):
    P(f"s_cmp_lt_u32 {s(S_RB)}, 4\ns_cbranch_scc1 L_gspecial{n}")
    P.add(gather(tiles, False)); P(f"L_gdone{n}:")
    special_txt.append(f"L_gspecial{n}:\n" + "\n".join(("" if txt_of(x).endswith(":") else "    ") + txt_of(x) for x in gather(tiles, True))
                       + f"\n    s_branch L_gdone{n}\n")
S_R3, S_WB, S_MA, S_MB = 24, 25, 30, 31
B0, B1, A0, A1, A2, A3, VOG, EXW, EXR, VOUT = 16, 17, 24, 25, 26, 27, 18, 20, 23, 19
ACC3, OFB, OFA, WBF = 32, 96, 192, 176
issued_w, issued_x = 2, 1
for S in range(25):
    if S < 24:
        P.add(WaitTag(f"w{S}", f"x{S >> 1}" if S < 16 else "none"))
    if S < 23: P.add(WaitLds())
    P("s_barrier")
    if OPT["fine"] in (1, 2, 3) or S in (0, 16, 24): H.stamp()
    top = {0: 3}.get(S, S + 4)
    while issued_w <= min(top, 23):
        if issued_w < 16 and issued_w % 2 == 0 and issued_x <= issued_w // 2:
            P.add(x_dma(issued_x)); issued_x += 1
        P.add(w_dma(issued_w)); issued_w += 1
    if OPT["icpf"] and S == 1:
        t = (f"    s_getpc_b64 s[78:79]\nL_pc:\n    s_sub_u32 s78, s78, L_pc-{NAME}_kernel\n    s_subb_u32 s79, s79, 0\n    s_lshr_b32 {s(S_T1)}, s2, 3\n"
             f"    s_lshl2_add_u32 {s(S_T1)}, {s(S_T1)}, {s(S_W4)}\n    s_lshl_b32 {s(S_T1)}, {s(S_T1)}, 8\n")
        t += "".join(f"    s_load_dword s{80+i}, s[78:79], {s(S_T1)} offset:{i*64}\n" for i in range(4))
        P.add(Raw(t))
    if OPT["tlb"] and S in (3, 4, 5, 6):
        for i, (ptr, off) in enumerate({3: ((22, 0), (22, 1)), 4: ((22, 2), (22, 4)), 5: ((22, 3), (20, 0)), 6: ((18, 0),)}[S]):
            P.add(Raw(f"    s_mov_b32 {s(S_T1)}, {off << 21}\n    s_load_dword s{70+i}, {s(ptr,2)}, {s(S_T1)}"))
    if OPT["wopf"] and S in (8, 9, 10, 11):
        ptr, half = (14, 8)[(S - 8) >> 1], S & 1
        t = f"    s_lshl2_add_u32 {s(S_T1)}, s2, {s(S_W4)}\n    s_lshl_b32 {s(S_T1)}, {s(S_T1)}, 9\n"
        t += "".join(f"    s_load_dword s{73+i}, {s(ptr,2)}, {s(S_T1)} offset:{half*256+i*64}\n" for i in range(4))
        P.add(Raw(t))
    if S == 8: P(ep_load)
    if S in (12, 13):
        if S == 12:
            P(f"v_and_b32 v48, 31, {v(V_LANE)}\nv_lshrrev_b32 v49, 5, {v(V_LANE)}\nv_lshlrev_b32 v49, 2, v49\nv_sub_u32 v48, v48, v49")
        for q in range(8*(S-12), 8*(S-12) + 8):
            P(f"""v_subrev_u32 {v(CM+q)}, {8*(q>>2)+(q&3)}, v48
v_and_b32 {v(CM+q)}, 17, {v(CM+q)}
v_cvt_f32_u32 {v(CM+q)}, {v(CM+q)}
v_mul_f32 {v(CM+q)}, {hex(NEG_BIG)}, {v(CM+q)}""")
    if S == 14:
        P(f"""v_lshrrev_b32 v48, 5, {v(V_LANE)}
v_bfe_u32 v49, {v(V_LANE)}, 2, 2
v_lshl_add_u32 v48, v48, 2, v49
v_and_b32 v49, 2, v49
v_bfe_u32 v50, {v(V_LANE)}, 4, 1
v_xor_b32 v49, v49, v50
s_and_b32 {s(S_T1)}, {s(S_W4)}, 1
s_lshl_b32 {s(S_T1)}, {s(S_T1)}, 1
s_lshr_b32 {s(S_T0)}, {s(S_W4)}, 1
s_or_b32 {s(S_T1)}, {s(S_T1)}, {s(S_T0)}
v_xor_b32 v49, {s(S_T1)}, v49
v_lshlrev_b32 v49, 5, v49
v_lshl_add_u32 v48, v48, 7, v49
v_and_b32 v49, 3, {v(V_LANE)}
v_lshl_add_u32 v48, v49, 3, v48
s_lshl_b32 {s(S_MX)}, {s(S_W4)}, 14
v_add_u32 {v(B0)}, {s(S_MX)}, v48
v_xor_b32 {v(B1)}, 64, {v(B0)}
v_xor_b32 v49, 64, v48
s_mul_i32 {s(S_T0)}, {s(S_W4)}, 6144
s_add_u32 {s(S_T0)}, {s(S_T0)}, {L_WA}
v_add_u32 {v(A0)}, {s(S_T0)}, v48
v_add_u32 {v(A1)}, {s(S_T0)}, v49
s_mul_i32 {s(S_T0)}, {s(S_W4)}, 10240
s_add_u32 {s(S_T0)}, {s(S_T0)}, {L_KV}
v_add_u32 {v(A2)}, {s(S_T0)}, v48
v_add_u32 {v(A3)}, {s(S_T0)}, v49
s_lshl_b32 {s(S_T0)}, {s(S_W4)}, 13
v_add_u32 {v(V_MB)}, {s(S_T0)}, {v(V_L16)}
v_and_b32 v48, 0xf0, {v(V_L16)}
v_lshrrev_b32 v49, 1, {v(V_L16)}
v_and_b32 v49, 0x100, v49
v_add_u32 {v(V_HB)}, v48, v49""")
    if S == 15:
        P(f"s_mul_i32 {s(S_T0)}, {s(S_W4)}, 6144\nv_add_u32 {v(EXR)}, {s(S_T0)}, {v(V_L16)}")
        for i in range(1, 4):
            P(f"s_xor_b32 {s(S_T0)}, {s(S_W4)}, {i}\ns_mul_i32 {s(S_T0)}, {s(S_T0)}, 6144\nv_add_u32 {v(EXW+i-1)}, {s(S_T0)}, {v(V_L16)}")
        P(f"""v_and_b32 {v(VOUT)}, 31, {v(V_LANE)}
v_lshlrev_b32 {v(VOUT)}, 10, {v(VOUT)}
v_lshrrev_b32 v48, 5, {v(V_LANE)}
v_lshl_add_u32 {v(VOUT)}, v48, 4, {v(VOUT)}
s_lshl_b32 {s(S_T0)}, {s(S_RB3)}, 16
s_lshr_b32 {s(S_T1)}, {s(S_W4)}, 1
s_lshl_b32 {s(S_T1)}, {s(S_T1)}, 5
s_add_u32 {s(S_T0)}, {s(S_T0)}, {s(S_T1)}
s_lshl_b32 {s(S_T1)}, {s(S_CB)}, 7
s_add_u32 {s(S_T0)}, {s(S_T0)}, {s(S_T1)}
s_and_b32 {s(S_T1)}, {s(S_W4)}, 1
s_lshl_b32 {s(S_T1)}, {s(S_T1)}, 6
s_add_u32 {s(S_T0)}, {s(S_T0)}, {s(S_T1)}
v_add_u32 {v(VOUT)}, {s(S_T0)}, {v(VOUT)}
s_lshl_b32 {s(S_T0)}, {s(S_RB3)}, 17
s_lshl_b32 {s(S_T1)}, {s(S_W4)}, 13
s_add_u32 {s(S_T0)}, {s(S_T0)}, {s(S_T1)}
s_add_u32 {s(S_T0)}, {s(S_T0)}, {WS_O}
v_add_u32 {v(VOG)}, {s(S_T0)}, {v(V_L16)}
s_lshl_b32 {s(S_WB)}, {s(S_W4)}, 17
s_lshl_b32 {s(S_T1)}, {s(S_CB)}, 7
s_add_u32 {s(S_WB)}, {s(S_WB)}, {s(S_T1)}
s_lshl3_add_u32 {s(S_R3)}, {s(S_RB3)}, {s(S_CB)}
s_lshl2_add_u32 {s(S_R3)}, {s(S_R3)}, {s(S_W4)}
s_lshl_b32 {s(S_R3)}, {s(S_R3)}, 6""")
    if S == 18:
        P("s_waitcnt lgkmcnt(0)")
        H.poll(f"v_cmp_ne_u64 vcc, 0, {v(EP,2)}", ep_load)
        P(f"v_readfirstlane_b32 {s(S_EP)}, {v(EP)}\nv_readfirstlane_b32 {s(S_EP+1)}, {v(EP+1)}")
    if S == 19:
        P.add(srd(S_WOA, 8, 524288) + srd(S_WOB, 14, 524288) + srd(S_OUT, 18, 2097152))
    if S == 20:
        P(f"""v_lshrrev_b32 v48, 3, {v(V_LANE)}
v_bfe_u32 v49, {v(V_LANE)}, 4, 1
v_lshlrev_b32 v49, 2, v49
v_and_b32 v50, 7, {v(V_LANE)}
v_xor_b32 v49, v49, v50
v_lshlrev_b32 v49, 4, v49
v_lshl_add_u32 {v(VWO)}, v48, 10, v49
v_and_b32 {v(VKF)}, 32, {v(V_LANE)}
v_lshlrev_b32 {v(VKF)}, 4, {v(VKF)}
v_mul_u32_u24 {v(V1A)}, {KVS}, v50
s_mul_i32 {s(S_MW)}, {s(S_W4)}, {KVH}
s_add_u32 {s(S_MW)}, {s(S_MW)}, {L_KV}
s_add_u32 {s(S_T0)}, {s(S_MW)}, 2048
v_add_u32 {v(V1A)}, {s(S_T0)}, {v(V1A)}
s_lshl_b32 {s(S_T0)}, {s(S_RB)}, 1
v_add_u32 v48, {s(S_T0)}, v50
v_cmp_le_u32 vcc, 8, v48
v_mov_b32 {v(SENT)}, {hex(ONES)}
v_cndmask_b32 {v(V1D)}, 0, {v(SENT)}, vcc
v_mov_b32 {v(V1D+1)}, {v(V1D)}
v_mov_b32 {v(V1D+2)}, {v(V1D)}
v_mov_b32 {v(V1D+3)}, {v(V1D)}
s_cmp_eq_u32 {s(S_RB)}, 0
s_cselect_b64 {s(S_R0,2)}, {s(S_LO16,2)}, 0
s_mul_i32 {s(S_MA)}, {s(S_W4)}, 6144
s_add_u32 {s(S_MB)}, {s(S_MA)}, {L_KV}
v_add_u32 v51, {s(S_MB)}, {v(V_L16)}
s_add_u32 {s(S_MA)}, {s(S_MA)}, {L_WA}
s_mul_i32 {s(S_MB)}, {s(S_W4)}, 10240
s_add_u32 {s(S_MB)}, {s(S_MB)}, {L_KV - 6144}
s_lshl_b32 {s(S_K)}, {s(S_HEAD)}, 5
s_add_u32 {s(S_K)}, {s(S_K)}, {s(S_RB)}
s_lshl_b32 {s(S_K)}, {s(S_K)}, 6
s_add_u32 {s(S_K)}, {s(S_K)}, {WS_FKV}""")
    if S == 23:
        P(f"ds_write_b128 {v(V1A)}, {v(V1D,4)}")
        P(f"v_and_b32 v176, 31, {v(V_LANE)}\nv_lshlrev_b32 v176, 4, v176\nv_add_u32 v176, {L_GP}, v176")
        P.add([f"v_mov_b32 {v(168+i)}, -1" for i in range(4)])
        H.spoll_issue(4, S_K)
if OPT["p1only"]:
    H.finish()
fs = lambda: H.stamp() if OPT["fine"] == 4 else None
P(f"s_setprio {OPT['bprio']}")
P.add([f"ds_read_b128 {v(KB+4*i,4)}, {v(V_MB)} offset:{i*1024}" for i in range(6)])
gf = gate_finish([0, 1], 176, 180)
P.add(gf[:2])
H.spoll(4, S_K, ignore_from=S_RB)
H.stamp()
emit_gather(0, (1, 2, 3, 4))
P.add(gf[2:])
P.add([f"v_cndmask_b32 {v(VB+i)}, {v(VB+i)}, {v(SENT)}, {s(S_LO16,2)}" for i in range(16)])
P.add([f"v_cndmask_b32 {v(VBH+i)}, {v(VBH+i)}, {v(SENT)}, {s(S_LO16,2)}" for i in range(4)])
P.add(WaitTag("kva")); P("s_barrier")
H.stamp()
P.add([f"ds_read_b128 {v(QB+4*i,4)}, {v(V_MB)} offset:{6144+i*1024}" for i in (1, 0)])
P.add(WaitLds())
emit_gather(1, (5, 6, 7, 0))
def wo_dma(br):
    o = []
    for t in range(16):
        base = S_MX if br else (S_MA if t < 6 else S_MB)
        g = [f"s_add_u32 m0, {s(base)}, {t*1024}", f"s_add_u32 {s(S_T3)}, {s(S_WB)}, {t*8192}"]
        o.append(g + [dma(VWO, S_WOB if br else S_WOA, s(S_T3), 0, "wob" if br else ("woa" if t < 6 else "woc"))])
    return o
woa, wob = wo_dma(0), wo_dma(1)
bseq = b_scores(1) + b_scores(0) + interleave(b_softmax(1), b_softmax(0)) + interleave(b_pv(1), b_pv(0)) + interleave(b_pack(1), b_pack(0))
P.add(o_store(0, 1, 168, "ob")); P.add(o_store(0, 0, 168, "ob"))
P.add(bseq[:OPT["t2at"]])
P.add(WaitTag("kvb")); P("s_barrier")
fs()
nw = 0
for i, x in enumerate(bseq[OPT["t2at"]:]):
    if i % OPT["weave"] == 0 and nw < 16:
        P.add(wob[nw]); nw += 1
    P.add(x)
P.add(o_store(1, 1, BPK+4, "ob")); P.add(o_store(1, 0, BPK, "ob"))
fs()
rest = wob[nw:] + woa[:6]
P.add(rest[:OPT["wbmid"]]); P.add(flag_store("ob", "ob"))
fs()
P(f"s_add_u32 {s(S_K)}, {s(S_R3)}, {WS_FOB}")
P.add(rest[OPT["wbmid"]:])
fs()
P("s_barrier")
fs()
P.add(woa[6:11]); H.spoll_issue(8, S_K); P.add(woa[11:])
fs()
def o_gather(br, tt):
    o = []
    for hs in range(8):
        if hs % 4 == 0: o += [f"s_mov_b32 {s(S_T1)}, {br*65536 + tt*32768 + hs*1024}"]
        o += [ws_ld(v((OFA, OFB)[br]+32*tt+4*hs,4), VOG, s(S_T1), (hs & 3)*1024)]
    return o
def wo_read(dst, hs, br):
    base, off = ((B0, B1), hs*2048) if br else (((A0, A1), hs*2048) if hs < 3 else ((A2, A3), (hs-3)*2048))
    return [f"ds_read_b64_tr_b16 {v(dst+4*ct+2*j,2)}, {v(base[ct])} offset:{off+j*1024}" for ct in range(2) for j in range(2)]
def p3(br, tt, first, last, hook=lambda hs: None):
    if first: P.add(wo_read(WBF, 0, br))
    for hs in range(8):
        b = hs & 1
        rd = wo_read(WBF + 8*(1-b), (hs + 1) & 7, br) if not (last and hs == 7) else []
        for ct in range(2):
            acc = v(ACC3+32*tt+16*ct, 16)
            P(mfma(acc, v(WBF+8*b+4*ct,4), v((OFA, OFB)[br]+32*tt+4*hs,4), "0" if br and hs == 0 else acc))
            P.add(rd[2*ct:2*ct+2])
        hook(hs)
def red_writes(tt):
    keep, ex = ACC3 + 32*tt, tt * 24576
    send = {1: keep + 16, 2: keep + 8, 3: keep + 24}
    return [f"ds_write_b128 {v(EXW+i-1)}, {v(send[i]+4*q,4)} offset:{ex+(i-1)*2048+q*1024}" for i in (2, 1, 3) for q in range(2)]
def red_reads(tt):
    return [f"ds_read_b128 {v(OFB+32*tt+8*i+4*q,4)}, {v(EXR)} offset:{tt*24576+i*2048+q*1024}" for q in range(2) for i in range(3)]
def red_finish(tt):
    keep, tmp, o = ACC3 + 32*tt, OFB + 32*tt, []
    for q in range(2):
        for i in range(3):
            o += [f"v_pk_add_f32 {v(keep+4*q+2*k,2)}, {v(keep+4*q+2*k,2)}, {v(tmp+8*i+4*q+2*k,2)}" for k in range(2)]
        o += [f"v_cvt_pk_bf16_f32 {v(tmp+24+2*q+k)}, {v(keep+4*q+2*k)}, {v(keep+4*q+2*k+1)}" for k in range(2)]
    o += [f"v_permlane32_swap_b32 {v(tmp+24)}, {v(tmp+26)}", f"v_permlane32_swap_b32 {v(tmp+25)}, {v(tmp+27)}", f"s_mov_b32 {s(S_T1)}, {tt*32768}",
          f"buffer_store_dwordx4 {v(tmp+24,4)}, {v(VOUT)}, {s(S_OUT,4)}, {s(S_T1)} offen{('', ' sc1', ' nt', ' sc0 sc1')[OPT['outsc']]}"]
    return o
retry_txt = []
def o_verify(tt):
    base = OFA + 32*tt
    chk = [f"v_max3_u32 {v(TMP)}, {v(base)}, {v(base+1)}, {v(base+2)}"]
    chk += [f"v_max3_u32 {v(TMP)}, {v(TMP)}, {v(base+i)}, {v(base+i+1)}" for i in range(3, 31, 2)]
    chk += [f"v_max_u32 {v(TMP)}, {v(TMP)}, {v(base+31)}", f"v_cmp_ne_u32 vcc, -1, {v(TMP)}"]
    P.add(chk); P(f"s_cmp_eq_u64 vcc, -1\ns_cbranch_scc0 L_retry{tt}\nL_ok{tt}:")
    Q = Prog()
    Q(f"L_retry{tt}:\ns_mov_b32 {s(S_SPIN)}, 0x20000\nL_again{tt}:"); Q.add(o_gather(0, tt))
    Q(f"s_sub_u32 {s(S_SPIN)}, {s(S_SPIN)}, 1\ns_waitcnt vmcnt(0)\ns_cbranch_scc1 L_ok{tt}")
    Q.add(chk); Q(f"s_cmp_eq_u64 vcc, -1\ns_cbranch_scc0 L_again{tt}\ns_branch L_ok{tt}")
    retry_txt.append(finalize(Q))
H.spoll(8, S_K)
H.stamp()
if OPT["ybar"] == 1: P("s_barrier"); fs()
P.add(o_gather(1, 0))
if OPT["ybar"] == 2: P("s_barrier"); fs()
P.add(o_gather(1, 1))
if OPT["ybar"] == 3: P("s_barrier"); fs()
P.add(o_gather(0, 1))
if OPT["a0mode"] == 2: P.add(o_gather(0, 0))
fs()
P(f"s_setprio {OPT['p3prio']}")
P.add(WaitTag("wob", "woa", "woc"))
p3(1, 0, True, False)
if OPT["a0mode"] == 3: P.add(o_gather(0, 0))
if OPT["a0mode"] == 1:
    P("s_barrier"); fs(); P.add(o_gather(0, 0))
p3(1, 1, False, True)
H.stamp()
if OPT["a0mode"] == 0:
    P("s_barrier"); fs(); P.add(o_gather(0, 0))
o_verify(1)
p3(0, 1, True, False)
H.stamp()
if OPT["a0mode"] >= 1: P("s_barrier")
w1 = red_writes(1)
o_verify(0)
fs()
p3(0, 0, False, True, lambda hs: P.add(w1[hs:hs+1]))
H.stamp()
P.add(red_writes(0)); P.add(WaitLds()); P("s_barrier")
P.add(red_reads(1)); P.add(red_reads(0)); P.add(red_finish(1)); P.add(red_finish(0))
H.stamp()
H.finish()

C = Role("C"); P = C.P
T1, T3, T2 = 32, 64, 96
XB, WB = 128, 152
V_AX, V_T1L, V_T1H, V_T3L, V_T3H, V_T2L, V_T2H = 176, 180, 181, 182, 183, 184, 185
V_LO, V_HI, V_QW = 186, 187, 189
CMA, KB, VPK, QB = 192, 240, 224, 248
r5, hh, rr, cc, nh, u0, u1, cm = 128, 129, 130, 131, 132, 133, 134, 135
P("L_crole:")
P.add(late_ids)
if OPT["prio"]: P("s_setprio 1")
P(f"""
v_and_b32 {v(r5)}, 31, {v(V_LANE)}
v_lshrrev_b32 {v(hh)}, 5, {v(V_LANE)}
v_bfe_u32 {v(u0)}, {v(r5)}, 1, 3
v_xor_b32 {v(u0)}, {v(u0)}, {v(hh)}
v_lshlrev_b32 {v(u0)}, 4, {v(u0)}
v_lshl_add_u32 {v(u0)}, {v(r5)}, 7, {v(u0)}
v_add_u32 {v(V_AX)}, {L_X}, {v(u0)}
v_xor_b32 {v(V_AX+1)}, 32, {v(V_AX)}
v_xor_b32 {v(V_AX+2)}, 64, {v(V_AX)}
v_xor_b32 {v(V_AX+3)}, 0x60, {v(V_AX)}
v_bfe_u32 {v(rr)}, {v(V_LANE)}, 2, 2
v_and_b32 {v(cc)}, 3, {v(V_LANE)}
v_bfe_u32 {v(nh)}, {v(V_LANE)}, 4, 1
v_lshl_add_u32 {v(u0)}, {v(hh)}, 3, {v(rr)}
v_xor_b32 {v(u1)}, {s(S_W4)}, {v(rr)}
v_lshlrev_b32 {v(u1)}, 5, {v(u1)}
v_lshl_add_u32 {v(u1)}, {v(cc)}, 3, {v(u1)}
v_lshl_add_u32 {v(u1)}, {v(u0)}, 8, {v(u1)}
v_mul_u32_u24 {v(V_T1L)}, 0x2080, {v(nh)}
v_add_u32 {v(V_T1L)}, {v(V_T1L)}, {v(u1)}
v_add_u32 {v(V_T1H)}, 0x10000, {v(V_T1L)}
v_xor_b32 {v(V_T3L)}, 0x80, {v(V_T1L)}
v_xor_b32 {v(V_T3H)}, 0x80, {v(V_T1H)}
v_lshrrev_b32 {v(u1)}, 1, {v(rr)}
v_lshl_add_u32 {v(u1)}, {v(nh)}, 1, {v(u1)}
v_xor_b32 {v(u1)}, {s(S_W4)}, {v(u1)}
v_lshlrev_b32 {v(u1)}, 5, {v(u1)}
v_lshl_add_u32 {v(u1)}, {v(cc)}, 3, {v(u1)}
v_lshl_add_u32 {v(u1)}, {v(u0)}, 7, {v(u1)}
v_lshl_add_u32 {v(V_T2L)}, {v(nh)}, 13, {v(u1)}
v_add_u32 {v(V_T2H)}, 0x10000, {v(V_T2L)}
v_and_b32 {v(u0)}, 15, {v(V_LANE)}
v_lshlrev_b32 {v(u0)}, 4, {v(u0)}
v_lshl_add_u32 {v(u0)}, {v(hh)}, 8, {v(u0)}
v_lshl_add_u32 {v(V_LO)}, {v(nh)}, 31, {v(u0)}
v_xor_b32 {v(V_HI)}, {OOB}, {v(V_LO)}
v_lshlrev_b32 {v(V_GPR)}, 4, {v(r5)}
v_add_u32 {v(V_GPR)}, {L_GP}, {v(V_GPR)}
s_mul_i32 {s(S_T2)}, {s(S_W4)}, 8192
v_add_u32 {v(V_QW)}, {s(S_T2)}, {v(V_L16)}
v_lshlrev_b32 {v(u0)}, 2, {v(hh)}
v_sub_u32 {v(cm)}, {v(r5)}, {v(u0)}
s_waitcnt lgkmcnt(0)""")
if OPT["wsoff"]: P(f"s_add_u32 s22, s22, {OPT['wsoff'] << 20}\ns_addc_u32 s23, s23, 0")
P.add(entry_stamp())
P(f"""s_memrealtime {s(S_TM,2)}
s_mov_b32 {s(S_C)}, {fhex(QK_SCALE)}
s_mov_b32 {s(S_C+1)}, {fhex(QK_SCALE)}
""")
def l2_prefetch():
    a, b = 140, 141
    o = lines(f"""s_lshr_b32 {s(S_T0)}, s2, 3
s_and_b32 {s(S_T1)}, {s(S_HG)}, 4
s_lshl_b32 {s(S_T1)}, {s(S_T1)}, 7
v_and_b32 {v(a)}, 3, {v(V_LANE)}
v_lshlrev_b32 {v(a)}, 7, {v(a)}
s_cmp_eq_u32 {s(S_W4)}, 2
s_cbranch_scc1 L_pfx
s_cmp_eq_u32 {s(S_W4)}, 3
s_cbranch_scc1 L_pfq
s_cmp_eq_u32 {s(S_W4)}, 0
s_cselect_b32 {s(S_W)}, s6, s12
s_cselect_b32 {s(S_W+1)}, s7, s13
s_mov_b32 {s(S_W+2)}, 1572864
s_mov_b32 {s(S_W+3)}, 0x20000
v_bfe_u32 {v(b)}, {v(V_LANE)}, 2, 1
v_lshl_add_u32 {v(a)}, {v(b)}, 10, {v(a)}
v_lshrrev_b32 {v(b)}, 3, {v(V_LANE)}
v_mul_u32_u24 {v(b)}, 0xc00, {v(b)}
v_add_u32 {v(a)}, {v(a)}, {v(b)}
s_mul_i32 {s(S_T0)}, {s(S_T0)}, {8*3072}
s_add_u32 {s(S_T0)}, {s(S_T0)}, {s(S_T1)}
s_add_u32 {s(S_T0)}, {s(S_T0)}, 1024
buffer_load_dword v190, {v(a)}, {s(S_W,4)}, {s(S_T0)} offen
s_add_u32 {s(S_T0)}, {s(S_T0)}, {256*3072}
buffer_load_dword v191, {v(a)}, {s(S_W,4)}, {s(S_T0)} offen
s_branch L_pfe
L_pfx:
s_mov_b32 {s(S_W)}, s4
s_mov_b32 {s(S_W+1)}, s5
s_mov_b32 {s(S_W+2)}, 2097152
s_mov_b32 {s(S_W+3)}, 0x20000
v_lshrrev_b32 {v(b)}, 2, {v(V_LANE)}
v_lshl_add_u32 {v(a)}, {v(b)}, 10, {v(a)}
s_lshl_b32 {s(S_T0)}, {s(S_T0)}, 14
s_and_b32 {s(S_T1)}, {s(S_RB)}, 24
s_lshl_b32 {s(S_T1)}, {s(S_T1)}, 16
s_add_u32 {s(S_T0)}, {s(S_T0)}, {s(S_T1)}
buffer_load_dword v190, {v(a)}, {s(S_W,4)}, {s(S_T0)} offen
buffer_load_dword v191, {v(a)}, {s(S_W,4)}, {s(S_T0)} offen offset:512
s_branch L_pfe
L_pfq:
s_mov_b32 {s(S_W)}, s6
s_mov_b32 {s(S_W+1)}, s7
s_mov_b32 {s(S_W+2)}, 1572864
s_mov_b32 {s(S_W+3)}, 0x20000
v_lshrrev_b32 {v(b)}, 2, {v(V_LANE)}
v_mul_u32_u24 {v(b)}, 0xc00, {v(b)}
v_add_u32 {v(a)}, {v(a)}, {v(b)}
s_mul_i32 {s(S_T0)}, {s(S_T0)}, {16*3072}
s_add_u32 {s(S_T0)}, {s(S_T0)}, {s(S_T1)}
buffer_load_dword v190, {v(a)}, {s(S_W,4)}, {s(S_T0)} offen
s_mov_b32 {s(S_W)}, s12
s_mov_b32 {s(S_W+1)}, s13
buffer_load_dword v191, {v(a)}, {s(S_W,4)}, {s(S_T0)} offen
L_pfe:""")
    P.add(Raw("\n".join(("" if l.endswith(":") else "    ") + l for l in o)))
    P("s_nop 0")
if OPT["pf"] == 1: l2_prefetch()
P.add(srd(S_WS, 22, WS_SIZE) + srd(S_DBG, 20, 256))
P(f"""s_cmp_eq_u32 s2, 0
s_cselect_b32 {s(S_T2)}, 0, {OOB}
v_lshlrev_b32 v5, 8, v0
v_or_b32 v5, {s(S_T2)}, v5
s_waitcnt lgkmcnt(0)
v_mov_b32 {v(EP)}, {s(S_TM)}
v_mov_b32 {v(EP+1)}, {s(S_TM+1)}
buffer_store_dwordx2 {v(EP,2)}, v5, {s(S_DBG,4)}, 0 offen sc1""")
V_AXW, V_AG, V_GPW, XW, GF, GACC = 4, 8, 9, 240, 248, 190
P(f"""s_lshl_b32 {s(S_T2)}, {s(S_W4)}, 5
v_xor_b32 {v(V_AXW)}, {s(S_T2)}, {v(V_AX)}
v_lshlrev_b32 {v(u0)}, 4, {v(hh)}
s_add_u32 {s(S_T2)}, {s(S_T2)}, {L_G}
v_add_u32 {v(V_AG)}, {s(S_T2)}, {v(u0)}
s_lshl_b32 {s(S_T2)}, {s(S_W4)}, 2
v_add_u32 {v(V_GPW)}, {s(S_T2)}, {v(V_GPR)}
v_mov_b32 {v(GACC)}, 0
v_mov_b32 {v(GACC+1)}, 0""")
P.add(attn_setup(0, 136))
P(f"v_mov_b32 {v(u0)}, {hex(NEG_BIG)}")
P.add([f"v_cndmask_b32 {v(CMA+q)}, {v(u0)}, 0, {s(S_MASK+2*q,2)}" for q in range(16)])
C.stamp()

def frag_reads(n):
    b, m = n % 3, n & 31
    j, ux = m >> 2, m & 3
    base = (stage_of(n) % NSLOT) * SLOT
    hi = base >= 65536; off = base - (65536 if hi else 0)
    x = [f"ds_read_b128 {v(XB+8*b+4*tt,4)}, {v(V_AX+ux)} offset:{j*8192+tt*4096}" for tt in range(2)]
    if n < 32:
        w = [f"ds_read_b64_tr_b16 {v(WB+8*b+4*t+2*qd,2)}, {v(((V_T1L,V_T1H),(V_T3L,V_T3H))[t][hi])} offset:{off+(n&1)*4096+qd*1024}"
             for t in range(2) for qd in range(2)]
        return [w[0], x[0], w[1], w[2], x[1], w[3]]
    w = [f"ds_read_b64_tr_b16 {v(WB+8*b+2*qd,2)}, {v((V_T2L,V_T2H)[hi])} offset:{off+ux*2048+qd*512}" for qd in range(2)]
    return [w[0], x[0], w[1], x[1]]
def step_mfmas(n):
    b = n % 3
    x = lambda tt: v(XB+8*b+4*tt, 4)
    c = lambda r: "0" if n in (0, 32) else v(r, 16)
    if n < 32:
        return [mfma(v(T1,16), v(WB+8*b,4), x(0), c(T1)), mfma(v(T3,16), x(0), v(WB+8*b+4,4), c(T3)),
                mfma(v(T1+16,16), v(WB+8*b,4), x(1), c(T1+16)), mfma(v(T3+16,16), x(1), v(WB+8*b+4,4), c(T3+16))]
    return [mfma(v(T2,16), v(WB+8*b,4), x(0), c(T2)), mfma(v(T2+16,16), v(WB+8*b,4), x(1), c(T2+16))]
def kv_publish():
    o = [f"s_lshl_b32 {s(S_T0)}, {s(S_HEAD)}, 17", f"s_lshl_b32 {s(S_T1)}, {s(S_RB)}, 12", f"s_add_u32 {s(S_T0)}, {s(S_T0)}, {s(S_T1)}"]
    for tt in range(2):
        o += [f"v_pk_mul_f32 {v(T1+16*tt+2*i,2)}, {v(T1+16*tt+2*i,2)}, {s(S_C,2)}" for i in range(4)]
        o += [f"v_cvt_pk_bf16_f32 {v(KA+4*tt+i)}, {v(T1+16*tt+2*i)}, {v(T1+16*tt+2*i+1)}" for i in range(4)]
        o += [ws_st(v(KA+4*tt,4), V_L16, s(S_T0), tt*2048, "kv")]
    for tt in range(2):
        for m in range(2):
            o += [f"v_cvt_pk_bf16_f32 {v(VPK+8*tt+4*m+i)}, {v(T3+16*tt+8*m+2*i)}, {v(T3+16*tt+8*m+2*i+1)}" for i in range(4)]
            o += [ws_st(v(VPK+8*tt+4*m,4), V_LO, s(S_T0), tt*2048+1024+m*512, "kv")]
    o += [f"s_lshl_b32 {s(S_T0)}, {s(S_HEAD)}, 15", f"s_lshl_b32 {s(S_T1)}, {s(S_RB)}, 10",
          f"s_add_u32 {s(S_T0)}, {s(S_T0)}, {s(S_T1)}", f"s_add_u32 {s(S_T0)}, {s(S_T0)}, {WS_HB}",
          ws_st(v(VPK+12,4), V_HI, s(S_T0), 512, "kv")]
    for tt in (1, 0):
        o += [f"v_pk_mul_f32 {v(T1+16*tt+8+2*i,2)}, {v(T1+16*tt+8+2*i,2)}, {s(S_C,2)}" for i in range(4)]
        o += [f"v_cvt_pk_bf16_f32 {v(KB+4*tt+i)}, {v(T1+16*tt+8+2*i)}, {v(T1+16*tt+8+2*i+1)}" for i in range(4)]
        if tt == 1: o += [ws_st(v(KB+4,4), V_HI, s(S_T0), 0, "kv")]
    return o

if OPT["p1only"]:
    P("s_barrier\n" * 25 + "s_endpgm")
P("s_barrier")
C.stamp()
P.add(frag_reads(0)); P.add(frag_reads(1))
queue = []
for n in range(64):
    mf = step_mfmas(n)
    if OPT["xp"] == 6 and n < 32: mf = [mf[0], mf[2], mf[1], mf[3]]
    if OPT["xp"] == 7 and n < 32: mf = [mf[0], mf[2], mf[3], mf[1]]
    if OPT["xp"] in (1, 3) and n not in (0, 32): mf = ["s_nop 7"] * len(mf)
    if OPT["xp"] == 4 and n not in (0, 32):
        def split(m):
            d, a, b, c = [x.strip() for x in m.split(None, 1)[1].split(", ")]
            lo = int(d[2:].split(":")[0])
            return "\n".join(f"v_mfma_f32_16x16x32_bf16 {v(lo+4*i,4)}, {a}, {b}, {v(lo+4*i,4)}" for i in range(2))
        mf = [split(m) for m in mf]
    sync = first_of_stage(n + 2) or n == 62
    rd = frag_reads(n + 2) if n < 62 else []
    if OPT["xp"] in (2, 3): rd = []
    if OPT["xp"] == 5: rd = [x for x in rd if "tr_b16" in x] + ["s_nop 0"] * 2
    if n == 20: queue += [ep_load]
    if n < 32 and n % 4 == 1:
        j = n >> 2
        queue += [f"ds_read_b128 {v(GF,4)}, {v(V_AG)} offset:{j*128}",
                  f"ds_read_b128 {v(XW,4)}, {v(V_AXW)} offset:{j*8192}", f"ds_read_b128 {v(XW+4,4)}, {v(V_AXW)} offset:{j*8192+4096}"]
    if n < 32 and n % 4 == 2:
        queue += [f"v_dot2_f32_bf16 {v(GACC+tt)}, {v(XW+4*tt+i)}, {v(GF+i)}, {v(GACC+tt)}" for i in range(4) for tt in range(2)]
    if n == 31:
        queue += [f"v_mov_b32 {v(XW+tt)}, {v(GACC+tt)}" for tt in range(2)]
        queue += [f"v_permlane32_swap_b32 {v(GACC+tt)}, {v(XW+tt)}" for tt in range(2)]
        queue += [f"v_add_f32 {v(GACC+tt)}, {v(GACC+tt)}, {v(XW+tt)}" for tt in range(2)]

    if n == 32:
        pub = kv_publish()
        isst = lambda x: (isinstance(x, Ins) and x.kind == "vst") or (isinstance(x, str) and x.startswith("s_"))
        late_st = [x for x in pub if isst(x)] if OPT["pubat"] > 32 else []
        queue += [x for x in pub if not (late_st and isst(x))]
    if n == OPT["pubat"] and n > 32: queue = late_st + queue
    if n == 58:
        queue += [f"ds_write_b32 {v(V_GPW)}, {v(GACC+tt)} offset:{512*tt}" for tt in range(2)]
    if 59 <= n < 62:
        queue += [f"ds_write_b128 {v(V_QW)}, {v((KB, KB+4, VPK, VPK+4, VPK+8, VPK+12)[i],4)} offset:{i*1024}" for i in (2*(n-59), 2*(n-59)+1)]
    take = OPT["take"] if n >= 32 else (4 if n < 31 else 10)
    if n >= 46: take = 6
    side = queue[:take]; queue = queue[take:]
    def do_sync():
        P.add(WaitLds()); P("s_barrier")
        if OPT["fine"] in (1, 2, 3): C.stamp()
    if sync and OPT["barpos"] and n > 0:
        if n < 32:
            P(mf[0]); P.add(side[0:2]); P(mf[1]); do_sync(); P.add(rd[0:3]); P(mf[2]); P.add(rd[3:6]); P(mf[3]); P.add(side[2:])
        elif n < 58:
            P(mf[0]); P.add(side); P(mf[1]); do_sync(); P.add(rd)
        else:
            P(mf[0]); P(mf[1]); do_sync(); P.add(rd); P.add(side)
    else:
        P(mf[0])
        if sync: do_sync()
        if n < 32:
            P.add(rd[0:2]); P.add(side[0:1]); P(mf[1]); P.add(rd[2:4]); P.add(side[1:2]); P(mf[2]); P.add(rd[4:6]); P(mf[3]); P.add(side[2:])
        else:
            P.add(rd[0:2]); P.add(side[:take//2]); P(mf[1]); P.add(rd[2:4]); P.add(side[take//2:])
    if n == 31: C.stamp()
    if n == OPT["kvflag"]:
        C.poll(f"v_cmp_ne_u64 vcc, 0, {v(EP,2)}", ep_load)
        P.add(flag_store("kv", "kv"))
        C.stamp()
assert not queue
C.stamp()
P.add([f"v_cvt_pk_bf16_f32 {v(QB+4*tt+i)}, {v(T2+16*tt+8+2*i)}, {v(T2+16*tt+8+2*i+1)}" for tt in range(2) for i in range(4)])
P(f"v_mov_b32 v4, {v(V_QW)}")
P.add([f"v_cvt_pk_bf16_f32 {v(QA1+i)}, {v(T2+16+2*i)}, {v(T2+16+2*i+1)}" for i in range(4)])
P.add([f"v_cvt_pk_bf16_f32 {v(QA+i)}, {v(T2+2*i)}, {v(T2+2*i+1)}" for i in range(4)])
P(mfma(v(MG+16,16), v(KA+4,4), v(QA1,4), v(CMA,16))); P(mfma(v(MG,16), v(KA,4), v(QA,4), v(CMA,16)))
window_attention(C, [f"v_mov_b32 {v(TMP)}, {hex(ONES)}"] +
                 [f"v_cndmask_b32 {v(VA+i)}, {v(TMP)}, {v(VPK+i)}, {s(S_LO16,2)}" for i in range(16)])
P.add(a_publish(0))
if OPT["ybar"]: P("s_barrier")
C.stamp()
C.finish()

full = Prog(); full.items = E.items + H.P.items
bodyH = finalize(full, verbose=True)
full = Prog(); full.items = [Ins("s_load_dwordx16 s[4:19], s[0:1], 0"), Ins("global_load_dword v13, v5, s[96:97]")] + C.P.items
bodyC = "\n".join(finalize(full, verbose=True).split("\n")[2:])
print("stamps H", H.ns, "C", C.ns)
hdr = open("cdna_kernels/%s.s.ref" % NAME).read().split("; Override launch")[0]
if OPT["stamps"]: hdr += f"; stamps {C.ns} {H.ns}\n"
txt = hdr + f"""; One launch: 256 workgroups (4 heads x 64 rows each), 8 waves, hand-offs through d_ws tagged with a per-launch epoch.
; @launch grid=(256,1,1) block=(512,1,1) lds={LDS_BYTES}
.amdgcn_target "amdgcn-amd-amdhsa--gfx950"
.text
.globl {NAME}_kernel
.p2align 12
.p2align 8
.type {NAME}_kernel,@function
{NAME}_kernel:
{bodyH}{bodyC}L_end:
    s_endpgm
{''.join(retry_txt)}{''.join(special_txt)}{slow_path()}    .fill 3072, 4, 0xbf800000
.section .rodata,"a"
.p2align 6
.amdhsa_kernel {NAME}_kernel
  .amdhsa_next_free_vgpr 256
  .amdhsa_next_free_sgpr 102
  .amdhsa_accum_offset 256
  .amdhsa_group_segment_fixed_size 0
  .amdhsa_kernarg_size 80
  .amdhsa_user_sgpr_count 2
  .amdhsa_user_sgpr_kernarg_segment_ptr 1
  .amdhsa_system_sgpr_workgroup_id_x 1
.end_amdhsa_kernel
"""
open(sys.argv[1], "w").write(txt)
```

```python
import sys, math, struct
from asmdsl import Prog, Ins, WaitTag, WaitLds, Raw, finalize

NAME = "gated_mix__sliding_block__sliding_local_dilated__prompt"
OPT = dict(gat=23, gdel=1, f2hs=-1, f2by=1, wb0=4, zbar=0, wz=8, probe=0, amode=0, worder=0, xhs=3, hprio=2, p3prio=0, wopf=1, tlb=1, icpf=1, cpf=0, take=30, kvflag=42, pubat=32, prio=1, barpos=0,
           xmap=3, rotmode=4, rotmask=7, outsc=0, stamps=0, fine=0, rt=0, xp=0, wsoff=0, amp=-1, ampk=8, amprole=1, ampclk=0, p1only=0, pf=0)
for a in sys.argv[2:]:
    k, v_ = a.split("="); assert k in OPT, k; OPT[k] = int(v_)

WS_KV, WS_HB, WS_O = 0, 4 << 20, 5 << 20
WS_FKV, WS_FOB, WS_FOA = 9 << 20, (9 << 20) + 65536, (9 << 20) + 131072
WS_STAMP, WS_SIZE = 10 << 20, 16 << 20
OOB = 0x80000000
NSLOT, SLOT = 5, 16384
L_X, L_WA, L_G, L_GP, LDS_BYTES = 81920, 131584, 156160, 157184, 158208
KVH, KVS, L_KV, L_WO = 2064, 4 * 2064, 65536, 0
QK_SCALE = 0.25 * math.log2(math.e)
NEG_BIG, ONES = 0xf149f2ca, 0x3f803f80

def fhex(x): return "0x%08x" % struct.unpack("<I", struct.pack("<f", x))[0]
def v(a, n=1): return f"v{a}" if n == 1 else f"v[{a}:{a+n-1}]"
def s(a, n=1): return f"s{a}" if n == 1 else f"s[{a}:{a+n-1}]"
def lines(t): return [l.strip() for l in t.strip().split("\n") if l.strip()]
def mfma(d, a, b, c): return f"v_mfma_f32_32x32x16_bf16 {d}, {a}, {b}, {c}"
def srd(base, ptr, nbytes):
    return [f"s_mov_b32 {s(base)}, {s(ptr)}", f"s_mov_b32 {s(base+1)}, {s(ptr+1)}",
            f"s_mov_b32 {s(base+2)}, {nbytes}", f"s_mov_b32 {s(base+3)}, 0x20000"]
def interleave(*ls):
    o, ls = [], [list(l) for l in ls]
    while any(ls):
        for l in ls:
            if l: o.append(l.pop(0))
    return o

S_X, S_W, S_WS, S_WOA, S_WOB, S_OUT, S_DBG, S_G = 24, 28, 32, 36, 40, 44, 48, 36
S_W4, S_HG, S_RB, S_ROT, S_HEAD, S_RB3, S_CB = 52, 53, 54, 55, 56, 57, 58
S_K, S_T0, S_MW, S_MX, S_T1 = 59, 60, 61, 62, 63
S_MASK, S_T2, S_T3, S_LO16, S_TM, S_C, S_SPIN, S_EP = 64, 96, 97, 98, 100, 10, 3, 26
V_LANE, V_L16, V_STAMP, V_FOFF = 1, 2, 3, 4
EP, FLG = 6, 8
V_AK, V_AV0, V_AV1 = 10, 11, 12
G0 = 14
PM, QA = 16, 24
TMP = 28
SB, NEGM, MG, PB, PF, KF, VF = 32, 64, 96, 128, 144, 152, 192
OACC2 = (160, 176)
KA, QA1, VA = 208, 216, 224

class Role:
    def __init__(self, name):
        self.P, self.name, self.ns, self.nl = Prog(), name, 0, 0
    def stamp(self):
        P = self.P
        if OPT["amp"] == self.ns and OPT["amprole"] == (self.name == "H"):
            P.add(WaitLds())
            P(f"{'s_memtime' if OPT['ampclk'] else 's_memrealtime'} {s(S_TM,2)}\ns_waitcnt lgkmcnt(0)\nv_writelane_b32 {v(V_STAMP)}, {s(S_TM)}, 1")
        if OPT["stamps"]:
            P.add(WaitLds())
            P(f"s_memtime {s(S_TM,2)}\ns_waitcnt lgkmcnt(0)\nv_writelane_b32 {v(V_STAMP)}, {s(S_TM)}, {self.ns + 1}")
            if OPT["rt"]: P(f"s_memrealtime {s(S_TM,2)}\ns_waitcnt lgkmcnt(0)\nv_writelane_b32 {v(V_STAMP)}, {s(S_TM)}, {self.ns + 32}")
        self.ns += 1
    def poll(self, cmp_txt, reload_txt):
        P, n = self.P, f"{self.name}{self.nl}"; self.nl += 1
        P(f"s_mov_b32 {s(S_SPIN)}, 0x40000"); P(cmp_txt)
        P(f"s_cmp_eq_u64 vcc, -1\ns_cbranch_scc1 L_pok{n}")
        P.add(Raw(f"""L_pspin{n}:
    {reload_txt}
    s_sub_u32 {s(S_SPIN)}, {s(S_SPIN)}, 1
    s_cbranch_scc1 L_pok{n}
    s_waitcnt vmcnt(0)
    {cmp_txt}
    s_nop 2
    s_cmp_eq_u64 vcc, -1
    s_cbranch_scc0 L_pspin{n}
L_pok{n}:"""))
    def spoll_issue(self, n, off):
        self.P(f"s_load_dwordx{2*n} {s(4,2*n)}, s[22:23], {s(off)} glc")
    def spoll(self, n, off, ignore_from=None):
        P, lb = self.P, f"{self.name}{self.nl}"; self.nl += 1
        P.add(WaitLds())
        t = f"    s_mov_b32 {s(S_SPIN)}, 0x40000\nL_sp{lb}:\n"
        for i in range(n - 1):
            if ignore_from is not None:
                t += f"    s_cmp_lt_u32 {s(ignore_from)}, {n - i}\n    s_cselect_b64 {s(4+2*i,2)}, {s(S_EP,2)}, {s(4+2*i,2)}\n"
        for i in range(n):
            t += f"    s_xor_b64 {s(4+2*i,2)}, {s(4+2*i,2)}, {s(S_EP,2)}\n"
            if i: t += f"    s_or_b64 s[4:5], s[4:5], {s(4+2*i,2)}\n"
        t += (f"    s_cmp_eq_u64 s[4:5], 0\n    s_cbranch_scc1 L_spok{lb}\n"
              f"    s_load_dwordx{2*n} {s(4,2*n)}, s[22:23], {s(off)} glc\n"
              f"    s_sub_u32 {s(S_SPIN)}, {s(S_SPIN)}, 1\n    s_waitcnt lgkmcnt(0)\n    s_cbranch_scc0 L_sp{lb}\nL_spok{lb}:")
        P.add(Raw(t))
    def finish(self):
        P = self.P
        if OPT["stamps"]:
            P(f"s_memrealtime {s(S_TM,2)}\ns_waitcnt lgkmcnt(0) vmcnt(0)\nv_writelane_b32 {v(V_STAMP)}, {s(S_TM)}, 63")
            P(f"""s_lshl_b32 {s(S_T0)}, s2, 3
s_add_u32 {s(S_T0)}, {s(S_T0)}, {s(S_W4)}
s_add_u32 {s(S_T0)}, {s(S_T0)}, {4 if self.name == "H" else 0}
s_lshl_b32 {s(S_T0)}, {s(S_T0)}, 8
s_add_u32 {s(S_T0)}, {s(S_T0)}, {WS_STAMP}
v_lshlrev_b32 v0, 2, {v(V_LANE)}
buffer_store_dword {v(V_STAMP)}, v0, {s(S_WS,4)}, {s(S_T0)} offen""")
        if OPT["amp"] >= 0 and OPT["amprole"] == (self.name == "H"):
            P(f"""s_cmp_lg_u32 s2, 100
s_cbranch_scc1 L_end
v_readlane_b32 {s(S_T0)}, {v(V_STAMP)}, 0
v_readlane_b32 {s(S_T1)}, {v(V_STAMP)}, 1
s_memrealtime {s(S_TM,2)}
s_sub_u32 {s(S_T1)}, {s(S_T1)}, {s(S_T0)}
s_mul_i32 {s(S_T1)}, {s(S_T1)}, {OPT["ampk"]}
s_lshr_b32 {s(S_T1)}, {s(S_T1)}, {4 if OPT["ampclk"] else 0}
s_min_u32 {s(S_T1)}, {s(S_T1)}, 100000
s_waitcnt lgkmcnt(0)
s_mov_b32 {s(S_T0)}, {s(S_TM)}""")
            P.add(Raw(f"""L_amp{self.name}:
    s_memrealtime {s(S_TM,2)}
    s_waitcnt lgkmcnt(0)
    s_sub_u32 {s(S_K)}, {s(S_TM)}, {s(S_T0)}
    s_cmp_lt_u32 {s(S_K)}, {s(S_T1)}
    s_cbranch_scc1 L_amp{self.name}"""))
        P("s_endpgm")

ws_ld = lambda dst, voff, soff, imm=0, tag=None: Ins(
    f"buffer_load_dwordx4 {dst}, {v(voff)}, {s(S_WS,4)}, {soff} offen{' offset:%d' % imm if imm else ''} sc1", tag)
ws_st = lambda src, voff, soff, imm=0, tag=None: Ins(
    f"buffer_store_dwordx4 {src}, {v(voff)}, {s(S_WS,4)}, {soff} offen{' offset:%d' % imm if imm else ''} sc1", tag)
ep_load = f"buffer_load_dwordx2 {v(EP,2)}, off, {s(S_DBG,4)}, 0 sc1"
flag_load = f"buffer_load_dwordx2 {v(FLG,2)}, {v(V_FOFF)}, {s(S_WS,4)}, {s(S_K)} offen sc1"
flag_cmp = f"v_cmp_eq_u64 vcc, {v(FLG,2)}, {v(EP,2)}"
def flag_store(data_tag, kind):
    if kind == "kv":
        o = lines(f"""v_mul_u32_u24 v0, 56, {v(V_LANE)}
v_add_u32 v0, 88, v0
s_sub_u32 {s(S_T1)}, 31, {s(S_RB)}
s_min_u32 {s(S_T1)}, {s(S_T1)}, 4
v_cmp_gt_u32 vcc, {s(S_T1)}, {v(V_LANE)}
s_cmp_eq_u32 {s(S_RB)}, 0
s_cselect_b32 {s(S_T1)}, 24, {OOB}
v_mov_b32 v5, {s(S_T1)}
v_cndmask_b32 v0, v5, v0, vcc
s_lshl_b32 {s(S_T0)}, {s(S_HEAD)}, 5
s_add_u32 {s(S_T0)}, {s(S_T0)}, {s(S_RB)}
s_lshl_b32 {s(S_T0)}, {s(S_T0)}, 6
s_add_u32 {s(S_T0)}, {s(S_T0)}, {WS_FKV}""")
    else:
        o = lines(f"""v_lshlrev_b32 v0, 8, {v(V_LANE)}
v_cmp_gt_u32 vcc, 8, {v(V_LANE)}
v_mov_b32 v5, {OOB}
v_cndmask_b32 v0, v5, v0, vcc
s_lshl_b32 {s(S_T0)}, {s(S_RB)}, 8
s_add_u32 {s(S_T0)}, {s(S_T0)}, {s(S_HEAD)}
s_lshl_b32 {s(S_T0)}, {s(S_T0)}, 3
s_add_u32 {s(S_T0)}, {s(S_T0)}, { {"ob": WS_FOB, "oa0": WS_FOA, "oa1": WS_FOA + 65536}[kind] }""")
    return o + [WaitTag(data_tag), Ins(f"buffer_store_dwordx2 {v(EP,2)}, v0, {s(S_WS,4)}, {s(S_T0)} offen sc1", "flag")]

def max_tree(dst, regs, init=False):
    regs, o = list(regs), []
    if not init:
        o.append(f"v_max3_f32 {v(dst)}, {v(regs[0])}, {v(regs[1])}, {v(regs[2])}"); regs = regs[3:]
    while len(regs) >= 2:
        o.append(f"v_max3_f32 {v(dst)}, {v(dst)}, {v(regs[0])}, {v(regs[1])}"); regs = regs[2:]
    if regs: o.append(f"v_max_f32 {v(dst)}, {v(dst)}, {v(regs[0])}")
    return o
def cross_max(m, t):
    return [f"v_mov_b32 {v(t)}, {v(m)}", f"v_permlane32_swap_b32 {v(m)}, {v(t)}", f"v_max_f32 {v(m)}, {v(m)}, {v(t)}"]

def attn_setup(t, tmp):
    r5, hh, cm, u = tmp, tmp + 1, tmp + 2, tmp + 3
    o = lines(f"""v_and_b32 {v(r5)}, 31, {v(V_LANE)}
v_lshrrev_b32 {v(hh)}, 5, {v(V_LANE)}
v_lshlrev_b32 {v(u)}, 2, {v(hh)}
v_sub_u32 {v(cm)}, {v(r5)}, {v(u)}
s_mul_i32 {s(S_T2)}, {s(S_W4)}, {KVH}
s_add_u32 {s(S_T2)}, {s(S_T2)}, {L_KV + t*KVS}
v_add_u32 {v(V_AK)}, {s(S_T2)}, {v(V_L16)}
v_and_b32 {v(u)}, 15, {v(V_LANE)}
v_lshlrev_b32 {v(u)}, 4, {v(u)}
v_lshl_add_u32 {v(u)}, {v(hh)}, 8, {v(u)}
v_mov_b32 {v(hh)}, 0x400
v_cndmask_b32 {v(V_AV0)}, {v(hh)}, {v(u)}, {s(S_LO16,2)}
v_mov_b32 {v(hh)}, 0x200
v_cndmask_b32 {v(V_AV1)}, {v(hh)}, {v(u)}, {s(S_LO16,2)}
v_add_u32 {v(V_AV0)}, {s(S_T2)}, {v(V_AV0)}
v_add_u32 {v(V_AV1)}, {s(S_T2)}, {v(V_AV1)}
v_mov_b32 {v(u)}, 0xffff""")
    o += [f"v_cmp_le_i32 {s(S_MASK+2*q,2)}, {8*(q>>2)+(q&3)}, {v(cm)}" for q in range(16)]
    o += [f"v_cndmask_b32 {v(PM+pq)}, 0, {v(u)}, {s(S_MASK+4*pq,2)}" for pq in range(8)]
    o += [f"v_cndmask_b32 {v(PM+pq)}, {v(PM+pq)}, -1, {s(S_MASK+4*pq+2,2)}" for pq in range(8)]
    return o

def gate_finish(tiles, addr, tmp):
    o = [f"ds_read_b128 {v(tmp+4*t,4)}, {v(addr)} offset:{512*t}" for t in tiles]
    seq = []
    for t in tiles:
        b = tmp + 4*t
        seq.append([f"v_add_f32 {v(b)}, {v(b)}, {v(b+1)}", f"v_add_f32 {v(b+2)}, {v(b+2)}, {v(b+3)}",
                    f"v_add_f32 {v(b)}, {v(b)}, {v(b+2)}", f"v_mul_f32 {v(b)}, {fhex(-math.log2(math.e))}, {v(b)}",
                    f"v_exp_f32 {v(b)}, {v(b)}", f"v_add_f32 {v(b)}, 1.0, {v(b)}", f"v_rcp_f32 {v(G0+t)}, {v(b)}"])
    return o + interleave(*seq)

def o_pack(acc, o0, lreg, fac, dst, f):
    return ([f"v_rcp_f32 {v(f)}, {v(acc+lreg)}"] + fac +
            [f"v_mul_f32 {v(acc+o0+i)}, {v(f)}, {v(acc+o0+i)}" for i in range(8)] +
            [f"v_cvt_pk_bf16_f32 {v(dst+i)}, {v(acc+o0+2*i)}, {v(acc+o0+2*i+1)}" for i in range(4)])
def o_store(br, tt, src, tag):
    return [f"s_lshl_b32 {s(S_T0)}, {s(S_RB)}, 17", f"s_lshl_b32 {s(S_T1)}, {s(S_HEAD)}, 10",
            f"s_add_u32 {s(S_T0)}, {s(S_T0)}, {s(S_T1)}", f"s_add_u32 {s(S_T0)}, {s(S_T0)}, {WS_O + br*65536 + tt*32768}",
            ws_st(v(src,4), V_L16, s(S_T0), 0, tag)]

CMA = 64
def window_attention(R, events):
    P = R.P
    Q = lambda t: v((QA, QA1)[t], 4)
    kfr = lambda u: v(KF+4*(u & 1), 4) if u < 8 else v(KA+4*(u-8), 4)
    vfr = lambda u, m: v(VF+8*(u & 1)+4*m, 4) if u < 8 else v(VA+8*(u-8)+4*m, 4)
    kread = lambda u: [f"ds_read_b128 {kfr(u)}, {v(V_AK)} offset:{u*KVS}"] if u < 8 else []
    vread = lambda u: [f"ds_read_b128 {vfr(u,0)}, {v(V_AV0)} offset:{u*KVS+1024}",
                       f"ds_read_b128 {vfr(u,1)}, {v(V_AV1)} offset:{u*KVS+1536}"] if u < 8 else []
    M = (TMP, TMP + 2)
    acc = lambda t: v(OACC2[t], 16)
    negm = lambda t: v(NEGM+16*t, 16)
    exps = lambda S: [f"v_exp_f32 {v(S+i)}, {v(S+i)}" for i in range(16)]
    cvts = lambda d, S: [f"v_cvt_pk_bf16_f32 {v(d+k)}, {v(S+2*k)}, {v(S+2*k+1)}" for k in range(8)]
    ev = lambda key: events.pop(key)() if key in events else None
    P(mfma(v(SB+16,16), kfr(8), Q(1), negm(1))); P(mfma(v(MG,16), kfr(8), Q(0), negm(0)))
    P("s_barrier")
    R.stamp()
    P.add(kread(0) + kread(1) + vread(0) + vread(1))
    ev("pre")
    e, c = exps(SB+16), cvts(PB+8, SB+16)
    P.add(e[0:4]); P(mfma(v(SB,16), kfr(0), Q(0), negm(0))); P.add(kread(2)); P.add(e[4:8]); P.add(c[0:4])
    P(mfma(v(MG+16,16), kfr(9), Q(1), negm(1))); P.add(e[8:12])
    P(mfma(acc(1), vfr(8,0), v(PB+8,4), "0")); P.add(e[12:16]); P.add(c[4:8])
    pend = [mfma(v(SB+16,16), kfr(1), Q(1), negm(1)), mfma(acc(1), vfr(8,1), v(PB+12,4), acc(1))]
    for t in range(2):
        g = MG + 16*t
        seq = [f"v_cndmask_b32 {v(g+i)}, {v(SB+16*t+i)}, {v(g+i)}, {s(S_MASK+2*i,2)}" for i in range(16)]
        seq += [[mfma(v(SB+16*t,16), kfr(1+t), Q(t), negm(t))] + (kread(3) if t == 0 else [])]
        seq += exps(g) + cvts(PF, g)
        seq += [f"v_and_b32 {v(PB+8*t+i)}, {v(PM+i)}, {v(PF+i)}" for i in range(8)]
        seq += [f"v_xor_b32 {v(g+i)}, {v(PF+i)}, {v(PB+8*t+i)}" for i in range(8)]
        at = (0, 8) if t == 0 else (1, 9, 21, 26)
        for i, x in enumerate(seq):
            P.add(x)
            if i in at: P.add(pend.pop(0))
        pend = [mfma(acc(t), vfr(8+t,0), v(PB+8*t,4), acc(1) if t else "0"), mfma(acc(t), vfr(8+t,1), v(PB+8*t+4,4), acc(t)),
                mfma(acc(t), vfr(t,0), v(g,4), acc(t)), [mfma(acc(t), vfr(t,1), v(g+4,4), acc(t))] + (vread(2) if t == 0 else [])]
    R.stamp()
    ev("e1")
    for hs in range(13):
        t = hs & 1; u = (hs >> 1) + 1 + t
        S, Pp = SB + 16*t, PB + 8*t
        e, c = exps(S), cvts(Pp, S)
        nxt = None
        if t == 0 and 0 < hs < 12: nxt = [mfma(v(SB+16,16), kfr(u+1), Q(1), negm(1))]
        if t == 1: nxt = [mfma(v(SB,16), kfr(u), Q(0), negm(0))] + kread(u+2)
        if hs == 0:
            P.add(e[0:2]); P.add(pend[0]); P.add(e[2:5]); P.add(pend[1]); P.add(e[5:8]); P.add(pend[2])
            P.add(c[0:4]); P.add(e[8:10]); P.add(pend[3]); P.add(e[10:14])
            P(mfma(acc(t), vfr(u,0), v(Pp,4), acc(t))); P.add(e[14:16]); P.add(c[4:8])
        else:
            P.add(e[0:2]); P.add(pend); P.add(e[2:6])
            if nxt: P.add(nxt)
            P.add(e[6:8]); P.add(c[0:4]); P.add(e[8:10])
            P(mfma(acc(t), vfr(u,0), v(Pp,4), acc(t)))
            P.add(e[10:16]); P.add(c[4:8])
        pend = [mfma(acc(t), vfr(u,1), v(Pp+4,4), acc(t))] + (vread(u+2) if t == 0 else [])
        ev(hs)
    P.add(pend)
    assert not events, events
    P(f"s_mov_b32 {s(S_T1)}, 0x7b800000")
    for t in (1, 0):
        o, m = OACC2[t], M[t]
        P.add([f"v_add_f32 {v(m)}, abs({v(o)}), abs({v(o+8)})", f"v_add_f32 {v(m+1)}, abs({v(o+1)}), abs({v(o+2)})"] +
              [f"v_add_f32 {v(m+(i&1))}, {v(m+(i&1))}, abs({v(o+i)})" for i in range(3, 8)] + [f"v_add_f32 {v(m)}, {v(m)}, {v(m+1)}"])
    P(f"v_add_f32 {v(M[0])}, {v(M[0])}, {v(M[1])}\nv_cmp_lt_f32 vcc, {v(M[0])}, {s(S_T1)}")
    P("s_cmp_eq_u64 vcc, -1\ns_cbranch_scc0 L_exact0\nL_back:")
    R.stamp()

def slow_path():
    return exact_attention(0) + exact_attention(1) + "    s_branch L_back\n"

def exact_attention(t):
    F = Prog(); q, M, acc = v((QA, QA1)[t], 4), TMP, v(OACC2[t], 16)
    KO, VO, G = TMP + 2, TMP + 3, S_T0
    def tile(rel, kdst, vdst):
        o = [f"s_add_i32 {s(S_K)}, {s(G)}, {rel}", f"s_cmp_ge_i32 {s(S_K)}, 0", f"s_cselect_b64 vcc, -1, 0",
             f"s_cselect_b32 {s(S_TM)}, {hex(ONES)}, 0", f"s_max_i32 {s(S_K)}, {s(S_K)}, 0", f"s_lshl_b32 {s(S_K)}, {s(S_K)}, 11",
             f"s_lshl_b32 {s(S_T1)}, {s(S_HEAD)}, 17", f"s_add_u32 {s(S_K)}, {s(S_K)}, {s(S_T1)}",
             f"v_and_b32 {v(KO)}, 0x200, {v(V_L16)}", f"v_cndmask_b32 {v(KO)}, {v(KO)}, {v(V_L16)}, vcc", ws_ld(v(kdst,4), KO, s(S_K))]
        if vdst is not None:
            o += [f"v_mov_b32 {v(vdst+i)}, {s(S_TM)}" for i in range(8)]
            o += [f"s_cmp_lg_u32 {s(S_TM)}, 0", f"s_cselect_b32 {s(S_K)}, {s(S_K)}, {WS_SIZE}", f"s_mov_b64 exec, {s(S_LO16,2)}",
                  ws_ld(v(vdst,4), VO, s(S_K), 1024), ws_ld(v(vdst+4,4), VO, s(S_K), 1536), "s_mov_b64 exec, -1"]
        return o
    F(f"L_exact{t}:\ns_waitcnt vmcnt(0) lgkmcnt(0)\ns_nop 15")
    F(f"""s_lshl_b32 {s(G)}, {s(S_RB)}, 1
s_sub_u32 {s(G)}, {s(G)}, {8 - t}
v_lshrrev_b32 {v(VO)}, 1, {v(V_L16)}
v_and_b32 {v(VO)}, 0x100, {v(VO)}
v_and_b32 {v(KO)}, 0xf0, {v(V_L16)}
v_or_b32 {v(VO)}, {v(VO)}, {v(KO)}""")
    F.add(tile(8, KF, VF)); F.add(tile(0, KF+4, VF+8))
    F(mfma(v(MG,16), v(KF,4), q, "0")); F(mfma(v(SB,16), v(KF+4,4), q, "0"))
    F.add([f"v_cndmask_b32 {v(MG+i)}, {v(SB+i)}, {v(MG+i)}, {s(S_MASK+2*i,2)}" for i in range(16)])
    F.add(max_tree(M, range(MG, MG+16)))
    F(f"s_mov_b32 {s(S_TM+1)}, 7\nL_exact_m{t}:\ns_add_u32 {s(G)}, {s(G)}, 1")
    F.add(tile(0, KF, None))
    F(mfma(v(SB,16), v(KF,4), q, "0"))
    F.add(max_tree(M, range(SB, SB+16), init=True))
    F(f"s_sub_u32 {s(S_TM+1)}, {s(S_TM+1)}, 1\ns_cmp_lg_u32 {s(S_TM+1)}, 0\ns_cbranch_scc1 L_exact_m{t}")
    F.add(cross_max(M, M+1))
    F.add([f"v_sub_f32 {v(MG+i)}, {v(MG+i)}, {v(M)}" for i in range(16)])
    F.add([f"v_exp_f32 {v(MG+i)}, {v(MG+i)}" for i in range(16)])
    F.add([f"v_cvt_pk_bf16_f32 {v(PF+i)}, {v(MG+2*i)}, {v(MG+2*i+1)}" for i in range(8)])
    F.add([f"v_and_b32 {v(PB+i)}, {v(PM+i)}, {v(PF+i)}" for i in range(8)])
    F.add([f"v_xor_b32 {v(PF+i)}, {v(PF+i)}, {v(PB+i)}" for i in range(8)])
    F(mfma(acc, v(VF,4), v(PB,4), "0")); F(mfma(acc, v(VF+4,4), v(PB+4,4), acc))
    F(mfma(acc, v(VF+8,4), v(PF,4), acc)); F(mfma(acc, v(VF+12,4), v(PF+4,4), acc))
    F(f"s_sub_u32 {s(G)}, {s(G)}, 7\ns_mov_b32 {s(S_TM+1)}, 7\ns_nop 15\nL_exact_e{t}:\ns_add_u32 {s(G)}, {s(G)}, 1")
    F.add(tile(0, KF, VF))
    F(mfma(v(SB,16), v(KF,4), q, "0"))
    F.add([f"v_sub_f32 {v(SB+i)}, {v(SB+i)}, {v(M)}" for i in range(16)])
    F.add([f"v_exp_f32 {v(SB+i)}, {v(SB+i)}" for i in range(16)])
    F.add([f"v_cvt_pk_bf16_f32 {v(PB+i)}, {v(SB+2*i)}, {v(SB+2*i+1)}" for i in range(8)])
    F(mfma(acc, v(VF,4), v(PB,4), acc)); F(mfma(acc, v(VF+4,4), v(PB+4,4), acc))
    F(f"s_nop 15\ns_sub_u32 {s(S_TM+1)}, {s(S_TM+1)}, 1\ns_cmp_lg_u32 {s(S_TM+1)}, 0\ns_cbranch_scc1 L_exact_e{t}")
    return finalize(F)

E = Prog()
hb = {4: 2, 3: 1, 2: 0, 1: 3}[OPT["xmap"]]
if OPT["stamps"] or OPT["amp"] >= 0:
    E("s_memtime s[64:65]\ns_memrealtime s[66:67]")
def entry_stamp():
    if OPT["stamps"]:
        return [f"v_mov_b32 {v(V_STAMP)}, 0", f"v_writelane_b32 {v(V_STAMP)}, s64, 0", f"v_writelane_b32 {v(V_STAMP)}, s66, 62"]
    if OPT["amp"] >= 0:
        return [f"v_mov_b32 {v(V_STAMP)}, 0", f"v_writelane_b32 {v(V_STAMP)}, {'s64' if OPT['ampclk'] else 's66'}, 0"]
    return []
code_pf = f"""s_getpc_b64 {s(S_T2,2)}
L_pc:
s_lshl2_add_u32 {s(S_T1)}, {s(S_T0)}, {s(S_W4)}
s_and_b32 {s(S_T1)}, {s(S_T1)}, 63
s_lshl_b32 {s(S_T1)}, {s(S_T1)}, 9
s_sub_u32 {s(S_T2)}, {s(S_T2)}, L_pc-{NAME}_kernel
s_subb_u32 {s(S_T3)}, {s(S_T3)}, 0
v_and_b32 v5, 3, {v(V_LANE)}
v_lshl_add_u32 v5, v5, 7, {s(S_T1)}
global_load_dword v13, v5, {s(S_T2,2)}"""
if OPT["cpf"] == 2:
    E(f"""s_getpc_b64 {s(S_T2,2)}
s_bfe_u32 {s(S_T1)}, s2, 0x50003
v_lshrrev_b32 v5, 6, v0
v_lshlrev_b32 v5, 7, v5
v_lshl_add_u32 v5, {s(S_T1)}, 10, v5
global_load_dword v13, v5, {s(S_T2,2)}""")
if OPT["cpf"] == 3:
    E(f"""s_getpc_b64 {s(S_T2,2)}
s_bfe_u32 {s(S_T1)}, s2, 0x30003
v_lshrrev_b32 v5, 4, v0
v_lshlrev_b32 v5, 7, v5
v_lshl_add_u32 v5, {s(S_T1)}, 12, v5
global_load_dword v13, v5, {s(S_T2,2)}""")
E(f"""
s_cmp_ge_u32 s2, 256
s_cbranch_scc1 L_end
s_load_dwordx16 s[4:19], s[0:1], 0
s_load_dwordx4 s[20:23], s[0:1], 64
v_lshrrev_b32 v4, 6, v0
v_and_b32 {v(V_LANE)}, 63, v0
s_lshr_b32 {s(S_T0)}, s2, 3
v_readfirstlane_b32 {s(S_MX)}, v4
""")
E(f"""
s_and_b32 {s(S_T1)}, s2, {(8 >> hb) - 1}
s_lshl_b32 {s(S_HG)}, {s(S_T1)}, {hb}
s_and_b32 {s(S_K)}, {s(S_T0)}, {(1 << hb) - 1}
s_add_u32 {s(S_HG)}, {s(S_HG)}, {s(S_K)}
s_bfe_u32 {s(S_K)}, s2, {hex((hb << 16) | (3 - hb))}
s_lshl_b32 {s(S_RB)}, {s(S_K)}, {5 - hb}
s_lshr_b32 {s(S_ROT)}, {s(S_T0)}, {hb}
s_add_u32 {s(S_RB)}, {s(S_RB)}, {s(S_ROT)}
s_and_b32 {s(S_W4)}, {s(S_MX)}, 3
""")
if OPT["cpf"] == 1:
    E(f"""s_cmp_lt_u32 {s(S_MX)}, 4
s_cbranch_scc0 L_hrole""")
    E(code_pf)
    E("s_branch L_crole\nL_hrole:")
elif OPT["cpf"] >= 4:
    E(f"""s_cmp_lt_u32 {s(S_MX)}, 4
s_cbranch_scc0 L_hrole
s_getpc_b64 {s(S_T2,2)}
L_pc:
s_lshl2_add_u32 {s(S_T1)}, {s(S_T0)}, {s(S_W4)}
s_lshl_b32 {s(S_T1)}, {s(S_T1)}, 8
s_sub_u32 {s(S_T2)}, {s(S_T2)}, L_pc-{NAME}_kernel
s_subb_u32 {s(S_T3)}, {s(S_T3)}, 0
s_load_dword s70, {s(S_T2,2)}, {s(S_T1)}
s_add_u32 {s(S_T1)}, {s(S_T1)}, 128
s_load_dword s71, {s(S_T2,2)}, {s(S_T1)}""")
    if OPT["cpf"] == 5:
        E("s_waitcnt lgkmcnt(0)")
        for i, ptr in enumerate((6, 12, 4, 16, 20, 8, 14, 18, 22)):
            E(f"s_load_dword s{72+i}, {s(ptr,2)}, 0")
        for i in range(1, 5):
            E(f"s_mov_b32 {s(S_T1)}, {i << 21}\ns_load_dword s{80+i}, s[22:23], {s(S_T1)}")
    E("s_branch L_crole\nL_hrole:")
else:
    E(f"s_cmp_lt_u32 {s(S_MX)}, 4\ns_cbranch_scc1 L_crole")
late_ids = lines(f"""
s_lshr_b32 {s(S_T0)}, s2, 3
s_and_b32 {s(S_RB3)}, s2, 7
s_lshl_b32 {s(S_RB3)}, {s(S_RB3)}, 2
s_lshr_b32 {s(S_T1)}, {s(S_T0)}, 3
s_add_u32 {s(S_RB3)}, {s(S_RB3)}, {s(S_T1)}
s_and_b32 {s(S_CB)}, {s(S_T0)}, 7
s_lshl_b32 {s(S_HEAD)}, {s(S_HG)}, 2
s_add_u32 {s(S_HEAD)}, {s(S_HEAD)}, {s(S_W4)}
s_mov_b32 {s(S_LO16)}, 0xffff
s_mov_b32 {s(S_LO16+1)}, 0xffff
v_lshlrev_b32 {v(V_L16)}, 4, {v(V_LANE)}
""")
rot_code = {
 0: f"s_and_b32 {s(S_ROT)}, {s(S_ROT)}, {OPT['rotmask']}",
 1: f"s_and_b32 {s(S_ROT)}, s2, 7",
 4: f"s_add_u32 {s(S_ROT)}, {s(S_ROT)}, {s(S_HG)}\ns_and_b32 {s(S_ROT)}, {s(S_ROT)}, 7",
 5: f"s_add_u32 {s(S_ROT)}, {s(S_ROT)}, {s(S_HG)}\ns_and_b32 {s(S_ROT)}, {s(S_ROT)}, 3\ns_lshl_b32 {s(S_ROT)}, {s(S_ROT)}, 1",
 6: f"s_add_u32 {s(S_ROT)}, {s(S_ROT)}, {s(S_HG)}\ns_and_b32 {s(S_ROT)}, {s(S_ROT)}, 1\ns_lshl_b32 {s(S_ROT)}, {s(S_ROT)}, 2",
}[OPT["rotmode"]]

def stage_of(n): return n >> 1 if n < 32 else 16 + ((n - 32) >> 2)
def first_of_stage(n): return n < 64 and (n == 0 or stage_of(n) != stage_of(n - 1))

H = Role("H"); P = H.P
VX, VW1, VW2 = 160, 162, 166
V_AXW, V_AG, V_GPW, GACC, XW, GF = 170, 171, 172, 174, 176, 184
i3, i4, p7, t0, t1, t2 = 32, 33, 34, 35, 36, 37
def raw(i):
    if OPT["fine"] == 3: P(f"s_memtime s[{68+2*i}:{69+2*i}]")
raw(0)
P(rot_code)
P(f"""
v_lshrrev_b32 {v(i3)}, 3, {v(V_LANE)}
v_lshrrev_b32 {v(i4)}, 4, {v(V_LANE)}
v_and_b32 {v(p7)}, 7, {v(V_LANE)}
s_lshl_b32 {s(S_T0)}, {s(S_W4)}, 4
v_add_u32 {v(t0)}, {s(S_T0)}, {v(i3)}
v_lshlrev_b32 {v(t0)}, 10, {v(t0)}
v_xor_b32 {v(t1)}, {v(p7)}, {v(i4)}
v_lshl_add_u32 {v(VX)}, {v(t1)}, 4, {v(t0)}
v_xor_b32 {v(VX+1)}, 64, {v(VX)}
v_add_u32 {v(VX+1)}, {0x2000 - 1024}, {v(VX+1)}
s_lshr_b32 {s(S_T0)}, {s(S_W4)}, 1
s_and_b32 {s(S_T1)}, {s(S_W4)}, 1
s_lshl_b32 {s(S_K)}, {s(S_T0)}, 4
v_add_u32 {v(t0)}, {s(S_K)}, {v(i4)}
v_mul_u32_u24 {v(t0)}, 0xc00, {v(t0)}
v_lshlrev_b32 {v(t1)}, 1, {v(i4)}
v_xor_b32 {v(t1)}, {v(t1)}, {v(p7)}
v_lshl_add_u32 {v(t0)}, {v(t1)}, 4, {v(t0)}
v_and_b32 {v(t1)}, 1, {v(i3)}
v_xor_b32 {v(t1)}, {s(S_T1)}, {v(t1)}
v_lshlrev_b32 {v(t1)}, 10, {v(t1)}
s_lshl_b32 {s(S_T2)}, {s(S_HG)}, 7
s_add_u32 {s(S_K)}, {s(S_T2)}, 1024
v_add3_u32 {v(VW1)}, {v(t0)}, {v(t1)}, {s(S_K)}
v_add_u32 {v(VW1+1)}, {12288 - 1024}, {v(VW1)}
v_add_u32 {v(VW1+2)}, {2*(12288 - 1024)}, {v(VW1)}
v_add_u32 {v(VW1+3)}, {3*(12288 - 1024)}, {v(VW1)}
s_lshl_b32 {s(S_MW)}, {s(S_T1)}, 13
s_lshl_b32 {s(S_K)}, {s(S_T0)}, 12
s_add_u32 {s(S_MW)}, {s(S_MW)}, {s(S_K)}
s_lshl_b32 {s(S_MX)}, {s(S_W4)}, 11
s_add_u32 {s(S_MX)}, {s(S_MX)}, {L_X}""")
raw(1)
P("s_waitcnt lgkmcnt(0)")
if OPT["wsoff"]: P(f"s_add_u32 s22, s22, {OPT['wsoff'] << 20}\ns_addc_u32 s23, s23, 0")
raw(2)
P.add(entry_stamp())
P.add(srd(S_X, 4, 2097152))
P(f"""s_cmp_eq_u32 {s(S_T1)}, 0
s_cselect_b32 {s(S_W)}, s6, s12
s_cselect_b32 {s(S_W+1)}, s7, s13
s_mov_b32 {s(S_W+2)}, 1572864
s_mov_b32 {s(S_W+3)}, 0x20000""")
if OPT["fine"] != 3: H.stamp()
def dma(voff, rsrc, soff, imm, tag, flags=""):
    return Ins(f"buffer_load_dwordx4 {v(voff)}, {s(rsrc,4)}, {soff} offen{' offset:%d' % imm if imm else ''}{flags} lds", tag)
def x_dma(j):
    return [f"s_add_u32 {s(S_K)}, {s(S_ROT)}, {j}", f"s_and_b32 {s(S_K)}, {s(S_K)}, 7", f"s_lshl_b32 {s(S_K)}, {s(S_K)}, 7",
            f"s_lshl_b32 {s(S_T2)}, {s(S_RB)}, 16", f"s_add_u32 m0, {s(S_MX)}, {j*8192}", f"s_add_u32 {s(S_K)}, {s(S_K)}, {s(S_T2)}",
            dma(VX, S_X, s(S_K), 0, f"x{j}"), dma(VX+1, S_X, s(S_K), 1024, f"x{j}")]
def w_dma(S):
    if S < 16:
        o = [f"s_lshl_b32 {s(S_T3)}, {s(S_ROT)}, 1", f"s_add_u32 {s(S_T3)}, {s(S_T3)}, {S}", f"s_and_b32 {s(S_T3)}, {s(S_T3)}, 15"]
    else:
        o = [f"s_add_u32 {s(S_T3)}, {s(S_ROT)}, {S-16}", f"s_and_b32 {s(S_T3)}, {s(S_T3)}, 7"]
    o += [f"s_add_u32 m0, {s(S_MW)}, {(S % NSLOT)*SLOT}", f"s_mul_i32 {s(S_T3)}, {s(S_T3)}, {(32 if S < 16 else 64)*3072}"]
    return o + [dma((VW1 if S < 16 else VW2) + t, S_W, s(S_T3), t*1024, f"w{S}") for t in range(4)]
P.add(x_dma(0)); raw(3)
P.add(w_dma(0)); raw(4)
P.add(w_dma(1)); raw(5)
P(f"""s_lshl_b32 {s(S_K)}, {s(S_ROT)}, 3
v_add_u32 {v(t2)}, {s(S_K)}, {v(V_LANE)}
v_and_b32 {v(t2)}, 63, {v(t2)}
v_lshlrev_b32 {v(t2)}, 4, {v(t2)}""")
P.add(srd(S_G, 16, 1024)); P(f"s_mov_b32 m0, {L_G}"); P.add(dma(t2, S_G, "0", 0, "w1"))
P.add(late_ids)
h_misc = lines(f"""
s_lshr_b32 {s(S_T0)}, {s(S_W4)}, 1
s_and_b32 {s(S_T1)}, {s(S_W4)}, 1
s_lshl_b32 {s(S_T0)}, {s(S_T0)}, 5
v_add_u32 {v(t0)}, {s(S_T0)}, {v(i3)}
v_mul_u32_u24 {v(t0)}, 0xc00, {v(t0)}
v_and_b32 {v(t1)}, 1, {v(i4)}
s_lshl_b32 {s(S_T1)}, {s(S_T1)}, 1
v_add_u32 {v(t1)}, {s(S_T1)}, {v(t1)}
v_lshlrev_b32 {v(t1)}, 1, {v(t1)}
v_xor_b32 {v(t1)}, {v(t1)}, {v(p7)}
v_lshl_add_u32 {v(t0)}, {v(t1)}, 4, {v(t0)}
s_lshl_b32 {s(S_T0)}, {s(S_HG)}, 7
v_add_u32 {v(VW2)}, {s(S_T0)}, {v(t0)}
v_add_u32 {v(VW2+1)}, {24576 - 1024}, {v(VW2)}
v_add_u32 {v(VW2+2)}, {2*(24576 - 1024)}, {v(VW2)}
v_add_u32 {v(VW2+3)}, {3*(24576 - 1024)}, {v(VW2)}
""") + srd(S_WS, 22, WS_SIZE) + srd(S_DBG, 20, 256)
P.add(h_misc)
if OPT["fine"] == 3:
    raw(6); P("s_waitcnt vmcnt(9)"); raw(7); P("s_waitcnt vmcnt(5)"); raw(8); P("s_waitcnt lgkmcnt(0)")
    for i in range(9):
        P(f"v_writelane_b32 {v(V_STAMP)}, s{68+2*i}, {i+1}")
    H.ns = 9
VWO, VKF, V1A, V1D, V_MB, V_HB = 160, 161, 162, 164, 12, 13
txt_of = lambda x: x.text if isinstance(x, Ins) else x
special_txt = []
def gather(tiles, special):
    o = []
    if 1 in tiles:
        o += [f"s_lshl_b32 {s(S_K)}, {s(S_HEAD)}, 17", f"s_lshl_b32 {s(S_T1)}, {s(S_RB)}, 12",
              f"s_add_u32 {s(S_T2)}, {s(S_K)}, {s(S_T1)}", f"s_sub_u32 {s(S_T2)}, {s(S_T2)}, {8*2048}"]
    for u in tiles:
        tag = "kv"
        o += [f"s_add_u32 {s(S_T0)}, {s(S_T2)}, {u*2048}", f"s_add_u32 m0, {s(S_MW)}, {u*KVS}"]
        if special:
            o += [f"s_cmp_ge_u32 {s(S_RB)}, {(8-u+1)//2}", f"s_cbranch_scc1 L_gk{u}",
                  dma(VKF, S_WS, s(S_K), 0, None, " sc1"), f"s_mov_b32 {s(S_T0)}, {WS_SIZE}", f"s_branch L_gk{u}e", f"L_gk{u}:",
                  dma(V_L16, S_WS, s(S_T0), 0, None, " sc1"), f"L_gk{u}e:"]
        else:
            o += [dma(V_L16, S_WS, s(S_T0), 0, tag, " sc1")]
        o += [dma(V_L16, S_WS, s(S_T0), 1024, tag, " sc1")]
    return o
def emit_gather(n, tiles):
    P(f"s_cmp_lt_u32 {s(S_RB)}, 4\ns_cbranch_scc1 L_gspecial{n}")
    P.add(gather(tiles, False)); P(f"L_gdone{n}:")
    special_txt.append(f"L_gspecial{n}:\n" + "\n".join(("" if txt_of(x).endswith(":") else "    ") + txt_of(x) for x in gather(tiles, True))
                       + f"\n    s_branch L_gdone{n}\n")
S_R3, S_WB, S_MA, S_MB = 24, 25, 30, 31
B0, B1, A0, A1, A2, A3, VOG, EXW, EXR, VOUT = 16, 17, 24, 25, 26, 27, 18, 20, 23, 19
ACC3, OFB, OFA, WBF = 32, 96, 192, 176
issued_w, issued_x = 2, 1
for S in range(25):
    if S < 24:
        P.add(WaitTag(f"w{S}", f"x{S >> 1}" if S < 16 else "none"))
    if S < 24: P.add(WaitLds())
    P("s_barrier")
    if OPT["fine"] in (1, 2, 3) or S in (0, 16, 24): H.stamp()
    top = {0: 3}.get(S, S + 4)
    while issued_w <= min(top, 23):
        if issued_w < 16 and issued_w % 2 == 0 and issued_x <= issued_w // 2:
            P.add(x_dma(issued_x)); issued_x += 1
        P.add(w_dma(issued_w)); issued_w += 1
    if OPT["icpf"] and S == 1:
        t = (f"    s_getpc_b64 s[78:79]\nL_pc:\n    s_sub_u32 s78, s78, L_pc-{NAME}_kernel\n    s_subb_u32 s79, s79, 0\n    s_lshr_b32 {s(S_T1)}, s2, 3\n"
             f"    s_lshl2_add_u32 {s(S_T1)}, {s(S_T1)}, {s(S_W4)}\n    s_lshl_b32 {s(S_T1)}, {s(S_T1)}, 8\n")
        t += "".join(f"    s_load_dword s{80+i}, s[78:79], {s(S_T1)} offset:{i*64}\n" for i in range(4))
        P.add(Raw(t))
    if OPT["tlb"] and S in (3, 4, 5, 6):
        for i, (ptr, off) in enumerate({3: ((22, 0), (22, 1)), 4: ((22, 2), (22, 4)), 5: ((22, 3), (20, 0)), 6: ((18, 0),)}[S]):
            P.add(Raw(f"    s_mov_b32 {s(S_T1)}, {off << 21}\n    s_load_dword s{70+i}, {s(ptr,2)}, {s(S_T1)}"))
    if OPT["wopf"] and S in (8, 9, 10, 11):
        ptr, half = (14, 8)[(S - 8) >> 1], S & 1
        t = f"    s_lshl2_add_u32 {s(S_T1)}, s2, {s(S_W4)}\n    s_lshl_b32 {s(S_T1)}, {s(S_T1)}, 9\n"
        t += "".join(f"    s_load_dword s{73+i}, {s(ptr,2)}, {s(S_T1)} offset:{half*256+i*64}\n" for i in range(4))
        P.add(Raw(t))
    if S == 8: P(ep_load)
    if S == 14:
        P(f"""v_lshrrev_b32 v48, 5, {v(V_LANE)}
v_bfe_u32 v49, {v(V_LANE)}, 2, 2
v_lshl_add_u32 v48, v48, 2, v49
v_and_b32 v49, 2, v49
v_bfe_u32 v50, {v(V_LANE)}, 4, 1
v_xor_b32 v49, v49, v50
s_and_b32 {s(S_T1)}, {s(S_W4)}, 1
s_lshl_b32 {s(S_T1)}, {s(S_T1)}, 1
s_lshr_b32 {s(S_T0)}, {s(S_W4)}, 1
s_or_b32 {s(S_T1)}, {s(S_T1)}, {s(S_T0)}
v_xor_b32 v49, {s(S_T1)}, v49
v_lshlrev_b32 v49, 5, v49
v_lshl_add_u32 v48, v48, 7, v49
v_and_b32 v49, 3, {v(V_LANE)}
v_lshl_add_u32 v48, v49, 3, v48
s_lshl_b32 {s(S_MX)}, {s(S_W4)}, 14
v_add_u32 {v(B0)}, {s(S_MX)}, v48
v_xor_b32 {v(B1)}, 64, {v(B0)}
v_xor_b32 v49, 64, v48
s_mul_i32 {s(S_T0)}, {s(S_W4)}, 6144
s_add_u32 {s(S_T0)}, {s(S_T0)}, {L_WA}
v_add_u32 {v(A0)}, {s(S_T0)}, v48
v_add_u32 {v(A1)}, {s(S_T0)}, v49
s_mul_i32 {s(S_T0)}, {s(S_W4)}, 10240
s_add_u32 {s(S_T0)}, {s(S_T0)}, {L_KV}
v_add_u32 {v(A2)}, {s(S_T0)}, v48
v_add_u32 {v(A3)}, {s(S_T0)}, v49
""")
    if S == 15:
        P(f"s_mul_i32 {s(S_T0)}, {s(S_W4)}, 6144\nv_add_u32 {v(EXR)}, {s(S_T0)}, {v(V_L16)}")
        for i in range(1, 4):
            P(f"s_xor_b32 {s(S_T0)}, {s(S_W4)}, {i}\ns_mul_i32 {s(S_T0)}, {s(S_T0)}, 6144\nv_add_u32 {v(EXW+i-1)}, {s(S_T0)}, {v(V_L16)}")
        P(f"""v_and_b32 {v(VOUT)}, 31, {v(V_LANE)}
v_lshlrev_b32 {v(VOUT)}, 10, {v(VOUT)}
v_lshrrev_b32 v48, 5, {v(V_LANE)}
v_lshl_add_u32 {v(VOUT)}, v48, 4, {v(VOUT)}
s_lshl_b32 {s(S_T0)}, {s(S_RB3)}, 16
s_lshr_b32 {s(S_T1)}, {s(S_W4)}, 1
s_lshl_b32 {s(S_T1)}, {s(S_T1)}, 5
s_add_u32 {s(S_T0)}, {s(S_T0)}, {s(S_T1)}
s_lshl_b32 {s(S_T1)}, {s(S_CB)}, 7
s_add_u32 {s(S_T0)}, {s(S_T0)}, {s(S_T1)}
s_and_b32 {s(S_T1)}, {s(S_W4)}, 1
s_lshl_b32 {s(S_T1)}, {s(S_T1)}, 6
s_add_u32 {s(S_T0)}, {s(S_T0)}, {s(S_T1)}
v_add_u32 {v(VOUT)}, {s(S_T0)}, {v(VOUT)}
s_lshl_b32 {s(S_T0)}, {s(S_RB3)}, 17
s_lshl_b32 {s(S_T1)}, {s(S_W4)}, 13
s_add_u32 {s(S_T0)}, {s(S_T0)}, {s(S_T1)}
s_add_u32 {s(S_T0)}, {s(S_T0)}, {WS_O}
v_add_u32 {v(VOG)}, {s(S_T0)}, {v(V_L16)}
s_lshl_b32 {s(S_WB)}, {s(S_W4)}, 17
s_lshl_b32 {s(S_T1)}, {s(S_CB)}, 7
s_add_u32 {s(S_WB)}, {s(S_WB)}, {s(S_T1)}
s_lshl3_add_u32 {s(S_R3)}, {s(S_RB3)}, {s(S_CB)}
s_lshl2_add_u32 {s(S_R3)}, {s(S_R3)}, {s(S_W4)}
s_lshl_b32 {s(S_R3)}, {s(S_R3)}, 6""")
    if S == 18:
        P("s_waitcnt lgkmcnt(0)")
        H.poll(f"v_cmp_ne_u64 vcc, 0, {v(EP,2)}", ep_load)
        P(f"v_readfirstlane_b32 {s(S_EP)}, {v(EP)}\nv_readfirstlane_b32 {s(S_EP+1)}, {v(EP+1)}")
    if S == 19:
        P.add(srd(S_WOA, 8, 524288) + srd(S_WOB, 14, 524288) + srd(S_OUT, 18, 2097152))
    if S == 20:
        P(f"""v_lshrrev_b32 v48, 3, {v(V_LANE)}
v_bfe_u32 v49, {v(V_LANE)}, 4, 1
v_lshlrev_b32 v49, 2, v49
v_and_b32 v50, 7, {v(V_LANE)}
v_xor_b32 v49, v49, v50
v_lshlrev_b32 v49, 4, v49
v_lshl_add_u32 {v(VWO)}, v48, 10, v49
v_and_b32 {v(VKF)}, 32, {v(V_LANE)}
v_lshlrev_b32 {v(VKF)}, 4, {v(VKF)}
v_mul_u32_u24 {v(V1A)}, {KVS}, v50
s_mul_i32 {s(S_MW)}, {s(S_W4)}, {KVH}
s_add_u32 {s(S_MW)}, {s(S_MW)}, {L_KV}
s_add_u32 {s(S_T0)}, {s(S_MW)}, 2048
v_add_u32 {v(V1A)}, {s(S_T0)}, {v(V1A)}
s_lshl_b32 {s(S_T0)}, {s(S_RB)}, 1
v_add_u32 v48, {s(S_T0)}, v50
v_cmp_le_u32 vcc, 8, v48
v_mov_b32 v49, {hex(ONES)}
v_cndmask_b32 {v(V1D)}, 0, v49, vcc
v_mov_b32 {v(V1D+1)}, {v(V1D)}
v_mov_b32 {v(V1D+2)}, {v(V1D)}
v_mov_b32 {v(V1D+3)}, {v(V1D)}
s_mul_i32 {s(S_MA)}, {s(S_W4)}, 6144
s_add_u32 {s(S_MA)}, {s(S_MA)}, {L_WA}
s_mul_i32 {s(S_MB)}, {s(S_W4)}, 10240
s_add_u32 {s(S_MB)}, {s(S_MB)}, {L_KV - 6144}
s_lshl_b32 {s(S_K)}, {s(S_HEAD)}, 5
s_add_u32 {s(S_K)}, {s(S_K)}, {s(S_RB)}
s_lshl_b32 {s(S_K)}, {s(S_K)}, 6
s_add_u32 {s(S_K)}, {s(S_K)}, {WS_FKV}""")
    if S == OPT["gat"] - 1:
        H.spoll_issue(4, S_K); H.spoll(4, S_K, ignore_from=S_RB)
        H.stamp()
    if S == 20:
        P.add([f"v_mov_b32 {v(168+i)}, -1" for i in range(4)])
        P.add(o_store(0, 1, 168, "sent")); P.add(o_store(0, 0, 168, "sent"))
    if S == 23:
        P(f"ds_write_b128 {v(V1A)}, {v(V1D,4)}")
        P.add(WaitTag("sent"))
    if S == OPT["gat"] + OPT["gdel"]:
        emit_gather(0, (0, 1, 2, 3))
if OPT["p1only"]:
    H.finish()
fs = lambda: H.stamp() if OPT["fine"] == 4 else None
P(f"s_setprio {OPT['hprio']}")
emit_gather(1, (4, 5, 6, 7))
def wo_dma(br):
    o = []
    for t in range(16):
        base = S_MX if br else (S_MA if t < 6 else S_MB)
        g = [f"s_add_u32 m0, {s(base)}, {t*1024}", f"s_add_u32 {s(S_T3)}, {s(S_WB)}, {t*8192}"]
        o.append(g + [dma(VWO, S_WOB if br else S_WOA, s(S_T3), 0, "wob" if br else ("woa" if t < 6 else "woc"))])
    return o
woa, wob = wo_dma(0), wo_dma(1)
P.add(wob[:OPT["wb0"]])
P.add(WaitTag("kv")); P.add(WaitLds()); P("s_barrier")
H.stamp()
rest = wob[OPT["wb0"]:] + woa[:6]
if OPT["zbar"]:
    P.add(rest[:OPT["wz"]]); rest = rest[OPT["wz"]:]
    P("s_barrier"); fs(); P.add(flag_store("none", "ob"))
P.add(rest)
fs()
def o_gather(br, tt):
    o = []
    for hs in range(8):
        if hs % 4 == 0: o += [f"s_mov_b32 {s(S_T1)}, {br*65536 + tt*32768 + hs*1024}"]
        o += [ws_ld(v((OFA, OFB)[br]+32*tt+4*hs,4), VOG, s(S_T1), (hs & 3)*1024)]
    return o
def wo_read(dst, hs, br):
    base, off = ((B0, B1), hs*2048) if br else (((A0, A1), hs*2048) if hs < 3 else ((A2, A3), (hs-3)*2048))
    return [f"ds_read_b64_tr_b16 {v(dst+4*ct+2*j,2)}, {v(base[ct])} offset:{off+j*1024}" for ct in range(2) for j in range(2)]
FIN = OFB
def p3(Q, br, tt, first, last, hook=lambda hs: None):
    if first: Q.add(wo_read(WBF, 0, br))
    for hs in range(8):
        b = hs & 1
        rd = wo_read(WBF + 8*(1-b), (hs + 1) & 7, br) if not (last and hs == 7) else []
        for ct in range(2):
            acc = v((FIN, ACC3)[br]+32*tt+16*ct, 16)
            c = acc if hs else ("0" if br else v(ACC3+32*tt+16*ct, 16))
            Q(mfma(acc, v(WBF+8*b+4*ct,4), v((OFA, OFB)[br]+32*tt+4*hs,4), c))
            Q.add(rd[2*ct:2*ct+2])
        hook(hs)
def red_writes(tt):
    keep, ex = FIN + 32*tt, tt * 24576
    send = {1: keep + 16, 2: keep + 8, 3: keep + 24}
    return [f"ds_write_b128 {v(EXW+i-1)}, {v(send[i]+4*q,4)} offset:{ex+(i-1)*2048+q*1024}" for i in (2, 1, 3) for q in range(2)]
def red_reads(tt):
    return [f"ds_read_b128 {v(ACC3+32*tt+8*i+4*q,4)}, {v(EXR)} offset:{tt*24576+i*2048+q*1024}" for q in range(2) for i in range(3)]
def red_finish(tt):
    keep, tmp, o = FIN + 32*tt, ACC3 + 32*tt, []
    for q in range(2):
        for i in range(3):
            o += [f"v_pk_add_f32 {v(keep+4*q+2*k,2)}, {v(keep+4*q+2*k,2)}, {v(tmp+8*i+4*q+2*k,2)}" for k in range(2)]
        o += [f"v_cvt_pk_bf16_f32 {v(tmp+24+2*q+k)}, {v(keep+4*q+2*k)}, {v(keep+4*q+2*k+1)}" for k in range(2)]
    o += [f"v_permlane32_swap_b32 {v(tmp+24)}, {v(tmp+26)}", f"v_permlane32_swap_b32 {v(tmp+25)}, {v(tmp+27)}", f"s_mov_b32 {s(S_T1)}, {tt*32768}",
          f"buffer_store_dwordx4 {v(tmp+24,4)}, {v(VOUT)}, {s(S_OUT,4)}, {s(S_T1)} offen{('', ' sc1', ' nt', ' sc0 sc1')[OPT['outsc']]}"]
    return o
retry_txt = []
def sentinel_scan(tt, hs):
    base = OFA + 32*tt + 4*hs
    first = [f"v_max3_u32 {v(TMP)}, {v(base)}, {v(base+1)}, {v(base+1)}"] if hs == 0 else [f"v_max3_u32 {v(TMP)}, {v(TMP)}, {v(base)}, {v(base+1)}"]
    return first + [f"v_max3_u32 {v(TMP)}, {v(TMP)}, {v(base+2)}, {v(base+3)}"]
def a_pass(tt, last, hook=lambda hs: None):
    test = [f"v_cmp_ne_u32 vcc, -1, {v(TMP)}", "s_cmp_eq_u64 vcc, -1"]
    p3(P, 0, tt, tt == 1, last, lambda hs: (P.add(sentinel_scan(tt, hs)), hook(hs)))
    P.add(test); P(f"s_cbranch_scc0 L_retry{tt}\nL_ok{tt}:")
    Q = Prog()
    Q(f"L_retry{tt}:\ns_mov_b32 {s(S_SPIN)}, 0x20000\ns_waitcnt lgkmcnt(0)\ns_nop 15\nL_again{tt}:"); Q.add(o_gather(0, tt))
    Q(f"s_sub_u32 {s(S_SPIN)}, {s(S_SPIN)}, 1\ns_waitcnt vmcnt(0)\ns_cbranch_scc1 L_redo{tt}")
    for hs in range(8): Q.add(sentinel_scan(tt, hs))
    Q.add(test); Q(f"s_cbranch_scc0 L_again{tt}\nL_redo{tt}:")
    p3(Q, 0, tt, True, last); Q(f"s_waitcnt lgkmcnt(0)\ns_nop 15\ns_branch L_ok{tt}")
    retry_txt.append(finalize(Q))
P(f"s_add_u32 {s(S_K)}, {s(S_R3)}, {WS_FOB}")
if OPT["worder"] == 0:
    P("s_barrier"); fs()
    if OPT["f2by"] and not OPT["zbar"]: P.add(flag_store("none", "ob"))
    P.add(woa[6:11]); H.spoll_issue(8, S_K); P.add(woa[11:]); fs()
    H.spoll(8, S_K); H.stamp()
    P.add(o_gather(1, 0)); P.add(o_gather(1, 1)); fs()
else:
    P("s_barrier"); fs()
    if OPT["f2by"] and not OPT["zbar"]: P.add(flag_store("none", "ob"))
    H.spoll_issue(8, S_K); H.spoll(8, S_K); H.stamp()
    P.add(o_gather(1, 0)); P.add(o_gather(1, 1)); fs()
    P.add(woa[6:]); fs()
P(f"s_setprio {OPT['p3prio']}")
def probe():
    P(f"""s_lshl_b32 {s(S_K)}, {s(S_RB3)}, 17
s_lshl_b32 {s(S_T1)}, {s(S_W4)}, 13
s_add_u32 {s(S_K)}, {s(S_K)}, {s(S_T1)}
s_add_u32 {s(S_K)}, {s(S_K)}, {WS_O}""")
    P.add(WaitLds())
    t = f"    s_mov_b32 {s(S_SPIN)}, 0x20000\nL_probe:\n"
    t += "".join(f"    s_load_dword s{4+i}, s[22:23], {s(S_K)} offset:{i*1024+1020} glc\n" for i in range(8))
    t += f"    s_sub_u32 {s(S_SPIN)}, {s(S_SPIN)}, 1\n    s_waitcnt lgkmcnt(0)\n    s_cbranch_scc1 L_probed\n"
    t += "".join(f"    s_max_u32 s4, s4, s{4+i}\n" for i in range(1, 8))
    t += "    s_cmp_eq_u32 s4, -1\n    s_cbranch_scc1 L_probe\nL_probed:"
    P.add(Raw(t))
def agather():
    if OPT["probe"] == 2: probe()
    P("s_barrier"); fs()
    if OPT["probe"] == 1: probe()
    fs(); P.add(o_gather(0, 1)); P.add(o_gather(0, 0))
if OPT["amode"] == 2: agather()
P.add(WaitTag("wob", "woa", "woc"))
p3(P, 1, 0, True, False)
if OPT["amode"] == 1: agather()
p3(P, 1, 1, False, True)
H.stamp()
if OPT["amode"] == 0: agather()
a_pass(1, False)
H.stamp()
if OPT["amode"]: P("s_barrier")
w1 = red_writes(1)
def tail_hook(hs):
    if 1 <= hs <= 3: P.add(w1[2*hs-2:2*hs])
    if hs == 6: P.add(WaitLds()); P("s_barrier")
a_pass(0, True, tail_hook)
H.stamp()
P.add(red_reads(1)); P.add(red_writes(0)); P.add(red_finish(1)[:14])
P.add(WaitLds()); P("s_barrier")
P.add(red_reads(0)); P.add(red_finish(1)[14:]); P.add(red_finish(0))
H.stamp()
H.finish()

C = Role("C"); P = C.P
T1, T3, T2 = 32, 64, 96
XB, WB = 128, 152
V_AX, V_T1L, V_T1H, V_T3L, V_T3H, V_T2L, V_T2H = 176, 180, 181, 182, 183, 184, 185
V_LO, V_HI = 186, 187
VPK = 224
r5, hh, rr, cc, nh, u0, u1, cm = 128, 129, 130, 131, 132, 133, 134, 135
P("L_crole:")
P.add(late_ids)
if OPT["prio"]: P("s_setprio 1")
P(f"""
v_and_b32 {v(r5)}, 31, {v(V_LANE)}
v_lshrrev_b32 {v(hh)}, 5, {v(V_LANE)}
v_bfe_u32 {v(u0)}, {v(r5)}, 1, 3
v_xor_b32 {v(u0)}, {v(u0)}, {v(hh)}
v_lshlrev_b32 {v(u0)}, 4, {v(u0)}
v_lshl_add_u32 {v(u0)}, {v(r5)}, 7, {v(u0)}
v_add_u32 {v(V_AX)}, {L_X}, {v(u0)}
v_xor_b32 {v(V_AX+1)}, 32, {v(V_AX)}
v_xor_b32 {v(V_AX+2)}, 64, {v(V_AX)}
v_xor_b32 {v(V_AX+3)}, 0x60, {v(V_AX)}
v_bfe_u32 {v(rr)}, {v(V_LANE)}, 2, 2
v_and_b32 {v(cc)}, 3, {v(V_LANE)}
v_bfe_u32 {v(nh)}, {v(V_LANE)}, 4, 1
v_lshl_add_u32 {v(u0)}, {v(hh)}, 3, {v(rr)}
v_xor_b32 {v(u1)}, {s(S_W4)}, {v(rr)}
v_lshlrev_b32 {v(u1)}, 5, {v(u1)}
v_lshl_add_u32 {v(u1)}, {v(cc)}, 3, {v(u1)}
v_lshl_add_u32 {v(u1)}, {v(u0)}, 8, {v(u1)}
v_mul_u32_u24 {v(V_T1L)}, 0x2080, {v(nh)}
v_add_u32 {v(V_T1L)}, {v(V_T1L)}, {v(u1)}
v_add_u32 {v(V_T1H)}, 0x10000, {v(V_T1L)}
v_xor_b32 {v(V_T3L)}, 0x80, {v(V_T1L)}
v_xor_b32 {v(V_T3H)}, 0x80, {v(V_T1H)}
v_lshrrev_b32 {v(u1)}, 1, {v(rr)}
v_lshl_add_u32 {v(u1)}, {v(nh)}, 1, {v(u1)}
v_xor_b32 {v(u1)}, {s(S_W4)}, {v(u1)}
v_lshlrev_b32 {v(u1)}, 5, {v(u1)}
v_lshl_add_u32 {v(u1)}, {v(cc)}, 3, {v(u1)}
v_lshl_add_u32 {v(u1)}, {v(u0)}, 7, {v(u1)}
v_lshl_add_u32 {v(V_T2L)}, {v(nh)}, 13, {v(u1)}
v_add_u32 {v(V_T2H)}, 0x10000, {v(V_T2L)}
v_and_b32 {v(u0)}, 15, {v(V_LANE)}
v_lshlrev_b32 {v(u0)}, 4, {v(u0)}
v_lshl_add_u32 {v(u0)}, {v(hh)}, 8, {v(u0)}
v_lshl_add_u32 {v(V_LO)}, {v(nh)}, 31, {v(u0)}
v_xor_b32 {v(V_HI)}, {OOB}, {v(V_LO)}
v_lshlrev_b32 {v(u0)}, 2, {v(hh)}
v_sub_u32 {v(cm)}, {v(r5)}, {v(u0)}
s_waitcnt lgkmcnt(0)""")
if OPT["wsoff"]: P(f"s_add_u32 s22, s22, {OPT['wsoff'] << 20}\ns_addc_u32 s23, s23, 0")
P.add(entry_stamp())
P(f"""s_memrealtime {s(S_TM,2)}
s_mov_b32 {s(S_C)}, {fhex(QK_SCALE)}
s_mov_b32 {s(S_C+1)}, {fhex(QK_SCALE)}
""")
def l2_prefetch():
    a, b = 140, 141
    o = lines(f"""s_lshr_b32 {s(S_T0)}, s2, 3
s_and_b32 {s(S_T1)}, {s(S_HG)}, 4
s_lshl_b32 {s(S_T1)}, {s(S_T1)}, 7
v_and_b32 {v(a)}, 3, {v(V_LANE)}
v_lshlrev_b32 {v(a)}, 7, {v(a)}
s_cmp_eq_u32 {s(S_W4)}, 2
s_cbranch_scc1 L_pfx
s_cmp_eq_u32 {s(S_W4)}, 3
s_cbranch_scc1 L_pfq
s_cmp_eq_u32 {s(S_W4)}, 0
s_cselect_b32 {s(S_W)}, s6, s12
s_cselect_b32 {s(S_W+1)}, s7, s13
s_mov_b32 {s(S_W+2)}, 1572864
s_mov_b32 {s(S_W+3)}, 0x20000
v_bfe_u32 {v(b)}, {v(V_LANE)}, 2, 1
v_lshl_add_u32 {v(a)}, {v(b)}, 10, {v(a)}
v_lshrrev_b32 {v(b)}, 3, {v(V_LANE)}
v_mul_u32_u24 {v(b)}, 0xc00, {v(b)}
v_add_u32 {v(a)}, {v(a)}, {v(b)}
s_mul_i32 {s(S_T0)}, {s(S_T0)}, {8*3072}
s_add_u32 {s(S_T0)}, {s(S_T0)}, {s(S_T1)}
s_add_u32 {s(S_T0)}, {s(S_T0)}, 1024
buffer_load_dword v190, {v(a)}, {s(S_W,4)}, {s(S_T0)} offen
s_add_u32 {s(S_T0)}, {s(S_T0)}, {256*3072}
buffer_load_dword v191, {v(a)}, {s(S_W,4)}, {s(S_T0)} offen
s_branch L_pfe
L_pfx:
s_mov_b32 {s(S_W)}, s4
s_mov_b32 {s(S_W+1)}, s5
s_mov_b32 {s(S_W+2)}, 2097152
s_mov_b32 {s(S_W+3)}, 0x20000
v_lshrrev_b32 {v(b)}, 2, {v(V_LANE)}
v_lshl_add_u32 {v(a)}, {v(b)}, 10, {v(a)}
s_lshl_b32 {s(S_T0)}, {s(S_T0)}, 14
s_and_b32 {s(S_T1)}, {s(S_RB)}, 24
s_lshl_b32 {s(S_T1)}, {s(S_T1)}, 16
s_add_u32 {s(S_T0)}, {s(S_T0)}, {s(S_T1)}
buffer_load_dword v190, {v(a)}, {s(S_W,4)}, {s(S_T0)} offen
buffer_load_dword v191, {v(a)}, {s(S_W,4)}, {s(S_T0)} offen offset:512
s_branch L_pfe
L_pfq:
s_mov_b32 {s(S_W)}, s6
s_mov_b32 {s(S_W+1)}, s7
s_mov_b32 {s(S_W+2)}, 1572864
s_mov_b32 {s(S_W+3)}, 0x20000
v_lshrrev_b32 {v(b)}, 2, {v(V_LANE)}
v_mul_u32_u24 {v(b)}, 0xc00, {v(b)}
v_add_u32 {v(a)}, {v(a)}, {v(b)}
s_mul_i32 {s(S_T0)}, {s(S_T0)}, {16*3072}
s_add_u32 {s(S_T0)}, {s(S_T0)}, {s(S_T1)}
buffer_load_dword v190, {v(a)}, {s(S_W,4)}, {s(S_T0)} offen
s_mov_b32 {s(S_W)}, s12
s_mov_b32 {s(S_W+1)}, s13
buffer_load_dword v191, {v(a)}, {s(S_W,4)}, {s(S_T0)} offen
L_pfe:""")
    P.add(Raw("\n".join(("" if l.endswith(":") else "    ") + l for l in o)))
    P("s_nop 0")
if OPT["pf"] == 1: l2_prefetch()
P.add(srd(S_WS, 22, WS_SIZE) + srd(S_DBG, 20, 256))
P(f"""s_cmp_eq_u32 s2, 0
s_cselect_b32 {s(S_T2)}, 0, {OOB}
v_lshlrev_b32 v5, 8, v0
v_or_b32 v5, {s(S_T2)}, v5
s_waitcnt lgkmcnt(0)
v_mov_b32 {v(EP)}, {s(S_TM)}
v_mov_b32 {v(EP+1)}, {s(S_TM+1)}
buffer_store_dwordx2 {v(EP,2)}, v5, {s(S_DBG,4)}, 0 offen sc1""")
V_AXW, V_AG, V_GPW, V_GPR, XW, GF, GACC = 4, 8, 9, 13, 240, 248, 190
P(f"""s_lshl_b32 {s(S_T2)}, {s(S_W4)}, 5
v_xor_b32 {v(V_AXW)}, {s(S_T2)}, {v(V_AX)}
v_lshlrev_b32 {v(u0)}, 4, {v(hh)}
s_add_u32 {s(S_T2)}, {s(S_T2)}, {L_G}
v_add_u32 {v(V_AG)}, {s(S_T2)}, {v(u0)}
v_lshlrev_b32 {v(V_GPR)}, 4, {v(r5)}
v_add_u32 {v(V_GPR)}, {L_GP}, {v(V_GPR)}
s_lshl_b32 {s(S_T2)}, {s(S_W4)}, 2
v_add_u32 {v(V_GPW)}, {s(S_T2)}, {v(V_GPR)}
v_mov_b32 {v(GACC)}, 0
v_mov_b32 {v(GACC+1)}, 0""")
for q in range(16):
    P(f"""v_subrev_u32 {v(192+q)}, {8*(q>>2)+(q&3)}, {v(cm)}
v_and_b32 {v(192+q)}, 17, {v(192+q)}
v_cvt_f32_u32 {v(192+q)}, {v(192+q)}
v_mul_f32 {v(192+q)}, {hex(NEG_BIG)}, {v(192+q)}""")
P.add(attn_setup(0, 136))
C.stamp()

CM, QB, KB, VB, KBH, VBH, BP, BPL, BPK, SENT, S_R0 = 192, 248, 240, 32, 80, 84, 176, 88, 88, 220, 24
BS2, BSP2, BO2 = (96, 48), (128, 112), (160, 144)
def b_scores(t):
    kprev = v(KB, 4) if t == 1 else v(KBH, 4)
    return [mfma(v(BS2[t],16), v(KB+4*t,4), v(QB+4*t,4), v(CM,16)), mfma(v(BSP2[t],16), kprev, v(QB+4*t,4), v(CM,16))]
def b_softmax(t):
    S, sp, m, p, pl = BS2[t], BSP2[t], TMP + 2*t, BP + 8*t, BPL + 4*t
    o = [f"v_cndmask_b32 {v(S+q)}, {v(S+q)}, {v(sp+q)}, {s(S_LO16,2)}" for q in range(8, 16)]
    if t == 0:
        o += [f"v_mov_b32 {v(m)}, {hex(NEG_BIG)}"]
        o += [f"v_cndmask_b32 {v(S+q)}, {v(S+q)}, {v(m)}, {s(S_R0,2)}" for q in range(8, 16)]
    o += max_tree(m, range(S, S+16)) + cross_max(m, m+1)
    o += [f"v_pk_add_f32 {v(S+2*q,2)}, {v(S+2*q,2)}, {v(m,2)} op_sel_hi:[1,0] neg_lo:[0,1] neg_hi:[0,1]" for q in range(8)]
    o += [f"v_exp_f32 {v(S+q)}, {v(S+q)}" for q in range(16)]
    o += [f"v_cvt_pk_bf16_f32 {v(p+i)}, {v(S+2*i)}, {v(S+2*i+1)}" for i in range(8)]
    o += [f"v_cndmask_b32 {v(pl+i)}, 0, {v(p+4+i)}, {s(S_LO16,2)}" for i in range(4)]
    o += [f"v_cndmask_b32 {v(p+4+i)}, {v(p+4+i)}, 0, {s(S_LO16,2)}" for i in range(4)]
    return o
def b_pv(t):
    vprev, acc, p = v(VB+4, 4) if t == 1 else v(VBH, 4), v(BO2[t], 16), BP + 8*t
    return [mfma(acc, v(VB+8*t,4), v(p,4), "0"), mfma(acc, v(VB+8*t+4,4), v(p+4,4), acc), mfma(acc, vprev, v(BPL+4*t,4), acc)]
def b_pack(t):
    f = 184 + 2*t
    return o_pack(BO2[t], 8, 0, [f"v_sub_f32 {v(f+1)}, 1.0, {v(G0+t)}", f"v_mul_f32 {v(f)}, {v(f)}, {v(f+1)}"], BPK+4*t, f)
def frag_reads(n):
    b, m = n % 3, n & 31
    j, ux = m >> 2, m & 3
    base = (stage_of(n) % NSLOT) * SLOT
    hi = base >= 65536; off = base - (65536 if hi else 0)
    x = [f"ds_read_b128 {v(XB+8*b+4*tt,4)}, {v(V_AX+ux)} offset:{j*8192+tt*4096}" for tt in range(2)]
    if n < 32:
        w = [f"ds_read_b64_tr_b16 {v(WB+8*b+4*t+2*qd,2)}, {v(((V_T1L,V_T1H),(V_T3L,V_T3H))[t][hi])} offset:{off+(n&1)*4096+qd*1024}"
             for t in range(2) for qd in range(2)]
        return [w[0], x[0], w[1], w[2], x[1], w[3]]
    w = [f"ds_read_b64_tr_b16 {v(WB+8*b+2*qd,2)}, {v((V_T2L,V_T2H)[hi])} offset:{off+ux*2048+qd*512}" for qd in range(2)]
    return [w[0], x[0], w[1], x[1]]
def step_mfmas(n):
    b = n % 3
    x = lambda tt: v(XB+8*b+4*tt, 4)
    c = lambda r: "0" if n in (0, 32) else v(r, 16)
    if n < 32:
        return [mfma(v(T1,16), v(WB+8*b,4), x(0), c(T1)), mfma(v(T3,16), x(0), v(WB+8*b+4,4), c(T3)),
                mfma(v(T1+16,16), v(WB+8*b,4), x(1), c(T1+16)), mfma(v(T3+16,16), x(1), v(WB+8*b+4,4), c(T3+16))]
    return [mfma(v(T2,16), v(WB+8*b,4), x(0), c(T2)), mfma(v(T2+16,16), v(WB+8*b,4), x(1), c(T2+16))]
def kv_publish():
    o = [f"s_lshl_b32 {s(S_T0)}, {s(S_HEAD)}, 17", f"s_lshl_b32 {s(S_T1)}, {s(S_RB)}, 12", f"s_add_u32 {s(S_T0)}, {s(S_T0)}, {s(S_T1)}"]
    for tt in range(2):
        o += [f"v_pk_mul_f32 {v(T1+16*tt+2*i,2)}, {v(T1+16*tt+2*i,2)}, {s(S_C,2)}" for i in range(4)]
        o += [f"v_cvt_pk_bf16_f32 {v(KA+4*tt+i)}, {v(T1+16*tt+2*i)}, {v(T1+16*tt+2*i+1)}" for i in range(4)]
        o += [ws_st(v(KA+4*tt,4), V_L16, s(S_T0), tt*2048, "kv")]
    for tt in range(2):
        for m in range(2):
            o += [f"v_cvt_pk_bf16_f32 {v(VPK+8*tt+4*m+i)}, {v(T3+16*tt+8*m+2*i)}, {v(T3+16*tt+8*m+2*i+1)}" for i in range(4)]
            o += [ws_st(v(VPK+8*tt+4*m,4), V_LO, s(S_T0), tt*2048+1024+m*512, "kv")]
    o += [f"s_lshl_b32 {s(S_T0)}, {s(S_HEAD)}, 15", f"s_lshl_b32 {s(S_T1)}, {s(S_RB)}, 10",
          f"s_add_u32 {s(S_T0)}, {s(S_T0)}, {s(S_T1)}", f"s_add_u32 {s(S_T0)}, {s(S_T0)}, {WS_HB}",
          ws_st(v(VPK+12,4), V_HI, s(S_T0), 512, "kv")]
    for tt in (1, 0):
        o += [f"v_pk_mul_f32 {v(T1+16*tt+8+2*i,2)}, {v(T1+16*tt+8+2*i,2)}, {s(S_C,2)}" for i in range(4)]
        o += [f"v_cvt_pk_bf16_f32 {v(KB+4*tt+i)}, {v(T1+16*tt+8+2*i)}, {v(T1+16*tt+8+2*i+1)}" for i in range(4)]
        if tt == 1: o += [ws_st(v(KB+4,4), V_HI, s(S_T0), 0, "kv")]
    return o

if OPT["p1only"]:
    P("s_barrier\n" * 25 + "s_endpgm")
P("s_barrier")
C.stamp()
P.add(frag_reads(0)); P.add(frag_reads(1))
queue = []
for n in range(64):
    mf = step_mfmas(n)
    if OPT["xp"] == 6 and n < 32: mf = [mf[0], mf[2], mf[1], mf[3]]
    if OPT["xp"] == 7 and n < 32: mf = [mf[0], mf[2], mf[3], mf[1]]
    if OPT["xp"] in (1, 3) and n not in (0, 32): mf = ["s_nop 7"] * len(mf)
    if OPT["xp"] == 4 and n not in (0, 32):
        def split(m):
            d, a, b, c = [x.strip() for x in m.split(None, 1)[1].split(", ")]
            lo = int(d[2:].split(":")[0])
            return "\n".join(f"v_mfma_f32_16x16x32_bf16 {v(lo+4*i,4)}, {a}, {b}, {v(lo+4*i,4)}" for i in range(2))
        mf = [split(m) for m in mf]
    sync = first_of_stage(n + 2) or n == 62
    rd = frag_reads(n + 2) if n < 62 else []
    if OPT["xp"] in (2, 3): rd = []
    if OPT["xp"] == 5: rd = [x for x in rd if "tr_b16" in x] + ["s_nop 0"] * 2
    if n == 20: queue += [ep_load]
    if n < 32 and n % 4 == 1:
        j = n >> 2
        queue += [f"ds_read_b128 {v(GF,4)}, {v(V_AG)} offset:{j*128}",
                  f"ds_read_b128 {v(XW,4)}, {v(V_AXW)} offset:{j*8192}", f"ds_read_b128 {v(XW+4,4)}, {v(V_AXW)} offset:{j*8192+4096}"]
    if n < 32 and n % 4 == 2:
        queue += [f"v_dot2_f32_bf16 {v(GACC+tt)}, {v(XW+4*tt+i)}, {v(GF+i)}, {v(GACC+tt)}" for i in range(4) for tt in range(2)]
    if n == 58:
        queue = [f"ds_write_b32 {v(V_GPW)}, {v(GACC+tt)} offset:{512*tt}" for tt in range(2)] + queue
    if n == 32:
        pub = kv_publish()
        isst = lambda x: (isinstance(x, Ins) and x.kind == "vst") or (isinstance(x, str) and x.startswith("s_"))
        late_st = [x for x in pub if isst(x)] if OPT["pubat"] > 32 else []
        queue += [x for x in pub if not (late_st and isst(x))]
    if n == OPT["pubat"] and n > 32: queue = late_st + queue
    if n == 44:
        queue += [f"v_mov_b32 {v(TMP)}, {hex(ONES)}", f"v_mov_b32 {v(TMP+1)}, {hex(NEG_BIG)}"]
        queue += [f"v_mov_b32 {v(VBH+i)}, {v(TMP)}" for i in range(4)]
        queue += [f"v_cndmask_b32 {v(VB+i)}, {v(VPK+i)}, {v(TMP)}, {s(S_LO16,2)}" for i in range(16)]
        queue += [f"v_cndmask_b32 {v(VA+i)}, {v(TMP)}, {v(VPK+i)}, {s(S_LO16,2)}" for i in range(16)]
        queue += [f"v_cndmask_b32 {v(CMA+q)}, {v(TMP+1)}, 0, {s(S_MASK+2*q,2)}" for q in range(16)]
        queue += [f"v_mov_b32 {v(TMP+2+tt)}, {v(GACC+tt)}" for tt in range(2)]
        queue += [f"v_permlane32_swap_b32 {v(GACC+tt)}, {v(TMP+2+tt)}" for tt in range(2)]
        queue += [f"v_add_f32 {v(GACC+tt)}, {v(GACC+tt)}, {v(TMP+2+tt)}" for tt in range(2)]
    if n == 34 + 4*(OPT["gat"] - 16) - 3:
        queue = [lines(f"""s_lshl_b32 {s(S_T0)}, {s(S_HEAD)}, 15
s_lshl_b32 {s(S_T1)}, {s(S_RB)}, 10
s_add_u32 {s(S_T0)}, {s(S_T0)}, {s(S_T1)}
s_add_u32 {s(S_T0)}, {s(S_T0)}, {WS_HB - 1024}
s_cmp_eq_u32 {s(S_RB)}, 0
s_cselect_b32 {s(S_T0)}, {WS_SIZE}, {s(S_T0)}
s_cselect_b64 {s(S_R0,2)}, {s(S_LO16,2)}, 0""") + [ws_ld(v(KBH,4), V_HI, s(S_T0)), f"s_not_b64 exec, {s(S_LO16,2)}",
                 ws_ld(v(VBH,4), V_HI, s(S_T0), 512), "s_mov_b64 exec, -1"]] + queue
    take = (OPT["take"] if n < 44 else 6) if n >= 32 else 4
    side = queue[:take]; queue = queue[take:]
    def do_sync():
        P.add(WaitLds()); P("s_barrier")
        if OPT["fine"] in (1, 2, 3): C.stamp()
    if sync and OPT["barpos"] and n > 0:
        if n < 32:
            P(mf[0]); P.add(side[0:2]); P(mf[1]); do_sync(); P.add(rd[0:3]); P(mf[2]); P.add(rd[3:6]); P(mf[3]); P.add(side[2:])
        elif n < 58:
            P(mf[0]); P.add(side); P(mf[1]); do_sync(); P.add(rd)
        else:
            P(mf[0]); P(mf[1]); do_sync(); P.add(rd); P.add(side)
    else:
        P(mf[0])
        if sync: do_sync()
        if n < 32:
            P.add(rd[0:2]); P.add(side[0:1]); P(mf[1]); P.add(rd[2:4]); P.add(side[1:2]); P(mf[2]); P.add(rd[4:6]); P(mf[3]); P.add(side[2:])
        else:
            P.add(rd[0:2]); P.add(side[:take//2]); P(mf[1]); P.add(rd[2:4]); P.add(side[take//2:])
    if n == 31: C.stamp()
    if n == OPT["kvflag"]:
        C.poll(f"v_cmp_ne_u64 vcc, 0, {v(EP,2)}", ep_load)
        P.add(flag_store("kv", "kv"))
        C.stamp()
assert not queue
C.stamp()
qcvt = lambda d, src_: [f"v_cvt_pk_bf16_f32 {v(d+i)}, {v(src_+2*i)}, {v(src_+2*i+1)}" for i in range(4)]
gf = gate_finish([0, 1], V_GPR, 160)
P.add(gf[:2])
P.add(qcvt(QB, T2+8) + qcvt(QA, T2) + qcvt(QB+4, T2+24))
sc = interleave(b_scores(0), b_scores(1))
P(sc[1]); P.add(qcvt(QA1, T2+16)); P(sc[0]); P.add(gf[2:9]); P(sc[3]); P.add(gf[9:]); P(sc[2])
sm = interleave(b_softmax(1), b_softmax(0))
P.add(sm[:-16])
pv = interleave(b_pv(1), b_pv(0))
P(mfma(v(MG+16,16), v(KA+4,4), v(QA1,4), v(CMA,16))); P.add(sm[-16:-8]); P(mfma(v(MG,16), v(KA,4), v(QA,4), v(CMA,16))); P.add(sm[-8:])
mx = interleave(*[max_tree((TMP, TMP+2)[t], range(MG+16*t, MG+16*t+16)) + cross_max((TMP, TMP+2)[t], (TMP, TMP+2)[t]+1) for t in (1, 0)])
for i, m in enumerate(pv):
    P(m); P.add(mx[4*i:4*i+4])
ng = [[f"v_pk_add_f32 {v(NEGM+16*t+2*i,2)}, 0, {v((TMP, TMP+2)[t],2)} op_sel_hi:[0,0] neg_lo:[0,1] neg_hi:[0,1]" for i in range(8)] for t in range(2)]
P.add(ng[0])
BPK = 176
P.add(interleave(b_pack(1), b_pack(0)))
P.add(o_store(1, 1, BPK+4, "ob")); P.add(o_store(1, 0, BPK, "ob"))
P.add(ng[1])
C.stamp()
cs = lambda: C.stamp() if OPT["fine"] == 4 else None
cev = {("e1" if OPT["xhs"] < 0 else OPT["xhs"]): lambda: (P.add(WaitTag("ob")) if OPT["f2by"] else None, P.add(WaitLds()), P("s_barrier"))}
if not OPT["f2by"]: cev["e1" if OPT["f2hs"] < 0 else OPT["f2hs"]] = lambda: (cs(), P.add(flag_store("ob", "ob")), cs())
if OPT["zbar"]: cev["e1"] = lambda: (P.add(WaitTag("ob")), P("s_barrier"))
window_attention(C, cev)
P.add(interleave(*[o_pack(OACC2[t], 0, 8, [f"v_mul_f32 {v(TMP+t)}, {v(TMP+t)}, {v(G0+t)}"], PF+4*t, TMP+t) for t in (1, 0)]))
P.add(o_store(0, 1, PF+4, "oa")); P.add(o_store(0, 0, PF, "oa"))
C.stamp()
C.finish()

full = Prog(); full.items = E.items + H.P.items
bodyH = finalize(full, verbose=True)
full = Prog(); full.items = [Ins("s_load_dwordx16 s[4:19], s[0:1], 0"), Ins("global_load_dword v13, v5, s[96:97]")] + C.P.items
bodyC = "\n".join(finalize(full, verbose=True).split("\n")[2:])
print("stamps H", H.ns, "C", C.ns)
hdr = open("cdna_kernels/%s.s.ref" % NAME).read().split("; Override launch")[0]
if OPT["stamps"]: hdr += f"; stamps {C.ns} {H.ns}\n"
txt = hdr + f"""; One launch: 256 workgroups (4 heads x 64 rows each), 8 waves, hand-offs through d_ws tagged with a per-launch epoch.
; @launch grid=(256,1,1) block=(512,1,1) lds={LDS_BYTES}
.amdgcn_target "amdgcn-amd-amdhsa--gfx950"
.text
.globl {NAME}_kernel
.p2align 12
.p2align 8
.type {NAME}_kernel,@function
{NAME}_kernel:
{bodyH}{bodyC}L_end:
    s_endpgm
{''.join(retry_txt)}{''.join(special_txt)}{slow_path()}    .fill 3072, 4, 0xbf800000
.section .rodata,"a"
.p2align 6
.amdhsa_kernel {NAME}_kernel
  .amdhsa_next_free_vgpr 256
  .amdhsa_next_free_sgpr 102
  .amdhsa_accum_offset 256
  .amdhsa_group_segment_fixed_size 0
  .amdhsa_kernarg_size 80
  .amdhsa_user_sgpr_count 2
  .amdhsa_user_sgpr_kernarg_segment_ptr 1
  .amdhsa_system_sgpr_workgroup_id_x 1
.end_amdhsa_kernel
"""
open(sys.argv[1], "w").write(txt)
```

```python
import re

REG_RE = re.compile(r"(?<![\w.])([vas])(?:\[(\d+):(\d+)\]|(\d+))(?![\w\[])")
TRANS = ("v_exp_f32", "v_log_f32", "v_rcp_f32", "v_rsq_f32", "v_sqrt_f32", "v_sin_f32", "v_cos_f32")


def regs_of(txt):
    out = []
    for m in REG_RE.finditer(txt):
        k = m.group(1)
        if m.group(2) is not None:
            out += [(k, i) for i in range(int(m.group(2)), int(m.group(3)) + 1)]
        else:
            out.append((k, int(m.group(4))))
    for name in ("vcc", "exec", "m0"):
        if re.search(r"(?<![\w])" + name + r"(?![\w])", txt):
            out.append((name, 0))
    return out


def split_ops(s):
    ops, depth, cur = [], 0, ""
    for ch in s:
        if ch == "[":
            depth += 1
        if ch == "]":
            depth -= 1
        if ch == "," and depth == 0:
            ops.append(cur.strip()); cur = ""
        else:
            cur += ch
    if cur.strip():
        ops.append(cur.strip())
    return ops


class Ins:
    def __init__(self, text, tag=None):
        self.text = text.strip()
        self.tag = tag
        t = self.text.split(";")[0].strip()
        self.op = t.split()[0] if t else ""
        rest = t[len(self.op):].strip()
        self.ops = split_ops(rest)
        self.kind = self._kind()
        self.reads, self.writes, self.srcc = set(), set(), set()
        self._deps()

    def _kind(self):
        o = self.op
        if o.endswith(":"):
            return "label"
        if o.startswith("v_mfma"):
            return "mfma"
        if o.startswith(TRANS):
            return "trans"
        if o.startswith("v_"):
            return "valu"
        if o.startswith("ds_read"):
            return "dsr"
        if o.startswith("ds_write"):
            return "dsw"
        if o.startswith(("buffer_load", "global_load")):
            return "dma" if re.search(r"\blds\b", self.text) else "vld"
        if o.startswith(("buffer_store", "global_store", "buffer_atomic", "global_atomic")):
            return "vst"
        if o.startswith(("s_load", "s_memtime", "s_memrealtime")):
            return "smem"
        if o in ("s_waitcnt", "s_nop", "s_barrier", "s_endpgm", "s_sleep", "s_setprio"):
            return o
        if o.startswith(("s_cbranch", "s_branch")):
            return "branch"
        if o.startswith("s_"):
            return "salu"
        if o.startswith("."):
            return "directive"
        raise ValueError("unknown op " + self.text)

    def _deps(self):
        k, ops = self.kind, self.ops
        R = lambda xs: set(r for x in xs for r in regs_of(x))
        if k == "mfma":
            self.writes = R(ops[:1]); self.reads = R(ops[1:4]); self.srcc = R(ops[3:4])
            self.srcab = R(ops[1:3])
        elif k in ("valu", "trans"):
            o = self.op
            if o.startswith("v_permlane32_swap") or o.startswith("v_permlane16_swap"):
                self.writes = R(ops[:2]); self.reads = R(ops[:2])
            elif o.startswith(("v_add_co", "v_sub_co", "v_addc_co", "v_subb_co")):
                self.writes = R(ops[:2]); self.reads = R(ops[2:])
            else:
                self.writes = R(ops[:1]); self.reads = R(ops[1:])
                if o.startswith(("v_fmac", "v_dot2c", "v_writelane")):
                    self.reads |= self.writes
            self.reads.add(("exec", 0))
        elif k == "dsr":
            self.writes = R(ops[:1]); self.reads = R(ops[1:])
        elif k == "dsw":
            self.reads = R(ops)
        elif k == "vld":
            self.writes = R(ops[:1]); self.reads = R(ops[1:])
        elif k == "dma":
            self.reads = R(ops) | {("m0", 0)}
        elif k == "vst":
            self.reads = R(ops)
            if self.op.startswith("buffer_"):
                self.data = R(ops[:1])
            else:
                self.data = R(ops[1:2])
        elif k == "smem":
            self.writes = R(ops[:1]); self.reads = R(ops[1:])
        elif k == "salu":
            if self.op.startswith(("s_cmp", "s_bitcmp")):
                self.reads = R(ops)
            elif "saveexec" in self.op:
                self.writes = R(ops[:1]) | {("exec", 0)}; self.reads = R(ops[1:]) | {("exec", 0)}
            else:
                self.writes = R(ops[:1]); self.reads = R(ops[1:])


class WaitTag:
    kind = "waittag"
    def __init__(self, *tags): self.tags = set(tags)


class WaitLds:
    kind = "waitlds"


class Pace:
    kind = "pace"
    def __init__(self, n): self.n = n


class Raw:
    kind = "raw"
    def __init__(self, text): self.text = text


class Prog:
    def __init__(self):
        self.items = []

    def __call__(self, text, tag=None):
        for line in text.strip().split("\n"):
            line = line.strip()
            if line and not line.startswith(";"):
                self.items.append(Ins(line, tag))
        return self

    def add(self, x):
        if isinstance(x, str):
            self(x)
        elif isinstance(x, (list, tuple)):
            for y in x:
                self.add(y)
        else:
            self.items.append(x)
        return self


def slots(ins):
    if ins.kind == "s_nop":
        return int(ins.ops[0], 0) + 1
    if ins.kind in ("label", "directive"):
        return 0
    return 1


def required_gap(p, c):
    need = 0
    vw = {r for r in p.writes if r[0] in "va"}
    sw = {r for r in p.writes if r[0] in ("s", "vcc")}
    cvalu = c.kind in ("valu", "trans")
    if p.kind in ("valu", "trans"):
        if c.kind == "mfma" and vw & c.reads:
            need = max(need, 2)
        if p.kind == "trans" and c.kind != "trans" and (cvalu or c.kind == "mfma") and vw & c.reads:
            need = max(need, 1)
        if cvalu and vw & c.reads:
            if c.op.startswith("v_permlane") or "dpp" in c.text or "row_" in c.text or "quad_perm" in c.text:
                need = max(need, 2)
            if c.op.startswith(("v_readlane", "v_readfirstlane")):
                need = max(need, 1)
        if sw & c.reads:
            if cvalu:
                need = max(need, 4 if c.op.startswith(("v_readlane", "v_writelane")) else 2)
            if c.kind in ("vld", "vst", "dma"):
                need = max(need, 5)
            if c.kind in ("salu", "branch", "smem"):
                need = max(need, 2)
        if p.op.startswith("v_dot") and vw & (c.reads | c.writes) and not (c.op == p.op and not vw & set(regs_of(c.ops[1]) + regs_of(c.ops[2]))):
            need = max(need, 3)
        if ("vcc", 0) in p.writes and c.op.startswith("s_cbranch_vcc"):
            need = max(need, 2)
    if p.kind == "mfma":
        n8 = "32x32" in p.op
        if c.kind == "mfma":
            if p.writes & c.srcab:
                need = max(need, 12 if n8 else 8)
            if p.writes & c.srcc and not (p.writes == c.srcc and p.op == c.op):
                need = max(need, 10 if n8 else 6)
            if p.writes & c.writes and not (p.writes == c.srcc):
                need = max(need, 10 if n8 else 6)
        elif c.kind in ("valu", "trans", "vld", "vst", "dsr", "dsw", "dma"):
            if p.writes & (c.reads | c.writes):
                need = max(need, 12 if n8 else 8)
            if (cvalu or c.kind in ("vld", "dsr")) and p.srcc & c.writes:
                need = max(need, 7 if n8 else 3)
    if p.kind == "salu" and ("m0", 0) in p.writes and c.kind == "dma":
        need = max(need, 1)
    if p.kind == "vst" and re.search(r"x[34]\b", p.op) and p.data & c.writes:
        need = max(need, 2)
    return need


def finalize(prog, verbose=False):
    out, hist = [], []
    vq, lq = [], []
    stats = {"nops": 0, "waits": 0, "maxvm": 0}

    def emit(ins):
        if ins.kind not in ("label", "directive", "s_waitcnt", "s_nop"):
            dist, need = 0, 0
            for p in reversed(hist):
                g = required_gap(p, ins)
                if g > dist:
                    need = max(need, g - dist)
                dist += slots(p)
                if dist >= 20:
                    break
            if need:
                nop = Ins(f"s_nop {need - 1}")
                out.append(nop); hist.append(nop); stats["nops"] += need
        out.append(ins); hist.append(ins)

    def wait(vm=None, lg=None):
        parts = []
        if vm is not None and vm < len(vq):
            del vq[:len(vq) - vm]; parts.append(f"vmcnt({vm})")
        if lg is not None and lg < len(lq):
            lg2 = min(lg, 15)
            del lq[:len(lq) - lg2]; parts.append(f"lgkmcnt({lg2})")
        if parts:
            emit(Ins("s_waitcnt " + " ".join(parts))); stats["waits"] += 1

    pace = 0
    for it in prog.items:
        if it.kind == "pace":
            pace = it.n; continue
        if pace and it.kind in ("vld", "dma", "vst") and len(vq) >= pace:
            wait(vm=pace - 1)
        if it.kind == "raw":
            out.append(it); hist.append(Ins("s_nop 0")); continue
        if it.kind == "waitlds":
            wait(lg=0); continue
        if it.kind == "waittag":
            idx = [i for i, o in enumerate(vq) if o.tag in it.tags]
            if idx:
                wait(vm=len(vq) - 1 - idx[-1])
            continue
        touched = it.reads | it.writes if it.kind not in ("label", "directive") else set()
        vm = lg = None
        idx = [i for i, o in enumerate(vq) if o.kind == "vld" and o.writes & touched]
        if idx:
            vm = len(vq) - 1 - idx[-1]
        idx = [i for i, o in enumerate(lq) if o.writes & touched]
        if idx:
            lg = 0 if any(o.kind == "smem" for o in lq) else len(lq) - 1 - idx[-1]
        wait(vm, lg)
        if it.kind == "s_waitcnt":
            m = re.search(r"vmcnt\((\d+)\)", it.text)
            if m and int(m.group(1)) < len(vq):
                del vq[:len(vq) - int(m.group(1))]
            m = re.search(r"lgkmcnt\((\d+)\)", it.text)
            if m and int(m.group(1)) < len(lq):
                del lq[:len(lq) - int(m.group(1))]
        if it.kind in ("dsr", "dsw") and len(lq) >= 15:
            wait(lg=14)
        if it.kind in ("vld", "vst", "dma") and len(vq) >= 62:
            wait(vm=60)
        emit(it)
        if it.kind in ("vld", "vst", "dma"):
            vq.append(it); stats["maxvm"] = max(stats["maxvm"], len(vq))
        if it.kind in ("dsr", "dsw", "smem"):
            lq.append(it)
    if verbose:
        print(stats)
    lines = []
    for o in out:
        if o.kind == "raw":
            lines.append(o.text.rstrip("\n"))
        elif o.kind == "label":
            lines.append(o.text)
        else:
            lines.append("    " + o.text)
    return "\n".join(lines) + "\n"


def weave(main, fill, slots_after):
    out, fill = [], list(fill)
    for i, m in enumerate(main):
        out.append(m)
        for _ in range(slots_after[i]):
            if fill:
                out.append(fill.pop(0))
    return out, fill
```

```python
import sys, math, struct
from asmdsl import Prog, Ins, WaitTag, WaitLds, Raw, Pace, finalize

NAME = "gated_mix__sliding_block__sliding_local_dilated__prompt"
OPT = dict(t2=0, rtail=1, dfl=0, kvs=20, bsplit=0, pace=0, pace0=0, pacez=0, gat=23, gdel=1, f2hs=-1, f2by=1, wb0=4, zbar=0, wz=8, probe=0, amode=0, worder=0, xhs=3, hprio=2, p3prio=0, wopf=1, tlb=1, icpf=1, cpf=0, take=30, kvflag=42, pubat=32, prio=1, barpos=0,
           xmap=3, rotmode=4, rotmask=7, outsc=0, stamps=0, fine=0, rt=0, xp=0, wsoff=0, amp=-1, ampk=8, amprole=1, ampclk=0, p1only=0, pf=0)
for a in sys.argv[2:]:
    k, v_ = a.split("="); assert k in OPT, k; OPT[k] = int(v_)

WS_KV, WS_HB, WS_O = 0, 4 << 20, 5 << 20
WS_FKV, WS_FOB, WS_FOA = 9 << 20, (9 << 20) + 65536, (9 << 20) + 131072
WS_STAMP, WS_SIZE = 10 << 20, 16 << 20
OOB = 0x80000000
NSLOT, SLOT = 5, 16384
L_X, L_WA, L_G, L_GP, LDS_BYTES = 81920, 131584, 156160, 157184, 158208
KVH, KVS, L_KV, L_WO = 2064, 4 * 2064, 65536, 0
QK_SCALE = 0.25 * math.log2(math.e)
NEG_BIG, ONES = 0xf149f2ca, 0x3f803f80

def fhex(x): return "0x%08x" % struct.unpack("<I", struct.pack("<f", x))[0]
def v(a, n=1): return f"v{a}" if n == 1 else f"v[{a}:{a+n-1}]"
def s(a, n=1): return f"s{a}" if n == 1 else f"s[{a}:{a+n-1}]"
def lines(t): return [l.strip() for l in t.strip().split("\n") if l.strip()]
def mfma(d, a, b, c): return f"v_mfma_f32_32x32x16_bf16 {d}, {a}, {b}, {c}"
def srd(base, ptr, nbytes):
    return [f"s_mov_b32 {s(base)}, {s(ptr)}", f"s_mov_b32 {s(base+1)}, {s(ptr+1)}",
            f"s_mov_b32 {s(base+2)}, {nbytes}", f"s_mov_b32 {s(base+3)}, 0x20000"]
def interleave(*ls):
    o, ls = [], [list(l) for l in ls]
    while any(ls):
        for l in ls:
            if l: o.append(l.pop(0))
    return o

S_X, S_W, S_WS, S_WOA, S_WOB, S_OUT, S_DBG, S_G = 24, 28, 32, 36, 40, 44, 48, 36
S_W4, S_HG, S_RB, S_ROT, S_HEAD, S_RB3, S_CB = 52, 53, 54, 55, 56, 57, 58
S_K, S_T0, S_MW, S_MX, S_T1 = 59, 60, 61, 62, 63
S_MASK, S_T2, S_T3, S_LO16, S_TM, S_C, S_SPIN, S_EP = 64, 96, 97, 98, 100, 10, 3, 26
V_LANE, V_L16, V_STAMP, V_FOFF = 1, 2, 3, 4
EP, FLG = 6, 8
V_AK, V_AV0, V_AV1 = 10, 11, 12
G0 = 14
PM, QA = 16, 24
TMP = 28
SB, NEGM, MG, PB, PF, KF, VF = 32, 64, 96, 128, 144, 152, 192
OACC2 = (160, 176)
KA, QA1, VA = 208, 216, 224

class Role:
    def __init__(self, name):
        self.P, self.name, self.ns, self.nl = Prog(), name, 0, 0
    def stamp(self):
        P = self.P
        if OPT["amp"] == self.ns and OPT["amprole"] == (self.name == "H"):
            P.add(WaitLds())
            P(f"{'s_memtime' if OPT['ampclk'] else 's_memrealtime'} {s(S_TM,2)}\ns_waitcnt lgkmcnt(0)\nv_writelane_b32 {v(V_STAMP)}, {s(S_TM)}, 1")
        if OPT["stamps"]:
            P.add(WaitLds())
            P(f"s_memtime {s(S_TM,2)}\ns_waitcnt lgkmcnt(0)\nv_writelane_b32 {v(V_STAMP)}, {s(S_TM)}, {self.ns + 1}")
            if OPT["rt"]: P(f"s_memrealtime {s(S_TM,2)}\ns_waitcnt lgkmcnt(0)\nv_writelane_b32 {v(V_STAMP)}, {s(S_TM)}, {self.ns + 32}")
        self.ns += 1
    def poll(self, cmp_txt, reload_txt):
        P, n = self.P, f"{self.name}{self.nl}"; self.nl += 1
        P(f"s_mov_b32 {s(S_SPIN)}, 0x40000"); P(cmp_txt)
        P(f"s_cmp_eq_u64 vcc, -1\ns_cbranch_scc1 L_pok{n}")
        P.add(Raw(f"""L_pspin{n}:
    {reload_txt}
    s_sub_u32 {s(S_SPIN)}, {s(S_SPIN)}, 1
    s_cbranch_scc1 L_pok{n}
    s_waitcnt vmcnt(0)
    {cmp_txt}
    s_nop 2
    s_cmp_eq_u64 vcc, -1
    s_cbranch_scc0 L_pspin{n}
L_pok{n}:"""))
    def spoll_issue(self, n, off):
        self.P(f"s_load_dwordx{2*n} {s(4,2*n)}, s[22:23], {s(off)} glc")
    def spoll(self, n, off, ignore_from=None):
        P, lb = self.P, f"{self.name}{self.nl}"; self.nl += 1
        P.add(WaitLds())
        t = f"    s_mov_b32 {s(S_SPIN)}, 0x40000\nL_sp{lb}:\n"
        for i in range(n - 1):
            if ignore_from is not None:
                t += f"    s_cmp_lt_u32 {s(ignore_from)}, {n - i}\n    s_cselect_b64 {s(4+2*i,2)}, {s(S_EP,2)}, {s(4+2*i,2)}\n"
        for i in range(n):
            t += f"    s_xor_b64 {s(4+2*i,2)}, {s(4+2*i,2)}, {s(S_EP,2)}\n"
            if i: t += f"    s_or_b64 s[4:5], s[4:5], {s(4+2*i,2)}\n"
        t += (f"    s_cmp_eq_u64 s[4:5], 0\n    s_cbranch_scc1 L_spok{lb}\n"
              f"    s_load_dwordx{2*n} {s(4,2*n)}, s[22:23], {s(off)} glc\n"
              f"    s_sub_u32 {s(S_SPIN)}, {s(S_SPIN)}, 1\n    s_waitcnt lgkmcnt(0)\n    s_cbranch_scc0 L_sp{lb}\nL_spok{lb}:")
        P.add(Raw(t))
    def finish(self):
        P = self.P
        if OPT["stamps"]:
            P(f"s_memrealtime {s(S_TM,2)}\ns_waitcnt lgkmcnt(0) vmcnt(0)\nv_writelane_b32 {v(V_STAMP)}, {s(S_TM)}, 63")
            P(f"""s_lshl_b32 {s(S_T0)}, s2, 3
s_add_u32 {s(S_T0)}, {s(S_T0)}, {s(S_W4)}
s_add_u32 {s(S_T0)}, {s(S_T0)}, {4 if self.name == "H" else 0}
s_lshl_b32 {s(S_T0)}, {s(S_T0)}, 8
s_add_u32 {s(S_T0)}, {s(S_T0)}, {WS_STAMP}
v_lshlrev_b32 v0, 2, {v(V_LANE)}
buffer_store_dword {v(V_STAMP)}, v0, {s(S_WS,4)}, {s(S_T0)} offen""")
        if OPT["amp"] >= 0 and OPT["amprole"] == (self.name == "H"):
            P(f"""s_cmp_lg_u32 s2, 100
s_cbranch_scc1 L_end
v_readlane_b32 {s(S_T0)}, {v(V_STAMP)}, 0
v_readlane_b32 {s(S_T1)}, {v(V_STAMP)}, 1
s_memrealtime {s(S_TM,2)}
s_sub_u32 {s(S_T1)}, {s(S_T1)}, {s(S_T0)}
s_mul_i32 {s(S_T1)}, {s(S_T1)}, {OPT["ampk"]}
s_lshr_b32 {s(S_T1)}, {s(S_T1)}, {4 if OPT["ampclk"] else 0}
s_min_u32 {s(S_T1)}, {s(S_T1)}, 100000
s_waitcnt lgkmcnt(0)
s_mov_b32 {s(S_T0)}, {s(S_TM)}""")
            P.add(Raw(f"""L_amp{self.name}:
    s_memrealtime {s(S_TM,2)}
    s_waitcnt lgkmcnt(0)
    s_sub_u32 {s(S_K)}, {s(S_TM)}, {s(S_T0)}
    s_cmp_lt_u32 {s(S_K)}, {s(S_T1)}
    s_cbranch_scc1 L_amp{self.name}"""))
        P("s_endpgm")

ws_ld = lambda dst, voff, soff, imm=0, tag=None: Ins(
    f"buffer_load_dwordx4 {dst}, {v(voff)}, {s(S_WS,4)}, {soff} offen{' offset:%d' % imm if imm else ''} sc1", tag)
ws_st = lambda src, voff, soff, imm=0, tag=None: Ins(
    f"buffer_store_dwordx4 {src}, {v(voff)}, {s(S_WS,4)}, {soff} offen{' offset:%d' % imm if imm else ''} sc1", tag)
ep_load = f"buffer_load_dwordx2 {v(EP,2)}, off, {s(S_DBG,4)}, 0 sc1"
flag_load = f"buffer_load_dwordx2 {v(FLG,2)}, {v(V_FOFF)}, {s(S_WS,4)}, {s(S_K)} offen sc1"
flag_cmp = f"v_cmp_eq_u64 vcc, {v(FLG,2)}, {v(EP,2)}"
def flag_store(data_tag, kind):
    if kind == "kv":
        o = lines(f"""v_mul_u32_u24 v0, 56, {v(V_LANE)}
v_add_u32 v0, 88, v0
s_sub_u32 {s(S_T1)}, 31, {s(S_RB)}
s_min_u32 {s(S_T1)}, {s(S_T1)}, 4
v_cmp_gt_u32 vcc, {s(S_T1)}, {v(V_LANE)}
s_cmp_eq_u32 {s(S_RB)}, 0
s_cselect_b32 {s(S_T1)}, 24, {OOB}
v_mov_b32 v5, {s(S_T1)}
v_cndmask_b32 v0, v5, v0, vcc
s_lshl_b32 {s(S_T0)}, {s(S_HEAD)}, 5
s_add_u32 {s(S_T0)}, {s(S_T0)}, {s(S_RB)}
s_lshl_b32 {s(S_T0)}, {s(S_T0)}, 6
s_add_u32 {s(S_T0)}, {s(S_T0)}, {WS_FKV}""")
    else:
        o = lines(f"""v_lshlrev_b32 v0, 8, {v(V_LANE)}
v_cmp_gt_u32 vcc, 8, {v(V_LANE)}
v_mov_b32 v5, {OOB}
v_cndmask_b32 v0, v5, v0, vcc
s_lshl_b32 {s(S_T0)}, {s(S_RB)}, 8
s_add_u32 {s(S_T0)}, {s(S_T0)}, {s(S_HEAD)}
s_lshl_b32 {s(S_T0)}, {s(S_T0)}, 3
s_add_u32 {s(S_T0)}, {s(S_T0)}, { {"ob": WS_FOB, "oa0": WS_FOA, "oa1": WS_FOA + 65536}[kind] }""")
    return o + [WaitTag(data_tag), Ins(f"buffer_store_dwordx2 {v(EP,2)}, v0, {s(S_WS,4)}, {s(S_T0)} offen sc1", "flag")]

def max_tree(dst, regs, init=False):
    regs, o = list(regs), []
    if not init:
        o.append(f"v_max3_f32 {v(dst)}, {v(regs[0])}, {v(regs[1])}, {v(regs[2])}"); regs = regs[3:]
    while len(regs) >= 2:
        o.append(f"v_max3_f32 {v(dst)}, {v(dst)}, {v(regs[0])}, {v(regs[1])}"); regs = regs[2:]
    if regs: o.append(f"v_max_f32 {v(dst)}, {v(dst)}, {v(regs[0])}")
    return o
def cross_max(m, t):
    return [f"v_mov_b32 {v(t)}, {v(m)}", f"v_permlane32_swap_b32 {v(m)}, {v(t)}", f"v_max_f32 {v(m)}, {v(m)}, {v(t)}"]

def attn_setup(t, tmp):
    r5, hh, cm, u = tmp, tmp + 1, tmp + 2, tmp + 3
    o = lines(f"""v_and_b32 {v(r5)}, 31, {v(V_LANE)}
v_lshrrev_b32 {v(hh)}, 5, {v(V_LANE)}
v_lshlrev_b32 {v(u)}, 2, {v(hh)}
v_sub_u32 {v(cm)}, {v(r5)}, {v(u)}
s_mul_i32 {s(S_T2)}, {s(S_W4)}, {KVH}
s_add_u32 {s(S_T2)}, {s(S_T2)}, {L_KV + t*KVS}
v_add_u32 {v(V_AK)}, {s(S_T2)}, {v(V_L16)}
v_and_b32 {v(u)}, 15, {v(V_LANE)}
v_lshlrev_b32 {v(u)}, 4, {v(u)}
v_lshl_add_u32 {v(u)}, {v(hh)}, 8, {v(u)}
v_mov_b32 {v(hh)}, 0x400
v_cndmask_b32 {v(V_AV0)}, {v(hh)}, {v(u)}, {s(S_LO16,2)}
v_mov_b32 {v(hh)}, 0x200
v_cndmask_b32 {v(V_AV1)}, {v(hh)}, {v(u)}, {s(S_LO16,2)}
v_add_u32 {v(V_AV0)}, {s(S_T2)}, {v(V_AV0)}
v_add_u32 {v(V_AV1)}, {s(S_T2)}, {v(V_AV1)}
v_mov_b32 {v(u)}, 0xffff""")
    o += [f"v_cmp_le_i32 {s(S_MASK+2*q,2)}, {8*(q>>2)+(q&3)}, {v(cm)}" for q in range(16)]
    o += [f"v_cndmask_b32 {v(PM+pq)}, 0, {v(u)}, {s(S_MASK+4*pq,2)}" for pq in range(8)]
    o += [f"v_cndmask_b32 {v(PM+pq)}, {v(PM+pq)}, -1, {s(S_MASK+4*pq+2,2)}" for pq in range(8)]
    return o

def gate_finish(tiles, addr, tmp):
    o = [f"ds_read_b128 {v(tmp+4*t,4)}, {v(addr)} offset:{512*t}" for t in tiles]
    seq = []
    for t in tiles:
        b = tmp + 4*t
        seq.append([f"v_add_f32 {v(b)}, {v(b)}, {v(b+1)}", f"v_add_f32 {v(b+2)}, {v(b+2)}, {v(b+3)}",
                    f"v_add_f32 {v(b)}, {v(b)}, {v(b+2)}", f"v_mul_f32 {v(b)}, {fhex(-math.log2(math.e))}, {v(b)}",
                    f"v_exp_f32 {v(b)}, {v(b)}", f"v_add_f32 {v(b)}, 1.0, {v(b)}", f"v_rcp_f32 {v(G0+t)}, {v(b)}"])
    return o + interleave(*seq)

def o_pack(acc, o0, lreg, fac, dst, f):
    return ([f"v_rcp_f32 {v(f)}, {v(acc+lreg)}"] + fac +
            [f"v_mul_f32 {v(acc+o0+i)}, {v(f)}, {v(acc+o0+i)}" for i in range(8)] +
            [f"v_cvt_pk_bf16_f32 {v(dst+i)}, {v(acc+o0+2*i)}, {v(acc+o0+2*i+1)}" for i in range(4)])
def o_store(br, tt, src, tag):
    return [f"s_lshl_b32 {s(S_T0)}, {s(S_RB)}, 17", f"s_lshl_b32 {s(S_T1)}, {s(S_HEAD)}, 10",
            f"s_add_u32 {s(S_T0)}, {s(S_T0)}, {s(S_T1)}", f"s_add_u32 {s(S_T0)}, {s(S_T0)}, {WS_O + br*65536 + tt*32768}",
            ws_st(v(src,4), V_L16, s(S_T0), 0, tag)]

CMA = 64
def window_attention(R, events):
    P = R.P
    Q = lambda t: v((QA, QA1)[t], 4)
    kfr = lambda u: v(KF+4*(u & 1), 4) if u < 8 else v(KA+4*(u-8), 4)
    vfr = lambda u, m: v(VF+8*(u & 1)+4*m, 4) if u < 8 else v(VA+8*(u-8)+4*m, 4)
    kread = lambda u: [f"ds_read_b128 {kfr(u)}, {v(V_AK)} offset:{u*KVS}"] if u < 8 else []
    vread = lambda u: [f"ds_read_b128 {vfr(u,0)}, {v(V_AV0)} offset:{u*KVS+1024}",
                       f"ds_read_b128 {vfr(u,1)}, {v(V_AV1)} offset:{u*KVS+1536}"] if u < 8 else []
    M = (TMP, TMP + 2)
    acc = lambda t: v(OACC2[t], 16)
    negm = lambda t: v(NEGM+16*t, 16)
    exps = lambda S: [f"v_exp_f32 {v(S+i)}, {v(S+i)}" for i in range(16)]
    cvts = lambda d, S: [f"v_cvt_pk_bf16_f32 {v(d+k)}, {v(S+2*k)}, {v(S+2*k+1)}" for k in range(8)]
    ev = lambda key: events.pop(key)() if key in events else None
    P(mfma(v(SB+16,16), kfr(8), Q(1), negm(1))); P(mfma(v(MG,16), kfr(8), Q(0), negm(0)))
    P("s_barrier")
    R.stamp()
    P.add(kread(0) + kread(1) + vread(0) + vread(1))
    ev("pre")
    e, c = exps(SB+16), cvts(PB+8, SB+16)
    P.add(e[0:4]); P(mfma(v(SB,16), kfr(0), Q(0), negm(0))); P.add(kread(2)); P.add(e[4:8]); P.add(c[0:4])
    P(mfma(v(MG+16,16), kfr(9), Q(1), negm(1))); P.add(e[8:12])
    P(mfma(acc(1), vfr(8,0), v(PB+8,4), "0")); P.add(e[12:16]); P.add(c[4:8])
    pend = [mfma(v(SB+16,16), kfr(1), Q(1), negm(1)), mfma(acc(1), vfr(8,1), v(PB+12,4), acc(1))]
    for t in range(2):
        g = MG + 16*t
        seq = [f"v_cndmask_b32 {v(g+i)}, {v(SB+16*t+i)}, {v(g+i)}, {s(S_MASK+2*i,2)}" for i in range(16)]
        seq += [[mfma(v(SB+16*t,16), kfr(1+t), Q(t), negm(t))] + (kread(3) if t == 0 else [])]
        seq += exps(g) + cvts(PF, g)
        seq += [f"v_and_b32 {v(PB+8*t+i)}, {v(PM+i)}, {v(PF+i)}" for i in range(8)]
        seq += [f"v_xor_b32 {v(g+i)}, {v(PF+i)}, {v(PB+8*t+i)}" for i in range(8)]
        at = (0, 8) if t == 0 else (1, 9, 21, 26)
        for i, x in enumerate(seq):
            P.add(x)
            if i in at: P.add(pend.pop(0))
        pend = [mfma(acc(t), vfr(8+t,0), v(PB+8*t,4), acc(1) if t else "0"), mfma(acc(t), vfr(8+t,1), v(PB+8*t+4,4), acc(t)),
                mfma(acc(t), vfr(t,0), v(g,4), acc(t)), [mfma(acc(t), vfr(t,1), v(g+4,4), acc(t))] + (vread(2) if t == 0 else [])]
    R.stamp()
    if OPT["t2"]: P("s_barrier")
    ev("e1")
    for hs in range(13):
        t = hs & 1; u = (hs >> 1) + 1 + t
        S, Pp = SB + 16*t, PB + 8*t
        e, c = exps(S), cvts(Pp, S)
        nxt = None
        if t == 0 and 0 < hs < 12: nxt = [mfma(v(SB+16,16), kfr(u+1), Q(1), negm(1))]
        if t == 1: nxt = [mfma(v(SB,16), kfr(u), Q(0), negm(0))] + kread(u+2)
        if hs == 0:
            P.add(e[0:2]); P.add(pend[0]); P.add(e[2:5]); P.add(pend[1]); P.add(e[5:8]); P.add(pend[2])
            P.add(c[0:4]); P.add(e[8:10]); P.add(pend[3]); P.add(e[10:14])
            P(mfma(acc(t), vfr(u,0), v(Pp,4), acc(t))); P.add(e[14:16]); P.add(c[4:8])
        else:
            P.add(e[0:2]); P.add(pend); P.add(e[2:6])
            if nxt: P.add(nxt)
            P.add(e[6:8]); P.add(c[0:4]); P.add(e[8:10])
            P(mfma(acc(t), vfr(u,0), v(Pp,4), acc(t)))
            P.add(e[10:16]); P.add(c[4:8])
        pend = [mfma(acc(t), vfr(u,1), v(Pp+4,4), acc(t))] + (vread(u+2) if t == 0 else [])
        ev(hs)
    P.add(pend)
    assert not events, events
    P(f"s_mov_b32 {s(S_T1)}, 0x7b800000")
    for t in (1, 0):
        o, m = OACC2[t], M[t]
        P.add([f"v_add_f32 {v(m)}, abs({v(o)}), abs({v(o+8)})", f"v_add_f32 {v(m+1)}, abs({v(o+1)}), abs({v(o+2)})"] +
              [f"v_add_f32 {v(m+(i&1))}, {v(m+(i&1))}, abs({v(o+i)})" for i in range(3, 8)] + [f"v_add_f32 {v(m)}, {v(m)}, {v(m+1)}"])
    P(f"v_add_f32 {v(M[0])}, {v(M[0])}, {v(M[1])}\nv_cmp_lt_f32 vcc, {v(M[0])}, {s(S_T1)}")
    P("s_cmp_eq_u64 vcc, -1\ns_cbranch_scc0 L_exact0\nL_back:")
    R.stamp()

def slow_path():
    return exact_attention(0) + exact_attention(1) + "    s_branch L_back\n"

def exact_attention(t):
    F = Prog(); q, M, acc = v((QA, QA1)[t], 4), TMP, v(OACC2[t], 16)
    KO, VO, G = TMP + 2, TMP + 3, S_T0
    def tile(rel, kdst, vdst):
        o = [f"s_add_i32 {s(S_K)}, {s(G)}, {rel}", f"s_cmp_ge_i32 {s(S_K)}, 0", f"s_cselect_b64 vcc, -1, 0",
             f"s_cselect_b32 {s(S_TM)}, {hex(ONES)}, 0", f"s_max_i32 {s(S_K)}, {s(S_K)}, 0", f"s_lshl_b32 {s(S_K)}, {s(S_K)}, 11",
             f"s_lshl_b32 {s(S_T1)}, {s(S_HEAD)}, 17", f"s_add_u32 {s(S_K)}, {s(S_K)}, {s(S_T1)}",
             f"v_and_b32 {v(KO)}, 0x200, {v(V_L16)}", f"v_cndmask_b32 {v(KO)}, {v(KO)}, {v(V_L16)}, vcc", ws_ld(v(kdst,4), KO, s(S_K))]
        if vdst is not None:
            o += [f"v_mov_b32 {v(vdst+i)}, {s(S_TM)}" for i in range(8)]
            o += [f"s_cmp_lg_u32 {s(S_TM)}, 0", f"s_cselect_b32 {s(S_K)}, {s(S_K)}, {WS_SIZE}", f"s_mov_b64 exec, {s(S_LO16,2)}",
                  ws_ld(v(vdst,4), VO, s(S_K), 1024), ws_ld(v(vdst+4,4), VO, s(S_K), 1536), "s_mov_b64 exec, -1"]
        return o
    F(f"L_exact{t}:\ns_waitcnt vmcnt(0) lgkmcnt(0)\ns_nop 15")
    F(f"""s_lshl_b32 {s(G)}, {s(S_RB)}, 1
s_sub_u32 {s(G)}, {s(G)}, {8 - t}
v_lshrrev_b32 {v(VO)}, 1, {v(V_L16)}
v_and_b32 {v(VO)}, 0x100, {v(VO)}
v_and_b32 {v(KO)}, 0xf0, {v(V_L16)}
v_or_b32 {v(VO)}, {v(VO)}, {v(KO)}""")
    F.add(tile(8, KF, VF)); F.add(tile(0, KF+4, VF+8))
    F(mfma(v(MG,16), v(KF,4), q, "0")); F(mfma(v(SB,16), v(KF+4,4), q, "0"))
    F.add([f"v_cndmask_b32 {v(MG+i)}, {v(SB+i)}, {v(MG+i)}, {s(S_MASK+2*i,2)}" for i in range(16)])
    F.add(max_tree(M, range(MG, MG+16)))
    F(f"s_mov_b32 {s(S_TM+1)}, 7\nL_exact_m{t}:\ns_add_u32 {s(G)}, {s(G)}, 1")
    F.add(tile(0, KF, None))
    F(mfma(v(SB,16), v(KF,4), q, "0"))
    F.add(max_tree(M, range(SB, SB+16), init=True))
    F(f"s_sub_u32 {s(S_TM+1)}, {s(S_TM+1)}, 1\ns_cmp_lg_u32 {s(S_TM+1)}, 0\ns_cbranch_scc1 L_exact_m{t}")
    F.add(cross_max(M, M+1))
    F.add([f"v_sub_f32 {v(MG+i)}, {v(MG+i)}, {v(M)}" for i in range(16)])
    F.add([f"v_exp_f32 {v(MG+i)}, {v(MG+i)}" for i in range(16)])
    F.add([f"v_cvt_pk_bf16_f32 {v(PF+i)}, {v(MG+2*i)}, {v(MG+2*i+1)}" for i in range(8)])
    F.add([f"v_and_b32 {v(PB+i)}, {v(PM+i)}, {v(PF+i)}" for i in range(8)])
    F.add([f"v_xor_b32 {v(PF+i)}, {v(PF+i)}, {v(PB+i)}" for i in range(8)])
    F(mfma(acc, v(VF,4), v(PB,4), "0")); F(mfma(acc, v(VF+4,4), v(PB+4,4), acc))
    F(mfma(acc, v(VF+8,4), v(PF,4), acc)); F(mfma(acc, v(VF+12,4), v(PF+4,4), acc))
    F(f"s_sub_u32 {s(G)}, {s(G)}, 7\ns_mov_b32 {s(S_TM+1)}, 7\ns_nop 15\nL_exact_e{t}:\ns_add_u32 {s(G)}, {s(G)}, 1")
    F.add(tile(0, KF, VF))
    F(mfma(v(SB,16), v(KF,4), q, "0"))
    F.add([f"v_sub_f32 {v(SB+i)}, {v(SB+i)}, {v(M)}" for i in range(16)])
    F.add([f"v_exp_f32 {v(SB+i)}, {v(SB+i)}" for i in range(16)])
    F.add([f"v_cvt_pk_bf16_f32 {v(PB+i)}, {v(SB+2*i)}, {v(SB+2*i+1)}" for i in range(8)])
    F(mfma(acc, v(VF,4), v(PB,4), acc)); F(mfma(acc, v(VF+4,4), v(PB+4,4), acc))
    F(f"s_nop 15\ns_sub_u32 {s(S_TM+1)}, {s(S_TM+1)}, 1\ns_cmp_lg_u32 {s(S_TM+1)}, 0\ns_cbranch_scc1 L_exact_e{t}")
    return finalize(F)

E = Prog()
hb = {4: 2, 3: 1, 2: 0, 1: 3}[OPT["xmap"]]
if OPT["stamps"] or OPT["amp"] >= 0:
    E("s_memtime s[64:65]\ns_memrealtime s[66:67]")
def entry_stamp():
    if OPT["stamps"]:
        return [f"v_mov_b32 {v(V_STAMP)}, 0", f"v_writelane_b32 {v(V_STAMP)}, s64, 0", f"v_writelane_b32 {v(V_STAMP)}, s66, 62"]
    if OPT["amp"] >= 0:
        return [f"v_mov_b32 {v(V_STAMP)}, 0", f"v_writelane_b32 {v(V_STAMP)}, {'s64' if OPT['ampclk'] else 's66'}, 0"]
    return []
code_pf = f"""s_getpc_b64 {s(S_T2,2)}
L_pc:
s_lshl2_add_u32 {s(S_T1)}, {s(S_T0)}, {s(S_W4)}
s_and_b32 {s(S_T1)}, {s(S_T1)}, 63
s_lshl_b32 {s(S_T1)}, {s(S_T1)}, 9
s_sub_u32 {s(S_T2)}, {s(S_T2)}, L_pc-{NAME}_kernel
s_subb_u32 {s(S_T3)}, {s(S_T3)}, 0
v_and_b32 v5, 3, {v(V_LANE)}
v_lshl_add_u32 v5, v5, 7, {s(S_T1)}
global_load_dword v13, v5, {s(S_T2,2)}"""
if OPT["cpf"] == 2:
    E(f"""s_getpc_b64 {s(S_T2,2)}
s_bfe_u32 {s(S_T1)}, s2, 0x50003
v_lshrrev_b32 v5, 6, v0
v_lshlrev_b32 v5, 7, v5
v_lshl_add_u32 v5, {s(S_T1)}, 10, v5
global_load_dword v13, v5, {s(S_T2,2)}""")
if OPT["cpf"] == 3:
    E(f"""s_getpc_b64 {s(S_T2,2)}
s_bfe_u32 {s(S_T1)}, s2, 0x30003
v_lshrrev_b32 v5, 4, v0
v_lshlrev_b32 v5, 7, v5
v_lshl_add_u32 v5, {s(S_T1)}, 12, v5
global_load_dword v13, v5, {s(S_T2,2)}""")
E(f"""
s_cmp_ge_u32 s2, 256
s_cbranch_scc1 L_end
s_load_dwordx16 s[4:19], s[0:1], 0
s_load_dwordx4 s[20:23], s[0:1], 64
v_lshrrev_b32 v4, 6, v0
v_and_b32 {v(V_LANE)}, 63, v0
s_lshr_b32 {s(S_T0)}, s2, 3
v_readfirstlane_b32 {s(S_MX)}, v4
""")
E(f"""
s_and_b32 {s(S_T1)}, s2, {(8 >> hb) - 1}
s_lshl_b32 {s(S_HG)}, {s(S_T1)}, {hb}
s_and_b32 {s(S_K)}, {s(S_T0)}, {(1 << hb) - 1}
s_add_u32 {s(S_HG)}, {s(S_HG)}, {s(S_K)}
s_bfe_u32 {s(S_K)}, s2, {hex((hb << 16) | (3 - hb))}
s_lshl_b32 {s(S_RB)}, {s(S_K)}, {5 - hb}
s_lshr_b32 {s(S_ROT)}, {s(S_T0)}, {hb}
s_add_u32 {s(S_RB)}, {s(S_RB)}, {s(S_ROT)}
s_and_b32 {s(S_W4)}, {s(S_MX)}, 3
""")
if OPT["cpf"] == 1:
    E(f"""s_cmp_lt_u32 {s(S_MX)}, 4
s_cbranch_scc0 L_hrole""")
    E(code_pf)
    E("s_branch L_crole\nL_hrole:")
elif OPT["cpf"] >= 4:
    E(f"""s_cmp_lt_u32 {s(S_MX)}, 4
s_cbranch_scc0 L_hrole
s_getpc_b64 {s(S_T2,2)}
L_pc:
s_lshl2_add_u32 {s(S_T1)}, {s(S_T0)}, {s(S_W4)}
s_lshl_b32 {s(S_T1)}, {s(S_T1)}, 8
s_sub_u32 {s(S_T2)}, {s(S_T2)}, L_pc-{NAME}_kernel
s_subb_u32 {s(S_T3)}, {s(S_T3)}, 0
s_load_dword s70, {s(S_T2,2)}, {s(S_T1)}
s_add_u32 {s(S_T1)}, {s(S_T1)}, 128
s_load_dword s71, {s(S_T2,2)}, {s(S_T1)}""")
    if OPT["cpf"] == 5:
        E("s_waitcnt lgkmcnt(0)")
        for i, ptr in enumerate((6, 12, 4, 16, 20, 8, 14, 18, 22)):
            E(f"s_load_dword s{72+i}, {s(ptr,2)}, 0")
        for i in range(1, 5):
            E(f"s_mov_b32 {s(S_T1)}, {i << 21}\ns_load_dword s{80+i}, s[22:23], {s(S_T1)}")
    E("s_branch L_crole\nL_hrole:")
else:
    E(f"s_cmp_lt_u32 {s(S_MX)}, 4\ns_cbranch_scc1 L_crole")
late_ids = lines(f"""
s_lshr_b32 {s(S_T0)}, s2, 3
s_and_b32 {s(S_RB3)}, s2, 7
s_lshl_b32 {s(S_RB3)}, {s(S_RB3)}, 2
s_lshr_b32 {s(S_T1)}, {s(S_T0)}, 3
s_add_u32 {s(S_RB3)}, {s(S_RB3)}, {s(S_T1)}
s_and_b32 {s(S_CB)}, {s(S_T0)}, 7
s_lshl_b32 {s(S_HEAD)}, {s(S_HG)}, 2
s_add_u32 {s(S_HEAD)}, {s(S_HEAD)}, {s(S_W4)}
s_mov_b32 {s(S_LO16)}, 0xffff
s_mov_b32 {s(S_LO16+1)}, 0xffff
v_lshlrev_b32 {v(V_L16)}, 4, {v(V_LANE)}
""")
rot_code = {
 0: f"s_and_b32 {s(S_ROT)}, {s(S_ROT)}, {OPT['rotmask']}",
 1: f"s_and_b32 {s(S_ROT)}, s2, 7",
 4: f"s_add_u32 {s(S_ROT)}, {s(S_ROT)}, {s(S_HG)}\ns_and_b32 {s(S_ROT)}, {s(S_ROT)}, 7",
 5: f"s_add_u32 {s(S_ROT)}, {s(S_ROT)}, {s(S_HG)}\ns_and_b32 {s(S_ROT)}, {s(S_ROT)}, 3\ns_lshl_b32 {s(S_ROT)}, {s(S_ROT)}, 1",
 6: f"s_add_u32 {s(S_ROT)}, {s(S_ROT)}, {s(S_HG)}\ns_and_b32 {s(S_ROT)}, {s(S_ROT)}, 1\ns_lshl_b32 {s(S_ROT)}, {s(S_ROT)}, 2",
}[OPT["rotmode"]]

def stage_of(n): return n >> 1 if n < 32 else 16 + ((n - 32) >> 2)
def first_of_stage(n): return n < 64 and (n == 0 or stage_of(n) != stage_of(n - 1))

H = Role("H"); P = H.P
VX, VW1, VW2 = 160, 162, 166
V_AXW, V_AG, V_GPW, GACC, XW, GF = 170, 171, 172, 174, 176, 184
i3, i4, p7, t0, t1, t2 = 32, 33, 34, 35, 36, 37
def raw(i):
    if OPT["fine"] == 3: P(f"s_memtime s[{68+2*i}:{69+2*i}]")
raw(0)
P(rot_code)
P(f"""
v_lshrrev_b32 {v(i3)}, 3, {v(V_LANE)}
v_lshrrev_b32 {v(i4)}, 4, {v(V_LANE)}
v_and_b32 {v(p7)}, 7, {v(V_LANE)}
s_lshl_b32 {s(S_T0)}, {s(S_W4)}, 4
v_add_u32 {v(t0)}, {s(S_T0)}, {v(i3)}
v_lshlrev_b32 {v(t0)}, 10, {v(t0)}
v_xor_b32 {v(t1)}, {v(p7)}, {v(i4)}
v_lshl_add_u32 {v(VX)}, {v(t1)}, 4, {v(t0)}
v_xor_b32 {v(VX+1)}, 64, {v(VX)}
v_add_u32 {v(VX+1)}, {0x2000 - 1024}, {v(VX+1)}
s_lshr_b32 {s(S_T0)}, {s(S_W4)}, 1
s_and_b32 {s(S_T1)}, {s(S_W4)}, 1
s_lshl_b32 {s(S_K)}, {s(S_T0)}, 4
v_add_u32 {v(t0)}, {s(S_K)}, {v(i4)}
v_mul_u32_u24 {v(t0)}, 0xc00, {v(t0)}
v_lshlrev_b32 {v(t1)}, 1, {v(i4)}
v_xor_b32 {v(t1)}, {v(t1)}, {v(p7)}
v_lshl_add_u32 {v(t0)}, {v(t1)}, 4, {v(t0)}
v_and_b32 {v(t1)}, 1, {v(i3)}
v_xor_b32 {v(t1)}, {s(S_T1)}, {v(t1)}
v_lshlrev_b32 {v(t1)}, 10, {v(t1)}
s_lshl_b32 {s(S_T2)}, {s(S_HG)}, 7
s_add_u32 {s(S_K)}, {s(S_T2)}, 1024
v_add3_u32 {v(VW1)}, {v(t0)}, {v(t1)}, {s(S_K)}
v_add_u32 {v(VW1+1)}, {12288 - 1024}, {v(VW1)}
v_add_u32 {v(VW1+2)}, {2*(12288 - 1024)}, {v(VW1)}
v_add_u32 {v(VW1+3)}, {3*(12288 - 1024)}, {v(VW1)}
s_lshl_b32 {s(S_MW)}, {s(S_T1)}, 13
s_lshl_b32 {s(S_K)}, {s(S_T0)}, 12
s_add_u32 {s(S_MW)}, {s(S_MW)}, {s(S_K)}
s_lshl_b32 {s(S_MX)}, {s(S_W4)}, 11
s_add_u32 {s(S_MX)}, {s(S_MX)}, {L_X}""")
raw(1)
P("s_waitcnt lgkmcnt(0)")
if OPT["wsoff"]: P(f"s_add_u32 s22, s22, {OPT['wsoff'] << 20}\ns_addc_u32 s23, s23, 0")
raw(2)
P.add(entry_stamp())
P.add(srd(S_X, 4, 2097152))
P(f"""s_cmp_eq_u32 {s(S_T1)}, 0
s_cselect_b32 {s(S_W)}, s6, s12
s_cselect_b32 {s(S_W+1)}, s7, s13
s_mov_b32 {s(S_W+2)}, 1572864
s_mov_b32 {s(S_W+3)}, 0x20000""")
if OPT["fine"] != 3: H.stamp()
def dma(voff, rsrc, soff, imm, tag, flags=""):
    flags = flags or ("", " sc1", " nt", " sc0", " sc0 sc1")[OPT["dfl"]]
    return Ins(f"buffer_load_dwordx4 {v(voff)}, {s(rsrc,4)}, {soff} offen{' offset:%d' % imm if imm else ''}{flags} lds", tag)
def x_dma(j):
    return [f"s_add_u32 {s(S_K)}, {s(S_ROT)}, {j}", f"s_and_b32 {s(S_K)}, {s(S_K)}, 7", f"s_lshl_b32 {s(S_K)}, {s(S_K)}, 7",
            f"s_lshl_b32 {s(S_T2)}, {s(S_RB)}, 16", f"s_add_u32 m0, {s(S_MX)}, {j*8192}", f"s_add_u32 {s(S_K)}, {s(S_K)}, {s(S_T2)}",
            dma(VX, S_X, s(S_K), 0, f"x{j}"), dma(VX+1, S_X, s(S_K), 1024, f"x{j}")]
def w_dma(S):
    if S < 16:
        o = [f"s_lshl_b32 {s(S_T3)}, {s(S_ROT)}, 1", f"s_add_u32 {s(S_T3)}, {s(S_T3)}, {S}", f"s_and_b32 {s(S_T3)}, {s(S_T3)}, 15"]
    else:
        o = [f"s_add_u32 {s(S_T3)}, {s(S_ROT)}, {S-16}", f"s_and_b32 {s(S_T3)}, {s(S_T3)}, 7"]
    o += [f"s_add_u32 m0, {s(S_MW)}, {(S % NSLOT)*SLOT}", f"s_mul_i32 {s(S_T3)}, {s(S_T3)}, {(32 if S < 16 else 64)*3072}"]
    return o + [dma((VW1 if S < 16 else VW2) + t, S_W, s(S_T3), t*1024, f"w{S}") for t in range(4)]
P.add(x_dma(0)); raw(3)
P.add(w_dma(0)); raw(4)
P.add(w_dma(1)); raw(5)
P(f"""s_lshl_b32 {s(S_K)}, {s(S_ROT)}, 3
v_add_u32 {v(t2)}, {s(S_K)}, {v(V_LANE)}
v_and_b32 {v(t2)}, 63, {v(t2)}
v_lshlrev_b32 {v(t2)}, 4, {v(t2)}""")
P.add(srd(S_G, 16, 1024)); P(f"s_mov_b32 m0, {L_G}"); P.add(dma(t2, S_G, "0", 0, "w1"))
P.add(late_ids)
h_misc = lines(f"""
s_lshr_b32 {s(S_T0)}, {s(S_W4)}, 1
s_and_b32 {s(S_T1)}, {s(S_W4)}, 1
s_lshl_b32 {s(S_T0)}, {s(S_T0)}, 5
v_add_u32 {v(t0)}, {s(S_T0)}, {v(i3)}
v_mul_u32_u24 {v(t0)}, 0xc00, {v(t0)}
v_and_b32 {v(t1)}, 1, {v(i4)}
s_lshl_b32 {s(S_T1)}, {s(S_T1)}, 1
v_add_u32 {v(t1)}, {s(S_T1)}, {v(t1)}
v_lshlrev_b32 {v(t1)}, 1, {v(t1)}
v_xor_b32 {v(t1)}, {v(t1)}, {v(p7)}
v_lshl_add_u32 {v(t0)}, {v(t1)}, 4, {v(t0)}
s_lshl_b32 {s(S_T0)}, {s(S_HG)}, 7
v_add_u32 {v(VW2)}, {s(S_T0)}, {v(t0)}
v_add_u32 {v(VW2+1)}, {24576 - 1024}, {v(VW2)}
v_add_u32 {v(VW2+2)}, {2*(24576 - 1024)}, {v(VW2)}
v_add_u32 {v(VW2+3)}, {3*(24576 - 1024)}, {v(VW2)}
""") + srd(S_WS, 22, WS_SIZE) + srd(S_DBG, 20, 256)
P.add(h_misc)
if OPT["fine"] == 3:
    raw(6); P("s_waitcnt vmcnt(9)"); raw(7); P("s_waitcnt vmcnt(5)"); raw(8); P("s_waitcnt lgkmcnt(0)")
    for i in range(9):
        P(f"v_writelane_b32 {v(V_STAMP)}, s{68+2*i}, {i+1}")
    H.ns = 9
VWO, VKF, V1A, V1D, V_MB, V_HB = 160, 161, 162, 164, 12, 13
txt_of = lambda x: x.text if isinstance(x, Ins) else x
special_txt = []
def gather(tiles, special):
    o = []
    if 1 in tiles:
        o += [f"s_lshl_b32 {s(S_K)}, {s(S_HEAD)}, 17", f"s_lshl_b32 {s(S_T1)}, {s(S_RB)}, 12",
              f"s_add_u32 {s(S_T2)}, {s(S_K)}, {s(S_T1)}", f"s_sub_u32 {s(S_T2)}, {s(S_T2)}, {8*2048}"]
    for u in tiles:
        tag = "kv" if u < 4 or not OPT["t2"] else "kvb"
        o += [f"s_add_u32 {s(S_T0)}, {s(S_T2)}, {u*2048}", f"s_add_u32 m0, {s(S_MW)}, {u*KVS}"]
        if special:
            o += [f"s_cmp_ge_u32 {s(S_RB)}, {(8-u+1)//2}", f"s_cbranch_scc1 L_gk{u}",
                  dma(VKF, S_WS, s(S_K), 0, None, " sc1"), f"s_mov_b32 {s(S_T0)}, {WS_SIZE}", f"s_branch L_gk{u}e", f"L_gk{u}:",
                  dma(V_L16, S_WS, s(S_T0), 0, None, " sc1"), f"L_gk{u}e:"]
        else:
            o += [dma(V_L16, S_WS, s(S_T0), 0, tag, " sc1")]
        o += [dma(V_L16, S_WS, s(S_T0), 1024, tag, " sc1")]
    return o
def emit_gather(n, tiles):
    P(f"s_cmp_lt_u32 {s(S_RB)}, 4\ns_cbranch_scc1 L_gspecial{n}")
    P.add(gather(tiles, False)); P(f"L_gdone{n}:")
    special_txt.append(f"L_gspecial{n}:\n" + "\n".join(("" if txt_of(x).endswith(":") else "    ") + txt_of(x) for x in gather(tiles, True))
                       + f"\n    s_branch L_gdone{n}\n")
S_R3, S_WB, S_MA, S_MB = 24, 25, 30, 31
B0, B1, A0, A1, A2, A3, VOG, EXW, EXR, VOUT = 16, 17, 24, 25, 26, 27, 18, 20, 23, 19
ACC3, OFB, OFA, WBF = 32, 96, 192, 176
issued_w, issued_x = 2, 1

for S in range(25):
    if S < 24:
        P.add(WaitTag(f"w{S}", f"x{S >> 1}" if S < 16 else "none"))
    if S < 24: P.add(WaitLds())
    P("s_barrier")
    if OPT["fine"] in (1, 2, 3) or S in (0, 16, 24): H.stamp()
    mark = len(P.items)
    top = {0: 3}.get(S, S + 4)
    while issued_w <= min(top, 23):
        if issued_w < 16 and issued_w % 2 == 0 and issued_x <= issued_w // 2:
            P.add(x_dma(issued_x)); issued_x += 1
        P.add(w_dma(issued_w)); issued_w += 1
    if OPT["icpf"] and S == 1:
        t = (f"    s_getpc_b64 s[78:79]\nL_pc:\n    s_sub_u32 s78, s78, L_pc-{NAME}_kernel\n    s_subb_u32 s79, s79, 0\n    s_lshr_b32 {s(S_T1)}, s2, 3\n"
             f"    s_lshl2_add_u32 {s(S_T1)}, {s(S_T1)}, {s(S_W4)}\n    s_lshl_b32 {s(S_T1)}, {s(S_T1)}, 8\n")
        t += "".join(f"    s_load_dword s{80+i}, s[78:79], {s(S_T1)} offset:{i*64}\n" for i in range(4))
        P.add(Raw(t))
    if OPT["tlb"] and S in (3, 4, 5, 6):
        for i, (ptr, off) in enumerate({3: ((22, 0), (22, 1)), 4: ((22, 2), (22, 4)), 5: ((22, 3), (20, 0)), 6: ((18, 0),)}[S]):
            P.add(Raw(f"    s_mov_b32 {s(S_T1)}, {off << 21}\n    s_load_dword s{70+i}, {s(ptr,2)}, {s(S_T1)}"))
    if OPT["wopf"] and S in (8, 9, 10, 11):
        ptr, half = (14, 8)[(S - 8) >> 1], S & 1
        t = f"    s_lshl2_add_u32 {s(S_T1)}, s2, {s(S_W4)}\n    s_lshl_b32 {s(S_T1)}, {s(S_T1)}, 9\n"
        t += "".join(f"    s_load_dword s{73+i}, {s(ptr,2)}, {s(S_T1)} offset:{half*256+i*64}\n" for i in range(4))
        P.add(Raw(t))
    if S == 8: P(ep_load)
    if S == 14:
        P(f"""v_lshrrev_b32 v48, 5, {v(V_LANE)}
v_bfe_u32 v49, {v(V_LANE)}, 2, 2
v_lshl_add_u32 v48, v48, 2, v49
v_and_b32 v49, 2, v49
v_bfe_u32 v50, {v(V_LANE)}, 4, 1
v_xor_b32 v49, v49, v50
s_and_b32 {s(S_T1)}, {s(S_W4)}, 1
s_lshl_b32 {s(S_T1)}, {s(S_T1)}, 1
s_lshr_b32 {s(S_T0)}, {s(S_W4)}, 1
s_or_b32 {s(S_T1)}, {s(S_T1)}, {s(S_T0)}
v_xor_b32 v49, {s(S_T1)}, v49
v_lshlrev_b32 v49, 5, v49
v_lshl_add_u32 v48, v48, 7, v49
v_and_b32 v49, 3, {v(V_LANE)}
v_lshl_add_u32 v48, v49, 3, v48
s_lshl_b32 {s(S_MX)}, {s(S_W4)}, 14
v_add_u32 {v(B0)}, {s(S_MX)}, v48
v_xor_b32 {v(B1)}, 64, {v(B0)}
v_xor_b32 v49, 64, v48
s_mul_i32 {s(S_T0)}, {s(S_W4)}, 6144
s_add_u32 {s(S_T0)}, {s(S_T0)}, {L_WA}
v_add_u32 {v(A0)}, {s(S_T0)}, v48
v_add_u32 {v(A1)}, {s(S_T0)}, v49
s_mul_i32 {s(S_T0)}, {s(S_W4)}, 10240
s_add_u32 {s(S_T0)}, {s(S_T0)}, {L_KV}
v_add_u32 {v(A2)}, {s(S_T0)}, v48
v_add_u32 {v(A3)}, {s(S_T0)}, v49
""")
    if S == 15:
        P(f"s_mul_i32 {s(S_T0)}, {s(S_W4)}, 6144\nv_add_u32 {v(EXR)}, {s(S_T0)}, {v(V_L16)}")
        for i in range(1, 4):
            P(f"s_xor_b32 {s(S_T0)}, {s(S_W4)}, {i}\ns_mul_i32 {s(S_T0)}, {s(S_T0)}, 6144\nv_add_u32 {v(EXW+i-1)}, {s(S_T0)}, {v(V_L16)}")
        P(f"""v_and_b32 {v(VOUT)}, 31, {v(V_LANE)}
v_lshlrev_b32 {v(VOUT)}, 10, {v(VOUT)}
v_lshrrev_b32 v48, 5, {v(V_LANE)}
v_lshl_add_u32 {v(VOUT)}, v48, 4, {v(VOUT)}
s_lshl_b32 {s(S_T0)}, {s(S_RB3)}, 16
s_lshr_b32 {s(S_T1)}, {s(S_W4)}, 1
s_lshl_b32 {s(S_T1)}, {s(S_T1)}, 5
s_add_u32 {s(S_T0)}, {s(S_T0)}, {s(S_T1)}
s_lshl_b32 {s(S_T1)}, {s(S_CB)}, 7
s_add_u32 {s(S_T0)}, {s(S_T0)}, {s(S_T1)}
s_and_b32 {s(S_T1)}, {s(S_W4)}, 1
s_lshl_b32 {s(S_T1)}, {s(S_T1)}, 6
s_add_u32 {s(S_T0)}, {s(S_T0)}, {s(S_T1)}
v_add_u32 {v(VOUT)}, {s(S_T0)}, {v(VOUT)}
s_lshl_b32 {s(S_T0)}, {s(S_RB3)}, 17
s_lshl_b32 {s(S_T1)}, {s(S_W4)}, 13
s_add_u32 {s(S_T0)}, {s(S_T0)}, {s(S_T1)}
s_add_u32 {s(S_T0)}, {s(S_T0)}, {WS_O}
v_add_u32 {v(VOG)}, {s(S_T0)}, {v(V_L16)}
s_lshl_b32 {s(S_WB)}, {s(S_W4)}, 17
s_lshl_b32 {s(S_T1)}, {s(S_CB)}, 7
s_add_u32 {s(S_WB)}, {s(S_WB)}, {s(S_T1)}
s_lshl3_add_u32 {s(S_R3)}, {s(S_RB3)}, {s(S_CB)}
s_lshl2_add_u32 {s(S_R3)}, {s(S_R3)}, {s(S_W4)}
s_lshl_b32 {s(S_R3)}, {s(S_R3)}, 6""")
    if S == OPT["kvs"]:
        tail = P.items[mark:]; del P.items[mark:]
        P.add(flag_store("none", "kv")); P.items += tail
    if S == 16:
        P("s_waitcnt lgkmcnt(0)")
        H.poll(f"v_cmp_ne_u64 vcc, 0, {v(EP,2)}", ep_load)
        P(f"v_readfirstlane_b32 {s(S_EP)}, {v(EP)}\nv_readfirstlane_b32 {s(S_EP+1)}, {v(EP+1)}")
    if S == 19:
        P.add(srd(S_WOA, 8, 524288) + srd(S_WOB, 14, 524288) + srd(S_OUT, 18, 2097152))
    if S == 20:
        P(f"""v_lshrrev_b32 v48, 3, {v(V_LANE)}
v_bfe_u32 v49, {v(V_LANE)}, 4, 1
v_lshlrev_b32 v49, 2, v49
v_and_b32 v50, 7, {v(V_LANE)}
v_xor_b32 v49, v49, v50
v_lshlrev_b32 v49, 4, v49
v_lshl_add_u32 {v(VWO)}, v48, 10, v49
v_and_b32 {v(VKF)}, 32, {v(V_LANE)}
v_lshlrev_b32 {v(VKF)}, 4, {v(VKF)}
v_mul_u32_u24 {v(V1A)}, {KVS}, v50
s_mul_i32 {s(S_MW)}, {s(S_W4)}, {KVH}
s_add_u32 {s(S_MW)}, {s(S_MW)}, {L_KV}
s_add_u32 {s(S_T0)}, {s(S_MW)}, 2048
v_add_u32 {v(V1A)}, {s(S_T0)}, {v(V1A)}
s_lshl_b32 {s(S_T0)}, {s(S_RB)}, 1
v_add_u32 v48, {s(S_T0)}, v50
v_cmp_le_u32 vcc, 8, v48
v_mov_b32 v49, {hex(ONES)}
v_cndmask_b32 {v(V1D)}, 0, v49, vcc
v_mov_b32 {v(V1D+1)}, {v(V1D)}
v_mov_b32 {v(V1D+2)}, {v(V1D)}
v_mov_b32 {v(V1D+3)}, {v(V1D)}
s_mul_i32 {s(S_MA)}, {s(S_W4)}, 6144
s_add_u32 {s(S_MA)}, {s(S_MA)}, {L_WA}
s_mul_i32 {s(S_MB)}, {s(S_W4)}, 10240
s_add_u32 {s(S_MB)}, {s(S_MB)}, {L_KV - 6144}
s_lshl_b32 {s(S_K)}, {s(S_HEAD)}, 5
s_add_u32 {s(S_K)}, {s(S_K)}, {s(S_RB)}
s_lshl_b32 {s(S_K)}, {s(S_K)}, 6
s_add_u32 {s(S_K)}, {s(S_K)}, {WS_FKV}""")
    if S == OPT["gat"] - 1:
        H.spoll_issue(4, S_K); H.spoll(4, S_K, ignore_from=S_RB)
        H.stamp()
    if S == 20:
        P.add([f"v_mov_b32 {v(168+i)}, -1" for i in range(4)])
        P.add(o_store(0, 1, 168, "sent")); P.add(o_store(0, 0, 168, "sent"))
    if S == 23:
        P(f"ds_write_b128 {v(V1A)}, {v(V1D,4)}")
        P.add(WaitTag("sent"))
    if S == 24: P.add(Pace(OPT["pace0"]))
    if S == OPT["gat"] + OPT["gdel"]:
        emit_gather(0, (0, 1, 2, 3))
if OPT["p1only"]:
    H.finish()
fs = lambda: H.stamp() if OPT["fine"] == 4 else None
P(f"s_setprio {OPT['hprio']}")
emit_gather(1, (4, 5, 6, 7))
def wo_dma(br):
    o = []
    for t in range(16):
        base = S_MX if br else (S_MA if t < 6 else S_MB)
        g = [f"s_add_u32 m0, {s(base)}, {t*1024}", f"s_add_u32 {s(S_T3)}, {s(S_WB)}, {t*8192}"]
        o.append(g + [dma(VWO, S_WOB if br else S_WOA, s(S_T3), 0, "wob" if br else ("woa" if t < 6 else "woc"))])
    return o
woa, wob = wo_dma(0), wo_dma(1)
P.add(wob[:OPT["wb0"]])
P.add(WaitTag("kv")); P.add(WaitLds()); P("s_barrier")
H.stamp()
if OPT["t2"]: P.add(WaitTag("kvb")); P("s_barrier")
P.add(Pace(OPT["pace"]))
rest = wob[OPT["wb0"]:] + woa[:6]
if OPT["zbar"]:
    P.add(rest[:OPT["wz"]]); rest = rest[OPT["wz"]:]
    P("s_barrier"); fs(); P.add(flag_store("none", "ob"))
P.add(rest)
fs()
def o_gather(br, tt):
    o = []
    for hs in range(8):
        if hs % 4 == 0: o += [f"s_mov_b32 {s(S_T1)}, {br*65536 + tt*32768 + hs*1024}"]
        o += [ws_ld(v((OFA, OFB)[br]+32*tt+4*hs,4), VOG, s(S_T1), (hs & 3)*1024)]
    return o
def wo_read(dst, hs, br):
    base, off = ((B0, B1), hs*2048) if br else (((A0, A1), hs*2048) if hs < 3 else ((A2, A3), (hs-3)*2048))
    return [f"ds_read_b64_tr_b16 {v(dst+4*ct+2*j,2)}, {v(base[ct])} offset:{off+j*1024}" for ct in range(2) for j in range(2)]
FIN = OFB
def p3(Q, br, tt, first, last, hook=lambda hs: None):
    if first: Q.add(wo_read(WBF, 0, br))
    for hs in range(8):
        b = hs & 1
        rd = wo_read(WBF + 8*(1-b), (hs + 1) & 7, br) if not (last and hs == 7) else []
        for ct in range(2):
            acc = v((FIN, ACC3)[br]+32*tt+16*ct, 16)
            c = acc if hs else ("0" if br else v(ACC3+32*tt+16*ct, 16))
            Q(mfma(acc, v(WBF+8*b+4*ct,4), v((OFA, OFB)[br]+32*tt+4*hs,4), c))
            Q.add(rd[2*ct:2*ct+2])
        hook(hs)
def red_writes(tt):
    keep, ex = FIN + 32*tt, tt * 24576
    send = {1: keep + 16, 2: keep + 8, 3: keep + 24}
    return [f"ds_write_b128 {v(EXW+i-1)}, {v(send[i]+4*q,4)} offset:{ex+(i-1)*2048+q*1024}" for i in (2, 1, 3) for q in range(2)]
def red_reads(tt):
    return [f"ds_read_b128 {v(ACC3+32*tt+8*i+4*q,4)}, {v(EXR)} offset:{tt*24576+i*2048+q*1024}" for q in range(2) for i in range(3)]
def red_finish(tt):
    keep, tmp, o = FIN + 32*tt, ACC3 + 32*tt, []
    for q in range(2):
        for i in range(3):
            o += [f"v_pk_add_f32 {v(keep+4*q+2*k,2)}, {v(keep+4*q+2*k,2)}, {v(tmp+8*i+4*q+2*k,2)}" for k in range(2)]
        o += [f"v_cvt_pk_bf16_f32 {v(tmp+24+2*q+k)}, {v(keep+4*q+2*k)}, {v(keep+4*q+2*k+1)}" for k in range(2)]
    o += [f"v_permlane32_swap_b32 {v(tmp+24)}, {v(tmp+26)}", f"v_permlane32_swap_b32 {v(tmp+25)}, {v(tmp+27)}", f"s_mov_b32 {s(S_T1)}, {tt*32768}",
          f"buffer_store_dwordx4 {v(tmp+24,4)}, {v(VOUT)}, {s(S_OUT,4)}, {s(S_T1)} offen{('', ' sc1', ' nt', ' sc0 sc1')[OPT['outsc']]}"]
    return o
retry_txt = []
def sentinel_scan(tt, hs):
    base = OFA + 32*tt + 4*hs
    first = [f"v_max3_u32 {v(TMP)}, {v(base)}, {v(base+1)}, {v(base+1)}"] if hs == 0 else [f"v_max3_u32 {v(TMP)}, {v(TMP)}, {v(base)}, {v(base+1)}"]
    return first + [f"v_max3_u32 {v(TMP)}, {v(TMP)}, {v(base+2)}, {v(base+3)}"]
def a_pass(tt, last, hook=lambda hs: None):
    test = [f"v_cmp_ne_u32 vcc, -1, {v(TMP)}", "s_cmp_eq_u64 vcc, -1"]
    p3(P, 0, tt, tt == 1, last, lambda hs: (P.add(sentinel_scan(tt, hs)), hook(hs)))
    P.add(test); P(f"s_cbranch_scc0 L_retry{tt}\nL_ok{tt}:")
    Q = Prog()
    Q(f"L_retry{tt}:\ns_mov_b32 {s(S_SPIN)}, 0x20000\ns_waitcnt lgkmcnt(0)\ns_nop 15\nL_again{tt}:"); Q.add(o_gather(0, tt))
    Q(f"s_sub_u32 {s(S_SPIN)}, {s(S_SPIN)}, 1\ns_waitcnt vmcnt(0)\ns_cbranch_scc1 L_redo{tt}")
    for hs in range(8): Q.add(sentinel_scan(tt, hs))
    Q.add(test); Q(f"s_cbranch_scc0 L_again{tt}\nL_redo{tt}:")
    p3(Q, 0, tt, True, last); Q(f"s_waitcnt lgkmcnt(0)\ns_nop 15\ns_branch L_ok{tt}")
    retry_txt.append(finalize(Q))
P(f"s_add_u32 {s(S_K)}, {s(S_R3)}, {WS_FOB}")
if OPT["worder"] == 0:
    P("s_barrier"); fs()
    if OPT["f2by"] and not OPT["zbar"]: P.add(flag_store("none", "ob"))
    P.add(woa[6:11]); H.spoll_issue(8, S_K); P.add(woa[11:]); fs()
    H.spoll(8, S_K); H.stamp()
    P.add(o_gather(1, 0)); P.add(o_gather(1, 1)); fs()
else:
    P("s_barrier"); fs()
    if OPT["f2by"] and not OPT["zbar"]: P.add(flag_store("none", "ob"))
    H.spoll_issue(8, S_K); H.spoll(8, S_K); H.stamp()
    P.add(o_gather(1, 0)); P.add(o_gather(1, 1)); fs()
    P.add(woa[6:]); fs()
P(f"s_setprio {OPT['p3prio']}"); P.add(Pace(OPT["pacez"]))
def probe():
    P(f"""s_lshl_b32 {s(S_K)}, {s(S_RB3)}, 17
s_lshl_b32 {s(S_T1)}, {s(S_W4)}, 13
s_add_u32 {s(S_K)}, {s(S_K)}, {s(S_T1)}
s_add_u32 {s(S_K)}, {s(S_K)}, {WS_O}""")
    P.add(WaitLds())
    t = f"    s_mov_b32 {s(S_SPIN)}, 0x20000\nL_probe:\n"
    t += "".join(f"    s_load_dword s{4+i}, s[22:23], {s(S_K)} offset:{i*1024+1020} glc\n" for i in range(8))
    t += f"    s_sub_u32 {s(S_SPIN)}, {s(S_SPIN)}, 1\n    s_waitcnt lgkmcnt(0)\n    s_cbranch_scc1 L_probed\n"
    t += "".join(f"    s_max_u32 s4, s4, s{4+i}\n" for i in range(1, 8))
    t += "    s_cmp_eq_u32 s4, -1\n    s_cbranch_scc1 L_probe\nL_probed:"
    P.add(Raw(t))
def vprobe():
    P(f"""v_and_b32 {v(V_FOFF)}, 7, {v(V_LANE)}
v_lshlrev_b32 {v(V_FOFF)}, 10, {v(V_FOFF)}
s_lshl_b32 {s(S_K)}, {s(S_RB3)}, 17
s_lshl_b32 {s(S_T1)}, {s(S_W4)}, 13
s_add_u32 {s(S_K)}, {s(S_K)}, {s(S_T1)}
s_add_u32 {s(S_K)}, {s(S_K)}, {WS_O}""")
    ld = f"buffer_load_dword {v(FLG)}, {v(V_FOFF)}, {s(S_WS,4)}, {s(S_K)} offen offset:1020 sc1"
    P(ld); H.poll(f"v_cmp_ne_u32 vcc, -1, {v(FLG)}", ld)
def agather():
    if OPT["probe"] == 3: vprobe()
    if OPT["probe"] == 2: probe()
    P("s_barrier"); fs()
    if OPT["probe"] == 1: probe()
    fs(); P.add(o_gather(0, 1)); P.add(o_gather(0, 0))
if OPT["amode"] == 2: agather()
P.add(WaitTag("wob", "woa", "woc"))
p3(P, 1, 0, True, False)
if OPT["amode"] == 1: agather()
p3(P, 1, 1, False, True)
H.stamp()
if OPT["amode"] == 0: agather()
a_pass(1, False)
H.stamp()
if OPT["amode"]: P("s_barrier")
w1 = red_writes(1)
def tail_hook(hs):
    if 1 <= hs <= 3: P.add(w1[2*hs-2:2*hs])
    if hs == 6 and not OPT["rtail"]: P.add(WaitLds()); P("s_barrier")
a_pass(0, True, tail_hook)
H.stamp()
if OPT["rtail"]:
    P("s_barrier")
P.add(red_reads(1)); P.add(red_writes(0)); P.add(red_finish(1)[:14])
P.add(WaitLds()); P("s_barrier")
P.add(red_reads(0)); P.add(red_finish(1)[14:]); P.add(red_finish(0))
H.stamp()
H.finish()

C = Role("C"); P = C.P
T1, T3, T2 = 32, 64, 96
XB, WB = 128, 152
V_AX, V_T1L, V_T1H, V_T3L, V_T3H, V_T2L, V_T2H = 176, 180, 181, 182, 183, 184, 185
V_LO, V_HI = 186, 187
VPK = 224
r5, hh, rr, cc, nh, u0, u1, cm = 128, 129, 130, 131, 132, 133, 134, 135
P("L_crole:")
P.add(late_ids)
if OPT["prio"]: P("s_setprio 1")
P(f"""
v_and_b32 {v(r5)}, 31, {v(V_LANE)}
v_lshrrev_b32 {v(hh)}, 5, {v(V_LANE)}
v_bfe_u32 {v(u0)}, {v(r5)}, 1, 3
v_xor_b32 {v(u0)}, {v(u0)}, {v(hh)}
v_lshlrev_b32 {v(u0)}, 4, {v(u0)}
v_lshl_add_u32 {v(u0)}, {v(r5)}, 7, {v(u0)}
v_add_u32 {v(V_AX)}, {L_X}, {v(u0)}
v_xor_b32 {v(V_AX+1)}, 32, {v(V_AX)}
v_xor_b32 {v(V_AX+2)}, 64, {v(V_AX)}
v_xor_b32 {v(V_AX+3)}, 0x60, {v(V_AX)}
v_bfe_u32 {v(rr)}, {v(V_LANE)}, 2, 2
v_and_b32 {v(cc)}, 3, {v(V_LANE)}
v_bfe_u32 {v(nh)}, {v(V_LANE)}, 4, 1
v_lshl_add_u32 {v(u0)}, {v(hh)}, 3, {v(rr)}
v_xor_b32 {v(u1)}, {s(S_W4)}, {v(rr)}
v_lshlrev_b32 {v(u1)}, 5, {v(u1)}
v_lshl_add_u32 {v(u1)}, {v(cc)}, 3, {v(u1)}
v_lshl_add_u32 {v(u1)}, {v(u0)}, 8, {v(u1)}
v_mul_u32_u24 {v(V_T1L)}, 0x2080, {v(nh)}
v_add_u32 {v(V_T1L)}, {v(V_T1L)}, {v(u1)}
v_add_u32 {v(V_T1H)}, 0x10000, {v(V_T1L)}
v_xor_b32 {v(V_T3L)}, 0x80, {v(V_T1L)}
v_xor_b32 {v(V_T3H)}, 0x80, {v(V_T1H)}
v_lshrrev_b32 {v(u1)}, 1, {v(rr)}
v_lshl_add_u32 {v(u1)}, {v(nh)}, 1, {v(u1)}
v_xor_b32 {v(u1)}, {s(S_W4)}, {v(u1)}
v_lshlrev_b32 {v(u1)}, 5, {v(u1)}
v_lshl_add_u32 {v(u1)}, {v(cc)}, 3, {v(u1)}
v_lshl_add_u32 {v(u1)}, {v(u0)}, 7, {v(u1)}
v_lshl_add_u32 {v(V_T2L)}, {v(nh)}, 13, {v(u1)}
v_add_u32 {v(V_T2H)}, 0x10000, {v(V_T2L)}
v_and_b32 {v(u0)}, 15, {v(V_LANE)}
v_lshlrev_b32 {v(u0)}, 4, {v(u0)}
v_lshl_add_u32 {v(u0)}, {v(hh)}, 8, {v(u0)}
v_lshl_add_u32 {v(V_LO)}, {v(nh)}, 31, {v(u0)}
v_xor_b32 {v(V_HI)}, {OOB}, {v(V_LO)}
v_lshlrev_b32 {v(u0)}, 2, {v(hh)}
v_sub_u32 {v(cm)}, {v(r5)}, {v(u0)}
s_waitcnt lgkmcnt(0)""")
if OPT["wsoff"]: P(f"s_add_u32 s22, s22, {OPT['wsoff'] << 20}\ns_addc_u32 s23, s23, 0")
P.add(entry_stamp())
P(f"""s_memrealtime {s(S_TM,2)}
s_mov_b32 {s(S_C)}, {fhex(QK_SCALE)}
s_mov_b32 {s(S_C+1)}, {fhex(QK_SCALE)}
""")
def l2_prefetch():
    a, b = 140, 141
    o = lines(f"""s_lshr_b32 {s(S_T0)}, s2, 3
s_and_b32 {s(S_T1)}, {s(S_HG)}, 4
s_lshl_b32 {s(S_T1)}, {s(S_T1)}, 7
v_and_b32 {v(a)}, 3, {v(V_LANE)}
v_lshlrev_b32 {v(a)}, 7, {v(a)}
s_cmp_eq_u32 {s(S_W4)}, 2
s_cbranch_scc1 L_pfx
s_cmp_eq_u32 {s(S_W4)}, 3
s_cbranch_scc1 L_pfq
s_cmp_eq_u32 {s(S_W4)}, 0
s_cselect_b32 {s(S_W)}, s6, s12
s_cselect_b32 {s(S_W+1)}, s7, s13
s_mov_b32 {s(S_W+2)}, 1572864
s_mov_b32 {s(S_W+3)}, 0x20000
v_bfe_u32 {v(b)}, {v(V_LANE)}, 2, 1
v_lshl_add_u32 {v(a)}, {v(b)}, 10, {v(a)}
v_lshrrev_b32 {v(b)}, 3, {v(V_LANE)}
v_mul_u32_u24 {v(b)}, 0xc00, {v(b)}
v_add_u32 {v(a)}, {v(a)}, {v(b)}
s_mul_i32 {s(S_T0)}, {s(S_T0)}, {8*3072}
s_add_u32 {s(S_T0)}, {s(S_T0)}, {s(S_T1)}
s_add_u32 {s(S_T0)}, {s(S_T0)}, 1024
buffer_load_dword v190, {v(a)}, {s(S_W,4)}, {s(S_T0)} offen
s_add_u32 {s(S_T0)}, {s(S_T0)}, {256*3072}
buffer_load_dword v191, {v(a)}, {s(S_W,4)}, {s(S_T0)} offen
s_branch L_pfe
L_pfx:
s_mov_b32 {s(S_W)}, s4
s_mov_b32 {s(S_W+1)}, s5
s_mov_b32 {s(S_W+2)}, 2097152
s_mov_b32 {s(S_W+3)}, 0x20000
v_lshrrev_b32 {v(b)}, 2, {v(V_LANE)}
v_lshl_add_u32 {v(a)}, {v(b)}, 10, {v(a)}
s_lshl_b32 {s(S_T0)}, {s(S_T0)}, 14
s_and_b32 {s(S_T1)}, {s(S_RB)}, 24
s_lshl_b32 {s(S_T1)}, {s(S_T1)}, 16
s_add_u32 {s(S_T0)}, {s(S_T0)}, {s(S_T1)}
buffer_load_dword v190, {v(a)}, {s(S_W,4)}, {s(S_T0)} offen
buffer_load_dword v191, {v(a)}, {s(S_W,4)}, {s(S_T0)} offen offset:512
s_branch L_pfe
L_pfq:
s_mov_b32 {s(S_W)}, s6
s_mov_b32 {s(S_W+1)}, s7
s_mov_b32 {s(S_W+2)}, 1572864
s_mov_b32 {s(S_W+3)}, 0x20000
v_lshrrev_b32 {v(b)}, 2, {v(V_LANE)}
v_mul_u32_u24 {v(b)}, 0xc00, {v(b)}
v_add_u32 {v(a)}, {v(a)}, {v(b)}
s_mul_i32 {s(S_T0)}, {s(S_T0)}, {16*3072}
s_add_u32 {s(S_T0)}, {s(S_T0)}, {s(S_T1)}
buffer_load_dword v190, {v(a)}, {s(S_W,4)}, {s(S_T0)} offen
s_mov_b32 {s(S_W)}, s12
s_mov_b32 {s(S_W+1)}, s13
buffer_load_dword v191, {v(a)}, {s(S_W,4)}, {s(S_T0)} offen
L_pfe:""")
    P.add(Raw("\n".join(("" if l.endswith(":") else "    ") + l for l in o)))
    P("s_nop 0")
if OPT["pf"] == 1: l2_prefetch()
P.add(srd(S_WS, 22, WS_SIZE) + srd(S_DBG, 20, 256))
P(f"""s_cmp_eq_u32 s2, 0
s_cselect_b32 {s(S_T2)}, 0, {OOB}
v_lshlrev_b32 v5, 8, v0
v_or_b32 v5, {s(S_T2)}, v5
s_waitcnt lgkmcnt(0)
v_mov_b32 {v(EP)}, {s(S_TM)}
v_mov_b32 {v(EP+1)}, {s(S_TM+1)}
buffer_store_dwordx2 {v(EP,2)}, v5, {s(S_DBG,4)}, 0 offen sc1""")
V_AXW, V_AG, V_GPW, V_GPR, XW, GF, GACC = 4, 8, 9, 13, 240, 248, 190
P(f"""s_lshl_b32 {s(S_T2)}, {s(S_W4)}, 5
v_xor_b32 {v(V_AXW)}, {s(S_T2)}, {v(V_AX)}
v_lshlrev_b32 {v(u0)}, 4, {v(hh)}
s_add_u32 {s(S_T2)}, {s(S_T2)}, {L_G}
v_add_u32 {v(V_AG)}, {s(S_T2)}, {v(u0)}
v_lshlrev_b32 {v(V_GPR)}, 4, {v(r5)}
v_add_u32 {v(V_GPR)}, {L_GP}, {v(V_GPR)}
s_lshl_b32 {s(S_T2)}, {s(S_W4)}, 2
v_add_u32 {v(V_GPW)}, {s(S_T2)}, {v(V_GPR)}
v_mov_b32 {v(GACC)}, 0
v_mov_b32 {v(GACC+1)}, 0""")
for q in range(16):
    P(f"""v_subrev_u32 {v(192+q)}, {8*(q>>2)+(q&3)}, {v(cm)}
v_and_b32 {v(192+q)}, 17, {v(192+q)}
v_cvt_f32_u32 {v(192+q)}, {v(192+q)}
v_mul_f32 {v(192+q)}, {hex(NEG_BIG)}, {v(192+q)}""")
P.add(attn_setup(0, 136))
C.stamp()

CM, QB, KB, VB, KBH, VBH, BP, BPL, BPK, SENT, S_R0 = 192, 248, 240, 32, 80, 84, 176, 88, 88, 220, 24
BS2, BSP2, BO2 = (96, 48), (128, 112), (160, 144)
def b_scores(t):
    kprev = v(KB, 4) if t == 1 else v(KBH, 4)
    return [mfma(v(BS2[t],16), v(KB+4*t,4), v(QB+4*t,4), v(CM,16)), mfma(v(BSP2[t],16), kprev, v(QB+4*t,4), v(CM,16))]
def b_softmax(t):
    S, sp, m, p, pl = BS2[t], BSP2[t], TMP + 2*t, BP + 8*t, BPL + 4*t
    o = [f"v_cndmask_b32 {v(S+q)}, {v(S+q)}, {v(sp+q)}, {s(S_LO16,2)}" for q in range(8, 16)]
    if t == 0:
        o += [f"v_mov_b32 {v(m)}, {hex(NEG_BIG)}"]
        o += [f"v_cndmask_b32 {v(S+q)}, {v(S+q)}, {v(m)}, {s(S_R0,2)}" for q in range(8, 16)]
    o += max_tree(m, range(S, S+16)) + cross_max(m, m+1)
    o += [f"v_pk_add_f32 {v(S+2*q,2)}, {v(S+2*q,2)}, {v(m,2)} op_sel_hi:[1,0] neg_lo:[0,1] neg_hi:[0,1]" for q in range(8)]
    o += [f"v_exp_f32 {v(S+q)}, {v(S+q)}" for q in range(16)]
    o += [f"v_cvt_pk_bf16_f32 {v(p+i)}, {v(S+2*i)}, {v(S+2*i+1)}" for i in range(8)]
    o += [f"v_cndmask_b32 {v(pl+i)}, 0, {v(p+4+i)}, {s(S_LO16,2)}" for i in range(4)]
    o += [f"v_cndmask_b32 {v(p+4+i)}, {v(p+4+i)}, 0, {s(S_LO16,2)}" for i in range(4)]
    return o
def b_pv(t):
    vprev, acc, p = v(VB+4, 4) if t == 1 else v(VBH, 4), v(BO2[t], 16), BP + 8*t
    return [mfma(acc, v(VB+8*t,4), v(p,4), "0"), mfma(acc, v(VB+8*t+4,4), v(p+4,4), acc), mfma(acc, vprev, v(BPL+4*t,4), acc)]
def b_pack(t):
    f = 184 + 2*t
    return o_pack(BO2[t], 8, 0, [f"v_sub_f32 {v(f+1)}, 1.0, {v(G0+t)}", f"v_mul_f32 {v(f)}, {v(f)}, {v(f+1)}"], BPK+4*t, f)
def frag_reads(n):
    b, m = n % 3, n & 31
    j, ux = m >> 2, m & 3
    base = (stage_of(n) % NSLOT) * SLOT
    hi = base >= 65536; off = base - (65536 if hi else 0)
    x = [f"ds_read_b128 {v(XB+8*b+4*tt,4)}, {v(V_AX+ux)} offset:{j*8192+tt*4096}" for tt in range(2)]
    if n < 32:
        w = [f"ds_read_b64_tr_b16 {v(WB+8*b+4*t+2*qd,2)}, {v(((V_T1L,V_T1H),(V_T3L,V_T3H))[t][hi])} offset:{off+(n&1)*4096+qd*1024}"
             for t in range(2) for qd in range(2)]
        return [w[0], x[0], w[1], w[2], x[1], w[3]]
    w = [f"ds_read_b64_tr_b16 {v(WB+8*b+2*qd,2)}, {v((V_T2L,V_T2H)[hi])} offset:{off+ux*2048+qd*512}" for qd in range(2)]
    return [w[0], x[0], w[1], x[1]]
def step_mfmas(n):
    b = n % 3
    x = lambda tt: v(XB+8*b+4*tt, 4)
    c = lambda r: "0" if n in (0, 32) else v(r, 16)
    if n < 32:
        return [mfma(v(T1,16), v(WB+8*b,4), x(0), c(T1)), mfma(v(T3,16), x(0), v(WB+8*b+4,4), c(T3)),
                mfma(v(T1+16,16), v(WB+8*b,4), x(1), c(T1+16)), mfma(v(T3+16,16), x(1), v(WB+8*b+4,4), c(T3+16))]
    return [mfma(v(T2,16), v(WB+8*b,4), x(0), c(T2)), mfma(v(T2+16,16), v(WB+8*b,4), x(1), c(T2+16))]
def kv_publish():
    o = [f"s_lshl_b32 {s(S_T0)}, {s(S_HEAD)}, 17", f"s_lshl_b32 {s(S_T1)}, {s(S_RB)}, 12", f"s_add_u32 {s(S_T0)}, {s(S_T0)}, {s(S_T1)}"]
    for tt in range(2):
        o += [f"v_pk_mul_f32 {v(T1+16*tt+2*i,2)}, {v(T1+16*tt+2*i,2)}, {s(S_C,2)}" for i in range(4)]
        o += [f"v_cvt_pk_bf16_f32 {v(KA+4*tt+i)}, {v(T1+16*tt+2*i)}, {v(T1+16*tt+2*i+1)}" for i in range(4)]
        o += [ws_st(v(KA+4*tt,4), V_L16, s(S_T0), tt*2048, "kv")]
    for tt in range(2):
        for m in range(2):
            o += [f"v_cvt_pk_bf16_f32 {v(VPK+8*tt+4*m+i)}, {v(T3+16*tt+8*m+2*i)}, {v(T3+16*tt+8*m+2*i+1)}" for i in range(4)]
            o += [ws_st(v(VPK+8*tt+4*m,4), V_LO, s(S_T0), tt*2048+1024+m*512, "kv")]
    o += [f"s_lshl_b32 {s(S_T0)}, {s(S_HEAD)}, 15", f"s_lshl_b32 {s(S_T1)}, {s(S_RB)}, 10",
          f"s_add_u32 {s(S_T0)}, {s(S_T0)}, {s(S_T1)}", f"s_add_u32 {s(S_T0)}, {s(S_T0)}, {WS_HB}",
          ws_st(v(VPK+12,4), V_HI, s(S_T0), 512, "kv")]
    for tt in (1, 0):
        o += [f"v_pk_mul_f32 {v(T1+16*tt+8+2*i,2)}, {v(T1+16*tt+8+2*i,2)}, {s(S_C,2)}" for i in range(4)]
        o += [f"v_cvt_pk_bf16_f32 {v(KB+4*tt+i)}, {v(T1+16*tt+8+2*i)}, {v(T1+16*tt+8+2*i+1)}" for i in range(4)]
        if tt == 1: o += [ws_st(v(KB+4,4), V_HI, s(S_T0), 0, "kv")]
    return o

if OPT["p1only"]:
    P("s_barrier\n" * 25 + "s_endpgm")
P("s_barrier")
C.stamp()
P.add(frag_reads(0)); P.add(frag_reads(1))
queue = []
gf = gate_finish([0, 1], V_GPR, 88)
for n in range(64):
    mf = step_mfmas(n)
    if OPT["xp"] == 6 and n < 32: mf = [mf[0], mf[2], mf[1], mf[3]]
    if OPT["xp"] == 7 and n < 32: mf = [mf[0], mf[2], mf[3], mf[1]]
    if OPT["xp"] in (1, 3) and n not in (0, 32): mf = ["s_nop 7"] * len(mf)
    if OPT["xp"] == 4 and n not in (0, 32):
        def split(m):
            d, a, b, c = [x.strip() for x in m.split(None, 1)[1].split(", ")]
            lo = int(d[2:].split(":")[0])
            return "\n".join(f"v_mfma_f32_16x16x32_bf16 {v(lo+4*i,4)}, {a}, {b}, {v(lo+4*i,4)}" for i in range(2))
        mf = [split(m) for m in mf]
    sync = first_of_stage(n + 2) or n == 62
    rd = frag_reads(n + 2) if n < 62 else []
    if OPT["xp"] in (2, 3): rd = []
    if OPT["xp"] == 5: rd = [x for x in rd if "tr_b16" in x] + ["s_nop 0"] * 2
    if n < 32 and n % 4 == 1:
        j = n >> 2
        queue += [f"ds_read_b128 {v(GF,4)}, {v(V_AG)} offset:{j*128}",
                  f"ds_read_b128 {v(XW,4)}, {v(V_AXW)} offset:{j*8192}", f"ds_read_b128 {v(XW+4,4)}, {v(V_AXW)} offset:{j*8192+4096}"]
    if n < 32 and n % 4 == 2:
        queue += [f"v_dot2_f32_bf16 {v(GACC+tt)}, {v(XW+4*tt+i)}, {v(GF+i)}, {v(GACC+tt)}" for i in range(4) for tt in range(2)]
    if n == 62: queue += gf[:2]
    if n == 58:
        queue = [f"ds_write_b32 {v(V_GPW)}, {v(GACC+tt)} offset:{512*tt}" for tt in range(2)] + queue
    if n == 32:
        pub = kv_publish()
        isst = lambda x: (isinstance(x, Ins) and x.kind == "vst") or (isinstance(x, str) and x.startswith("s_"))
        late_st = [x for x in pub if isst(x)] if OPT["pubat"] > 32 else []
        queue += [x for x in pub if not (late_st and isst(x))]
    if n == OPT["pubat"] and n > 32: queue = late_st + queue
    if n == 44:
        queue += [f"v_mov_b32 {v(TMP)}, {hex(ONES)}", f"v_mov_b32 {v(TMP+1)}, {hex(NEG_BIG)}"]
        queue += [f"v_mov_b32 {v(VBH+i)}, {v(TMP)}" for i in range(4)]
        queue += [f"v_cndmask_b32 {v(VB+i)}, {v(VPK+i)}, {v(TMP)}, {s(S_LO16,2)}" for i in range(16)]
        queue += [f"v_cndmask_b32 {v(VA+i)}, {v(TMP)}, {v(VPK+i)}, {s(S_LO16,2)}" for i in range(16)]
        queue += [f"v_cndmask_b32 {v(CMA+q)}, {v(TMP+1)}, 0, {s(S_MASK+2*q,2)}" for q in range(16)]
        queue += [f"v_mov_b32 {v(TMP+2+tt)}, {v(GACC+tt)}" for tt in range(2)]
        queue += [f"v_permlane32_swap_b32 {v(GACC+tt)}, {v(TMP+2+tt)}" for tt in range(2)]
        queue += [f"v_add_f32 {v(GACC+tt)}, {v(GACC+tt)}, {v(TMP+2+tt)}" for tt in range(2)]
    if n == 34 + 4*(OPT["gat"] - 16) - 3:
        queue = [lines(f"""s_lshl_b32 {s(S_T0)}, {s(S_HEAD)}, 15
s_lshl_b32 {s(S_T1)}, {s(S_RB)}, 10
s_add_u32 {s(S_T0)}, {s(S_T0)}, {s(S_T1)}
s_add_u32 {s(S_T0)}, {s(S_T0)}, {WS_HB - 1024}
s_cmp_eq_u32 {s(S_RB)}, 0
s_cselect_b32 {s(S_T0)}, {WS_SIZE}, {s(S_T0)}
s_cselect_b64 {s(S_R0,2)}, {s(S_LO16,2)}, 0""") + [ws_ld(v(KBH,4), V_HI, s(S_T0)), f"s_not_b64 exec, {s(S_LO16,2)}",
                 ws_ld(v(VBH,4), V_HI, s(S_T0), 512), "s_mov_b64 exec, -1"]] + queue
    take = (OPT["take"] if n < 44 else 6) if n >= 32 else 4
    side = queue[:take]; queue = queue[take:]
    def do_sync():
        if n + 2 < 64 and stage_of(n + 2) == OPT["kvs"]: P.add(WaitTag("kv")); C.stamp()
        P.add(WaitLds()); P("s_barrier")
        if OPT["fine"] in (1, 2, 3): C.stamp()
    if sync and OPT["barpos"] and n > 0:
        if n < 32:
            P(mf[0]); P.add(side[0:2]); P(mf[1]); do_sync(); P.add(rd[0:3]); P(mf[2]); P.add(rd[3:6]); P(mf[3]); P.add(side[2:])
        elif n < 58:
            P(mf[0]); P.add(side); P(mf[1]); do_sync(); P.add(rd)
        else:
            P(mf[0]); P(mf[1]); do_sync(); P.add(rd); P.add(side)
    else:
        P(mf[0])
        if sync: do_sync()
        if n < 32:
            P.add(rd[0:2]); P.add(side[0:1]); P(mf[1]); P.add(rd[2:4]); P.add(side[1:2]); P(mf[2]); P.add(rd[4:6]); P(mf[3]); P.add(side[2:])
        else:
            P.add(rd[0:2]); P.add(side[:take//2]); P(mf[1]); P.add(rd[2:4]); P.add(side[take//2:])
    if n == 31: C.stamp()
assert not queue
C.stamp()
qcvt = lambda d, src_: [f"v_cvt_pk_bf16_f32 {v(d+i)}, {v(src_+2*i)}, {v(src_+2*i+1)}" for i in range(4)]
P.add(gf[2:]); P.add(qcvt(QB, T2+8) + qcvt(QA, T2))
sc = interleave(b_scores(0), b_scores(1))
P(sc[2]); P.add(qcvt(QB+4, T2+24)); P(sc[0]); P.add(qcvt(QA1, T2+16)); P(sc[1]); P(sc[3])
s1, s0 = b_softmax(1), b_softmax(0)
P.add(s0[:9])
sm = interleave(s0[9:], s1)
P.add(sm[:-16])
pv = interleave(b_pv(0), b_pv(1))
P(mfma(v(MG+16,16), v(KA+4,4), v(QA1,4), v(CMA,16))); P.add(sm[-16:-10]); P(mfma(v(MG,16), v(KA,4), v(QA,4), v(CMA,16))); P.add(sm[-10:])
mx = interleave(*[max_tree((TMP, TMP+2)[t], range(MG+16*t, MG+16*t+16)) + cross_max((TMP, TMP+2)[t], (TMP, TMP+2)[t]+1) for t in (1, 0)])
for i, m in enumerate(pv):
    P(m); P.add(mx[4*i:4*i+4])
ng = [[f"v_pk_add_f32 {v(NEGM+16*t+2*i,2)}, 0, {v((TMP, TMP+2)[t],2)} op_sel_hi:[0,0] neg_lo:[0,1] neg_hi:[0,1]" for i in range(8)] for t in range(2)]
P.add(ng[0])
BPK = 176
P.add(interleave(b_pack(0), b_pack(1)))
P.add(o_store(1, 0, BPK, "ob")); P.add(o_store(1, 1, BPK+4, "ob"))
P.add(ng[1])
C.stamp()
cs = lambda: C.stamp() if OPT["fine"] == 4 else None
cev = {("e1" if OPT["xhs"] < 0 else OPT["xhs"]): lambda: (P.add(WaitTag("ob")) if OPT["f2by"] else None, P.add(WaitLds()), P("s_barrier"))}
if not OPT["f2by"]: cev["e1" if OPT["f2hs"] < 0 else OPT["f2hs"]] = lambda: (cs(), P.add(flag_store("ob", "ob")), cs())
if OPT["zbar"]: cev["e1"] = lambda: (P.add(WaitTag("ob")), P("s_barrier"))
window_attention(C, cev)
P.add(interleave(*[o_pack(OACC2[t], 0, 8, [f"v_mul_f32 {v(TMP+t)}, {v(TMP+t)}, {v(G0+t)}"], PF+4*t, TMP+t) for t in (1, 0)]))
P.add(o_store(0, 1, PF+4, "oa")); P.add(o_store(0, 0, PF, "oa"))
C.stamp()
C.finish()

full = Prog(); full.items = E.items + H.P.items
bodyH = finalize(full, verbose=True)
full = Prog(); full.items = [Ins("s_load_dwordx16 s[4:19], s[0:1], 0"), Ins("global_load_dword v13, v5, s[96:97]")] + C.P.items
bodyC = "\n".join(finalize(full, verbose=True).split("\n")[2:])
print("stamps H", H.ns, "C", C.ns)
hdr = open("cdna_kernels/%s.s.ref" % NAME).read().split("; Override launch")[0]
if OPT["stamps"]: hdr += f"; stamps {C.ns} {H.ns}\n"
txt = hdr + f"""; One launch: 256 workgroups (4 heads x 64 rows each), 8 waves, hand-offs through d_ws tagged with a per-launch epoch.
; @launch grid=(256,1,1) block=(512,1,1) lds={LDS_BYTES}
.amdgcn_target "amdgcn-amd-amdhsa--gfx950"
.text
.globl {NAME}_kernel
.p2align 12
.p2align 8
.type {NAME}_kernel,@function
{NAME}_kernel:
{bodyH}{bodyC}L_end:
    s_endpgm
{''.join(retry_txt)}{''.join(special_txt)}{slow_path()}    .fill 3072, 4, 0xbf800000
.section .rodata,"a"
.p2align 6
.amdhsa_kernel {NAME}_kernel
  .amdhsa_next_free_vgpr 256
  .amdhsa_next_free_sgpr 102
  .amdhsa_accum_offset 256
  .amdhsa_group_segment_fixed_size 0
  .amdhsa_kernarg_size 80
  .amdhsa_user_sgpr_count 2
  .amdhsa_user_sgpr_kernarg_segment_ptr 1
  .amdhsa_system_sgpr_workgroup_id_x 1
.end_amdhsa_kernel
"""
open(sys.argv[1], "w").write(txt)
```

```python
import sys, math, struct
from asmdsl import Prog, Ins, WaitTag, WaitLds, Raw, Pace, finalize

NAME = "gated_mix__sliding_block__sliding_local_dilated__prompt"
OPT = dict(take2=16, t2=0, rtail=1, dfl=0, kvs=20, bsplit=0, pace=0, pace0=0, pacez=0, gat=23, gdel=1, f2hs=-1, f2by=1, wb0=4, zbar=0, wz=8, probe=0, amode=0, worder=0, xhs=3, hprio=2, p3prio=0, wopf=1, tlb=1, icpf=1, cpf=0, take=96, early=1, kvflag=42, pubat=32, prio=1, barpos=0,
           xmap=3, rotmode=4, rotmask=7, outsc=0, stamps=0, fine=0, rt=0, xp=0, wsoff=0, amp=-1, ampk=8, amprole=1, ampclk=0, p1only=0, pf=0)
for a in sys.argv[2:]:
    k, v_ = a.split("="); assert k in OPT, k; OPT[k] = int(v_)

WS_KV, WS_HB, WS_O = 0, 4 << 20, 5 << 20
WS_FKV, WS_FOB, WS_FOA = 9 << 20, (9 << 20) + 65536, (9 << 20) + 131072
WS_STAMP, WS_SIZE = 10 << 20, 16 << 20
OOB = 0x80000000
NSLOT, SLOT = 5, 16384
L_X, L_WA, L_G, L_GP, LDS_BYTES = 81920, 131584, 156160, 157184, 158208
KVH, KVS, L_KV, L_WO = 2064, 4 * 2064, 65536, 0
QK_SCALE = 0.25 * math.log2(math.e)
NEG_BIG, ONES = 0xf149f2ca, 0x3f803f80

def fhex(x): return "0x%08x" % struct.unpack("<I", struct.pack("<f", x))[0]
def v(a, n=1): return f"v{a}" if n == 1 else f"v[{a}:{a+n-1}]"
def s(a, n=1): return f"s{a}" if n == 1 else f"s[{a}:{a+n-1}]"
def lines(t): return [l.strip() for l in t.strip().split("\n") if l.strip()]
def mfma(d, a, b, c): return f"v_mfma_f32_32x32x16_bf16 {d}, {a}, {b}, {c}"
def srd(base, ptr, nbytes):
    return [f"s_mov_b32 {s(base)}, {s(ptr)}", f"s_mov_b32 {s(base+1)}, {s(ptr+1)}",
            f"s_mov_b32 {s(base+2)}, {nbytes}", f"s_mov_b32 {s(base+3)}, 0x20000"]
def interleave(*ls):
    o, ls = [], [list(l) for l in ls]
    while any(ls):
        for l in ls:
            if l: o.append(l.pop(0))
    return o

S_X, S_W, S_WS, S_WOA, S_WOB, S_OUT, S_DBG, S_G = 24, 28, 32, 36, 40, 44, 48, 36
S_W4, S_HG, S_RB, S_ROT, S_HEAD, S_RB3, S_CB = 52, 53, 54, 55, 56, 57, 58
S_K, S_T0, S_MW, S_MX, S_T1 = 59, 60, 61, 62, 63
S_MASK, S_T2, S_T3, S_LO16, S_TM, S_C, S_SPIN, S_EP = 64, 96, 97, 98, 100, 10, 3, 26
V_LANE, V_L16, V_STAMP, V_FOFF = 1, 2, 3, 4
EP, FLG = 6, 8
V_AK, V_AV0, V_AV1 = 10, 11, 12
G0 = 14
PM, QA = 16, 24
TMP = 28
SB, NEGM, MG, PB, PF, KF, VF = 32, 64, 96, 128, 144, 152, 192
OACC2 = (160, 176)
KA, QA1, VA = 208, 216, 224

class Role:
    def __init__(self, name):
        self.P, self.name, self.ns, self.nl = Prog(), name, 0, 0
    def stamp(self):
        P = self.P
        if OPT["amp"] == self.ns and OPT["amprole"] == (self.name == "H"):
            P.add(WaitLds())
            P(f"{'s_memtime' if OPT['ampclk'] else 's_memrealtime'} {s(S_TM,2)}\ns_waitcnt lgkmcnt(0)\nv_writelane_b32 {v(V_STAMP)}, {s(S_TM)}, 1")
        if OPT["stamps"]:
            P.add(WaitLds())
            P(f"s_memtime {s(S_TM,2)}\ns_waitcnt lgkmcnt(0)\nv_writelane_b32 {v(V_STAMP)}, {s(S_TM)}, {self.ns + 1}")
            if OPT["rt"]: P(f"s_memrealtime {s(S_TM,2)}\ns_waitcnt lgkmcnt(0)\nv_writelane_b32 {v(V_STAMP)}, {s(S_TM)}, {self.ns + 32}")
        self.ns += 1
    def poll(self, cmp_txt, reload_txt):
        P, n = self.P, f"{self.name}{self.nl}"; self.nl += 1
        P(f"s_mov_b32 {s(S_SPIN)}, 0x40000"); P(cmp_txt)
        P(f"s_cmp_eq_u64 vcc, -1\ns_cbranch_scc1 L_pok{n}")
        P.add(Raw(f"""L_pspin{n}:
    {reload_txt}
    s_sub_u32 {s(S_SPIN)}, {s(S_SPIN)}, 1
    s_cbranch_scc1 L_pok{n}
    s_waitcnt vmcnt(0)
    {cmp_txt}
    s_nop 2
    s_cmp_eq_u64 vcc, -1
    s_cbranch_scc0 L_pspin{n}
L_pok{n}:"""))
    def spoll_issue(self, n, off):
        self.P(f"s_load_dwordx{2*n} {s(4,2*n)}, s[22:23], {s(off)} glc")
    def spoll(self, n, off, ignore_from=None):
        P, lb = self.P, f"{self.name}{self.nl}"; self.nl += 1
        P.add(WaitLds())
        t = f"    s_mov_b32 {s(S_SPIN)}, 0x40000\nL_sp{lb}:\n"
        for i in range(n - 1):
            if ignore_from is not None:
                t += f"    s_cmp_lt_u32 {s(ignore_from)}, {n - i}\n    s_cselect_b64 {s(4+2*i,2)}, {s(S_EP,2)}, {s(4+2*i,2)}\n"
        for i in range(n):
            t += f"    s_xor_b64 {s(4+2*i,2)}, {s(4+2*i,2)}, {s(S_EP,2)}\n"
            if i: t += f"    s_or_b64 s[4:5], s[4:5], {s(4+2*i,2)}\n"
        t += (f"    s_cmp_eq_u64 s[4:5], 0\n    s_cbranch_scc1 L_spok{lb}\n"
              f"    s_load_dwordx{2*n} {s(4,2*n)}, s[22:23], {s(off)} glc\n"
              f"    s_sub_u32 {s(S_SPIN)}, {s(S_SPIN)}, 1\n    s_waitcnt lgkmcnt(0)\n    s_cbranch_scc0 L_sp{lb}\nL_spok{lb}:")
        P.add(Raw(t))
    def finish(self):
        P = self.P
        if OPT["stamps"]:
            P(f"s_memrealtime {s(S_TM,2)}\ns_waitcnt lgkmcnt(0) vmcnt(0)\nv_writelane_b32 {v(V_STAMP)}, {s(S_TM)}, 63")
            P(f"""s_lshl_b32 {s(S_T0)}, s2, 3
s_add_u32 {s(S_T0)}, {s(S_T0)}, {s(S_W4)}
s_add_u32 {s(S_T0)}, {s(S_T0)}, {4 if self.name == "H" else 0}
s_lshl_b32 {s(S_T0)}, {s(S_T0)}, 8
s_add_u32 {s(S_T0)}, {s(S_T0)}, {WS_STAMP}
v_lshlrev_b32 v0, 2, {v(V_LANE)}
buffer_store_dword {v(V_STAMP)}, v0, {s(S_WS,4)}, {s(S_T0)} offen""")
        if OPT["amp"] >= 0 and OPT["amprole"] == (self.name == "H"):
            P(f"""s_cmp_lg_u32 s2, 100
s_cbranch_scc1 L_end
v_readlane_b32 {s(S_T0)}, {v(V_STAMP)}, 0
v_readlane_b32 {s(S_T1)}, {v(V_STAMP)}, 1
s_memrealtime {s(S_TM,2)}
s_sub_u32 {s(S_T1)}, {s(S_T1)}, {s(S_T0)}
s_mul_i32 {s(S_T1)}, {s(S_T1)}, {OPT["ampk"]}
s_lshr_b32 {s(S_T1)}, {s(S_T1)}, {4 if OPT["ampclk"] else 0}
s_min_u32 {s(S_T1)}, {s(S_T1)}, 100000
s_waitcnt lgkmcnt(0)
s_mov_b32 {s(S_T0)}, {s(S_TM)}""")
            P.add(Raw(f"""L_amp{self.name}:
    s_memrealtime {s(S_TM,2)}
    s_waitcnt lgkmcnt(0)
    s_sub_u32 {s(S_K)}, {s(S_TM)}, {s(S_T0)}
    s_cmp_lt_u32 {s(S_K)}, {s(S_T1)}
    s_cbranch_scc1 L_amp{self.name}"""))
        P("s_endpgm")

ws_ld = lambda dst, voff, soff, imm=0, tag=None: Ins(
    f"buffer_load_dwordx4 {dst}, {v(voff)}, {s(S_WS,4)}, {soff} offen{' offset:%d' % imm if imm else ''} sc1", tag)
ws_st = lambda src, voff, soff, imm=0, tag=None: Ins(
    f"buffer_store_dwordx4 {src}, {v(voff)}, {s(S_WS,4)}, {soff} offen{' offset:%d' % imm if imm else ''} sc1", tag)
ep_load = f"buffer_load_dwordx2 {v(EP,2)}, off, {s(S_DBG,4)}, 0 sc1"
flag_load = f"buffer_load_dwordx2 {v(FLG,2)}, {v(V_FOFF)}, {s(S_WS,4)}, {s(S_K)} offen sc1"
flag_cmp = f"v_cmp_eq_u64 vcc, {v(FLG,2)}, {v(EP,2)}"
def flag_store(data_tag, kind):
    if kind == "kv":
        o = lines(f"""v_mul_u32_u24 v0, 56, {v(V_LANE)}
v_add_u32 v0, 88, v0
s_sub_u32 {s(S_T1)}, 31, {s(S_RB)}
s_min_u32 {s(S_T1)}, {s(S_T1)}, 4
v_cmp_gt_u32 vcc, {s(S_T1)}, {v(V_LANE)}
s_cmp_eq_u32 {s(S_RB)}, 0
s_cselect_b32 {s(S_T1)}, 24, {OOB}
v_mov_b32 v5, {s(S_T1)}
v_cndmask_b32 v0, v5, v0, vcc
s_lshl_b32 {s(S_T0)}, {s(S_HEAD)}, 5
s_add_u32 {s(S_T0)}, {s(S_T0)}, {s(S_RB)}
s_lshl_b32 {s(S_T0)}, {s(S_T0)}, 6
s_add_u32 {s(S_T0)}, {s(S_T0)}, {WS_FKV}""")
    else:
        o = lines(f"""v_lshlrev_b32 v0, 8, {v(V_LANE)}
v_cmp_gt_u32 vcc, 8, {v(V_LANE)}
v_mov_b32 v5, {OOB}
v_cndmask_b32 v0, v5, v0, vcc
s_lshl_b32 {s(S_T0)}, {s(S_RB)}, 8
s_add_u32 {s(S_T0)}, {s(S_T0)}, {s(S_HEAD)}
s_lshl_b32 {s(S_T0)}, {s(S_T0)}, 3
s_add_u32 {s(S_T0)}, {s(S_T0)}, { {"ob": WS_FOB, "oa0": WS_FOA, "oa1": WS_FOA + 65536}[kind] }""")
    return o + [WaitTag(data_tag), Ins(f"buffer_store_dwordx2 {v(EP,2)}, v0, {s(S_WS,4)}, {s(S_T0)} offen sc1", "flag")]

def max_tree(dst, regs, init=False):
    regs, o = list(regs), []
    if not init:
        o.append(f"v_max3_f32 {v(dst)}, {v(regs[0])}, {v(regs[1])}, {v(regs[2])}"); regs = regs[3:]
    while len(regs) >= 2:
        o.append(f"v_max3_f32 {v(dst)}, {v(dst)}, {v(regs[0])}, {v(regs[1])}"); regs = regs[2:]
    if regs: o.append(f"v_max_f32 {v(dst)}, {v(dst)}, {v(regs[0])}")
    return o
def cross_max(m, t):
    return [f"v_mov_b32 {v(t)}, {v(m)}", f"v_permlane32_swap_b32 {v(m)}, {v(t)}", f"v_max_f32 {v(m)}, {v(m)}, {v(t)}"]

def attn_setup(t, tmp):
    r5, hh, cm, u = tmp, tmp + 1, tmp + 2, tmp + 3
    o = lines(f"""v_and_b32 {v(r5)}, 31, {v(V_LANE)}
v_lshrrev_b32 {v(hh)}, 5, {v(V_LANE)}
v_lshlrev_b32 {v(u)}, 2, {v(hh)}
v_sub_u32 {v(cm)}, {v(r5)}, {v(u)}
s_mul_i32 {s(S_T2)}, {s(S_W4)}, {KVH}
s_add_u32 {s(S_T2)}, {s(S_T2)}, {L_KV + t*KVS}
v_add_u32 {v(V_AK)}, {s(S_T2)}, {v(V_L16)}
v_and_b32 {v(u)}, 15, {v(V_LANE)}
v_lshlrev_b32 {v(u)}, 4, {v(u)}
v_lshl_add_u32 {v(u)}, {v(hh)}, 8, {v(u)}
v_mov_b32 {v(hh)}, 0x400
v_cndmask_b32 {v(V_AV0)}, {v(hh)}, {v(u)}, {s(S_LO16,2)}
v_mov_b32 {v(hh)}, 0x200
v_cndmask_b32 {v(V_AV1)}, {v(hh)}, {v(u)}, {s(S_LO16,2)}
v_add_u32 {v(V_AV0)}, {s(S_T2)}, {v(V_AV0)}
v_add_u32 {v(V_AV1)}, {s(S_T2)}, {v(V_AV1)}
v_mov_b32 {v(u)}, 0xffff""")
    o += [f"v_cmp_le_i32 {s(S_MASK+2*q,2)}, {8*(q>>2)+(q&3)}, {v(cm)}" for q in range(16)]
    o += [f"v_cndmask_b32 {v(PM+pq)}, 0, {v(u)}, {s(S_MASK+4*pq,2)}" for pq in range(8)]
    o += [f"v_cndmask_b32 {v(PM+pq)}, {v(PM+pq)}, -1, {s(S_MASK+4*pq+2,2)}" for pq in range(8)]
    return o

def gate_finish(tiles, addr, tmp):
    o = [f"ds_read_b128 {v(tmp+4*t,4)}, {v(addr)} offset:{512*t}" for t in tiles]
    seq = []
    for t in tiles:
        b = tmp + 4*t
        seq.append([f"v_add_f32 {v(b)}, {v(b)}, {v(b+1)}", f"v_add_f32 {v(b+2)}, {v(b+2)}, {v(b+3)}",
                    f"v_add_f32 {v(b)}, {v(b)}, {v(b+2)}", f"v_mul_f32 {v(b)}, {fhex(-math.log2(math.e))}, {v(b)}",
                    f"v_exp_f32 {v(b)}, {v(b)}", f"v_add_f32 {v(b)}, 1.0, {v(b)}", f"v_rcp_f32 {v(G0+t)}, {v(b)}"])
    return o + interleave(*seq)

def o_pack(acc, o0, lreg, fac, dst, f):
    return ([f"v_rcp_f32 {v(f)}, {v(acc+lreg)}"] + fac +
            [f"v_mul_f32 {v(acc+o0+i)}, {v(f)}, {v(acc+o0+i)}" for i in range(8)] +
            [f"v_cvt_pk_bf16_f32 {v(dst+i)}, {v(acc+o0+2*i)}, {v(acc+o0+2*i+1)}" for i in range(4)])
def o_store(br, tt, src, tag):
    return [f"s_lshl_b32 {s(S_T0)}, {s(S_RB)}, 17", f"s_lshl_b32 {s(S_T1)}, {s(S_HEAD)}, 10",
            f"s_add_u32 {s(S_T0)}, {s(S_T0)}, {s(S_T1)}", f"s_add_u32 {s(S_T0)}, {s(S_T0)}, {WS_O + br*65536 + tt*32768}",
            ws_st(v(src,4), V_L16, s(S_T0), 0, tag)]

CMA = 64
def window_attention(R, events):
    P = R.P
    Q = lambda t: v((QA, QA1)[t], 4)
    kfr = lambda u: v(KF+4*(u & 1), 4) if u < 8 else v(KA+4*(u-8), 4)
    vfr = lambda u, m: v(VF+8*(u & 1)+4*m, 4) if u < 8 else v(VA+8*(u-8)+4*m, 4)
    kread = lambda u: [f"ds_read_b128 {kfr(u)}, {v(V_AK)} offset:{u*KVS}"] if u < 8 else []
    vread = lambda u: [f"ds_read_b128 {vfr(u,0)}, {v(V_AV0)} offset:{u*KVS+1024}",
                       f"ds_read_b128 {vfr(u,1)}, {v(V_AV1)} offset:{u*KVS+1536}"] if u < 8 else []
    M = (TMP, TMP + 2)
    acc = lambda t: v(OACC2[t], 16)
    negm = lambda t: v(NEGM+16*t, 16)
    exps = lambda S: [f"v_exp_f32 {v(S+i)}, {v(S+i)}" for i in range(16)]
    cvts = lambda d, S: [f"v_cvt_pk_bf16_f32 {v(d+k)}, {v(S+2*k)}, {v(S+2*k+1)}" for k in range(8)]
    ev = lambda key: events.pop(key)() if key in events else None
    P(mfma(v(SB+16,16), kfr(8), Q(1), negm(1))); P(mfma(v(MG,16), kfr(8), Q(0), negm(0)))
    P("s_barrier")
    R.stamp()
    P.add(kread(0) + kread(1) + vread(0) + vread(1))
    ev("pre")
    e, c = exps(SB+16), cvts(PB+8, SB+16)
    P.add(e[0:4]); P(mfma(v(SB,16), kfr(0), Q(0), negm(0))); P.add(kread(2)); P.add(e[4:8]); P.add(c[0:4])
    P(mfma(v(MG+16,16), kfr(9), Q(1), negm(1))); P.add(e[8:12])
    P(mfma(acc(1), vfr(8,0), v(PB+8,4), "0")); P.add(e[12:16]); P.add(c[4:8])
    pend = [mfma(v(SB+16,16), kfr(1), Q(1), negm(1)), mfma(acc(1), vfr(8,1), v(PB+12,4), acc(1))]
    for t in range(2):
        g = MG + 16*t
        seq = [f"v_cndmask_b32 {v(g+i)}, {v(SB+16*t+i)}, {v(g+i)}, {s(S_MASK+2*i,2)}" for i in range(16)]
        seq += [[mfma(v(SB+16*t,16), kfr(1+t), Q(t), negm(t))] + (kread(3) if t == 0 else [])]
        seq += exps(g) + cvts(PF, g)
        seq += [f"v_and_b32 {v(PB+8*t+i)}, {v(PM+i)}, {v(PF+i)}" for i in range(8)]
        seq += [f"v_xor_b32 {v(g+i)}, {v(PF+i)}, {v(PB+8*t+i)}" for i in range(8)]
        at = (0, 8) if t == 0 else (1, 9, 21, 26)
        for i, x in enumerate(seq):
            P.add(x)
            if i in at: P.add(pend.pop(0))
        pend = [mfma(acc(t), vfr(8+t,0), v(PB+8*t,4), acc(1) if t else "0"), mfma(acc(t), vfr(8+t,1), v(PB+8*t+4,4), acc(t)),
                mfma(acc(t), vfr(t,0), v(g,4), acc(t)), [mfma(acc(t), vfr(t,1), v(g+4,4), acc(t))] + (vread(2) if t == 0 else [])]
    R.stamp()
    if OPT["t2"]: P("s_barrier")
    ev("e1")
    for hs in range(13):
        t = hs & 1; u = (hs >> 1) + 1 + t
        S, Pp = SB + 16*t, PB + 8*t
        e, c = exps(S), cvts(Pp, S)
        nxt = None
        if t == 0 and 0 < hs < 12: nxt = [mfma(v(SB+16,16), kfr(u+1), Q(1), negm(1))]
        if t == 1: nxt = [mfma(v(SB,16), kfr(u), Q(0), negm(0))] + kread(u+2)
        if hs == 0:
            P.add(e[0:2]); P.add(pend[0]); P.add(e[2:5]); P.add(pend[1]); P.add(e[5:8]); P.add(pend[2])
            P.add(c[0:4]); P.add(e[8:10]); P.add(pend[3]); P.add(e[10:14])
            P(mfma(acc(t), vfr(u,0), v(Pp,4), acc(t))); P.add(e[14:16]); P.add(c[4:8])
        else:
            P.add(e[0:2]); P.add(pend); P.add(e[2:6])
            if nxt: P.add(nxt)
            P.add(e[6:8]); P.add(c[0:4]); P.add(e[8:10])
            P(mfma(acc(t), vfr(u,0), v(Pp,4), acc(t)))
            P.add(e[10:16]); P.add(c[4:8])
        pend = [mfma(acc(t), vfr(u,1), v(Pp+4,4), acc(t))] + (vread(u+2) if t == 0 else [])
        ev(hs)
    P.add(pend)
    assert not events, events
    P(f"s_mov_b32 {s(S_T1)}, 0x7b800000")
    for t in (1, 0):
        o, m = OACC2[t], M[t]
        P.add([f"v_add_f32 {v(m)}, abs({v(o)}), abs({v(o+8)})", f"v_add_f32 {v(m+1)}, abs({v(o+1)}), abs({v(o+2)})"] +
              [f"v_add_f32 {v(m+(i&1))}, {v(m+(i&1))}, abs({v(o+i)})" for i in range(3, 8)] + [f"v_add_f32 {v(m)}, {v(m)}, {v(m+1)}"])
    P(f"v_add_f32 {v(M[0])}, {v(M[0])}, {v(M[1])}\nv_cmp_lt_f32 vcc, {v(M[0])}, {s(S_T1)}")
    P("s_cmp_eq_u64 vcc, -1\ns_cbranch_scc0 L_exact0\nL_back:")
    R.stamp()

def slow_path():
    return exact_attention(0) + exact_attention(1) + "    s_branch L_back\n"

def exact_attention(t):
    F = Prog(); q, M, acc = v((QA, QA1)[t], 4), TMP, v(OACC2[t], 16)
    KO, VO, G = TMP + 2, TMP + 3, S_T0
    def tile(rel, kdst, vdst):
        o = [f"s_add_i32 {s(S_K)}, {s(G)}, {rel}", f"s_cmp_ge_i32 {s(S_K)}, 0", f"s_cselect_b64 vcc, -1, 0",
             f"s_cselect_b32 {s(S_TM)}, {hex(ONES)}, 0", f"s_max_i32 {s(S_K)}, {s(S_K)}, 0", f"s_lshl_b32 {s(S_K)}, {s(S_K)}, 11",
             f"s_lshl_b32 {s(S_T1)}, {s(S_HEAD)}, 17", f"s_add_u32 {s(S_K)}, {s(S_K)}, {s(S_T1)}",
             f"v_and_b32 {v(KO)}, 0x200, {v(V_L16)}", f"v_cndmask_b32 {v(KO)}, {v(KO)}, {v(V_L16)}, vcc", ws_ld(v(kdst,4), KO, s(S_K))]
        if vdst is not None:
            o += [f"v_mov_b32 {v(vdst+i)}, {s(S_TM)}" for i in range(8)]
            o += [f"s_cmp_lg_u32 {s(S_TM)}, 0", f"s_cselect_b32 {s(S_K)}, {s(S_K)}, {WS_SIZE}", f"s_mov_b64 exec, {s(S_LO16,2)}",
                  ws_ld(v(vdst,4), VO, s(S_K), 1024), ws_ld(v(vdst+4,4), VO, s(S_K), 1536), "s_mov_b64 exec, -1"]
        return o
    F(f"L_exact{t}:\ns_waitcnt vmcnt(0) lgkmcnt(0)\ns_nop 15")
    F(f"""s_lshl_b32 {s(G)}, {s(S_RB)}, 1
s_sub_u32 {s(G)}, {s(G)}, {8 - t}
v_lshrrev_b32 {v(VO)}, 1, {v(V_L16)}
v_and_b32 {v(VO)}, 0x100, {v(VO)}
v_and_b32 {v(KO)}, 0xf0, {v(V_L16)}
v_or_b32 {v(VO)}, {v(VO)}, {v(KO)}""")
    F.add(tile(8, KF, VF)); F.add(tile(0, KF+4, VF+8))
    F(mfma(v(MG,16), v(KF,4), q, "0")); F(mfma(v(SB,16), v(KF+4,4), q, "0"))
    F.add([f"v_cndmask_b32 {v(MG+i)}, {v(SB+i)}, {v(MG+i)}, {s(S_MASK+2*i,2)}" for i in range(16)])
    F.add(max_tree(M, range(MG, MG+16)))
    F(f"s_mov_b32 {s(S_TM+1)}, 7\nL_exact_m{t}:\ns_add_u32 {s(G)}, {s(G)}, 1")
    F.add(tile(0, KF, None))
    F(mfma(v(SB,16), v(KF,4), q, "0"))
    F.add(max_tree(M, range(SB, SB+16), init=True))
    F(f"s_sub_u32 {s(S_TM+1)}, {s(S_TM+1)}, 1\ns_cmp_lg_u32 {s(S_TM+1)}, 0\ns_cbranch_scc1 L_exact_m{t}")
    F.add(cross_max(M, M+1))
    F.add([f"v_sub_f32 {v(MG+i)}, {v(MG+i)}, {v(M)}" for i in range(16)])
    F.add([f"v_exp_f32 {v(MG+i)}, {v(MG+i)}" for i in range(16)])
    F.add([f"v_cvt_pk_bf16_f32 {v(PF+i)}, {v(MG+2*i)}, {v(MG+2*i+1)}" for i in range(8)])
    F.add([f"v_and_b32 {v(PB+i)}, {v(PM+i)}, {v(PF+i)}" for i in range(8)])
    F.add([f"v_xor_b32 {v(PF+i)}, {v(PF+i)}, {v(PB+i)}" for i in range(8)])
    F(mfma(acc, v(VF,4), v(PB,4), "0")); F(mfma(acc, v(VF+4,4), v(PB+4,4), acc))
    F(mfma(acc, v(VF+8,4), v(PF,4), acc)); F(mfma(acc, v(VF+12,4), v(PF+4,4), acc))
    F(f"s_sub_u32 {s(G)}, {s(G)}, 7\ns_mov_b32 {s(S_TM+1)}, 7\ns_nop 15\nL_exact_e{t}:\ns_add_u32 {s(G)}, {s(G)}, 1")
    F.add(tile(0, KF, VF))
    F(mfma(v(SB,16), v(KF,4), q, "0"))
    F.add([f"v_sub_f32 {v(SB+i)}, {v(SB+i)}, {v(M)}" for i in range(16)])
    F.add([f"v_exp_f32 {v(SB+i)}, {v(SB+i)}" for i in range(16)])
    F.add([f"v_cvt_pk_bf16_f32 {v(PB+i)}, {v(SB+2*i)}, {v(SB+2*i+1)}" for i in range(8)])
    F(mfma(acc, v(VF,4), v(PB,4), acc)); F(mfma(acc, v(VF+4,4), v(PB+4,4), acc))
    F(f"s_nop 15\ns_sub_u32 {s(S_TM+1)}, {s(S_TM+1)}, 1\ns_cmp_lg_u32 {s(S_TM+1)}, 0\ns_cbranch_scc1 L_exact_e{t}")
    return finalize(F)

E = Prog()
hb = {4: 2, 3: 1, 2: 0, 1: 3}[OPT["xmap"]]
if OPT["stamps"] or OPT["amp"] >= 0:
    E("s_memtime s[64:65]\ns_memrealtime s[66:67]")
def entry_stamp():
    if OPT["stamps"]:
        return [f"v_mov_b32 {v(V_STAMP)}, 0", f"v_writelane_b32 {v(V_STAMP)}, s64, 0", f"v_writelane_b32 {v(V_STAMP)}, s66, 62"]
    if OPT["amp"] >= 0:
        return [f"v_mov_b32 {v(V_STAMP)}, 0", f"v_writelane_b32 {v(V_STAMP)}, {'s64' if OPT['ampclk'] else 's66'}, 0"]
    return []
code_pf = f"""s_getpc_b64 {s(S_T2,2)}
L_pc:
s_lshl2_add_u32 {s(S_T1)}, {s(S_T0)}, {s(S_W4)}
s_and_b32 {s(S_T1)}, {s(S_T1)}, 63
s_lshl_b32 {s(S_T1)}, {s(S_T1)}, 9
s_sub_u32 {s(S_T2)}, {s(S_T2)}, L_pc-{NAME}_kernel
s_subb_u32 {s(S_T3)}, {s(S_T3)}, 0
v_and_b32 v5, 3, {v(V_LANE)}
v_lshl_add_u32 v5, v5, 7, {s(S_T1)}
global_load_dword v13, v5, {s(S_T2,2)}"""
if OPT["cpf"] == 2:
    E(f"""s_getpc_b64 {s(S_T2,2)}
s_bfe_u32 {s(S_T1)}, s2, 0x50003
v_lshrrev_b32 v5, 6, v0
v_lshlrev_b32 v5, 7, v5
v_lshl_add_u32 v5, {s(S_T1)}, 10, v5
global_load_dword v13, v5, {s(S_T2,2)}""")
if OPT["cpf"] == 3:
    E(f"""s_getpc_b64 {s(S_T2,2)}
s_bfe_u32 {s(S_T1)}, s2, 0x30003
v_lshrrev_b32 v5, 4, v0
v_lshlrev_b32 v5, 7, v5
v_lshl_add_u32 v5, {s(S_T1)}, 12, v5
global_load_dword v13, v5, {s(S_T2,2)}""")
E(f"""
s_cmp_ge_u32 s2, 256
s_cbranch_scc1 L_end
s_load_dwordx16 s[4:19], s[0:1], 0
s_load_dwordx4 s[20:23], s[0:1], 64
v_lshrrev_b32 v4, 6, v0
v_and_b32 {v(V_LANE)}, 63, v0
s_lshr_b32 {s(S_T0)}, s2, 3
v_readfirstlane_b32 {s(S_MX)}, v4
""")
E(f"""
s_and_b32 {s(S_T1)}, s2, {(8 >> hb) - 1}
s_lshl_b32 {s(S_HG)}, {s(S_T1)}, {hb}
s_and_b32 {s(S_K)}, {s(S_T0)}, {(1 << hb) - 1}
s_add_u32 {s(S_HG)}, {s(S_HG)}, {s(S_K)}
s_bfe_u32 {s(S_K)}, s2, {hex((hb << 16) | (3 - hb))}
s_lshl_b32 {s(S_RB)}, {s(S_K)}, {5 - hb}
s_lshr_b32 {s(S_ROT)}, {s(S_T0)}, {hb}
s_add_u32 {s(S_RB)}, {s(S_RB)}, {s(S_ROT)}
s_and_b32 {s(S_W4)}, {s(S_MX)}, 3
""")
if OPT["cpf"] == 1:
    E(f"""s_cmp_lt_u32 {s(S_MX)}, 4
s_cbranch_scc0 L_hrole""")
    E(code_pf)
    E("s_branch L_crole\nL_hrole:")
elif OPT["cpf"] >= 4:
    E(f"""s_cmp_lt_u32 {s(S_MX)}, 4
s_cbranch_scc0 L_hrole
s_getpc_b64 {s(S_T2,2)}
L_pc:
s_lshl2_add_u32 {s(S_T1)}, {s(S_T0)}, {s(S_W4)}
s_lshl_b32 {s(S_T1)}, {s(S_T1)}, 8
s_sub_u32 {s(S_T2)}, {s(S_T2)}, L_pc-{NAME}_kernel
s_subb_u32 {s(S_T3)}, {s(S_T3)}, 0
s_load_dword s70, {s(S_T2,2)}, {s(S_T1)}
s_add_u32 {s(S_T1)}, {s(S_T1)}, 128
s_load_dword s71, {s(S_T2,2)}, {s(S_T1)}""")
    if OPT["cpf"] == 5:
        E("s_waitcnt lgkmcnt(0)")
        for i, ptr in enumerate((6, 12, 4, 16, 20, 8, 14, 18, 22)):
            E(f"s_load_dword s{72+i}, {s(ptr,2)}, 0")
        for i in range(1, 5):
            E(f"s_mov_b32 {s(S_T1)}, {i << 21}\ns_load_dword s{80+i}, s[22:23], {s(S_T1)}")
    E("s_branch L_crole\nL_hrole:")
else:
    E(f"s_cmp_lt_u32 {s(S_MX)}, 4\ns_cbranch_scc1 L_crole")
late_ids = lines(f"""
s_lshr_b32 {s(S_T0)}, s2, 3
s_and_b32 {s(S_RB3)}, s2, 7
s_lshl_b32 {s(S_RB3)}, {s(S_RB3)}, 2
s_lshr_b32 {s(S_T1)}, {s(S_T0)}, 3
s_add_u32 {s(S_RB3)}, {s(S_RB3)}, {s(S_T1)}
s_and_b32 {s(S_CB)}, {s(S_T0)}, 7
s_lshl_b32 {s(S_HEAD)}, {s(S_HG)}, 2
s_add_u32 {s(S_HEAD)}, {s(S_HEAD)}, {s(S_W4)}
s_mov_b32 {s(S_LO16)}, 0xffff
s_mov_b32 {s(S_LO16+1)}, 0xffff
v_lshlrev_b32 {v(V_L16)}, 4, {v(V_LANE)}
""")
rot_code = {
 0: f"s_and_b32 {s(S_ROT)}, {s(S_ROT)}, {OPT['rotmask']}",
 1: f"s_and_b32 {s(S_ROT)}, s2, 7",
 4: f"s_add_u32 {s(S_ROT)}, {s(S_ROT)}, {s(S_HG)}\ns_and_b32 {s(S_ROT)}, {s(S_ROT)}, 7",
 5: f"s_add_u32 {s(S_ROT)}, {s(S_ROT)}, {s(S_HG)}\ns_and_b32 {s(S_ROT)}, {s(S_ROT)}, 3\ns_lshl_b32 {s(S_ROT)}, {s(S_ROT)}, 1",
 6: f"s_add_u32 {s(S_ROT)}, {s(S_ROT)}, {s(S_HG)}\ns_and_b32 {s(S_ROT)}, {s(S_ROT)}, 1\ns_lshl_b32 {s(S_ROT)}, {s(S_ROT)}, 2",
}[OPT["rotmode"]]

def stage_of(n): return n if n < 16 else 16 + ((n - 16) >> 1)
def first_of_stage(n): return n < 32 and (n == 0 or stage_of(n) != stage_of(n - 1))
def mfma16(d, a, b, c): return f"v_mfma_f32_16x16x32_bf16 {d}, {a}, {b}, {c}"

H = Role("H"); P = H.P
VX, VW1, VW2 = 160, 162, 166
V_AXW, V_AG, V_GPW, GACC, XW, GF = 170, 171, 172, 174, 176, 184
i3, i4, p7, t0, t1, t2 = 32, 33, 34, 35, 36, 37
def raw(i):
    if OPT["fine"] == 3: P(f"s_memtime s[{68+2*i}:{69+2*i}]")
raw(0)
P(rot_code)
P(f"""
v_lshrrev_b32 {v(i3)}, 3, {v(V_LANE)}
v_lshrrev_b32 {v(i4)}, 4, {v(V_LANE)}
v_and_b32 {v(p7)}, 7, {v(V_LANE)}
s_lshl_b32 {s(S_T0)}, {s(S_W4)}, 4
v_add_u32 {v(t0)}, {s(S_T0)}, {v(i3)}
v_lshlrev_b32 {v(t0)}, 10, {v(t0)}
v_xor_b32 {v(t1)}, {v(p7)}, {v(i4)}
v_lshl_add_u32 {v(VX)}, {v(t1)}, 4, {v(t0)}
v_xor_b32 {v(VX+1)}, 64, {v(VX)}
v_add_u32 {v(VX+1)}, {0x2000 - 1024}, {v(VX+1)}
s_lshr_b32 {s(S_T0)}, {s(S_W4)}, 1
s_and_b32 {s(S_T1)}, {s(S_W4)}, 1
s_lshl_b32 {s(S_K)}, {s(S_T0)}, 4
v_add_u32 {v(t0)}, {s(S_K)}, {v(i4)}
v_mul_u32_u24 {v(t0)}, 0xc00, {v(t0)}
v_lshlrev_b32 {v(t1)}, 1, {v(i4)}
v_xor_b32 {v(t1)}, {v(t1)}, {v(p7)}
v_lshl_add_u32 {v(t0)}, {v(t1)}, 4, {v(t0)}
v_and_b32 {v(t1)}, 1, {v(i3)}
v_xor_b32 {v(t1)}, {s(S_T1)}, {v(t1)}
v_lshlrev_b32 {v(t1)}, 10, {v(t1)}
s_lshl_b32 {s(S_T2)}, {s(S_HG)}, 7
s_add_u32 {s(S_K)}, {s(S_T2)}, 1024
v_add3_u32 {v(VW1)}, {v(t0)}, {v(t1)}, {s(S_K)}
v_add_u32 {v(VW1+1)}, {12288 - 1024}, {v(VW1)}
v_xor_b32 {v(t1)}, 0x400, {v(t1)}
v_add3_u32 {v(VW1+2)}, {v(t0)}, {v(t1)}, {s(S_K)}
v_add_u32 {v(VW1+3)}, {3*(12288 - 1024)}, {v(VW1+2)}
v_add_u32 {v(VW1+2)}, {2*(12288 - 1024)}, {v(VW1+2)}
s_lshl_b32 {s(S_MW)}, {s(S_T1)}, 13
s_lshl_b32 {s(S_K)}, {s(S_T0)}, 12
s_add_u32 {s(S_MW)}, {s(S_MW)}, {s(S_K)}
s_lshl_b32 {s(S_MX)}, {s(S_W4)}, 11
s_add_u32 {s(S_MX)}, {s(S_MX)}, {L_X}""")
raw(1)
P("s_waitcnt lgkmcnt(0)")
if OPT["wsoff"]: P(f"s_add_u32 s22, s22, {OPT['wsoff'] << 20}\ns_addc_u32 s23, s23, 0")
raw(2)
P.add(entry_stamp())
P.add(srd(S_X, 4, 2097152))
P(f"""s_cmp_eq_u32 {s(S_T1)}, 0
s_cselect_b32 {s(S_W)}, s6, s12
s_cselect_b32 {s(S_W+1)}, s7, s13
s_mov_b32 {s(S_W+2)}, 1572864
s_mov_b32 {s(S_W+3)}, 0x20000""")
if OPT["fine"] != 3: H.stamp()
def dma(voff, rsrc, soff, imm, tag, flags=""):
    flags = flags or ("", " sc1", " nt", " sc0", " sc0 sc1")[OPT["dfl"]]
    return Ins(f"buffer_load_dwordx4 {v(voff)}, {s(rsrc,4)}, {soff} offen{' offset:%d' % imm if imm else ''}{flags} lds", tag)
def x_dma(j):
    return [f"s_add_u32 {s(S_K)}, {s(S_ROT)}, {j}", f"s_and_b32 {s(S_K)}, {s(S_K)}, 7", f"s_lshl_b32 {s(S_K)}, {s(S_K)}, 7",
            f"s_lshl_b32 {s(S_T2)}, {s(S_RB)}, 16", f"s_add_u32 m0, {s(S_MX)}, {j*8192}", f"s_add_u32 {s(S_K)}, {s(S_K)}, {s(S_T2)}",
            dma(VX, S_X, s(S_K), 0, f"x{j}"), dma(VX+1, S_X, s(S_K), 1024, f"x{j}")]
def w_dma(S):
    if S < 16:
        o = [f"s_lshl_b32 {s(S_T3)}, {s(S_ROT)}, 1", f"s_add_u32 {s(S_T3)}, {s(S_T3)}, {S}", f"s_and_b32 {s(S_T3)}, {s(S_T3)}, 15"]
    else:
        o = [f"s_add_u32 {s(S_T3)}, {s(S_ROT)}, {S-16}", f"s_and_b32 {s(S_T3)}, {s(S_T3)}, 7"]
    o += [f"s_add_u32 m0, {s(S_MW)}, {(S % NSLOT)*SLOT}", f"s_mul_i32 {s(S_T3)}, {s(S_T3)}, {(32 if S < 16 else 64)*3072}"]
    return o + [dma((VW1 if S < 16 else VW2) + t, S_W, s(S_T3), t*1024, f"w{S}") for t in range(4)]
P.add(x_dma(0)); raw(3)
P.add(w_dma(0)); raw(4)
P.add(w_dma(1)); raw(5)
P(f"""s_lshl_b32 {s(S_K)}, {s(S_ROT)}, 3
v_add_u32 {v(t2)}, {s(S_K)}, {v(V_LANE)}
v_and_b32 {v(t2)}, 63, {v(t2)}
v_lshlrev_b32 {v(t2)}, 4, {v(t2)}""")
P.add(srd(S_G, 16, 1024)); P(f"s_mov_b32 m0, {L_G}"); P.add(dma(t2, S_G, "0", 0, "w1"))
P.add(late_ids)
h_misc = lines(f"""
s_lshr_b32 {s(S_T0)}, {s(S_W4)}, 1
s_and_b32 {s(S_T1)}, {s(S_W4)}, 1
s_lshl_b32 {s(S_T0)}, {s(S_T0)}, 5
v_add_u32 {v(t0)}, {s(S_T0)}, {v(i3)}
v_mul_u32_u24 {v(t0)}, 0xc00, {v(t0)}
v_and_b32 {v(t1)}, 1, {v(i4)}
v_lshlrev_b32 {v(t1)}, 1, {v(t1)}
v_xor_b32 {v(t1)}, {v(t1)}, {v(p7)}
v_lshlrev_b32 {v(t1)}, 4, {v(t1)}
s_lshl_b32 {s(S_T0)}, {s(S_HG)}, 7
v_add3_u32 {v(VW2)}, {v(t0)}, {v(t1)}, {s(S_T0)}
v_xor_b32 {v(t1)}, 64, {v(t1)}
v_add3_u32 {v(VW2+1)}, {v(t0)}, {v(t1)}, {s(S_T0)}
v_add_u32 {v(VW2+2)}, {2*(24576 - 1024)}, {v(VW2)}
v_add_u32 {v(VW2+3)}, {3*(24576 - 1024)}, {v(VW2+1)}
v_add_u32 {v(VW2+1)}, {24576 - 1024}, {v(VW2+1)}
""") + srd(S_WS, 22, WS_SIZE) + srd(S_DBG, 20, 256)
P.add(h_misc)
if OPT["fine"] == 3:
    raw(6); P("s_waitcnt vmcnt(9)"); raw(7); P("s_waitcnt vmcnt(5)"); raw(8); P("s_waitcnt lgkmcnt(0)")
    for i in range(9):
        P(f"v_writelane_b32 {v(V_STAMP)}, s{68+2*i}, {i+1}")
    H.ns = 9
VWO, VKF, V1A, V1D, V_MB, V_HB = 160, 161, 162, 164, 12, 13
txt_of = lambda x: x.text if isinstance(x, Ins) else x
special_txt = []
def gather(tiles, special):
    o = []
    if 1 in tiles:
        o += [f"s_lshl_b32 {s(S_K)}, {s(S_HEAD)}, 17", f"s_lshl_b32 {s(S_T1)}, {s(S_RB)}, 12",
              f"s_add_u32 {s(S_T2)}, {s(S_K)}, {s(S_T1)}", f"s_sub_u32 {s(S_T2)}, {s(S_T2)}, {8*2048}"]
    for u in tiles:
        tag = "kv" if u < 4 or not OPT["t2"] else "kvb"
        o += [f"s_add_u32 {s(S_T0)}, {s(S_T2)}, {u*2048}", f"s_add_u32 m0, {s(S_MW)}, {u*KVS}"]
        if special:
            o += [f"s_cmp_ge_u32 {s(S_RB)}, {(8-u+1)//2}", f"s_cbranch_scc1 L_gk{u}",
                  dma(VKF, S_WS, s(S_K), 0, None, " sc1"), f"s_mov_b32 {s(S_T0)}, {WS_SIZE}", f"s_branch L_gk{u}e", f"L_gk{u}:",
                  dma(V_L16, S_WS, s(S_T0), 0, None, " sc1"), f"L_gk{u}e:"]
        else:
            o += [dma(V_L16, S_WS, s(S_T0), 0, tag, " sc1")]
        o += [dma(V_L16, S_WS, s(S_T0), 1024, tag, " sc1")]
    return o
def emit_gather(n, tiles):
    P(f"s_cmp_lt_u32 {s(S_RB)}, 4\ns_cbranch_scc1 L_gspecial{n}")
    P.add(gather(tiles, False)); P(f"L_gdone{n}:")
    special_txt.append(f"L_gspecial{n}:\n" + "\n".join(("" if txt_of(x).endswith(":") else "    ") + txt_of(x) for x in gather(tiles, True))
                       + f"\n    s_branch L_gdone{n}\n")
S_R3, S_WB, S_MA, S_MB = 24, 25, 30, 31
B0, B1, A0, A1, A2, A3, VOG, EXW, EXR, VOUT = 16, 17, 24, 25, 26, 27, 18, 20, 23, 19
ACC3, OFB, OFA, WBF = 32, 96, 192, 176
issued_w, issued_x = 2, 1

for S in range(25):
    if S < 24:
        P.add(WaitTag(f"w{S}", f"x{S >> 1}" if S < 16 else "none"))
    if S < 24: P.add(WaitLds())
    P("s_barrier")
    if OPT["fine"] in (1, 2, 3) or S in (0, 16, 24): H.stamp()
    mark = len(P.items)
    top = {0: 3}.get(S, S + 4)
    while issued_w <= min(top, 23):
        if issued_w < 16 and issued_w % 2 == 0 and issued_x <= issued_w // 2:
            P.add(x_dma(issued_x)); issued_x += 1
        P.add(w_dma(issued_w)); issued_w += 1
    if OPT["icpf"] and S == 1:
        t = (f"    s_getpc_b64 s[78:79]\nL_pc:\n    s_sub_u32 s78, s78, L_pc-{NAME}_kernel\n    s_subb_u32 s79, s79, 0\n    s_lshr_b32 {s(S_T1)}, s2, 3\n"
             f"    s_lshl2_add_u32 {s(S_T1)}, {s(S_T1)}, {s(S_W4)}\n    s_lshl_b32 {s(S_T1)}, {s(S_T1)}, 8\n")
        t += "".join(f"    s_load_dword s{80+i}, s[78:79], {s(S_T1)} offset:{i*64}\n" for i in range(4))
        P.add(Raw(t))
    if OPT["tlb"] and S in (3, 4, 5, 6):
        for i, (ptr, off) in enumerate({3: ((22, 0), (22, 1)), 4: ((22, 2), (22, 4)), 5: ((22, 3), (20, 0)), 6: ((18, 0),)}[S]):
            P.add(Raw(f"    s_mov_b32 {s(S_T1)}, {off << 21}\n    s_load_dword s{70+i}, {s(ptr,2)}, {s(S_T1)}"))
    if OPT["wopf"] and S in (8, 9, 10, 11):
        ptr, half = (14, 8)[(S - 8) >> 1], S & 1
        t = f"    s_lshl2_add_u32 {s(S_T1)}, s2, {s(S_W4)}\n    s_lshl_b32 {s(S_T1)}, {s(S_T1)}, 9\n"
        t += "".join(f"    s_load_dword s{73+i}, {s(ptr,2)}, {s(S_T1)} offset:{half*256+i*64}\n" for i in range(4))
        P.add(Raw(t))
    if S == 8: P(ep_load)
    if S == 14:
        P(f"""v_lshrrev_b32 v48, 5, {v(V_LANE)}
v_bfe_u32 v49, {v(V_LANE)}, 2, 2
v_lshl_add_u32 v48, v48, 2, v49
v_and_b32 v49, 2, v49
v_bfe_u32 v50, {v(V_LANE)}, 4, 1
v_xor_b32 v49, v49, v50
s_and_b32 {s(S_T1)}, {s(S_W4)}, 1
s_lshl_b32 {s(S_T1)}, {s(S_T1)}, 1
s_lshr_b32 {s(S_T0)}, {s(S_W4)}, 1
s_or_b32 {s(S_T1)}, {s(S_T1)}, {s(S_T0)}
v_xor_b32 v49, {s(S_T1)}, v49
v_lshlrev_b32 v49, 5, v49
v_lshl_add_u32 v48, v48, 7, v49
v_and_b32 v49, 3, {v(V_LANE)}
v_lshl_add_u32 v48, v49, 3, v48
s_lshl_b32 {s(S_MX)}, {s(S_W4)}, 14
v_add_u32 {v(B0)}, {s(S_MX)}, v48
v_xor_b32 {v(B1)}, 64, {v(B0)}
v_xor_b32 v49, 64, v48
s_mul_i32 {s(S_T0)}, {s(S_W4)}, 6144
s_add_u32 {s(S_T0)}, {s(S_T0)}, {L_WA}
v_add_u32 {v(A0)}, {s(S_T0)}, v48
v_add_u32 {v(A1)}, {s(S_T0)}, v49
s_mul_i32 {s(S_T0)}, {s(S_W4)}, 10240
s_add_u32 {s(S_T0)}, {s(S_T0)}, {L_KV}
v_add_u32 {v(A2)}, {s(S_T0)}, v48
v_add_u32 {v(A3)}, {s(S_T0)}, v49
""")
    if S == 15:
        P(f"s_mul_i32 {s(S_T0)}, {s(S_W4)}, 6144\nv_add_u32 {v(EXR)}, {s(S_T0)}, {v(V_L16)}")
        for i in range(1, 4):
            P(f"s_xor_b32 {s(S_T0)}, {s(S_W4)}, {i}\ns_mul_i32 {s(S_T0)}, {s(S_T0)}, 6144\nv_add_u32 {v(EXW+i-1)}, {s(S_T0)}, {v(V_L16)}")
        P(f"""v_and_b32 {v(VOUT)}, 31, {v(V_LANE)}
v_lshlrev_b32 {v(VOUT)}, 10, {v(VOUT)}
v_lshrrev_b32 v48, 5, {v(V_LANE)}
v_lshl_add_u32 {v(VOUT)}, v48, 4, {v(VOUT)}
s_lshl_b32 {s(S_T0)}, {s(S_RB3)}, 16
s_lshr_b32 {s(S_T1)}, {s(S_W4)}, 1
s_lshl_b32 {s(S_T1)}, {s(S_T1)}, 5
s_add_u32 {s(S_T0)}, {s(S_T0)}, {s(S_T1)}
s_lshl_b32 {s(S_T1)}, {s(S_CB)}, 7
s_add_u32 {s(S_T0)}, {s(S_T0)}, {s(S_T1)}
s_and_b32 {s(S_T1)}, {s(S_W4)}, 1
s_lshl_b32 {s(S_T1)}, {s(S_T1)}, 6
s_add_u32 {s(S_T0)}, {s(S_T0)}, {s(S_T1)}
v_add_u32 {v(VOUT)}, {s(S_T0)}, {v(VOUT)}
s_lshl_b32 {s(S_T0)}, {s(S_RB3)}, 17
s_lshl_b32 {s(S_T1)}, {s(S_W4)}, 13
s_add_u32 {s(S_T0)}, {s(S_T0)}, {s(S_T1)}
s_add_u32 {s(S_T0)}, {s(S_T0)}, {WS_O}
v_add_u32 {v(VOG)}, {s(S_T0)}, {v(V_L16)}
s_lshl_b32 {s(S_WB)}, {s(S_W4)}, 17
s_lshl_b32 {s(S_T1)}, {s(S_CB)}, 7
s_add_u32 {s(S_WB)}, {s(S_WB)}, {s(S_T1)}
s_lshl3_add_u32 {s(S_R3)}, {s(S_RB3)}, {s(S_CB)}
s_lshl2_add_u32 {s(S_R3)}, {s(S_R3)}, {s(S_W4)}
s_lshl_b32 {s(S_R3)}, {s(S_R3)}, 6""")
    if S == OPT["kvs"]:
        tail = P.items[mark:]; del P.items[mark:]
        P.add(flag_store("none", "kv")); P.items += tail
    if S == 16:
        P("s_waitcnt lgkmcnt(0)")
        H.poll(f"v_cmp_ne_u64 vcc, 0, {v(EP,2)}", ep_load)
        P(f"v_readfirstlane_b32 {s(S_EP)}, {v(EP)}\nv_readfirstlane_b32 {s(S_EP+1)}, {v(EP+1)}")
    if S == 19:
        P.add(srd(S_WOA, 8, 524288) + srd(S_WOB, 14, 524288) + srd(S_OUT, 18, 2097152))
    if S == 20:
        P(f"""v_lshrrev_b32 v48, 3, {v(V_LANE)}
v_bfe_u32 v49, {v(V_LANE)}, 4, 1
v_lshlrev_b32 v49, 2, v49
v_and_b32 v50, 7, {v(V_LANE)}
v_xor_b32 v49, v49, v50
v_lshlrev_b32 v49, 4, v49
v_lshl_add_u32 {v(VWO)}, v48, 10, v49
v_and_b32 {v(VKF)}, 32, {v(V_LANE)}
v_lshlrev_b32 {v(VKF)}, 4, {v(VKF)}
v_mul_u32_u24 {v(V1A)}, {KVS}, v50
s_mul_i32 {s(S_MW)}, {s(S_W4)}, {KVH}
s_add_u32 {s(S_MW)}, {s(S_MW)}, {L_KV}
s_add_u32 {s(S_T0)}, {s(S_MW)}, 2048
v_add_u32 {v(V1A)}, {s(S_T0)}, {v(V1A)}
s_lshl_b32 {s(S_T0)}, {s(S_RB)}, 1
v_add_u32 v48, {s(S_T0)}, v50
v_cmp_le_u32 vcc, 8, v48
v_mov_b32 v49, {hex(ONES)}
v_cndmask_b32 {v(V1D)}, 0, v49, vcc
v_mov_b32 {v(V1D+1)}, {v(V1D)}
v_mov_b32 {v(V1D+2)}, {v(V1D)}
v_mov_b32 {v(V1D+3)}, {v(V1D)}
s_mul_i32 {s(S_MA)}, {s(S_W4)}, 6144
s_add_u32 {s(S_MA)}, {s(S_MA)}, {L_WA}
s_mul_i32 {s(S_MB)}, {s(S_W4)}, 10240
s_add_u32 {s(S_MB)}, {s(S_MB)}, {L_KV - 6144}
s_lshl_b32 {s(S_K)}, {s(S_HEAD)}, 5
s_add_u32 {s(S_K)}, {s(S_K)}, {s(S_RB)}
s_lshl_b32 {s(S_K)}, {s(S_K)}, 6
s_add_u32 {s(S_K)}, {s(S_K)}, {WS_FKV}""")
    if S == OPT["gat"] - 1:
        H.spoll_issue(4, S_K); H.spoll(4, S_K, ignore_from=S_RB)
        H.stamp()
    if S == 20:
        P.add([f"v_mov_b32 {v(168+i)}, -1" for i in range(4)])
        P.add(o_store(0, 1, 168, "sent")); P.add(o_store(0, 0, 168, "sent"))
    if S == 23:
        P(f"ds_write_b128 {v(V1A)}, {v(V1D,4)}")
        P.add(WaitTag("sent"))
    if S == 24: P.add(Pace(OPT["pace0"]))
    if S == OPT["gat"] + OPT["gdel"]:
        emit_gather(0, (0, 1, 2, 3))
if OPT["p1only"]:
    H.finish()
fs = lambda: H.stamp() if OPT["fine"] == 4 else None
P(f"s_setprio {OPT['hprio']}")
emit_gather(1, (4, 5, 6, 7))
def wo_dma(br):
    o = []
    for t in range(16):
        base = S_MX if br else (S_MA if t < 6 else S_MB)
        g = [f"s_add_u32 m0, {s(base)}, {t*1024}", f"s_add_u32 {s(S_T3)}, {s(S_WB)}, {t*8192}"]
        o.append(g + [dma(VWO, S_WOB if br else S_WOA, s(S_T3), 0, "wob" if br else ("woa" if t < 6 else "woc"))])
    return o
woa, wob = wo_dma(0), wo_dma(1)
P.add(wob[:OPT["wb0"]])
P.add(WaitTag("kv")); P.add(WaitLds()); P("s_barrier")
H.stamp()
if OPT["t2"]: P.add(WaitTag("kvb")); P("s_barrier")
P.add(Pace(OPT["pace"]))
rest = wob[OPT["wb0"]:] + woa[:6]
if OPT["zbar"]:
    P.add(rest[:OPT["wz"]]); rest = rest[OPT["wz"]:]
    P("s_barrier"); fs(); P.add(flag_store("none", "ob"))
P.add(rest)
fs()
def o_gather(br, tt):
    o = []
    for hs in range(8):
        if hs % 4 == 0: o += [f"s_mov_b32 {s(S_T1)}, {br*65536 + tt*32768 + hs*1024}"]
        o += [ws_ld(v((OFA, OFB)[br]+32*tt+4*hs,4), VOG, s(S_T1), (hs & 3)*1024)]
    return o
def wo_read(dst, hs, br):
    base, off = ((B0, B1), hs*2048) if br else (((A0, A1), hs*2048) if hs < 3 else ((A2, A3), (hs-3)*2048))
    return [f"ds_read_b64_tr_b16 {v(dst+4*ct+2*j,2)}, {v(base[ct])} offset:{off+j*1024}" for ct in range(2) for j in range(2)]
FIN = OFB
def p3(Q, br, tt, first, last, hook=lambda hs: None):
    if first: Q.add(wo_read(WBF, 0, br))
    for hs in range(8):
        b = hs & 1
        rd = wo_read(WBF + 8*(1-b), (hs + 1) & 7, br) if not (last and hs == 7) else []
        for ct in range(2):
            acc = v((FIN, ACC3)[br]+32*tt+16*ct, 16)
            c = acc if hs else ("0" if br else v(ACC3+32*tt+16*ct, 16))
            Q(mfma(acc, v(WBF+8*b+4*ct,4), v((OFA, OFB)[br]+32*tt+4*hs,4), c))
            Q.add(rd[2*ct:2*ct+2])
        hook(hs)
def red_writes(tt):
    keep, ex = FIN + 32*tt, tt * 24576
    send = {1: keep + 16, 2: keep + 8, 3: keep + 24}
    return [f"ds_write_b128 {v(EXW+i-1)}, {v(send[i]+4*q,4)} offset:{ex+(i-1)*2048+q*1024}" for i in (2, 1, 3) for q in range(2)]
def red_reads(tt):
    return [f"ds_read_b128 {v(ACC3+32*tt+8*i+4*q,4)}, {v(EXR)} offset:{tt*24576+i*2048+q*1024}" for q in range(2) for i in range(3)]
def red_finish(tt):
    keep, tmp, o = FIN + 32*tt, ACC3 + 32*tt, []
    for q in range(2):
        for i in range(3):
            o += [f"v_pk_add_f32 {v(keep+4*q+2*k,2)}, {v(keep+4*q+2*k,2)}, {v(tmp+8*i+4*q+2*k,2)}" for k in range(2)]
        o += [f"v_cvt_pk_bf16_f32 {v(tmp+24+2*q+k)}, {v(keep+4*q+2*k)}, {v(keep+4*q+2*k+1)}" for k in range(2)]
    o += [f"v_permlane32_swap_b32 {v(tmp+24)}, {v(tmp+26)}", f"v_permlane32_swap_b32 {v(tmp+25)}, {v(tmp+27)}", f"s_mov_b32 {s(S_T1)}, {tt*32768}",
          f"buffer_store_dwordx4 {v(tmp+24,4)}, {v(VOUT)}, {s(S_OUT,4)}, {s(S_T1)} offen{('', ' sc1', ' nt', ' sc0 sc1')[OPT['outsc']]}"]
    return o
retry_txt = []
def sentinel_scan(tt, hs):
    base = OFA + 32*tt + 4*hs
    first = [f"v_max3_u32 {v(TMP)}, {v(base)}, {v(base+1)}, {v(base+1)}"] if hs == 0 else [f"v_max3_u32 {v(TMP)}, {v(TMP)}, {v(base)}, {v(base+1)}"]
    return first + [f"v_max3_u32 {v(TMP)}, {v(TMP)}, {v(base+2)}, {v(base+3)}"]
def a_pass(tt, last, hook=lambda hs: None):
    test = [f"v_cmp_ne_u32 vcc, -1, {v(TMP)}", "s_cmp_eq_u64 vcc, -1"]
    p3(P, 0, tt, tt == 1, last, lambda hs: (P.add(sentinel_scan(tt, hs)), hook(hs)))
    P.add(test); P(f"s_cbranch_scc0 L_retry{tt}\nL_ok{tt}:")
    Q = Prog()
    Q(f"L_retry{tt}:\ns_mov_b32 {s(S_SPIN)}, 0x20000\ns_waitcnt lgkmcnt(0)\ns_nop 15\nL_again{tt}:"); Q.add(o_gather(0, tt))
    Q(f"s_sub_u32 {s(S_SPIN)}, {s(S_SPIN)}, 1\ns_waitcnt vmcnt(0)\ns_cbranch_scc1 L_redo{tt}")
    for hs in range(8): Q.add(sentinel_scan(tt, hs))
    Q.add(test); Q(f"s_cbranch_scc0 L_again{tt}\nL_redo{tt}:")
    p3(Q, 0, tt, True, last); Q(f"s_waitcnt lgkmcnt(0)\ns_nop 15\ns_branch L_ok{tt}")
    retry_txt.append(finalize(Q))
P(f"s_add_u32 {s(S_K)}, {s(S_R3)}, {WS_FOB}")
if OPT["worder"] == 0:
    P("s_barrier"); fs()
    if OPT["f2by"] and not OPT["zbar"]: P.add(flag_store("none", "ob"))
    P.add(woa[6:11]); H.spoll_issue(8, S_K); P.add(woa[11:]); fs()
    H.spoll(8, S_K); H.stamp()
    P.add(o_gather(1, 0)); P.add(o_gather(1, 1)); fs()
else:
    P("s_barrier"); fs()
    if OPT["f2by"] and not OPT["zbar"]: P.add(flag_store("none", "ob"))
    H.spoll_issue(8, S_K); H.spoll(8, S_K); H.stamp()
    P.add(o_gather(1, 0)); P.add(o_gather(1, 1)); fs()
    P.add(woa[6:]); fs()
P(f"s_setprio {OPT['p3prio']}"); P.add(Pace(OPT["pacez"]))
def probe():
    P(f"""s_lshl_b32 {s(S_K)}, {s(S_RB3)}, 17
s_lshl_b32 {s(S_T1)}, {s(S_W4)}, 13
s_add_u32 {s(S_K)}, {s(S_K)}, {s(S_T1)}
s_add_u32 {s(S_K)}, {s(S_K)}, {WS_O}""")
    P.add(WaitLds())
    t = f"    s_mov_b32 {s(S_SPIN)}, 0x20000\nL_probe:\n"
    t += "".join(f"    s_load_dword s{4+i}, s[22:23], {s(S_K)} offset:{i*1024+1020} glc\n" for i in range(8))
    t += f"    s_sub_u32 {s(S_SPIN)}, {s(S_SPIN)}, 1\n    s_waitcnt lgkmcnt(0)\n    s_cbranch_scc1 L_probed\n"
    t += "".join(f"    s_max_u32 s4, s4, s{4+i}\n" for i in range(1, 8))
    t += "    s_cmp_eq_u32 s4, -1\n    s_cbranch_scc1 L_probe\nL_probed:"
    P.add(Raw(t))
def vprobe():
    P(f"""v_and_b32 {v(V_FOFF)}, 7, {v(V_LANE)}
v_lshlrev_b32 {v(V_FOFF)}, 10, {v(V_FOFF)}
s_lshl_b32 {s(S_K)}, {s(S_RB3)}, 17
s_lshl_b32 {s(S_T1)}, {s(S_W4)}, 13
s_add_u32 {s(S_K)}, {s(S_K)}, {s(S_T1)}
s_add_u32 {s(S_K)}, {s(S_K)}, {WS_O}""")
    ld = f"buffer_load_dword {v(FLG)}, {v(V_FOFF)}, {s(S_WS,4)}, {s(S_K)} offen offset:1020 sc1"
    P(ld); H.poll(f"v_cmp_ne_u32 vcc, -1, {v(FLG)}", ld)
def agather():
    if OPT["probe"] == 3: vprobe()
    if OPT["probe"] == 2: probe()
    P("s_barrier"); fs()
    if OPT["probe"] == 1: probe()
    fs(); P.add(o_gather(0, 1)); P.add(o_gather(0, 0))
if OPT["amode"] == 2: agather()
if OPT["amode"] >= 3: P("s_barrier"); fs()
P.add(WaitTag("wob", "woa", "woc"))
both = lambda: (P.add(o_gather(0, 1)), P.add(o_gather(0, 0)))
p3(P, 1, 0, True, False, lambda hs: both() if OPT["amode"] == 4 and hs == 3 else None)
if OPT["amode"] == 1: agather()
if OPT["amode"] == 3: both()
p3(P, 1, 1, False, True, lambda hs: both() if OPT["amode"] == 5 and hs == 3 else None)
H.stamp()
if OPT["amode"] == 0: agather()
a_pass(1, False)
H.stamp()
if OPT["amode"]: P("s_barrier")
w1 = red_writes(1)
def tail_hook(hs):
    if 1 <= hs <= 3: P.add(w1[2*hs-2:2*hs])
    if hs == 6 and not OPT["rtail"]: P.add(WaitLds()); P("s_barrier")
a_pass(0, True, tail_hook)
H.stamp()
if OPT["rtail"]:
    P("s_barrier")
P.add(red_reads(1)); P.add(red_writes(0)); P.add(red_finish(1)[:14])
P.add(WaitLds()); P("s_barrier")
P.add(red_reads(0)); P.add(red_finish(1)[14:]); P.add(red_finish(0))
H.stamp()
H.finish()

C = Role("C"); P = C.P
T1, T3, T2 = 32, 64, 96
XB, WB = 128, 160
V_AX, V_P0L, V_P0H, V_P1L, V_P1H, V_T2L, V_T2H = 192, 194, 195, 196, 197, 198, 199
V_LO, V_HI, V_CMR = 200, 201, 202
VPK = 224
r5, hh, rr, cc, nh, u0, u1, cm, g4 = 128, 129, 130, 131, 132, 133, 134, 135, 140
P("L_crole:")
P.add(late_ids)
if OPT["prio"]: P("s_setprio 1")
P(f"""
v_and_b32 {v(r5)}, 31, {v(V_LANE)}
v_lshrrev_b32 {v(hh)}, 5, {v(V_LANE)}
v_lshrrev_b32 {v(g4)}, 4, {v(V_LANE)}
v_and_b32 {v(u1)}, 15, {v(V_LANE)}
v_lshrrev_b32 {v(u0)}, 1, {v(u1)}
v_xor_b32 {v(u0)}, {v(u0)}, {v(g4)}
v_lshlrev_b32 {v(u0)}, 4, {v(u0)}
v_lshl_add_u32 {v(u0)}, {v(u1)}, 7, {v(u0)}
v_add_u32 {v(V_AX)}, {L_X}, {v(u0)}
v_xor_b32 {v(V_AX+1)}, 64, {v(V_AX)}
v_bfe_u32 {v(rr)}, {v(V_LANE)}, 2, 2
v_and_b32 {v(cc)}, 3, {v(V_LANE)}
v_and_b32 {v(nh)}, 1, {v(g4)}
v_lshl_add_u32 {v(u0)}, {v(g4)}, 3, {v(rr)}
v_xor_b32 {v(u1)}, {s(S_W4)}, {v(rr)}
v_lshlrev_b32 {v(u1)}, 5, {v(u1)}
v_lshl_add_u32 {v(u1)}, {v(cc)}, 3, {v(u1)}
v_lshl_add_u32 {v(u1)}, {v(u0)}, 8, {v(u1)}
v_lshl_add_u32 {v(V_P0L)}, {v(nh)}, 7, {v(u1)}
v_add_u32 {v(V_P0H)}, 0x10000, {v(V_P0L)}
v_xor_b32 {v(V_P1L)}, 0x80, {v(V_P0L)}
v_xor_b32 {v(V_P1H)}, 0x80, {v(V_P0H)}
v_lshrrev_b32 {v(u1)}, 1, {v(rr)}
v_lshl_add_u32 {v(u1)}, {v(nh)}, 1, {v(u1)}
v_xor_b32 {v(u1)}, {s(S_W4)}, {v(u1)}
v_lshlrev_b32 {v(u1)}, 5, {v(u1)}
v_lshl_add_u32 {v(u1)}, {v(cc)}, 3, {v(u1)}
v_lshl_add_u32 {v(V_T2L)}, {v(u0)}, 7, {v(u1)}
v_add_u32 {v(V_T2H)}, 0x10000, {v(V_T2L)}
v_and_b32 {v(u0)}, 15, {v(V_LANE)}
v_lshlrev_b32 {v(u0)}, 4, {v(u0)}
v_lshl_add_u32 {v(u0)}, {v(hh)}, 8, {v(u0)}
v_lshl_add_u32 {v(V_LO)}, {v(nh)}, 31, {v(u0)}
v_xor_b32 {v(V_HI)}, {OOB}, {v(V_LO)}
v_lshlrev_b32 {v(u0)}, 2, {v(hh)}
v_sub_u32 {v(cm)}, {v(r5)}, {v(u0)}
v_sub_u32 {v(u0)}, 32, {v(cm)}
v_mov_b32 {v(u1)}, {hex(~0x55540001 & 0xffffffff)}
v_alignbit_b32 {v(V_CMR)}, {v(u1)}, {v(u1)}, {v(u0)}
s_waitcnt lgkmcnt(0)""")
if OPT["wsoff"]: P(f"s_add_u32 s22, s22, {OPT['wsoff'] << 20}\ns_addc_u32 s23, s23, 0")
P.add(entry_stamp())
P(f"""s_memrealtime {s(S_TM,2)}
s_mov_b32 {s(S_C)}, {fhex(QK_SCALE)}
s_mov_b32 {s(S_C+1)}, {fhex(QK_SCALE)}
""")
def l2_prefetch():
    a, b = 140, 141
    o = lines(f"""s_lshr_b32 {s(S_T0)}, s2, 3
s_and_b32 {s(S_T1)}, {s(S_HG)}, 4
s_lshl_b32 {s(S_T1)}, {s(S_T1)}, 7
v_and_b32 {v(a)}, 3, {v(V_LANE)}
v_lshlrev_b32 {v(a)}, 7, {v(a)}
s_cmp_eq_u32 {s(S_W4)}, 2
s_cbranch_scc1 L_pfx
s_cmp_eq_u32 {s(S_W4)}, 3
s_cbranch_scc1 L_pfq
s_cmp_eq_u32 {s(S_W4)}, 0
s_cselect_b32 {s(S_W)}, s6, s12
s_cselect_b32 {s(S_W+1)}, s7, s13
s_mov_b32 {s(S_W+2)}, 1572864
s_mov_b32 {s(S_W+3)}, 0x20000
v_bfe_u32 {v(b)}, {v(V_LANE)}, 2, 1
v_lshl_add_u32 {v(a)}, {v(b)}, 10, {v(a)}
v_lshrrev_b32 {v(b)}, 3, {v(V_LANE)}
v_mul_u32_u24 {v(b)}, 0xc00, {v(b)}
v_add_u32 {v(a)}, {v(a)}, {v(b)}
s_mul_i32 {s(S_T0)}, {s(S_T0)}, {8*3072}
s_add_u32 {s(S_T0)}, {s(S_T0)}, {s(S_T1)}
s_add_u32 {s(S_T0)}, {s(S_T0)}, 1024
buffer_load_dword v190, {v(a)}, {s(S_W,4)}, {s(S_T0)} offen
s_add_u32 {s(S_T0)}, {s(S_T0)}, {256*3072}
buffer_load_dword v191, {v(a)}, {s(S_W,4)}, {s(S_T0)} offen
s_branch L_pfe
L_pfx:
s_mov_b32 {s(S_W)}, s4
s_mov_b32 {s(S_W+1)}, s5
s_mov_b32 {s(S_W+2)}, 2097152
s_mov_b32 {s(S_W+3)}, 0x20000
v_lshrrev_b32 {v(b)}, 2, {v(V_LANE)}
v_lshl_add_u32 {v(a)}, {v(b)}, 10, {v(a)}
s_lshl_b32 {s(S_T0)}, {s(S_T0)}, 14
s_and_b32 {s(S_T1)}, {s(S_RB)}, 24
s_lshl_b32 {s(S_T1)}, {s(S_T1)}, 16
s_add_u32 {s(S_T0)}, {s(S_T0)}, {s(S_T1)}
buffer_load_dword v190, {v(a)}, {s(S_W,4)}, {s(S_T0)} offen
buffer_load_dword v191, {v(a)}, {s(S_W,4)}, {s(S_T0)} offen offset:512
s_branch L_pfe
L_pfq:
s_mov_b32 {s(S_W)}, s6
s_mov_b32 {s(S_W+1)}, s7
s_mov_b32 {s(S_W+2)}, 1572864
s_mov_b32 {s(S_W+3)}, 0x20000
v_lshrrev_b32 {v(b)}, 2, {v(V_LANE)}
v_mul_u32_u24 {v(b)}, 0xc00, {v(b)}
v_add_u32 {v(a)}, {v(a)}, {v(b)}
s_mul_i32 {s(S_T0)}, {s(S_T0)}, {16*3072}
s_add_u32 {s(S_T0)}, {s(S_T0)}, {s(S_T1)}
buffer_load_dword v190, {v(a)}, {s(S_W,4)}, {s(S_T0)} offen
s_mov_b32 {s(S_W)}, s12
s_mov_b32 {s(S_W+1)}, s13
buffer_load_dword v191, {v(a)}, {s(S_W,4)}, {s(S_T0)} offen
L_pfe:""")
    P.add(Raw("\n".join(("" if l.endswith(":") else "    ") + l for l in o)))
    P("s_nop 0")
if OPT["pf"] == 1: l2_prefetch()
P.add(srd(S_WS, 22, WS_SIZE) + srd(S_DBG, 20, 256))
P(f"""s_cmp_eq_u32 s2, 0
s_cselect_b32 {s(S_T2)}, 0, {OOB}
v_lshlrev_b32 v5, 8, v0
v_or_b32 v5, {s(S_T2)}, v5
s_waitcnt lgkmcnt(0)
v_mov_b32 {v(EP)}, {s(S_TM)}
v_mov_b32 {v(EP+1)}, {s(S_TM+1)}
buffer_store_dwordx2 {v(EP,2)}, v5, {s(S_DBG,4)}, 0 offen sc1""")
V_AXW, V_AG, V_GPW, V_GPR, XW, GF, GACC = 4, 8, 9, 13, 240, 248, 204
P(f"""s_lshl_b32 {s(S_T2)}, {s(S_W4)}, 1
v_add_u32 {v(u0)}, {s(S_T2)}, {v(hh)}
v_lshlrev_b32 {v(V_AG)}, 4, {v(u0)}
v_add_u32 {v(V_AG)}, {L_G}, {v(V_AG)}
v_bfe_u32 {v(u1)}, {v(r5)}, 1, 3
v_xor_b32 {v(u0)}, {v(u0)}, {v(u1)}
v_lshlrev_b32 {v(u0)}, 4, {v(u0)}
v_lshl_add_u32 {v(u0)}, {v(r5)}, 7, {v(u0)}
v_add_u32 {v(V_AXW)}, {L_X}, {v(u0)}
v_lshlrev_b32 {v(V_GPR)}, 4, {v(r5)}
v_add_u32 {v(V_GPR)}, {L_GP}, {v(V_GPR)}
s_lshl_b32 {s(S_T2)}, {s(S_W4)}, 2
v_add_u32 {v(V_GPW)}, {s(S_T2)}, {v(V_GPR)}
v_mov_b32 {v(GACC)}, 0
v_mov_b32 {v(GACC+1)}, 0""")
P.add(attn_setup(0, 136))
C.stamp()

CM, QB, KB, VB, KBH, VBH, BP, BPL, BPK, SENT, S_R0 = 176, 248, 240, 32, 80, 84, 192, 88, 88, 220, 24
BS2, BSP2, BO2 = (96, 48), (128, 112), (160, 144)
def b_scores(t):
    kprev = v(KB, 4) if t == 1 else v(KBH, 4)
    return [mfma(v(BS2[t],16), v(KB+4*t,4), v(QB+4*t,4), v(CM,16)), mfma(v(BSP2[t],16), kprev, v(QB+4*t,4), v(CM,16))]
def b_softmax(t):
    S, sp, m, p, pl = BS2[t], BSP2[t], TMP + 2*t, BP + 8*t, BPL + 4*t
    o = [f"v_cndmask_b32 {v(S+q)}, {v(S+q)}, {v(sp+q)}, {s(S_LO16,2)}" for q in range(8, 16)]
    if t == 0:
        o += [f"v_mov_b32 {v(m)}, {hex(NEG_BIG)}"]
        o += [f"v_cndmask_b32 {v(S+q)}, {v(S+q)}, {v(m)}, {s(S_R0,2)}" for q in range(8, 16)]
    o += max_tree(m, range(S, S+16)) + cross_max(m, m+1)
    o += [f"v_pk_add_f32 {v(S+2*q,2)}, {v(S+2*q,2)}, {v(m,2)} op_sel_hi:[1,0] neg_lo:[0,1] neg_hi:[0,1]" for q in range(8)]
    o += [f"v_exp_f32 {v(S+q)}, {v(S+q)}" for q in range(16)]
    o += [f"v_cvt_pk_bf16_f32 {v(p+i)}, {v(S+2*i)}, {v(S+2*i+1)}" for i in range(8)]
    o += [f"v_cndmask_b32 {v(pl+i)}, 0, {v(p+4+i)}, {s(S_LO16,2)}" for i in range(4)]
    o += [f"v_cndmask_b32 {v(p+4+i)}, {v(p+4+i)}, 0, {s(S_LO16,2)}" for i in range(4)]
    return o
def b_pv(t):
    vprev, acc, p = v(VB+4, 4) if t == 1 else v(VBH, 4), v(BO2[t], 16), BP + 8*t
    return [mfma(acc, v(VB+8*t,4), v(p,4), "0"), mfma(acc, v(VB+8*t+4,4), v(p+4,4), acc), mfma(acc, vprev, v(BPL+4*t,4), acc)]
def b_pack(t):
    f = 200 + 2*t
    return o_pack(BO2[t], 8, 0, [f"v_sub_f32 {v(f+1)}, 1.0, {v(G0+t)}", f"v_mul_f32 {v(f)}, {v(f)}, {v(f+1)}"], BPK+4*t, f)
def frag_reads(n):
    b, m = n & 1, n & 15
    j, u2 = m >> 1, m & 1
    base = (stage_of(n) % NSLOT) * SLOT
    hi = base >= 65536; off = base - (65536 if hi else 0)
    x = [f"ds_read_b128 {v(XB+16*b+4*tg,4)}, {v(V_AX+u2)} offset:{j*8192+tg*2048}" for tg in range(4)]
    if n < 16:
        w = [f"ds_read_b64_tr_b16 {v(WB+16*b+4*f+2*qd,2)}, {v(((V_P0L,V_P0H),(V_P1L,V_P1H))[pos][hi])} offset:{off+M*8192+qd*1024}"
             for f, (M, pos) in enumerate(((0, 0), (1, 1), (0, 1), (1, 0))) for qd in range(2)]
        return w[0:2] + x[0:2] + w[2:4] + x[2:4] + w[4:8]
    w = [f"ds_read_b64_tr_b16 {v(WB+8*b+4*M+2*qd,2)}, {v((V_T2L,V_T2H)[hi])} offset:{off+M*8192+u2*4096+qd*512}" for M in range(2) for qd in range(2)]
    return w[0:2] + x[0:2] + w[2:4] + x[2:4]
def step_mfmas(n):
    b = n & 1
    x = lambda tg: v(XB+16*b+4*tg, 4)
    c = lambda r: "0" if n in (0, 16) else v(r, 4)
    kq = lambda T, wbase: [mfma16(v(T+16*f+4*tg,4), v(wbase+4*f,4), x(tg), c(T+16*f+4*tg)) for hf in range(2) for f in range(2) for tg in (2*hf, 2*hf+1)]
    if n < 16:
        return kq(T1, WB+16*b) + [mfma16(v(T3+16*f+4*tg,4), x(tg), v(WB+16*b+8+4*f,4), c(T3+16*f+4*tg)) for f in range(2) for tg in range(4)]
    return kq(T2, WB+8*b)
def kq_frag(dst, T, tt, scale):
    a = T + 8*tt
    o = [f"v_pk_mul_f32 {v(a+2*i,2)}, {v(a+2*i,2)}, {s(S_C,2)}" for i in range(4)] if scale else []
    o += [f"v_cvt_pk_bf16_f32 {v(dst+i)}, {v(a+2*i)}, {v(a+2*i+1)}" for i in (0, 2, 1, 3)]
    return o, [f"v_permlane16_swap_b32 {v(dst+i)}, {v(dst+2+i)}" for i in range(2)]
def v_frag(tg):
    d = VPK + 4*tg
    o = [f"v_cvt_pk_bf16_f32 {v(d+2*f+i)}, {v(T3+16*f+4*tg+2*i)}, {v(T3+16*f+4*tg+2*i+1)}" for i in range(2) for f in range(2)]
    return o, [f"v_permlane16_swap_b32 {v(d+i)}, {v(d+2+i)}" for i in range(2)], [f"v_permlane32_swap_b32 {v(d+i)}, {v(d+2+i)}" for i in range(2)]
def kv_publish():
    o = [f"s_lshl_b32 {s(S_T0)}, {s(S_HEAD)}, 17", f"s_lshl_b32 {s(S_T1)}, {s(S_RB)}, 12", f"s_add_u32 {s(S_T0)}, {s(S_T0)}, {s(S_T1)}"]
    k = [kq_frag(KA+4*tt, T1, tt, True) for tt in range(2)]
    o += k[0][0] + k[1][0] + k[0][1] + k[1][1] + [ws_st(v(KA+4*tt,4), V_L16, s(S_T0), tt*2048, "kv") for tt in range(2)]
    for tt in range(2):
        f = [v_frag(2*tt + m) for m in range(2)]
        o += f[0][0] + f[1][0] + f[0][1] + f[1][1] + f[0][2] + f[1][2]
        o += [ws_st(v(VPK+8*tt+4*m,4), V_LO, s(S_T0), tt*2048+1024+m*512, "kv") for m in range(2)]
    o += [f"s_lshl_b32 {s(S_T0)}, {s(S_HEAD)}, 15", f"s_lshl_b32 {s(S_T1)}, {s(S_RB)}, 10",
          f"s_add_u32 {s(S_T0)}, {s(S_T0)}, {s(S_T1)}", f"s_add_u32 {s(S_T0)}, {s(S_T0)}, {WS_HB}",
          ws_st(v(VPK+12,4), V_HI, s(S_T0), 512, "kv")]
    k = [kq_frag(KB+4*tt, T1+16, tt, True) for tt in range(2)]
    o += k[1][0] + k[0][0] + k[1][1] + [ws_st(v(KB+4,4), V_HI, s(S_T0), 0, "kv")] + k[0][1]
    return o

if OPT["p1only"]:
    P("s_barrier\n" * 25 + "s_endpgm")
P("s_barrier")
C.stamp()
P.add(frag_reads(0))
queue = []
gf = gate_finish([0, 1], V_GPR, 88)
qb0, qb1, qa0, qa1 = kq_frag(QB, T2+16, 0, False), kq_frag(QB+4, T2+16, 1, False), kq_frag(QA, T2, 0, False), kq_frag(QA1, T2, 1, False)
for n in range(32):
    mf = step_mfmas(n)
    sync = first_of_stage(n + 1) or n == 31
    nxt_stage = stage_of(n + 1) if n < 31 else 24
    rd = frag_reads(n + 1) if n < 31 else []
    if n < 16 and n % 2 == 0:
        j = n >> 1
        after = [f"ds_read_b128 {v(GF,4)}, {v(V_AG)} offset:{j*128}",
                 f"ds_read_b128 {v(XW,4)}, {v(V_AXW)} offset:{j*8192}", f"ds_read_b128 {v(XW+4,4)}, {v(V_AXW)} offset:{j*8192+4096}"]
        rd = rd + after
    if n < 16 and n % 2 == 1:
        queue += [f"v_dot2_f32_bf16 {v(GACC+tt)}, {v(XW+4*tt+i)}, {v(GF+i)}, {v(GACC+tt)}" for i in range(4) for tt in range(2)]
    late = []
    if n == 15:
        pub = kv_publish()
        if OPT["early"]:
            late, pub = pub[:25], pub[25:]
            mf = [mf[i] for i in (0, 1, 4, 5, 8, 9, 10, 11, 12, 13, 14, 15, 2, 3, 6, 7)]
    if n == 16: queue += pub
    if n == 31 and OPT["early"]:
        mf = [mf[i] for i in (2, 3, 6, 7, 0, 1, 4, 5)]
        late = gf[2:] + qb0[0] + qb1[0] + qb0[1] + qb1[1]
    if n == 21:
        queue += [f"v_mov_b32 {v(TMP)}, {hex(ONES)}", f"v_mov_b32 {v(TMP+1)}, {hex(NEG_BIG)}"]
        queue += [f"v_mov_b32 {v(VBH+i)}, {v(TMP)}" for i in range(4)]
        queue += [f"v_mov_b32 {v(TMP+2+tt)}, {v(GACC+tt)}" for tt in range(2)]
        queue += [f"v_cndmask_b32 {v(VB+i)}, {v(VPK+i)}, {v(TMP)}, {s(S_LO16,2)}" for i in range(16)]
        queue += [f"v_permlane32_swap_b32 {v(GACC+tt)}, {v(TMP+2+tt)}" for tt in range(2)]
        queue += [f"v_cndmask_b32 {v(VA+i)}, {v(TMP)}, {v(VPK+i)}, {s(S_LO16,2)}" for i in range(16)]
        queue += [f"v_add_f32 {v(GACC+tt)}, {v(GACC+tt)}, {v(TMP+2+tt)}" for tt in range(2)]
        queue += [f"v_cndmask_b32 {v(CMA+q)}, {v(TMP+1)}, 0, {s(S_MASK+2*q,2)}" for q in range(16)]
        queue += [f"v_bfe_i32 {v(CM+q)}, {v(V_CMR)}, {8*(q>>2)+(q&3)}, 1" for q in range(16)]
        queue += [f"v_and_b32 {v(CM+q)}, {v(TMP+1)}, {v(CM+q)}" for q in range(16)]
    post = []
    if sync and nxt_stage == 23:
        post += [f"ds_write_b32 {v(V_GPW)}, {v(GACC+tt)} offset:{512*tt}" for tt in range(2)]
    if sync and nxt_stage == OPT["gat"]:
        rd = rd + [lines(f"""s_lshl_b32 {s(S_T0)}, {s(S_HEAD)}, 15
s_lshl_b32 {s(S_T1)}, {s(S_RB)}, 10
s_add_u32 {s(S_T0)}, {s(S_T0)}, {s(S_T1)}
s_add_u32 {s(S_T0)}, {s(S_T0)}, {WS_HB - 1024}
s_cmp_eq_u32 {s(S_RB)}, 0
s_cselect_b32 {s(S_T0)}, {WS_SIZE}, {s(S_T0)}
s_cselect_b64 {s(S_R0,2)}, {s(S_LO16,2)}, 0""") + [ws_ld(v(KBH,4), V_HI, s(S_T0)), f"s_not_b64 exec, {s(S_LO16,2)}",
                 ws_ld(v(VBH,4), V_HI, s(S_T0), 512), "s_mov_b64 exec, -1"]]
    if n == 31: post += gf[:2]
    take = 8 if n < 16 else (OPT["take"] if n < 21 else OPT["take2"])
    side = queue[:take]; queue = queue[take:]
    P(mf[0]); P(mf[1])
    if sync:
        if nxt_stage == OPT["kvs"]: P.add(WaitTag("kv")); C.stamp()
        P.add(WaitLds()); P("s_barrier")
        if OPT["fine"] in (1, 2, 3): C.stamp()
    P.add(post)
    body, k = rd, len(mf) - 2
    nr = max(1, k - (4 if n < 16 else 2))
    for i in range(k + 1):
        lo, hi_ = len(body) * i // nr, len(body) * (i + 1) // nr
        if i < nr: P.add(body[lo:hi_])
        slo, shi = len(side) * i // (k + 1), len(side) * (i + 1) // (k + 1)
        P.add(side[slo:shi])
        i0 = 7 if n == 15 else 2
        if late and i >= i0: P.add(late[len(late) * (i - i0) // (k + 1 - i0):len(late) * (i - i0 + 1) // (k + 1 - i0)])
        if i < k: P(mf[2 + i])
    if n == 15: C.stamp()
assert not queue
C.stamp()
sc = interleave(b_scores(0), b_scores(1))
if OPT["early"]:
    P(sc[1]); P.add(qa0[0]); P(sc[2]); P.add(qa1[0]); P(sc[0]); P.add(qa0[1] + qa1[1]); P(sc[3])
else:
    P.add(gf[2:]); P.add(qb0[0] + qa0[0] + qb0[1] + qb1[0] + qa1[0])
    P(sc[2]); P.add(qb1[1] + qa0[1]); P(sc[0]); P.add(qa1[1]); P(sc[1]); P(sc[3])
s1, s0 = b_softmax(1), b_softmax(0)
P.add(s0[:9])
sm = interleave(s0[9:], s1)
P.add(sm[:-16])
pv = interleave(b_pv(0), b_pv(1))
P(mfma(v(MG+16,16), v(KA+4,4), v(QA1,4), v(CMA,16))); P.add(sm[-16:-10]); P(mfma(v(MG,16), v(KA,4), v(QA,4), v(CMA,16))); P.add(sm[-10:])
mx = interleave(*[max_tree((TMP, TMP+2)[t], range(MG+16*t, MG+16*t+16)) + cross_max((TMP, TMP+2)[t], (TMP, TMP+2)[t]+1) for t in (1, 0)])
for i, m in enumerate(pv):
    P(m); P.add(mx[4*i:4*i+4])
ng = [[f"v_pk_add_f32 {v(NEGM+16*t+2*i,2)}, 0, {v((TMP, TMP+2)[t],2)} op_sel_hi:[0,0] neg_lo:[0,1] neg_hi:[0,1]" for i in range(8)] for t in range(2)]
P.add(ng[0])
BPK = 192
P.add(interleave(b_pack(0), b_pack(1)))
P.add(o_store(1, 0, BPK, "ob")); P.add(o_store(1, 1, BPK+4, "ob"))
P.add(ng[1])
C.stamp()
cs = lambda: C.stamp() if OPT["fine"] == 4 else None
cev = {("e1" if OPT["xhs"] < 0 else OPT["xhs"]): lambda: (P.add(WaitTag("ob")) if OPT["f2by"] else None, P.add(WaitLds()), P("s_barrier"))}
if not OPT["f2by"]: cev["e1" if OPT["f2hs"] < 0 else OPT["f2hs"]] = lambda: (cs(), P.add(flag_store("ob", "ob")), cs())
if OPT["zbar"]: cev["e1"] = lambda: (P.add(WaitTag("ob")), P("s_barrier"))
window_attention(C, cev)
P.add(interleave(*[o_pack(OACC2[t], 0, 8, [f"v_mul_f32 {v(TMP+t)}, {v(TMP+t)}, {v(G0+t)}"], PF+4*t, TMP+t) for t in (1, 0)]))
P.add(o_store(0, 1, PF+4, "oa")); P.add(o_store(0, 0, PF, "oa"))
C.stamp()
C.finish()

full = Prog(); full.items = E.items + H.P.items
bodyH = finalize(full, verbose=True)
full = Prog(); full.items = [Ins("s_load_dwordx16 s[4:19], s[0:1], 0"), Ins("global_load_dword v13, v5, s[96:97]")] + C.P.items
bodyC = "\n".join(finalize(full, verbose=True).split("\n")[2:])
print("stamps H", H.ns, "C", C.ns)
hdr = open("cdna_kernels/%s.s.ref" % NAME).read().split("; Override launch")[0]
if OPT["stamps"]: hdr += f"; stamps {C.ns} {H.ns}\n"
txt = hdr + f"""; One launch: 256 workgroups (4 heads x 64 rows each), 8 waves, hand-offs through d_ws tagged with a per-launch epoch.
; @launch grid=(256,1,1) block=(512,1,1) lds={LDS_BYTES}
.amdgcn_target "amdgcn-amd-amdhsa--gfx950"
.text
.globl {NAME}_kernel
.p2align 12
.p2align 8
.type {NAME}_kernel,@function
{NAME}_kernel:
{bodyH}{bodyC}L_end:
    s_endpgm
{''.join(retry_txt)}{''.join(special_txt)}{slow_path()}    .fill 3072, 4, 0xbf800000
.section .rodata,"a"
.p2align 6
.amdhsa_kernel {NAME}_kernel
  .amdhsa_next_free_vgpr 256
  .amdhsa_next_free_sgpr 102
  .amdhsa_accum_offset {192 if OPT['xp'] == 8 else 256}
  .amdhsa_group_segment_fixed_size 0
  .amdhsa_kernarg_size 80
  .amdhsa_user_sgpr_count 2
  .amdhsa_user_sgpr_kernarg_segment_ptr 1
  .amdhsa_system_sgpr_workgroup_id_x 1
.end_amdhsa_kernel
"""
open(sys.argv[1], "w").write(txt)
```

```python
import sys, math, struct
from asmdsl import Prog, Ins, WaitTag, WaitLds, Raw, Pace, finalize

NAME = "gated_mix__sliding_block__sliding_local_dilated__prompt"
OPT = dict(hold=0, sents=21, pasy=1, gpre=0, take2=16, t2=0, rtail=1, dfl=0, kvs=19, bsplit=0, pace=0, pace0=0, pacez=0, gat=23, gdel=1, f2hs=-1, f2by=1, wb0=4, zbar=0, wz=8, probe=0, amode=0, worder=0, xhs=3, hprio=2, p3prio=0, wopf=1, tlb=1, icpf=1, cpf=0, take=96, early=1, kvflag=42, pubat=32, prio=1, barpos=0,
           xmap=3, rotmode=4, rotmask=7, outsc=0, stamps=0, fine=0, rt=0, xp=0, wsoff=0, amp=-1, ampk=8, amprole=1, ampclk=0, p1only=0, pf=0)
for a in sys.argv[2:]:
    k, v_ = a.split("="); assert k in OPT, k; OPT[k] = int(v_)

WS_KV, WS_HB, WS_O = 0, 4 << 20, 5 << 20
WS_FKV, WS_FOB, WS_FOA = 9 << 20, (9 << 20) + 65536, (9 << 20) + 131072
WS_STAMP, WS_SIZE = 10 << 20, 16 << 20
OOB = 0x80000000
NSLOT, SLOT = 5, 16384
L_X, L_WA, L_G, L_GP, LDS_BYTES = 81920, 131584, 156160, 157184, 158208
KVH, KVS, L_KV, L_WO = 2064, 4 * 2064, 65536, 0
QK_SCALE = 0.25 * math.log2(math.e)
NEG_BIG, ONES = 0xf149f2ca, 0x3f803f80

def fhex(x): return "0x%08x" % struct.unpack("<I", struct.pack("<f", x))[0]
def v(a, n=1): return f"v{a}" if n == 1 else f"v[{a}:{a+n-1}]"
def s(a, n=1): return f"s{a}" if n == 1 else f"s[{a}:{a+n-1}]"
def lines(t): return [l.strip() for l in t.strip().split("\n") if l.strip()]
def mfma(d, a, b, c): return f"v_mfma_f32_32x32x16_bf16 {d}, {a}, {b}, {c}"
def srd(base, ptr, nbytes):
    return [f"s_mov_b32 {s(base)}, {s(ptr)}", f"s_mov_b32 {s(base+1)}, {s(ptr+1)}",
            f"s_mov_b32 {s(base+2)}, {nbytes}", f"s_mov_b32 {s(base+3)}, 0x20000"]
def interleave(*ls):
    o, ls = [], [list(l) for l in ls]
    while any(ls):
        for l in ls:
            if l: o.append(l.pop(0))
    return o

S_X, S_W, S_WS, S_WOA, S_WOB, S_OUT, S_DBG, S_G = 24, 28, 32, 36, 40, 44, 48, 36
S_W4, S_HG, S_RB, S_ROT, S_HEAD, S_RB3, S_CB = 52, 53, 54, 55, 56, 57, 58
S_K, S_T0, S_MW, S_MX, S_T1 = 59, 60, 61, 62, 63
S_MASK, S_T2, S_T3, S_LO16, S_TM, S_C, S_SPIN, S_EP = 64, 96, 97, 98, 100, 10, 3, 26
V_LANE, V_L16, V_STAMP, V_FOFF = 1, 2, 3, 4
EP, FLG = 6, 8
V_AK, V_AV0, V_AV1 = 10, 11, 12
G0 = 14
PM, QA = 16, 24
TMP = 28
SB, NEGM, MG, PB, PF, KF, VF = 32, 64, 96, 128, 144, 152, 192
OACC2 = (160, 176)
KA, QA1, VA = 208, 216, 224

class Role:
    def __init__(self, name):
        self.P, self.name, self.ns, self.nl = Prog(), name, 0, 0
    def stamp(self):
        P = self.P
        if OPT["amp"] == self.ns and OPT["amprole"] == (self.name == "H"):
            P.add(WaitLds())
            P(f"{'s_memtime' if OPT['ampclk'] else 's_memrealtime'} {s(S_TM,2)}\ns_waitcnt lgkmcnt(0)\nv_writelane_b32 {v(V_STAMP)}, {s(S_TM)}, 1")
        if OPT["stamps"]:
            P.add(WaitLds())
            P(f"s_memtime {s(S_TM,2)}\ns_waitcnt lgkmcnt(0)\nv_writelane_b32 {v(V_STAMP)}, {s(S_TM)}, {self.ns + 1}")
            if OPT["rt"]: P(f"s_memrealtime {s(S_TM,2)}\ns_waitcnt lgkmcnt(0)\nv_writelane_b32 {v(V_STAMP)}, {s(S_TM)}, {self.ns + 32}")
        self.ns += 1
    def poll(self, cmp_txt, reload_txt):
        P, n = self.P, f"{self.name}{self.nl}"; self.nl += 1
        P(f"s_mov_b32 {s(S_SPIN)}, 0x40000"); P(cmp_txt)
        P(f"s_cmp_eq_u64 vcc, -1\ns_cbranch_scc1 L_pok{n}")
        P.add(Raw(f"""L_pspin{n}:
    {reload_txt}
    s_sub_u32 {s(S_SPIN)}, {s(S_SPIN)}, 1
    s_cbranch_scc1 L_pok{n}
    s_waitcnt vmcnt(0)
    {cmp_txt}
    s_nop 2
    s_cmp_eq_u64 vcc, -1
    s_cbranch_scc0 L_pspin{n}
L_pok{n}:"""))
    def spoll_issue(self, n, off):
        self.P(f"s_load_dwordx{2*n} {s(4,2*n)}, s[22:23], {s(off)} glc")
    def spoll(self, n, off, ignore_from=None):
        P, lb = self.P, f"{self.name}{self.nl}"; self.nl += 1
        P.add(WaitLds())
        t = f"    s_mov_b32 {s(S_SPIN)}, 0x40000\nL_sp{lb}:\n"
        for i in range(n - 1):
            if ignore_from is not None:
                t += f"    s_cmp_lt_u32 {s(ignore_from)}, {n - i}\n    s_cselect_b64 {s(4+2*i,2)}, {s(S_EP,2)}, {s(4+2*i,2)}\n"
        for i in range(n):
            t += f"    s_xor_b64 {s(4+2*i,2)}, {s(4+2*i,2)}, {s(S_EP,2)}\n"
            if i: t += f"    s_or_b64 s[4:5], s[4:5], {s(4+2*i,2)}\n"
        t += (f"    s_cmp_eq_u64 s[4:5], 0\n    s_cbranch_scc1 L_spok{lb}\n"
              f"    s_load_dwordx{2*n} {s(4,2*n)}, s[22:23], {s(off)} glc\n"
              f"    s_sub_u32 {s(S_SPIN)}, {s(S_SPIN)}, 1\n    s_waitcnt lgkmcnt(0)\n    s_cbranch_scc0 L_sp{lb}\nL_spok{lb}:")
        P.add(Raw(t))
    def finish(self):
        P = self.P
        if OPT["stamps"]:
            P(f"s_memrealtime {s(S_TM,2)}\ns_waitcnt lgkmcnt(0) vmcnt(0)\nv_writelane_b32 {v(V_STAMP)}, {s(S_TM)}, 63")
            P(f"""s_lshl_b32 {s(S_T0)}, s2, 3
s_add_u32 {s(S_T0)}, {s(S_T0)}, {s(S_W4)}
s_add_u32 {s(S_T0)}, {s(S_T0)}, {4 if self.name == "H" else 0}
s_lshl_b32 {s(S_T0)}, {s(S_T0)}, 8
s_add_u32 {s(S_T0)}, {s(S_T0)}, {WS_STAMP}
v_lshlrev_b32 v0, 2, {v(V_LANE)}
buffer_store_dword {v(V_STAMP)}, v0, {s(S_WS,4)}, {s(S_T0)} offen""")
        if OPT["amp"] >= 0 and OPT["amprole"] == (self.name == "H"):
            P(f"""s_cmp_lg_u32 s2, 100
s_cbranch_scc1 L_end
v_readlane_b32 {s(S_T0)}, {v(V_STAMP)}, 0
v_readlane_b32 {s(S_T1)}, {v(V_STAMP)}, 1
s_memrealtime {s(S_TM,2)}
s_sub_u32 {s(S_T1)}, {s(S_T1)}, {s(S_T0)}
s_mul_i32 {s(S_T1)}, {s(S_T1)}, {OPT["ampk"]}
s_lshr_b32 {s(S_T1)}, {s(S_T1)}, {4 if OPT["ampclk"] else 0}
s_min_u32 {s(S_T1)}, {s(S_T1)}, 100000
s_waitcnt lgkmcnt(0)
s_mov_b32 {s(S_T0)}, {s(S_TM)}""")
            P.add(Raw(f"""L_amp{self.name}:
    s_memrealtime {s(S_TM,2)}
    s_waitcnt lgkmcnt(0)
    s_sub_u32 {s(S_K)}, {s(S_TM)}, {s(S_T0)}
    s_cmp_lt_u32 {s(S_K)}, {s(S_T1)}
    s_cbranch_scc1 L_amp{self.name}"""))
        P("s_endpgm")

ws_ld = lambda dst, voff, soff, imm=0, tag=None: Ins(
    f"buffer_load_dwordx4 {dst}, {v(voff)}, {s(S_WS,4)}, {soff} offen{' offset:%d' % imm if imm else ''} sc1", tag)
ws_st = lambda src, voff, soff, imm=0, tag=None: Ins(
    f"buffer_store_dwordx4 {src}, {v(voff)}, {s(S_WS,4)}, {soff} offen{' offset:%d' % imm if imm else ''} sc1", tag)
ep_load = f"buffer_load_dwordx2 {v(EP,2)}, off, {s(S_DBG,4)}, 0 sc1"
flag_load = f"buffer_load_dwordx2 {v(FLG,2)}, {v(V_FOFF)}, {s(S_WS,4)}, {s(S_K)} offen sc1"
flag_cmp = f"v_cmp_eq_u64 vcc, {v(FLG,2)}, {v(EP,2)}"
def flag_store(data_tag, kind):
    if kind == "kv":
        o = lines(f"""v_mul_u32_u24 v0, 56, {v(V_LANE)}
v_add_u32 v0, 88, v0
s_sub_u32 {s(S_T1)}, 31, {s(S_RB)}
s_min_u32 {s(S_T1)}, {s(S_T1)}, 4
v_cmp_gt_u32 vcc, {s(S_T1)}, {v(V_LANE)}
s_cmp_eq_u32 {s(S_RB)}, 0
s_cselect_b32 {s(S_T1)}, 24, {OOB}
v_mov_b32 v5, {s(S_T1)}
v_cndmask_b32 v0, v5, v0, vcc
s_lshl_b32 {s(S_T0)}, {s(S_HEAD)}, 5
s_add_u32 {s(S_T0)}, {s(S_T0)}, {s(S_RB)}
s_lshl_b32 {s(S_T0)}, {s(S_T0)}, 6
s_add_u32 {s(S_T0)}, {s(S_T0)}, {WS_FKV}""")
    else:
        o = lines(f"""v_lshlrev_b32 v0, 8, {v(V_LANE)}
v_cmp_gt_u32 vcc, 8, {v(V_LANE)}
v_mov_b32 v5, {OOB}
v_cndmask_b32 v0, v5, v0, vcc
s_lshl_b32 {s(S_T0)}, {s(S_RB)}, 8
s_add_u32 {s(S_T0)}, {s(S_T0)}, {s(S_HEAD)}
s_lshl_b32 {s(S_T0)}, {s(S_T0)}, 3
s_add_u32 {s(S_T0)}, {s(S_T0)}, { {"ob": WS_FOB, "oa0": WS_FOA, "oa1": WS_FOA + 65536}[kind] }""")
    return o + [WaitTag(data_tag), Ins(f"buffer_store_dwordx2 {v(EP,2)}, v0, {s(S_WS,4)}, {s(S_T0)} offen sc1", "flag")]

def max_tree(dst, regs, init=False):
    regs, o = list(regs), []
    if not init:
        o.append(f"v_max3_f32 {v(dst)}, {v(regs[0])}, {v(regs[1])}, {v(regs[2])}"); regs = regs[3:]
    while len(regs) >= 2:
        o.append(f"v_max3_f32 {v(dst)}, {v(dst)}, {v(regs[0])}, {v(regs[1])}"); regs = regs[2:]
    if regs: o.append(f"v_max_f32 {v(dst)}, {v(dst)}, {v(regs[0])}")
    return o
def cross_max(m, t):
    return [f"v_mov_b32 {v(t)}, {v(m)}", f"v_permlane32_swap_b32 {v(m)}, {v(t)}", f"v_max_f32 {v(m)}, {v(m)}, {v(t)}"]

def attn_setup(t, tmp):
    r5, hh, cm, u = tmp, tmp + 1, tmp + 2, tmp + 3
    o = lines(f"""v_and_b32 {v(r5)}, 31, {v(V_LANE)}
v_lshrrev_b32 {v(hh)}, 5, {v(V_LANE)}
v_lshlrev_b32 {v(u)}, 2, {v(hh)}
v_sub_u32 {v(cm)}, {v(r5)}, {v(u)}
s_mul_i32 {s(S_T2)}, {s(S_W4)}, {KVH}
s_add_u32 {s(S_T2)}, {s(S_T2)}, {L_KV + t*KVS}
v_add_u32 {v(V_AK)}, {s(S_T2)}, {v(V_L16)}
v_and_b32 {v(u)}, 15, {v(V_LANE)}
v_lshlrev_b32 {v(u)}, 4, {v(u)}
v_lshl_add_u32 {v(u)}, {v(hh)}, 8, {v(u)}
v_mov_b32 {v(hh)}, 0x400
v_cndmask_b32 {v(V_AV0)}, {v(hh)}, {v(u)}, {s(S_LO16,2)}
v_mov_b32 {v(hh)}, 0x200
v_cndmask_b32 {v(V_AV1)}, {v(hh)}, {v(u)}, {s(S_LO16,2)}
v_add_u32 {v(V_AV0)}, {s(S_T2)}, {v(V_AV0)}
v_add_u32 {v(V_AV1)}, {s(S_T2)}, {v(V_AV1)}
v_mov_b32 {v(u)}, 0xffff""")
    o += [f"v_cmp_le_i32 {s(S_MASK+2*q,2)}, {8*(q>>2)+(q&3)}, {v(cm)}" for q in range(16)]
    o += [f"v_cndmask_b32 {v(PM+pq)}, 0, {v(u)}, {s(S_MASK+4*pq,2)}" for pq in range(8)]
    o += [f"v_cndmask_b32 {v(PM+pq)}, {v(PM+pq)}, -1, {s(S_MASK+4*pq+2,2)}" for pq in range(8)]
    return o

def gate_finish(tiles, addr, tmp):
    o = [f"ds_read_b128 {v(tmp+4*t,4)}, {v(addr)} offset:{512*t}" for t in tiles]
    seq = []
    for t in tiles:
        b = tmp + 4*t
        seq.append([f"v_add_f32 {v(b)}, {v(b)}, {v(b+1)}", f"v_add_f32 {v(b+2)}, {v(b+2)}, {v(b+3)}",
                    f"v_add_f32 {v(b)}, {v(b)}, {v(b+2)}", f"v_mul_f32 {v(b)}, {fhex(-math.log2(math.e))}, {v(b)}",
                    f"v_exp_f32 {v(b)}, {v(b)}", f"v_add_f32 {v(b)}, 1.0, {v(b)}", f"v_rcp_f32 {v(G0+t)}, {v(b)}"])
    return o + interleave(*seq)

def o_pack(acc, o0, lreg, fac, dst, f):
    return ([f"v_rcp_f32 {v(f)}, {v(acc+lreg)}"] + fac +
            [f"v_mul_f32 {v(acc+o0+i)}, {v(f)}, {v(acc+o0+i)}" for i in range(8)] +
            [f"v_cvt_pk_bf16_f32 {v(dst+i)}, {v(acc+o0+2*i)}, {v(acc+o0+2*i+1)}" for i in range(4)])
def o_store(br, tt, src, tag):
    return [f"s_lshl_b32 {s(S_T0)}, {s(S_RB)}, 17", f"s_lshl_b32 {s(S_T1)}, {s(S_HEAD)}, 10",
            f"s_add_u32 {s(S_T0)}, {s(S_T0)}, {s(S_T1)}", f"s_add_u32 {s(S_T0)}, {s(S_T0)}, {WS_O + br*65536 + tt*32768}",
            ws_st(v(src,4), V_L16, s(S_T0), 0, tag)]

CMA = 64
def window_attention(R, events):
    P = R.P
    Q = lambda t: v((QA, QA1)[t], 4)
    kfr = lambda u: v(KF+4*(u & 1), 4) if u < 8 else v(KA+4*(u-8), 4)
    vfr = lambda u, m: v(VF+8*(u & 1)+4*m, 4) if u < 8 else v(VA+8*(u-8)+4*m, 4)
    kread = lambda u: [f"ds_read_b128 {kfr(u)}, {v(V_AK)} offset:{u*KVS}"] if u < 8 else []
    vread = lambda u: [f"ds_read_b128 {vfr(u,0)}, {v(V_AV0)} offset:{u*KVS+1024}",
                       f"ds_read_b128 {vfr(u,1)}, {v(V_AV1)} offset:{u*KVS+1536}"] if u < 8 else []
    M = (TMP, TMP + 2)
    acc = lambda t: v(OACC2[t], 16)
    negm = lambda t: v(NEGM+16*t, 16)
    exps = lambda S: [f"v_exp_f32 {v(S+i)}, {v(S+i)}" for i in range(16)]
    cvts = lambda d, S: [f"v_cvt_pk_bf16_f32 {v(d+k)}, {v(S+2*k)}, {v(S+2*k+1)}" for k in range(8)]
    ev = lambda key: events.pop(key)() if key in events else None
    P(mfma(v(SB+16,16), kfr(8), Q(1), negm(1))); P(mfma(v(MG,16), kfr(8), Q(0), negm(0)))
    P("s_barrier")
    R.stamp()
    P.add(kread(0) + kread(1) + vread(0) + vread(1))
    ev("pre")
    e, c = exps(SB+16), cvts(PB+8, SB+16)
    P.add(e[0:4]); P(mfma(v(SB,16), kfr(0), Q(0), negm(0))); P.add(kread(2)); P.add(e[4:8]); P.add(c[0:4])
    P(mfma(v(MG+16,16), kfr(9), Q(1), negm(1))); P.add(e[8:12])
    P(mfma(acc(1), vfr(8,0), v(PB+8,4), "0")); P.add(e[12:16]); P.add(c[4:8])
    pend = [mfma(v(SB+16,16), kfr(1), Q(1), negm(1)), mfma(acc(1), vfr(8,1), v(PB+12,4), acc(1))]
    for t in range(2):
        g = MG + 16*t
        seq = [f"v_cndmask_b32 {v(g+i)}, {v(SB+16*t+i)}, {v(g+i)}, {s(S_MASK+2*i,2)}" for i in range(16)]
        seq += [[mfma(v(SB+16*t,16), kfr(1+t), Q(t), negm(t))] + (kread(3) if t == 0 else [])]
        seq += exps(g) + cvts(PF, g)
        seq += [f"v_and_b32 {v(PB+8*t+i)}, {v(PM+i)}, {v(PF+i)}" for i in range(8)]
        seq += [f"v_xor_b32 {v(g+i)}, {v(PF+i)}, {v(PB+8*t+i)}" for i in range(8)]
        at = (0, 8) if t == 0 else (1, 9, 21, 26)
        for i, x in enumerate(seq):
            P.add(x)
            if i in at: P.add(pend.pop(0))
        pend = [mfma(acc(t), vfr(8+t,0), v(PB+8*t,4), acc(1) if t else "0"), mfma(acc(t), vfr(8+t,1), v(PB+8*t+4,4), acc(t)),
                mfma(acc(t), vfr(t,0), v(g,4), acc(t)), [mfma(acc(t), vfr(t,1), v(g+4,4), acc(t))] + (vread(2) if t == 0 else [])]
    R.stamp()
    if OPT["t2"]: P("s_barrier")
    ev("e1")
    for hs in range(13):
        t = hs & 1; u = (hs >> 1) + 1 + t
        S, Pp = SB + 16*t, PB + 8*t
        e, c = exps(S), cvts(Pp, S)
        nxt = None
        if t == 0 and 0 < hs < 12: nxt = [mfma(v(SB+16,16), kfr(u+1), Q(1), negm(1))]
        if t == 1: nxt = [mfma(v(SB,16), kfr(u), Q(0), negm(0))] + kread(u+2)
        if hs == 0:
            P.add(e[0:2]); P.add(pend[0]); P.add(e[2:5]); P.add(pend[1]); P.add(e[5:8]); P.add(pend[2])
            P.add(c[0:4]); P.add(e[8:10]); P.add(pend[3]); P.add(e[10:14])
            P(mfma(acc(t), vfr(u,0), v(Pp,4), acc(t))); P.add(e[14:16]); P.add(c[4:8])
        else:
            P.add(e[0:2]); P.add(pend); P.add(e[2:6])
            if nxt: P.add(nxt)
            P.add(e[6:8]); P.add(c[0:4]); P.add(e[8:10])
            P(mfma(acc(t), vfr(u,0), v(Pp,4), acc(t)))
            P.add(e[10:16]); P.add(c[4:8])
        pend = [mfma(acc(t), vfr(u,1), v(Pp+4,4), acc(t))] + (vread(u+2) if t == 0 else [])
        ev(hs)
    P.add(pend)
    assert not events, events
    P(f"s_mov_b32 {s(S_T1)}, 0x7b800000")
    for t in (1, 0):
        o, m = OACC2[t], M[t]
        P.add([f"v_add_f32 {v(m)}, abs({v(o)}), abs({v(o+8)})", f"v_add_f32 {v(m+1)}, abs({v(o+1)}), abs({v(o+2)})"] +
              [f"v_add_f32 {v(m+(i&1))}, {v(m+(i&1))}, abs({v(o+i)})" for i in range(3, 8)] + [f"v_add_f32 {v(m)}, {v(m)}, {v(m+1)}"])
    P(f"v_add_f32 {v(M[0])}, {v(M[0])}, {v(M[1])}\nv_cmp_lt_f32 vcc, {v(M[0])}, {s(S_T1)}")
    P("s_cmp_eq_u64 vcc, -1\ns_cbranch_scc0 L_exact0\nL_back:")
    R.stamp()

def slow_path():
    return exact_attention(0) + exact_attention(1) + "    s_branch L_back\n"

def exact_attention(t):
    F = Prog(); q, M, acc = v((QA, QA1)[t], 4), TMP, v(OACC2[t], 16)
    KO, VO, G = TMP + 2, TMP + 3, S_T0
    def tile(rel, kdst, vdst):
        o = [f"s_add_i32 {s(S_K)}, {s(G)}, {rel}", f"s_cmp_ge_i32 {s(S_K)}, 0", f"s_cselect_b64 vcc, -1, 0",
             f"s_cselect_b32 {s(S_TM)}, {hex(ONES)}, 0", f"s_max_i32 {s(S_K)}, {s(S_K)}, 0", f"s_lshl_b32 {s(S_K)}, {s(S_K)}, 11",
             f"s_lshl_b32 {s(S_T1)}, {s(S_HEAD)}, 17", f"s_add_u32 {s(S_K)}, {s(S_K)}, {s(S_T1)}",
             f"v_and_b32 {v(KO)}, 0x200, {v(V_L16)}", f"v_cndmask_b32 {v(KO)}, {v(KO)}, {v(V_L16)}, vcc", ws_ld(v(kdst,4), KO, s(S_K))]
        if vdst is not None:
            o += [f"v_mov_b32 {v(vdst+i)}, {s(S_TM)}" for i in range(8)]
            o += [f"s_cmp_lg_u32 {s(S_TM)}, 0", f"s_cselect_b32 {s(S_K)}, {s(S_K)}, {WS_SIZE}", f"s_mov_b64 exec, {s(S_LO16,2)}",
                  ws_ld(v(vdst,4), VO, s(S_K), 1024), ws_ld(v(vdst+4,4), VO, s(S_K), 1536), "s_mov_b64 exec, -1"]
        return o
    F(f"L_exact{t}:\ns_waitcnt vmcnt(0) lgkmcnt(0)\ns_nop 15")
    F(f"""s_lshl_b32 {s(G)}, {s(S_RB)}, 1
s_sub_u32 {s(G)}, {s(G)}, {8 - t}
v_lshrrev_b32 {v(VO)}, 1, {v(V_L16)}
v_and_b32 {v(VO)}, 0x100, {v(VO)}
v_and_b32 {v(KO)}, 0xf0, {v(V_L16)}
v_or_b32 {v(VO)}, {v(VO)}, {v(KO)}""")
    F.add(tile(8, KF, VF)); F.add(tile(0, KF+4, VF+8))
    F(mfma(v(MG,16), v(KF,4), q, "0")); F(mfma(v(SB,16), v(KF+4,4), q, "0"))
    F.add([f"v_cndmask_b32 {v(MG+i)}, {v(SB+i)}, {v(MG+i)}, {s(S_MASK+2*i,2)}" for i in range(16)])
    F.add(max_tree(M, range(MG, MG+16)))
    F(f"s_mov_b32 {s(S_TM+1)}, 7\nL_exact_m{t}:\ns_add_u32 {s(G)}, {s(G)}, 1")
    F.add(tile(0, KF, None))
    F(mfma(v(SB,16), v(KF,4), q, "0"))
    F.add(max_tree(M, range(SB, SB+16), init=True))
    F(f"s_sub_u32 {s(S_TM+1)}, {s(S_TM+1)}, 1\ns_cmp_lg_u32 {s(S_TM+1)}, 0\ns_cbranch_scc1 L_exact_m{t}")
    F.add(cross_max(M, M+1))
    F.add([f"v_sub_f32 {v(MG+i)}, {v(MG+i)}, {v(M)}" for i in range(16)])
    F.add([f"v_exp_f32 {v(MG+i)}, {v(MG+i)}" for i in range(16)])
    F.add([f"v_cvt_pk_bf16_f32 {v(PF+i)}, {v(MG+2*i)}, {v(MG+2*i+1)}" for i in range(8)])
    F.add([f"v_and_b32 {v(PB+i)}, {v(PM+i)}, {v(PF+i)}" for i in range(8)])
    F.add([f"v_xor_b32 {v(PF+i)}, {v(PF+i)}, {v(PB+i)}" for i in range(8)])
    F(mfma(acc, v(VF,4), v(PB,4), "0")); F(mfma(acc, v(VF+4,4), v(PB+4,4), acc))
    F(mfma(acc, v(VF+8,4), v(PF,4), acc)); F(mfma(acc, v(VF+12,4), v(PF+4,4), acc))
    F(f"s_sub_u32 {s(G)}, {s(G)}, 7\ns_mov_b32 {s(S_TM+1)}, 7\ns_nop 15\nL_exact_e{t}:\ns_add_u32 {s(G)}, {s(G)}, 1")
    F.add(tile(0, KF, VF))
    F(mfma(v(SB,16), v(KF,4), q, "0"))
    F.add([f"v_sub_f32 {v(SB+i)}, {v(SB+i)}, {v(M)}" for i in range(16)])
    F.add([f"v_exp_f32 {v(SB+i)}, {v(SB+i)}" for i in range(16)])
    F.add([f"v_cvt_pk_bf16_f32 {v(PB+i)}, {v(SB+2*i)}, {v(SB+2*i+1)}" for i in range(8)])
    F(mfma(acc, v(VF,4), v(PB,4), acc)); F(mfma(acc, v(VF+4,4), v(PB+4,4), acc))
    F(f"s_nop 15\ns_sub_u32 {s(S_TM+1)}, {s(S_TM+1)}, 1\ns_cmp_lg_u32 {s(S_TM+1)}, 0\ns_cbranch_scc1 L_exact_e{t}")
    return finalize(F)

E = Prog()
hb = {4: 2, 3: 1, 2: 0, 1: 3}[OPT["xmap"]]
if OPT["stamps"] or OPT["amp"] >= 0:
    E("s_memtime s[64:65]\ns_memrealtime s[66:67]")
def entry_stamp():
    if OPT["stamps"]:
        return [f"v_mov_b32 {v(V_STAMP)}, 0", f"v_writelane_b32 {v(V_STAMP)}, s64, 0", f"v_writelane_b32 {v(V_STAMP)}, s66, 62"]
    if OPT["amp"] >= 0:
        return [f"v_mov_b32 {v(V_STAMP)}, 0", f"v_writelane_b32 {v(V_STAMP)}, {'s64' if OPT['ampclk'] else 's66'}, 0"]
    return []
code_pf = f"""s_getpc_b64 {s(S_T2,2)}
L_pc:
s_lshl2_add_u32 {s(S_T1)}, {s(S_T0)}, {s(S_W4)}
s_and_b32 {s(S_T1)}, {s(S_T1)}, 63
s_lshl_b32 {s(S_T1)}, {s(S_T1)}, 9
s_sub_u32 {s(S_T2)}, {s(S_T2)}, L_pc-{NAME}_kernel
s_subb_u32 {s(S_T3)}, {s(S_T3)}, 0
v_and_b32 v5, 3, {v(V_LANE)}
v_lshl_add_u32 v5, v5, 7, {s(S_T1)}
global_load_dword v13, v5, {s(S_T2,2)}"""
if OPT["cpf"] == 2:
    E(f"""s_getpc_b64 {s(S_T2,2)}
s_bfe_u32 {s(S_T1)}, s2, 0x50003
v_lshrrev_b32 v5, 6, v0
v_lshlrev_b32 v5, 7, v5
v_lshl_add_u32 v5, {s(S_T1)}, 10, v5
global_load_dword v13, v5, {s(S_T2,2)}""")
if OPT["cpf"] == 3:
    E(f"""s_getpc_b64 {s(S_T2,2)}
s_bfe_u32 {s(S_T1)}, s2, 0x30003
v_lshrrev_b32 v5, 4, v0
v_lshlrev_b32 v5, 7, v5
v_lshl_add_u32 v5, {s(S_T1)}, 12, v5
global_load_dword v13, v5, {s(S_T2,2)}""")
E(f"""
s_cmp_ge_u32 s2, 256
s_cbranch_scc1 L_end
s_load_dwordx16 s[4:19], s[0:1], 0
s_load_dwordx4 s[20:23], s[0:1], 64
v_lshrrev_b32 v4, 6, v0
v_and_b32 {v(V_LANE)}, 63, v0
s_lshr_b32 {s(S_T0)}, s2, 3
v_readfirstlane_b32 {s(S_MX)}, v4
""")
E(f"""
s_and_b32 {s(S_T1)}, s2, {(8 >> hb) - 1}
s_lshl_b32 {s(S_HG)}, {s(S_T1)}, {hb}
s_and_b32 {s(S_K)}, {s(S_T0)}, {(1 << hb) - 1}
s_add_u32 {s(S_HG)}, {s(S_HG)}, {s(S_K)}
s_bfe_u32 {s(S_K)}, s2, {hex((hb << 16) | (3 - hb))}
s_lshl_b32 {s(S_RB)}, {s(S_K)}, {5 - hb}
s_lshr_b32 {s(S_ROT)}, {s(S_T0)}, {hb}
s_add_u32 {s(S_RB)}, {s(S_RB)}, {s(S_ROT)}
s_and_b32 {s(S_W4)}, {s(S_MX)}, 3
""")
if OPT["cpf"] == 1:
    E(f"""s_cmp_lt_u32 {s(S_MX)}, 4
s_cbranch_scc0 L_hrole""")
    E(code_pf)
    E("s_branch L_crole\nL_hrole:")
elif OPT["cpf"] >= 4:
    E(f"""s_cmp_lt_u32 {s(S_MX)}, 4
s_cbranch_scc0 L_hrole
s_getpc_b64 {s(S_T2,2)}
L_pc:
s_lshl2_add_u32 {s(S_T1)}, {s(S_T0)}, {s(S_W4)}
s_lshl_b32 {s(S_T1)}, {s(S_T1)}, 8
s_sub_u32 {s(S_T2)}, {s(S_T2)}, L_pc-{NAME}_kernel
s_subb_u32 {s(S_T3)}, {s(S_T3)}, 0
s_load_dword s70, {s(S_T2,2)}, {s(S_T1)}
s_add_u32 {s(S_T1)}, {s(S_T1)}, 128
s_load_dword s71, {s(S_T2,2)}, {s(S_T1)}""")
    if OPT["cpf"] == 5:
        E("s_waitcnt lgkmcnt(0)")
        for i, ptr in enumerate((6, 12, 4, 16, 20, 8, 14, 18, 22)):
            E(f"s_load_dword s{72+i}, {s(ptr,2)}, 0")
        for i in range(1, 5):
            E(f"s_mov_b32 {s(S_T1)}, {i << 21}\ns_load_dword s{80+i}, s[22:23], {s(S_T1)}")
    E("s_branch L_crole\nL_hrole:")
else:
    E(f"s_cmp_lt_u32 {s(S_MX)}, 4\ns_cbranch_scc1 L_crole")
late_ids = lines(f"""
s_lshr_b32 {s(S_T0)}, s2, 3
s_and_b32 {s(S_RB3)}, s2, 7
s_lshl_b32 {s(S_RB3)}, {s(S_RB3)}, 2
s_lshr_b32 {s(S_T1)}, {s(S_T0)}, 3
s_add_u32 {s(S_RB3)}, {s(S_RB3)}, {s(S_T1)}
s_and_b32 {s(S_CB)}, {s(S_T0)}, 7
s_lshl_b32 {s(S_HEAD)}, {s(S_HG)}, 2
s_add_u32 {s(S_HEAD)}, {s(S_HEAD)}, {s(S_W4)}
s_mov_b32 {s(S_LO16)}, 0xffff
s_mov_b32 {s(S_LO16+1)}, 0xffff
v_lshlrev_b32 {v(V_L16)}, 4, {v(V_LANE)}
""")
rot_code = {
 0: f"s_and_b32 {s(S_ROT)}, {s(S_ROT)}, {OPT['rotmask']}",
 1: f"s_and_b32 {s(S_ROT)}, s2, 7",
 4: f"s_add_u32 {s(S_ROT)}, {s(S_ROT)}, {s(S_HG)}\ns_and_b32 {s(S_ROT)}, {s(S_ROT)}, 7",
 5: f"s_add_u32 {s(S_ROT)}, {s(S_ROT)}, {s(S_HG)}\ns_and_b32 {s(S_ROT)}, {s(S_ROT)}, 3\ns_lshl_b32 {s(S_ROT)}, {s(S_ROT)}, 1",
 6: f"s_add_u32 {s(S_ROT)}, {s(S_ROT)}, {s(S_HG)}\ns_and_b32 {s(S_ROT)}, {s(S_ROT)}, 1\ns_lshl_b32 {s(S_ROT)}, {s(S_ROT)}, 2",
}[OPT["rotmode"]]

def stage_of(n): return n if n < 16 else 16 + ((n - 16) >> 1)
def first_of_stage(n): return n < 32 and (n == 0 or stage_of(n) != stage_of(n - 1))
def mfma16(d, a, b, c): return f"v_mfma_f32_16x16x32_bf16 {d}, {a}, {b}, {c}"

H = Role("H"); P = H.P
VX, VW1, VW2 = 160, 162, 166
V_AXW, V_AG, V_GPW, GACC, XW, GF = 170, 171, 172, 174, 176, 184
i3, i4, p7, t0, t1, t2 = 32, 33, 34, 35, 36, 37
def raw(i):
    if OPT["fine"] == 3: P(f"s_memtime s[{68+2*i}:{69+2*i}]")
raw(0)
P(rot_code)
P(f"""
v_lshrrev_b32 {v(i3)}, 3, {v(V_LANE)}
v_lshrrev_b32 {v(i4)}, 4, {v(V_LANE)}
v_and_b32 {v(p7)}, 7, {v(V_LANE)}
s_lshl_b32 {s(S_T0)}, {s(S_W4)}, 4
v_add_u32 {v(t0)}, {s(S_T0)}, {v(i3)}
v_lshlrev_b32 {v(t0)}, 10, {v(t0)}
v_xor_b32 {v(t1)}, {v(p7)}, {v(i4)}
v_lshl_add_u32 {v(VX)}, {v(t1)}, 4, {v(t0)}
v_xor_b32 {v(VX+1)}, 64, {v(VX)}
v_add_u32 {v(VX+1)}, {0x2000 - 1024}, {v(VX+1)}
s_lshr_b32 {s(S_T0)}, {s(S_W4)}, 1
s_and_b32 {s(S_T1)}, {s(S_W4)}, 1
s_lshl_b32 {s(S_K)}, {s(S_T0)}, 4
v_add_u32 {v(t0)}, {s(S_K)}, {v(i4)}
v_mul_u32_u24 {v(t0)}, 0xc00, {v(t0)}
v_lshlrev_b32 {v(t1)}, 1, {v(i4)}
v_xor_b32 {v(t1)}, {v(t1)}, {v(p7)}
v_lshl_add_u32 {v(t0)}, {v(t1)}, 4, {v(t0)}
v_and_b32 {v(t1)}, 1, {v(i3)}
v_xor_b32 {v(t1)}, {s(S_T1)}, {v(t1)}
v_lshlrev_b32 {v(t1)}, 10, {v(t1)}
s_lshl_b32 {s(S_T2)}, {s(S_HG)}, 7
s_add_u32 {s(S_K)}, {s(S_T2)}, 1024
v_add3_u32 {v(VW1)}, {v(t0)}, {v(t1)}, {s(S_K)}
v_add_u32 {v(VW1+1)}, {12288 - 1024}, {v(VW1)}
v_xor_b32 {v(t1)}, 0x400, {v(t1)}
v_add3_u32 {v(VW1+2)}, {v(t0)}, {v(t1)}, {s(S_K)}
v_add_u32 {v(VW1+3)}, {3*(12288 - 1024)}, {v(VW1+2)}
v_add_u32 {v(VW1+2)}, {2*(12288 - 1024)}, {v(VW1+2)}
s_lshl_b32 {s(S_MW)}, {s(S_T1)}, 13
s_lshl_b32 {s(S_K)}, {s(S_T0)}, 12
s_add_u32 {s(S_MW)}, {s(S_MW)}, {s(S_K)}
s_lshl_b32 {s(S_MX)}, {s(S_W4)}, 11
s_add_u32 {s(S_MX)}, {s(S_MX)}, {L_X}""")
raw(1)
P("s_waitcnt lgkmcnt(0)")
if OPT["wsoff"]: P(f"s_add_u32 s22, s22, {OPT['wsoff'] << 20}\ns_addc_u32 s23, s23, 0")
raw(2)
P.add(entry_stamp())
P.add(srd(S_X, 4, 2097152))
P(f"""s_cmp_eq_u32 {s(S_T1)}, 0
s_cselect_b32 {s(S_W)}, s6, s12
s_cselect_b32 {s(S_W+1)}, s7, s13
s_mov_b32 {s(S_W+2)}, 1572864
s_mov_b32 {s(S_W+3)}, 0x20000""")
if OPT["fine"] != 3: H.stamp()
def dma(voff, rsrc, soff, imm, tag, flags=""):
    flags = flags or ("", " sc1", " nt", " sc0", " sc0 sc1")[OPT["dfl"]]
    return Ins(f"buffer_load_dwordx4 {v(voff)}, {s(rsrc,4)}, {soff} offen{' offset:%d' % imm if imm else ''}{flags} lds", tag)
def x_dma(j):
    return [f"s_add_u32 {s(S_K)}, {s(S_ROT)}, {j}", f"s_and_b32 {s(S_K)}, {s(S_K)}, 7", f"s_lshl_b32 {s(S_K)}, {s(S_K)}, 7",
            f"s_lshl_b32 {s(S_T2)}, {s(S_RB)}, 16", f"s_add_u32 m0, {s(S_MX)}, {j*8192}", f"s_add_u32 {s(S_K)}, {s(S_K)}, {s(S_T2)}",
            dma(VX, S_X, s(S_K), 0, f"x{j}"), dma(VX+1, S_X, s(S_K), 1024, f"x{j}")]
def w_dma(S):
    if S < 16:
        o = [f"s_lshl_b32 {s(S_T3)}, {s(S_ROT)}, 1", f"s_add_u32 {s(S_T3)}, {s(S_T3)}, {S}", f"s_and_b32 {s(S_T3)}, {s(S_T3)}, 15"]
    else:
        o = [f"s_add_u32 {s(S_T3)}, {s(S_ROT)}, {S-16}", f"s_and_b32 {s(S_T3)}, {s(S_T3)}, 7"]
    o += [f"s_add_u32 m0, {s(S_MW)}, {(S % NSLOT)*SLOT}", f"s_mul_i32 {s(S_T3)}, {s(S_T3)}, {(32 if S < 16 else 64)*3072}"]
    return o + [dma((VW1 if S < 16 else VW2) + t, S_W, s(S_T3), t*1024, f"w{S}") for t in range(4)]
P.add(x_dma(0)); raw(3)
P.add(w_dma(0)); raw(4)
P.add(w_dma(1)); raw(5)
P(f"""s_lshl_b32 {s(S_K)}, {s(S_ROT)}, 3
v_add_u32 {v(t2)}, {s(S_K)}, {v(V_LANE)}
v_and_b32 {v(t2)}, 63, {v(t2)}
v_lshlrev_b32 {v(t2)}, 4, {v(t2)}""")
P.add(srd(S_G, 16, 1024)); P(f"s_mov_b32 m0, {L_G}"); P.add(dma(t2, S_G, "0", 0, "w1"))
P.add(late_ids)
h_misc = lines(f"""
s_lshr_b32 {s(S_T0)}, {s(S_W4)}, 1
s_and_b32 {s(S_T1)}, {s(S_W4)}, 1
s_lshl_b32 {s(S_T0)}, {s(S_T0)}, 5
v_add_u32 {v(t0)}, {s(S_T0)}, {v(i3)}
v_mul_u32_u24 {v(t0)}, 0xc00, {v(t0)}
v_and_b32 {v(t1)}, 1, {v(i4)}
v_lshlrev_b32 {v(t1)}, 1, {v(t1)}
v_xor_b32 {v(t1)}, {v(t1)}, {v(p7)}
v_lshlrev_b32 {v(t1)}, 4, {v(t1)}
s_lshl_b32 {s(S_T0)}, {s(S_HG)}, 7
v_add3_u32 {v(VW2)}, {v(t0)}, {v(t1)}, {s(S_T0)}
v_xor_b32 {v(t1)}, 64, {v(t1)}
v_add3_u32 {v(VW2+1)}, {v(t0)}, {v(t1)}, {s(S_T0)}
v_add_u32 {v(VW2+2)}, {2*(24576 - 1024)}, {v(VW2)}
v_add_u32 {v(VW2+3)}, {3*(24576 - 1024)}, {v(VW2+1)}
v_add_u32 {v(VW2+1)}, {24576 - 1024}, {v(VW2+1)}
""") + srd(S_WS, 22, WS_SIZE) + srd(S_DBG, 20, 256)
P.add(h_misc)
if OPT["fine"] == 3:
    raw(6); P("s_waitcnt vmcnt(9)"); raw(7); P("s_waitcnt vmcnt(5)"); raw(8); P("s_waitcnt lgkmcnt(0)")
    for i in range(9):
        P(f"v_writelane_b32 {v(V_STAMP)}, s{68+2*i}, {i+1}")
    H.ns = 9
VWO, VKF, V1A, V1D, V_MB, V_HB = 160, 161, 162, 164, 12, 13
txt_of = lambda x: x.text if isinstance(x, Ins) else x
special_txt = []
def gather(tiles, special):
    o = []
    if 1 in tiles:
        o += [f"s_lshl_b32 {s(S_K)}, {s(S_HEAD)}, 17", f"s_lshl_b32 {s(S_T1)}, {s(S_RB)}, 12",
              f"s_add_u32 {s(S_T2)}, {s(S_K)}, {s(S_T1)}", f"s_sub_u32 {s(S_T2)}, {s(S_T2)}, {8*2048}"]
    for u in tiles:
        tag = "kv" if u < 4 or not OPT["t2"] else "kvb"
        o += [f"s_add_u32 {s(S_T0)}, {s(S_T2)}, {u*2048}", f"s_add_u32 m0, {s(S_MW)}, {u*KVS}"]
        if special:
            o += [f"s_cmp_ge_u32 {s(S_RB)}, {(8-u+1)//2}", f"s_cbranch_scc1 L_gk{u}",
                  dma(VKF, S_WS, s(S_K), 0, None, " sc1"), f"s_mov_b32 {s(S_T0)}, {WS_SIZE}", f"s_branch L_gk{u}e", f"L_gk{u}:",
                  dma(V_L16, S_WS, s(S_T0), 0, None, " sc1"), f"L_gk{u}e:"]
        else:
            o += [dma(V_L16, S_WS, s(S_T0), 0, tag, " sc1")]
        o += [dma(V_L16, S_WS, s(S_T0), 1024, tag, " sc1")]
    return o
def emit_gather(n, tiles):
    P(f"s_cmp_lt_u32 {s(S_RB)}, 4\ns_cbranch_scc1 L_gspecial{n}")
    P.add(gather(tiles, False)); P(f"L_gdone{n}:")
    special_txt.append(f"L_gspecial{n}:\n" + "\n".join(("" if txt_of(x).endswith(":") else "    ") + txt_of(x) for x in gather(tiles, True))
                       + f"\n    s_branch L_gdone{n}\n")
S_R3, S_WB, S_MA, S_MB = 24, 25, 30, 31
B0, B1, A0, A1, A2, A3, VOG, EXW, EXR, VOUT = 16, 17, 24, 25, 26, 27, 18, 20, 23, 19
ACC3, OFB, OFA, WBF = 32, 96, 192, 176
issued_w, issued_x = 2, 1

for S in range(25):
    if S < 24:
        P.add(WaitTag(f"w{S}", f"x{S >> 1}" if S < 16 else "none"))
    if S < 20: P.add(WaitLds())
    P("s_barrier")
    if OPT["fine"] in (1, 2, 3) or S in (0, 16, 24): H.stamp()
    mark = len(P.items)
    top = {0: 3}.get(S, S + 4)
    if S in (14, 15, 16) and OPT["hold"]: top = min(top, 20 - OPT["hold"])
    while issued_w <= min(top, 23):
        if issued_w < 16 and issued_w % 2 == 0 and issued_x <= issued_w // 2:
            P.add(x_dma(issued_x)); issued_x += 1
        P.add(w_dma(issued_w)); issued_w += 1
    if OPT["icpf"] and S == 1:
        t = (f"    s_getpc_b64 s[78:79]\nL_pc:\n    s_sub_u32 s78, s78, L_pc-{NAME}_kernel\n    s_subb_u32 s79, s79, 0\n    s_lshr_b32 {s(S_T1)}, s2, 3\n"
             f"    s_lshl2_add_u32 {s(S_T1)}, {s(S_T1)}, {s(S_W4)}\n    s_lshl_b32 {s(S_T1)}, {s(S_T1)}, 8\n")
        t += "".join(f"    s_load_dword s{80+i}, s[78:79], {s(S_T1)} offset:{i*64}\n" for i in range(4))
        P.add(Raw(t))
    if OPT["tlb"] and S in (3, 4, 5, 6):
        for i, (ptr, off) in enumerate({3: ((22, 0), (22, 1)), 4: ((22, 2), (22, 4)), 5: ((22, 3), (20, 0)), 6: ((18, 0),)}[S]):
            P.add(Raw(f"    s_mov_b32 {s(S_T1)}, {off << 21}\n    s_load_dword s{70+i}, {s(ptr,2)}, {s(S_T1)}"))
    if OPT["wopf"] and S in (8, 9, 10, 11):
        ptr, half = (14, 8)[(S - 8) >> 1], S & 1
        t = f"    s_lshl2_add_u32 {s(S_T1)}, s2, {s(S_W4)}\n    s_lshl_b32 {s(S_T1)}, {s(S_T1)}, 9\n"
        t += "".join(f"    s_load_dword s{73+i}, {s(ptr,2)}, {s(S_T1)} offset:{half*256+i*64}\n" for i in range(4))
        P.add(Raw(t))
    if S == 8: P(ep_load)
    if S == 14:
        P(f"""v_lshrrev_b32 v48, 5, {v(V_LANE)}
v_bfe_u32 v49, {v(V_LANE)}, 2, 2
v_lshl_add_u32 v48, v48, 2, v49
v_and_b32 v49, 2, v49
v_bfe_u32 v50, {v(V_LANE)}, 4, 1
v_xor_b32 v49, v49, v50
s_and_b32 {s(S_T1)}, {s(S_W4)}, 1
s_lshl_b32 {s(S_T1)}, {s(S_T1)}, 1
s_lshr_b32 {s(S_T0)}, {s(S_W4)}, 1
s_or_b32 {s(S_T1)}, {s(S_T1)}, {s(S_T0)}
v_xor_b32 v49, {s(S_T1)}, v49
v_lshlrev_b32 v49, 5, v49
v_lshl_add_u32 v48, v48, 7, v49
v_and_b32 v49, 3, {v(V_LANE)}
v_lshl_add_u32 v48, v49, 3, v48
s_lshl_b32 {s(S_MX)}, {s(S_W4)}, 14
v_add_u32 {v(B0)}, {s(S_MX)}, v48
v_xor_b32 {v(B1)}, 64, {v(B0)}
v_xor_b32 v49, 64, v48
s_mul_i32 {s(S_T0)}, {s(S_W4)}, 6144
s_add_u32 {s(S_T0)}, {s(S_T0)}, {L_WA}
v_add_u32 {v(A0)}, {s(S_T0)}, v48
v_add_u32 {v(A1)}, {s(S_T0)}, v49
s_mul_i32 {s(S_T0)}, {s(S_W4)}, 10240
s_add_u32 {s(S_T0)}, {s(S_T0)}, {L_KV}
v_add_u32 {v(A2)}, {s(S_T0)}, v48
v_add_u32 {v(A3)}, {s(S_T0)}, v49
""")
    if S == 15:
        P(f"s_mul_i32 {s(S_T0)}, {s(S_W4)}, 6144\nv_add_u32 {v(EXR)}, {s(S_T0)}, {v(V_L16)}")
        for i in range(1, 4):
            P(f"s_xor_b32 {s(S_T0)}, {s(S_W4)}, {i}\ns_mul_i32 {s(S_T0)}, {s(S_T0)}, 6144\nv_add_u32 {v(EXW+i-1)}, {s(S_T0)}, {v(V_L16)}")
        P(f"""v_and_b32 {v(VOUT)}, 31, {v(V_LANE)}
v_lshlrev_b32 {v(VOUT)}, 10, {v(VOUT)}
v_lshrrev_b32 v48, 5, {v(V_LANE)}
v_lshl_add_u32 {v(VOUT)}, v48, 4, {v(VOUT)}
s_lshl_b32 {s(S_T0)}, {s(S_RB3)}, 16
s_lshr_b32 {s(S_T1)}, {s(S_W4)}, 1
s_lshl_b32 {s(S_T1)}, {s(S_T1)}, 5
s_add_u32 {s(S_T0)}, {s(S_T0)}, {s(S_T1)}
s_lshl_b32 {s(S_T1)}, {s(S_CB)}, 7
s_add_u32 {s(S_T0)}, {s(S_T0)}, {s(S_T1)}
s_and_b32 {s(S_T1)}, {s(S_W4)}, 1
s_lshl_b32 {s(S_T1)}, {s(S_T1)}, 6
s_add_u32 {s(S_T0)}, {s(S_T0)}, {s(S_T1)}
v_add_u32 {v(VOUT)}, {s(S_T0)}, {v(VOUT)}
s_lshl_b32 {s(S_T0)}, {s(S_RB3)}, 17
s_lshl_b32 {s(S_T1)}, {s(S_W4)}, 13
s_add_u32 {s(S_T0)}, {s(S_T0)}, {s(S_T1)}
s_add_u32 {s(S_T0)}, {s(S_T0)}, {WS_O}
v_add_u32 {v(VOG)}, {s(S_T0)}, {v(V_L16)}
s_lshl_b32 {s(S_WB)}, {s(S_W4)}, 17
s_lshl_b32 {s(S_T1)}, {s(S_CB)}, 7
s_add_u32 {s(S_WB)}, {s(S_WB)}, {s(S_T1)}
s_lshl3_add_u32 {s(S_R3)}, {s(S_RB3)}, {s(S_CB)}
s_lshl2_add_u32 {s(S_R3)}, {s(S_R3)}, {s(S_W4)}
s_lshl_b32 {s(S_R3)}, {s(S_R3)}, 6""")
    if S == OPT["kvs"]:
        tail = P.items[mark:]; del P.items[mark:]
        P.add(flag_store("none", "kv")); P.items += tail
    if S == 16:
        P("s_waitcnt lgkmcnt(0)")
        H.poll(f"v_cmp_ne_u64 vcc, 0, {v(EP,2)}", ep_load)
        P(f"v_readfirstlane_b32 {s(S_EP)}, {v(EP)}\nv_readfirstlane_b32 {s(S_EP+1)}, {v(EP+1)}")
    if S == 19:
        P.add(srd(S_WOA, 8, 524288) + srd(S_WOB, 14, 524288) + srd(S_OUT, 18, 2097152))
    if S == 20:
        P(f"""v_lshrrev_b32 v48, 3, {v(V_LANE)}
v_bfe_u32 v49, {v(V_LANE)}, 4, 1
v_lshlrev_b32 v49, 2, v49
v_and_b32 v50, 7, {v(V_LANE)}
v_xor_b32 v49, v49, v50
v_lshlrev_b32 v49, 4, v49
v_lshl_add_u32 {v(VWO)}, v48, 10, v49
v_and_b32 {v(VKF)}, 32, {v(V_LANE)}
v_lshlrev_b32 {v(VKF)}, 4, {v(VKF)}
v_mul_u32_u24 {v(V1A)}, {KVS}, v50
s_mul_i32 {s(S_MW)}, {s(S_W4)}, {KVH}
s_add_u32 {s(S_MW)}, {s(S_MW)}, {L_KV}
s_add_u32 {s(S_T0)}, {s(S_MW)}, 2048
v_add_u32 {v(V1A)}, {s(S_T0)}, {v(V1A)}
s_lshl_b32 {s(S_T0)}, {s(S_RB)}, 1
v_add_u32 v48, {s(S_T0)}, v50
v_cmp_le_u32 vcc, 8, v48
v_mov_b32 v49, {hex(ONES)}
v_cndmask_b32 {v(V1D)}, 0, v49, vcc
v_mov_b32 {v(V1D+1)}, {v(V1D)}
v_mov_b32 {v(V1D+2)}, {v(V1D)}
v_mov_b32 {v(V1D+3)}, {v(V1D)}
s_mul_i32 {s(S_MA)}, {s(S_W4)}, 6144
s_add_u32 {s(S_MA)}, {s(S_MA)}, {L_WA}
s_mul_i32 {s(S_MB)}, {s(S_W4)}, 10240
s_add_u32 {s(S_MB)}, {s(S_MB)}, {L_KV - 6144}
s_lshl_b32 {s(S_K)}, {s(S_HEAD)}, 5
s_add_u32 {s(S_K)}, {s(S_K)}, {s(S_RB)}
s_lshl_b32 {s(S_K)}, {s(S_K)}, 6
s_add_u32 {s(S_K)}, {s(S_K)}, {WS_FKV}""")
    if S == OPT["gat"] - 1 - OPT["pasy"]:
        H.spoll_issue(4, S_K)
    if S == OPT["gat"] - 1:
        H.spoll(4, S_K, ignore_from=S_RB)
        H.stamp()
    if S == OPT["sents"]:
        P.add([f"v_mov_b32 {v(172+i)}, -1" for i in range(4)])
        P.add(o_store(0, 1, 172, "sent")); P.add(o_store(0, 0, 172, "sent"))
    if S == 23:
        P(f"ds_write_b128 {v(V1A)}, {v(V1D,4)}")
    if S == 24: P.add(Pace(OPT["pace0"]))
    if S == OPT["gat"] + OPT["gdel"]:
        emit_gather(0, (0, 1, 2, 3))
if OPT["p1only"]:
    H.finish()
fs = lambda: H.stamp() if OPT["fine"] == 4 else None
P(f"s_setprio {OPT['hprio']}")
emit_gather(1, (4, 5, 6, 7))
def wo_dma(br):
    o = []
    for t in range(16):
        base = S_MX if br else (S_MA if t < 6 else S_MB)
        g = [f"s_add_u32 m0, {s(base)}, {t*1024}", f"s_add_u32 {s(S_T3)}, {s(S_WB)}, {t*8192}"]
        o.append(g + [dma(VWO, S_WOB if br else S_WOA, s(S_T3), 0, "wob" if br else ("woa" if t < 6 else "woc"))])
    return o
woa, wob = wo_dma(0), wo_dma(1)
P.add(wob[:OPT["wb0"]])
P.add(WaitTag("kv")); P.add(WaitLds()); P("s_barrier")
H.stamp()
if OPT["t2"]: P.add(WaitTag("kvb")); P("s_barrier")
P.add(Pace(OPT["pace"]))
rest = wob[OPT["wb0"]:] + woa[:6]
if OPT["zbar"]:
    P.add(rest[:OPT["wz"]]); rest = rest[OPT["wz"]:]
    P("s_barrier"); fs(); P.add(flag_store("sent", "ob"))
P.add(rest)
fs()
def o_gather(br, tt):
    o = []
    for hs in range(8):
        if hs % 4 == 0: o += [f"s_mov_b32 {s(S_T1)}, {br*65536 + tt*32768 + hs*1024}"]
        o += [ws_ld(v((OFA, OFB)[br]+32*tt+4*hs,4), VOG, s(S_T1), (hs & 3)*1024)]
    return o
def wo_read(dst, hs, br):
    base, off = ((B0, B1), hs*2048) if br else (((A0, A1), hs*2048) if hs < 3 else ((A2, A3), (hs-3)*2048))
    return [f"ds_read_b64_tr_b16 {v(dst+4*ct+2*j,2)}, {v(base[ct])} offset:{off+j*1024}" for ct in range(2) for j in range(2)]
FIN = OFB
def p3(Q, br, tt, first, last, hook=lambda hs: None):
    if first: Q.add(wo_read(WBF, 0, br))
    for hs in range(8):
        b = hs & 1
        rd = wo_read(WBF + 8*(1-b), (hs + 1) & 7, br) if not (last and hs == 7) else []
        for ct in range(2):
            acc = v((FIN, ACC3)[br]+32*tt+16*ct, 16)
            c = acc if hs else ("0" if br else v(ACC3+32*tt+16*ct, 16))
            Q(mfma(acc, v(WBF+8*b+4*ct,4), v((OFA, OFB)[br]+32*tt+4*hs,4), c))
            Q.add(rd[2*ct:2*ct+2])
        hook(hs)
def red_writes(tt):
    keep, ex = FIN + 32*tt, tt * 24576
    send = {1: keep + 16, 2: keep + 8, 3: keep + 24}
    return [f"ds_write_b128 {v(EXW+i-1)}, {v(send[i]+4*q,4)} offset:{ex+(i-1)*2048+q*1024}" for i in (2, 1, 3) for q in range(2)]
def red_reads(tt):
    return [f"ds_read_b128 {v(ACC3+32*tt+8*i+4*q,4)}, {v(EXR)} offset:{tt*24576+i*2048+q*1024}" for q in range(2) for i in range(3)]
def red_finish(tt):
    keep, tmp, o = FIN + 32*tt, ACC3 + 32*tt, []
    for q in range(2):
        for i in range(3):
            o += [f"v_pk_add_f32 {v(keep+4*q+2*k,2)}, {v(keep+4*q+2*k,2)}, {v(tmp+8*i+4*q+2*k,2)}" for k in range(2)]
        o += [f"v_cvt_pk_bf16_f32 {v(tmp+24+2*q+k)}, {v(keep+4*q+2*k)}, {v(keep+4*q+2*k+1)}" for k in range(2)]
    o += [f"v_permlane32_swap_b32 {v(tmp+24)}, {v(tmp+26)}", f"v_permlane32_swap_b32 {v(tmp+25)}, {v(tmp+27)}", f"s_mov_b32 {s(S_T1)}, {tt*32768}",
          f"buffer_store_dwordx4 {v(tmp+24,4)}, {v(VOUT)}, {s(S_OUT,4)}, {s(S_T1)} offen{('', ' sc1', ' nt', ' sc0 sc1')[OPT['outsc']]}"]
    return o
retry_txt = []
def sentinel_scan(tt, hs):
    base = OFA + 32*tt + 4*hs
    first = [f"v_max3_u32 {v(TMP)}, {v(base)}, {v(base+1)}, {v(base+1)}"] if hs == 0 else [f"v_max3_u32 {v(TMP)}, {v(TMP)}, {v(base)}, {v(base+1)}"]
    return first + [f"v_max3_u32 {v(TMP)}, {v(TMP)}, {v(base+2)}, {v(base+3)}"]
def a_pass(tt, last, hook=lambda hs: None):
    test = [f"v_cmp_ne_u32 vcc, -1, {v(TMP)}", "s_cmp_eq_u64 vcc, -1"]
    p3(P, 0, tt, tt == 1, last, lambda hs: (P.add(sentinel_scan(tt, hs)), hook(hs)))
    P.add(test); P(f"s_cbranch_scc0 L_retry{tt}\nL_ok{tt}:")
    Q = Prog()
    Q(f"L_retry{tt}:\ns_mov_b32 {s(S_SPIN)}, 0x20000\ns_waitcnt lgkmcnt(0)\ns_nop 15\nL_again{tt}:"); Q.add(o_gather(0, tt))
    Q(f"s_sub_u32 {s(S_SPIN)}, {s(S_SPIN)}, 1\ns_waitcnt vmcnt(0)\ns_cbranch_scc1 L_redo{tt}")
    for hs in range(8): Q.add(sentinel_scan(tt, hs))
    Q.add(test); Q(f"s_cbranch_scc0 L_again{tt}\nL_redo{tt}:")
    p3(Q, 0, tt, True, last); Q(f"s_waitcnt lgkmcnt(0)\ns_nop 15\ns_branch L_ok{tt}")
    retry_txt.append(finalize(Q))
P(f"s_add_u32 {s(S_K)}, {s(S_R3)}, {WS_FOB}")
if OPT["worder"] == 0:
    P("s_barrier"); fs()
    if OPT["f2by"] and not OPT["zbar"]: P.add(flag_store("sent", "ob"))
    P.add(woa[6:11]); H.spoll_issue(8, S_K); P.add(woa[11:]); fs()
    H.spoll(8, S_K); H.stamp()
    P.add(o_gather(1, 0)); P.add(o_gather(1, 1)); fs()
else:
    P("s_barrier"); fs()
    if OPT["f2by"] and not OPT["zbar"]: P.add(flag_store("sent", "ob"))
    H.spoll_issue(8, S_K); H.spoll(8, S_K); H.stamp()
    P.add(o_gather(1, 0)); P.add(o_gather(1, 1)); fs()
    P.add(woa[6:]); fs()
P(f"s_setprio {OPT['p3prio']}"); P.add(Pace(OPT["pacez"]))
def probe():
    P(f"""s_lshl_b32 {s(S_K)}, {s(S_RB3)}, 17
s_lshl_b32 {s(S_T1)}, {s(S_W4)}, 13
s_add_u32 {s(S_K)}, {s(S_K)}, {s(S_T1)}
s_add_u32 {s(S_K)}, {s(S_K)}, {WS_O}""")
    P.add(WaitLds())
    t = f"    s_mov_b32 {s(S_SPIN)}, 0x20000\nL_probe:\n"
    t += "".join(f"    s_load_dword s{4+i}, s[22:23], {s(S_K)} offset:{i*1024+1020} glc\n" for i in range(8))
    t += f"    s_sub_u32 {s(S_SPIN)}, {s(S_SPIN)}, 1\n    s_waitcnt lgkmcnt(0)\n    s_cbranch_scc1 L_probed\n"
    t += "".join(f"    s_max_u32 s4, s4, s{4+i}\n" for i in range(1, 8))
    t += "    s_cmp_eq_u32 s4, -1\n    s_cbranch_scc1 L_probe\nL_probed:"
    P.add(Raw(t))
def vprobe():
    P(f"""v_and_b32 {v(V_FOFF)}, 7, {v(V_LANE)}
v_lshlrev_b32 {v(V_FOFF)}, 10, {v(V_FOFF)}
s_lshl_b32 {s(S_K)}, {s(S_RB3)}, 17
s_lshl_b32 {s(S_T1)}, {s(S_W4)}, 13
s_add_u32 {s(S_K)}, {s(S_K)}, {s(S_T1)}
s_add_u32 {s(S_K)}, {s(S_K)}, {WS_O}""")
    ld = f"buffer_load_dword {v(FLG)}, {v(V_FOFF)}, {s(S_WS,4)}, {s(S_K)} offen offset:1020 sc1"
    P(ld); H.poll(f"v_cmp_ne_u32 vcc, -1, {v(FLG)}", ld)
def agather():
    if OPT["probe"] == 3: vprobe()
    if OPT["probe"] == 2: probe()
    P("s_barrier"); fs()
    if OPT["probe"] == 1: probe()
    fs(); P.add(o_gather(0, 1)); P.add(o_gather(0, 0))
if OPT["amode"] == 2: agather()
if OPT["amode"] >= 3: P("s_barrier"); fs()
P.add(WaitTag("wob", "woa", "woc"))
both = lambda: (P.add(o_gather(0, 1)), P.add(o_gather(0, 0)))
p3(P, 1, 0, True, False, lambda hs: both() if OPT["amode"] == 4 and hs == 3 else None)
if OPT["amode"] == 1: agather()
if OPT["amode"] == 3: both()
p3(P, 1, 1, False, True, lambda hs: both() if OPT["amode"] == 5 and hs == 3 else None)
H.stamp()
if OPT["amode"] == 0: agather()
a_pass(1, False)
H.stamp()
if OPT["amode"]: P("s_barrier")
w1 = red_writes(1)
def tail_hook(hs):
    if 1 <= hs <= 3: P.add(w1[2*hs-2:2*hs])
    if hs == 6 and not OPT["rtail"]: P.add(WaitLds()); P("s_barrier")
a_pass(0, True, tail_hook)
H.stamp()
if OPT["rtail"]:
    P("s_barrier")
P.add(red_reads(1)); P.add(red_writes(0)); P.add(red_finish(1)[:14])
P.add(WaitLds()); P("s_barrier")
P.add(red_reads(0)); P.add(red_finish(1)[14:]); P.add(red_finish(0))
H.stamp()
H.finish()

C = Role("C"); P = C.P
T1, T3, T2 = 32, 64, 96
XB, WB = 128, 160
V_AX, V_P0L, V_P0H, V_P1L, V_P1H, V_T2L, V_T2H = 192, 194, 195, 196, 197, 198, 199
V_LO, V_HI, V_CMR = 200, 201, 202
VPK = 224
r5, hh, rr, cc, nh, u0, u1, cm, g4 = 128, 129, 130, 131, 132, 133, 134, 135, 140
P("L_crole:")
P.add(late_ids)
if OPT["prio"]: P("s_setprio 1")
P(f"""
v_and_b32 {v(r5)}, 31, {v(V_LANE)}
v_lshrrev_b32 {v(hh)}, 5, {v(V_LANE)}
v_lshrrev_b32 {v(g4)}, 4, {v(V_LANE)}
v_and_b32 {v(u1)}, 15, {v(V_LANE)}
v_lshrrev_b32 {v(u0)}, 1, {v(u1)}
v_xor_b32 {v(u0)}, {v(u0)}, {v(g4)}
v_lshlrev_b32 {v(u0)}, 4, {v(u0)}
v_lshl_add_u32 {v(u0)}, {v(u1)}, 7, {v(u0)}
v_add_u32 {v(V_AX)}, {L_X}, {v(u0)}
v_xor_b32 {v(V_AX+1)}, 64, {v(V_AX)}
v_bfe_u32 {v(rr)}, {v(V_LANE)}, 2, 2
v_and_b32 {v(cc)}, 3, {v(V_LANE)}
v_and_b32 {v(nh)}, 1, {v(g4)}
v_lshl_add_u32 {v(u0)}, {v(g4)}, 3, {v(rr)}
v_xor_b32 {v(u1)}, {s(S_W4)}, {v(rr)}
v_lshlrev_b32 {v(u1)}, 5, {v(u1)}
v_lshl_add_u32 {v(u1)}, {v(cc)}, 3, {v(u1)}
v_lshl_add_u32 {v(u1)}, {v(u0)}, 8, {v(u1)}
v_lshl_add_u32 {v(V_P0L)}, {v(nh)}, 7, {v(u1)}
v_add_u32 {v(V_P0H)}, 0x10000, {v(V_P0L)}
v_xor_b32 {v(V_P1L)}, 0x80, {v(V_P0L)}
v_xor_b32 {v(V_P1H)}, 0x80, {v(V_P0H)}
v_lshrrev_b32 {v(u1)}, 1, {v(rr)}
v_lshl_add_u32 {v(u1)}, {v(nh)}, 1, {v(u1)}
v_xor_b32 {v(u1)}, {s(S_W4)}, {v(u1)}
v_lshlrev_b32 {v(u1)}, 5, {v(u1)}
v_lshl_add_u32 {v(u1)}, {v(cc)}, 3, {v(u1)}
v_lshl_add_u32 {v(V_T2L)}, {v(u0)}, 7, {v(u1)}
v_add_u32 {v(V_T2H)}, 0x10000, {v(V_T2L)}
v_and_b32 {v(u0)}, 15, {v(V_LANE)}
v_lshlrev_b32 {v(u0)}, 4, {v(u0)}
v_lshl_add_u32 {v(u0)}, {v(hh)}, 8, {v(u0)}
v_lshl_add_u32 {v(V_LO)}, {v(nh)}, 31, {v(u0)}
v_xor_b32 {v(V_HI)}, {OOB}, {v(V_LO)}
v_lshlrev_b32 {v(u0)}, 2, {v(hh)}
v_sub_u32 {v(cm)}, {v(r5)}, {v(u0)}
v_sub_u32 {v(u0)}, 32, {v(cm)}
v_mov_b32 {v(u1)}, {hex(~0x55540001 & 0xffffffff)}
v_alignbit_b32 {v(V_CMR)}, {v(u1)}, {v(u1)}, {v(u0)}
s_waitcnt lgkmcnt(0)""")
if OPT["wsoff"]: P(f"s_add_u32 s22, s22, {OPT['wsoff'] << 20}\ns_addc_u32 s23, s23, 0")
P.add(entry_stamp())
P(f"""s_memrealtime {s(S_TM,2)}
s_mov_b32 {s(S_C)}, {fhex(QK_SCALE)}
s_mov_b32 {s(S_C+1)}, {fhex(QK_SCALE)}
""")
def l2_prefetch():
    a, b = 140, 141
    o = lines(f"""s_lshr_b32 {s(S_T0)}, s2, 3
s_and_b32 {s(S_T1)}, {s(S_HG)}, 4
s_lshl_b32 {s(S_T1)}, {s(S_T1)}, 7
v_and_b32 {v(a)}, 3, {v(V_LANE)}
v_lshlrev_b32 {v(a)}, 7, {v(a)}
s_cmp_eq_u32 {s(S_W4)}, 2
s_cbranch_scc1 L_pfx
s_cmp_eq_u32 {s(S_W4)}, 3
s_cbranch_scc1 L_pfq
s_cmp_eq_u32 {s(S_W4)}, 0
s_cselect_b32 {s(S_W)}, s6, s12
s_cselect_b32 {s(S_W+1)}, s7, s13
s_mov_b32 {s(S_W+2)}, 1572864
s_mov_b32 {s(S_W+3)}, 0x20000
v_bfe_u32 {v(b)}, {v(V_LANE)}, 2, 1
v_lshl_add_u32 {v(a)}, {v(b)}, 10, {v(a)}
v_lshrrev_b32 {v(b)}, 3, {v(V_LANE)}
v_mul_u32_u24 {v(b)}, 0xc00, {v(b)}
v_add_u32 {v(a)}, {v(a)}, {v(b)}
s_mul_i32 {s(S_T0)}, {s(S_T0)}, {8*3072}
s_add_u32 {s(S_T0)}, {s(S_T0)}, {s(S_T1)}
s_add_u32 {s(S_T0)}, {s(S_T0)}, 1024
buffer_load_dword v190, {v(a)}, {s(S_W,4)}, {s(S_T0)} offen
s_add_u32 {s(S_T0)}, {s(S_T0)}, {256*3072}
buffer_load_dword v191, {v(a)}, {s(S_W,4)}, {s(S_T0)} offen
s_branch L_pfe
L_pfx:
s_mov_b32 {s(S_W)}, s4
s_mov_b32 {s(S_W+1)}, s5
s_mov_b32 {s(S_W+2)}, 2097152
s_mov_b32 {s(S_W+3)}, 0x20000
v_lshrrev_b32 {v(b)}, 2, {v(V_LANE)}
v_lshl_add_u32 {v(a)}, {v(b)}, 10, {v(a)}
s_lshl_b32 {s(S_T0)}, {s(S_T0)}, 14
s_and_b32 {s(S_T1)}, {s(S_RB)}, 24
s_lshl_b32 {s(S_T1)}, {s(S_T1)}, 16
s_add_u32 {s(S_T0)}, {s(S_T0)}, {s(S_T1)}
buffer_load_dword v190, {v(a)}, {s(S_W,4)}, {s(S_T0)} offen
buffer_load_dword v191, {v(a)}, {s(S_W,4)}, {s(S_T0)} offen offset:512
s_branch L_pfe
L_pfq:
s_mov_b32 {s(S_W)}, s6
s_mov_b32 {s(S_W+1)}, s7
s_mov_b32 {s(S_W+2)}, 1572864
s_mov_b32 {s(S_W+3)}, 0x20000
v_lshrrev_b32 {v(b)}, 2, {v(V_LANE)}
v_mul_u32_u24 {v(b)}, 0xc00, {v(b)}
v_add_u32 {v(a)}, {v(a)}, {v(b)}
s_mul_i32 {s(S_T0)}, {s(S_T0)}, {16*3072}
s_add_u32 {s(S_T0)}, {s(S_T0)}, {s(S_T1)}
buffer_load_dword v190, {v(a)}, {s(S_W,4)}, {s(S_T0)} offen
s_mov_b32 {s(S_W)}, s12
s_mov_b32 {s(S_W+1)}, s13
buffer_load_dword v191, {v(a)}, {s(S_W,4)}, {s(S_T0)} offen
L_pfe:""")
    P.add(Raw("\n".join(("" if l.endswith(":") else "    ") + l for l in o)))
    P("s_nop 0")
if OPT["pf"] == 1: l2_prefetch()
P.add(srd(S_WS, 22, WS_SIZE) + srd(S_DBG, 20, 256))
P(f"""s_cmp_eq_u32 s2, 0
s_cselect_b32 {s(S_T2)}, 0, {OOB}
v_lshlrev_b32 v5, 8, v0
v_or_b32 v5, {s(S_T2)}, v5
s_waitcnt lgkmcnt(0)
v_mov_b32 {v(EP)}, {s(S_TM)}
v_mov_b32 {v(EP+1)}, {s(S_TM+1)}
buffer_store_dwordx2 {v(EP,2)}, v5, {s(S_DBG,4)}, 0 offen sc1""")
V_AXW, V_AG, V_GPW, V_GPR, XW, GF, GACC = 4, 8, 9, 13, 240, 248, 204
P(f"""s_lshl_b32 {s(S_T2)}, {s(S_W4)}, 1
v_add_u32 {v(u0)}, {s(S_T2)}, {v(hh)}
v_lshlrev_b32 {v(V_AG)}, 4, {v(u0)}
v_add_u32 {v(V_AG)}, {L_G}, {v(V_AG)}
v_bfe_u32 {v(u1)}, {v(r5)}, 1, 3
v_xor_b32 {v(u0)}, {v(u0)}, {v(u1)}
v_lshlrev_b32 {v(u0)}, 4, {v(u0)}
v_lshl_add_u32 {v(u0)}, {v(r5)}, 7, {v(u0)}
v_add_u32 {v(V_AXW)}, {L_X}, {v(u0)}
v_lshlrev_b32 {v(V_GPR)}, 4, {v(r5)}
v_add_u32 {v(V_GPR)}, {L_GP}, {v(V_GPR)}
s_lshl_b32 {s(S_T2)}, {s(S_W4)}, 2
v_add_u32 {v(V_GPW)}, {s(S_T2)}, {v(V_GPR)}
v_mov_b32 {v(GACC)}, 0
v_mov_b32 {v(GACC+1)}, 0""")
P.add(attn_setup(0, 136))
C.stamp()

CM, QB, KB, VB, KBH, VBH, BP, BPL, BPK, SENT, S_R0 = 176, 248, 240, 32, 80, 84, 192, 88, 88, 220, 24
BS2, BSP2, BO2 = (96, 48), (128, 112), (160, 144)
def b_scores(t):
    kprev = v(KB, 4) if t == 1 else v(KBH, 4)
    return [mfma(v(BS2[t],16), v(KB+4*t,4), v(QB+4*t,4), v(CM,16)), mfma(v(BSP2[t],16), kprev, v(QB+4*t,4), v(CM,16))]
def b_softmax(t):
    S, sp, m, p, pl = BS2[t], BSP2[t], TMP + 2*t, BP + 8*t, BPL + 4*t
    o = [f"v_cndmask_b32 {v(S+q)}, {v(S+q)}, {v(sp+q)}, {s(S_LO16,2)}" for q in range(8, 16)]
    if t == 0:
        o += [f"v_mov_b32 {v(m)}, {hex(NEG_BIG)}"]
        o += [f"v_cndmask_b32 {v(S+q)}, {v(S+q)}, {v(m)}, {s(S_R0,2)}" for q in range(8, 16)]
    o += max_tree(m, range(S, S+16)) + cross_max(m, m+1)
    o += [f"v_pk_add_f32 {v(S+2*q,2)}, {v(S+2*q,2)}, {v(m,2)} op_sel_hi:[1,0] neg_lo:[0,1] neg_hi:[0,1]" for q in range(8)]
    o += [f"v_exp_f32 {v(S+q)}, {v(S+q)}" for q in range(16)]
    o += [f"v_cvt_pk_bf16_f32 {v(p+i)}, {v(S+2*i)}, {v(S+2*i+1)}" for i in range(8)]
    o += [f"v_cndmask_b32 {v(pl+i)}, 0, {v(p+4+i)}, {s(S_LO16,2)}" for i in range(4)]
    o += [f"v_cndmask_b32 {v(p+4+i)}, {v(p+4+i)}, 0, {s(S_LO16,2)}" for i in range(4)]
    return o
def b_pv(t):
    vprev, acc, p = v(VB+4, 4) if t == 1 else v(VBH, 4), v(BO2[t], 16), BP + 8*t
    return [mfma(acc, v(VB+8*t,4), v(p,4), "0"), mfma(acc, v(VB+8*t+4,4), v(p+4,4), acc), mfma(acc, vprev, v(BPL+4*t,4), acc)]
def b_pack(t):
    f = 200 + 2*t
    return o_pack(BO2[t], 8, 0, [f"v_sub_f32 {v(f+1)}, 1.0, {v(G0+t)}", f"v_mul_f32 {v(f)}, {v(f)}, {v(f+1)}"], BPK+4*t, f)
def frag_reads(n):
    b, m = n & 1, n & 15
    j, u2 = m >> 1, m & 1
    base = (stage_of(n) % NSLOT) * SLOT
    hi = base >= 65536; off = base - (65536 if hi else 0)
    x = [f"ds_read_b128 {v(XB+16*b+4*tg,4)}, {v(V_AX+u2)} offset:{j*8192+tg*2048}" for tg in range(4)]
    if n < 16:
        w = [f"ds_read_b64_tr_b16 {v(WB+16*b+4*f+2*qd,2)}, {v(((V_P0L,V_P0H),(V_P1L,V_P1H))[pos][hi])} offset:{off+M*8192+qd*1024}"
             for f, (M, pos) in enumerate(((0, 0), (1, 1), (0, 1), (1, 0))) for qd in range(2)]
        return w[0:2] + x[0:2] + w[2:4] + x[2:4] + w[4:8]
    w = [f"ds_read_b64_tr_b16 {v(WB+8*b+4*M+2*qd,2)}, {v((V_T2L,V_T2H)[hi])} offset:{off+M*8192+u2*4096+qd*512}" for M in range(2) for qd in range(2)]
    return w[0:2] + x[0:2] + w[2:4] + x[2:4]
def step_mfmas(n):
    b = n & 1
    x = lambda tg: v(XB+16*b+4*tg, 4)
    c = lambda r: "0" if n in (0, 16) else v(r, 4)
    kq = lambda T, wbase: [mfma16(v(T+16*f+4*tg,4), v(wbase+4*f,4), x(tg), c(T+16*f+4*tg)) for hf in range(2) for f in range(2) for tg in (2*hf, 2*hf+1)]
    if n < 16:
        return kq(T1, WB+16*b) + [mfma16(v(T3+16*f+4*tg,4), x(tg), v(WB+16*b+8+4*f,4), c(T3+16*f+4*tg)) for f in range(2) for tg in range(4)]
    return kq(T2, WB+8*b)
def kq_frag(dst, T, tt, scale):
    a = T + 8*tt
    o = [f"v_pk_mul_f32 {v(a+2*i,2)}, {v(a+2*i,2)}, {s(S_C,2)}" for i in range(4)] if scale else []
    o += [f"v_cvt_pk_bf16_f32 {v(dst+i)}, {v(a+2*i)}, {v(a+2*i+1)}" for i in (0, 2, 1, 3)]
    return o, [f"v_permlane16_swap_b32 {v(dst+i)}, {v(dst+2+i)}" for i in range(2)]
def v_frag(tg):
    d = VPK + 4*tg
    o = [f"v_cvt_pk_bf16_f32 {v(d+2*f+i)}, {v(T3+16*f+4*tg+2*i)}, {v(T3+16*f+4*tg+2*i+1)}" for i in range(2) for f in range(2)]
    return o, [f"v_permlane16_swap_b32 {v(d+i)}, {v(d+2+i)}" for i in range(2)], [f"v_permlane32_swap_b32 {v(d+i)}, {v(d+2+i)}" for i in range(2)]
def kv_publish():
    o = [f"s_lshl_b32 {s(S_T0)}, {s(S_HEAD)}, 17", f"s_lshl_b32 {s(S_T1)}, {s(S_RB)}, 12", f"s_add_u32 {s(S_T0)}, {s(S_T0)}, {s(S_T1)}"]
    k = [kq_frag(KA+4*tt, T1, tt, True) for tt in range(2)]
    o += k[0][0] + k[1][0] + k[0][1] + k[1][1] + [ws_st(v(KA+4*tt,4), V_L16, s(S_T0), tt*2048, "kv") for tt in range(2)]
    for tt in range(2):
        f = [v_frag(2*tt + m) for m in range(2)]
        o += f[0][0] + f[1][0] + f[0][1] + f[1][1] + f[0][2] + f[1][2]
        o += [ws_st(v(VPK+8*tt+4*m,4), V_LO, s(S_T0), tt*2048+1024+m*512, "kv") for m in range(2)]
    o += [f"s_lshl_b32 {s(S_T0)}, {s(S_HEAD)}, 15", f"s_lshl_b32 {s(S_T1)}, {s(S_RB)}, 10",
          f"s_add_u32 {s(S_T0)}, {s(S_T0)}, {s(S_T1)}", f"s_add_u32 {s(S_T0)}, {s(S_T0)}, {WS_HB}",
          ws_st(v(VPK+12,4), V_HI, s(S_T0), 512, "kv")]
    k = [kq_frag(KB+4*tt, T1+16, tt, True) for tt in range(2)]
    o += k[1][0] + k[0][0] + k[1][1] + [ws_st(v(KB+4,4), V_HI, s(S_T0), 0, "kv")] + k[0][1]
    return o

if OPT["p1only"]:
    P("s_barrier\n" * 25 + "s_endpgm")
P("s_barrier")
C.stamp()
P.add(frag_reads(0))
queue = []
gf = gate_finish([0, 1], V_GPR, 88)
qb0, qb1, qa0, qa1 = kq_frag(QB, T2+16, 0, False), kq_frag(QB+4, T2+16, 1, False), kq_frag(QA, T2, 0, False), kq_frag(QA1, T2, 1, False)
for n in range(32):
    mf = step_mfmas(n)
    sync = first_of_stage(n + 1) or n == 31
    nxt_stage = stage_of(n + 1) if n < 31 else 24
    rd = frag_reads(n + 1) if n < 31 else []
    if n < 16 and n % 2 == 0:
        j = n >> 1
        after = [f"ds_read_b128 {v(GF,4)}, {v(V_AG)} offset:{j*128}",
                 f"ds_read_b128 {v(XW,4)}, {v(V_AXW)} offset:{j*8192}", f"ds_read_b128 {v(XW+4,4)}, {v(V_AXW)} offset:{j*8192+4096}"]
        rd = rd + after
    if n < 16 and n % 2 == 1:
        queue += [f"v_dot2_f32_bf16 {v(GACC+tt)}, {v(XW+4*tt+i)}, {v(GF+i)}, {v(GACC+tt)}" for i in range(4) for tt in range(2)]
    late = []
    if n == 15:
        pub = kv_publish()
        if OPT["early"]:
            late, pub = pub[:25], pub[25:]
            mf = [mf[i] for i in (0, 1, 4, 5, 8, 9, 10, 11, 12, 13, 14, 15, 2, 3, 6, 7)]
    if n == 16: queue += pub
    if n == 31 and OPT["early"]:
        mf = [mf[i] for i in (2, 3, 6, 7, 0, 1, 4, 5)]
        late = gf[2:] + qb0[0] + qb1[0] + qb0[1] + qb1[1]
    if n == 21:
        queue += [f"v_mov_b32 {v(TMP)}, {hex(ONES)}", f"v_mov_b32 {v(TMP+1)}, {hex(NEG_BIG)}"]
        queue += [f"v_mov_b32 {v(VBH+i)}, {v(TMP)}" for i in range(4)]
        queue += [f"v_mov_b32 {v(TMP+2+tt)}, {v(GACC+tt)}" for tt in range(2)]
        queue += [f"v_cndmask_b32 {v(VB+i)}, {v(VPK+i)}, {v(TMP)}, {s(S_LO16,2)}" for i in range(16)]
        queue += [f"v_permlane32_swap_b32 {v(GACC+tt)}, {v(TMP+2+tt)}" for tt in range(2)]
        queue += [f"v_cndmask_b32 {v(VA+i)}, {v(TMP)}, {v(VPK+i)}, {s(S_LO16,2)}" for i in range(16)]
        queue += [f"v_add_f32 {v(GACC+tt)}, {v(GACC+tt)}, {v(TMP+2+tt)}" for tt in range(2)]
        queue += [f"v_cndmask_b32 {v(CMA+q)}, {v(TMP+1)}, 0, {s(S_MASK+2*q,2)}" for q in range(16)]
        queue += [f"v_bfe_i32 {v(CM+q)}, {v(V_CMR)}, {8*(q>>2)+(q&3)}, 1" for q in range(16)]
        queue += [f"v_and_b32 {v(CM+q)}, {v(TMP+1)}, {v(CM+q)}" for q in range(16)]
    post = []
    pre = []
    if sync and nxt_stage == 23:
        (pre if OPT["gpre"] else post).extend([f"ds_write_b32 {v(V_GPW)}, {v(GACC+tt)} offset:{512*tt}" for tt in range(2)])
    if sync and nxt_stage == OPT["gat"]:
        rd = rd + [lines(f"""s_lshl_b32 {s(S_T0)}, {s(S_HEAD)}, 15
s_lshl_b32 {s(S_T1)}, {s(S_RB)}, 10
s_add_u32 {s(S_T0)}, {s(S_T0)}, {s(S_T1)}
s_add_u32 {s(S_T0)}, {s(S_T0)}, {WS_HB - 1024}
s_cmp_eq_u32 {s(S_RB)}, 0
s_cselect_b32 {s(S_T0)}, {WS_SIZE}, {s(S_T0)}
s_cselect_b64 {s(S_R0,2)}, {s(S_LO16,2)}, 0""") + [ws_ld(v(KBH,4), V_HI, s(S_T0)), f"s_not_b64 exec, {s(S_LO16,2)}",
                 ws_ld(v(VBH,4), V_HI, s(S_T0), 512), "s_mov_b64 exec, -1"]]
    if n == 31: post += gf[:2]
    take = 8 if n < 16 else (OPT["take"] if n < 21 else OPT["take2"])
    side = queue[:take]; queue = queue[take:]
    P.add(pre); P(mf[0]); P(mf[1])
    if sync:
        if nxt_stage == OPT["kvs"]: P.add(WaitTag("kv")); C.stamp()
        P.add(WaitLds()); P("s_barrier")
        if OPT["fine"] in (1, 2, 3): C.stamp()
    P.add(post)
    body, k = rd, len(mf) - 2
    nr = max(1, k - (4 if n < 16 else 2))
    for i in range(k + 1):
        lo, hi_ = len(body) * i // nr, len(body) * (i + 1) // nr
        if i < nr: P.add(body[lo:hi_])
        slo, shi = len(side) * i // (k + 1), len(side) * (i + 1) // (k + 1)
        P.add(side[slo:shi])
        i0 = 7 if n == 15 else 2
        if late and i >= i0: P.add(late[len(late) * (i - i0) // (k + 1 - i0):len(late) * (i - i0 + 1) // (k + 1 - i0)])
        if i < k: P(mf[2 + i])
    if n == 15: C.stamp()
assert not queue
C.stamp()
sc = interleave(b_scores(0), b_scores(1))
if OPT["early"]:
    P(sc[1]); P.add(qa0[0]); P(sc[2]); P.add(qa1[0]); P(sc[0]); P.add(qa0[1] + qa1[1]); P(sc[3])
else:
    P.add(gf[2:]); P.add(qb0[0] + qa0[0] + qb0[1] + qb1[0] + qa1[0])
    P(sc[2]); P.add(qb1[1] + qa0[1]); P(sc[0]); P.add(qa1[1]); P(sc[1]); P(sc[3])
s1, s0 = b_softmax(1), b_softmax(0)
P.add(s0[:9])
sm = interleave(s0[9:], s1)
P.add(sm[:-16])
pv = interleave(b_pv(0), b_pv(1))
P(mfma(v(MG+16,16), v(KA+4,4), v(QA1,4), v(CMA,16))); P.add(sm[-16:-10]); P(mfma(v(MG,16), v(KA,4), v(QA,4), v(CMA,16))); P.add(sm[-10:])
mx = interleave(*[max_tree((TMP, TMP+2)[t], range(MG+16*t, MG+16*t+16)) + cross_max((TMP, TMP+2)[t], (TMP, TMP+2)[t]+1) for t in (1, 0)])
for i, m in enumerate(pv):
    P(m); P.add(mx[4*i:4*i+4])
ng = [[f"v_pk_add_f32 {v(NEGM+16*t+2*i,2)}, 0, {v((TMP, TMP+2)[t],2)} op_sel_hi:[0,0] neg_lo:[0,1] neg_hi:[0,1]" for i in range(8)] for t in range(2)]
P.add(ng[0])
BPK = 192
P.add(interleave(b_pack(0), b_pack(1)))
P.add(o_store(1, 0, BPK, "ob")); P.add(o_store(1, 1, BPK+4, "ob"))
P.add(ng[1])
C.stamp()
cs = lambda: C.stamp() if OPT["fine"] == 4 else None
cev = {("e1" if OPT["xhs"] < 0 else OPT["xhs"]): lambda: (P.add(WaitTag("ob")) if OPT["f2by"] else None, P.add(WaitLds()), P("s_barrier"))}
if not OPT["f2by"]: cev["e1" if OPT["f2hs"] < 0 else OPT["f2hs"]] = lambda: (cs(), P.add(flag_store("ob", "ob")), cs())
if OPT["zbar"]: cev["e1"] = lambda: (P.add(WaitTag("ob")), P("s_barrier"))
window_attention(C, cev)
P.add(interleave(*[o_pack(OACC2[t], 0, 8, [f"v_mul_f32 {v(TMP+t)}, {v(TMP+t)}, {v(G0+t)}"], PF+4*t, TMP+t) for t in (1, 0)]))
P.add(o_store(0, 1, PF+4, "oa")); P.add(o_store(0, 0, PF, "oa"))
C.stamp()
C.finish()

full = Prog(); full.items = E.items + H.P.items
bodyH = finalize(full, verbose=True)
full = Prog(); full.items = [Ins("s_load_dwordx16 s[4:19], s[0:1], 0"), Ins("global_load_dword v13, v5, s[96:97]")] + C.P.items
bodyC = "\n".join(finalize(full, verbose=True).split("\n")[2:])
print("stamps H", H.ns, "C", C.ns)
hdr = open("cdna_kernels/%s.s.ref" % NAME).read().split("; Override launch")[0]
if OPT["stamps"]: hdr += f"; stamps {C.ns} {H.ns}\n"
txt = hdr + f"""; One launch: 256 workgroups (4 heads x 64 rows each), 8 waves, hand-offs through d_ws tagged with a per-launch epoch.
; @launch grid=(256,1,1) block=(512,1,1) lds={LDS_BYTES}
.amdgcn_target "amdgcn-amd-amdhsa--gfx950"
.text
.globl {NAME}_kernel
.p2align 12
.p2align 8
.type {NAME}_kernel,@function
{NAME}_kernel:
{bodyH}{bodyC}L_end:
    s_endpgm
{''.join(retry_txt)}{''.join(special_txt)}{slow_path()}    .fill 3072, 4, 0xbf800000
.section .rodata,"a"
.p2align 6
.amdhsa_kernel {NAME}_kernel
  .amdhsa_next_free_vgpr 256
  .amdhsa_next_free_sgpr 102
  .amdhsa_accum_offset {192 if OPT['xp'] == 8 else 256}
  .amdhsa_group_segment_fixed_size 0
  .amdhsa_kernarg_size 80
  .amdhsa_user_sgpr_count 2
  .amdhsa_user_sgpr_kernarg_segment_ptr 1
  .amdhsa_system_sgpr_workgroup_id_x 1
.end_amdhsa_kernel
"""
open(sys.argv[1], "w").write(txt)
```

```python
import sys, math, struct
from asmdsl import Prog, Ins, WaitTag, WaitLds, Raw, Pace, finalize

NAME = "gated_mix__sliding_block__sliding_local_dilated__prompt"
OPT = dict(hgmap=0, hold=0, sents=21, pasy=1, gpre=0, take2=16, t2=0, rtail=1, dfl=0, kvs=19, bsplit=0, pace=0, pace0=0, pacez=0, gat=23, gdel=1, f2hs=-1, f2by=1, wb0=4, zbar=0, wz=8, probe=0, amode=0, worder=0, xhs=3, hprio=2, p3prio=0, wopf=1, tlb=1, icpf=1, cpf=0, take=96, early=1, kvflag=42, pubat=32, prio=1, barpos=0,
           xmap=3, rotmode=4, rotmask=7, outsc=0, stamps=0, fine=0, rt=0, xp=0, wsoff=0, amp=-1, ampk=8, amprole=1, ampclk=0, p1only=0, pf=0)
for a in sys.argv[2:]:
    k, v_ = a.split("="); assert k in OPT, k; OPT[k] = int(v_)

WS_KV, WS_HB, WS_O = 0, 4 << 20, 5 << 20
WS_FKV, WS_FOB, WS_FOA = 9 << 20, (9 << 20) + 65536, (9 << 20) + 131072
WS_STAMP, WS_SIZE = 10 << 20, 16 << 20
OOB = 0x80000000
NSLOT, SLOT = 5, 16384
L_X, L_WA, L_G, L_GP, LDS_BYTES = 81920, 131584, 156160, 157184, 158208
KVH, KVS, L_KV, L_WO = 2064, 4 * 2064, 65536, 0
QK_SCALE = 0.25 * math.log2(math.e)
NEG_BIG, ONES = 0xf149f2ca, 0x3f803f80

def fhex(x): return "0x%08x" % struct.unpack("<I", struct.pack("<f", x))[0]
def v(a, n=1): return f"v{a}" if n == 1 else f"v[{a}:{a+n-1}]"
def s(a, n=1): return f"s{a}" if n == 1 else f"s[{a}:{a+n-1}]"
def lines(t): return [l.strip() for l in t.strip().split("\n") if l.strip()]
def mfma(d, a, b, c): return f"v_mfma_f32_32x32x16_bf16 {d}, {a}, {b}, {c}"
def srd(base, ptr, nbytes):
    return [f"s_mov_b32 {s(base)}, {s(ptr)}", f"s_mov_b32 {s(base+1)}, {s(ptr+1)}",
            f"s_mov_b32 {s(base+2)}, {nbytes}", f"s_mov_b32 {s(base+3)}, 0x20000"]
def interleave(*ls):
    o, ls = [], [list(l) for l in ls]
    while any(ls):
        for l in ls:
            if l: o.append(l.pop(0))
    return o

S_X, S_W, S_WS, S_WOA, S_WOB, S_OUT, S_DBG, S_G = 24, 28, 32, 36, 40, 44, 48, 36
S_W4, S_HG, S_RB, S_ROT, S_HEAD, S_RB3, S_CB = 52, 53, 54, 55, 56, 57, 58
S_K, S_T0, S_MW, S_MX, S_T1 = 59, 60, 61, 62, 63
S_MASK, S_T2, S_T3, S_LO16, S_TM, S_C, S_SPIN, S_EP = 64, 96, 97, 98, 100, 10, 3, 26
V_LANE, V_L16, V_STAMP, V_FOFF = 1, 2, 3, 4
EP, FLG = 6, 8
V_AK, V_AV0, V_AV1 = 10, 11, 12
G0 = 14
PM, QA = 16, 24
TMP = 28
SB, NEGM, MG, PB, PF, KF, VF = 32, 64, 96, 128, 144, 152, 192
OACC2 = (160, 176)
KA, QA1, VA = 208, 216, 224

class Role:
    def __init__(self, name):
        self.P, self.name, self.ns, self.nl = Prog(), name, 0, 0
    def stamp(self):
        P = self.P
        if OPT["amp"] == self.ns and OPT["amprole"] == (self.name == "H"):
            P.add(WaitLds())
            P(f"{'s_memtime' if OPT['ampclk'] else 's_memrealtime'} {s(S_TM,2)}\ns_waitcnt lgkmcnt(0)\nv_writelane_b32 {v(V_STAMP)}, {s(S_TM)}, 1")
        if OPT["stamps"]:
            P.add(WaitLds())
            P(f"s_memtime {s(S_TM,2)}\ns_waitcnt lgkmcnt(0)\nv_writelane_b32 {v(V_STAMP)}, {s(S_TM)}, {self.ns + 1}")
            if OPT["rt"]: P(f"s_memrealtime {s(S_TM,2)}\ns_waitcnt lgkmcnt(0)\nv_writelane_b32 {v(V_STAMP)}, {s(S_TM)}, {self.ns + 32}")
        self.ns += 1
    def poll(self, cmp_txt, reload_txt):
        P, n = self.P, f"{self.name}{self.nl}"; self.nl += 1
        P(f"s_mov_b32 {s(S_SPIN)}, 0x40000"); P(cmp_txt)
        P(f"s_cmp_eq_u64 vcc, -1\ns_cbranch_scc1 L_pok{n}")
        P.add(Raw(f"""L_pspin{n}:
    {reload_txt}
    s_sub_u32 {s(S_SPIN)}, {s(S_SPIN)}, 1
    s_cbranch_scc1 L_pok{n}
    s_waitcnt vmcnt(0)
    {cmp_txt}
    s_nop 2
    s_cmp_eq_u64 vcc, -1
    s_cbranch_scc0 L_pspin{n}
L_pok{n}:"""))
    @staticmethod
    def _sloads(n, off):
        if n <= 8: return [f"s_load_dwordx{2*n} {s(4,2*n)}, s[22:23], {s(off)} glc"]
        return [f"s_load_dwordx16 s[4:19], s[22:23], {s(off)} glc", f"s_load_dwordx16 s[64:79], s[22:23], {s(off)} offset:64 glc"]
    def spoll_issue(self, n, off):
        self.P.add(self._sloads(n, off))
    def spoll(self, n, off, ignore_from=None):
        P, lb = self.P, f"{self.name}{self.nl}"; self.nl += 1
        w = lambda i: s(4 + 2*i if i < 8 else 48 + 2*i, 2)
        P.add(WaitLds())
        t = f"    s_mov_b32 {s(S_SPIN)}, 0x40000\nL_sp{lb}:\n"
        for i in range(n - 1):
            if ignore_from is not None:
                t += f"    s_cmp_lt_u32 {s(ignore_from)}, {n - i}\n    s_cselect_b64 {w(i)}, {s(S_EP,2)}, {w(i)}\n"
        for i in range(n):
            t += f"    s_xor_b64 {w(i)}, {w(i)}, {s(S_EP,2)}\n"
            if i: t += f"    s_or_b64 s[4:5], s[4:5], {w(i)}\n"
        t += f"    s_cmp_eq_u64 s[4:5], 0\n    s_cbranch_scc1 L_spok{lb}\n" + "".join(f"    {x}\n" for x in self._sloads(n, off))
        t += f"    s_sub_u32 {s(S_SPIN)}, {s(S_SPIN)}, 1\n    s_waitcnt lgkmcnt(0)\n    s_cbranch_scc0 L_sp{lb}\nL_spok{lb}:"
        P.add(Raw(t))
    def finish(self):
        P = self.P
        if OPT["stamps"]:
            P(f"s_memrealtime {s(S_TM,2)}\ns_waitcnt lgkmcnt(0) vmcnt(0)\nv_writelane_b32 {v(V_STAMP)}, {s(S_TM)}, 63")
            P(f"""s_lshl_b32 {s(S_T0)}, s2, 3
s_add_u32 {s(S_T0)}, {s(S_T0)}, {s(S_W4)}
s_add_u32 {s(S_T0)}, {s(S_T0)}, {4 if self.name == "H" else 0}
s_lshl_b32 {s(S_T0)}, {s(S_T0)}, 8
s_add_u32 {s(S_T0)}, {s(S_T0)}, {WS_STAMP}
v_lshlrev_b32 v0, 2, {v(V_LANE)}
buffer_store_dword {v(V_STAMP)}, v0, {s(S_WS,4)}, {s(S_T0)} offen""")
        if OPT["amp"] >= 0 and OPT["amprole"] == (self.name == "H"):
            P(f"""s_cmp_lg_u32 s2, 100
s_cbranch_scc1 L_end
v_readlane_b32 {s(S_T0)}, {v(V_STAMP)}, 0
v_readlane_b32 {s(S_T1)}, {v(V_STAMP)}, 1
s_memrealtime {s(S_TM,2)}
s_sub_u32 {s(S_T1)}, {s(S_T1)}, {s(S_T0)}
s_mul_i32 {s(S_T1)}, {s(S_T1)}, {OPT["ampk"]}
s_lshr_b32 {s(S_T1)}, {s(S_T1)}, {4 if OPT["ampclk"] else 0}
s_min_u32 {s(S_T1)}, {s(S_T1)}, 100000
s_waitcnt lgkmcnt(0)
s_mov_b32 {s(S_T0)}, {s(S_TM)}""")
            P.add(Raw(f"""L_amp{self.name}:
    s_memrealtime {s(S_TM,2)}
    s_waitcnt lgkmcnt(0)
    s_sub_u32 {s(S_K)}, {s(S_TM)}, {s(S_T0)}
    s_cmp_lt_u32 {s(S_K)}, {s(S_T1)}
    s_cbranch_scc1 L_amp{self.name}"""))
        P("s_endpgm")

ws_ld = lambda dst, voff, soff, imm=0, tag=None: Ins(
    f"buffer_load_dwordx4 {dst}, {v(voff)}, {s(S_WS,4)}, {soff} offen{' offset:%d' % imm if imm else ''} sc1", tag)
ws_st = lambda src, voff, soff, imm=0, tag=None: Ins(
    f"buffer_store_dwordx4 {src}, {v(voff)}, {s(S_WS,4)}, {soff} offen{' offset:%d' % imm if imm else ''} sc1", tag)
ep_load = f"buffer_load_dwordx2 {v(EP,2)}, off, {s(S_DBG,4)}, 0 sc1"
flag_load = f"buffer_load_dwordx2 {v(FLG,2)}, {v(V_FOFF)}, {s(S_WS,4)}, {s(S_K)} offen sc1"
flag_cmp = f"v_cmp_eq_u64 vcc, {v(FLG,2)}, {v(EP,2)}"
def flag_store(data_tag, kind):
    if kind == "kv":
        o = lines(f"""v_mul_u32_u24 v0, 56, {v(V_LANE)}
v_add_u32 v0, 88, v0
s_sub_u32 {s(S_T1)}, 31, {s(S_RB)}
s_min_u32 {s(S_T1)}, {s(S_T1)}, 4
v_cmp_gt_u32 vcc, {s(S_T1)}, {v(V_LANE)}
s_cmp_eq_u32 {s(S_RB)}, 0
s_cselect_b32 {s(S_T1)}, 24, {OOB}
v_mov_b32 v5, {s(S_T1)}
v_cndmask_b32 v0, v5, v0, vcc
s_lshl_b32 {s(S_T0)}, {s(S_HEAD)}, 5
s_add_u32 {s(S_T0)}, {s(S_T0)}, {s(S_RB)}
s_lshl_b32 {s(S_T0)}, {s(S_T0)}, 6
s_add_u32 {s(S_T0)}, {s(S_T0)}, {WS_FKV}""")
    else:
        o = lines(f"""v_lshlrev_b32 v0, 8, {v(V_LANE)}
v_cmp_gt_u32 vcc, 8, {v(V_LANE)}
v_mov_b32 v5, {OOB}
v_cndmask_b32 v0, v5, v0, vcc
s_lshl_b32 {s(S_T0)}, {s(S_RB)}, 8
s_add_u32 {s(S_T0)}, {s(S_T0)}, {s(S_HEAD)}
s_lshl_b32 {s(S_T0)}, {s(S_T0)}, 3
s_add_u32 {s(S_T0)}, {s(S_T0)}, { {"ob": WS_FOB, "oa0": WS_FOA, "oa1": WS_FOA + 65536}[kind] }""")
    return o + [WaitTag(data_tag), Ins(f"buffer_store_dwordx2 {v(EP,2)}, v0, {s(S_WS,4)}, {s(S_T0)} offen sc1", "flag")]

def max_tree(dst, regs, init=False):
    regs, o = list(regs), []
    if not init:
        o.append(f"v_max3_f32 {v(dst)}, {v(regs[0])}, {v(regs[1])}, {v(regs[2])}"); regs = regs[3:]
    while len(regs) >= 2:
        o.append(f"v_max3_f32 {v(dst)}, {v(dst)}, {v(regs[0])}, {v(regs[1])}"); regs = regs[2:]
    if regs: o.append(f"v_max_f32 {v(dst)}, {v(dst)}, {v(regs[0])}")
    return o
def cross_max(m, t):
    return [f"v_mov_b32 {v(t)}, {v(m)}", f"v_permlane32_swap_b32 {v(m)}, {v(t)}", f"v_max_f32 {v(m)}, {v(m)}, {v(t)}"]

def attn_setup(t, tmp):
    r5, hh, cm, u = tmp, tmp + 1, tmp + 2, tmp + 3
    o = lines(f"""v_and_b32 {v(r5)}, 31, {v(V_LANE)}
v_lshrrev_b32 {v(hh)}, 5, {v(V_LANE)}
v_lshlrev_b32 {v(u)}, 2, {v(hh)}
v_sub_u32 {v(cm)}, {v(r5)}, {v(u)}
s_mul_i32 {s(S_T2)}, {s(S_W4)}, {KVH}
s_add_u32 {s(S_T2)}, {s(S_T2)}, {L_KV + t*KVS}
v_add_u32 {v(V_AK)}, {s(S_T2)}, {v(V_L16)}
v_and_b32 {v(u)}, 15, {v(V_LANE)}
v_lshlrev_b32 {v(u)}, 4, {v(u)}
v_lshl_add_u32 {v(u)}, {v(hh)}, 8, {v(u)}
v_mov_b32 {v(hh)}, 0x400
v_cndmask_b32 {v(V_AV0)}, {v(hh)}, {v(u)}, {s(S_LO16,2)}
v_mov_b32 {v(hh)}, 0x200
v_cndmask_b32 {v(V_AV1)}, {v(hh)}, {v(u)}, {s(S_LO16,2)}
v_add_u32 {v(V_AV0)}, {s(S_T2)}, {v(V_AV0)}
v_add_u32 {v(V_AV1)}, {s(S_T2)}, {v(V_AV1)}
v_mov_b32 {v(u)}, 0xffff""")
    o += [f"v_cmp_le_i32 {s(S_MASK+2*q,2)}, {8*(q>>2)+(q&3)}, {v(cm)}" for q in range(16)]
    o += [f"v_cndmask_b32 {v(PM+pq)}, 0, {v(u)}, {s(S_MASK+4*pq,2)}" for pq in range(8)]
    o += [f"v_cndmask_b32 {v(PM+pq)}, {v(PM+pq)}, -1, {s(S_MASK+4*pq+2,2)}" for pq in range(8)]
    return o

def gate_finish(addr, tmp):
    o = [f"ds_read_b32 {v(tmp+t)}, {v(addr)} offset:{128*t}" for t in range(2)]
    for op in ("v_mul_f32 {g}, " + fhex(-math.log2(math.e)) + ", {g}", "v_exp_f32 {g}, {g}", "v_add_f32 {g}, 1.0, {g}", "v_rcp_f32 {o}, {g}"):
        o += [op.format(g=v(tmp+t), o=v(G0+t)) for t in range(2)]
    return o

def o_pack(acc, o0, lreg, fac, dst, f):
    return ([f"v_rcp_f32 {v(f)}, {v(acc+lreg)}"] + fac +
            [f"v_mul_f32 {v(acc+o0+i)}, {v(f)}, {v(acc+o0+i)}" for i in range(8)] +
            [f"v_cvt_pk_bf16_f32 {v(dst+i)}, {v(acc+o0+2*i)}, {v(acc+o0+2*i+1)}" for i in range(4)])
def o_store(br, tt, src, tag):
    return [f"s_lshl_b32 {s(S_T0)}, {s(S_RB)}, 17", f"s_lshl_b32 {s(S_T1)}, {s(S_HEAD)}, 10",
            f"s_add_u32 {s(S_T0)}, {s(S_T0)}, {s(S_T1)}", f"s_add_u32 {s(S_T0)}, {s(S_T0)}, {WS_O + br*65536 + tt*32768}",
            ws_st(v(src,4), V_L16, s(S_T0), 0, tag)]

CMA = 64
def window_attention(R, events):
    P = R.P
    Q = lambda t: v((QA, QA1)[t], 4)
    kfr = lambda u: v(KF+4*(u & 1), 4) if u < 8 else v(KA+4*(u-8), 4)
    vfr = lambda u, m: v(VF+8*(u & 1)+4*m, 4) if u < 8 else v(VA+8*(u-8)+4*m, 4)
    kread = lambda u: [f"ds_read_b128 {kfr(u)}, {v(V_AK)} offset:{u*KVS}"] if u < 8 else []
    vread = lambda u: [f"ds_read_b128 {vfr(u,0)}, {v(V_AV0)} offset:{u*KVS+1024}",
                       f"ds_read_b128 {vfr(u,1)}, {v(V_AV1)} offset:{u*KVS+1536}"] if u < 8 else []
    M = (TMP, TMP + 2)
    acc = lambda t: v(OACC2[t], 16)
    negm = lambda t: v(NEGM+16*t, 16)
    exps = lambda S: [f"v_exp_f32 {v(S+i)}, {v(S+i)}" for i in range(16)]
    cvts = lambda d, S: [f"v_cvt_pk_bf16_f32 {v(d+k)}, {v(S+2*k)}, {v(S+2*k+1)}" for k in range(8)]
    ev = lambda key: events.pop(key)() if key in events else None
    P(mfma(v(SB+16,16), kfr(8), Q(1), negm(1))); P(mfma(v(MG,16), kfr(8), Q(0), negm(0)))
    P("s_barrier")
    R.stamp()
    P.add(kread(0) + kread(1) + vread(0) + vread(1))
    ev("pre")
    e, c = exps(SB+16), cvts(PB+8, SB+16)
    P.add(e[0:4]); P(mfma(v(SB,16), kfr(0), Q(0), negm(0))); P.add(kread(2)); P.add(e[4:8]); P.add(c[0:4])
    P(mfma(v(MG+16,16), kfr(9), Q(1), negm(1))); P.add(e[8:12])
    P(mfma(acc(1), vfr(8,0), v(PB+8,4), "0")); P.add(e[12:16]); P.add(c[4:8])
    pend = [mfma(v(SB+16,16), kfr(1), Q(1), negm(1)), mfma(acc(1), vfr(8,1), v(PB+12,4), acc(1))]
    for t in range(2):
        g = MG + 16*t
        seq = [f"v_cndmask_b32 {v(g+i)}, {v(SB+16*t+i)}, {v(g+i)}, {s(S_MASK+2*i,2)}" for i in range(16)]
        seq += [[mfma(v(SB+16*t,16), kfr(1+t), Q(t), negm(t))] + (kread(3) if t == 0 else [])]
        seq += exps(g) + cvts(PF, g)
        seq += [f"v_and_b32 {v(PB+8*t+i)}, {v(PM+i)}, {v(PF+i)}" for i in range(8)]
        seq += [f"v_xor_b32 {v(g+i)}, {v(PF+i)}, {v(PB+8*t+i)}" for i in range(8)]
        at = (0, 8) if t == 0 else (1, 9, 21, 26)
        for i, x in enumerate(seq):
            P.add(x)
            if i in at: P.add(pend.pop(0))
        pend = [mfma(acc(t), vfr(8+t,0), v(PB+8*t,4), acc(1) if t else "0"), mfma(acc(t), vfr(8+t,1), v(PB+8*t+4,4), acc(t)),
                mfma(acc(t), vfr(t,0), v(g,4), acc(t)), [mfma(acc(t), vfr(t,1), v(g+4,4), acc(t))] + (vread(2) if t == 0 else [])]
    R.stamp()
    if OPT["t2"]: P("s_barrier")
    ev("e1")
    for hs in range(13):
        t = hs & 1; u = (hs >> 1) + 1 + t
        S, Pp = SB + 16*t, PB + 8*t
        e, c = exps(S), cvts(Pp, S)
        nxt = None
        if t == 0 and 0 < hs < 12: nxt = [mfma(v(SB+16,16), kfr(u+1), Q(1), negm(1))]
        if t == 1: nxt = [mfma(v(SB,16), kfr(u), Q(0), negm(0))] + kread(u+2)
        if hs == 0:
            P.add(e[0:2]); P.add(pend[0]); P.add(e[2:5]); P.add(pend[1]); P.add(e[5:8]); P.add(pend[2])
            P.add(c[0:4]); P.add(e[8:10]); P.add(pend[3]); P.add(e[10:14])
            P(mfma(acc(t), vfr(u,0), v(Pp,4), acc(t))); P.add(e[14:16]); P.add(c[4:8])
        else:
            P.add(e[0:2]); P.add(pend); P.add(e[2:6])
            if nxt: P.add(nxt)
            P.add(e[6:8]); P.add(c[0:4]); P.add(e[8:10])
            P(mfma(acc(t), vfr(u,0), v(Pp,4), acc(t)))
            P.add(e[10:16]); P.add(c[4:8])
        pend = [mfma(acc(t), vfr(u,1), v(Pp+4,4), acc(t))] + (vread(u+2) if t == 0 else [])
        ev(hs)
    P.add(pend)
    assert not events, events
    P(f"s_mov_b32 {s(S_T1)}, 0x7b800000")
    for t in (1, 0):
        o, m = OACC2[t], M[t]
        P.add([f"v_add_f32 {v(m)}, abs({v(o)}), abs({v(o+8)})", f"v_add_f32 {v(m+1)}, abs({v(o+1)}), abs({v(o+2)})"] +
              [f"v_add_f32 {v(m+(i&1))}, {v(m+(i&1))}, abs({v(o+i)})" for i in range(3, 8)] + [f"v_add_f32 {v(m)}, {v(m)}, {v(m+1)}"])
    P(f"v_add_f32 {v(M[0])}, {v(M[0])}, {v(M[1])}\nv_cmp_lt_f32 vcc, {v(M[0])}, {s(S_T1)}")
    P("s_cmp_eq_u64 vcc, -1\ns_cbranch_scc0 L_exact0\nL_back:")
    R.stamp()

def slow_path():
    return exact_attention(0) + exact_attention(1) + "    s_branch L_back\n"

def exact_attention(t):
    F = Prog(); q, M, acc = v((QA, QA1)[t], 4), TMP, v(OACC2[t], 16)
    KO, VO, G = TMP + 2, TMP + 3, S_T0
    def tile(rel, kdst, vdst):
        o = [f"s_add_i32 {s(S_K)}, {s(G)}, {rel}", f"s_cmp_ge_i32 {s(S_K)}, 0", f"s_cselect_b64 vcc, -1, 0",
             f"s_cselect_b32 {s(S_TM)}, {hex(ONES)}, 0", f"s_max_i32 {s(S_K)}, {s(S_K)}, 0", f"s_lshl_b32 {s(S_K)}, {s(S_K)}, 11",
             f"s_lshl_b32 {s(S_T1)}, {s(S_HEAD)}, 17", f"s_add_u32 {s(S_K)}, {s(S_K)}, {s(S_T1)}",
             f"v_and_b32 {v(KO)}, 0x200, {v(V_L16)}", f"v_cndmask_b32 {v(KO)}, {v(KO)}, {v(V_L16)}, vcc", ws_ld(v(kdst,4), KO, s(S_K))]
        if vdst is not None:
            o += [f"v_mov_b32 {v(vdst+i)}, {s(S_TM)}" for i in range(8)]
            o += [f"s_cmp_lg_u32 {s(S_TM)}, 0", f"s_cselect_b32 {s(S_K)}, {s(S_K)}, {WS_SIZE}", f"s_mov_b64 exec, {s(S_LO16,2)}",
                  ws_ld(v(vdst,4), VO, s(S_K), 1024), ws_ld(v(vdst+4,4), VO, s(S_K), 1536), "s_mov_b64 exec, -1"]
        return o
    F(f"L_exact{t}:\ns_waitcnt vmcnt(0) lgkmcnt(0)\ns_nop 15")
    F(f"""s_lshl_b32 {s(G)}, {s(S_RB)}, 1
s_sub_u32 {s(G)}, {s(G)}, {8 - t}
v_lshrrev_b32 {v(VO)}, 1, {v(V_L16)}
v_and_b32 {v(VO)}, 0x100, {v(VO)}
v_and_b32 {v(KO)}, 0xf0, {v(V_L16)}
v_or_b32 {v(VO)}, {v(VO)}, {v(KO)}""")
    F.add(tile(8, KF, VF)); F.add(tile(0, KF+4, VF+8))
    F(mfma(v(MG,16), v(KF,4), q, "0")); F(mfma(v(SB,16), v(KF+4,4), q, "0"))
    F.add([f"v_cndmask_b32 {v(MG+i)}, {v(SB+i)}, {v(MG+i)}, {s(S_MASK+2*i,2)}" for i in range(16)])
    F.add(max_tree(M, range(MG, MG+16)))
    F(f"s_mov_b32 {s(S_TM+1)}, 7\nL_exact_m{t}:\ns_add_u32 {s(G)}, {s(G)}, 1")
    F.add(tile(0, KF, None))
    F(mfma(v(SB,16), v(KF,4), q, "0"))
    F.add(max_tree(M, range(SB, SB+16), init=True))
    F(f"s_sub_u32 {s(S_TM+1)}, {s(S_TM+1)}, 1\ns_cmp_lg_u32 {s(S_TM+1)}, 0\ns_cbranch_scc1 L_exact_m{t}")
    F.add(cross_max(M, M+1))
    F.add([f"v_sub_f32 {v(MG+i)}, {v(MG+i)}, {v(M)}" for i in range(16)])
    F.add([f"v_exp_f32 {v(MG+i)}, {v(MG+i)}" for i in range(16)])
    F.add([f"v_cvt_pk_bf16_f32 {v(PF+i)}, {v(MG+2*i)}, {v(MG+2*i+1)}" for i in range(8)])
    F.add([f"v_and_b32 {v(PB+i)}, {v(PM+i)}, {v(PF+i)}" for i in range(8)])
    F.add([f"v_xor_b32 {v(PF+i)}, {v(PF+i)}, {v(PB+i)}" for i in range(8)])
    F(mfma(acc, v(VF,4), v(PB,4), "0")); F(mfma(acc, v(VF+4,4), v(PB+4,4), acc))
    F(mfma(acc, v(VF+8,4), v(PF,4), acc)); F(mfma(acc, v(VF+12,4), v(PF+4,4), acc))
    F(f"s_sub_u32 {s(G)}, {s(G)}, 7\ns_mov_b32 {s(S_TM+1)}, 7\ns_nop 15\nL_exact_e{t}:\ns_add_u32 {s(G)}, {s(G)}, 1")
    F.add(tile(0, KF, VF))
    F(mfma(v(SB,16), v(KF,4), q, "0"))
    F.add([f"v_sub_f32 {v(SB+i)}, {v(SB+i)}, {v(M)}" for i in range(16)])
    F.add([f"v_exp_f32 {v(SB+i)}, {v(SB+i)}" for i in range(16)])
    F.add([f"v_cvt_pk_bf16_f32 {v(PB+i)}, {v(SB+2*i)}, {v(SB+2*i+1)}" for i in range(8)])
    F(mfma(acc, v(VF,4), v(PB,4), acc)); F(mfma(acc, v(VF+4,4), v(PB+4,4), acc))
    F(f"s_nop 15\ns_sub_u32 {s(S_TM+1)}, {s(S_TM+1)}, 1\ns_cmp_lg_u32 {s(S_TM+1)}, 0\ns_cbranch_scc1 L_exact_e{t}")
    return finalize(F)

E = Prog()
hg_code = {0: f"s_lshl1_add_u32 {s(S_HG)}, {s(S_T1)}, {s(S_K)}", 1: f"s_lshl2_add_u32 {s(S_HG)}, {s(S_K)}, {s(S_T1)}",
           2: f"s_and_b32 {s(S_HG)}, {s(S_T1)}, 2\ns_add_u32 {s(S_HG)}, {s(S_HG)}, {s(S_K)}\ns_and_b32 {s(S_T1)}, {s(S_T1)}, 1\ns_lshl1_add_u32 {s(S_HG)}, {s(S_HG)}, {s(S_T1)}",
           3: f"s_mul_i32 {s(S_K)}, {s(S_K)}, 3\ns_lshl1_add_u32 {s(S_HG)}, {s(S_T1)}, {s(S_K)}\ns_and_b32 {s(S_HG)}, {s(S_HG)}, 7",
           4: f"s_mul_i32 {s(S_K)}, {s(S_K)}, 5\ns_lshl1_add_u32 {s(S_HG)}, {s(S_T1)}, {s(S_K)}\ns_and_b32 {s(S_HG)}, {s(S_HG)}, 7"}[OPT["hgmap"]]
assert OPT["xmap"] == 3
hb = {4: 2, 3: 1, 2: 0, 1: 3}[OPT["xmap"]]
if OPT["stamps"] or OPT["amp"] >= 0:
    E("s_memtime s[64:65]\ns_memrealtime s[66:67]")
def entry_stamp():
    if OPT["stamps"]:
        return [f"v_mov_b32 {v(V_STAMP)}, 0", f"v_writelane_b32 {v(V_STAMP)}, s64, 0", f"v_writelane_b32 {v(V_STAMP)}, s66, 62"]
    if OPT["amp"] >= 0:
        return [f"v_mov_b32 {v(V_STAMP)}, 0", f"v_writelane_b32 {v(V_STAMP)}, {'s64' if OPT['ampclk'] else 's66'}, 0"]
    return []
code_pf = f"""s_getpc_b64 {s(S_T2,2)}
L_pc:
s_lshl2_add_u32 {s(S_T1)}, {s(S_T0)}, {s(S_W4)}
s_and_b32 {s(S_T1)}, {s(S_T1)}, 63
s_lshl_b32 {s(S_T1)}, {s(S_T1)}, 9
s_sub_u32 {s(S_T2)}, {s(S_T2)}, L_pc-{NAME}_kernel
s_subb_u32 {s(S_T3)}, {s(S_T3)}, 0
v_and_b32 v5, 3, {v(V_LANE)}
v_lshl_add_u32 v5, v5, 7, {s(S_T1)}
global_load_dword v13, v5, {s(S_T2,2)}"""
if OPT["cpf"] == 2:
    E(f"""s_getpc_b64 {s(S_T2,2)}
s_bfe_u32 {s(S_T1)}, s2, 0x50003
v_lshrrev_b32 v5, 6, v0
v_lshlrev_b32 v5, 7, v5
v_lshl_add_u32 v5, {s(S_T1)}, 10, v5
global_load_dword v13, v5, {s(S_T2,2)}""")
if OPT["cpf"] == 3:
    E(f"""s_getpc_b64 {s(S_T2,2)}
s_bfe_u32 {s(S_T1)}, s2, 0x30003
v_lshrrev_b32 v5, 4, v0
v_lshlrev_b32 v5, 7, v5
v_lshl_add_u32 v5, {s(S_T1)}, 12, v5
global_load_dword v13, v5, {s(S_T2,2)}""")
E(f"""
s_cmp_ge_u32 s2, 256
s_cbranch_scc1 L_end
s_load_dwordx16 s[4:19], s[0:1], 0
s_load_dwordx4 s[20:23], s[0:1], 64
v_lshrrev_b32 v4, 6, v0
v_and_b32 {v(V_LANE)}, 63, v0
s_lshr_b32 {s(S_T0)}, s2, 3
v_readfirstlane_b32 {s(S_MX)}, v4
""")
E(f"""
s_and_b32 {s(S_T1)}, s2, {(8 >> hb) - 1}
s_and_b32 {s(S_K)}, {s(S_T0)}, {(1 << hb) - 1}
{hg_code}
s_bfe_u32 {s(S_K)}, s2, {hex((hb << 16) | (3 - hb))}
s_lshl_b32 {s(S_RB)}, {s(S_K)}, {5 - hb}
s_lshr_b32 {s(S_ROT)}, {s(S_T0)}, {hb}
s_add_u32 {s(S_RB)}, {s(S_RB)}, {s(S_ROT)}
s_and_b32 {s(S_W4)}, {s(S_MX)}, 3
""")
if OPT["cpf"] == 1:
    E(f"""s_cmp_lt_u32 {s(S_MX)}, 4
s_cbranch_scc0 L_hrole""")
    E(code_pf)
    E("s_branch L_crole\nL_hrole:")
elif OPT["cpf"] >= 4:
    E(f"""s_cmp_lt_u32 {s(S_MX)}, 4
s_cbranch_scc0 L_hrole
s_getpc_b64 {s(S_T2,2)}
L_pc:
s_lshl2_add_u32 {s(S_T1)}, {s(S_T0)}, {s(S_W4)}
s_lshl_b32 {s(S_T1)}, {s(S_T1)}, 8
s_sub_u32 {s(S_T2)}, {s(S_T2)}, L_pc-{NAME}_kernel
s_subb_u32 {s(S_T3)}, {s(S_T3)}, 0
s_load_dword s70, {s(S_T2,2)}, {s(S_T1)}
s_add_u32 {s(S_T1)}, {s(S_T1)}, 128
s_load_dword s71, {s(S_T2,2)}, {s(S_T1)}""")
    if OPT["cpf"] == 5:
        E("s_waitcnt lgkmcnt(0)")
        for i, ptr in enumerate((6, 12, 4, 16, 20, 8, 14, 18, 22)):
            E(f"s_load_dword s{72+i}, {s(ptr,2)}, 0")
        for i in range(1, 5):
            E(f"s_mov_b32 {s(S_T1)}, {i << 21}\ns_load_dword s{80+i}, s[22:23], {s(S_T1)}")
    E("s_branch L_crole\nL_hrole:")
else:
    E(f"s_cmp_lt_u32 {s(S_MX)}, 4\ns_cbranch_scc1 L_crole")
late_ids = lines(f"""
s_lshr_b32 {s(S_T0)}, s2, 3
s_and_b32 {s(S_RB3)}, s2, 7
s_lshl_b32 {s(S_RB3)}, {s(S_RB3)}, 2
s_lshr_b32 {s(S_T1)}, {s(S_T0)}, 3
s_add_u32 {s(S_RB3)}, {s(S_RB3)}, {s(S_T1)}
s_and_b32 {s(S_CB)}, {s(S_T0)}, 7
s_lshl_b32 {s(S_HEAD)}, {s(S_HG)}, 2
s_add_u32 {s(S_HEAD)}, {s(S_HEAD)}, {s(S_W4)}
s_mov_b32 {s(S_LO16)}, 0xffff
s_mov_b32 {s(S_LO16+1)}, 0xffff
v_lshlrev_b32 {v(V_L16)}, 4, {v(V_LANE)}
""")
rot_code = {
 0: f"s_and_b32 {s(S_ROT)}, {s(S_ROT)}, {OPT['rotmask']}",
 1: f"s_and_b32 {s(S_ROT)}, s2, 7",
 4: f"s_add_u32 {s(S_ROT)}, {s(S_ROT)}, {s(S_HG)}\ns_and_b32 {s(S_ROT)}, {s(S_ROT)}, 7",
 5: f"s_add_u32 {s(S_ROT)}, {s(S_ROT)}, {s(S_HG)}\ns_and_b32 {s(S_ROT)}, {s(S_ROT)}, 3\ns_lshl_b32 {s(S_ROT)}, {s(S_ROT)}, 1",
 6: f"s_add_u32 {s(S_ROT)}, {s(S_ROT)}, {s(S_HG)}\ns_and_b32 {s(S_ROT)}, {s(S_ROT)}, 1\ns_lshl_b32 {s(S_ROT)}, {s(S_ROT)}, 2",
}[OPT["rotmode"]]

def stage_of(n): return n if n < 16 else 16 + ((n - 16) >> 1)
def first_of_stage(n): return n < 32 and (n == 0 or stage_of(n) != stage_of(n - 1))
def mfma16(d, a, b, c): return f"v_mfma_f32_16x16x32_bf16 {d}, {a}, {b}, {c}"

H = Role("H"); P = H.P
VX, VW1, VW2 = 160, 162, 166
V_AXW, V_AG, V_GPW, GACC, XW, GF = 170, 171, 172, 174, 176, 184
i3, i4, p7, t0, t1, t2 = 32, 33, 34, 35, 36, 37
def raw(i):
    if OPT["fine"] == 3: P(f"s_memtime s[{68+2*i}:{69+2*i}]")
raw(0)
P(rot_code)
P(f"""
v_lshrrev_b32 {v(i3)}, 3, {v(V_LANE)}
v_lshrrev_b32 {v(i4)}, 4, {v(V_LANE)}
v_and_b32 {v(p7)}, 7, {v(V_LANE)}
s_lshl_b32 {s(S_T0)}, {s(S_W4)}, 4
v_add_u32 {v(t0)}, {s(S_T0)}, {v(i3)}
v_lshlrev_b32 {v(t0)}, 10, {v(t0)}
v_xor_b32 {v(t1)}, {v(p7)}, {v(i4)}
v_lshl_add_u32 {v(VX)}, {v(t1)}, 4, {v(t0)}
v_xor_b32 {v(VX+1)}, 64, {v(VX)}
v_add_u32 {v(VX+1)}, {0x2000 - 1024}, {v(VX+1)}
s_lshr_b32 {s(S_T0)}, {s(S_W4)}, 1
s_and_b32 {s(S_T1)}, {s(S_W4)}, 1
s_lshl_b32 {s(S_K)}, {s(S_T0)}, 4
v_add_u32 {v(t0)}, {s(S_K)}, {v(i4)}
v_mul_u32_u24 {v(t0)}, 0xc00, {v(t0)}
v_lshlrev_b32 {v(t1)}, 1, {v(i4)}
v_xor_b32 {v(t1)}, {v(t1)}, {v(p7)}
v_lshl_add_u32 {v(t0)}, {v(t1)}, 4, {v(t0)}
v_and_b32 {v(t1)}, 1, {v(i3)}
v_xor_b32 {v(t1)}, {s(S_T1)}, {v(t1)}
v_lshlrev_b32 {v(t1)}, 10, {v(t1)}
s_lshl_b32 {s(S_T2)}, {s(S_HG)}, 7
s_add_u32 {s(S_K)}, {s(S_T2)}, 1024
v_add3_u32 {v(VW1)}, {v(t0)}, {v(t1)}, {s(S_K)}
v_add_u32 {v(VW1+1)}, {12288 - 1024}, {v(VW1)}
v_xor_b32 {v(t1)}, 0x400, {v(t1)}
v_add3_u32 {v(VW1+2)}, {v(t0)}, {v(t1)}, {s(S_K)}
v_add_u32 {v(VW1+3)}, {3*(12288 - 1024)}, {v(VW1+2)}
v_add_u32 {v(VW1+2)}, {2*(12288 - 1024)}, {v(VW1+2)}
s_lshl_b32 {s(S_MW)}, {s(S_T1)}, 13
s_lshl_b32 {s(S_K)}, {s(S_T0)}, 12
s_add_u32 {s(S_MW)}, {s(S_MW)}, {s(S_K)}
s_lshl_b32 {s(S_MX)}, {s(S_W4)}, 11
s_add_u32 {s(S_MX)}, {s(S_MX)}, {L_X}""")
raw(1)
P("s_waitcnt lgkmcnt(0)")
if OPT["wsoff"]: P(f"s_add_u32 s22, s22, {OPT['wsoff'] << 20}\ns_addc_u32 s23, s23, 0")
raw(2)
P.add(entry_stamp())
P.add(srd(S_X, 4, 2097152))
P(f"""s_cmp_eq_u32 {s(S_T1)}, 0
s_cselect_b32 {s(S_W)}, s6, s12
s_cselect_b32 {s(S_W+1)}, s7, s13
s_mov_b32 {s(S_W+2)}, 1572864
s_mov_b32 {s(S_W+3)}, 0x20000""")
if OPT["fine"] != 3: H.stamp()
def dma(voff, rsrc, soff, imm, tag, flags=""):
    flags = flags or ("", " sc1", " nt", " sc0", " sc0 sc1")[OPT["dfl"]]
    return Ins(f"buffer_load_dwordx4 {v(voff)}, {s(rsrc,4)}, {soff} offen{' offset:%d' % imm if imm else ''}{flags} lds", tag)
def x_dma(j):
    return [f"s_add_u32 {s(S_K)}, {s(S_ROT)}, {j}", f"s_and_b32 {s(S_K)}, {s(S_K)}, 7", f"s_lshl_b32 {s(S_K)}, {s(S_K)}, 7",
            f"s_lshl_b32 {s(S_T2)}, {s(S_RB)}, 16", f"s_add_u32 m0, {s(S_MX)}, {j*8192}", f"s_add_u32 {s(S_K)}, {s(S_K)}, {s(S_T2)}",
            dma(VX, S_X, s(S_K), 0, f"x{j}"), dma(VX+1, S_X, s(S_K), 1024, f"x{j}")]
def w_dma(S):
    if S < 16:
        o = [f"s_lshl_b32 {s(S_T3)}, {s(S_ROT)}, 1", f"s_add_u32 {s(S_T3)}, {s(S_T3)}, {S}", f"s_and_b32 {s(S_T3)}, {s(S_T3)}, 15"]
    else:
        o = [f"s_add_u32 {s(S_T3)}, {s(S_ROT)}, {S-16}", f"s_and_b32 {s(S_T3)}, {s(S_T3)}, 7"]
    o += [f"s_add_u32 m0, {s(S_MW)}, {(S % NSLOT)*SLOT}", f"s_mul_i32 {s(S_T3)}, {s(S_T3)}, {(32 if S < 16 else 64)*3072}"]
    return o + [dma((VW1 if S < 16 else VW2) + t, S_W, s(S_T3), t*1024, f"w{S}") for t in range(4)]
P.add(x_dma(0)); raw(3)
P.add(w_dma(0)); raw(4)
P.add(w_dma(1)); raw(5)
P(f"""s_lshl_b32 {s(S_K)}, {s(S_ROT)}, 3
v_add_u32 {v(t2)}, {s(S_K)}, {v(V_LANE)}
v_and_b32 {v(t2)}, 63, {v(t2)}
v_lshlrev_b32 {v(t2)}, 4, {v(t2)}""")
P.add(srd(S_G, 16, 1024)); P(f"s_mov_b32 m0, {L_G}"); P.add(dma(t2, S_G, "0", 0, "w1"))
P.add(late_ids)
h_misc = lines(f"""
s_lshr_b32 {s(S_T0)}, {s(S_W4)}, 1
s_and_b32 {s(S_T1)}, {s(S_W4)}, 1
s_lshl_b32 {s(S_T0)}, {s(S_T0)}, 5
v_add_u32 {v(t0)}, {s(S_T0)}, {v(i3)}
v_mul_u32_u24 {v(t0)}, 0xc00, {v(t0)}
v_and_b32 {v(t1)}, 1, {v(i4)}
v_lshlrev_b32 {v(t1)}, 1, {v(t1)}
v_xor_b32 {v(t1)}, {v(t1)}, {v(p7)}
v_lshlrev_b32 {v(t1)}, 4, {v(t1)}
s_lshl_b32 {s(S_T0)}, {s(S_HG)}, 7
v_add3_u32 {v(VW2)}, {v(t0)}, {v(t1)}, {s(S_T0)}
v_xor_b32 {v(t1)}, 64, {v(t1)}
v_add3_u32 {v(VW2+1)}, {v(t0)}, {v(t1)}, {s(S_T0)}
v_add_u32 {v(VW2+2)}, {2*(24576 - 1024)}, {v(VW2)}
v_add_u32 {v(VW2+3)}, {3*(24576 - 1024)}, {v(VW2+1)}
v_add_u32 {v(VW2+1)}, {24576 - 1024}, {v(VW2+1)}
""") + srd(S_WS, 22, WS_SIZE) + srd(S_DBG, 20, 256)
P.add(h_misc)
if OPT["fine"] == 3:
    raw(6); P("s_waitcnt vmcnt(9)"); raw(7); P("s_waitcnt vmcnt(5)"); raw(8); P("s_waitcnt lgkmcnt(0)")
    for i in range(9):
        P(f"v_writelane_b32 {v(V_STAMP)}, s{68+2*i}, {i+1}")
    H.ns = 9
VWO, VKF, V1A, V1D, V_MB, V_HB = 160, 161, 162, 164, 12, 13
txt_of = lambda x: x.text if isinstance(x, Ins) else x
special_txt = []
def gather(tiles, special):
    o = []
    if 1 in tiles:
        o += [f"s_lshl_b32 {s(S_K)}, {s(S_HEAD)}, 17", f"s_lshl_b32 {s(S_T1)}, {s(S_RB)}, 12",
              f"s_add_u32 {s(S_T2)}, {s(S_K)}, {s(S_T1)}", f"s_sub_u32 {s(S_T2)}, {s(S_T2)}, {8*2048}"]
    for u in tiles:
        tag = "kv" if u < 4 or not OPT["t2"] else "kvb"
        o += [f"s_add_u32 {s(S_T0)}, {s(S_T2)}, {u*2048}", f"s_add_u32 m0, {s(S_MW)}, {u*KVS}"]
        if special:
            o += [f"s_cmp_ge_u32 {s(S_RB)}, {(8-u+1)//2}", f"s_cbranch_scc1 L_gk{u}",
                  dma(VKF, S_WS, s(S_K), 0, None, " sc1"), f"s_mov_b32 {s(S_T0)}, {WS_SIZE}", f"s_branch L_gk{u}e", f"L_gk{u}:",
                  dma(V_L16, S_WS, s(S_T0), 0, None, " sc1"), f"L_gk{u}e:"]
        else:
            o += [dma(V_L16, S_WS, s(S_T0), 0, tag, " sc1")]
        o += [dma(V_L16, S_WS, s(S_T0), 1024, tag, " sc1")]
    return o
def emit_gather(n, tiles):
    P(f"s_cmp_lt_u32 {s(S_RB)}, 4\ns_cbranch_scc1 L_gspecial{n}")
    P.add(gather(tiles, False)); P(f"L_gdone{n}:")
    special_txt.append(f"L_gspecial{n}:\n" + "\n".join(("" if txt_of(x).endswith(":") else "    ") + txt_of(x) for x in gather(tiles, True))
                       + f"\n    s_branch L_gdone{n}\n")
S_R3, S_WB, S_MA, S_MB = 24, 25, 30, 31
B0, B1, A0, A1, A2, A3, VOG, EXW, EXR, VOUT = 16, 17, 24, 25, 26, 27, 18, 20, 23, 19
ACC3, OFB, OFA, WBF = 32, 96, 192, 176
issued_w, issued_x = 2, 1

for S in range(25):
    if S < 24:
        P.add(WaitTag(f"w{S}", f"x{S >> 1}" if S < 16 else "none"))
    if S < 20: P.add(WaitLds())
    P("s_barrier")
    if OPT["fine"] in (1, 2, 3) or S in (0, 16, 24): H.stamp()
    mark = len(P.items)
    top = {0: 3}.get(S, S + 4)
    if S in (14, 15, 16) and OPT["hold"]: top = min(top, 20 - OPT["hold"])
    while issued_w <= min(top, 23):
        if issued_w < 16 and issued_w % 2 == 0 and issued_x <= issued_w // 2:
            P.add(x_dma(issued_x)); issued_x += 1
        P.add(w_dma(issued_w)); issued_w += 1
    if OPT["icpf"] and S == 1:
        t = (f"    s_getpc_b64 s[78:79]\nL_pc:\n    s_sub_u32 s78, s78, L_pc-{NAME}_kernel\n    s_subb_u32 s79, s79, 0\n    s_lshr_b32 {s(S_T1)}, s2, 3\n"
             f"    s_lshl2_add_u32 {s(S_T1)}, {s(S_T1)}, {s(S_W4)}\n    s_lshl_b32 {s(S_T1)}, {s(S_T1)}, 8\n")
        t += "".join(f"    s_load_dword s{80+i}, s[78:79], {s(S_T1)} offset:{i*64}\n" for i in range(4))
        P.add(Raw(t))
    if OPT["tlb"] and S in (3, 4, 5, 6):
        for i, (ptr, off) in enumerate({3: ((22, 0), (22, 1)), 4: ((22, 2), (22, 4)), 5: ((22, 3), (20, 0)), 6: ((18, 0),)}[S]):
            P.add(Raw(f"    s_mov_b32 {s(S_T1)}, {off << 21}\n    s_load_dword s{70+i}, {s(ptr,2)}, {s(S_T1)}"))
    if OPT["wopf"] and S in (8, 9, 10, 11):
        ptr, half = (14, 8)[(S - 8) >> 1], S & 1
        t = f"    s_lshl2_add_u32 {s(S_T1)}, s2, {s(S_W4)}\n    s_lshl_b32 {s(S_T1)}, {s(S_T1)}, 9\n"
        t += "".join(f"    s_load_dword s{73+i}, {s(ptr,2)}, {s(S_T1)} offset:{half*256+i*64}\n" for i in range(4))
        P.add(Raw(t))
    if S == 8: P(ep_load)
    if S == 14:
        P(f"""v_lshrrev_b32 v48, 5, {v(V_LANE)}
v_bfe_u32 v49, {v(V_LANE)}, 2, 2
v_lshl_add_u32 v48, v48, 2, v49
v_and_b32 v49, 2, v49
v_bfe_u32 v50, {v(V_LANE)}, 4, 1
v_xor_b32 v49, v49, v50
s_and_b32 {s(S_T1)}, {s(S_W4)}, 2
v_xor_b32 v49, {s(S_T1)}, v49
v_lshlrev_b32 v49, 5, v49
v_lshl_add_u32 v48, v48, 7, v49
v_and_b32 v49, 3, {v(V_LANE)}
v_lshl_add_u32 v48, v49, 3, v48
s_lshl_b32 {s(S_MX)}, {s(S_W4)}, 14
s_lshl_b32 {s(S_T0)}, {s(S_T1)}, 14
v_add_u32 {v(B0)}, {s(S_T0)}, v48
v_xor_b32 {v(B1)}, 64, {v(B0)}
v_xor_b32 v49, 64, v48
s_mul_i32 {s(S_T0)}, {s(S_T1)}, 6144
s_add_u32 {s(S_T0)}, {s(S_T0)}, {L_WA}
v_add_u32 {v(A0)}, {s(S_T0)}, v48
v_add_u32 {v(A1)}, {s(S_T0)}, v49
s_mul_i32 {s(S_T0)}, {s(S_T1)}, 10240
s_add_u32 {s(S_T0)}, {s(S_T0)}, {L_KV}
v_add_u32 {v(A2)}, {s(S_T0)}, v48
v_add_u32 {v(A3)}, {s(S_T0)}, v49
""")
    if S == 15:
        P(f"""s_lshl_b32 {s(S_T0)}, {s(S_W4)}, 12
v_add_u32 {v(EXR)}, {s(S_T0)}, {v(V_L16)}
v_xor_b32 {v(EXW)}, 0x2000, {v(EXR)}
v_and_b32 {v(VOUT)}, 31, {v(V_LANE)}
v_lshlrev_b32 {v(VOUT)}, 10, {v(VOUT)}
v_lshrrev_b32 v48, 5, {v(V_LANE)}
v_lshl_add_u32 {v(VOUT)}, v48, 4, {v(VOUT)}
s_and_b32 {s(S_T2)}, {s(S_W4)}, 1
s_lshl_b32 {s(S_T2)}, {s(S_T2)}, 15
s_lshl_b32 {s(S_T0)}, {s(S_RB3)}, 16
s_add_u32 {s(S_T0)}, {s(S_T0)}, {s(S_T2)}
s_lshl_b32 {s(S_T1)}, {s(S_CB)}, 7
s_add_u32 {s(S_T0)}, {s(S_T0)}, {s(S_T1)}
s_and_b32 {s(S_T1)}, {s(S_W4)}, 2
s_lshl_b32 {s(S_T1)}, {s(S_T1)}, 5
s_add_u32 {s(S_T0)}, {s(S_T0)}, {s(S_T1)}
v_add_u32 {v(VOUT)}, {s(S_T0)}, {v(VOUT)}
s_lshl_b32 {s(S_T0)}, {s(S_RB3)}, 17
s_add_u32 {s(S_T0)}, {s(S_T0)}, {s(S_T2)}
s_lshl_b32 {s(S_T1)}, {s(S_T1)}, 8
s_add_u32 {s(S_T0)}, {s(S_T0)}, {s(S_T1)}
s_add_u32 {s(S_T0)}, {s(S_T0)}, {WS_O}
v_add_u32 {v(VOG)}, {s(S_T0)}, {v(V_L16)}
s_lshl_b32 {s(S_WB)}, {s(S_W4)}, 17
s_lshl_b32 {s(S_T1)}, {s(S_CB)}, 7
s_add_u32 {s(S_WB)}, {s(S_WB)}, {s(S_T1)}
s_lshl3_add_u32 {s(S_R3)}, {s(S_RB3)}, {s(S_CB)}
s_and_b32 {s(S_T1)}, {s(S_W4)}, 2
s_lshl2_add_u32 {s(S_R3)}, {s(S_R3)}, {s(S_T1)}
s_lshl_b32 {s(S_R3)}, {s(S_R3)}, 6""")
    if S == OPT["kvs"]:
        tail = P.items[mark:]; del P.items[mark:]
        P.add(flag_store("none", "kv")); P.items += tail
    if S == 16:
        P("s_waitcnt lgkmcnt(0)")
        H.poll(f"v_cmp_ne_u64 vcc, 0, {v(EP,2)}", ep_load)
        P(f"v_readfirstlane_b32 {s(S_EP)}, {v(EP)}\nv_readfirstlane_b32 {s(S_EP+1)}, {v(EP+1)}")
    if S == 19:
        P.add(srd(S_WOA, 8, 524288) + srd(S_WOB, 14, 524288) + srd(S_OUT, 18, 2097152))
    if S == 20:
        P(f"""v_lshrrev_b32 v48, 3, {v(V_LANE)}
v_bfe_u32 v49, {v(V_LANE)}, 4, 1
v_lshlrev_b32 v49, 2, v49
v_and_b32 v50, 7, {v(V_LANE)}
v_xor_b32 v49, v49, v50
v_lshlrev_b32 v49, 4, v49
v_lshl_add_u32 {v(VWO)}, v48, 10, v49
v_and_b32 {v(VKF)}, 32, {v(V_LANE)}
v_lshlrev_b32 {v(VKF)}, 4, {v(VKF)}
v_mul_u32_u24 {v(V1A)}, {KVS}, v50
s_mul_i32 {s(S_MW)}, {s(S_W4)}, {KVH}
s_add_u32 {s(S_MW)}, {s(S_MW)}, {L_KV}
s_add_u32 {s(S_T0)}, {s(S_MW)}, 2048
v_add_u32 {v(V1A)}, {s(S_T0)}, {v(V1A)}
s_lshl_b32 {s(S_T0)}, {s(S_RB)}, 1
v_add_u32 v48, {s(S_T0)}, v50
v_cmp_le_u32 vcc, 8, v48
v_mov_b32 v49, {hex(ONES)}
v_cndmask_b32 {v(V1D)}, 0, v49, vcc
v_mov_b32 {v(V1D+1)}, {v(V1D)}
v_mov_b32 {v(V1D+2)}, {v(V1D)}
v_mov_b32 {v(V1D+3)}, {v(V1D)}
s_mul_i32 {s(S_MA)}, {s(S_W4)}, 6144
s_add_u32 {s(S_MA)}, {s(S_MA)}, {L_WA}
s_mul_i32 {s(S_MB)}, {s(S_W4)}, 10240
s_add_u32 {s(S_MB)}, {s(S_MB)}, {L_KV - 6144}
s_lshl_b32 {s(S_K)}, {s(S_HEAD)}, 5
s_add_u32 {s(S_K)}, {s(S_K)}, {s(S_RB)}
s_lshl_b32 {s(S_K)}, {s(S_K)}, 6
s_add_u32 {s(S_K)}, {s(S_K)}, {WS_FKV}""")
    if S == OPT["gat"] - 1 - OPT["pasy"]:
        H.spoll_issue(4, S_K)
    if S == OPT["gat"] - 1:
        H.spoll(4, S_K, ignore_from=S_RB)
        H.stamp()
    if S == OPT["sents"]:
        P.add([f"v_mov_b32 {v(172+i)}, -1" for i in range(4)])
        P.add(o_store(0, 1, 172, "sent")); P.add(o_store(0, 0, 172, "sent"))
    if S == 23:
        P(f"ds_write_b128 {v(V1A)}, {v(V1D,4)}")
    if S == 24: P.add(Pace(OPT["pace0"]))
    if S == OPT["gat"] + OPT["gdel"]:
        emit_gather(0, (0, 1, 2, 3))
if OPT["p1only"]:
    H.finish()
fs = lambda: H.stamp() if OPT["fine"] == 4 else None
P(f"s_setprio {OPT['hprio']}")
emit_gather(1, (4, 5, 6, 7))
def wo_dma(br):
    o = []
    for t in range(16):
        base = S_MX if br else (S_MA if t < 6 else S_MB)
        g = [f"s_add_u32 m0, {s(base)}, {t*1024}", f"s_add_u32 {s(S_T3)}, {s(S_WB)}, {t*8192}"]
        o.append(g + [dma(VWO, S_WOB if br else S_WOA, s(S_T3), 0, "wob" if br else ("woa" if t < 6 else "woc"))])
    return o
woa, wob = wo_dma(0), wo_dma(1)
P.add(wob[:OPT["wb0"]])
P.add(WaitTag("kv")); P.add(WaitLds()); P("s_barrier")
H.stamp()
if OPT["t2"]: P.add(WaitTag("kvb")); P("s_barrier")
P.add(Pace(OPT["pace"]))
rest = wob[OPT["wb0"]:] + woa[:6]
if OPT["zbar"]:
    P.add(rest[:OPT["wz"]]); rest = rest[OPT["wz"]:]
    P("s_barrier"); fs(); P.add(flag_store("sent", "ob"))
P.add(rest)
fs()
def o_gather(br):
    o = []
    for hs in range(16):
        if hs % 4 == 0: o += [f"s_mov_b32 {s(S_T1)}, {br*65536 + hs*1024}"]
        o += [ws_ld(v((OFA, OFB)[br]+4*hs,4), VOG, s(S_T1), (hs & 3)*1024)]
    return o
def wo_read(dst, hs, br):
    h, j = hs >> 3, hs & 7
    base, off = ((B0, B1), hs*2048) if br else (((A0, A1), h*6144 + j*2048) if j < 3 else ((A2, A3), h*10240 + (j-3)*2048))
    return [f"ds_read_b64_tr_b16 {v(dst+4*ct+2*q,2)}, {v(base[ct])} offset:{off+q*1024}" for ct in range(2) for q in range(2)]
FIN = ACC3 + 32
def p3(Q, br, hook=lambda hs: None):
    Q.add(wo_read(WBF, 0, br))
    for hs in range(16):
        b = hs & 1
        rd = wo_read(WBF + 8*(1-b), hs + 1, br) if hs < 15 else []
        for ct in ((0, 1) if hs < 15 else (1, 0)):
            acc = v((FIN, ACC3)[br]+16*ct, 16)
            c = acc if hs else ("0" if br else v(ACC3+16*ct, 16))
            Q(mfma(acc, v(WBF+8*b+4*ct,4), v((OFA, OFB)[br]+4*hs,4), c))
            Q.add(rd[2*ct:2*ct+2])
        hook(hs)
def sentinel_scan(hs):
    base = OFA + 4*hs
    first = [f"v_max3_u32 {v(TMP)}, {v(base)}, {v(base+1)}, {v(base+1)}"] if hs == 0 else [f"v_max3_u32 {v(TMP)}, {v(TMP)}, {v(base)}, {v(base+1)}"]
    return first + [f"v_max3_u32 {v(TMP)}, {v(TMP)}, {v(base+2)}, {v(base+3)}"]
P(f"s_add_u32 {s(S_K)}, {s(S_R3)}, {WS_FOB}")
P.add(WaitTag("wob")); P("s_barrier"); fs()
if not OPT["zbar"]: P.add(flag_store("sent", "ob"))
P.add(woa[6:11]); H.spoll_issue(16, S_K); P.add(woa[11:]); fs()
H.spoll(16, S_K); H.stamp()
P.add(o_gather(1)); fs()
P(f"s_setprio {OPT['p3prio']}")
p3(P, 1)
H.stamp()
P.add(WaitTag("woa", "woc")); P("s_barrier"); fs()
P.add(o_gather(0))
test = [f"v_cmp_ne_u32 vcc, -1, {v(TMP)}", "s_cmp_eq_u64 vcc, -1"]
p3(P, 0, lambda hs: P.add(sentinel_scan(hs)))
P.add(test); P("s_cbranch_scc0 L_retry\nL_ok:")
Q = Prog()
Q(f"L_retry:\ns_mov_b32 {s(S_SPIN)}, 0x20000\ns_nop 15\nL_again:"); Q.add(o_gather(0))
Q(f"s_sub_u32 {s(S_SPIN)}, {s(S_SPIN)}, 1\ns_waitcnt vmcnt(0)\ns_cbranch_scc1 L_redo")
for hs in range(16): Q.add(sentinel_scan(hs))
Q.add(test); Q("s_cbranch_scc0 L_again\nL_redo:")
p3(Q, 0); Q("s_nop 15\ns_branch L_ok")
retry_txt = [finalize(Q)]
H.stamp()
P.add([f"ds_write_b128 {v(EXW)}, {v(FIN+16+4*q,4)} offset:{q*1024}" for q in range(4)])
P.add(WaitLds()); P("s_barrier")
P.add([f"ds_read_b128 {v(OFB+4*q,4)}, {v(EXR)} offset:{q*1024}" for q in range(4)])
for hf in range(2):
    P.add([f"v_pk_add_f32 {v(FIN+8*hf+2*i,2)}, {v(FIN+8*hf+2*i,2)}, {v(OFB+8*hf+2*i,2)}" for i in range(4)])
    P.add([f"v_cvt_pk_bf16_f32 {v(WBF+4*hf+i)}, {v(FIN+8*hf+2*i)}, {v(FIN+8*hf+2*i+1)}" for i in (0, 2, 1, 3)])
    P(f"v_permlane32_swap_b32 {v(WBF+4*hf)}, {v(WBF+4*hf+2)}\nv_permlane32_swap_b32 {v(WBF+4*hf+1)}, {v(WBF+4*hf+3)}")
    P(f"buffer_store_dwordx4 {v(WBF+4*hf,4)}, {v(VOUT)}, {s(S_OUT,4)}, 0 offen{' offset:32' if hf else ''}{('', ' sc1', ' nt', ' sc0 sc1')[OPT['outsc']]}")
H.stamp()
H.finish()

C = Role("C"); P = C.P
T1, T3, T2 = 32, 64, 96
XB, WB = 128, 160
V_AX, V_P0L, V_P0H, V_P1L, V_P1H, V_T2L, V_T2H = 192, 194, 195, 196, 197, 198, 199
V_LO, V_HI, V_CMR = 200, 201, 202
VPK = 224
r5, hh, rr, cc, nh, u0, u1, cm, g4 = 128, 129, 130, 131, 132, 133, 134, 135, 140
P("L_crole:")
P.add(late_ids)
if OPT["prio"]: P("s_setprio 1")
P(f"""
v_and_b32 {v(r5)}, 31, {v(V_LANE)}
v_lshrrev_b32 {v(hh)}, 5, {v(V_LANE)}
v_lshrrev_b32 {v(g4)}, 4, {v(V_LANE)}
v_and_b32 {v(u1)}, 15, {v(V_LANE)}
v_lshrrev_b32 {v(u0)}, 1, {v(u1)}
v_xor_b32 {v(u0)}, {v(u0)}, {v(g4)}
v_lshlrev_b32 {v(u0)}, 4, {v(u0)}
v_lshl_add_u32 {v(u0)}, {v(u1)}, 7, {v(u0)}
v_add_u32 {v(V_AX)}, {L_X}, {v(u0)}
v_xor_b32 {v(V_AX+1)}, 64, {v(V_AX)}
v_bfe_u32 {v(rr)}, {v(V_LANE)}, 2, 2
v_and_b32 {v(cc)}, 3, {v(V_LANE)}
v_and_b32 {v(nh)}, 1, {v(g4)}
v_lshl_add_u32 {v(u0)}, {v(g4)}, 3, {v(rr)}
v_xor_b32 {v(u1)}, {s(S_W4)}, {v(rr)}
v_lshlrev_b32 {v(u1)}, 5, {v(u1)}
v_lshl_add_u32 {v(u1)}, {v(cc)}, 3, {v(u1)}
v_lshl_add_u32 {v(u1)}, {v(u0)}, 8, {v(u1)}
v_lshl_add_u32 {v(V_P0L)}, {v(nh)}, 7, {v(u1)}
v_add_u32 {v(V_P0H)}, 0x10000, {v(V_P0L)}
v_xor_b32 {v(V_P1L)}, 0x80, {v(V_P0L)}
v_xor_b32 {v(V_P1H)}, 0x80, {v(V_P0H)}
v_lshrrev_b32 {v(u1)}, 1, {v(rr)}
v_lshl_add_u32 {v(u1)}, {v(nh)}, 1, {v(u1)}
v_xor_b32 {v(u1)}, {s(S_W4)}, {v(u1)}
v_lshlrev_b32 {v(u1)}, 5, {v(u1)}
v_lshl_add_u32 {v(u1)}, {v(cc)}, 3, {v(u1)}
v_lshl_add_u32 {v(V_T2L)}, {v(u0)}, 7, {v(u1)}
v_add_u32 {v(V_T2H)}, 0x10000, {v(V_T2L)}
v_and_b32 {v(u0)}, 15, {v(V_LANE)}
v_lshlrev_b32 {v(u0)}, 4, {v(u0)}
v_lshl_add_u32 {v(u0)}, {v(hh)}, 8, {v(u0)}
v_lshl_add_u32 {v(V_LO)}, {v(nh)}, 31, {v(u0)}
v_xor_b32 {v(V_HI)}, {OOB}, {v(V_LO)}
v_lshlrev_b32 {v(u0)}, 2, {v(hh)}
v_sub_u32 {v(cm)}, {v(r5)}, {v(u0)}
v_sub_u32 {v(u0)}, 32, {v(cm)}
v_mov_b32 {v(u1)}, {hex(~0x55540001 & 0xffffffff)}
v_alignbit_b32 {v(V_CMR)}, {v(u1)}, {v(u1)}, {v(u0)}
s_waitcnt lgkmcnt(0)""")
if OPT["wsoff"]: P(f"s_add_u32 s22, s22, {OPT['wsoff'] << 20}\ns_addc_u32 s23, s23, 0")
P.add(entry_stamp())
P(f"""s_memrealtime {s(S_TM,2)}
s_mov_b32 {s(S_C)}, {fhex(QK_SCALE)}
s_mov_b32 {s(S_C+1)}, {fhex(QK_SCALE)}
""")
def l2_prefetch():
    a, b = 140, 141
    o = lines(f"""s_lshr_b32 {s(S_T0)}, s2, 3
s_and_b32 {s(S_T1)}, {s(S_HG)}, 4
s_lshl_b32 {s(S_T1)}, {s(S_T1)}, 7
v_and_b32 {v(a)}, 3, {v(V_LANE)}
v_lshlrev_b32 {v(a)}, 7, {v(a)}
s_cmp_eq_u32 {s(S_W4)}, 2
s_cbranch_scc1 L_pfx
s_cmp_eq_u32 {s(S_W4)}, 3
s_cbranch_scc1 L_pfq
s_cmp_eq_u32 {s(S_W4)}, 0
s_cselect_b32 {s(S_W)}, s6, s12
s_cselect_b32 {s(S_W+1)}, s7, s13
s_mov_b32 {s(S_W+2)}, 1572864
s_mov_b32 {s(S_W+3)}, 0x20000
v_bfe_u32 {v(b)}, {v(V_LANE)}, 2, 1
v_lshl_add_u32 {v(a)}, {v(b)}, 10, {v(a)}
v_lshrrev_b32 {v(b)}, 3, {v(V_LANE)}
v_mul_u32_u24 {v(b)}, 0xc00, {v(b)}
v_add_u32 {v(a)}, {v(a)}, {v(b)}
s_mul_i32 {s(S_T0)}, {s(S_T0)}, {8*3072}
s_add_u32 {s(S_T0)}, {s(S_T0)}, {s(S_T1)}
s_add_u32 {s(S_T0)}, {s(S_T0)}, 1024
buffer_load_dword v190, {v(a)}, {s(S_W,4)}, {s(S_T0)} offen
s_add_u32 {s(S_T0)}, {s(S_T0)}, {256*3072}
buffer_load_dword v191, {v(a)}, {s(S_W,4)}, {s(S_T0)} offen
s_branch L_pfe
L_pfx:
s_mov_b32 {s(S_W)}, s4
s_mov_b32 {s(S_W+1)}, s5
s_mov_b32 {s(S_W+2)}, 2097152
s_mov_b32 {s(S_W+3)}, 0x20000
v_lshrrev_b32 {v(b)}, 2, {v(V_LANE)}
v_lshl_add_u32 {v(a)}, {v(b)}, 10, {v(a)}
s_lshl_b32 {s(S_T0)}, {s(S_T0)}, 14
s_and_b32 {s(S_T1)}, {s(S_RB)}, 24
s_lshl_b32 {s(S_T1)}, {s(S_T1)}, 16
s_add_u32 {s(S_T0)}, {s(S_T0)}, {s(S_T1)}
buffer_load_dword v190, {v(a)}, {s(S_W,4)}, {s(S_T0)} offen
buffer_load_dword v191, {v(a)}, {s(S_W,4)}, {s(S_T0)} offen offset:512
s_branch L_pfe
L_pfq:
s_mov_b32 {s(S_W)}, s6
s_mov_b32 {s(S_W+1)}, s7
s_mov_b32 {s(S_W+2)}, 1572864
s_mov_b32 {s(S_W+3)}, 0x20000
v_lshrrev_b32 {v(b)}, 2, {v(V_LANE)}
v_mul_u32_u24 {v(b)}, 0xc00, {v(b)}
v_add_u32 {v(a)}, {v(a)}, {v(b)}
s_mul_i32 {s(S_T0)}, {s(S_T0)}, {16*3072}
s_add_u32 {s(S_T0)}, {s(S_T0)}, {s(S_T1)}
buffer_load_dword v190, {v(a)}, {s(S_W,4)}, {s(S_T0)} offen
s_mov_b32 {s(S_W)}, s12
s_mov_b32 {s(S_W+1)}, s13
buffer_load_dword v191, {v(a)}, {s(S_W,4)}, {s(S_T0)} offen
L_pfe:""")
    P.add(Raw("\n".join(("" if l.endswith(":") else "    ") + l for l in o)))
    P("s_nop 0")
if OPT["pf"] == 1: l2_prefetch()
P.add(srd(S_WS, 22, WS_SIZE) + srd(S_DBG, 20, 256))
P(f"""s_cmp_eq_u32 s2, 0
s_cselect_b32 {s(S_T2)}, 0, {OOB}
v_lshlrev_b32 v5, 8, v0
v_or_b32 v5, {s(S_T2)}, v5
s_waitcnt lgkmcnt(0)
v_mov_b32 {v(EP)}, {s(S_TM)}
v_mov_b32 {v(EP+1)}, {s(S_TM+1)}
buffer_store_dwordx2 {v(EP,2)}, v5, {s(S_DBG,4)}, 0 offen sc1""")
V_AXW, V_AG, V_GPW, V_GPR, XW, GF, GACC = 4, 8, 9, 13, 240, 248, 204
P(f"""s_lshl_b32 {s(S_T2)}, {s(S_W4)}, 11
v_add_u32 {v(V_AXW)}, {s(S_T2)}, {v(V_AX)}
v_add_u32 {v(V_AXW+1)}, {s(S_T2)}, {v(V_AX+1)}
v_lshlrev_b32 {v(V_AG)}, 4, {v(g4)}
v_add_u32 {v(V_AG)}, {L_G}, {v(V_AG)}
v_lshlrev_b32 {v(V_GPR)}, 2, {v(r5)}
v_add_u32 {v(V_GPR)}, {L_GP}, {v(V_GPR)}
v_and_b32 {v(u0)}, 15, {v(V_LANE)}
s_lshl_b32 {s(S_T2)}, {s(S_W4)}, 6
s_add_u32 {s(S_T2)}, {s(S_T2)}, {L_GP}
v_lshl_add_u32 {v(V_GPW)}, {v(u0)}, 2, {s(S_T2)}""")
P.add(attn_setup(0, 136))
C.stamp()

CM, QB, KB, VB, KBH, VBH, BP, BPL, BPK, SENT, S_R0 = 176, 248, 240, 32, 80, 84, 192, 88, 88, 220, 24
BS2, BSP2, BO2 = (96, 48), (128, 112), (160, 144)
def b_scores(t):
    kprev = v(KB, 4) if t == 1 else v(KBH, 4)
    return [mfma(v(BS2[t],16), v(KB+4*t,4), v(QB+4*t,4), v(CM,16)), mfma(v(BSP2[t],16), kprev, v(QB+4*t,4), v(CM,16))]
def b_softmax(t):
    S, sp, m, p, pl = BS2[t], BSP2[t], TMP + 2*t, BP + 8*t, BPL + 4*t
    o = [f"v_cndmask_b32 {v(S+q)}, {v(S+q)}, {v(sp+q)}, {s(S_LO16,2)}" for q in range(8, 16)]
    if t == 0:
        o += [f"v_mov_b32 {v(m)}, {hex(NEG_BIG)}"]
        o += [f"v_cndmask_b32 {v(S+q)}, {v(S+q)}, {v(m)}, {s(S_R0,2)}" for q in range(8, 16)]
    o += max_tree(m, range(S, S+16)) + cross_max(m, m+1)
    o += [f"v_pk_add_f32 {v(S+2*q,2)}, {v(S+2*q,2)}, {v(m,2)} op_sel_hi:[1,0] neg_lo:[0,1] neg_hi:[0,1]" for q in range(8)]
    o += [f"v_exp_f32 {v(S+q)}, {v(S+q)}" for q in range(16)]
    o += [f"v_cvt_pk_bf16_f32 {v(p+i)}, {v(S+2*i)}, {v(S+2*i+1)}" for i in range(8)]
    o += [f"v_cndmask_b32 {v(pl+i)}, 0, {v(p+4+i)}, {s(S_LO16,2)}" for i in range(4)]
    o += [f"v_cndmask_b32 {v(p+4+i)}, {v(p+4+i)}, 0, {s(S_LO16,2)}" for i in range(4)]
    return o
def b_pv(t):
    vprev, acc, p = v(VB+4, 4) if t == 1 else v(VBH, 4), v(BO2[t], 16), BP + 8*t
    return [mfma(acc, v(VB+8*t,4), v(p,4), "0"), mfma(acc, v(VB+8*t+4,4), v(p+4,4), acc), mfma(acc, vprev, v(BPL+4*t,4), acc)]
def b_pack(t):
    f = 200 + 2*t
    return o_pack(BO2[t], 8, 0, [f"v_sub_f32 {v(f+1)}, 1.0, {v(G0+t)}", f"v_mul_f32 {v(f)}, {v(f)}, {v(f+1)}"], BPK+4*t, f)
def frag_reads(n):
    b, m = n & 1, n & 15
    j, u2 = m >> 1, m & 1
    base = (stage_of(n) % NSLOT) * SLOT
    hi = base >= 65536; off = base - (65536 if hi else 0)
    x = [f"ds_read_b128 {v(XB+16*b+4*tg,4)}, {v(V_AX+u2)} offset:{j*8192+tg*2048}" for tg in range(4)]
    if n < 16:
        w = [f"ds_read_b64_tr_b16 {v(WB+16*b+4*f+2*qd,2)}, {v(((V_P0L,V_P0H),(V_P1L,V_P1H))[pos][hi])} offset:{off+M*8192+qd*1024}"
             for f, (M, pos) in enumerate(((0, 0), (1, 1), (0, 1), (1, 0))) for qd in range(2)]
        return w[0:2] + x[0:2] + w[2:4] + x[2:4] + w[4:8]
    w = [f"ds_read_b64_tr_b16 {v(WB+8*b+4*M+2*qd,2)}, {v((V_T2L,V_T2H)[hi])} offset:{off+M*8192+u2*4096+qd*512}" for M in range(2) for qd in range(2)]
    return w[0:2] + x[0:2] + w[2:4] + x[2:4]
def step_mfmas(n):
    b = n & 1
    x = lambda tg: v(XB+16*b+4*tg, 4)
    c = lambda r: "0" if n in (0, 16) else v(r, 4)
    kq = lambda T, wbase: [mfma16(v(T+16*f+4*tg,4), v(wbase+4*f,4), x(tg), c(T+16*f+4*tg)) for hf in range(2) for f in range(2) for tg in (2*hf, 2*hf+1)]
    if n < 16:
        return kq(T1, WB+16*b) + [mfma16(v(T3+16*f+4*tg,4), x(tg), v(WB+16*b+8+4*f,4), c(T3+16*f+4*tg)) for f in range(2) for tg in range(4)]
    return kq(T2, WB+8*b)
def kq_frag(dst, T, tt, scale):
    a = T + 8*tt
    o = [f"v_pk_mul_f32 {v(a+2*i,2)}, {v(a+2*i,2)}, {s(S_C,2)}" for i in range(4)] if scale else []
    o += [f"v_cvt_pk_bf16_f32 {v(dst+i)}, {v(a+2*i)}, {v(a+2*i+1)}" for i in (0, 2, 1, 3)]
    return o, [f"v_permlane16_swap_b32 {v(dst+i)}, {v(dst+2+i)}" for i in range(2)]
def v_frag(tg):
    d = VPK + 4*tg
    o = [f"v_cvt_pk_bf16_f32 {v(d+2*f+i)}, {v(T3+16*f+4*tg+2*i)}, {v(T3+16*f+4*tg+2*i+1)}" for i in range(2) for f in range(2)]
    return o, [f"v_permlane16_swap_b32 {v(d+i)}, {v(d+2+i)}" for i in range(2)], [f"v_permlane32_swap_b32 {v(d+i)}, {v(d+2+i)}" for i in range(2)]
def kv_publish():
    o = [f"s_lshl_b32 {s(S_T0)}, {s(S_HEAD)}, 17", f"s_lshl_b32 {s(S_T1)}, {s(S_RB)}, 12", f"s_add_u32 {s(S_T0)}, {s(S_T0)}, {s(S_T1)}"]
    k = [kq_frag(KA+4*tt, T1, tt, True) for tt in range(2)]
    o += k[0][0] + k[1][0] + k[0][1] + k[1][1] + [ws_st(v(KA+4*tt,4), V_L16, s(S_T0), tt*2048, "kv") for tt in range(2)]
    for tt in range(2):
        f = [v_frag(2*tt + m) for m in range(2)]
        o += f[0][0] + f[1][0] + f[0][1] + f[1][1] + f[0][2] + f[1][2]
        o += [ws_st(v(VPK+8*tt+4*m,4), V_LO, s(S_T0), tt*2048+1024+m*512, "kv") for m in range(2)]
    o += [f"s_lshl_b32 {s(S_T0)}, {s(S_HEAD)}, 15", f"s_lshl_b32 {s(S_T1)}, {s(S_RB)}, 10",
          f"s_add_u32 {s(S_T0)}, {s(S_T0)}, {s(S_T1)}", f"s_add_u32 {s(S_T0)}, {s(S_T0)}, {WS_HB}",
          ws_st(v(VPK+12,4), V_HI, s(S_T0), 512, "kv")]
    k = [kq_frag(KB+4*tt, T1+16, tt, True) for tt in range(2)]
    o += k[1][0] + k[0][0] + k[1][1] + [ws_st(v(KB+4,4), V_HI, s(S_T0), 0, "kv")] + k[0][1]
    return o

if OPT["p1only"]:
    P("s_barrier\n" * 25 + "s_endpgm")
P("s_barrier")
C.stamp()
P.add(frag_reads(0))
queue = []
gf = gate_finish(V_GPR, 88)
qb0, qb1, qa0, qa1 = kq_frag(QB, T2+16, 0, False), kq_frag(QB+4, T2+16, 1, False), kq_frag(QA, T2, 0, False), kq_frag(QA1, T2, 1, False)
for n in range(32):
    mf = step_mfmas(n)
    sync = first_of_stage(n + 1) or n == 31
    nxt_stage = stage_of(n + 1) if n < 31 else 24
    rd = frag_reads(n + 1) if n < 31 else []
    if n < 16:
        m, gb = (n + 1) & 15, (n + 1) & 1
        rd = rd + [f"ds_read_b128 {v(GF+4*gb,4)}, {v(V_AG)} offset:{m*64}", f"ds_read_b128 {v(XW+4*gb,4)}, {v(V_AXW+gb)} offset:{(m >> 1)*8192}"]
    gm = [mfma16(v(GACC,4), v(GF+4*(n&1),4), v(XW+4*(n&1),4), "0" if n == 1 else v(GACC,4))] if 1 <= n <= 16 else []
    late = []
    if n == 15:
        pub = kv_publish()
        if OPT["early"]:
            late, pub = pub[:25], pub[25:]
            mf = [mf[i] for i in (0, 1, 4, 5, 8, 9, 10, 11, 12, 13, 14, 15, 2, 3, 6, 7)]
    if n == 16: queue += pub
    if n == 31 and OPT["early"]:
        mf = [mf[i] for i in (2, 3, 6, 7, 0, 1, 4, 5)]
        late = gf[2:] + qb0[0] + qb1[0] + qb0[1] + qb1[1]
    if n == 21:
        queue += [f"v_mov_b32 {v(TMP)}, {hex(ONES)}", f"v_mov_b32 {v(TMP+1)}, {hex(NEG_BIG)}"]
        queue += [f"v_mov_b32 {v(VBH+i)}, {v(TMP)}" for i in range(4)]
        queue += [f"v_cndmask_b32 {v(VB+i)}, {v(VPK+i)}, {v(TMP)}, {s(S_LO16,2)}" for i in range(16)]
        queue += [f"v_cndmask_b32 {v(VA+i)}, {v(TMP)}, {v(VPK+i)}, {s(S_LO16,2)}" for i in range(16)]
        queue += [f"v_cndmask_b32 {v(CMA+q)}, {v(TMP+1)}, 0, {s(S_MASK+2*q,2)}" for q in range(16)]
        queue += [f"v_bfe_i32 {v(CM+q)}, {v(V_CMR)}, {8*(q>>2)+(q&3)}, 1" for q in range(16)]
        queue += [f"v_and_b32 {v(CM+q)}, {v(TMP+1)}, {v(CM+q)}" for q in range(16)]
    if n == 16: mf = mf[:2] + gm + mf[2:]
    else: mf = mf + gm
    post = []
    pre = []
    if sync and nxt_stage == 23:
        (pre if OPT["gpre"] else post).append(f"ds_write_b32 {v(V_GPW)}, {v(GACC)}")
    if sync and nxt_stage == OPT["gat"]:
        rd = rd + [lines(f"""s_lshl_b32 {s(S_T0)}, {s(S_HEAD)}, 15
s_lshl_b32 {s(S_T1)}, {s(S_RB)}, 10
s_add_u32 {s(S_T0)}, {s(S_T0)}, {s(S_T1)}
s_add_u32 {s(S_T0)}, {s(S_T0)}, {WS_HB - 1024}
s_cmp_eq_u32 {s(S_RB)}, 0
s_cselect_b32 {s(S_T0)}, {WS_SIZE}, {s(S_T0)}
s_cselect_b64 {s(S_R0,2)}, {s(S_LO16,2)}, 0""") + [ws_ld(v(KBH,4), V_HI, s(S_T0)), f"s_not_b64 exec, {s(S_LO16,2)}",
                 ws_ld(v(VBH,4), V_HI, s(S_T0), 512), "s_mov_b64 exec, -1"]]
    if n == 31: post += gf[:2]
    take = 8 if n < 16 else (OPT["take"] if n < 21 else OPT["take2"])
    side = queue[:take]; queue = queue[take:]
    P.add(pre); P(mf[0]); P(mf[1])
    if sync:
        if nxt_stage == OPT["kvs"]: P.add(WaitTag("kv")); C.stamp()
        P.add(WaitLds()); P("s_barrier")
        if OPT["fine"] in (1, 2, 3): C.stamp()
    P.add(post)
    body, k = rd, len(mf) - 2
    nr = max(1, k - (4 if n < 16 else 2))
    for i in range(k + 1):
        lo, hi_ = len(body) * i // nr, len(body) * (i + 1) // nr
        if i < nr: P.add(body[lo:hi_])
        slo, shi = len(side) * i // (k + 1), len(side) * (i + 1) // (k + 1)
        P.add(side[slo:shi])
        i0 = 7 if n == 15 else 2
        if late and i >= i0: P.add(late[len(late) * (i - i0) // (k + 1 - i0):len(late) * (i - i0 + 1) // (k + 1 - i0)])
        if i < k: P(mf[2 + i])
    if n == 15: C.stamp()
assert not queue
C.stamp()
sc = interleave(b_scores(0), b_scores(1))
if OPT["early"]:
    P(sc[1]); P.add(qa0[0]); P(sc[2]); P.add(qa1[0]); P(sc[0]); P.add(qa0[1] + qa1[1]); P(sc[3])
else:
    P.add(gf[2:]); P.add(qb0[0] + qa0[0] + qb0[1] + qb1[0] + qa1[0])
    P(sc[2]); P.add(qb1[1] + qa0[1]); P(sc[0]); P.add(qa1[1]); P(sc[1]); P(sc[3])
s1, s0 = b_softmax(1), b_softmax(0)
P.add(s0[:9])
sm = interleave(s0[9:], s1)
P.add(sm[:-16])
pv = interleave(b_pv(0), b_pv(1))
P(mfma(v(MG+16,16), v(KA+4,4), v(QA1,4), v(CMA,16))); P.add(sm[-16:-10]); P(mfma(v(MG,16), v(KA,4), v(QA,4), v(CMA,16))); P.add(sm[-10:])
mx = interleave(*[max_tree((TMP, TMP+2)[t], range(MG+16*t, MG+16*t+16)) + cross_max((TMP, TMP+2)[t], (TMP, TMP+2)[t]+1) for t in (1, 0)])
for i, m in enumerate(pv):
    P(m); P.add(mx[4*i:4*i+4])
ng = [[f"v_pk_add_f32 {v(NEGM+16*t+2*i,2)}, 0, {v((TMP, TMP+2)[t],2)} op_sel_hi:[0,0] neg_lo:[0,1] neg_hi:[0,1]" for i in range(8)] for t in range(2)]
P.add(ng[0])
BPK = 192
P.add(interleave(b_pack(0), b_pack(1)))
P.add(o_store(1, 0, BPK, "ob")); P.add(o_store(1, 1, BPK+4, "ob"))
P.add(ng[1])
C.stamp()
cs = lambda: C.stamp() if OPT["fine"] == 4 else None
cev = {("e1" if OPT["xhs"] < 0 else OPT["xhs"]): lambda: (P.add(WaitTag("ob")) if OPT["f2by"] else None, P.add(WaitLds()), P("s_barrier"))}
if not OPT["f2by"]: cev["e1" if OPT["f2hs"] < 0 else OPT["f2hs"]] = lambda: (cs(), P.add(flag_store("ob", "ob")), cs())
if OPT["zbar"]: cev[("e1", 0, 1)[OPT["zbar"] - 1]] = lambda: (P.add(WaitTag("ob")), P("s_barrier"))
window_attention(C, cev)
P.add(interleave(*[o_pack(OACC2[t], 0, 8, [f"v_mul_f32 {v(TMP+t)}, {v(TMP+t)}, {v(G0+t)}"], PF+4*t, TMP+t) for t in (1, 0)]))
P.add(o_store(0, 1, PF+4, "oa")); P.add(o_store(0, 0, PF, "oa"))
C.stamp()
C.finish()

full = Prog(); full.items = E.items + H.P.items
bodyH = finalize(full, verbose=True)
full = Prog(); full.items = [Ins("s_load_dwordx16 s[4:19], s[0:1], 0"), Ins("global_load_dword v13, v5, s[96:97]")] + C.P.items
bodyC = "\n".join(finalize(full, verbose=True).split("\n")[2:])
print("stamps H", H.ns, "C", C.ns)
hdr = open("cdna_kernels/%s.s.ref" % NAME).read().split("; Override launch")[0]
if OPT["stamps"]: hdr += f"; stamps {C.ns} {H.ns}\n"
txt = hdr + f"""; One launch: 256 workgroups (4 heads x 64 rows each), 8 waves, hand-offs through d_ws tagged with a per-launch epoch.
; @launch grid=(256,1,1) block=(512,1,1) lds={LDS_BYTES}
.amdgcn_target "amdgcn-amd-amdhsa--gfx950"
.text
.globl {NAME}_kernel
.p2align 12
.p2align 8
.type {NAME}_kernel,@function
{NAME}_kernel:
{bodyH}{bodyC}L_end:
    s_endpgm
{''.join(retry_txt)}{''.join(special_txt)}{slow_path()}    .fill 3072, 4, 0xbf800000
.section .rodata,"a"
.p2align 6
.amdhsa_kernel {NAME}_kernel
  .amdhsa_next_free_vgpr 256
  .amdhsa_next_free_sgpr 102
  .amdhsa_accum_offset {192 if OPT['xp'] == 8 else 256}
  .amdhsa_group_segment_fixed_size 0
  .amdhsa_kernarg_size 80
  .amdhsa_user_sgpr_count 2
  .amdhsa_user_sgpr_kernarg_segment_ptr 1
  .amdhsa_system_sgpr_workgroup_id_x 1
.end_amdhsa_kernel
"""
open(sys.argv[1], "w").write(txt)
```

```python
import sys, math, struct
from asmdsl import Prog, Ins, WaitTag, WaitLds, Raw, Pace, finalize

NAME = "gated_mix__sliding_block__sliding_local_dilated__prompt"
OPT = dict(xwarm=0, hgmap=0, hold=0, sents=21, pasy=1, gpre=0, take2=16, t2=0, rtail=1, dfl=0, kvs=19, bsplit=0, pace=0, pace0=0, pacez=0, gat=23, gdel=1, f2hs=-1, f2by=1, wb0=4, zbar=3, wz=18, probe=0, amode=0, worder=0, xhs=3, hprio=2, p3prio=0, wopf=1, tlb=1, icpf=1, cpf=0, take=96, early=1, kvflag=42, pubat=32, prio=1, barpos=0,
           xmap=3, rotmode=4, rotmask=7, outsc=0, stamps=0, fine=0, rt=0, xp=0, wsoff=0, amp=-1, ampk=8, amprole=1, ampclk=0, p1only=0, pf=0)
for a in sys.argv[2:]:
    k, v_ = a.split("="); assert k in OPT, k; OPT[k] = int(v_)

WS_KV, WS_HB, WS_O = 0, 4 << 20, 5 << 20
WS_FKV, WS_FOB, WS_FOA = 9 << 20, (9 << 20) + 65536, (9 << 20) + 131072
WS_STAMP, WS_SIZE = 10 << 20, 16 << 20
OOB = 0x80000000
NSLOT, SLOT = 5, 16384
L_X, L_WA, L_G, L_GP, LDS_BYTES = 81920, 131584, 156160, 157184, 158208
KVH, KVS, L_KV, L_WO = 2064, 4 * 2064, 65536, 0
QK_SCALE = 0.25 * math.log2(math.e)
NEG_BIG, ONES = 0xf149f2ca, 0x3f803f80

def fhex(x): return "0x%08x" % struct.unpack("<I", struct.pack("<f", x))[0]
def v(a, n=1): return f"v{a}" if n == 1 else f"v[{a}:{a+n-1}]"
def s(a, n=1): return f"s{a}" if n == 1 else f"s[{a}:{a+n-1}]"
def lines(t): return [l.strip() for l in t.strip().split("\n") if l.strip()]
def mfma(d, a, b, c): return f"v_mfma_f32_32x32x16_bf16 {d}, {a}, {b}, {c}"
def srd(base, ptr, nbytes):
    return [f"s_mov_b32 {s(base)}, {s(ptr)}", f"s_mov_b32 {s(base+1)}, {s(ptr+1)}",
            f"s_mov_b32 {s(base+2)}, {nbytes}", f"s_mov_b32 {s(base+3)}, 0x20000"]
def interleave(*ls):
    o, ls = [], [list(l) for l in ls]
    while any(ls):
        for l in ls:
            if l: o.append(l.pop(0))
    return o

S_X, S_W, S_WS, S_WOA, S_WOB, S_OUT, S_DBG, S_G = 24, 28, 32, 36, 40, 44, 48, 36
S_W4, S_HG, S_RB, S_ROT, S_HEAD, S_RB3, S_CB = 52, 53, 54, 55, 56, 57, 58
S_K, S_T0, S_MW, S_MX, S_T1 = 59, 60, 61, 62, 63
S_MASK, S_T2, S_T3, S_LO16, S_TM, S_C, S_SPIN, S_EP = 64, 96, 97, 98, 100, 10, 3, 26
V_LANE, V_L16, V_STAMP, V_FOFF = 1, 2, 3, 4
EP, FLG = 6, 8
V_AK, V_AV0, V_AV1 = 10, 11, 12
G0 = 14
PM, QA = 16, 24
TMP = 28
SB, NEGM, MG, PB, PF, KF, VF = 32, 64, 96, 128, 144, 152, 192
OACC2 = (160, 176)
KA, QA1, VA = 208, 216, 224

class Role:
    def __init__(self, name):
        self.P, self.name, self.ns, self.nl = Prog(), name, 0, 0
    def stamp(self):
        P = self.P
        if OPT["amp"] == self.ns and OPT["amprole"] == (self.name == "H"):
            P.add(WaitLds())
            P(f"{'s_memtime' if OPT['ampclk'] else 's_memrealtime'} {s(S_TM,2)}\ns_waitcnt lgkmcnt(0)\nv_writelane_b32 {v(V_STAMP)}, {s(S_TM)}, 1")
        if OPT["stamps"]:
            P.add(WaitLds())
            P(f"s_memtime {s(S_TM,2)}\ns_waitcnt lgkmcnt(0)\nv_writelane_b32 {v(V_STAMP)}, {s(S_TM)}, {self.ns + 1}")
            if OPT["rt"]: P(f"s_memrealtime {s(S_TM,2)}\ns_waitcnt lgkmcnt(0)\nv_writelane_b32 {v(V_STAMP)}, {s(S_TM)}, {self.ns + 32}")
        self.ns += 1
    def poll(self, cmp_txt, reload_txt):
        P, n = self.P, f"{self.name}{self.nl}"; self.nl += 1
        P(f"s_mov_b32 {s(S_SPIN)}, 0x40000"); P(cmp_txt)
        P(f"s_cmp_eq_u64 vcc, -1\ns_cbranch_scc1 L_pok{n}")
        P.add(Raw(f"""L_pspin{n}:
    {reload_txt}
    s_sub_u32 {s(S_SPIN)}, {s(S_SPIN)}, 1
    s_cbranch_scc1 L_pok{n}
    s_waitcnt vmcnt(0)
    {cmp_txt}
    s_nop 2
    s_cmp_eq_u64 vcc, -1
    s_cbranch_scc0 L_pspin{n}
L_pok{n}:"""))
    @staticmethod
    def _sloads(n, off):
        if n <= 8: return [f"s_load_dwordx{2*n} {s(4,2*n)}, s[22:23], {s(off)} glc"]
        return [f"s_load_dwordx16 s[4:19], s[22:23], {s(off)} glc", f"s_load_dwordx16 s[64:79], s[22:23], {s(off)} offset:64 glc"]
    def spoll_issue(self, n, off):
        self.P.add(self._sloads(n, off))
    def spoll(self, n, off, ignore_from=None):
        P, lb = self.P, f"{self.name}{self.nl}"; self.nl += 1
        w = lambda i: s(4 + 2*i if i < 8 else 48 + 2*i, 2)
        P.add(WaitLds())
        t = f"    s_mov_b32 {s(S_SPIN)}, 0x40000\nL_sp{lb}:\n"
        for i in range(n - 1):
            if ignore_from is not None:
                t += f"    s_cmp_lt_u32 {s(ignore_from)}, {n - i}\n    s_cselect_b64 {w(i)}, {s(S_EP,2)}, {w(i)}\n"
        for i in range(n):
            t += f"    s_xor_b64 {w(i)}, {w(i)}, {s(S_EP,2)}\n"
            if i: t += f"    s_or_b64 s[4:5], s[4:5], {w(i)}\n"
        t += f"    s_cmp_eq_u64 s[4:5], 0\n    s_cbranch_scc1 L_spok{lb}\n" + "".join(f"    {x}\n" for x in self._sloads(n, off))
        t += f"    s_sub_u32 {s(S_SPIN)}, {s(S_SPIN)}, 1\n    s_waitcnt lgkmcnt(0)\n    s_cbranch_scc0 L_sp{lb}\nL_spok{lb}:"
        P.add(Raw(t))
    def finish(self):
        P = self.P
        if OPT["stamps"]:
            P(f"s_memrealtime {s(S_TM,2)}\ns_waitcnt lgkmcnt(0) vmcnt(0)\nv_writelane_b32 {v(V_STAMP)}, {s(S_TM)}, 63")
            P(f"""s_lshl_b32 {s(S_T0)}, s2, 3
s_add_u32 {s(S_T0)}, {s(S_T0)}, {s(S_W4)}
s_add_u32 {s(S_T0)}, {s(S_T0)}, {4 if self.name == "H" else 0}
s_lshl_b32 {s(S_T0)}, {s(S_T0)}, 8
s_add_u32 {s(S_T0)}, {s(S_T0)}, {WS_STAMP}
v_lshlrev_b32 v0, 2, {v(V_LANE)}
buffer_store_dword {v(V_STAMP)}, v0, {s(S_WS,4)}, {s(S_T0)} offen""")
        if OPT["amp"] >= 0 and OPT["amprole"] == (self.name == "H"):
            P(f"""s_cmp_lg_u32 s2, 100
s_cbranch_scc1 L_end
v_readlane_b32 {s(S_T0)}, {v(V_STAMP)}, 0
v_readlane_b32 {s(S_T1)}, {v(V_STAMP)}, 1
s_memrealtime {s(S_TM,2)}
s_sub_u32 {s(S_T1)}, {s(S_T1)}, {s(S_T0)}
s_mul_i32 {s(S_T1)}, {s(S_T1)}, {OPT["ampk"]}
s_lshr_b32 {s(S_T1)}, {s(S_T1)}, {4 if OPT["ampclk"] else 0}
s_min_u32 {s(S_T1)}, {s(S_T1)}, 100000
s_waitcnt lgkmcnt(0)
s_mov_b32 {s(S_T0)}, {s(S_TM)}""")
            P.add(Raw(f"""L_amp{self.name}:
    s_memrealtime {s(S_TM,2)}
    s_waitcnt lgkmcnt(0)
    s_sub_u32 {s(S_K)}, {s(S_TM)}, {s(S_T0)}
    s_cmp_lt_u32 {s(S_K)}, {s(S_T1)}
    s_cbranch_scc1 L_amp{self.name}"""))
        P("s_endpgm")

ws_ld = lambda dst, voff, soff, imm=0, tag=None: Ins(
    f"buffer_load_dwordx4 {dst}, {v(voff)}, {s(S_WS,4)}, {soff} offen{' offset:%d' % imm if imm else ''} sc1", tag)
ws_st = lambda src, voff, soff, imm=0, tag=None: Ins(
    f"buffer_store_dwordx4 {src}, {v(voff)}, {s(S_WS,4)}, {soff} offen{' offset:%d' % imm if imm else ''} sc1", tag)
ep_load = f"buffer_load_dwordx2 {v(EP,2)}, off, {s(S_DBG,4)}, 0 sc1"
flag_load = f"buffer_load_dwordx2 {v(FLG,2)}, {v(V_FOFF)}, {s(S_WS,4)}, {s(S_K)} offen sc1"
flag_cmp = f"v_cmp_eq_u64 vcc, {v(FLG,2)}, {v(EP,2)}"
def flag_store(data_tag, kind):
    if kind == "kv":
        o = lines(f"""v_mul_u32_u24 v0, 56, {v(V_LANE)}
v_add_u32 v0, 88, v0
s_sub_u32 {s(S_T1)}, 31, {s(S_RB)}
s_min_u32 {s(S_T1)}, {s(S_T1)}, 4
v_cmp_gt_u32 vcc, {s(S_T1)}, {v(V_LANE)}
s_cmp_eq_u32 {s(S_RB)}, 0
s_cselect_b32 {s(S_T1)}, 24, {OOB}
v_mov_b32 v5, {s(S_T1)}
v_cndmask_b32 v0, v5, v0, vcc
s_lshl_b32 {s(S_T0)}, {s(S_HEAD)}, 5
s_add_u32 {s(S_T0)}, {s(S_T0)}, {s(S_RB)}
s_lshl_b32 {s(S_T0)}, {s(S_T0)}, 6
s_add_u32 {s(S_T0)}, {s(S_T0)}, {WS_FKV}""")
    else:
        o = lines(f"""v_lshlrev_b32 v0, 8, {v(V_LANE)}
v_cmp_gt_u32 vcc, 8, {v(V_LANE)}
v_mov_b32 v5, {OOB}
v_cndmask_b32 v0, v5, v0, vcc
s_lshl_b32 {s(S_T0)}, {s(S_RB)}, 8
s_add_u32 {s(S_T0)}, {s(S_T0)}, {s(S_HEAD)}
s_lshl_b32 {s(S_T0)}, {s(S_T0)}, 3
s_add_u32 {s(S_T0)}, {s(S_T0)}, { {"ob": WS_FOB, "oa0": WS_FOA, "oa1": WS_FOA + 65536}[kind] }""")
    return o + [WaitTag(data_tag), Ins(f"buffer_store_dwordx2 {v(EP,2)}, v0, {s(S_WS,4)}, {s(S_T0)} offen sc1", "flag")]

def max_tree(dst, regs, init=False):
    regs, o = list(regs), []
    if not init:
        o.append(f"v_max3_f32 {v(dst)}, {v(regs[0])}, {v(regs[1])}, {v(regs[2])}"); regs = regs[3:]
    while len(regs) >= 2:
        o.append(f"v_max3_f32 {v(dst)}, {v(dst)}, {v(regs[0])}, {v(regs[1])}"); regs = regs[2:]
    if regs: o.append(f"v_max_f32 {v(dst)}, {v(dst)}, {v(regs[0])}")
    return o
def cross_max(m, t):
    return [f"v_mov_b32 {v(t)}, {v(m)}", f"v_permlane32_swap_b32 {v(m)}, {v(t)}", f"v_max_f32 {v(m)}, {v(m)}, {v(t)}"]

def attn_setup(t, tmp):
    r5, hh, cm, u = tmp, tmp + 1, tmp + 2, tmp + 3
    o = lines(f"""v_and_b32 {v(r5)}, 31, {v(V_LANE)}
v_lshrrev_b32 {v(hh)}, 5, {v(V_LANE)}
v_lshlrev_b32 {v(u)}, 2, {v(hh)}
v_sub_u32 {v(cm)}, {v(r5)}, {v(u)}
s_mul_i32 {s(S_T2)}, {s(S_W4)}, {KVH}
s_add_u32 {s(S_T2)}, {s(S_T2)}, {L_KV + t*KVS}
v_add_u32 {v(V_AK)}, {s(S_T2)}, {v(V_L16)}
v_and_b32 {v(u)}, 15, {v(V_LANE)}
v_lshlrev_b32 {v(u)}, 4, {v(u)}
v_lshl_add_u32 {v(u)}, {v(hh)}, 8, {v(u)}
v_mov_b32 {v(hh)}, 0x400
v_cndmask_b32 {v(V_AV0)}, {v(hh)}, {v(u)}, {s(S_LO16,2)}
v_mov_b32 {v(hh)}, 0x200
v_cndmask_b32 {v(V_AV1)}, {v(hh)}, {v(u)}, {s(S_LO16,2)}
v_add_u32 {v(V_AV0)}, {s(S_T2)}, {v(V_AV0)}
v_add_u32 {v(V_AV1)}, {s(S_T2)}, {v(V_AV1)}
v_mov_b32 {v(u)}, 0xffff""")
    o += [f"v_cmp_le_i32 {s(S_MASK+2*q,2)}, {8*(q>>2)+(q&3)}, {v(cm)}" for q in range(16)]
    o += [f"v_cndmask_b32 {v(PM+pq)}, 0, {v(u)}, {s(S_MASK+4*pq,2)}" for pq in range(8)]
    o += [f"v_cndmask_b32 {v(PM+pq)}, {v(PM+pq)}, -1, {s(S_MASK+4*pq+2,2)}" for pq in range(8)]
    return o

def gate_finish(addr, tmp):
    o = [f"ds_read_b32 {v(tmp+t)}, {v(addr)} offset:{128*t}" for t in range(2)]
    for op in ("v_mul_f32 {g}, " + fhex(-math.log2(math.e)) + ", {g}", "v_exp_f32 {g}, {g}", "v_add_f32 {g}, 1.0, {g}", "v_rcp_f32 {o}, {g}"):
        o += [op.format(g=v(tmp+t), o=v(G0+t)) for t in range(2)]
    return o

def o_pack(acc, o0, lreg, fac, dst, f):
    return ([f"v_rcp_f32 {v(f)}, {v(acc+lreg)}"] + fac +
            [f"v_mul_f32 {v(acc+o0+i)}, {v(f)}, {v(acc+o0+i)}" for i in range(8)] +
            [f"v_cvt_pk_bf16_f32 {v(dst+i)}, {v(acc+o0+2*i)}, {v(acc+o0+2*i+1)}" for i in range(4)])
def o_store(br, tt, src, tag):
    return [f"s_lshl_b32 {s(S_T0)}, {s(S_RB)}, 17", f"s_lshl_b32 {s(S_T1)}, {s(S_HEAD)}, 10",
            f"s_add_u32 {s(S_T0)}, {s(S_T0)}, {s(S_T1)}", f"s_add_u32 {s(S_T0)}, {s(S_T0)}, {WS_O + br*65536 + tt*32768}",
            ws_st(v(src,4), V_L16, s(S_T0), 0, tag)]

CMA = 64
def window_attention(R, events):
    P = R.P
    Q = lambda t: v((QA, QA1)[t], 4)
    kfr = lambda u: v(KF+4*(u & 1), 4) if u < 8 else v(KA+4*(u-8), 4)
    vfr = lambda u, m: v(VF+8*(u & 1)+4*m, 4) if u < 8 else v(VA+8*(u-8)+4*m, 4)
    kread = lambda u: [f"ds_read_b128 {kfr(u)}, {v(V_AK)} offset:{u*KVS}"] if u < 8 else []
    vread = lambda u: [f"ds_read_b128 {vfr(u,0)}, {v(V_AV0)} offset:{u*KVS+1024}",
                       f"ds_read_b128 {vfr(u,1)}, {v(V_AV1)} offset:{u*KVS+1536}"] if u < 8 else []
    M = (TMP, TMP + 2)
    acc = lambda t: v(OACC2[t], 16)
    negm = lambda t: v(NEGM+16*t, 16)
    exps = lambda S: [f"v_exp_f32 {v(S+i)}, {v(S+i)}" for i in range(16)]
    cvts = lambda d, S: [f"v_cvt_pk_bf16_f32 {v(d+k)}, {v(S+2*k)}, {v(S+2*k+1)}" for k in range(8)]
    ev = lambda key: events.pop(key)() if key in events else None
    P(mfma(v(SB+16,16), kfr(8), Q(1), negm(1))); P(mfma(v(MG,16), kfr(8), Q(0), negm(0)))
    P("s_barrier")
    R.stamp()
    P.add(kread(0) + kread(1) + vread(0) + vread(1))
    ev("pre")
    e, c = exps(SB+16), cvts(PB+8, SB+16)
    P.add(e[0:4]); P(mfma(v(SB,16), kfr(0), Q(0), negm(0))); P.add(kread(2)); P.add(e[4:8]); P.add(c[0:4])
    P(mfma(v(MG+16,16), kfr(9), Q(1), negm(1))); P.add(e[8:12])
    P(mfma(acc(1), vfr(8,0), v(PB+8,4), "0")); P.add(e[12:16]); P.add(c[4:8])
    pend = [mfma(v(SB+16,16), kfr(1), Q(1), negm(1)), mfma(acc(1), vfr(8,1), v(PB+12,4), acc(1))]
    for t in range(2):
        g = MG + 16*t
        seq = [f"v_cndmask_b32 {v(g+i)}, {v(SB+16*t+i)}, {v(g+i)}, {s(S_MASK+2*i,2)}" for i in range(16)]
        seq += [[mfma(v(SB+16*t,16), kfr(1+t), Q(t), negm(t))] + (kread(3) if t == 0 else [])]
        seq += exps(g) + cvts(PF, g)
        seq += [f"v_and_b32 {v(PB+8*t+i)}, {v(PM+i)}, {v(PF+i)}" for i in range(8)]
        seq += [f"v_xor_b32 {v(g+i)}, {v(PF+i)}, {v(PB+8*t+i)}" for i in range(8)]
        at = (0, 8) if t == 0 else (1, 9, 21, 26)
        for i, x in enumerate(seq):
            P.add(x)
            if i in at: P.add(pend.pop(0))
        pend = [mfma(acc(t), vfr(8+t,0), v(PB+8*t,4), acc(1) if t else "0"), mfma(acc(t), vfr(8+t,1), v(PB+8*t+4,4), acc(t)),
                mfma(acc(t), vfr(t,0), v(g,4), acc(t)), [mfma(acc(t), vfr(t,1), v(g+4,4), acc(t))] + (vread(2) if t == 0 else [])]
    R.stamp()
    if OPT["t2"]: P("s_barrier")
    ev("e1")
    for hs in range(13):
        t = hs & 1; u = (hs >> 1) + 1 + t
        S, Pp = SB + 16*t, PB + 8*t
        e, c = exps(S), cvts(Pp, S)
        nxt = None
        if t == 0 and 0 < hs < 12: nxt = [mfma(v(SB+16,16), kfr(u+1), Q(1), negm(1))]
        if t == 1: nxt = [mfma(v(SB,16), kfr(u), Q(0), negm(0))] + kread(u+2)
        if hs == 0:
            P.add(e[0:2]); P.add(pend[0]); P.add(e[2:5]); P.add(pend[1]); P.add(e[5:8]); P.add(pend[2])
            P.add(c[0:4]); P.add(e[8:10]); P.add(pend[3]); P.add(e[10:14])
            P(mfma(acc(t), vfr(u,0), v(Pp,4), acc(t))); P.add(e[14:16]); P.add(c[4:8])
        else:
            P.add(e[0:2]); P.add(pend); P.add(e[2:6])
            if nxt: P.add(nxt)
            P.add(e[6:8]); P.add(c[0:4]); P.add(e[8:10])
            P(mfma(acc(t), vfr(u,0), v(Pp,4), acc(t)))
            P.add(e[10:16]); P.add(c[4:8])
        pend = [mfma(acc(t), vfr(u,1), v(Pp+4,4), acc(t))] + (vread(u+2) if t == 0 else [])
        ev(hs)
    P.add(pend)
    assert not events, events
    P(f"s_mov_b32 {s(S_T1)}, 0x7b800000")
    for t in (1, 0):
        o, m = OACC2[t], M[t]
        P.add([f"v_add_f32 {v(m)}, abs({v(o)}), abs({v(o+8)})", f"v_add_f32 {v(m+1)}, abs({v(o+1)}), abs({v(o+2)})"] +
              [f"v_add_f32 {v(m+(i&1))}, {v(m+(i&1))}, abs({v(o+i)})" for i in range(3, 8)] + [f"v_add_f32 {v(m)}, {v(m)}, {v(m+1)}"])
    P(f"v_add_f32 {v(M[0])}, {v(M[0])}, {v(M[1])}\nv_cmp_lt_f32 vcc, {v(M[0])}, {s(S_T1)}")
    P("s_cmp_eq_u64 vcc, -1\ns_cbranch_scc0 L_exact0\nL_back:")
    R.stamp()

def slow_path():
    return exact_attention(0) + exact_attention(1) + "    s_branch L_back\n"

def exact_attention(t):
    F = Prog(); q, M, acc = v((QA, QA1)[t], 4), TMP, v(OACC2[t], 16)
    KO, VO, G = TMP + 2, TMP + 3, S_T0
    def tile(rel, kdst, vdst):
        o = [f"s_add_i32 {s(S_K)}, {s(G)}, {rel}", f"s_cmp_ge_i32 {s(S_K)}, 0", f"s_cselect_b64 vcc, -1, 0",
             f"s_cselect_b32 {s(S_TM)}, {hex(ONES)}, 0", f"s_max_i32 {s(S_K)}, {s(S_K)}, 0", f"s_lshl_b32 {s(S_K)}, {s(S_K)}, 11",
             f"s_lshl_b32 {s(S_T1)}, {s(S_HEAD)}, 17", f"s_add_u32 {s(S_K)}, {s(S_K)}, {s(S_T1)}",
             f"v_and_b32 {v(KO)}, 0x200, {v(V_L16)}", f"v_cndmask_b32 {v(KO)}, {v(KO)}, {v(V_L16)}, vcc", ws_ld(v(kdst,4), KO, s(S_K))]
        if vdst is not None:
            o += [f"v_mov_b32 {v(vdst+i)}, {s(S_TM)}" for i in range(8)]
            o += [f"s_cmp_lg_u32 {s(S_TM)}, 0", f"s_cselect_b32 {s(S_K)}, {s(S_K)}, {WS_SIZE}", f"s_mov_b64 exec, {s(S_LO16,2)}",
                  ws_ld(v(vdst,4), VO, s(S_K), 1024), ws_ld(v(vdst+4,4), VO, s(S_K), 1536), "s_mov_b64 exec, -1"]
        return o
    F(f"L_exact{t}:\ns_waitcnt vmcnt(0) lgkmcnt(0)\ns_nop 15")
    F(f"""s_lshl_b32 {s(G)}, {s(S_RB)}, 1
s_sub_u32 {s(G)}, {s(G)}, {8 - t}
v_lshrrev_b32 {v(VO)}, 1, {v(V_L16)}
v_and_b32 {v(VO)}, 0x100, {v(VO)}
v_and_b32 {v(KO)}, 0xf0, {v(V_L16)}
v_or_b32 {v(VO)}, {v(VO)}, {v(KO)}""")
    F.add(tile(8, KF, VF)); F.add(tile(0, KF+4, VF+8))
    F(mfma(v(MG,16), v(KF,4), q, "0")); F(mfma(v(SB,16), v(KF+4,4), q, "0"))
    F.add([f"v_cndmask_b32 {v(MG+i)}, {v(SB+i)}, {v(MG+i)}, {s(S_MASK+2*i,2)}" for i in range(16)])
    F.add(max_tree(M, range(MG, MG+16)))
    F(f"s_mov_b32 {s(S_TM+1)}, 7\nL_exact_m{t}:\ns_add_u32 {s(G)}, {s(G)}, 1")
    F.add(tile(0, KF, None))
    F(mfma(v(SB,16), v(KF,4), q, "0"))
    F.add(max_tree(M, range(SB, SB+16), init=True))
    F(f"s_sub_u32 {s(S_TM+1)}, {s(S_TM+1)}, 1\ns_cmp_lg_u32 {s(S_TM+1)}, 0\ns_cbranch_scc1 L_exact_m{t}")
    F.add(cross_max(M, M+1))
    F.add([f"v_sub_f32 {v(MG+i)}, {v(MG+i)}, {v(M)}" for i in range(16)])
    F.add([f"v_exp_f32 {v(MG+i)}, {v(MG+i)}" for i in range(16)])
    F.add([f"v_cvt_pk_bf16_f32 {v(PF+i)}, {v(MG+2*i)}, {v(MG+2*i+1)}" for i in range(8)])
    F.add([f"v_and_b32 {v(PB+i)}, {v(PM+i)}, {v(PF+i)}" for i in range(8)])
    F.add([f"v_xor_b32 {v(PF+i)}, {v(PF+i)}, {v(PB+i)}" for i in range(8)])
    F(mfma(acc, v(VF,4), v(PB,4), "0")); F(mfma(acc, v(VF+4,4), v(PB+4,4), acc))
    F(mfma(acc, v(VF+8,4), v(PF,4), acc)); F(mfma(acc, v(VF+12,4), v(PF+4,4), acc))
    F(f"s_sub_u32 {s(G)}, {s(G)}, 7\ns_mov_b32 {s(S_TM+1)}, 7\ns_nop 15\nL_exact_e{t}:\ns_add_u32 {s(G)}, {s(G)}, 1")
    F.add(tile(0, KF, VF))
    F(mfma(v(SB,16), v(KF,4), q, "0"))
    F.add([f"v_sub_f32 {v(SB+i)}, {v(SB+i)}, {v(M)}" for i in range(16)])
    F.add([f"v_exp_f32 {v(SB+i)}, {v(SB+i)}" for i in range(16)])
    F.add([f"v_cvt_pk_bf16_f32 {v(PB+i)}, {v(SB+2*i)}, {v(SB+2*i+1)}" for i in range(8)])
    F(mfma(acc, v(VF,4), v(PB,4), acc)); F(mfma(acc, v(VF+4,4), v(PB+4,4), acc))
    F(f"s_nop 15\ns_sub_u32 {s(S_TM+1)}, {s(S_TM+1)}, 1\ns_cmp_lg_u32 {s(S_TM+1)}, 0\ns_cbranch_scc1 L_exact_e{t}")
    return finalize(F)

E = Prog()
hg_code = {0: f"s_lshl1_add_u32 {s(S_HG)}, {s(S_T1)}, {s(S_K)}", 1: f"s_lshl2_add_u32 {s(S_HG)}, {s(S_K)}, {s(S_T1)}",
           2: f"s_and_b32 {s(S_HG)}, {s(S_T1)}, 2\ns_add_u32 {s(S_HG)}, {s(S_HG)}, {s(S_K)}\ns_and_b32 {s(S_T1)}, {s(S_T1)}, 1\ns_lshl1_add_u32 {s(S_HG)}, {s(S_HG)}, {s(S_T1)}",
           3: f"s_mul_i32 {s(S_K)}, {s(S_K)}, 3\ns_lshl1_add_u32 {s(S_HG)}, {s(S_T1)}, {s(S_K)}\ns_and_b32 {s(S_HG)}, {s(S_HG)}, 7",
           4: f"s_mul_i32 {s(S_K)}, {s(S_K)}, 5\ns_lshl1_add_u32 {s(S_HG)}, {s(S_T1)}, {s(S_K)}\ns_and_b32 {s(S_HG)}, {s(S_HG)}, 7"}[OPT["hgmap"]]
assert OPT["xmap"] == 3
hb = {4: 2, 3: 1, 2: 0, 1: 3}[OPT["xmap"]]
if OPT["stamps"] or OPT["amp"] >= 0:
    E("s_memtime s[64:65]\ns_memrealtime s[66:67]")
def entry_stamp():
    if OPT["stamps"]:
        return [f"v_mov_b32 {v(V_STAMP)}, 0", f"v_writelane_b32 {v(V_STAMP)}, s64, 0", f"v_writelane_b32 {v(V_STAMP)}, s66, 62"]
    if OPT["amp"] >= 0:
        return [f"v_mov_b32 {v(V_STAMP)}, 0", f"v_writelane_b32 {v(V_STAMP)}, {'s64' if OPT['ampclk'] else 's66'}, 0"]
    return []
code_pf = f"""s_getpc_b64 {s(S_T2,2)}
L_pc:
s_lshl2_add_u32 {s(S_T1)}, {s(S_T0)}, {s(S_W4)}
s_and_b32 {s(S_T1)}, {s(S_T1)}, 63
s_lshl_b32 {s(S_T1)}, {s(S_T1)}, 9
s_sub_u32 {s(S_T2)}, {s(S_T2)}, L_pc-{NAME}_kernel
s_subb_u32 {s(S_T3)}, {s(S_T3)}, 0
v_and_b32 v5, 3, {v(V_LANE)}
v_lshl_add_u32 v5, v5, 7, {s(S_T1)}
global_load_dword v13, v5, {s(S_T2,2)}"""
if OPT["cpf"] == 2:
    E(f"""s_getpc_b64 {s(S_T2,2)}
s_bfe_u32 {s(S_T1)}, s2, 0x50003
v_lshrrev_b32 v5, 6, v0
v_lshlrev_b32 v5, 7, v5
v_lshl_add_u32 v5, {s(S_T1)}, 10, v5
global_load_dword v13, v5, {s(S_T2,2)}""")
if OPT["cpf"] == 3:
    E(f"""s_getpc_b64 {s(S_T2,2)}
s_bfe_u32 {s(S_T1)}, s2, 0x30003
v_lshrrev_b32 v5, 4, v0
v_lshlrev_b32 v5, 7, v5
v_lshl_add_u32 v5, {s(S_T1)}, 12, v5
global_load_dword v13, v5, {s(S_T2,2)}""")
E(f"""
s_cmp_ge_u32 s2, 256
s_cbranch_scc1 L_end
s_load_dwordx16 s[4:19], s[0:1], 0
s_load_dwordx4 s[20:23], s[0:1], 64
v_lshrrev_b32 v4, 6, v0
v_and_b32 {v(V_LANE)}, 63, v0
s_lshr_b32 {s(S_T0)}, s2, 3
v_readfirstlane_b32 {s(S_MX)}, v4
""")
E(f"""
s_and_b32 {s(S_T1)}, s2, {(8 >> hb) - 1}
s_and_b32 {s(S_K)}, {s(S_T0)}, {(1 << hb) - 1}
{hg_code}
s_bfe_u32 {s(S_K)}, s2, {hex((hb << 16) | (3 - hb))}
s_lshl_b32 {s(S_RB)}, {s(S_K)}, {5 - hb}
s_lshr_b32 {s(S_ROT)}, {s(S_T0)}, {hb}
s_add_u32 {s(S_RB)}, {s(S_RB)}, {s(S_ROT)}
s_and_b32 {s(S_W4)}, {s(S_MX)}, 3
""")
if OPT["cpf"] == 1:
    E(f"""s_cmp_lt_u32 {s(S_MX)}, 4
s_cbranch_scc0 L_hrole""")
    E(code_pf)
    E("s_branch L_crole\nL_hrole:")
elif OPT["cpf"] >= 4:
    E(f"""s_cmp_lt_u32 {s(S_MX)}, 4
s_cbranch_scc0 L_hrole
s_getpc_b64 {s(S_T2,2)}
L_pc:
s_lshl2_add_u32 {s(S_T1)}, {s(S_T0)}, {s(S_W4)}
s_lshl_b32 {s(S_T1)}, {s(S_T1)}, 8
s_sub_u32 {s(S_T2)}, {s(S_T2)}, L_pc-{NAME}_kernel
s_subb_u32 {s(S_T3)}, {s(S_T3)}, 0
s_load_dword s70, {s(S_T2,2)}, {s(S_T1)}
s_add_u32 {s(S_T1)}, {s(S_T1)}, 128
s_load_dword s71, {s(S_T2,2)}, {s(S_T1)}""")
    if OPT["cpf"] == 5:
        E("s_waitcnt lgkmcnt(0)")
        for i, ptr in enumerate((6, 12, 4, 16, 20, 8, 14, 18, 22)):
            E(f"s_load_dword s{72+i}, {s(ptr,2)}, 0")
        for i in range(1, 5):
            E(f"s_mov_b32 {s(S_T1)}, {i << 21}\ns_load_dword s{80+i}, s[22:23], {s(S_T1)}")
    E("s_branch L_crole\nL_hrole:")
else:
    E(f"s_cmp_lt_u32 {s(S_MX)}, 4\ns_cbranch_scc1 L_crole")
late_ids = lines(f"""
s_lshr_b32 {s(S_T0)}, s2, 3
s_and_b32 {s(S_RB3)}, s2, 7
s_lshl_b32 {s(S_RB3)}, {s(S_RB3)}, 2
s_lshr_b32 {s(S_T1)}, {s(S_T0)}, 3
s_add_u32 {s(S_RB3)}, {s(S_RB3)}, {s(S_T1)}
s_and_b32 {s(S_CB)}, {s(S_T0)}, 7
s_lshl_b32 {s(S_HEAD)}, {s(S_HG)}, 2
s_add_u32 {s(S_HEAD)}, {s(S_HEAD)}, {s(S_W4)}
s_mov_b32 {s(S_LO16)}, 0xffff
s_mov_b32 {s(S_LO16+1)}, 0xffff
v_lshlrev_b32 {v(V_L16)}, 4, {v(V_LANE)}
""")
rot_code = {
 0: f"s_and_b32 {s(S_ROT)}, {s(S_ROT)}, {OPT['rotmask']}",
 1: f"s_and_b32 {s(S_ROT)}, s2, 7",
 4: f"s_add_u32 {s(S_ROT)}, {s(S_ROT)}, {s(S_HG)}\ns_and_b32 {s(S_ROT)}, {s(S_ROT)}, 7",
 5: f"s_add_u32 {s(S_ROT)}, {s(S_ROT)}, {s(S_HG)}\ns_and_b32 {s(S_ROT)}, {s(S_ROT)}, 3\ns_lshl_b32 {s(S_ROT)}, {s(S_ROT)}, 1",
 6: f"s_add_u32 {s(S_ROT)}, {s(S_ROT)}, {s(S_HG)}\ns_and_b32 {s(S_ROT)}, {s(S_ROT)}, 1\ns_lshl_b32 {s(S_ROT)}, {s(S_ROT)}, 2",
}[OPT["rotmode"]]

def stage_of(n): return n if n < 16 else 16 + ((n - 16) >> 1)
def first_of_stage(n): return n < 32 and (n == 0 or stage_of(n) != stage_of(n - 1))
def mfma16(d, a, b, c): return f"v_mfma_f32_16x16x32_bf16 {d}, {a}, {b}, {c}"

H = Role("H"); P = H.P
VX, VW1, VW2 = 160, 162, 166
V_AXW, V_AG, V_GPW, GACC, XW, GF = 170, 171, 172, 174, 176, 184
i3, i4, p7, t0, t1, t2 = 32, 33, 34, 35, 36, 37
def raw(i):
    if OPT["fine"] == 3: P(f"s_memtime s[{68+2*i}:{69+2*i}]")
raw(0)
P(rot_code)
P(f"""
v_lshrrev_b32 {v(i3)}, 3, {v(V_LANE)}
v_lshrrev_b32 {v(i4)}, 4, {v(V_LANE)}
v_and_b32 {v(p7)}, 7, {v(V_LANE)}
s_lshl_b32 {s(S_T0)}, {s(S_W4)}, 4
v_add_u32 {v(t0)}, {s(S_T0)}, {v(i3)}
v_lshlrev_b32 {v(t0)}, 10, {v(t0)}
v_xor_b32 {v(t1)}, {v(p7)}, {v(i4)}
v_lshl_add_u32 {v(VX)}, {v(t1)}, 4, {v(t0)}
v_xor_b32 {v(VX+1)}, 64, {v(VX)}
v_add_u32 {v(VX+1)}, {0x2000 - 1024}, {v(VX+1)}
s_lshr_b32 {s(S_T0)}, {s(S_W4)}, 1
s_and_b32 {s(S_T1)}, {s(S_W4)}, 1
s_lshl_b32 {s(S_K)}, {s(S_T0)}, 4
v_add_u32 {v(t0)}, {s(S_K)}, {v(i4)}
v_mul_u32_u24 {v(t0)}, 0xc00, {v(t0)}
v_lshlrev_b32 {v(t1)}, 1, {v(i4)}
v_xor_b32 {v(t1)}, {v(t1)}, {v(p7)}
v_lshl_add_u32 {v(t0)}, {v(t1)}, 4, {v(t0)}
v_and_b32 {v(t1)}, 1, {v(i3)}
v_xor_b32 {v(t1)}, {s(S_T1)}, {v(t1)}
v_lshlrev_b32 {v(t1)}, 10, {v(t1)}
s_lshl_b32 {s(S_T2)}, {s(S_HG)}, 7
s_add_u32 {s(S_K)}, {s(S_T2)}, 1024
v_add3_u32 {v(VW1)}, {v(t0)}, {v(t1)}, {s(S_K)}
v_add_u32 {v(VW1+1)}, {12288 - 1024}, {v(VW1)}
v_xor_b32 {v(t1)}, 0x400, {v(t1)}
v_add3_u32 {v(VW1+2)}, {v(t0)}, {v(t1)}, {s(S_K)}
v_add_u32 {v(VW1+3)}, {3*(12288 - 1024)}, {v(VW1+2)}
v_add_u32 {v(VW1+2)}, {2*(12288 - 1024)}, {v(VW1+2)}
s_lshl_b32 {s(S_MW)}, {s(S_T1)}, 13
s_lshl_b32 {s(S_K)}, {s(S_T0)}, 12
s_add_u32 {s(S_MW)}, {s(S_MW)}, {s(S_K)}
s_lshl_b32 {s(S_MX)}, {s(S_W4)}, 11
s_add_u32 {s(S_MX)}, {s(S_MX)}, {L_X}""")
raw(1)
P("s_waitcnt lgkmcnt(0)")
if OPT["wsoff"]: P(f"s_add_u32 s22, s22, {OPT['wsoff'] << 20}\ns_addc_u32 s23, s23, 0")
raw(2)
P.add(entry_stamp())
P.add(srd(S_X, 4, 2097152))
P(f"""s_cmp_eq_u32 {s(S_T1)}, 0
s_cselect_b32 {s(S_W)}, s6, s12
s_cselect_b32 {s(S_W+1)}, s7, s13
s_mov_b32 {s(S_W+2)}, 1572864
s_mov_b32 {s(S_W+3)}, 0x20000""")
if OPT["fine"] != 3: H.stamp()
def dma(voff, rsrc, soff, imm, tag, flags=""):
    flags = flags or ("", " sc1", " nt", " sc0", " sc0 sc1")[OPT["dfl"]]
    return Ins(f"buffer_load_dwordx4 {v(voff)}, {s(rsrc,4)}, {soff} offen{' offset:%d' % imm if imm else ''}{flags} lds", tag)
def x_dma(j):
    return [f"s_add_u32 {s(S_K)}, {s(S_ROT)}, {j}", f"s_and_b32 {s(S_K)}, {s(S_K)}, 7", f"s_lshl_b32 {s(S_K)}, {s(S_K)}, 7",
            f"s_lshl_b32 {s(S_T2)}, {s(S_RB)}, 16", f"s_add_u32 m0, {s(S_MX)}, {j*8192}", f"s_add_u32 {s(S_K)}, {s(S_K)}, {s(S_T2)}",
            dma(VX, S_X, s(S_K), 0, f"x{j}"), dma(VX+1, S_X, s(S_K), 1024, f"x{j}")]
def w_dma(S):
    if S < 16:
        o = [f"s_lshl_b32 {s(S_T3)}, {s(S_ROT)}, 1", f"s_add_u32 {s(S_T3)}, {s(S_T3)}, {S}", f"s_and_b32 {s(S_T3)}, {s(S_T3)}, 15"]
    else:
        o = [f"s_add_u32 {s(S_T3)}, {s(S_ROT)}, {S-16}", f"s_and_b32 {s(S_T3)}, {s(S_T3)}, 7"]
    o += [f"s_add_u32 m0, {s(S_MW)}, {(S % NSLOT)*SLOT}", f"s_mul_i32 {s(S_T3)}, {s(S_T3)}, {(32 if S < 16 else 64)*3072}"]
    return o + [dma((VW1 if S < 16 else VW2) + t, S_W, s(S_T3), t*1024, f"w{S}") for t in range(4)]
P.add(x_dma(0)); raw(3)
P.add(w_dma(0)); raw(4)
P.add(w_dma(1)); raw(5)
P(f"""s_lshl_b32 {s(S_K)}, {s(S_ROT)}, 3
v_add_u32 {v(t2)}, {s(S_K)}, {v(V_LANE)}
v_and_b32 {v(t2)}, 63, {v(t2)}
v_lshlrev_b32 {v(t2)}, 4, {v(t2)}""")
P.add(srd(S_G, 16, 1024)); P(f"s_mov_b32 m0, {L_G}"); P.add(dma(t2, S_G, "0", 0, "w1"))
P.add(late_ids)
h_misc = lines(f"""
s_lshr_b32 {s(S_T0)}, {s(S_W4)}, 1
s_and_b32 {s(S_T1)}, {s(S_W4)}, 1
s_lshl_b32 {s(S_T0)}, {s(S_T0)}, 5
v_add_u32 {v(t0)}, {s(S_T0)}, {v(i3)}
v_mul_u32_u24 {v(t0)}, 0xc00, {v(t0)}
v_and_b32 {v(t1)}, 1, {v(i4)}
v_lshlrev_b32 {v(t1)}, 1, {v(t1)}
v_xor_b32 {v(t1)}, {v(t1)}, {v(p7)}
v_lshlrev_b32 {v(t1)}, 4, {v(t1)}
s_lshl_b32 {s(S_T0)}, {s(S_HG)}, 7
v_add3_u32 {v(VW2)}, {v(t0)}, {v(t1)}, {s(S_T0)}
v_xor_b32 {v(t1)}, 64, {v(t1)}
v_add3_u32 {v(VW2+1)}, {v(t0)}, {v(t1)}, {s(S_T0)}
v_add_u32 {v(VW2+2)}, {2*(24576 - 1024)}, {v(VW2)}
v_add_u32 {v(VW2+3)}, {3*(24576 - 1024)}, {v(VW2+1)}
v_add_u32 {v(VW2+1)}, {24576 - 1024}, {v(VW2+1)}
""") + srd(S_WS, 22, WS_SIZE) + srd(S_DBG, 20, 256)
P.add(h_misc)
if OPT["fine"] == 3:
    raw(6); P("s_waitcnt vmcnt(9)"); raw(7); P("s_waitcnt vmcnt(5)"); raw(8); P("s_waitcnt lgkmcnt(0)")
    for i in range(9):
        P(f"v_writelane_b32 {v(V_STAMP)}, s{68+2*i}, {i+1}")
    H.ns = 9
VWO, VKF, V1A, V1D, V_MB, V_HB = 160, 161, 162, 164, 12, 13
txt_of = lambda x: x.text if isinstance(x, Ins) else x
special_txt = []
def gather(tiles, special):
    o = []
    if 1 in tiles:
        o += [f"s_lshl_b32 {s(S_K)}, {s(S_HEAD)}, 17", f"s_lshl_b32 {s(S_T1)}, {s(S_RB)}, 12",
              f"s_add_u32 {s(S_T2)}, {s(S_K)}, {s(S_T1)}", f"s_sub_u32 {s(S_T2)}, {s(S_T2)}, {8*2048}"]
    for u in tiles:
        tag = "kv" if u < 4 or not OPT["t2"] else "kvb"
        o += [f"s_add_u32 {s(S_T0)}, {s(S_T2)}, {u*2048}", f"s_add_u32 m0, {s(S_MW)}, {u*KVS}"]
        if special:
            o += [f"s_cmp_ge_u32 {s(S_RB)}, {(8-u+1)//2}", f"s_cbranch_scc1 L_gk{u}",
                  dma(VKF, S_WS, s(S_K), 0, None, " sc1"), f"s_mov_b32 {s(S_T0)}, {WS_SIZE}", f"s_branch L_gk{u}e", f"L_gk{u}:",
                  dma(V_L16, S_WS, s(S_T0), 0, None, " sc1"), f"L_gk{u}e:"]
        else:
            o += [dma(V_L16, S_WS, s(S_T0), 0, tag, " sc1")]
        o += [dma(V_L16, S_WS, s(S_T0), 1024, tag, " sc1")]
    return o
def emit_gather(n, tiles):
    P(f"s_cmp_lt_u32 {s(S_RB)}, 4\ns_cbranch_scc1 L_gspecial{n}")
    P.add(gather(tiles, False)); P(f"L_gdone{n}:")
    special_txt.append(f"L_gspecial{n}:\n" + "\n".join(("" if txt_of(x).endswith(":") else "    ") + txt_of(x) for x in gather(tiles, True))
                       + f"\n    s_branch L_gdone{n}\n")
S_R3, S_WB, S_MA, S_MB = 24, 25, 30, 31
B0, B1, A0, A1, A2, A3, VOG, EXW, EXR, VOUT = 16, 17, 24, 25, 26, 27, 18, 20, 23, 19
ACC3, OFB, OFA, WBF = 32, 96, 192, 176
issued_w, issued_x = 2, 1

for S in range(25):
    if S < 24:
        P.add(WaitTag(f"w{S}", f"x{S >> 1}" if S < 16 else "none"))
    if S < 20: P.add(WaitLds())
    P("s_barrier")
    if OPT["fine"] in (1, 2, 3) or S in (0, 16, 24): H.stamp()
    mark = len(P.items)
    top = {0: 3}.get(S, S + 4)
    if S in (14, 15, 16) and OPT["hold"]: top = min(top, 20 - OPT["hold"])
    while issued_w <= min(top, 23):
        if issued_w < 16 and issued_w % 2 == 0 and issued_x <= issued_w // 2:
            P.add(x_dma(issued_x)); issued_x += 1
        P.add(w_dma(issued_w)); issued_w += 1
    if OPT["icpf"] and S == 1:
        t = (f"    s_getpc_b64 s[78:79]\nL_pc:\n    s_sub_u32 s78, s78, L_pc-{NAME}_kernel\n    s_subb_u32 s79, s79, 0\n    s_lshr_b32 {s(S_T1)}, s2, 3\n"
             f"    s_lshl2_add_u32 {s(S_T1)}, {s(S_T1)}, {s(S_W4)}\n    s_lshl_b32 {s(S_T1)}, {s(S_T1)}, 8\n")
        t += "".join(f"    s_load_dword s{80+i}, s[78:79], {s(S_T1)} offset:{i*64}\n" for i in range(4))
        P.add(Raw(t))
    if OPT["tlb"] and S in (3, 4, 5, 6):
        for i, (ptr, off) in enumerate({3: ((22, 0), (22, 1)), 4: ((22, 2), (22, 4)), 5: ((22, 3), (20, 0)), 6: ((18, 0),)}[S]):
            P.add(Raw(f"    s_mov_b32 {s(S_T1)}, {off << 21}\n    s_load_dword s{70+i}, {s(ptr,2)}, {s(S_T1)}"))
    if OPT["wopf"] and S in (8, 9, 10, 11):
        ptr, half = (14, 8)[(S - 8) >> 1], S & 1
        t = f"    s_lshl2_add_u32 {s(S_T1)}, s2, {s(S_W4)}\n    s_lshl_b32 {s(S_T1)}, {s(S_T1)}, 9\n"
        t += "".join(f"    s_load_dword s{73+i}, {s(ptr,2)}, {s(S_T1)} offset:{half*256+i*64}\n" for i in range(4))
        P.add(Raw(t))
    if S == 8: P(ep_load)
    if S == 14:
        P(f"""v_lshrrev_b32 v48, 5, {v(V_LANE)}
v_bfe_u32 v49, {v(V_LANE)}, 2, 2
v_lshl_add_u32 v48, v48, 2, v49
v_and_b32 v49, 2, v49
v_bfe_u32 v50, {v(V_LANE)}, 4, 1
v_xor_b32 v49, v49, v50
s_and_b32 {s(S_T1)}, {s(S_W4)}, 2
v_xor_b32 v49, {s(S_T1)}, v49
v_lshlrev_b32 v49, 5, v49
v_lshl_add_u32 v48, v48, 7, v49
v_and_b32 v49, 3, {v(V_LANE)}
v_lshl_add_u32 v48, v49, 3, v48
s_lshl_b32 {s(S_MX)}, {s(S_W4)}, 14
s_lshl_b32 {s(S_T0)}, {s(S_T1)}, 14
v_add_u32 {v(B0)}, {s(S_T0)}, v48
v_xor_b32 {v(B1)}, 64, {v(B0)}
v_xor_b32 v49, 64, v48
s_mul_i32 {s(S_T0)}, {s(S_T1)}, 6144
s_add_u32 {s(S_T0)}, {s(S_T0)}, {L_WA}
v_add_u32 {v(A0)}, {s(S_T0)}, v48
v_add_u32 {v(A1)}, {s(S_T0)}, v49
s_mul_i32 {s(S_T0)}, {s(S_T1)}, 10240
s_add_u32 {s(S_T0)}, {s(S_T0)}, {L_KV}
v_add_u32 {v(A2)}, {s(S_T0)}, v48
v_add_u32 {v(A3)}, {s(S_T0)}, v49
""")
    if S == 15:
        P(f"""s_lshl_b32 {s(S_T0)}, {s(S_W4)}, 12
v_add_u32 {v(EXR)}, {s(S_T0)}, {v(V_L16)}
v_xor_b32 {v(EXW)}, 0x2000, {v(EXR)}
v_and_b32 {v(VOUT)}, 31, {v(V_LANE)}
v_lshlrev_b32 {v(VOUT)}, 10, {v(VOUT)}
v_lshrrev_b32 v48, 5, {v(V_LANE)}
v_lshl_add_u32 {v(VOUT)}, v48, 4, {v(VOUT)}
s_and_b32 {s(S_T2)}, {s(S_W4)}, 1
s_lshl_b32 {s(S_T2)}, {s(S_T2)}, 15
s_lshl_b32 {s(S_T0)}, {s(S_RB3)}, 16
s_add_u32 {s(S_T0)}, {s(S_T0)}, {s(S_T2)}
s_lshl_b32 {s(S_T1)}, {s(S_CB)}, 7
s_add_u32 {s(S_T0)}, {s(S_T0)}, {s(S_T1)}
s_and_b32 {s(S_T1)}, {s(S_W4)}, 2
s_lshl_b32 {s(S_T1)}, {s(S_T1)}, 5
s_add_u32 {s(S_T0)}, {s(S_T0)}, {s(S_T1)}
v_add_u32 {v(VOUT)}, {s(S_T0)}, {v(VOUT)}
s_lshl_b32 {s(S_T0)}, {s(S_RB3)}, 17
s_add_u32 {s(S_T0)}, {s(S_T0)}, {s(S_T2)}
s_lshl_b32 {s(S_T1)}, {s(S_T1)}, 8
s_add_u32 {s(S_T0)}, {s(S_T0)}, {s(S_T1)}
s_add_u32 {s(S_T0)}, {s(S_T0)}, {WS_O}
v_add_u32 {v(VOG)}, {s(S_T0)}, {v(V_L16)}
s_lshl_b32 {s(S_WB)}, {s(S_W4)}, 17
s_lshl_b32 {s(S_T1)}, {s(S_CB)}, 7
s_add_u32 {s(S_WB)}, {s(S_WB)}, {s(S_T1)}
s_lshl3_add_u32 {s(S_R3)}, {s(S_RB3)}, {s(S_CB)}
s_and_b32 {s(S_T1)}, {s(S_W4)}, 2
s_lshl2_add_u32 {s(S_R3)}, {s(S_R3)}, {s(S_T1)}
s_lshl_b32 {s(S_R3)}, {s(S_R3)}, 6""")
    if S == OPT["kvs"]:
        tail = P.items[mark:]; del P.items[mark:]
        P.add(flag_store("none", "kv")); P.items += tail
    if S == 16:
        P("s_waitcnt lgkmcnt(0)")
        H.poll(f"v_cmp_ne_u64 vcc, 0, {v(EP,2)}", ep_load)
        P(f"v_readfirstlane_b32 {s(S_EP)}, {v(EP)}\nv_readfirstlane_b32 {s(S_EP+1)}, {v(EP+1)}")
    if S == 19:
        P.add(srd(S_WOA, 8, 524288) + srd(S_WOB, 14, 524288) + srd(S_OUT, 18, 2097152))
    if S == 20:
        P(f"""v_lshrrev_b32 v48, 3, {v(V_LANE)}
v_bfe_u32 v49, {v(V_LANE)}, 4, 1
v_lshlrev_b32 v49, 2, v49
v_and_b32 v50, 7, {v(V_LANE)}
v_xor_b32 v49, v49, v50
v_lshlrev_b32 v49, 4, v49
v_lshl_add_u32 {v(VWO)}, v48, 10, v49
v_and_b32 {v(VKF)}, 32, {v(V_LANE)}
v_lshlrev_b32 {v(VKF)}, 4, {v(VKF)}
v_mul_u32_u24 {v(V1A)}, {KVS}, v50
s_mul_i32 {s(S_MW)}, {s(S_W4)}, {KVH}
s_add_u32 {s(S_MW)}, {s(S_MW)}, {L_KV}
s_add_u32 {s(S_T0)}, {s(S_MW)}, 2048
v_add_u32 {v(V1A)}, {s(S_T0)}, {v(V1A)}
s_lshl_b32 {s(S_T0)}, {s(S_RB)}, 1
v_add_u32 v48, {s(S_T0)}, v50
v_cmp_le_u32 vcc, 8, v48
v_mov_b32 v49, {hex(ONES)}
v_cndmask_b32 {v(V1D)}, 0, v49, vcc
v_mov_b32 {v(V1D+1)}, {v(V1D)}
v_mov_b32 {v(V1D+2)}, {v(V1D)}
v_mov_b32 {v(V1D+3)}, {v(V1D)}
s_mul_i32 {s(S_MA)}, {s(S_W4)}, 6144
s_add_u32 {s(S_MA)}, {s(S_MA)}, {L_WA}
s_mul_i32 {s(S_MB)}, {s(S_W4)}, 10240
s_add_u32 {s(S_MB)}, {s(S_MB)}, {L_KV - 6144}
s_lshl_b32 {s(S_K)}, {s(S_HEAD)}, 5
s_add_u32 {s(S_K)}, {s(S_K)}, {s(S_RB)}
s_lshl_b32 {s(S_K)}, {s(S_K)}, 6
s_add_u32 {s(S_K)}, {s(S_K)}, {WS_FKV}""")
    if S == OPT["gat"] - 1 - OPT["pasy"]:
        H.spoll_issue(4, S_K)
    if S == OPT["gat"] - 1:
        H.spoll(4, S_K, ignore_from=S_RB)
        H.stamp()
    if S == OPT["sents"]:
        P.add([f"v_mov_b32 {v(172+i)}, -1" for i in range(4)])
        P.add(o_store(0, 1, 172, "sent")); P.add(o_store(0, 0, 172, "sent"))
    if S == 23:
        P(f"ds_write_b128 {v(V1A)}, {v(V1D,4)}")
    if S == 24: P.add(Pace(OPT["pace0"]))
    if S == OPT["gat"] + OPT["gdel"]:
        emit_gather(0, (0, 1, 2, 3))
if OPT["p1only"]:
    H.finish()
fs = lambda: H.stamp() if OPT["fine"] == 4 else None
P(f"s_setprio {OPT['hprio']}")
emit_gather(1, (4, 5, 6, 7))
def wo_dma(br):
    o = []
    for t in range(16):
        base = S_MX if br else (S_MA if t < 6 else S_MB)
        g = [f"s_add_u32 m0, {s(base)}, {t*1024}", f"s_add_u32 {s(S_T3)}, {s(S_WB)}, {t*8192}"]
        o.append(g + [dma(VWO, S_WOB if br else S_WOA, s(S_T3), 0, "wob" if br else ("woa" if t < 6 else "woc"))])
    return o
woa, wob = wo_dma(0), wo_dma(1)
P.add(wob[:OPT["wb0"]])
P.add(WaitTag("kv")); P.add(WaitLds()); P("s_barrier")
H.stamp()
if OPT["t2"]: P.add(WaitTag("kvb")); P("s_barrier")
P.add(Pace(OPT["pace"]))
rest = wob[OPT["wb0"]:] + woa[:6]
if OPT["zbar"]:
    P.add(rest[:OPT["wz"]]); rest = rest[OPT["wz"]:]
    P("s_barrier"); fs(); P.add(flag_store("sent", "ob"))
P.add(rest)
fs()
def o_gather(br):
    o = []
    for hs in range(16):
        if hs % 4 == 0: o += [f"s_mov_b32 {s(S_T1)}, {br*65536 + hs*1024}"]
        o += [ws_ld(v((OFA, OFB)[br]+4*hs,4), VOG, s(S_T1), (hs & 3)*1024)]
    return o
def wo_read(dst, hs, br):
    h, j = hs >> 3, hs & 7
    base, off = ((B0, B1), hs*2048) if br else (((A0, A1), h*6144 + j*2048) if j < 3 else ((A2, A3), h*10240 + (j-3)*2048))
    return [f"ds_read_b64_tr_b16 {v(dst+4*ct+2*q,2)}, {v(base[ct])} offset:{off+q*1024}" for ct in range(2) for q in range(2)]
FIN = ACC3 + 32
def p3(Q, br, hook=lambda hs: None):
    Q.add(wo_read(WBF, 0, br))
    for hs in range(16):
        b = hs & 1
        rd = wo_read(WBF + 8*(1-b), hs + 1, br) if hs < 15 else []
        for ct in ((0, 1) if hs < 15 else (1, 0)):
            acc = v((FIN, ACC3)[br]+16*ct, 16)
            c = acc if hs else ("0" if br else v(ACC3+16*ct, 16))
            Q(mfma(acc, v(WBF+8*b+4*ct,4), v((OFA, OFB)[br]+4*hs,4), c))
            Q.add(rd[2*ct:2*ct+2])
        hook(hs)
def sentinel_scan(hs):
    base = OFA + 4*hs
    first = [f"v_max3_u32 {v(TMP)}, {v(base)}, {v(base+1)}, {v(base+1)}"] if hs == 0 else [f"v_max3_u32 {v(TMP)}, {v(TMP)}, {v(base)}, {v(base+1)}"]
    return first + [f"v_max3_u32 {v(TMP)}, {v(TMP)}, {v(base+2)}, {v(base+3)}"]
P(f"s_add_u32 {s(S_K)}, {s(S_R3)}, {WS_FOB}")
P.add(WaitTag("wob")); P("s_barrier"); fs()
if not OPT["zbar"]: P.add(flag_store("sent", "ob"))
P.add(woa[6:11]); H.spoll_issue(16, S_K); P.add(woa[11:]); fs()
H.spoll(16, S_K); H.stamp()
P.add(o_gather(1)); fs()
P(f"s_setprio {OPT['p3prio']}")
p3(P, 1)
H.stamp()
P.add(WaitTag("woa", "woc")); P("s_barrier"); fs()
P.add(o_gather(0))
test = [f"v_cmp_ne_u32 vcc, -1, {v(TMP)}", "s_cmp_eq_u64 vcc, -1"]
p3(P, 0, lambda hs: P.add(sentinel_scan(hs)))
P.add(test); P("s_cbranch_scc0 L_retry\nL_ok:")
Q = Prog()
Q(f"L_retry:\ns_mov_b32 {s(S_SPIN)}, 0x20000\ns_nop 15\nL_again:"); Q.add(o_gather(0))
Q(f"s_sub_u32 {s(S_SPIN)}, {s(S_SPIN)}, 1\ns_waitcnt vmcnt(0)\ns_cbranch_scc1 L_redo")
for hs in range(16): Q.add(sentinel_scan(hs))
Q.add(test); Q("s_cbranch_scc0 L_again\nL_redo:")
p3(Q, 0); Q("s_nop 15\ns_branch L_ok")
retry_txt = [finalize(Q)]
H.stamp()
P.add([f"ds_write_b128 {v(EXW)}, {v(FIN+16+4*q,4)} offset:{q*1024}" for q in range(4)])
P.add(WaitLds()); P("s_barrier")
P.add([f"ds_read_b128 {v(OFB+4*q,4)}, {v(EXR)} offset:{q*1024}" for q in range(4)])
for hf in range(2):
    P.add([f"v_pk_add_f32 {v(FIN+8*hf+2*i,2)}, {v(FIN+8*hf+2*i,2)}, {v(OFB+8*hf+2*i,2)}" for i in range(4)])
    P.add([f"v_cvt_pk_bf16_f32 {v(WBF+4*hf+i)}, {v(FIN+8*hf+2*i)}, {v(FIN+8*hf+2*i+1)}" for i in (0, 2, 1, 3)])
    P(f"v_permlane32_swap_b32 {v(WBF+4*hf)}, {v(WBF+4*hf+2)}\nv_permlane32_swap_b32 {v(WBF+4*hf+1)}, {v(WBF+4*hf+3)}")
    P(f"buffer_store_dwordx4 {v(WBF+4*hf,4)}, {v(VOUT)}, {s(S_OUT,4)}, 0 offen{' offset:32' if hf else ''}{('', ' sc1', ' nt', ' sc0 sc1')[OPT['outsc']]}")
H.stamp()
H.finish()

C = Role("C"); P = C.P
T1, T3, T2 = 32, 64, 96
XB, WB = 128, 160
V_AX, V_P0L, V_P0H, V_P1L, V_P1H, V_T2L, V_T2H = 192, 194, 195, 196, 197, 198, 199
V_LO, V_HI, V_CMR = 200, 201, 202
VPK = 224
r5, hh, rr, cc, nh, u0, u1, cm, g4 = 128, 129, 130, 131, 132, 133, 134, 135, 140
P("L_crole:")
P.add(late_ids)
if OPT["prio"]: P("s_setprio 1")
P(f"""
v_and_b32 {v(r5)}, 31, {v(V_LANE)}
v_lshrrev_b32 {v(hh)}, 5, {v(V_LANE)}
v_lshrrev_b32 {v(g4)}, 4, {v(V_LANE)}
v_and_b32 {v(u1)}, 15, {v(V_LANE)}
v_lshrrev_b32 {v(u0)}, 1, {v(u1)}
v_xor_b32 {v(u0)}, {v(u0)}, {v(g4)}
v_lshlrev_b32 {v(u0)}, 4, {v(u0)}
v_lshl_add_u32 {v(u0)}, {v(u1)}, 7, {v(u0)}
v_add_u32 {v(V_AX)}, {L_X}, {v(u0)}
v_xor_b32 {v(V_AX+1)}, 64, {v(V_AX)}
v_bfe_u32 {v(rr)}, {v(V_LANE)}, 2, 2
v_and_b32 {v(cc)}, 3, {v(V_LANE)}
v_and_b32 {v(nh)}, 1, {v(g4)}
v_lshl_add_u32 {v(u0)}, {v(g4)}, 3, {v(rr)}
v_xor_b32 {v(u1)}, {s(S_W4)}, {v(rr)}
v_lshlrev_b32 {v(u1)}, 5, {v(u1)}
v_lshl_add_u32 {v(u1)}, {v(cc)}, 3, {v(u1)}
v_lshl_add_u32 {v(u1)}, {v(u0)}, 8, {v(u1)}
v_lshl_add_u32 {v(V_P0L)}, {v(nh)}, 7, {v(u1)}
v_add_u32 {v(V_P0H)}, 0x10000, {v(V_P0L)}
v_xor_b32 {v(V_P1L)}, 0x80, {v(V_P0L)}
v_xor_b32 {v(V_P1H)}, 0x80, {v(V_P0H)}
v_lshrrev_b32 {v(u1)}, 1, {v(rr)}
v_lshl_add_u32 {v(u1)}, {v(nh)}, 1, {v(u1)}
v_xor_b32 {v(u1)}, {s(S_W4)}, {v(u1)}
v_lshlrev_b32 {v(u1)}, 5, {v(u1)}
v_lshl_add_u32 {v(u1)}, {v(cc)}, 3, {v(u1)}
v_lshl_add_u32 {v(V_T2L)}, {v(u0)}, 7, {v(u1)}
v_add_u32 {v(V_T2H)}, 0x10000, {v(V_T2L)}
v_and_b32 {v(u0)}, 15, {v(V_LANE)}
v_lshlrev_b32 {v(u0)}, 4, {v(u0)}
v_lshl_add_u32 {v(u0)}, {v(hh)}, 8, {v(u0)}
v_lshl_add_u32 {v(V_LO)}, {v(nh)}, 31, {v(u0)}
v_xor_b32 {v(V_HI)}, {OOB}, {v(V_LO)}
v_lshlrev_b32 {v(u0)}, 2, {v(hh)}
v_sub_u32 {v(cm)}, {v(r5)}, {v(u0)}
v_sub_u32 {v(u0)}, 32, {v(cm)}
v_mov_b32 {v(u1)}, {hex(~0x55540001 & 0xffffffff)}
v_alignbit_b32 {v(V_CMR)}, {v(u1)}, {v(u1)}, {v(u0)}
s_waitcnt lgkmcnt(0)""")
if OPT["wsoff"]: P(f"s_add_u32 s22, s22, {OPT['wsoff'] << 20}\ns_addc_u32 s23, s23, 0")
P.add(entry_stamp())
P(f"""s_memrealtime {s(S_TM,2)}
s_mov_b32 {s(S_C)}, {fhex(QK_SCALE)}
s_mov_b32 {s(S_C+1)}, {fhex(QK_SCALE)}
""")
def l2_prefetch():
    a, b = 140, 141
    o = lines(f"""s_lshr_b32 {s(S_T0)}, s2, 3
s_and_b32 {s(S_T1)}, {s(S_HG)}, 4
s_lshl_b32 {s(S_T1)}, {s(S_T1)}, 7
v_and_b32 {v(a)}, 3, {v(V_LANE)}
v_lshlrev_b32 {v(a)}, 7, {v(a)}
s_cmp_eq_u32 {s(S_W4)}, 2
s_cbranch_scc1 L_pfx
s_cmp_eq_u32 {s(S_W4)}, 3
s_cbranch_scc1 L_pfq
s_cmp_eq_u32 {s(S_W4)}, 0
s_cselect_b32 {s(S_W)}, s6, s12
s_cselect_b32 {s(S_W+1)}, s7, s13
s_mov_b32 {s(S_W+2)}, 1572864
s_mov_b32 {s(S_W+3)}, 0x20000
v_bfe_u32 {v(b)}, {v(V_LANE)}, 2, 1
v_lshl_add_u32 {v(a)}, {v(b)}, 10, {v(a)}
v_lshrrev_b32 {v(b)}, 3, {v(V_LANE)}
v_mul_u32_u24 {v(b)}, 0xc00, {v(b)}
v_add_u32 {v(a)}, {v(a)}, {v(b)}
s_mul_i32 {s(S_T0)}, {s(S_T0)}, {8*3072}
s_add_u32 {s(S_T0)}, {s(S_T0)}, {s(S_T1)}
s_add_u32 {s(S_T0)}, {s(S_T0)}, 1024
buffer_load_dword v190, {v(a)}, {s(S_W,4)}, {s(S_T0)} offen
s_add_u32 {s(S_T0)}, {s(S_T0)}, {256*3072}
buffer_load_dword v191, {v(a)}, {s(S_W,4)}, {s(S_T0)} offen
s_branch L_pfe
L_pfx:
s_mov_b32 {s(S_W)}, s4
s_mov_b32 {s(S_W+1)}, s5
s_mov_b32 {s(S_W+2)}, 2097152
s_mov_b32 {s(S_W+3)}, 0x20000
v_lshrrev_b32 {v(b)}, 2, {v(V_LANE)}
v_lshl_add_u32 {v(a)}, {v(b)}, 10, {v(a)}
s_lshl_b32 {s(S_T0)}, {s(S_T0)}, 14
s_and_b32 {s(S_T1)}, {s(S_RB)}, 24
s_lshl_b32 {s(S_T1)}, {s(S_T1)}, 16
s_add_u32 {s(S_T0)}, {s(S_T0)}, {s(S_T1)}
buffer_load_dword v190, {v(a)}, {s(S_W,4)}, {s(S_T0)} offen
buffer_load_dword v191, {v(a)}, {s(S_W,4)}, {s(S_T0)} offen offset:512
s_branch L_pfe
L_pfq:
s_mov_b32 {s(S_W)}, s6
s_mov_b32 {s(S_W+1)}, s7
s_mov_b32 {s(S_W+2)}, 1572864
s_mov_b32 {s(S_W+3)}, 0x20000
v_lshrrev_b32 {v(b)}, 2, {v(V_LANE)}
v_mul_u32_u24 {v(b)}, 0xc00, {v(b)}
v_add_u32 {v(a)}, {v(a)}, {v(b)}
s_mul_i32 {s(S_T0)}, {s(S_T0)}, {16*3072}
s_add_u32 {s(S_T0)}, {s(S_T0)}, {s(S_T1)}
buffer_load_dword v190, {v(a)}, {s(S_W,4)}, {s(S_T0)} offen
s_mov_b32 {s(S_W)}, s12
s_mov_b32 {s(S_W+1)}, s13
buffer_load_dword v191, {v(a)}, {s(S_W,4)}, {s(S_T0)} offen
L_pfe:""")
    P.add(Raw("\n".join(("" if l.endswith(":") else "    ") + l for l in o)))
    P("s_nop 0")
if OPT["pf"] == 1: l2_prefetch()
P.add(srd(S_WS, 22, WS_SIZE) + srd(S_DBG, 20, 256))
P(f"""s_cmp_eq_u32 s2, 0
s_cselect_b32 {s(S_T2)}, 0, {OOB}
v_lshlrev_b32 v5, 8, v0
v_or_b32 v5, {s(S_T2)}, v5
s_waitcnt lgkmcnt(0)
v_mov_b32 {v(EP)}, {s(S_TM)}
v_mov_b32 {v(EP+1)}, {s(S_TM+1)}
buffer_store_dwordx2 {v(EP,2)}, v5, {s(S_DBG,4)}, 0 offen sc1""")
V_AXW, V_AG, V_GPW, V_GPR, XW, GF, GACC = 4, 8, 9, 13, 240, 248, 204
P(f"""s_lshl_b32 {s(S_T2)}, {s(S_W4)}, 11
v_add_u32 {v(V_AXW)}, {s(S_T2)}, {v(V_AX)}
v_add_u32 {v(V_AXW+1)}, {s(S_T2)}, {v(V_AX+1)}
v_lshlrev_b32 {v(V_AG)}, 4, {v(g4)}
v_add_u32 {v(V_AG)}, {L_G}, {v(V_AG)}
v_lshlrev_b32 {v(V_GPR)}, 2, {v(r5)}
v_add_u32 {v(V_GPR)}, {L_GP}, {v(V_GPR)}
v_and_b32 {v(u0)}, 15, {v(V_LANE)}
s_lshl_b32 {s(S_T2)}, {s(S_W4)}, 6
s_add_u32 {s(S_T2)}, {s(S_T2)}, {L_GP}
v_lshl_add_u32 {v(V_GPW)}, {v(u0)}, 2, {s(S_T2)}""")
def x_warm(js):
    t = (f"    s_lshl2_add_u32 {s(S_T0)}, s2, {s(S_W4)}\n    s_lshr_b32 {s(S_T1)}, {s(S_T0)}, 5\n    s_lshl_b32 {s(S_T0)}, {s(S_T0)}, 11\n")
    for j in js:
        t += f"    s_add_u32 {s(S_K)}, {s(S_T1)}, {j}\n    s_and_b32 {s(S_K)}, {s(S_K)}, 7\n    s_lshl_b32 {s(S_K)}, {s(S_K)}, 7\n    s_add_u32 {s(S_K)}, {s(S_K)}, {s(S_T0)}\n"
        t += "".join(f"    s_load_dword s{28+i}, s[4:5], {s(S_K)} offset:{(i >> 1)*1024 + (i & 1)*64}\n" for i in range(4))
    P.add(Raw(t))
if OPT["xwarm"] == 1: x_warm((1, 2, 3))
P.add(attn_setup(0, 136))
if OPT["xwarm"] == 2: x_warm((1, 2, 3))
if OPT["xwarm"]:
    P("s_waitcnt lgkmcnt(0)"); x_warm((4, 5, 6)); P("s_waitcnt lgkmcnt(0)"); x_warm((7,)); P("s_waitcnt lgkmcnt(0)")
C.stamp()

CM, QB, KB, VB, KBH, VBH, BP, BPL, BPK, SENT, S_R0 = 176, 248, 240, 32, 80, 84, 192, 88, 88, 220, 24
BS2, BSP2, BO2 = (96, 48), (128, 112), (160, 144)
def b_scores(t):
    kprev = v(KB, 4) if t == 1 else v(KBH, 4)
    return [mfma(v(BS2[t],16), v(KB+4*t,4), v(QB+4*t,4), v(CM,16)), mfma(v(BSP2[t],16), kprev, v(QB+4*t,4), v(CM,16))]
def b_softmax(t):
    S, sp, m, p, pl = BS2[t], BSP2[t], TMP + 2*t, BP + 8*t, BPL + 4*t
    o = [f"v_cndmask_b32 {v(S+q)}, {v(S+q)}, {v(sp+q)}, {s(S_LO16,2)}" for q in range(8, 16)]
    if t == 0:
        o += [f"v_mov_b32 {v(m)}, {hex(NEG_BIG)}"]
        o += [f"v_cndmask_b32 {v(S+q)}, {v(S+q)}, {v(m)}, {s(S_R0,2)}" for q in range(8, 16)]
    o += max_tree(m, range(S, S+16)) + cross_max(m, m+1)
    o += [f"v_pk_add_f32 {v(S+2*q,2)}, {v(S+2*q,2)}, {v(m,2)} op_sel_hi:[1,0] neg_lo:[0,1] neg_hi:[0,1]" for q in range(8)]
    o += [f"v_exp_f32 {v(S+q)}, {v(S+q)}" for q in range(16)]
    o += [f"v_cvt_pk_bf16_f32 {v(p+i)}, {v(S+2*i)}, {v(S+2*i+1)}" for i in range(8)]
    o += [f"v_cndmask_b32 {v(pl+i)}, 0, {v(p+4+i)}, {s(S_LO16,2)}" for i in range(4)]
    o += [f"v_cndmask_b32 {v(p+4+i)}, {v(p+4+i)}, 0, {s(S_LO16,2)}" for i in range(4)]
    return o
def b_pv(t):
    vprev, acc, p = v(VB+4, 4) if t == 1 else v(VBH, 4), v(BO2[t], 16), BP + 8*t
    return [mfma(acc, v(VB+8*t,4), v(p,4), "0"), mfma(acc, v(VB+8*t+4,4), v(p+4,4), acc), mfma(acc, vprev, v(BPL+4*t,4), acc)]
def b_pack(t):
    f = 200 + 2*t
    return o_pack(BO2[t], 8, 0, [f"v_sub_f32 {v(f+1)}, 1.0, {v(G0+t)}", f"v_mul_f32 {v(f)}, {v(f)}, {v(f+1)}"], BPK+4*t, f)
def frag_reads(n):
    b, m = n & 1, n & 15
    j, u2 = m >> 1, m & 1
    base = (stage_of(n) % NSLOT) * SLOT
    hi = base >= 65536; off = base - (65536 if hi else 0)
    x = [f"ds_read_b128 {v(XB+16*b+4*tg,4)}, {v(V_AX+u2)} offset:{j*8192+tg*2048}" for tg in range(4)]
    if n < 16:
        w = [f"ds_read_b64_tr_b16 {v(WB+16*b+4*f+2*qd,2)}, {v(((V_P0L,V_P0H),(V_P1L,V_P1H))[pos][hi])} offset:{off+M*8192+qd*1024}"
             for f, (M, pos) in enumerate(((0, 0), (1, 1), (0, 1), (1, 0))) for qd in range(2)]
        return w[0:2] + x[0:2] + w[2:4] + x[2:4] + w[4:8]
    w = [f"ds_read_b64_tr_b16 {v(WB+8*b+4*M+2*qd,2)}, {v((V_T2L,V_T2H)[hi])} offset:{off+M*8192+u2*4096+qd*512}" for M in range(2) for qd in range(2)]
    return w[0:2] + x[0:2] + w[2:4] + x[2:4]
def step_mfmas(n):
    b = n & 1
    x = lambda tg: v(XB+16*b+4*tg, 4)
    c = lambda r: "0" if n in (0, 16) else v(r, 4)
    kq = lambda T, wbase: [mfma16(v(T+16*f+4*tg,4), v(wbase+4*f,4), x(tg), c(T+16*f+4*tg)) for hf in range(2) for f in range(2) for tg in (2*hf, 2*hf+1)]
    if n < 16:
        return kq(T1, WB+16*b) + [mfma16(v(T3+16*f+4*tg,4), x(tg), v(WB+16*b+8+4*f,4), c(T3+16*f+4*tg)) for f in range(2) for tg in range(4)]
    return kq(T2, WB+8*b)
def kq_frag(dst, T, tt, scale):
    a = T + 8*tt
    o = [f"v_pk_mul_f32 {v(a+2*i,2)}, {v(a+2*i,2)}, {s(S_C,2)}" for i in range(4)] if scale else []
    o += [f"v_cvt_pk_bf16_f32 {v(dst+i)}, {v(a+2*i)}, {v(a+2*i+1)}" for i in (0, 2, 1, 3)]
    return o, [f"v_permlane16_swap_b32 {v(dst+i)}, {v(dst+2+i)}" for i in range(2)]
def v_frag(tg):
    d = VPK + 4*tg
    o = [f"v_cvt_pk_bf16_f32 {v(d+2*f+i)}, {v(T3+16*f+4*tg+2*i)}, {v(T3+16*f+4*tg+2*i+1)}" for i in range(2) for f in range(2)]
    return o, [f"v_permlane16_swap_b32 {v(d+i)}, {v(d+2+i)}" for i in range(2)], [f"v_permlane32_swap_b32 {v(d+i)}, {v(d+2+i)}" for i in range(2)]
def kv_publish():
    o = [f"s_lshl_b32 {s(S_T0)}, {s(S_HEAD)}, 17", f"s_lshl_b32 {s(S_T1)}, {s(S_RB)}, 12", f"s_add_u32 {s(S_T0)}, {s(S_T0)}, {s(S_T1)}"]
    k = [kq_frag(KA+4*tt, T1, tt, True) for tt in range(2)]
    o += k[0][0] + k[1][0] + k[0][1] + k[1][1] + [ws_st(v(KA+4*tt,4), V_L16, s(S_T0), tt*2048, "kv") for tt in range(2)]
    for tt in range(2):
        f = [v_frag(2*tt + m) for m in range(2)]
        o += f[0][0] + f[1][0] + f[0][1] + f[1][1] + f[0][2] + f[1][2]
        o += [ws_st(v(VPK+8*tt+4*m,4), V_LO, s(S_T0), tt*2048+1024+m*512, "kv") for m in range(2)]
    o += [f"s_lshl_b32 {s(S_T0)}, {s(S_HEAD)}, 15", f"s_lshl_b32 {s(S_T1)}, {s(S_RB)}, 10",
          f"s_add_u32 {s(S_T0)}, {s(S_T0)}, {s(S_T1)}", f"s_add_u32 {s(S_T0)}, {s(S_T0)}, {WS_HB}",
          ws_st(v(VPK+12,4), V_HI, s(S_T0), 512, "kv")]
    k = [kq_frag(KB+4*tt, T1+16, tt, True) for tt in range(2)]
    o += k[1][0] + k[0][0] + k[1][1] + [ws_st(v(KB+4,4), V_HI, s(S_T0), 0, "kv")] + k[0][1]
    return o

if OPT["p1only"]:
    P("s_barrier\n" * 25 + "s_endpgm")
P("s_barrier")
C.stamp()
P.add(frag_reads(0))
queue = []
gf = gate_finish(V_GPR, 88)
qb0, qb1, qa0, qa1 = kq_frag(QB, T2+16, 0, False), kq_frag(QB+4, T2+16, 1, False), kq_frag(QA, T2, 0, False), kq_frag(QA1, T2, 1, False)
for n in range(32):
    mf = step_mfmas(n)
    sync = first_of_stage(n + 1) or n == 31
    nxt_stage = stage_of(n + 1) if n < 31 else 24
    rd = frag_reads(n + 1) if n < 31 else []
    if n < 16:
        m, gb = (n + 1) & 15, (n + 1) & 1
        rd = rd + [f"ds_read_b128 {v(GF+4*gb,4)}, {v(V_AG)} offset:{m*64}", f"ds_read_b128 {v(XW+4*gb,4)}, {v(V_AXW+gb)} offset:{(m >> 1)*8192}"]
    gm = [mfma16(v(GACC,4), v(GF+4*(n&1),4), v(XW+4*(n&1),4), "0" if n == 1 else v(GACC,4))] if 1 <= n <= 16 else []
    late = []
    if n == 15:
        pub = kv_publish()
        if OPT["early"]:
            late, pub = pub[:25], pub[25:]
            mf = [mf[i] for i in (0, 1, 4, 5, 8, 9, 10, 11, 12, 13, 14, 15, 2, 3, 6, 7)]
    if n == 16: queue += pub
    if n == 31 and OPT["early"]:
        mf = [mf[i] for i in (2, 3, 6, 7, 0, 1, 4, 5)]
        late = gf[2:] + qb0[0] + qb1[0] + qb0[1] + qb1[1]
    if n == 21:
        queue += [f"v_mov_b32 {v(TMP)}, {hex(ONES)}", f"v_mov_b32 {v(TMP+1)}, {hex(NEG_BIG)}"]
        queue += [f"v_mov_b32 {v(VBH+i)}, {v(TMP)}" for i in range(4)]
        queue += [f"v_cndmask_b32 {v(VB+i)}, {v(VPK+i)}, {v(TMP)}, {s(S_LO16,2)}" for i in range(16)]
        queue += [f"v_cndmask_b32 {v(VA+i)}, {v(TMP)}, {v(VPK+i)}, {s(S_LO16,2)}" for i in range(16)]
        queue += [f"v_cndmask_b32 {v(CMA+q)}, {v(TMP+1)}, 0, {s(S_MASK+2*q,2)}" for q in range(16)]
        queue += [f"v_bfe_i32 {v(CM+q)}, {v(V_CMR)}, {8*(q>>2)+(q&3)}, 1" for q in range(16)]
        queue += [f"v_and_b32 {v(CM+q)}, {v(TMP+1)}, {v(CM+q)}" for q in range(16)]
    if n == 16: mf = mf[:2] + gm + mf[2:]
    else: mf = mf + gm
    post = []
    pre = []
    if sync and nxt_stage == 23:
        (pre if OPT["gpre"] else post).append(f"ds_write_b32 {v(V_GPW)}, {v(GACC)}")
    if sync and nxt_stage == OPT["gat"]:
        rd = rd + [lines(f"""s_lshl_b32 {s(S_T0)}, {s(S_HEAD)}, 15
s_lshl_b32 {s(S_T1)}, {s(S_RB)}, 10
s_add_u32 {s(S_T0)}, {s(S_T0)}, {s(S_T1)}
s_add_u32 {s(S_T0)}, {s(S_T0)}, {WS_HB - 1024}
s_cmp_eq_u32 {s(S_RB)}, 0
s_cselect_b32 {s(S_T0)}, {WS_SIZE}, {s(S_T0)}
s_cselect_b64 {s(S_R0,2)}, {s(S_LO16,2)}, 0""") + [ws_ld(v(KBH,4), V_HI, s(S_T0)), f"s_not_b64 exec, {s(S_LO16,2)}",
                 ws_ld(v(VBH,4), V_HI, s(S_T0), 512), "s_mov_b64 exec, -1"]]
    if n == 31: post += gf[:2]
    take = 8 if n < 16 else (OPT["take"] if n < 21 else OPT["take2"])
    side = queue[:take]; queue = queue[take:]
    P.add(pre); P(mf[0]); P(mf[1])
    if sync:
        if nxt_stage == OPT["kvs"]: P.add(WaitTag("kv")); C.stamp()
        P.add(WaitLds()); P("s_barrier")
        if OPT["fine"] in (1, 2, 3): C.stamp()
    P.add(post)
    body, k = rd, len(mf) - 2
    nr = max(1, k - (4 if n < 16 else 2))
    for i in range(k + 1):
        lo, hi_ = len(body) * i // nr, len(body) * (i + 1) // nr
        if i < nr: P.add(body[lo:hi_])
        slo, shi = len(side) * i // (k + 1), len(side) * (i + 1) // (k + 1)
        P.add(side[slo:shi])
        i0 = 7 if n == 15 else 2
        if late and i >= i0: P.add(late[len(late) * (i - i0) // (k + 1 - i0):len(late) * (i - i0 + 1) // (k + 1 - i0)])
        if i < k: P(mf[2 + i])
    if n == 15: C.stamp()
assert not queue
C.stamp()
sc = interleave(b_scores(0), b_scores(1))
if OPT["early"]:
    P(sc[1]); P.add(qa0[0]); P(sc[2]); P.add(qa1[0]); P(sc[0]); P.add(qa0[1] + qa1[1]); P(sc[3])
else:
    P.add(gf[2:]); P.add(qb0[0] + qa0[0] + qb0[1] + qb1[0] + qa1[0])
    P(sc[2]); P.add(qb1[1] + qa0[1]); P(sc[0]); P.add(qa1[1]); P(sc[1]); P(sc[3])
s1, s0 = b_softmax(1), b_softmax(0)
P.add(s0[:9])
sm = interleave(s0[9:], s1)
P.add(sm[:-16])
pv = interleave(b_pv(0), b_pv(1))
P(mfma(v(MG+16,16), v(KA+4,4), v(QA1,4), v(CMA,16))); P.add(sm[-16:-10]); P(mfma(v(MG,16), v(KA,4), v(QA,4), v(CMA,16))); P.add(sm[-10:])
mx = interleave(*[max_tree((TMP, TMP+2)[t], range(MG+16*t, MG+16*t+16)) + cross_max((TMP, TMP+2)[t], (TMP, TMP+2)[t]+1) for t in (1, 0)])
for i, m in enumerate(pv):
    P(m); P.add(mx[4*i:4*i+4])
ng = [[f"v_pk_add_f32 {v(NEGM+16*t+2*i,2)}, 0, {v((TMP, TMP+2)[t],2)} op_sel_hi:[0,0] neg_lo:[0,1] neg_hi:[0,1]" for i in range(8)] for t in range(2)]
P.add(ng[0])
BPK = 192
P.add(interleave(b_pack(0), b_pack(1)))
P.add(o_store(1, 0, BPK, "ob")); P.add(o_store(1, 1, BPK+4, "ob"))
P.add(ng[1])
C.stamp()
cs = lambda: C.stamp() if OPT["fine"] == 4 else None
cev = {("e1" if OPT["xhs"] < 0 else OPT["xhs"]): lambda: (P.add(WaitTag("ob")) if OPT["f2by"] else None, P.add(WaitLds()), P("s_barrier"))}
if not OPT["f2by"]: cev["e1" if OPT["f2hs"] < 0 else OPT["f2hs"]] = lambda: (cs(), P.add(flag_store("ob", "ob")), cs())
if OPT["zbar"]: cev[("e1", 0, 1)[OPT["zbar"] - 1]] = lambda: (P.add(WaitTag("ob")), P("s_barrier"))
window_attention(C, cev)
P.add(interleave(*[o_pack(OACC2[t], 0, 8, [f"v_mul_f32 {v(TMP+t)}, {v(TMP+t)}, {v(G0+t)}"], PF+4*t, TMP+t) for t in (1, 0)]))
P.add(o_store(0, 1, PF+4, "oa")); P.add(o_store(0, 0, PF, "oa"))
C.stamp()
C.finish()

full = Prog(); full.items = E.items + H.P.items
bodyH = finalize(full, verbose=True)
full = Prog(); full.items = [Ins("s_load_dwordx16 s[4:19], s[0:1], 0"), Ins("global_load_dword v13, v5, s[96:97]")] + C.P.items
bodyC = "\n".join(finalize(full, verbose=True).split("\n")[2:])
print("stamps H", H.ns, "C", C.ns)
hdr = open("cdna_kernels/%s.s.ref" % NAME).read().split("; Override launch")[0]
if OPT["stamps"]: hdr += f"; stamps {C.ns} {H.ns}\n"
txt = hdr + f"""; One launch: 256 workgroups (4 heads x 64 rows each), 8 waves, hand-offs through d_ws tagged with a per-launch epoch.
; @launch grid=(256,1,1) block=(512,1,1) lds={LDS_BYTES}
.amdgcn_target "amdgcn-amd-amdhsa--gfx950"
.text
.globl {NAME}_kernel
.p2align 12
.p2align 8
.type {NAME}_kernel,@function
{NAME}_kernel:
{bodyH}{bodyC}L_end:
    s_endpgm
{''.join(retry_txt)}{''.join(special_txt)}{slow_path()}    .fill 3072, 4, 0xbf800000
.section .rodata,"a"
.p2align 6
.amdhsa_kernel {NAME}_kernel
  .amdhsa_next_free_vgpr 256
  .amdhsa_next_free_sgpr 102
  .amdhsa_accum_offset {192 if OPT['xp'] == 8 else 256}
  .amdhsa_group_segment_fixed_size 0
  .amdhsa_kernarg_size 80
  .amdhsa_user_sgpr_count 2
  .amdhsa_user_sgpr_kernarg_segment_ptr 1
  .amdhsa_system_sgpr_workgroup_id_x 1
.end_amdhsa_kernel
"""
open(sys.argv[1], "w").write(txt)
```

```python
import sys, math, struct
from asmdsl import Prog, Ins, WaitTag, WaitLds, Raw, Pace, finalize

NAME = "gated_mix__sliding_block__sliding_local_dilated__prompt"
OPT = dict(g0=2, deep=0, xwarm=0, hgmap=0, hold=0, sents=21, pasy=1, gpre=1, take2=16, t2=0, rtail=1, dfl=0, kvs=19, bsplit=0, pace=0, pace0=0, pacez=0, gat=23, gdel=0, f2hs=-1, f2by=1, wb0=4, zbar=3, wz=18, probe=0, amode=0, worder=0, xhs=3, hprio=2, p3prio=0, wopf=1, tlb=1, icpf=1, cpf=0, take=96, early=1, kvflag=42, pubat=32, prio=1, barpos=0,
           xmap=3, rotmode=4, rotmask=7, outsc=0, stamps=0, fine=0, rt=0, xp=0, wsoff=0, amp=-1, ampk=8, amprole=1, ampclk=0, p1only=0, pf=0)
for a in sys.argv[2:]:
    k, v_ = a.split("="); assert k in OPT, k; OPT[k] = int(v_)

WS_KV, WS_HB, WS_O = 0, 4 << 20, 5 << 20
WS_FKV, WS_FOB, WS_FOA = 9 << 20, (9 << 20) + 65536, (9 << 20) + 131072
WS_STAMP, WS_SIZE = 10 << 20, 16 << 20
OOB = 0x80000000
NSLOT, SLOT = 5, 16384
L_X, L_WA, L_G, L_GP, LDS_BYTES = 81920, 132096, 156672, 157696, 158720
KVH, KVS, L_KV, L_WO = 2080, 4 * 2080, 65536, 0
QK_SCALE = 0.25 * math.log2(math.e)
NEG_BIG, ONES = 0xf149f2ca, 0x3f803f80

def fhex(x): return "0x%08x" % struct.unpack("<I", struct.pack("<f", x))[0]
def v(a, n=1): return f"v{a}" if n == 1 else f"v[{a}:{a+n-1}]"
def s(a, n=1): return f"s{a}" if n == 1 else f"s[{a}:{a+n-1}]"
def lines(t): return [l.strip() for l in t.strip().split("\n") if l.strip()]
def mfma(d, a, b, c): return f"v_mfma_f32_32x32x16_bf16 {d}, {a}, {b}, {c}"
def srd(base, ptr, nbytes):
    return [f"s_mov_b32 {s(base)}, {s(ptr)}", f"s_mov_b32 {s(base+1)}, {s(ptr+1)}",
            f"s_mov_b32 {s(base+2)}, {nbytes}", f"s_mov_b32 {s(base+3)}, 0x20000"]
def interleave(*ls):
    o, ls = [], [list(l) for l in ls]
    while any(ls):
        for l in ls:
            if l: o.append(l.pop(0))
    return o

S_X, S_W, S_WS, S_WOA, S_WOB, S_OUT, S_DBG, S_G = 24, 28, 32, 36, 40, 44, 48, 36
S_W4, S_HG, S_RB, S_ROT, S_HEAD, S_RB3, S_CB = 52, 53, 54, 55, 56, 57, 58
S_K, S_T0, S_MW, S_MX, S_T1 = 59, 60, 61, 62, 63
S_MASK, S_T2, S_T3, S_LO16, S_TM, S_C, S_SPIN, S_EP = 64, 96, 97, 98, 100, 10, 3, 26
V_LANE, V_L16, V_STAMP, V_FOFF = 1, 2, 3, 4
EP, FLG = 6, 8
V_AK, V_AV0, V_AV1 = 10, 11, 12
G0 = 14
PM, QA = 16, 24
TMP = 28
SB, NEGM, MG, PB, PF, KF, VF = 32, 64, 96, 128, 144, 152, 192
OACC2 = (160, 176)
KA, QA1, VA = 208, 216, 224

class Role:
    def __init__(self, name):
        self.P, self.name, self.ns, self.nl = Prog(), name, 0, 0
    def stamp(self):
        P = self.P
        if OPT["amp"] == self.ns and OPT["amprole"] == (self.name == "H"):
            P.add(WaitLds())
            P(f"{'s_memtime' if OPT['ampclk'] else 's_memrealtime'} {s(S_TM,2)}\ns_waitcnt lgkmcnt(0)\nv_writelane_b32 {v(V_STAMP)}, {s(S_TM)}, 1")
        if OPT["stamps"]:
            P.add(WaitLds())
            P(f"s_memtime {s(S_TM,2)}\ns_waitcnt lgkmcnt(0)\nv_writelane_b32 {v(V_STAMP)}, {s(S_TM)}, {self.ns + 1}")
            if OPT["rt"]: P(f"s_memrealtime {s(S_TM,2)}\ns_waitcnt lgkmcnt(0)\nv_writelane_b32 {v(V_STAMP)}, {s(S_TM)}, {self.ns + 32}")
        self.ns += 1
    def poll(self, cmp_txt, reload_txt):
        P, n = self.P, f"{self.name}{self.nl}"; self.nl += 1
        P(f"s_mov_b32 {s(S_SPIN)}, 0x40000"); P(cmp_txt)
        P(f"s_cmp_eq_u64 vcc, -1\ns_cbranch_scc1 L_pok{n}")
        P.add(Raw(f"""L_pspin{n}:
    {reload_txt}
    s_sub_u32 {s(S_SPIN)}, {s(S_SPIN)}, 1
    s_cbranch_scc1 L_pok{n}
    s_waitcnt vmcnt(0)
    {cmp_txt}
    s_nop 2
    s_cmp_eq_u64 vcc, -1
    s_cbranch_scc0 L_pspin{n}
L_pok{n}:"""))
    @staticmethod
    def _sloads(n, off):
        if n <= 8: return [f"s_load_dwordx{2*n} {s(4,2*n)}, s[22:23], {s(off)} glc"]
        return [f"s_load_dwordx16 s[4:19], s[22:23], {s(off)} glc", f"s_load_dwordx16 s[64:79], s[22:23], {s(off)} offset:64 glc"]
    def spoll_issue(self, n, off):
        self.P.add(self._sloads(n, off))
    def spoll(self, n, off, ignore_from=None):
        P, lb = self.P, f"{self.name}{self.nl}"; self.nl += 1
        w = lambda i: s(4 + 2*i if i < 8 else 48 + 2*i, 2)
        P.add(WaitLds())
        t = f"    s_mov_b32 {s(S_SPIN)}, 0x40000\nL_sp{lb}:\n"
        for i in range(n - 1):
            if ignore_from is not None:
                t += f"    s_cmp_lt_u32 {s(ignore_from)}, {n - i}\n    s_cselect_b64 {w(i)}, {s(S_EP,2)}, {w(i)}\n"
        for i in range(n):
            t += f"    s_xor_b64 {w(i)}, {w(i)}, {s(S_EP,2)}\n"
            if i: t += f"    s_or_b64 s[4:5], s[4:5], {w(i)}\n"
        t += f"    s_cmp_eq_u64 s[4:5], 0\n    s_cbranch_scc1 L_spok{lb}\n" + "".join(f"    {x}\n" for x in self._sloads(n, off))
        t += f"    s_sub_u32 {s(S_SPIN)}, {s(S_SPIN)}, 1\n    s_waitcnt lgkmcnt(0)\n    s_cbranch_scc0 L_sp{lb}\nL_spok{lb}:"
        P.add(Raw(t))
    def finish(self):
        P = self.P
        if OPT["stamps"]:
            P(f"s_memrealtime {s(S_TM,2)}\ns_waitcnt lgkmcnt(0) vmcnt(0)\nv_writelane_b32 {v(V_STAMP)}, {s(S_TM)}, 63")
            P(f"""s_lshl_b32 {s(S_T0)}, s2, 3
s_add_u32 {s(S_T0)}, {s(S_T0)}, {s(S_W4)}
s_add_u32 {s(S_T0)}, {s(S_T0)}, {4 if self.name == "H" else 0}
s_lshl_b32 {s(S_T0)}, {s(S_T0)}, 8
s_add_u32 {s(S_T0)}, {s(S_T0)}, {WS_STAMP}
v_lshlrev_b32 v0, 2, {v(V_LANE)}
buffer_store_dword {v(V_STAMP)}, v0, {s(S_WS,4)}, {s(S_T0)} offen""")
        if OPT["amp"] >= 0 and OPT["amprole"] == (self.name == "H"):
            P(f"""s_cmp_lg_u32 s2, 100
s_cbranch_scc1 L_end
v_readlane_b32 {s(S_T0)}, {v(V_STAMP)}, 0
v_readlane_b32 {s(S_T1)}, {v(V_STAMP)}, 1
s_memrealtime {s(S_TM,2)}
s_sub_u32 {s(S_T1)}, {s(S_T1)}, {s(S_T0)}
s_mul_i32 {s(S_T1)}, {s(S_T1)}, {OPT["ampk"]}
s_lshr_b32 {s(S_T1)}, {s(S_T1)}, {4 if OPT["ampclk"] else 0}
s_min_u32 {s(S_T1)}, {s(S_T1)}, 100000
s_waitcnt lgkmcnt(0)
s_mov_b32 {s(S_T0)}, {s(S_TM)}""")
            P.add(Raw(f"""L_amp{self.name}:
    s_memrealtime {s(S_TM,2)}
    s_waitcnt lgkmcnt(0)
    s_sub_u32 {s(S_K)}, {s(S_TM)}, {s(S_T0)}
    s_cmp_lt_u32 {s(S_K)}, {s(S_T1)}
    s_cbranch_scc1 L_amp{self.name}"""))
        P("s_endpgm")

ws_ld = lambda dst, voff, soff, imm=0, tag=None: Ins(
    f"buffer_load_dwordx4 {dst}, {v(voff)}, {s(S_WS,4)}, {soff} offen{' offset:%d' % imm if imm else ''} sc1", tag)
ws_st = lambda src, voff, soff, imm=0, tag=None: Ins(
    f"buffer_store_dwordx4 {src}, {v(voff)}, {s(S_WS,4)}, {soff} offen{' offset:%d' % imm if imm else ''} sc1", tag)
ep_load = f"buffer_load_dwordx2 {v(EP,2)}, off, {s(S_DBG,4)}, 0 sc1"
flag_load = f"buffer_load_dwordx2 {v(FLG,2)}, {v(V_FOFF)}, {s(S_WS,4)}, {s(S_K)} offen sc1"
flag_cmp = f"v_cmp_eq_u64 vcc, {v(FLG,2)}, {v(EP,2)}"
def flag_store(data_tag, kind):
    if kind == "kv":
        o = lines(f"""v_mul_u32_u24 v0, 56, {v(V_LANE)}
v_add_u32 v0, 88, v0
s_sub_u32 {s(S_T1)}, 31, {s(S_RB)}
s_min_u32 {s(S_T1)}, {s(S_T1)}, 4
v_cmp_gt_u32 vcc, {s(S_T1)}, {v(V_LANE)}
s_cmp_eq_u32 {s(S_RB)}, 0
s_cselect_b32 {s(S_T1)}, 24, {OOB}
v_mov_b32 v5, {s(S_T1)}
v_cndmask_b32 v0, v5, v0, vcc
s_lshl_b32 {s(S_T0)}, {s(S_HEAD)}, 5
s_add_u32 {s(S_T0)}, {s(S_T0)}, {s(S_RB)}
s_lshl_b32 {s(S_T0)}, {s(S_T0)}, 6
s_add_u32 {s(S_T0)}, {s(S_T0)}, {WS_FKV}""")
    else:
        o = lines(f"""v_lshlrev_b32 v0, 8, {v(V_LANE)}
v_cmp_gt_u32 vcc, 8, {v(V_LANE)}
v_mov_b32 v5, {OOB}
v_cndmask_b32 v0, v5, v0, vcc
s_lshl_b32 {s(S_T0)}, {s(S_RB)}, 8
s_add_u32 {s(S_T0)}, {s(S_T0)}, {s(S_HEAD)}
s_lshl_b32 {s(S_T0)}, {s(S_T0)}, 3
s_add_u32 {s(S_T0)}, {s(S_T0)}, { {"ob": WS_FOB, "oa0": WS_FOA, "oa1": WS_FOA + 65536}[kind] }""")
    return o + [WaitTag(data_tag), Ins(f"buffer_store_dwordx2 {v(EP,2)}, v0, {s(S_WS,4)}, {s(S_T0)} offen sc1", "flag")]

def max_tree(dst, regs, init=False):
    regs, o = list(regs), []
    if not init:
        o.append(f"v_max3_f32 {v(dst)}, {v(regs[0])}, {v(regs[1])}, {v(regs[2])}"); regs = regs[3:]
    while len(regs) >= 2:
        o.append(f"v_max3_f32 {v(dst)}, {v(dst)}, {v(regs[0])}, {v(regs[1])}"); regs = regs[2:]
    if regs: o.append(f"v_max_f32 {v(dst)}, {v(dst)}, {v(regs[0])}")
    return o
def cross_max(m, t):
    return [f"v_mov_b32 {v(t)}, {v(m)}", f"v_permlane32_swap_b32 {v(m)}, {v(t)}", f"v_max_f32 {v(m)}, {v(m)}, {v(t)}"]

def attn_setup(t, tmp):
    r5, hh, cm, u = tmp, tmp + 1, tmp + 2, tmp + 3
    o = lines(f"""v_and_b32 {v(r5)}, 31, {v(V_LANE)}
v_lshrrev_b32 {v(hh)}, 5, {v(V_LANE)}
v_lshlrev_b32 {v(u)}, 2, {v(hh)}
v_sub_u32 {v(cm)}, {v(r5)}, {v(u)}
s_mul_i32 {s(S_T2)}, {s(S_W4)}, {KVH}
s_add_u32 {s(S_T2)}, {s(S_T2)}, {L_KV + t*KVS}
v_add_u32 {v(V_AK)}, {s(S_T2)}, {v(V_L16)}
v_and_b32 {v(u)}, 15, {v(V_LANE)}
v_lshlrev_b32 {v(u)}, 4, {v(u)}
v_lshl_add_u32 {v(u)}, {v(hh)}, 8, {v(u)}
v_and_b32 {v(hh)}, 11, {v(V_LANE)}
v_min_u32 {v(hh)}, 1, {v(hh)}
v_lshlrev_b32 {v(hh)}, 4, {v(hh)}
v_add_u32 {v(hh)}, 0x400, {v(hh)}
v_cndmask_b32 {v(V_AV0)}, {v(hh)}, {v(u)}, {s(S_LO16,2)}
v_subrev_u32 {v(hh)}, 0x200, {v(hh)}
v_cndmask_b32 {v(V_AV1)}, {v(hh)}, {v(u)}, {s(S_LO16,2)}
v_add_u32 {v(V_AV0)}, {s(S_T2)}, {v(V_AV0)}
v_add_u32 {v(V_AV1)}, {s(S_T2)}, {v(V_AV1)}
v_mov_b32 {v(u)}, 0xffff""")
    o += [f"v_cmp_le_i32 {s(S_MASK+2*q,2)}, {8*(q>>2)+(q&3)}, {v(cm)}" for q in range(16)]
    o += [f"v_cndmask_b32 {v(PM+pq)}, 0, {v(u)}, {s(S_MASK+4*pq,2)}" for pq in range(8)]
    o += [f"v_cndmask_b32 {v(PM+pq)}, {v(PM+pq)}, -1, {s(S_MASK+4*pq+2,2)}" for pq in range(8)]
    return o

def gate_finish(addr, tmp):
    o = [f"ds_read_b32 {v(tmp+t)}, {v(addr)} offset:{128*t}" for t in range(2)]
    for op in ("v_mul_f32 {g}, " + fhex(-math.log2(math.e)) + ", {g}", "v_exp_f32 {g}, {g}", "v_add_f32 {g}, 1.0, {g}", "v_rcp_f32 {o}, {g}"):
        o += [op.format(g=v(tmp+t), o=v(G0+t)) for t in range(2)]
    return o

def o_pack(acc, o0, lreg, fac, dst, f):
    return ([f"v_rcp_f32 {v(f)}, {v(acc+lreg)}"] + fac +
            [f"v_mul_f32 {v(acc+o0+i)}, {v(f)}, {v(acc+o0+i)}" for i in range(8)] +
            [f"v_cvt_pk_bf16_f32 {v(dst+i)}, {v(acc+o0+2*i)}, {v(acc+o0+2*i+1)}" for i in range(4)])
def o_store(br, tt, src, tag):
    return [f"s_lshl_b32 {s(S_T0)}, {s(S_RB)}, 17", f"s_lshl_b32 {s(S_T1)}, {s(S_HEAD)}, 10",
            f"s_add_u32 {s(S_T0)}, {s(S_T0)}, {s(S_T1)}", f"s_add_u32 {s(S_T0)}, {s(S_T0)}, {WS_O + br*65536 + tt*32768}",
            ws_st(v(src,4), V_L16, s(S_T0), 0, tag)]

CMA = 64
def window_attention(R, events):
    P = R.P
    Q = lambda t: v((QA, QA1)[t], 4)
    dk, dv = (4, 3) if OPT["deep"] else (2, 2)
    kfr = lambda u: v((240 + 4*(u & 3)) if OPT["deep"] else KF+4*(u & 1), 4) if u < 8 else v(KA+4*(u-8), 4)
    vfr = lambda u, m: v((VF, VF+8, KF)[u % dv]+4*m, 4) if u < 8 else v(VA+8*(u-8)+4*m, 4)
    kread = lambda u: [f"ds_read_b128 {kfr(u)}, {v(V_AK)} offset:{u*KVS}"] if u < 8 else []
    vread = lambda u: [f"ds_read_b128 {vfr(u,0)}, {v(V_AV0)} offset:{u*KVS+1024}",
                       f"ds_read_b128 {vfr(u,1)}, {v(V_AV1)} offset:{u*KVS+1536}"] if u < 8 else []
    M = (TMP, TMP + 2)
    acc = lambda t: v(OACC2[t], 16)
    negm = lambda t: v(NEGM+16*t, 16)
    exps = lambda S: [f"v_exp_f32 {v(S+i)}, {v(S+i)}" for i in range(16)]
    cvts = lambda d, S: [f"v_cvt_pk_bf16_f32 {v(d+k)}, {v(S+2*k)}, {v(S+2*k+1)}" for k in range(8)]
    ev = lambda key: events.pop(key)() if key in events else None
    P(mfma(v(SB+16,16), kfr(8), Q(1), negm(1))); P(mfma(v(MG,16), kfr(8), Q(0), negm(0)))
    P("s_barrier")
    R.stamp()
    P.add(kread(0) + kread(1) + vread(0) + vread(1))
    if OPT["deep"]: P.add(kread(2) + kread(3) + vread(2))
    ev("pre")
    e, c = exps(SB+16), cvts(PB+8, SB+16)
    P.add(e[0:4]); P(mfma(v(SB,16), kfr(0), Q(0), negm(0))); P.add(kread(dk)); P.add(e[4:8]); P.add(c[0:4])
    P(mfma(v(MG+16,16), kfr(9), Q(1), negm(1))); P.add(e[8:12])
    P(mfma(acc(1), vfr(8,0), v(PB+8,4), "0")); P.add(e[12:16]); P.add(c[4:8])
    pend = [mfma(v(SB+16,16), kfr(1), Q(1), negm(1)), mfma(acc(1), vfr(8,1), v(PB+12,4), acc(1))]
    for t in range(2):
        g = MG + 16*t
        seq = [f"v_cndmask_b32 {v(g+i)}, {v(SB+16*t+i)}, {v(g+i)}, {s(S_MASK+2*i,2)}" for i in range(16)]
        seq += [[mfma(v(SB+16*t,16), kfr(1+t), Q(t), negm(t))] + (kread(dk+1) if t == 0 else [])]
        seq += exps(g) + cvts(PF, g)
        seq += [f"v_and_b32 {v(PB+8*t+i)}, {v(PM+i)}, {v(PF+i)}" for i in range(8)]
        seq += [f"v_xor_b32 {v(g+i)}, {v(PF+i)}, {v(PB+8*t+i)}" for i in range(8)]
        at = (0, 8) if t == 0 else (1, 9, 21, 26)
        for i, x in enumerate(seq):
            P.add(x)
            if i in at: P.add(pend.pop(0))
        pend = [mfma(acc(t), vfr(8+t,0), v(PB+8*t,4), acc(1) if t else "0"), mfma(acc(t), vfr(8+t,1), v(PB+8*t+4,4), acc(t)),
                mfma(acc(t), vfr(t,0), v(g,4), acc(t)), [mfma(acc(t), vfr(t,1), v(g+4,4), acc(t))] + (vread(dv) if t == 0 else [])]
    R.stamp()
    if OPT["t2"]: P("s_barrier")
    ev("e1")
    for hs in range(13):
        t = hs & 1; u = (hs >> 1) + 1 + t
        S, Pp = SB + 16*t, PB + 8*t
        e, c = exps(S), cvts(Pp, S)
        nxt = None
        if t == 0 and 0 < hs < 12: nxt = [mfma(v(SB+16,16), kfr(u+1), Q(1), negm(1))]
        if t == 1: nxt = [mfma(v(SB,16), kfr(u), Q(0), negm(0))] + kread(u+dk)
        if hs == 0:
            P.add(e[0:2]); P.add(pend[0]); P.add(e[2:5]); P.add(pend[1]); P.add(e[5:8]); P.add(pend[2])
            P.add(c[0:4]); P.add(e[8:10]); P.add(pend[3]); P.add(e[10:14])
            P(mfma(acc(t), vfr(u,0), v(Pp,4), acc(t))); P.add(e[14:16]); P.add(c[4:8])
        else:
            P.add(e[0:2]); P.add(pend); P.add(e[2:6])
            if nxt: P.add(nxt)
            P.add(e[6:8]); P.add(c[0:4]); P.add(e[8:10])
            P(mfma(acc(t), vfr(u,0), v(Pp,4), acc(t)))
            P.add(e[10:16]); P.add(c[4:8])
        pend = [mfma(acc(t), vfr(u,1), v(Pp+4,4), acc(t))] + (vread(u+dv) if t == 0 else [])
        if OPT["fine"] == 5: R.stamp()
        ev(hs)
    P.add(pend)
    assert not events, events
    P(f"s_mov_b32 {s(S_T1)}, 0x7b800000")
    for t in (1, 0):
        o, m = OACC2[t], M[t]
        P.add([f"v_add_f32 {v(m)}, abs({v(o)}), abs({v(o+8)})", f"v_add_f32 {v(m+1)}, abs({v(o+1)}), abs({v(o+2)})"] +
              [f"v_add_f32 {v(m+(i&1))}, {v(m+(i&1))}, abs({v(o+i)})" for i in range(3, 8)] + [f"v_add_f32 {v(m)}, {v(m)}, {v(m+1)}"])
    P(f"v_add_f32 {v(M[0])}, {v(M[0])}, {v(M[1])}\nv_cmp_lt_f32 vcc, {v(M[0])}, {s(S_T1)}")
    P("s_cmp_eq_u64 vcc, -1\ns_cbranch_scc0 L_exact0\nL_back:")
    R.stamp()

def slow_path():
    return exact_attention(0) + exact_attention(1) + "    s_branch L_back\n"

def exact_attention(t):
    F = Prog(); q, M, acc = v((QA, QA1)[t], 4), TMP, v(OACC2[t], 16)
    KO, VO, G = TMP + 2, TMP + 3, S_T0
    def tile(rel, kdst, vdst):
        o = [f"s_add_i32 {s(S_K)}, {s(G)}, {rel}", f"s_cmp_ge_i32 {s(S_K)}, 0", f"s_cselect_b64 vcc, -1, 0",
             f"s_cselect_b32 {s(S_TM)}, {hex(ONES)}, 0", f"s_max_i32 {s(S_K)}, {s(S_K)}, 0", f"s_lshl_b32 {s(S_K)}, {s(S_K)}, 11",
             f"s_lshl_b32 {s(S_T1)}, {s(S_HEAD)}, 17", f"s_add_u32 {s(S_K)}, {s(S_K)}, {s(S_T1)}",
             f"v_and_b32 {v(KO)}, 0x200, {v(V_L16)}", f"v_cndmask_b32 {v(KO)}, {v(KO)}, {v(V_L16)}, vcc", ws_ld(v(kdst,4), KO, s(S_K))]
        if vdst is not None:
            o += [f"v_mov_b32 {v(vdst+i)}, {s(S_TM)}" for i in range(8)]
            o += [f"s_cmp_lg_u32 {s(S_TM)}, 0", f"s_cselect_b32 {s(S_K)}, {s(S_K)}, {WS_SIZE}", f"s_mov_b64 exec, {s(S_LO16,2)}",
                  ws_ld(v(vdst,4), VO, s(S_K), 1024), ws_ld(v(vdst+4,4), VO, s(S_K), 1536), "s_mov_b64 exec, -1"]
        return o
    F(f"L_exact{t}:\ns_waitcnt vmcnt(0) lgkmcnt(0)\ns_nop 15")
    F(f"""s_lshl_b32 {s(G)}, {s(S_RB)}, 1
s_sub_u32 {s(G)}, {s(G)}, {8 - t}
v_lshrrev_b32 {v(VO)}, 1, {v(V_L16)}
v_and_b32 {v(VO)}, 0x100, {v(VO)}
v_and_b32 {v(KO)}, 0xf0, {v(V_L16)}
v_or_b32 {v(VO)}, {v(VO)}, {v(KO)}""")
    F.add(tile(8, KF, VF)); F.add(tile(0, KF+4, VF+8))
    F(mfma(v(MG,16), v(KF,4), q, "0")); F(mfma(v(SB,16), v(KF+4,4), q, "0"))
    F.add([f"v_cndmask_b32 {v(MG+i)}, {v(SB+i)}, {v(MG+i)}, {s(S_MASK+2*i,2)}" for i in range(16)])
    F.add(max_tree(M, range(MG, MG+16)))
    F(f"s_mov_b32 {s(S_TM+1)}, 7\nL_exact_m{t}:\ns_add_u32 {s(G)}, {s(G)}, 1")
    F.add(tile(0, KF, None))
    F(mfma(v(SB,16), v(KF,4), q, "0"))
    F.add(max_tree(M, range(SB, SB+16), init=True))
    F(f"s_sub_u32 {s(S_TM+1)}, {s(S_TM+1)}, 1\ns_cmp_lg_u32 {s(S_TM+1)}, 0\ns_cbranch_scc1 L_exact_m{t}")
    F.add(cross_max(M, M+1))
    F.add([f"v_sub_f32 {v(MG+i)}, {v(MG+i)}, {v(M)}" for i in range(16)])
    F.add([f"v_exp_f32 {v(MG+i)}, {v(MG+i)}" for i in range(16)])
    F.add([f"v_cvt_pk_bf16_f32 {v(PF+i)}, {v(MG+2*i)}, {v(MG+2*i+1)}" for i in range(8)])
    F.add([f"v_and_b32 {v(PB+i)}, {v(PM+i)}, {v(PF+i)}" for i in range(8)])
    F.add([f"v_xor_b32 {v(PF+i)}, {v(PF+i)}, {v(PB+i)}" for i in range(8)])
    F(mfma(acc, v(VF,4), v(PB,4), "0")); F(mfma(acc, v(VF+4,4), v(PB+4,4), acc))
    F(mfma(acc, v(VF+8,4), v(PF,4), acc)); F(mfma(acc, v(VF+12,4), v(PF+4,4), acc))
    F(f"s_sub_u32 {s(G)}, {s(G)}, 7\ns_mov_b32 {s(S_TM+1)}, 7\ns_nop 15\nL_exact_e{t}:\ns_add_u32 {s(G)}, {s(G)}, 1")
    F.add(tile(0, KF, VF))
    F(mfma(v(SB,16), v(KF,4), q, "0"))
    F.add([f"v_sub_f32 {v(SB+i)}, {v(SB+i)}, {v(M)}" for i in range(16)])
    F.add([f"v_exp_f32 {v(SB+i)}, {v(SB+i)}" for i in range(16)])
    F.add([f"v_cvt_pk_bf16_f32 {v(PB+i)}, {v(SB+2*i)}, {v(SB+2*i+1)}" for i in range(8)])
    F(mfma(acc, v(VF,4), v(PB,4), acc)); F(mfma(acc, v(VF+4,4), v(PB+4,4), acc))
    F(f"s_nop 15\ns_sub_u32 {s(S_TM+1)}, {s(S_TM+1)}, 1\ns_cmp_lg_u32 {s(S_TM+1)}, 0\ns_cbranch_scc1 L_exact_e{t}")
    return finalize(F)

E = Prog()
hg_code = {0: f"s_lshl1_add_u32 {s(S_HG)}, {s(S_T1)}, {s(S_K)}", 1: f"s_lshl2_add_u32 {s(S_HG)}, {s(S_K)}, {s(S_T1)}",
           2: f"s_and_b32 {s(S_HG)}, {s(S_T1)}, 2\ns_add_u32 {s(S_HG)}, {s(S_HG)}, {s(S_K)}\ns_and_b32 {s(S_T1)}, {s(S_T1)}, 1\ns_lshl1_add_u32 {s(S_HG)}, {s(S_HG)}, {s(S_T1)}",
           3: f"s_mul_i32 {s(S_K)}, {s(S_K)}, 3\ns_lshl1_add_u32 {s(S_HG)}, {s(S_T1)}, {s(S_K)}\ns_and_b32 {s(S_HG)}, {s(S_HG)}, 7",
           4: f"s_mul_i32 {s(S_K)}, {s(S_K)}, 5\ns_lshl1_add_u32 {s(S_HG)}, {s(S_T1)}, {s(S_K)}\ns_and_b32 {s(S_HG)}, {s(S_HG)}, 7"}[OPT["hgmap"]]
assert OPT["xmap"] == 3
hb = {4: 2, 3: 1, 2: 0, 1: 3}[OPT["xmap"]]
if OPT["stamps"] or OPT["amp"] >= 0:
    E("s_memtime s[64:65]\ns_memrealtime s[66:67]")
def entry_stamp():
    if OPT["stamps"]:
        return [f"v_mov_b32 {v(V_STAMP)}, 0", f"v_writelane_b32 {v(V_STAMP)}, s64, 0", f"v_writelane_b32 {v(V_STAMP)}, s66, 62"]
    if OPT["amp"] >= 0:
        return [f"v_mov_b32 {v(V_STAMP)}, 0", f"v_writelane_b32 {v(V_STAMP)}, {'s64' if OPT['ampclk'] else 's66'}, 0"]
    return []
code_pf = f"""s_getpc_b64 {s(S_T2,2)}
L_pc:
s_lshl2_add_u32 {s(S_T1)}, {s(S_T0)}, {s(S_W4)}
s_and_b32 {s(S_T1)}, {s(S_T1)}, 63
s_lshl_b32 {s(S_T1)}, {s(S_T1)}, 9
s_sub_u32 {s(S_T2)}, {s(S_T2)}, L_pc-{NAME}_kernel
s_subb_u32 {s(S_T3)}, {s(S_T3)}, 0
v_and_b32 v5, 3, {v(V_LANE)}
v_lshl_add_u32 v5, v5, 7, {s(S_T1)}
global_load_dword v13, v5, {s(S_T2,2)}"""
if OPT["cpf"] == 2:
    E(f"""s_getpc_b64 {s(S_T2,2)}
s_bfe_u32 {s(S_T1)}, s2, 0x50003
v_lshrrev_b32 v5, 6, v0
v_lshlrev_b32 v5, 7, v5
v_lshl_add_u32 v5, {s(S_T1)}, 10, v5
global_load_dword v13, v5, {s(S_T2,2)}""")
if OPT["cpf"] == 3:
    E(f"""s_getpc_b64 {s(S_T2,2)}
s_bfe_u32 {s(S_T1)}, s2, 0x30003
v_lshrrev_b32 v5, 4, v0
v_lshlrev_b32 v5, 7, v5
v_lshl_add_u32 v5, {s(S_T1)}, 12, v5
global_load_dword v13, v5, {s(S_T2,2)}""")
E(f"""
s_cmp_ge_u32 s2, 256
s_cbranch_scc1 L_end
s_load_dwordx16 s[4:19], s[0:1], 0
s_load_dwordx4 s[20:23], s[0:1], 64
v_lshrrev_b32 v4, 6, v0
v_and_b32 {v(V_LANE)}, 63, v0
s_lshr_b32 {s(S_T0)}, s2, 3
v_readfirstlane_b32 {s(S_MX)}, v4
""")
E(f"""
s_and_b32 {s(S_T1)}, s2, {(8 >> hb) - 1}
s_and_b32 {s(S_K)}, {s(S_T0)}, {(1 << hb) - 1}
{hg_code}
s_bfe_u32 {s(S_K)}, s2, {hex((hb << 16) | (3 - hb))}
s_lshl_b32 {s(S_RB)}, {s(S_K)}, {5 - hb}
s_lshr_b32 {s(S_ROT)}, {s(S_T0)}, {hb}
s_add_u32 {s(S_RB)}, {s(S_RB)}, {s(S_ROT)}
s_and_b32 {s(S_W4)}, {s(S_MX)}, 3
""")
if OPT["cpf"] == 1:
    E(f"""s_cmp_lt_u32 {s(S_MX)}, 4
s_cbranch_scc0 L_hrole""")
    E(code_pf)
    E("s_branch L_crole\nL_hrole:")
elif OPT["cpf"] >= 4:
    E(f"""s_cmp_lt_u32 {s(S_MX)}, 4
s_cbranch_scc0 L_hrole
s_getpc_b64 {s(S_T2,2)}
L_pc:
s_lshl2_add_u32 {s(S_T1)}, {s(S_T0)}, {s(S_W4)}
s_lshl_b32 {s(S_T1)}, {s(S_T1)}, 8
s_sub_u32 {s(S_T2)}, {s(S_T2)}, L_pc-{NAME}_kernel
s_subb_u32 {s(S_T3)}, {s(S_T3)}, 0
s_load_dword s70, {s(S_T2,2)}, {s(S_T1)}
s_add_u32 {s(S_T1)}, {s(S_T1)}, 128
s_load_dword s71, {s(S_T2,2)}, {s(S_T1)}""")
    if OPT["cpf"] == 5:
        E("s_waitcnt lgkmcnt(0)")
        for i, ptr in enumerate((6, 12, 4, 16, 20, 8, 14, 18, 22)):
            E(f"s_load_dword s{72+i}, {s(ptr,2)}, 0")
        for i in range(1, 5):
            E(f"s_mov_b32 {s(S_T1)}, {i << 21}\ns_load_dword s{80+i}, s[22:23], {s(S_T1)}")
    E("s_branch L_crole\nL_hrole:")
else:
    E(f"s_cmp_lt_u32 {s(S_MX)}, 4\ns_cbranch_scc1 L_crole")
late_ids = lines(f"""
s_lshr_b32 {s(S_T0)}, s2, 3
s_and_b32 {s(S_RB3)}, s2, 7
s_lshl_b32 {s(S_RB3)}, {s(S_RB3)}, 2
s_lshr_b32 {s(S_T1)}, {s(S_T0)}, 3
s_add_u32 {s(S_RB3)}, {s(S_RB3)}, {s(S_T1)}
s_and_b32 {s(S_CB)}, {s(S_T0)}, 7
s_lshl_b32 {s(S_HEAD)}, {s(S_HG)}, 2
s_add_u32 {s(S_HEAD)}, {s(S_HEAD)}, {s(S_W4)}
s_mov_b32 {s(S_LO16)}, 0xffff
s_mov_b32 {s(S_LO16+1)}, 0xffff
v_lshlrev_b32 {v(V_L16)}, 4, {v(V_LANE)}
""")
rot_code = {
 0: f"s_and_b32 {s(S_ROT)}, {s(S_ROT)}, {OPT['rotmask']}",
 1: f"s_and_b32 {s(S_ROT)}, s2, 7",
 4: f"s_add_u32 {s(S_ROT)}, {s(S_ROT)}, {s(S_HG)}\ns_and_b32 {s(S_ROT)}, {s(S_ROT)}, 7",
 5: f"s_add_u32 {s(S_ROT)}, {s(S_ROT)}, {s(S_HG)}\ns_and_b32 {s(S_ROT)}, {s(S_ROT)}, 3\ns_lshl_b32 {s(S_ROT)}, {s(S_ROT)}, 1",
 6: f"s_add_u32 {s(S_ROT)}, {s(S_ROT)}, {s(S_HG)}\ns_and_b32 {s(S_ROT)}, {s(S_ROT)}, 1\ns_lshl_b32 {s(S_ROT)}, {s(S_ROT)}, 2",
}[OPT["rotmode"]]

def stage_of(n): return n if n < 16 else 16 + ((n - 16) >> 1)
def first_of_stage(n): return n < 32 and (n == 0 or stage_of(n) != stage_of(n - 1))
def mfma16(d, a, b, c): return f"v_mfma_f32_16x16x32_bf16 {d}, {a}, {b}, {c}"

H = Role("H"); P = H.P
VX, VW1, VW2 = 160, 162, 166
V_AXW, V_AG, V_GPW, GACC, XW, GF = 170, 171, 172, 174, 176, 184
i3, i4, p7, t0, t1, t2 = 32, 33, 34, 35, 36, 37
def raw(i):
    if OPT["fine"] == 3: P(f"s_memtime s[{68+2*i}:{69+2*i}]")
raw(0)
P(rot_code)
P(f"""
v_lshrrev_b32 {v(i3)}, 3, {v(V_LANE)}
v_lshrrev_b32 {v(i4)}, 4, {v(V_LANE)}
v_and_b32 {v(p7)}, 7, {v(V_LANE)}
s_lshl_b32 {s(S_T0)}, {s(S_W4)}, 4
v_add_u32 {v(t0)}, {s(S_T0)}, {v(i3)}
v_lshlrev_b32 {v(t0)}, 10, {v(t0)}
v_xor_b32 {v(t1)}, {v(p7)}, {v(i4)}
v_lshl_add_u32 {v(VX)}, {v(t1)}, 4, {v(t0)}
v_xor_b32 {v(VX+1)}, 64, {v(VX)}
v_add_u32 {v(VX+1)}, {0x2000 - 1024}, {v(VX+1)}
s_lshr_b32 {s(S_T0)}, {s(S_W4)}, 1
s_and_b32 {s(S_T1)}, {s(S_W4)}, 1
s_lshl_b32 {s(S_K)}, {s(S_T0)}, 4
v_add_u32 {v(t0)}, {s(S_K)}, {v(i4)}
v_mul_u32_u24 {v(t0)}, 0xc00, {v(t0)}
v_lshlrev_b32 {v(t1)}, 1, {v(i4)}
v_xor_b32 {v(t1)}, {v(t1)}, {v(p7)}
v_lshl_add_u32 {v(t0)}, {v(t1)}, 4, {v(t0)}
v_and_b32 {v(t1)}, 1, {v(i3)}
v_xor_b32 {v(t1)}, {s(S_T1)}, {v(t1)}
v_lshlrev_b32 {v(t1)}, 10, {v(t1)}
s_lshl_b32 {s(S_T2)}, {s(S_HG)}, 7
s_add_u32 {s(S_K)}, {s(S_T2)}, 1024
v_add3_u32 {v(VW1)}, {v(t0)}, {v(t1)}, {s(S_K)}
v_add_u32 {v(VW1+1)}, {12288 - 1024}, {v(VW1)}
v_xor_b32 {v(t1)}, 0x400, {v(t1)}
v_add3_u32 {v(VW1+2)}, {v(t0)}, {v(t1)}, {s(S_K)}
v_add_u32 {v(VW1+3)}, {3*(12288 - 1024)}, {v(VW1+2)}
v_add_u32 {v(VW1+2)}, {2*(12288 - 1024)}, {v(VW1+2)}
s_lshl_b32 {s(S_MW)}, {s(S_T1)}, 13
s_lshl_b32 {s(S_K)}, {s(S_T0)}, 12
s_add_u32 {s(S_MW)}, {s(S_MW)}, {s(S_K)}
s_lshl_b32 {s(S_MX)}, {s(S_W4)}, 11
s_add_u32 {s(S_MX)}, {s(S_MX)}, {L_X}""")
raw(1)
P("s_waitcnt lgkmcnt(0)")
if OPT["wsoff"]: P(f"s_add_u32 s22, s22, {OPT['wsoff'] << 20}\ns_addc_u32 s23, s23, 0")
raw(2)
P.add(entry_stamp())
P.add(srd(S_X, 4, 2097152))
P(f"""s_cmp_eq_u32 {s(S_T1)}, 0
s_cselect_b32 {s(S_W)}, s6, s12
s_cselect_b32 {s(S_W+1)}, s7, s13
s_mov_b32 {s(S_W+2)}, 1572864
s_mov_b32 {s(S_W+3)}, 0x20000""")
if OPT["fine"] != 3: H.stamp()
def dma(voff, rsrc, soff, imm, tag, flags=""):
    flags = flags or ("", " sc1", " nt", " sc0", " sc0 sc1")[OPT["dfl"]]
    return Ins(f"buffer_load_dwordx4 {v(voff)}, {s(rsrc,4)}, {soff} offen{' offset:%d' % imm if imm else ''}{flags} lds", tag)
def x_dma(j):
    return [f"s_add_u32 {s(S_K)}, {s(S_ROT)}, {j}", f"s_and_b32 {s(S_K)}, {s(S_K)}, 7", f"s_lshl_b32 {s(S_K)}, {s(S_K)}, 7",
            f"s_lshl_b32 {s(S_T2)}, {s(S_RB)}, 16", f"s_add_u32 m0, {s(S_MX)}, {j*8192}", f"s_add_u32 {s(S_K)}, {s(S_K)}, {s(S_T2)}",
            dma(VX, S_X, s(S_K), 0, f"x{j}"), dma(VX+1, S_X, s(S_K), 1024, f"x{j}")]
def w_dma(S):
    if S < 16:
        o = [f"s_lshl_b32 {s(S_T3)}, {s(S_ROT)}, 1", f"s_add_u32 {s(S_T3)}, {s(S_T3)}, {S}", f"s_and_b32 {s(S_T3)}, {s(S_T3)}, 15"]
    else:
        o = [f"s_add_u32 {s(S_T3)}, {s(S_ROT)}, {S-16}", f"s_and_b32 {s(S_T3)}, {s(S_T3)}, 7"]
    o += [f"s_add_u32 m0, {s(S_MW)}, {(S % NSLOT)*SLOT}", f"s_mul_i32 {s(S_T3)}, {s(S_T3)}, {(32 if S < 16 else 64)*3072}"]
    return o + [dma((VW1 if S < 16 else VW2) + t, S_W, s(S_T3), t*1024, f"w{S}") for t in range(4)]
P.add(x_dma(0)); raw(3)
P.add(w_dma(0)); raw(4)
P.add(w_dma(1)); raw(5)
P(f"""s_lshl_b32 {s(S_K)}, {s(S_ROT)}, 3
v_add_u32 {v(t2)}, {s(S_K)}, {v(V_LANE)}
v_and_b32 {v(t2)}, 63, {v(t2)}
v_lshlrev_b32 {v(t2)}, 4, {v(t2)}""")
P.add(srd(S_G, 16, 1024)); P(f"s_mov_b32 m0, {L_G}"); P.add(dma(t2, S_G, "0", 0, "w1"))
P.add(late_ids)
h_misc = lines(f"""
s_lshr_b32 {s(S_T0)}, {s(S_W4)}, 1
s_and_b32 {s(S_T1)}, {s(S_W4)}, 1
s_lshl_b32 {s(S_T0)}, {s(S_T0)}, 5
v_add_u32 {v(t0)}, {s(S_T0)}, {v(i3)}
v_mul_u32_u24 {v(t0)}, 0xc00, {v(t0)}
v_and_b32 {v(t1)}, 1, {v(i4)}
v_lshlrev_b32 {v(t1)}, 1, {v(t1)}
v_xor_b32 {v(t1)}, {v(t1)}, {v(p7)}
v_lshlrev_b32 {v(t1)}, 4, {v(t1)}
s_lshl_b32 {s(S_T0)}, {s(S_HG)}, 7
v_add3_u32 {v(VW2)}, {v(t0)}, {v(t1)}, {s(S_T0)}
v_xor_b32 {v(t1)}, 64, {v(t1)}
v_add3_u32 {v(VW2+1)}, {v(t0)}, {v(t1)}, {s(S_T0)}
v_add_u32 {v(VW2+2)}, {2*(24576 - 1024)}, {v(VW2)}
v_add_u32 {v(VW2+3)}, {3*(24576 - 1024)}, {v(VW2+1)}
v_add_u32 {v(VW2+1)}, {24576 - 1024}, {v(VW2+1)}
""") + srd(S_WS, 22, WS_SIZE) + srd(S_DBG, 20, 256)
P.add(h_misc)
if OPT["fine"] == 3:
    raw(6); P("s_waitcnt vmcnt(9)"); raw(7); P("s_waitcnt vmcnt(5)"); raw(8); P("s_waitcnt lgkmcnt(0)")
    for i in range(9):
        P(f"v_writelane_b32 {v(V_STAMP)}, s{68+2*i}, {i+1}")
    H.ns = 9
VWO, VKF, V1A, V1D, V_MB, V_HB = 160, 161, 162, 164, 12, 13
txt_of = lambda x: x.text if isinstance(x, Ins) else x
special_txt = []
def gather(tiles, special):
    o = []
    if 0 in tiles:
        o += [f"s_lshl_b32 {s(S_K)}, {s(S_HEAD)}, 17", f"s_lshl_b32 {s(S_T1)}, {s(S_RB)}, 12",
              f"s_add_u32 {s(S_T2)}, {s(S_K)}, {s(S_T1)}", f"s_sub_u32 {s(S_T2)}, {s(S_T2)}, {8*2048}"]
    for u in tiles:
        tag = "kv" if u < 4 or not OPT["t2"] else "kvb"
        o += [f"s_add_u32 {s(S_T0)}, {s(S_T2)}, {u*2048}", f"s_add_u32 m0, {s(S_MW)}, {u*KVS}"]
        if special:
            o += [f"s_cmp_ge_u32 {s(S_RB)}, {(8-u+1)//2}", f"s_cbranch_scc1 L_gk{u}",
                  dma(VKF, S_WS, s(S_K), 0, None, " sc1"), f"s_mov_b32 {s(S_T0)}, {WS_SIZE}", f"s_branch L_gk{u}e", f"L_gk{u}:",
                  dma(V_L16, S_WS, s(S_T0), 0, None, " sc1"), f"L_gk{u}e:"]
        else:
            o += [dma(V_L16, S_WS, s(S_T0), 0, tag, " sc1")]
        o += [dma(V_L16, S_WS, s(S_T0), 1024, tag, " sc1")]
    return o
def emit_gather(n, tiles):
    P(f"s_cmp_lt_u32 {s(S_RB)}, 4\ns_cbranch_scc1 L_gspecial{n}")
    P.add(gather(tiles, False)); P(f"L_gdone{n}:")
    special_txt.append(f"L_gspecial{n}:\n" + "\n".join(("" if txt_of(x).endswith(":") else "    ") + txt_of(x) for x in gather(tiles, True))
                       + f"\n    s_branch L_gdone{n}\n")
S_R3, S_WB, S_MA, S_MB = 24, 25, 30, 31
B0, B1, A0, A1, A2, A3, VOG, EXW, EXR, VOUT = 16, 17, 24, 25, 26, 27, 18, 20, 23, 19
ACC3, OFB, OFA, WBF = 32, 96, 192, 176
issued_w, issued_x = 2, 1

for S in range(25):
    if S < 24:
        P.add(WaitTag(f"w{S}", f"x{S >> 1}" if S < 16 else "none"))
    if S < 20: P.add(WaitLds())
    P("s_barrier")
    if OPT["fine"] in (1, 2, 3) or S in (0, 16, 24): H.stamp()
    mark = len(P.items)
    top = {0: 3}.get(S, S + 4)
    if S in (14, 15, 16) and OPT["hold"]: top = min(top, 20 - OPT["hold"])
    while issued_w <= min(top, 23):
        if issued_w < 16 and issued_w % 2 == 0 and issued_x <= issued_w // 2:
            P.add(x_dma(issued_x)); issued_x += 1
        P.add(w_dma(issued_w)); issued_w += 1
    if OPT["icpf"] and S == 1:
        t = (f"    s_getpc_b64 s[78:79]\nL_pc:\n    s_sub_u32 s78, s78, L_pc-{NAME}_kernel\n    s_subb_u32 s79, s79, 0\n    s_lshr_b32 {s(S_T1)}, s2, 3\n"
             f"    s_lshl2_add_u32 {s(S_T1)}, {s(S_T1)}, {s(S_W4)}\n    s_lshl_b32 {s(S_T1)}, {s(S_T1)}, 8\n")
        t += "".join(f"    s_load_dword s{80+i}, s[78:79], {s(S_T1)} offset:{i*64}\n" for i in range(4))
        P.add(Raw(t))
    if OPT["tlb"] and S in (3, 4, 5, 6):
        for i, (ptr, off) in enumerate({3: ((22, 0), (22, 1)), 4: ((22, 2), (22, 4)), 5: ((22, 3), (20, 0)), 6: ((18, 0),)}[S]):
            P.add(Raw(f"    s_mov_b32 {s(S_T1)}, {off << 21}\n    s_load_dword s{70+i}, {s(ptr,2)}, {s(S_T1)}"))
    if OPT["wopf"] and S in (8, 9, 10, 11):
        ptr, half = (14, 8)[(S - 8) >> 1], S & 1
        t = f"    s_lshl2_add_u32 {s(S_T1)}, s2, {s(S_W4)}\n    s_lshl_b32 {s(S_T1)}, {s(S_T1)}, 9\n"
        t += "".join(f"    s_load_dword s{73+i}, {s(ptr,2)}, {s(S_T1)} offset:{half*256+i*64}\n" for i in range(4))
        P.add(Raw(t))
    if S == 8: P(ep_load)
    if S == 14:
        P(f"""v_lshrrev_b32 v48, 5, {v(V_LANE)}
v_bfe_u32 v49, {v(V_LANE)}, 2, 2
v_lshl_add_u32 v48, v48, 2, v49
v_and_b32 v49, 2, v49
v_bfe_u32 v50, {v(V_LANE)}, 4, 1
v_xor_b32 v49, v49, v50
s_and_b32 {s(S_T1)}, {s(S_W4)}, 2
v_xor_b32 v49, {s(S_T1)}, v49
v_lshlrev_b32 v49, 5, v49
v_lshl_add_u32 v48, v48, 7, v49
v_and_b32 v49, 3, {v(V_LANE)}
v_lshl_add_u32 v48, v49, 3, v48
s_lshl_b32 {s(S_MX)}, {s(S_W4)}, 14
s_lshl_b32 {s(S_T0)}, {s(S_T1)}, 14
v_add_u32 {v(B0)}, {s(S_T0)}, v48
v_xor_b32 {v(B1)}, 64, {v(B0)}
v_xor_b32 v49, 64, v48
s_mul_i32 {s(S_T0)}, {s(S_T1)}, 6144
s_add_u32 {s(S_T0)}, {s(S_T0)}, {L_WA}
v_add_u32 {v(A0)}, {s(S_T0)}, v48
v_add_u32 {v(A1)}, {s(S_T0)}, v49
s_mul_i32 {s(S_T0)}, {s(S_T1)}, 10240
s_add_u32 {s(S_T0)}, {s(S_T0)}, {L_KV}
v_add_u32 {v(A2)}, {s(S_T0)}, v48
v_add_u32 {v(A3)}, {s(S_T0)}, v49
""")
    if S == 15:
        P(f"""s_lshl_b32 {s(S_T0)}, {s(S_W4)}, 12
v_add_u32 {v(EXR)}, {s(S_T0)}, {v(V_L16)}
v_xor_b32 {v(EXW)}, 0x2000, {v(EXR)}
v_and_b32 {v(VOUT)}, 31, {v(V_LANE)}
v_lshlrev_b32 {v(VOUT)}, 10, {v(VOUT)}
v_lshrrev_b32 v48, 5, {v(V_LANE)}
v_lshl_add_u32 {v(VOUT)}, v48, 4, {v(VOUT)}
s_and_b32 {s(S_T2)}, {s(S_W4)}, 1
s_lshl_b32 {s(S_T2)}, {s(S_T2)}, 15
s_lshl_b32 {s(S_T0)}, {s(S_RB3)}, 16
s_add_u32 {s(S_T0)}, {s(S_T0)}, {s(S_T2)}
s_lshl_b32 {s(S_T1)}, {s(S_CB)}, 7
s_add_u32 {s(S_T0)}, {s(S_T0)}, {s(S_T1)}
s_and_b32 {s(S_T1)}, {s(S_W4)}, 2
s_lshl_b32 {s(S_T1)}, {s(S_T1)}, 5
s_add_u32 {s(S_T0)}, {s(S_T0)}, {s(S_T1)}
v_add_u32 {v(VOUT)}, {s(S_T0)}, {v(VOUT)}
s_lshl_b32 {s(S_T0)}, {s(S_RB3)}, 17
s_add_u32 {s(S_T0)}, {s(S_T0)}, {s(S_T2)}
s_lshl_b32 {s(S_T1)}, {s(S_T1)}, 8
s_add_u32 {s(S_T0)}, {s(S_T0)}, {s(S_T1)}
s_add_u32 {s(S_T0)}, {s(S_T0)}, {WS_O}
v_add_u32 {v(VOG)}, {s(S_T0)}, {v(V_L16)}
s_lshl_b32 {s(S_WB)}, {s(S_W4)}, 17
s_lshl_b32 {s(S_T1)}, {s(S_CB)}, 7
s_add_u32 {s(S_WB)}, {s(S_WB)}, {s(S_T1)}
s_lshl3_add_u32 {s(S_R3)}, {s(S_RB3)}, {s(S_CB)}
s_and_b32 {s(S_T1)}, {s(S_W4)}, 2
s_lshl2_add_u32 {s(S_R3)}, {s(S_R3)}, {s(S_T1)}
s_lshl_b32 {s(S_R3)}, {s(S_R3)}, 6""")
    if S == OPT["kvs"]:
        tail = P.items[mark:]; del P.items[mark:]
        P.add(flag_store("none", "kv")); P.items += tail
    if S == 16:
        P("s_waitcnt lgkmcnt(0)")
        H.poll(f"v_cmp_ne_u64 vcc, 0, {v(EP,2)}", ep_load)
        P(f"v_readfirstlane_b32 {s(S_EP)}, {v(EP)}\nv_readfirstlane_b32 {s(S_EP+1)}, {v(EP+1)}")
    if S == 19:
        P.add(srd(S_WOA, 8, 524288) + srd(S_WOB, 14, 524288) + srd(S_OUT, 18, 2097152))
    if S == 20:
        P(f"""v_lshrrev_b32 v48, 3, {v(V_LANE)}
v_bfe_u32 v49, {v(V_LANE)}, 4, 1
v_lshlrev_b32 v49, 2, v49
v_and_b32 v50, 7, {v(V_LANE)}
v_xor_b32 v49, v49, v50
v_lshlrev_b32 v49, 4, v49
v_lshl_add_u32 {v(VWO)}, v48, 10, v49
v_and_b32 {v(VKF)}, 32, {v(V_LANE)}
v_lshlrev_b32 {v(VKF)}, 4, {v(VKF)}
v_mul_u32_u24 {v(V1A)}, {KVS}, v50
v_bfe_u32 v51, {v(V_LANE)}, 3, 1
v_lshl_add_u32 {v(V1A)}, v51, 4, {v(V1A)}
s_mul_i32 {s(S_MW)}, {s(S_W4)}, {KVH}
s_add_u32 {s(S_MW)}, {s(S_MW)}, {L_KV}
s_add_u32 {s(S_T0)}, {s(S_MW)}, 2048
v_add_u32 {v(V1A)}, {s(S_T0)}, {v(V1A)}
s_lshl_b32 {s(S_T0)}, {s(S_RB)}, 1
v_add_u32 v48, {s(S_T0)}, v50
v_cmp_le_u32 vcc, 8, v48
v_mov_b32 v49, {hex(ONES)}
v_cndmask_b32 {v(V1D)}, 0, v49, vcc
v_subrev_u32 v51, 1, v51
v_and_b32 {v(V1D)}, v51, {v(V1D)}
v_mov_b32 {v(V1D+1)}, {v(V1D)}
v_mov_b32 {v(V1D+2)}, {v(V1D)}
v_mov_b32 {v(V1D+3)}, {v(V1D)}
s_mul_i32 {s(S_MA)}, {s(S_W4)}, 6144
s_add_u32 {s(S_MA)}, {s(S_MA)}, {L_WA}
s_mul_i32 {s(S_MB)}, {s(S_W4)}, 10240
s_add_u32 {s(S_MB)}, {s(S_MB)}, {L_KV - 6144}
s_lshl_b32 {s(S_K)}, {s(S_HEAD)}, 5
s_add_u32 {s(S_K)}, {s(S_K)}, {s(S_RB)}
s_lshl_b32 {s(S_K)}, {s(S_K)}, 6
s_add_u32 {s(S_K)}, {s(S_K)}, {WS_FKV}""")
    if S == OPT["gat"] - 1 - OPT["pasy"]:
        H.spoll_issue(4, S_K)
    if S == OPT["gat"] - 1:
        H.spoll(4, S_K, ignore_from=S_RB)
        H.stamp()
    if S == OPT["sents"]:
        P.add([f"v_mov_b32 {v(172+i)}, -1" for i in range(4)])
        P.add(o_store(0, 1, 172, "sent")); P.add(o_store(0, 0, 172, "sent"))
    if S == 23:
        P(f"ds_write_b128 {v(V1A)}, {v(V1D,4)}")
    if S == 24: P.add(Pace(OPT["pace0"]))
    if S == OPT["gat"] + OPT["gdel"]:
        emit_gather(0, tuple(range(OPT['g0'])))
if OPT["p1only"]:
    H.finish()
fs = lambda: H.stamp() if OPT["fine"] == 4 else None
P(f"s_setprio {OPT['hprio']}")
emit_gather(1, tuple(range(OPT['g0'], 8)))
def wo_dma(br):
    o = []
    for t in range(16):
        base = S_MX if br else (S_MA if t < 6 else S_MB)
        g = [f"s_add_u32 m0, {s(base)}, {t*1024}", f"s_add_u32 {s(S_T3)}, {s(S_WB)}, {t*8192}"]
        o.append(g + [dma(VWO, S_WOB if br else S_WOA, s(S_T3), 0, "wob" if br else ("woa" if t < 6 else "woc"))])
    return o
woa, wob = wo_dma(0), wo_dma(1)
P.add(wob[:OPT["wb0"]])
P.add(WaitTag("kv")); P.add(WaitLds()); P("s_barrier")
H.stamp()
if OPT["t2"]: P.add(WaitTag("kvb")); P("s_barrier")
if OPT["sents"] == 25:
    P.add([f"v_mov_b32 {v(172+i)}, -1" for i in range(4)])
    P.add(o_store(0, 1, 172, "sent")); P.add(o_store(0, 0, 172, "sent"))
P.add(Pace(OPT["pace"]))
rest = wob[OPT["wb0"]:] + woa[:6]
if OPT["zbar"]:
    P.add(rest[:OPT["wz"]]); rest = rest[OPT["wz"]:]
    P("s_barrier"); fs(); P.add(flag_store("sent", "ob"))
P.add(rest)
fs()
def o_gather(br):
    o = []
    for hs in range(16):
        if hs % 4 == 0: o += [f"s_mov_b32 {s(S_T1)}, {br*65536 + hs*1024}"]
        o += [ws_ld(v((OFA, OFB)[br]+4*hs,4), VOG, s(S_T1), (hs & 3)*1024)]
    return o
def wo_read(dst, hs, br):
    h, j = hs >> 3, hs & 7
    base, off = ((B0, B1), hs*2048) if br else (((A0, A1), h*6144 + j*2048) if j < 3 else ((A2, A3), h*10240 + (j-3)*2048))
    return [f"ds_read_b64_tr_b16 {v(dst+4*ct+2*q,2)}, {v(base[ct])} offset:{off+q*1024}" for ct in range(2) for q in range(2)]
FIN = ACC3 + 32
def p3(Q, br, hook=lambda hs: None):
    Q.add(wo_read(WBF, 0, br))
    for hs in range(16):
        b = hs & 1
        rd = wo_read(WBF + 8*(1-b), hs + 1, br) if hs < 15 else []
        for ct in ((0, 1) if hs < 15 else (1, 0)):
            acc = v((FIN, ACC3)[br]+16*ct, 16)
            c = acc if hs else ("0" if br else v(ACC3+16*ct, 16))
            Q(mfma(acc, v(WBF+8*b+4*ct,4), v((OFA, OFB)[br]+4*hs,4), c))
            Q.add(rd[2*ct:2*ct+2])
        hook(hs)
def sentinel_scan(hs):
    base = OFA + 4*hs
    first = [f"v_max3_u32 {v(TMP)}, {v(base)}, {v(base+1)}, {v(base+1)}"] if hs == 0 else [f"v_max3_u32 {v(TMP)}, {v(TMP)}, {v(base)}, {v(base+1)}"]
    return first + [f"v_max3_u32 {v(TMP)}, {v(TMP)}, {v(base+2)}, {v(base+3)}"]
P(f"s_add_u32 {s(S_K)}, {s(S_R3)}, {WS_FOB}")
P.add(WaitTag("wob")); P("s_barrier"); fs()
if not OPT["zbar"]: P.add(flag_store("sent", "ob"))
P.add(woa[6:11]); H.spoll_issue(16, S_K); P.add(woa[11:]); fs()
H.spoll(16, S_K); H.stamp()
P.add(o_gather(1)); fs()
P(f"s_setprio {OPT['p3prio']}")
p3(P, 1)
H.stamp()
P.add(WaitTag("woa", "woc")); P("s_barrier"); fs()
P.add(o_gather(0))
test = [f"v_cmp_ne_u32 vcc, -1, {v(TMP)}", "s_cmp_eq_u64 vcc, -1"]
p3(P, 0, lambda hs: P.add(sentinel_scan(hs)))
P.add(test); P("s_cbranch_scc0 L_retry\nL_ok:")
Q = Prog()
Q(f"L_retry:\ns_mov_b32 {s(S_SPIN)}, 0x20000\ns_nop 15\nL_again:"); Q.add(o_gather(0))
Q(f"s_sub_u32 {s(S_SPIN)}, {s(S_SPIN)}, 1\ns_waitcnt vmcnt(0)\ns_cbranch_scc1 L_redo")
for hs in range(16): Q.add(sentinel_scan(hs))
Q.add(test); Q("s_cbranch_scc0 L_again\nL_redo:")
p3(Q, 0); Q("s_nop 15\ns_branch L_ok")
retry_txt = [finalize(Q)]
H.stamp()
P.add([f"ds_write_b128 {v(EXW)}, {v(FIN+16+4*q,4)} offset:{q*1024}" for q in range(4)])
P.add(WaitLds()); P("s_barrier")
P.add([f"ds_read_b128 {v(OFB+4*q,4)}, {v(EXR)} offset:{q*1024}" for q in range(4)])
for hf in range(2):
    P.add([f"v_pk_add_f32 {v(FIN+8*hf+2*i,2)}, {v(FIN+8*hf+2*i,2)}, {v(OFB+8*hf+2*i,2)}" for i in range(4)])
    P.add([f"v_cvt_pk_bf16_f32 {v(WBF+4*hf+i)}, {v(FIN+8*hf+2*i)}, {v(FIN+8*hf+2*i+1)}" for i in (0, 2, 1, 3)])
    P(f"v_permlane32_swap_b32 {v(WBF+4*hf)}, {v(WBF+4*hf+2)}\nv_permlane32_swap_b32 {v(WBF+4*hf+1)}, {v(WBF+4*hf+3)}")
    P(f"buffer_store_dwordx4 {v(WBF+4*hf,4)}, {v(VOUT)}, {s(S_OUT,4)}, 0 offen{' offset:32' if hf else ''}{('', ' sc1', ' nt', ' sc0 sc1')[OPT['outsc']]}")
H.stamp()
H.finish()

C = Role("C"); P = C.P
T1, T3, T2 = 32, 64, 96
XB, WB = 128, 160
V_AX, V_P0L, V_P0H, V_P1L, V_P1H, V_T2L, V_T2H = 192, 194, 195, 196, 197, 198, 199
V_LO, V_HI, V_CMR = 200, 201, 202
VPK = 224
r5, hh, rr, cc, nh, u0, u1, cm, g4 = 128, 129, 130, 131, 132, 133, 134, 135, 140
P("L_crole:")
P.add(late_ids)
if OPT["prio"]: P("s_setprio 1")
P(f"""
v_and_b32 {v(r5)}, 31, {v(V_LANE)}
v_lshrrev_b32 {v(hh)}, 5, {v(V_LANE)}
v_lshrrev_b32 {v(g4)}, 4, {v(V_LANE)}
v_and_b32 {v(u1)}, 15, {v(V_LANE)}
v_lshrrev_b32 {v(u0)}, 1, {v(u1)}
v_xor_b32 {v(u0)}, {v(u0)}, {v(g4)}
v_lshlrev_b32 {v(u0)}, 4, {v(u0)}
v_lshl_add_u32 {v(u0)}, {v(u1)}, 7, {v(u0)}
v_add_u32 {v(V_AX)}, {L_X}, {v(u0)}
v_xor_b32 {v(V_AX+1)}, 64, {v(V_AX)}
v_bfe_u32 {v(rr)}, {v(V_LANE)}, 2, 2
v_and_b32 {v(cc)}, 3, {v(V_LANE)}
v_and_b32 {v(nh)}, 1, {v(g4)}
v_lshl_add_u32 {v(u0)}, {v(g4)}, 3, {v(rr)}
v_xor_b32 {v(u1)}, {s(S_W4)}, {v(rr)}
v_lshlrev_b32 {v(u1)}, 5, {v(u1)}
v_lshl_add_u32 {v(u1)}, {v(cc)}, 3, {v(u1)}
v_lshl_add_u32 {v(u1)}, {v(u0)}, 8, {v(u1)}
v_lshl_add_u32 {v(V_P0L)}, {v(nh)}, 7, {v(u1)}
v_add_u32 {v(V_P0H)}, 0x10000, {v(V_P0L)}
v_xor_b32 {v(V_P1L)}, 0x80, {v(V_P0L)}
v_xor_b32 {v(V_P1H)}, 0x80, {v(V_P0H)}
v_lshrrev_b32 {v(u1)}, 1, {v(rr)}
v_lshl_add_u32 {v(u1)}, {v(nh)}, 1, {v(u1)}
v_xor_b32 {v(u1)}, {s(S_W4)}, {v(u1)}
v_lshlrev_b32 {v(u1)}, 5, {v(u1)}
v_lshl_add_u32 {v(u1)}, {v(cc)}, 3, {v(u1)}
v_lshl_add_u32 {v(V_T2L)}, {v(u0)}, 7, {v(u1)}
v_add_u32 {v(V_T2H)}, 0x10000, {v(V_T2L)}
v_and_b32 {v(u0)}, 15, {v(V_LANE)}
v_lshlrev_b32 {v(u0)}, 4, {v(u0)}
v_lshl_add_u32 {v(u0)}, {v(hh)}, 8, {v(u0)}
v_lshl_add_u32 {v(V_LO)}, {v(nh)}, 31, {v(u0)}
v_xor_b32 {v(V_HI)}, {OOB}, {v(V_LO)}
v_lshlrev_b32 {v(u0)}, 2, {v(hh)}
v_sub_u32 {v(cm)}, {v(r5)}, {v(u0)}
v_sub_u32 {v(u0)}, 32, {v(cm)}
v_mov_b32 {v(u1)}, {hex(~0x55540001 & 0xffffffff)}
v_alignbit_b32 {v(V_CMR)}, {v(u1)}, {v(u1)}, {v(u0)}
s_waitcnt lgkmcnt(0)""")
if OPT["wsoff"]: P(f"s_add_u32 s22, s22, {OPT['wsoff'] << 20}\ns_addc_u32 s23, s23, 0")
P.add(entry_stamp())
P(f"""s_memrealtime {s(S_TM,2)}
s_mov_b32 {s(S_C)}, {fhex(QK_SCALE)}
s_mov_b32 {s(S_C+1)}, {fhex(QK_SCALE)}
""")
def l2_prefetch():
    a, b = 140, 141
    o = lines(f"""s_lshr_b32 {s(S_T0)}, s2, 3
s_and_b32 {s(S_T1)}, {s(S_HG)}, 4
s_lshl_b32 {s(S_T1)}, {s(S_T1)}, 7
v_and_b32 {v(a)}, 3, {v(V_LANE)}
v_lshlrev_b32 {v(a)}, 7, {v(a)}
s_cmp_eq_u32 {s(S_W4)}, 2
s_cbranch_scc1 L_pfx
s_cmp_eq_u32 {s(S_W4)}, 3
s_cbranch_scc1 L_pfq
s_cmp_eq_u32 {s(S_W4)}, 0
s_cselect_b32 {s(S_W)}, s6, s12
s_cselect_b32 {s(S_W+1)}, s7, s13
s_mov_b32 {s(S_W+2)}, 1572864
s_mov_b32 {s(S_W+3)}, 0x20000
v_bfe_u32 {v(b)}, {v(V_LANE)}, 2, 1
v_lshl_add_u32 {v(a)}, {v(b)}, 10, {v(a)}
v_lshrrev_b32 {v(b)}, 3, {v(V_LANE)}
v_mul_u32_u24 {v(b)}, 0xc00, {v(b)}
v_add_u32 {v(a)}, {v(a)}, {v(b)}
s_mul_i32 {s(S_T0)}, {s(S_T0)}, {8*3072}
s_add_u32 {s(S_T0)}, {s(S_T0)}, {s(S_T1)}
s_add_u32 {s(S_T0)}, {s(S_T0)}, 1024
buffer_load_dword v190, {v(a)}, {s(S_W,4)}, {s(S_T0)} offen
s_add_u32 {s(S_T0)}, {s(S_T0)}, {256*3072}
buffer_load_dword v191, {v(a)}, {s(S_W,4)}, {s(S_T0)} offen
s_branch L_pfe
L_pfx:
s_mov_b32 {s(S_W)}, s4
s_mov_b32 {s(S_W+1)}, s5
s_mov_b32 {s(S_W+2)}, 2097152
s_mov_b32 {s(S_W+3)}, 0x20000
v_lshrrev_b32 {v(b)}, 2, {v(V_LANE)}
v_lshl_add_u32 {v(a)}, {v(b)}, 10, {v(a)}
s_lshl_b32 {s(S_T0)}, {s(S_T0)}, 14
s_and_b32 {s(S_T1)}, {s(S_RB)}, 24
s_lshl_b32 {s(S_T1)}, {s(S_T1)}, 16
s_add_u32 {s(S_T0)}, {s(S_T0)}, {s(S_T1)}
buffer_load_dword v190, {v(a)}, {s(S_W,4)}, {s(S_T0)} offen
buffer_load_dword v191, {v(a)}, {s(S_W,4)}, {s(S_T0)} offen offset:512
s_branch L_pfe
L_pfq:
s_mov_b32 {s(S_W)}, s6
s_mov_b32 {s(S_W+1)}, s7
s_mov_b32 {s(S_W+2)}, 1572864
s_mov_b32 {s(S_W+3)}, 0x20000
v_lshrrev_b32 {v(b)}, 2, {v(V_LANE)}
v_mul_u32_u24 {v(b)}, 0xc00, {v(b)}
v_add_u32 {v(a)}, {v(a)}, {v(b)}
s_mul_i32 {s(S_T0)}, {s(S_T0)}, {16*3072}
s_add_u32 {s(S_T0)}, {s(S_T0)}, {s(S_T1)}
buffer_load_dword v190, {v(a)}, {s(S_W,4)}, {s(S_T0)} offen
s_mov_b32 {s(S_W)}, s12
s_mov_b32 {s(S_W+1)}, s13
buffer_load_dword v191, {v(a)}, {s(S_W,4)}, {s(S_T0)} offen
L_pfe:""")
    P.add(Raw("\n".join(("" if l.endswith(":") else "    ") + l for l in o)))
    P("s_nop 0")
if OPT["pf"] == 1: l2_prefetch()
P.add(srd(S_WS, 22, WS_SIZE) + srd(S_DBG, 20, 256))
P(f"""s_cmp_eq_u32 s2, 0
s_cselect_b32 {s(S_T2)}, 0, {OOB}
v_lshlrev_b32 v5, 8, v0
v_or_b32 v5, {s(S_T2)}, v5
s_waitcnt lgkmcnt(0)
v_mov_b32 {v(EP)}, {s(S_TM)}
v_mov_b32 {v(EP+1)}, {s(S_TM+1)}
buffer_store_dwordx2 {v(EP,2)}, v5, {s(S_DBG,4)}, 0 offen sc1""")
V_AXW, V_AG, V_GPW, V_GPR, XW, GF, GACC = 4, 8, 9, 13, 240, 248, 204
P(f"""s_lshl_b32 {s(S_T2)}, {s(S_W4)}, 11
v_add_u32 {v(V_AXW)}, {s(S_T2)}, {v(V_AX)}
v_add_u32 {v(V_AXW+1)}, {s(S_T2)}, {v(V_AX+1)}
v_lshlrev_b32 {v(V_AG)}, 4, {v(g4)}
v_add_u32 {v(V_AG)}, {L_G}, {v(V_AG)}
v_lshlrev_b32 {v(V_GPR)}, 2, {v(r5)}
v_add_u32 {v(V_GPR)}, {L_GP}, {v(V_GPR)}
v_and_b32 {v(u0)}, 15, {v(V_LANE)}
s_lshl_b32 {s(S_T2)}, {s(S_W4)}, 6
s_add_u32 {s(S_T2)}, {s(S_T2)}, {L_GP}
v_lshl_add_u32 {v(V_GPW)}, {v(u0)}, 2, {s(S_T2)}""")
def x_warm(js):
    t = (f"    s_lshl2_add_u32 {s(S_T0)}, s2, {s(S_W4)}\n    s_lshr_b32 {s(S_T1)}, {s(S_T0)}, 5\n    s_lshl_b32 {s(S_T0)}, {s(S_T0)}, 11\n")
    for j in js:
        t += f"    s_add_u32 {s(S_K)}, {s(S_T1)}, {j}\n    s_and_b32 {s(S_K)}, {s(S_K)}, 7\n    s_lshl_b32 {s(S_K)}, {s(S_K)}, 7\n    s_add_u32 {s(S_K)}, {s(S_K)}, {s(S_T0)}\n"
        t += "".join(f"    s_load_dword s{28+i}, s[4:5], {s(S_K)} offset:{(i >> 1)*1024 + (i & 1)*64}\n" for i in range(4))
    P.add(Raw(t))
if OPT["xwarm"] == 1: x_warm((1, 2, 3))
P.add(attn_setup(0, 136))
if OPT["xwarm"] == 2: x_warm((1, 2, 3))
if OPT["xwarm"]:
    P("s_waitcnt lgkmcnt(0)"); x_warm((4, 5, 6)); P("s_waitcnt lgkmcnt(0)"); x_warm((7,)); P("s_waitcnt lgkmcnt(0)")
C.stamp()

CM, QB, KB, VB, KBH, VBH, BP, BPL, BPK, SENT, S_R0 = 176, 248, 240, 32, 80, 84, 192, 88, 88, 220, 24
BS2, BSP2, BO2 = (96, 48), (128, 112), (160, 144)
def b_scores(t):
    kprev = v(KB, 4) if t == 1 else v(KBH, 4)
    return [mfma(v(BS2[t],16), v(KB+4*t,4), v(QB+4*t,4), v(CM,16)), mfma(v(BSP2[t],16), kprev, v(QB+4*t,4), v(CM,16))]
def b_softmax(t):
    S, sp, m, p, pl = BS2[t], BSP2[t], TMP + 2*t, BP + 8*t, BPL + 4*t
    o = [f"v_cndmask_b32 {v(S+q)}, {v(S+q)}, {v(sp+q)}, {s(S_LO16,2)}" for q in range(8, 16)]
    if t == 0:
        o += [f"v_mov_b32 {v(m)}, {hex(NEG_BIG)}"]
        o += [f"v_cndmask_b32 {v(S+q)}, {v(S+q)}, {v(m)}, {s(S_R0,2)}" for q in range(8, 16)]
    o += max_tree(m, range(S, S+16)) + cross_max(m, m+1)
    o += [f"v_pk_add_f32 {v(S+2*q,2)}, {v(S+2*q,2)}, {v(m,2)} op_sel_hi:[1,0] neg_lo:[0,1] neg_hi:[0,1]" for q in range(8)]
    o += [f"v_exp_f32 {v(S+q)}, {v(S+q)}" for q in range(16)]
    o += [f"v_cvt_pk_bf16_f32 {v(p+i)}, {v(S+2*i)}, {v(S+2*i+1)}" for i in range(8)]
    o += [f"v_cndmask_b32 {v(pl+i)}, 0, {v(p+4+i)}, {s(S_LO16,2)}" for i in range(4)]
    o += [f"v_cndmask_b32 {v(p+4+i)}, {v(p+4+i)}, 0, {s(S_LO16,2)}" for i in range(4)]
    return o
def b_pv(t):
    vprev, acc, p = v(VB+4, 4) if t == 1 else v(VBH, 4), v(BO2[t], 16), BP + 8*t
    return [mfma(acc, v(VB+8*t,4), v(p,4), "0"), mfma(acc, v(VB+8*t+4,4), v(p+4,4), acc), mfma(acc, vprev, v(BPL+4*t,4), acc)]
def b_pack(t):
    f = 200 + 2*t
    return o_pack(BO2[t], 8, 0, [f"v_sub_f32 {v(f+1)}, 1.0, {v(G0+t)}", f"v_mul_f32 {v(f)}, {v(f)}, {v(f+1)}"], BPK+4*t, f)
def frag_reads(n):
    b, m = n & 1, n & 15
    j, u2 = m >> 1, m & 1
    base = (stage_of(n) % NSLOT) * SLOT
    hi = base >= 65536; off = base - (65536 if hi else 0)
    x = [f"ds_read_b128 {v(XB+16*b+4*tg,4)}, {v(V_AX+u2)} offset:{j*8192+tg*2048}" for tg in range(4)]
    if n < 16:
        w = [f"ds_read_b64_tr_b16 {v(WB+16*b+4*f+2*qd,2)}, {v(((V_P0L,V_P0H),(V_P1L,V_P1H))[pos][hi])} offset:{off+M*8192+qd*1024}"
             for f, (M, pos) in enumerate(((0, 0), (1, 1), (0, 1), (1, 0))) for qd in range(2)]
        return w[0:2] + x[0:2] + w[2:4] + x[2:4] + w[4:8]
    w = [f"ds_read_b64_tr_b16 {v(WB+8*b+4*M+2*qd,2)}, {v((V_T2L,V_T2H)[hi])} offset:{off+M*8192+u2*4096+qd*512}" for M in range(2) for qd in range(2)]
    return w[0:2] + x[0:2] + w[2:4] + x[2:4]
def step_mfmas(n):
    b = n & 1
    x = lambda tg: v(XB+16*b+4*tg, 4)
    c = lambda r: "0" if n in (0, 16) else v(r, 4)
    kq = lambda T, wbase: [mfma16(v(T+16*f+4*tg,4), v(wbase+4*f,4), x(tg), c(T+16*f+4*tg)) for hf in range(2) for f in range(2) for tg in (2*hf, 2*hf+1)]
    if n < 16:
        return kq(T1, WB+16*b) + [mfma16(v(T3+16*f+4*tg,4), x(tg), v(WB+16*b+8+4*f,4), c(T3+16*f+4*tg)) for f in range(2) for tg in range(4)]
    return kq(T2, WB+8*b)
def kq_frag(dst, T, tt, scale):
    a = T + 8*tt
    o = [f"v_pk_mul_f32 {v(a+2*i,2)}, {v(a+2*i,2)}, {s(S_C,2)}" for i in range(4)] if scale else []
    o += [f"v_cvt_pk_bf16_f32 {v(dst+i)}, {v(a+2*i)}, {v(a+2*i+1)}" for i in (0, 2, 1, 3)]
    return o, [f"v_permlane16_swap_b32 {v(dst+i)}, {v(dst+2+i)}" for i in range(2)]
def v_frag(tg):
    d = VPK + 4*tg
    o = [f"v_cvt_pk_bf16_f32 {v(d+2*f+i)}, {v(T3+16*f+4*tg+2*i)}, {v(T3+16*f+4*tg+2*i+1)}" for i in range(2) for f in range(2)]
    return o, [f"v_permlane16_swap_b32 {v(d+i)}, {v(d+2+i)}" for i in range(2)], [f"v_permlane32_swap_b32 {v(d+i)}, {v(d+2+i)}" for i in range(2)]
def kv_publish():
    o = [f"s_lshl_b32 {s(S_T0)}, {s(S_HEAD)}, 17", f"s_lshl_b32 {s(S_T1)}, {s(S_RB)}, 12", f"s_add_u32 {s(S_T0)}, {s(S_T0)}, {s(S_T1)}"]
    k = [kq_frag(KA+4*tt, T1, tt, True) for tt in range(2)]
    o += k[0][0] + k[1][0] + k[0][1] + k[1][1] + [ws_st(v(KA+4*tt,4), V_L16, s(S_T0), tt*2048, "kv") for tt in range(2)]
    for tt in range(2):
        f = [v_frag(2*tt + m) for m in range(2)]
        o += f[0][0] + f[1][0] + f[0][1] + f[1][1] + f[0][2] + f[1][2]
        o += [ws_st(v(VPK+8*tt+4*m,4), V_LO, s(S_T0), tt*2048+1024+m*512, "kv") for m in range(2)]
    o += [f"s_lshl_b32 {s(S_T0)}, {s(S_HEAD)}, 15", f"s_lshl_b32 {s(S_T1)}, {s(S_RB)}, 10",
          f"s_add_u32 {s(S_T0)}, {s(S_T0)}, {s(S_T1)}", f"s_add_u32 {s(S_T0)}, {s(S_T0)}, {WS_HB}",
          ws_st(v(VPK+12,4), V_HI, s(S_T0), 512, "kv")]
    k = [kq_frag(KB+4*tt, T1+16, tt, True) for tt in range(2)]
    o += k[1][0] + k[0][0] + k[1][1] + [ws_st(v(KB+4,4), V_HI, s(S_T0), 0, "kv")] + k[0][1]
    return o

if OPT["p1only"]:
    P("s_barrier\n" * 25 + "s_endpgm")
P("s_barrier")
C.stamp()
P.add(frag_reads(0))
queue = []
gf = gate_finish(V_GPR, 88)
qb0, qb1, qa0, qa1 = kq_frag(QB, T2+16, 0, False), kq_frag(QB+4, T2+16, 1, False), kq_frag(QA, T2, 0, False), kq_frag(QA1, T2, 1, False)
for n in range(32):
    mf = step_mfmas(n)
    sync = first_of_stage(n + 1) or n == 31
    nxt_stage = stage_of(n + 1) if n < 31 else 24
    rd = frag_reads(n + 1) if n < 31 else []
    if n < 16:
        m, gb = (n + 1) & 15, (n + 1) & 1
        rd = rd + [f"ds_read_b128 {v(GF+4*gb,4)}, {v(V_AG)} offset:{m*64}", f"ds_read_b128 {v(XW+4*gb,4)}, {v(V_AXW+gb)} offset:{(m >> 1)*8192}"]
    gm = [mfma16(v(GACC,4), v(GF+4*(n&1),4), v(XW+4*(n&1),4), "0" if n == 1 else v(GACC,4))] if 1 <= n <= 16 else []
    late = []
    if n == 15:
        pub = kv_publish()
        if OPT["early"]:
            late, pub = pub[:25], pub[25:]
            mf = [mf[i] for i in (0, 1, 4, 5, 8, 9, 10, 11, 12, 13, 14, 15, 2, 3, 6, 7)]
    if n == 16: queue += pub
    if n == 31 and OPT["early"]:
        mf = [mf[i] for i in (2, 3, 6, 7, 0, 1, 4, 5)]
        late = gf[2:] + qb0[0] + qb1[0] + qb0[1] + qb1[1]
    if n == 21:
        queue += [f"v_and_b32 {v(TMP)}, 11, {v(V_LANE)}", f"v_mov_b32 {v(TMP+1)}, {hex(ONES)}", f"v_cmp_eq_u32 vcc, 0, {v(TMP)}",
                  f"v_cndmask_b32 {v(TMP)}, 0, {v(TMP+1)}, vcc", f"v_mov_b32 {v(TMP+1)}, {hex(NEG_BIG)}"]
        queue += [f"v_mov_b32 {v(VBH+i)}, {v(TMP)}" for i in range(4)]
        queue += [f"v_cndmask_b32 {v(VB+i)}, {v(VPK+i)}, {v(TMP)}, {s(S_LO16,2)}" for i in range(16)]
        queue += [f"v_cndmask_b32 {v(VA+i)}, {v(TMP)}, {v(VPK+i)}, {s(S_LO16,2)}" for i in range(16)]
        queue += [f"v_cndmask_b32 {v(CMA+q)}, {v(TMP+1)}, 0, {s(S_MASK+2*q,2)}" for q in range(16)]
        queue += [f"v_bfe_i32 {v(CM+q)}, {v(V_CMR)}, {8*(q>>2)+(q&3)}, 1" for q in range(16)]
        queue += [f"v_and_b32 {v(CM+q)}, {v(TMP+1)}, {v(CM+q)}" for q in range(16)]
    if n == 16: mf = mf[:2] + gm + mf[2:]
    else: mf = mf + gm
    post = []
    pre = []
    if sync and nxt_stage == 23:
        (pre if OPT["gpre"] else post).append(f"ds_write_b32 {v(V_GPW)}, {v(GACC)}")
    if sync and nxt_stage == OPT["gat"]:
        rd = rd + [lines(f"""s_lshl_b32 {s(S_T0)}, {s(S_HEAD)}, 15
s_lshl_b32 {s(S_T1)}, {s(S_RB)}, 10
s_add_u32 {s(S_T0)}, {s(S_T0)}, {s(S_T1)}
s_add_u32 {s(S_T0)}, {s(S_T0)}, {WS_HB - 1024}
s_cmp_eq_u32 {s(S_RB)}, 0
s_cselect_b32 {s(S_T0)}, {WS_SIZE}, {s(S_T0)}
s_cselect_b64 {s(S_R0,2)}, {s(S_LO16,2)}, 0""") + [ws_ld(v(KBH,4), V_HI, s(S_T0)), f"s_not_b64 exec, {s(S_LO16,2)}",
                 ws_ld(v(VBH,4), V_HI, s(S_T0), 512), "s_mov_b64 exec, -1"]]
    if n == 31: post += gf[:2]
    take = 8 if n < 16 else (OPT["take"] if n < 21 else OPT["take2"])
    side = queue[:take]; queue = queue[take:]
    P.add(pre); P(mf[0]); P(mf[1])
    if sync:
        if nxt_stage == OPT["kvs"]: P.add(WaitTag("kv")); C.stamp()
        P.add(WaitLds()); P("s_barrier")
        if OPT["fine"] in (1, 2, 3): C.stamp()
    P.add(post)
    body, k = rd, len(mf) - 2
    nr = max(1, k - (4 if n < 16 else 2))
    for i in range(k + 1):
        lo, hi_ = len(body) * i // nr, len(body) * (i + 1) // nr
        if i < nr: P.add(body[lo:hi_])
        slo, shi = len(side) * i // (k + 1), len(side) * (i + 1) // (k + 1)
        P.add(side[slo:shi])
        i0 = 7 if n == 15 else 2
        if late and i >= i0: P.add(late[len(late) * (i - i0) // (k + 1 - i0):len(late) * (i - i0 + 1) // (k + 1 - i0)])
        if i < k: P(mf[2 + i])
    if n == 15 or (OPT["fine"] == 6 and n < 31): C.stamp()
assert not queue
C.stamp()
sc = interleave(b_scores(0), b_scores(1))
if OPT["early"]:
    P(sc[1]); P.add(qa0[0]); P(sc[2]); P.add(qa1[0]); P(sc[0]); P.add(qa0[1] + qa1[1]); P(sc[3])
else:
    P.add(gf[2:]); P.add(qb0[0] + qa0[0] + qb0[1] + qb1[0] + qa1[0])
    P(sc[2]); P.add(qb1[1] + qa0[1]); P(sc[0]); P.add(qa1[1]); P(sc[1]); P(sc[3])
s1, s0 = b_softmax(1), b_softmax(0)
P.add(s0[:9])
sm = interleave(s0[9:], s1)
P.add(sm[:-16])
pv = interleave(b_pv(0), b_pv(1))
P(mfma(v(MG+16,16), v(KA+4,4), v(QA1,4), v(CMA,16))); P.add(sm[-16:-10]); P(mfma(v(MG,16), v(KA,4), v(QA,4), v(CMA,16))); P.add(sm[-10:])
mx = interleave(*[max_tree((TMP, TMP+2)[t], range(MG+16*t, MG+16*t+16)) + cross_max((TMP, TMP+2)[t], (TMP, TMP+2)[t]+1) for t in (1, 0)])
for i, m in enumerate(pv):
    P(m); P.add(mx[4*i:4*i+4])
ng = [[f"v_pk_add_f32 {v(NEGM+16*t+2*i,2)}, 0, {v((TMP, TMP+2)[t],2)} op_sel_hi:[0,0] neg_lo:[0,1] neg_hi:[0,1]" for i in range(8)] for t in range(2)]
P.add(ng[0])
BPK = 192
P.add(interleave(b_pack(0), b_pack(1)))
P.add(o_store(1, 0, BPK, "ob")); P.add(o_store(1, 1, BPK+4, "ob"))
P.add(ng[1])
C.stamp()
cs = lambda: C.stamp() if OPT["fine"] == 4 else None
cev = {("e1" if OPT["xhs"] < 0 else OPT["xhs"]): lambda: (P.add(WaitTag("ob")) if OPT["f2by"] else None, P.add(WaitLds()), P("s_barrier"))}
if not OPT["f2by"]: cev["e1" if OPT["f2hs"] < 0 else OPT["f2hs"]] = lambda: (cs(), P.add(flag_store("ob", "ob")), cs())
if OPT["zbar"]: cev[("e1", 0, 1)[OPT["zbar"] - 1]] = lambda: (P.add(WaitTag("ob")), P("s_barrier"))
window_attention(C, cev)
P.add(interleave(*[o_pack(OACC2[t], 0, 8, [f"v_mul_f32 {v(TMP+t)}, {v(TMP+t)}, {v(G0+t)}"], PF+4*t, TMP+t) for t in (1, 0)]))
P.add(o_store(0, 1, PF+4, "oa")); P.add(o_store(0, 0, PF, "oa"))
C.stamp()
C.finish()

full = Prog(); full.items = E.items + H.P.items
bodyH = finalize(full, verbose=True)
full = Prog(); full.items = [Ins("s_load_dwordx16 s[4:19], s[0:1], 0"), Ins("global_load_dword v13, v5, s[96:97]")] + C.P.items
bodyC = "\n".join(finalize(full, verbose=True).split("\n")[2:])
print("stamps H", H.ns, "C", C.ns)
hdr = open("cdna_kernels/%s.s.ref" % NAME).read().split("; Override launch")[0]
if OPT["stamps"]: hdr += f"; stamps {C.ns} {H.ns}\n"
txt = hdr + f"""; Single launch, 256 workgroups x 8 waves, one workgroup per CU (4 heads x 64 rows of both branches).
;   waves 0-3: QKV projection (one head each), dilated attention, sliding-window attention
;   waves 4-7: LDS-DMA streaming of x / weights / key-value tiles, then one 64x64 tile of the output projection
; Hand-offs between workgroups go through d_ws with write-through stores; flags carry a per-launch epoch published
; through d_debug, and the windowed-branch result slots are first filled with all-ones and re-read until overwritten.
; Window softmax: the shift is the maximum over the diagonal key tile; if a sum or output leaves the safe range the
; tile is recomputed with the true row maximum (L_exact0 / L_exact1).
; @launch grid=(256,1,1) block=(512,1,1) lds={LDS_BYTES}
.amdgcn_target "amdgcn-amd-amdhsa--gfx950"
.text
.globl {NAME}_kernel
.p2align 12
.p2align 8
.type {NAME}_kernel,@function
{NAME}_kernel:
{bodyH}{bodyC}L_end:
    s_endpgm
{''.join(retry_txt)}{''.join(special_txt)}{slow_path()}    .fill 3072, 4, 0xbf800000
.section .rodata,"a"
.p2align 6
.amdhsa_kernel {NAME}_kernel
  .amdhsa_next_free_vgpr 256
  .amdhsa_next_free_sgpr 102
  .amdhsa_accum_offset {192 if OPT['xp'] == 8 else 256}
  .amdhsa_group_segment_fixed_size 0
  .amdhsa_kernarg_size 80
  .amdhsa_user_sgpr_count 2
  .amdhsa_user_sgpr_kernarg_segment_ptr 1
  .amdhsa_system_sgpr_workgroup_id_x 1
.end_amdhsa_kernel
"""
open(sys.argv[1], "w").write(txt)
```

```python
import sys, math, struct
from asmdsl import Prog, Ins, WaitTag, WaitLds, Raw, Pace, finalize

NAME = "gated_mix__sliding_block__sliding_local_dilated__prompt"
OPT = dict(tlb0=0, worder0=0, g0=2, deep=0, xwarm=0, hgmap=0, hold=0, sents=21, pasy=1, gpre=1, take2=16, t2=0, rtail=1, dfl=0, kvs=19, bsplit=0, pace=0, pace0=0, pacez=0, gat=23, gdel=0, f2hs=-1, f2by=1, wb0=4, zbar=3, wz=18, probe=0, amode=0, worder=0, xhs=3, hprio=2, p3prio=0, wopf=1, tlb=1, icpf=1, cpf=0, take=96, early=1, kvflag=42, pubat=32, prio=1, barpos=0,
           xmap=3, rotmode=4, rotmask=7, outsc=0, stamps=0, fine=0, rt=0, xp=0, wsoff=0, amp=-1, ampk=8, amprole=1, ampclk=0, p1only=0, pf=0)
for a in sys.argv[2:]:
    k, v_ = a.split("="); assert k in OPT, k; OPT[k] = int(v_)

WS_KV, WS_HB, WS_O = 0, 4 << 20, 5 << 20
WS_FKV, WS_FOB, WS_FOA = 9 << 20, (9 << 20) + 65536, (9 << 20) + 131072
WS_STAMP, WS_SIZE = 10 << 20, 16 << 20
OOB = 0x80000000
NSLOT, SLOT = 5, 16384
L_X, L_WA, L_G, L_GP, LDS_BYTES = 81920, 132096, 156672, 157696, 158720
KVH, KVS, L_KV, L_WO = 2080, 4 * 2080, 65536, 0
QK_SCALE = 0.25 * math.log2(math.e)
NEG_BIG, ONES = 0xf149f2ca, 0x3f803f80

def fhex(x): return "0x%08x" % struct.unpack("<I", struct.pack("<f", x))[0]
def v(a, n=1): return f"v{a}" if n == 1 else f"v[{a}:{a+n-1}]"
def s(a, n=1): return f"s{a}" if n == 1 else f"s[{a}:{a+n-1}]"
def lines(t): return [l.strip() for l in t.strip().split("\n") if l.strip()]
def mfma(d, a, b, c): return f"v_mfma_f32_32x32x16_bf16 {d}, {a}, {b}, {c}"
def srd(base, ptr, nbytes):
    return [f"s_mov_b32 {s(base)}, {s(ptr)}", f"s_mov_b32 {s(base+1)}, {s(ptr+1)}",
            f"s_mov_b32 {s(base+2)}, {nbytes}", f"s_mov_b32 {s(base+3)}, 0x20000"]
def interleave(*ls):
    o, ls = [], [list(l) for l in ls]
    while any(ls):
        for l in ls:
            if l: o.append(l.pop(0))
    return o

S_X, S_W, S_WS, S_WOA, S_WOB, S_OUT, S_DBG, S_G = 24, 28, 32, 36, 40, 44, 48, 36
S_W4, S_HG, S_RB, S_ROT, S_HEAD, S_RB3, S_CB = 52, 53, 54, 55, 56, 57, 58
S_K, S_T0, S_MW, S_MX, S_T1 = 59, 60, 61, 62, 63
S_MASK, S_T2, S_T3, S_LO16, S_TM, S_C, S_SPIN, S_EP = 64, 96, 97, 98, 100, 10, 3, 26
V_LANE, V_L16, V_STAMP, V_FOFF = 1, 2, 3, 4
EP, FLG = 6, 8
V_AK, V_AV0, V_AV1 = 10, 11, 12
G0 = 14
PM, QA = 16, 24
TMP = 28
SB, NEGM, MG, PB, PF, KF, VF = 32, 64, 96, 128, 144, 152, 192
OACC2 = (160, 176)
KA, QA1, VA = 208, 216, 224

class Role:
    def __init__(self, name):
        self.P, self.name, self.ns, self.nl = Prog(), name, 0, 0
    def stamp(self):
        P = self.P
        if OPT["amp"] == self.ns and OPT["amprole"] == (self.name == "H"):
            P.add(WaitLds())
            P(f"{'s_memtime' if OPT['ampclk'] else 's_memrealtime'} {s(S_TM,2)}\ns_waitcnt lgkmcnt(0)\nv_writelane_b32 {v(V_STAMP)}, {s(S_TM)}, 1")
        if OPT["stamps"]:
            P.add(WaitLds())
            P(f"s_memtime {s(S_TM,2)}\ns_waitcnt lgkmcnt(0)\nv_writelane_b32 {v(V_STAMP)}, {s(S_TM)}, {self.ns + 1}")
            if OPT["rt"]: P(f"s_memrealtime {s(S_TM,2)}\ns_waitcnt lgkmcnt(0)\nv_writelane_b32 {v(V_STAMP)}, {s(S_TM)}, {self.ns + 32}")
        self.ns += 1
    def poll(self, cmp_txt, reload_txt):
        P, n = self.P, f"{self.name}{self.nl}"; self.nl += 1
        P(f"s_mov_b32 {s(S_SPIN)}, 0x40000"); P(cmp_txt)
        P(f"s_cmp_eq_u64 vcc, -1\ns_cbranch_scc1 L_pok{n}")
        P.add(Raw(f"""L_pspin{n}:
    {reload_txt}
    s_sub_u32 {s(S_SPIN)}, {s(S_SPIN)}, 1
    s_cbranch_scc1 L_pok{n}
    s_waitcnt vmcnt(0)
    {cmp_txt}
    s_nop 2
    s_cmp_eq_u64 vcc, -1
    s_cbranch_scc0 L_pspin{n}
L_pok{n}:"""))
    @staticmethod
    def _sloads(n, off):
        if n <= 8: return [f"s_load_dwordx{2*n} {s(4,2*n)}, s[22:23], {s(off)} glc"]
        return [f"s_load_dwordx16 s[4:19], s[22:23], {s(off)} glc", f"s_load_dwordx16 s[64:79], s[22:23], {s(off)} offset:64 glc"]
    def spoll_issue(self, n, off):
        self.P.add(self._sloads(n, off))
    def spoll(self, n, off, ignore_from=None):
        P, lb = self.P, f"{self.name}{self.nl}"; self.nl += 1
        w = lambda i: s(4 + 2*i if i < 8 else 48 + 2*i, 2)
        P.add(WaitLds())
        t = f"    s_mov_b32 {s(S_SPIN)}, 0x40000\nL_sp{lb}:\n"
        for i in range(n - 1):
            if ignore_from is not None:
                t += f"    s_cmp_lt_u32 {s(ignore_from)}, {n - i}\n    s_cselect_b64 {w(i)}, {s(S_EP,2)}, {w(i)}\n"
        for i in range(n):
            t += f"    s_xor_b64 {w(i)}, {w(i)}, {s(S_EP,2)}\n"
            if i: t += f"    s_or_b64 s[4:5], s[4:5], {w(i)}\n"
        t += f"    s_cmp_eq_u64 s[4:5], 0\n    s_cbranch_scc1 L_spok{lb}\n" + "".join(f"    {x}\n" for x in self._sloads(n, off))
        t += f"    s_sub_u32 {s(S_SPIN)}, {s(S_SPIN)}, 1\n    s_waitcnt lgkmcnt(0)\n    s_cbranch_scc0 L_sp{lb}\nL_spok{lb}:"
        P.add(Raw(t))
    def finish(self):
        P = self.P
        if OPT["stamps"]:
            P(f"s_memrealtime {s(S_TM,2)}\ns_waitcnt lgkmcnt(0) vmcnt(0)\nv_writelane_b32 {v(V_STAMP)}, {s(S_TM)}, 63")
            P(f"""s_lshl_b32 {s(S_T0)}, s2, 3
s_add_u32 {s(S_T0)}, {s(S_T0)}, {s(S_W4)}
s_add_u32 {s(S_T0)}, {s(S_T0)}, {4 if self.name == "H" else 0}
s_lshl_b32 {s(S_T0)}, {s(S_T0)}, 8
s_add_u32 {s(S_T0)}, {s(S_T0)}, {WS_STAMP}
v_lshlrev_b32 v0, 2, {v(V_LANE)}
buffer_store_dword {v(V_STAMP)}, v0, {s(S_WS,4)}, {s(S_T0)} offen""")
        if OPT["amp"] >= 0 and OPT["amprole"] == (self.name == "H"):
            P(f"""s_cmp_lg_u32 s2, 100
s_cbranch_scc1 L_end
v_readlane_b32 {s(S_T0)}, {v(V_STAMP)}, 0
v_readlane_b32 {s(S_T1)}, {v(V_STAMP)}, 1
s_memrealtime {s(S_TM,2)}
s_sub_u32 {s(S_T1)}, {s(S_T1)}, {s(S_T0)}
s_mul_i32 {s(S_T1)}, {s(S_T1)}, {OPT["ampk"]}
s_lshr_b32 {s(S_T1)}, {s(S_T1)}, {4 if OPT["ampclk"] else 0}
s_min_u32 {s(S_T1)}, {s(S_T1)}, 100000
s_waitcnt lgkmcnt(0)
s_mov_b32 {s(S_T0)}, {s(S_TM)}""")
            P.add(Raw(f"""L_amp{self.name}:
    s_memrealtime {s(S_TM,2)}
    s_waitcnt lgkmcnt(0)
    s_sub_u32 {s(S_K)}, {s(S_TM)}, {s(S_T0)}
    s_cmp_lt_u32 {s(S_K)}, {s(S_T1)}
    s_cbranch_scc1 L_amp{self.name}"""))
        P("s_endpgm")

ws_ld = lambda dst, voff, soff, imm=0, tag=None: Ins(
    f"buffer_load_dwordx4 {dst}, {v(voff)}, {s(S_WS,4)}, {soff} offen{' offset:%d' % imm if imm else ''} sc1", tag)
ws_st = lambda src, voff, soff, imm=0, tag=None: Ins(
    f"buffer_store_dwordx4 {src}, {v(voff)}, {s(S_WS,4)}, {soff} offen{' offset:%d' % imm if imm else ''} sc1", tag)
ep_load = f"buffer_load_dwordx2 {v(EP,2)}, off, {s(S_DBG,4)}, 0 sc1"
flag_load = f"buffer_load_dwordx2 {v(FLG,2)}, {v(V_FOFF)}, {s(S_WS,4)}, {s(S_K)} offen sc1"
flag_cmp = f"v_cmp_eq_u64 vcc, {v(FLG,2)}, {v(EP,2)}"
def flag_store(data_tag, kind):
    if kind == "kv":
        o = lines(f"""v_mul_u32_u24 v0, 56, {v(V_LANE)}
v_add_u32 v0, 88, v0
s_sub_u32 {s(S_T1)}, 31, {s(S_RB)}
s_min_u32 {s(S_T1)}, {s(S_T1)}, 4
v_cmp_gt_u32 vcc, {s(S_T1)}, {v(V_LANE)}
s_cmp_eq_u32 {s(S_RB)}, 0
s_cselect_b32 {s(S_T1)}, 24, {OOB}
v_mov_b32 v5, {s(S_T1)}
v_cndmask_b32 v0, v5, v0, vcc
s_lshl_b32 {s(S_T0)}, {s(S_HEAD)}, 5
s_add_u32 {s(S_T0)}, {s(S_T0)}, {s(S_RB)}
s_lshl_b32 {s(S_T0)}, {s(S_T0)}, 6
s_add_u32 {s(S_T0)}, {s(S_T0)}, {WS_FKV}""")
    else:
        o = lines(f"""v_lshlrev_b32 v0, 8, {v(V_LANE)}
v_cmp_gt_u32 vcc, 8, {v(V_LANE)}
v_mov_b32 v5, {OOB}
v_cndmask_b32 v0, v5, v0, vcc
s_lshl_b32 {s(S_T0)}, {s(S_RB)}, 8
s_add_u32 {s(S_T0)}, {s(S_T0)}, {s(S_HEAD)}
s_lshl_b32 {s(S_T0)}, {s(S_T0)}, 3
s_add_u32 {s(S_T0)}, {s(S_T0)}, { {"ob": WS_FOB, "oa0": WS_FOA, "oa1": WS_FOA + 65536}[kind] }""")
    return o + [WaitTag(data_tag), Ins(f"buffer_store_dwordx2 {v(EP,2)}, v0, {s(S_WS,4)}, {s(S_T0)} offen sc1", "flag")]

def max_tree(dst, regs, init=False):
    regs, o = list(regs), []
    if not init:
        o.append(f"v_max3_f32 {v(dst)}, {v(regs[0])}, {v(regs[1])}, {v(regs[2])}"); regs = regs[3:]
    while len(regs) >= 2:
        o.append(f"v_max3_f32 {v(dst)}, {v(dst)}, {v(regs[0])}, {v(regs[1])}"); regs = regs[2:]
    if regs: o.append(f"v_max_f32 {v(dst)}, {v(dst)}, {v(regs[0])}")
    return o
def cross_max(m, t):
    return [f"v_mov_b32 {v(t)}, {v(m)}", f"v_permlane32_swap_b32 {v(m)}, {v(t)}", f"v_max_f32 {v(m)}, {v(m)}, {v(t)}"]

def attn_setup(t, tmp):
    r5, hh, cm, u = tmp, tmp + 1, tmp + 2, tmp + 3
    o = lines(f"""v_and_b32 {v(r5)}, 31, {v(V_LANE)}
v_lshrrev_b32 {v(hh)}, 5, {v(V_LANE)}
v_lshlrev_b32 {v(u)}, 2, {v(hh)}
v_sub_u32 {v(cm)}, {v(r5)}, {v(u)}
s_mul_i32 {s(S_T2)}, {s(S_W4)}, {KVH}
s_add_u32 {s(S_T2)}, {s(S_T2)}, {L_KV + t*KVS}
v_add_u32 {v(V_AK)}, {s(S_T2)}, {v(V_L16)}
v_and_b32 {v(u)}, 15, {v(V_LANE)}
v_lshlrev_b32 {v(u)}, 4, {v(u)}
v_lshl_add_u32 {v(u)}, {v(hh)}, 8, {v(u)}
v_and_b32 {v(hh)}, 11, {v(V_LANE)}
v_min_u32 {v(hh)}, 1, {v(hh)}
v_lshlrev_b32 {v(hh)}, 4, {v(hh)}
v_add_u32 {v(hh)}, 0x400, {v(hh)}
v_cndmask_b32 {v(V_AV0)}, {v(hh)}, {v(u)}, {s(S_LO16,2)}
v_subrev_u32 {v(hh)}, 0x200, {v(hh)}
v_cndmask_b32 {v(V_AV1)}, {v(hh)}, {v(u)}, {s(S_LO16,2)}
v_add_u32 {v(V_AV0)}, {s(S_T2)}, {v(V_AV0)}
v_add_u32 {v(V_AV1)}, {s(S_T2)}, {v(V_AV1)}
v_mov_b32 {v(u)}, 0xffff""")
    o += [f"v_cmp_le_i32 {s(S_MASK+2*q,2)}, {8*(q>>2)+(q&3)}, {v(cm)}" for q in range(16)]
    o += [f"v_cndmask_b32 {v(PM+pq)}, 0, {v(u)}, {s(S_MASK+4*pq,2)}" for pq in range(8)]
    o += [f"v_cndmask_b32 {v(PM+pq)}, {v(PM+pq)}, -1, {s(S_MASK+4*pq+2,2)}" for pq in range(8)]
    return o

def gate_finish(addr, tmp):
    o = [f"ds_read_b32 {v(tmp+t)}, {v(addr)} offset:{128*t}" for t in range(2)]
    for op in ("v_mul_f32 {g}, " + fhex(-math.log2(math.e)) + ", {g}", "v_exp_f32 {g}, {g}", "v_add_f32 {g}, 1.0, {g}", "v_rcp_f32 {o}, {g}"):
        o += [op.format(g=v(tmp+t), o=v(G0+t)) for t in range(2)]
    return o

def o_pack(acc, o0, lreg, fac, dst, f):
    return ([f"v_rcp_f32 {v(f)}, {v(acc+lreg)}"] + fac +
            [f"v_mul_f32 {v(acc+o0+i)}, {v(f)}, {v(acc+o0+i)}" for i in range(8)] +
            [f"v_cvt_pk_bf16_f32 {v(dst+i)}, {v(acc+o0+2*i)}, {v(acc+o0+2*i+1)}" for i in range(4)])
def o_store(br, tt, src, tag):
    return [f"s_lshl_b32 {s(S_T0)}, {s(S_RB)}, 17", f"s_lshl_b32 {s(S_T1)}, {s(S_HEAD)}, 10",
            f"s_add_u32 {s(S_T0)}, {s(S_T0)}, {s(S_T1)}", f"s_add_u32 {s(S_T0)}, {s(S_T0)}, {WS_O + br*65536 + tt*32768}",
            ws_st(v(src,4), V_L16, s(S_T0), 0, tag)]

CMA = 64
def window_attention(R, events):
    P = R.P
    Q = lambda t: v((QA, QA1)[t], 4)
    dk, dv = (4, 3) if OPT["deep"] else (2, 2)
    kfr = lambda u: v((240 + 4*(u & 3)) if OPT["deep"] else KF+4*(u & 1), 4) if u < 8 else v(KA+4*(u-8), 4)
    vfr = lambda u, m: v((VF, VF+8, KF)[u % dv]+4*m, 4) if u < 8 else v(VA+8*(u-8)+4*m, 4)
    kread = lambda u: [f"ds_read_b128 {kfr(u)}, {v(V_AK)} offset:{u*KVS}"] if u < 8 else []
    vread = lambda u: [f"ds_read_b128 {vfr(u,0)}, {v(V_AV0)} offset:{u*KVS+1024}",
                       f"ds_read_b128 {vfr(u,1)}, {v(V_AV1)} offset:{u*KVS+1536}"] if u < 8 else []
    M = (TMP, TMP + 2)
    acc = lambda t: v(OACC2[t], 16)
    negm = lambda t: v(NEGM+16*t, 16)
    exps = lambda S: [f"v_exp_f32 {v(S+i)}, {v(S+i)}" for i in range(16)]
    cvts = lambda d, S: [f"v_cvt_pk_bf16_f32 {v(d+k)}, {v(S+2*k)}, {v(S+2*k+1)}" for k in range(8)]
    ev = lambda key: events.pop(key)() if key in events else None
    P(mfma(v(SB+16,16), kfr(8), Q(1), negm(1))); P(mfma(v(MG,16), kfr(8), Q(0), negm(0)))
    P("s_barrier")
    R.stamp()
    P.add(kread(0) + kread(1) + vread(0) + vread(1))
    if OPT["deep"]: P.add(kread(2) + kread(3) + vread(2))
    ev("pre")
    e, c = exps(SB+16), cvts(PB+8, SB+16)
    P.add(e[0:4]); P(mfma(v(SB,16), kfr(0), Q(0), negm(0))); P.add(kread(dk)); P.add(e[4:8]); P.add(c[0:4])
    P(mfma(v(MG+16,16), kfr(9), Q(1), negm(1))); P.add(e[8:12])
    P(mfma(acc(1), vfr(8,0), v(PB+8,4), "0")); P.add(e[12:16]); P.add(c[4:8])
    pend = [mfma(v(SB+16,16), kfr(1), Q(1), negm(1)), mfma(acc(1), vfr(8,1), v(PB+12,4), acc(1))]
    for t in range(2):
        g = MG + 16*t
        seq = [f"v_cndmask_b32 {v(g+i)}, {v(SB+16*t+i)}, {v(g+i)}, {s(S_MASK+2*i,2)}" for i in range(16)]
        seq += [[mfma(v(SB+16*t,16), kfr(1+t), Q(t), negm(t))] + (kread(dk+1) if t == 0 else [])]
        seq += exps(g) + cvts(PF, g)
        seq += [f"v_and_b32 {v(PB+8*t+i)}, {v(PM+i)}, {v(PF+i)}" for i in range(8)]
        seq += [f"v_xor_b32 {v(g+i)}, {v(PF+i)}, {v(PB+8*t+i)}" for i in range(8)]
        at = (0, 8) if t == 0 else (1, 9, 21, 26)
        for i, x in enumerate(seq):
            P.add(x)
            if i in at: P.add(pend.pop(0))
        pend = [mfma(acc(t), vfr(8+t,0), v(PB+8*t,4), acc(1) if t else "0"), mfma(acc(t), vfr(8+t,1), v(PB+8*t+4,4), acc(t)),
                mfma(acc(t), vfr(t,0), v(g,4), acc(t)), [mfma(acc(t), vfr(t,1), v(g+4,4), acc(t))] + (vread(dv) if t == 0 else [])]
    R.stamp()
    if OPT["t2"]: P("s_barrier")
    ev("e1")
    for hs in range(13):
        t = hs & 1; u = (hs >> 1) + 1 + t
        S, Pp = SB + 16*t, PB + 8*t
        e, c = exps(S), cvts(Pp, S)
        nxt = None
        if t == 0 and 0 < hs < 12: nxt = [mfma(v(SB+16,16), kfr(u+1), Q(1), negm(1))]
        if t == 1: nxt = [mfma(v(SB,16), kfr(u), Q(0), negm(0))] + kread(u+dk)
        if hs == 0:
            P.add(e[0:2]); P.add(pend[0]); P.add(e[2:5]); P.add(pend[1]); P.add(e[5:8]); P.add(pend[2])
            P.add(c[0:4]); P.add(e[8:10]); P.add(pend[3]); P.add(e[10:14])
            P(mfma(acc(t), vfr(u,0), v(Pp,4), acc(t))); P.add(e[14:16]); P.add(c[4:8])
        else:
            P.add(e[0:2]); P.add(pend); P.add(e[2:6])
            if nxt: P.add(nxt)
            P.add(e[6:8]); P.add(c[0:4]); P.add(e[8:10])
            P(mfma(acc(t), vfr(u,0), v(Pp,4), acc(t)))
            P.add(e[10:16]); P.add(c[4:8])
        pend = [mfma(acc(t), vfr(u,1), v(Pp+4,4), acc(t))] + (vread(u+dv) if t == 0 else [])
        if OPT["fine"] == 5: R.stamp()
        ev(hs)
    P.add(pend)
    assert not events, events
    P(f"s_mov_b32 {s(S_T1)}, 0x7b800000")
    for t in (1, 0):
        o, m = OACC2[t], M[t]
        P.add([f"v_add_f32 {v(m)}, abs({v(o)}), abs({v(o+8)})", f"v_add_f32 {v(m+1)}, abs({v(o+1)}), abs({v(o+2)})"] +
              [f"v_add_f32 {v(m+(i&1))}, {v(m+(i&1))}, abs({v(o+i)})" for i in range(3, 8)] + [f"v_add_f32 {v(m)}, {v(m)}, {v(m+1)}"])
    P(f"v_add_f32 {v(M[0])}, {v(M[0])}, {v(M[1])}\nv_cmp_lt_f32 vcc, {v(M[0])}, {s(S_T1)}")
    P("s_cmp_eq_u64 vcc, -1\ns_cbranch_scc0 L_exact0\nL_back:")
    R.stamp()

def slow_path():
    return exact_attention(0) + exact_attention(1) + "    s_branch L_back\n"

def exact_attention(t):
    F = Prog(); q, M, acc = v((QA, QA1)[t], 4), TMP, v(OACC2[t], 16)
    KO, VO, G = TMP + 2, TMP + 3, S_T0
    def tile(rel, kdst, vdst):
        o = [f"s_add_i32 {s(S_K)}, {s(G)}, {rel}", f"s_cmp_ge_i32 {s(S_K)}, 0", f"s_cselect_b64 vcc, -1, 0",
             f"s_cselect_b32 {s(S_TM)}, {hex(ONES)}, 0", f"s_max_i32 {s(S_K)}, {s(S_K)}, 0", f"s_lshl_b32 {s(S_K)}, {s(S_K)}, 11",
             f"s_lshl_b32 {s(S_T1)}, {s(S_HEAD)}, 17", f"s_add_u32 {s(S_K)}, {s(S_K)}, {s(S_T1)}",
             f"v_and_b32 {v(KO)}, 0x200, {v(V_L16)}", f"v_cndmask_b32 {v(KO)}, {v(KO)}, {v(V_L16)}, vcc", ws_ld(v(kdst,4), KO, s(S_K))]
        if vdst is not None:
            o += [f"v_mov_b32 {v(vdst+i)}, {s(S_TM)}" for i in range(8)]
            o += [f"s_cmp_lg_u32 {s(S_TM)}, 0", f"s_cselect_b32 {s(S_K)}, {s(S_K)}, {WS_SIZE}", f"s_mov_b64 exec, {s(S_LO16,2)}",
                  ws_ld(v(vdst,4), VO, s(S_K), 1024), ws_ld(v(vdst+4,4), VO, s(S_K), 1536), "s_mov_b64 exec, -1"]
        return o
    F(f"L_exact{t}:\ns_waitcnt vmcnt(0) lgkmcnt(0)\ns_nop 15")
    F(f"""s_lshl_b32 {s(G)}, {s(S_RB)}, 1
s_sub_u32 {s(G)}, {s(G)}, {8 - t}
v_lshrrev_b32 {v(VO)}, 1, {v(V_L16)}
v_and_b32 {v(VO)}, 0x100, {v(VO)}
v_and_b32 {v(KO)}, 0xf0, {v(V_L16)}
v_or_b32 {v(VO)}, {v(VO)}, {v(KO)}""")
    F.add(tile(8, KF, VF)); F.add(tile(0, KF+4, VF+8))
    F(mfma(v(MG,16), v(KF,4), q, "0")); F(mfma(v(SB,16), v(KF+4,4), q, "0"))
    F.add([f"v_cndmask_b32 {v(MG+i)}, {v(SB+i)}, {v(MG+i)}, {s(S_MASK+2*i,2)}" for i in range(16)])
    F.add(max_tree(M, range(MG, MG+16)))
    F(f"s_mov_b32 {s(S_TM+1)}, 7\nL_exact_m{t}:\ns_add_u32 {s(G)}, {s(G)}, 1")
    F.add(tile(0, KF, None))
    F(mfma(v(SB,16), v(KF,4), q, "0"))
    F.add(max_tree(M, range(SB, SB+16), init=True))
    F(f"s_sub_u32 {s(S_TM+1)}, {s(S_TM+1)}, 1\ns_cmp_lg_u32 {s(S_TM+1)}, 0\ns_cbranch_scc1 L_exact_m{t}")
    F.add(cross_max(M, M+1))
    F.add([f"v_sub_f32 {v(MG+i)}, {v(MG+i)}, {v(M)}" for i in range(16)])
    F.add([f"v_exp_f32 {v(MG+i)}, {v(MG+i)}" for i in range(16)])
    F.add([f"v_cvt_pk_bf16_f32 {v(PF+i)}, {v(MG+2*i)}, {v(MG+2*i+1)}" for i in range(8)])
    F.add([f"v_and_b32 {v(PB+i)}, {v(PM+i)}, {v(PF+i)}" for i in range(8)])
    F.add([f"v_xor_b32 {v(PF+i)}, {v(PF+i)}, {v(PB+i)}" for i in range(8)])
    F(mfma(acc, v(VF,4), v(PB,4), "0")); F(mfma(acc, v(VF+4,4), v(PB+4,4), acc))
    F(mfma(acc, v(VF+8,4), v(PF,4), acc)); F(mfma(acc, v(VF+12,4), v(PF+4,4), acc))
    F(f"s_sub_u32 {s(G)}, {s(G)}, 7\ns_mov_b32 {s(S_TM+1)}, 7\ns_nop 15\nL_exact_e{t}:\ns_add_u32 {s(G)}, {s(G)}, 1")
    F.add(tile(0, KF, VF))
    F(mfma(v(SB,16), v(KF,4), q, "0"))
    F.add([f"v_sub_f32 {v(SB+i)}, {v(SB+i)}, {v(M)}" for i in range(16)])
    F.add([f"v_exp_f32 {v(SB+i)}, {v(SB+i)}" for i in range(16)])
    F.add([f"v_cvt_pk_bf16_f32 {v(PB+i)}, {v(SB+2*i)}, {v(SB+2*i+1)}" for i in range(8)])
    F(mfma(acc, v(VF,4), v(PB,4), acc)); F(mfma(acc, v(VF+4,4), v(PB+4,4), acc))
    F(f"s_nop 15\ns_sub_u32 {s(S_TM+1)}, {s(S_TM+1)}, 1\ns_cmp_lg_u32 {s(S_TM+1)}, 0\ns_cbranch_scc1 L_exact_e{t}")
    return finalize(F)

E = Prog()
hg_code = {0: f"s_lshl1_add_u32 {s(S_HG)}, {s(S_T1)}, {s(S_K)}", 1: f"s_lshl2_add_u32 {s(S_HG)}, {s(S_K)}, {s(S_T1)}",
           2: f"s_and_b32 {s(S_HG)}, {s(S_T1)}, 2\ns_add_u32 {s(S_HG)}, {s(S_HG)}, {s(S_K)}\ns_and_b32 {s(S_T1)}, {s(S_T1)}, 1\ns_lshl1_add_u32 {s(S_HG)}, {s(S_HG)}, {s(S_T1)}",
           3: f"s_mul_i32 {s(S_K)}, {s(S_K)}, 3\ns_lshl1_add_u32 {s(S_HG)}, {s(S_T1)}, {s(S_K)}\ns_and_b32 {s(S_HG)}, {s(S_HG)}, 7",
           4: f"s_mul_i32 {s(S_K)}, {s(S_K)}, 5\ns_lshl1_add_u32 {s(S_HG)}, {s(S_T1)}, {s(S_K)}\ns_and_b32 {s(S_HG)}, {s(S_HG)}, 7"}[OPT["hgmap"]]
assert OPT["xmap"] == 3
hb = {4: 2, 3: 1, 2: 0, 1: 3}[OPT["xmap"]]
if OPT["stamps"] or OPT["amp"] >= 0:
    E("s_memtime s[64:65]\ns_memrealtime s[66:67]")
def entry_stamp():
    if OPT["stamps"]:
        return [f"v_mov_b32 {v(V_STAMP)}, 0", f"v_writelane_b32 {v(V_STAMP)}, s64, 0", f"v_writelane_b32 {v(V_STAMP)}, s66, 62"]
    if OPT["amp"] >= 0:
        return [f"v_mov_b32 {v(V_STAMP)}, 0", f"v_writelane_b32 {v(V_STAMP)}, {'s64' if OPT['ampclk'] else 's66'}, 0"]
    return []
code_pf = f"""s_getpc_b64 {s(S_T2,2)}
L_pc:
s_lshl2_add_u32 {s(S_T1)}, {s(S_T0)}, {s(S_W4)}
s_and_b32 {s(S_T1)}, {s(S_T1)}, 63
s_lshl_b32 {s(S_T1)}, {s(S_T1)}, 9
s_sub_u32 {s(S_T2)}, {s(S_T2)}, L_pc-{NAME}_kernel
s_subb_u32 {s(S_T3)}, {s(S_T3)}, 0
v_and_b32 v5, 3, {v(V_LANE)}
v_lshl_add_u32 v5, v5, 7, {s(S_T1)}
global_load_dword v13, v5, {s(S_T2,2)}"""
if OPT["cpf"] == 2:
    E(f"""s_getpc_b64 {s(S_T2,2)}
s_bfe_u32 {s(S_T1)}, s2, 0x50003
v_lshrrev_b32 v5, 6, v0
v_lshlrev_b32 v5, 7, v5
v_lshl_add_u32 v5, {s(S_T1)}, 10, v5
global_load_dword v13, v5, {s(S_T2,2)}""")
if OPT["cpf"] == 3:
    E(f"""s_getpc_b64 {s(S_T2,2)}
s_bfe_u32 {s(S_T1)}, s2, 0x30003
v_lshrrev_b32 v5, 4, v0
v_lshlrev_b32 v5, 7, v5
v_lshl_add_u32 v5, {s(S_T1)}, 12, v5
global_load_dword v13, v5, {s(S_T2,2)}""")
E(f"""
s_cmp_ge_u32 s2, 256
s_cbranch_scc1 L_end
s_load_dwordx16 s[4:19], s[0:1], 0
s_load_dwordx4 s[20:23], s[0:1], 64
v_lshrrev_b32 v4, 6, v0
v_and_b32 {v(V_LANE)}, 63, v0
s_lshr_b32 {s(S_T0)}, s2, 3
v_readfirstlane_b32 {s(S_MX)}, v4
""")
E(f"""
s_and_b32 {s(S_T1)}, s2, {(8 >> hb) - 1}
s_and_b32 {s(S_K)}, {s(S_T0)}, {(1 << hb) - 1}
{hg_code}
s_bfe_u32 {s(S_K)}, s2, {hex((hb << 16) | (3 - hb))}
s_lshl_b32 {s(S_RB)}, {s(S_K)}, {5 - hb}
s_lshr_b32 {s(S_ROT)}, {s(S_T0)}, {hb}
s_add_u32 {s(S_RB)}, {s(S_RB)}, {s(S_ROT)}
s_and_b32 {s(S_W4)}, {s(S_MX)}, 3
""")
if OPT["cpf"] == 1:
    E(f"""s_cmp_lt_u32 {s(S_MX)}, 4
s_cbranch_scc0 L_hrole""")
    E(code_pf)
    E("s_branch L_crole\nL_hrole:")
elif OPT["cpf"] >= 4:
    E(f"""s_cmp_lt_u32 {s(S_MX)}, 4
s_cbranch_scc0 L_hrole
s_getpc_b64 {s(S_T2,2)}
L_pc:
s_lshl2_add_u32 {s(S_T1)}, {s(S_T0)}, {s(S_W4)}
s_lshl_b32 {s(S_T1)}, {s(S_T1)}, 8
s_sub_u32 {s(S_T2)}, {s(S_T2)}, L_pc-{NAME}_kernel
s_subb_u32 {s(S_T3)}, {s(S_T3)}, 0
s_load_dword s70, {s(S_T2,2)}, {s(S_T1)}
s_add_u32 {s(S_T1)}, {s(S_T1)}, 128
s_load_dword s71, {s(S_T2,2)}, {s(S_T1)}""")
    if OPT["cpf"] == 5:
        E("s_waitcnt lgkmcnt(0)")
        for i, ptr in enumerate((6, 12, 4, 16, 20, 8, 14, 18, 22)):
            E(f"s_load_dword s{72+i}, {s(ptr,2)}, 0")
        for i in range(1, 5):
            E(f"s_mov_b32 {s(S_T1)}, {i << 21}\ns_load_dword s{80+i}, s[22:23], {s(S_T1)}")
    E("s_branch L_crole\nL_hrole:")
else:
    E(f"s_cmp_lt_u32 {s(S_MX)}, 4\ns_cbranch_scc1 L_crole")
late_ids = lines(f"""
s_lshr_b32 {s(S_T0)}, s2, 3
s_and_b32 {s(S_RB3)}, s2, 7
s_lshl_b32 {s(S_RB3)}, {s(S_RB3)}, 2
s_lshr_b32 {s(S_T1)}, {s(S_T0)}, 3
s_add_u32 {s(S_RB3)}, {s(S_RB3)}, {s(S_T1)}
s_and_b32 {s(S_CB)}, {s(S_T0)}, 7
s_lshl_b32 {s(S_HEAD)}, {s(S_HG)}, 2
s_add_u32 {s(S_HEAD)}, {s(S_HEAD)}, {s(S_W4)}
s_mov_b32 {s(S_LO16)}, 0xffff
s_mov_b32 {s(S_LO16+1)}, 0xffff
v_lshlrev_b32 {v(V_L16)}, 4, {v(V_LANE)}
""")
rot_code = {
 0: f"s_and_b32 {s(S_ROT)}, {s(S_ROT)}, {OPT['rotmask']}",
 1: f"s_and_b32 {s(S_ROT)}, s2, 7",
 4: f"s_add_u32 {s(S_ROT)}, {s(S_ROT)}, {s(S_HG)}\ns_and_b32 {s(S_ROT)}, {s(S_ROT)}, 7",
 5: f"s_add_u32 {s(S_ROT)}, {s(S_ROT)}, {s(S_HG)}\ns_and_b32 {s(S_ROT)}, {s(S_ROT)}, 3\ns_lshl_b32 {s(S_ROT)}, {s(S_ROT)}, 1",
 6: f"s_add_u32 {s(S_ROT)}, {s(S_ROT)}, {s(S_HG)}\ns_and_b32 {s(S_ROT)}, {s(S_ROT)}, 1\ns_lshl_b32 {s(S_ROT)}, {s(S_ROT)}, 2",
}[OPT["rotmode"]]

def stage_of(n): return n if n < 16 else 16 + ((n - 16) >> 1)
def first_of_stage(n): return n < 32 and (n == 0 or stage_of(n) != stage_of(n - 1))
def mfma16(d, a, b, c): return f"v_mfma_f32_16x16x32_bf16 {d}, {a}, {b}, {c}"

H = Role("H"); P = H.P
VX, VW1, VW2 = 160, 162, 166
V_AXW, V_AG, V_GPW, GACC, XW, GF = 170, 171, 172, 174, 176, 184
i3, i4, p7, t0, t1, t2 = 32, 33, 34, 35, 36, 37
def raw(i):
    if OPT["fine"] == 3: P(f"s_memtime s[{68+2*i}:{69+2*i}]")
raw(0)
P(rot_code)
P(f"""
v_lshrrev_b32 {v(i3)}, 3, {v(V_LANE)}
v_lshrrev_b32 {v(i4)}, 4, {v(V_LANE)}
v_and_b32 {v(p7)}, 7, {v(V_LANE)}
s_lshl_b32 {s(S_T0)}, {s(S_W4)}, 4
v_add_u32 {v(t0)}, {s(S_T0)}, {v(i3)}
v_lshlrev_b32 {v(t0)}, 10, {v(t0)}
v_xor_b32 {v(t1)}, {v(p7)}, {v(i4)}
v_lshl_add_u32 {v(VX)}, {v(t1)}, 4, {v(t0)}
v_xor_b32 {v(VX+1)}, 64, {v(VX)}
v_add_u32 {v(VX+1)}, {0x2000 - 1024}, {v(VX+1)}
s_lshr_b32 {s(S_T0)}, {s(S_W4)}, 1
s_and_b32 {s(S_T1)}, {s(S_W4)}, 1
s_lshl_b32 {s(S_K)}, {s(S_T0)}, 4
v_add_u32 {v(t0)}, {s(S_K)}, {v(i4)}
v_mul_u32_u24 {v(t0)}, 0xc00, {v(t0)}
v_lshlrev_b32 {v(t1)}, 1, {v(i4)}
v_xor_b32 {v(t1)}, {v(t1)}, {v(p7)}
v_lshl_add_u32 {v(t0)}, {v(t1)}, 4, {v(t0)}
v_and_b32 {v(t1)}, 1, {v(i3)}
v_xor_b32 {v(t1)}, {s(S_T1)}, {v(t1)}
v_lshlrev_b32 {v(t1)}, 10, {v(t1)}
s_lshl_b32 {s(S_T2)}, {s(S_HG)}, 7
s_add_u32 {s(S_K)}, {s(S_T2)}, 1024
v_add3_u32 {v(VW1)}, {v(t0)}, {v(t1)}, {s(S_K)}
v_add_u32 {v(VW1+1)}, {12288 - 1024}, {v(VW1)}
v_xor_b32 {v(t1)}, 0x400, {v(t1)}
v_add3_u32 {v(VW1+2)}, {v(t0)}, {v(t1)}, {s(S_K)}
v_add_u32 {v(VW1+3)}, {3*(12288 - 1024)}, {v(VW1+2)}
v_add_u32 {v(VW1+2)}, {2*(12288 - 1024)}, {v(VW1+2)}
s_lshl_b32 {s(S_MW)}, {s(S_T1)}, 13
s_lshl_b32 {s(S_K)}, {s(S_T0)}, 12
s_add_u32 {s(S_MW)}, {s(S_MW)}, {s(S_K)}
s_lshl_b32 {s(S_MX)}, {s(S_W4)}, 11
s_add_u32 {s(S_MX)}, {s(S_MX)}, {L_X}""")
raw(1)
P("s_waitcnt lgkmcnt(0)")
if OPT["wsoff"]: P(f"s_add_u32 s22, s22, {OPT['wsoff'] << 20}\ns_addc_u32 s23, s23, 0")
raw(2)
if OPT["tlb0"]: P.add(Raw("    s_load_dword s86, s[6:7], 0\n    s_load_dword s87, s[12:13], 0" + ("\n    s_load_dword s88, s[16:17], 0" if OPT["tlb0"] > 1 else "")))
P.add(entry_stamp())
P.add(srd(S_X, 4, 2097152))
P(f"""s_cmp_eq_u32 {s(S_T1)}, 0
s_cselect_b32 {s(S_W)}, s6, s12
s_cselect_b32 {s(S_W+1)}, s7, s13
s_mov_b32 {s(S_W+2)}, 1572864
s_mov_b32 {s(S_W+3)}, 0x20000""")
if OPT["fine"] != 3: H.stamp()
def dma(voff, rsrc, soff, imm, tag, flags=""):
    flags = flags or ("", " sc1", " nt", " sc0", " sc0 sc1")[OPT["dfl"]]
    return Ins(f"buffer_load_dwordx4 {v(voff)}, {s(rsrc,4)}, {soff} offen{' offset:%d' % imm if imm else ''}{flags} lds", tag)
def x_dma(j):
    return [f"s_add_u32 {s(S_K)}, {s(S_ROT)}, {j}", f"s_and_b32 {s(S_K)}, {s(S_K)}, 7", f"s_lshl_b32 {s(S_K)}, {s(S_K)}, 7",
            f"s_lshl_b32 {s(S_T2)}, {s(S_RB)}, 16", f"s_add_u32 m0, {s(S_MX)}, {j*8192}", f"s_add_u32 {s(S_K)}, {s(S_K)}, {s(S_T2)}",
            dma(VX, S_X, s(S_K), 0, f"x{j}"), dma(VX+1, S_X, s(S_K), 1024, f"x{j}")]
def w_dma(S):
    if S < 16:
        o = [f"s_lshl_b32 {s(S_T3)}, {s(S_ROT)}, 1", f"s_add_u32 {s(S_T3)}, {s(S_T3)}, {S}", f"s_and_b32 {s(S_T3)}, {s(S_T3)}, 15"]
    else:
        o = [f"s_add_u32 {s(S_T3)}, {s(S_ROT)}, {S-16}", f"s_and_b32 {s(S_T3)}, {s(S_T3)}, 7"]
    o += [f"s_add_u32 m0, {s(S_MW)}, {(S % NSLOT)*SLOT}", f"s_mul_i32 {s(S_T3)}, {s(S_T3)}, {(32 if S < 16 else 64)*3072}"]
    return o + [dma((VW1 if S < 16 else VW2) + t, S_W, s(S_T3), t*1024, f"w{S}") for t in range(4)]
if OPT["worder0"]:
    w0, x0 = w_dma(0), x_dma(0)
    P.add(w0[:6]); P.add(x0[:7]); P(f"s_add_u32 m0, {s(S_MW)}, 0"); P.add(w0[6:]); P(f"s_add_u32 m0, {s(S_MX)}, 0"); P.add(x0[7:])
else:
    P.add(x_dma(0)); P.add(w_dma(0))
P.add(w_dma(1)); raw(5)
P(f"""s_lshl_b32 {s(S_K)}, {s(S_ROT)}, 3
v_add_u32 {v(t2)}, {s(S_K)}, {v(V_LANE)}
v_and_b32 {v(t2)}, 63, {v(t2)}
v_lshlrev_b32 {v(t2)}, 4, {v(t2)}""")
P.add(srd(S_G, 16, 1024)); P(f"s_mov_b32 m0, {L_G}"); P.add(dma(t2, S_G, "0", 0, "w1"))
P.add(late_ids)
h_misc = lines(f"""
s_lshr_b32 {s(S_T0)}, {s(S_W4)}, 1
s_and_b32 {s(S_T1)}, {s(S_W4)}, 1
s_lshl_b32 {s(S_T0)}, {s(S_T0)}, 5
v_add_u32 {v(t0)}, {s(S_T0)}, {v(i3)}
v_mul_u32_u24 {v(t0)}, 0xc00, {v(t0)}
v_and_b32 {v(t1)}, 1, {v(i4)}
v_lshlrev_b32 {v(t1)}, 1, {v(t1)}
v_xor_b32 {v(t1)}, {v(t1)}, {v(p7)}
v_lshlrev_b32 {v(t1)}, 4, {v(t1)}
s_lshl_b32 {s(S_T0)}, {s(S_HG)}, 7
v_add3_u32 {v(VW2)}, {v(t0)}, {v(t1)}, {s(S_T0)}
v_xor_b32 {v(t1)}, 64, {v(t1)}
v_add3_u32 {v(VW2+1)}, {v(t0)}, {v(t1)}, {s(S_T0)}
v_add_u32 {v(VW2+2)}, {2*(24576 - 1024)}, {v(VW2)}
v_add_u32 {v(VW2+3)}, {3*(24576 - 1024)}, {v(VW2+1)}
v_add_u32 {v(VW2+1)}, {24576 - 1024}, {v(VW2+1)}
""") + srd(S_WS, 22, WS_SIZE) + srd(S_DBG, 20, 256)
P.add(h_misc)
if OPT["fine"] == 3:
    raw(6); P("s_waitcnt vmcnt(9)"); raw(7); P("s_waitcnt vmcnt(5)"); raw(8); P("s_waitcnt lgkmcnt(0)")
    for i in range(9):
        P(f"v_writelane_b32 {v(V_STAMP)}, s{68+2*i}, {i+1}")
    H.ns = 9
VWO, VKF, V1A, V1D, V_MB, V_HB = 160, 161, 162, 164, 12, 13
txt_of = lambda x: x.text if isinstance(x, Ins) else x
special_txt = []
def gather(tiles, special):
    o = []
    if 0 in tiles:
        o += [f"s_lshl_b32 {s(S_K)}, {s(S_HEAD)}, 17", f"s_lshl_b32 {s(S_T1)}, {s(S_RB)}, 12",
              f"s_add_u32 {s(S_T2)}, {s(S_K)}, {s(S_T1)}", f"s_sub_u32 {s(S_T2)}, {s(S_T2)}, {8*2048}"]
    for u in tiles:
        tag = "kv" if u < 4 or not OPT["t2"] else "kvb"
        o += [f"s_add_u32 {s(S_T0)}, {s(S_T2)}, {u*2048}", f"s_add_u32 m0, {s(S_MW)}, {u*KVS}"]
        if special:
            o += [f"s_cmp_ge_u32 {s(S_RB)}, {(8-u+1)//2}", f"s_cbranch_scc1 L_gk{u}",
                  dma(VKF, S_WS, s(S_K), 0, None, " sc1"), f"s_mov_b32 {s(S_T0)}, {WS_SIZE}", f"s_branch L_gk{u}e", f"L_gk{u}:",
                  dma(V_L16, S_WS, s(S_T0), 0, None, " sc1"), f"L_gk{u}e:"]
        else:
            o += [dma(V_L16, S_WS, s(S_T0), 0, tag, " sc1")]
        o += [dma(V_L16, S_WS, s(S_T0), 1024, tag, " sc1")]
    return o
def emit_gather(n, tiles):
    P(f"s_cmp_lt_u32 {s(S_RB)}, 4\ns_cbranch_scc1 L_gspecial{n}")
    P.add(gather(tiles, False)); P(f"L_gdone{n}:")
    special_txt.append(f"L_gspecial{n}:\n" + "\n".join(("" if txt_of(x).endswith(":") else "    ") + txt_of(x) for x in gather(tiles, True))
                       + f"\n    s_branch L_gdone{n}\n")
S_R3, S_WB, S_MA, S_MB = 24, 25, 30, 31
B0, B1, A0, A1, A2, A3, VOG, EXW, EXR, VOUT = 16, 17, 24, 25, 26, 27, 18, 20, 23, 19
ACC3, OFB, OFA, WBF = 32, 96, 192, 176
issued_w, issued_x = 2, 1

for S in range(25):
    if S < 24:
        P.add(WaitTag(f"w{S}", f"x{S >> 1}" if S < 16 else "none"))
    if S < 20: P.add(WaitLds())
    P("s_barrier")
    if OPT["fine"] in (1, 2, 3) or S in (0, 16, 24): H.stamp()
    mark = len(P.items)
    top = {0: 3}.get(S, S + 4)
    if S in (14, 15, 16) and OPT["hold"]: top = min(top, 20 - OPT["hold"])
    while issued_w <= min(top, 23):
        if issued_w < 16 and issued_w % 2 == 0 and issued_x <= issued_w // 2:
            P.add(x_dma(issued_x)); issued_x += 1
        P.add(w_dma(issued_w)); issued_w += 1
    if OPT["icpf"] and S == 1:
        t = (f"    s_getpc_b64 s[78:79]\nL_pc:\n    s_sub_u32 s78, s78, L_pc-{NAME}_kernel\n    s_subb_u32 s79, s79, 0\n    s_lshr_b32 {s(S_T1)}, s2, 3\n"
             f"    s_lshl2_add_u32 {s(S_T1)}, {s(S_T1)}, {s(S_W4)}\n    s_lshl_b32 {s(S_T1)}, {s(S_T1)}, 8\n")
        t += "".join(f"    s_load_dword s{80+i}, s[78:79], {s(S_T1)} offset:{i*64}\n" for i in range(4))
        P.add(Raw(t))
    if OPT["tlb"] and S in (3, 4, 5, 6):
        for i, (ptr, off) in enumerate({3: ((22, 0), (22, 1)), 4: ((22, 2), (22, 4)), 5: ((22, 3), (20, 0)), 6: ((18, 0),)}[S]):
            P.add(Raw(f"    s_mov_b32 {s(S_T1)}, {off << 21}\n    s_load_dword s{70+i}, {s(ptr,2)}, {s(S_T1)}"))
    if OPT["wopf"] and S in (8, 9, 10, 11):
        ptr, half = (14, 8)[(S - 8) >> 1], S & 1
        t = f"    s_lshl2_add_u32 {s(S_T1)}, s2, {s(S_W4)}\n    s_lshl_b32 {s(S_T1)}, {s(S_T1)}, 9\n"
        t += "".join(f"    s_load_dword s{73+i}, {s(ptr,2)}, {s(S_T1)} offset:{half*256+i*64}\n" for i in range(4))
        P.add(Raw(t))
    if S == 8: P(ep_load)
    if S == 14:
        P(f"""v_lshrrev_b32 v48, 5, {v(V_LANE)}
v_bfe_u32 v49, {v(V_LANE)}, 2, 2
v_lshl_add_u32 v48, v48, 2, v49
v_and_b32 v49, 2, v49
v_bfe_u32 v50, {v(V_LANE)}, 4, 1
v_xor_b32 v49, v49, v50
s_and_b32 {s(S_T1)}, {s(S_W4)}, 2
v_xor_b32 v49, {s(S_T1)}, v49
v_lshlrev_b32 v49, 5, v49
v_lshl_add_u32 v48, v48, 7, v49
v_and_b32 v49, 3, {v(V_LANE)}
v_lshl_add_u32 v48, v49, 3, v48
s_lshl_b32 {s(S_MX)}, {s(S_W4)}, 14
s_lshl_b32 {s(S_T0)}, {s(S_T1)}, 14
v_add_u32 {v(B0)}, {s(S_T0)}, v48
v_xor_b32 {v(B1)}, 64, {v(B0)}
v_xor_b32 v49, 64, v48
s_mul_i32 {s(S_T0)}, {s(S_T1)}, 6144
s_add_u32 {s(S_T0)}, {s(S_T0)}, {L_WA}
v_add_u32 {v(A0)}, {s(S_T0)}, v48
v_add_u32 {v(A1)}, {s(S_T0)}, v49
s_mul_i32 {s(S_T0)}, {s(S_T1)}, 10240
s_add_u32 {s(S_T0)}, {s(S_T0)}, {L_KV}
v_add_u32 {v(A2)}, {s(S_T0)}, v48
v_add_u32 {v(A3)}, {s(S_T0)}, v49
""")
    if S == 15:
        P(f"""s_lshl_b32 {s(S_T0)}, {s(S_W4)}, 12
v_add_u32 {v(EXR)}, {s(S_T0)}, {v(V_L16)}
v_xor_b32 {v(EXW)}, 0x2000, {v(EXR)}
v_and_b32 {v(VOUT)}, 31, {v(V_LANE)}
v_lshlrev_b32 {v(VOUT)}, 10, {v(VOUT)}
v_lshrrev_b32 v48, 5, {v(V_LANE)}
v_lshl_add_u32 {v(VOUT)}, v48, 4, {v(VOUT)}
s_and_b32 {s(S_T2)}, {s(S_W4)}, 1
s_lshl_b32 {s(S_T2)}, {s(S_T2)}, 15
s_lshl_b32 {s(S_T0)}, {s(S_RB3)}, 16
s_add_u32 {s(S_T0)}, {s(S_T0)}, {s(S_T2)}
s_lshl_b32 {s(S_T1)}, {s(S_CB)}, 7
s_add_u32 {s(S_T0)}, {s(S_T0)}, {s(S_T1)}
s_and_b32 {s(S_T1)}, {s(S_W4)}, 2
s_lshl_b32 {s(S_T1)}, {s(S_T1)}, 5
s_add_u32 {s(S_T0)}, {s(S_T0)}, {s(S_T1)}
v_add_u32 {v(VOUT)}, {s(S_T0)}, {v(VOUT)}
s_lshl_b32 {s(S_T0)}, {s(S_RB3)}, 17
s_add_u32 {s(S_T0)}, {s(S_T0)}, {s(S_T2)}
s_lshl_b32 {s(S_T1)}, {s(S_T1)}, 8
s_add_u32 {s(S_T0)}, {s(S_T0)}, {s(S_T1)}
s_add_u32 {s(S_T0)}, {s(S_T0)}, {WS_O}
v_add_u32 {v(VOG)}, {s(S_T0)}, {v(V_L16)}
s_lshl_b32 {s(S_WB)}, {s(S_W4)}, 17
s_lshl_b32 {s(S_T1)}, {s(S_CB)}, 7
s_add_u32 {s(S_WB)}, {s(S_WB)}, {s(S_T1)}
s_lshl3_add_u32 {s(S_R3)}, {s(S_RB3)}, {s(S_CB)}
s_and_b32 {s(S_T1)}, {s(S_W4)}, 2
s_lshl2_add_u32 {s(S_R3)}, {s(S_R3)}, {s(S_T1)}
s_lshl_b32 {s(S_R3)}, {s(S_R3)}, 6""")
    if S == OPT["kvs"]:
        tail = P.items[mark:]; del P.items[mark:]
        P.add(flag_store("none", "kv")); P.items += tail
    if S == 16:
        P("s_waitcnt lgkmcnt(0)")
        H.poll(f"v_cmp_ne_u64 vcc, 0, {v(EP,2)}", ep_load)
        P(f"v_readfirstlane_b32 {s(S_EP)}, {v(EP)}\nv_readfirstlane_b32 {s(S_EP+1)}, {v(EP+1)}")
    if S == 19:
        P.add(srd(S_WOA, 8, 524288) + srd(S_WOB, 14, 524288) + srd(S_OUT, 18, 2097152))
    if S == 20:
        P(f"""v_lshrrev_b32 v48, 3, {v(V_LANE)}
v_bfe_u32 v49, {v(V_LANE)}, 4, 1
v_lshlrev_b32 v49, 2, v49
v_and_b32 v50, 7, {v(V_LANE)}
v_xor_b32 v49, v49, v50
v_lshlrev_b32 v49, 4, v49
v_lshl_add_u32 {v(VWO)}, v48, 10, v49
v_and_b32 {v(VKF)}, 32, {v(V_LANE)}
v_lshlrev_b32 {v(VKF)}, 4, {v(VKF)}
v_mul_u32_u24 {v(V1A)}, {KVS}, v50
v_bfe_u32 v51, {v(V_LANE)}, 3, 1
v_lshl_add_u32 {v(V1A)}, v51, 4, {v(V1A)}
s_mul_i32 {s(S_MW)}, {s(S_W4)}, {KVH}
s_add_u32 {s(S_MW)}, {s(S_MW)}, {L_KV}
s_add_u32 {s(S_T0)}, {s(S_MW)}, 2048
v_add_u32 {v(V1A)}, {s(S_T0)}, {v(V1A)}
s_lshl_b32 {s(S_T0)}, {s(S_RB)}, 1
v_add_u32 v48, {s(S_T0)}, v50
v_cmp_le_u32 vcc, 8, v48
v_mov_b32 v49, {hex(ONES)}
v_cndmask_b32 {v(V1D)}, 0, v49, vcc
v_subrev_u32 v51, 1, v51
v_and_b32 {v(V1D)}, v51, {v(V1D)}
v_mov_b32 {v(V1D+1)}, {v(V1D)}
v_mov_b32 {v(V1D+2)}, {v(V1D)}
v_mov_b32 {v(V1D+3)}, {v(V1D)}
s_mul_i32 {s(S_MA)}, {s(S_W4)}, 6144
s_add_u32 {s(S_MA)}, {s(S_MA)}, {L_WA}
s_mul_i32 {s(S_MB)}, {s(S_W4)}, 10240
s_add_u32 {s(S_MB)}, {s(S_MB)}, {L_KV - 6144}
s_lshl_b32 {s(S_K)}, {s(S_HEAD)}, 5
s_add_u32 {s(S_K)}, {s(S_K)}, {s(S_RB)}
s_lshl_b32 {s(S_K)}, {s(S_K)}, 6
s_add_u32 {s(S_K)}, {s(S_K)}, {WS_FKV}""")
    if S == OPT["gat"] - 1 - OPT["pasy"]:
        H.spoll_issue(4, S_K)
    if S == OPT["gat"] - 1:
        H.spoll(4, S_K, ignore_from=S_RB)
        H.stamp()
    if S == OPT["sents"]:
        P.add([f"v_mov_b32 {v(172+i)}, -1" for i in range(4)])
        P.add(o_store(0, 1, 172, "sent")); P.add(o_store(0, 0, 172, "sent"))
    if S == 23:
        P(f"ds_write_b128 {v(V1A)}, {v(V1D,4)}")
    if S == 24: P.add(Pace(OPT["pace0"]))
    if S == OPT["gat"] + OPT["gdel"]:
        emit_gather(0, tuple(range(OPT['g0'])))
if OPT["p1only"]:
    H.finish()
fs = lambda: H.stamp() if OPT["fine"] == 4 else None
P(f"s_setprio {OPT['hprio']}")
emit_gather(1, tuple(range(OPT['g0'], 8)))
def wo_dma(br):
    o = []
    for t in range(16):
        base = S_MX if br else (S_MA if t < 6 else S_MB)
        g = [f"s_add_u32 m0, {s(base)}, {t*1024}", f"s_add_u32 {s(S_T3)}, {s(S_WB)}, {t*8192}"]
        o.append(g + [dma(VWO, S_WOB if br else S_WOA, s(S_T3), 0, "wob" if br else ("woa" if t < 6 else "woc"))])
    return o
woa, wob = wo_dma(0), wo_dma(1)
P.add(wob[:OPT["wb0"]])
P.add(WaitTag("kv")); P.add(WaitLds()); P("s_barrier")
H.stamp()
if OPT["t2"]: P.add(WaitTag("kvb")); P("s_barrier")
if OPT["sents"] == 25:
    P.add([f"v_mov_b32 {v(172+i)}, -1" for i in range(4)])
    P.add(o_store(0, 1, 172, "sent")); P.add(o_store(0, 0, 172, "sent"))
P.add(Pace(OPT["pace"]))
rest = wob[OPT["wb0"]:] + woa[:6]
if OPT["zbar"]:
    P.add(rest[:OPT["wz"]]); rest = rest[OPT["wz"]:]
    P("s_barrier"); fs(); P.add(flag_store("sent", "ob"))
P.add(rest)
fs()
def o_gather(br):
    o = []
    for hs in range(16):
        if hs % 4 == 0: o += [f"s_mov_b32 {s(S_T1)}, {br*65536 + hs*1024}"]
        o += [ws_ld(v((OFA, OFB)[br]+4*hs,4), VOG, s(S_T1), (hs & 3)*1024)]
    return o
def wo_read(dst, hs, br):
    h, j = hs >> 3, hs & 7
    base, off = ((B0, B1), hs*2048) if br else (((A0, A1), h*6144 + j*2048) if j < 3 else ((A2, A3), h*10240 + (j-3)*2048))
    return [f"ds_read_b64_tr_b16 {v(dst+4*ct+2*q,2)}, {v(base[ct])} offset:{off+q*1024}" for ct in range(2) for q in range(2)]
FIN = ACC3 + 32
def p3(Q, br, hook=lambda hs: None):
    Q.add(wo_read(WBF, 0, br))
    for hs in range(16):
        b = hs & 1
        rd = wo_read(WBF + 8*(1-b), hs + 1, br) if hs < 15 else []
        for ct in ((0, 1) if hs < 15 else (1, 0)):
            acc = v((FIN, ACC3)[br]+16*ct, 16)
            c = acc if hs else ("0" if br else v(ACC3+16*ct, 16))
            Q(mfma(acc, v(WBF+8*b+4*ct,4), v((OFA, OFB)[br]+4*hs,4), c))
            Q.add(rd[2*ct:2*ct+2])
        hook(hs)
def sentinel_scan(hs):
    base = OFA + 4*hs
    first = [f"v_max3_u32 {v(TMP)}, {v(base)}, {v(base+1)}, {v(base+1)}"] if hs == 0 else [f"v_max3_u32 {v(TMP)}, {v(TMP)}, {v(base)}, {v(base+1)}"]
    return first + [f"v_max3_u32 {v(TMP)}, {v(TMP)}, {v(base+2)}, {v(base+3)}"]
P(f"s_add_u32 {s(S_K)}, {s(S_R3)}, {WS_FOB}")
P.add(WaitTag("wob")); P("s_barrier"); fs()
if not OPT["zbar"]: P.add(flag_store("sent", "ob"))
P.add(woa[6:11]); H.spoll_issue(16, S_K); P.add(woa[11:]); fs()
H.spoll(16, S_K); H.stamp()
P.add(o_gather(1)); fs()
P(f"s_setprio {OPT['p3prio']}")
p3(P, 1)
H.stamp()
P.add(WaitTag("woa", "woc")); P("s_barrier"); fs()
P.add(o_gather(0))
test = [f"v_cmp_ne_u32 vcc, -1, {v(TMP)}", "s_cmp_eq_u64 vcc, -1"]
p3(P, 0, lambda hs: P.add(sentinel_scan(hs)))
P.add(test); P("s_cbranch_scc0 L_retry\nL_ok:")
Q = Prog()
Q(f"L_retry:\ns_mov_b32 {s(S_SPIN)}, 0x20000\ns_nop 15\nL_again:"); Q.add(o_gather(0))
Q(f"s_sub_u32 {s(S_SPIN)}, {s(S_SPIN)}, 1\ns_waitcnt vmcnt(0)\ns_cbranch_scc1 L_redo")
for hs in range(16): Q.add(sentinel_scan(hs))
Q.add(test); Q("s_cbranch_scc0 L_again\nL_redo:")
p3(Q, 0); Q("s_nop 15\ns_branch L_ok")
retry_txt = [finalize(Q)]
H.stamp()
P.add([f"ds_write_b128 {v(EXW)}, {v(FIN+16+4*q,4)} offset:{q*1024}" for q in range(4)])
P.add(WaitLds()); P("s_barrier")
P.add([f"ds_read_b128 {v(OFB+4*q,4)}, {v(EXR)} offset:{q*1024}" for q in range(4)])
for hf in range(2):
    P.add([f"v_pk_add_f32 {v(FIN+8*hf+2*i,2)}, {v(FIN+8*hf+2*i,2)}, {v(OFB+8*hf+2*i,2)}" for i in range(4)])
    P.add([f"v_cvt_pk_bf16_f32 {v(WBF+4*hf+i)}, {v(FIN+8*hf+2*i)}, {v(FIN+8*hf+2*i+1)}" for i in (0, 2, 1, 3)])
    P(f"v_permlane32_swap_b32 {v(WBF+4*hf)}, {v(WBF+4*hf+2)}\nv_permlane32_swap_b32 {v(WBF+4*hf+1)}, {v(WBF+4*hf+3)}")
    P(f"buffer_store_dwordx4 {v(WBF+4*hf,4)}, {v(VOUT)}, {s(S_OUT,4)}, 0 offen{' offset:32' if hf else ''}{('', ' sc1', ' nt', ' sc0 sc1')[OPT['outsc']]}")
H.stamp()
H.finish()

C = Role("C"); P = C.P
T1, T3, T2 = 32, 64, 96
XB, WB = 128, 160
V_AX, V_P0L, V_P0H, V_P1L, V_P1H, V_T2L, V_T2H = 192, 194, 195, 196, 197, 198, 199
V_LO, V_HI, V_CMR = 200, 201, 202
VPK = 224
r5, hh, rr, cc, nh, u0, u1, cm, g4 = 128, 129, 130, 131, 132, 133, 134, 135, 140
P("L_crole:")
P.add(late_ids)
if OPT["prio"]: P("s_setprio 1")
P(f"""
v_and_b32 {v(r5)}, 31, {v(V_LANE)}
v_lshrrev_b32 {v(hh)}, 5, {v(V_LANE)}
v_lshrrev_b32 {v(g4)}, 4, {v(V_LANE)}
v_and_b32 {v(u1)}, 15, {v(V_LANE)}
v_lshrrev_b32 {v(u0)}, 1, {v(u1)}
v_xor_b32 {v(u0)}, {v(u0)}, {v(g4)}
v_lshlrev_b32 {v(u0)}, 4, {v(u0)}
v_lshl_add_u32 {v(u0)}, {v(u1)}, 7, {v(u0)}
v_add_u32 {v(V_AX)}, {L_X}, {v(u0)}
v_xor_b32 {v(V_AX+1)}, 64, {v(V_AX)}
v_bfe_u32 {v(rr)}, {v(V_LANE)}, 2, 2
v_and_b32 {v(cc)}, 3, {v(V_LANE)}
v_and_b32 {v(nh)}, 1, {v(g4)}
v_lshl_add_u32 {v(u0)}, {v(g4)}, 3, {v(rr)}
v_xor_b32 {v(u1)}, {s(S_W4)}, {v(rr)}
v_lshlrev_b32 {v(u1)}, 5, {v(u1)}
v_lshl_add_u32 {v(u1)}, {v(cc)}, 3, {v(u1)}
v_lshl_add_u32 {v(u1)}, {v(u0)}, 8, {v(u1)}
v_lshl_add_u32 {v(V_P0L)}, {v(nh)}, 7, {v(u1)}
v_add_u32 {v(V_P0H)}, 0x10000, {v(V_P0L)}
v_xor_b32 {v(V_P1L)}, 0x80, {v(V_P0L)}
v_xor_b32 {v(V_P1H)}, 0x80, {v(V_P0H)}
v_lshrrev_b32 {v(u1)}, 1, {v(rr)}
v_lshl_add_u32 {v(u1)}, {v(nh)}, 1, {v(u1)}
v_xor_b32 {v(u1)}, {s(S_W4)}, {v(u1)}
v_lshlrev_b32 {v(u1)}, 5, {v(u1)}
v_lshl_add_u32 {v(u1)}, {v(cc)}, 3, {v(u1)}
v_lshl_add_u32 {v(V_T2L)}, {v(u0)}, 7, {v(u1)}
v_add_u32 {v(V_T2H)}, 0x10000, {v(V_T2L)}
v_and_b32 {v(u0)}, 15, {v(V_LANE)}
v_lshlrev_b32 {v(u0)}, 4, {v(u0)}
v_lshl_add_u32 {v(u0)}, {v(hh)}, 8, {v(u0)}
v_lshl_add_u32 {v(V_LO)}, {v(nh)}, 31, {v(u0)}
v_xor_b32 {v(V_HI)}, {OOB}, {v(V_LO)}
v_lshlrev_b32 {v(u0)}, 2, {v(hh)}
v_sub_u32 {v(cm)}, {v(r5)}, {v(u0)}
v_sub_u32 {v(u0)}, 32, {v(cm)}
v_mov_b32 {v(u1)}, {hex(~0x55540001 & 0xffffffff)}
v_alignbit_b32 {v(V_CMR)}, {v(u1)}, {v(u1)}, {v(u0)}
s_waitcnt lgkmcnt(0)""")
if OPT["wsoff"]: P(f"s_add_u32 s22, s22, {OPT['wsoff'] << 20}\ns_addc_u32 s23, s23, 0")
P.add(entry_stamp())
P(f"""s_memrealtime {s(S_TM,2)}
s_mov_b32 {s(S_C)}, {fhex(QK_SCALE)}
s_mov_b32 {s(S_C+1)}, {fhex(QK_SCALE)}
""")
def l2_prefetch():
    a, b = 140, 141
    o = lines(f"""s_lshr_b32 {s(S_T0)}, s2, 3
s_and_b32 {s(S_T1)}, {s(S_HG)}, 4
s_lshl_b32 {s(S_T1)}, {s(S_T1)}, 7
v_and_b32 {v(a)}, 3, {v(V_LANE)}
v_lshlrev_b32 {v(a)}, 7, {v(a)}
s_cmp_eq_u32 {s(S_W4)}, 2
s_cbranch_scc1 L_pfx
s_cmp_eq_u32 {s(S_W4)}, 3
s_cbranch_scc1 L_pfq
s_cmp_eq_u32 {s(S_W4)}, 0
s_cselect_b32 {s(S_W)}, s6, s12
s_cselect_b32 {s(S_W+1)}, s7, s13
s_mov_b32 {s(S_W+2)}, 1572864
s_mov_b32 {s(S_W+3)}, 0x20000
v_bfe_u32 {v(b)}, {v(V_LANE)}, 2, 1
v_lshl_add_u32 {v(a)}, {v(b)}, 10, {v(a)}
v_lshrrev_b32 {v(b)}, 3, {v(V_LANE)}
v_mul_u32_u24 {v(b)}, 0xc00, {v(b)}
v_add_u32 {v(a)}, {v(a)}, {v(b)}
s_mul_i32 {s(S_T0)}, {s(S_T0)}, {8*3072}
s_add_u32 {s(S_T0)}, {s(S_T0)}, {s(S_T1)}
s_add_u32 {s(S_T0)}, {s(S_T0)}, 1024
buffer_load_dword v190, {v(a)}, {s(S_W,4)}, {s(S_T0)} offen
s_add_u32 {s(S_T0)}, {s(S_T0)}, {256*3072}
buffer_load_dword v191, {v(a)}, {s(S_W,4)}, {s(S_T0)} offen
s_branch L_pfe
L_pfx:
s_mov_b32 {s(S_W)}, s4
s_mov_b32 {s(S_W+1)}, s5
s_mov_b32 {s(S_W+2)}, 2097152
s_mov_b32 {s(S_W+3)}, 0x20000
v_lshrrev_b32 {v(b)}, 2, {v(V_LANE)}
v_lshl_add_u32 {v(a)}, {v(b)}, 10, {v(a)}
s_lshl_b32 {s(S_T0)}, {s(S_T0)}, 14
s_and_b32 {s(S_T1)}, {s(S_RB)}, 24
s_lshl_b32 {s(S_T1)}, {s(S_T1)}, 16
s_add_u32 {s(S_T0)}, {s(S_T0)}, {s(S_T1)}
buffer_load_dword v190, {v(a)}, {s(S_W,4)}, {s(S_T0)} offen
buffer_load_dword v191, {v(a)}, {s(S_W,4)}, {s(S_T0)} offen offset:512
s_branch L_pfe
L_pfq:
s_mov_b32 {s(S_W)}, s6
s_mov_b32 {s(S_W+1)}, s7
s_mov_b32 {s(S_W+2)}, 1572864
s_mov_b32 {s(S_W+3)}, 0x20000
v_lshrrev_b32 {v(b)}, 2, {v(V_LANE)}
v_mul_u32_u24 {v(b)}, 0xc00, {v(b)}
v_add_u32 {v(a)}, {v(a)}, {v(b)}
s_mul_i32 {s(S_T0)}, {s(S_T0)}, {16*3072}
s_add_u32 {s(S_T0)}, {s(S_T0)}, {s(S_T1)}
buffer_load_dword v190, {v(a)}, {s(S_W,4)}, {s(S_T0)} offen
s_mov_b32 {s(S_W)}, s12
s_mov_b32 {s(S_W+1)}, s13
buffer_load_dword v191, {v(a)}, {s(S_W,4)}, {s(S_T0)} offen
L_pfe:""")
    P.add(Raw("\n".join(("" if l.endswith(":") else "    ") + l for l in o)))
    P("s_nop 0")
if OPT["pf"] == 1: l2_prefetch()
P.add(srd(S_WS, 22, WS_SIZE) + srd(S_DBG, 20, 256))
P(f"""s_cmp_eq_u32 s2, 0
s_cselect_b32 {s(S_T2)}, 0, {OOB}
v_lshlrev_b32 v5, 8, v0
v_or_b32 v5, {s(S_T2)}, v5
s_waitcnt lgkmcnt(0)
v_mov_b32 {v(EP)}, {s(S_TM)}
v_mov_b32 {v(EP+1)}, {s(S_TM+1)}
buffer_store_dwordx2 {v(EP,2)}, v5, {s(S_DBG,4)}, 0 offen sc1""")
V_AXW, V_AG, V_GPW, V_GPR, XW, GF, GACC = 4, 8, 9, 13, 240, 248, 204
P(f"""s_lshl_b32 {s(S_T2)}, {s(S_W4)}, 11
v_add_u32 {v(V_AXW)}, {s(S_T2)}, {v(V_AX)}
v_add_u32 {v(V_AXW+1)}, {s(S_T2)}, {v(V_AX+1)}
v_lshlrev_b32 {v(V_AG)}, 4, {v(g4)}
v_add_u32 {v(V_AG)}, {L_G}, {v(V_AG)}
v_lshlrev_b32 {v(V_GPR)}, 2, {v(r5)}
v_add_u32 {v(V_GPR)}, {L_GP}, {v(V_GPR)}
v_and_b32 {v(u0)}, 15, {v(V_LANE)}
s_lshl_b32 {s(S_T2)}, {s(S_W4)}, 6
s_add_u32 {s(S_T2)}, {s(S_T2)}, {L_GP}
v_lshl_add_u32 {v(V_GPW)}, {v(u0)}, 2, {s(S_T2)}""")
def x_warm(js):
    t = (f"    s_lshl2_add_u32 {s(S_T0)}, s2, {s(S_W4)}\n    s_lshr_b32 {s(S_T1)}, {s(S_T0)}, 5\n    s_lshl_b32 {s(S_T0)}, {s(S_T0)}, 11\n")
    for j in js:
        t += f"    s_add_u32 {s(S_K)}, {s(S_T1)}, {j}\n    s_and_b32 {s(S_K)}, {s(S_K)}, 7\n    s_lshl_b32 {s(S_K)}, {s(S_K)}, 7\n    s_add_u32 {s(S_K)}, {s(S_K)}, {s(S_T0)}\n"
        t += "".join(f"    s_load_dword s{28+i}, s[4:5], {s(S_K)} offset:{(i >> 1)*1024 + (i & 1)*64}\n" for i in range(4))
    P.add(Raw(t))
if OPT["xwarm"] == 1: x_warm((1, 2, 3))
P.add(attn_setup(0, 136))
if OPT["xwarm"] == 2: x_warm((1, 2, 3))
if OPT["xwarm"]:
    P("s_waitcnt lgkmcnt(0)"); x_warm((4, 5, 6)); P("s_waitcnt lgkmcnt(0)"); x_warm((7,)); P("s_waitcnt lgkmcnt(0)")
C.stamp()

CM, QB, KB, VB, KBH, VBH, BP, BPL, BPK, SENT, S_R0 = 176, 248, 240, 32, 80, 84, 192, 88, 88, 220, 24
BS2, BSP2, BO2 = (96, 48), (128, 112), (160, 144)
def b_scores(t):
    kprev = v(KB, 4) if t == 1 else v(KBH, 4)
    return [mfma(v(BS2[t],16), v(KB+4*t,4), v(QB+4*t,4), v(CM,16)), mfma(v(BSP2[t],16), kprev, v(QB+4*t,4), v(CM,16))]
def b_softmax(t):
    S, sp, m, p, pl = BS2[t], BSP2[t], TMP + 2*t, BP + 8*t, BPL + 4*t
    o = [f"v_cndmask_b32 {v(S+q)}, {v(S+q)}, {v(sp+q)}, {s(S_LO16,2)}" for q in range(8, 16)]
    if t == 0:
        o += [f"v_mov_b32 {v(m)}, {hex(NEG_BIG)}"]
        o += [f"v_cndmask_b32 {v(S+q)}, {v(S+q)}, {v(m)}, {s(S_R0,2)}" for q in range(8, 16)]
    o += max_tree(m, range(S, S+16)) + cross_max(m, m+1)
    o += [f"v_pk_add_f32 {v(S+2*q,2)}, {v(S+2*q,2)}, {v(m,2)} op_sel_hi:[1,0] neg_lo:[0,1] neg_hi:[0,1]" for q in range(8)]
    o += [f"v_exp_f32 {v(S+q)}, {v(S+q)}" for q in range(16)]
    o += [f"v_cvt_pk_bf16_f32 {v(p+i)}, {v(S+2*i)}, {v(S+2*i+1)}" for i in range(8)]
    o += [f"v_cndmask_b32 {v(pl+i)}, 0, {v(p+4+i)}, {s(S_LO16,2)}" for i in range(4)]
    o += [f"v_cndmask_b32 {v(p+4+i)}, {v(p+4+i)}, 0, {s(S_LO16,2)}" for i in range(4)]
    return o
def b_pv(t):
    vprev, acc, p = v(VB+4, 4) if t == 1 else v(VBH, 4), v(BO2[t], 16), BP + 8*t
    return [mfma(acc, v(VB+8*t,4), v(p,4), "0"), mfma(acc, v(VB+8*t+4,4), v(p+4,4), acc), mfma(acc, vprev, v(BPL+4*t,4), acc)]
def b_pack(t):
    f = 200 + 2*t
    return o_pack(BO2[t], 8, 0, [f"v_sub_f32 {v(f+1)}, 1.0, {v(G0+t)}", f"v_mul_f32 {v(f)}, {v(f)}, {v(f+1)}"], BPK+4*t, f)
def frag_reads(n):
    b, m = n & 1, n & 15
    j, u2 = m >> 1, m & 1
    base = (stage_of(n) % NSLOT) * SLOT
    hi = base >= 65536; off = base - (65536 if hi else 0)
    x = [f"ds_read_b128 {v(XB+16*b+4*tg,4)}, {v(V_AX+u2)} offset:{j*8192+tg*2048}" for tg in range(4)]
    if n < 16:
        w = [f"ds_read_b64_tr_b16 {v(WB+16*b+4*f+2*qd,2)}, {v(((V_P0L,V_P0H),(V_P1L,V_P1H))[pos][hi])} offset:{off+M*8192+qd*1024}"
             for f, (M, pos) in enumerate(((0, 0), (1, 1), (0, 1), (1, 0))) for qd in range(2)]
        return w[0:2] + x[0:2] + w[2:4] + x[2:4] + w[4:8]
    w = [f"ds_read_b64_tr_b16 {v(WB+8*b+4*M+2*qd,2)}, {v((V_T2L,V_T2H)[hi])} offset:{off+M*8192+u2*4096+qd*512}" for M in range(2) for qd in range(2)]
    return w[0:2] + x[0:2] + w[2:4] + x[2:4]
def step_mfmas(n):
    b = n & 1
    x = lambda tg: v(XB+16*b+4*tg, 4)
    c = lambda r: "0" if n in (0, 16) else v(r, 4)
    kq = lambda T, wbase: [mfma16(v(T+16*f+4*tg,4), v(wbase+4*f,4), x(tg), c(T+16*f+4*tg)) for hf in range(2) for f in range(2) for tg in (2*hf, 2*hf+1)]
    if n < 16:
        return kq(T1, WB+16*b) + [mfma16(v(T3+16*f+4*tg,4), x(tg), v(WB+16*b+8+4*f,4), c(T3+16*f+4*tg)) for f in range(2) for tg in range(4)]
    return kq(T2, WB+8*b)
def kq_frag(dst, T, tt, scale):
    a = T + 8*tt
    o = [f"v_pk_mul_f32 {v(a+2*i,2)}, {v(a+2*i,2)}, {s(S_C,2)}" for i in range(4)] if scale else []
    o += [f"v_cvt_pk_bf16_f32 {v(dst+i)}, {v(a+2*i)}, {v(a+2*i+1)}" for i in (0, 2, 1, 3)]
    return o, [f"v_permlane16_swap_b32 {v(dst+i)}, {v(dst+2+i)}" for i in range(2)]
def v_frag(tg):
    d = VPK + 4*tg
    o = [f"v_cvt_pk_bf16_f32 {v(d+2*f+i)}, {v(T3+16*f+4*tg+2*i)}, {v(T3+16*f+4*tg+2*i+1)}" for i in range(2) for f in range(2)]
    return o, [f"v_permlane16_swap_b32 {v(d+i)}, {v(d+2+i)}" for i in range(2)], [f"v_permlane32_swap_b32 {v(d+i)}, {v(d+2+i)}" for i in range(2)]
def kv_publish():
    o = [f"s_lshl_b32 {s(S_T0)}, {s(S_HEAD)}, 17", f"s_lshl_b32 {s(S_T1)}, {s(S_RB)}, 12", f"s_add_u32 {s(S_T0)}, {s(S_T0)}, {s(S_T1)}"]
    k = [kq_frag(KA+4*tt, T1, tt, True) for tt in range(2)]
    o += k[0][0] + k[1][0] + k[0][1] + k[1][1] + [ws_st(v(KA+4*tt,4), V_L16, s(S_T0), tt*2048, "kv") for tt in range(2)]
    for tt in range(2):
        f = [v_frag(2*tt + m) for m in range(2)]
        o += f[0][0] + f[1][0] + f[0][1] + f[1][1] + f[0][2] + f[1][2]
        o += [ws_st(v(VPK+8*tt+4*m,4), V_LO, s(S_T0), tt*2048+1024+m*512, "kv") for m in range(2)]
    o += [f"s_lshl_b32 {s(S_T0)}, {s(S_HEAD)}, 15", f"s_lshl_b32 {s(S_T1)}, {s(S_RB)}, 10",
          f"s_add_u32 {s(S_T0)}, {s(S_T0)}, {s(S_T1)}", f"s_add_u32 {s(S_T0)}, {s(S_T0)}, {WS_HB}",
          ws_st(v(VPK+12,4), V_HI, s(S_T0), 512, "kv")]
    k = [kq_frag(KB+4*tt, T1+16, tt, True) for tt in range(2)]
    o += k[1][0] + k[0][0] + k[1][1] + [ws_st(v(KB+4,4), V_HI, s(S_T0), 0, "kv")] + k[0][1]
    return o

if OPT["p1only"]:
    P("s_barrier\n" * 25 + "s_endpgm")
P("s_barrier")
C.stamp()
P.add(frag_reads(0))
queue = []
gf = gate_finish(V_GPR, 88)
qb0, qb1, qa0, qa1 = kq_frag(QB, T2+16, 0, False), kq_frag(QB+4, T2+16, 1, False), kq_frag(QA, T2, 0, False), kq_frag(QA1, T2, 1, False)
for n in range(32):
    mf = step_mfmas(n)
    sync = first_of_stage(n + 1) or n == 31
    nxt_stage = stage_of(n + 1) if n < 31 else 24
    rd = frag_reads(n + 1) if n < 31 else []
    if n < 16:
        m, gb = (n + 1) & 15, (n + 1) & 1
        rd = rd + [f"ds_read_b128 {v(GF+4*gb,4)}, {v(V_AG)} offset:{m*64}", f"ds_read_b128 {v(XW+4*gb,4)}, {v(V_AXW+gb)} offset:{(m >> 1)*8192}"]
    gm = [mfma16(v(GACC,4), v(GF+4*(n&1),4), v(XW+4*(n&1),4), "0" if n == 1 else v(GACC,4))] if 1 <= n <= 16 else []
    late = []
    if n == 15:
        pub = kv_publish()
        if OPT["early"]:
            late, pub = pub[:25], pub[25:]
            mf = [mf[i] for i in (0, 1, 4, 5, 8, 9, 10, 11, 12, 13, 14, 15, 2, 3, 6, 7)]
    if n == 16: queue += pub
    if n == 31 and OPT["early"]:
        mf = [mf[i] for i in (2, 3, 6, 7, 0, 1, 4, 5)]
        late = gf[2:] + qb0[0] + qb1[0] + qb0[1] + qb1[1]
    if n == 21:
        queue += [f"v_and_b32 {v(TMP)}, 11, {v(V_LANE)}", f"v_mov_b32 {v(TMP+1)}, {hex(ONES)}", f"v_cmp_eq_u32 vcc, 0, {v(TMP)}",
                  f"v_cndmask_b32 {v(TMP)}, 0, {v(TMP+1)}, vcc", f"v_mov_b32 {v(TMP+1)}, {hex(NEG_BIG)}"]
        queue += [f"v_mov_b32 {v(VBH+i)}, {v(TMP)}" for i in range(4)]
        queue += [f"v_cndmask_b32 {v(VB+i)}, {v(VPK+i)}, {v(TMP)}, {s(S_LO16,2)}" for i in range(16)]
        queue += [f"v_cndmask_b32 {v(VA+i)}, {v(TMP)}, {v(VPK+i)}, {s(S_LO16,2)}" for i in range(16)]
        queue += [f"v_cndmask_b32 {v(CMA+q)}, {v(TMP+1)}, 0, {s(S_MASK+2*q,2)}" for q in range(16)]
        queue += [f"v_bfe_i32 {v(CM+q)}, {v(V_CMR)}, {8*(q>>2)+(q&3)}, 1" for q in range(16)]
        queue += [f"v_and_b32 {v(CM+q)}, {v(TMP+1)}, {v(CM+q)}" for q in range(16)]
    if n == 16: mf = mf[:2] + gm + mf[2:]
    else: mf = mf + gm
    post = []
    pre = []
    if sync and nxt_stage == 23:
        (pre if OPT["gpre"] else post).append(f"ds_write_b32 {v(V_GPW)}, {v(GACC)}")
    if sync and nxt_stage == OPT["gat"]:
        rd = rd + [lines(f"""s_lshl_b32 {s(S_T0)}, {s(S_HEAD)}, 15
s_lshl_b32 {s(S_T1)}, {s(S_RB)}, 10
s_add_u32 {s(S_T0)}, {s(S_T0)}, {s(S_T1)}
s_add_u32 {s(S_T0)}, {s(S_T0)}, {WS_HB - 1024}
s_cmp_eq_u32 {s(S_RB)}, 0
s_cselect_b32 {s(S_T0)}, {WS_SIZE}, {s(S_T0)}
s_cselect_b64 {s(S_R0,2)}, {s(S_LO16,2)}, 0""") + [ws_ld(v(KBH,4), V_HI, s(S_T0)), f"s_not_b64 exec, {s(S_LO16,2)}",
                 ws_ld(v(VBH,4), V_HI, s(S_T0), 512), "s_mov_b64 exec, -1"]]
    if n == 31: post += gf[:2]
    take = 8 if n < 16 else (OPT["take"] if n < 21 else OPT["take2"])
    side = queue[:take]; queue = queue[take:]
    P.add(pre); P(mf[0]); P(mf[1])
    if sync:
        if nxt_stage == OPT["kvs"]: P.add(WaitTag("kv")); C.stamp()
        P.add(WaitLds()); P("s_barrier")
        if OPT["fine"] in (1, 2, 3): C.stamp()
    P.add(post)
    body, k = rd, len(mf) - 2
    nr = max(1, k - (4 if n < 16 else 2))
    for i in range(k + 1):
        lo, hi_ = len(body) * i // nr, len(body) * (i + 1) // nr
        if i < nr: P.add(body[lo:hi_])
        slo, shi = len(side) * i // (k + 1), len(side) * (i + 1) // (k + 1)
        P.add(side[slo:shi])
        i0 = 7 if n == 15 else 2
        if late and i >= i0: P.add(late[len(late) * (i - i0) // (k + 1 - i0):len(late) * (i - i0 + 1) // (k + 1 - i0)])
        if i < k: P(mf[2 + i])
    if n == 15 or (OPT["fine"] == 6 and n < 31): C.stamp()
assert not queue
C.stamp()
sc = interleave(b_scores(0), b_scores(1))
if OPT["early"]:
    P(sc[1]); P.add(qa0[0]); P(sc[2]); P.add(qa1[0]); P(sc[0]); P.add(qa0[1] + qa1[1]); P(sc[3])
else:
    P.add(gf[2:]); P.add(qb0[0] + qa0[0] + qb0[1] + qb1[0] + qa1[0])
    P(sc[2]); P.add(qb1[1] + qa0[1]); P(sc[0]); P.add(qa1[1]); P(sc[1]); P(sc[3])
s1, s0 = b_softmax(1), b_softmax(0)
P.add(s0[:9])
sm = interleave(s0[9:], s1)
P.add(sm[:-16])
pv = interleave(b_pv(0), b_pv(1))
P(mfma(v(MG+16,16), v(KA+4,4), v(QA1,4), v(CMA,16))); P.add(sm[-16:-10]); P(mfma(v(MG,16), v(KA,4), v(QA,4), v(CMA,16))); P.add(sm[-10:])
mx = interleave(*[max_tree((TMP, TMP+2)[t], range(MG+16*t, MG+16*t+16)) + cross_max((TMP, TMP+2)[t], (TMP, TMP+2)[t]+1) for t in (1, 0)])
for i, m in enumerate(pv):
    P(m); P.add(mx[4*i:4*i+4])
ng = [[f"v_pk_add_f32 {v(NEGM+16*t+2*i,2)}, 0, {v((TMP, TMP+2)[t],2)} op_sel_hi:[0,0] neg_lo:[0,1] neg_hi:[0,1]" for i in range(8)] for t in range(2)]
P.add(ng[0])
BPK = 192
P.add(interleave(b_pack(0), b_pack(1)))
P.add(o_store(1, 0, BPK, "ob")); P.add(o_store(1, 1, BPK+4, "ob"))
P.add(ng[1])
C.stamp()
cs = lambda: C.stamp() if OPT["fine"] == 4 else None
cev = {("e1" if OPT["xhs"] < 0 else OPT["xhs"]): lambda: (P.add(WaitTag("ob")) if OPT["f2by"] else None, P.add(WaitLds()), P("s_barrier"))}
if not OPT["f2by"]: cev["e1" if OPT["f2hs"] < 0 else OPT["f2hs"]] = lambda: (cs(), P.add(flag_store("ob", "ob")), cs())
if OPT["zbar"]: cev[("e1", 0, 1)[OPT["zbar"] - 1]] = lambda: (P.add(WaitTag("ob")), P("s_barrier"))
window_attention(C, cev)
P.add(interleave(*[o_pack(OACC2[t], 0, 8, [f"v_mul_f32 {v(TMP+t)}, {v(TMP+t)}, {v(G0+t)}"], PF+4*t, TMP+t) for t in (1, 0)]))
P.add(o_store(0, 1, PF+4, "oa")); P.add(o_store(0, 0, PF, "oa"))
C.stamp()
C.finish()

full = Prog(); full.items = E.items + H.P.items
bodyH = finalize(full, verbose=True)
full = Prog(); full.items = [Ins("s_load_dwordx16 s[4:19], s[0:1], 0"), Ins("global_load_dword v13, v5, s[96:97]")] + C.P.items
bodyC = "\n".join(finalize(full, verbose=True).split("\n")[2:])
print("stamps H", H.ns, "C", C.ns)
hdr = open("cdna_kernels/%s.s.ref" % NAME).read().split("; Override launch")[0]
if OPT["stamps"]: hdr += f"; stamps {C.ns} {H.ns}\n"
txt = hdr + f"""; Single launch, 256 workgroups x 8 waves, one workgroup per CU (4 heads x 64 rows of both branches).
;   waves 0-3: QKV projection (one head each), dilated attention, sliding-window attention
;   waves 4-7: LDS-DMA streaming of x / weights / key-value tiles, then one 64x64 tile of the output projection
; Hand-offs between workgroups go through d_ws with write-through stores; flags carry a per-launch epoch published
; through d_debug, and the windowed-branch result slots are first filled with all-ones and re-read until overwritten.
; Window softmax: the shift is the maximum over the diagonal key tile; if a sum or output leaves the safe range the
; tile is recomputed with the true row maximum (L_exact0 / L_exact1).
; @launch grid=(256,1,1) block=(512,1,1) lds={LDS_BYTES}
.amdgcn_target "amdgcn-amd-amdhsa--gfx950"
.text
.globl {NAME}_kernel
.p2align 12
.p2align 8
.type {NAME}_kernel,@function
{NAME}_kernel:
{bodyH}{bodyC}L_end:
    s_endpgm
{''.join(retry_txt)}{''.join(special_txt)}{slow_path()}    .fill 3072, 4, 0xbf800000
.section .rodata,"a"
.p2align 6
.amdhsa_kernel {NAME}_kernel
  .amdhsa_next_free_vgpr 256
  .amdhsa_next_free_sgpr 102
  .amdhsa_accum_offset {192 if OPT['xp'] == 8 else 256}
  .amdhsa_group_segment_fixed_size 0
  .amdhsa_kernarg_size 80
  .amdhsa_user_sgpr_count 2
  .amdhsa_user_sgpr_kernarg_segment_ptr 1
  .amdhsa_system_sgpr_workgroup_id_x 1
.end_amdhsa_kernel
"""
open(sys.argv[1], "w").write(txt)
```

```python
import sys, math, struct
from asmdsl import Prog, Ins, WaitTag, WaitLds, Raw, Pace, finalize

NAME = "gated_mix__sliding_block__sliding_local_dilated__prompt"
OPT = dict(icat=1, tlb0=0, worder0=0, g0=2, deep=0, xwarm=0, hgmap=0, hold=0, sents=21, pasy=1, gpre=1, take2=16, t2=0, rtail=1, dfl=0, kvs=19, bsplit=0, pace=0, pace0=0, pacez=0, gat=23, gdel=0, f2hs=-1, f2by=1, wb0=4, zbar=3, wz=18, probe=0, amode=0, worder=0, xhs=3, hprio=2, p3prio=0, wopf=1, tlb=1, icpf=1, cpf=0, take=96, early=1, kvflag=42, pubat=32, prio=1, barpos=0,
           xmap=3, rotmode=4, rotmask=7, outsc=0, stamps=0, fine=0, rt=0, xp=0, wsoff=0, amp=-1, ampk=8, amprole=1, ampclk=0, p1only=0, pf=0)
for a in sys.argv[2:]:
    k, v_ = a.split("="); assert k in OPT, k; OPT[k] = int(v_)

WS_KV, WS_HB, WS_O = 0, 4 << 20, 5 << 20
WS_FKV, WS_FOB, WS_FOA = 9 << 20, (9 << 20) + 65536, (9 << 20) + 131072
WS_STAMP, WS_SIZE = 10 << 20, 16 << 20
OOB = 0x80000000
NSLOT, SLOT = 5, 16384
L_X, L_WA, L_G, L_GP, LDS_BYTES = 81920, 132096, 156672, 157696, 158720
KVH, KVS, L_KV, L_WO = 2080, 4 * 2080, 65536, 0
QK_SCALE = 0.25 * math.log2(math.e)
NEG_BIG, ONES = 0xf149f2ca, 0x3f803f80

def fhex(x): return "0x%08x" % struct.unpack("<I", struct.pack("<f", x))[0]
def v(a, n=1): return f"v{a}" if n == 1 else f"v[{a}:{a+n-1}]"
def s(a, n=1): return f"s{a}" if n == 1 else f"s[{a}:{a+n-1}]"
def lines(t): return [l.strip() for l in t.strip().split("\n") if l.strip()]
def mfma(d, a, b, c): return f"v_mfma_f32_32x32x16_bf16 {d}, {a}, {b}, {c}"
def srd(base, ptr, nbytes):
    return [f"s_mov_b32 {s(base)}, {s(ptr)}", f"s_mov_b32 {s(base+1)}, {s(ptr+1)}",
            f"s_mov_b32 {s(base+2)}, {nbytes}", f"s_mov_b32 {s(base+3)}, 0x20000"]
def interleave(*ls):
    o, ls = [], [list(l) for l in ls]
    while any(ls):
        for l in ls:
            if l: o.append(l.pop(0))
    return o

S_X, S_W, S_WS, S_WOA, S_WOB, S_OUT, S_DBG, S_G = 24, 28, 32, 36, 40, 44, 48, 36
S_W4, S_HG, S_RB, S_ROT, S_HEAD, S_RB3, S_CB = 52, 53, 54, 55, 56, 57, 58
S_K, S_T0, S_MW, S_MX, S_T1 = 59, 60, 61, 62, 63
S_MASK, S_T2, S_T3, S_LO16, S_TM, S_C, S_SPIN, S_EP = 64, 96, 97, 98, 100, 10, 3, 26
V_LANE, V_L16, V_STAMP, V_FOFF = 1, 2, 3, 4
EP, FLG = 6, 8
V_AK, V_AV0, V_AV1 = 10, 11, 12
G0 = 14
PM, QA = 16, 24
TMP = 28
SB, NEGM, MG, PB, PF, KF, VF = 32, 64, 96, 128, 144, 152, 192
OACC2 = (160, 176)
KA, QA1, VA = 208, 216, 224

class Role:
    def __init__(self, name):
        self.P, self.name, self.ns, self.nl = Prog(), name, 0, 0
    def stamp(self):
        P = self.P
        if OPT["amp"] == self.ns and OPT["amprole"] == (self.name == "H"):
            P.add(WaitLds())
            P(f"{'s_memtime' if OPT['ampclk'] else 's_memrealtime'} {s(S_TM,2)}\ns_waitcnt lgkmcnt(0)\nv_writelane_b32 {v(V_STAMP)}, {s(S_TM)}, 1")
        if OPT["stamps"]:
            P.add(WaitLds())
            P(f"s_memtime {s(S_TM,2)}\ns_waitcnt lgkmcnt(0)\nv_writelane_b32 {v(V_STAMP)}, {s(S_TM)}, {self.ns + 1}")
            if OPT["rt"]: P(f"s_memrealtime {s(S_TM,2)}\ns_waitcnt lgkmcnt(0)\nv_writelane_b32 {v(V_STAMP)}, {s(S_TM)}, {self.ns + 32}")
        self.ns += 1
    def poll(self, cmp_txt, reload_txt):
        P, n = self.P, f"{self.name}{self.nl}"; self.nl += 1
        P(f"s_mov_b32 {s(S_SPIN)}, 0x40000"); P(cmp_txt)
        P(f"s_cmp_eq_u64 vcc, -1\ns_cbranch_scc1 L_pok{n}")
        P.add(Raw(f"""L_pspin{n}:
    {reload_txt}
    s_sub_u32 {s(S_SPIN)}, {s(S_SPIN)}, 1
    s_cbranch_scc1 L_pok{n}
    s_waitcnt vmcnt(0)
    {cmp_txt}
    s_nop 2
    s_cmp_eq_u64 vcc, -1
    s_cbranch_scc0 L_pspin{n}
L_pok{n}:"""))
    @staticmethod
    def _sloads(n, off):
        if n <= 8: return [f"s_load_dwordx{2*n} {s(4,2*n)}, s[22:23], {s(off)} glc"]
        return [f"s_load_dwordx16 s[4:19], s[22:23], {s(off)} glc", f"s_load_dwordx16 s[64:79], s[22:23], {s(off)} offset:64 glc"]
    def spoll_issue(self, n, off):
        self.P.add(self._sloads(n, off))
    def spoll(self, n, off, ignore_from=None):
        P, lb = self.P, f"{self.name}{self.nl}"; self.nl += 1
        w = lambda i: s(4 + 2*i if i < 8 else 48 + 2*i, 2)
        P.add(WaitLds())
        t = f"    s_mov_b32 {s(S_SPIN)}, 0x40000\nL_sp{lb}:\n"
        for i in range(n - 1):
            if ignore_from is not None:
                t += f"    s_cmp_lt_u32 {s(ignore_from)}, {n - i}\n    s_cselect_b64 {w(i)}, {s(S_EP,2)}, {w(i)}\n"
        for i in range(n):
            t += f"    s_xor_b64 {w(i)}, {w(i)}, {s(S_EP,2)}\n"
            if i: t += f"    s_or_b64 s[4:5], s[4:5], {w(i)}\n"
        t += f"    s_cmp_eq_u64 s[4:5], 0\n    s_cbranch_scc1 L_spok{lb}\n" + "".join(f"    {x}\n" for x in self._sloads(n, off))
        t += f"    s_sub_u32 {s(S_SPIN)}, {s(S_SPIN)}, 1\n    s_waitcnt lgkmcnt(0)\n    s_cbranch_scc0 L_sp{lb}\nL_spok{lb}:"
        P.add(Raw(t))
    def finish(self):
        P = self.P
        if OPT["stamps"]:
            P(f"s_memrealtime {s(S_TM,2)}\ns_waitcnt lgkmcnt(0) vmcnt(0)\nv_writelane_b32 {v(V_STAMP)}, {s(S_TM)}, 63")
            P(f"""s_lshl_b32 {s(S_T0)}, s2, 3
s_add_u32 {s(S_T0)}, {s(S_T0)}, {s(S_W4)}
s_add_u32 {s(S_T0)}, {s(S_T0)}, {4 if self.name == "H" else 0}
s_lshl_b32 {s(S_T0)}, {s(S_T0)}, 8
s_add_u32 {s(S_T0)}, {s(S_T0)}, {WS_STAMP}
v_lshlrev_b32 v0, 2, {v(V_LANE)}
buffer_store_dword {v(V_STAMP)}, v0, {s(S_WS,4)}, {s(S_T0)} offen""")
        if OPT["amp"] >= 0 and OPT["amprole"] == (self.name == "H"):
            P(f"""s_cmp_lg_u32 s2, 100
s_cbranch_scc1 L_end
v_readlane_b32 {s(S_T0)}, {v(V_STAMP)}, 0
v_readlane_b32 {s(S_T1)}, {v(V_STAMP)}, 1
s_memrealtime {s(S_TM,2)}
s_sub_u32 {s(S_T1)}, {s(S_T1)}, {s(S_T0)}
s_mul_i32 {s(S_T1)}, {s(S_T1)}, {OPT["ampk"]}
s_lshr_b32 {s(S_T1)}, {s(S_T1)}, {4 if OPT["ampclk"] else 0}
s_min_u32 {s(S_T1)}, {s(S_T1)}, 100000
s_waitcnt lgkmcnt(0)
s_mov_b32 {s(S_T0)}, {s(S_TM)}""")
            P.add(Raw(f"""L_amp{self.name}:
    s_memrealtime {s(S_TM,2)}
    s_waitcnt lgkmcnt(0)
    s_sub_u32 {s(S_K)}, {s(S_TM)}, {s(S_T0)}
    s_cmp_lt_u32 {s(S_K)}, {s(S_T1)}
    s_cbranch_scc1 L_amp{self.name}"""))
        P("s_endpgm")

ws_ld = lambda dst, voff, soff, imm=0, tag=None: Ins(
    f"buffer_load_dwordx4 {dst}, {v(voff)}, {s(S_WS,4)}, {soff} offen{' offset:%d' % imm if imm else ''} sc1", tag)
ws_st = lambda src, voff, soff, imm=0, tag=None: Ins(
    f"buffer_store_dwordx4 {src}, {v(voff)}, {s(S_WS,4)}, {soff} offen{' offset:%d' % imm if imm else ''} sc1", tag)
ep_load = f"buffer_load_dwordx2 {v(EP,2)}, off, {s(S_DBG,4)}, 0 sc1"
flag_load = f"buffer_load_dwordx2 {v(FLG,2)}, {v(V_FOFF)}, {s(S_WS,4)}, {s(S_K)} offen sc1"
flag_cmp = f"v_cmp_eq_u64 vcc, {v(FLG,2)}, {v(EP,2)}"
def flag_store(data_tag, kind):
    if kind == "kv":
        o = lines(f"""v_mul_u32_u24 v0, 56, {v(V_LANE)}
v_add_u32 v0, 88, v0
s_sub_u32 {s(S_T1)}, 31, {s(S_RB)}
s_min_u32 {s(S_T1)}, {s(S_T1)}, 4
v_cmp_gt_u32 vcc, {s(S_T1)}, {v(V_LANE)}
s_cmp_eq_u32 {s(S_RB)}, 0
s_cselect_b32 {s(S_T1)}, 24, {OOB}
v_mov_b32 v5, {s(S_T1)}
v_cndmask_b32 v0, v5, v0, vcc
s_lshl_b32 {s(S_T0)}, {s(S_HEAD)}, 5
s_add_u32 {s(S_T0)}, {s(S_T0)}, {s(S_RB)}
s_lshl_b32 {s(S_T0)}, {s(S_T0)}, 6
s_add_u32 {s(S_T0)}, {s(S_T0)}, {WS_FKV}""")
    else:
        o = lines(f"""v_lshlrev_b32 v0, 8, {v(V_LANE)}
v_cmp_gt_u32 vcc, 8, {v(V_LANE)}
v_mov_b32 v5, {OOB}
v_cndmask_b32 v0, v5, v0, vcc
s_lshl_b32 {s(S_T0)}, {s(S_RB)}, 8
s_add_u32 {s(S_T0)}, {s(S_T0)}, {s(S_HEAD)}
s_lshl_b32 {s(S_T0)}, {s(S_T0)}, 3
s_add_u32 {s(S_T0)}, {s(S_T0)}, { {"ob": WS_FOB, "oa0": WS_FOA, "oa1": WS_FOA + 65536}[kind] }""")
    return o + [WaitTag(data_tag), Ins(f"buffer_store_dwordx2 {v(EP,2)}, v0, {s(S_WS,4)}, {s(S_T0)} offen sc1", "flag")]

def max_tree(dst, regs, init=False):
    regs, o = list(regs), []
    if not init:
        o.append(f"v_max3_f32 {v(dst)}, {v(regs[0])}, {v(regs[1])}, {v(regs[2])}"); regs = regs[3:]
    while len(regs) >= 2:
        o.append(f"v_max3_f32 {v(dst)}, {v(dst)}, {v(regs[0])}, {v(regs[1])}"); regs = regs[2:]
    if regs: o.append(f"v_max_f32 {v(dst)}, {v(dst)}, {v(regs[0])}")
    return o
def cross_max(m, t):
    return [f"v_mov_b32 {v(t)}, {v(m)}", f"v_permlane32_swap_b32 {v(m)}, {v(t)}", f"v_max_f32 {v(m)}, {v(m)}, {v(t)}"]

def attn_setup(t, tmp):
    r5, hh, cm, u = tmp, tmp + 1, tmp + 2, tmp + 3
    o = lines(f"""v_and_b32 {v(r5)}, 31, {v(V_LANE)}
v_lshrrev_b32 {v(hh)}, 5, {v(V_LANE)}
v_lshlrev_b32 {v(u)}, 2, {v(hh)}
v_sub_u32 {v(cm)}, {v(r5)}, {v(u)}
s_mul_i32 {s(S_T2)}, {s(S_W4)}, {KVH}
s_add_u32 {s(S_T2)}, {s(S_T2)}, {L_KV + t*KVS}
v_add_u32 {v(V_AK)}, {s(S_T2)}, {v(V_L16)}
v_and_b32 {v(u)}, 15, {v(V_LANE)}
v_lshlrev_b32 {v(u)}, 4, {v(u)}
v_lshl_add_u32 {v(u)}, {v(hh)}, 8, {v(u)}
v_and_b32 {v(hh)}, 11, {v(V_LANE)}
v_min_u32 {v(hh)}, 1, {v(hh)}
v_lshlrev_b32 {v(hh)}, 4, {v(hh)}
v_add_u32 {v(hh)}, 0x400, {v(hh)}
v_cndmask_b32 {v(V_AV0)}, {v(hh)}, {v(u)}, {s(S_LO16,2)}
v_subrev_u32 {v(hh)}, 0x200, {v(hh)}
v_cndmask_b32 {v(V_AV1)}, {v(hh)}, {v(u)}, {s(S_LO16,2)}
v_add_u32 {v(V_AV0)}, {s(S_T2)}, {v(V_AV0)}
v_add_u32 {v(V_AV1)}, {s(S_T2)}, {v(V_AV1)}
v_mov_b32 {v(u)}, 0xffff""")
    o += [f"v_cmp_le_i32 {s(S_MASK+2*q,2)}, {8*(q>>2)+(q&3)}, {v(cm)}" for q in range(16)]
    o += [f"v_cndmask_b32 {v(PM+pq)}, 0, {v(u)}, {s(S_MASK+4*pq,2)}" for pq in range(8)]
    o += [f"v_cndmask_b32 {v(PM+pq)}, {v(PM+pq)}, -1, {s(S_MASK+4*pq+2,2)}" for pq in range(8)]
    return o

def gate_finish(addr, tmp):
    o = [f"ds_read_b32 {v(tmp+t)}, {v(addr)} offset:{128*t}" for t in range(2)]
    for op in ("v_mul_f32 {g}, " + fhex(-math.log2(math.e)) + ", {g}", "v_exp_f32 {g}, {g}", "v_add_f32 {g}, 1.0, {g}", "v_rcp_f32 {o}, {g}"):
        o += [op.format(g=v(tmp+t), o=v(G0+t)) for t in range(2)]
    return o

def o_pack(acc, o0, lreg, fac, dst, f):
    return ([f"v_rcp_f32 {v(f)}, {v(acc+lreg)}"] + fac +
            [f"v_mul_f32 {v(acc+o0+i)}, {v(f)}, {v(acc+o0+i)}" for i in range(8)] +
            [f"v_cvt_pk_bf16_f32 {v(dst+i)}, {v(acc+o0+2*i)}, {v(acc+o0+2*i+1)}" for i in range(4)])
def o_store(br, tt, src, tag):
    return [f"s_lshl_b32 {s(S_T0)}, {s(S_RB)}, 17", f"s_lshl_b32 {s(S_T1)}, {s(S_HEAD)}, 10",
            f"s_add_u32 {s(S_T0)}, {s(S_T0)}, {s(S_T1)}", f"s_add_u32 {s(S_T0)}, {s(S_T0)}, {WS_O + br*65536 + tt*32768}",
            ws_st(v(src,4), V_L16, s(S_T0), 0, tag)]

CMA = 64
def window_attention(R, events):
    P = R.P
    Q = lambda t: v((QA, QA1)[t], 4)
    dk, dv = (4, 3) if OPT["deep"] else (2, 2)
    kfr = lambda u: v((240 + 4*(u & 3)) if OPT["deep"] else KF+4*(u & 1), 4) if u < 8 else v(KA+4*(u-8), 4)
    vfr = lambda u, m: v((VF, VF+8, KF)[u % dv]+4*m, 4) if u < 8 else v(VA+8*(u-8)+4*m, 4)
    kread = lambda u: [f"ds_read_b128 {kfr(u)}, {v(V_AK)} offset:{u*KVS}"] if u < 8 else []
    vread = lambda u: [f"ds_read_b128 {vfr(u,0)}, {v(V_AV0)} offset:{u*KVS+1024}",
                       f"ds_read_b128 {vfr(u,1)}, {v(V_AV1)} offset:{u*KVS+1536}"] if u < 8 else []
    M = (TMP, TMP + 2)
    acc = lambda t: v(OACC2[t], 16)
    negm = lambda t: v(NEGM+16*t, 16)
    exps = lambda S: [f"v_exp_f32 {v(S+i)}, {v(S+i)}" for i in range(16)]
    cvts = lambda d, S: [f"v_cvt_pk_bf16_f32 {v(d+k)}, {v(S+2*k)}, {v(S+2*k+1)}" for k in range(8)]
    ev = lambda key: events.pop(key)() if key in events else None
    P(mfma(v(SB+16,16), kfr(8), Q(1), negm(1))); P(mfma(v(MG,16), kfr(8), Q(0), negm(0)))
    P("s_barrier")
    R.stamp()
    P.add(kread(0) + kread(1) + vread(0) + vread(1))
    if OPT["deep"]: P.add(kread(2) + kread(3) + vread(2))
    ev("pre")
    e, c = exps(SB+16), cvts(PB+8, SB+16)
    P.add(e[0:4]); P(mfma(v(SB,16), kfr(0), Q(0), negm(0))); P.add(kread(dk)); P.add(e[4:8]); P.add(c[0:4])
    P(mfma(v(MG+16,16), kfr(9), Q(1), negm(1))); P.add(e[8:12])
    P(mfma(acc(1), vfr(8,0), v(PB+8,4), "0")); P.add(e[12:16]); P.add(c[4:8])
    pend = [mfma(v(SB+16,16), kfr(1), Q(1), negm(1)), mfma(acc(1), vfr(8,1), v(PB+12,4), acc(1))]
    for t in range(2):
        g = MG + 16*t
        seq = [f"v_cndmask_b32 {v(g+i)}, {v(SB+16*t+i)}, {v(g+i)}, {s(S_MASK+2*i,2)}" for i in range(16)]
        seq += [[mfma(v(SB+16*t,16), kfr(1+t), Q(t), negm(t))] + (kread(dk+1) if t == 0 else [])]
        seq += exps(g) + cvts(PF, g)
        seq += [f"v_and_b32 {v(PB+8*t+i)}, {v(PM+i)}, {v(PF+i)}" for i in range(8)]
        seq += [f"v_xor_b32 {v(g+i)}, {v(PF+i)}, {v(PB+8*t+i)}" for i in range(8)]
        at = (0, 8) if t == 0 else (1, 9, 21, 26)
        for i, x in enumerate(seq):
            P.add(x)
            if i in at: P.add(pend.pop(0))
        pend = [mfma(acc(t), vfr(8+t,0), v(PB+8*t,4), acc(1) if t else "0"), mfma(acc(t), vfr(8+t,1), v(PB+8*t+4,4), acc(t)),
                mfma(acc(t), vfr(t,0), v(g,4), acc(t)), [mfma(acc(t), vfr(t,1), v(g+4,4), acc(t))] + (vread(dv) if t == 0 else [])]
    R.stamp()
    if OPT["t2"]: P("s_barrier")
    ev("e1")
    for hs in range(13):
        t = hs & 1; u = (hs >> 1) + 1 + t
        S, Pp = SB + 16*t, PB + 8*t
        e, c = exps(S), cvts(Pp, S)
        nxt = None
        if t == 0 and 0 < hs < 12: nxt = [mfma(v(SB+16,16), kfr(u+1), Q(1), negm(1))]
        if t == 1: nxt = [mfma(v(SB,16), kfr(u), Q(0), negm(0))] + kread(u+dk)
        if hs == 0:
            P.add(e[0:2]); P.add(pend[0]); P.add(e[2:5]); P.add(pend[1]); P.add(e[5:8]); P.add(pend[2])
            P.add(c[0:4]); P.add(e[8:10]); P.add(pend[3]); P.add(e[10:14])
            P(mfma(acc(t), vfr(u,0), v(Pp,4), acc(t))); P.add(e[14:16]); P.add(c[4:8])
        else:
            P.add(e[0:2]); P.add(pend); P.add(e[2:6])
            if nxt: P.add(nxt)
            P.add(e[6:8]); P.add(c[0:4]); P.add(e[8:10])
            P(mfma(acc(t), vfr(u,0), v(Pp,4), acc(t)))
            P.add(e[10:16]); P.add(c[4:8])
        pend = [mfma(acc(t), vfr(u,1), v(Pp+4,4), acc(t))] + (vread(u+dv) if t == 0 else [])
        if OPT["fine"] == 5: R.stamp()
        ev(hs)
    P.add(pend)
    assert not events, events
    P(f"s_mov_b32 {s(S_T1)}, 0x7b800000")
    for t in (1, 0):
        o, m = OACC2[t], M[t]
        P.add([f"v_add_f32 {v(m)}, abs({v(o)}), abs({v(o+8)})", f"v_add_f32 {v(m+1)}, abs({v(o+1)}), abs({v(o+2)})"] +
              [f"v_add_f32 {v(m+(i&1))}, {v(m+(i&1))}, abs({v(o+i)})" for i in range(3, 8)] + [f"v_add_f32 {v(m)}, {v(m)}, {v(m+1)}"])
    P(f"v_add_f32 {v(M[0])}, {v(M[0])}, {v(M[1])}\nv_cmp_lt_f32 vcc, {v(M[0])}, {s(S_T1)}")
    P("s_cmp_eq_u64 vcc, -1\ns_cbranch_scc0 L_exact0\nL_back:")
    R.stamp()

def slow_path():
    return exact_attention(0) + exact_attention(1) + "    s_branch L_back\n"

def exact_attention(t):
    F = Prog(); q, M, acc = v((QA, QA1)[t], 4), TMP, v(OACC2[t], 16)
    KO, VO, G = TMP + 2, TMP + 3, S_T0
    def tile(rel, kdst, vdst):
        o = [f"s_add_i32 {s(S_K)}, {s(G)}, {rel}", f"s_cmp_ge_i32 {s(S_K)}, 0", f"s_cselect_b64 vcc, -1, 0",
             f"s_cselect_b32 {s(S_TM)}, {hex(ONES)}, 0", f"s_max_i32 {s(S_K)}, {s(S_K)}, 0", f"s_lshl_b32 {s(S_K)}, {s(S_K)}, 11",
             f"s_lshl_b32 {s(S_T1)}, {s(S_HEAD)}, 17", f"s_add_u32 {s(S_K)}, {s(S_K)}, {s(S_T1)}",
             f"v_and_b32 {v(KO)}, 0x200, {v(V_L16)}", f"v_cndmask_b32 {v(KO)}, {v(KO)}, {v(V_L16)}, vcc", ws_ld(v(kdst,4), KO, s(S_K))]
        if vdst is not None:
            o += [f"v_mov_b32 {v(vdst+i)}, {s(S_TM)}" for i in range(8)]
            o += [f"s_cmp_lg_u32 {s(S_TM)}, 0", f"s_cselect_b32 {s(S_K)}, {s(S_K)}, {WS_SIZE}", f"s_mov_b64 exec, {s(S_LO16,2)}",
                  ws_ld(v(vdst,4), VO, s(S_K), 1024), ws_ld(v(vdst+4,4), VO, s(S_K), 1536), "s_mov_b64 exec, -1"]
        return o
    F(f"L_exact{t}:\ns_waitcnt vmcnt(0) lgkmcnt(0)\ns_nop 15")
    F(f"""s_lshl_b32 {s(G)}, {s(S_RB)}, 1
s_sub_u32 {s(G)}, {s(G)}, {8 - t}
v_lshrrev_b32 {v(VO)}, 1, {v(V_L16)}
v_and_b32 {v(VO)}, 0x100, {v(VO)}
v_and_b32 {v(KO)}, 0xf0, {v(V_L16)}
v_or_b32 {v(VO)}, {v(VO)}, {v(KO)}""")
    F.add(tile(8, KF, VF)); F.add(tile(0, KF+4, VF+8))
    F(mfma(v(MG,16), v(KF,4), q, "0")); F(mfma(v(SB,16), v(KF+4,4), q, "0"))
    F.add([f"v_cndmask_b32 {v(MG+i)}, {v(SB+i)}, {v(MG+i)}, {s(S_MASK+2*i,2)}" for i in range(16)])
    F.add(max_tree(M, range(MG, MG+16)))
    F(f"s_mov_b32 {s(S_TM+1)}, 7\nL_exact_m{t}:\ns_add_u32 {s(G)}, {s(G)}, 1")
    F.add(tile(0, KF, None))
    F(mfma(v(SB,16), v(KF,4), q, "0"))
    F.add(max_tree(M, range(SB, SB+16), init=True))
    F(f"s_sub_u32 {s(S_TM+1)}, {s(S_TM+1)}, 1\ns_cmp_lg_u32 {s(S_TM+1)}, 0\ns_cbranch_scc1 L_exact_m{t}")
    F.add(cross_max(M, M+1))
    F.add([f"v_sub_f32 {v(MG+i)}, {v(MG+i)}, {v(M)}" for i in range(16)])
    F.add([f"v_exp_f32 {v(MG+i)}, {v(MG+i)}" for i in range(16)])
    F.add([f"v_cvt_pk_bf16_f32 {v(PF+i)}, {v(MG+2*i)}, {v(MG+2*i+1)}" for i in range(8)])
    F.add([f"v_and_b32 {v(PB+i)}, {v(PM+i)}, {v(PF+i)}" for i in range(8)])
    F.add([f"v_xor_b32 {v(PF+i)}, {v(PF+i)}, {v(PB+i)}" for i in range(8)])
    F(mfma(acc, v(VF,4), v(PB,4), "0")); F(mfma(acc, v(VF+4,4), v(PB+4,4), acc))
    F(mfma(acc, v(VF+8,4), v(PF,4), acc)); F(mfma(acc, v(VF+12,4), v(PF+4,4), acc))
    F(f"s_sub_u32 {s(G)}, {s(G)}, 7\ns_mov_b32 {s(S_TM+1)}, 7\ns_nop 15\nL_exact_e{t}:\ns_add_u32 {s(G)}, {s(G)}, 1")
    F.add(tile(0, KF, VF))
    F(mfma(v(SB,16), v(KF,4), q, "0"))
    F.add([f"v_sub_f32 {v(SB+i)}, {v(SB+i)}, {v(M)}" for i in range(16)])
    F.add([f"v_exp_f32 {v(SB+i)}, {v(SB+i)}" for i in range(16)])
    F.add([f"v_cvt_pk_bf16_f32 {v(PB+i)}, {v(SB+2*i)}, {v(SB+2*i+1)}" for i in range(8)])
    F(mfma(acc, v(VF,4), v(PB,4), acc)); F(mfma(acc, v(VF+4,4), v(PB+4,4), acc))
    F(f"s_nop 15\ns_sub_u32 {s(S_TM+1)}, {s(S_TM+1)}, 1\ns_cmp_lg_u32 {s(S_TM+1)}, 0\ns_cbranch_scc1 L_exact_e{t}")
    return finalize(F)

E = Prog()
hg_code = {0: f"s_lshl1_add_u32 {s(S_HG)}, {s(S_T1)}, {s(S_K)}", 1: f"s_lshl2_add_u32 {s(S_HG)}, {s(S_K)}, {s(S_T1)}",
           2: f"s_and_b32 {s(S_HG)}, {s(S_T1)}, 2\ns_add_u32 {s(S_HG)}, {s(S_HG)}, {s(S_K)}\ns_and_b32 {s(S_T1)}, {s(S_T1)}, 1\ns_lshl1_add_u32 {s(S_HG)}, {s(S_HG)}, {s(S_T1)}",
           3: f"s_mul_i32 {s(S_K)}, {s(S_K)}, 3\ns_lshl1_add_u32 {s(S_HG)}, {s(S_T1)}, {s(S_K)}\ns_and_b32 {s(S_HG)}, {s(S_HG)}, 7",
           4: f"s_mul_i32 {s(S_K)}, {s(S_K)}, 5\ns_lshl1_add_u32 {s(S_HG)}, {s(S_T1)}, {s(S_K)}\ns_and_b32 {s(S_HG)}, {s(S_HG)}, 7"}[OPT["hgmap"]]
assert OPT["xmap"] == 3
hb = {4: 2, 3: 1, 2: 0, 1: 3}[OPT["xmap"]]
if OPT["stamps"] or OPT["amp"] >= 0:
    E("s_memtime s[64:65]\ns_memrealtime s[66:67]")
def entry_stamp():
    if OPT["stamps"]:
        return [f"v_mov_b32 {v(V_STAMP)}, 0", f"v_writelane_b32 {v(V_STAMP)}, s64, 0", f"v_writelane_b32 {v(V_STAMP)}, s66, 62"]
    if OPT["amp"] >= 0:
        return [f"v_mov_b32 {v(V_STAMP)}, 0", f"v_writelane_b32 {v(V_STAMP)}, {'s64' if OPT['ampclk'] else 's66'}, 0"]
    return []
code_pf = f"""s_getpc_b64 {s(S_T2,2)}
L_pc:
s_lshl2_add_u32 {s(S_T1)}, {s(S_T0)}, {s(S_W4)}
s_and_b32 {s(S_T1)}, {s(S_T1)}, 63
s_lshl_b32 {s(S_T1)}, {s(S_T1)}, 9
s_sub_u32 {s(S_T2)}, {s(S_T2)}, L_pc-{NAME}_kernel
s_subb_u32 {s(S_T3)}, {s(S_T3)}, 0
v_and_b32 v5, 3, {v(V_LANE)}
v_lshl_add_u32 v5, v5, 7, {s(S_T1)}
global_load_dword v13, v5, {s(S_T2,2)}"""
if OPT["cpf"] == 2:
    E(f"""s_getpc_b64 {s(S_T2,2)}
s_bfe_u32 {s(S_T1)}, s2, 0x50003
v_lshrrev_b32 v5, 6, v0
v_lshlrev_b32 v5, 7, v5
v_lshl_add_u32 v5, {s(S_T1)}, 10, v5
global_load_dword v13, v5, {s(S_T2,2)}""")
if OPT["cpf"] == 3:
    E(f"""s_getpc_b64 {s(S_T2,2)}
s_bfe_u32 {s(S_T1)}, s2, 0x30003
v_lshrrev_b32 v5, 4, v0
v_lshlrev_b32 v5, 7, v5
v_lshl_add_u32 v5, {s(S_T1)}, 12, v5
global_load_dword v13, v5, {s(S_T2,2)}""")
E(f"""
s_cmp_ge_u32 s2, 256
s_cbranch_scc1 L_end
s_load_dwordx16 s[4:19], s[0:1], 0
s_load_dwordx4 s[20:23], s[0:1], 64
v_lshrrev_b32 v4, 6, v0
v_and_b32 {v(V_LANE)}, 63, v0
s_lshr_b32 {s(S_T0)}, s2, 3
v_readfirstlane_b32 {s(S_MX)}, v4
""")
E(f"""
s_and_b32 {s(S_T1)}, s2, {(8 >> hb) - 1}
s_and_b32 {s(S_K)}, {s(S_T0)}, {(1 << hb) - 1}
{hg_code}
s_bfe_u32 {s(S_K)}, s2, {hex((hb << 16) | (3 - hb))}
s_lshl_b32 {s(S_RB)}, {s(S_K)}, {5 - hb}
s_lshr_b32 {s(S_ROT)}, {s(S_T0)}, {hb}
s_add_u32 {s(S_RB)}, {s(S_RB)}, {s(S_ROT)}
s_and_b32 {s(S_W4)}, {s(S_MX)}, 3
""")
if OPT["cpf"] == 1:
    E(f"""s_cmp_lt_u32 {s(S_MX)}, 4
s_cbranch_scc0 L_hrole""")
    E(code_pf)
    E("s_branch L_crole\nL_hrole:")
elif OPT["cpf"] >= 4:
    E(f"""s_cmp_lt_u32 {s(S_MX)}, 4
s_cbranch_scc0 L_hrole
s_getpc_b64 {s(S_T2,2)}
L_pc:
s_lshl2_add_u32 {s(S_T1)}, {s(S_T0)}, {s(S_W4)}
s_lshl_b32 {s(S_T1)}, {s(S_T1)}, 8
s_sub_u32 {s(S_T2)}, {s(S_T2)}, L_pc-{NAME}_kernel
s_subb_u32 {s(S_T3)}, {s(S_T3)}, 0
s_load_dword s70, {s(S_T2,2)}, {s(S_T1)}
s_add_u32 {s(S_T1)}, {s(S_T1)}, 128
s_load_dword s71, {s(S_T2,2)}, {s(S_T1)}""")
    if OPT["cpf"] == 5:
        E("s_waitcnt lgkmcnt(0)")
        for i, ptr in enumerate((6, 12, 4, 16, 20, 8, 14, 18, 22)):
            E(f"s_load_dword s{72+i}, {s(ptr,2)}, 0")
        for i in range(1, 5):
            E(f"s_mov_b32 {s(S_T1)}, {i << 21}\ns_load_dword s{80+i}, s[22:23], {s(S_T1)}")
    E("s_branch L_crole\nL_hrole:")
else:
    E(f"s_cmp_lt_u32 {s(S_MX)}, 4\ns_cbranch_scc1 L_crole")
late_ids = lines(f"""
s_lshr_b32 {s(S_T0)}, s2, 3
s_and_b32 {s(S_RB3)}, s2, 7
s_lshl_b32 {s(S_RB3)}, {s(S_RB3)}, 2
s_lshr_b32 {s(S_T1)}, {s(S_T0)}, 3
s_add_u32 {s(S_RB3)}, {s(S_RB3)}, {s(S_T1)}
s_and_b32 {s(S_CB)}, {s(S_T0)}, 7
s_lshl_b32 {s(S_HEAD)}, {s(S_HG)}, 2
s_add_u32 {s(S_HEAD)}, {s(S_HEAD)}, {s(S_W4)}
s_mov_b32 {s(S_LO16)}, 0xffff
s_mov_b32 {s(S_LO16+1)}, 0xffff
v_lshlrev_b32 {v(V_L16)}, 4, {v(V_LANE)}
""")
rot_code = {
 0: f"s_and_b32 {s(S_ROT)}, {s(S_ROT)}, {OPT['rotmask']}",
 1: f"s_and_b32 {s(S_ROT)}, s2, 7",
 4: f"s_add_u32 {s(S_ROT)}, {s(S_ROT)}, {s(S_HG)}\ns_and_b32 {s(S_ROT)}, {s(S_ROT)}, 7",
 5: f"s_add_u32 {s(S_ROT)}, {s(S_ROT)}, {s(S_HG)}\ns_and_b32 {s(S_ROT)}, {s(S_ROT)}, 3\ns_lshl_b32 {s(S_ROT)}, {s(S_ROT)}, 1",
 6: f"s_add_u32 {s(S_ROT)}, {s(S_ROT)}, {s(S_HG)}\ns_and_b32 {s(S_ROT)}, {s(S_ROT)}, 1\ns_lshl_b32 {s(S_ROT)}, {s(S_ROT)}, 2",
}[OPT["rotmode"]]

def stage_of(n): return n if n < 16 else 16 + ((n - 16) >> 1)
def first_of_stage(n): return n < 32 and (n == 0 or stage_of(n) != stage_of(n - 1))
def mfma16(d, a, b, c): return f"v_mfma_f32_16x16x32_bf16 {d}, {a}, {b}, {c}"

H = Role("H"); P = H.P
VX, VW1, VW2 = 160, 162, 166
V_AXW, V_AG, V_GPW, GACC, XW, GF = 170, 171, 172, 174, 176, 184
i3, i4, p7, t0, t1, t2 = 32, 33, 34, 35, 36, 37
def raw(i):
    if OPT["fine"] == 3: P(f"s_memtime s[{68+2*i}:{69+2*i}]")
raw(0)
P(rot_code)
P(f"""
v_lshrrev_b32 {v(i3)}, 3, {v(V_LANE)}
v_lshrrev_b32 {v(i4)}, 4, {v(V_LANE)}
v_and_b32 {v(p7)}, 7, {v(V_LANE)}
s_lshl_b32 {s(S_T0)}, {s(S_W4)}, 4
v_add_u32 {v(t0)}, {s(S_T0)}, {v(i3)}
v_lshlrev_b32 {v(t0)}, 10, {v(t0)}
v_xor_b32 {v(t1)}, {v(p7)}, {v(i4)}
v_lshl_add_u32 {v(VX)}, {v(t1)}, 4, {v(t0)}
v_xor_b32 {v(VX+1)}, 64, {v(VX)}
v_add_u32 {v(VX+1)}, {0x2000 - 1024}, {v(VX+1)}
s_lshr_b32 {s(S_T0)}, {s(S_W4)}, 1
s_and_b32 {s(S_T1)}, {s(S_W4)}, 1
s_lshl_b32 {s(S_K)}, {s(S_T0)}, 4
v_add_u32 {v(t0)}, {s(S_K)}, {v(i4)}
v_mul_u32_u24 {v(t0)}, 0xc00, {v(t0)}
v_lshlrev_b32 {v(t1)}, 1, {v(i4)}
v_xor_b32 {v(t1)}, {v(t1)}, {v(p7)}
v_lshl_add_u32 {v(t0)}, {v(t1)}, 4, {v(t0)}
v_and_b32 {v(t1)}, 1, {v(i3)}
v_xor_b32 {v(t1)}, {s(S_T1)}, {v(t1)}
v_lshlrev_b32 {v(t1)}, 10, {v(t1)}
s_lshl_b32 {s(S_T2)}, {s(S_HG)}, 7
s_add_u32 {s(S_K)}, {s(S_T2)}, 1024
v_add3_u32 {v(VW1)}, {v(t0)}, {v(t1)}, {s(S_K)}
v_add_u32 {v(VW1+1)}, {12288 - 1024}, {v(VW1)}
v_xor_b32 {v(t1)}, 0x400, {v(t1)}
v_add3_u32 {v(VW1+2)}, {v(t0)}, {v(t1)}, {s(S_K)}
v_add_u32 {v(VW1+3)}, {3*(12288 - 1024)}, {v(VW1+2)}
v_add_u32 {v(VW1+2)}, {2*(12288 - 1024)}, {v(VW1+2)}
s_lshl_b32 {s(S_MW)}, {s(S_T1)}, 13
s_lshl_b32 {s(S_K)}, {s(S_T0)}, 12
s_add_u32 {s(S_MW)}, {s(S_MW)}, {s(S_K)}
s_lshl_b32 {s(S_MX)}, {s(S_W4)}, 11
s_add_u32 {s(S_MX)}, {s(S_MX)}, {L_X}""")
raw(1)
P("s_waitcnt lgkmcnt(0)")
if OPT["wsoff"]: P(f"s_add_u32 s22, s22, {OPT['wsoff'] << 20}\ns_addc_u32 s23, s23, 0")
raw(2)
if OPT["tlb0"]: P.add(Raw("    s_load_dword s86, s[6:7], 0\n    s_load_dword s87, s[12:13], 0" + ("\n    s_load_dword s88, s[16:17], 0" if OPT["tlb0"] > 1 else "")))
P.add(entry_stamp())
P.add(srd(S_X, 4, 2097152))
P(f"""s_cmp_eq_u32 {s(S_T1)}, 0
s_cselect_b32 {s(S_W)}, s6, s12
s_cselect_b32 {s(S_W+1)}, s7, s13
s_mov_b32 {s(S_W+2)}, 1572864
s_mov_b32 {s(S_W+3)}, 0x20000""")
if OPT["fine"] != 3: H.stamp()
def dma(voff, rsrc, soff, imm, tag, flags=""):
    flags = flags or ("", " sc1", " nt", " sc0", " sc0 sc1")[OPT["dfl"]]
    return Ins(f"buffer_load_dwordx4 {v(voff)}, {s(rsrc,4)}, {soff} offen{' offset:%d' % imm if imm else ''}{flags} lds", tag)
def x_dma(j):
    return [f"s_add_u32 {s(S_K)}, {s(S_ROT)}, {j}", f"s_and_b32 {s(S_K)}, {s(S_K)}, 7", f"s_lshl_b32 {s(S_K)}, {s(S_K)}, 7",
            f"s_lshl_b32 {s(S_T2)}, {s(S_RB)}, 16", f"s_add_u32 m0, {s(S_MX)}, {j*8192}", f"s_add_u32 {s(S_K)}, {s(S_K)}, {s(S_T2)}",
            dma(VX, S_X, s(S_K), 0, f"x{j}"), dma(VX+1, S_X, s(S_K), 1024, f"x{j}")]
def w_dma(S):
    if S < 16:
        o = [f"s_lshl_b32 {s(S_T3)}, {s(S_ROT)}, 1", f"s_add_u32 {s(S_T3)}, {s(S_T3)}, {S}", f"s_and_b32 {s(S_T3)}, {s(S_T3)}, 15"]
    else:
        o = [f"s_add_u32 {s(S_T3)}, {s(S_ROT)}, {S-16}", f"s_and_b32 {s(S_T3)}, {s(S_T3)}, 7"]
    o += [f"s_add_u32 m0, {s(S_MW)}, {(S % NSLOT)*SLOT}", f"s_mul_i32 {s(S_T3)}, {s(S_T3)}, {(32 if S < 16 else 64)*3072}"]
    return o + [dma((VW1 if S < 16 else VW2) + t, S_W, s(S_T3), t*1024, f"w{S}") for t in range(4)]
if OPT["worder0"]:
    w0, x0 = w_dma(0), x_dma(0)
    P.add(w0[:6]); P.add(x0[:7]); P(f"s_add_u32 m0, {s(S_MW)}, 0"); P.add(w0[6:]); P(f"s_add_u32 m0, {s(S_MX)}, 0"); P.add(x0[7:])
else:
    P.add(x_dma(0)); P.add(w_dma(0))
P.add(w_dma(1)); raw(5)
P(f"""s_lshl_b32 {s(S_K)}, {s(S_ROT)}, 3
v_add_u32 {v(t2)}, {s(S_K)}, {v(V_LANE)}
v_and_b32 {v(t2)}, 63, {v(t2)}
v_lshlrev_b32 {v(t2)}, 4, {v(t2)}""")
P.add(srd(S_G, 16, 1024)); P(f"s_mov_b32 m0, {L_G}"); P.add(dma(t2, S_G, "0", 0, "w1"))
P.add(late_ids)
h_misc = lines(f"""
s_lshr_b32 {s(S_T0)}, {s(S_W4)}, 1
s_and_b32 {s(S_T1)}, {s(S_W4)}, 1
s_lshl_b32 {s(S_T0)}, {s(S_T0)}, 5
v_add_u32 {v(t0)}, {s(S_T0)}, {v(i3)}
v_mul_u32_u24 {v(t0)}, 0xc00, {v(t0)}
v_and_b32 {v(t1)}, 1, {v(i4)}
v_lshlrev_b32 {v(t1)}, 1, {v(t1)}
v_xor_b32 {v(t1)}, {v(t1)}, {v(p7)}
v_lshlrev_b32 {v(t1)}, 4, {v(t1)}
s_lshl_b32 {s(S_T0)}, {s(S_HG)}, 7
v_add3_u32 {v(VW2)}, {v(t0)}, {v(t1)}, {s(S_T0)}
v_xor_b32 {v(t1)}, 64, {v(t1)}
v_add3_u32 {v(VW2+1)}, {v(t0)}, {v(t1)}, {s(S_T0)}
v_add_u32 {v(VW2+2)}, {2*(24576 - 1024)}, {v(VW2)}
v_add_u32 {v(VW2+3)}, {3*(24576 - 1024)}, {v(VW2+1)}
v_add_u32 {v(VW2+1)}, {24576 - 1024}, {v(VW2+1)}
""") + srd(S_WS, 22, WS_SIZE) + srd(S_DBG, 20, 256)
P.add(h_misc)
if OPT["fine"] == 3:
    raw(6); P("s_waitcnt vmcnt(9)"); raw(7); P("s_waitcnt vmcnt(5)"); raw(8); P("s_waitcnt lgkmcnt(0)")
    for i in range(9):
        P(f"v_writelane_b32 {v(V_STAMP)}, s{68+2*i}, {i+1}")
    H.ns = 9
VWO, VKF, V1A, V1D, V_MB, V_HB = 160, 161, 162, 164, 12, 13
txt_of = lambda x: x.text if isinstance(x, Ins) else x
special_txt = []
def gather(tiles, special):
    o = []
    if 0 in tiles:
        o += [f"s_lshl_b32 {s(S_K)}, {s(S_HEAD)}, 17", f"s_lshl_b32 {s(S_T1)}, {s(S_RB)}, 12",
              f"s_add_u32 {s(S_T2)}, {s(S_K)}, {s(S_T1)}", f"s_sub_u32 {s(S_T2)}, {s(S_T2)}, {8*2048}"]
    for u in tiles:
        tag = "kv" if u < 4 or not OPT["t2"] else "kvb"
        o += [f"s_add_u32 {s(S_T0)}, {s(S_T2)}, {u*2048}", f"s_add_u32 m0, {s(S_MW)}, {u*KVS}"]
        if special:
            o += [f"s_cmp_ge_u32 {s(S_RB)}, {(8-u+1)//2}", f"s_cbranch_scc1 L_gk{u}",
                  dma(VKF, S_WS, s(S_K), 0, None, " sc1"), f"s_mov_b32 {s(S_T0)}, {WS_SIZE}", f"s_branch L_gk{u}e", f"L_gk{u}:",
                  dma(V_L16, S_WS, s(S_T0), 0, None, " sc1"), f"L_gk{u}e:"]
        else:
            o += [dma(V_L16, S_WS, s(S_T0), 0, tag, " sc1")]
        o += [dma(V_L16, S_WS, s(S_T0), 1024, tag, " sc1")]
    return o
def emit_gather(n, tiles):
    P(f"s_cmp_lt_u32 {s(S_RB)}, 4\ns_cbranch_scc1 L_gspecial{n}")
    P.add(gather(tiles, False)); P(f"L_gdone{n}:")
    special_txt.append(f"L_gspecial{n}:\n" + "\n".join(("" if txt_of(x).endswith(":") else "    ") + txt_of(x) for x in gather(tiles, True))
                       + f"\n    s_branch L_gdone{n}\n")
S_R3, S_WB, S_MA, S_MB = 24, 25, 30, 31
B0, B1, A0, A1, A2, A3, VOG, EXW, EXR, VOUT = 16, 17, 24, 25, 26, 27, 18, 20, 23, 19
ACC3, OFB, OFA, WBF = 32, 96, 192, 176
def code_warm():
    t = (f"    s_getpc_b64 s[78:79]\nL_pc:\n    s_sub_u32 s78, s78, L_pc-{NAME}_kernel\n    s_subb_u32 s79, s79, 0\n    s_lshr_b32 {s(S_T1)}, s2, 3\n"
         f"    s_lshl2_add_u32 {s(S_T1)}, {s(S_T1)}, {s(S_W4)}\n    s_lshl_b32 {s(S_T1)}, {s(S_T1)}, 8\n")
    t += "".join(f"    s_load_dword s{80+i}, s[78:79], {s(S_T1)} offset:{i*64}\n" for i in range(4))
    P.add(Raw(t))
if OPT["icpf"] and OPT["icat"] < 0: code_warm()
issued_w, issued_x = 2, 1

for S in range(25):
    if S < 24:
        P.add(WaitTag(f"w{S}", f"x{S >> 1}" if S < 16 else "none"))
    if S < 20: P.add(WaitLds())
    P("s_barrier")
    if OPT["fine"] in (1, 2, 3) or S in (0, 16, 24): H.stamp()
    mark = len(P.items)
    top = {0: 3}.get(S, S + 4)
    if S in (14, 15, 16) and OPT["hold"]: top = min(top, 20 - OPT["hold"])
    while issued_w <= min(top, 23):
        if issued_w < 16 and issued_w % 2 == 0 and issued_x <= issued_w // 2:
            P.add(x_dma(issued_x)); issued_x += 1
        P.add(w_dma(issued_w)); issued_w += 1
    if OPT["icpf"] and S == OPT["icat"]: code_warm()
    if OPT["tlb"] and S in (3, 4, 5, 6):
        for i, (ptr, off) in enumerate({3: ((22, 0), (22, 1)), 4: ((22, 2), (22, 4)), 5: ((22, 3), (20, 0)), 6: ((18, 0),)}[S]):
            P.add(Raw(f"    s_mov_b32 {s(S_T1)}, {off << 21}\n    s_load_dword s{70+i}, {s(ptr,2)}, {s(S_T1)}"))
    if OPT["wopf"] and S in (8, 9, 10, 11):
        ptr, half = (14, 8)[(S - 8) >> 1], S & 1
        t = f"    s_lshl2_add_u32 {s(S_T1)}, s2, {s(S_W4)}\n    s_lshl_b32 {s(S_T1)}, {s(S_T1)}, 9\n"
        t += "".join(f"    s_load_dword s{73+i}, {s(ptr,2)}, {s(S_T1)} offset:{half*256+i*64}\n" for i in range(4))
        P.add(Raw(t))
    if S == 8: P(ep_load)
    if S == 14:
        P(f"""v_lshrrev_b32 v48, 5, {v(V_LANE)}
v_bfe_u32 v49, {v(V_LANE)}, 2, 2
v_lshl_add_u32 v48, v48, 2, v49
v_and_b32 v49, 2, v49
v_bfe_u32 v50, {v(V_LANE)}, 4, 1
v_xor_b32 v49, v49, v50
s_and_b32 {s(S_T1)}, {s(S_W4)}, 2
v_xor_b32 v49, {s(S_T1)}, v49
v_lshlrev_b32 v49, 5, v49
v_lshl_add_u32 v48, v48, 7, v49
v_and_b32 v49, 3, {v(V_LANE)}
v_lshl_add_u32 v48, v49, 3, v48
s_lshl_b32 {s(S_MX)}, {s(S_W4)}, 14
s_lshl_b32 {s(S_T0)}, {s(S_T1)}, 14
v_add_u32 {v(B0)}, {s(S_T0)}, v48
v_xor_b32 {v(B1)}, 64, {v(B0)}
v_xor_b32 v49, 64, v48
s_mul_i32 {s(S_T0)}, {s(S_T1)}, 6144
s_add_u32 {s(S_T0)}, {s(S_T0)}, {L_WA}
v_add_u32 {v(A0)}, {s(S_T0)}, v48
v_add_u32 {v(A1)}, {s(S_T0)}, v49
s_mul_i32 {s(S_T0)}, {s(S_T1)}, 10240
s_add_u32 {s(S_T0)}, {s(S_T0)}, {L_KV}
v_add_u32 {v(A2)}, {s(S_T0)}, v48
v_add_u32 {v(A3)}, {s(S_T0)}, v49
""")
    if S == 15:
        P(f"""s_lshl_b32 {s(S_T0)}, {s(S_W4)}, 12
v_add_u32 {v(EXR)}, {s(S_T0)}, {v(V_L16)}
v_xor_b32 {v(EXW)}, 0x2000, {v(EXR)}
v_and_b32 {v(VOUT)}, 31, {v(V_LANE)}
v_lshlrev_b32 {v(VOUT)}, 10, {v(VOUT)}
v_lshrrev_b32 v48, 5, {v(V_LANE)}
v_lshl_add_u32 {v(VOUT)}, v48, 4, {v(VOUT)}
s_and_b32 {s(S_T2)}, {s(S_W4)}, 1
s_lshl_b32 {s(S_T2)}, {s(S_T2)}, 15
s_lshl_b32 {s(S_T0)}, {s(S_RB3)}, 16
s_add_u32 {s(S_T0)}, {s(S_T0)}, {s(S_T2)}
s_lshl_b32 {s(S_T1)}, {s(S_CB)}, 7
s_add_u32 {s(S_T0)}, {s(S_T0)}, {s(S_T1)}
s_and_b32 {s(S_T1)}, {s(S_W4)}, 2
s_lshl_b32 {s(S_T1)}, {s(S_T1)}, 5
s_add_u32 {s(S_T0)}, {s(S_T0)}, {s(S_T1)}
v_add_u32 {v(VOUT)}, {s(S_T0)}, {v(VOUT)}
s_lshl_b32 {s(S_T0)}, {s(S_RB3)}, 17
s_add_u32 {s(S_T0)}, {s(S_T0)}, {s(S_T2)}
s_lshl_b32 {s(S_T1)}, {s(S_T1)}, 8
s_add_u32 {s(S_T0)}, {s(S_T0)}, {s(S_T1)}
s_add_u32 {s(S_T0)}, {s(S_T0)}, {WS_O}
v_add_u32 {v(VOG)}, {s(S_T0)}, {v(V_L16)}
s_lshl_b32 {s(S_WB)}, {s(S_W4)}, 17
s_lshl_b32 {s(S_T1)}, {s(S_CB)}, 7
s_add_u32 {s(S_WB)}, {s(S_WB)}, {s(S_T1)}
s_lshl3_add_u32 {s(S_R3)}, {s(S_RB3)}, {s(S_CB)}
s_and_b32 {s(S_T1)}, {s(S_W4)}, 2
s_lshl2_add_u32 {s(S_R3)}, {s(S_R3)}, {s(S_T1)}
s_lshl_b32 {s(S_R3)}, {s(S_R3)}, 6""")
    if S == OPT["kvs"]:
        tail = P.items[mark:]; del P.items[mark:]
        P.add(flag_store("none", "kv")); P.items += tail
    if S == 16:
        P("s_waitcnt lgkmcnt(0)")
        H.poll(f"v_cmp_ne_u64 vcc, 0, {v(EP,2)}", ep_load)
        P(f"v_readfirstlane_b32 {s(S_EP)}, {v(EP)}\nv_readfirstlane_b32 {s(S_EP+1)}, {v(EP+1)}")
    if S == 19:
        P.add(srd(S_WOA, 8, 524288) + srd(S_WOB, 14, 524288) + srd(S_OUT, 18, 2097152))
    if S == 20:
        P(f"""v_lshrrev_b32 v48, 3, {v(V_LANE)}
v_bfe_u32 v49, {v(V_LANE)}, 4, 1
v_lshlrev_b32 v49, 2, v49
v_and_b32 v50, 7, {v(V_LANE)}
v_xor_b32 v49, v49, v50
v_lshlrev_b32 v49, 4, v49
v_lshl_add_u32 {v(VWO)}, v48, 10, v49
v_and_b32 {v(VKF)}, 32, {v(V_LANE)}
v_lshlrev_b32 {v(VKF)}, 4, {v(VKF)}
v_mul_u32_u24 {v(V1A)}, {KVS}, v50
v_bfe_u32 v51, {v(V_LANE)}, 3, 1
v_lshl_add_u32 {v(V1A)}, v51, 4, {v(V1A)}
s_mul_i32 {s(S_MW)}, {s(S_W4)}, {KVH}
s_add_u32 {s(S_MW)}, {s(S_MW)}, {L_KV}
s_add_u32 {s(S_T0)}, {s(S_MW)}, 2048
v_add_u32 {v(V1A)}, {s(S_T0)}, {v(V1A)}
s_lshl_b32 {s(S_T0)}, {s(S_RB)}, 1
v_add_u32 v48, {s(S_T0)}, v50
v_cmp_le_u32 vcc, 8, v48
v_mov_b32 v49, {hex(ONES)}
v_cndmask_b32 {v(V1D)}, 0, v49, vcc
v_subrev_u32 v51, 1, v51
v_and_b32 {v(V1D)}, v51, {v(V1D)}
v_mov_b32 {v(V1D+1)}, {v(V1D)}
v_mov_b32 {v(V1D+2)}, {v(V1D)}
v_mov_b32 {v(V1D+3)}, {v(V1D)}
s_mul_i32 {s(S_MA)}, {s(S_W4)}, 6144
s_add_u32 {s(S_MA)}, {s(S_MA)}, {L_WA}
s_mul_i32 {s(S_MB)}, {s(S_W4)}, 10240
s_add_u32 {s(S_MB)}, {s(S_MB)}, {L_KV - 6144}
s_lshl_b32 {s(S_K)}, {s(S_HEAD)}, 5
s_add_u32 {s(S_K)}, {s(S_K)}, {s(S_RB)}
s_lshl_b32 {s(S_K)}, {s(S_K)}, 6
s_add_u32 {s(S_K)}, {s(S_K)}, {WS_FKV}""")
    if S == OPT["gat"] - 1 - OPT["pasy"]:
        H.spoll_issue(4, S_K)
    if S == OPT["gat"] - 1:
        H.spoll(4, S_K, ignore_from=S_RB)
        H.stamp()
    if S == OPT["sents"]:
        P.add([f"v_mov_b32 {v(172+i)}, -1" for i in range(4)])
        P.add(o_store(0, 1, 172, "sent")); P.add(o_store(0, 0, 172, "sent"))
    if S == 23:
        P(f"ds_write_b128 {v(V1A)}, {v(V1D,4)}")
    if S == 24: P.add(Pace(OPT["pace0"]))
    if S == OPT["gat"] + OPT["gdel"]:
        emit_gather(0, tuple(range(OPT['g0'])))
if OPT["p1only"]:
    H.finish()
fs = lambda: H.stamp() if OPT["fine"] == 4 else None
P(f"s_setprio {OPT['hprio']}")
emit_gather(1, tuple(range(OPT['g0'], 8)))
def wo_dma(br):
    o = []
    for t in range(16):
        base = S_MX if br else (S_MA if t < 6 else S_MB)
        g = [f"s_add_u32 m0, {s(base)}, {t*1024}", f"s_add_u32 {s(S_T3)}, {s(S_WB)}, {t*8192}"]
        o.append(g + [dma(VWO, S_WOB if br else S_WOA, s(S_T3), 0, "wob" if br else ("woa" if t < 6 else "woc"))])
    return o
woa, wob = wo_dma(0), wo_dma(1)
P.add(wob[:OPT["wb0"]])
P.add(WaitTag("kv")); P.add(WaitLds()); P("s_barrier")
H.stamp()
if OPT["t2"]: P.add(WaitTag("kvb")); P("s_barrier")
if OPT["sents"] == 25:
    P.add([f"v_mov_b32 {v(172+i)}, -1" for i in range(4)])
    P.add(o_store(0, 1, 172, "sent")); P.add(o_store(0, 0, 172, "sent"))
P.add(Pace(OPT["pace"]))
rest = wob[OPT["wb0"]:] + woa[:6]
if OPT["zbar"]:
    P.add(rest[:OPT["wz"]]); rest = rest[OPT["wz"]:]
    P("s_barrier"); fs(); P.add(flag_store("sent", "ob"))
P.add(rest)
fs()
def o_gather(br):
    o = []
    for hs in range(16):
        if hs % 4 == 0: o += [f"s_mov_b32 {s(S_T1)}, {br*65536 + hs*1024}"]
        o += [ws_ld(v((OFA, OFB)[br]+4*hs,4), VOG, s(S_T1), (hs & 3)*1024)]
    return o
def wo_read(dst, hs, br):
    h, j = hs >> 3, hs & 7
    base, off = ((B0, B1), hs*2048) if br else (((A0, A1), h*6144 + j*2048) if j < 3 else ((A2, A3), h*10240 + (j-3)*2048))
    return [f"ds_read_b64_tr_b16 {v(dst+4*ct+2*q,2)}, {v(base[ct])} offset:{off+q*1024}" for ct in range(2) for q in range(2)]
FIN = ACC3 + 32
def p3(Q, br, hook=lambda hs: None):
    Q.add(wo_read(WBF, 0, br))
    for hs in range(16):
        b = hs & 1
        rd = wo_read(WBF + 8*(1-b), hs + 1, br) if hs < 15 else []
        for ct in ((0, 1) if hs < 15 else (1, 0)):
            acc = v((FIN, ACC3)[br]+16*ct, 16)
            c = acc if hs else ("0" if br else v(ACC3+16*ct, 16))
            Q(mfma(acc, v(WBF+8*b+4*ct,4), v((OFA, OFB)[br]+4*hs,4), c))
            Q.add(rd[2*ct:2*ct+2])
        hook(hs)
def sentinel_scan(hs):
    base = OFA + 4*hs
    first = [f"v_max3_u32 {v(TMP)}, {v(base)}, {v(base+1)}, {v(base+1)}"] if hs == 0 else [f"v_max3_u32 {v(TMP)}, {v(TMP)}, {v(base)}, {v(base+1)}"]
    return first + [f"v_max3_u32 {v(TMP)}, {v(TMP)}, {v(base+2)}, {v(base+3)}"]
P(f"s_add_u32 {s(S_K)}, {s(S_R3)}, {WS_FOB}")
P.add(WaitTag("wob")); P("s_barrier"); fs()
if not OPT["zbar"]: P.add(flag_store("sent", "ob"))
P.add(woa[6:11]); H.spoll_issue(16, S_K); P.add(woa[11:]); fs()
H.spoll(16, S_K); H.stamp()
P.add(o_gather(1)); fs()
P(f"s_setprio {OPT['p3prio']}")
p3(P, 1)
H.stamp()
P.add(WaitTag("woa", "woc")); P("s_barrier"); fs()
P.add(o_gather(0))
test = [f"v_cmp_ne_u32 vcc, -1, {v(TMP)}", "s_cmp_eq_u64 vcc, -1"]
p3(P, 0, lambda hs: P.add(sentinel_scan(hs)))
P.add(test); P("s_cbranch_scc0 L_retry\nL_ok:")
Q = Prog()
Q(f"L_retry:\ns_mov_b32 {s(S_SPIN)}, 0x20000\ns_nop 15\nL_again:"); Q.add(o_gather(0))
Q(f"s_sub_u32 {s(S_SPIN)}, {s(S_SPIN)}, 1\ns_waitcnt vmcnt(0)\ns_cbranch_scc1 L_redo")
for hs in range(16): Q.add(sentinel_scan(hs))
Q.add(test); Q("s_cbranch_scc0 L_again\nL_redo:")
p3(Q, 0); Q("s_nop 15\ns_branch L_ok")
retry_txt = [finalize(Q)]
H.stamp()
P.add([f"ds_write_b128 {v(EXW)}, {v(FIN+16+4*q,4)} offset:{q*1024}" for q in range(4)])
P.add(WaitLds()); P("s_barrier")
P.add([f"ds_read_b128 {v(OFB+4*q,4)}, {v(EXR)} offset:{q*1024}" for q in range(4)])
for hf in range(2):
    P.add([f"v_pk_add_f32 {v(FIN+8*hf+2*i,2)}, {v(FIN+8*hf+2*i,2)}, {v(OFB+8*hf+2*i,2)}" for i in range(4)])
    P.add([f"v_cvt_pk_bf16_f32 {v(WBF+4*hf+i)}, {v(FIN+8*hf+2*i)}, {v(FIN+8*hf+2*i+1)}" for i in (0, 2, 1, 3)])
    P(f"v_permlane32_swap_b32 {v(WBF+4*hf)}, {v(WBF+4*hf+2)}\nv_permlane32_swap_b32 {v(WBF+4*hf+1)}, {v(WBF+4*hf+3)}")
    P(f"buffer_store_dwordx4 {v(WBF+4*hf,4)}, {v(VOUT)}, {s(S_OUT,4)}, 0 offen{' offset:32' if hf else ''}{('', ' sc1', ' nt', ' sc0 sc1')[OPT['outsc']]}")
H.stamp()
H.finish()

C = Role("C"); P = C.P
T1, T3, T2 = 32, 64, 96
XB, WB = 128, 160
V_AX, V_P0L, V_P0H, V_P1L, V_P1H, V_T2L, V_T2H = 192, 194, 195, 196, 197, 198, 199
V_LO, V_HI, V_CMR = 200, 201, 202
VPK = 224
r5, hh, rr, cc, nh, u0, u1, cm, g4 = 128, 129, 130, 131, 132, 133, 134, 135, 140
P("L_crole:")
P.add(late_ids)
if OPT["prio"]: P("s_setprio 1")
P(f"""
v_and_b32 {v(r5)}, 31, {v(V_LANE)}
v_lshrrev_b32 {v(hh)}, 5, {v(V_LANE)}
v_lshrrev_b32 {v(g4)}, 4, {v(V_LANE)}
v_and_b32 {v(u1)}, 15, {v(V_LANE)}
v_lshrrev_b32 {v(u0)}, 1, {v(u1)}
v_xor_b32 {v(u0)}, {v(u0)}, {v(g4)}
v_lshlrev_b32 {v(u0)}, 4, {v(u0)}
v_lshl_add_u32 {v(u0)}, {v(u1)}, 7, {v(u0)}
v_add_u32 {v(V_AX)}, {L_X}, {v(u0)}
v_xor_b32 {v(V_AX+1)}, 64, {v(V_AX)}
v_bfe_u32 {v(rr)}, {v(V_LANE)}, 2, 2
v_and_b32 {v(cc)}, 3, {v(V_LANE)}
v_and_b32 {v(nh)}, 1, {v(g4)}
v_lshl_add_u32 {v(u0)}, {v(g4)}, 3, {v(rr)}
v_xor_b32 {v(u1)}, {s(S_W4)}, {v(rr)}
v_lshlrev_b32 {v(u1)}, 5, {v(u1)}
v_lshl_add_u32 {v(u1)}, {v(cc)}, 3, {v(u1)}
v_lshl_add_u32 {v(u1)}, {v(u0)}, 8, {v(u1)}
v_lshl_add_u32 {v(V_P0L)}, {v(nh)}, 7, {v(u1)}
v_add_u32 {v(V_P0H)}, 0x10000, {v(V_P0L)}
v_xor_b32 {v(V_P1L)}, 0x80, {v(V_P0L)}
v_xor_b32 {v(V_P1H)}, 0x80, {v(V_P0H)}
v_lshrrev_b32 {v(u1)}, 1, {v(rr)}
v_lshl_add_u32 {v(u1)}, {v(nh)}, 1, {v(u1)}
v_xor_b32 {v(u1)}, {s(S_W4)}, {v(u1)}
v_lshlrev_b32 {v(u1)}, 5, {v(u1)}
v_lshl_add_u32 {v(u1)}, {v(cc)}, 3, {v(u1)}
v_lshl_add_u32 {v(V_T2L)}, {v(u0)}, 7, {v(u1)}
v_add_u32 {v(V_T2H)}, 0x10000, {v(V_T2L)}
v_and_b32 {v(u0)}, 15, {v(V_LANE)}
v_lshlrev_b32 {v(u0)}, 4, {v(u0)}
v_lshl_add_u32 {v(u0)}, {v(hh)}, 8, {v(u0)}
v_lshl_add_u32 {v(V_LO)}, {v(nh)}, 31, {v(u0)}
v_xor_b32 {v(V_HI)}, {OOB}, {v(V_LO)}
v_lshlrev_b32 {v(u0)}, 2, {v(hh)}
v_sub_u32 {v(cm)}, {v(r5)}, {v(u0)}
v_sub_u32 {v(u0)}, 32, {v(cm)}
v_mov_b32 {v(u1)}, {hex(~0x55540001 & 0xffffffff)}
v_alignbit_b32 {v(V_CMR)}, {v(u1)}, {v(u1)}, {v(u0)}
s_waitcnt lgkmcnt(0)""")
if OPT["wsoff"]: P(f"s_add_u32 s22, s22, {OPT['wsoff'] << 20}\ns_addc_u32 s23, s23, 0")
P.add(entry_stamp())
P(f"""s_memrealtime {s(S_TM,2)}
s_mov_b32 {s(S_C)}, {fhex(QK_SCALE)}
s_mov_b32 {s(S_C+1)}, {fhex(QK_SCALE)}
""")
def l2_prefetch():
    a, b = 140, 141
    o = lines(f"""s_lshr_b32 {s(S_T0)}, s2, 3
s_and_b32 {s(S_T1)}, {s(S_HG)}, 4
s_lshl_b32 {s(S_T1)}, {s(S_T1)}, 7
v_and_b32 {v(a)}, 3, {v(V_LANE)}
v_lshlrev_b32 {v(a)}, 7, {v(a)}
s_cmp_eq_u32 {s(S_W4)}, 2
s_cbranch_scc1 L_pfx
s_cmp_eq_u32 {s(S_W4)}, 3
s_cbranch_scc1 L_pfq
s_cmp_eq_u32 {s(S_W4)}, 0
s_cselect_b32 {s(S_W)}, s6, s12
s_cselect_b32 {s(S_W+1)}, s7, s13
s_mov_b32 {s(S_W+2)}, 1572864
s_mov_b32 {s(S_W+3)}, 0x20000
v_bfe_u32 {v(b)}, {v(V_LANE)}, 2, 1
v_lshl_add_u32 {v(a)}, {v(b)}, 10, {v(a)}
v_lshrrev_b32 {v(b)}, 3, {v(V_LANE)}
v_mul_u32_u24 {v(b)}, 0xc00, {v(b)}
v_add_u32 {v(a)}, {v(a)}, {v(b)}
s_mul_i32 {s(S_T0)}, {s(S_T0)}, {8*3072}
s_add_u32 {s(S_T0)}, {s(S_T0)}, {s(S_T1)}
s_add_u32 {s(S_T0)}, {s(S_T0)}, 1024
buffer_load_dword v190, {v(a)}, {s(S_W,4)}, {s(S_T0)} offen
s_add_u32 {s(S_T0)}, {s(S_T0)}, {256*3072}
buffer_load_dword v191, {v(a)}, {s(S_W,4)}, {s(S_T0)} offen
s_branch L_pfe
L_pfx:
s_mov_b32 {s(S_W)}, s4
s_mov_b32 {s(S_W+1)}, s5
s_mov_b32 {s(S_W+2)}, 2097152
s_mov_b32 {s(S_W+3)}, 0x20000
v_lshrrev_b32 {v(b)}, 2, {v(V_LANE)}
v_lshl_add_u32 {v(a)}, {v(b)}, 10, {v(a)}
s_lshl_b32 {s(S_T0)}, {s(S_T0)}, 14
s_and_b32 {s(S_T1)}, {s(S_RB)}, 24
s_lshl_b32 {s(S_T1)}, {s(S_T1)}, 16
s_add_u32 {s(S_T0)}, {s(S_T0)}, {s(S_T1)}
buffer_load_dword v190, {v(a)}, {s(S_W,4)}, {s(S_T0)} offen
buffer_load_dword v191, {v(a)}, {s(S_W,4)}, {s(S_T0)} offen offset:512
s_branch L_pfe
L_pfq:
s_mov_b32 {s(S_W)}, s6
s_mov_b32 {s(S_W+1)}, s7
s_mov_b32 {s(S_W+2)}, 1572864
s_mov_b32 {s(S_W+3)}, 0x20000
v_lshrrev_b32 {v(b)}, 2, {v(V_LANE)}
v_mul_u32_u24 {v(b)}, 0xc00, {v(b)}
v_add_u32 {v(a)}, {v(a)}, {v(b)}
s_mul_i32 {s(S_T0)}, {s(S_T0)}, {16*3072}
s_add_u32 {s(S_T0)}, {s(S_T0)}, {s(S_T1)}
buffer_load_dword v190, {v(a)}, {s(S_W,4)}, {s(S_T0)} offen
s_mov_b32 {s(S_W)}, s12
s_mov_b32 {s(S_W+1)}, s13
buffer_load_dword v191, {v(a)}, {s(S_W,4)}, {s(S_T0)} offen
L_pfe:""")
    P.add(Raw("\n".join(("" if l.endswith(":") else "    ") + l for l in o)))
    P("s_nop 0")
if OPT["pf"] == 1: l2_prefetch()
P.add(srd(S_WS, 22, WS_SIZE) + srd(S_DBG, 20, 256))
P(f"""s_cmp_eq_u32 s2, 0
s_cselect_b32 {s(S_T2)}, 0, {OOB}
v_lshlrev_b32 v5, 8, v0
v_or_b32 v5, {s(S_T2)}, v5
s_waitcnt lgkmcnt(0)
v_mov_b32 {v(EP)}, {s(S_TM)}
v_mov_b32 {v(EP+1)}, {s(S_TM+1)}
buffer_store_dwordx2 {v(EP,2)}, v5, {s(S_DBG,4)}, 0 offen sc1""")
V_AXW, V_AG, V_GPW, V_GPR, XW, GF, GACC = 4, 8, 9, 13, 240, 248, 204
P(f"""s_lshl_b32 {s(S_T2)}, {s(S_W4)}, 11
v_add_u32 {v(V_AXW)}, {s(S_T2)}, {v(V_AX)}
v_add_u32 {v(V_AXW+1)}, {s(S_T2)}, {v(V_AX+1)}
v_lshlrev_b32 {v(V_AG)}, 4, {v(g4)}
v_add_u32 {v(V_AG)}, {L_G}, {v(V_AG)}
v_lshlrev_b32 {v(V_GPR)}, 2, {v(r5)}
v_add_u32 {v(V_GPR)}, {L_GP}, {v(V_GPR)}
v_and_b32 {v(u0)}, 15, {v(V_LANE)}
s_lshl_b32 {s(S_T2)}, {s(S_W4)}, 6
s_add_u32 {s(S_T2)}, {s(S_T2)}, {L_GP}
v_lshl_add_u32 {v(V_GPW)}, {v(u0)}, 2, {s(S_T2)}""")
def x_warm(js):
    t = (f"    s_lshl2_add_u32 {s(S_T0)}, s2, {s(S_W4)}\n    s_lshr_b32 {s(S_T1)}, {s(S_T0)}, 5\n    s_lshl_b32 {s(S_T0)}, {s(S_T0)}, 11\n")
    for j in js:
        t += f"    s_add_u32 {s(S_K)}, {s(S_T1)}, {j}\n    s_and_b32 {s(S_K)}, {s(S_K)}, 7\n    s_lshl_b32 {s(S_K)}, {s(S_K)}, 7\n    s_add_u32 {s(S_K)}, {s(S_K)}, {s(S_T0)}\n"
        t += "".join(f"    s_load_dword s{28+i}, s[4:5], {s(S_K)} offset:{(i >> 1)*1024 + (i & 1)*64}\n" for i in range(4))
    P.add(Raw(t))
if OPT["xwarm"] == 1: x_warm((1, 2, 3))
P.add(attn_setup(0, 136))
if OPT["xwarm"] == 2: x_warm((1, 2, 3))
if OPT["xwarm"]:
    P("s_waitcnt lgkmcnt(0)"); x_warm((4, 5, 6)); P("s_waitcnt lgkmcnt(0)"); x_warm((7,)); P("s_waitcnt lgkmcnt(0)")
C.stamp()

CM, QB, KB, VB, KBH, VBH, BP, BPL, BPK, SENT, S_R0 = 176, 248, 240, 32, 80, 84, 192, 88, 88, 220, 24
BS2, BSP2, BO2 = (96, 48), (128, 112), (160, 144)
def b_scores(t):
    kprev = v(KB, 4) if t == 1 else v(KBH, 4)
    return [mfma(v(BS2[t],16), v(KB+4*t,4), v(QB+4*t,4), v(CM,16)), mfma(v(BSP2[t],16), kprev, v(QB+4*t,4), v(CM,16))]
def b_softmax(t):
    S, sp, m, p, pl = BS2[t], BSP2[t], TMP + 2*t, BP + 8*t, BPL + 4*t
    o = [f"v_cndmask_b32 {v(S+q)}, {v(S+q)}, {v(sp+q)}, {s(S_LO16,2)}" for q in range(8, 16)]
    if t == 0:
        o += [f"v_mov_b32 {v(m)}, {hex(NEG_BIG)}"]
        o += [f"v_cndmask_b32 {v(S+q)}, {v(S+q)}, {v(m)}, {s(S_R0,2)}" for q in range(8, 16)]
    o += max_tree(m, range(S, S+16)) + cross_max(m, m+1)
    o += [f"v_pk_add_f32 {v(S+2*q,2)}, {v(S+2*q,2)}, {v(m,2)} op_sel_hi:[1,0] neg_lo:[0,1] neg_hi:[0,1]" for q in range(8)]
    o += [f"v_exp_f32 {v(S+q)}, {v(S+q)}" for q in range(16)]
    o += [f"v_cvt_pk_bf16_f32 {v(p+i)}, {v(S+2*i)}, {v(S+2*i+1)}" for i in range(8)]
    o += [f"v_cndmask_b32 {v(pl+i)}, 0, {v(p+4+i)}, {s(S_LO16,2)}" for i in range(4)]
    o += [f"v_cndmask_b32 {v(p+4+i)}, {v(p+4+i)}, 0, {s(S_LO16,2)}" for i in range(4)]
    return o
def b_pv(t):
    vprev, acc, p = v(VB+4, 4) if t == 1 else v(VBH, 4), v(BO2[t], 16), BP + 8*t
    return [mfma(acc, v(VB+8*t,4), v(p,4), "0"), mfma(acc, v(VB+8*t+4,4), v(p+4,4), acc), mfma(acc, vprev, v(BPL+4*t,4), acc)]
def b_pack(t):
    f = 200 + 2*t
    return o_pack(BO2[t], 8, 0, [f"v_sub_f32 {v(f+1)}, 1.0, {v(G0+t)}", f"v_mul_f32 {v(f)}, {v(f)}, {v(f+1)}"], BPK+4*t, f)
def frag_reads(n):
    b, m = n & 1, n & 15
    j, u2 = m >> 1, m & 1
    base = (stage_of(n) % NSLOT) * SLOT
    hi = base >= 65536; off = base - (65536 if hi else 0)
    x = [f"ds_read_b128 {v(XB+16*b+4*tg,4)}, {v(V_AX+u2)} offset:{j*8192+tg*2048}" for tg in range(4)]
    if n < 16:
        w = [f"ds_read_b64_tr_b16 {v(WB+16*b+4*f+2*qd,2)}, {v(((V_P0L,V_P0H),(V_P1L,V_P1H))[pos][hi])} offset:{off+M*8192+qd*1024}"
             for f, (M, pos) in enumerate(((0, 0), (1, 1), (0, 1), (1, 0))) for qd in range(2)]
        return w[0:2] + x[0:2] + w[2:4] + x[2:4] + w[4:8]
    w = [f"ds_read_b64_tr_b16 {v(WB+8*b+4*M+2*qd,2)}, {v((V_T2L,V_T2H)[hi])} offset:{off+M*8192+u2*4096+qd*512}" for M in range(2) for qd in range(2)]
    return w[0:2] + x[0:2] + w[2:4] + x[2:4]
def step_mfmas(n):
    b = n & 1
    x = lambda tg: v(XB+16*b+4*tg, 4)
    c = lambda r: "0" if n in (0, 16) else v(r, 4)
    kq = lambda T, wbase: [mfma16(v(T+16*f+4*tg,4), v(wbase+4*f,4), x(tg), c(T+16*f+4*tg)) for hf in range(2) for f in range(2) for tg in (2*hf, 2*hf+1)]
    if n < 16:
        return kq(T1, WB+16*b) + [mfma16(v(T3+16*f+4*tg,4), x(tg), v(WB+16*b+8+4*f,4), c(T3+16*f+4*tg)) for f in range(2) for tg in range(4)]
    return kq(T2, WB+8*b)
def kq_frag(dst, T, tt, scale):
    a = T + 8*tt
    o = [f"v_pk_mul_f32 {v(a+2*i,2)}, {v(a+2*i,2)}, {s(S_C,2)}" for i in range(4)] if scale else []
    o += [f"v_cvt_pk_bf16_f32 {v(dst+i)}, {v(a+2*i)}, {v(a+2*i+1)}" for i in (0, 2, 1, 3)]
    return o, [f"v_permlane16_swap_b32 {v(dst+i)}, {v(dst+2+i)}" for i in range(2)]
def v_frag(tg):
    d = VPK + 4*tg
    o = [f"v_cvt_pk_bf16_f32 {v(d+2*f+i)}, {v(T3+16*f+4*tg+2*i)}, {v(T3+16*f+4*tg+2*i+1)}" for i in range(2) for f in range(2)]
    return o, [f"v_permlane16_swap_b32 {v(d+i)}, {v(d+2+i)}" for i in range(2)], [f"v_permlane32_swap_b32 {v(d+i)}, {v(d+2+i)}" for i in range(2)]
def kv_publish():
    o = [f"s_lshl_b32 {s(S_T0)}, {s(S_HEAD)}, 17", f"s_lshl_b32 {s(S_T1)}, {s(S_RB)}, 12", f"s_add_u32 {s(S_T0)}, {s(S_T0)}, {s(S_T1)}"]
    k = [kq_frag(KA+4*tt, T1, tt, True) for tt in range(2)]
    o += k[0][0] + k[1][0] + k[0][1] + k[1][1] + [ws_st(v(KA+4*tt,4), V_L16, s(S_T0), tt*2048, "kv") for tt in range(2)]
    for tt in range(2):
        f = [v_frag(2*tt + m) for m in range(2)]
        o += f[0][0] + f[1][0] + f[0][1] + f[1][1] + f[0][2] + f[1][2]
        o += [ws_st(v(VPK+8*tt+4*m,4), V_LO, s(S_T0), tt*2048+1024+m*512, "kv") for m in range(2)]
    o += [f"s_lshl_b32 {s(S_T0)}, {s(S_HEAD)}, 15", f"s_lshl_b32 {s(S_T1)}, {s(S_RB)}, 10",
          f"s_add_u32 {s(S_T0)}, {s(S_T0)}, {s(S_T1)}", f"s_add_u32 {s(S_T0)}, {s(S_T0)}, {WS_HB}",
          ws_st(v(VPK+12,4), V_HI, s(S_T0), 512, "kv")]
    k = [kq_frag(KB+4*tt, T1+16, tt, True) for tt in range(2)]
    o += k[1][0] + k[0][0] + k[1][1] + [ws_st(v(KB+4,4), V_HI, s(S_T0), 0, "kv")] + k[0][1]
    return o

if OPT["p1only"]:
    P("s_barrier\n" * 25 + "s_endpgm")
P("s_barrier")
C.stamp()
P.add(frag_reads(0))
queue = []
gf = gate_finish(V_GPR, 88)
qb0, qb1, qa0, qa1 = kq_frag(QB, T2+16, 0, False), kq_frag(QB+4, T2+16, 1, False), kq_frag(QA, T2, 0, False), kq_frag(QA1, T2, 1, False)
for n in range(32):
    mf = step_mfmas(n)
    sync = first_of_stage(n + 1) or n == 31
    nxt_stage = stage_of(n + 1) if n < 31 else 24
    rd = frag_reads(n + 1) if n < 31 else []
    if n < 16:
        m, gb = (n + 1) & 15, (n + 1) & 1
        rd = rd + [f"ds_read_b128 {v(GF+4*gb,4)}, {v(V_AG)} offset:{m*64}", f"ds_read_b128 {v(XW+4*gb,4)}, {v(V_AXW+gb)} offset:{(m >> 1)*8192}"]
    gm = [mfma16(v(GACC,4), v(GF+4*(n&1),4), v(XW+4*(n&1),4), "0" if n == 1 else v(GACC,4))] if 1 <= n <= 16 else []
    late = []
    if n == 15:
        pub = kv_publish()
        if OPT["early"]:
            late, pub = pub[:25], pub[25:]
            mf = [mf[i] for i in (0, 1, 4, 5, 8, 9, 10, 11, 12, 13, 14, 15, 2, 3, 6, 7)]
    if n == 16: queue += pub
    if n == 31 and OPT["early"]:
        mf = [mf[i] for i in (2, 3, 6, 7, 0, 1, 4, 5)]
        late = gf[2:] + qb0[0] + qb1[0] + qb0[1] + qb1[1]
    if n == 21:
        queue += [f"v_and_b32 {v(TMP)}, 11, {v(V_LANE)}", f"v_mov_b32 {v(TMP+1)}, {hex(ONES)}", f"v_cmp_eq_u32 vcc, 0, {v(TMP)}",
                  f"v_cndmask_b32 {v(TMP)}, 0, {v(TMP+1)}, vcc", f"v_mov_b32 {v(TMP+1)}, {hex(NEG_BIG)}"]
        queue += [f"v_mov_b32 {v(VBH+i)}, {v(TMP)}" for i in range(4)]
        queue += [f"v_cndmask_b32 {v(VB+i)}, {v(VPK+i)}, {v(TMP)}, {s(S_LO16,2)}" for i in range(16)]
        queue += [f"v_cndmask_b32 {v(VA+i)}, {v(TMP)}, {v(VPK+i)}, {s(S_LO16,2)}" for i in range(16)]
        queue += [f"v_cndmask_b32 {v(CMA+q)}, {v(TMP+1)}, 0, {s(S_MASK+2*q,2)}" for q in range(16)]
        queue += [f"v_bfe_i32 {v(CM+q)}, {v(V_CMR)}, {8*(q>>2)+(q&3)}, 1" for q in range(16)]
        queue += [f"v_and_b32 {v(CM+q)}, {v(TMP+1)}, {v(CM+q)}" for q in range(16)]
    if n == 16: mf = mf[:2] + gm + mf[2:]
    else: mf = mf + gm
    post = []
    pre = []
    if sync and nxt_stage == 23:
        (pre if OPT["gpre"] else post).append(f"ds_write_b32 {v(V_GPW)}, {v(GACC)}")
    if sync and nxt_stage == OPT["gat"]:
        rd = rd + [lines(f"""s_lshl_b32 {s(S_T0)}, {s(S_HEAD)}, 15
s_lshl_b32 {s(S_T1)}, {s(S_RB)}, 10
s_add_u32 {s(S_T0)}, {s(S_T0)}, {s(S_T1)}
s_add_u32 {s(S_T0)}, {s(S_T0)}, {WS_HB - 1024}
s_cmp_eq_u32 {s(S_RB)}, 0
s_cselect_b32 {s(S_T0)}, {WS_SIZE}, {s(S_T0)}
s_cselect_b64 {s(S_R0,2)}, {s(S_LO16,2)}, 0""") + [ws_ld(v(KBH,4), V_HI, s(S_T0)), f"s_not_b64 exec, {s(S_LO16,2)}",
                 ws_ld(v(VBH,4), V_HI, s(S_T0), 512), "s_mov_b64 exec, -1"]]
    if n == 31: post += gf[:2]
    take = 8 if n < 16 else (OPT["take"] if n < 21 else OPT["take2"])
    side = queue[:take]; queue = queue[take:]
    P.add(pre); P(mf[0]); P(mf[1])
    if sync:
        if nxt_stage == OPT["kvs"]: P.add(WaitTag("kv")); C.stamp()
        P.add(WaitLds()); P("s_barrier")
        if OPT["fine"] in (1, 2, 3): C.stamp()
    P.add(post)
    body, k = rd, len(mf) - 2
    nr = max(1, k - (4 if n < 16 else 2))
    for i in range(k + 1):
        lo, hi_ = len(body) * i // nr, len(body) * (i + 1) // nr
        if i < nr: P.add(body[lo:hi_])
        slo, shi = len(side) * i // (k + 1), len(side) * (i + 1) // (k + 1)
        P.add(side[slo:shi])
        i0 = 7 if n == 15 else 2
        if late and i >= i0: P.add(late[len(late) * (i - i0) // (k + 1 - i0):len(late) * (i - i0 + 1) // (k + 1 - i0)])
        if i < k: P(mf[2 + i])
    if n == 15 or (OPT["fine"] == 6 and n < 31): C.stamp()
assert not queue
C.stamp()
sc = interleave(b_scores(0), b_scores(1))
if OPT["early"]:
    P(sc[1]); P.add(qa0[0]); P(sc[2]); P.add(qa1[0]); P(sc[0]); P.add(qa0[1] + qa1[1]); P(sc[3])
else:
    P.add(gf[2:]); P.add(qb0[0] + qa0[0] + qb0[1] + qb1[0] + qa1[0])
    P(sc[2]); P.add(qb1[1] + qa0[1]); P(sc[0]); P.add(qa1[1]); P(sc[1]); P(sc[3])
s1, s0 = b_softmax(1), b_softmax(0)
P.add(s0[:9])
sm = interleave(s0[9:], s1)
P.add(sm[:-16])
pv = interleave(b_pv(0), b_pv(1))
P(mfma(v(MG+16,16), v(KA+4,4), v(QA1,4), v(CMA,16))); P.add(sm[-16:-10]); P(mfma(v(MG,16), v(KA,4), v(QA,4), v(CMA,16))); P.add(sm[-10:])
mx = interleave(*[max_tree((TMP, TMP+2)[t], range(MG+16*t, MG+16*t+16)) + cross_max((TMP, TMP+2)[t], (TMP, TMP+2)[t]+1) for t in (1, 0)])
for i, m in enumerate(pv):
    P(m); P.add(mx[4*i:4*i+4])
ng = [[f"v_pk_add_f32 {v(NEGM+16*t+2*i,2)}, 0, {v((TMP, TMP+2)[t],2)} op_sel_hi:[0,0] neg_lo:[0,1] neg_hi:[0,1]" for i in range(8)] for t in range(2)]
P.add(ng[0])
BPK = 192
P.add(interleave(b_pack(0), b_pack(1)))
P.add(o_store(1, 0, BPK, "ob")); P.add(o_store(1, 1, BPK+4, "ob"))
P.add(ng[1])
C.stamp()
cs = lambda: C.stamp() if OPT["fine"] == 4 else None
cev = {("e1" if OPT["xhs"] < 0 else OPT["xhs"]): lambda: (P.add(WaitTag("ob")) if OPT["f2by"] else None, P.add(WaitLds()), P("s_barrier"))}
if not OPT["f2by"]: cev["e1" if OPT["f2hs"] < 0 else OPT["f2hs"]] = lambda: (cs(), P.add(flag_store("ob", "ob")), cs())
if OPT["zbar"]: cev[("e1", 0, 1)[OPT["zbar"] - 1]] = lambda: (P.add(WaitTag("ob")), P("s_barrier"))
window_attention(C, cev)
P.add(interleave(*[o_pack(OACC2[t], 0, 8, [f"v_mul_f32 {v(TMP+t)}, {v(TMP+t)}, {v(G0+t)}"], PF+4*t, TMP+t) for t in (1, 0)]))
P.add(o_store(0, 1, PF+4, "oa")); P.add(o_store(0, 0, PF, "oa"))
C.stamp()
C.finish()

full = Prog(); full.items = E.items + H.P.items
bodyH = finalize(full, verbose=True)
full = Prog(); full.items = [Ins("s_load_dwordx16 s[4:19], s[0:1], 0"), Ins("global_load_dword v13, v5, s[96:97]")] + C.P.items
bodyC = "\n".join(finalize(full, verbose=True).split("\n")[2:])
print("stamps H", H.ns, "C", C.ns)
hdr = open("cdna_kernels/%s.s.ref" % NAME).read().split("; Override launch")[0]
if OPT["stamps"]: hdr += f"; stamps {C.ns} {H.ns}\n"
txt = hdr + f"""; Single launch, 256 workgroups x 8 waves, one workgroup per CU (4 heads x 64 rows of both branches).
;   waves 0-3: QKV projection (one head each), dilated attention, sliding-window attention
;   waves 4-7: LDS-DMA streaming of x / weights / key-value tiles, then one 64x64 tile of the output projection
; Hand-offs between workgroups go through d_ws with write-through stores; flags carry a per-launch epoch published
; through d_debug, and the windowed-branch result slots are first filled with all-ones and re-read until overwritten.
; Window softmax: the shift is the maximum over the diagonal key tile; if a sum or output leaves the safe range the
; tile is recomputed with the true row maximum (L_exact0 / L_exact1).
; @launch grid=(256,1,1) block=(512,1,1) lds={LDS_BYTES}
.amdgcn_target "amdgcn-amd-amdhsa--gfx950"
.text
.globl {NAME}_kernel
.p2align 12
.p2align 8
.type {NAME}_kernel,@function
{NAME}_kernel:
{bodyH}{bodyC}L_end:
    s_endpgm
{''.join(retry_txt)}{''.join(special_txt)}{slow_path()}    .fill 3072, 4, 0xbf800000
.section .rodata,"a"
.p2align 6
.amdhsa_kernel {NAME}_kernel
  .amdhsa_next_free_vgpr 256
  .amdhsa_next_free_sgpr 102
  .amdhsa_accum_offset {192 if OPT['xp'] == 8 else 256}
  .amdhsa_group_segment_fixed_size 0
  .amdhsa_kernarg_size 80
  .amdhsa_user_sgpr_count 2
  .amdhsa_user_sgpr_kernarg_segment_ptr 1
  .amdhsa_system_sgpr_workgroup_id_x 1
.end_amdhsa_kernel
"""
open(sys.argv[1], "w").write(txt)
```

```python
import sys, math, struct
from asmdsl import Prog, Ins, WaitTag, WaitLds, Raw, Pace, finalize

NAME = "gated_mix__sliding_block__sliding_local_dilated__prompt"
OPT = dict(icat=-2, tlb0=0, worder0=0, g0=2, deep=0, xwarm=0, hgmap=0, hold=0, sents=21, pasy=1, gpre=1, take2=16, t2=0, rtail=1, dfl=0, kvs=19, bsplit=0, pace=0, pace0=0, pacez=0, gat=23, gdel=0, f2hs=-1, f2by=1, wb0=4, zbar=3, wz=18, probe=0, amode=0, worder=0, xhs=3, hprio=2, p3prio=0, wopf=1, tlb=1, icpf=1, cpf=0, take=96, early=1, kvflag=42, pubat=32, prio=1, barpos=0,
           xmap=3, rotmode=4, rotmask=7, outsc=0, stamps=0, fine=0, rt=0, xp=0, wsoff=0, amp=-1, ampk=8, amprole=1, ampclk=0, p1only=0, pf=0)
for a in sys.argv[2:]:
    k, v_ = a.split("="); assert k in OPT, k; OPT[k] = int(v_)

WS_KV, WS_HB, WS_O = 0, 4 << 20, 5 << 20
WS_FKV, WS_FOB, WS_FOA = 9 << 20, (9 << 20) + 65536, (9 << 20) + 131072
WS_STAMP, WS_SIZE = 10 << 20, 16 << 20
OOB = 0x80000000
NSLOT, SLOT = 5, 16384
L_X, L_WA, L_G, L_GP, LDS_BYTES = 81920, 132096, 156672, 157696, 158720
KVH, KVS, L_KV, L_WO = 2080, 4 * 2080, 65536, 0
QK_SCALE = 0.25 * math.log2(math.e)
NEG_BIG, ONES = 0xf149f2ca, 0x3f803f80

def fhex(x): return "0x%08x" % struct.unpack("<I", struct.pack("<f", x))[0]
def v(a, n=1): return f"v{a}" if n == 1 else f"v[{a}:{a+n-1}]"
def s(a, n=1): return f"s{a}" if n == 1 else f"s[{a}:{a+n-1}]"
def lines(t): return [l.strip() for l in t.strip().split("\n") if l.strip()]
def mfma(d, a, b, c): return f"v_mfma_f32_32x32x16_bf16 {d}, {a}, {b}, {c}"
def srd(base, ptr, nbytes):
    return [f"s_mov_b32 {s(base)}, {s(ptr)}", f"s_mov_b32 {s(base+1)}, {s(ptr+1)}",
            f"s_mov_b32 {s(base+2)}, {nbytes}", f"s_mov_b32 {s(base+3)}, 0x20000"]
def interleave(*ls):
    o, ls = [], [list(l) for l in ls]
    while any(ls):
        for l in ls:
            if l: o.append(l.pop(0))
    return o

S_X, S_W, S_WS, S_WOA, S_WOB, S_OUT, S_DBG, S_G = 24, 28, 32, 36, 40, 44, 48, 36
S_W4, S_HG, S_RB, S_ROT, S_HEAD, S_RB3, S_CB = 52, 53, 54, 55, 56, 57, 58
S_K, S_T0, S_MW, S_MX, S_T1 = 59, 60, 61, 62, 63
S_MASK, S_T2, S_T3, S_LO16, S_TM, S_C, S_SPIN, S_EP = 64, 96, 97, 98, 100, 10, 3, 26
V_LANE, V_L16, V_STAMP, V_FOFF = 1, 2, 3, 4
EP, FLG = 6, 8
V_AK, V_AV0, V_AV1 = 10, 11, 12
G0 = 14
PM, QA = 16, 24
TMP = 28
SB, NEGM, MG, PB, PF, KF, VF = 32, 64, 96, 128, 144, 152, 192
OACC2 = (160, 176)
KA, QA1, VA = 208, 216, 224

class Role:
    def __init__(self, name):
        self.P, self.name, self.ns, self.nl = Prog(), name, 0, 0
    def stamp(self):
        P = self.P
        if OPT["amp"] == self.ns and OPT["amprole"] == (self.name == "H"):
            P.add(WaitLds())
            P(f"{'s_memtime' if OPT['ampclk'] else 's_memrealtime'} {s(S_TM,2)}\ns_waitcnt lgkmcnt(0)\nv_writelane_b32 {v(V_STAMP)}, {s(S_TM)}, 1")
        if OPT["stamps"]:
            P.add(WaitLds())
            P(f"s_memtime {s(S_TM,2)}\ns_waitcnt lgkmcnt(0)\nv_writelane_b32 {v(V_STAMP)}, {s(S_TM)}, {self.ns + 1}")
            if OPT["rt"]: P(f"s_memrealtime {s(S_TM,2)}\ns_waitcnt lgkmcnt(0)\nv_writelane_b32 {v(V_STAMP)}, {s(S_TM)}, {self.ns + 32}")
        self.ns += 1
    def poll(self, cmp_txt, reload_txt):
        P, n = self.P, f"{self.name}{self.nl}"; self.nl += 1
        P(f"s_mov_b32 {s(S_SPIN)}, 0x40000"); P(cmp_txt)
        P(f"s_cmp_eq_u64 vcc, -1\ns_cbranch_scc1 L_pok{n}")
        P.add(Raw(f"""L_pspin{n}:
    {reload_txt}
    s_sub_u32 {s(S_SPIN)}, {s(S_SPIN)}, 1
    s_cbranch_scc1 L_pok{n}
    s_waitcnt vmcnt(0)
    {cmp_txt}
    s_nop 2
    s_cmp_eq_u64 vcc, -1
    s_cbranch_scc0 L_pspin{n}
L_pok{n}:"""))
    @staticmethod
    def _sloads(n, off):
        if n <= 8: return [f"s_load_dwordx{2*n} {s(4,2*n)}, s[22:23], {s(off)} glc"]
        return [f"s_load_dwordx16 s[4:19], s[22:23], {s(off)} glc", f"s_load_dwordx16 s[64:79], s[22:23], {s(off)} offset:64 glc"]
    def spoll_issue(self, n, off):
        self.P.add(self._sloads(n, off))
    def spoll(self, n, off, ignore_from=None):
        P, lb = self.P, f"{self.name}{self.nl}"; self.nl += 1
        w = lambda i: s(4 + 2*i if i < 8 else 48 + 2*i, 2)
        P.add(WaitLds())
        t = f"    s_mov_b32 {s(S_SPIN)}, 0x40000\nL_sp{lb}:\n"
        for i in range(n - 1):
            if ignore_from is not None:
                t += f"    s_cmp_lt_u32 {s(ignore_from)}, {n - i}\n    s_cselect_b64 {w(i)}, {s(S_EP,2)}, {w(i)}\n"
        for i in range(n):
            t += f"    s_xor_b64 {w(i)}, {w(i)}, {s(S_EP,2)}\n"
            if i: t += f"    s_or_b64 s[4:5], s[4:5], {w(i)}\n"
        t += f"    s_cmp_eq_u64 s[4:5], 0\n    s_cbranch_scc1 L_spok{lb}\n" + "".join(f"    {x}\n" for x in self._sloads(n, off))
        t += f"    s_sub_u32 {s(S_SPIN)}, {s(S_SPIN)}, 1\n    s_waitcnt lgkmcnt(0)\n    s_cbranch_scc0 L_sp{lb}\nL_spok{lb}:"
        P.add(Raw(t))
    def finish(self):
        P = self.P
        if OPT["stamps"]:
            P(f"s_memrealtime {s(S_TM,2)}\ns_waitcnt lgkmcnt(0) vmcnt(0)\nv_writelane_b32 {v(V_STAMP)}, {s(S_TM)}, 63")
            P(f"""s_lshl_b32 {s(S_T0)}, s2, 3
s_add_u32 {s(S_T0)}, {s(S_T0)}, {s(S_W4)}
s_add_u32 {s(S_T0)}, {s(S_T0)}, {4 if self.name == "H" else 0}
s_lshl_b32 {s(S_T0)}, {s(S_T0)}, 8
s_add_u32 {s(S_T0)}, {s(S_T0)}, {WS_STAMP}
v_lshlrev_b32 v0, 2, {v(V_LANE)}
buffer_store_dword {v(V_STAMP)}, v0, {s(S_WS,4)}, {s(S_T0)} offen""")
        if OPT["amp"] >= 0 and OPT["amprole"] == (self.name == "H"):
            P(f"""s_cmp_lg_u32 s2, 100
s_cbranch_scc1 L_end
v_readlane_b32 {s(S_T0)}, {v(V_STAMP)}, 0
v_readlane_b32 {s(S_T1)}, {v(V_STAMP)}, 1
s_memrealtime {s(S_TM,2)}
s_sub_u32 {s(S_T1)}, {s(S_T1)}, {s(S_T0)}
s_mul_i32 {s(S_T1)}, {s(S_T1)}, {OPT["ampk"]}
s_lshr_b32 {s(S_T1)}, {s(S_T1)}, {4 if OPT["ampclk"] else 0}
s_min_u32 {s(S_T1)}, {s(S_T1)}, 100000
s_waitcnt lgkmcnt(0)
s_mov_b32 {s(S_T0)}, {s(S_TM)}""")
            P.add(Raw(f"""L_amp{self.name}:
    s_memrealtime {s(S_TM,2)}
    s_waitcnt lgkmcnt(0)
    s_sub_u32 {s(S_K)}, {s(S_TM)}, {s(S_T0)}
    s_cmp_lt_u32 {s(S_K)}, {s(S_T1)}
    s_cbranch_scc1 L_amp{self.name}"""))
        P("s_endpgm")

ws_ld = lambda dst, voff, soff, imm=0, tag=None: Ins(
    f"buffer_load_dwordx4 {dst}, {v(voff)}, {s(S_WS,4)}, {soff} offen{' offset:%d' % imm if imm else ''} sc1", tag)
ws_st = lambda src, voff, soff, imm=0, tag=None: Ins(
    f"buffer_store_dwordx4 {src}, {v(voff)}, {s(S_WS,4)}, {soff} offen{' offset:%d' % imm if imm else ''} sc1", tag)
ep_load = f"buffer_load_dwordx2 {v(EP,2)}, off, {s(S_DBG,4)}, 0 sc1"
flag_load = f"buffer_load_dwordx2 {v(FLG,2)}, {v(V_FOFF)}, {s(S_WS,4)}, {s(S_K)} offen sc1"
flag_cmp = f"v_cmp_eq_u64 vcc, {v(FLG,2)}, {v(EP,2)}"
def flag_store(data_tag, kind):
    if kind == "kv":
        o = lines(f"""v_mul_u32_u24 v0, 56, {v(V_LANE)}
v_add_u32 v0, 88, v0
s_sub_u32 {s(S_T1)}, 31, {s(S_RB)}
s_min_u32 {s(S_T1)}, {s(S_T1)}, 4
v_cmp_gt_u32 vcc, {s(S_T1)}, {v(V_LANE)}
s_cmp_eq_u32 {s(S_RB)}, 0
s_cselect_b32 {s(S_T1)}, 24, {OOB}
v_mov_b32 v5, {s(S_T1)}
v_cndmask_b32 v0, v5, v0, vcc
s_lshl_b32 {s(S_T0)}, {s(S_HEAD)}, 5
s_add_u32 {s(S_T0)}, {s(S_T0)}, {s(S_RB)}
s_lshl_b32 {s(S_T0)}, {s(S_T0)}, 6
s_add_u32 {s(S_T0)}, {s(S_T0)}, {WS_FKV}""")
    else:
        o = lines(f"""v_lshlrev_b32 v0, 8, {v(V_LANE)}
v_cmp_gt_u32 vcc, 8, {v(V_LANE)}
v_mov_b32 v5, {OOB}
v_cndmask_b32 v0, v5, v0, vcc
s_lshl_b32 {s(S_T0)}, {s(S_RB)}, 8
s_add_u32 {s(S_T0)}, {s(S_T0)}, {s(S_HEAD)}
s_lshl_b32 {s(S_T0)}, {s(S_T0)}, 3
s_add_u32 {s(S_T0)}, {s(S_T0)}, { {"ob": WS_FOB, "oa0": WS_FOA, "oa1": WS_FOA + 65536}[kind] }""")
    return o + [WaitTag(data_tag), Ins(f"buffer_store_dwordx2 {v(EP,2)}, v0, {s(S_WS,4)}, {s(S_T0)} offen sc1", "flag")]

def max_tree(dst, regs, init=False):
    regs, o = list(regs), []
    if not init:
        o.append(f"v_max3_f32 {v(dst)}, {v(regs[0])}, {v(regs[1])}, {v(regs[2])}"); regs = regs[3:]
    while len(regs) >= 2:
        o.append(f"v_max3_f32 {v(dst)}, {v(dst)}, {v(regs[0])}, {v(regs[1])}"); regs = regs[2:]
    if regs: o.append(f"v_max_f32 {v(dst)}, {v(dst)}, {v(regs[0])}")
    return o
def cross_max(m, t):
    return [f"v_mov_b32 {v(t)}, {v(m)}", f"v_permlane32_swap_b32 {v(m)}, {v(t)}", f"v_max_f32 {v(m)}, {v(m)}, {v(t)}"]

def attn_setup(t, tmp):
    r5, hh, cm, u = tmp, tmp + 1, tmp + 2, tmp + 3
    o = lines(f"""v_and_b32 {v(r5)}, 31, {v(V_LANE)}
v_lshrrev_b32 {v(hh)}, 5, {v(V_LANE)}
v_lshlrev_b32 {v(u)}, 2, {v(hh)}
v_sub_u32 {v(cm)}, {v(r5)}, {v(u)}
s_mul_i32 {s(S_T2)}, {s(S_W4)}, {KVH}
s_add_u32 {s(S_T2)}, {s(S_T2)}, {L_KV + t*KVS}
v_add_u32 {v(V_AK)}, {s(S_T2)}, {v(V_L16)}
v_and_b32 {v(u)}, 15, {v(V_LANE)}
v_lshlrev_b32 {v(u)}, 4, {v(u)}
v_lshl_add_u32 {v(u)}, {v(hh)}, 8, {v(u)}
v_and_b32 {v(hh)}, 11, {v(V_LANE)}
v_min_u32 {v(hh)}, 1, {v(hh)}
v_lshlrev_b32 {v(hh)}, 4, {v(hh)}
v_add_u32 {v(hh)}, 0x400, {v(hh)}
v_cndmask_b32 {v(V_AV0)}, {v(hh)}, {v(u)}, {s(S_LO16,2)}
v_subrev_u32 {v(hh)}, 0x200, {v(hh)}
v_cndmask_b32 {v(V_AV1)}, {v(hh)}, {v(u)}, {s(S_LO16,2)}
v_add_u32 {v(V_AV0)}, {s(S_T2)}, {v(V_AV0)}
v_add_u32 {v(V_AV1)}, {s(S_T2)}, {v(V_AV1)}
v_mov_b32 {v(u)}, 0xffff""")
    o += [f"v_cmp_le_i32 {s(S_MASK+2*q,2)}, {8*(q>>2)+(q&3)}, {v(cm)}" for q in range(16)]
    o += [f"v_cndmask_b32 {v(PM+pq)}, 0, {v(u)}, {s(S_MASK+4*pq,2)}" for pq in range(8)]
    o += [f"v_cndmask_b32 {v(PM+pq)}, {v(PM+pq)}, -1, {s(S_MASK+4*pq+2,2)}" for pq in range(8)]
    return o

def gate_finish(addr, tmp):
    o = [f"ds_read_b32 {v(tmp+t)}, {v(addr)} offset:{128*t}" for t in range(2)]
    for op in ("v_mul_f32 {g}, " + fhex(-math.log2(math.e)) + ", {g}", "v_exp_f32 {g}, {g}", "v_add_f32 {g}, 1.0, {g}", "v_rcp_f32 {o}, {g}"):
        o += [op.format(g=v(tmp+t), o=v(G0+t)) for t in range(2)]
    return o

def o_pack(acc, o0, lreg, fac, dst, f):
    return ([f"v_rcp_f32 {v(f)}, {v(acc+lreg)}"] + fac +
            [f"v_mul_f32 {v(acc+o0+i)}, {v(f)}, {v(acc+o0+i)}" for i in range(8)] +
            [f"v_cvt_pk_bf16_f32 {v(dst+i)}, {v(acc+o0+2*i)}, {v(acc+o0+2*i+1)}" for i in range(4)])
def o_store(br, tt, src, tag):
    return [f"s_lshl_b32 {s(S_T0)}, {s(S_RB)}, 17", f"s_lshl_b32 {s(S_T1)}, {s(S_HEAD)}, 10",
            f"s_add_u32 {s(S_T0)}, {s(S_T0)}, {s(S_T1)}", f"s_add_u32 {s(S_T0)}, {s(S_T0)}, {WS_O + br*65536 + tt*32768}",
            ws_st(v(src,4), V_L16, s(S_T0), 0, tag)]

CMA = 64
def window_attention(R, events):
    P = R.P
    Q = lambda t: v((QA, QA1)[t], 4)
    dk, dv = (4, 3) if OPT["deep"] else (2, 2)
    kfr = lambda u: v((240 + 4*(u & 3)) if OPT["deep"] else KF+4*(u & 1), 4) if u < 8 else v(KA+4*(u-8), 4)
    vfr = lambda u, m: v((VF, VF+8, KF)[u % dv]+4*m, 4) if u < 8 else v(VA+8*(u-8)+4*m, 4)
    kread = lambda u: [f"ds_read_b128 {kfr(u)}, {v(V_AK)} offset:{u*KVS}"] if u < 8 else []
    vread = lambda u: [f"ds_read_b128 {vfr(u,0)}, {v(V_AV0)} offset:{u*KVS+1024}",
                       f"ds_read_b128 {vfr(u,1)}, {v(V_AV1)} offset:{u*KVS+1536}"] if u < 8 else []
    M = (TMP, TMP + 2)
    acc = lambda t: v(OACC2[t], 16)
    negm = lambda t: v(NEGM+16*t, 16)
    exps = lambda S: [f"v_exp_f32 {v(S+i)}, {v(S+i)}" for i in range(16)]
    cvts = lambda d, S: [f"v_cvt_pk_bf16_f32 {v(d+k)}, {v(S+2*k)}, {v(S+2*k+1)}" for k in range(8)]
    ev = lambda key: events.pop(key)() if key in events else None
    P(mfma(v(SB+16,16), kfr(8), Q(1), negm(1))); P(mfma(v(MG,16), kfr(8), Q(0), negm(0)))
    P("s_barrier")
    R.stamp()
    P.add(kread(0) + kread(1) + vread(0) + vread(1))
    if OPT["deep"]: P.add(kread(2) + kread(3) + vread(2))
    ev("pre")
    e, c = exps(SB+16), cvts(PB+8, SB+16)
    P.add(e[0:4]); P(mfma(v(SB,16), kfr(0), Q(0), negm(0))); P.add(kread(dk)); P.add(e[4:8]); P.add(c[0:4])
    P(mfma(v(MG+16,16), kfr(9), Q(1), negm(1))); P.add(e[8:12])
    P(mfma(acc(1), vfr(8,0), v(PB+8,4), "0")); P.add(e[12:16]); P.add(c[4:8])
    pend = [mfma(v(SB+16,16), kfr(1), Q(1), negm(1)), mfma(acc(1), vfr(8,1), v(PB+12,4), acc(1))]
    for t in range(2):
        g = MG + 16*t
        seq = [f"v_cndmask_b32 {v(g+i)}, {v(SB+16*t+i)}, {v(g+i)}, {s(S_MASK+2*i,2)}" for i in range(16)]
        seq += [[mfma(v(SB+16*t,16), kfr(1+t), Q(t), negm(t))] + (kread(dk+1) if t == 0 else [])]
        seq += exps(g) + cvts(PF, g)
        seq += [f"v_and_b32 {v(PB+8*t+i)}, {v(PM+i)}, {v(PF+i)}" for i in range(8)]
        seq += [f"v_xor_b32 {v(g+i)}, {v(PF+i)}, {v(PB+8*t+i)}" for i in range(8)]
        at = (0, 8) if t == 0 else (1, 9, 21, 26)
        for i, x in enumerate(seq):
            P.add(x)
            if i in at: P.add(pend.pop(0))
        pend = [mfma(acc(t), vfr(8+t,0), v(PB+8*t,4), acc(1) if t else "0"), mfma(acc(t), vfr(8+t,1), v(PB+8*t+4,4), acc(t)),
                mfma(acc(t), vfr(t,0), v(g,4), acc(t)), [mfma(acc(t), vfr(t,1), v(g+4,4), acc(t))] + (vread(dv) if t == 0 else [])]
    R.stamp()
    if OPT["t2"]: P("s_barrier")
    ev("e1")
    for hs in range(13):
        t = hs & 1; u = (hs >> 1) + 1 + t
        S, Pp = SB + 16*t, PB + 8*t
        e, c = exps(S), cvts(Pp, S)
        nxt = None
        if t == 0 and 0 < hs < 12: nxt = [mfma(v(SB+16,16), kfr(u+1), Q(1), negm(1))]
        if t == 1: nxt = [mfma(v(SB,16), kfr(u), Q(0), negm(0))] + kread(u+dk)
        if hs == 0:
            P.add(e[0:2]); P.add(pend[0]); P.add(e[2:5]); P.add(pend[1]); P.add(e[5:8]); P.add(pend[2])
            P.add(c[0:4]); P.add(e[8:10]); P.add(pend[3]); P.add(e[10:14])
            P(mfma(acc(t), vfr(u,0), v(Pp,4), acc(t))); P.add(e[14:16]); P.add(c[4:8])
        else:
            P.add(e[0:2]); P.add(pend); P.add(e[2:6])
            if nxt: P.add(nxt)
            P.add(e[6:8]); P.add(c[0:4]); P.add(e[8:10])
            P(mfma(acc(t), vfr(u,0), v(Pp,4), acc(t)))
            P.add(e[10:16]); P.add(c[4:8])
        pend = [mfma(acc(t), vfr(u,1), v(Pp+4,4), acc(t))] + (vread(u+dv) if t == 0 else [])
        if OPT["fine"] == 5: R.stamp()
        ev(hs)
    P.add(pend)
    assert not events, events
    P(f"s_mov_b32 {s(S_T1)}, 0x7b800000")
    for t in (1, 0):
        o, m = OACC2[t], M[t]
        P.add([f"v_add_f32 {v(m)}, abs({v(o)}), abs({v(o+8)})", f"v_add_f32 {v(m+1)}, abs({v(o+1)}), abs({v(o+2)})"] +
              [f"v_add_f32 {v(m+(i&1))}, {v(m+(i&1))}, abs({v(o+i)})" for i in range(3, 8)] + [f"v_add_f32 {v(m)}, {v(m)}, {v(m+1)}"])
    P(f"v_add_f32 {v(M[0])}, {v(M[0])}, {v(M[1])}\nv_cmp_lt_f32 vcc, {v(M[0])}, {s(S_T1)}")
    P("s_cmp_eq_u64 vcc, -1\ns_cbranch_scc0 L_exact0\nL_back:")
    R.stamp()

def slow_path():
    return exact_attention(0) + exact_attention(1) + "    s_branch L_back\n"

def exact_attention(t):
    F = Prog(); q, M, acc = v((QA, QA1)[t], 4), TMP, v(OACC2[t], 16)
    KO, VO, G = TMP + 2, TMP + 3, S_T0
    def tile(rel, kdst, vdst):
        o = [f"s_add_i32 {s(S_K)}, {s(G)}, {rel}", f"s_cmp_ge_i32 {s(S_K)}, 0", f"s_cselect_b64 vcc, -1, 0",
             f"s_cselect_b32 {s(S_TM)}, {hex(ONES)}, 0", f"s_max_i32 {s(S_K)}, {s(S_K)}, 0", f"s_lshl_b32 {s(S_K)}, {s(S_K)}, 11",
             f"s_lshl_b32 {s(S_T1)}, {s(S_HEAD)}, 17", f"s_add_u32 {s(S_K)}, {s(S_K)}, {s(S_T1)}",
             f"v_and_b32 {v(KO)}, 0x200, {v(V_L16)}", f"v_cndmask_b32 {v(KO)}, {v(KO)}, {v(V_L16)}, vcc", ws_ld(v(kdst,4), KO, s(S_K))]
        if vdst is not None:
            o += [f"v_mov_b32 {v(vdst+i)}, {s(S_TM)}" for i in range(8)]
            o += [f"s_cmp_lg_u32 {s(S_TM)}, 0", f"s_cselect_b32 {s(S_K)}, {s(S_K)}, {WS_SIZE}", f"s_mov_b64 exec, {s(S_LO16,2)}",
                  ws_ld(v(vdst,4), VO, s(S_K), 1024), ws_ld(v(vdst+4,4), VO, s(S_K), 1536), "s_mov_b64 exec, -1"]
        return o
    F(f"L_exact{t}:\ns_waitcnt vmcnt(0) lgkmcnt(0)\ns_nop 15")
    F(f"""s_lshl_b32 {s(G)}, {s(S_RB)}, 1
s_sub_u32 {s(G)}, {s(G)}, {8 - t}
v_lshrrev_b32 {v(VO)}, 1, {v(V_L16)}
v_and_b32 {v(VO)}, 0x100, {v(VO)}
v_and_b32 {v(KO)}, 0xf0, {v(V_L16)}
v_or_b32 {v(VO)}, {v(VO)}, {v(KO)}""")
    F.add(tile(8, KF, VF)); F.add(tile(0, KF+4, VF+8))
    F(mfma(v(MG,16), v(KF,4), q, "0")); F(mfma(v(SB,16), v(KF+4,4), q, "0"))
    F.add([f"v_cndmask_b32 {v(MG+i)}, {v(SB+i)}, {v(MG+i)}, {s(S_MASK+2*i,2)}" for i in range(16)])
    F.add(max_tree(M, range(MG, MG+16)))
    F(f"s_mov_b32 {s(S_TM+1)}, 7\nL_exact_m{t}:\ns_add_u32 {s(G)}, {s(G)}, 1")
    F.add(tile(0, KF, None))
    F(mfma(v(SB,16), v(KF,4), q, "0"))
    F.add(max_tree(M, range(SB, SB+16), init=True))
    F(f"s_sub_u32 {s(S_TM+1)}, {s(S_TM+1)}, 1\ns_cmp_lg_u32 {s(S_TM+1)}, 0\ns_cbranch_scc1 L_exact_m{t}")
    F.add(cross_max(M, M+1))
    F.add([f"v_sub_f32 {v(MG+i)}, {v(MG+i)}, {v(M)}" for i in range(16)])
    F.add([f"v_exp_f32 {v(MG+i)}, {v(MG+i)}" for i in range(16)])
    F.add([f"v_cvt_pk_bf16_f32 {v(PF+i)}, {v(MG+2*i)}, {v(MG+2*i+1)}" for i in range(8)])
    F.add([f"v_and_b32 {v(PB+i)}, {v(PM+i)}, {v(PF+i)}" for i in range(8)])
    F.add([f"v_xor_b32 {v(PF+i)}, {v(PF+i)}, {v(PB+i)}" for i in range(8)])
    F(mfma(acc, v(VF,4), v(PB,4), "0")); F(mfma(acc, v(VF+4,4), v(PB+4,4), acc))
    F(mfma(acc, v(VF+8,4), v(PF,4), acc)); F(mfma(acc, v(VF+12,4), v(PF+4,4), acc))
    F(f"s_sub_u32 {s(G)}, {s(G)}, 7\ns_mov_b32 {s(S_TM+1)}, 7\ns_nop 15\nL_exact_e{t}:\ns_add_u32 {s(G)}, {s(G)}, 1")
    F.add(tile(0, KF, VF))
    F(mfma(v(SB,16), v(KF,4), q, "0"))
    F.add([f"v_sub_f32 {v(SB+i)}, {v(SB+i)}, {v(M)}" for i in range(16)])
    F.add([f"v_exp_f32 {v(SB+i)}, {v(SB+i)}" for i in range(16)])
    F.add([f"v_cvt_pk_bf16_f32 {v(PB+i)}, {v(SB+2*i)}, {v(SB+2*i+1)}" for i in range(8)])
    F(mfma(acc, v(VF,4), v(PB,4), acc)); F(mfma(acc, v(VF+4,4), v(PB+4,4), acc))
    F(f"s_nop 15\ns_sub_u32 {s(S_TM+1)}, {s(S_TM+1)}, 1\ns_cmp_lg_u32 {s(S_TM+1)}, 0\ns_cbranch_scc1 L_exact_e{t}")
    return finalize(F)

E = Prog()
hg_code = {0: f"s_lshl1_add_u32 {s(S_HG)}, {s(S_T1)}, {s(S_K)}", 1: f"s_lshl2_add_u32 {s(S_HG)}, {s(S_K)}, {s(S_T1)}",
           2: f"s_and_b32 {s(S_HG)}, {s(S_T1)}, 2\ns_add_u32 {s(S_HG)}, {s(S_HG)}, {s(S_K)}\ns_and_b32 {s(S_T1)}, {s(S_T1)}, 1\ns_lshl1_add_u32 {s(S_HG)}, {s(S_HG)}, {s(S_T1)}",
           3: f"s_mul_i32 {s(S_K)}, {s(S_K)}, 3\ns_lshl1_add_u32 {s(S_HG)}, {s(S_T1)}, {s(S_K)}\ns_and_b32 {s(S_HG)}, {s(S_HG)}, 7",
           4: f"s_mul_i32 {s(S_K)}, {s(S_K)}, 5\ns_lshl1_add_u32 {s(S_HG)}, {s(S_T1)}, {s(S_K)}\ns_and_b32 {s(S_HG)}, {s(S_HG)}, 7"}[OPT["hgmap"]]
assert OPT["xmap"] == 3
hb = {4: 2, 3: 1, 2: 0, 1: 3}[OPT["xmap"]]
if OPT["stamps"] or OPT["amp"] >= 0:
    E("s_memtime s[64:65]\ns_memrealtime s[66:67]")
def entry_stamp():
    if OPT["stamps"]:
        return [f"v_mov_b32 {v(V_STAMP)}, 0", f"v_writelane_b32 {v(V_STAMP)}, s64, 0", f"v_writelane_b32 {v(V_STAMP)}, s66, 62"]
    if OPT["amp"] >= 0:
        return [f"v_mov_b32 {v(V_STAMP)}, 0", f"v_writelane_b32 {v(V_STAMP)}, {'s64' if OPT['ampclk'] else 's66'}, 0"]
    return []
code_pf = f"""s_getpc_b64 {s(S_T2,2)}
L_pc:
s_lshl2_add_u32 {s(S_T1)}, {s(S_T0)}, {s(S_W4)}
s_and_b32 {s(S_T1)}, {s(S_T1)}, 63
s_lshl_b32 {s(S_T1)}, {s(S_T1)}, 9
s_sub_u32 {s(S_T2)}, {s(S_T2)}, L_pc-{NAME}_kernel
s_subb_u32 {s(S_T3)}, {s(S_T3)}, 0
v_and_b32 v5, 3, {v(V_LANE)}
v_lshl_add_u32 v5, v5, 7, {s(S_T1)}
global_load_dword v13, v5, {s(S_T2,2)}"""
if OPT["cpf"] == 2:
    E(f"""s_getpc_b64 {s(S_T2,2)}
s_bfe_u32 {s(S_T1)}, s2, 0x50003
v_lshrrev_b32 v5, 6, v0
v_lshlrev_b32 v5, 7, v5
v_lshl_add_u32 v5, {s(S_T1)}, 10, v5
global_load_dword v13, v5, {s(S_T2,2)}""")
if OPT["cpf"] == 3:
    E(f"""s_getpc_b64 {s(S_T2,2)}
s_bfe_u32 {s(S_T1)}, s2, 0x30003
v_lshrrev_b32 v5, 4, v0
v_lshlrev_b32 v5, 7, v5
v_lshl_add_u32 v5, {s(S_T1)}, 12, v5
global_load_dword v13, v5, {s(S_T2,2)}""")
E(f"""
s_cmp_ge_u32 s2, 256
s_cbranch_scc1 L_end
s_load_dwordx16 s[4:19], s[0:1], 0
s_load_dwordx4 s[20:23], s[0:1], 64
v_lshrrev_b32 v4, 6, v0
v_and_b32 {v(V_LANE)}, 63, v0
s_lshr_b32 {s(S_T0)}, s2, 3
v_readfirstlane_b32 {s(S_MX)}, v4
""")
E(f"""
s_and_b32 {s(S_T1)}, s2, {(8 >> hb) - 1}
s_and_b32 {s(S_K)}, {s(S_T0)}, {(1 << hb) - 1}
{hg_code}
s_bfe_u32 {s(S_K)}, s2, {hex((hb << 16) | (3 - hb))}
s_lshl_b32 {s(S_RB)}, {s(S_K)}, {5 - hb}
s_lshr_b32 {s(S_ROT)}, {s(S_T0)}, {hb}
s_add_u32 {s(S_RB)}, {s(S_RB)}, {s(S_ROT)}
s_and_b32 {s(S_W4)}, {s(S_MX)}, 3
""")
if OPT["cpf"] == 1:
    E(f"""s_cmp_lt_u32 {s(S_MX)}, 4
s_cbranch_scc0 L_hrole""")
    E(code_pf)
    E("s_branch L_crole\nL_hrole:")
elif OPT["cpf"] >= 4:
    E(f"""s_cmp_lt_u32 {s(S_MX)}, 4
s_cbranch_scc0 L_hrole
s_getpc_b64 {s(S_T2,2)}
L_pc:
s_lshl2_add_u32 {s(S_T1)}, {s(S_T0)}, {s(S_W4)}
s_lshl_b32 {s(S_T1)}, {s(S_T1)}, 8
s_sub_u32 {s(S_T2)}, {s(S_T2)}, L_pc-{NAME}_kernel
s_subb_u32 {s(S_T3)}, {s(S_T3)}, 0
s_load_dword s70, {s(S_T2,2)}, {s(S_T1)}
s_add_u32 {s(S_T1)}, {s(S_T1)}, 128
s_load_dword s71, {s(S_T2,2)}, {s(S_T1)}""")
    if OPT["cpf"] == 5:
        E("s_waitcnt lgkmcnt(0)")
        for i, ptr in enumerate((6, 12, 4, 16, 20, 8, 14, 18, 22)):
            E(f"s_load_dword s{72+i}, {s(ptr,2)}, 0")
        for i in range(1, 5):
            E(f"s_mov_b32 {s(S_T1)}, {i << 21}\ns_load_dword s{80+i}, s[22:23], {s(S_T1)}")
    E("s_branch L_crole\nL_hrole:")
else:
    E(f"s_cmp_lt_u32 {s(S_MX)}, 4\ns_cbranch_scc1 L_crole")
late_ids = lines(f"""
s_lshr_b32 {s(S_T0)}, s2, 3
s_and_b32 {s(S_RB3)}, s2, 7
s_lshl_b32 {s(S_RB3)}, {s(S_RB3)}, 2
s_lshr_b32 {s(S_T1)}, {s(S_T0)}, 3
s_add_u32 {s(S_RB3)}, {s(S_RB3)}, {s(S_T1)}
s_and_b32 {s(S_CB)}, {s(S_T0)}, 7
s_lshl_b32 {s(S_HEAD)}, {s(S_HG)}, 2
s_add_u32 {s(S_HEAD)}, {s(S_HEAD)}, {s(S_W4)}
s_mov_b32 {s(S_LO16)}, 0xffff
s_mov_b32 {s(S_LO16+1)}, 0xffff
v_lshlrev_b32 {v(V_L16)}, 4, {v(V_LANE)}
""")
rot_code = {
 0: f"s_and_b32 {s(S_ROT)}, {s(S_ROT)}, {OPT['rotmask']}",
 1: f"s_and_b32 {s(S_ROT)}, s2, 7",
 4: f"s_add_u32 {s(S_ROT)}, {s(S_ROT)}, {s(S_HG)}\ns_and_b32 {s(S_ROT)}, {s(S_ROT)}, 7",
 5: f"s_add_u32 {s(S_ROT)}, {s(S_ROT)}, {s(S_HG)}\ns_and_b32 {s(S_ROT)}, {s(S_ROT)}, 3\ns_lshl_b32 {s(S_ROT)}, {s(S_ROT)}, 1",
 6: f"s_add_u32 {s(S_ROT)}, {s(S_ROT)}, {s(S_HG)}\ns_and_b32 {s(S_ROT)}, {s(S_ROT)}, 1\ns_lshl_b32 {s(S_ROT)}, {s(S_ROT)}, 2",
}[OPT["rotmode"]]

def stage_of(n): return n if n < 16 else 16 + ((n - 16) >> 1)
def first_of_stage(n): return n < 32 and (n == 0 or stage_of(n) != stage_of(n - 1))
def mfma16(d, a, b, c): return f"v_mfma_f32_16x16x32_bf16 {d}, {a}, {b}, {c}"

H = Role("H"); P = H.P
VX, VW1, VW2 = 160, 162, 166
V_AXW, V_AG, V_GPW, GACC, XW, GF = 170, 171, 172, 174, 176, 184
i3, i4, p7, t0, t1, t2 = 32, 33, 34, 35, 36, 37
def raw(i):
    if OPT["fine"] == 3: P(f"s_memtime s[{68+2*i}:{69+2*i}]")
raw(0)
P(rot_code)
P(f"""
v_lshrrev_b32 {v(i3)}, 3, {v(V_LANE)}
v_lshrrev_b32 {v(i4)}, 4, {v(V_LANE)}
v_and_b32 {v(p7)}, 7, {v(V_LANE)}
s_lshl_b32 {s(S_T0)}, {s(S_W4)}, 4
v_add_u32 {v(t0)}, {s(S_T0)}, {v(i3)}
v_lshlrev_b32 {v(t0)}, 10, {v(t0)}
v_xor_b32 {v(t1)}, {v(p7)}, {v(i4)}
v_lshl_add_u32 {v(VX)}, {v(t1)}, 4, {v(t0)}
v_xor_b32 {v(VX+1)}, 64, {v(VX)}
v_add_u32 {v(VX+1)}, {0x2000 - 1024}, {v(VX+1)}
s_lshr_b32 {s(S_T0)}, {s(S_W4)}, 1
s_and_b32 {s(S_T1)}, {s(S_W4)}, 1
s_lshl_b32 {s(S_K)}, {s(S_T0)}, 4
v_add_u32 {v(t0)}, {s(S_K)}, {v(i4)}
v_mul_u32_u24 {v(t0)}, 0xc00, {v(t0)}
v_lshlrev_b32 {v(t1)}, 1, {v(i4)}
v_xor_b32 {v(t1)}, {v(t1)}, {v(p7)}
v_lshl_add_u32 {v(t0)}, {v(t1)}, 4, {v(t0)}
v_and_b32 {v(t1)}, 1, {v(i3)}
v_xor_b32 {v(t1)}, {s(S_T1)}, {v(t1)}
v_lshlrev_b32 {v(t1)}, 10, {v(t1)}
s_lshl_b32 {s(S_T2)}, {s(S_HG)}, 7
s_add_u32 {s(S_K)}, {s(S_T2)}, 1024
v_add3_u32 {v(VW1)}, {v(t0)}, {v(t1)}, {s(S_K)}
v_add_u32 {v(VW1+1)}, {12288 - 1024}, {v(VW1)}
v_xor_b32 {v(t1)}, 0x400, {v(t1)}
v_add3_u32 {v(VW1+2)}, {v(t0)}, {v(t1)}, {s(S_K)}
v_add_u32 {v(VW1+3)}, {3*(12288 - 1024)}, {v(VW1+2)}
v_add_u32 {v(VW1+2)}, {2*(12288 - 1024)}, {v(VW1+2)}
s_lshl_b32 {s(S_MW)}, {s(S_T1)}, 13
s_lshl_b32 {s(S_K)}, {s(S_T0)}, 12
s_add_u32 {s(S_MW)}, {s(S_MW)}, {s(S_K)}
s_lshl_b32 {s(S_MX)}, {s(S_W4)}, 11
s_add_u32 {s(S_MX)}, {s(S_MX)}, {L_X}""")
raw(1)
P("s_waitcnt lgkmcnt(0)")
if OPT["wsoff"]: P(f"s_add_u32 s22, s22, {OPT['wsoff'] << 20}\ns_addc_u32 s23, s23, 0")
raw(2)
if OPT["tlb0"]: P.add(Raw("    s_load_dword s86, s[6:7], 0\n    s_load_dword s87, s[12:13], 0" + ("\n    s_load_dword s88, s[16:17], 0" if OPT["tlb0"] > 1 else "")))
P.add(entry_stamp())
P.add(srd(S_X, 4, 2097152))
P(f"""s_cmp_eq_u32 {s(S_T1)}, 0
s_cselect_b32 {s(S_W)}, s6, s12
s_cselect_b32 {s(S_W+1)}, s7, s13
s_mov_b32 {s(S_W+2)}, 1572864
s_mov_b32 {s(S_W+3)}, 0x20000""")
if OPT["fine"] != 3: H.stamp()
def dma(voff, rsrc, soff, imm, tag, flags=""):
    flags = flags or ("", " sc1", " nt", " sc0", " sc0 sc1")[OPT["dfl"]]
    return Ins(f"buffer_load_dwordx4 {v(voff)}, {s(rsrc,4)}, {soff} offen{' offset:%d' % imm if imm else ''}{flags} lds", tag)
def x_dma(j):
    return [f"s_add_u32 {s(S_K)}, {s(S_ROT)}, {j}", f"s_and_b32 {s(S_K)}, {s(S_K)}, 7", f"s_lshl_b32 {s(S_K)}, {s(S_K)}, 7",
            f"s_lshl_b32 {s(S_T2)}, {s(S_RB)}, 16", f"s_add_u32 m0, {s(S_MX)}, {j*8192}", f"s_add_u32 {s(S_K)}, {s(S_K)}, {s(S_T2)}",
            dma(VX, S_X, s(S_K), 0, f"x{j}"), dma(VX+1, S_X, s(S_K), 1024, f"x{j}")]
def w_dma(S):
    if S < 16:
        o = [f"s_lshl_b32 {s(S_T3)}, {s(S_ROT)}, 1", f"s_add_u32 {s(S_T3)}, {s(S_T3)}, {S}", f"s_and_b32 {s(S_T3)}, {s(S_T3)}, 15"]
    else:
        o = [f"s_add_u32 {s(S_T3)}, {s(S_ROT)}, {S-16}", f"s_and_b32 {s(S_T3)}, {s(S_T3)}, 7"]
    o += [f"s_add_u32 m0, {s(S_MW)}, {(S % NSLOT)*SLOT}", f"s_mul_i32 {s(S_T3)}, {s(S_T3)}, {(32 if S < 16 else 64)*3072}"]
    return o + [dma((VW1 if S < 16 else VW2) + t, S_W, s(S_T3), t*1024, f"w{S}") for t in range(4)]
def code_warm():
    t = (f"    s_getpc_b64 s[78:79]\nL_pc:\n    s_sub_u32 s78, s78, L_pc-{NAME}_kernel\n    s_subb_u32 s79, s79, 0\n    s_lshr_b32 {s(S_T1)}, s2, 3\n"
         f"    s_lshl2_add_u32 {s(S_T1)}, {s(S_T1)}, {s(S_W4)}\n    s_lshl_b32 {s(S_T1)}, {s(S_T1)}, 8\n")
    t += "".join(f"    s_load_dword s{80+i}, s[78:79], {s(S_T1)} offset:{i*64}\n" for i in range(4))
    P.add(Raw(t))
if OPT["worder0"]:
    w0, x0 = w_dma(0), x_dma(0)
    P.add(w0[:6]); P.add(x0[:7]); P(f"s_add_u32 m0, {s(S_MW)}, 0"); P.add(w0[6:]); P(f"s_add_u32 m0, {s(S_MX)}, 0"); P.add(x0[7:])
else:
    P.add(x_dma(0)); P.add(w_dma(0))
if OPT["icat"] == -3: code_warm()
P.add(w_dma(1)); raw(5)
if OPT["icat"] == -2: code_warm()
P(f"""s_lshl_b32 {s(S_K)}, {s(S_ROT)}, 3
v_add_u32 {v(t2)}, {s(S_K)}, {v(V_LANE)}
v_and_b32 {v(t2)}, 63, {v(t2)}
v_lshlrev_b32 {v(t2)}, 4, {v(t2)}""")
P.add(srd(S_G, 16, 1024)); P(f"s_mov_b32 m0, {L_G}"); P.add(dma(t2, S_G, "0", 0, "w1"))
P.add(late_ids)
h_misc = lines(f"""
s_lshr_b32 {s(S_T0)}, {s(S_W4)}, 1
s_and_b32 {s(S_T1)}, {s(S_W4)}, 1
s_lshl_b32 {s(S_T0)}, {s(S_T0)}, 5
v_add_u32 {v(t0)}, {s(S_T0)}, {v(i3)}
v_mul_u32_u24 {v(t0)}, 0xc00, {v(t0)}
v_and_b32 {v(t1)}, 1, {v(i4)}
v_lshlrev_b32 {v(t1)}, 1, {v(t1)}
v_xor_b32 {v(t1)}, {v(t1)}, {v(p7)}
v_lshlrev_b32 {v(t1)}, 4, {v(t1)}
s_lshl_b32 {s(S_T0)}, {s(S_HG)}, 7
v_add3_u32 {v(VW2)}, {v(t0)}, {v(t1)}, {s(S_T0)}
v_xor_b32 {v(t1)}, 64, {v(t1)}
v_add3_u32 {v(VW2+1)}, {v(t0)}, {v(t1)}, {s(S_T0)}
v_add_u32 {v(VW2+2)}, {2*(24576 - 1024)}, {v(VW2)}
v_add_u32 {v(VW2+3)}, {3*(24576 - 1024)}, {v(VW2+1)}
v_add_u32 {v(VW2+1)}, {24576 - 1024}, {v(VW2+1)}
""") + srd(S_WS, 22, WS_SIZE) + srd(S_DBG, 20, 256)
P.add(h_misc)
if OPT["fine"] == 3:
    raw(6); P("s_waitcnt vmcnt(9)"); raw(7); P("s_waitcnt vmcnt(5)"); raw(8); P("s_waitcnt lgkmcnt(0)")
    for i in range(9):
        P(f"v_writelane_b32 {v(V_STAMP)}, s{68+2*i}, {i+1}")
    H.ns = 9
VWO, VKF, V1A, V1D, V_MB, V_HB = 160, 161, 162, 164, 12, 13
txt_of = lambda x: x.text if isinstance(x, Ins) else x
special_txt = []
def gather(tiles, special):
    o = []
    if 0 in tiles:
        o += [f"s_lshl_b32 {s(S_K)}, {s(S_HEAD)}, 17", f"s_lshl_b32 {s(S_T1)}, {s(S_RB)}, 12",
              f"s_add_u32 {s(S_T2)}, {s(S_K)}, {s(S_T1)}", f"s_sub_u32 {s(S_T2)}, {s(S_T2)}, {8*2048}"]
    for u in tiles:
        tag = "kv" if u < 4 or not OPT["t2"] else "kvb"
        o += [f"s_add_u32 {s(S_T0)}, {s(S_T2)}, {u*2048}", f"s_add_u32 m0, {s(S_MW)}, {u*KVS}"]
        if special:
            o += [f"s_cmp_ge_u32 {s(S_RB)}, {(8-u+1)//2}", f"s_cbranch_scc1 L_gk{u}",
                  dma(VKF, S_WS, s(S_K), 0, None, " sc1"), f"s_mov_b32 {s(S_T0)}, {WS_SIZE}", f"s_branch L_gk{u}e", f"L_gk{u}:",
                  dma(V_L16, S_WS, s(S_T0), 0, None, " sc1"), f"L_gk{u}e:"]
        else:
            o += [dma(V_L16, S_WS, s(S_T0), 0, tag, " sc1")]
        o += [dma(V_L16, S_WS, s(S_T0), 1024, tag, " sc1")]
    return o
def emit_gather(n, tiles):
    P(f"s_cmp_lt_u32 {s(S_RB)}, 4\ns_cbranch_scc1 L_gspecial{n}")
    P.add(gather(tiles, False)); P(f"L_gdone{n}:")
    special_txt.append(f"L_gspecial{n}:\n" + "\n".join(("" if txt_of(x).endswith(":") else "    ") + txt_of(x) for x in gather(tiles, True))
                       + f"\n    s_branch L_gdone{n}\n")
S_R3, S_WB, S_MA, S_MB = 24, 25, 30, 31
B0, B1, A0, A1, A2, A3, VOG, EXW, EXR, VOUT = 16, 17, 24, 25, 26, 27, 18, 20, 23, 19
ACC3, OFB, OFA, WBF = 32, 96, 192, 176
if OPT["icpf"] and OPT["icat"] == -1: code_warm()
issued_w, issued_x = 2, 1

for S in range(25):
    if S < 24:
        P.add(WaitTag(f"w{S}", f"x{S >> 1}" if S < 16 else "none"))
    if S < 20: P.add(WaitLds())
    P("s_barrier")
    if OPT["fine"] in (1, 2, 3) or S in (0, 16, 24): H.stamp()
    mark = len(P.items)
    top = {0: 3}.get(S, S + 4)
    if S in (14, 15, 16) and OPT["hold"]: top = min(top, 20 - OPT["hold"])
    while issued_w <= min(top, 23):
        if issued_w < 16 and issued_w % 2 == 0 and issued_x <= issued_w // 2:
            P.add(x_dma(issued_x)); issued_x += 1
        P.add(w_dma(issued_w)); issued_w += 1
    if OPT["icpf"] and S == OPT["icat"]: code_warm()
    if OPT["tlb"] and S in (3, 4, 5, 6):
        for i, (ptr, off) in enumerate({3: ((22, 0), (22, 1)), 4: ((22, 2), (22, 4)), 5: ((22, 3), (20, 0)), 6: ((18, 0),)}[S]):
            P.add(Raw(f"    s_mov_b32 {s(S_T1)}, {off << 21}\n    s_load_dword s{70+i}, {s(ptr,2)}, {s(S_T1)}"))
    if OPT["wopf"] and S in (8, 9, 10, 11):
        ptr, half = (14, 8)[(S - 8) >> 1], S & 1
        t = f"    s_lshl2_add_u32 {s(S_T1)}, s2, {s(S_W4)}\n    s_lshl_b32 {s(S_T1)}, {s(S_T1)}, 9\n"
        t += "".join(f"    s_load_dword s{73+i}, {s(ptr,2)}, {s(S_T1)} offset:{half*256+i*64}\n" for i in range(4))
        P.add(Raw(t))
    if S == 8: P(ep_load)
    if S == 14:
        P(f"""v_lshrrev_b32 v48, 5, {v(V_LANE)}
v_bfe_u32 v49, {v(V_LANE)}, 2, 2
v_lshl_add_u32 v48, v48, 2, v49
v_and_b32 v49, 2, v49
v_bfe_u32 v50, {v(V_LANE)}, 4, 1
v_xor_b32 v49, v49, v50
s_and_b32 {s(S_T1)}, {s(S_W4)}, 2
v_xor_b32 v49, {s(S_T1)}, v49
v_lshlrev_b32 v49, 5, v49
v_lshl_add_u32 v48, v48, 7, v49
v_and_b32 v49, 3, {v(V_LANE)}
v_lshl_add_u32 v48, v49, 3, v48
s_lshl_b32 {s(S_MX)}, {s(S_W4)}, 14
s_lshl_b32 {s(S_T0)}, {s(S_T1)}, 14
v_add_u32 {v(B0)}, {s(S_T0)}, v48
v_xor_b32 {v(B1)}, 64, {v(B0)}
v_xor_b32 v49, 64, v48
s_mul_i32 {s(S_T0)}, {s(S_T1)}, 6144
s_add_u32 {s(S_T0)}, {s(S_T0)}, {L_WA}
v_add_u32 {v(A0)}, {s(S_T0)}, v48
v_add_u32 {v(A1)}, {s(S_T0)}, v49
s_mul_i32 {s(S_T0)}, {s(S_T1)}, 10240
s_add_u32 {s(S_T0)}, {s(S_T0)}, {L_KV}
v_add_u32 {v(A2)}, {s(S_T0)}, v48
v_add_u32 {v(A3)}, {s(S_T0)}, v49
""")
    if S == 15:
        P(f"""s_lshl_b32 {s(S_T0)}, {s(S_W4)}, 12
v_add_u32 {v(EXR)}, {s(S_T0)}, {v(V_L16)}
v_xor_b32 {v(EXW)}, 0x2000, {v(EXR)}
v_and_b32 {v(VOUT)}, 31, {v(V_LANE)}
v_lshlrev_b32 {v(VOUT)}, 10, {v(VOUT)}
v_lshrrev_b32 v48, 5, {v(V_LANE)}
v_lshl_add_u32 {v(VOUT)}, v48, 4, {v(VOUT)}
s_and_b32 {s(S_T2)}, {s(S_W4)}, 1
s_lshl_b32 {s(S_T2)}, {s(S_T2)}, 15
s_lshl_b32 {s(S_T0)}, {s(S_RB3)}, 16
s_add_u32 {s(S_T0)}, {s(S_T0)}, {s(S_T2)}
s_lshl_b32 {s(S_T1)}, {s(S_CB)}, 7
s_add_u32 {s(S_T0)}, {s(S_T0)}, {s(S_T1)}
s_and_b32 {s(S_T1)}, {s(S_W4)}, 2
s_lshl_b32 {s(S_T1)}, {s(S_T1)}, 5
s_add_u32 {s(S_T0)}, {s(S_T0)}, {s(S_T1)}
v_add_u32 {v(VOUT)}, {s(S_T0)}, {v(VOUT)}
s_lshl_b32 {s(S_T0)}, {s(S_RB3)}, 17
s_add_u32 {s(S_T0)}, {s(S_T0)}, {s(S_T2)}
s_lshl_b32 {s(S_T1)}, {s(S_T1)}, 8
s_add_u32 {s(S_T0)}, {s(S_T0)}, {s(S_T1)}
s_add_u32 {s(S_T0)}, {s(S_T0)}, {WS_O}
v_add_u32 {v(VOG)}, {s(S_T0)}, {v(V_L16)}
s_lshl_b32 {s(S_WB)}, {s(S_W4)}, 17
s_lshl_b32 {s(S_T1)}, {s(S_CB)}, 7
s_add_u32 {s(S_WB)}, {s(S_WB)}, {s(S_T1)}
s_lshl3_add_u32 {s(S_R3)}, {s(S_RB3)}, {s(S_CB)}
s_and_b32 {s(S_T1)}, {s(S_W4)}, 2
s_lshl2_add_u32 {s(S_R3)}, {s(S_R3)}, {s(S_T1)}
s_lshl_b32 {s(S_R3)}, {s(S_R3)}, 6""")
    if S == OPT["kvs"]:
        tail = P.items[mark:]; del P.items[mark:]
        P.add(flag_store("none", "kv")); P.items += tail
    if S == 16:
        P("s_waitcnt lgkmcnt(0)")
        H.poll(f"v_cmp_ne_u64 vcc, 0, {v(EP,2)}", ep_load)
        P(f"v_readfirstlane_b32 {s(S_EP)}, {v(EP)}\nv_readfirstlane_b32 {s(S_EP+1)}, {v(EP+1)}")
    if S == 19:
        P.add(srd(S_WOA, 8, 524288) + srd(S_WOB, 14, 524288) + srd(S_OUT, 18, 2097152))
    if S == 20:
        P(f"""v_lshrrev_b32 v48, 3, {v(V_LANE)}
v_bfe_u32 v49, {v(V_LANE)}, 4, 1
v_lshlrev_b32 v49, 2, v49
v_and_b32 v50, 7, {v(V_LANE)}
v_xor_b32 v49, v49, v50
v_lshlrev_b32 v49, 4, v49
v_lshl_add_u32 {v(VWO)}, v48, 10, v49
v_and_b32 {v(VKF)}, 32, {v(V_LANE)}
v_lshlrev_b32 {v(VKF)}, 4, {v(VKF)}
v_mul_u32_u24 {v(V1A)}, {KVS}, v50
v_bfe_u32 v51, {v(V_LANE)}, 3, 1
v_lshl_add_u32 {v(V1A)}, v51, 4, {v(V1A)}
s_mul_i32 {s(S_MW)}, {s(S_W4)}, {KVH}
s_add_u32 {s(S_MW)}, {s(S_MW)}, {L_KV}
s_add_u32 {s(S_T0)}, {s(S_MW)}, 2048
v_add_u32 {v(V1A)}, {s(S_T0)}, {v(V1A)}
s_lshl_b32 {s(S_T0)}, {s(S_RB)}, 1
v_add_u32 v48, {s(S_T0)}, v50
v_cmp_le_u32 vcc, 8, v48
v_mov_b32 v49, {hex(ONES)}
v_cndmask_b32 {v(V1D)}, 0, v49, vcc
v_subrev_u32 v51, 1, v51
v_and_b32 {v(V1D)}, v51, {v(V1D)}
v_mov_b32 {v(V1D+1)}, {v(V1D)}
v_mov_b32 {v(V1D+2)}, {v(V1D)}
v_mov_b32 {v(V1D+3)}, {v(V1D)}
s_mul_i32 {s(S_MA)}, {s(S_W4)}, 6144
s_add_u32 {s(S_MA)}, {s(S_MA)}, {L_WA}
s_mul_i32 {s(S_MB)}, {s(S_W4)}, 10240
s_add_u32 {s(S_MB)}, {s(S_MB)}, {L_KV - 6144}
s_lshl_b32 {s(S_K)}, {s(S_HEAD)}, 5
s_add_u32 {s(S_K)}, {s(S_K)}, {s(S_RB)}
s_lshl_b32 {s(S_K)}, {s(S_K)}, 6
s_add_u32 {s(S_K)}, {s(S_K)}, {WS_FKV}""")
    if S == OPT["gat"] - 1 - OPT["pasy"]:
        H.spoll_issue(4, S_K)
    if S == OPT["gat"] - 1:
        H.spoll(4, S_K, ignore_from=S_RB)
        H.stamp()
    if S == OPT["sents"]:
        P.add([f"v_mov_b32 {v(172+i)}, -1" for i in range(4)])
        P.add(o_store(0, 1, 172, "sent")); P.add(o_store(0, 0, 172, "sent"))
    if S == 23:
        P(f"ds_write_b128 {v(V1A)}, {v(V1D,4)}")
    if S == 24: P.add(Pace(OPT["pace0"]))
    if S == OPT["gat"] + OPT["gdel"]:
        emit_gather(0, tuple(range(OPT['g0'])))
if OPT["p1only"]:
    H.finish()
fs = lambda: H.stamp() if OPT["fine"] == 4 else None
P(f"s_setprio {OPT['hprio']}")
emit_gather(1, tuple(range(OPT['g0'], 8)))
def wo_dma(br):
    o = []
    for t in range(16):
        base = S_MX if br else (S_MA if t < 6 else S_MB)
        g = [f"s_add_u32 m0, {s(base)}, {t*1024}", f"s_add_u32 {s(S_T3)}, {s(S_WB)}, {t*8192}"]
        o.append(g + [dma(VWO, S_WOB if br else S_WOA, s(S_T3), 0, "wob" if br else ("woa" if t < 6 else "woc"))])
    return o
woa, wob = wo_dma(0), wo_dma(1)
P.add(wob[:OPT["wb0"]])
P.add(WaitTag("kv")); P.add(WaitLds()); P("s_barrier")
H.stamp()
if OPT["t2"]: P.add(WaitTag("kvb")); P("s_barrier")
if OPT["sents"] == 25:
    P.add([f"v_mov_b32 {v(172+i)}, -1" for i in range(4)])
    P.add(o_store(0, 1, 172, "sent")); P.add(o_store(0, 0, 172, "sent"))
P.add(Pace(OPT["pace"]))
rest = wob[OPT["wb0"]:] + woa[:6]
if OPT["zbar"]:
    P.add(rest[:OPT["wz"]]); rest = rest[OPT["wz"]:]
    P("s_barrier"); fs(); P.add(flag_store("sent", "ob"))
P.add(rest)
fs()
def o_gather(br):
    o = []
    for hs in range(16):
        if hs % 4 == 0: o += [f"s_mov_b32 {s(S_T1)}, {br*65536 + hs*1024}"]
        o += [ws_ld(v((OFA, OFB)[br]+4*hs,4), VOG, s(S_T1), (hs & 3)*1024)]
    return o
def wo_read(dst, hs, br):
    h, j = hs >> 3, hs & 7
    base, off = ((B0, B1), hs*2048) if br else (((A0, A1), h*6144 + j*2048) if j < 3 else ((A2, A3), h*10240 + (j-3)*2048))
    return [f"ds_read_b64_tr_b16 {v(dst+4*ct+2*q,2)}, {v(base[ct])} offset:{off+q*1024}" for ct in range(2) for q in range(2)]
FIN = ACC3 + 32
def p3(Q, br, hook=lambda hs: None):
    Q.add(wo_read(WBF, 0, br))
    for hs in range(16):
        b = hs & 1
        rd = wo_read(WBF + 8*(1-b), hs + 1, br) if hs < 15 else []
        for ct in ((0, 1) if hs < 15 else (1, 0)):
            acc = v((FIN, ACC3)[br]+16*ct, 16)
            c = acc if hs else ("0" if br else v(ACC3+16*ct, 16))
            Q(mfma(acc, v(WBF+8*b+4*ct,4), v((OFA, OFB)[br]+4*hs,4), c))
            Q.add(rd[2*ct:2*ct+2])
        hook(hs)
def sentinel_scan(hs):
    base = OFA + 4*hs
    first = [f"v_max3_u32 {v(TMP)}, {v(base)}, {v(base+1)}, {v(base+1)}"] if hs == 0 else [f"v_max3_u32 {v(TMP)}, {v(TMP)}, {v(base)}, {v(base+1)}"]
    return first + [f"v_max3_u32 {v(TMP)}, {v(TMP)}, {v(base+2)}, {v(base+3)}"]
P(f"s_add_u32 {s(S_K)}, {s(S_R3)}, {WS_FOB}")
P.add(WaitTag("wob")); P("s_barrier"); fs()
if not OPT["zbar"]: P.add(flag_store("sent", "ob"))
P.add(woa[6:11]); H.spoll_issue(16, S_K); P.add(woa[11:]); fs()
H.spoll(16, S_K); H.stamp()
P.add(o_gather(1)); fs()
P(f"s_setprio {OPT['p3prio']}")
p3(P, 1)
H.stamp()
P.add(WaitTag("woa", "woc")); P("s_barrier"); fs()
P.add(o_gather(0))
test = [f"v_cmp_ne_u32 vcc, -1, {v(TMP)}", "s_cmp_eq_u64 vcc, -1"]
p3(P, 0, lambda hs: P.add(sentinel_scan(hs)))
P.add(test); P("s_cbranch_scc0 L_retry\nL_ok:")
Q = Prog()
Q(f"L_retry:\ns_mov_b32 {s(S_SPIN)}, 0x20000\ns_nop 15\nL_again:"); Q.add(o_gather(0))
Q(f"s_sub_u32 {s(S_SPIN)}, {s(S_SPIN)}, 1\ns_waitcnt vmcnt(0)\ns_cbranch_scc1 L_redo")
for hs in range(16): Q.add(sentinel_scan(hs))
Q.add(test); Q("s_cbranch_scc0 L_again\nL_redo:")
p3(Q, 0); Q("s_nop 15\ns_branch L_ok")
retry_txt = [finalize(Q)]
H.stamp()
P.add([f"ds_write_b128 {v(EXW)}, {v(FIN+16+4*q,4)} offset:{q*1024}" for q in range(4)])
P.add(WaitLds()); P("s_barrier")
P.add([f"ds_read_b128 {v(OFB+4*q,4)}, {v(EXR)} offset:{q*1024}" for q in range(4)])
for hf in range(2):
    P.add([f"v_pk_add_f32 {v(FIN+8*hf+2*i,2)}, {v(FIN+8*hf+2*i,2)}, {v(OFB+8*hf+2*i,2)}" for i in range(4)])
    P.add([f"v_cvt_pk_bf16_f32 {v(WBF+4*hf+i)}, {v(FIN+8*hf+2*i)}, {v(FIN+8*hf+2*i+1)}" for i in (0, 2, 1, 3)])
    P(f"v_permlane32_swap_b32 {v(WBF+4*hf)}, {v(WBF+4*hf+2)}\nv_permlane32_swap_b32 {v(WBF+4*hf+1)}, {v(WBF+4*hf+3)}")
    P(f"buffer_store_dwordx4 {v(WBF+4*hf,4)}, {v(VOUT)}, {s(S_OUT,4)}, 0 offen{' offset:32' if hf else ''}{('', ' sc1', ' nt', ' sc0 sc1')[OPT['outsc']]}")
H.stamp()
H.finish()

C = Role("C"); P = C.P
T1, T3, T2 = 32, 64, 96
XB, WB = 128, 160
V_AX, V_P0L, V_P0H, V_P1L, V_P1H, V_T2L, V_T2H = 192, 194, 195, 196, 197, 198, 199
V_LO, V_HI, V_CMR = 200, 201, 202
VPK = 224
r5, hh, rr, cc, nh, u0, u1, cm, g4 = 128, 129, 130, 131, 132, 133, 134, 135, 140
P("L_crole:")
P.add(late_ids)
if OPT["prio"]: P("s_setprio 1")
P(f"""
v_and_b32 {v(r5)}, 31, {v(V_LANE)}
v_lshrrev_b32 {v(hh)}, 5, {v(V_LANE)}
v_lshrrev_b32 {v(g4)}, 4, {v(V_LANE)}
v_and_b32 {v(u1)}, 15, {v(V_LANE)}
v_lshrrev_b32 {v(u0)}, 1, {v(u1)}
v_xor_b32 {v(u0)}, {v(u0)}, {v(g4)}
v_lshlrev_b32 {v(u0)}, 4, {v(u0)}
v_lshl_add_u32 {v(u0)}, {v(u1)}, 7, {v(u0)}
v_add_u32 {v(V_AX)}, {L_X}, {v(u0)}
v_xor_b32 {v(V_AX+1)}, 64, {v(V_AX)}
v_bfe_u32 {v(rr)}, {v(V_LANE)}, 2, 2
v_and_b32 {v(cc)}, 3, {v(V_LANE)}
v_and_b32 {v(nh)}, 1, {v(g4)}
v_lshl_add_u32 {v(u0)}, {v(g4)}, 3, {v(rr)}
v_xor_b32 {v(u1)}, {s(S_W4)}, {v(rr)}
v_lshlrev_b32 {v(u1)}, 5, {v(u1)}
v_lshl_add_u32 {v(u1)}, {v(cc)}, 3, {v(u1)}
v_lshl_add_u32 {v(u1)}, {v(u0)}, 8, {v(u1)}
v_lshl_add_u32 {v(V_P0L)}, {v(nh)}, 7, {v(u1)}
v_add_u32 {v(V_P0H)}, 0x10000, {v(V_P0L)}
v_xor_b32 {v(V_P1L)}, 0x80, {v(V_P0L)}
v_xor_b32 {v(V_P1H)}, 0x80, {v(V_P0H)}
v_lshrrev_b32 {v(u1)}, 1, {v(rr)}
v_lshl_add_u32 {v(u1)}, {v(nh)}, 1, {v(u1)}
v_xor_b32 {v(u1)}, {s(S_W4)}, {v(u1)}
v_lshlrev_b32 {v(u1)}, 5, {v(u1)}
v_lshl_add_u32 {v(u1)}, {v(cc)}, 3, {v(u1)}
v_lshl_add_u32 {v(V_T2L)}, {v(u0)}, 7, {v(u1)}
v_add_u32 {v(V_T2H)}, 0x10000, {v(V_T2L)}
v_and_b32 {v(u0)}, 15, {v(V_LANE)}
v_lshlrev_b32 {v(u0)}, 4, {v(u0)}
v_lshl_add_u32 {v(u0)}, {v(hh)}, 8, {v(u0)}
v_lshl_add_u32 {v(V_LO)}, {v(nh)}, 31, {v(u0)}
v_xor_b32 {v(V_HI)}, {OOB}, {v(V_LO)}
v_lshlrev_b32 {v(u0)}, 2, {v(hh)}
v_sub_u32 {v(cm)}, {v(r5)}, {v(u0)}
v_sub_u32 {v(u0)}, 32, {v(cm)}
v_mov_b32 {v(u1)}, {hex(~0x55540001 & 0xffffffff)}
v_alignbit_b32 {v(V_CMR)}, {v(u1)}, {v(u1)}, {v(u0)}
s_waitcnt lgkmcnt(0)""")
if OPT["wsoff"]: P(f"s_add_u32 s22, s22, {OPT['wsoff'] << 20}\ns_addc_u32 s23, s23, 0")
P.add(entry_stamp())
P(f"""s_memrealtime {s(S_TM,2)}
s_mov_b32 {s(S_C)}, {fhex(QK_SCALE)}
s_mov_b32 {s(S_C+1)}, {fhex(QK_SCALE)}
""")
def l2_prefetch():
    a, b = 140, 141
    o = lines(f"""s_lshr_b32 {s(S_T0)}, s2, 3
s_and_b32 {s(S_T1)}, {s(S_HG)}, 4
s_lshl_b32 {s(S_T1)}, {s(S_T1)}, 7
v_and_b32 {v(a)}, 3, {v(V_LANE)}
v_lshlrev_b32 {v(a)}, 7, {v(a)}
s_cmp_eq_u32 {s(S_W4)}, 2
s_cbranch_scc1 L_pfx
s_cmp_eq_u32 {s(S_W4)}, 3
s_cbranch_scc1 L_pfq
s_cmp_eq_u32 {s(S_W4)}, 0
s_cselect_b32 {s(S_W)}, s6, s12
s_cselect_b32 {s(S_W+1)}, s7, s13
s_mov_b32 {s(S_W+2)}, 1572864
s_mov_b32 {s(S_W+3)}, 0x20000
v_bfe_u32 {v(b)}, {v(V_LANE)}, 2, 1
v_lshl_add_u32 {v(a)}, {v(b)}, 10, {v(a)}
v_lshrrev_b32 {v(b)}, 3, {v(V_LANE)}
v_mul_u32_u24 {v(b)}, 0xc00, {v(b)}
v_add_u32 {v(a)}, {v(a)}, {v(b)}
s_mul_i32 {s(S_T0)}, {s(S_T0)}, {8*3072}
s_add_u32 {s(S_T0)}, {s(S_T0)}, {s(S_T1)}
s_add_u32 {s(S_T0)}, {s(S_T0)}, 1024
buffer_load_dword v190, {v(a)}, {s(S_W,4)}, {s(S_T0)} offen
s_add_u32 {s(S_T0)}, {s(S_T0)}, {256*3072}
buffer_load_dword v191, {v(a)}, {s(S_W,4)}, {s(S_T0)} offen
s_branch L_pfe
L_pfx:
s_mov_b32 {s(S_W)}, s4
s_mov_b32 {s(S_W+1)}, s5
s_mov_b32 {s(S_W+2)}, 2097152
s_mov_b32 {s(S_W+3)}, 0x20000
v_lshrrev_b32 {v(b)}, 2, {v(V_LANE)}
v_lshl_add_u32 {v(a)}, {v(b)}, 10, {v(a)}
s_lshl_b32 {s(S_T0)}, {s(S_T0)}, 14
s_and_b32 {s(S_T1)}, {s(S_RB)}, 24
s_lshl_b32 {s(S_T1)}, {s(S_T1)}, 16
s_add_u32 {s(S_T0)}, {s(S_T0)}, {s(S_T1)}
buffer_load_dword v190, {v(a)}, {s(S_W,4)}, {s(S_T0)} offen
buffer_load_dword v191, {v(a)}, {s(S_W,4)}, {s(S_T0)} offen offset:512
s_branch L_pfe
L_pfq:
s_mov_b32 {s(S_W)}, s6
s_mov_b32 {s(S_W+1)}, s7
s_mov_b32 {s(S_W+2)}, 1572864
s_mov_b32 {s(S_W+3)}, 0x20000
v_lshrrev_b32 {v(b)}, 2, {v(V_LANE)}
v_mul_u32_u24 {v(b)}, 0xc00, {v(b)}
v_add_u32 {v(a)}, {v(a)}, {v(b)}
s_mul_i32 {s(S_T0)}, {s(S_T0)}, {16*3072}
s_add_u32 {s(S_T0)}, {s(S_T0)}, {s(S_T1)}
buffer_load_dword v190, {v(a)}, {s(S_W,4)}, {s(S_T0)} offen
s_mov_b32 {s(S_W)}, s12
s_mov_b32 {s(S_W+1)}, s13
buffer_load_dword v191, {v(a)}, {s(S_W,4)}, {s(S_T0)} offen
L_pfe:""")
    P.add(Raw("\n".join(("" if l.endswith(":") else "    ") + l for l in o)))
    P("s_nop 0")
if OPT["pf"] == 1: l2_prefetch()
P.add(srd(S_WS, 22, WS_SIZE) + srd(S_DBG, 20, 256))
P(f"""s_cmp_eq_u32 s2, 0
s_cselect_b32 {s(S_T2)}, 0, {OOB}
v_lshlrev_b32 v5, 8, v0
v_or_b32 v5, {s(S_T2)}, v5
s_waitcnt lgkmcnt(0)
v_mov_b32 {v(EP)}, {s(S_TM)}
v_mov_b32 {v(EP+1)}, {s(S_TM+1)}
buffer_store_dwordx2 {v(EP,2)}, v5, {s(S_DBG,4)}, 0 offen sc1""")
V_AXW, V_AG, V_GPW, V_GPR, XW, GF, GACC = 4, 8, 9, 13, 240, 248, 204
P(f"""s_lshl_b32 {s(S_T2)}, {s(S_W4)}, 11
v_add_u32 {v(V_AXW)}, {s(S_T2)}, {v(V_AX)}
v_add_u32 {v(V_AXW+1)}, {s(S_T2)}, {v(V_AX+1)}
v_lshlrev_b32 {v(V_AG)}, 4, {v(g4)}
v_add_u32 {v(V_AG)}, {L_G}, {v(V_AG)}
v_lshlrev_b32 {v(V_GPR)}, 2, {v(r5)}
v_add_u32 {v(V_GPR)}, {L_GP}, {v(V_GPR)}
v_and_b32 {v(u0)}, 15, {v(V_LANE)}
s_lshl_b32 {s(S_T2)}, {s(S_W4)}, 6
s_add_u32 {s(S_T2)}, {s(S_T2)}, {L_GP}
v_lshl_add_u32 {v(V_GPW)}, {v(u0)}, 2, {s(S_T2)}""")
def x_warm(js):
    t = (f"    s_lshl2_add_u32 {s(S_T0)}, s2, {s(S_W4)}\n    s_lshr_b32 {s(S_T1)}, {s(S_T0)}, 5\n    s_lshl_b32 {s(S_T0)}, {s(S_T0)}, 11\n")
    for j in js:
        t += f"    s_add_u32 {s(S_K)}, {s(S_T1)}, {j}\n    s_and_b32 {s(S_K)}, {s(S_K)}, 7\n    s_lshl_b32 {s(S_K)}, {s(S_K)}, 7\n    s_add_u32 {s(S_K)}, {s(S_K)}, {s(S_T0)}\n"
        t += "".join(f"    s_load_dword s{28+i}, s[4:5], {s(S_K)} offset:{(i >> 1)*1024 + (i & 1)*64}\n" for i in range(4))
    P.add(Raw(t))
if OPT["xwarm"] == 1: x_warm((1, 2, 3))
P.add(attn_setup(0, 136))
if OPT["xwarm"] == 2: x_warm((1, 2, 3))
if OPT["xwarm"]:
    P("s_waitcnt lgkmcnt(0)"); x_warm((4, 5, 6)); P("s_waitcnt lgkmcnt(0)"); x_warm((7,)); P("s_waitcnt lgkmcnt(0)")
C.stamp()

CM, QB, KB, VB, KBH, VBH, BP, BPL, BPK, SENT, S_R0 = 176, 248, 240, 32, 80, 84, 192, 88, 88, 220, 24
BS2, BSP2, BO2 = (96, 48), (128, 112), (160, 144)
def b_scores(t):
    kprev = v(KB, 4) if t == 1 else v(KBH, 4)
    return [mfma(v(BS2[t],16), v(KB+4*t,4), v(QB+4*t,4), v(CM,16)), mfma(v(BSP2[t],16), kprev, v(QB+4*t,4), v(CM,16))]
def b_softmax(t):
    S, sp, m, p, pl = BS2[t], BSP2[t], TMP + 2*t, BP + 8*t, BPL + 4*t
    o = [f"v_cndmask_b32 {v(S+q)}, {v(S+q)}, {v(sp+q)}, {s(S_LO16,2)}" for q in range(8, 16)]
    if t == 0:
        o += [f"v_mov_b32 {v(m)}, {hex(NEG_BIG)}"]
        o += [f"v_cndmask_b32 {v(S+q)}, {v(S+q)}, {v(m)}, {s(S_R0,2)}" for q in range(8, 16)]
    o += max_tree(m, range(S, S+16)) + cross_max(m, m+1)
    o += [f"v_pk_add_f32 {v(S+2*q,2)}, {v(S+2*q,2)}, {v(m,2)} op_sel_hi:[1,0] neg_lo:[0,1] neg_hi:[0,1]" for q in range(8)]
    o += [f"v_exp_f32 {v(S+q)}, {v(S+q)}" for q in range(16)]
    o += [f"v_cvt_pk_bf16_f32 {v(p+i)}, {v(S+2*i)}, {v(S+2*i+1)}" for i in range(8)]
    o += [f"v_cndmask_b32 {v(pl+i)}, 0, {v(p+4+i)}, {s(S_LO16,2)}" for i in range(4)]
    o += [f"v_cndmask_b32 {v(p+4+i)}, {v(p+4+i)}, 0, {s(S_LO16,2)}" for i in range(4)]
    return o
def b_pv(t):
    vprev, acc, p = v(VB+4, 4) if t == 1 else v(VBH, 4), v(BO2[t], 16), BP + 8*t
    return [mfma(acc, v(VB+8*t,4), v(p,4), "0"), mfma(acc, v(VB+8*t+4,4), v(p+4,4), acc), mfma(acc, vprev, v(BPL+4*t,4), acc)]
def b_pack(t):
    f = 200 + 2*t
    return o_pack(BO2[t], 8, 0, [f"v_sub_f32 {v(f+1)}, 1.0, {v(G0+t)}", f"v_mul_f32 {v(f)}, {v(f)}, {v(f+1)}"], BPK+4*t, f)
def frag_reads(n):
    b, m = n & 1, n & 15
    j, u2 = m >> 1, m & 1
    base = (stage_of(n) % NSLOT) * SLOT
    hi = base >= 65536; off = base - (65536 if hi else 0)
    x = [f"ds_read_b128 {v(XB+16*b+4*tg,4)}, {v(V_AX+u2)} offset:{j*8192+tg*2048}" for tg in range(4)]
    if n < 16:
        w = [f"ds_read_b64_tr_b16 {v(WB+16*b+4*f+2*qd,2)}, {v(((V_P0L,V_P0H),(V_P1L,V_P1H))[pos][hi])} offset:{off+M*8192+qd*1024}"
             for f, (M, pos) in enumerate(((0, 0), (1, 1), (0, 1), (1, 0))) for qd in range(2)]
        return w[0:2] + x[0:2] + w[2:4] + x[2:4] + w[4:8]
    w = [f"ds_read_b64_tr_b16 {v(WB+8*b+4*M+2*qd,2)}, {v((V_T2L,V_T2H)[hi])} offset:{off+M*8192+u2*4096+qd*512}" for M in range(2) for qd in range(2)]
    return w[0:2] + x[0:2] + w[2:4] + x[2:4]
def step_mfmas(n):
    b = n & 1
    x = lambda tg: v(XB+16*b+4*tg, 4)
    c = lambda r: "0" if n in (0, 16) else v(r, 4)
    kq = lambda T, wbase: [mfma16(v(T+16*f+4*tg,4), v(wbase+4*f,4), x(tg), c(T+16*f+4*tg)) for hf in range(2) for f in range(2) for tg in (2*hf, 2*hf+1)]
    if n < 16:
        return kq(T1, WB+16*b) + [mfma16(v(T3+16*f+4*tg,4), x(tg), v(WB+16*b+8+4*f,4), c(T3+16*f+4*tg)) for f in range(2) for tg in range(4)]
    return kq(T2, WB+8*b)
def kq_frag(dst, T, tt, scale):
    a = T + 8*tt
    o = [f"v_pk_mul_f32 {v(a+2*i,2)}, {v(a+2*i,2)}, {s(S_C,2)}" for i in range(4)] if scale else []
    o += [f"v_cvt_pk_bf16_f32 {v(dst+i)}, {v(a+2*i)}, {v(a+2*i+1)}" for i in (0, 2, 1, 3)]
    return o, [f"v_permlane16_swap_b32 {v(dst+i)}, {v(dst+2+i)}" for i in range(2)]
def v_frag(tg):
    d = VPK + 4*tg
    o = [f"v_cvt_pk_bf16_f32 {v(d+2*f+i)}, {v(T3+16*f+4*tg+2*i)}, {v(T3+16*f+4*tg+2*i+1)}" for i in range(2) for f in range(2)]
    return o, [f"v_permlane16_swap_b32 {v(d+i)}, {v(d+2+i)}" for i in range(2)], [f"v_permlane32_swap_b32 {v(d+i)}, {v(d+2+i)}" for i in range(2)]
def kv_publish():
    o = [f"s_lshl_b32 {s(S_T0)}, {s(S_HEAD)}, 17", f"s_lshl_b32 {s(S_T1)}, {s(S_RB)}, 12", f"s_add_u32 {s(S_T0)}, {s(S_T0)}, {s(S_T1)}"]
    k = [kq_frag(KA+4*tt, T1, tt, True) for tt in range(2)]
    o += k[0][0] + k[1][0] + k[0][1] + k[1][1] + [ws_st(v(KA+4*tt,4), V_L16, s(S_T0), tt*2048, "kv") for tt in range(2)]
    for tt in range(2):
        f = [v_frag(2*tt + m) for m in range(2)]
        o += f[0][0] + f[1][0] + f[0][1] + f[1][1] + f[0][2] + f[1][2]
        o += [ws_st(v(VPK+8*tt+4*m,4), V_LO, s(S_T0), tt*2048+1024+m*512, "kv") for m in range(2)]
    o += [f"s_lshl_b32 {s(S_T0)}, {s(S_HEAD)}, 15", f"s_lshl_b32 {s(S_T1)}, {s(S_RB)}, 10",
          f"s_add_u32 {s(S_T0)}, {s(S_T0)}, {s(S_T1)}", f"s_add_u32 {s(S_T0)}, {s(S_T0)}, {WS_HB}",
          ws_st(v(VPK+12,4), V_HI, s(S_T0), 512, "kv")]
    k = [kq_frag(KB+4*tt, T1+16, tt, True) for tt in range(2)]
    o += k[1][0] + k[0][0] + k[1][1] + [ws_st(v(KB+4,4), V_HI, s(S_T0), 0, "kv")] + k[0][1]
    return o

if OPT["p1only"]:
    P("s_barrier\n" * 25 + "s_endpgm")
P("s_barrier")
C.stamp()
P.add(frag_reads(0))
queue = []
gf = gate_finish(V_GPR, 88)
qb0, qb1, qa0, qa1 = kq_frag(QB, T2+16, 0, False), kq_frag(QB+4, T2+16, 1, False), kq_frag(QA, T2, 0, False), kq_frag(QA1, T2, 1, False)
for n in range(32):
    mf = step_mfmas(n)
    sync = first_of_stage(n + 1) or n == 31
    nxt_stage = stage_of(n + 1) if n < 31 else 24
    rd = frag_reads(n + 1) if n < 31 else []
    if n < 16:
        m, gb = (n + 1) & 15, (n + 1) & 1
        rd = rd + [f"ds_read_b128 {v(GF+4*gb,4)}, {v(V_AG)} offset:{m*64}", f"ds_read_b128 {v(XW+4*gb,4)}, {v(V_AXW+gb)} offset:{(m >> 1)*8192}"]
    gm = [mfma16(v(GACC,4), v(GF+4*(n&1),4), v(XW+4*(n&1),4), "0" if n == 1 else v(GACC,4))] if 1 <= n <= 16 else []
    late = []
    if n == 15:
        pub = kv_publish()
        if OPT["early"]:
            late, pub = pub[:25], pub[25:]
            mf = [mf[i] for i in (0, 1, 4, 5, 8, 9, 10, 11, 12, 13, 14, 15, 2, 3, 6, 7)]
    if n == 16: queue += pub
    if n == 31 and OPT["early"]:
        mf = [mf[i] for i in (2, 3, 6, 7, 0, 1, 4, 5)]
        late = gf[2:] + qb0[0] + qb1[0] + qb0[1] + qb1[1]
    if n == 21:
        queue += [f"v_and_b32 {v(TMP)}, 11, {v(V_LANE)}", f"v_mov_b32 {v(TMP+1)}, {hex(ONES)}", f"v_cmp_eq_u32 vcc, 0, {v(TMP)}",
                  f"v_cndmask_b32 {v(TMP)}, 0, {v(TMP+1)}, vcc", f"v_mov_b32 {v(TMP+1)}, {hex(NEG_BIG)}"]
        queue += [f"v_mov_b32 {v(VBH+i)}, {v(TMP)}" for i in range(4)]
        queue += [f"v_cndmask_b32 {v(VB+i)}, {v(VPK+i)}, {v(TMP)}, {s(S_LO16,2)}" for i in range(16)]
        queue += [f"v_cndmask_b32 {v(VA+i)}, {v(TMP)}, {v(VPK+i)}, {s(S_LO16,2)}" for i in range(16)]
        queue += [f"v_cndmask_b32 {v(CMA+q)}, {v(TMP+1)}, 0, {s(S_MASK+2*q,2)}" for q in range(16)]
        queue += [f"v_bfe_i32 {v(CM+q)}, {v(V_CMR)}, {8*(q>>2)+(q&3)}, 1" for q in range(16)]
        queue += [f"v_and_b32 {v(CM+q)}, {v(TMP+1)}, {v(CM+q)}" for q in range(16)]
    if n == 16: mf = mf[:2] + gm + mf[2:]
    else: mf = mf + gm
    post = []
    pre = []
    if sync and nxt_stage == 23:
        (pre if OPT["gpre"] else post).append(f"ds_write_b32 {v(V_GPW)}, {v(GACC)}")
    if sync and nxt_stage == OPT["gat"]:
        rd = rd + [lines(f"""s_lshl_b32 {s(S_T0)}, {s(S_HEAD)}, 15
s_lshl_b32 {s(S_T1)}, {s(S_RB)}, 10
s_add_u32 {s(S_T0)}, {s(S_T0)}, {s(S_T1)}
s_add_u32 {s(S_T0)}, {s(S_T0)}, {WS_HB - 1024}
s_cmp_eq_u32 {s(S_RB)}, 0
s_cselect_b32 {s(S_T0)}, {WS_SIZE}, {s(S_T0)}
s_cselect_b64 {s(S_R0,2)}, {s(S_LO16,2)}, 0""") + [ws_ld(v(KBH,4), V_HI, s(S_T0)), f"s_not_b64 exec, {s(S_LO16,2)}",
                 ws_ld(v(VBH,4), V_HI, s(S_T0), 512), "s_mov_b64 exec, -1"]]
    if n == 31: post += gf[:2]
    take = 8 if n < 16 else (OPT["take"] if n < 21 else OPT["take2"])
    side = queue[:take]; queue = queue[take:]
    P.add(pre); P(mf[0]); P(mf[1])
    if sync:
        if nxt_stage == OPT["kvs"]: P.add(WaitTag("kv")); C.stamp()
        P.add(WaitLds()); P("s_barrier")
        if OPT["fine"] in (1, 2, 3): C.stamp()
    P.add(post)
    body, k = rd, len(mf) - 2
    nr = max(1, k - (4 if n < 16 else 2))
    for i in range(k + 1):
        lo, hi_ = len(body) * i // nr, len(body) * (i + 1) // nr
        if i < nr: P.add(body[lo:hi_])
        slo, shi = len(side) * i // (k + 1), len(side) * (i + 1) // (k + 1)
        P.add(side[slo:shi])
        i0 = 7 if n == 15 else 2
        if late and i >= i0: P.add(late[len(late) * (i - i0) // (k + 1 - i0):len(late) * (i - i0 + 1) // (k + 1 - i0)])
        if i < k: P(mf[2 + i])
    if n == 15 or (OPT["fine"] == 6 and n < 31): C.stamp()
assert not queue
C.stamp()
sc = interleave(b_scores(0), b_scores(1))
if OPT["early"]:
    P(sc[1]); P.add(qa0[0]); P(sc[2]); P.add(qa1[0]); P(sc[0]); P.add(qa0[1] + qa1[1]); P(sc[3])
else:
    P.add(gf[2:]); P.add(qb0[0] + qa0[0] + qb0[1] + qb1[0] + qa1[0])
    P(sc[2]); P.add(qb1[1] + qa0[1]); P(sc[0]); P.add(qa1[1]); P(sc[1]); P(sc[3])
s1, s0 = b_softmax(1), b_softmax(0)
P.add(s0[:9])
sm = interleave(s0[9:], s1)
P.add(sm[:-16])
pv = interleave(b_pv(0), b_pv(1))
P(mfma(v(MG+16,16), v(KA+4,4), v(QA1,4), v(CMA,16))); P.add(sm[-16:-10]); P(mfma(v(MG,16), v(KA,4), v(QA,4), v(CMA,16))); P.add(sm[-10:])
mx = interleave(*[max_tree((TMP, TMP+2)[t], range(MG+16*t, MG+16*t+16)) + cross_max((TMP, TMP+2)[t], (TMP, TMP+2)[t]+1) for t in (1, 0)])
for i, m in enumerate(pv):
    P(m); P.add(mx[4*i:4*i+4])
ng = [[f"v_pk_add_f32 {v(NEGM+16*t+2*i,2)}, 0, {v((TMP, TMP+2)[t],2)} op_sel_hi:[0,0] neg_lo:[0,1] neg_hi:[0,1]" for i in range(8)] for t in range(2)]
P.add(ng[0])
BPK = 192
P.add(interleave(b_pack(0), b_pack(1)))
P.add(o_store(1, 0, BPK, "ob")); P.add(o_store(1, 1, BPK+4, "ob"))
P.add(ng[1])
C.stamp()
cs = lambda: C.stamp() if OPT["fine"] == 4 else None
cev = {("e1" if OPT["xhs"] < 0 else OPT["xhs"]): lambda: (P.add(WaitTag("ob")) if OPT["f2by"] else None, P.add(WaitLds()), P("s_barrier"))}
if not OPT["f2by"]: cev["e1" if OPT["f2hs"] < 0 else OPT["f2hs"]] = lambda: (cs(), P.add(flag_store("ob", "ob")), cs())
if OPT["zbar"]: cev[("e1", 0, 1)[OPT["zbar"] - 1]] = lambda: (P.add(WaitTag("ob")), P("s_barrier"))
window_attention(C, cev)
P.add(interleave(*[o_pack(OACC2[t], 0, 8, [f"v_mul_f32 {v(TMP+t)}, {v(TMP+t)}, {v(G0+t)}"], PF+4*t, TMP+t) for t in (1, 0)]))
P.add(o_store(0, 1, PF+4, "oa")); P.add(o_store(0, 0, PF, "oa"))
C.stamp()
C.finish()

full = Prog(); full.items = E.items + H.P.items
bodyH = finalize(full, verbose=True)
full = Prog(); full.items = [Ins("s_load_dwordx16 s[4:19], s[0:1], 0"), Ins("global_load_dword v13, v5, s[96:97]")] + C.P.items
bodyC = "\n".join(finalize(full, verbose=True).split("\n")[2:])
print("stamps H", H.ns, "C", C.ns)
hdr = open("cdna_kernels/%s.s.ref" % NAME).read().split("; Override launch")[0]
if OPT["stamps"]: hdr += f"; stamps {C.ns} {H.ns}\n"
txt = hdr + f"""; Single launch, 256 workgroups x 8 waves, one workgroup per CU (4 heads x 64 rows of both branches).
;   waves 0-3: QKV projection (one head each), dilated attention, sliding-window attention
;   waves 4-7: LDS-DMA streaming of x / weights / key-value tiles, then one 64x64 tile of the output projection
; Hand-offs between workgroups go through d_ws with write-through stores; flags carry a per-launch epoch published
; through d_debug, and the windowed-branch result slots are first filled with all-ones and re-read until overwritten.
; Window softmax: the shift is the maximum over the diagonal key tile; if a sum or output leaves the safe range the
; tile is recomputed with the true row maximum (L_exact0 / L_exact1).
; @launch grid=(256,1,1) block=(512,1,1) lds={LDS_BYTES}
.amdgcn_target "amdgcn-amd-amdhsa--gfx950"
.text
.globl {NAME}_kernel
.p2align 12
.p2align 8
.type {NAME}_kernel,@function
{NAME}_kernel:
{bodyH}{bodyC}L_end:
    s_endpgm
{''.join(retry_txt)}{''.join(special_txt)}{slow_path()}    .fill 3072, 4, 0xbf800000
.section .rodata,"a"
.p2align 6
.amdhsa_kernel {NAME}_kernel
  .amdhsa_next_free_vgpr 256
  .amdhsa_next_free_sgpr 102
  .amdhsa_accum_offset {192 if OPT['xp'] == 8 else 256}
  .amdhsa_group_segment_fixed_size 0
  .amdhsa_kernarg_size 80
  .amdhsa_user_sgpr_count 2
  .amdhsa_user_sgpr_kernarg_segment_ptr 1
  .amdhsa_system_sgpr_workgroup_id_x 1
.end_amdhsa_kernel
"""
open(sys.argv[1], "w").write(txt)
```

```python
import sys, math, struct
from asmdsl import Prog, Ins, WaitTag, WaitLds, Raw, Pace, finalize

NAME = "gated_mix__sliding_block__sliding_local_dilated__prompt"
OPT = dict(icat=-2, tlb0=0, worder0=0, g0=2, deep=0, xwarm=0, hgmap=0, hold=0, sents=21, pasy=1, gpre=1, take2=16, t2=0, rtail=1, dfl=0, kvs=19, bsplit=0, pace=0, pace0=0, pacez=0, gat=23, gdel=0, f2hs=-1, f2by=1, wb0=4, zbar=3, wz=18, probe=0, amode=0, worder=0, xhs=3, hprio=2, p3prio=0, wopf=1, tlb=1, icpf=1, cpf=0, take=96, early=1, kvflag=42, pubat=32, prio=1, barpos=0,
           xmap=3, rotmode=4, rotmask=7, outsc=0, stamps=0, fine=0, rt=0, xp=0, wsoff=0, amp=-1, ampk=8, amprole=1, ampclk=0, p1only=0, pf=0)
for a in sys.argv[2:]:
    k, v_ = a.split("="); assert k in OPT, k; OPT[k] = int(v_)

WS_KV, WS_HB, WS_O = 0, 4 << 20, 5 << 20
WS_FKV, WS_FOB, WS_FOA = 9 << 20, (9 << 20) + 65536, (9 << 20) + 131072
WS_STAMP, WS_SIZE = 10 << 20, 16 << 20
OOB = 0x80000000
NSLOT, SLOT = 5, 16384
L_X, L_WA, L_G, L_GP, LDS_BYTES = 81920, 132096, 156672, 157696, 158720
KVH, KVS, L_KV, L_WO = 2080, 4 * 2080, 65536, 0
QK_SCALE = 0.25 * math.log2(math.e)
NEG_BIG, ONES = 0xf149f2ca, 0x3f803f80

def fhex(x): return "0x%08x" % struct.unpack("<I", struct.pack("<f", x))[0]
def v(a, n=1): return f"v{a}" if n == 1 else f"v[{a}:{a+n-1}]"
def s(a, n=1): return f"s{a}" if n == 1 else f"s[{a}:{a+n-1}]"
def lines(t): return [l.strip() for l in t.strip().split("\n") if l.strip()]
def mfma(d, a, b, c): return f"v_mfma_f32_32x32x16_bf16 {d}, {a}, {b}, {c}"
def srd(base, ptr, nbytes):
    return [f"s_mov_b32 {s(base)}, {s(ptr)}", f"s_mov_b32 {s(base+1)}, {s(ptr+1)}",
            f"s_mov_b32 {s(base+2)}, {nbytes}", f"s_mov_b32 {s(base+3)}, 0x20000"]
def interleave(*ls):
    o, ls = [], [list(l) for l in ls]
    while any(ls):
        for l in ls:
            if l: o.append(l.pop(0))
    return o

S_X, S_W, S_WS, S_WOA, S_WOB, S_OUT, S_DBG, S_G = 24, 28, 32, 36, 40, 44, 48, 36
S_W4, S_HG, S_RB, S_ROT, S_HEAD, S_RB3, S_CB = 52, 53, 54, 55, 56, 57, 58
S_K, S_T0, S_MW, S_MX, S_T1 = 59, 60, 61, 62, 63
S_MASK, S_T2, S_T3, S_LO16, S_TM, S_C, S_SPIN, S_EP = 64, 96, 97, 98, 100, 10, 3, 26
V_LANE, V_L16, V_STAMP, V_FOFF = 1, 2, 3, 4
EP, FLG = 6, 8
V_AK, V_AV0, V_AV1 = 10, 11, 12
G0 = 14
PM, QA = 16, 24
TMP = 28
SB, NEGM, MG, PB, PF, KF, VF = 32, 64, 96, 128, 144, 152, 192
OACC2 = (160, 176)
KA, QA1, VA = 208, 216, 224

class Role:
    def __init__(self, name):
        self.P, self.name, self.ns, self.nl = Prog(), name, 0, 0
    def stamp(self):
        P = self.P
        if OPT["amp"] == self.ns and OPT["amprole"] == (self.name == "H"):
            P.add(WaitLds())
            P(f"{'s_memtime' if OPT['ampclk'] else 's_memrealtime'} {s(S_TM,2)}\ns_waitcnt lgkmcnt(0)\nv_writelane_b32 {v(V_STAMP)}, {s(S_TM)}, 1")
        if OPT["stamps"]:
            P.add(WaitLds())
            P(f"s_memtime {s(S_TM,2)}\ns_waitcnt lgkmcnt(0)\nv_writelane_b32 {v(V_STAMP)}, {s(S_TM)}, {self.ns + 1}")
            if OPT["rt"]: P(f"s_memrealtime {s(S_TM,2)}\ns_waitcnt lgkmcnt(0)\nv_writelane_b32 {v(V_STAMP)}, {s(S_TM)}, {self.ns + 32}")
        self.ns += 1
    def poll(self, cmp_txt, reload_txt):
        P, n = self.P, f"{self.name}{self.nl}"; self.nl += 1
        P(f"s_mov_b32 {s(S_SPIN)}, 0x40000"); P(cmp_txt)
        P(f"s_cmp_eq_u64 vcc, -1\ns_cbranch_scc1 L_pok{n}")
        P.add(Raw(f"""L_pspin{n}:
    {reload_txt}
    s_sub_u32 {s(S_SPIN)}, {s(S_SPIN)}, 1
    s_cbranch_scc1 L_pok{n}
    s_waitcnt vmcnt(0)
    {cmp_txt}
    s_nop 2
    s_cmp_eq_u64 vcc, -1
    s_cbranch_scc0 L_pspin{n}
L_pok{n}:"""))
    @staticmethod
    def _sloads(n, off):
        if n <= 8: return [f"s_load_dwordx{2*n} {s(4,2*n)}, s[22:23], {s(off)} glc"]
        return [f"s_load_dwordx16 s[4:19], s[22:23], {s(off)} glc", f"s_load_dwordx16 s[64:79], s[22:23], {s(off)} offset:64 glc"]
    def spoll_issue(self, n, off):
        self.P.add(self._sloads(n, off))
    def spoll(self, n, off, ignore_from=None):
        P, lb = self.P, f"{self.name}{self.nl}"; self.nl += 1
        w = lambda i: s(4 + 2*i if i < 8 else 48 + 2*i, 2)
        P.add(WaitLds())
        t = f"    s_mov_b32 {s(S_SPIN)}, 0x40000\nL_sp{lb}:\n"
        for i in range(n - 1):
            if ignore_from is not None:
                t += f"    s_cmp_lt_u32 {s(ignore_from)}, {n - i}\n    s_cselect_b64 {w(i)}, {s(S_EP,2)}, {w(i)}\n"
        for i in range(n):
            t += f"    s_xor_b64 {w(i)}, {w(i)}, {s(S_EP,2)}\n"
            if i: t += f"    s_or_b64 s[4:5], s[4:5], {w(i)}\n"
        t += f"    s_cmp_eq_u64 s[4:5], 0\n    s_cbranch_scc1 L_spok{lb}\n" + "".join(f"    {x}\n" for x in self._sloads(n, off))
        t += f"    s_sub_u32 {s(S_SPIN)}, {s(S_SPIN)}, 1\n    s_waitcnt lgkmcnt(0)\n    s_cbranch_scc0 L_sp{lb}\nL_spok{lb}:"
        P.add(Raw(t))
    def finish(self):
        P = self.P
        if OPT["stamps"]:
            P(f"s_memrealtime {s(S_TM,2)}\ns_waitcnt lgkmcnt(0) vmcnt(0)\nv_writelane_b32 {v(V_STAMP)}, {s(S_TM)}, 63")
            P(f"""s_lshl_b32 {s(S_T0)}, s2, 3
s_add_u32 {s(S_T0)}, {s(S_T0)}, {s(S_W4)}
s_add_u32 {s(S_T0)}, {s(S_T0)}, {4 if self.name == "H" else 0}
s_lshl_b32 {s(S_T0)}, {s(S_T0)}, 8
s_add_u32 {s(S_T0)}, {s(S_T0)}, {WS_STAMP}
v_lshlrev_b32 v0, 2, {v(V_LANE)}
buffer_store_dword {v(V_STAMP)}, v0, {s(S_WS,4)}, {s(S_T0)} offen""")
        if OPT["amp"] >= 0 and OPT["amprole"] == (self.name == "H"):
            P(f"""s_cmp_lg_u32 s2, 100
s_cbranch_scc1 L_end
v_readlane_b32 {s(S_T0)}, {v(V_STAMP)}, 0
v_readlane_b32 {s(S_T1)}, {v(V_STAMP)}, 1
s_memrealtime {s(S_TM,2)}
s_sub_u32 {s(S_T1)}, {s(S_T1)}, {s(S_T0)}
s_mul_i32 {s(S_T1)}, {s(S_T1)}, {OPT["ampk"]}
s_lshr_b32 {s(S_T1)}, {s(S_T1)}, {4 if OPT["ampclk"] else 0}
s_min_u32 {s(S_T1)}, {s(S_T1)}, 100000
s_waitcnt lgkmcnt(0)
s_mov_b32 {s(S_T0)}, {s(S_TM)}""")
            P.add(Raw(f"""L_amp{self.name}:
    s_memrealtime {s(S_TM,2)}
    s_waitcnt lgkmcnt(0)
    s_sub_u32 {s(S_K)}, {s(S_TM)}, {s(S_T0)}
    s_cmp_lt_u32 {s(S_K)}, {s(S_T1)}
    s_cbranch_scc1 L_amp{self.name}"""))
        P("s_endpgm")

ws_ld = lambda dst, voff, soff, imm=0, tag=None: Ins(
    f"buffer_load_dwordx4 {dst}, {v(voff)}, {s(S_WS,4)}, {soff} offen{' offset:%d' % imm if imm else ''} sc1", tag)
ws_st = lambda src, voff, soff, imm=0, tag=None: Ins(
    f"buffer_store_dwordx4 {src}, {v(voff)}, {s(S_WS,4)}, {soff} offen{' offset:%d' % imm if imm else ''} sc1", tag)
ep_load = f"buffer_load_dwordx2 {v(EP,2)}, off, {s(S_DBG,4)}, 0 sc1"
flag_load = f"buffer_load_dwordx2 {v(FLG,2)}, {v(V_FOFF)}, {s(S_WS,4)}, {s(S_K)} offen sc1"
flag_cmp = f"v_cmp_eq_u64 vcc, {v(FLG,2)}, {v(EP,2)}"
def flag_store(data_tag, kind):
    if kind == "kv":
        o = lines(f"""v_mul_u32_u24 v0, 56, {v(V_LANE)}
v_add_u32 v0, 88, v0
s_sub_u32 {s(S_T1)}, 31, {s(S_RB)}
s_min_u32 {s(S_T1)}, {s(S_T1)}, 4
v_cmp_gt_u32 vcc, {s(S_T1)}, {v(V_LANE)}
s_cmp_eq_u32 {s(S_RB)}, 0
s_cselect_b32 {s(S_T1)}, 24, {OOB}
v_mov_b32 v5, {s(S_T1)}
v_cndmask_b32 v0, v5, v0, vcc
s_lshl_b32 {s(S_T0)}, {s(S_HEAD)}, 5
s_add_u32 {s(S_T0)}, {s(S_T0)}, {s(S_RB)}
s_lshl_b32 {s(S_T0)}, {s(S_T0)}, 6
s_add_u32 {s(S_T0)}, {s(S_T0)}, {WS_FKV}""")
    else:
        o = lines(f"""v_lshlrev_b32 v0, 8, {v(V_LANE)}
v_cmp_gt_u32 vcc, 8, {v(V_LANE)}
v_mov_b32 v5, {OOB}
v_cndmask_b32 v0, v5, v0, vcc
s_lshl_b32 {s(S_T0)}, {s(S_RB)}, 8
s_add_u32 {s(S_T0)}, {s(S_T0)}, {s(S_HEAD)}
s_lshl_b32 {s(S_T0)}, {s(S_T0)}, 3
s_add_u32 {s(S_T0)}, {s(S_T0)}, { {"ob": WS_FOB, "oa0": WS_FOA, "oa1": WS_FOA + 65536}[kind] }""")
    return o + [WaitTag(data_tag), Ins(f"buffer_store_dwordx2 {v(EP,2)}, v0, {s(S_WS,4)}, {s(S_T0)} offen sc1", "flag")]

def max_tree(dst, regs, init=False):
    regs, o = list(regs), []
    if not init:
        o.append(f"v_max3_f32 {v(dst)}, {v(regs[0])}, {v(regs[1])}, {v(regs[2])}"); regs = regs[3:]
    while len(regs) >= 2:
        o.append(f"v_max3_f32 {v(dst)}, {v(dst)}, {v(regs[0])}, {v(regs[1])}"); regs = regs[2:]
    if regs: o.append(f"v_max_f32 {v(dst)}, {v(dst)}, {v(regs[0])}")
    return o
def cross_max(m, t):
    return [f"v_mov_b32 {v(t)}, {v(m)}", f"v_permlane32_swap_b32 {v(m)}, {v(t)}", f"v_max_f32 {v(m)}, {v(m)}, {v(t)}"]

def attn_setup(t, tmp):
    r5, hh, cm, u = tmp, tmp + 1, tmp + 2, tmp + 3
    o = lines(f"""v_and_b32 {v(r5)}, 31, {v(V_LANE)}
v_lshrrev_b32 {v(hh)}, 5, {v(V_LANE)}
v_lshlrev_b32 {v(u)}, 2, {v(hh)}
v_sub_u32 {v(cm)}, {v(r5)}, {v(u)}
s_mul_i32 {s(S_T2)}, {s(S_W4)}, {KVH}
s_add_u32 {s(S_T2)}, {s(S_T2)}, {L_KV + t*KVS}
v_add_u32 {v(V_AK)}, {s(S_T2)}, {v(V_L16)}
v_and_b32 {v(u)}, 15, {v(V_LANE)}
v_lshlrev_b32 {v(u)}, 4, {v(u)}
v_lshl_add_u32 {v(u)}, {v(hh)}, 8, {v(u)}
v_and_b32 {v(hh)}, 11, {v(V_LANE)}
v_min_u32 {v(hh)}, 1, {v(hh)}
v_lshlrev_b32 {v(hh)}, 4, {v(hh)}
v_add_u32 {v(hh)}, 0x400, {v(hh)}
v_cndmask_b32 {v(V_AV0)}, {v(hh)}, {v(u)}, {s(S_LO16,2)}
v_subrev_u32 {v(hh)}, 0x200, {v(hh)}
v_cndmask_b32 {v(V_AV1)}, {v(hh)}, {v(u)}, {s(S_LO16,2)}
v_add_u32 {v(V_AV0)}, {s(S_T2)}, {v(V_AV0)}
v_add_u32 {v(V_AV1)}, {s(S_T2)}, {v(V_AV1)}
v_mov_b32 {v(u)}, 0xffff""")
    o += [f"v_cmp_le_i32 {s(S_MASK+2*q,2)}, {8*(q>>2)+(q&3)}, {v(cm)}" for q in range(16)]
    o += [f"v_cndmask_b32 {v(PM+pq)}, 0, {v(u)}, {s(S_MASK+4*pq,2)}" for pq in range(8)]
    o += [f"v_cndmask_b32 {v(PM+pq)}, {v(PM+pq)}, -1, {s(S_MASK+4*pq+2,2)}" for pq in range(8)]
    return o

def gate_finish(addr, tmp):
    o = [f"ds_read_b32 {v(tmp+t)}, {v(addr)} offset:{128*t}" for t in range(2)]
    for op in ("v_mul_f32 {g}, " + fhex(-math.log2(math.e)) + ", {g}", "v_exp_f32 {g}, {g}", "v_add_f32 {g}, 1.0, {g}", "v_rcp_f32 {o}, {g}"):
        o += [op.format(g=v(tmp+t), o=v(G0+t)) for t in range(2)]
    return o

def o_pack(acc, o0, lreg, fac, dst, f):
    return ([f"v_rcp_f32 {v(f)}, {v(acc+lreg)}"] + fac +
            [f"v_mul_f32 {v(acc+o0+i)}, {v(f)}, {v(acc+o0+i)}" for i in range(8)] +
            [f"v_cvt_pk_bf16_f32 {v(dst+i)}, {v(acc+o0+2*i)}, {v(acc+o0+2*i+1)}" for i in range(4)])
def o_store(br, tt, src, tag):
    return [f"s_lshl_b32 {s(S_T0)}, {s(S_RB)}, 17", f"s_lshl_b32 {s(S_T1)}, {s(S_HEAD)}, 10",
            f"s_add_u32 {s(S_T0)}, {s(S_T0)}, {s(S_T1)}", f"s_add_u32 {s(S_T0)}, {s(S_T0)}, {WS_O + br*65536 + tt*32768}",
            ws_st(v(src,4), V_L16, s(S_T0), 0, tag)]

CMA = 64
def window_attention(R, events):
    P = R.P
    Q = lambda t: v((QA, QA1)[t], 4)
    dk, dv = (4, 3) if OPT["deep"] else (2, 2)
    kfr = lambda u: v((240 + 4*(u & 3)) if OPT["deep"] else KF+4*(u & 1), 4) if u < 8 else v(KA+4*(u-8), 4)
    vfr = lambda u, m: v((VF, VF+8, KF)[u % dv]+4*m, 4) if u < 8 else v(VA+8*(u-8)+4*m, 4)
    kread = lambda u: [f"ds_read_b128 {kfr(u)}, {v(V_AK)} offset:{u*KVS}"] if u < 8 else []
    vread = lambda u: [f"ds_read_b128 {vfr(u,0)}, {v(V_AV0)} offset:{u*KVS+1024}",
                       f"ds_read_b128 {vfr(u,1)}, {v(V_AV1)} offset:{u*KVS+1536}"] if u < 8 else []
    M = (TMP, TMP + 2)
    acc = lambda t: v(OACC2[t], 16)
    negm = lambda t: v(NEGM+16*t, 16)
    exps = lambda S: [f"v_exp_f32 {v(S+i)}, {v(S+i)}" for i in range(16)]
    cvts = lambda d, S: [f"v_cvt_pk_bf16_f32 {v(d+k)}, {v(S+2*k)}, {v(S+2*k+1)}" for k in range(8)]
    ev = lambda key: events.pop(key)() if key in events else None
    P(mfma(v(SB+16,16), kfr(8), Q(1), negm(1))); P(mfma(v(MG,16), kfr(8), Q(0), negm(0)))
    P("s_barrier")
    R.stamp()
    P.add(kread(0) + kread(1) + vread(0) + vread(1))
    if OPT["deep"]: P.add(kread(2) + kread(3) + vread(2))
    ev("pre")
    e, c = exps(SB+16), cvts(PB+8, SB+16)
    P.add(e[0:4]); P(mfma(v(SB,16), kfr(0), Q(0), negm(0))); P.add(kread(dk)); P.add(e[4:8]); P.add(c[0:4])
    P(mfma(v(MG+16,16), kfr(9), Q(1), negm(1))); P.add(e[8:12])
    P(mfma(acc(1), vfr(8,0), v(PB+8,4), "0")); P.add(e[12:16]); P.add(c[4:8])
    pend = [mfma(v(SB+16,16), kfr(1), Q(1), negm(1)), mfma(acc(1), vfr(8,1), v(PB+12,4), acc(1))]
    for t in range(2):
        g = MG + 16*t
        seq = [f"v_cndmask_b32 {v(g+i)}, {v(SB+16*t+i)}, {v(g+i)}, {s(S_MASK+2*i,2)}" for i in range(16)]
        seq += [[mfma(v(SB+16*t,16), kfr(1+t), Q(t), negm(t))] + (kread(dk+1) if t == 0 else [])]
        seq += exps(g) + cvts(PF, g)
        seq += [f"v_and_b32 {v(PB+8*t+i)}, {v(PM+i)}, {v(PF+i)}" for i in range(8)]
        seq += [f"v_xor_b32 {v(g+i)}, {v(PF+i)}, {v(PB+8*t+i)}" for i in range(8)]
        at = (0, 8) if t == 0 else (1, 9, 21, 26)
        for i, x in enumerate(seq):
            P.add(x)
            if i in at: P.add(pend.pop(0))
        pend = [mfma(acc(t), vfr(8+t,0), v(PB+8*t,4), acc(1) if t else "0"), mfma(acc(t), vfr(8+t,1), v(PB+8*t+4,4), acc(t)),
                mfma(acc(t), vfr(t,0), v(g,4), acc(t)), [mfma(acc(t), vfr(t,1), v(g+4,4), acc(t))] + (vread(dv) if t == 0 else [])]
    R.stamp()
    if OPT["t2"]: P("s_barrier")
    ev("e1")
    for hs in range(13):
        t = hs & 1; u = (hs >> 1) + 1 + t
        S, Pp = SB + 16*t, PB + 8*t
        e, c = exps(S), cvts(Pp, S)
        nxt = None
        if t == 0 and 0 < hs < 12: nxt = [mfma(v(SB+16,16), kfr(u+1), Q(1), negm(1))]
        if t == 1: nxt = [mfma(v(SB,16), kfr(u), Q(0), negm(0))] + kread(u+dk)
        if hs == 0:
            P.add(e[0:2]); P.add(pend[0]); P.add(e[2:5]); P.add(pend[1]); P.add(e[5:8]); P.add(pend[2])
            P.add(c[0:4]); P.add(e[8:10]); P.add(pend[3]); P.add(e[10:14])
            P(mfma(acc(t), vfr(u,0), v(Pp,4), acc(t))); P.add(e[14:16]); P.add(c[4:8])
        else:
            P.add(e[0:2]); P.add(pend); P.add(e[2:6])
            if nxt: P.add(nxt)
            P.add(e[6:8]); P.add(c[0:4]); P.add(e[8:10])
            P(mfma(acc(t), vfr(u,0), v(Pp,4), acc(t)))
            P.add(e[10:16]); P.add(c[4:8])
        pend = [mfma(acc(t), vfr(u,1), v(Pp+4,4), acc(t))] + (vread(u+dv) if t == 0 else [])
        if OPT["fine"] == 5: R.stamp()
        ev(hs)
    P.add(pend)
    assert not events, events
    P(f"s_mov_b32 {s(S_T1)}, 0x7b800000")
    for t in (1, 0):
        o, m = OACC2[t], M[t]
        P.add([f"v_add_f32 {v(m)}, abs({v(o)}), abs({v(o+8)})", f"v_add_f32 {v(m+1)}, abs({v(o+1)}), abs({v(o+2)})"] +
              [f"v_add_f32 {v(m+(i&1))}, {v(m+(i&1))}, abs({v(o+i)})" for i in range(3, 8)] + [f"v_add_f32 {v(m)}, {v(m)}, {v(m+1)}"])
    P(f"v_add_f32 {v(M[0])}, {v(M[0])}, {v(M[1])}\nv_cmp_lt_f32 vcc, {v(M[0])}, {s(S_T1)}")
    P("s_cmp_eq_u64 vcc, -1\ns_cbranch_scc0 L_exact0\nL_back:")
    R.stamp()

def slow_path():
    return exact_attention(0) + exact_attention(1) + "    s_branch L_back\n"

def exact_attention(t):
    F = Prog(); q, M, acc = v((QA, QA1)[t], 4), TMP, v(OACC2[t], 16)
    KO, VO, G = TMP + 2, TMP + 3, S_T0
    def tile(rel, kdst, vdst):
        o = [f"s_add_i32 {s(S_K)}, {s(G)}, {rel}", f"s_cmp_ge_i32 {s(S_K)}, 0", f"s_cselect_b64 vcc, -1, 0",
             f"s_cselect_b32 {s(S_TM)}, {hex(ONES)}, 0", f"s_max_i32 {s(S_K)}, {s(S_K)}, 0", f"s_lshl_b32 {s(S_K)}, {s(S_K)}, 11",
             f"s_lshl_b32 {s(S_T1)}, {s(S_HEAD)}, 17", f"s_add_u32 {s(S_K)}, {s(S_K)}, {s(S_T1)}",
             f"v_and_b32 {v(KO)}, 0x200, {v(V_L16)}", f"v_cndmask_b32 {v(KO)}, {v(KO)}, {v(V_L16)}, vcc", ws_ld(v(kdst,4), KO, s(S_K))]
        if vdst is not None:
            o += [f"v_mov_b32 {v(vdst+i)}, {s(S_TM)}" for i in range(8)]
            o += [f"s_cmp_lg_u32 {s(S_TM)}, 0", f"s_cselect_b32 {s(S_K)}, {s(S_K)}, {WS_SIZE}", f"s_mov_b64 exec, {s(S_LO16,2)}",
                  ws_ld(v(vdst,4), VO, s(S_K), 1024), ws_ld(v(vdst+4,4), VO, s(S_K), 1536), "s_mov_b64 exec, -1"]
        return o
    F(f"L_exact{t}:\ns_waitcnt vmcnt(0) lgkmcnt(0)\ns_nop 15")
    F(f"""s_lshl_b32 {s(G)}, {s(S_RB)}, 1
s_sub_u32 {s(G)}, {s(G)}, {8 - t}
v_lshrrev_b32 {v(VO)}, 1, {v(V_L16)}
v_and_b32 {v(VO)}, 0x100, {v(VO)}
v_and_b32 {v(KO)}, 0xf0, {v(V_L16)}
v_or_b32 {v(VO)}, {v(VO)}, {v(KO)}""")
    F.add(tile(8, KF, VF)); F.add(tile(0, KF+4, VF+8))
    F(mfma(v(MG,16), v(KF,4), q, "0")); F(mfma(v(SB,16), v(KF+4,4), q, "0"))
    F.add([f"v_cndmask_b32 {v(MG+i)}, {v(SB+i)}, {v(MG+i)}, {s(S_MASK+2*i,2)}" for i in range(16)])
    F.add(max_tree(M, range(MG, MG+16)))
    F(f"s_mov_b32 {s(S_TM+1)}, 7\nL_exact_m{t}:\ns_add_u32 {s(G)}, {s(G)}, 1")
    F.add(tile(0, KF, None))
    F(mfma(v(SB,16), v(KF,4), q, "0"))
    F.add(max_tree(M, range(SB, SB+16), init=True))
    F(f"s_sub_u32 {s(S_TM+1)}, {s(S_TM+1)}, 1\ns_cmp_lg_u32 {s(S_TM+1)}, 0\ns_cbranch_scc1 L_exact_m{t}")
    F.add(cross_max(M, M+1))
    F.add([f"v_sub_f32 {v(MG+i)}, {v(MG+i)}, {v(M)}" for i in range(16)])
    F.add([f"v_exp_f32 {v(MG+i)}, {v(MG+i)}" for i in range(16)])
    F.add([f"v_cvt_pk_bf16_f32 {v(PF+i)}, {v(MG+2*i)}, {v(MG+2*i+1)}" for i in range(8)])
    F.add([f"v_and_b32 {v(PB+i)}, {v(PM+i)}, {v(PF+i)}" for i in range(8)])
    F.add([f"v_xor_b32 {v(PF+i)}, {v(PF+i)}, {v(PB+i)}" for i in range(8)])
    F(mfma(acc, v(VF,4), v(PB,4), "0")); F(mfma(acc, v(VF+4,4), v(PB+4,4), acc))
    F(mfma(acc, v(VF+8,4), v(PF,4), acc)); F(mfma(acc, v(VF+12,4), v(PF+4,4), acc))
    F(f"s_sub_u32 {s(G)}, {s(G)}, 7\ns_mov_b32 {s(S_TM+1)}, 7\ns_nop 15\nL_exact_e{t}:\ns_add_u32 {s(G)}, {s(G)}, 1")
    F.add(tile(0, KF, VF))
    F(mfma(v(SB,16), v(KF,4), q, "0"))
    F.add([f"v_sub_f32 {v(SB+i)}, {v(SB+i)}, {v(M)}" for i in range(16)])
    F.add([f"v_exp_f32 {v(SB+i)}, {v(SB+i)}" for i in range(16)])
    F.add([f"v_cvt_pk_bf16_f32 {v(PB+i)}, {v(SB+2*i)}, {v(SB+2*i+1)}" for i in range(8)])
    F(mfma(acc, v(VF,4), v(PB,4), acc)); F(mfma(acc, v(VF+4,4), v(PB+4,4), acc))
    F(f"s_nop 15\ns_sub_u32 {s(S_TM+1)}, {s(S_TM+1)}, 1\ns_cmp_lg_u32 {s(S_TM+1)}, 0\ns_cbranch_scc1 L_exact_e{t}")
    return finalize(F)

E = Prog()
hg_code = {0: f"s_lshl1_add_u32 {s(S_HG)}, {s(S_T1)}, {s(S_K)}", 1: f"s_lshl2_add_u32 {s(S_HG)}, {s(S_K)}, {s(S_T1)}",
           2: f"s_and_b32 {s(S_HG)}, {s(S_T1)}, 2\ns_add_u32 {s(S_HG)}, {s(S_HG)}, {s(S_K)}\ns_and_b32 {s(S_T1)}, {s(S_T1)}, 1\ns_lshl1_add_u32 {s(S_HG)}, {s(S_HG)}, {s(S_T1)}",
           3: f"s_mul_i32 {s(S_K)}, {s(S_K)}, 3\ns_lshl1_add_u32 {s(S_HG)}, {s(S_T1)}, {s(S_K)}\ns_and_b32 {s(S_HG)}, {s(S_HG)}, 7",
           4: f"s_mul_i32 {s(S_K)}, {s(S_K)}, 5\ns_lshl1_add_u32 {s(S_HG)}, {s(S_T1)}, {s(S_K)}\ns_and_b32 {s(S_HG)}, {s(S_HG)}, 7"}[OPT["hgmap"]]
assert OPT["xmap"] == 3
hb = {4: 2, 3: 1, 2: 0, 1: 3}[OPT["xmap"]]
if OPT["stamps"] or OPT["amp"] >= 0:
    E("s_memtime s[64:65]\ns_memrealtime s[66:67]")
def entry_stamp():
    if OPT["stamps"]:
        return [f"v_mov_b32 {v(V_STAMP)}, 0", f"v_writelane_b32 {v(V_STAMP)}, s64, 0", f"v_writelane_b32 {v(V_STAMP)}, s66, 62"]
    if OPT["amp"] >= 0:
        return [f"v_mov_b32 {v(V_STAMP)}, 0", f"v_writelane_b32 {v(V_STAMP)}, {'s64' if OPT['ampclk'] else 's66'}, 0"]
    return []
code_pf = f"""s_getpc_b64 {s(S_T2,2)}
L_pc:
s_lshl2_add_u32 {s(S_T1)}, {s(S_T0)}, {s(S_W4)}
s_and_b32 {s(S_T1)}, {s(S_T1)}, 63
s_lshl_b32 {s(S_T1)}, {s(S_T1)}, 9
s_sub_u32 {s(S_T2)}, {s(S_T2)}, L_pc-{NAME}_kernel
s_subb_u32 {s(S_T3)}, {s(S_T3)}, 0
v_and_b32 v5, 3, {v(V_LANE)}
v_lshl_add_u32 v5, v5, 7, {s(S_T1)}
global_load_dword v13, v5, {s(S_T2,2)}"""
if OPT["cpf"] == 2:
    E(f"""s_getpc_b64 {s(S_T2,2)}
s_bfe_u32 {s(S_T1)}, s2, 0x50003
v_lshrrev_b32 v5, 6, v0
v_lshlrev_b32 v5, 7, v5
v_lshl_add_u32 v5, {s(S_T1)}, 10, v5
global_load_dword v13, v5, {s(S_T2,2)}""")
if OPT["cpf"] == 3:
    E(f"""s_getpc_b64 {s(S_T2,2)}
s_bfe_u32 {s(S_T1)}, s2, 0x30003
v_lshrrev_b32 v5, 4, v0
v_lshlrev_b32 v5, 7, v5
v_lshl_add_u32 v5, {s(S_T1)}, 12, v5
global_load_dword v13, v5, {s(S_T2,2)}""")
E(f"""
s_cmp_ge_u32 s2, 256
s_cbranch_scc1 L_end
s_load_dwordx16 s[4:19], s[0:1], 0
s_load_dwordx4 s[20:23], s[0:1], 64
v_lshrrev_b32 v4, 6, v0
v_and_b32 {v(V_LANE)}, 63, v0
s_lshr_b32 {s(S_T0)}, s2, 3
v_readfirstlane_b32 {s(S_MX)}, v4
""")
E(f"""
s_and_b32 {s(S_T1)}, s2, {(8 >> hb) - 1}
s_and_b32 {s(S_K)}, {s(S_T0)}, {(1 << hb) - 1}
{hg_code}
s_bfe_u32 {s(S_K)}, s2, {hex((hb << 16) | (3 - hb))}
s_lshl_b32 {s(S_RB)}, {s(S_K)}, {5 - hb}
s_lshr_b32 {s(S_ROT)}, {s(S_T0)}, {hb}
s_add_u32 {s(S_RB)}, {s(S_RB)}, {s(S_ROT)}
s_and_b32 {s(S_W4)}, {s(S_MX)}, 3
""")
if OPT["cpf"] == 1:
    E(f"""s_cmp_lt_u32 {s(S_MX)}, 4
s_cbranch_scc0 L_hrole""")
    E(code_pf)
    E("s_branch L_crole\nL_hrole:")
elif OPT["cpf"] >= 4:
    E(f"""s_cmp_lt_u32 {s(S_MX)}, 4
s_cbranch_scc0 L_hrole
s_getpc_b64 {s(S_T2,2)}
L_pc:
s_lshl2_add_u32 {s(S_T1)}, {s(S_T0)}, {s(S_W4)}
s_lshl_b32 {s(S_T1)}, {s(S_T1)}, 8
s_sub_u32 {s(S_T2)}, {s(S_T2)}, L_pc-{NAME}_kernel
s_subb_u32 {s(S_T3)}, {s(S_T3)}, 0
s_load_dword s70, {s(S_T2,2)}, {s(S_T1)}
s_add_u32 {s(S_T1)}, {s(S_T1)}, 128
s_load_dword s71, {s(S_T2,2)}, {s(S_T1)}""")
    if OPT["cpf"] == 5:
        E("s_waitcnt lgkmcnt(0)")
        for i, ptr in enumerate((6, 12, 4, 16, 20, 8, 14, 18, 22)):
            E(f"s_load_dword s{72+i}, {s(ptr,2)}, 0")
        for i in range(1, 5):
            E(f"s_mov_b32 {s(S_T1)}, {i << 21}\ns_load_dword s{80+i}, s[22:23], {s(S_T1)}")
    E("s_branch L_crole\nL_hrole:")
else:
    E(f"s_cmp_lt_u32 {s(S_MX)}, 4\ns_cbranch_scc1 L_crole")
late_ids = lines(f"""
s_lshr_b32 {s(S_T0)}, s2, 3
s_and_b32 {s(S_RB3)}, s2, 7
s_lshl_b32 {s(S_RB3)}, {s(S_RB3)}, 2
s_lshr_b32 {s(S_T1)}, {s(S_T0)}, 3
s_add_u32 {s(S_RB3)}, {s(S_RB3)}, {s(S_T1)}
s_and_b32 {s(S_CB)}, {s(S_T0)}, 7
s_lshl_b32 {s(S_HEAD)}, {s(S_HG)}, 2
s_add_u32 {s(S_HEAD)}, {s(S_HEAD)}, {s(S_W4)}
s_mov_b32 {s(S_LO16)}, 0xffff
s_mov_b32 {s(S_LO16+1)}, 0xffff
v_lshlrev_b32 {v(V_L16)}, 4, {v(V_LANE)}
""")
rot_code = {
 0: f"s_and_b32 {s(S_ROT)}, {s(S_ROT)}, {OPT['rotmask']}",
 1: f"s_and_b32 {s(S_ROT)}, s2, 7",
 4: f"s_add_u32 {s(S_ROT)}, {s(S_ROT)}, {s(S_HG)}\ns_and_b32 {s(S_ROT)}, {s(S_ROT)}, 7",
 7: f"s_and_b32 {s(S_K)}, {s(S_HG)}, 6\ns_add_u32 {s(S_ROT)}, {s(S_ROT)}, {s(S_K)}\ns_and_b32 {s(S_ROT)}, {s(S_ROT)}, 7",
 8: f"s_lshr_b32 {s(S_K)}, {s(S_HG)}, 1\ns_add_u32 {s(S_ROT)}, {s(S_ROT)}, {s(S_K)}\ns_and_b32 {s(S_ROT)}, {s(S_ROT)}, 7",
 9: f"s_mul_i32 {s(S_K)}, {s(S_HG)}, 3\ns_add_u32 {s(S_ROT)}, {s(S_ROT)}, {s(S_K)}\ns_and_b32 {s(S_ROT)}, {s(S_ROT)}, 7",
 10: f"s_sub_u32 {s(S_ROT)}, {s(S_ROT)}, {s(S_HG)}\ns_and_b32 {s(S_ROT)}, {s(S_ROT)}, 7",
 5: f"s_add_u32 {s(S_ROT)}, {s(S_ROT)}, {s(S_HG)}\ns_and_b32 {s(S_ROT)}, {s(S_ROT)}, 3\ns_lshl_b32 {s(S_ROT)}, {s(S_ROT)}, 1",
 6: f"s_add_u32 {s(S_ROT)}, {s(S_ROT)}, {s(S_HG)}\ns_and_b32 {s(S_ROT)}, {s(S_ROT)}, 1\ns_lshl_b32 {s(S_ROT)}, {s(S_ROT)}, 2",
}[OPT["rotmode"]]

def stage_of(n): return n if n < 16 else 16 + ((n - 16) >> 1)
def first_of_stage(n): return n < 32 and (n == 0 or stage_of(n) != stage_of(n - 1))
def mfma16(d, a, b, c): return f"v_mfma_f32_16x16x32_bf16 {d}, {a}, {b}, {c}"

H = Role("H"); P = H.P
VX, VW1, VW2 = 160, 162, 166
V_AXW, V_AG, V_GPW, GACC, XW, GF = 170, 171, 172, 174, 176, 184
i3, i4, p7, t0, t1, t2 = 32, 33, 34, 35, 36, 37
def raw(i):
    if OPT["fine"] == 3: P(f"s_memtime s[{68+2*i}:{69+2*i}]")
raw(0)
P(rot_code)
P(f"""
v_lshrrev_b32 {v(i3)}, 3, {v(V_LANE)}
v_lshrrev_b32 {v(i4)}, 4, {v(V_LANE)}
v_and_b32 {v(p7)}, 7, {v(V_LANE)}
s_lshl_b32 {s(S_T0)}, {s(S_W4)}, 4
v_add_u32 {v(t0)}, {s(S_T0)}, {v(i3)}
v_lshlrev_b32 {v(t0)}, 10, {v(t0)}
v_xor_b32 {v(t1)}, {v(p7)}, {v(i4)}
v_lshl_add_u32 {v(VX)}, {v(t1)}, 4, {v(t0)}
v_xor_b32 {v(VX+1)}, 64, {v(VX)}
v_add_u32 {v(VX+1)}, {0x2000 - 1024}, {v(VX+1)}
s_lshr_b32 {s(S_T0)}, {s(S_W4)}, 1
s_and_b32 {s(S_T1)}, {s(S_W4)}, 1
s_lshl_b32 {s(S_K)}, {s(S_T0)}, 4
v_add_u32 {v(t0)}, {s(S_K)}, {v(i4)}
v_mul_u32_u24 {v(t0)}, 0xc00, {v(t0)}
v_lshlrev_b32 {v(t1)}, 1, {v(i4)}
v_xor_b32 {v(t1)}, {v(t1)}, {v(p7)}
v_lshl_add_u32 {v(t0)}, {v(t1)}, 4, {v(t0)}
v_and_b32 {v(t1)}, 1, {v(i3)}
v_xor_b32 {v(t1)}, {s(S_T1)}, {v(t1)}
v_lshlrev_b32 {v(t1)}, 10, {v(t1)}
s_lshl_b32 {s(S_T2)}, {s(S_HG)}, 7
s_add_u32 {s(S_K)}, {s(S_T2)}, 1024
v_add3_u32 {v(VW1)}, {v(t0)}, {v(t1)}, {s(S_K)}
v_add_u32 {v(VW1+1)}, {12288 - 1024}, {v(VW1)}
v_xor_b32 {v(t1)}, 0x400, {v(t1)}
v_add3_u32 {v(VW1+2)}, {v(t0)}, {v(t1)}, {s(S_K)}
v_add_u32 {v(VW1+3)}, {3*(12288 - 1024)}, {v(VW1+2)}
v_add_u32 {v(VW1+2)}, {2*(12288 - 1024)}, {v(VW1+2)}
s_lshl_b32 {s(S_MW)}, {s(S_T1)}, 13
s_lshl_b32 {s(S_K)}, {s(S_T0)}, 12
s_add_u32 {s(S_MW)}, {s(S_MW)}, {s(S_K)}
s_lshl_b32 {s(S_MX)}, {s(S_W4)}, 11
s_add_u32 {s(S_MX)}, {s(S_MX)}, {L_X}""")
raw(1)
P("s_waitcnt lgkmcnt(0)")
if OPT["wsoff"]: P(f"s_add_u32 s22, s22, {OPT['wsoff'] << 20}\ns_addc_u32 s23, s23, 0")
raw(2)
if OPT["tlb0"]: P.add(Raw("    s_load_dword s86, s[6:7], 0\n    s_load_dword s87, s[12:13], 0" + ("\n    s_load_dword s88, s[16:17], 0" if OPT["tlb0"] > 1 else "")))
P.add(entry_stamp())
P.add(srd(S_X, 4, 2097152))
P(f"""s_cmp_eq_u32 {s(S_T1)}, 0
s_cselect_b32 {s(S_W)}, s6, s12
s_cselect_b32 {s(S_W+1)}, s7, s13
s_mov_b32 {s(S_W+2)}, 1572864
s_mov_b32 {s(S_W+3)}, 0x20000""")
if OPT["fine"] != 3: H.stamp()
def dma(voff, rsrc, soff, imm, tag, flags=""):
    flags = flags or ("", " sc1", " nt", " sc0", " sc0 sc1")[OPT["dfl"]]
    return Ins(f"buffer_load_dwordx4 {v(voff)}, {s(rsrc,4)}, {soff} offen{' offset:%d' % imm if imm else ''}{flags} lds", tag)
def x_dma(j):
    return [f"s_add_u32 {s(S_K)}, {s(S_ROT)}, {j}", f"s_and_b32 {s(S_K)}, {s(S_K)}, 7", f"s_lshl_b32 {s(S_K)}, {s(S_K)}, 7",
            f"s_lshl_b32 {s(S_T2)}, {s(S_RB)}, 16", f"s_add_u32 m0, {s(S_MX)}, {j*8192}", f"s_add_u32 {s(S_K)}, {s(S_K)}, {s(S_T2)}",
            dma(VX, S_X, s(S_K), 0, f"x{j}"), dma(VX+1, S_X, s(S_K), 1024, f"x{j}")]
def w_dma(S):
    if S < 16:
        o = [f"s_lshl_b32 {s(S_T3)}, {s(S_ROT)}, 1", f"s_add_u32 {s(S_T3)}, {s(S_T3)}, {S}", f"s_and_b32 {s(S_T3)}, {s(S_T3)}, 15"]
    else:
        o = [f"s_add_u32 {s(S_T3)}, {s(S_ROT)}, {S-16}", f"s_and_b32 {s(S_T3)}, {s(S_T3)}, 7"]
    o += [f"s_add_u32 m0, {s(S_MW)}, {(S % NSLOT)*SLOT}", f"s_mul_i32 {s(S_T3)}, {s(S_T3)}, {(32 if S < 16 else 64)*3072}"]
    return o + [dma((VW1 if S < 16 else VW2) + t, S_W, s(S_T3), t*1024, f"w{S}") for t in range(4)]
def code_warm():
    t = (f"    s_getpc_b64 s[78:79]\nL_pc:\n    s_sub_u32 s78, s78, L_pc-{NAME}_kernel\n    s_subb_u32 s79, s79, 0\n    s_lshr_b32 {s(S_T1)}, s2, 3\n"
         f"    s_lshl2_add_u32 {s(S_T1)}, {s(S_T1)}, {s(S_W4)}\n    s_lshl_b32 {s(S_T1)}, {s(S_T1)}, 8\n")
    t += "".join(f"    s_load_dword s{80+i}, s[78:79], {s(S_T1)} offset:{i*64}\n" for i in range(4))
    P.add(Raw(t))
if OPT["worder0"]:
    w0, x0 = w_dma(0), x_dma(0)
    P.add(w0[:6]); P.add(x0[:7]); P(f"s_add_u32 m0, {s(S_MW)}, 0"); P.add(w0[6:]); P(f"s_add_u32 m0, {s(S_MX)}, 0"); P.add(x0[7:])
else:
    P.add(x_dma(0)); P.add(w_dma(0))
if OPT["icat"] == -3: code_warm()
P.add(w_dma(1)); raw(5)
if OPT["icat"] == -2: code_warm()
P(f"""s_lshl_b32 {s(S_K)}, {s(S_ROT)}, 3
v_add_u32 {v(t2)}, {s(S_K)}, {v(V_LANE)}
v_and_b32 {v(t2)}, 63, {v(t2)}
v_lshlrev_b32 {v(t2)}, 4, {v(t2)}""")
P.add(srd(S_G, 16, 1024)); P(f"s_mov_b32 m0, {L_G}"); P.add(dma(t2, S_G, "0", 0, "w1"))
P.add(late_ids)
h_misc = lines(f"""
s_lshr_b32 {s(S_T0)}, {s(S_W4)}, 1
s_and_b32 {s(S_T1)}, {s(S_W4)}, 1
s_lshl_b32 {s(S_T0)}, {s(S_T0)}, 5
v_add_u32 {v(t0)}, {s(S_T0)}, {v(i3)}
v_mul_u32_u24 {v(t0)}, 0xc00, {v(t0)}
v_and_b32 {v(t1)}, 1, {v(i4)}
v_lshlrev_b32 {v(t1)}, 1, {v(t1)}
v_xor_b32 {v(t1)}, {v(t1)}, {v(p7)}
v_lshlrev_b32 {v(t1)}, 4, {v(t1)}
s_lshl_b32 {s(S_T0)}, {s(S_HG)}, 7
v_add3_u32 {v(VW2)}, {v(t0)}, {v(t1)}, {s(S_T0)}
v_xor_b32 {v(t1)}, 64, {v(t1)}
v_add3_u32 {v(VW2+1)}, {v(t0)}, {v(t1)}, {s(S_T0)}
v_add_u32 {v(VW2+2)}, {2*(24576 - 1024)}, {v(VW2)}
v_add_u32 {v(VW2+3)}, {3*(24576 - 1024)}, {v(VW2+1)}
v_add_u32 {v(VW2+1)}, {24576 - 1024}, {v(VW2+1)}
""") + srd(S_WS, 22, WS_SIZE) + srd(S_DBG, 20, 256)
P.add(h_misc)
if OPT["fine"] == 3:
    raw(6); P("s_waitcnt vmcnt(9)"); raw(7); P("s_waitcnt vmcnt(5)"); raw(8); P("s_waitcnt lgkmcnt(0)")
    for i in range(9):
        P(f"v_writelane_b32 {v(V_STAMP)}, s{68+2*i}, {i+1}")
    H.ns = 9
VWO, VKF, V1A, V1D, V_MB, V_HB = 160, 161, 162, 164, 12, 13
txt_of = lambda x: x.text if isinstance(x, Ins) else x
special_txt = []
def gather(tiles, special):
    o = []
    if 0 in tiles:
        o += [f"s_lshl_b32 {s(S_K)}, {s(S_HEAD)}, 17", f"s_lshl_b32 {s(S_T1)}, {s(S_RB)}, 12",
              f"s_add_u32 {s(S_T2)}, {s(S_K)}, {s(S_T1)}", f"s_sub_u32 {s(S_T2)}, {s(S_T2)}, {8*2048}"]
    for u in tiles:
        tag = "kv" if u < 4 or not OPT["t2"] else "kvb"
        o += [f"s_add_u32 {s(S_T0)}, {s(S_T2)}, {u*2048}", f"s_add_u32 m0, {s(S_MW)}, {u*KVS}"]
        if special:
            o += [f"s_cmp_ge_u32 {s(S_RB)}, {(8-u+1)//2}", f"s_cbranch_scc1 L_gk{u}",
                  dma(VKF, S_WS, s(S_K), 0, None, " sc1"), f"s_mov_b32 {s(S_T0)}, {WS_SIZE}", f"s_branch L_gk{u}e", f"L_gk{u}:",
                  dma(V_L16, S_WS, s(S_T0), 0, None, " sc1"), f"L_gk{u}e:"]
        else:
            o += [dma(V_L16, S_WS, s(S_T0), 0, tag, " sc1")]
        o += [dma(V_L16, S_WS, s(S_T0), 1024, tag, " sc1")]
    return o
def emit_gather(n, tiles):
    P(f"s_cmp_lt_u32 {s(S_RB)}, 4\ns_cbranch_scc1 L_gspecial{n}")
    P.add(gather(tiles, False)); P(f"L_gdone{n}:")
    special_txt.append(f"L_gspecial{n}:\n" + "\n".join(("" if txt_of(x).endswith(":") else "    ") + txt_of(x) for x in gather(tiles, True))
                       + f"\n    s_branch L_gdone{n}\n")
S_R3, S_WB, S_MA, S_MB = 24, 25, 30, 31
B0, B1, A0, A1, A2, A3, VOG, EXW, EXR, VOUT = 16, 17, 24, 25, 26, 27, 18, 20, 23, 19
ACC3, OFB, OFA, WBF = 32, 96, 192, 176
if OPT["icpf"] and OPT["icat"] == -1: code_warm()
issued_w, issued_x = 2, 1

for S in range(25):
    if S < 24:
        P.add(WaitTag(f"w{S}", f"x{S >> 1}" if S < 16 else "none"))
    if S < 20: P.add(WaitLds())
    P("s_barrier")
    if OPT["fine"] in (1, 2, 3) or S in (0, 16, 24): H.stamp()
    mark = len(P.items)
    top = {0: 3}.get(S, S + 4)
    if S in (14, 15, 16) and OPT["hold"]: top = min(top, 20 - OPT["hold"])
    while issued_w <= min(top, 23):
        if issued_w < 16 and issued_w % 2 == 0 and issued_x <= issued_w // 2:
            P.add(x_dma(issued_x)); issued_x += 1
        P.add(w_dma(issued_w)); issued_w += 1
    if OPT["icpf"] and S == OPT["icat"]: code_warm()
    if OPT["tlb"] and S in (3, 4, 5, 6):
        for i, (ptr, off) in enumerate({3: ((22, 0), (22, 1)), 4: ((22, 2), (22, 4)), 5: ((22, 3), (20, 0)), 6: ((18, 0),)}[S]):
            P.add(Raw(f"    s_mov_b32 {s(S_T1)}, {off << 21}\n    s_load_dword s{70+i}, {s(ptr,2)}, {s(S_T1)}"))
    if OPT["wopf"] and S in (8, 9, 10, 11):
        ptr, half = (14, 8)[(S - 8) >> 1], S & 1
        t = f"    s_lshl2_add_u32 {s(S_T1)}, s2, {s(S_W4)}\n    s_lshl_b32 {s(S_T1)}, {s(S_T1)}, 9\n"
        t += "".join(f"    s_load_dword s{73+i}, {s(ptr,2)}, {s(S_T1)} offset:{half*256+i*64}\n" for i in range(4))
        P.add(Raw(t))
    if S == 8: P(ep_load)
    if S == 14:
        P(f"""v_lshrrev_b32 v48, 5, {v(V_LANE)}
v_bfe_u32 v49, {v(V_LANE)}, 2, 2
v_lshl_add_u32 v48, v48, 2, v49
v_and_b32 v49, 2, v49
v_bfe_u32 v50, {v(V_LANE)}, 4, 1
v_xor_b32 v49, v49, v50
s_and_b32 {s(S_T1)}, {s(S_W4)}, 2
v_xor_b32 v49, {s(S_T1)}, v49
v_lshlrev_b32 v49, 5, v49
v_lshl_add_u32 v48, v48, 7, v49
v_and_b32 v49, 3, {v(V_LANE)}
v_lshl_add_u32 v48, v49, 3, v48
s_lshl_b32 {s(S_MX)}, {s(S_W4)}, 14
s_lshl_b32 {s(S_T0)}, {s(S_T1)}, 14
v_add_u32 {v(B0)}, {s(S_T0)}, v48
v_xor_b32 {v(B1)}, 64, {v(B0)}
v_xor_b32 v49, 64, v48
s_mul_i32 {s(S_T0)}, {s(S_T1)}, 6144
s_add_u32 {s(S_T0)}, {s(S_T0)}, {L_WA}
v_add_u32 {v(A0)}, {s(S_T0)}, v48
v_add_u32 {v(A1)}, {s(S_T0)}, v49
s_mul_i32 {s(S_T0)}, {s(S_T1)}, 10240
s_add_u32 {s(S_T0)}, {s(S_T0)}, {L_KV}
v_add_u32 {v(A2)}, {s(S_T0)}, v48
v_add_u32 {v(A3)}, {s(S_T0)}, v49
""")
    if S == 15:
        P(f"""s_lshl_b32 {s(S_T0)}, {s(S_W4)}, 12
v_add_u32 {v(EXR)}, {s(S_T0)}, {v(V_L16)}
v_xor_b32 {v(EXW)}, 0x2000, {v(EXR)}
v_and_b32 {v(VOUT)}, 31, {v(V_LANE)}
v_lshlrev_b32 {v(VOUT)}, 10, {v(VOUT)}
v_lshrrev_b32 v48, 5, {v(V_LANE)}
v_lshl_add_u32 {v(VOUT)}, v48, 4, {v(VOUT)}
s_and_b32 {s(S_T2)}, {s(S_W4)}, 1
s_lshl_b32 {s(S_T2)}, {s(S_T2)}, 15
s_lshl_b32 {s(S_T0)}, {s(S_RB3)}, 16
s_add_u32 {s(S_T0)}, {s(S_T0)}, {s(S_T2)}
s_lshl_b32 {s(S_T1)}, {s(S_CB)}, 7
s_add_u32 {s(S_T0)}, {s(S_T0)}, {s(S_T1)}
s_and_b32 {s(S_T1)}, {s(S_W4)}, 2
s_lshl_b32 {s(S_T1)}, {s(S_T1)}, 5
s_add_u32 {s(S_T0)}, {s(S_T0)}, {s(S_T1)}
v_add_u32 {v(VOUT)}, {s(S_T0)}, {v(VOUT)}
s_lshl_b32 {s(S_T0)}, {s(S_RB3)}, 17
s_add_u32 {s(S_T0)}, {s(S_T0)}, {s(S_T2)}
s_lshl_b32 {s(S_T1)}, {s(S_T1)}, 8
s_add_u32 {s(S_T0)}, {s(S_T0)}, {s(S_T1)}
s_add_u32 {s(S_T0)}, {s(S_T0)}, {WS_O}
v_add_u32 {v(VOG)}, {s(S_T0)}, {v(V_L16)}
s_lshl_b32 {s(S_WB)}, {s(S_W4)}, 17
s_lshl_b32 {s(S_T1)}, {s(S_CB)}, 7
s_add_u32 {s(S_WB)}, {s(S_WB)}, {s(S_T1)}
s_lshl3_add_u32 {s(S_R3)}, {s(S_RB3)}, {s(S_CB)}
s_and_b32 {s(S_T1)}, {s(S_W4)}, 2
s_lshl2_add_u32 {s(S_R3)}, {s(S_R3)}, {s(S_T1)}
s_lshl_b32 {s(S_R3)}, {s(S_R3)}, 6""")
    if S == OPT["kvs"]:
        tail = P.items[mark:]; del P.items[mark:]
        P.add(flag_store("none", "kv")); P.items += tail
    if S == 16:
        P("s_waitcnt lgkmcnt(0)")
        H.poll(f"v_cmp_ne_u64 vcc, 0, {v(EP,2)}", ep_load)
        P(f"v_readfirstlane_b32 {s(S_EP)}, {v(EP)}\nv_readfirstlane_b32 {s(S_EP+1)}, {v(EP+1)}")
    if S == 19:
        P.add(srd(S_WOA, 8, 524288) + srd(S_WOB, 14, 524288) + srd(S_OUT, 18, 2097152))
    if S == 20:
        P(f"""v_lshrrev_b32 v48, 3, {v(V_LANE)}
v_bfe_u32 v49, {v(V_LANE)}, 4, 1
v_lshlrev_b32 v49, 2, v49
v_and_b32 v50, 7, {v(V_LANE)}
v_xor_b32 v49, v49, v50
v_lshlrev_b32 v49, 4, v49
v_lshl_add_u32 {v(VWO)}, v48, 10, v49
v_and_b32 {v(VKF)}, 32, {v(V_LANE)}
v_lshlrev_b32 {v(VKF)}, 4, {v(VKF)}
v_mul_u32_u24 {v(V1A)}, {KVS}, v50
v_bfe_u32 v51, {v(V_LANE)}, 3, 1
v_lshl_add_u32 {v(V1A)}, v51, 4, {v(V1A)}
s_mul_i32 {s(S_MW)}, {s(S_W4)}, {KVH}
s_add_u32 {s(S_MW)}, {s(S_MW)}, {L_KV}
s_add_u32 {s(S_T0)}, {s(S_MW)}, 2048
v_add_u32 {v(V1A)}, {s(S_T0)}, {v(V1A)}
s_lshl_b32 {s(S_T0)}, {s(S_RB)}, 1
v_add_u32 v48, {s(S_T0)}, v50
v_cmp_le_u32 vcc, 8, v48
v_mov_b32 v49, {hex(ONES)}
v_cndmask_b32 {v(V1D)}, 0, v49, vcc
v_subrev_u32 v51, 1, v51
v_and_b32 {v(V1D)}, v51, {v(V1D)}
v_mov_b32 {v(V1D+1)}, {v(V1D)}
v_mov_b32 {v(V1D+2)}, {v(V1D)}
v_mov_b32 {v(V1D+3)}, {v(V1D)}
s_mul_i32 {s(S_MA)}, {s(S_W4)}, 6144
s_add_u32 {s(S_MA)}, {s(S_MA)}, {L_WA}
s_mul_i32 {s(S_MB)}, {s(S_W4)}, 10240
s_add_u32 {s(S_MB)}, {s(S_MB)}, {L_KV - 6144}
s_lshl_b32 {s(S_K)}, {s(S_HEAD)}, 5
s_add_u32 {s(S_K)}, {s(S_K)}, {s(S_RB)}
s_lshl_b32 {s(S_K)}, {s(S_K)}, 6
s_add_u32 {s(S_K)}, {s(S_K)}, {WS_FKV}""")
    if S == OPT["gat"] - 1 - OPT["pasy"]:
        H.spoll_issue(4, S_K)
    if S == OPT["gat"] - 1:
        H.spoll(4, S_K, ignore_from=S_RB)
        H.stamp()
    if S == OPT["sents"]:
        P.add([f"v_mov_b32 {v(172+i)}, -1" for i in range(4)])
        P.add(o_store(0, 1, 172, "sent")); P.add(o_store(0, 0, 172, "sent"))
    if S == 23:
        P(f"ds_write_b128 {v(V1A)}, {v(V1D,4)}")
    if S == 24: P.add(Pace(OPT["pace0"]))
    if S == OPT["gat"] + OPT["gdel"]:
        emit_gather(0, tuple(range(OPT['g0'])))
if OPT["p1only"]:
    H.finish()
fs = lambda: H.stamp() if OPT["fine"] == 4 else None
P(f"s_setprio {OPT['hprio']}")
emit_gather(1, tuple(range(OPT['g0'], 8)))
def wo_dma(br):
    o = []
    for t in range(16):
        base = S_MX if br else (S_MA if t < 6 else S_MB)
        g = [f"s_add_u32 m0, {s(base)}, {t*1024}", f"s_add_u32 {s(S_T3)}, {s(S_WB)}, {t*8192}"]
        o.append(g + [dma(VWO, S_WOB if br else S_WOA, s(S_T3), 0, "wob" if br else ("woa" if t < 6 else "woc"))])
    return o
woa, wob = wo_dma(0), wo_dma(1)
P.add(wob[:OPT["wb0"]])
P.add(WaitTag("kv")); P.add(WaitLds()); P("s_barrier")
H.stamp()
if OPT["t2"]: P.add(WaitTag("kvb")); P("s_barrier")
if OPT["sents"] == 25:
    P.add([f"v_mov_b32 {v(172+i)}, -1" for i in range(4)])
    P.add(o_store(0, 1, 172, "sent")); P.add(o_store(0, 0, 172, "sent"))
P.add(Pace(OPT["pace"]))
rest = wob[OPT["wb0"]:] + woa[:6]
if OPT["zbar"]:
    P.add(rest[:OPT["wz"]]); rest = rest[OPT["wz"]:]
    P("s_barrier"); fs(); P.add(flag_store("sent", "ob"))
P.add(rest)
fs()
def o_gather(br):
    o = []
    for hs in range(16):
        if hs % 4 == 0: o += [f"s_mov_b32 {s(S_T1)}, {br*65536 + hs*1024}"]
        o += [ws_ld(v((OFA, OFB)[br]+4*hs,4), VOG, s(S_T1), (hs & 3)*1024)]
    return o
def wo_read(dst, hs, br):
    h, j = hs >> 3, hs & 7
    base, off = ((B0, B1), hs*2048) if br else (((A0, A1), h*6144 + j*2048) if j < 3 else ((A2, A3), h*10240 + (j-3)*2048))
    return [f"ds_read_b64_tr_b16 {v(dst+4*ct+2*q,2)}, {v(base[ct])} offset:{off+q*1024}" for ct in range(2) for q in range(2)]
FIN = ACC3 + 32
def p3(Q, br, hook=lambda hs: None):
    Q.add(wo_read(WBF, 0, br))
    for hs in range(16):
        b = hs & 1
        rd = wo_read(WBF + 8*(1-b), hs + 1, br) if hs < 15 else []
        for ct in ((0, 1) if hs < 15 else (1, 0)):
            acc = v((FIN, ACC3)[br]+16*ct, 16)
            c = acc if hs else ("0" if br else v(ACC3+16*ct, 16))
            Q(mfma(acc, v(WBF+8*b+4*ct,4), v((OFA, OFB)[br]+4*hs,4), c))
            Q.add(rd[2*ct:2*ct+2])
        hook(hs)
def sentinel_scan(hs):
    base = OFA + 4*hs
    first = [f"v_max3_u32 {v(TMP)}, {v(base)}, {v(base+1)}, {v(base+1)}"] if hs == 0 else [f"v_max3_u32 {v(TMP)}, {v(TMP)}, {v(base)}, {v(base+1)}"]
    return first + [f"v_max3_u32 {v(TMP)}, {v(TMP)}, {v(base+2)}, {v(base+3)}"]
P(f"s_add_u32 {s(S_K)}, {s(S_R3)}, {WS_FOB}")
P.add(WaitTag("wob")); P("s_barrier"); fs()
if not OPT["zbar"]: P.add(flag_store("sent", "ob"))
P.add(woa[6:11]); H.spoll_issue(16, S_K); P.add(woa[11:]); fs()
H.spoll(16, S_K); H.stamp()
P.add(o_gather(1)); fs()
P(f"s_setprio {OPT['p3prio']}")
p3(P, 1)
H.stamp()
P.add(WaitTag("woa", "woc")); P("s_barrier"); fs()
P.add(o_gather(0))
test = [f"v_cmp_ne_u32 vcc, -1, {v(TMP)}", "s_cmp_eq_u64 vcc, -1"]
p3(P, 0, lambda hs: P.add(sentinel_scan(hs)))
P.add(test); P("s_cbranch_scc0 L_retry\nL_ok:")
Q = Prog()
Q(f"L_retry:\ns_mov_b32 {s(S_SPIN)}, 0x20000\ns_nop 15\nL_again:"); Q.add(o_gather(0))
Q(f"s_sub_u32 {s(S_SPIN)}, {s(S_SPIN)}, 1\ns_waitcnt vmcnt(0)\ns_cbranch_scc1 L_redo")
for hs in range(16): Q.add(sentinel_scan(hs))
Q.add(test); Q("s_cbranch_scc0 L_again\nL_redo:")
p3(Q, 0); Q("s_nop 15\ns_branch L_ok")
retry_txt = [finalize(Q)]
H.stamp()
P.add([f"ds_write_b128 {v(EXW)}, {v(FIN+16+4*q,4)} offset:{q*1024}" for q in range(4)])
P.add(WaitLds()); P("s_barrier")
P.add([f"ds_read_b128 {v(OFB+4*q,4)}, {v(EXR)} offset:{q*1024}" for q in range(4)])
for hf in range(2):
    P.add([f"v_pk_add_f32 {v(FIN+8*hf+2*i,2)}, {v(FIN+8*hf+2*i,2)}, {v(OFB+8*hf+2*i,2)}" for i in range(4)])
    P.add([f"v_cvt_pk_bf16_f32 {v(WBF+4*hf+i)}, {v(FIN+8*hf+2*i)}, {v(FIN+8*hf+2*i+1)}" for i in (0, 2, 1, 3)])
    P(f"v_permlane32_swap_b32 {v(WBF+4*hf)}, {v(WBF+4*hf+2)}\nv_permlane32_swap_b32 {v(WBF+4*hf+1)}, {v(WBF+4*hf+3)}")
    P(f"buffer_store_dwordx4 {v(WBF+4*hf,4)}, {v(VOUT)}, {s(S_OUT,4)}, 0 offen{' offset:32' if hf else ''}{('', ' sc1', ' nt', ' sc0 sc1')[OPT['outsc']]}")
H.stamp()
H.finish()

C = Role("C"); P = C.P
T1, T3, T2 = 32, 64, 96
XB, WB = 128, 160
V_AX, V_P0L, V_P0H, V_P1L, V_P1H, V_T2L, V_T2H = 192, 194, 195, 196, 197, 198, 199
V_LO, V_HI, V_CMR = 200, 201, 202
VPK = 224
r5, hh, rr, cc, nh, u0, u1, cm, g4 = 128, 129, 130, 131, 132, 133, 134, 135, 140
P("L_crole:")
P.add(late_ids)
if OPT["prio"]: P("s_setprio 1")
P(f"""
v_and_b32 {v(r5)}, 31, {v(V_LANE)}
v_lshrrev_b32 {v(hh)}, 5, {v(V_LANE)}
v_lshrrev_b32 {v(g4)}, 4, {v(V_LANE)}
v_and_b32 {v(u1)}, 15, {v(V_LANE)}
v_lshrrev_b32 {v(u0)}, 1, {v(u1)}
v_xor_b32 {v(u0)}, {v(u0)}, {v(g4)}
v_lshlrev_b32 {v(u0)}, 4, {v(u0)}
v_lshl_add_u32 {v(u0)}, {v(u1)}, 7, {v(u0)}
v_add_u32 {v(V_AX)}, {L_X}, {v(u0)}
v_xor_b32 {v(V_AX+1)}, 64, {v(V_AX)}
v_bfe_u32 {v(rr)}, {v(V_LANE)}, 2, 2
v_and_b32 {v(cc)}, 3, {v(V_LANE)}
v_and_b32 {v(nh)}, 1, {v(g4)}
v_lshl_add_u32 {v(u0)}, {v(g4)}, 3, {v(rr)}
v_xor_b32 {v(u1)}, {s(S_W4)}, {v(rr)}
v_lshlrev_b32 {v(u1)}, 5, {v(u1)}
v_lshl_add_u32 {v(u1)}, {v(cc)}, 3, {v(u1)}
v_lshl_add_u32 {v(u1)}, {v(u0)}, 8, {v(u1)}
v_lshl_add_u32 {v(V_P0L)}, {v(nh)}, 7, {v(u1)}
v_add_u32 {v(V_P0H)}, 0x10000, {v(V_P0L)}
v_xor_b32 {v(V_P1L)}, 0x80, {v(V_P0L)}
v_xor_b32 {v(V_P1H)}, 0x80, {v(V_P0H)}
v_lshrrev_b32 {v(u1)}, 1, {v(rr)}
v_lshl_add_u32 {v(u1)}, {v(nh)}, 1, {v(u1)}
v_xor_b32 {v(u1)}, {s(S_W4)}, {v(u1)}
v_lshlrev_b32 {v(u1)}, 5, {v(u1)}
v_lshl_add_u32 {v(u1)}, {v(cc)}, 3, {v(u1)}
v_lshl_add_u32 {v(V_T2L)}, {v(u0)}, 7, {v(u1)}
v_add_u32 {v(V_T2H)}, 0x10000, {v(V_T2L)}
v_and_b32 {v(u0)}, 15, {v(V_LANE)}
v_lshlrev_b32 {v(u0)}, 4, {v(u0)}
v_lshl_add_u32 {v(u0)}, {v(hh)}, 8, {v(u0)}
v_lshl_add_u32 {v(V_LO)}, {v(nh)}, 31, {v(u0)}
v_xor_b32 {v(V_HI)}, {OOB}, {v(V_LO)}
v_lshlrev_b32 {v(u0)}, 2, {v(hh)}
v_sub_u32 {v(cm)}, {v(r5)}, {v(u0)}
v_sub_u32 {v(u0)}, 32, {v(cm)}
v_mov_b32 {v(u1)}, {hex(~0x55540001 & 0xffffffff)}
v_alignbit_b32 {v(V_CMR)}, {v(u1)}, {v(u1)}, {v(u0)}
s_waitcnt lgkmcnt(0)""")
if OPT["wsoff"]: P(f"s_add_u32 s22, s22, {OPT['wsoff'] << 20}\ns_addc_u32 s23, s23, 0")
P.add(entry_stamp())
P(f"""s_memrealtime {s(S_TM,2)}
s_mov_b32 {s(S_C)}, {fhex(QK_SCALE)}
s_mov_b32 {s(S_C+1)}, {fhex(QK_SCALE)}
""")
def l2_prefetch():
    a, b = 140, 141
    o = lines(f"""s_lshr_b32 {s(S_T0)}, s2, 3
s_and_b32 {s(S_T1)}, {s(S_HG)}, 4
s_lshl_b32 {s(S_T1)}, {s(S_T1)}, 7
v_and_b32 {v(a)}, 3, {v(V_LANE)}
v_lshlrev_b32 {v(a)}, 7, {v(a)}
s_cmp_eq_u32 {s(S_W4)}, 2
s_cbranch_scc1 L_pfx
s_cmp_eq_u32 {s(S_W4)}, 3
s_cbranch_scc1 L_pfq
s_cmp_eq_u32 {s(S_W4)}, 0
s_cselect_b32 {s(S_W)}, s6, s12
s_cselect_b32 {s(S_W+1)}, s7, s13
s_mov_b32 {s(S_W+2)}, 1572864
s_mov_b32 {s(S_W+3)}, 0x20000
v_bfe_u32 {v(b)}, {v(V_LANE)}, 2, 1
v_lshl_add_u32 {v(a)}, {v(b)}, 10, {v(a)}
v_lshrrev_b32 {v(b)}, 3, {v(V_LANE)}
v_mul_u32_u24 {v(b)}, 0xc00, {v(b)}
v_add_u32 {v(a)}, {v(a)}, {v(b)}
s_mul_i32 {s(S_T0)}, {s(S_T0)}, {8*3072}
s_add_u32 {s(S_T0)}, {s(S_T0)}, {s(S_T1)}
s_add_u32 {s(S_T0)}, {s(S_T0)}, 1024
buffer_load_dword v190, {v(a)}, {s(S_W,4)}, {s(S_T0)} offen
s_add_u32 {s(S_T0)}, {s(S_T0)}, {256*3072}
buffer_load_dword v191, {v(a)}, {s(S_W,4)}, {s(S_T0)} offen
s_branch L_pfe
L_pfx:
s_mov_b32 {s(S_W)}, s4
s_mov_b32 {s(S_W+1)}, s5
s_mov_b32 {s(S_W+2)}, 2097152
s_mov_b32 {s(S_W+3)}, 0x20000
v_lshrrev_b32 {v(b)}, 2, {v(V_LANE)}
v_lshl_add_u32 {v(a)}, {v(b)}, 10, {v(a)}
s_lshl_b32 {s(S_T0)}, {s(S_T0)}, 14
s_and_b32 {s(S_T1)}, {s(S_RB)}, 24
s_lshl_b32 {s(S_T1)}, {s(S_T1)}, 16
s_add_u32 {s(S_T0)}, {s(S_T0)}, {s(S_T1)}
buffer_load_dword v190, {v(a)}, {s(S_W,4)}, {s(S_T0)} offen
buffer_load_dword v191, {v(a)}, {s(S_W,4)}, {s(S_T0)} offen offset:512
s_branch L_pfe
L_pfq:
s_mov_b32 {s(S_W)}, s6
s_mov_b32 {s(S_W+1)}, s7
s_mov_b32 {s(S_W+2)}, 1572864
s_mov_b32 {s(S_W+3)}, 0x20000
v_lshrrev_b32 {v(b)}, 2, {v(V_LANE)}
v_mul_u32_u24 {v(b)}, 0xc00, {v(b)}
v_add_u32 {v(a)}, {v(a)}, {v(b)}
s_mul_i32 {s(S_T0)}, {s(S_T0)}, {16*3072}
s_add_u32 {s(S_T0)}, {s(S_T0)}, {s(S_T1)}
buffer_load_dword v190, {v(a)}, {s(S_W,4)}, {s(S_T0)} offen
s_mov_b32 {s(S_W)}, s12
s_mov_b32 {s(S_W+1)}, s13
buffer_load_dword v191, {v(a)}, {s(S_W,4)}, {s(S_T0)} offen
L_pfe:""")
    P.add(Raw("\n".join(("" if l.endswith(":") else "    ") + l for l in o)))
    P("s_nop 0")
if OPT["pf"] == 1: l2_prefetch()
P.add(srd(S_WS, 22, WS_SIZE) + srd(S_DBG, 20, 256))
P(f"""s_cmp_eq_u32 s2, 0
s_cselect_b32 {s(S_T2)}, 0, {OOB}
v_lshlrev_b32 v5, 8, v0
v_or_b32 v5, {s(S_T2)}, v5
s_waitcnt lgkmcnt(0)
v_mov_b32 {v(EP)}, {s(S_TM)}
v_mov_b32 {v(EP+1)}, {s(S_TM+1)}
buffer_store_dwordx2 {v(EP,2)}, v5, {s(S_DBG,4)}, 0 offen sc1""")
V_AXW, V_AG, V_GPW, V_GPR, XW, GF, GACC = 4, 8, 9, 13, 240, 248, 204
P(f"""s_lshl_b32 {s(S_T2)}, {s(S_W4)}, 11
v_add_u32 {v(V_AXW)}, {s(S_T2)}, {v(V_AX)}
v_add_u32 {v(V_AXW+1)}, {s(S_T2)}, {v(V_AX+1)}
v_lshlrev_b32 {v(V_AG)}, 4, {v(g4)}
v_add_u32 {v(V_AG)}, {L_G}, {v(V_AG)}
v_lshlrev_b32 {v(V_GPR)}, 2, {v(r5)}
v_add_u32 {v(V_GPR)}, {L_GP}, {v(V_GPR)}
v_and_b32 {v(u0)}, 15, {v(V_LANE)}
s_lshl_b32 {s(S_T2)}, {s(S_W4)}, 6
s_add_u32 {s(S_T2)}, {s(S_T2)}, {L_GP}
v_lshl_add_u32 {v(V_GPW)}, {v(u0)}, 2, {s(S_T2)}""")
def x_warm(js):
    t = (f"    s_lshl2_add_u32 {s(S_T0)}, s2, {s(S_W4)}\n    s_lshr_b32 {s(S_T1)}, {s(S_T0)}, 5\n    s_lshl_b32 {s(S_T0)}, {s(S_T0)}, 11\n")
    for j in js:
        t += f"    s_add_u32 {s(S_K)}, {s(S_T1)}, {j}\n    s_and_b32 {s(S_K)}, {s(S_K)}, 7\n    s_lshl_b32 {s(S_K)}, {s(S_K)}, 7\n    s_add_u32 {s(S_K)}, {s(S_K)}, {s(S_T0)}\n"
        t += "".join(f"    s_load_dword s{28+i}, s[4:5], {s(S_K)} offset:{(i >> 1)*1024 + (i & 1)*64}\n" for i in range(4))
    P.add(Raw(t))
if OPT["xwarm"] == 1: x_warm((1, 2, 3))
P.add(attn_setup(0, 136))
if OPT["xwarm"] == 2: x_warm((1, 2, 3))
if OPT["xwarm"]:
    P("s_waitcnt lgkmcnt(0)"); x_warm((4, 5, 6)); P("s_waitcnt lgkmcnt(0)"); x_warm((7,)); P("s_waitcnt lgkmcnt(0)")
C.stamp()

CM, QB, KB, VB, KBH, VBH, BP, BPL, BPK, SENT, S_R0 = 176, 248, 240, 32, 80, 84, 192, 88, 88, 220, 24
BS2, BSP2, BO2 = (96, 48), (128, 112), (160, 144)
def b_scores(t):
    kprev = v(KB, 4) if t == 1 else v(KBH, 4)
    return [mfma(v(BS2[t],16), v(KB+4*t,4), v(QB+4*t,4), v(CM,16)), mfma(v(BSP2[t],16), kprev, v(QB+4*t,4), v(CM,16))]
def b_softmax(t):
    S, sp, m, p, pl = BS2[t], BSP2[t], TMP + 2*t, BP + 8*t, BPL + 4*t
    o = [f"v_cndmask_b32 {v(S+q)}, {v(S+q)}, {v(sp+q)}, {s(S_LO16,2)}" for q in range(8, 16)]
    if t == 0:
        o += [f"v_mov_b32 {v(m)}, {hex(NEG_BIG)}"]
        o += [f"v_cndmask_b32 {v(S+q)}, {v(S+q)}, {v(m)}, {s(S_R0,2)}" for q in range(8, 16)]
    o += max_tree(m, range(S, S+16)) + cross_max(m, m+1)
    o += [f"v_pk_add_f32 {v(S+2*q,2)}, {v(S+2*q,2)}, {v(m,2)} op_sel_hi:[1,0] neg_lo:[0,1] neg_hi:[0,1]" for q in range(8)]
    o += [f"v_exp_f32 {v(S+q)}, {v(S+q)}" for q in range(16)]
    o += [f"v_cvt_pk_bf16_f32 {v(p+i)}, {v(S+2*i)}, {v(S+2*i+1)}" for i in range(8)]
    o += [f"v_cndmask_b32 {v(pl+i)}, 0, {v(p+4+i)}, {s(S_LO16,2)}" for i in range(4)]
    o += [f"v_cndmask_b32 {v(p+4+i)}, {v(p+4+i)}, 0, {s(S_LO16,2)}" for i in range(4)]
    return o
def b_pv(t):
    vprev, acc, p = v(VB+4, 4) if t == 1 else v(VBH, 4), v(BO2[t], 16), BP + 8*t
    return [mfma(acc, v(VB+8*t,4), v(p,4), "0"), mfma(acc, v(VB+8*t+4,4), v(p+4,4), acc), mfma(acc, vprev, v(BPL+4*t,4), acc)]
def b_pack(t):
    f = 200 + 2*t
    return o_pack(BO2[t], 8, 0, [f"v_sub_f32 {v(f+1)}, 1.0, {v(G0+t)}", f"v_mul_f32 {v(f)}, {v(f)}, {v(f+1)}"], BPK+4*t, f)
def frag_reads(n):
    b, m = n & 1, n & 15
    j, u2 = m >> 1, m & 1
    base = (stage_of(n) % NSLOT) * SLOT
    hi = base >= 65536; off = base - (65536 if hi else 0)
    x = [f"ds_read_b128 {v(XB+16*b+4*tg,4)}, {v(V_AX+u2)} offset:{j*8192+tg*2048}" for tg in range(4)]
    if n < 16:
        w = [f"ds_read_b64_tr_b16 {v(WB+16*b+4*f+2*qd,2)}, {v(((V_P0L,V_P0H),(V_P1L,V_P1H))[pos][hi])} offset:{off+M*8192+qd*1024}"
             for f, (M, pos) in enumerate(((0, 0), (1, 1), (0, 1), (1, 0))) for qd in range(2)]
        return w[0:2] + x[0:2] + w[2:4] + x[2:4] + w[4:8]
    w = [f"ds_read_b64_tr_b16 {v(WB+8*b+4*M+2*qd,2)}, {v((V_T2L,V_T2H)[hi])} offset:{off+M*8192+u2*4096+qd*512}" for M in range(2) for qd in range(2)]
    return w[0:2] + x[0:2] + w[2:4] + x[2:4]
def step_mfmas(n):
    b = n & 1
    x = lambda tg: v(XB+16*b+4*tg, 4)
    c = lambda r: "0" if n in (0, 16) else v(r, 4)
    kq = lambda T, wbase: [mfma16(v(T+16*f+4*tg,4), v(wbase+4*f,4), x(tg), c(T+16*f+4*tg)) for hf in range(2) for f in range(2) for tg in (2*hf, 2*hf+1)]
    if n < 16:
        return kq(T1, WB+16*b) + [mfma16(v(T3+16*f+4*tg,4), x(tg), v(WB+16*b+8+4*f,4), c(T3+16*f+4*tg)) for f in range(2) for tg in range(4)]
    return kq(T2, WB+8*b)
def kq_frag(dst, T, tt, scale):
    a = T + 8*tt
    o = [f"v_pk_mul_f32 {v(a+2*i,2)}, {v(a+2*i,2)}, {s(S_C,2)}" for i in range(4)] if scale else []
    o += [f"v_cvt_pk_bf16_f32 {v(dst+i)}, {v(a+2*i)}, {v(a+2*i+1)}" for i in (0, 2, 1, 3)]
    return o, [f"v_permlane16_swap_b32 {v(dst+i)}, {v(dst+2+i)}" for i in range(2)]
def v_frag(tg):
    d = VPK + 4*tg
    o = [f"v_cvt_pk_bf16_f32 {v(d+2*f+i)}, {v(T3+16*f+4*tg+2*i)}, {v(T3+16*f+4*tg+2*i+1)}" for i in range(2) for f in range(2)]
    return o, [f"v_permlane16_swap_b32 {v(d+i)}, {v(d+2+i)}" for i in range(2)], [f"v_permlane32_swap_b32 {v(d+i)}, {v(d+2+i)}" for i in range(2)]
def kv_publish():
    o = [f"s_lshl_b32 {s(S_T0)}, {s(S_HEAD)}, 17", f"s_lshl_b32 {s(S_T1)}, {s(S_RB)}, 12", f"s_add_u32 {s(S_T0)}, {s(S_T0)}, {s(S_T1)}"]
    k = [kq_frag(KA+4*tt, T1, tt, True) for tt in range(2)]
    o += k[0][0] + k[1][0] + k[0][1] + k[1][1] + [ws_st(v(KA+4*tt,4), V_L16, s(S_T0), tt*2048, "kv") for tt in range(2)]
    for tt in range(2):
        f = [v_frag(2*tt + m) for m in range(2)]
        o += f[0][0] + f[1][0] + f[0][1] + f[1][1] + f[0][2] + f[1][2]
        o += [ws_st(v(VPK+8*tt+4*m,4), V_LO, s(S_T0), tt*2048+1024+m*512, "kv") for m in range(2)]
    o += [f"s_lshl_b32 {s(S_T0)}, {s(S_HEAD)}, 15", f"s_lshl_b32 {s(S_T1)}, {s(S_RB)}, 10",
          f"s_add_u32 {s(S_T0)}, {s(S_T0)}, {s(S_T1)}", f"s_add_u32 {s(S_T0)}, {s(S_T0)}, {WS_HB}",
          ws_st(v(VPK+12,4), V_HI, s(S_T0), 512, "kv")]
    k = [kq_frag(KB+4*tt, T1+16, tt, True) for tt in range(2)]
    o += k[1][0] + k[0][0] + k[1][1] + [ws_st(v(KB+4,4), V_HI, s(S_T0), 0, "kv")] + k[0][1]
    return o

if OPT["p1only"]:
    P("s_barrier\n" * 25 + "s_endpgm")
P("s_barrier")
C.stamp()
P.add(frag_reads(0))
queue = []
gf = gate_finish(V_GPR, 88)
qb0, qb1, qa0, qa1 = kq_frag(QB, T2+16, 0, False), kq_frag(QB+4, T2+16, 1, False), kq_frag(QA, T2, 0, False), kq_frag(QA1, T2, 1, False)
for n in range(32):
    mf = step_mfmas(n)
    sync = first_of_stage(n + 1) or n == 31
    nxt_stage = stage_of(n + 1) if n < 31 else 24
    rd = frag_reads(n + 1) if n < 31 else []
    if n < 16:
        m, gb = (n + 1) & 15, (n + 1) & 1
        rd = rd + [f"ds_read_b128 {v(GF+4*gb,4)}, {v(V_AG)} offset:{m*64}", f"ds_read_b128 {v(XW+4*gb,4)}, {v(V_AXW+gb)} offset:{(m >> 1)*8192}"]
    gm = [mfma16(v(GACC,4), v(GF+4*(n&1),4), v(XW+4*(n&1),4), "0" if n == 1 else v(GACC,4))] if 1 <= n <= 16 else []
    late = []
    if n == 15:
        pub = kv_publish()
        if OPT["early"]:
            late, pub = pub[:25], pub[25:]
            mf = [mf[i] for i in (0, 1, 4, 5, 8, 9, 10, 11, 12, 13, 14, 15, 2, 3, 6, 7)]
    if n == 16: queue += pub
    if n == 31 and OPT["early"]:
        mf = [mf[i] for i in (2, 3, 6, 7, 0, 1, 4, 5)]
        late = gf[2:] + qb0[0] + qb1[0] + qb0[1] + qb1[1]
    if n == 21:
        queue += [f"v_and_b32 {v(TMP)}, 11, {v(V_LANE)}", f"v_mov_b32 {v(TMP+1)}, {hex(ONES)}", f"v_cmp_eq_u32 vcc, 0, {v(TMP)}",
                  f"v_cndmask_b32 {v(TMP)}, 0, {v(TMP+1)}, vcc", f"v_mov_b32 {v(TMP+1)}, {hex(NEG_BIG)}"]
        queue += [f"v_mov_b32 {v(VBH+i)}, {v(TMP)}" for i in range(4)]
        queue += [f"v_cndmask_b32 {v(VB+i)}, {v(VPK+i)}, {v(TMP)}, {s(S_LO16,2)}" for i in range(16)]
        queue += [f"v_cndmask_b32 {v(VA+i)}, {v(TMP)}, {v(VPK+i)}, {s(S_LO16,2)}" for i in range(16)]
        queue += [f"v_cndmask_b32 {v(CMA+q)}, {v(TMP+1)}, 0, {s(S_MASK+2*q,2)}" for q in range(16)]
        queue += [f"v_bfe_i32 {v(CM+q)}, {v(V_CMR)}, {8*(q>>2)+(q&3)}, 1" for q in range(16)]
        queue += [f"v_and_b32 {v(CM+q)}, {v(TMP+1)}, {v(CM+q)}" for q in range(16)]
    if n == 16: mf = mf[:2] + gm + mf[2:]
    else: mf = mf + gm
    post = []
    pre = []
    if sync and nxt_stage == 23:
        (pre if OPT["gpre"] else post).append(f"ds_write_b32 {v(V_GPW)}, {v(GACC)}")
    if sync and nxt_stage == OPT["gat"]:
        rd = rd + [lines(f"""s_lshl_b32 {s(S_T0)}, {s(S_HEAD)}, 15
s_lshl_b32 {s(S_T1)}, {s(S_RB)}, 10
s_add_u32 {s(S_T0)}, {s(S_T0)}, {s(S_T1)}
s_add_u32 {s(S_T0)}, {s(S_T0)}, {WS_HB - 1024}
s_cmp_eq_u32 {s(S_RB)}, 0
s_cselect_b32 {s(S_T0)}, {WS_SIZE}, {s(S_T0)}
s_cselect_b64 {s(S_R0,2)}, {s(S_LO16,2)}, 0""") + [ws_ld(v(KBH,4), V_HI, s(S_T0)), f"s_not_b64 exec, {s(S_LO16,2)}",
                 ws_ld(v(VBH,4), V_HI, s(S_T0), 512), "s_mov_b64 exec, -1"]]
    if n == 31: post += gf[:2]
    take = 8 if n < 16 else (OPT["take"] if n < 21 else OPT["take2"])
    side = queue[:take]; queue = queue[take:]
    P.add(pre); P(mf[0]); P(mf[1])
    if sync:
        if nxt_stage == OPT["kvs"]: P.add(WaitTag("kv")); C.stamp()
        P.add(WaitLds()); P("s_barrier")
        if OPT["fine"] in (1, 2, 3): C.stamp()
    P.add(post)
    body, k = rd, len(mf) - 2
    nr = max(1, k - (4 if n < 16 else 2))
    for i in range(k + 1):
        lo, hi_ = len(body) * i // nr, len(body) * (i + 1) // nr
        if i < nr: P.add(body[lo:hi_])
        slo, shi = len(side) * i // (k + 1), len(side) * (i + 1) // (k + 1)
        P.add(side[slo:shi])
        i0 = 7 if n == 15 else 2
        if late and i >= i0: P.add(late[len(late) * (i - i0) // (k + 1 - i0):len(late) * (i - i0 + 1) // (k + 1 - i0)])
        if i < k: P(mf[2 + i])
    if n == 15 or (OPT["fine"] == 6 and n < 31): C.stamp()
assert not queue
C.stamp()
sc = interleave(b_scores(0), b_scores(1))
if OPT["early"]:
    P(sc[1]); P.add(qa0[0]); P(sc[2]); P.add(qa1[0]); P(sc[0]); P.add(qa0[1] + qa1[1]); P(sc[3])
else:
    P.add(gf[2:]); P.add(qb0[0] + qa0[0] + qb0[1] + qb1[0] + qa1[0])
    P(sc[2]); P.add(qb1[1] + qa0[1]); P(sc[0]); P.add(qa1[1]); P(sc[1]); P(sc[3])
s1, s0 = b_softmax(1), b_softmax(0)
P.add(s0[:9])
sm = interleave(s0[9:], s1)
P.add(sm[:-16])
pv = interleave(b_pv(0), b_pv(1))
P(mfma(v(MG+16,16), v(KA+4,4), v(QA1,4), v(CMA,16))); P.add(sm[-16:-10]); P(mfma(v(MG,16), v(KA,4), v(QA,4), v(CMA,16))); P.add(sm[-10:])
mx = interleave(*[max_tree((TMP, TMP+2)[t], range(MG+16*t, MG+16*t+16)) + cross_max((TMP, TMP+2)[t], (TMP, TMP+2)[t]+1) for t in (1, 0)])
for i, m in enumerate(pv):
    P(m); P.add(mx[4*i:4*i+4])
ng = [[f"v_pk_add_f32 {v(NEGM+16*t+2*i,2)}, 0, {v((TMP, TMP+2)[t],2)} op_sel_hi:[0,0] neg_lo:[0,1] neg_hi:[0,1]" for i in range(8)] for t in range(2)]
P.add(ng[0])
BPK = 192
P.add(interleave(b_pack(0), b_pack(1)))
P.add(o_store(1, 0, BPK, "ob")); P.add(o_store(1, 1, BPK+4, "ob"))
P.add(ng[1])
C.stamp()
cs = lambda: C.stamp() if OPT["fine"] == 4 else None
cev = {("e1" if OPT["xhs"] < 0 else OPT["xhs"]): lambda: (P.add(WaitTag("ob")) if OPT["f2by"] else None, P.add(WaitLds()), P("s_barrier"))}
if not OPT["f2by"]: cev["e1" if OPT["f2hs"] < 0 else OPT["f2hs"]] = lambda: (cs(), P.add(flag_store("ob", "ob")), cs())
if OPT["zbar"]: cev[("e1", 0, 1)[OPT["zbar"] - 1]] = lambda: (P.add(WaitTag("ob")), P("s_barrier"))
window_attention(C, cev)
P.add(interleave(*[o_pack(OACC2[t], 0, 8, [f"v_mul_f32 {v(TMP+t)}, {v(TMP+t)}, {v(G0+t)}"], PF+4*t, TMP+t) for t in (1, 0)]))
P.add(o_store(0, 1, PF+4, "oa")); P.add(o_store(0, 0, PF, "oa"))
C.stamp()
C.finish()

full = Prog(); full.items = E.items + H.P.items
bodyH = finalize(full, verbose=True)
full = Prog(); full.items = [Ins("s_load_dwordx16 s[4:19], s[0:1], 0"), Ins("global_load_dword v13, v5, s[96:97]")] + C.P.items
bodyC = "\n".join(finalize(full, verbose=True).split("\n")[2:])
print("stamps H", H.ns, "C", C.ns)
hdr = open("cdna_kernels/%s.s.ref" % NAME).read().split("; Override launch")[0]
if OPT["stamps"]: hdr += f"; stamps {C.ns} {H.ns}\n"
txt = hdr + f"""; Single launch, 256 workgroups x 8 waves, one workgroup per CU (4 heads x 64 rows of both branches).
;   waves 0-3: QKV projection (one head each), dilated attention, sliding-window attention
;   waves 4-7: LDS-DMA streaming of x / weights / key-value tiles, then one 64x64 tile of the output projection
; Hand-offs between workgroups go through d_ws with write-through stores; flags carry a per-launch epoch published
; through d_debug, and the windowed-branch result slots are first filled with all-ones and re-read until overwritten.
; Window softmax: the shift is the maximum over the diagonal key tile; if a sum or output leaves the safe range the
; tile is recomputed with the true row maximum (L_exact0 / L_exact1).
; @launch grid=(256,1,1) block=(512,1,1) lds={LDS_BYTES}
.amdgcn_target "amdgcn-amd-amdhsa--gfx950"
.text
.globl {NAME}_kernel
.p2align 12
.p2align 8
.type {NAME}_kernel,@function
{NAME}_kernel:
{bodyH}{bodyC}L_end:
    s_endpgm
{''.join(retry_txt)}{''.join(special_txt)}{slow_path()}    .fill 3072, 4, 0xbf800000
.section .rodata,"a"
.p2align 6
.amdhsa_kernel {NAME}_kernel
  .amdhsa_next_free_vgpr 256
  .amdhsa_next_free_sgpr 102
  .amdhsa_accum_offset {192 if OPT['xp'] == 8 else 256}
  .amdhsa_group_segment_fixed_size 0
  .amdhsa_kernarg_size 80
  .amdhsa_user_sgpr_count 2
  .amdhsa_user_sgpr_kernarg_segment_ptr 1
  .amdhsa_system_sgpr_workgroup_id_x 1
.end_amdhsa_kernel
"""
open(sys.argv[1], "w").write(txt)
```

```python
import sys, math, struct
from asmdsl import Prog, Ins, WaitTag, WaitLds, Raw, Pace, finalize

NAME = "gated_mix__sliding_block__sliding_local_dilated__prompt"
OPT = dict(yb=0, aat=99, pkm=0, icat=-2, tlb0=0, worder0=0, g0=2, deep=0, xwarm=0, hgmap=0, hold=0, sents=21, pasy=1, gpre=1, take2=16, t2=0, rtail=1, dfl=0, kvs=19, bsplit=0, pace=0, pace0=0, pacez=0, gat=23, gdel=0, f2hs=-1, f2by=1, wb0=4, zbar=3, wz=18, probe=0, amode=0, worder=0, xhs=3, hprio=2, p3prio=0, wopf=1, tlb=1, icpf=1, cpf=0, take=96, early=1, kvflag=42, pubat=32, prio=1, barpos=0,
           xmap=3, rotmode=4, rotmask=7, outsc=0, stamps=0, fine=0, rt=0, xp=0, wsoff=0, amp=-1, ampk=8, amprole=1, ampclk=0, p1only=0, pf=0)
for a in sys.argv[2:]:
    k, v_ = a.split("="); assert k in OPT, k; OPT[k] = int(v_)

WS_KV, WS_HB, WS_O = 0, 4 << 20, 5 << 20
WS_FKV, WS_FOB, WS_FOA = 9 << 20, (9 << 20) + 65536, (9 << 20) + 131072
WS_STAMP, WS_SIZE = 10 << 20, 16 << 20
OOB = 0x80000000
NSLOT, SLOT = 5, 16384
L_X, L_WA, L_G, L_GP, LDS_BYTES = 81920, 132096, 156672, 157696, 158720
KVH, KVS, L_KV, L_WO = 2080, 4 * 2080, 65536, 0
QK_SCALE = 0.25 * math.log2(math.e)
NEG_BIG, ONES = 0xf149f2ca, 0x3f803f80

def fhex(x): return "0x%08x" % struct.unpack("<I", struct.pack("<f", x))[0]
def v(a, n=1): return f"v{a}" if n == 1 else f"v[{a}:{a+n-1}]"
def s(a, n=1): return f"s{a}" if n == 1 else f"s[{a}:{a+n-1}]"
def lines(t): return [l.strip() for l in t.strip().split("\n") if l.strip()]
def mfma(d, a, b, c): return f"v_mfma_f32_32x32x16_bf16 {d}, {a}, {b}, {c}"
def srd(base, ptr, nbytes):
    return [f"s_mov_b32 {s(base)}, {s(ptr)}", f"s_mov_b32 {s(base+1)}, {s(ptr+1)}",
            f"s_mov_b32 {s(base+2)}, {nbytes}", f"s_mov_b32 {s(base+3)}, 0x20000"]
def interleave(*ls):
    o, ls = [], [list(l) for l in ls]
    while any(ls):
        for l in ls:
            if l: o.append(l.pop(0))
    return o

S_X, S_W, S_WS, S_WOA, S_WOB, S_OUT, S_DBG, S_G = 24, 28, 32, 36, 40, 44, 48, 36
S_W4, S_HG, S_RB, S_ROT, S_HEAD, S_RB3, S_CB = 52, 53, 54, 55, 56, 57, 58
S_K, S_T0, S_MW, S_MX, S_T1 = 59, 60, 61, 62, 63
S_MASK, S_T2, S_T3, S_LO16, S_TM, S_C, S_SPIN, S_EP = 64, 96, 97, 98, 100, 10, 3, 26
V_LANE, V_L16, V_STAMP, V_FOFF = 1, 2, 3, 4
EP, FLG = 6, 8
V_AK, V_AV0, V_AV1 = 10, 11, 12
G0 = 14
PM, QA = 16, 24
TMP = 28
SB, NEGM, MG, PB, PF, KF, VF = 32, 64, 96, 128, 144, 152, 192
OACC2 = (160, 176)
KA, QA1, VA = 208, 216, 224

class Role:
    def __init__(self, name):
        self.P, self.name, self.ns, self.nl = Prog(), name, 0, 0
    def stamp(self):
        P = self.P
        if OPT["amp"] == self.ns and OPT["amprole"] == (self.name == "H"):
            P.add(WaitLds())
            P(f"{'s_memtime' if OPT['ampclk'] else 's_memrealtime'} {s(S_TM,2)}\ns_waitcnt lgkmcnt(0)\nv_writelane_b32 {v(V_STAMP)}, {s(S_TM)}, 1")
        if OPT["stamps"]:
            P.add(WaitLds())
            P(f"s_memtime {s(S_TM,2)}\ns_waitcnt lgkmcnt(0)\nv_writelane_b32 {v(V_STAMP)}, {s(S_TM)}, {self.ns + 1}")
            if OPT["rt"]: P(f"s_memrealtime {s(S_TM,2)}\ns_waitcnt lgkmcnt(0)\nv_writelane_b32 {v(V_STAMP)}, {s(S_TM)}, {self.ns + 32}")
        self.ns += 1
    def poll(self, cmp_txt, reload_txt):
        P, n = self.P, f"{self.name}{self.nl}"; self.nl += 1
        P(f"s_mov_b32 {s(S_SPIN)}, 0x40000"); P(cmp_txt)
        P(f"s_cmp_eq_u64 vcc, -1\ns_cbranch_scc1 L_pok{n}")
        P.add(Raw(f"""L_pspin{n}:
    {reload_txt}
    s_sub_u32 {s(S_SPIN)}, {s(S_SPIN)}, 1
    s_cbranch_scc1 L_pok{n}
    s_waitcnt vmcnt(0)
    {cmp_txt}
    s_nop 2
    s_cmp_eq_u64 vcc, -1
    s_cbranch_scc0 L_pspin{n}
L_pok{n}:"""))
    @staticmethod
    def _sloads(n, off):
        if n <= 8: return [f"s_load_dwordx{2*n} {s(4,2*n)}, s[22:23], {s(off)} glc"]
        return [f"s_load_dwordx16 s[4:19], s[22:23], {s(off)} glc", f"s_load_dwordx16 s[64:79], s[22:23], {s(off)} offset:64 glc"]
    def spoll_issue(self, n, off):
        self.P.add(self._sloads(n, off))
    def spoll(self, n, off, ignore_from=None):
        P, lb = self.P, f"{self.name}{self.nl}"; self.nl += 1
        w = lambda i: s(4 + 2*i if i < 8 else 48 + 2*i, 2)
        P.add(WaitLds())
        t = f"    s_mov_b32 {s(S_SPIN)}, 0x40000\nL_sp{lb}:\n"
        for i in range(n - 1):
            if ignore_from is not None:
                t += f"    s_cmp_lt_u32 {s(ignore_from)}, {n - i}\n    s_cselect_b64 {w(i)}, {s(S_EP,2)}, {w(i)}\n"
        for i in range(n):
            t += f"    s_xor_b64 {w(i)}, {w(i)}, {s(S_EP,2)}\n"
            if i: t += f"    s_or_b64 s[4:5], s[4:5], {w(i)}\n"
        t += f"    s_cmp_eq_u64 s[4:5], 0\n    s_cbranch_scc1 L_spok{lb}\n" + "".join(f"    {x}\n" for x in self._sloads(n, off))
        t += f"    s_sub_u32 {s(S_SPIN)}, {s(S_SPIN)}, 1\n    s_waitcnt lgkmcnt(0)\n    s_cbranch_scc0 L_sp{lb}\nL_spok{lb}:"
        P.add(Raw(t))
    def finish(self):
        P = self.P
        if OPT["stamps"]:
            P(f"s_memrealtime {s(S_TM,2)}\ns_waitcnt lgkmcnt(0) vmcnt(0)\nv_writelane_b32 {v(V_STAMP)}, {s(S_TM)}, 63")
            P(f"""s_lshl_b32 {s(S_T0)}, s2, 3
s_add_u32 {s(S_T0)}, {s(S_T0)}, {s(S_W4)}
s_add_u32 {s(S_T0)}, {s(S_T0)}, {4 if self.name == "H" else 0}
s_lshl_b32 {s(S_T0)}, {s(S_T0)}, 8
s_add_u32 {s(S_T0)}, {s(S_T0)}, {WS_STAMP}
v_lshlrev_b32 v0, 2, {v(V_LANE)}
buffer_store_dword {v(V_STAMP)}, v0, {s(S_WS,4)}, {s(S_T0)} offen""")
        if OPT["amp"] >= 0 and OPT["amprole"] == (self.name == "H"):
            P(f"""s_cmp_lg_u32 s2, 100
s_cbranch_scc1 L_end
v_readlane_b32 {s(S_T0)}, {v(V_STAMP)}, 0
v_readlane_b32 {s(S_T1)}, {v(V_STAMP)}, 1
s_memrealtime {s(S_TM,2)}
s_sub_u32 {s(S_T1)}, {s(S_T1)}, {s(S_T0)}
s_mul_i32 {s(S_T1)}, {s(S_T1)}, {OPT["ampk"]}
s_lshr_b32 {s(S_T1)}, {s(S_T1)}, {4 if OPT["ampclk"] else 0}
s_min_u32 {s(S_T1)}, {s(S_T1)}, 100000
s_waitcnt lgkmcnt(0)
s_mov_b32 {s(S_T0)}, {s(S_TM)}""")
            P.add(Raw(f"""L_amp{self.name}:
    s_memrealtime {s(S_TM,2)}
    s_waitcnt lgkmcnt(0)
    s_sub_u32 {s(S_K)}, {s(S_TM)}, {s(S_T0)}
    s_cmp_lt_u32 {s(S_K)}, {s(S_T1)}
    s_cbranch_scc1 L_amp{self.name}"""))
        P("s_endpgm")

ws_ld = lambda dst, voff, soff, imm=0, tag=None: Ins(
    f"buffer_load_dwordx4 {dst}, {v(voff)}, {s(S_WS,4)}, {soff} offen{' offset:%d' % imm if imm else ''} sc1", tag)
ws_st = lambda src, voff, soff, imm=0, tag=None: Ins(
    f"buffer_store_dwordx4 {src}, {v(voff)}, {s(S_WS,4)}, {soff} offen{' offset:%d' % imm if imm else ''} sc1", tag)
ep_load = f"buffer_load_dwordx2 {v(EP,2)}, off, {s(S_DBG,4)}, 0 sc1"
flag_load = f"buffer_load_dwordx2 {v(FLG,2)}, {v(V_FOFF)}, {s(S_WS,4)}, {s(S_K)} offen sc1"
flag_cmp = f"v_cmp_eq_u64 vcc, {v(FLG,2)}, {v(EP,2)}"
def flag_store(data_tag, kind):
    if kind == "kv":
        o = lines(f"""v_mul_u32_u24 v0, 56, {v(V_LANE)}
v_add_u32 v0, 88, v0
s_sub_u32 {s(S_T1)}, 31, {s(S_RB)}
s_min_u32 {s(S_T1)}, {s(S_T1)}, 4
v_cmp_gt_u32 vcc, {s(S_T1)}, {v(V_LANE)}
s_cmp_eq_u32 {s(S_RB)}, 0
s_cselect_b32 {s(S_T1)}, 24, {OOB}
v_mov_b32 v5, {s(S_T1)}
v_cndmask_b32 v0, v5, v0, vcc
s_lshl_b32 {s(S_T0)}, {s(S_HEAD)}, 5
s_add_u32 {s(S_T0)}, {s(S_T0)}, {s(S_RB)}
s_lshl_b32 {s(S_T0)}, {s(S_T0)}, 6
s_add_u32 {s(S_T0)}, {s(S_T0)}, {WS_FKV}""")
    else:
        o = lines(f"""v_lshlrev_b32 v0, 8, {v(V_LANE)}
v_cmp_gt_u32 vcc, 8, {v(V_LANE)}
v_mov_b32 v5, {OOB}
v_cndmask_b32 v0, v5, v0, vcc
s_lshl_b32 {s(S_T0)}, {s(S_RB)}, 8
s_add_u32 {s(S_T0)}, {s(S_T0)}, {s(S_HEAD)}
s_lshl_b32 {s(S_T0)}, {s(S_T0)}, 3
s_add_u32 {s(S_T0)}, {s(S_T0)}, { {"ob": WS_FOB, "oa0": WS_FOA, "oa1": WS_FOA + 65536}[kind] }""")
    return o + [WaitTag(data_tag), Ins(f"buffer_store_dwordx2 {v(EP,2)}, v0, {s(S_WS,4)}, {s(S_T0)} offen sc1", "flag")]

def max_tree(dst, regs, init=False):
    regs, o = list(regs), []
    if not init:
        o.append(f"v_max3_f32 {v(dst)}, {v(regs[0])}, {v(regs[1])}, {v(regs[2])}"); regs = regs[3:]
    while len(regs) >= 2:
        o.append(f"v_max3_f32 {v(dst)}, {v(dst)}, {v(regs[0])}, {v(regs[1])}"); regs = regs[2:]
    if regs: o.append(f"v_max_f32 {v(dst)}, {v(dst)}, {v(regs[0])}")
    return o
def cross_max(m, t):
    return [f"v_mov_b32 {v(t)}, {v(m)}", f"v_permlane32_swap_b32 {v(m)}, {v(t)}", f"v_max_f32 {v(m)}, {v(m)}, {v(t)}"]

def attn_setup(t, tmp):
    r5, hh, cm, u = tmp, tmp + 1, tmp + 2, tmp + 3
    o = lines(f"""v_and_b32 {v(r5)}, 31, {v(V_LANE)}
v_lshrrev_b32 {v(hh)}, 5, {v(V_LANE)}
v_lshlrev_b32 {v(u)}, 2, {v(hh)}
v_sub_u32 {v(cm)}, {v(r5)}, {v(u)}
s_mul_i32 {s(S_T2)}, {s(S_W4)}, {KVH}
s_add_u32 {s(S_T2)}, {s(S_T2)}, {L_KV + t*KVS}
v_add_u32 {v(V_AK)}, {s(S_T2)}, {v(V_L16)}
v_and_b32 {v(u)}, 15, {v(V_LANE)}
v_lshlrev_b32 {v(u)}, 4, {v(u)}
v_lshl_add_u32 {v(u)}, {v(hh)}, 8, {v(u)}
v_and_b32 {v(hh)}, 11, {v(V_LANE)}
v_min_u32 {v(hh)}, 1, {v(hh)}
v_lshlrev_b32 {v(hh)}, 4, {v(hh)}
v_add_u32 {v(hh)}, 0x400, {v(hh)}
v_cndmask_b32 {v(V_AV0)}, {v(hh)}, {v(u)}, {s(S_LO16,2)}
v_subrev_u32 {v(hh)}, 0x200, {v(hh)}
v_cndmask_b32 {v(V_AV1)}, {v(hh)}, {v(u)}, {s(S_LO16,2)}
v_add_u32 {v(V_AV0)}, {s(S_T2)}, {v(V_AV0)}
v_add_u32 {v(V_AV1)}, {s(S_T2)}, {v(V_AV1)}
v_mov_b32 {v(u)}, 0xffff""")
    o += [f"v_cmp_le_i32 {s(S_MASK+2*q,2)}, {8*(q>>2)+(q&3)}, {v(cm)}" for q in range(16)]
    o += [f"v_cndmask_b32 {v(PM+pq)}, 0, {v(u)}, {s(S_MASK+4*pq,2)}" for pq in range(8)]
    o += [f"v_cndmask_b32 {v(PM+pq)}, {v(PM+pq)}, -1, {s(S_MASK+4*pq+2,2)}" for pq in range(8)]
    return o

def gate_finish(addr, tmp):
    o = [f"ds_read_b32 {v(tmp+t)}, {v(addr)} offset:{128*t}" for t in range(2)]
    for op in ("v_mul_f32 {g}, " + fhex(-math.log2(math.e)) + ", {g}", "v_exp_f32 {g}, {g}", "v_add_f32 {g}, 1.0, {g}", "v_rcp_f32 {o}, {g}"):
        o += [op.format(g=v(tmp+t), o=v(G0+t)) for t in range(2)]
    return o

def o_pack(acc, o0, lreg, fac, dst, f):
    return ([f"v_rcp_f32 {v(f)}, {v(acc+lreg)}"] + fac +
            ([f"v_pk_mul_f32 {v(acc+o0+2*i,2)}, {v(acc+o0+2*i,2)}, {v(f,2)} op_sel_hi:[1,0]" for i in range(4)] if OPT["pkm"] else
             [f"v_mul_f32 {v(acc+o0+i)}, {v(f)}, {v(acc+o0+i)}" for i in range(8)]) +
            [f"v_cvt_pk_bf16_f32 {v(dst+i)}, {v(acc+o0+2*i)}, {v(acc+o0+2*i+1)}" for i in range(4)])
def o_store(br, tt, src, tag):
    return [f"s_lshl_b32 {s(S_T0)}, {s(S_RB)}, 17", f"s_lshl_b32 {s(S_T1)}, {s(S_HEAD)}, 10",
            f"s_add_u32 {s(S_T0)}, {s(S_T0)}, {s(S_T1)}", f"s_add_u32 {s(S_T0)}, {s(S_T0)}, {WS_O + br*65536 + tt*32768}",
            ws_st(v(src,4), V_L16, s(S_T0), 0, tag)]

CMA = 64
def window_attention(R, events):
    P = R.P
    Q = lambda t: v((QA, QA1)[t], 4)
    dk, dv = (4, 3) if OPT["deep"] else (2, 2)
    kfr = lambda u: v((240 + 4*(u & 3)) if OPT["deep"] else KF+4*(u & 1), 4) if u < 8 else v(KA+4*(u-8), 4)
    vfr = lambda u, m: v((VF, VF+8, KF)[u % dv]+4*m, 4) if u < 8 else v(VA+8*(u-8)+4*m, 4)
    kread = lambda u: [f"ds_read_b128 {kfr(u)}, {v(V_AK)} offset:{u*KVS}"] if u < 8 else []
    vread = lambda u: [f"ds_read_b128 {vfr(u,0)}, {v(V_AV0)} offset:{u*KVS+1024}",
                       f"ds_read_b128 {vfr(u,1)}, {v(V_AV1)} offset:{u*KVS+1536}"] if u < 8 else []
    M = (TMP, TMP + 2)
    acc = lambda t: v(OACC2[t], 16)
    negm = lambda t: v(NEGM+16*t, 16)
    exps = lambda S: [f"v_exp_f32 {v(S+i)}, {v(S+i)}" for i in range(16)]
    cvts = lambda d, S: [f"v_cvt_pk_bf16_f32 {v(d+k)}, {v(S+2*k)}, {v(S+2*k+1)}" for k in range(8)]
    ev = lambda key: events.pop(key)() if key in events else None
    P(mfma(v(SB+16,16), kfr(8), Q(1), negm(1))); P(mfma(v(MG,16), kfr(8), Q(0), negm(0)))
    P("s_barrier")
    R.stamp()
    P.add(kread(0) + kread(1) + vread(0) + vread(1))
    if OPT["deep"]: P.add(kread(2) + kread(3) + vread(2))
    ev("pre")
    e, c = exps(SB+16), cvts(PB+8, SB+16)
    P.add(e[0:4]); P(mfma(v(SB,16), kfr(0), Q(0), negm(0))); P.add(kread(dk)); P.add(e[4:8]); P.add(c[0:4])
    P(mfma(v(MG+16,16), kfr(9), Q(1), negm(1))); P.add(e[8:12])
    P(mfma(acc(1), vfr(8,0), v(PB+8,4), "0")); P.add(e[12:16]); P.add(c[4:8])
    pend = [mfma(v(SB+16,16), kfr(1), Q(1), negm(1)), mfma(acc(1), vfr(8,1), v(PB+12,4), acc(1))]
    for t in range(2):
        g = MG + 16*t
        seq = [f"v_cndmask_b32 {v(g+i)}, {v(SB+16*t+i)}, {v(g+i)}, {s(S_MASK+2*i,2)}" for i in range(16)]
        seq += [[mfma(v(SB+16*t,16), kfr(1+t), Q(t), negm(t))] + (kread(dk+1) if t == 0 else [])]
        seq += exps(g) + cvts(PF, g)
        seq += [f"v_and_b32 {v(PB+8*t+i)}, {v(PM+i)}, {v(PF+i)}" for i in range(8)]
        seq += [f"v_xor_b32 {v(g+i)}, {v(PF+i)}, {v(PB+8*t+i)}" for i in range(8)]
        at = (0, 8) if t == 0 else (1, 9, 21, 26)
        for i, x in enumerate(seq):
            P.add(x)
            if i in at: P.add(pend.pop(0))
        pend = [mfma(acc(t), vfr(8+t,0), v(PB+8*t,4), acc(1) if t else "0"), mfma(acc(t), vfr(8+t,1), v(PB+8*t+4,4), acc(t)),
                mfma(acc(t), vfr(t,0), v(g,4), acc(t)), [mfma(acc(t), vfr(t,1), v(g+4,4), acc(t))] + (vread(dv) if t == 0 else [])]
    R.stamp()
    if OPT["t2"]: P("s_barrier")
    ev("e1")
    for hs in range(13):
        t = hs & 1; u = (hs >> 1) + 1 + t
        S, Pp = SB + 16*t, PB + 8*t
        e, c = exps(S), cvts(Pp, S)
        nxt = None
        if t == 0 and 0 < hs < 12: nxt = [mfma(v(SB+16,16), kfr(u+1), Q(1), negm(1))]
        if t == 1: nxt = [mfma(v(SB,16), kfr(u), Q(0), negm(0))] + kread(u+dk)
        if hs == 0:
            P.add(e[0:2]); P.add(pend[0]); P.add(e[2:5]); P.add(pend[1]); P.add(e[5:8]); P.add(pend[2])
            P.add(c[0:4]); P.add(e[8:10]); P.add(pend[3]); P.add(e[10:14])
            P(mfma(acc(t), vfr(u,0), v(Pp,4), acc(t))); P.add(e[14:16]); P.add(c[4:8])
        else:
            P.add(e[0:2]); P.add(pend); P.add(e[2:6])
            if nxt: P.add(nxt)
            P.add(e[6:8]); P.add(c[0:4]); P.add(e[8:10])
            P(mfma(acc(t), vfr(u,0), v(Pp,4), acc(t)))
            P.add(e[10:16]); P.add(c[4:8])
        pend = [mfma(acc(t), vfr(u,1), v(Pp+4,4), acc(t))] + (vread(u+dv) if t == 0 else [])
        if OPT["fine"] == 5: R.stamp()
        ev(hs)
    P.add(pend)
    assert not events, events
    P(f"s_mov_b32 {s(S_T1)}, 0x7b800000")
    for t in (1, 0):
        o, m = OACC2[t], M[t]
        P.add([f"v_add_f32 {v(m)}, abs({v(o)}), abs({v(o+8)})", f"v_add_f32 {v(m+1)}, abs({v(o+1)}), abs({v(o+2)})"] +
              [f"v_add_f32 {v(m+(i&1))}, {v(m+(i&1))}, abs({v(o+i)})" for i in range(3, 8)] + [f"v_add_f32 {v(m)}, {v(m)}, {v(m+1)}"])
    P(f"v_add_f32 {v(M[0])}, {v(M[0])}, {v(M[1])}\nv_cmp_lt_f32 vcc, {v(M[0])}, {s(S_T1)}")
    P("s_cmp_eq_u64 vcc, -1\ns_cbranch_scc0 L_exact0\nL_back:")
    R.stamp()

def slow_path():
    return exact_attention(0) + exact_attention(1) + "    s_branch L_back\n"

def exact_attention(t):
    F = Prog(); q, M, acc = v((QA, QA1)[t], 4), TMP, v(OACC2[t], 16)
    KO, VO, G = TMP + 2, TMP + 3, S_T0
    def tile(rel, kdst, vdst):
        o = [f"s_add_i32 {s(S_K)}, {s(G)}, {rel}", f"s_cmp_ge_i32 {s(S_K)}, 0", f"s_cselect_b64 vcc, -1, 0",
             f"s_cselect_b32 {s(S_TM)}, {hex(ONES)}, 0", f"s_max_i32 {s(S_K)}, {s(S_K)}, 0", f"s_lshl_b32 {s(S_K)}, {s(S_K)}, 11",
             f"s_lshl_b32 {s(S_T1)}, {s(S_HEAD)}, 17", f"s_add_u32 {s(S_K)}, {s(S_K)}, {s(S_T1)}",
             f"v_and_b32 {v(KO)}, 0x200, {v(V_L16)}", f"v_cndmask_b32 {v(KO)}, {v(KO)}, {v(V_L16)}, vcc", ws_ld(v(kdst,4), KO, s(S_K))]
        if vdst is not None:
            o += [f"v_mov_b32 {v(vdst+i)}, {s(S_TM)}" for i in range(8)]
            o += [f"s_cmp_lg_u32 {s(S_TM)}, 0", f"s_cselect_b32 {s(S_K)}, {s(S_K)}, {WS_SIZE}", f"s_mov_b64 exec, {s(S_LO16,2)}",
                  ws_ld(v(vdst,4), VO, s(S_K), 1024), ws_ld(v(vdst+4,4), VO, s(S_K), 1536), "s_mov_b64 exec, -1"]
        return o
    F(f"L_exact{t}:\ns_waitcnt vmcnt(0) lgkmcnt(0)\ns_nop 15")
    F(f"""s_lshl_b32 {s(G)}, {s(S_RB)}, 1
s_sub_u32 {s(G)}, {s(G)}, {8 - t}
v_lshrrev_b32 {v(VO)}, 1, {v(V_L16)}
v_and_b32 {v(VO)}, 0x100, {v(VO)}
v_and_b32 {v(KO)}, 0xf0, {v(V_L16)}
v_or_b32 {v(VO)}, {v(VO)}, {v(KO)}""")
    F.add(tile(8, KF, VF)); F.add(tile(0, KF+4, VF+8))
    F(mfma(v(MG,16), v(KF,4), q, "0")); F(mfma(v(SB,16), v(KF+4,4), q, "0"))
    F.add([f"v_cndmask_b32 {v(MG+i)}, {v(SB+i)}, {v(MG+i)}, {s(S_MASK+2*i,2)}" for i in range(16)])
    F.add(max_tree(M, range(MG, MG+16)))
    F(f"s_mov_b32 {s(S_TM+1)}, 7\nL_exact_m{t}:\ns_add_u32 {s(G)}, {s(G)}, 1")
    F.add(tile(0, KF, None))
    F(mfma(v(SB,16), v(KF,4), q, "0"))
    F.add(max_tree(M, range(SB, SB+16), init=True))
    F(f"s_sub_u32 {s(S_TM+1)}, {s(S_TM+1)}, 1\ns_cmp_lg_u32 {s(S_TM+1)}, 0\ns_cbranch_scc1 L_exact_m{t}")
    F.add(cross_max(M, M+1))
    F.add([f"v_sub_f32 {v(MG+i)}, {v(MG+i)}, {v(M)}" for i in range(16)])
    F.add([f"v_exp_f32 {v(MG+i)}, {v(MG+i)}" for i in range(16)])
    F.add([f"v_cvt_pk_bf16_f32 {v(PF+i)}, {v(MG+2*i)}, {v(MG+2*i+1)}" for i in range(8)])
    F.add([f"v_and_b32 {v(PB+i)}, {v(PM+i)}, {v(PF+i)}" for i in range(8)])
    F.add([f"v_xor_b32 {v(PF+i)}, {v(PF+i)}, {v(PB+i)}" for i in range(8)])
    F(mfma(acc, v(VF,4), v(PB,4), "0")); F(mfma(acc, v(VF+4,4), v(PB+4,4), acc))
    F(mfma(acc, v(VF+8,4), v(PF,4), acc)); F(mfma(acc, v(VF+12,4), v(PF+4,4), acc))
    F(f"s_sub_u32 {s(G)}, {s(G)}, 7\ns_mov_b32 {s(S_TM+1)}, 7\ns_nop 15\nL_exact_e{t}:\ns_add_u32 {s(G)}, {s(G)}, 1")
    F.add(tile(0, KF, VF))
    F(mfma(v(SB,16), v(KF,4), q, "0"))
    F.add([f"v_sub_f32 {v(SB+i)}, {v(SB+i)}, {v(M)}" for i in range(16)])
    F.add([f"v_exp_f32 {v(SB+i)}, {v(SB+i)}" for i in range(16)])
    F.add([f"v_cvt_pk_bf16_f32 {v(PB+i)}, {v(SB+2*i)}, {v(SB+2*i+1)}" for i in range(8)])
    F(mfma(acc, v(VF,4), v(PB,4), acc)); F(mfma(acc, v(VF+4,4), v(PB+4,4), acc))
    F(f"s_nop 15\ns_sub_u32 {s(S_TM+1)}, {s(S_TM+1)}, 1\ns_cmp_lg_u32 {s(S_TM+1)}, 0\ns_cbranch_scc1 L_exact_e{t}")
    return finalize(F)

E = Prog()
hg_code = {0: f"s_lshl1_add_u32 {s(S_HG)}, {s(S_T1)}, {s(S_K)}", 1: f"s_lshl2_add_u32 {s(S_HG)}, {s(S_K)}, {s(S_T1)}",
           2: f"s_and_b32 {s(S_HG)}, {s(S_T1)}, 2\ns_add_u32 {s(S_HG)}, {s(S_HG)}, {s(S_K)}\ns_and_b32 {s(S_T1)}, {s(S_T1)}, 1\ns_lshl1_add_u32 {s(S_HG)}, {s(S_HG)}, {s(S_T1)}",
           3: f"s_mul_i32 {s(S_K)}, {s(S_K)}, 3\ns_lshl1_add_u32 {s(S_HG)}, {s(S_T1)}, {s(S_K)}\ns_and_b32 {s(S_HG)}, {s(S_HG)}, 7",
           4: f"s_mul_i32 {s(S_K)}, {s(S_K)}, 5\ns_lshl1_add_u32 {s(S_HG)}, {s(S_T1)}, {s(S_K)}\ns_and_b32 {s(S_HG)}, {s(S_HG)}, 7"}[OPT["hgmap"]]
assert OPT["xmap"] == 3
hb = {4: 2, 3: 1, 2: 0, 1: 3}[OPT["xmap"]]
if OPT["stamps"] or OPT["amp"] >= 0:
    E("s_memtime s[64:65]\ns_memrealtime s[66:67]")
def entry_stamp():
    if OPT["stamps"]:
        return [f"v_mov_b32 {v(V_STAMP)}, 0", f"v_writelane_b32 {v(V_STAMP)}, s64, 0", f"v_writelane_b32 {v(V_STAMP)}, s66, 62"]
    if OPT["amp"] >= 0:
        return [f"v_mov_b32 {v(V_STAMP)}, 0", f"v_writelane_b32 {v(V_STAMP)}, {'s64' if OPT['ampclk'] else 's66'}, 0"]
    return []
code_pf = f"""s_getpc_b64 {s(S_T2,2)}
L_pc:
s_lshl2_add_u32 {s(S_T1)}, {s(S_T0)}, {s(S_W4)}
s_and_b32 {s(S_T1)}, {s(S_T1)}, 63
s_lshl_b32 {s(S_T1)}, {s(S_T1)}, 9
s_sub_u32 {s(S_T2)}, {s(S_T2)}, L_pc-{NAME}_kernel
s_subb_u32 {s(S_T3)}, {s(S_T3)}, 0
v_and_b32 v5, 3, {v(V_LANE)}
v_lshl_add_u32 v5, v5, 7, {s(S_T1)}
global_load_dword v13, v5, {s(S_T2,2)}"""
if OPT["cpf"] == 2:
    E(f"""s_getpc_b64 {s(S_T2,2)}
s_bfe_u32 {s(S_T1)}, s2, 0x50003
v_lshrrev_b32 v5, 6, v0
v_lshlrev_b32 v5, 7, v5
v_lshl_add_u32 v5, {s(S_T1)}, 10, v5
global_load_dword v13, v5, {s(S_T2,2)}""")
if OPT["cpf"] == 3:
    E(f"""s_getpc_b64 {s(S_T2,2)}
s_bfe_u32 {s(S_T1)}, s2, 0x30003
v_lshrrev_b32 v5, 4, v0
v_lshlrev_b32 v5, 7, v5
v_lshl_add_u32 v5, {s(S_T1)}, 12, v5
global_load_dword v13, v5, {s(S_T2,2)}""")
E(f"""
s_cmp_ge_u32 s2, 256
s_cbranch_scc1 L_end
s_load_dwordx16 s[4:19], s[0:1], 0
s_load_dwordx4 s[20:23], s[0:1], 64
v_lshrrev_b32 v4, 6, v0
v_and_b32 {v(V_LANE)}, 63, v0
s_lshr_b32 {s(S_T0)}, s2, 3
v_readfirstlane_b32 {s(S_MX)}, v4
""")
E(f"""
s_and_b32 {s(S_T1)}, s2, {(8 >> hb) - 1}
s_and_b32 {s(S_K)}, {s(S_T0)}, {(1 << hb) - 1}
{hg_code}
s_bfe_u32 {s(S_K)}, s2, {hex((hb << 16) | (3 - hb))}
s_lshl_b32 {s(S_RB)}, {s(S_K)}, {5 - hb}
s_lshr_b32 {s(S_ROT)}, {s(S_T0)}, {hb}
s_add_u32 {s(S_RB)}, {s(S_RB)}, {s(S_ROT)}
s_and_b32 {s(S_W4)}, {s(S_MX)}, 3
""")
if OPT["cpf"] == 1:
    E(f"""s_cmp_lt_u32 {s(S_MX)}, 4
s_cbranch_scc0 L_hrole""")
    E(code_pf)
    E("s_branch L_crole\nL_hrole:")
elif OPT["cpf"] >= 4:
    E(f"""s_cmp_lt_u32 {s(S_MX)}, 4
s_cbranch_scc0 L_hrole
s_getpc_b64 {s(S_T2,2)}
L_pc:
s_lshl2_add_u32 {s(S_T1)}, {s(S_T0)}, {s(S_W4)}
s_lshl_b32 {s(S_T1)}, {s(S_T1)}, 8
s_sub_u32 {s(S_T2)}, {s(S_T2)}, L_pc-{NAME}_kernel
s_subb_u32 {s(S_T3)}, {s(S_T3)}, 0
s_load_dword s70, {s(S_T2,2)}, {s(S_T1)}
s_add_u32 {s(S_T1)}, {s(S_T1)}, 128
s_load_dword s71, {s(S_T2,2)}, {s(S_T1)}""")
    if OPT["cpf"] == 5:
        E("s_waitcnt lgkmcnt(0)")
        for i, ptr in enumerate((6, 12, 4, 16, 20, 8, 14, 18, 22)):
            E(f"s_load_dword s{72+i}, {s(ptr,2)}, 0")
        for i in range(1, 5):
            E(f"s_mov_b32 {s(S_T1)}, {i << 21}\ns_load_dword s{80+i}, s[22:23], {s(S_T1)}")
    E("s_branch L_crole\nL_hrole:")
else:
    E(f"s_cmp_lt_u32 {s(S_MX)}, 4\ns_cbranch_scc1 L_crole")
late_ids = lines(f"""
s_lshr_b32 {s(S_T0)}, s2, 3
s_and_b32 {s(S_RB3)}, s2, 7
s_lshl_b32 {s(S_RB3)}, {s(S_RB3)}, 2
s_lshr_b32 {s(S_T1)}, {s(S_T0)}, 3
s_add_u32 {s(S_RB3)}, {s(S_RB3)}, {s(S_T1)}
s_and_b32 {s(S_CB)}, {s(S_T0)}, 7
s_lshl_b32 {s(S_HEAD)}, {s(S_HG)}, 2
s_add_u32 {s(S_HEAD)}, {s(S_HEAD)}, {s(S_W4)}
s_mov_b32 {s(S_LO16)}, 0xffff
s_mov_b32 {s(S_LO16+1)}, 0xffff
v_lshlrev_b32 {v(V_L16)}, 4, {v(V_LANE)}
""")
rot_code = {
 0: f"s_and_b32 {s(S_ROT)}, {s(S_ROT)}, {OPT['rotmask']}",
 1: f"s_and_b32 {s(S_ROT)}, s2, 7",
 4: f"s_add_u32 {s(S_ROT)}, {s(S_ROT)}, {s(S_HG)}\ns_and_b32 {s(S_ROT)}, {s(S_ROT)}, 7",
 7: f"s_and_b32 {s(S_K)}, {s(S_HG)}, 6\ns_add_u32 {s(S_ROT)}, {s(S_ROT)}, {s(S_K)}\ns_and_b32 {s(S_ROT)}, {s(S_ROT)}, 7",
 8: f"s_lshr_b32 {s(S_K)}, {s(S_HG)}, 1\ns_add_u32 {s(S_ROT)}, {s(S_ROT)}, {s(S_K)}\ns_and_b32 {s(S_ROT)}, {s(S_ROT)}, 7",
 9: f"s_mul_i32 {s(S_K)}, {s(S_HG)}, 3\ns_add_u32 {s(S_ROT)}, {s(S_ROT)}, {s(S_K)}\ns_and_b32 {s(S_ROT)}, {s(S_ROT)}, 7",
 10: f"s_sub_u32 {s(S_ROT)}, {s(S_ROT)}, {s(S_HG)}\ns_and_b32 {s(S_ROT)}, {s(S_ROT)}, 7",
 5: f"s_add_u32 {s(S_ROT)}, {s(S_ROT)}, {s(S_HG)}\ns_and_b32 {s(S_ROT)}, {s(S_ROT)}, 3\ns_lshl_b32 {s(S_ROT)}, {s(S_ROT)}, 1",
 6: f"s_add_u32 {s(S_ROT)}, {s(S_ROT)}, {s(S_HG)}\ns_and_b32 {s(S_ROT)}, {s(S_ROT)}, 1\ns_lshl_b32 {s(S_ROT)}, {s(S_ROT)}, 2",
}[OPT["rotmode"]]

def stage_of(n): return n if n < 16 else 16 + ((n - 16) >> 1)
def first_of_stage(n): return n < 32 and (n == 0 or stage_of(n) != stage_of(n - 1))
def mfma16(d, a, b, c): return f"v_mfma_f32_16x16x32_bf16 {d}, {a}, {b}, {c}"

H = Role("H"); P = H.P
VX, VW1, VW2 = 160, 162, 166
V_AXW, V_AG, V_GPW, GACC, XW, GF = 170, 171, 172, 174, 176, 184
i3, i4, p7, t0, t1, t2 = 32, 33, 34, 35, 36, 37
def raw(i):
    if OPT["fine"] == 3: P(f"s_memtime s[{68+2*i}:{69+2*i}]")
raw(0)
P(rot_code)
P(f"""
v_lshrrev_b32 {v(i3)}, 3, {v(V_LANE)}
v_lshrrev_b32 {v(i4)}, 4, {v(V_LANE)}
v_and_b32 {v(p7)}, 7, {v(V_LANE)}
s_lshl_b32 {s(S_T0)}, {s(S_W4)}, 4
v_add_u32 {v(t0)}, {s(S_T0)}, {v(i3)}
v_lshlrev_b32 {v(t0)}, 10, {v(t0)}
v_xor_b32 {v(t1)}, {v(p7)}, {v(i4)}
v_lshl_add_u32 {v(VX)}, {v(t1)}, 4, {v(t0)}
v_xor_b32 {v(VX+1)}, 64, {v(VX)}
v_add_u32 {v(VX+1)}, {0x2000 - 1024}, {v(VX+1)}
s_lshr_b32 {s(S_T0)}, {s(S_W4)}, 1
s_and_b32 {s(S_T1)}, {s(S_W4)}, 1
s_lshl_b32 {s(S_K)}, {s(S_T0)}, 4
v_add_u32 {v(t0)}, {s(S_K)}, {v(i4)}
v_mul_u32_u24 {v(t0)}, 0xc00, {v(t0)}
v_lshlrev_b32 {v(t1)}, 1, {v(i4)}
v_xor_b32 {v(t1)}, {v(t1)}, {v(p7)}
v_lshl_add_u32 {v(t0)}, {v(t1)}, 4, {v(t0)}
v_and_b32 {v(t1)}, 1, {v(i3)}
v_xor_b32 {v(t1)}, {s(S_T1)}, {v(t1)}
v_lshlrev_b32 {v(t1)}, 10, {v(t1)}
s_lshl_b32 {s(S_T2)}, {s(S_HG)}, 7
s_add_u32 {s(S_K)}, {s(S_T2)}, 1024
v_add3_u32 {v(VW1)}, {v(t0)}, {v(t1)}, {s(S_K)}
v_add_u32 {v(VW1+1)}, {12288 - 1024}, {v(VW1)}
v_xor_b32 {v(t1)}, 0x400, {v(t1)}
v_add3_u32 {v(VW1+2)}, {v(t0)}, {v(t1)}, {s(S_K)}
v_add_u32 {v(VW1+3)}, {3*(12288 - 1024)}, {v(VW1+2)}
v_add_u32 {v(VW1+2)}, {2*(12288 - 1024)}, {v(VW1+2)}
s_lshl_b32 {s(S_MW)}, {s(S_T1)}, 13
s_lshl_b32 {s(S_K)}, {s(S_T0)}, 12
s_add_u32 {s(S_MW)}, {s(S_MW)}, {s(S_K)}
s_lshl_b32 {s(S_MX)}, {s(S_W4)}, 11
s_add_u32 {s(S_MX)}, {s(S_MX)}, {L_X}""")
raw(1)
P("s_waitcnt lgkmcnt(0)")
if OPT["wsoff"]: P(f"s_add_u32 s22, s22, {OPT['wsoff'] << 20}\ns_addc_u32 s23, s23, 0")
raw(2)
if OPT["tlb0"]: P.add(Raw("    s_load_dword s86, s[6:7], 0\n    s_load_dword s87, s[12:13], 0" + ("\n    s_load_dword s88, s[16:17], 0" if OPT["tlb0"] > 1 else "")))
P.add(entry_stamp())
P.add(srd(S_X, 4, 2097152))
P(f"""s_cmp_eq_u32 {s(S_T1)}, 0
s_cselect_b32 {s(S_W)}, s6, s12
s_cselect_b32 {s(S_W+1)}, s7, s13
s_mov_b32 {s(S_W+2)}, 1572864
s_mov_b32 {s(S_W+3)}, 0x20000""")
if OPT["fine"] != 3: H.stamp()
def dma(voff, rsrc, soff, imm, tag, flags=""):
    flags = flags or ("", " sc1", " nt", " sc0", " sc0 sc1")[OPT["dfl"]]
    return Ins(f"buffer_load_dwordx4 {v(voff)}, {s(rsrc,4)}, {soff} offen{' offset:%d' % imm if imm else ''}{flags} lds", tag)
def x_dma(j):
    return [f"s_add_u32 {s(S_K)}, {s(S_ROT)}, {j}", f"s_and_b32 {s(S_K)}, {s(S_K)}, 7", f"s_lshl_b32 {s(S_K)}, {s(S_K)}, 7",
            f"s_lshl_b32 {s(S_T2)}, {s(S_RB)}, 16", f"s_add_u32 m0, {s(S_MX)}, {j*8192}", f"s_add_u32 {s(S_K)}, {s(S_K)}, {s(S_T2)}",
            dma(VX, S_X, s(S_K), 0, f"x{j}"), dma(VX+1, S_X, s(S_K), 1024, f"x{j}")]
def w_dma(S):
    if S < 16:
        o = [f"s_lshl_b32 {s(S_T3)}, {s(S_ROT)}, 1", f"s_add_u32 {s(S_T3)}, {s(S_T3)}, {S}", f"s_and_b32 {s(S_T3)}, {s(S_T3)}, 15"]
    else:
        o = [f"s_add_u32 {s(S_T3)}, {s(S_ROT)}, {S-16}", f"s_and_b32 {s(S_T3)}, {s(S_T3)}, 7"]
    o += [f"s_add_u32 m0, {s(S_MW)}, {(S % NSLOT)*SLOT}", f"s_mul_i32 {s(S_T3)}, {s(S_T3)}, {(32 if S < 16 else 64)*3072}"]
    return o + [dma((VW1 if S < 16 else VW2) + t, S_W, s(S_T3), t*1024, f"w{S}") for t in range(4)]
def code_warm():
    t = (f"    s_getpc_b64 s[78:79]\nL_pc:\n    s_sub_u32 s78, s78, L_pc-{NAME}_kernel\n    s_subb_u32 s79, s79, 0\n    s_lshr_b32 {s(S_T1)}, s2, 3\n"
         f"    s_lshl2_add_u32 {s(S_T1)}, {s(S_T1)}, {s(S_W4)}\n    s_lshl_b32 {s(S_T1)}, {s(S_T1)}, 8\n")
    t += "".join(f"    s_load_dword s{80+i}, s[78:79], {s(S_T1)} offset:{i*64}\n" for i in range(4))
    P.add(Raw(t))
if OPT["worder0"]:
    w0, x0 = w_dma(0), x_dma(0)
    P.add(w0[:6]); P.add(x0[:7]); P(f"s_add_u32 m0, {s(S_MW)}, 0"); P.add(w0[6:]); P(f"s_add_u32 m0, {s(S_MX)}, 0"); P.add(x0[7:])
else:
    P.add(x_dma(0)); P.add(w_dma(0))
if OPT["icat"] == -3: code_warm()
P.add(w_dma(1)); raw(5)
if OPT["icat"] == -2: code_warm()
P(f"""s_lshl_b32 {s(S_K)}, {s(S_ROT)}, 3
v_add_u32 {v(t2)}, {s(S_K)}, {v(V_LANE)}
v_and_b32 {v(t2)}, 63, {v(t2)}
v_lshlrev_b32 {v(t2)}, 4, {v(t2)}""")
P.add(srd(S_G, 16, 1024)); P(f"s_mov_b32 m0, {L_G}"); P.add(dma(t2, S_G, "0", 0, "w1"))
P.add(late_ids)
h_misc = lines(f"""
s_lshr_b32 {s(S_T0)}, {s(S_W4)}, 1
s_and_b32 {s(S_T1)}, {s(S_W4)}, 1
s_lshl_b32 {s(S_T0)}, {s(S_T0)}, 5
v_add_u32 {v(t0)}, {s(S_T0)}, {v(i3)}
v_mul_u32_u24 {v(t0)}, 0xc00, {v(t0)}
v_and_b32 {v(t1)}, 1, {v(i4)}
v_lshlrev_b32 {v(t1)}, 1, {v(t1)}
v_xor_b32 {v(t1)}, {v(t1)}, {v(p7)}
v_lshlrev_b32 {v(t1)}, 4, {v(t1)}
s_lshl_b32 {s(S_T0)}, {s(S_HG)}, 7
v_add3_u32 {v(VW2)}, {v(t0)}, {v(t1)}, {s(S_T0)}
v_xor_b32 {v(t1)}, 64, {v(t1)}
v_add3_u32 {v(VW2+1)}, {v(t0)}, {v(t1)}, {s(S_T0)}
v_add_u32 {v(VW2+2)}, {2*(24576 - 1024)}, {v(VW2)}
v_add_u32 {v(VW2+3)}, {3*(24576 - 1024)}, {v(VW2+1)}
v_add_u32 {v(VW2+1)}, {24576 - 1024}, {v(VW2+1)}
""") + srd(S_WS, 22, WS_SIZE) + srd(S_DBG, 20, 256)
P.add(h_misc)
if OPT["fine"] == 3:
    raw(6); P("s_waitcnt vmcnt(9)"); raw(7); P("s_waitcnt vmcnt(5)"); raw(8); P("s_waitcnt lgkmcnt(0)")
    for i in range(9):
        P(f"v_writelane_b32 {v(V_STAMP)}, s{68+2*i}, {i+1}")
    H.ns = 9
VWO, VKF, V1A, V1D, V_MB, V_HB = 160, 161, 162, 164, 12, 13
txt_of = lambda x: x.text if isinstance(x, Ins) else x
special_txt = []
def gather(tiles, special):
    o = []
    if 0 in tiles:
        o += [f"s_lshl_b32 {s(S_K)}, {s(S_HEAD)}, 17", f"s_lshl_b32 {s(S_T1)}, {s(S_RB)}, 12",
              f"s_add_u32 {s(S_T2)}, {s(S_K)}, {s(S_T1)}", f"s_sub_u32 {s(S_T2)}, {s(S_T2)}, {8*2048}"]
    for u in tiles:
        tag = "kv" if u < 4 or not OPT["t2"] else "kvb"
        o += [f"s_add_u32 {s(S_T0)}, {s(S_T2)}, {u*2048}", f"s_add_u32 m0, {s(S_MW)}, {u*KVS}"]
        if special:
            o += [f"s_cmp_ge_u32 {s(S_RB)}, {(8-u+1)//2}", f"s_cbranch_scc1 L_gk{u}",
                  dma(VKF, S_WS, s(S_K), 0, None, " sc1"), f"s_mov_b32 {s(S_T0)}, {WS_SIZE}", f"s_branch L_gk{u}e", f"L_gk{u}:",
                  dma(V_L16, S_WS, s(S_T0), 0, None, " sc1"), f"L_gk{u}e:"]
        else:
            o += [dma(V_L16, S_WS, s(S_T0), 0, tag, " sc1")]
        o += [dma(V_L16, S_WS, s(S_T0), 1024, tag, " sc1")]
    return o
def emit_gather(n, tiles):
    P(f"s_cmp_lt_u32 {s(S_RB)}, 4\ns_cbranch_scc1 L_gspecial{n}")
    P.add(gather(tiles, False)); P(f"L_gdone{n}:")
    special_txt.append(f"L_gspecial{n}:\n" + "\n".join(("" if txt_of(x).endswith(":") else "    ") + txt_of(x) for x in gather(tiles, True))
                       + f"\n    s_branch L_gdone{n}\n")
S_R3, S_WB, S_MA, S_MB = 24, 25, 30, 31
B0, B1, A0, A1, A2, A3, VOG, EXW, EXR, VOUT = 16, 17, 24, 25, 26, 27, 18, 20, 23, 19
ACC3, OFB, OFA, WBF = 32, 96, 192, 176
if OPT["icpf"] and OPT["icat"] == -1: code_warm()
issued_w, issued_x = 2, 1

for S in range(25):
    if S < 24:
        P.add(WaitTag(f"w{S}", f"x{S >> 1}" if S < 16 else "none"))
    if S < 20: P.add(WaitLds())
    P("s_barrier")
    if OPT["fine"] in (1, 2, 3) or S in (0, 16, 24): H.stamp()
    mark = len(P.items)
    top = {0: 3}.get(S, S + 4)
    if S in (14, 15, 16) and OPT["hold"]: top = min(top, 20 - OPT["hold"])
    while issued_w <= min(top, 23):
        if issued_w < 16 and issued_w % 2 == 0 and issued_x <= issued_w // 2:
            P.add(x_dma(issued_x)); issued_x += 1
        P.add(w_dma(issued_w)); issued_w += 1
    if OPT["icpf"] and S == OPT["icat"]: code_warm()
    if OPT["tlb"] and S in (3, 4, 5, 6):
        for i, (ptr, off) in enumerate({3: ((22, 0), (22, 1)), 4: ((22, 2), (22, 4)), 5: ((22, 3), (20, 0)), 6: ((18, 0),)}[S]):
            P.add(Raw(f"    s_mov_b32 {s(S_T1)}, {off << 21}\n    s_load_dword s{70+i}, {s(ptr,2)}, {s(S_T1)}"))
    if OPT["wopf"] and S in (8, 9, 10, 11):
        ptr, half = (14, 8)[(S - 8) >> 1], S & 1
        t = f"    s_lshl2_add_u32 {s(S_T1)}, s2, {s(S_W4)}\n    s_lshl_b32 {s(S_T1)}, {s(S_T1)}, 9\n"
        t += "".join(f"    s_load_dword s{73+i}, {s(ptr,2)}, {s(S_T1)} offset:{half*256+i*64}\n" for i in range(4))
        P.add(Raw(t))
    if S == 8: P(ep_load)
    if S == 14:
        P(f"""v_lshrrev_b32 v48, 5, {v(V_LANE)}
v_bfe_u32 v49, {v(V_LANE)}, 2, 2
v_lshl_add_u32 v48, v48, 2, v49
v_and_b32 v49, 2, v49
v_bfe_u32 v50, {v(V_LANE)}, 4, 1
v_xor_b32 v49, v49, v50
s_and_b32 {s(S_T1)}, {s(S_W4)}, 2
v_xor_b32 v49, {s(S_T1)}, v49
v_lshlrev_b32 v49, 5, v49
v_lshl_add_u32 v48, v48, 7, v49
v_and_b32 v49, 3, {v(V_LANE)}
v_lshl_add_u32 v48, v49, 3, v48
s_lshl_b32 {s(S_MX)}, {s(S_W4)}, 14
s_lshl_b32 {s(S_T0)}, {s(S_T1)}, 14
v_add_u32 {v(B0)}, {s(S_T0)}, v48
v_xor_b32 {v(B1)}, 64, {v(B0)}
v_xor_b32 v49, 64, v48
s_mul_i32 {s(S_T0)}, {s(S_T1)}, 6144
s_add_u32 {s(S_T0)}, {s(S_T0)}, {L_WA}
v_add_u32 {v(A0)}, {s(S_T0)}, v48
v_add_u32 {v(A1)}, {s(S_T0)}, v49
s_mul_i32 {s(S_T0)}, {s(S_T1)}, 10240
s_add_u32 {s(S_T0)}, {s(S_T0)}, {L_KV}
v_add_u32 {v(A2)}, {s(S_T0)}, v48
v_add_u32 {v(A3)}, {s(S_T0)}, v49
""")
    if S == 15:
        P(f"""s_lshl_b32 {s(S_T0)}, {s(S_W4)}, 12
v_add_u32 {v(EXR)}, {s(S_T0)}, {v(V_L16)}
v_xor_b32 {v(EXW)}, 0x2000, {v(EXR)}
v_and_b32 {v(VOUT)}, 31, {v(V_LANE)}
v_lshlrev_b32 {v(VOUT)}, 10, {v(VOUT)}
v_lshrrev_b32 v48, 5, {v(V_LANE)}
v_lshl_add_u32 {v(VOUT)}, v48, 4, {v(VOUT)}
s_and_b32 {s(S_T2)}, {s(S_W4)}, 1
s_lshl_b32 {s(S_T2)}, {s(S_T2)}, 15
s_lshl_b32 {s(S_T0)}, {s(S_RB3)}, 16
s_add_u32 {s(S_T0)}, {s(S_T0)}, {s(S_T2)}
s_lshl_b32 {s(S_T1)}, {s(S_CB)}, 7
s_add_u32 {s(S_T0)}, {s(S_T0)}, {s(S_T1)}
s_and_b32 {s(S_T1)}, {s(S_W4)}, 2
s_lshl_b32 {s(S_T1)}, {s(S_T1)}, 5
s_add_u32 {s(S_T0)}, {s(S_T0)}, {s(S_T1)}
v_add_u32 {v(VOUT)}, {s(S_T0)}, {v(VOUT)}
s_lshl_b32 {s(S_T0)}, {s(S_RB3)}, 17
s_add_u32 {s(S_T0)}, {s(S_T0)}, {s(S_T2)}
s_lshl_b32 {s(S_T1)}, {s(S_T1)}, 8
s_add_u32 {s(S_T0)}, {s(S_T0)}, {s(S_T1)}
s_add_u32 {s(S_T0)}, {s(S_T0)}, {WS_O}
v_add_u32 {v(VOG)}, {s(S_T0)}, {v(V_L16)}
s_lshl_b32 {s(S_WB)}, {s(S_W4)}, 17
s_lshl_b32 {s(S_T1)}, {s(S_CB)}, 7
s_add_u32 {s(S_WB)}, {s(S_WB)}, {s(S_T1)}
s_lshl3_add_u32 {s(S_R3)}, {s(S_RB3)}, {s(S_CB)}
s_and_b32 {s(S_T1)}, {s(S_W4)}, 2
s_lshl2_add_u32 {s(S_R3)}, {s(S_R3)}, {s(S_T1)}
s_lshl_b32 {s(S_R3)}, {s(S_R3)}, 6""")
    if S == OPT["kvs"]:
        tail = P.items[mark:]; del P.items[mark:]
        P.add(flag_store("none", "kv")); P.items += tail
    if S == 16:
        P("s_waitcnt lgkmcnt(0)")
        H.poll(f"v_cmp_ne_u64 vcc, 0, {v(EP,2)}", ep_load)
        P(f"v_readfirstlane_b32 {s(S_EP)}, {v(EP)}\nv_readfirstlane_b32 {s(S_EP+1)}, {v(EP+1)}")
    if S == 19:
        P.add(srd(S_WOA, 8, 524288) + srd(S_WOB, 14, 524288) + srd(S_OUT, 18, 2097152))
    if S == 20:
        P(f"""v_lshrrev_b32 v48, 3, {v(V_LANE)}
v_bfe_u32 v49, {v(V_LANE)}, 4, 1
v_lshlrev_b32 v49, 2, v49
v_and_b32 v50, 7, {v(V_LANE)}
v_xor_b32 v49, v49, v50
v_lshlrev_b32 v49, 4, v49
v_lshl_add_u32 {v(VWO)}, v48, 10, v49
v_and_b32 {v(VKF)}, 32, {v(V_LANE)}
v_lshlrev_b32 {v(VKF)}, 4, {v(VKF)}
v_mul_u32_u24 {v(V1A)}, {KVS}, v50
v_bfe_u32 v51, {v(V_LANE)}, 3, 1
v_lshl_add_u32 {v(V1A)}, v51, 4, {v(V1A)}
s_mul_i32 {s(S_MW)}, {s(S_W4)}, {KVH}
s_add_u32 {s(S_MW)}, {s(S_MW)}, {L_KV}
s_add_u32 {s(S_T0)}, {s(S_MW)}, 2048
v_add_u32 {v(V1A)}, {s(S_T0)}, {v(V1A)}
s_lshl_b32 {s(S_T0)}, {s(S_RB)}, 1
v_add_u32 v48, {s(S_T0)}, v50
v_cmp_le_u32 vcc, 8, v48
v_mov_b32 v49, {hex(ONES)}
v_cndmask_b32 {v(V1D)}, 0, v49, vcc
v_subrev_u32 v51, 1, v51
v_and_b32 {v(V1D)}, v51, {v(V1D)}
v_mov_b32 {v(V1D+1)}, {v(V1D)}
v_mov_b32 {v(V1D+2)}, {v(V1D)}
v_mov_b32 {v(V1D+3)}, {v(V1D)}
s_mul_i32 {s(S_MA)}, {s(S_W4)}, 6144
s_add_u32 {s(S_MA)}, {s(S_MA)}, {L_WA}
s_mul_i32 {s(S_MB)}, {s(S_W4)}, 10240
s_add_u32 {s(S_MB)}, {s(S_MB)}, {L_KV - 6144}
s_lshl_b32 {s(S_K)}, {s(S_HEAD)}, 5
s_add_u32 {s(S_K)}, {s(S_K)}, {s(S_RB)}
s_lshl_b32 {s(S_K)}, {s(S_K)}, 6
s_add_u32 {s(S_K)}, {s(S_K)}, {WS_FKV}""")
    if S == OPT["gat"] - 1 - OPT["pasy"]:
        H.spoll_issue(4, S_K)
    if S == OPT["gat"] - 1:
        H.spoll(4, S_K, ignore_from=S_RB)
        H.stamp()
    if S == OPT["sents"]:
        P.add([f"v_mov_b32 {v(172+i)}, -1" for i in range(4)])
        P.add(o_store(0, 1, 172, "sent")); P.add(o_store(0, 0, 172, "sent"))
    if S == 23:
        P(f"ds_write_b128 {v(V1A)}, {v(V1D,4)}")
    if S == 24: P.add(Pace(OPT["pace0"]))
    if S == OPT["gat"] + OPT["gdel"]:
        emit_gather(0, tuple(range(OPT['g0'])))
if OPT["p1only"]:
    H.finish()
fs = lambda: H.stamp() if OPT["fine"] == 4 else None
P(f"s_setprio {OPT['hprio']}")
emit_gather(1, tuple(range(OPT['g0'], 8)))
def wo_dma(br):
    o = []
    for t in range(16):
        base = S_MX if br else (S_MA if t < 6 else S_MB)
        g = [f"s_add_u32 m0, {s(base)}, {t*1024}", f"s_add_u32 {s(S_T3)}, {s(S_WB)}, {t*8192}"]
        o.append(g + [dma(VWO, S_WOB if br else S_WOA, s(S_T3), 0, "wob" if br else ("woa" if t < 6 else "woc"))])
    return o
woa, wob = wo_dma(0), wo_dma(1)
P.add(wob[:OPT["wb0"]])
P.add(WaitTag("kv")); P.add(WaitLds()); P("s_barrier")
H.stamp()
if OPT["t2"]: P.add(WaitTag("kvb")); P("s_barrier")
if OPT["sents"] == 25:
    P.add([f"v_mov_b32 {v(172+i)}, -1" for i in range(4)])
    P.add(o_store(0, 1, 172, "sent")); P.add(o_store(0, 0, 172, "sent"))
P.add(Pace(OPT["pace"]))
rest = wob[OPT["wb0"]:] + woa[:6]
if OPT["zbar"]:
    P.add(rest[:OPT["wz"]]); rest = rest[OPT["wz"]:]
    P("s_barrier"); fs(); P.add(flag_store("sent", "ob"))
P.add(rest)
fs()
def o_gather(br):
    o = []
    for hs in range(16):
        if hs % 4 == 0: o += [f"s_mov_b32 {s(S_T1)}, {br*65536 + hs*1024}"]
        o += [ws_ld(v((OFA, OFB)[br]+4*hs,4), VOG, s(S_T1), (hs & 3)*1024)]
    return o
def wo_read(dst, hs, br):
    h, j = hs >> 3, hs & 7
    base, off = ((B0, B1), hs*2048) if br else (((A0, A1), h*6144 + j*2048) if j < 3 else ((A2, A3), h*10240 + (j-3)*2048))
    return [f"ds_read_b64_tr_b16 {v(dst+4*ct+2*q,2)}, {v(base[ct])} offset:{off+q*1024}" for ct in range(2) for q in range(2)]
FIN = ACC3 + 32
def p3(Q, br, hook=lambda hs: None):
    Q.add(wo_read(WBF, 0, br))
    for hs in range(16):
        b = hs & 1
        rd = wo_read(WBF + 8*(1-b), hs + 1, br) if hs < 15 else []
        for ct in ((0, 1) if hs < 15 else (1, 0)):
            acc = v((FIN, ACC3)[br]+16*ct, 16)
            c = acc if hs else ("0" if br else v(ACC3+16*ct, 16))
            Q(mfma(acc, v(WBF+8*b+4*ct,4), v((OFA, OFB)[br]+4*hs,4), c))
            Q.add(rd[2*ct:2*ct+2])
        hook(hs)
def sentinel_scan(hs):
    base = OFA + 4*hs
    first = [f"v_max3_u32 {v(TMP)}, {v(base)}, {v(base+1)}, {v(base+1)}"] if hs == 0 else [f"v_max3_u32 {v(TMP)}, {v(TMP)}, {v(base)}, {v(base+1)}"]
    return first + [f"v_max3_u32 {v(TMP)}, {v(TMP)}, {v(base+2)}, {v(base+3)}"]
P(f"s_add_u32 {s(S_K)}, {s(S_R3)}, {WS_FOB}")
P.add(WaitTag("wob")); P("s_barrier"); fs()
if not OPT["zbar"]: P.add(flag_store("sent", "ob"))
P.add(woa[6:11]); H.spoll_issue(16, S_K); P.add(woa[11:]); fs()
H.spoll(16, S_K); H.stamp()
if OPT["yb"]: P("s_barrier"); fs()
P.add(o_gather(1)); fs()
P(f"s_setprio {OPT['p3prio']}")
p3(P, 1, lambda hs: P.add(o_gather(0)) if hs == OPT["aat"] else None)
H.stamp()
P.add(WaitTag("woa", "woc")); P("s_barrier"); fs()
if OPT["aat"] > 15: P.add(o_gather(0))
test = [f"v_cmp_ne_u32 vcc, -1, {v(TMP)}", "s_cmp_eq_u64 vcc, -1"]
p3(P, 0, lambda hs: P.add(sentinel_scan(hs)))
P.add(test); P("s_cbranch_scc0 L_retry\nL_ok:")
Q = Prog()
Q(f"L_retry:\ns_mov_b32 {s(S_SPIN)}, 0x20000\ns_nop 15\nL_again:"); Q.add(o_gather(0))
Q(f"s_sub_u32 {s(S_SPIN)}, {s(S_SPIN)}, 1\ns_waitcnt vmcnt(0)\ns_cbranch_scc1 L_redo")
for hs in range(16): Q.add(sentinel_scan(hs))
Q.add(test); Q("s_cbranch_scc0 L_again\nL_redo:")
p3(Q, 0); Q("s_nop 15\ns_branch L_ok")
retry_txt = [finalize(Q)]
H.stamp()
P.add([f"ds_write_b128 {v(EXW)}, {v(FIN+16+4*q,4)} offset:{q*1024}" for q in range(4)])
P.add(WaitLds()); P("s_barrier")
P.add([f"ds_read_b128 {v(OFB+4*q,4)}, {v(EXR)} offset:{q*1024}" for q in range(4)])
for hf in range(2):
    P.add([f"v_pk_add_f32 {v(FIN+8*hf+2*i,2)}, {v(FIN+8*hf+2*i,2)}, {v(OFB+8*hf+2*i,2)}" for i in range(4)])
    P.add([f"v_cvt_pk_bf16_f32 {v(WBF+4*hf+i)}, {v(FIN+8*hf+2*i)}, {v(FIN+8*hf+2*i+1)}" for i in (0, 2, 1, 3)])
    P(f"v_permlane32_swap_b32 {v(WBF+4*hf)}, {v(WBF+4*hf+2)}\nv_permlane32_swap_b32 {v(WBF+4*hf+1)}, {v(WBF+4*hf+3)}")
    P(f"buffer_store_dwordx4 {v(WBF+4*hf,4)}, {v(VOUT)}, {s(S_OUT,4)}, 0 offen{' offset:32' if hf else ''}{('', ' sc1', ' nt', ' sc0 sc1')[OPT['outsc']]}")
H.stamp()
H.finish()

C = Role("C"); P = C.P
T1, T3, T2 = 32, 64, 96
XB, WB = 128, 160
V_AX, V_P0L, V_P0H, V_P1L, V_P1H, V_T2L, V_T2H = 192, 194, 195, 196, 197, 198, 199
V_LO, V_HI, V_CMR = 200, 201, 202
VPK = 224
r5, hh, rr, cc, nh, u0, u1, cm, g4 = 128, 129, 130, 131, 132, 133, 134, 135, 140
P("L_crole:")
P.add(late_ids)
if OPT["prio"]: P("s_setprio 1")
P(f"""
v_and_b32 {v(r5)}, 31, {v(V_LANE)}
v_lshrrev_b32 {v(hh)}, 5, {v(V_LANE)}
v_lshrrev_b32 {v(g4)}, 4, {v(V_LANE)}
v_and_b32 {v(u1)}, 15, {v(V_LANE)}
v_lshrrev_b32 {v(u0)}, 1, {v(u1)}
v_xor_b32 {v(u0)}, {v(u0)}, {v(g4)}
v_lshlrev_b32 {v(u0)}, 4, {v(u0)}
v_lshl_add_u32 {v(u0)}, {v(u1)}, 7, {v(u0)}
v_add_u32 {v(V_AX)}, {L_X}, {v(u0)}
v_xor_b32 {v(V_AX+1)}, 64, {v(V_AX)}
v_bfe_u32 {v(rr)}, {v(V_LANE)}, 2, 2
v_and_b32 {v(cc)}, 3, {v(V_LANE)}
v_and_b32 {v(nh)}, 1, {v(g4)}
v_lshl_add_u32 {v(u0)}, {v(g4)}, 3, {v(rr)}
v_xor_b32 {v(u1)}, {s(S_W4)}, {v(rr)}
v_lshlrev_b32 {v(u1)}, 5, {v(u1)}
v_lshl_add_u32 {v(u1)}, {v(cc)}, 3, {v(u1)}
v_lshl_add_u32 {v(u1)}, {v(u0)}, 8, {v(u1)}
v_lshl_add_u32 {v(V_P0L)}, {v(nh)}, 7, {v(u1)}
v_add_u32 {v(V_P0H)}, 0x10000, {v(V_P0L)}
v_xor_b32 {v(V_P1L)}, 0x80, {v(V_P0L)}
v_xor_b32 {v(V_P1H)}, 0x80, {v(V_P0H)}
v_lshrrev_b32 {v(u1)}, 1, {v(rr)}
v_lshl_add_u32 {v(u1)}, {v(nh)}, 1, {v(u1)}
v_xor_b32 {v(u1)}, {s(S_W4)}, {v(u1)}
v_lshlrev_b32 {v(u1)}, 5, {v(u1)}
v_lshl_add_u32 {v(u1)}, {v(cc)}, 3, {v(u1)}
v_lshl_add_u32 {v(V_T2L)}, {v(u0)}, 7, {v(u1)}
v_add_u32 {v(V_T2H)}, 0x10000, {v(V_T2L)}
v_and_b32 {v(u0)}, 15, {v(V_LANE)}
v_lshlrev_b32 {v(u0)}, 4, {v(u0)}
v_lshl_add_u32 {v(u0)}, {v(hh)}, 8, {v(u0)}
v_lshl_add_u32 {v(V_LO)}, {v(nh)}, 31, {v(u0)}
v_xor_b32 {v(V_HI)}, {OOB}, {v(V_LO)}
v_lshlrev_b32 {v(u0)}, 2, {v(hh)}
v_sub_u32 {v(cm)}, {v(r5)}, {v(u0)}
v_sub_u32 {v(u0)}, 32, {v(cm)}
v_mov_b32 {v(u1)}, {hex(~0x55540001 & 0xffffffff)}
v_alignbit_b32 {v(V_CMR)}, {v(u1)}, {v(u1)}, {v(u0)}
s_waitcnt lgkmcnt(0)""")
if OPT["wsoff"]: P(f"s_add_u32 s22, s22, {OPT['wsoff'] << 20}\ns_addc_u32 s23, s23, 0")
P.add(entry_stamp())
P(f"""s_memrealtime {s(S_TM,2)}
s_mov_b32 {s(S_C)}, {fhex(QK_SCALE)}
s_mov_b32 {s(S_C+1)}, {fhex(QK_SCALE)}
""")
def l2_prefetch():
    a, b = 140, 141
    o = lines(f"""s_lshr_b32 {s(S_T0)}, s2, 3
s_and_b32 {s(S_T1)}, {s(S_HG)}, 4
s_lshl_b32 {s(S_T1)}, {s(S_T1)}, 7
v_and_b32 {v(a)}, 3, {v(V_LANE)}
v_lshlrev_b32 {v(a)}, 7, {v(a)}
s_cmp_eq_u32 {s(S_W4)}, 2
s_cbranch_scc1 L_pfx
s_cmp_eq_u32 {s(S_W4)}, 3
s_cbranch_scc1 L_pfq
s_cmp_eq_u32 {s(S_W4)}, 0
s_cselect_b32 {s(S_W)}, s6, s12
s_cselect_b32 {s(S_W+1)}, s7, s13
s_mov_b32 {s(S_W+2)}, 1572864
s_mov_b32 {s(S_W+3)}, 0x20000
v_bfe_u32 {v(b)}, {v(V_LANE)}, 2, 1
v_lshl_add_u32 {v(a)}, {v(b)}, 10, {v(a)}
v_lshrrev_b32 {v(b)}, 3, {v(V_LANE)}
v_mul_u32_u24 {v(b)}, 0xc00, {v(b)}
v_add_u32 {v(a)}, {v(a)}, {v(b)}
s_mul_i32 {s(S_T0)}, {s(S_T0)}, {8*3072}
s_add_u32 {s(S_T0)}, {s(S_T0)}, {s(S_T1)}
s_add_u32 {s(S_T0)}, {s(S_T0)}, 1024
buffer_load_dword v190, {v(a)}, {s(S_W,4)}, {s(S_T0)} offen
s_add_u32 {s(S_T0)}, {s(S_T0)}, {256*3072}
buffer_load_dword v191, {v(a)}, {s(S_W,4)}, {s(S_T0)} offen
s_branch L_pfe
L_pfx:
s_mov_b32 {s(S_W)}, s4
s_mov_b32 {s(S_W+1)}, s5
s_mov_b32 {s(S_W+2)}, 2097152
s_mov_b32 {s(S_W+3)}, 0x20000
v_lshrrev_b32 {v(b)}, 2, {v(V_LANE)}
v_lshl_add_u32 {v(a)}, {v(b)}, 10, {v(a)}
s_lshl_b32 {s(S_T0)}, {s(S_T0)}, 14
s_and_b32 {s(S_T1)}, {s(S_RB)}, 24
s_lshl_b32 {s(S_T1)}, {s(S_T1)}, 16
s_add_u32 {s(S_T0)}, {s(S_T0)}, {s(S_T1)}
buffer_load_dword v190, {v(a)}, {s(S_W,4)}, {s(S_T0)} offen
buffer_load_dword v191, {v(a)}, {s(S_W,4)}, {s(S_T0)} offen offset:512
s_branch L_pfe
L_pfq:
s_mov_b32 {s(S_W)}, s6
s_mov_b32 {s(S_W+1)}, s7
s_mov_b32 {s(S_W+2)}, 1572864
s_mov_b32 {s(S_W+3)}, 0x20000
v_lshrrev_b32 {v(b)}, 2, {v(V_LANE)}
v_mul_u32_u24 {v(b)}, 0xc00, {v(b)}
v_add_u32 {v(a)}, {v(a)}, {v(b)}
s_mul_i32 {s(S_T0)}, {s(S_T0)}, {16*3072}
s_add_u32 {s(S_T0)}, {s(S_T0)}, {s(S_T1)}
buffer_load_dword v190, {v(a)}, {s(S_W,4)}, {s(S_T0)} offen
s_mov_b32 {s(S_W)}, s12
s_mov_b32 {s(S_W+1)}, s13
buffer_load_dword v191, {v(a)}, {s(S_W,4)}, {s(S_T0)} offen
L_pfe:""")
    P.add(Raw("\n".join(("" if l.endswith(":") else "    ") + l for l in o)))
    P("s_nop 0")
if OPT["pf"] == 1: l2_prefetch()
P.add(srd(S_WS, 22, WS_SIZE) + srd(S_DBG, 20, 256))
P(f"""s_cmp_eq_u32 s2, 0
s_cselect_b32 {s(S_T2)}, 0, {OOB}
v_lshlrev_b32 v5, 8, v0
v_or_b32 v5, {s(S_T2)}, v5
s_waitcnt lgkmcnt(0)
v_mov_b32 {v(EP)}, {s(S_TM)}
v_mov_b32 {v(EP+1)}, {s(S_TM+1)}
buffer_store_dwordx2 {v(EP,2)}, v5, {s(S_DBG,4)}, 0 offen sc1""")
V_AXW, V_AG, V_GPW, V_GPR, XW, GF, GACC = 4, 8, 9, 13, 240, 248, 204
P(f"""s_lshl_b32 {s(S_T2)}, {s(S_W4)}, 11
v_add_u32 {v(V_AXW)}, {s(S_T2)}, {v(V_AX)}
v_add_u32 {v(V_AXW+1)}, {s(S_T2)}, {v(V_AX+1)}
v_lshlrev_b32 {v(V_AG)}, 4, {v(g4)}
v_add_u32 {v(V_AG)}, {L_G}, {v(V_AG)}
v_lshlrev_b32 {v(V_GPR)}, 2, {v(r5)}
v_add_u32 {v(V_GPR)}, {L_GP}, {v(V_GPR)}
v_and_b32 {v(u0)}, 15, {v(V_LANE)}
s_lshl_b32 {s(S_T2)}, {s(S_W4)}, 6
s_add_u32 {s(S_T2)}, {s(S_T2)}, {L_GP}
v_lshl_add_u32 {v(V_GPW)}, {v(u0)}, 2, {s(S_T2)}""")
def x_warm(js):
    t = (f"    s_lshl2_add_u32 {s(S_T0)}, s2, {s(S_W4)}\n    s_lshr_b32 {s(S_T1)}, {s(S_T0)}, 5\n    s_lshl_b32 {s(S_T0)}, {s(S_T0)}, 11\n")
    for j in js:
        t += f"    s_add_u32 {s(S_K)}, {s(S_T1)}, {j}\n    s_and_b32 {s(S_K)}, {s(S_K)}, 7\n    s_lshl_b32 {s(S_K)}, {s(S_K)}, 7\n    s_add_u32 {s(S_K)}, {s(S_K)}, {s(S_T0)}\n"
        t += "".join(f"    s_load_dword s{28+i}, s[4:5], {s(S_K)} offset:{(i >> 1)*1024 + (i & 1)*64}\n" for i in range(4))
    P.add(Raw(t))
if OPT["xwarm"] == 1: x_warm((1, 2, 3))
P.add(attn_setup(0, 136))
if OPT["xwarm"] == 2: x_warm((1, 2, 3))
if OPT["xwarm"]:
    P("s_waitcnt lgkmcnt(0)"); x_warm((4, 5, 6)); P("s_waitcnt lgkmcnt(0)"); x_warm((7,)); P("s_waitcnt lgkmcnt(0)")
C.stamp()

CM, QB, KB, VB, KBH, VBH, BP, BPL, BPK, SENT, S_R0 = 176, 248, 240, 32, 80, 84, 192, 88, 88, 220, 24
BS2, BSP2, BO2 = (96, 48), (128, 112), (160, 144)
nohalo = [""]
def b_scores(t):
    kprev = v(KB, 4) if t == 1 else v(KBH, 4)
    return [mfma(v(BS2[t],16), v(KB+4*t,4), v(QB+4*t,4), v(CM,16)), mfma(v(BSP2[t],16), kprev, v(QB+4*t,4), v(CM,16))]
def b_softmax(t):
    S, sp, m, p, pl = BS2[t], BSP2[t], TMP + 2*t, BP + 8*t, BPL + 4*t
    o = [f"v_cndmask_b32 {v(S+q)}, {v(S+q)}, {v(sp+q)}, {s(S_LO16,2)}" for q in range(8, 16)]
    if t == 0:
        o += [[f"s_cmp_eq_u32 {s(S_RB)}, 0", "s_cbranch_scc1 L_nohalo", "L_halo:"]]
        nohalo[0] = ("L_nohalo:\n" + f"    v_mov_b32 {v(m)}, {hex(NEG_BIG)}\n" +
                     "".join(f"    v_cndmask_b32 {v(S+q)}, {v(S+q)}, {v(m)}, {s(S_LO16,2)}\n" for q in range(8, 16)) + "    s_branch L_halo\n")
    o += max_tree(m, range(S, S+16)) + cross_max(m, m+1)
    o += [f"v_pk_add_f32 {v(S+2*q,2)}, {v(S+2*q,2)}, {v(m,2)} op_sel_hi:[1,0] neg_lo:[0,1] neg_hi:[0,1]" for q in range(8)]
    o += [f"v_exp_f32 {v(S+q)}, {v(S+q)}" for q in range(16)]
    o += [f"v_cvt_pk_bf16_f32 {v(p+i)}, {v(S+2*i)}, {v(S+2*i+1)}" for i in range(8)]
    o += [f"v_cndmask_b32 {v(pl+i)}, 0, {v(p+4+i)}, {s(S_LO16,2)}" for i in range(4)]
    o += [f"v_cndmask_b32 {v(p+4+i)}, {v(p+4+i)}, 0, {s(S_LO16,2)}" for i in range(4)]
    return o
def b_pv(t):
    vprev, acc, p = v(VB+4, 4) if t == 1 else v(VBH, 4), v(BO2[t], 16), BP + 8*t
    return [mfma(acc, v(VB+8*t,4), v(p,4), "0"), mfma(acc, v(VB+8*t+4,4), v(p+4,4), acc), mfma(acc, vprev, v(BPL+4*t,4), acc)]
def b_pack(t):
    f = 200 + 2*t
    return o_pack(BO2[t], 8, 0, [f"v_sub_f32 {v(f+1)}, 1.0, {v(G0+t)}", f"v_mul_f32 {v(f)}, {v(f)}, {v(f+1)}"], BPK+4*t, f)
def frag_reads(n):
    b, m = n & 1, n & 15
    j, u2 = m >> 1, m & 1
    base = (stage_of(n) % NSLOT) * SLOT
    hi = base >= 65536; off = base - (65536 if hi else 0)
    x = [f"ds_read_b128 {v(XB+16*b+4*tg,4)}, {v(V_AX+u2)} offset:{j*8192+tg*2048}" for tg in range(4)]
    if n < 16:
        w = [f"ds_read_b64_tr_b16 {v(WB+16*b+4*f+2*qd,2)}, {v(((V_P0L,V_P0H),(V_P1L,V_P1H))[pos][hi])} offset:{off+M*8192+qd*1024}"
             for f, (M, pos) in enumerate(((0, 0), (1, 1), (0, 1), (1, 0))) for qd in range(2)]
        return w[0:2] + x[0:2] + w[2:4] + x[2:4] + w[4:8]
    w = [f"ds_read_b64_tr_b16 {v(WB+8*b+4*M+2*qd,2)}, {v((V_T2L,V_T2H)[hi])} offset:{off+M*8192+u2*4096+qd*512}" for M in range(2) for qd in range(2)]
    return w[0:2] + x[0:2] + w[2:4] + x[2:4]
def step_mfmas(n):
    b = n & 1
    x = lambda tg: v(XB+16*b+4*tg, 4)
    c = lambda r: "0" if n in (0, 16) else v(r, 4)
    kq = lambda T, wbase: [mfma16(v(T+16*f+4*tg,4), v(wbase+4*f,4), x(tg), c(T+16*f+4*tg)) for hf in range(2) for f in range(2) for tg in (2*hf, 2*hf+1)]
    if n < 16:
        return kq(T1, WB+16*b) + [mfma16(v(T3+16*f+4*tg,4), x(tg), v(WB+16*b+8+4*f,4), c(T3+16*f+4*tg)) for f in range(2) for tg in range(4)]
    return kq(T2, WB+8*b)
def kq_frag(dst, T, tt, scale):
    a = T + 8*tt
    o = [f"v_pk_mul_f32 {v(a+2*i,2)}, {v(a+2*i,2)}, {s(S_C,2)}" for i in range(4)] if scale else []
    o += [f"v_cvt_pk_bf16_f32 {v(dst+i)}, {v(a+2*i)}, {v(a+2*i+1)}" for i in (0, 2, 1, 3)]
    return o, [f"v_permlane16_swap_b32 {v(dst+i)}, {v(dst+2+i)}" for i in range(2)]
def v_frag(tg):
    d = VPK + 4*tg
    o = [f"v_cvt_pk_bf16_f32 {v(d+2*f+i)}, {v(T3+16*f+4*tg+2*i)}, {v(T3+16*f+4*tg+2*i+1)}" for i in range(2) for f in range(2)]
    return o, [f"v_permlane16_swap_b32 {v(d+i)}, {v(d+2+i)}" for i in range(2)], [f"v_permlane32_swap_b32 {v(d+i)}, {v(d+2+i)}" for i in range(2)]
def kv_publish():
    o = [f"s_lshl_b32 {s(S_T0)}, {s(S_HEAD)}, 17", f"s_lshl_b32 {s(S_T1)}, {s(S_RB)}, 12", f"s_add_u32 {s(S_T0)}, {s(S_T0)}, {s(S_T1)}"]
    k = [kq_frag(KA+4*tt, T1, tt, True) for tt in range(2)]
    o += k[0][0] + k[1][0] + k[0][1] + k[1][1] + [ws_st(v(KA+4*tt,4), V_L16, s(S_T0), tt*2048, "kv") for tt in range(2)]
    for tt in range(2):
        f = [v_frag(2*tt + m) for m in range(2)]
        o += f[0][0] + f[1][0] + f[0][1] + f[1][1] + f[0][2] + f[1][2]
        o += [ws_st(v(VPK+8*tt+4*m,4), V_LO, s(S_T0), tt*2048+1024+m*512, "kv") for m in range(2)]
    o += [f"s_lshl_b32 {s(S_T0)}, {s(S_HEAD)}, 15", f"s_lshl_b32 {s(S_T1)}, {s(S_RB)}, 10",
          f"s_add_u32 {s(S_T0)}, {s(S_T0)}, {s(S_T1)}", f"s_add_u32 {s(S_T0)}, {s(S_T0)}, {WS_HB}",
          ws_st(v(VPK+12,4), V_HI, s(S_T0), 512, "kv")]
    k = [kq_frag(KB+4*tt, T1+16, tt, True) for tt in range(2)]
    o += k[1][0] + k[0][0] + k[1][1] + [ws_st(v(KB+4,4), V_HI, s(S_T0), 0, "kv")] + k[0][1]
    return o

if OPT["p1only"]:
    P("s_barrier\n" * 25 + "s_endpgm")
P("s_barrier")
C.stamp()
P.add(frag_reads(0))
queue = []
gf = gate_finish(V_GPR, 88)
qb0, qb1, qa0, qa1 = kq_frag(QB, T2+16, 0, False), kq_frag(QB+4, T2+16, 1, False), kq_frag(QA, T2, 0, False), kq_frag(QA1, T2, 1, False)
for n in range(32):
    mf = step_mfmas(n)
    sync = first_of_stage(n + 1) or n == 31
    nxt_stage = stage_of(n + 1) if n < 31 else 24
    rd = frag_reads(n + 1) if n < 31 else []
    if n < 16:
        m, gb = (n + 1) & 15, (n + 1) & 1
        rd = rd + [f"ds_read_b128 {v(GF+4*gb,4)}, {v(V_AG)} offset:{m*64}", f"ds_read_b128 {v(XW+4*gb,4)}, {v(V_AXW+gb)} offset:{(m >> 1)*8192}"]
    gm = [mfma16(v(GACC,4), v(GF+4*(n&1),4), v(XW+4*(n&1),4), "0" if n == 1 else v(GACC,4))] if 1 <= n <= 16 else []
    late = []
    if n == 15:
        pub = kv_publish()
        if OPT["early"]:
            late, pub = pub[:25], pub[25:]
            mf = [mf[i] for i in (0, 1, 4, 5, 8, 9, 10, 11, 12, 13, 14, 15, 2, 3, 6, 7)]
    if n == 16: queue += pub
    if n == 31 and OPT["early"]:
        mf = [mf[i] for i in (2, 3, 6, 7, 0, 1, 4, 5)]
        late = gf[2:] + qb0[0] + qb1[0] + qb0[1] + qb1[1]
    if n == 21:
        queue += [f"v_and_b32 {v(TMP)}, 11, {v(V_LANE)}", f"v_mov_b32 {v(TMP+1)}, {hex(ONES)}", f"v_cmp_eq_u32 vcc, 0, {v(TMP)}",
                  f"v_cndmask_b32 {v(TMP)}, 0, {v(TMP+1)}, vcc", f"v_mov_b32 {v(TMP+1)}, {hex(NEG_BIG)}"]
        queue += [f"v_mov_b32 {v(VBH+i)}, {v(TMP)}" for i in range(4)]
        queue += [f"v_cndmask_b32 {v(VB+i)}, {v(VPK+i)}, {v(TMP)}, {s(S_LO16,2)}" for i in range(16)]
        queue += [f"v_cndmask_b32 {v(VA+i)}, {v(TMP)}, {v(VPK+i)}, {s(S_LO16,2)}" for i in range(16)]
        queue += [f"v_cndmask_b32 {v(CMA+q)}, {v(TMP+1)}, 0, {s(S_MASK+2*q,2)}" for q in range(16)]
        queue += [f"v_bfe_i32 {v(CM+q)}, {v(V_CMR)}, {8*(q>>2)+(q&3)}, 1" for q in range(16)]
        queue += [f"v_and_b32 {v(CM+q)}, {v(TMP+1)}, {v(CM+q)}" for q in range(16)]
    if n == 16: mf = mf[:2] + gm + mf[2:]
    else: mf = mf + gm
    post = []
    pre = []
    if sync and nxt_stage == 23:
        (pre if OPT["gpre"] else post).append(f"ds_write_b32 {v(V_GPW)}, {v(GACC)}")
    if sync and nxt_stage == OPT["gat"]:
        rd = rd + [lines(f"""s_lshl_b32 {s(S_T0)}, {s(S_HEAD)}, 15
s_lshl_b32 {s(S_T1)}, {s(S_RB)}, 10
s_add_u32 {s(S_T0)}, {s(S_T0)}, {s(S_T1)}
s_add_u32 {s(S_T0)}, {s(S_T0)}, {WS_HB - 1024}
s_cmp_eq_u32 {s(S_RB)}, 0
s_cselect_b32 {s(S_T0)}, {WS_SIZE}, {s(S_T0)}""") + [ws_ld(v(KBH,4), V_HI, s(S_T0)), f"s_not_b64 exec, {s(S_LO16,2)}",
                 ws_ld(v(VBH,4), V_HI, s(S_T0), 512), "s_mov_b64 exec, -1"]]
    if n == 31: post += gf[:2]
    take = 8 if n < 16 else (OPT["take"] if n < 21 else OPT["take2"])
    side = queue[:take]; queue = queue[take:]
    P.add(pre); P(mf[0]); P(mf[1])
    if sync:
        if nxt_stage == OPT["kvs"]: P.add(WaitTag("kv")); C.stamp()
        P.add(WaitLds()); P("s_barrier")
        if OPT["fine"] in (1, 2, 3): C.stamp()
    P.add(post)
    body, k = rd, len(mf) - 2
    nr = max(1, k - (4 if n < 16 else 2))
    for i in range(k + 1):
        lo, hi_ = len(body) * i // nr, len(body) * (i + 1) // nr
        if i < nr: P.add(body[lo:hi_])
        slo, shi = len(side) * i // (k + 1), len(side) * (i + 1) // (k + 1)
        P.add(side[slo:shi])
        i0 = 7 if n == 15 else 2
        if late and i >= i0: P.add(late[len(late) * (i - i0) // (k + 1 - i0):len(late) * (i - i0 + 1) // (k + 1 - i0)])
        if i < k: P(mf[2 + i])
    if n == 15 or (OPT["fine"] == 6 and n < 31): C.stamp()
assert not queue
C.stamp()
sc = interleave(b_scores(0), b_scores(1))
if OPT["early"]:
    P(sc[1]); P.add(qa0[0]); P(sc[2]); P.add(qa1[0]); P(sc[0]); P.add(qa0[1] + qa1[1]); P(sc[3])
else:
    P.add(gf[2:]); P.add(qb0[0] + qa0[0] + qb0[1] + qb1[0] + qa1[0])
    P(sc[2]); P.add(qb1[1] + qa0[1]); P(sc[0]); P.add(qa1[1]); P(sc[1]); P(sc[3])
s1, s0 = b_softmax(1), b_softmax(0)
P.add(s0[:2])
sm = interleave(s0[2:9], s1[:7]) + interleave(s0[9:], s1[7:])
P.add(sm[:-16])
pv = interleave(b_pv(0), b_pv(1))
P(mfma(v(MG+16,16), v(KA+4,4), v(QA1,4), v(CMA,16))); P.add(sm[-16:-10]); P(mfma(v(MG,16), v(KA,4), v(QA,4), v(CMA,16))); P.add(sm[-10:])
mx = interleave(*[max_tree((TMP, TMP+2)[t], range(MG+16*t, MG+16*t+16)) + cross_max((TMP, TMP+2)[t], (TMP, TMP+2)[t]+1) for t in (1, 0)])
for i, m in enumerate(pv):
    P(m); P.add(mx[4*i:4*i+4])
ng = [[f"v_pk_add_f32 {v(NEGM+16*t+2*i,2)}, 0, {v((TMP, TMP+2)[t],2)} op_sel_hi:[0,0] neg_lo:[0,1] neg_hi:[0,1]" for i in range(8)] for t in range(2)]
P.add(ng[0])
BPK = 192
P.add(interleave(b_pack(0), b_pack(1)))
P.add(o_store(1, 0, BPK, "ob")); P.add(o_store(1, 1, BPK+4, "ob"))
P.add(ng[1])
C.stamp()
cs = lambda: C.stamp() if OPT["fine"] == 4 else None
cev = {("e1" if OPT["xhs"] < 0 else OPT["xhs"]): lambda: (P.add(WaitTag("ob")) if OPT["f2by"] else None, P.add(WaitLds()), P("s_barrier"))}
if not OPT["f2by"]: cev["e1" if OPT["f2hs"] < 0 else OPT["f2hs"]] = lambda: (cs(), P.add(flag_store("ob", "ob")), cs())
if OPT["zbar"]: cev[("e1", 0, 1)[OPT["zbar"] - 1]] = lambda: (P.add(WaitTag("ob")), P("s_barrier"))
window_attention(C, cev)
P.add(interleave(*[o_pack(OACC2[t], 0, 8, [f"v_mul_f32 {v(TMP+2*t)}, {v(TMP+2*t)}, {v(G0+t)}"], PF+4*t, TMP+2*t) for t in (1, 0)]))
P.add(o_store(0, 1, PF+4, "oa")); P.add(o_store(0, 0, PF, "oa"))
if OPT["yb"]: P("s_barrier")
C.stamp()
C.finish()

full = Prog(); full.items = E.items + H.P.items
bodyH = finalize(full, verbose=True)
full = Prog(); full.items = [Ins("s_load_dwordx16 s[4:19], s[0:1], 0"), Ins("global_load_dword v13, v5, s[96:97]")] + C.P.items
bodyC = "\n".join(finalize(full, verbose=True).split("\n")[2:])
print("stamps H", H.ns, "C", C.ns)
hdr = open("cdna_kernels/%s.s.ref" % NAME).read().split("; Override launch")[0]
if OPT["stamps"]: hdr += f"; stamps {C.ns} {H.ns}\n"
txt = hdr + f"""; Single launch, 256 workgroups x 8 waves, one workgroup per CU (4 heads x 64 rows of both branches).
;   waves 0-3: QKV projection (one head each), dilated attention, sliding-window attention
;   waves 4-7: LDS-DMA streaming of x / weights / key-value tiles, then one 64x64 tile of the output projection
; Hand-offs between workgroups go through d_ws with write-through stores; flags carry a per-launch epoch published
; through d_debug, and the windowed-branch result slots are first filled with all-ones and re-read until overwritten.
; Window softmax: the shift is the maximum over the diagonal key tile; if a sum or output leaves the safe range the
; tile is recomputed with the true row maximum (L_exact0 / L_exact1).
; @launch grid=(256,1,1) block=(512,1,1) lds={LDS_BYTES}
.amdgcn_target "amdgcn-amd-amdhsa--gfx950"
.text
.globl {NAME}_kernel
.p2align 12
.p2align 8
.type {NAME}_kernel,@function
{NAME}_kernel:
{bodyH}{bodyC}L_end:
    s_endpgm
{nohalo[0]}{''.join(retry_txt)}{''.join(special_txt)}{slow_path()}    .fill 3072, 4, 0xbf800000
.section .rodata,"a"
.p2align 6
.amdhsa_kernel {NAME}_kernel
  .amdhsa_next_free_vgpr 256
  .amdhsa_next_free_sgpr 102
  .amdhsa_accum_offset {192 if OPT['xp'] == 8 else 256}
  .amdhsa_group_segment_fixed_size 0
  .amdhsa_kernarg_size 80
  .amdhsa_user_sgpr_count 2
  .amdhsa_user_sgpr_kernarg_segment_ptr 1
  .amdhsa_system_sgpr_workgroup_id_x 1
.end_amdhsa_kernel
"""
open(sys.argv[1], "w").write(txt)
```

```python
import sys, math, struct
from asmdsl import Prog, Ins, WaitTag, WaitLds, Raw, Pace, finalize

NAME = "gated_mix__sliding_block__sliding_local_dilated__prompt"
OPT = dict(wqpf=0, wopf0=8, yb=0, aat=99, pkm=0, icat=-2, tlb0=0, worder0=0, g0=2, deep=0, xwarm=0, hgmap=0, hold=0, sents=21, pasy=1, gpre=1, take2=16, t2=0, rtail=1, dfl=0, kvs=19, bsplit=0, pace=0, pace0=0, pacez=0, gat=23, gdel=0, f2hs=-1, f2by=1, wb0=4, zbar=3, wz=18, probe=0, amode=0, worder=0, xhs=3, hprio=2, p3prio=0, wopf=1, tlb=1, icpf=1, cpf=0, take=96, early=1, kvflag=42, pubat=32, prio=1, barpos=0,
           xmap=3, rotmode=4, rotmask=7, outsc=0, stamps=0, fine=0, rt=0, xp=0, wsoff=0, amp=-1, ampk=8, amprole=1, ampclk=0, p1only=0, pf=0)
for a in sys.argv[2:]:
    k, v_ = a.split("="); assert k in OPT, k; OPT[k] = int(v_)

WS_KV, WS_HB, WS_O = 0, 4 << 20, 5 << 20
WS_FKV, WS_FOB, WS_FOA = 9 << 20, (9 << 20) + 65536, (9 << 20) + 131072
WS_STAMP, WS_SIZE = 10 << 20, 16 << 20
OOB = 0x80000000
NSLOT, SLOT = 5, 16384
L_X, L_WA, L_G, L_GP, LDS_BYTES = 81920, 132096, 156672, 157696, 158720
KVH, KVS, L_KV, L_WO = 2080, 4 * 2080, 65536, 0
QK_SCALE = 0.25 * math.log2(math.e)
NEG_BIG, ONES = 0xf149f2ca, 0x3f803f80

def fhex(x): return "0x%08x" % struct.unpack("<I", struct.pack("<f", x))[0]
def v(a, n=1): return f"v{a}" if n == 1 else f"v[{a}:{a+n-1}]"
def s(a, n=1): return f"s{a}" if n == 1 else f"s[{a}:{a+n-1}]"
def lines(t): return [l.strip() for l in t.strip().split("\n") if l.strip()]
def mfma(d, a, b, c): return f"v_mfma_f32_32x32x16_bf16 {d}, {a}, {b}, {c}"
def srd(base, ptr, nbytes):
    return [f"s_mov_b32 {s(base)}, {s(ptr)}", f"s_mov_b32 {s(base+1)}, {s(ptr+1)}",
            f"s_mov_b32 {s(base+2)}, {nbytes}", f"s_mov_b32 {s(base+3)}, 0x20000"]
def interleave(*ls):
    o, ls = [], [list(l) for l in ls]
    while any(ls):
        for l in ls:
            if l: o.append(l.pop(0))
    return o

S_X, S_W, S_WS, S_WOA, S_WOB, S_OUT, S_DBG, S_G = 24, 28, 32, 36, 40, 44, 48, 36
S_W4, S_HG, S_RB, S_ROT, S_HEAD, S_RB3, S_CB = 52, 53, 54, 55, 56, 57, 58
S_K, S_T0, S_MW, S_MX, S_T1 = 59, 60, 61, 62, 63
S_MASK, S_T2, S_T3, S_LO16, S_TM, S_C, S_SPIN, S_EP = 64, 96, 97, 98, 100, 10, 3, 26
V_LANE, V_L16, V_STAMP, V_FOFF = 1, 2, 3, 4
EP, FLG = 6, 8
V_AK, V_AV0, V_AV1 = 10, 11, 12
G0 = 14
PM, QA = 16, 24
TMP = 28
SB, NEGM, MG, PB, PF, KF, VF = 32, 64, 96, 128, 144, 152, 192
OACC2 = (160, 176)
KA, QA1, VA = 208, 216, 224

class Role:
    def __init__(self, name):
        self.P, self.name, self.ns, self.nl = Prog(), name, 0, 0
    def stamp(self):
        P = self.P
        if OPT["amp"] == self.ns and OPT["amprole"] == (self.name == "H"):
            P.add(WaitLds())
            P(f"{'s_memtime' if OPT['ampclk'] else 's_memrealtime'} {s(S_TM,2)}\ns_waitcnt lgkmcnt(0)\nv_writelane_b32 {v(V_STAMP)}, {s(S_TM)}, 1")
        if OPT["stamps"]:
            P.add(WaitLds())
            P(f"s_memtime {s(S_TM,2)}\ns_waitcnt lgkmcnt(0)\nv_writelane_b32 {v(V_STAMP)}, {s(S_TM)}, {self.ns + 1}")
            if OPT["rt"]: P(f"s_memrealtime {s(S_TM,2)}\ns_waitcnt lgkmcnt(0)\nv_writelane_b32 {v(V_STAMP)}, {s(S_TM)}, {self.ns + 32}")
        self.ns += 1
    def poll(self, cmp_txt, reload_txt):
        P, n = self.P, f"{self.name}{self.nl}"; self.nl += 1
        P(f"s_mov_b32 {s(S_SPIN)}, 0x40000"); P(cmp_txt)
        P(f"s_cmp_eq_u64 vcc, -1\ns_cbranch_scc1 L_pok{n}")
        P.add(Raw(f"""L_pspin{n}:
    {reload_txt}
    s_sub_u32 {s(S_SPIN)}, {s(S_SPIN)}, 1
    s_cbranch_scc1 L_pok{n}
    s_waitcnt vmcnt(0)
    {cmp_txt}
    s_nop 2
    s_cmp_eq_u64 vcc, -1
    s_cbranch_scc0 L_pspin{n}
L_pok{n}:"""))
    @staticmethod
    def _sloads(n, off):
        if n <= 8: return [f"s_load_dwordx{2*n} {s(4,2*n)}, s[22:23], {s(off)} glc"]
        return [f"s_load_dwordx16 s[4:19], s[22:23], {s(off)} glc", f"s_load_dwordx16 s[64:79], s[22:23], {s(off)} offset:64 glc"]
    def spoll_issue(self, n, off):
        self.P.add(self._sloads(n, off))
    def spoll(self, n, off, ignore_from=None):
        P, lb = self.P, f"{self.name}{self.nl}"; self.nl += 1
        w = lambda i: s(4 + 2*i if i < 8 else 48 + 2*i, 2)
        P.add(WaitLds())
        t = f"    s_mov_b32 {s(S_SPIN)}, 0x40000\nL_sp{lb}:\n"
        for i in range(n - 1):
            if ignore_from is not None:
                t += f"    s_cmp_lt_u32 {s(ignore_from)}, {n - i}\n    s_cselect_b64 {w(i)}, {s(S_EP,2)}, {w(i)}\n"
        for i in range(n):
            t += f"    s_xor_b64 {w(i)}, {w(i)}, {s(S_EP,2)}\n"
            if i: t += f"    s_or_b64 s[4:5], s[4:5], {w(i)}\n"
        t += f"    s_cmp_eq_u64 s[4:5], 0\n    s_cbranch_scc1 L_spok{lb}\n" + "".join(f"    {x}\n" for x in self._sloads(n, off))
        t += f"    s_sub_u32 {s(S_SPIN)}, {s(S_SPIN)}, 1\n    s_waitcnt lgkmcnt(0)\n    s_cbranch_scc0 L_sp{lb}\nL_spok{lb}:"
        P.add(Raw(t))
    def finish(self):
        P = self.P
        if OPT["stamps"]:
            P(f"s_memrealtime {s(S_TM,2)}\ns_waitcnt lgkmcnt(0) vmcnt(0)\nv_writelane_b32 {v(V_STAMP)}, {s(S_TM)}, 63")
            P(f"""s_lshl_b32 {s(S_T0)}, s2, 3
s_add_u32 {s(S_T0)}, {s(S_T0)}, {s(S_W4)}
s_add_u32 {s(S_T0)}, {s(S_T0)}, {4 if self.name == "H" else 0}
s_lshl_b32 {s(S_T0)}, {s(S_T0)}, 8
s_add_u32 {s(S_T0)}, {s(S_T0)}, {WS_STAMP}
v_lshlrev_b32 v0, 2, {v(V_LANE)}
buffer_store_dword {v(V_STAMP)}, v0, {s(S_WS,4)}, {s(S_T0)} offen""")
        if OPT["amp"] >= 0 and OPT["amprole"] == (self.name == "H"):
            P(f"""s_cmp_lg_u32 s2, 100
s_cbranch_scc1 L_end
v_readlane_b32 {s(S_T0)}, {v(V_STAMP)}, 0
v_readlane_b32 {s(S_T1)}, {v(V_STAMP)}, 1
s_memrealtime {s(S_TM,2)}
s_sub_u32 {s(S_T1)}, {s(S_T1)}, {s(S_T0)}
s_mul_i32 {s(S_T1)}, {s(S_T1)}, {OPT["ampk"]}
s_lshr_b32 {s(S_T1)}, {s(S_T1)}, {4 if OPT["ampclk"] else 0}
s_min_u32 {s(S_T1)}, {s(S_T1)}, 100000
s_waitcnt lgkmcnt(0)
s_mov_b32 {s(S_T0)}, {s(S_TM)}""")
            P.add(Raw(f"""L_amp{self.name}:
    s_memrealtime {s(S_TM,2)}
    s_waitcnt lgkmcnt(0)
    s_sub_u32 {s(S_K)}, {s(S_TM)}, {s(S_T0)}
    s_cmp_lt_u32 {s(S_K)}, {s(S_T1)}
    s_cbranch_scc1 L_amp{self.name}"""))
        P("s_endpgm")

ws_ld = lambda dst, voff, soff, imm=0, tag=None: Ins(
    f"buffer_load_dwordx4 {dst}, {v(voff)}, {s(S_WS,4)}, {soff} offen{' offset:%d' % imm if imm else ''} sc1", tag)
ws_st = lambda src, voff, soff, imm=0, tag=None: Ins(
    f"buffer_store_dwordx4 {src}, {v(voff)}, {s(S_WS,4)}, {soff} offen{' offset:%d' % imm if imm else ''} sc1", tag)
ep_load = f"buffer_load_dwordx2 {v(EP,2)}, off, {s(S_DBG,4)}, 0 sc1"
flag_load = f"buffer_load_dwordx2 {v(FLG,2)}, {v(V_FOFF)}, {s(S_WS,4)}, {s(S_K)} offen sc1"
flag_cmp = f"v_cmp_eq_u64 vcc, {v(FLG,2)}, {v(EP,2)}"
def flag_store(data_tag, kind):
    if kind == "kv":
        o = lines(f"""v_mul_u32_u24 v0, 56, {v(V_LANE)}
v_add_u32 v0, 88, v0
s_sub_u32 {s(S_T1)}, 31, {s(S_RB)}
s_min_u32 {s(S_T1)}, {s(S_T1)}, 4
v_cmp_gt_u32 vcc, {s(S_T1)}, {v(V_LANE)}
s_cmp_eq_u32 {s(S_RB)}, 0
s_cselect_b32 {s(S_T1)}, 24, {OOB}
v_mov_b32 v5, {s(S_T1)}
v_cndmask_b32 v0, v5, v0, vcc
s_lshl_b32 {s(S_T0)}, {s(S_HEAD)}, 5
s_add_u32 {s(S_T0)}, {s(S_T0)}, {s(S_RB)}
s_lshl_b32 {s(S_T0)}, {s(S_T0)}, 6
s_add_u32 {s(S_T0)}, {s(S_T0)}, {WS_FKV}""")
    else:
        o = lines(f"""v_lshlrev_b32 v0, 8, {v(V_LANE)}
v_cmp_gt_u32 vcc, 8, {v(V_LANE)}
v_mov_b32 v5, {OOB}
v_cndmask_b32 v0, v5, v0, vcc
s_lshl_b32 {s(S_T0)}, {s(S_RB)}, 8
s_add_u32 {s(S_T0)}, {s(S_T0)}, {s(S_HEAD)}
s_lshl_b32 {s(S_T0)}, {s(S_T0)}, 3
s_add_u32 {s(S_T0)}, {s(S_T0)}, { {"ob": WS_FOB, "oa0": WS_FOA, "oa1": WS_FOA + 65536}[kind] }""")
    return o + [WaitTag(data_tag), Ins(f"buffer_store_dwordx2 {v(EP,2)}, v0, {s(S_WS,4)}, {s(S_T0)} offen sc1", "flag")]

def max_tree(dst, regs, init=False):
    regs, o = list(regs), []
    if not init:
        o.append(f"v_max3_f32 {v(dst)}, {v(regs[0])}, {v(regs[1])}, {v(regs[2])}"); regs = regs[3:]
    while len(regs) >= 2:
        o.append(f"v_max3_f32 {v(dst)}, {v(dst)}, {v(regs[0])}, {v(regs[1])}"); regs = regs[2:]
    if regs: o.append(f"v_max_f32 {v(dst)}, {v(dst)}, {v(regs[0])}")
    return o
def cross_max(m, t):
    return [f"v_mov_b32 {v(t)}, {v(m)}", f"v_permlane32_swap_b32 {v(m)}, {v(t)}", f"v_max_f32 {v(m)}, {v(m)}, {v(t)}"]

def attn_setup(t, tmp):
    r5, hh, cm, u = tmp, tmp + 1, tmp + 2, tmp + 3
    o = lines(f"""v_and_b32 {v(r5)}, 31, {v(V_LANE)}
v_lshrrev_b32 {v(hh)}, 5, {v(V_LANE)}
v_lshlrev_b32 {v(u)}, 2, {v(hh)}
v_sub_u32 {v(cm)}, {v(r5)}, {v(u)}
s_mul_i32 {s(S_T2)}, {s(S_W4)}, {KVH}
s_add_u32 {s(S_T2)}, {s(S_T2)}, {L_KV + t*KVS}
v_add_u32 {v(V_AK)}, {s(S_T2)}, {v(V_L16)}
v_and_b32 {v(u)}, 15, {v(V_LANE)}
v_lshlrev_b32 {v(u)}, 4, {v(u)}
v_lshl_add_u32 {v(u)}, {v(hh)}, 8, {v(u)}
v_and_b32 {v(hh)}, 11, {v(V_LANE)}
v_min_u32 {v(hh)}, 1, {v(hh)}
v_lshlrev_b32 {v(hh)}, 4, {v(hh)}
v_add_u32 {v(hh)}, 0x400, {v(hh)}
v_cndmask_b32 {v(V_AV0)}, {v(hh)}, {v(u)}, {s(S_LO16,2)}
v_subrev_u32 {v(hh)}, 0x200, {v(hh)}
v_cndmask_b32 {v(V_AV1)}, {v(hh)}, {v(u)}, {s(S_LO16,2)}
v_add_u32 {v(V_AV0)}, {s(S_T2)}, {v(V_AV0)}
v_add_u32 {v(V_AV1)}, {s(S_T2)}, {v(V_AV1)}
v_mov_b32 {v(u)}, 0xffff""")
    o += [f"v_cmp_le_i32 {s(S_MASK+2*q,2)}, {8*(q>>2)+(q&3)}, {v(cm)}" for q in range(16)]
    o += [f"v_cndmask_b32 {v(PM+pq)}, 0, {v(u)}, {s(S_MASK+4*pq,2)}" for pq in range(8)]
    o += [f"v_cndmask_b32 {v(PM+pq)}, {v(PM+pq)}, -1, {s(S_MASK+4*pq+2,2)}" for pq in range(8)]
    return o

def gate_finish(addr, tmp):
    o = [f"ds_read_b32 {v(tmp+t)}, {v(addr)} offset:{128*t}" for t in range(2)]
    for op in ("v_mul_f32 {g}, " + fhex(-math.log2(math.e)) + ", {g}", "v_exp_f32 {g}, {g}", "v_add_f32 {g}, 1.0, {g}", "v_rcp_f32 {o}, {g}"):
        o += [op.format(g=v(tmp+t), o=v(G0+t)) for t in range(2)]
    return o

def o_pack(acc, o0, lreg, fac, dst, f):
    return ([f"v_rcp_f32 {v(f)}, {v(acc+lreg)}"] + fac +
            ([f"v_pk_mul_f32 {v(acc+o0+2*i,2)}, {v(acc+o0+2*i,2)}, {v(f,2)} op_sel_hi:[1,0]" for i in range(4)] if OPT["pkm"] else
             [f"v_mul_f32 {v(acc+o0+i)}, {v(f)}, {v(acc+o0+i)}" for i in range(8)]) +
            [f"v_cvt_pk_bf16_f32 {v(dst+i)}, {v(acc+o0+2*i)}, {v(acc+o0+2*i+1)}" for i in range(4)])
def o_store(br, tt, src, tag):
    return [f"s_lshl_b32 {s(S_T0)}, {s(S_RB)}, 17", f"s_lshl_b32 {s(S_T1)}, {s(S_HEAD)}, 10",
            f"s_add_u32 {s(S_T0)}, {s(S_T0)}, {s(S_T1)}", f"s_add_u32 {s(S_T0)}, {s(S_T0)}, {WS_O + br*65536 + tt*32768}",
            ws_st(v(src,4), V_L16, s(S_T0), 0, tag)]

CMA = 64
def window_attention(R, events):
    P = R.P
    Q = lambda t: v((QA, QA1)[t], 4)
    dk, dv = (4, 3) if OPT["deep"] else (2, 2)
    kfr = lambda u: v((240 + 4*(u & 3)) if OPT["deep"] else KF+4*(u & 1), 4) if u < 8 else v(KA+4*(u-8), 4)
    vfr = lambda u, m: v((VF, VF+8, KF)[u % dv]+4*m, 4) if u < 8 else v(VA+8*(u-8)+4*m, 4)
    kread = lambda u: [f"ds_read_b128 {kfr(u)}, {v(V_AK)} offset:{u*KVS}"] if u < 8 else []
    vread = lambda u: [f"ds_read_b128 {vfr(u,0)}, {v(V_AV0)} offset:{u*KVS+1024}",
                       f"ds_read_b128 {vfr(u,1)}, {v(V_AV1)} offset:{u*KVS+1536}"] if u < 8 else []
    M = (TMP, TMP + 2)
    acc = lambda t: v(OACC2[t], 16)
    negm = lambda t: v(NEGM+16*t, 16)
    exps = lambda S: [f"v_exp_f32 {v(S+i)}, {v(S+i)}" for i in range(16)]
    cvts = lambda d, S: [f"v_cvt_pk_bf16_f32 {v(d+k)}, {v(S+2*k)}, {v(S+2*k+1)}" for k in range(8)]
    ev = lambda key: events.pop(key)() if key in events else None
    P(mfma(v(SB+16,16), kfr(8), Q(1), negm(1))); P(mfma(v(MG,16), kfr(8), Q(0), negm(0)))
    P("s_barrier")
    R.stamp()
    P.add(kread(0) + kread(1) + vread(0) + vread(1))
    if OPT["deep"]: P.add(kread(2) + kread(3) + vread(2))
    ev("pre")
    e, c = exps(SB+16), cvts(PB+8, SB+16)
    P.add(e[0:4]); P(mfma(v(SB,16), kfr(0), Q(0), negm(0))); P.add(kread(dk)); P.add(e[4:8]); P.add(c[0:4])
    P(mfma(v(MG+16,16), kfr(9), Q(1), negm(1))); P.add(e[8:12])
    P(mfma(acc(1), vfr(8,0), v(PB+8,4), "0")); P.add(e[12:16]); P.add(c[4:8])
    pend = [mfma(v(SB+16,16), kfr(1), Q(1), negm(1)), mfma(acc(1), vfr(8,1), v(PB+12,4), acc(1))]
    for t in range(2):
        g = MG + 16*t
        seq = [f"v_cndmask_b32 {v(g+i)}, {v(SB+16*t+i)}, {v(g+i)}, {s(S_MASK+2*i,2)}" for i in range(16)]
        seq += [[mfma(v(SB+16*t,16), kfr(1+t), Q(t), negm(t))] + (kread(dk+1) if t == 0 else [])]
        seq += exps(g) + cvts(PF, g)
        seq += [f"v_and_b32 {v(PB+8*t+i)}, {v(PM+i)}, {v(PF+i)}" for i in range(8)]
        seq += [f"v_xor_b32 {v(g+i)}, {v(PF+i)}, {v(PB+8*t+i)}" for i in range(8)]
        at = (0, 8) if t == 0 else (1, 9, 21, 26)
        for i, x in enumerate(seq):
            P.add(x)
            if i in at: P.add(pend.pop(0))
        pend = [mfma(acc(t), vfr(8+t,0), v(PB+8*t,4), acc(1) if t else "0"), mfma(acc(t), vfr(8+t,1), v(PB+8*t+4,4), acc(t)),
                mfma(acc(t), vfr(t,0), v(g,4), acc(t)), [mfma(acc(t), vfr(t,1), v(g+4,4), acc(t))] + (vread(dv) if t == 0 else [])]
    R.stamp()
    if OPT["t2"]: P("s_barrier")
    ev("e1")
    for hs in range(13):
        t = hs & 1; u = (hs >> 1) + 1 + t
        S, Pp = SB + 16*t, PB + 8*t
        e, c = exps(S), cvts(Pp, S)
        nxt = None
        if t == 0 and 0 < hs < 12: nxt = [mfma(v(SB+16,16), kfr(u+1), Q(1), negm(1))]
        if t == 1: nxt = [mfma(v(SB,16), kfr(u), Q(0), negm(0))] + kread(u+dk)
        if hs == 0:
            P.add(e[0:2]); P.add(pend[0]); P.add(e[2:5]); P.add(pend[1]); P.add(e[5:8]); P.add(pend[2])
            P.add(c[0:4]); P.add(e[8:10]); P.add(pend[3]); P.add(e[10:14])
            P(mfma(acc(t), vfr(u,0), v(Pp,4), acc(t))); P.add(e[14:16]); P.add(c[4:8])
        else:
            P.add(e[0:2]); P.add(pend); P.add(e[2:6])
            if nxt: P.add(nxt)
            P.add(e[6:8]); P.add(c[0:4]); P.add(e[8:10])
            P(mfma(acc(t), vfr(u,0), v(Pp,4), acc(t)))
            P.add(e[10:16]); P.add(c[4:8])
        pend = [mfma(acc(t), vfr(u,1), v(Pp+4,4), acc(t))] + (vread(u+dv) if t == 0 else [])
        if OPT["fine"] == 5: R.stamp()
        ev(hs)
    P.add(pend)
    assert not events, events
    P(f"s_mov_b32 {s(S_T1)}, 0x7b800000")
    for t in (1, 0):
        o, m = OACC2[t], M[t]
        P.add([f"v_add_f32 {v(m)}, abs({v(o)}), abs({v(o+8)})", f"v_add_f32 {v(m+1)}, abs({v(o+1)}), abs({v(o+2)})"] +
              [f"v_add_f32 {v(m+(i&1))}, {v(m+(i&1))}, abs({v(o+i)})" for i in range(3, 8)] + [f"v_add_f32 {v(m)}, {v(m)}, {v(m+1)}"])
    P(f"v_add_f32 {v(M[0])}, {v(M[0])}, {v(M[1])}\nv_cmp_lt_f32 vcc, {v(M[0])}, {s(S_T1)}")
    P("s_cmp_eq_u64 vcc, -1\ns_cbranch_scc0 L_exact0\nL_back:")
    R.stamp()

def slow_path():
    return exact_attention(0) + exact_attention(1) + "    s_branch L_back\n"

def exact_attention(t):
    F = Prog(); q, M, acc = v((QA, QA1)[t], 4), TMP, v(OACC2[t], 16)
    KO, VO, G = TMP + 2, TMP + 3, S_T0
    def tile(rel, kdst, vdst):
        o = [f"s_add_i32 {s(S_K)}, {s(G)}, {rel}", f"s_cmp_ge_i32 {s(S_K)}, 0", f"s_cselect_b64 vcc, -1, 0",
             f"s_cselect_b32 {s(S_TM)}, {hex(ONES)}, 0", f"s_max_i32 {s(S_K)}, {s(S_K)}, 0", f"s_lshl_b32 {s(S_K)}, {s(S_K)}, 11",
             f"s_lshl_b32 {s(S_T1)}, {s(S_HEAD)}, 17", f"s_add_u32 {s(S_K)}, {s(S_K)}, {s(S_T1)}",
             f"v_and_b32 {v(KO)}, 0x200, {v(V_L16)}", f"v_cndmask_b32 {v(KO)}, {v(KO)}, {v(V_L16)}, vcc", ws_ld(v(kdst,4), KO, s(S_K))]
        if vdst is not None:
            o += [f"v_mov_b32 {v(vdst+i)}, {s(S_TM)}" for i in range(8)]
            o += [f"s_cmp_lg_u32 {s(S_TM)}, 0", f"s_cselect_b32 {s(S_K)}, {s(S_K)}, {WS_SIZE}", f"s_mov_b64 exec, {s(S_LO16,2)}",
                  ws_ld(v(vdst,4), VO, s(S_K), 1024), ws_ld(v(vdst+4,4), VO, s(S_K), 1536), "s_mov_b64 exec, -1"]
        return o
    F(f"L_exact{t}:\ns_waitcnt vmcnt(0) lgkmcnt(0)\ns_nop 15")
    F(f"""s_lshl_b32 {s(G)}, {s(S_RB)}, 1
s_sub_u32 {s(G)}, {s(G)}, {8 - t}
v_lshrrev_b32 {v(VO)}, 1, {v(V_L16)}
v_and_b32 {v(VO)}, 0x100, {v(VO)}
v_and_b32 {v(KO)}, 0xf0, {v(V_L16)}
v_or_b32 {v(VO)}, {v(VO)}, {v(KO)}""")
    F.add(tile(8, KF, VF)); F.add(tile(0, KF+4, VF+8))
    F(mfma(v(MG,16), v(KF,4), q, "0")); F(mfma(v(SB,16), v(KF+4,4), q, "0"))
    F.add([f"v_cndmask_b32 {v(MG+i)}, {v(SB+i)}, {v(MG+i)}, {s(S_MASK+2*i,2)}" for i in range(16)])
    F.add(max_tree(M, range(MG, MG+16)))
    F(f"s_mov_b32 {s(S_TM+1)}, 7\nL_exact_m{t}:\ns_add_u32 {s(G)}, {s(G)}, 1")
    F.add(tile(0, KF, None))
    F(mfma(v(SB,16), v(KF,4), q, "0"))
    F.add(max_tree(M, range(SB, SB+16), init=True))
    F(f"s_sub_u32 {s(S_TM+1)}, {s(S_TM+1)}, 1\ns_cmp_lg_u32 {s(S_TM+1)}, 0\ns_cbranch_scc1 L_exact_m{t}")
    F.add(cross_max(M, M+1))
    F.add([f"v_sub_f32 {v(MG+i)}, {v(MG+i)}, {v(M)}" for i in range(16)])
    F.add([f"v_exp_f32 {v(MG+i)}, {v(MG+i)}" for i in range(16)])
    F.add([f"v_cvt_pk_bf16_f32 {v(PF+i)}, {v(MG+2*i)}, {v(MG+2*i+1)}" for i in range(8)])
    F.add([f"v_and_b32 {v(PB+i)}, {v(PM+i)}, {v(PF+i)}" for i in range(8)])
    F.add([f"v_xor_b32 {v(PF+i)}, {v(PF+i)}, {v(PB+i)}" for i in range(8)])
    F(mfma(acc, v(VF,4), v(PB,4), "0")); F(mfma(acc, v(VF+4,4), v(PB+4,4), acc))
    F(mfma(acc, v(VF+8,4), v(PF,4), acc)); F(mfma(acc, v(VF+12,4), v(PF+4,4), acc))
    F(f"s_sub_u32 {s(G)}, {s(G)}, 7\ns_mov_b32 {s(S_TM+1)}, 7\ns_nop 15\nL_exact_e{t}:\ns_add_u32 {s(G)}, {s(G)}, 1")
    F.add(tile(0, KF, VF))
    F(mfma(v(SB,16), v(KF,4), q, "0"))
    F.add([f"v_sub_f32 {v(SB+i)}, {v(SB+i)}, {v(M)}" for i in range(16)])
    F.add([f"v_exp_f32 {v(SB+i)}, {v(SB+i)}" for i in range(16)])
    F.add([f"v_cvt_pk_bf16_f32 {v(PB+i)}, {v(SB+2*i)}, {v(SB+2*i+1)}" for i in range(8)])
    F(mfma(acc, v(VF,4), v(PB,4), acc)); F(mfma(acc, v(VF+4,4), v(PB+4,4), acc))
    F(f"s_nop 15\ns_sub_u32 {s(S_TM+1)}, {s(S_TM+1)}, 1\ns_cmp_lg_u32 {s(S_TM+1)}, 0\ns_cbranch_scc1 L_exact_e{t}")
    return finalize(F)

E = Prog()
hg_code = {0: f"s_lshl1_add_u32 {s(S_HG)}, {s(S_T1)}, {s(S_K)}", 1: f"s_lshl2_add_u32 {s(S_HG)}, {s(S_K)}, {s(S_T1)}",
           2: f"s_and_b32 {s(S_HG)}, {s(S_T1)}, 2\ns_add_u32 {s(S_HG)}, {s(S_HG)}, {s(S_K)}\ns_and_b32 {s(S_T1)}, {s(S_T1)}, 1\ns_lshl1_add_u32 {s(S_HG)}, {s(S_HG)}, {s(S_T1)}",
           3: f"s_mul_i32 {s(S_K)}, {s(S_K)}, 3\ns_lshl1_add_u32 {s(S_HG)}, {s(S_T1)}, {s(S_K)}\ns_and_b32 {s(S_HG)}, {s(S_HG)}, 7",
           4: f"s_mul_i32 {s(S_K)}, {s(S_K)}, 5\ns_lshl1_add_u32 {s(S_HG)}, {s(S_T1)}, {s(S_K)}\ns_and_b32 {s(S_HG)}, {s(S_HG)}, 7"}[OPT["hgmap"]]
assert OPT["xmap"] == 3
hb = {4: 2, 3: 1, 2: 0, 1: 3}[OPT["xmap"]]
if OPT["stamps"] or OPT["amp"] >= 0:
    E("s_memtime s[64:65]\ns_memrealtime s[66:67]")
def entry_stamp():
    if OPT["stamps"]:
        return [f"v_mov_b32 {v(V_STAMP)}, 0", f"v_writelane_b32 {v(V_STAMP)}, s64, 0", f"v_writelane_b32 {v(V_STAMP)}, s66, 62"]
    if OPT["amp"] >= 0:
        return [f"v_mov_b32 {v(V_STAMP)}, 0", f"v_writelane_b32 {v(V_STAMP)}, {'s64' if OPT['ampclk'] else 's66'}, 0"]
    return []
code_pf = f"""s_getpc_b64 {s(S_T2,2)}
L_pc:
s_lshl2_add_u32 {s(S_T1)}, {s(S_T0)}, {s(S_W4)}
s_and_b32 {s(S_T1)}, {s(S_T1)}, 63
s_lshl_b32 {s(S_T1)}, {s(S_T1)}, 9
s_sub_u32 {s(S_T2)}, {s(S_T2)}, L_pc-{NAME}_kernel
s_subb_u32 {s(S_T3)}, {s(S_T3)}, 0
v_and_b32 v5, 3, {v(V_LANE)}
v_lshl_add_u32 v5, v5, 7, {s(S_T1)}
global_load_dword v13, v5, {s(S_T2,2)}"""
if OPT["cpf"] == 2:
    E(f"""s_getpc_b64 {s(S_T2,2)}
s_bfe_u32 {s(S_T1)}, s2, 0x50003
v_lshrrev_b32 v5, 6, v0
v_lshlrev_b32 v5, 7, v5
v_lshl_add_u32 v5, {s(S_T1)}, 10, v5
global_load_dword v13, v5, {s(S_T2,2)}""")
if OPT["cpf"] == 3:
    E(f"""s_getpc_b64 {s(S_T2,2)}
s_bfe_u32 {s(S_T1)}, s2, 0x30003
v_lshrrev_b32 v5, 4, v0
v_lshlrev_b32 v5, 7, v5
v_lshl_add_u32 v5, {s(S_T1)}, 12, v5
global_load_dword v13, v5, {s(S_T2,2)}""")
E(f"""
s_cmp_ge_u32 s2, 256
s_cbranch_scc1 L_end
s_load_dwordx16 s[4:19], s[0:1], 0
s_load_dwordx4 s[20:23], s[0:1], 64
v_lshrrev_b32 v4, 6, v0
v_and_b32 {v(V_LANE)}, 63, v0
s_lshr_b32 {s(S_T0)}, s2, 3
v_readfirstlane_b32 {s(S_MX)}, v4
""")
E(f"""
s_and_b32 {s(S_T1)}, s2, {(8 >> hb) - 1}
s_and_b32 {s(S_K)}, {s(S_T0)}, {(1 << hb) - 1}
{hg_code}
s_bfe_u32 {s(S_K)}, s2, {hex((hb << 16) | (3 - hb))}
s_lshl_b32 {s(S_RB)}, {s(S_K)}, {5 - hb}
s_lshr_b32 {s(S_ROT)}, {s(S_T0)}, {hb}
s_add_u32 {s(S_RB)}, {s(S_RB)}, {s(S_ROT)}
s_and_b32 {s(S_W4)}, {s(S_MX)}, 3
""")
if OPT["cpf"] == 1:
    E(f"""s_cmp_lt_u32 {s(S_MX)}, 4
s_cbranch_scc0 L_hrole""")
    E(code_pf)
    E("s_branch L_crole\nL_hrole:")
elif OPT["cpf"] >= 4:
    E(f"""s_cmp_lt_u32 {s(S_MX)}, 4
s_cbranch_scc0 L_hrole
s_getpc_b64 {s(S_T2,2)}
L_pc:
s_lshl2_add_u32 {s(S_T1)}, {s(S_T0)}, {s(S_W4)}
s_lshl_b32 {s(S_T1)}, {s(S_T1)}, 8
s_sub_u32 {s(S_T2)}, {s(S_T2)}, L_pc-{NAME}_kernel
s_subb_u32 {s(S_T3)}, {s(S_T3)}, 0
s_load_dword s70, {s(S_T2,2)}, {s(S_T1)}
s_add_u32 {s(S_T1)}, {s(S_T1)}, 128
s_load_dword s71, {s(S_T2,2)}, {s(S_T1)}""")
    if OPT["cpf"] == 5:
        E("s_waitcnt lgkmcnt(0)")
        for i, ptr in enumerate((6, 12, 4, 16, 20, 8, 14, 18, 22)):
            E(f"s_load_dword s{72+i}, {s(ptr,2)}, 0")
        for i in range(1, 5):
            E(f"s_mov_b32 {s(S_T1)}, {i << 21}\ns_load_dword s{80+i}, s[22:23], {s(S_T1)}")
    E("s_branch L_crole\nL_hrole:")
else:
    E(f"s_cmp_lt_u32 {s(S_MX)}, 4\ns_cbranch_scc1 L_crole")
late_ids = lines(f"""
s_lshr_b32 {s(S_T0)}, s2, 3
s_and_b32 {s(S_RB3)}, s2, 7
s_lshl_b32 {s(S_RB3)}, {s(S_RB3)}, 2
s_lshr_b32 {s(S_T1)}, {s(S_T0)}, 3
s_add_u32 {s(S_RB3)}, {s(S_RB3)}, {s(S_T1)}
s_and_b32 {s(S_CB)}, {s(S_T0)}, 7
s_lshl_b32 {s(S_HEAD)}, {s(S_HG)}, 2
s_add_u32 {s(S_HEAD)}, {s(S_HEAD)}, {s(S_W4)}
s_mov_b32 {s(S_LO16)}, 0xffff
s_mov_b32 {s(S_LO16+1)}, 0xffff
v_lshlrev_b32 {v(V_L16)}, 4, {v(V_LANE)}
""")
rot_code = {
 0: f"s_and_b32 {s(S_ROT)}, {s(S_ROT)}, {OPT['rotmask']}",
 1: f"s_and_b32 {s(S_ROT)}, s2, 7",
 4: f"s_add_u32 {s(S_ROT)}, {s(S_ROT)}, {s(S_HG)}\ns_and_b32 {s(S_ROT)}, {s(S_ROT)}, 7",
 7: f"s_and_b32 {s(S_K)}, {s(S_HG)}, 6\ns_add_u32 {s(S_ROT)}, {s(S_ROT)}, {s(S_K)}\ns_and_b32 {s(S_ROT)}, {s(S_ROT)}, 7",
 8: f"s_lshr_b32 {s(S_K)}, {s(S_HG)}, 1\ns_add_u32 {s(S_ROT)}, {s(S_ROT)}, {s(S_K)}\ns_and_b32 {s(S_ROT)}, {s(S_ROT)}, 7",
 9: f"s_mul_i32 {s(S_K)}, {s(S_HG)}, 3\ns_add_u32 {s(S_ROT)}, {s(S_ROT)}, {s(S_K)}\ns_and_b32 {s(S_ROT)}, {s(S_ROT)}, 7",
 10: f"s_sub_u32 {s(S_ROT)}, {s(S_ROT)}, {s(S_HG)}\ns_and_b32 {s(S_ROT)}, {s(S_ROT)}, 7",
 5: f"s_add_u32 {s(S_ROT)}, {s(S_ROT)}, {s(S_HG)}\ns_and_b32 {s(S_ROT)}, {s(S_ROT)}, 3\ns_lshl_b32 {s(S_ROT)}, {s(S_ROT)}, 1",
 6: f"s_add_u32 {s(S_ROT)}, {s(S_ROT)}, {s(S_HG)}\ns_and_b32 {s(S_ROT)}, {s(S_ROT)}, 1\ns_lshl_b32 {s(S_ROT)}, {s(S_ROT)}, 2",
}[OPT["rotmode"]]

def stage_of(n): return n if n < 16 else 16 + ((n - 16) >> 1)
def first_of_stage(n): return n < 32 and (n == 0 or stage_of(n) != stage_of(n - 1))
def mfma16(d, a, b, c): return f"v_mfma_f32_16x16x32_bf16 {d}, {a}, {b}, {c}"

H = Role("H"); P = H.P
VX, VW1, VW2 = 160, 162, 166
V_AXW, V_AG, V_GPW, GACC, XW, GF = 170, 171, 172, 174, 176, 184
i3, i4, p7, t0, t1, t2 = 32, 33, 34, 35, 36, 37
def raw(i):
    if OPT["fine"] == 3: P(f"s_memtime s[{68+2*i}:{69+2*i}]")
raw(0)
P(rot_code)
P(f"""
v_lshrrev_b32 {v(i3)}, 3, {v(V_LANE)}
v_lshrrev_b32 {v(i4)}, 4, {v(V_LANE)}
v_and_b32 {v(p7)}, 7, {v(V_LANE)}
s_lshl_b32 {s(S_T0)}, {s(S_W4)}, 4
v_add_u32 {v(t0)}, {s(S_T0)}, {v(i3)}
v_lshlrev_b32 {v(t0)}, 10, {v(t0)}
v_xor_b32 {v(t1)}, {v(p7)}, {v(i4)}
v_lshl_add_u32 {v(VX)}, {v(t1)}, 4, {v(t0)}
v_xor_b32 {v(VX+1)}, 64, {v(VX)}
v_add_u32 {v(VX+1)}, {0x2000 - 1024}, {v(VX+1)}
s_lshr_b32 {s(S_T0)}, {s(S_W4)}, 1
s_and_b32 {s(S_T1)}, {s(S_W4)}, 1
s_lshl_b32 {s(S_K)}, {s(S_T0)}, 4
v_add_u32 {v(t0)}, {s(S_K)}, {v(i4)}
v_mul_u32_u24 {v(t0)}, 0xc00, {v(t0)}
v_lshlrev_b32 {v(t1)}, 1, {v(i4)}
v_xor_b32 {v(t1)}, {v(t1)}, {v(p7)}
v_lshl_add_u32 {v(t0)}, {v(t1)}, 4, {v(t0)}
v_and_b32 {v(t1)}, 1, {v(i3)}
v_xor_b32 {v(t1)}, {s(S_T1)}, {v(t1)}
v_lshlrev_b32 {v(t1)}, 10, {v(t1)}
s_lshl_b32 {s(S_T2)}, {s(S_HG)}, 7
s_add_u32 {s(S_K)}, {s(S_T2)}, 1024
v_add3_u32 {v(VW1)}, {v(t0)}, {v(t1)}, {s(S_K)}
v_add_u32 {v(VW1+1)}, {12288 - 1024}, {v(VW1)}
v_xor_b32 {v(t1)}, 0x400, {v(t1)}
v_add3_u32 {v(VW1+2)}, {v(t0)}, {v(t1)}, {s(S_K)}
v_add_u32 {v(VW1+3)}, {3*(12288 - 1024)}, {v(VW1+2)}
v_add_u32 {v(VW1+2)}, {2*(12288 - 1024)}, {v(VW1+2)}
s_lshl_b32 {s(S_MW)}, {s(S_T1)}, 13
s_lshl_b32 {s(S_K)}, {s(S_T0)}, 12
s_add_u32 {s(S_MW)}, {s(S_MW)}, {s(S_K)}
s_lshl_b32 {s(S_MX)}, {s(S_W4)}, 11
s_add_u32 {s(S_MX)}, {s(S_MX)}, {L_X}""")
raw(1)
P("s_waitcnt lgkmcnt(0)")
if OPT["wsoff"]: P(f"s_add_u32 s22, s22, {OPT['wsoff'] << 20}\ns_addc_u32 s23, s23, 0")
raw(2)
if OPT["tlb0"]: P.add(Raw("    s_load_dword s86, s[6:7], 0\n    s_load_dword s87, s[12:13], 0" + ("\n    s_load_dword s88, s[16:17], 0" if OPT["tlb0"] > 1 else "")))
P.add(entry_stamp())
P.add(srd(S_X, 4, 2097152))
P(f"""s_cmp_eq_u32 {s(S_T1)}, 0
s_cselect_b32 {s(S_W)}, s6, s12
s_cselect_b32 {s(S_W+1)}, s7, s13
s_mov_b32 {s(S_W+2)}, 1572864
s_mov_b32 {s(S_W+3)}, 0x20000""")
if OPT["fine"] != 3: H.stamp()
def dma(voff, rsrc, soff, imm, tag, flags=""):
    flags = flags or ("", " sc1", " nt", " sc0", " sc0 sc1")[OPT["dfl"]]
    return Ins(f"buffer_load_dwordx4 {v(voff)}, {s(rsrc,4)}, {soff} offen{' offset:%d' % imm if imm else ''}{flags} lds", tag)
def x_dma(j):
    return [f"s_add_u32 {s(S_K)}, {s(S_ROT)}, {j}", f"s_and_b32 {s(S_K)}, {s(S_K)}, 7", f"s_lshl_b32 {s(S_K)}, {s(S_K)}, 7",
            f"s_lshl_b32 {s(S_T2)}, {s(S_RB)}, 16", f"s_add_u32 m0, {s(S_MX)}, {j*8192}", f"s_add_u32 {s(S_K)}, {s(S_K)}, {s(S_T2)}",
            dma(VX, S_X, s(S_K), 0, f"x{j}"), dma(VX+1, S_X, s(S_K), 1024, f"x{j}")]
def w_dma(S):
    if S < 16:
        o = [f"s_lshl_b32 {s(S_T3)}, {s(S_ROT)}, 1", f"s_add_u32 {s(S_T3)}, {s(S_T3)}, {S}", f"s_and_b32 {s(S_T3)}, {s(S_T3)}, 15"]
    else:
        o = [f"s_add_u32 {s(S_T3)}, {s(S_ROT)}, {S-16}", f"s_and_b32 {s(S_T3)}, {s(S_T3)}, 7"]
    o += [f"s_add_u32 m0, {s(S_MW)}, {(S % NSLOT)*SLOT}", f"s_mul_i32 {s(S_T3)}, {s(S_T3)}, {(32 if S < 16 else 64)*3072}"]
    return o + [dma((VW1 if S < 16 else VW2) + t, S_W, s(S_T3), t*1024, f"w{S}") for t in range(4)]
def code_warm():
    t = (f"    s_getpc_b64 s[78:79]\nL_pc:\n    s_sub_u32 s78, s78, L_pc-{NAME}_kernel\n    s_subb_u32 s79, s79, 0\n    s_lshr_b32 {s(S_T1)}, s2, 3\n"
         f"    s_lshl2_add_u32 {s(S_T1)}, {s(S_T1)}, {s(S_W4)}\n    s_lshl_b32 {s(S_T1)}, {s(S_T1)}, 8\n")
    t += "".join(f"    s_load_dword s{80+i}, s[78:79], {s(S_T1)} offset:{i*64}\n" for i in range(4))
    P.add(Raw(t))
if OPT["worder0"]:
    w0, x0 = w_dma(0), x_dma(0)
    P.add(w0[:6]); P.add(x0[:7]); P(f"s_add_u32 m0, {s(S_MW)}, 0"); P.add(w0[6:]); P(f"s_add_u32 m0, {s(S_MX)}, 0"); P.add(x0[7:])
else:
    P.add(x_dma(0)); P.add(w_dma(0))
if OPT["icat"] == -3: code_warm()
P.add(w_dma(1)); raw(5)
if OPT["icat"] == -2: code_warm()
P(f"""s_lshl_b32 {s(S_K)}, {s(S_ROT)}, 3
v_add_u32 {v(t2)}, {s(S_K)}, {v(V_LANE)}
v_and_b32 {v(t2)}, 63, {v(t2)}
v_lshlrev_b32 {v(t2)}, 4, {v(t2)}""")
P.add(srd(S_G, 16, 1024)); P(f"s_mov_b32 m0, {L_G}"); P.add(dma(t2, S_G, "0", 0, "w1"))
P.add(late_ids)
h_misc = lines(f"""
s_lshr_b32 {s(S_T0)}, {s(S_W4)}, 1
s_and_b32 {s(S_T1)}, {s(S_W4)}, 1
s_lshl_b32 {s(S_T0)}, {s(S_T0)}, 5
v_add_u32 {v(t0)}, {s(S_T0)}, {v(i3)}
v_mul_u32_u24 {v(t0)}, 0xc00, {v(t0)}
v_and_b32 {v(t1)}, 1, {v(i4)}
v_lshlrev_b32 {v(t1)}, 1, {v(t1)}
v_xor_b32 {v(t1)}, {v(t1)}, {v(p7)}
v_lshlrev_b32 {v(t1)}, 4, {v(t1)}
s_lshl_b32 {s(S_T0)}, {s(S_HG)}, 7
v_add3_u32 {v(VW2)}, {v(t0)}, {v(t1)}, {s(S_T0)}
v_xor_b32 {v(t1)}, 64, {v(t1)}
v_add3_u32 {v(VW2+1)}, {v(t0)}, {v(t1)}, {s(S_T0)}
v_add_u32 {v(VW2+2)}, {2*(24576 - 1024)}, {v(VW2)}
v_add_u32 {v(VW2+3)}, {3*(24576 - 1024)}, {v(VW2+1)}
v_add_u32 {v(VW2+1)}, {24576 - 1024}, {v(VW2+1)}
""") + srd(S_WS, 22, WS_SIZE) + srd(S_DBG, 20, 256)
P.add(h_misc)
if OPT["fine"] == 3:
    raw(6); P("s_waitcnt vmcnt(9)"); raw(7); P("s_waitcnt vmcnt(5)"); raw(8); P("s_waitcnt lgkmcnt(0)")
    for i in range(9):
        P(f"v_writelane_b32 {v(V_STAMP)}, s{68+2*i}, {i+1}")
    H.ns = 9
VWO, VKF, V1A, V1D, V_MB, V_HB = 160, 161, 162, 164, 12, 13
txt_of = lambda x: x.text if isinstance(x, Ins) else x
special_txt = []
def gather(tiles, special):
    o = []
    if 0 in tiles:
        o += [f"s_lshl_b32 {s(S_K)}, {s(S_HEAD)}, 17", f"s_lshl_b32 {s(S_T1)}, {s(S_RB)}, 12",
              f"s_add_u32 {s(S_T2)}, {s(S_K)}, {s(S_T1)}", f"s_sub_u32 {s(S_T2)}, {s(S_T2)}, {8*2048}"]
    for u in tiles:
        tag = "kv" if u < 4 or not OPT["t2"] else "kvb"
        o += [f"s_add_u32 {s(S_T0)}, {s(S_T2)}, {u*2048}", f"s_add_u32 m0, {s(S_MW)}, {u*KVS}"]
        if special:
            o += [f"s_cmp_ge_u32 {s(S_RB)}, {(8-u+1)//2}", f"s_cbranch_scc1 L_gk{u}",
                  dma(VKF, S_WS, s(S_K), 0, None, " sc1"), f"s_mov_b32 {s(S_T0)}, {WS_SIZE}", f"s_branch L_gk{u}e", f"L_gk{u}:",
                  dma(V_L16, S_WS, s(S_T0), 0, None, " sc1"), f"L_gk{u}e:"]
        else:
            o += [dma(V_L16, S_WS, s(S_T0), 0, tag, " sc1")]
        o += [dma(V_L16, S_WS, s(S_T0), 1024, tag, " sc1")]
    return o
def emit_gather(n, tiles):
    P(f"s_cmp_lt_u32 {s(S_RB)}, 4\ns_cbranch_scc1 L_gspecial{n}")
    P.add(gather(tiles, False)); P(f"L_gdone{n}:")
    special_txt.append(f"L_gspecial{n}:\n" + "\n".join(("" if txt_of(x).endswith(":") else "    ") + txt_of(x) for x in gather(tiles, True))
                       + f"\n    s_branch L_gdone{n}\n")
S_R3, S_WB, S_MA, S_MB = 24, 25, 30, 31
B0, B1, A0, A1, A2, A3, VOG, EXW, EXR, VOUT = 16, 17, 24, 25, 26, 27, 18, 20, 23, 19
ACC3, OFB, OFA, WBF = 32, 96, 192, 176
if OPT["icpf"] and OPT["icat"] == -1: code_warm()
issued_w, issued_x = 2, 1

for S in range(25):
    if S < 24:
        P.add(WaitTag(f"w{S}", f"x{S >> 1}" if S < 16 else "none"))
    if S < 20: P.add(WaitLds())
    P("s_barrier")
    if OPT["fine"] in (1, 2, 3) or S in (0, 16, 24): H.stamp()
    mark = len(P.items)
    top = {0: 3}.get(S, S + 4)
    if S in (14, 15, 16) and OPT["hold"]: top = min(top, 20 - OPT["hold"])
    while issued_w <= min(top, 23):
        if issued_w < 16 and issued_w % 2 == 0 and issued_x <= issued_w // 2:
            P.add(x_dma(issued_x)); issued_x += 1
        P.add(w_dma(issued_w)); issued_w += 1
    if OPT["icpf"] and S == OPT["icat"]: code_warm()
    if OPT["tlb"] and S in (3, 4, 5, 6):
        for i, (ptr, off) in enumerate({3: ((22, 0), (22, 1)), 4: ((22, 2), (22, 4)), 5: ((22, 3), (20, 0)), 6: ((18, 0),)}[S]):
            P.add(Raw(f"    s_mov_b32 {s(S_T1)}, {off << 21}\n    s_load_dword s{70+i}, {s(ptr,2)}, {s(S_T1)}"))
    if OPT["wqpf"] and OPT["wqpf"] <= S < OPT["wqpf"] + 4:
        ptr, half = (6, 12)[(S - OPT["wqpf"]) & 1], (S - OPT["wqpf"]) >> 1
        t = (f"    s_lshl2_add_u32 {s(S_T1)}, s2, {s(S_W4)}\n    s_lshr_b32 {s(S_T0)}, {s(S_T1)}, 1\n    s_mul_i32 {s(S_T0)}, {s(S_T0)}, 3072\n"
             f"    s_and_b32 {s(S_T1)}, {s(S_T1)}, 1\n    s_lshl_b32 {s(S_T1)}, {s(S_T1)}, 9\n    s_add_u32 {s(S_T1)}, {s(S_T1)}, {s(S_T0)}\n")
        t += "".join(f"    s_load_dword s{88+i}, {s(ptr,2)}, {s(S_T1)} offset:{half*256+i*64}\n" for i in range(4))
        P.add(Raw(t))
    if OPT["wopf"] and OPT["wopf0"] <= S < OPT["wopf0"] + 4:
        ptr, half = (14, 8)[(S - OPT["wopf0"]) >> 1], S & 1
        t = f"    s_lshl2_add_u32 {s(S_T1)}, s2, {s(S_W4)}\n    s_lshl_b32 {s(S_T1)}, {s(S_T1)}, 9\n"
        t += "".join(f"    s_load_dword s{73+i}, {s(ptr,2)}, {s(S_T1)} offset:{half*256+i*64}\n" for i in range(4))
        P.add(Raw(t))
    if S == 8: P(ep_load)
    if S == 14:
        P(f"""v_lshrrev_b32 v48, 5, {v(V_LANE)}
v_bfe_u32 v49, {v(V_LANE)}, 2, 2
v_lshl_add_u32 v48, v48, 2, v49
v_and_b32 v49, 2, v49
v_bfe_u32 v50, {v(V_LANE)}, 4, 1
v_xor_b32 v49, v49, v50
s_and_b32 {s(S_T1)}, {s(S_W4)}, 2
v_xor_b32 v49, {s(S_T1)}, v49
v_lshlrev_b32 v49, 5, v49
v_lshl_add_u32 v48, v48, 7, v49
v_and_b32 v49, 3, {v(V_LANE)}
v_lshl_add_u32 v48, v49, 3, v48
s_lshl_b32 {s(S_MX)}, {s(S_W4)}, 14
s_lshl_b32 {s(S_T0)}, {s(S_T1)}, 14
v_add_u32 {v(B0)}, {s(S_T0)}, v48
v_xor_b32 {v(B1)}, 64, {v(B0)}
v_xor_b32 v49, 64, v48
s_mul_i32 {s(S_T0)}, {s(S_T1)}, 6144
s_add_u32 {s(S_T0)}, {s(S_T0)}, {L_WA}
v_add_u32 {v(A0)}, {s(S_T0)}, v48
v_add_u32 {v(A1)}, {s(S_T0)}, v49
s_mul_i32 {s(S_T0)}, {s(S_T1)}, 10240
s_add_u32 {s(S_T0)}, {s(S_T0)}, {L_KV}
v_add_u32 {v(A2)}, {s(S_T0)}, v48
v_add_u32 {v(A3)}, {s(S_T0)}, v49
""")
    if S == 15:
        P(f"""s_lshl_b32 {s(S_T0)}, {s(S_W4)}, 12
v_add_u32 {v(EXR)}, {s(S_T0)}, {v(V_L16)}
v_xor_b32 {v(EXW)}, 0x2000, {v(EXR)}
v_and_b32 {v(VOUT)}, 31, {v(V_LANE)}
v_lshlrev_b32 {v(VOUT)}, 10, {v(VOUT)}
v_lshrrev_b32 v48, 5, {v(V_LANE)}
v_lshl_add_u32 {v(VOUT)}, v48, 4, {v(VOUT)}
s_and_b32 {s(S_T2)}, {s(S_W4)}, 1
s_lshl_b32 {s(S_T2)}, {s(S_T2)}, 15
s_lshl_b32 {s(S_T0)}, {s(S_RB3)}, 16
s_add_u32 {s(S_T0)}, {s(S_T0)}, {s(S_T2)}
s_lshl_b32 {s(S_T1)}, {s(S_CB)}, 7
s_add_u32 {s(S_T0)}, {s(S_T0)}, {s(S_T1)}
s_and_b32 {s(S_T1)}, {s(S_W4)}, 2
s_lshl_b32 {s(S_T1)}, {s(S_T1)}, 5
s_add_u32 {s(S_T0)}, {s(S_T0)}, {s(S_T1)}
v_add_u32 {v(VOUT)}, {s(S_T0)}, {v(VOUT)}
s_lshl_b32 {s(S_T0)}, {s(S_RB3)}, 17
s_add_u32 {s(S_T0)}, {s(S_T0)}, {s(S_T2)}
s_lshl_b32 {s(S_T1)}, {s(S_T1)}, 8
s_add_u32 {s(S_T0)}, {s(S_T0)}, {s(S_T1)}
s_add_u32 {s(S_T0)}, {s(S_T0)}, {WS_O}
v_add_u32 {v(VOG)}, {s(S_T0)}, {v(V_L16)}
s_lshl_b32 {s(S_WB)}, {s(S_W4)}, 17
s_lshl_b32 {s(S_T1)}, {s(S_CB)}, 7
s_add_u32 {s(S_WB)}, {s(S_WB)}, {s(S_T1)}
s_lshl3_add_u32 {s(S_R3)}, {s(S_RB3)}, {s(S_CB)}
s_and_b32 {s(S_T1)}, {s(S_W4)}, 2
s_lshl2_add_u32 {s(S_R3)}, {s(S_R3)}, {s(S_T1)}
s_lshl_b32 {s(S_R3)}, {s(S_R3)}, 6""")
    if S == OPT["kvs"]:
        tail = P.items[mark:]; del P.items[mark:]
        P.add(flag_store("none", "kv")); P.items += tail
    if S == 16:
        P("s_waitcnt lgkmcnt(0)")
        H.poll(f"v_cmp_ne_u64 vcc, 0, {v(EP,2)}", ep_load)
        P(f"v_readfirstlane_b32 {s(S_EP)}, {v(EP)}\nv_readfirstlane_b32 {s(S_EP+1)}, {v(EP+1)}")
    if S == 19:
        P.add(srd(S_WOA, 8, 524288) + srd(S_WOB, 14, 524288) + srd(S_OUT, 18, 2097152))
    if S == 20:
        P(f"""v_lshrrev_b32 v48, 3, {v(V_LANE)}
v_bfe_u32 v49, {v(V_LANE)}, 4, 1
v_lshlrev_b32 v49, 2, v49
v_and_b32 v50, 7, {v(V_LANE)}
v_xor_b32 v49, v49, v50
v_lshlrev_b32 v49, 4, v49
v_lshl_add_u32 {v(VWO)}, v48, 10, v49
v_and_b32 {v(VKF)}, 32, {v(V_LANE)}
v_lshlrev_b32 {v(VKF)}, 4, {v(VKF)}
v_mul_u32_u24 {v(V1A)}, {KVS}, v50
v_bfe_u32 v51, {v(V_LANE)}, 3, 1
v_lshl_add_u32 {v(V1A)}, v51, 4, {v(V1A)}
s_mul_i32 {s(S_MW)}, {s(S_W4)}, {KVH}
s_add_u32 {s(S_MW)}, {s(S_MW)}, {L_KV}
s_add_u32 {s(S_T0)}, {s(S_MW)}, 2048
v_add_u32 {v(V1A)}, {s(S_T0)}, {v(V1A)}
s_lshl_b32 {s(S_T0)}, {s(S_RB)}, 1
v_add_u32 v48, {s(S_T0)}, v50
v_cmp_le_u32 vcc, 8, v48
v_mov_b32 v49, {hex(ONES)}
v_cndmask_b32 {v(V1D)}, 0, v49, vcc
v_subrev_u32 v51, 1, v51
v_and_b32 {v(V1D)}, v51, {v(V1D)}
v_mov_b32 {v(V1D+1)}, {v(V1D)}
v_mov_b32 {v(V1D+2)}, {v(V1D)}
v_mov_b32 {v(V1D+3)}, {v(V1D)}
s_mul_i32 {s(S_MA)}, {s(S_W4)}, 6144
s_add_u32 {s(S_MA)}, {s(S_MA)}, {L_WA}
s_mul_i32 {s(S_MB)}, {s(S_W4)}, 10240
s_add_u32 {s(S_MB)}, {s(S_MB)}, {L_KV - 6144}
s_lshl_b32 {s(S_K)}, {s(S_HEAD)}, 5
s_add_u32 {s(S_K)}, {s(S_K)}, {s(S_RB)}
s_lshl_b32 {s(S_K)}, {s(S_K)}, 6
s_add_u32 {s(S_K)}, {s(S_K)}, {WS_FKV}""")
    if S == OPT["gat"] - 1 - OPT["pasy"]:
        H.spoll_issue(4, S_K)
    if S == OPT["gat"] - 1:
        H.spoll(4, S_K, ignore_from=S_RB)
        H.stamp()
    if S == OPT["sents"]:
        P.add([f"v_mov_b32 {v(172+i)}, -1" for i in range(4)])
        P.add(o_store(0, 1, 172, "sent")); P.add(o_store(0, 0, 172, "sent"))
    if S == 23:
        P(f"ds_write_b128 {v(V1A)}, {v(V1D,4)}")
    if S == 24: P.add(Pace(OPT["pace0"]))
    if S == OPT["gat"] + OPT["gdel"]:
        emit_gather(0, tuple(range(OPT['g0'])))
if OPT["p1only"]:
    H.finish()
fs = lambda: H.stamp() if OPT["fine"] == 4 else None
P(f"s_setprio {OPT['hprio']}")
emit_gather(1, tuple(range(OPT['g0'], 8)))
def wo_dma(br):
    o = []
    for t in range(16):
        base = S_MX if br else (S_MA if t < 6 else S_MB)
        g = [f"s_add_u32 m0, {s(base)}, {t*1024}", f"s_add_u32 {s(S_T3)}, {s(S_WB)}, {t*8192}"]
        o.append(g + [dma(VWO, S_WOB if br else S_WOA, s(S_T3), 0, "wob" if br else ("woa" if t < 6 else "woc"))])
    return o
woa, wob = wo_dma(0), wo_dma(1)
P.add(wob[:OPT["wb0"]])
P.add(WaitTag("kv")); P.add(WaitLds()); P("s_barrier")
H.stamp()
if OPT["t2"]: P.add(WaitTag("kvb")); P("s_barrier")
if OPT["sents"] == 25:
    P.add([f"v_mov_b32 {v(172+i)}, -1" for i in range(4)])
    P.add(o_store(0, 1, 172, "sent")); P.add(o_store(0, 0, 172, "sent"))
P.add(Pace(OPT["pace"]))
rest = wob[OPT["wb0"]:] + woa[:6]
if OPT["zbar"]:
    P.add(rest[:OPT["wz"]]); rest = rest[OPT["wz"]:]
    P("s_barrier"); fs(); P.add(flag_store("sent", "ob"))
P.add(rest)
fs()
def o_gather(br):
    o = []
    for hs in range(16):
        if hs % 4 == 0: o += [f"s_mov_b32 {s(S_T1)}, {br*65536 + hs*1024}"]
        o += [ws_ld(v((OFA, OFB)[br]+4*hs,4), VOG, s(S_T1), (hs & 3)*1024)]
    return o
def wo_read(dst, hs, br):
    h, j = hs >> 3, hs & 7
    base, off = ((B0, B1), hs*2048) if br else (((A0, A1), h*6144 + j*2048) if j < 3 else ((A2, A3), h*10240 + (j-3)*2048))
    return [f"ds_read_b64_tr_b16 {v(dst+4*ct+2*q,2)}, {v(base[ct])} offset:{off+q*1024}" for ct in range(2) for q in range(2)]
FIN = ACC3 + 32
def p3(Q, br, hook=lambda hs: None):
    Q.add(wo_read(WBF, 0, br))
    for hs in range(16):
        b = hs & 1
        rd = wo_read(WBF + 8*(1-b), hs + 1, br) if hs < 15 else []
        for ct in ((0, 1) if hs < 15 else (1, 0)):
            acc = v((FIN, ACC3)[br]+16*ct, 16)
            c = acc if hs else ("0" if br else v(ACC3+16*ct, 16))
            Q(mfma(acc, v(WBF+8*b+4*ct,4), v((OFA, OFB)[br]+4*hs,4), c))
            Q.add(rd[2*ct:2*ct+2])
        hook(hs)
def sentinel_scan(hs):
    base = OFA + 4*hs
    first = [f"v_max3_u32 {v(TMP)}, {v(base)}, {v(base+1)}, {v(base+1)}"] if hs == 0 else [f"v_max3_u32 {v(TMP)}, {v(TMP)}, {v(base)}, {v(base+1)}"]
    return first + [f"v_max3_u32 {v(TMP)}, {v(TMP)}, {v(base+2)}, {v(base+3)}"]
P(f"s_add_u32 {s(S_K)}, {s(S_R3)}, {WS_FOB}")
P.add(WaitTag("wob")); P("s_barrier"); fs()
if not OPT["zbar"]: P.add(flag_store("sent", "ob"))
P.add(woa[6:11]); H.spoll_issue(16, S_K); P.add(woa[11:]); fs()
H.spoll(16, S_K); H.stamp()
if OPT["yb"]: P("s_barrier"); fs()
P.add(o_gather(1)); fs()
P(f"s_setprio {OPT['p3prio']}")
p3(P, 1, lambda hs: P.add(o_gather(0)) if hs == OPT["aat"] else None)
H.stamp()
P.add(WaitTag("woa", "woc")); P("s_barrier"); fs()
if OPT["aat"] > 15: P.add(o_gather(0))
test = [f"v_cmp_ne_u32 vcc, -1, {v(TMP)}", "s_cmp_eq_u64 vcc, -1"]
p3(P, 0, lambda hs: P.add(sentinel_scan(hs)))
P.add(test); P("s_cbranch_scc0 L_retry\nL_ok:")
Q = Prog()
Q(f"L_retry:\ns_mov_b32 {s(S_SPIN)}, 0x20000\ns_nop 15\nL_again:"); Q.add(o_gather(0))
Q(f"s_sub_u32 {s(S_SPIN)}, {s(S_SPIN)}, 1\ns_waitcnt vmcnt(0)\ns_cbranch_scc1 L_redo")
for hs in range(16): Q.add(sentinel_scan(hs))
Q.add(test); Q("s_cbranch_scc0 L_again\nL_redo:")
p3(Q, 0); Q("s_nop 15\ns_branch L_ok")
retry_txt = [finalize(Q)]
H.stamp()
P.add([f"ds_write_b128 {v(EXW)}, {v(FIN+16+4*q,4)} offset:{q*1024}" for q in range(4)])
P.add(WaitLds()); P("s_barrier")
P.add([f"ds_read_b128 {v(OFB+4*q,4)}, {v(EXR)} offset:{q*1024}" for q in range(4)])
for hf in range(2):
    P.add([f"v_pk_add_f32 {v(FIN+8*hf+2*i,2)}, {v(FIN+8*hf+2*i,2)}, {v(OFB+8*hf+2*i,2)}" for i in range(4)])
    P.add([f"v_cvt_pk_bf16_f32 {v(WBF+4*hf+i)}, {v(FIN+8*hf+2*i)}, {v(FIN+8*hf+2*i+1)}" for i in (0, 2, 1, 3)])
    P(f"v_permlane32_swap_b32 {v(WBF+4*hf)}, {v(WBF+4*hf+2)}\nv_permlane32_swap_b32 {v(WBF+4*hf+1)}, {v(WBF+4*hf+3)}")
    P(f"buffer_store_dwordx4 {v(WBF+4*hf,4)}, {v(VOUT)}, {s(S_OUT,4)}, 0 offen{' offset:32' if hf else ''}{('', ' sc1', ' nt', ' sc0 sc1')[OPT['outsc']]}")
H.stamp()
H.finish()

C = Role("C"); P = C.P
T1, T3, T2 = 32, 64, 96
XB, WB = 128, 160
V_AX, V_P0L, V_P0H, V_P1L, V_P1H, V_T2L, V_T2H = 192, 194, 195, 196, 197, 198, 199
V_LO, V_HI, V_CMR = 200, 201, 202
VPK = 224
r5, hh, rr, cc, nh, u0, u1, cm, g4 = 128, 129, 130, 131, 132, 133, 134, 135, 140
P("L_crole:")
P.add(late_ids)
if OPT["prio"]: P("s_setprio 1")
P(f"""
v_and_b32 {v(r5)}, 31, {v(V_LANE)}
v_lshrrev_b32 {v(hh)}, 5, {v(V_LANE)}
v_lshrrev_b32 {v(g4)}, 4, {v(V_LANE)}
v_and_b32 {v(u1)}, 15, {v(V_LANE)}
v_lshrrev_b32 {v(u0)}, 1, {v(u1)}
v_xor_b32 {v(u0)}, {v(u0)}, {v(g4)}
v_lshlrev_b32 {v(u0)}, 4, {v(u0)}
v_lshl_add_u32 {v(u0)}, {v(u1)}, 7, {v(u0)}
v_add_u32 {v(V_AX)}, {L_X}, {v(u0)}
v_xor_b32 {v(V_AX+1)}, 64, {v(V_AX)}
v_bfe_u32 {v(rr)}, {v(V_LANE)}, 2, 2
v_and_b32 {v(cc)}, 3, {v(V_LANE)}
v_and_b32 {v(nh)}, 1, {v(g4)}
v_lshl_add_u32 {v(u0)}, {v(g4)}, 3, {v(rr)}
v_xor_b32 {v(u1)}, {s(S_W4)}, {v(rr)}
v_lshlrev_b32 {v(u1)}, 5, {v(u1)}
v_lshl_add_u32 {v(u1)}, {v(cc)}, 3, {v(u1)}
v_lshl_add_u32 {v(u1)}, {v(u0)}, 8, {v(u1)}
v_lshl_add_u32 {v(V_P0L)}, {v(nh)}, 7, {v(u1)}
v_add_u32 {v(V_P0H)}, 0x10000, {v(V_P0L)}
v_xor_b32 {v(V_P1L)}, 0x80, {v(V_P0L)}
v_xor_b32 {v(V_P1H)}, 0x80, {v(V_P0H)}
v_lshrrev_b32 {v(u1)}, 1, {v(rr)}
v_lshl_add_u32 {v(u1)}, {v(nh)}, 1, {v(u1)}
v_xor_b32 {v(u1)}, {s(S_W4)}, {v(u1)}
v_lshlrev_b32 {v(u1)}, 5, {v(u1)}
v_lshl_add_u32 {v(u1)}, {v(cc)}, 3, {v(u1)}
v_lshl_add_u32 {v(V_T2L)}, {v(u0)}, 7, {v(u1)}
v_add_u32 {v(V_T2H)}, 0x10000, {v(V_T2L)}
v_and_b32 {v(u0)}, 15, {v(V_LANE)}
v_lshlrev_b32 {v(u0)}, 4, {v(u0)}
v_lshl_add_u32 {v(u0)}, {v(hh)}, 8, {v(u0)}
v_lshl_add_u32 {v(V_LO)}, {v(nh)}, 31, {v(u0)}
v_xor_b32 {v(V_HI)}, {OOB}, {v(V_LO)}
v_lshlrev_b32 {v(u0)}, 2, {v(hh)}
v_sub_u32 {v(cm)}, {v(r5)}, {v(u0)}
v_sub_u32 {v(u0)}, 32, {v(cm)}
v_mov_b32 {v(u1)}, {hex(~0x55540001 & 0xffffffff)}
v_alignbit_b32 {v(V_CMR)}, {v(u1)}, {v(u1)}, {v(u0)}
s_waitcnt lgkmcnt(0)""")
if OPT["wsoff"]: P(f"s_add_u32 s22, s22, {OPT['wsoff'] << 20}\ns_addc_u32 s23, s23, 0")
P.add(entry_stamp())
P(f"""s_memrealtime {s(S_TM,2)}
s_mov_b32 {s(S_C)}, {fhex(QK_SCALE)}
s_mov_b32 {s(S_C+1)}, {fhex(QK_SCALE)}
""")
def l2_prefetch():
    a, b = 140, 141
    o = lines(f"""s_lshr_b32 {s(S_T0)}, s2, 3
s_and_b32 {s(S_T1)}, {s(S_HG)}, 4
s_lshl_b32 {s(S_T1)}, {s(S_T1)}, 7
v_and_b32 {v(a)}, 3, {v(V_LANE)}
v_lshlrev_b32 {v(a)}, 7, {v(a)}
s_cmp_eq_u32 {s(S_W4)}, 2
s_cbranch_scc1 L_pfx
s_cmp_eq_u32 {s(S_W4)}, 3
s_cbranch_scc1 L_pfq
s_cmp_eq_u32 {s(S_W4)}, 0
s_cselect_b32 {s(S_W)}, s6, s12
s_cselect_b32 {s(S_W+1)}, s7, s13
s_mov_b32 {s(S_W+2)}, 1572864
s_mov_b32 {s(S_W+3)}, 0x20000
v_bfe_u32 {v(b)}, {v(V_LANE)}, 2, 1
v_lshl_add_u32 {v(a)}, {v(b)}, 10, {v(a)}
v_lshrrev_b32 {v(b)}, 3, {v(V_LANE)}
v_mul_u32_u24 {v(b)}, 0xc00, {v(b)}
v_add_u32 {v(a)}, {v(a)}, {v(b)}
s_mul_i32 {s(S_T0)}, {s(S_T0)}, {8*3072}
s_add_u32 {s(S_T0)}, {s(S_T0)}, {s(S_T1)}
s_add_u32 {s(S_T0)}, {s(S_T0)}, 1024
buffer_load_dword v190, {v(a)}, {s(S_W,4)}, {s(S_T0)} offen
s_add_u32 {s(S_T0)}, {s(S_T0)}, {256*3072}
buffer_load_dword v191, {v(a)}, {s(S_W,4)}, {s(S_T0)} offen
s_branch L_pfe
L_pfx:
s_mov_b32 {s(S_W)}, s4
s_mov_b32 {s(S_W+1)}, s5
s_mov_b32 {s(S_W+2)}, 2097152
s_mov_b32 {s(S_W+3)}, 0x20000
v_lshrrev_b32 {v(b)}, 2, {v(V_LANE)}
v_lshl_add_u32 {v(a)}, {v(b)}, 10, {v(a)}
s_lshl_b32 {s(S_T0)}, {s(S_T0)}, 14
s_and_b32 {s(S_T1)}, {s(S_RB)}, 24
s_lshl_b32 {s(S_T1)}, {s(S_T1)}, 16
s_add_u32 {s(S_T0)}, {s(S_T0)}, {s(S_T1)}
buffer_load_dword v190, {v(a)}, {s(S_W,4)}, {s(S_T0)} offen
buffer_load_dword v191, {v(a)}, {s(S_W,4)}, {s(S_T0)} offen offset:512
s_branch L_pfe
L_pfq:
s_mov_b32 {s(S_W)}, s6
s_mov_b32 {s(S_W+1)}, s7
s_mov_b32 {s(S_W+2)}, 1572864
s_mov_b32 {s(S_W+3)}, 0x20000
v_lshrrev_b32 {v(b)}, 2, {v(V_LANE)}
v_mul_u32_u24 {v(b)}, 0xc00, {v(b)}
v_add_u32 {v(a)}, {v(a)}, {v(b)}
s_mul_i32 {s(S_T0)}, {s(S_T0)}, {16*3072}
s_add_u32 {s(S_T0)}, {s(S_T0)}, {s(S_T1)}
buffer_load_dword v190, {v(a)}, {s(S_W,4)}, {s(S_T0)} offen
s_mov_b32 {s(S_W)}, s12
s_mov_b32 {s(S_W+1)}, s13
buffer_load_dword v191, {v(a)}, {s(S_W,4)}, {s(S_T0)} offen
L_pfe:""")
    P.add(Raw("\n".join(("" if l.endswith(":") else "    ") + l for l in o)))
    P("s_nop 0")
if OPT["pf"] == 1: l2_prefetch()
P.add(srd(S_WS, 22, WS_SIZE) + srd(S_DBG, 20, 256))
P(f"""s_cmp_eq_u32 s2, 0
s_cselect_b32 {s(S_T2)}, 0, {OOB}
v_lshlrev_b32 v5, 8, v0
v_or_b32 v5, {s(S_T2)}, v5
s_waitcnt lgkmcnt(0)
v_mov_b32 {v(EP)}, {s(S_TM)}
v_mov_b32 {v(EP+1)}, {s(S_TM+1)}
buffer_store_dwordx2 {v(EP,2)}, v5, {s(S_DBG,4)}, 0 offen sc1""")
V_AXW, V_AG, V_GPW, V_GPR, XW, GF, GACC = 4, 8, 9, 13, 240, 248, 204
P(f"""s_lshl_b32 {s(S_T2)}, {s(S_W4)}, 11
v_add_u32 {v(V_AXW)}, {s(S_T2)}, {v(V_AX)}
v_add_u32 {v(V_AXW+1)}, {s(S_T2)}, {v(V_AX+1)}
v_lshlrev_b32 {v(V_AG)}, 4, {v(g4)}
v_add_u32 {v(V_AG)}, {L_G}, {v(V_AG)}
v_lshlrev_b32 {v(V_GPR)}, 2, {v(r5)}
v_add_u32 {v(V_GPR)}, {L_GP}, {v(V_GPR)}
v_and_b32 {v(u0)}, 15, {v(V_LANE)}
s_lshl_b32 {s(S_T2)}, {s(S_W4)}, 6
s_add_u32 {s(S_T2)}, {s(S_T2)}, {L_GP}
v_lshl_add_u32 {v(V_GPW)}, {v(u0)}, 2, {s(S_T2)}""")
def x_warm(js):
    t = (f"    s_lshl2_add_u32 {s(S_T0)}, s2, {s(S_W4)}\n    s_lshr_b32 {s(S_T1)}, {s(S_T0)}, 5\n    s_lshl_b32 {s(S_T0)}, {s(S_T0)}, 11\n")
    for j in js:
        t += f"    s_add_u32 {s(S_K)}, {s(S_T1)}, {j}\n    s_and_b32 {s(S_K)}, {s(S_K)}, 7\n    s_lshl_b32 {s(S_K)}, {s(S_K)}, 7\n    s_add_u32 {s(S_K)}, {s(S_K)}, {s(S_T0)}\n"
        t += "".join(f"    s_load_dword s{28+i}, s[4:5], {s(S_K)} offset:{(i >> 1)*1024 + (i & 1)*64}\n" for i in range(4))
    P.add(Raw(t))
if OPT["xwarm"] == 1: x_warm((1, 2, 3))
P.add(attn_setup(0, 136))
if OPT["xwarm"] == 2: x_warm((1, 2, 3))
if OPT["xwarm"]:
    P("s_waitcnt lgkmcnt(0)"); x_warm((4, 5, 6)); P("s_waitcnt lgkmcnt(0)"); x_warm((7,)); P("s_waitcnt lgkmcnt(0)")
C.stamp()

CM, QB, KB, VB, KBH, VBH, BP, BPL, BPK, SENT, S_R0 = 176, 248, 240, 32, 80, 84, 192, 88, 88, 220, 24
BS2, BSP2, BO2 = (96, 48), (128, 112), (160, 144)
nohalo = [""]
def b_scores(t):
    kprev = v(KB, 4) if t == 1 else v(KBH, 4)
    return [mfma(v(BS2[t],16), v(KB+4*t,4), v(QB+4*t,4), v(CM,16)), mfma(v(BSP2[t],16), kprev, v(QB+4*t,4), v(CM,16))]
def b_softmax(t):
    S, sp, m, p, pl = BS2[t], BSP2[t], TMP + 2*t, BP + 8*t, BPL + 4*t
    o = [f"v_cndmask_b32 {v(S+q)}, {v(S+q)}, {v(sp+q)}, {s(S_LO16,2)}" for q in range(8, 16)]
    if t == 0:
        o += [[f"s_cmp_eq_u32 {s(S_RB)}, 0", "s_cbranch_scc1 L_nohalo", "L_halo:"]]
        nohalo[0] = ("L_nohalo:\n" + f"    v_mov_b32 {v(m)}, {hex(NEG_BIG)}\n" +
                     "".join(f"    v_cndmask_b32 {v(S+q)}, {v(S+q)}, {v(m)}, {s(S_LO16,2)}\n" for q in range(8, 16)) + "    s_branch L_halo\n")
    o += max_tree(m, range(S, S+16)) + cross_max(m, m+1)
    o += [f"v_pk_add_f32 {v(S+2*q,2)}, {v(S+2*q,2)}, {v(m,2)} op_sel_hi:[1,0] neg_lo:[0,1] neg_hi:[0,1]" for q in range(8)]
    o += [f"v_exp_f32 {v(S+q)}, {v(S+q)}" for q in range(16)]
    o += [f"v_cvt_pk_bf16_f32 {v(p+i)}, {v(S+2*i)}, {v(S+2*i+1)}" for i in range(8)]
    o += [f"v_cndmask_b32 {v(pl+i)}, 0, {v(p+4+i)}, {s(S_LO16,2)}" for i in range(4)]
    o += [f"v_cndmask_b32 {v(p+4+i)}, {v(p+4+i)}, 0, {s(S_LO16,2)}" for i in range(4)]
    return o
def b_pv(t):
    vprev, acc, p = v(VB+4, 4) if t == 1 else v(VBH, 4), v(BO2[t], 16), BP + 8*t
    return [mfma(acc, v(VB+8*t,4), v(p,4), "0"), mfma(acc, v(VB+8*t+4,4), v(p+4,4), acc), mfma(acc, vprev, v(BPL+4*t,4), acc)]
def b_pack(t):
    f = 200 + 2*t
    return o_pack(BO2[t], 8, 0, [f"v_sub_f32 {v(f+1)}, 1.0, {v(G0+t)}", f"v_mul_f32 {v(f)}, {v(f)}, {v(f+1)}"], BPK+4*t, f)
def frag_reads(n):
    b, m = n & 1, n & 15
    j, u2 = m >> 1, m & 1
    base = (stage_of(n) % NSLOT) * SLOT
    hi = base >= 65536; off = base - (65536 if hi else 0)
    x = [f"ds_read_b128 {v(XB+16*b+4*tg,4)}, {v(V_AX+u2)} offset:{j*8192+tg*2048}" for tg in range(4)]
    if n < 16:
        w = [f"ds_read_b64_tr_b16 {v(WB+16*b+4*f+2*qd,2)}, {v(((V_P0L,V_P0H),(V_P1L,V_P1H))[pos][hi])} offset:{off+M*8192+qd*1024}"
             for f, (M, pos) in enumerate(((0, 0), (1, 1), (0, 1), (1, 0))) for qd in range(2)]
        return w[0:2] + x[0:2] + w[2:4] + x[2:4] + w[4:8]
    w = [f"ds_read_b64_tr_b16 {v(WB+8*b+4*M+2*qd,2)}, {v((V_T2L,V_T2H)[hi])} offset:{off+M*8192+u2*4096+qd*512}" for M in range(2) for qd in range(2)]
    return w[0:2] + x[0:2] + w[2:4] + x[2:4]
def step_mfmas(n):
    b = n & 1
    x = lambda tg: v(XB+16*b+4*tg, 4)
    c = lambda r: "0" if n in (0, 16) else v(r, 4)
    kq = lambda T, wbase: [mfma16(v(T+16*f+4*tg,4), v(wbase+4*f,4), x(tg), c(T+16*f+4*tg)) for hf in range(2) for f in range(2) for tg in (2*hf, 2*hf+1)]
    if n < 16:
        return kq(T1, WB+16*b) + [mfma16(v(T3+16*f+4*tg,4), x(tg), v(WB+16*b+8+4*f,4), c(T3+16*f+4*tg)) for f in range(2) for tg in range(4)]
    return kq(T2, WB+8*b)
def kq_frag(dst, T, tt, scale):
    a = T + 8*tt
    o = [f"v_pk_mul_f32 {v(a+2*i,2)}, {v(a+2*i,2)}, {s(S_C,2)}" for i in range(4)] if scale else []
    o += [f"v_cvt_pk_bf16_f32 {v(dst+i)}, {v(a+2*i)}, {v(a+2*i+1)}" for i in (0, 2, 1, 3)]
    return o, [f"v_permlane16_swap_b32 {v(dst+i)}, {v(dst+2+i)}" for i in range(2)]
def v_frag(tg):
    d = VPK + 4*tg
    o = [f"v_cvt_pk_bf16_f32 {v(d+2*f+i)}, {v(T3+16*f+4*tg+2*i)}, {v(T3+16*f+4*tg+2*i+1)}" for i in range(2) for f in range(2)]
    return o, [f"v_permlane16_swap_b32 {v(d+i)}, {v(d+2+i)}" for i in range(2)], [f"v_permlane32_swap_b32 {v(d+i)}, {v(d+2+i)}" for i in range(2)]
def kv_publish():
    o = [f"s_lshl_b32 {s(S_T0)}, {s(S_HEAD)}, 17", f"s_lshl_b32 {s(S_T1)}, {s(S_RB)}, 12", f"s_add_u32 {s(S_T0)}, {s(S_T0)}, {s(S_T1)}"]
    k = [kq_frag(KA+4*tt, T1, tt, True) for tt in range(2)]
    o += k[0][0] + k[1][0] + k[0][1] + k[1][1] + [ws_st(v(KA+4*tt,4), V_L16, s(S_T0), tt*2048, "kv") for tt in range(2)]
    for tt in range(2):
        f = [v_frag(2*tt + m) for m in range(2)]
        o += f[0][0] + f[1][0] + f[0][1] + f[1][1] + f[0][2] + f[1][2]
        o += [ws_st(v(VPK+8*tt+4*m,4), V_LO, s(S_T0), tt*2048+1024+m*512, "kv") for m in range(2)]
    o += [f"s_lshl_b32 {s(S_T0)}, {s(S_HEAD)}, 15", f"s_lshl_b32 {s(S_T1)}, {s(S_RB)}, 10",
          f"s_add_u32 {s(S_T0)}, {s(S_T0)}, {s(S_T1)}", f"s_add_u32 {s(S_T0)}, {s(S_T0)}, {WS_HB}",
          ws_st(v(VPK+12,4), V_HI, s(S_T0), 512, "kv")]
    k = [kq_frag(KB+4*tt, T1+16, tt, True) for tt in range(2)]
    o += k[1][0] + k[0][0] + k[1][1] + [ws_st(v(KB+4,4), V_HI, s(S_T0), 0, "kv")] + k[0][1]
    return o

if OPT["p1only"]:
    P("s_barrier\n" * 25 + "s_endpgm")
P("s_barrier")
C.stamp()
P.add(frag_reads(0))
queue = []
gf = gate_finish(V_GPR, 88)
qb0, qb1, qa0, qa1 = kq_frag(QB, T2+16, 0, False), kq_frag(QB+4, T2+16, 1, False), kq_frag(QA, T2, 0, False), kq_frag(QA1, T2, 1, False)
for n in range(32):
    mf = step_mfmas(n)
    sync = first_of_stage(n + 1) or n == 31
    nxt_stage = stage_of(n + 1) if n < 31 else 24
    rd = frag_reads(n + 1) if n < 31 else []
    if n < 16:
        m, gb = (n + 1) & 15, (n + 1) & 1
        rd = rd + [f"ds_read_b128 {v(GF+4*gb,4)}, {v(V_AG)} offset:{m*64}", f"ds_read_b128 {v(XW+4*gb,4)}, {v(V_AXW+gb)} offset:{(m >> 1)*8192}"]
    gm = [mfma16(v(GACC,4), v(GF+4*(n&1),4), v(XW+4*(n&1),4), "0" if n == 1 else v(GACC,4))] if 1 <= n <= 16 else []
    late = []
    if n == 15:
        pub = kv_publish()
        if OPT["early"]:
            late, pub = pub[:25], pub[25:]
            mf = [mf[i] for i in (0, 1, 4, 5, 8, 9, 10, 11, 12, 13, 14, 15, 2, 3, 6, 7)]
    if n == 16: queue += pub
    if n == 31 and OPT["early"]:
        mf = [mf[i] for i in (2, 3, 6, 7, 0, 1, 4, 5)]
        late = gf[2:] + qb0[0] + qb1[0] + qb0[1] + qb1[1]
    if n == 21:
        queue += [f"v_and_b32 {v(TMP)}, 11, {v(V_LANE)}", f"v_mov_b32 {v(TMP+1)}, {hex(ONES)}", f"v_cmp_eq_u32 vcc, 0, {v(TMP)}",
                  f"v_cndmask_b32 {v(TMP)}, 0, {v(TMP+1)}, vcc", f"v_mov_b32 {v(TMP+1)}, {hex(NEG_BIG)}"]
        queue += [f"v_mov_b32 {v(VBH+i)}, {v(TMP)}" for i in range(4)]
        queue += [f"v_cndmask_b32 {v(VB+i)}, {v(VPK+i)}, {v(TMP)}, {s(S_LO16,2)}" for i in range(16)]
        queue += [f"v_cndmask_b32 {v(VA+i)}, {v(TMP)}, {v(VPK+i)}, {s(S_LO16,2)}" for i in range(16)]
        queue += [f"v_cndmask_b32 {v(CMA+q)}, {v(TMP+1)}, 0, {s(S_MASK+2*q,2)}" for q in range(16)]
        queue += [f"v_bfe_i32 {v(CM+q)}, {v(V_CMR)}, {8*(q>>2)+(q&3)}, 1" for q in range(16)]
        queue += [f"v_and_b32 {v(CM+q)}, {v(TMP+1)}, {v(CM+q)}" for q in range(16)]
    if n == 16: mf = mf[:2] + gm + mf[2:]
    else: mf = mf + gm
    post = []
    pre = []
    if sync and nxt_stage == 23:
        (pre if OPT["gpre"] else post).append(f"ds_write_b32 {v(V_GPW)}, {v(GACC)}")
    if sync and nxt_stage == OPT["gat"]:
        rd = rd + [lines(f"""s_lshl_b32 {s(S_T0)}, {s(S_HEAD)}, 15
s_lshl_b32 {s(S_T1)}, {s(S_RB)}, 10
s_add_u32 {s(S_T0)}, {s(S_T0)}, {s(S_T1)}
s_add_u32 {s(S_T0)}, {s(S_T0)}, {WS_HB - 1024}
s_cmp_eq_u32 {s(S_RB)}, 0
s_cselect_b32 {s(S_T0)}, {WS_SIZE}, {s(S_T0)}""") + [ws_ld(v(KBH,4), V_HI, s(S_T0)), f"s_not_b64 exec, {s(S_LO16,2)}",
                 ws_ld(v(VBH,4), V_HI, s(S_T0), 512), "s_mov_b64 exec, -1"]]
    if n == 31: post += gf[:2]
    take = 8 if n < 16 else (OPT["take"] if n < 21 else OPT["take2"])
    side = queue[:take]; queue = queue[take:]
    P.add(pre); P(mf[0]); P(mf[1])
    if sync:
        if nxt_stage == OPT["kvs"]: P.add(WaitTag("kv")); C.stamp()
        P.add(WaitLds()); P("s_barrier")
        if OPT["fine"] in (1, 2, 3): C.stamp()
    P.add(post)
    body, k = rd, len(mf) - 2
    nr = max(1, k - (4 if n < 16 else 2))
    for i in range(k + 1):
        lo, hi_ = len(body) * i // nr, len(body) * (i + 1) // nr
        if i < nr: P.add(body[lo:hi_])
        slo, shi = len(side) * i // (k + 1), len(side) * (i + 1) // (k + 1)
        P.add(side[slo:shi])
        i0 = 7 if n == 15 else 2
        if late and i >= i0: P.add(late[len(late) * (i - i0) // (k + 1 - i0):len(late) * (i - i0 + 1) // (k + 1 - i0)])
        if i < k: P(mf[2 + i])
    if n == 15 or (OPT["fine"] == 6 and n < 31): C.stamp()
assert not queue
C.stamp()
sc = interleave(b_scores(0), b_scores(1))
if OPT["early"]:
    P(sc[1]); P.add(qa0[0]); P(sc[2]); P.add(qa1[0]); P(sc[0]); P.add(qa0[1] + qa1[1]); P(sc[3])
else:
    P.add(gf[2:]); P.add(qb0[0] + qa0[0] + qb0[1] + qb1[0] + qa1[0])
    P(sc[2]); P.add(qb1[1] + qa0[1]); P(sc[0]); P.add(qa1[1]); P(sc[1]); P(sc[3])
s1, s0 = b_softmax(1), b_softmax(0)
P.add(s0[:2])
sm = interleave(s0[2:9], s1[:7]) + interleave(s0[9:], s1[7:])
P.add(sm[:-16])
pv = interleave(b_pv(0), b_pv(1))
P(mfma(v(MG+16,16), v(KA+4,4), v(QA1,4), v(CMA,16))); P.add(sm[-16:-10]); P(mfma(v(MG,16), v(KA,4), v(QA,4), v(CMA,16))); P.add(sm[-10:])
mx = interleave(*[max_tree((TMP, TMP+2)[t], range(MG+16*t, MG+16*t+16)) + cross_max((TMP, TMP+2)[t], (TMP, TMP+2)[t]+1) for t in (1, 0)])
for i, m in enumerate(pv):
    P(m); P.add(mx[4*i:4*i+4])
ng = [[f"v_pk_add_f32 {v(NEGM+16*t+2*i,2)}, 0, {v((TMP, TMP+2)[t],2)} op_sel_hi:[0,0] neg_lo:[0,1] neg_hi:[0,1]" for i in range(8)] for t in range(2)]
P.add(ng[0])
BPK = 192
P.add(interleave(b_pack(0), b_pack(1)))
P.add(o_store(1, 0, BPK, "ob")); P.add(o_store(1, 1, BPK+4, "ob"))
P.add(ng[1])
C.stamp()
cs = lambda: C.stamp() if OPT["fine"] == 4 else None
cev = {("e1" if OPT["xhs"] < 0 else OPT["xhs"]): lambda: (P.add(WaitTag("ob")) if OPT["f2by"] else None, P.add(WaitLds()), P("s_barrier"))}
if not OPT["f2by"]: cev["e1" if OPT["f2hs"] < 0 else OPT["f2hs"]] = lambda: (cs(), P.add(flag_store("ob", "ob")), cs())
if OPT["zbar"]: cev[("e1", 0, 1)[OPT["zbar"] - 1]] = lambda: (P.add(WaitTag("ob")), P("s_barrier"))
window_attention(C, cev)
P.add(interleave(*[o_pack(OACC2[t], 0, 8, [f"v_mul_f32 {v(TMP+2*t)}, {v(TMP+2*t)}, {v(G0+t)}"], PF+4*t, TMP+2*t) for t in (1, 0)]))
P.add(o_store(0, 1, PF+4, "oa")); P.add(o_store(0, 0, PF, "oa"))
if OPT["yb"]: P("s_barrier")
C.stamp()
C.finish()

full = Prog(); full.items = E.items + H.P.items
bodyH = finalize(full, verbose=True)
full = Prog(); full.items = [Ins("s_load_dwordx16 s[4:19], s[0:1], 0"), Ins("global_load_dword v13, v5, s[96:97]")] + C.P.items
bodyC = "\n".join(finalize(full, verbose=True).split("\n")[2:])
print("stamps H", H.ns, "C", C.ns)
hdr = open("cdna_kernels/%s.s.ref" % NAME).read().split("; Override launch")[0]
if OPT["stamps"]: hdr += f"; stamps {C.ns} {H.ns}\n"
txt = hdr + f"""; Single launch, 256 workgroups x 8 waves, one workgroup per CU (4 heads x 64 rows of both branches).
;   waves 0-3: QKV projection (one head each), dilated attention, sliding-window attention
;   waves 4-7: LDS-DMA streaming of x / weights / key-value tiles, then one 64x64 tile of the output projection
; Hand-offs between workgroups go through d_ws with write-through stores; flags carry a per-launch epoch published
; through d_debug, and the windowed-branch result slots are first filled with all-ones and re-read until overwritten.
; Window softmax: the shift is the maximum over the diagonal key tile; if a sum or output leaves the safe range the
; tile is recomputed with the true row maximum (L_exact0 / L_exact1).
; @launch grid=(256,1,1) block=(512,1,1) lds={LDS_BYTES}
.amdgcn_target "amdgcn-amd-amdhsa--gfx950"
.text
.globl {NAME}_kernel
.p2align 12
.p2align 8
.type {NAME}_kernel,@function
{NAME}_kernel:
{bodyH}{bodyC}L_end:
    s_endpgm
{nohalo[0]}{''.join(retry_txt)}{''.join(special_txt)}{slow_path()}    .fill 3072, 4, 0xbf800000
.section .rodata,"a"
.p2align 6
.amdhsa_kernel {NAME}_kernel
  .amdhsa_next_free_vgpr 256
  .amdhsa_next_free_sgpr 102
  .amdhsa_accum_offset {192 if OPT['xp'] == 8 else 256}
  .amdhsa_group_segment_fixed_size 0
  .amdhsa_kernarg_size 80
  .amdhsa_user_sgpr_count 2
  .amdhsa_user_sgpr_kernarg_segment_ptr 1
  .amdhsa_system_sgpr_workgroup_id_x 1
.end_amdhsa_kernel
"""
open(sys.argv[1], "w").write(txt)
```
